```python
import torch

def _softmax(x, axis=-1):
    return torch.softmax(x, dim=axis)
def _gelu(x):
    return torch.nn.functional.gelu(x, approximate="tanh")
def _silu(x):
    return torch.nn.functional.silu(x)
def _sigmoid(x):
    return torch.sigmoid(x)
def _layernorm(x, axis=-1, eps=1e-5):
    m = x.mean(dim=axis, keepdim=True)
    v = x.var(dim=axis, keepdim=True, unbiased=False)
    return (x - m) / torch.sqrt(v + eps)
def _scatter_add(tgt, idx, src, axis=0):
    return tgt.clone().index_add_(axis, idx, src)
def _segment_sum(src, seg, n):
    out = torch.zeros((n,) + src.shape[1:], dtype=src.dtype)
    return out.index_add_(0, seg, src)
def _pad(x, pw):
    flat = tuple(v for pair in reversed(pw) for v in pair)
    return torch.nn.functional.pad(x, flat)

kernel_name = 'interleave_layers__sliding_block_cached__glu_gated_glu__decode'

def setup_inputs():

    _w = (lambda a: (lambda t: t.to(torch.bfloat16) if t.is_floating_point() else t)(torch.as_tensor(a)))
    def _A_setup():
        B, Sq, D = 2, 1, 512
        Hq, Hkv, Sk, Dh = 32, 8, 32768, 128
        assert Hq % Hkv == 0, (Hq, Hkv)
        return {
            "x": _w((lambda *s: torch.randn(*s, dtype=torch.bfloat16) * 0.05)(B, Sq, D)),
            "k_cache": _w((lambda *s: torch.randn(*s, dtype=torch.bfloat16) * 1.6)(B, Hkv, Sk, Dh)),
            "v_cache": _w((lambda *s: torch.randn(*s, dtype=torch.bfloat16) * 1.6)(B, Hkv, Sk, Dh)),
            "wq": _w((lambda *s: torch.randn(*s, dtype=torch.bfloat16) * 1.6)(D, Hq * Dh) * (D ** -0.5)),
            "wo": _w((lambda *s: torch.randn(*s, dtype=torch.bfloat16) * 1.6)(Hq * Dh, D) * ((Hq * Dh) ** -0.5)),
        }
    _A_in = _A_setup()

    def _B_setup():
        B, S, D, F = 2, 1, 512, 1792
        return {
            "x": _w((lambda *s: torch.randn(*s, dtype=torch.bfloat16) * 0.05)(B, S, D)),
            "w_gate": _w((lambda *s: torch.randn(*s, dtype=torch.bfloat16) * 0.05)(D, F)),
            "w_up": _w((lambda *s: torch.randn(*s, dtype=torch.bfloat16) * 0.05)(D, F)),
            "w_down": _w((lambda *s: torch.randn(*s, dtype=torch.bfloat16) * 0.05)(F, D)),
        }
    _B_in = _B_setup()

    return {
        "A_x": _A_in["x"],
        "A_k_cache": _A_in["k_cache"],
        "A_v_cache": _A_in["v_cache"],
        "A_wq": _A_in["wq"],
        "A_wo": _A_in["wo"],
        "B_x": _B_in["x"],
        "B_w_gate": _B_in["w_gate"],
        "B_w_up": _B_in["w_up"],
        "B_w_down": _B_in["w_down"],
    }

def reference(A_x, A_k_cache, A_v_cache, A_wq, A_wo, B_x, B_w_gate, B_w_up, B_w_down):
    def _A_ref(x, k_cache, v_cache, wq, wo):
        B, Sq, D = x.shape
        Hq, Dh = 32, 128
        Hkv, Sk = k_cache.shape[1], k_cache.shape[2]
        W = min(4096, max(256, Sk // 4))
        rep = Hq // Hkv
        q = (lambda x, *d: x.permute(*d))((x @ wq).reshape(B, Sq, Hq, Dh), 0, 2, 1, 3)
        k = (lambda x, n, axis: torch.repeat_interleave(x, n, dim=axis))(k_cache[:, :, Sk - W:, :], rep, axis=1)
        v = (lambda x, n, axis: torch.repeat_interleave(x, n, dim=axis))(v_cache[:, :, Sk - W:, :], rep, axis=1)
        scores = torch.einsum("bhqd,bhkd->bhqk", q, k) * (Dh ** -0.5)
        p = _softmax(scores, axis=-1)
        o = torch.einsum("bhqk,bhkd->bhqd", p, v)
        return (lambda x, *d: x.permute(*d))(o, 0, 2, 1, 3).reshape(B, Sq, Hq * Dh) @ wo

    def _B_ref(x, w_gate, w_up, w_down):
        g = torch.einsum("bsd,df->bsf", x, w_gate)
        u = torch.einsum("bsd,df->bsf", x, w_up)
        h = _sigmoid(g) * u
        return torch.einsum("bsf,fd->bsd", h, w_down)

    x = A_x
    x = x + _A_ref(_layernorm(x, axis=-1), A_k_cache, A_v_cache, A_wq, A_wo)
    x = x + _B_ref(_layernorm(x, axis=-1), B_w_gate, B_w_up, B_w_down)
    x = x + _A_ref(_layernorm(x, axis=-1), A_k_cache, A_v_cache, A_wq, A_wo)
    x = x + _B_ref(_layernorm(x, axis=-1), B_w_gate, B_w_up, B_w_down)
    return x
```

```python
class Asm:
    def __init__(self):
        self.lines = []
        self._lab = 0
    def __call__(self, s=""):
        for l in s.split("\n"):
            l = l.strip()
            if l == "":
                continue
            if l.endswith(":") or l.startswith(".") or l.startswith(";"):
                self.lines.append(l)
            else:
                self.lines.append("    " + l)
    def label(self, base="L"):
        self._lab += 1
        return f"{base}_{self._lab}"
    def text(self):
        return "\n".join(self.lines) + "\n"

def kernel_wrap(name, body, vgpr, sgpr, accum=None, launch=None, header_comments=""):
    if accum is None:
        accum = (vgpr + 3) // 4 * 4
    out = []
    if header_comments:
        out.append(header_comments.rstrip())
    if launch:
        out.append(launch)
    out.append('.amdgcn_target "amdgcn-amd-amdhsa--gfx950"')
    out.append(".text")
    out.append(f".globl {name}")
    out.append(".p2align 8")
    out.append(f".type {name},@function")
    out.append(f"{name}:")
    out.append(body.rstrip())
    out.append('.section .rodata,"a"')
    out.append(".p2align 6")
    out.append(f".amdhsa_kernel {name}")
    out.append(f"  .amdhsa_next_free_vgpr {vgpr}")
    out.append(f"  .amdhsa_next_free_sgpr {sgpr}")
    out.append(f"  .amdhsa_accum_offset {accum}")
    out.append("  .amdhsa_group_segment_fixed_size 0")
    out.append("  .amdhsa_kernarg_size 96")
    out.append("  .amdhsa_user_sgpr_count 2")
    out.append("  .amdhsa_user_sgpr_kernarg_segment_ptr 1")
    out.append("  .amdhsa_system_sgpr_workgroup_id_x 1")
    out.append(".end_amdhsa_kernel")
    return "\n".join(out) + "\n"
```

```python
import re

REG = re.compile(r'^(-|\|)?(abs\()?([vsa])(?:(\d+)|\[(\d+):(\d+)\])\)?\|?$')
def regs_of(tok):
    tok = tok.strip()
    if tok in ("vcc", "vcc_lo", "vcc_hi"):
        return {"vcc"}
    if tok in ("exec", "exec_lo", "exec_hi"):
        return {"exec"}
    if tok == "m0":
        return {"m0"}
    m = REG.match(tok)
    if not m:
        return set()
    k = m.group(3)
    if m.group(4) is not None:
        return {f"{k}{m.group(4)}"}
    return {f"{k}{i}" for i in range(int(m.group(5)), int(m.group(6)) + 1)}

TRANS = ("v_exp_f32", "v_log_f32", "v_rcp_f32", "v_rsq_f32", "v_sqrt_f32", "v_sin_f32", "v_cos_f32", "v_rcp_iflag_f32")

class I:
    def __init__(self, text):
        self.text = text
        t = text.split(";")[0].strip()
        parts = t.split(None, 1)
        self.op = parts[0]
        rest = parts[1] if len(parts) > 1 else ""
        ops, depth, cur = [], 0, ""
        for ch in rest:
            if ch == "[": depth += 1
            if ch == "]": depth -= 1
            if ch == "," and depth == 0:
                ops.append(cur.strip()); cur = ""
            else:
                cur += ch
        if cur.strip(): ops.append(cur.strip())
        mods = ""
        if ops:
            sp = ops[-1].split(None, 1)
            ops[-1] = sp[0]
            mods = sp[1] if len(sp) > 1 else ""
        self.ops = ops; self.mods = mods
        op = self.op
        self.is_mfma = op.startswith("v_mfma")
        self.is_valu = op.startswith("v_") and not self.is_mfma
        self.is_salu = op.startswith("s_")
        self.is_vmem = op.startswith(("buffer_", "global_", "flat_"))
        self.is_ds = op.startswith("ds_")
        self.is_dpp = ("_dpp" in op) or any(k in mods for k in ("row_", "quad_perm", "wave_sh"))
        self.is_perm = op.startswith("v_permlane")
        self.is_trans = any(op.startswith(x) for x in TRANS)
        self.is_lane = op.startswith(("v_readlane", "v_readfirstlane", "v_writelane"))
        self.nop = 0
        if op == "s_nop":
            self.nop = int(ops[0], 0) + 1
        R = [regs_of(o) for o in ops]
        w, r = set(), set()
        self.srcC = set(); self.srcAB = set(); self.store_data = set(); self.wide = False
        if self.is_mfma:
            w = R[0]; self.srcAB = R[1] | R[2]; self.srcC = R[3]; r = self.srcAB | self.srcC
        elif self.is_valu:
            if op.startswith("v_cmp"):
                w = set(R[0]); r = set().union(*R[1:]) if len(R) > 1 else set()
            elif self.is_perm:
                w = R[0] | R[1]; r = R[0] | R[1]
            elif op.startswith(("v_add_co", "v_sub_co", "v_addc_co", "v_subb_co", "v_subrev_co")):
                w = R[0] | R[1]; r = set().union(*R[2:])
            else:
                w = set(R[0]); r = set().union(*R[1:]) if len(R) > 1 else set()
                if op.startswith(("v_fmac", "v_mac", "v_dot2c", "v_writelane", "v_pk_fmac")) or self.is_dpp:
                    r |= R[0]
                if op.startswith("v_cndmask") and len(ops) == 3:
                    r |= {"vcc"}
        elif self.is_ds:
            if op.startswith(("ds_read", "ds_bpermute", "ds_permute", "ds_swizzle")):
                w = R[0]; r = set().union(*R[1:]) if len(R) > 1 else set()
            else:
                r = set().union(*R)
        elif self.is_vmem:
            lds = "lds" in mods.split() or "_lds_" in op
            if "load" in op and not lds:
                w = R[0]; r = set().union(*R[1:])
            elif "atomic" in op and "sc0" in mods.split():
                w = R[0]; r = set().union(*R)
            else:
                r = set().union(*R) if R else set()
                if "store" in op:
                    d = R[0] if op.startswith("buffer_") else R[1]
                    self.store_data = d; self.wide = op.endswith(("x3", "x4"))
            self.lds_dma = lds
            if lds: r |= {"m0"}
        elif self.is_salu:
            if op.startswith(("s_cmp", "s_cbranch", "s_branch", "s_waitcnt", "s_nop", "s_barrier", "s_sleep", "s_endpgm", "s_setprio", "s_bitcmp")):
                r = set().union(*R) if R else set()
            else:
                w = set(R[0]) if R else set(); r = set().union(*R[1:]) if len(R) > 1 else set()
                if "saveexec" in op: w |= {"exec"}
        self.w = w; self.r = r

def need(p, c):
    n = 0
    vw = {x for x in p.w if x[0] in "va" and x != "vcc"}
    sw = {x for x in p.w if x[0] == "s" or x == "vcc"}
    if p.is_valu:
        if c.is_mfma and (vw & c.r): n = max(n, 2)
        if c.is_dpp and (vw & (c.r)): n = max(n, 2)
        if c.is_perm and (vw & c.r): n = max(n, 2)
        if c.is_lane and (vw & c.r): n = max(n, 1)
        if p.is_trans and c.is_valu and not c.is_trans and (vw & c.r): n = max(n, 1)
        if sw:
            if c.is_valu and (sw & c.r): n = max(n, 4 if c.is_lane else 2)
            if c.is_vmem and (sw & c.r): n = max(n, 5)
            if c.is_salu and (sw & c.r): n = max(n, 1)
        if "exec" in p.w and c.is_dpp: n = max(n, 5)
    if p.is_mfma:
        D = p.w
        if c.is_mfma:
            if c.srcC & D:
                n = max(n, 0 if c.srcC == D else 6)
            if c.srcAB & D: n = max(n, 8)
            if (c.w & D) and c.w != D: n = max(n, 8)
        elif c.is_valu or c.is_vmem or c.is_ds:
            if (c.r | c.w) & D: n = max(n, 8)
        if c.is_valu and (c.w & p.srcC): n = max(n, 3)
    if p.is_vmem and p.wide and c.is_valu and (c.w & p.store_data): n = max(n, 2)
    if p.is_vmem and p.wide and (c.is_ds or c.is_vmem) and (c.w & p.store_data): n = max(n, 1)
    if p.is_salu and "m0" in p.w and c.is_vmem and getattr(c, "lds_dma", False): n = max(n, 1)
    if p.is_salu and "exec" in p.w and c.is_mfma: n = max(n, 1)
    return n

WIN = 14
def pad(lines):
    def is_label(l): return l.endswith(":") and not l.startswith(" ")
    def is_dir(l): return l.strip().startswith((".", ";")) or l.strip() == ""
    snaps = {}
    for rnd in range(3):
        out = []; hist = []
        newsn = {}
        def merge(h1, h2):
            d = {}
            for ins, age in h1 + h2:
                k = id(ins) if False else ins.text + "#" + str(getattr(ins, "pos", 0))
                if k not in d or d[k][1] > age: d[k] = (ins, age)
            return list(d.values())
        pos = 0
        for l in lines:
            pos += 1
            s = l.strip()
            if is_dir(l):
                out.append(l); continue
            if s.endswith(":"):
                lab = s[:-1]
                if lab in snaps: hist = merge(hist, snaps[lab])
                out.append(l); continue
            ins = I(s); ins.pos = pos
            req = 0
            for p, age in hist:
                req = max(req, need(p, ins) - age)
            if req > 0:
                k = req
                while k > 0:
                    t = min(k, 16)
                    out.append(f"    s_nop {t-1}"); k -= t
                hist = [(p, a + req) for p, a in hist]
            out.append(l)
            st = ins.nop if ins.nop else 1
            hist = [(p, a + st) for p, a in hist if a + st < WIN]
            if not ins.nop: hist.append((ins, 0))
            if ins.op.startswith(("s_cbranch", "s_branch")):
                lab = ins.ops[0]
                newsn[lab] = merge(newsn.get(lab, []), hist)
                if ins.op == "s_branch": hist = []
            if ins.op == "s_endpgm": hist = []
        if rnd > 0 and all(len(newsn.get(k, [])) == len(snaps.get(k, [])) for k in newsn):
            snaps = newsn
            break
        snaps = newsn
    return out
```

```python
import sys
from asmlib import Asm
import hazard

NAME = "interleave_layers__sliding_block_cached__glu_gated_glu__decode_kernel"

WS_EPOCH = 0x0
WS_Q1 = 0x10000
WS_Q2 = 0x20000
WS_H  = 0x28000
WS_X  = 0x30000
WS_O  = 0x40000
O_BLK = 1152
O_J = 32 * O_BLK
O_L = 8 * O_J
WS_DIAG = 0x100000
WS_SIZE = 0x200000

L_SCR = 0
L_K = 16384
L_W2 = L_K
L_UP = L_K + 16384
L_DN = L_K + 32768
L_V = L_K + 65536
L_WQ = L_V + 65536
L_SMAX = L_SCR
L_LSUM = L_SCR + 128
L_PBUF = L_SCR + 256
L_RED = L_SCR + 2304
R_COLQ = 0
R_COLG = 64
R_Q = [192, 192 + 144]
R_G = [480, 480 + 272]
R_O = [1024, 1024 + 256]
R_D = [1536, 1536 + 256]
R_END = 2048
LDS_BYTES = 163840

SENT = 0xFFFFFFFF
C_SCALE = 0.08838834764831845 * 1.4426950408889634

import struct
def f2u(x): return struct.unpack("<I", struct.pack("<f", x))[0]

class Cfg:
    nKA = 3
    nV1 = 3
    nVm = 6
    diag = False
    force_global = False
    budget = 400000
    prefetch_code = True
    ts_only = None
    sleep_x = 0

class G:
    def __init__(self, cfg):
        self.c = cfg
        self.a = Asm()
        self.nv = 0
        self.ts = 0
    def valloc(self, n=1, align=1):
        self.nv = (self.nv + align - 1) // align * align
        r = self.nv; self.nv += n
        assert self.nv <= 256, "out of VGPRs"
        return r

def vr(b, n): return f"v[{b}:{b+n-1}]" if n > 1 else f"v{b}"
def sr(b, n): return f"s[{b}:{b+n-1}]" if n > 1 else f"s{b}"

sJ, sM, sW, sIdx = 3, 4, 5, 6
sWS, sKS, sVS, sWQ, sW2, sUP, sDN, sX0, sOUT = 8, 12, 16, 20, 24, 28, 32, 36, 40
sT, sTX, sLocal, sBud = 44, 45, 46, 47
sMDIAG = 48
sL = 50
sA, sB_, sC, sD = 51, 52, 53, 54
sEx = 56
sRot = 58
sKV = 59
sOown = 60
sTmp2 = 62
sE0, sE1, sE2, sE3 = 64, 65, 66, 67
sTS = 70

def build(cfg):
    g = G(cfg); a = g.a
    g.tsn = {"C": [], "A": [], "B": [], "E": []}; g.role = "C"
    g.nv = 1
    vLane = g.valloc(); vR16 = g.valloc(); vQd = g.valloc()
    vT0 = g.valloc(); vT1 = g.valloc(); vT2 = g.valloc(); vT3 = g.valloc()
    vK = g.valloc(32, 4); vV = g.valloc(32, 4)
    vWq = g.valloc(8, 4)
    vW2 = g.valloc(32, 4)
    vWd = vW2 + 16
    vOnes = g.valloc(4, 4)
    vQ = g.valloc(16, 4)
    vA = g.valloc(32, 4)
    vAcc = g.valloc(16, 4)
    vP = g.valloc(20, 4)
    vHop = g.valloc(4, 4)
    vaX = g.valloc(); vaO = g.valloc(); vaSt = g.valloc(); vaQ2 = g.valloc(); vaH = g.valloc()
    vaPw = g.valloc(); vaPr = g.valloc(); vaSm = g.valloc(); vaRedG = g.valloc(); vaRedS = g.valloc(); vaRedO = g.valloc()
    vaFin = g.valloc()
    vCs = g.valloc(4, 2)
    vCg = g.valloc(4, 2)
    vRes = g.valloc(2, 2)
    vSt = g.valloc(2, 2)
    vU = g.valloc(8, 2)
    g.vmax = g.nv

    def ts(name):
        if not cfg.diag: return
        i = g.ts; g.ts += 1
        assert sTS + i <= 101, name
        g.tsn[g.role].append((i, name))
        if name == "start":
            for z in range(1, 32): a(f"s_mov_b32 s{sTS+z}, 0")
            a(f"s_memrealtime s[{sTmp2}:{sTmp2+1}]\ns_waitcnt lgkmcnt(0)\ns_mov_b32 s{sTS+29}, s{sTmp2}")
        if name == "end":
            a(f"s_memrealtime s[{sTmp2}:{sTmp2+1}]\ns_waitcnt lgkmcnt(0)\ns_mov_b32 s{sTS+30}, s{sTmp2}")
        if cfg.ts_only and name not in cfg.ts_only and name not in ("start", "end"):
            return
        a(f"s_memtime s[{sTmp2}:{sTmp2+1}]\ns_waitcnt lgkmcnt(0)\ns_mov_b32 s{sTS+i}, s{sTmp2}")

    def setexec(mask):
        lo, hi = mask & 0xFFFFFFFF, mask >> 32
        if mask == (1 << 64) - 1:
            a("s_mov_b64 exec, -1")
        else:
            a(f"s_mov_b32 exec_lo, 0x{lo:x}\ns_mov_b32 exec_hi, 0x{hi:x}")
    FULL = (1 << 64) - 1
    M4 = 0x000F000F000F000F
    M2 = 0x0003000300030003
    MROW0 = 0x0001000100010001
    MJ0 = 0x0101010101010101

    def srd(dst, ptr_s, size):
        a(f"s_mov_b32 s{dst}, s{ptr_s}\ns_and_b32 s{dst+1}, s{ptr_s+1}, 0xffff\ns_mov_b32 s{dst+2}, 0x{size:x}\ns_mov_b32 s{dst+3}, 0x20000")

    def mfma(d, A, B, C=None):
        c = vr(d, 4) if C is None else C
        a(f"v_mfma_f32_16x16x32_bf16 {vr(d,4)}, {vr(A,4)}, {vr(B,4)}, {c}")

    def spin_fail(lbl_retry, sleep=0):
        if sleep: a(f"s_sleep {sleep}")
        a(f"s_sub_u32 s{sBud}, s{sBud}, 1\ns_cbranch_scc1 L_abort\ns_branch {lbl_retry}")

    def sent_check(regs, tmp, lbl_ok):
        rs = list(regs)
        if len(rs) == 1:
            cur = rs[0]
        else:
            if len(rs) == 2:
                a(f"v_max_u32 v{tmp}, v{rs[0]}, v{rs[1]}"); rs = []
            else:
                a(f"v_max3_u32 v{tmp}, v{rs[0]}, v{rs[1]}, v{rs[2]}"); rs = rs[3:]
            while len(rs) >= 2:
                a(f"v_max3_u32 v{tmp}, v{tmp}, v{rs[0]}, v{rs[1]}"); rs = rs[2:]
            if rs: a(f"v_max_u32 v{tmp}, v{tmp}, v{rs[0]}")
            cur = tmp
        a(f"v_cmp_eq_u32 vcc, -1, v{cur}\ns_cbranch_vccz {lbl_ok}")

    def store_local(instr):
        if cfg.force_global:
            a(instr + " sc1"); return
        l1 = a.label("stg"); l2 = a.label("std")
        a(f"s_cmp_eq_u32 s{sLocal}, 0\ns_cbranch_scc1 {l1}")
        a(instr)
        a(f"s_branch {l2}\n{l1}:")
        a(instr + " sc1")
        a(f"{l2}:")

    def dpp_row_reduce(op, v):
        for n in (8, 4, 2, 1):
            a(f"{op}_dpp v{v}, v{v}, v{v} row_ror:{n} row_mask:0xf bank_mask:0xf")

    def xquad_reduce(op, v, tmp):
        a(f"v_mov_b32 v{tmp}, v{v}")
        a(f"v_permlane32_swap_b32 v{v}, v{tmp}")
        a(f"{op} v{v}, v{v}, v{tmp}")
        a(f"v_mov_b32 v{tmp}, v{v}")
        a(f"v_permlane16_swap_b32 v{v}, v{tmp}")
        a(f"{op} v{v}, v{v}, v{tmp}")

    def sum4(dst, b):
        a(f"v_add_f32 v{dst}, v{b}, v{b+1}\nv_add_f32 v{vT3}, v{b+2}, v{b+3}\nv_add_f32 v{dst}, v{dst}, v{vT3}")

    a(f"""
    s_cmp_ge_u32 s2, 256
    s_cbranch_scc1 L_end
    s_load_dwordx4 s[{sE0}:{sE3}], s[0:1], 0          ; x, K
    s_load_dwordx4 s[68:71], s[0:1], 16               ; V, wq
    s_load_dwordx2 s[72:73], s[0:1], 32               ; wo
    s_load_dwordx4 s[76:79], s[0:1], 48
    s_load_dwordx4 s[80:83], s[0:1], 64
    s_load_dwordx2 s[84:85], s[0:1], 88               ; ws
    v_and_b32 v{vLane}, 63, v0
    v_lshrrev_b32 v{vT0}, 6, v0
    v_and_b32 v{vR16}, 15, v0
    v_readfirstlane_b32 s{sW}, v{vT0}
    v_lshrrev_b32 v{vQd}, 4, v{vLane}
    s_and_b32 s{sJ}, s2, 7
    s_lshr_b32 s{sM}, s2, 3
    s_and_b32 s{sIdx}, s{sM}, 15
    s_and_b32 s{sRot}, s{sM}, 7
    s_mov_b32 s{sBud}, {cfg.budget}
    s_getreg_b32 s{sA}, hwreg(HW_REG_XCC_ID, 0, 4)
    s_mov_b32 s{sMDIAG}, 0x00ff00ff
    s_mov_b32 s{sMDIAG+1}, 0xff00ff00
    s_lshr_b32 s{sB_}, s{sM}, 4
    s_lshl_b32 s{sB_}, s{sB_}, 3
    s_add_u32 s{sB_}, s{sB_}, s{sJ}
    s_lshl_b32 s{sB_}, s{sB_}, 23
    s_lshl_b32 s{sC}, s{sIdx}, 16
    s_add_u32 s{sKV}, s{sB_}, s{sC}
    s_add_u32 s{sKV}, s{sKV}, 0x700000
    s_waitcnt lgkmcnt(0)
    """)
    srd(sWS, 84, WS_SIZE)
    a(f"s_load_dword s{sT}, s[84:85], {WS_EPOCH}")
    srd(sX0, sE0, 2048)
    srd(sKS, sE2, 0x8000000)
    srd(sVS, 68, 0x8000000)
    srd(sWQ, 70, 0x400000)
    srd(sUP, 78, 512 * 1792 * 2)
    srd(sDN, 80, 1792 * 512 * 2)
    srd(sOUT, 82, 2048)
    a(f"""
    s_cmp_lt_u32 s{sM}, 16
    s_cselect_b32 s{sW2}, s72, s76
    s_cselect_b32 s{sW2+1}, s73, s77
    s_mov_b32 s{sW2+2}, {512*1792*2}
    s_cselect_b32 s{sW2+2}, 0x400000, s{sW2+2}
    s_and_b32 s{sW2+1}, s{sW2+1}, 0xffff
    s_mov_b32 s{sW2+3}, 0x20000
    """)
    ts("start")
    if cfg.prefetch_code:
        a(f"""
        s_cmp_eq_u32 s{sW}, 7
        s_cbranch_scc0 L_nopf
        s_getpc_b64 s[{sTmp2}:{sTmp2+1}]
        L_pfbase:
        v_lshlrev_b32 v{vT1}, 7, v{vLane}
        """)
        g.pf_marker = len(a.lines)
        a("; PFLOADS")
        a("L_nopf:")
    a(f"""
    v_mov_b32 v{vA}, -1
    v_mov_b32 v{vA+1}, -1
    v_mov_b32 v{vA+2}, -1
    v_mov_b32 v{vA+3}, -1
    s_mul_i32 s{sOown}, s{sJ}, {O_J}
    s_mul_i32 s{sA+1}, s{sM}, {O_BLK}
    s_add_u32 s{sOown}, s{sOown}, s{sA+1}
    s_add_u32 s{sOown}, s{sOown}, {WS_O}
    v_lshlrev_b32 v{vT1}, 4, v{vLane}
    s_cmp_gt_u32 s{sW}, 2
    s_cbranch_scc1 L_clr_done
    s_cmp_eq_u32 s{sW}, 2
    s_cbranch_scc1 L_clr_misc
    s_mul_i32 s{sB_}, s{sW}, {O_L}
    s_add_u32 s{sB_}, s{sB_}, s{sOown}
    buffer_store_dwordx4 {vr(vA,4)}, v{vT1}, {sr(sWS,4)}, s{sB_} offen sc1
    s_branch L_clr_done
    L_clr_misc:
    """)
    a(f"""
    v_and_b32 v{vT2}, 7, v{vLane}
    v_lshlrev_b32 v{vT2}, 4, v{vT2}        ; (l&7)*16
    s_add_u32 s{sB_}, s{sOown}, 1024
    v_mov_b32 v{vT1}, s{sB_}
    """)
    setexec(0xFF00)
    a(f"s_add_u32 s{sB_}, s{sB_}, {O_L}\nv_mov_b32 v{vT1}, s{sB_}")
    a(f"""
    s_lshr_b32 s{sC}, s{sM}, 4
    s_lshl_b32 s{sC}, s{sC}, 14
    s_lshl_b32 s{sD}, s{sJ}, 11
    s_add_u32 s{sC}, s{sC}, s{sD}
    s_lshl_b32 s{sD}, s{sIdx}, 7
    s_add_u32 s{sC}, s{sC}, s{sD}
    s_add_u32 s{sC}, s{sC}, {WS_X}
    """)
    setexec(0xFF0000)
    a(f"v_mov_b32 v{vT1}, s{sC}\ns_add_u32 s{sC}, s{sC}, 32768")
    setexec(0xFF000000)
    a(f"v_mov_b32 v{vT1}, s{sC}")
    a(f"""
    s_lshl_b32 s{sC}, s{sJ}, 11
    s_lshl_b32 s{sD}, s{sM}, 6
    s_add_u32 s{sC}, s{sC}, s{sD}
    s_add_u32 s{sC}, s{sC}, {WS_Q2}
    """)
    setexec(0xFFF << 32)
    a(f"""
    v_mov_b32 v{vT1}, s{sC}
    v_and_b32 v{vT2}, 3, v{vLane}
    v_lshlrev_b32 v{vT2}, 4, v{vT2}
    s_cmp_lt_u32 s{sM}, 16
    s_cbranch_scc1 L_clr_noh
    s_cmp_ge_u32 s{sIdx}, 14
    s_cbranch_scc1 L_clr_noh
    s_lshl_b32 s{sC}, s{sJ}, 10
    s_lshl_b32 s{sD}, s{sIdx}, 6
    s_add_u32 s{sC}, s{sC}, s{sD}
    s_add_u32 s{sC}, s{sC}, {WS_H}
    """)
    setexec(0xF << 32)
    a(f"v_mov_b32 v{vT1}, s{sC}\ns_add_u32 s{sC}, s{sC}, 8192")
    setexec(0xF0 << 32)
    a(f"v_mov_b32 v{vT1}, s{sC}")
    a("L_clr_noh:")
    setexec((1 << 44) - 1)
    a(f"""
    v_add_u32 v{vT1}, v{vT1}, v{vT2}
    buffer_store_dwordx4 {vr(vA,4)}, v{vT1}, {sr(sWS,4)}, 0 offen sc1
    """)
    setexec(FULL)
    a("L_clr_done:")

    A0, A1 = vA + 8, vA + 12
    a(f"""
    v_mov_b32 v{A0}, 0
    v_mov_b32 v{A0+1}, 0
    v_mov_b32 v{A0+2}, 0
    v_mov_b32 v{A0+3}, 0
    v_mov_b32 v{A1}, 0
    v_mov_b32 v{A1+1}, 0
    v_mov_b32 v{A1+2}, 0
    v_mov_b32 v{A1+3}, 0
    v_lshrrev_b32 v{vT0}, 3, v{vR16}
    v_lshlrev_b32 v{vT0}, 10, v{vT0}          ; b*1024
    v_lshl_add_u32 v{vT0}, v{vQd}, 4, v{vT0}  ; + qd*16
    s_lshl_b32 s{sB_}, s{sW}, 7               ; w*128
    """)
    setexec(MJ0)
    a(f"""
    buffer_load_dwordx4 {vr(A0,4)}, v{vT0}, {sr(sX0,4)}, s{sB_} offen
    buffer_load_dwordx4 {vr(A1,4)}, v{vT0}, {sr(sX0,4)}, s{sB_} offen offset:64
    """)
    setexec(FULL)
    a(f"""
    v_lshrrev_b32 v{vT0}, 1, v{vLane}
    v_lshlrev_b32 v{vT0}, 13, v{vT0}
    v_and_b32 v{vT1}, 1, v{vLane}
    v_lshl_add_u32 v{vT0}, v{vT1}, 4, v{vT0}
    s_lshl_b32 s{sB_}, s{sW}, 19              ; 64w*8192
    s_lshl_b32 s{sC}, s{sJ}, 10
    s_add_u32 s{sB_}, s{sB_}, s{sC}
    s_lshl_b32 s{sC}, s{sM}, 5
    s_add_u32 s{sB_}, s{sB_}, s{sC}
    s_lshl_b32 s{sC}, s{sW}, 11
    s_add_u32 s{sC}, s{sC}, {L_WQ}
    s_mov_b32 m0, s{sC}
    s_add_u32 s{sD}, s{sB_}, {32*8192}
    buffer_load_dwordx4 v{vT0}, {sr(sWQ,4)}, s{sB_} offen nt lds
    s_add_u32 s{sC}, s{sC}, 1024
    s_mov_b32 m0, s{sC}
    s_nop 0
    buffer_load_dwordx4 v{vT0}, {sr(sWQ,4)}, s{sD} offen nt lds
    """)
    vKs = vP
    for i in range(4):
        a(f"""
        v_add_u32 v{vT0}, {4*i}, v{vQd}
        v_xor_b32 v{vT0}, v{vT0}, v{vR16}
        v_lshlrev_b32 v{vT0}, 4, v{vT0}
        v_lshl_add_u32 v{vKs+i}, v{vQd}, 8, v{vT0}
        """)
    sKg, sKl = sE0, sE1
    a(f"""
    s_add_u32 s{sB_}, s{sW}, s{sRot}
    s_and_b32 s{sB_}, s{sB_}, 7
    s_lshl_b32 s{sB_}, s{sB_}, 13
    s_add_u32 s{sKg}, s{sKV}, s{sB_}
    s_lshl_b32 s{sKl}, s{sW}, 13
    s_add_u32 s{sKl}, s{sKl}, {L_K}
    """)
    def k_dma(i):
        hi = (i >> 2) * 4096
        if i % 4 == 0 or i == cfg.nKA:
            a(f"s_add_u32 s{sC}, s{sKl}, {hi}\ns_mov_b32 m0, s{sC}\ns_add_u32 s{sD}, s{sKg}, {hi}")
        a(f"buffer_load_dwordx4 v{vKs + (i & 3)}, {sr(sKS,4)}, s{sD} offen offset:{(i & 3)*1024} nt lds")
    for i in range(cfg.nKA):
        k_dma(i)

    a(f"""
    v_mov_b32 v{vOnes}, 0x3f803f80
    v_mov_b32 v{vOnes+1}, 0x3f803f80
    v_mov_b32 v{vOnes+2}, 0x3f803f80
    v_mov_b32 v{vOnes+3}, 0x3f803f80
    """)
    for i in range(16):
        a(f"v_mov_b32 v{vQ+i}, 0")
    for i in range(4):
        a(f"v_mov_b32 v{vHop+i}, 0")
    a(f"""
    v_mov_b32 v{vU}, 0
    v_mov_b32 v{vU+1}, 0
    v_mov_b32 v{vU+2}, 0
    v_mov_b32 v{vU+3}, 0
    v_lshlrev_b32 v{vT0}, 4, v0
    v_add_u32 v{vT0}, {L_RED}, v{vT0}
    v_cmp_gt_u32 vcc, {R_END//16}, v0
    s_and_saveexec_b64 s[{sEx}:{sEx+1}], vcc
    s_cbranch_execz L_nozero
    ds_write_b64 v{vT0}, {vr(vU,2)}
    ds_write_b64 v{vT0}, {vr(vU,2)} offset:8
    L_nozero:
    s_mov_b64 exec, s[{sEx}:{sEx+1}]
    """)
    a(f"""
    v_and_b32 v{vT0}, 7, v{vR16}
    v_lshlrev_b32 v{vT0}, 11, v{vT0}
    v_lshrrev_b32 v{vT1}, 3, v{vR16}
    v_lshl_add_u32 v{vT0}, v{vT1}, 6, v{vT0}
    v_lshl_add_u32 v{vT0}, v{vQd}, 4, v{vT0}
    s_lshl_b32 s{sB_}, s{sW}, 8
    v_add_u32 v{vaX}, s{sB_}, v{vT0}
    v_mul_u32_u24 v{vT0}, {O_BLK}, v{vR16}
    v_lshrrev_b32 v{vT1}, 1, v{vQd}
    v_lshl_add_u32 v{vT0}, v{vT1}, 7, v{vT0}
    v_and_b32 v{vT2}, 1, v{vQd}
    v_lshl_add_u32 v{vaO}, v{vT2}, 4, v{vT0}
    v_lshl_add_u32 v{vT0}, v{vQd}, 2, v{vR16}
    v_and_b32 v{vT0}, 15, v{vT0}
    v_mul_u32_u24 v{vT0}, {O_BLK}, v{vT0}
    v_add_u32 v{vaSt}, 1024, v{vT0}
    v_and_b32 v{vT0}, 3, v{vR16}
    v_lshlrev_b32 v{vT0}, 9, v{vT0}
    v_lshl_add_u32 v{vT0}, v{vT1}, 6, v{vT0}
    v_lshl_add_u32 v{vaQ2}, v{vT2}, 4, v{vT0}
    v_and_b32 v{vT0}, 1, v{vR16}
    v_lshlrev_b32 v{vT0}, 5, v{vT0}
    v_lshl_add_u32 v{vT0}, v{vT1}, 6, v{vT0}
    v_lshl_add_u32 v{vaH}, v{vT2}, 4, v{vT0}
    v_lshlrev_b32 v{vT0}, 6, v{vQd}
    v_and_b32 v{vT3}, 3, v{vR16}
    v_lshl_add_u32 v{vT0}, v{vT3}, 4, v{vT0}
    v_add_u32 v{vaPr}, {L_PBUF}, v{vT0}
    s_lshl_b32 s{sB_}, s{sW}, 8
    v_add_u32 v{vaPw}, s{sB_}, v{vaPr}
    v_lshlrev_b32 v{vT3}, 5, v{vT3}
    v_add_u32 v{vaSm}, {L_SMAX}, v{vT3}
    v_lshlrev_b32 v{vT0}, 2, v{vLane}
    v_add_u32 v{vaRedG}, {L_RED}, v{vT0}
    v_lshlrev_b32 v{vT0}, 3, v{vT1}
    v_add_u32 v{vaRedS}, {L_RED}, v{vT0}
    v_lshlrev_b32 v{vT0}, 6, v{vT1}
    v_lshl_add_u32 v{vT0}, v{vR16}, 2, v{vT0}
    v_add_u32 v{vaRedO}, {L_RED}, v{vT0}
    """)
    a("s_waitcnt lgkmcnt(0)\ns_barrier")
    ts("issued")

    def q_core(L):
        aW, a1, aG = vAcc, vAcc + 4, vAcc + 8
        mfma(aG, A0, A0, "0"); mfma(aW, A0, vWq, "0"); mfma(a1, A0, vOnes, "0")
        mfma(aG, A1, A1); mfma(aW, A1, vWq + 4); mfma(a1, A1, vOnes)
        sum4(vU, aG)
        a(f"v_cndmask_b32 v{vU}, 0, v{vU}, s[{sMDIAG}:{sMDIAG+1}]")
        sum4(vU + 1, aW)
        sum4(vU + 2, a1)
        a(f"ds_add_f32 v{vaRedO}, v{vU+1} offset:{R_Q[L]}")
        dpp_row_reduce("v_add_f32", vU)
        setexec(MROW0)
        a(f"ds_add_f32 v{vaRedS}, v{vU+2} offset:{R_Q[L]+128}")
        a(f"ds_add_f32 v{vaRedS}, v{vU} offset:{R_Q[L]+128+4}")
        setexec(FULL)

    def ln_stats(lds_off):
        a(f"""
        v_mul_f32 v{vSt}, {f2u(1.0/512):#x}, v{vU+4}
        v_mul_f32 v{vT3}, {f2u(1.0/512):#x}, v{vU+5}
        v_fma_f32 v{vT3}, -v{vSt}, v{vSt}, v{vT3}
        v_max_f32 v{vT3}, 0, v{vT3}
        v_add_f32 v{vT3}, {f2u(1e-5):#x}, v{vT3}
        v_rsq_f32 v{vSt+1}, v{vT3}
        """)

    def q_final(L):
        lab = a.label("qf")
        a(f"s_cmp_eq_u32 s{sW}, 0\ns_cbranch_scc0 {lab}")
        setexec(0xFFFF)
        a(f"""
        v_lshrrev_b32 v{vT0}, 3, v{vLane}
        v_and_b32 v{vT1}, 7, v{vLane}
        v_lshlrev_b32 v{vT2}, 3, v{vT1}            ; pi*8
        v_lshl_add_u32 v{vT1}, v{vT0}, 6, v{vT2}   ; b*64 + pi*8
        v_lshlrev_b32 v{vT0}, 3, v{vT0}            ; b*8
        ds_read_b64 {vr(vU,2)}, v{vT1} offset:{L_RED+R_Q[L]}
        ds_read_b64 {vr(vU+4,2)}, v{vT0} offset:{L_RED+R_Q[L]+128}
        """)
        if L == 0:
            a(f"ds_read_b64 {vr(vCs,2)}, v{vT2} offset:{L_RED+R_COLQ}")
        a("s_waitcnt lgkmcnt(0)")
        ln_stats(0)
        a(f"""
        v_fma_f32 v{vU}, -v{vSt}, v{vCs}, v{vU}
        v_fma_f32 v{vU+1}, -v{vSt}, v{vCs+1}, v{vU+1}
        v_mul_f32 v{vU}, v{vU}, v{vSt+1}
        v_mul_f32 v{vU+1}, v{vU+1}, v{vSt+1}
        v_cvt_pk_bf16_f32 v{vU+2}, v{vU}, v{vU+1}
        """)
        if L == 0:
            a(f"""
            v_mov_b32 v{vU+3}, s{sTX}
            s_lshl_b32 s{sB_}, s{sJ}, 12
            s_lshl_b32 s{sC}, s{sM}, 7
            s_add_u32 s{sB_}, s{sB_}, s{sC}
            s_add_u32 s{sB_}, s{sB_}, {WS_Q1}
            buffer_store_dwordx2 {vr(vU+2,2)}, v{vT1}, {sr(sWS,4)}, s{sB_} offen sc1
            """)
        else:
            a(f"""
            v_min_u32 v{vU+2}, 0xfffffffe, v{vU+2}
            v_lshrrev_b32 v{vT1}, 1, v{vT1}
            s_lshl_b32 s{sB_}, s{sJ}, 11
            s_lshl_b32 s{sC}, s{sM}, 6
            s_add_u32 s{sB_}, s{sB_}, s{sC}
            s_add_u32 s{sB_}, s{sB_}, {WS_Q2}
            """)
            store_local(f"buffer_store_dword v{vU+2}, v{vT1}, {sr(sWS,4)}, s{sB_} offen")
        setexec(FULL)
        a(f"{lab}:")

    a(f"s_waitcnt vmcnt({cfg.nKA})")
    ts("wq_landed")
    def tr_base(dst, rowbytes, extra_s=None, const=0):
        sh = rowbytes.bit_length() - 1
        a(f"""
        v_lshrrev_b32 v{vT1}, 2, v{vR16}
        v_lshl_add_u32 v{vT1}, v{vQd}, 3, v{vT1}
        v_lshlrev_b32 v{vT1}, {sh}, v{vT1}
        v_and_b32 v{vT2}, 3, v{vR16}
        v_lshl_add_u32 v{vT1}, v{vT2}, 3, v{vT1}
        """)
        if extra_s is not None:
            a(f"v_add_u32 v{vT1}, s{extra_s}, v{vT1}")
        a(f"v_add_u32 v{dst}, {const}, v{vT1}")
    a(f"s_lshl_b32 s{sB_}, s{sW}, 11")
    tr_base(vT0, 32, sB_, L_WQ)
    for u in range(2):
        a(f"ds_read_b64_tr_b16 {vr(vWq+4*u,2)}, v{vT0} offset:{u*1024}")
        a(f"ds_read_b64_tr_b16 {vr(vWq+4*u+2,2)}, v{vT0} offset:{u*1024+128}")
    a(f"""
    s_waitcnt lgkmcnt(0)
    s_add_u32 s{sT}, s{sT}, 0x9e3779b0
    s_and_b32 s{sT}, s{sT}, 0xfffffff0
    s_or_b32 s{sTX}, s{sT}, s{sA}
    """)
    aC = vAcc + 12
    mfma(aC, vOnes, vWq, "0"); mfma(aC, vOnes, vWq + 4)
    q_core(0)
    setexec(0xFFFF)
    a(f"ds_add_f32 v{vaRedG}, v{aC} offset:{R_COLQ}")
    setexec(FULL)
    a("s_waitcnt lgkmcnt(0)\ns_barrier")
    q_final(0)
    a("s_barrier")
    ts("q1_pub")

    for i in range(cfg.nKA, 8):
        k_dma(i)
    vVs = vP + 4
    a(f"""
    s_lshl_b32 s{sB_}, s{sW}, 2
    v_add_u32 v{vT0}, s{sB_}, v{vQd}            ; 4w+qd
    v_and_b32 v{vT1}, 7, v{vT0}
    v_lshrrev_b32 v{vT2}, 1, v{vR16}
    v_xor_b32 v{vT1}, v{vT1}, v{vT2}
    v_lshlrev_b32 v{vT1}, 1, v{vT1}
    v_and_b32 v{vT2}, 1, v{vR16}
    v_or_b32 v{vT1}, v{vT1}, v{vT2}
    v_lshlrev_b32 v{vT1}, 4, v{vT1}
    v_lshl_add_u32 v{vVs}, v{vT0}, 8, v{vT1}
    s_lshl_b32 s{sE2}, s{sW}, 10
    s_add_u32 s{sE2}, s{sE2}, {L_V}
    """)
    def v_dma(i):
        a(f"""
        s_add_u32 s{sB_}, s{sRot}, {i}
        s_and_b32 s{sB_}, s{sB_}, 7
        s_lshl_b32 s{sB_}, s{sB_}, 13
        s_add_u32 s{sB_}, s{sB_}, s{sKV}
        s_add_u32 s{sC}, s{sE2}, {i*8192}
        s_mov_b32 m0, s{sC}
        s_nop 0
        buffer_load_dwordx4 v{vVs}, {sr(sVS,4)}, s{sB_} offen nt lds
        """)
    for i in range(cfg.nV1):
        v_dma(i)
    vG = vA
    def q1_gather():
        setexec(M4)
        for c in range(4):
            a(f"buffer_load_dwordx4 {vr(vG+8*c,4)}, v{vT0}, {sr(sWS,4)}, s{sE3} offen offset:{c*256} sc1")
            a(f"buffer_load_dwordx4 {vr(vG+8*c+4,4)}, v{vT0}, {sr(sWS,4)}, s{sE3} offen offset:{c*256+16} sc1")
        setexec(FULL)
    a(f"""
    v_and_b32 v{vT0}, 3, v{vR16}
    v_lshlrev_b32 v{vT0}, 10, v{vT0}
    v_lshrrev_b32 v{vT1}, 1, v{vQd}
    v_lshl_add_u32 v{vT0}, v{vT1}, 7, v{vT0}
    v_and_b32 v{vT1}, 1, v{vQd}
    v_lshl_add_u32 v{vT0}, v{vT1}, 5, v{vT0}
    s_lshl_b32 s{sE3}, s{sJ}, 12
    s_lshr_b32 s{sB_}, s{sM}, 4
    s_lshl_b32 s{sB_}, s{sB_}, 6
    s_add_u32 s{sE3}, s{sE3}, s{sB_}
    s_add_u32 s{sE3}, s{sE3}, {WS_Q1}
    """)
    q1_gather()
    for i in range(cfg.nV1, 8):
        v_dma(i)
    a(f"s_waitcnt vmcnt({8-cfg.nV1})")
    a("L_q1chk:")
    setexec(M4)
    a(f"v_xor_b32 v{vT1}, s{sTX}, v{vG+1}")
    for i in range(1, 16):
        a(f"v_xor_b32 v{vT2}, s{sTX}, v{vG+2*i+1}\nv_or_b32 v{vT1}, v{vT1}, v{vT2}")
    a(f"""
    v_cmp_lt_u32 vcc, 15, v{vT1}
    s_cbranch_vccz L_q1ok
    s_sub_u32 s{sBud}, s{sBud}, 1
    s_cbranch_scc1 L_abort
    """)
    q1_gather()
    a("s_waitcnt vmcnt(0)\ns_branch L_q1chk\nL_q1ok:")
    a(f"""
    v_cmp_ne_u32 vcc, 0, v{vT1}
    s_cmp_eq_u64 vcc, 0
    s_cselect_b32 s{sLocal}, 1, 0
    """)
    for c in range(4):
        for d in range(4):
            a(f"v_mov_b32 v{vQ+4*c+d}, v{vG+8*c+2*d}")
    setexec(FULL)
    ts("q1_got")
    a(f"s_lshl_b32 s{sB_}, s{sW}, 13")
    for c in range(4):
        a(f"""
        v_add_u32 v{vT0}, {4*c}, v{vQd}
        v_xor_b32 v{vT0}, v{vT0}, v{vR16}
        v_lshlrev_b32 v{vT0}, 4, v{vT0}
        v_lshl_add_u32 v{vT0}, v{vR16}, 8, v{vT0}
        v_add_u32 v{vT0}, s{sB_}, v{vT0}
        ds_read_b128 {vr(vK+4*c,4)}, v{vT0} offset:{L_K}
        ds_read_b128 {vr(vK+16+4*c,4)}, v{vT0} offset:{L_K+4096}
        """)
    vVr = vP + 5
    a(f"""
    v_lshrrev_b32 v{vT1}, 2, v{vR16}            ; r
    v_lshl_add_u32 v{vT0}, v{vQd}, 2, v{vT1}    ; 4qd + r
    v_and_b32 v{vT2}, 7, v{vT0}
    v_xor_b32 v{vT2}, s{sW}, v{vT2}
    v_lshlrev_b32 v{vT2}, 5, v{vT2}
    v_lshl_add_u32 v{vT0}, v{vT0}, 8, v{vT2}
    v_and_b32 v{vT2}, 3, v{vR16}
    v_lshl_add_u32 v{vT0}, v{vT2}, 3, v{vT0}
    v_add_u32 v{vVr}, {L_V}, v{vT0}
    s_waitcnt lgkmcnt(0)
    """)

    sS = vAcc
    def s_qk_max():
        for c in range(4):
            for t in range(2):
                mfma(sS + 4*t, vK + 16*t + 4*c, vQ + 4*c, "0" if c == 0 else None)
        a(f"v_max3_f32 v{vU}, v{sS}, v{sS+1}, v{sS+2}")
        a(f"v_max3_f32 v{vU}, v{vU}, v{sS+3}, v{sS+4}")
        a(f"v_max3_f32 v{vU}, v{vU}, v{sS+5}, v{sS+6}")
        a(f"v_max_f32 v{vU}, v{vU}, v{sS+7}")
        xquad_reduce("v_max_f32", vU, vT0)
        a(f"s_lshl_b32 s{sB_}, s{sW}, 2\nv_add_u32 v{vT0}, s{sB_}, v{vaSm}")
        setexec(0xF)
        a(f"ds_write_b32 v{vT0}, v{vU}")
        setexec(FULL)
        a("s_waitcnt lgkmcnt(0)\ns_barrier")
    def s_exp_p():
        PW = vU + 4
        PW = vP + 8
        a(f"""
        ds_read_b128 {vr(vP+12,4)}, v{vaSm}
        ds_read_b128 {vr(vP+16,4)}, v{vaSm} offset:16
        s_waitcnt lgkmcnt(0)
        v_max3_f32 v{vU}, v{vP+12}, v{vP+13}, v{vP+14}
        v_max3_f32 v{vU}, v{vU}, v{vP+15}, v{vP+16}
        v_max3_f32 v{vU}, v{vU}, v{vP+17}, v{vP+18}
        v_max_f32 v{vU}, v{vU}, v{vP+19}
        v_mul_f32 v{vSt}, {f2u(C_SCALE):#x}, v{vU}        ; Mc
        s_mov_b32 s{sB_}, {f2u(C_SCALE):#x}
        """)
        for i in range(8):
            a(f"v_fma_f32 v{sS+i}, v{sS+i}, s{sB_}, -v{vSt}")
        for i in range(8):
            a(f"v_exp_f32 v{sS+i}, v{sS+i}")
        for i in range(4):
            a(f"v_cvt_pk_bf16_f32 v{PW+i}, v{sS+2*i}, v{sS+2*i+1}")
        setexec(M4)
        a(f"ds_write_b128 v{vaPw}, {vr(PW,4)}")
        setexec(FULL)
        a(f"""
        v_add_f32 v{vU}, v{sS}, v{sS+1}
        v_add_f32 v{vU+1}, v{sS+2}, v{sS+3}
        v_add_f32 v{vU+2}, v{sS+4}, v{sS+5}
        v_add_f32 v{vU+3}, v{sS+6}, v{sS+7}
        v_add_f32 v{vU}, v{vU}, v{vU+1}
        v_add_f32 v{vU+2}, v{vU+2}, v{vU+3}
        v_add_f32 v{vU}, v{vU}, v{vU+2}
        """)
        xquad_reduce("v_add_f32", vU, vT0)
        a(f"s_lshl_b32 s{sB_}, s{sW}, 2\nv_add_u32 v{vT0}, s{sB_}, v{vaSm}")
        setexec(0xF)
        a(f"ds_write_b32 v{vT0}, v{vU} offset:{L_LSUM-L_SMAX}")
        setexec(FULL)
        a("s_waitcnt lgkmcnt(0)\ns_barrier")
        for blk in range(8):
            a(f"ds_read_b128 {vr(vPr_(blk),4)}, v{vaPr} offset:{blk*256}")
    def vPr_(blk): return vA + 4*blk
    accO = vAcc + 8
    def v_tr(blk):
        a(f"ds_read_b64_tr_b16 {vr(vV+4*blk,2)}, v{vVr} offset:{blk*8192}")
        a(f"ds_read_b64_tr_b16 {vr(vV+4*blk+2,2)}, v{vVr} offset:{blk*8192+4096}")
    def s_out(L):
        a(f"""
        v_cvt_pk_bf16_f32 v{vU}, v{accO}, v{accO+1}
        v_cvt_pk_bf16_f32 v{vU+1}, v{accO+2}, v{accO+3}
        v_min_u32 v{vU}, 0xfffffffe, v{vU}
        v_min_u32 v{vU+1}, 0xfffffffe, v{vU+1}
        v_lshlrev_b32 v{vT0}, 5, v{vR16}
        v_lshl_add_u32 v{vT0}, v{vQd}, 3, v{vT0}
        s_lshl_b32 s{sB_}, s{sW}, 7
        s_add_u32 s{sB_}, s{sB_}, s{sOown}
        """)
        setexec(M4)
        store_local(f"buffer_store_dwordx2 {vr(vU,2)}, v{vT0}, {sr(sWS,4)}, s{sB_} offen")
        setexec(FULL)
    def s_stats():
        lab = a.label("st")
        a(f"s_cmp_eq_u32 s{sW}, 7\ns_cbranch_scc0 {lab}")
        setexec(0xF)
        a(f"""
        ds_read_b128 {vr(vP+12,4)}, v{vaSm} offset:{L_LSUM-L_SMAX}
        ds_read_b128 {vr(vP+16,4)}, v{vaSm} offset:{L_LSUM-L_SMAX+16}
        s_waitcnt lgkmcnt(0)
        v_add_f32 v{vP+12}, v{vP+12}, v{vP+13}
        v_add_f32 v{vP+14}, v{vP+14}, v{vP+15}
        v_add_f32 v{vP+16}, v{vP+16}, v{vP+17}
        v_add_f32 v{vP+18}, v{vP+18}, v{vP+19}
        v_add_f32 v{vP+12}, v{vP+12}, v{vP+14}
        v_add_f32 v{vP+16}, v{vP+16}, v{vP+18}
        v_add_f32 v{vSt+1}, v{vP+12}, v{vP+16}
        v_min_u32 v{vSt}, 0xfffffffe, v{vSt}
        v_min_u32 v{vSt+1}, 0xfffffffe, v{vSt+1}
        v_lshlrev_b32 v{vT0}, 3, v{vLane}
        s_add_u32 s{sB_}, s{sOown}, 1024
        """)
        store_local(f"buffer_store_dwordx2 {vr(vSt,2)}, v{vT0}, {sr(sWS,4)}, s{sB_} offen")
        setexec(FULL)
        a(f"{lab}:")

    s_qk_max()
    ts("s1_max")
    def wo_dma():
        a(f"""
        v_lshrrev_b32 v{vT0}, 2, v{vLane}
        v_lshlrev_b32 v{vT0}, 10, v{vT0}
        v_and_b32 v{vT1}, 3, v{vLane}
        v_lshl_add_u32 v{vT0}, v{vT1}, 4, v{vT0}
        s_lshl_b32 s{sB_}, s{sJ}, 19
        s_lshl_b32 s{sC}, s{sW}, 16
        s_add_u32 s{sB_}, s{sB_}, s{sC}
        s_lshl_b32 s{sC}, s{sIdx}, 6
        s_add_u32 s{sB_}, s{sB_}, s{sC}
        s_lshl_b32 s{sC}, s{sW}, 12
        s_add_u32 s{sC}, s{sC}, {L_W2}
        """)
        for u in range(4):
            a(f"""
            s_mov_b32 m0, s{sC}
            s_add_u32 s{sC}, s{sC}, 1024
            buffer_load_dwordx4 v{vT0}, {sr(sW2,4)}, s{sB_} offen nt lds
            s_add_u32 s{sB_}, s{sB_}, {16*1024}
            """)
    def s1_tail(nW):
        s_exp_p()
        for blk in range(cfg.nV1):
            v_tr(blk)
        a("s_waitcnt lgkmcnt(0)")
        for blk in range(cfg.nV1):
            mfma(accO, vV + 4*blk, vPr_(blk), "0" if blk == 0 else None)
        a(f"s_waitcnt vmcnt({8-cfg.nVm+nW})\ns_barrier")
        for blk in range(cfg.nV1, cfg.nVm):
            v_tr(blk)
        a("s_waitcnt lgkmcnt(0)")
        for blk in range(cfg.nV1, cfg.nVm):
            mfma(accO, vV + 4*blk, vPr_(blk))
        a(f"s_waitcnt vmcnt({nW})\ns_barrier")
        ts("v_landed")
        for blk in range(cfg.nVm, 8):
            v_tr(blk)
        s_stats()
        a("s_waitcnt lgkmcnt(0)")
        for blk in range(cfg.nVm, 8):
            mfma(accO, vV + 4*blk, vPr_(blk))
        s_out(0)
        ts("s1_pub")

    def s2():
        s_qk_max()
        s_exp_p()
        s_stats()
        a("s_waitcnt lgkmcnt(0)")
        for blk in range(8):
            mfma(accO, vV + 4*blk, vPr_(blk), "0" if blk == 0 else None)
        s_out(1)

    def x_poll(hop_expr_s, sleep=0):
        l = a.label("xp"); ok = a.label("xok")
        a(f"{l}:")
        a(f"buffer_load_dwordx4 {vr(A0,4)}, v{vaX}, {sr(sWS,4)}, s{hop_expr_s} offen sc1")
        a(f"buffer_load_dwordx4 {vr(A1,4)}, v{vaX}, {sr(sWS,4)}, s{hop_expr_s} offen offset:128 sc1")
        a("s_waitcnt vmcnt(0)")
        sent_check([A0+i for i in range(8)], vT0, ok)
        spin_fail(l, sleep)
        a(f"{ok}:")

    def tag_check_all():
        l = a.label("tc"); ok = a.label("tcok")
        a(f"""
        s_lshl_b32 s{sB_}, s{sW}, 12
        s_add_u32 s{sB_}, s{sB_}, {WS_Q1+4}
        v_lshlrev_b32 v{vT0}, 7, v{vLane}
        """)
        setexec(0xFFFFFFFF)
        a(f"""
        {l}:
        buffer_load_dword v{vT1}, v{vT0}, {sr(sWS,4)}, s{sB_} offen sc1
        s_waitcnt vmcnt(0)
        v_xor_b32 v{vT1}, s{sT}, v{vT1}
        v_cmp_lt_u32 vcc, 15, v{vT1}
        s_cbranch_vccz {ok}
        """)
        spin_fail(l, 2)
        a(f"{ok}:")
        setexec(FULL)

    def o_phase(L):
        OA = vA
        l = a.label("op"); ok = a.label("ook")
        a(f"""
        s_mul_i32 s{sB_}, s{sJ}, {O_J}
        s_lshr_b32 s{sC}, s{sW}, 2
        s_mul_i32 s{sC}, s{sC}, {16*O_BLK}
        s_add_u32 s{sB_}, s{sB_}, s{sC}
        s_and_b32 s{sC}, s{sW}, 3
        s_lshl_b32 s{sD}, s{sC}, 5
        s_add_u32 s{sD}, s{sD}, s{sB_}
        s_add_u32 s{sD}, s{sD}, {WS_O + L*O_L}
        s_lshl_b32 s{sC}, s{sC}, 3
        s_add_u32 s{sC}, s{sC}, s{sB_}
        s_add_u32 s{sC}, s{sC}, {WS_O + L*O_L}
        {l}:
        buffer_load_dwordx2 {vr(vSt,2)}, v{vaSt}, {sr(sWS,4)}, s{sC} offen sc1
        """)
        for c in range(4):
            a(f"buffer_load_dwordx4 {vr(OA+4*c,4)}, v{vaO}, {sr(sWS,4)}, s{sD} offen offset:{c*256} sc1")
        a("s_waitcnt vmcnt(0)")
        sent_check([OA+i for i in range(16)] + [vSt, vSt+1], vT0, ok)
        spin_fail(l)
        a(f"{ok}:")
        ts(f"o_got{L}")
        acc = vAcc
        for c in range(4):
            for nt in range(2):
                mfma(acc + 4*nt, OA + 4*c, vW2 + 8*c + 4*nt, "0" if c == 0 else None)
        a(f"v_mov_b32 v{vU}, v{vSt}")
        dpp_row_reduce("v_max_f32", vU)
        a(f"""
        v_sub_f32 v{vU}, v{vSt}, v{vU}
        v_exp_f32 v{vU}, v{vU}
        v_mul_f32 v{vU+1}, v{vU}, v{vSt+1}
        """)
        dpp_row_reduce("v_add_f32", vU + 1)
        a(f"""
        v_rcp_f32 v{vU+1}, v{vU+1}
        v_mul_f32 v{vU}, v{vU}, v{vU+1}
        """)
        for nt in range(2):
            a(f"v_mul_f32_dpp v{vU+2+nt}, v{vU}, v{acc+4*nt} row_newbcast:0 row_mask:0xf bank_mask:0xf")
            for r in range(1, 4):
                a(f"v_fmac_f32_dpp v{vU+2+nt}, v{vU}, v{acc+4*nt+r} row_newbcast:{r} row_mask:0xf bank_mask:0xf")
        a(f"""
        v_permlane32_swap_b32 v{vU+2}, v{vU+3}
        v_add_f32 v{vU+2}, v{vU+2}, v{vU+3}
        v_mov_b32 v{vU+3}, v{vU+2}
        v_permlane16_swap_b32 v{vU+2}, v{vU+3}
        v_add_f32 v{vU+2}, v{vU+2}, v{vU+3}
        s_lshr_b32 s{sB_}, s{sW}, 2
        s_lshl_b32 s{sB_}, s{sB_}, 7
        v_add_u32 v{vT0}, s{sB_}, v{vaRedO}
        """)
        setexec(0x0000FFFF0000FFFF)
        a(f"ds_add_f32 v{vT0}, v{vU+2} offset:{R_O[L]}")
        setexec(FULL)
        a("s_waitcnt lgkmcnt(0)\ns_barrier")
        lab = a.label("of")
        a(f"s_cmp_eq_u32 s{sW}, 0\ns_cbranch_scc0 {lab}")
        setexec(0xFFFFFFFF)
        a(f"""
        v_lshlrev_b32 v{vT0}, 3, v{vLane}
        ds_read_b64 {vr(vU,2)}, v{vT0} offset:{L_RED+R_O[L]}
        v_lshlrev_b32 v{vU+2}, 16, v{vRes}
        v_and_b32 v{vU+3}, 0xffff0000, v{vRes}
        s_waitcnt lgkmcnt(0)
        v_add_f32 v{vU}, v{vU}, v{vU+2}
        v_add_f32 v{vU+1}, v{vU+1}, v{vU+3}
        v_cvt_pk_bf16_f32 v{vU}, v{vU}, v{vU+1}
        v_min_u32 v{vU}, 0xfffffffe, v{vU}
        v_lshlrev_b32 v{vT0}, 2, v{vLane}          ; b*64 + pi*4
        s_lshl_b32 s{sB_}, s{sJ}, 11
        s_lshl_b32 s{sC}, s{sIdx}, 7
        s_add_u32 s{sB_}, s{sB_}, s{sC}
        s_add_u32 s{sB_}, s{sB_}, {WS_X + (2*L)*16384}
        buffer_store_dword v{vU}, v{vT0}, {sr(sWS,4)}, s{sB_} offen sc1
        """)
        setexec(FULL)
        a(f"{lab}:")
        ts(f"o_pub{L}")

    def g_phase(L):
        a(f"s_mov_b32 s{sD}, {WS_X + (2*L)*16384}")
        x_poll(sD, cfg.sleep_x)
        ts(f"g_got{L}")
        aGt, aUp, a1, aG = vAcc, vAcc + 4, vAcc + 8, vAcc + 12
        mfma(aG, A0, A0, "0"); mfma(aGt, A0, vW2, "0"); mfma(aUp, A0, vW2 + 4, "0"); mfma(a1, A0, vOnes, "0")
        mfma(aG, A1, A1); mfma(aGt, A1, vW2 + 8); mfma(aUp, A1, vW2 + 12); mfma(a1, A1, vOnes)
        sum4(vU, aG)
        a(f"v_cndmask_b32 v{vU}, 0, v{vU}, s[{sMDIAG}:{sMDIAG+1}]")
        sum4(vU + 1, aGt)
        sum4(vU + 2, aUp)
        sum4(vU + 3, a1)
        a(f"ds_add_f32 v{vaRedO}, v{vU+1} offset:{R_G[L]}")
        a(f"ds_add_f32 v{vaRedO}, v{vU+2} offset:{R_G[L]+128}")
        dpp_row_reduce("v_add_f32", vU)
        setexec(MROW0)
        a(f"ds_add_f32 v{vaRedS}, v{vU+3} offset:{R_G[L]+256}")
        a(f"ds_add_f32 v{vaRedS}, v{vU} offset:{R_G[L]+256+4}")
        setexec(FULL)
        ts(f"g_red{L}")
        a("s_waitcnt lgkmcnt(0)\ns_barrier")
        ts(f"g_bar{L}")
        lab = a.label("gf")
        a(f"s_cmp_eq_u32 s{sW}, 0\ns_cbranch_scc0 {lab}")
        setexec(0xFFFF)
        a(f"""
        v_lshrrev_b32 v{vT0}, 3, v{vLane}
        v_and_b32 v{vT1}, 7, v{vLane}
        v_lshlrev_b32 v{vT2}, 3, v{vT1}
        v_lshl_add_u32 v{vT1}, v{vT0}, 6, v{vT2}   ; b*64 + pi*8
        v_lshlrev_b32 v{vT0}, 3, v{vT0}
        ds_read_b64 {vr(vU,2)}, v{vT1} offset:{L_RED+R_G[L]}
        ds_read_b64 {vr(vU+2,2)}, v{vT1} offset:{L_RED+R_G[L]+128}
        ds_read_b64 {vr(vU+4,2)}, v{vT0} offset:{L_RED+R_G[L]+256}
        s_waitcnt lgkmcnt(0)
        """)
        ln_stats(0)
        a(f"""
        v_fma_f32 v{vU}, -v{vSt}, v{vCg}, v{vU}
        v_fma_f32 v{vU+1}, -v{vSt}, v{vCg+1}, v{vU+1}
        v_fma_f32 v{vU+2}, -v{vSt}, v{vCg+2}, v{vU+2}
        v_fma_f32 v{vU+3}, -v{vSt}, v{vCg+3}, v{vU+3}
        v_mul_f32 v{vU}, v{vU}, v{vSt+1}
        v_mul_f32 v{vU+1}, v{vU+1}, v{vSt+1}
        v_mul_f32 v{vU+2}, v{vU+2}, v{vSt+1}
        v_mul_f32 v{vU+3}, v{vU+3}, v{vSt+1}
        v_mul_f32 v{vU}, {f2u(-1.4426950408889634):#x}, v{vU}
        v_mul_f32 v{vU+1}, {f2u(-1.4426950408889634):#x}, v{vU+1}
        v_exp_f32 v{vU}, v{vU}
        v_exp_f32 v{vU+1}, v{vU+1}
        v_add_f32 v{vU}, 1.0, v{vU}
        v_add_f32 v{vU+1}, 1.0, v{vU+1}
        v_rcp_f32 v{vU}, v{vU}
        v_rcp_f32 v{vU+1}, v{vU+1}
        v_mul_f32 v{vU}, v{vU}, v{vU+2}
        v_mul_f32 v{vU+1}, v{vU+1}, v{vU+3}
        v_cvt_pk_bf16_f32 v{vU}, v{vU}, v{vU+1}
        v_min_u32 v{vU}, 0xfffffffe, v{vU}
        v_lshrrev_b32 v{vT1}, 1, v{vT1}            ; b*32 + pi*4
        s_lshl_b32 s{sB_}, s{sJ}, 10
        s_lshl_b32 s{sC}, s{sIdx}, 6
        s_add_u32 s{sB_}, s{sB_}, s{sC}
        s_add_u32 s{sB_}, s{sB_}, {WS_H + L*8192}
        """)
        store_local(f"buffer_store_dword v{vU}, v{vT1}, {sr(sWS,4)}, s{sB_} offen")
        setexec(FULL)
        a(f"{lab}:")
        ts(f"g_pub{L}")

    def d_phase(L):
        skip = a.label("dsk")
        l = a.label("dp"); ok = a.label("dok")
        a(f"s_cmp_eq_u32 s{sW}, 7\ns_cbranch_scc1 {skip}")
        a(f"""
        s_lshl_b32 s{sB_}, s{sJ}, 10
        s_lshl_b32 s{sC}, s{sW}, 7
        s_add_u32 s{sB_}, s{sB_}, s{sC}
        s_add_u32 s{sB_}, s{sB_}, {WS_H + L*8192}
        """)
        setexec(M2)
        a(f"{l}:")
        a(f"buffer_load_dwordx4 {vr(vHop,4)}, v{vaH}, {sr(sWS,4)}, s{sB_} offen sc1")
        a("s_waitcnt vmcnt(0)")
        sent_check([vHop+i for i in range(4)], vT1, ok)
        spin_fail(l)
        a(f"{ok}:")
        setexec(FULL)
        ts(f"d_got{L}")
        acc = vAcc
        mfma(acc, vHop, vWd, "0"); mfma(acc + 4, vHop, vWd + 4, "0")
        a(f"""
        v_and_b32 v{vT0}, 1, v{vQd}
        v_lshlrev_b32 v{vT0}, 7, v{vT0}
        v_lshrrev_b32 v{vT1}, 1, v{vQd}
        v_lshl_add_u32 v{vT0}, v{vT1}, 6, v{vT0}
        v_lshl_add_u32 v{vT0}, v{vR16}, 2, v{vT0}
        v_permlane16_swap_b32 v{acc}, v{acc+1}
        v_permlane16_swap_b32 v{acc+4}, v{acc+5}
        v_permlane32_swap_b32 v{acc}, v{acc+4}
        ds_add_f32 v{vT0}, v{acc} offset:{L_RED+R_D[L]}
        """)
        a(f"{skip}:")
        lab = a.label("df"); l2 = a.label("dr"); ok2 = a.label("drok")
        a(f"s_cmp_eq_u32 s{sW}, 0\ns_cbranch_scc0 {lab}_a")
        a(f"""
        s_lshl_b32 s{sC}, s{sJ}, 11
        s_lshl_b32 s{sD}, s{sIdx}, 7
        s_add_u32 s{sC}, s{sC}, s{sD}
        s_add_u32 s{sC}, s{sC}, {WS_X + (2*L)*16384}
        v_lshlrev_b32 v{vT2}, 2, v{vLane}
        """)
        setexec(0xFFFFFFFF)
        a(f"{l2}:")
        a(f"buffer_load_dword v{vRes}, v{vT2}, {sr(sWS,4)}, s{sC} offen sc1")
        a("s_waitcnt vmcnt(0)")
        sent_check([vRes], vT1, ok2)
        spin_fail(l2)
        a(f"{ok2}:")
        setexec(FULL)
        a(f"{lab}_a:")
        a("s_waitcnt lgkmcnt(0)\ns_barrier")
        a(f"s_cmp_eq_u32 s{sW}, 0\ns_cbranch_scc0 {lab}")
        setexec(0xFFFFFFFF)
        a(f"""
        v_lshlrev_b32 v{vT0}, 3, v{vLane}
        ds_read_b64 {vr(vU,2)}, v{vT0} offset:{L_RED+R_D[L]}
        v_lshlrev_b32 v{vU+2}, 16, v{vRes}
        v_and_b32 v{vU+3}, 0xffff0000, v{vRes}
        s_waitcnt lgkmcnt(0)
        v_add_f32 v{vU}, v{vU}, v{vU+2}
        v_add_f32 v{vU+1}, v{vU+1}, v{vU+3}
        v_cvt_pk_bf16_f32 v{vU}, v{vU}, v{vU+1}
        v_min_u32 v{vU}, 0xfffffffe, v{vU}
        s_add_u32 s{sC}, s{sC}, 16384
        buffer_store_dword v{vU}, v{vT2}, {sr(sWS,4)}, s{sC} offen sc1
        """)
        setexec(FULL)
        a(f"{lab}:")
        ts(f"d_pub{L}")

    def q2_s2():
        a(f"s_mov_b32 s{sD}, {WS_X + 16384}")
        x_poll(sD, cfg.sleep_x)
        ts("q2_got")
        q_core(1)
        a("s_waitcnt lgkmcnt(0)\ns_barrier")
        lab = a.label("rs")
        a(f"""
        s_cmp_eq_u32 s{sW}, 0
        s_cbranch_scc0 {lab}
        s_lshl_b32 s{sB_}, s{sJ}, 11
        s_lshl_b32 s{sC}, s{sIdx}, 7
        s_add_u32 s{sB_}, s{sB_}, s{sC}
        s_add_u32 s{sB_}, s{sB_}, {WS_X + 16384}
        v_lshlrev_b32 v{vT0}, 2, v{vLane}
        """)
        setexec(0xFFFFFFFF)
        a(f"buffer_load_dword v{vRes}, v{vT0}, {sr(sWS,4)}, s{sB_} offen sc1")
        setexec(FULL)
        a(f"{lab}:")
        q_final(1)
        ts("q2_pub")
        l = a.label("qp"); ok = a.label("qok")
        a(f"""
        s_lshl_b32 s{sB_}, s{sJ}, 11
        s_lshr_b32 s{sC}, s{sM}, 4
        s_lshl_b32 s{sC}, s{sC}, 5
        s_add_u32 s{sB_}, s{sB_}, s{sC}
        s_add_u32 s{sB_}, s{sB_}, {WS_Q2}
        """)
        setexec(M4)
        a(f"{l}:")
        for c in range(4):
            a(f"buffer_load_dwordx4 {vr(vQ+4*c,4)}, v{vaQ2}, {sr(sWS,4)}, s{sB_} offen offset:{c*128} sc1")
        a("s_waitcnt vmcnt(0)")
        sent_check([vQ+i for i in range(16)], vT0, ok)
        spin_fail(l)
        a(f"{ok}:")
        setexec(FULL)
        ts("q2_gath")
        a(f"s_add_u32 s{sOown}, s{sOown}, {O_L}")
        s2()
        ts("s2_pub")

    a(f"s_cmp_lt_u32 s{sM}, 16\ns_cbranch_scc0 L_roleB")
    g.role = "A"; ts_split = g.ts
    wo_dma()
    s1_tail(4)
    a(f"v_mov_b32 v{vRes}, 0")
    lab = a.label("r0")
    a(f"""
    s_cmp_eq_u32 s{sJ}, 0
    s_cbranch_scc0 {lab}
    s_cmp_eq_u32 s{sW}, 0
    s_cbranch_scc0 {lab}
    v_lshrrev_b32 v{vT0}, 4, v{vLane}
    v_lshlrev_b32 v{vT0}, 10, v{vT0}
    v_and_b32 v{vT1}, 15, v{vLane}
    v_lshl_add_u32 v{vT0}, v{vT1}, 2, v{vT0}
    s_lshl_b32 s{sB_}, s{sIdx}, 6
    """)
    setexec(0xFFFFFFFF)
    a(f"buffer_load_dword v{vRes}, v{vT0}, {sr(sX0,4)}, s{sB_} offen")
    setexec(FULL)
    a(f"{lab}:")
    a("s_waitcnt vmcnt(0)\ns_barrier")
    a(f"s_and_b32 s{sB_}, s{sW}, 3\ns_lshl_b32 s{sB_}, s{sB_}, 13")
    tr_base(vT0, 64, sB_, L_W2)
    for c in range(4):
        for nt in range(2):
            a(f"ds_read_b64_tr_b16 {vr(vW2+8*c+4*nt,2)}, v{vT0} offset:{c*2048+nt*32}")
            a(f"ds_read_b64_tr_b16 {vr(vW2+8*c+4*nt+2,2)}, v{vT0} offset:{c*2048+nt*32+256}")
    a("s_waitcnt lgkmcnt(0)")
    ts("wo_ready")
    o_phase(0)
    tag_check_all()
    a("s_barrier")
    q2_s2()
    o_phase(1)
    a(f"""
    s_cmp_ge_u32 s{sIdx}, 2
    s_cbranch_scc1 L_fin
    s_cmp_eq_u32 s{sW}, 0
    s_cbranch_scc0 L_fin
    s_lshl_b32 s{sB_}, s{sJ}, 1
    s_add_u32 s{sB_}, s{sB_}, s{sIdx}        ; cb
    s_lshl_b32 s{sC}, s{sB_}, 7
    s_add_u32 s{sC}, s{sC}, {WS_X + 3*16384}
    """)
    for nt in range(2):
        for dd in range(4):
            a(f"""
            v_lshlrev_b32 v{vT0}, 3, v{vQd}
            v_add_u32 v{vT0}, {2*dd - 16*nt}, v{vT0}
            v_sub_u32 v{vT0}, v{vT0}, v{vR16}        ; k_lo - n
            v_mov_b32 v{vP+4*nt+dd}, 0
            v_cmp_eq_u32 vcc, 0, v{vT0}
            v_mov_b32 v{vT1}, 0x3f80
            v_cndmask_b32 v{vP+4*nt+dd}, v{vP+4*nt+dd}, v{vT1}, vcc
            v_cmp_eq_u32 vcc, -1, v{vT0}
            v_mov_b32 v{vT1}, 0x3f800000
            v_cndmask_b32 v{vP+4*nt+dd}, v{vP+4*nt+dd}, v{vT1}, vcc
            """)
    l = a.label("fp"); ok = a.label("fok")
    a(f"{l}:")
    a(f"buffer_load_dwordx4 {vr(A0,4)}, v{vaX}, {sr(sWS,4)}, s{sC} offen sc1")
    a("s_waitcnt vmcnt(0)")
    sent_check([A0+i for i in range(4)], vT0, ok)
    spin_fail(l, cfg.sleep_x)
    a(f"{ok}:")
    ts("fin_got")
    mfma(vAcc, A0, vP, "0"); mfma(vAcc + 4, A0, vP + 4, "0")
    sum4(vU, vAcc); sum4(vU + 1, vAcc + 4)
    a(f"""
    v_permlane16_swap_b32 v{vU}, v{vU+1}
    v_add_f32 v{vU}, v{vU}, v{vU+1}          ; rows [t0 b0, t1 b0, t0 b1, t1 b1]
    v_cvt_pk_bf16_f32 v{vU}, v{vU}, v{vU}
    v_lshrrev_b32 v{vT0}, 1, v{vQd}
    v_lshlrev_b32 v{vT0}, 10, v{vT0}
    v_and_b32 v{vT1}, 1, v{vQd}
    v_lshl_add_u32 v{vT0}, v{vT1}, 5, v{vT0}
    v_lshl_add_u32 v{vT0}, v{vR16}, 1, v{vT0}
    s_lshl_b32 s{sB_}, s{sB_}, 6
    buffer_store_short v{vU}, v{vT0}, {sr(sOUT,4)}, s{sB_} offen
    s_cmp_eq_u32 s{sB_}, 0
    s_cbranch_scc0 L_fin
    v_mov_b32 v{vT0}, {WS_EPOCH}
    v_mov_b32 v{vT1}, s{sT}
    """)
    setexec(1)
    a(f"buffer_store_dword v{vT1}, v{vT0}, {sr(sWS,4)}, 0 offen sc1")
    setexec(FULL)
    a("s_branch L_fin")

    a("L_roleB:")
    g.role = "B"; g.ts = ts_split
    s1_tail(0)
    a(f"""
    s_cmp_ge_u32 s{sIdx}, 14
    s_cbranch_scc1 L_nogu
    v_lshrrev_b32 v{vT0}, 1, v{vLane}
    v_mul_u32_u24 v{vT0}, 3584, v{vT0}
    v_and_b32 v{vT1}, 1, v{vLane}
    v_lshl_add_u32 v{vT0}, v{vT1}, 4, v{vT0}
    s_mul_i32 s{sB_}, s{sW}, {64*3584}
    s_mul_i32 s{sC}, s{sJ}, 448
    s_add_u32 s{sB_}, s{sB_}, s{sC}
    s_lshl_b32 s{sC}, s{sIdx}, 5
    s_add_u32 s{sB_}, s{sB_}, s{sC}
    s_lshl_b32 s{sC}, s{sW}, 11
    s_add_u32 s{sD}, s{sB_}, {32*3584}
    s_add_u32 s{sC}, s{sC}, {L_W2}
    s_mov_b32 m0, s{sC}
    s_add_u32 s{sC}, s{sC}, 1024
    buffer_load_dwordx4 v{vT0}, {sr(sW2,4)}, s{sB_} offen nt lds
    s_mov_b32 m0, s{sC}
    s_add_u32 s{sC}, s{sC}, {L_UP - L_W2 - 1024}
    buffer_load_dwordx4 v{vT0}, {sr(sW2,4)}, s{sD} offen nt lds
    s_mov_b32 m0, s{sC}
    s_add_u32 s{sC}, s{sC}, 1024
    buffer_load_dwordx4 v{vT0}, {sr(sUP,4)}, s{sB_} offen nt lds
    s_mov_b32 m0, s{sC}
    s_nop 0
    buffer_load_dwordx4 v{vT0}, {sr(sUP,4)}, s{sD} offen nt lds
    L_nogu:
    v_lshrrev_b32 v{vT0}, 2, v{vLane}
    v_lshlrev_b32 v{vT0}, 10, v{vT0}
    v_and_b32 v{vT1}, 3, v{vLane}
    v_lshl_add_u32 v{vT0}, v{vT1}, 4, v{vT0}
    s_mul_i32 s{sB_}, s{sJ}, {224*1024}
    s_lshl_b32 s{sC}, s{sIdx}, 6
    s_add_u32 s{sB_}, s{sB_}, s{sC}
    s_lshl_b32 s{sC}, s{sW}, 14
    s_add_u32 s{sB_}, s{sB_}, s{sC}
    s_lshl_b32 s{sC}, s{sW}, 10
    s_add_u32 s{sC}, s{sC}, {L_DN}
    s_mov_b32 m0, s{sC}
    s_nop 0
    buffer_load_dwordx4 v{vT0}, {sr(sDN,4)}, s{sB_} offen nt lds
    s_cmp_ge_u32 s{sW}, 6
    s_cbranch_scc1 L_nod2
    s_add_u32 s{sB_}, s{sB_}, {8*16384}
    s_add_u32 s{sC}, s{sC}, 8192
    s_mov_b32 m0, s{sC}
    s_nop 0
    buffer_load_dwordx4 v{vT0}, {sr(sDN,4)}, s{sB_} offen nt lds
    L_nod2:
    """)
    tag_check_all()
    a("s_waitcnt vmcnt(0)\ns_barrier")
    ts("ffn_landed")
    a(f"s_cmp_ge_u32 s{sIdx}, 14\ns_cbranch_scc1 L_nogu2")
    a(f"s_lshl_b32 s{sB_}, s{sW}, 11")
    tr_base(vT0, 32, sB_, L_W2)
    for u in range(2):
        for mat in range(2):
            a(f"ds_read_b64_tr_b16 {vr(vW2+8*u+4*mat,2)}, v{vT0} offset:{u*1024+mat*(L_UP-L_W2)}")
            a(f"ds_read_b64_tr_b16 {vr(vW2+8*u+4*mat+2,2)}, v{vT0} offset:{u*1024+mat*(L_UP-L_W2)+128}")
    a("s_waitcnt lgkmcnt(0)")
    mfma(vAcc, vOnes, vW2, "0"); mfma(vAcc + 4, vOnes, vW2 + 4, "0")
    mfma(vAcc, vOnes, vW2 + 8); mfma(vAcc + 4, vOnes, vW2 + 12)
    setexec(0xFFFF)
    a(f"ds_add_f32 v{vaRedG}, v{vAcc} offset:{R_COLG}")
    a(f"ds_add_f32 v{vaRedG}, v{vAcc+4} offset:{R_COLG+64}")
    setexec(FULL)
    a("L_nogu2:")
    a(f"s_cmp_eq_u32 s{sW}, 7\ns_cbranch_scc1 L_nodn")
    a(f"s_lshl_b32 s{sB_}, s{sW}, 11")
    tr_base(vT0, 64, sB_, L_DN)
    for nt in range(2):
        a(f"ds_read_b64_tr_b16 {vr(vWd+4*nt,2)}, v{vT0} offset:{nt*32}")
        a(f"ds_read_b64_tr_b16 {vr(vWd+4*nt+2,2)}, v{vT0} offset:{nt*32+256}")
    a("L_nodn:")
    a("s_waitcnt lgkmcnt(0)\ns_barrier")
    a(f"""
    v_and_b32 v{vT1}, 7, v{vLane}
    v_lshlrev_b32 v{vT1}, 3, v{vT1}
    ds_read_b64 {vr(vCg,2)}, v{vT1} offset:{L_RED+R_COLG}
    ds_read_b64 {vr(vCg+2,2)}, v{vT1} offset:{L_RED+R_COLG+64}
    s_waitcnt lgkmcnt(0)
    """)
    ts("ffn_ready")
    for L in range(2):
        lg = a.label("nog")
        a(f"s_cmp_ge_u32 s{sIdx}, 14\ns_cbranch_scc1 {lg}")
        g_phase(L)
        a(f"{lg}:")
        d_phase(L)
        if L == 0:
            q2_s2()
    a("L_fin:")
    if cfg.diag:
        g.role = "E"; g.ts = 31
        ts("end")
        a(f"s_lshl_b32 s{sB_}, s2, 3\ns_add_u32 s{sB_}, s{sB_}, s{sW}\ns_lshl_b32 s{sB_}, s{sB_}, 7\ns_add_u32 s{sB_}, s{sB_}, {WS_DIAG}\nv_mov_b32 v{vT0}, 0")
        setexec(1)
        for i in range(32):
            a(f"v_mov_b32 v{vT1}, s{sTS+i}\nbuffer_store_dword v{vT1}, v{vT0}, {sr(sWS,4)}, s{sB_} offen offset:{4*i}")
        setexec(FULL)
    a("s_waitcnt vmcnt(0)\ns_endpgm")
    a(f"""
    L_abort:
    s_mov_b64 exec, -1
    v_mov_b32 v{vT0}, 0
    v_mov_b32 v{vT1}, 0xdead
    s_load_dwordx2 s[{sTmp2}:{sTmp2+1}], s[0:1], 80
    s_waitcnt lgkmcnt(0)
    s_mov_b32 s{sE0}, s{sTmp2}
    s_and_b32 s{sE1}, s{sTmp2+1}, 0xffff
    s_mov_b32 s{sE2}, 256
    s_mov_b32 s{sE3}, 0x20000
    s_mov_b64 exec, 1
    buffer_store_dword v{vT1}, v{vT0}, s[{sE0}:{sE3}], 0 offen offset:4
    s_waitcnt vmcnt(0)
    L_end:
    s_endpgm
    """)
    a("L_codeend:")

    lines = a.text().rstrip("\n").split("\n")
    ninstr = sum(1 for l in lines if l.startswith("    ") and not l.strip().startswith(";"))
    g.ninstr = ninstr
    out = []
    for l in lines:
        if l.strip() == "; PFLOADS":
            out.append("    ; prefetch the kernel's own code into L2")
            out.append(f"    s_mov_b32 s{sB_}, (L_codeend - L_pfbase)")
            out.append(f"    v_cmp_gt_u32 vcc, s{sB_}, v{vT1}")
            nl = 6
            for i in range(nl):
                out.append(f"    v_cmp_gt_u32 vcc, s{sB_}, v{vT1}")
                out.append(f"    s_and_saveexec_b64 s[{sEx}:{sEx+1}], vcc")
                out.append(f"    s_cbranch_execz L_pf{i}")
                out.append(f"    global_load_dword v{vU+i}, v{vT1}, s[{sTmp2}:{sTmp2+1}]")
                out.append(f"L_pf{i}:")
                out.append(f"    s_mov_b64 exec, s[{sEx}:{sEx+1}]")
                out.append(f"    v_add_u32 v{vT1}, 8192, v{vT1}")
        else:
            out.append(l)
    lines = hazard.pad(out)
    return g, "\n".join(lines) + "\n"

HEADER = open("interleave_layers__sliding_block_cached__glu_gated_glu__decode.s.ref").read().split("; Override launch")[0]

def full(cfg):
    g, body = build(cfg)
    nv = (g.vmax + 7) // 8 * 8
    txt = HEADER
    txt += "; Persistent single-launch kernel: 256 workgroups (one per CU) x 512 threads.\n"
    txt += f"; @launch grid=(256,1,1) block=(512,1,1) lds={LDS_BYTES}\n"
    txt += '.amdgcn_target "amdgcn-amd-amdhsa--gfx950"\n.text\n'
    txt += f".globl {NAME}\n.p2align 8\n.type {NAME},@function\n{NAME}:\n"
    txt += body
    txt += '.section .rodata,"a"\n.p2align 6\n'
    txt += f".amdhsa_kernel {NAME}\n  .amdhsa_next_free_vgpr {nv}\n  .amdhsa_next_free_sgpr 102\n  .amdhsa_accum_offset {nv}\n"
    txt += "  .amdhsa_group_segment_fixed_size 0\n  .amdhsa_kernarg_size 96\n  .amdhsa_user_sgpr_count 2\n  .amdhsa_user_sgpr_kernarg_segment_ptr 1\n  .amdhsa_system_sgpr_workgroup_id_x 1\n.end_amdhsa_kernel\n"
    return g, txt

if __name__ == "__main__":
    cfg = Cfg()
    for kv in sys.argv[2:]:
        k, v = kv.split("="); setattr(cfg, k, eval(v))
    g, txt = full(cfg)
    open(sys.argv[1], "w").write(txt)
    print("vgprs", g.vmax, "instrs", g.ninstr, "ts", g.tsn)
```

```python
import re

REG = re.compile(r'^(-|\|)?(abs\()?([vsa])(?:(\d+)|\[(\d+):(\d+)\])\)?\|?$')
def regs_of(tok):
    tok = tok.strip()
    if tok in ("vcc", "vcc_lo", "vcc_hi"):
        return {"vcc"}
    if tok in ("exec", "exec_lo", "exec_hi"):
        return {"exec"}
    if tok == "m0":
        return {"m0"}
    m = REG.match(tok)
    if not m:
        return set()
    k = m.group(3)
    if m.group(4) is not None:
        return {f"{k}{m.group(4)}"}
    return {f"{k}{i}" for i in range(int(m.group(5)), int(m.group(6)) + 1)}

TRANS = ("v_exp_f32", "v_log_f32", "v_rcp_f32", "v_rsq_f32", "v_sqrt_f32", "v_sin_f32", "v_cos_f32", "v_rcp_iflag_f32")

class I:
    def __init__(self, text):
        self.text = text
        t = text.split(";")[0].strip()
        parts = t.split(None, 1)
        self.op = parts[0]
        rest = parts[1] if len(parts) > 1 else ""
        ops, depth, cur = [], 0, ""
        for ch in rest:
            if ch == "[": depth += 1
            if ch == "]": depth -= 1
            if ch == "," and depth == 0:
                ops.append(cur.strip()); cur = ""
            else:
                cur += ch
        if cur.strip(): ops.append(cur.strip())
        mods = ""
        if ops:
            sp = ops[-1].split(None, 1)
            ops[-1] = sp[0]
            mods = sp[1] if len(sp) > 1 else ""
        self.ops = ops; self.mods = mods
        op = self.op
        self.is_mfma = op.startswith("v_mfma")
        self.is_valu = op.startswith("v_") and not self.is_mfma
        self.is_salu = op.startswith("s_")
        self.is_vmem = op.startswith(("buffer_", "global_", "flat_"))
        self.is_ds = op.startswith("ds_")
        self.is_dpp = ("_dpp" in op) or any(k in mods for k in ("row_", "quad_perm", "wave_sh"))
        self.is_perm = op.startswith("v_permlane")
        self.is_trans = any(op.startswith(x) for x in TRANS)
        self.is_lane = op.startswith(("v_readlane", "v_readfirstlane", "v_writelane"))
        self.nop = 0
        if op == "s_nop":
            self.nop = int(ops[0], 0) + 1
        R = [regs_of(o) for o in ops]
        w, r = set(), set()
        self.srcC = set(); self.srcAB = set(); self.store_data = set(); self.wide = False
        if self.is_mfma:
            w = R[0]; self.srcAB = R[1] | R[2]; self.srcC = R[3]; r = self.srcAB | self.srcC
        elif self.is_valu:
            if op.startswith("v_cmp"):
                w = set(R[0]); r = set().union(*R[1:]) if len(R) > 1 else set()
            elif self.is_perm:
                w = R[0] | R[1]; r = R[0] | R[1]
            elif op.startswith(("v_add_co", "v_sub_co", "v_addc_co", "v_subb_co", "v_subrev_co")):
                w = R[0] | R[1]; r = set().union(*R[2:])
            else:
                w = set(R[0]); r = set().union(*R[1:]) if len(R) > 1 else set()
                if op.startswith(("v_fmac", "v_mac", "v_dot2c", "v_writelane", "v_pk_fmac")) or self.is_dpp:
                    r |= R[0]
                if op.startswith("v_cndmask") and len(ops) == 3:
                    r |= {"vcc"}
        elif self.is_ds:
            if op.startswith(("ds_read", "ds_bpermute", "ds_permute", "ds_swizzle")):
                w = R[0]; r = set().union(*R[1:]) if len(R) > 1 else set()
            else:
                r = set().union(*R)
        elif self.is_vmem:
            lds = "lds" in mods.split() or "_lds_" in op
            if "load" in op and not lds:
                w = R[0]; r = set().union(*R[1:])
            elif "atomic" in op and "sc0" in mods.split():
                w = R[0]; r = set().union(*R)
            else:
                r = set().union(*R) if R else set()
                if "store" in op:
                    d = R[0] if op.startswith("buffer_") else R[1]
                    self.store_data = d; self.wide = op.endswith(("x3", "x4"))
            self.lds_dma = lds
            if lds: r |= {"m0"}
        elif self.is_salu:
            if op.startswith(("s_cmp", "s_cbranch", "s_branch", "s_waitcnt", "s_nop", "s_barrier", "s_sleep", "s_endpgm", "s_setprio", "s_bitcmp")):
                r = set().union(*R) if R else set()
            else:
                w = set(R[0]) if R else set(); r = set().union(*R[1:]) if len(R) > 1 else set()
                if "saveexec" in op: w |= {"exec"}
        self.w = w; self.r = r

def need(p, c):
    n = 0
    vw = {x for x in p.w if x[0] in "va" and x != "vcc"}
    sw = {x for x in p.w if x[0] == "s" or x == "vcc"}
    if p.is_valu:
        if c.is_mfma and (vw & c.r): n = max(n, 2)
        if c.is_dpp and (vw & (c.r)): n = max(n, 2)
        if c.is_perm and (vw & c.r): n = max(n, 2)
        if c.is_lane and (vw & c.r): n = max(n, 1)
        if p.is_trans and c.is_valu and not c.is_trans and (vw & c.r): n = max(n, 1)
        if sw:
            if c.is_valu and (sw & c.r): n = max(n, 4 if c.is_lane else 2)
            if c.is_vmem and (sw & c.r): n = max(n, 5)
            if c.is_salu and (sw & c.r): n = max(n, 1)
        if "exec" in p.w and c.is_dpp: n = max(n, 5)
    if p.is_mfma:
        D = p.w
        if c.is_mfma:
            if c.srcC & D:
                n = max(n, 0 if c.srcC == D else 6)
            if c.srcAB & D: n = max(n, 8)
            if (c.w & D) and c.w != D: n = max(n, 8)
        elif c.is_valu or c.is_vmem or c.is_ds:
            if (c.r | c.w) & D: n = max(n, 8)
        if c.is_valu and (c.w & p.srcC): n = max(n, 3)
    if p.is_vmem and p.wide and c.is_valu and (c.w & p.store_data): n = max(n, 2)
    if p.is_vmem and p.wide and (c.is_ds or c.is_vmem) and (c.w & p.store_data): n = max(n, 1)
    if p.is_salu and "m0" in p.w and c.is_vmem and getattr(c, "lds_dma", False): n = max(n, 1)
    if p.is_salu and "exec" in p.w and c.is_mfma: n = max(n, 1)
    return n

WIN = 14
MFMA_B2B = 1
def pad(lines):
    def is_label(l): return l.endswith(":") and not l.startswith(" ")
    def is_dir(l): return l.strip().startswith((".", ";")) or l.strip() == ""
    snaps = {}
    for rnd in range(3):
        out = []; hist = []
        newsn = {}
        def merge(h1, h2):
            d = {}
            for ins, age in h1 + h2:
                k = id(ins) if False else ins.text + "#" + str(getattr(ins, "pos", 0))
                if k not in d or d[k][1] > age: d[k] = (ins, age)
            return list(d.values())
        pos = 0; prev_mfma = False
        for l in lines:
            pos += 1
            s = l.strip()
            if is_dir(l):
                out.append(l); continue
            if s.endswith(":"):
                prev_mfma = False
                lab = s[:-1]
                if lab in snaps: hist = merge(hist, snaps[lab])
                out.append(l); continue
            ins = I(s); ins.pos = pos
            req = 0
            for p, age in hist:
                req = max(req, need(p, ins) - age)
            if req > 0:
                prev_mfma = False
                k = req
                while k > 0:
                    t = min(k, 16)
                    out.append(f"    s_nop {t-1}"); k -= t
                hist = [(p, a + req) for p, a in hist]
            out.append(l)
            st = ins.nop if ins.nop else 1
            if ins.is_mfma and prev_mfma: st = MFMA_B2B
            prev_mfma = ins.is_mfma
            hist = [(p, a + st) for p, a in hist if a + st < WIN]
            if not ins.nop: hist.append((ins, 0))
            if ins.op.startswith(("s_cbranch", "s_branch")):
                lab = ins.ops[0]
                newsn[lab] = merge(newsn.get(lab, []), hist)
                if ins.op == "s_branch": hist = []
            if ins.op == "s_endpgm": hist = []
        if rnd > 0 and all(len(newsn.get(k, [])) == len(snaps.get(k, [])) for k in newsn):
            snaps = newsn
            break
        snaps = newsn
    return out
```

```python
import sys, struct
from asmlib import Asm
import hazard

NAME = "interleave_layers__sliding_block_cached__glu_gated_glu__decode_kernel"

WS_EPOCH = 0x0
WS_Q1 = 0x10000
WS_Q2 = 0x20000
WS_H  = 0x28000
WS_X  = 0x30000
WS_O  = 0x40000
O_BLK = 1152
O_J = 32 * O_BLK
O_L = 8 * O_J
WS_DIAG = 0x100000
WS_SIZE = 0x200000

L_SMAX = 0
L_LSUM = 64
L_PBUF = 256
L_RED = 2560
R_Q, R_G, R_GZ, R_O, R_D, R_COL, R_COL2 = [L_RED + 1024 * i for i in range(7)]
L_QG = 10240
L_X0 = 14336
L_K = 16384
L_V = L_K + 65536
L_WQ = L_V + 65536
LDS_BYTES = 163840
W_GATE, W_UP, W_DN = 0, 4096, 8192

C_SCALE = 0.08838834764831845 * 1.4426950408889634
def f2u(x): return struct.unpack("<I", struct.pack("<f", x))[0]

class Cfg:
    nKA = 8
    nKb1 = 1
    pace = 4
    gpts = (1, 2, 4)
    diag = False
    ts_only = None
    ts_issue = False
    force_global = False
    budget = 400000
    prefetch_code = True
    sleep_x = 0
    sleep_x0 = 0
    sleep_o = 0
    sl_nt = True
    pf_pol = ""
    pf_which = "qof"
    line_pf = True
    const_tag = False
    no_clear0 = False
    clr0_late = False

def vr(b, n=1): return f"v[{b}:{b+n-1}]" if n > 1 else f"v{b}"
def ar(b, n=1): return f"a[{b}:{b+n-1}]" if n > 1 else f"a{b}"
def sr(b, n=1): return f"s[{b}:{b+n-1}]" if n > 1 else f"s{b}"

sJ, sM, sW, sIdx, sL = 3, 4, 5, 6, 7
sWS, sKS, sVS, sWQ, sW2, sUP, sDN, sX0, sOUT = 8, 12, 16, 20, 24, 28, 32, 36, 40
sT, sTX, sLocal, sBud = 44, 45, 46, 47
sMDIAG = 48
sM4 = 50
sM2 = 52
sMN1 = 54
sMEV = 56
sEx = 58
sA, sB, sC, sD = 60, 61, 62, 63
sKV, sRot = 64, 65
sOown, sOcons, sXw, sXr, sHb, sQ2w, sQ2r = 66, 67, 68, 69, 70 - 70 + 96, 97, 98
sXcc = 99
sTmp2 = 100
sTS = 70
NTS = 26

class G:
    pass

def build(cfg):
    g = G(); a = Asm(); g.a = a
    g.tsn = {"C": [], "A": [], "B": [], "E": []}; g.role = "C"; g.ts = 0
    nv = [1]
    def valloc(n=1, align=1):
        nv[0] = (nv[0] + align - 1) // align * align
        r = nv[0]; nv[0] += n
        assert nv[0] <= 256
        return r
    vLane = valloc(); vR16 = valloc(); vQd = valloc()
    vT0 = valloc(); vT1 = valloc(); vT2 = valloc(); vT3 = valloc()
    vOnes = valloc(4, 4)
    vQ = valloc(16, 4)
    vA = valloc(40, 4)
    vAcc = valloc(16, 4)
    vS = valloc(16, 4)
    vP = valloc(32, 4)
    vJ = valloc()
    vHop = valloc(8, 4)
    vU = valloc(16, 4)
    vSt = valloc(8, 4)
    vW = valloc(2, 2)
    vCs = valloc(); vCg = valloc(); vCu = valloc()
    vRes = valloc()
    vQ1d = valloc(2, 2); vQ1a = valloc()
    vMc = valloc(4, 4)
    vaX = valloc(); vaO0 = valloc(); vaO1 = valloc(); vaS0 = valloc(); vaS1 = valloc(); vaQ2 = valloc(); vaH = valloc()
    vaPw = valloc(); vaPr = valloc(); vaSm = valloc(); vaSmW = valloc(); vaRedW = valloc(); vaRedZ = valloc()
    vaFinW = valloc(); vaFinZ = valloc(); vaFinQZ = valloc(); vaFinO = valloc()
    vaStH = valloc(); vaStX = valloc(); vaStO = valloc(); vaStS = valloc(); vaResU = valloc()
    vKs = valloc(4); vVs = valloc(2); vVr = valloc(2); vKr = valloc(4)
    g.vmax = nv[0]
    aK, aV, aWq, aW2, aWd = 0, 64, 128, 144, 176
    g.amax = 192

    FULL = (1 << 64) - 1
    def ts(name):
        if not cfg.diag: return
        i = g.ts; g.ts += 1
        assert i < NTS - 3, name
        g.tsn[g.role].append((i, name))
        if name == "start":
            return
        if name == "issued":
            g.i_issued = i
            a(f"s_memtime s[{sTmp2}:{sTmp2+1}]\ns_waitcnt lgkmcnt(0)\ns_mov_b32 s92, s{sTmp2}")
            return
        if name == "setup":
            a(f"s_mov_b32 s{sTS}, s90\ns_mov_b32 s{sTS+NTS-3}, s91")
            if cfg.ts_issue: a(f"s_mov_b32 s{sTmp2}, s92")
            for z in list(range(1, NTS - 3)) + [NTS - 2, NTS - 1]: a(f"s_mov_b32 s{sTS+z}, 0")
            if cfg.ts_issue: a(f"s_mov_b32 s{sTS+g.i_issued}, s{sTmp2}")
        if cfg.ts_only and name not in cfg.ts_only:
            return
        a(f"s_memtime s[{sTmp2}:{sTmp2+1}]\ns_waitcnt lgkmcnt(0)\ns_mov_b32 s{sTS+i}, s{sTmp2}")
    def ts_dyn(name0, name1):
        if not cfg.diag: return
        i = g.ts; g.ts += 2
        assert i + 1 < NTS - 3, name0
        g.tsn[g.role].append((i, name0)); g.tsn[g.role].append((i + 1, name1))
        if cfg.ts_only and name0 not in cfg.ts_only: return
        a(f"""s_memtime s[{sTmp2}:{sTmp2+1}]
        s_waitcnt lgkmcnt(0)
        s_cmp_eq_u32 s{sL}, 0
        s_cselect_b32 s{sTS+i}, s{sTmp2}, s{sTS+i}
        s_cselect_b32 s{sTS+i+1}, s{sTS+i+1}, s{sTmp2}""")

    def setexec(mask):
        if mask == FULL: a("s_mov_b64 exec, -1")
        elif isinstance(mask, str): a(f"s_mov_b64 exec, {mask}")
        elif mask < 65 or mask in (0xFFFF, 0xF, 0xFF):
            a(f"s_mov_b64 exec, 0x{mask:x}" if mask >= 65 else f"s_mov_b64 exec, {mask}")
        else:
            a(f"s_mov_b32 exec_lo, 0x{mask & 0xFFFFFFFF:x}\ns_mov_b32 exec_hi, 0x{mask >> 32:x}")
    EM4, EM2, EMEV = f"s[{sM4}:{sM4+1}]", f"s[{sM2}:{sM2+1}]", f"s[{sMEV}:{sMEV+1}]"

    def srd(dst, ptr_s, size):
        a(f"s_mov_b32 s{dst}, s{ptr_s}\ns_and_b32 s{dst+1}, s{ptr_s+1}, 0xffff\ns_mov_b32 s{dst+2}, 0x{size:x}\ns_mov_b32 s{dst+3}, 0x20000")

    def mfma(d, A, B, C=None):
        f = lambda x: x if isinstance(x, str) else vr(x, 4)
        c = f(d) if C is None else C
        a(f"v_mfma_f32_16x16x32_bf16 {f(d)}, {f(A)}, {f(B)}, {c}")

    def spin_fail(lbl_retry, sleep=0):
        if sleep: a(f"s_sleep {sleep}")
        a(f"s_sub_u32 s{sBud}, s{sBud}, 1\ns_cbranch_scc0 {lbl_retry}\ns_branch L_abort")
    def interleave(mf, va, start, per=2):
        va = list(va)
        for i, m in enumerate(mf):
            a(m)
            if i >= start:
                for _ in range(per):
                    if va: a(va.pop(0))
        for v in va: a(v)
    def mf(d, A, B, C=None):
        f = lambda x: x if isinstance(x, str) else vr(x, 4)
        return f"v_mfma_f32_16x16x32_bf16 {f(d)}, {f(A)}, {f(B)}, {f(d) if C is None else C}"

    def sent_max(regs, tmp):
        rs = list(regs)
        if len(rs) == 1: return rs[0]
        if len(rs) == 2:
            a(f"v_max_u32 v{tmp}, v{rs[0]}, v{rs[1]}"); rs = []
        else:
            a(f"v_max3_u32 v{tmp}, v{rs[0]}, v{rs[1]}, v{rs[2]}"); rs = rs[3:]
        while len(rs) >= 2:
            a(f"v_max3_u32 v{tmp}, v{tmp}, v{rs[0]}, v{rs[1]}"); rs = rs[2:]
        if rs: a(f"v_max_u32 v{tmp}, v{tmp}, v{rs[0]}")
        return tmp
    def sent_check(regs, tmp, lbl_ok):
        cur = sent_max(regs, tmp)
        a(f"v_cmp_eq_u32 vcc, -1, v{cur}\ns_cbranch_vccz {lbl_ok}")

    g.ool = []
    def store_local(instr):
        if cfg.force_global:
            a(instr + " sc1"); return
        l1 = a.label("stg"); l2 = a.label("std")
        a(f"s_cmp_eq_u32 s{sLocal}, 0\ns_cbranch_scc1 {l1}")
        a(instr)
        a(f"{l2}:")
        g.ool.append(f"{l1}:\n{instr} sc1\ns_branch {l2}")

    def dpp(op, d, s0, s1, ctrl, rm="0xf", bm="0xf"):
        if s1 is None: a(f"{op}_dpp v{d}, v{s0} {ctrl} row_mask:{rm} bank_mask:{bm}")
        else: a(f"{op}_dpp v{d}, v{s0}, v{s1} {ctrl} row_mask:{rm} bank_mask:{bm}")
    def row_reduce(op, v, steps=(8, 4, 2, 1)):
        for n in steps: dpp(op, v, v, v, f"row_ror:{n}")
    def xquad_reduce(op, v, tmp):
        a(f"v_mov_b32 v{tmp}, v{v}\nv_permlane32_swap_b32 v{v}, v{tmp}\n{op} v{v}, v{v}, v{tmp}")
        a(f"v_mov_b32 v{tmp}, v{v}\nv_permlane16_swap_b32 v{v}, v{tmp}\n{op} v{v}, v{v}, v{tmp}")
    def sum4(dst, b, tmp):
        a(f"v_add_f32 v{dst}, v{b}, v{b+1}\nv_add_f32 v{tmp}, v{b+2}, v{b+3}\nv_add_f32 v{dst}, v{dst}, v{tmp}")

    P = sTS
    EARLY = ""
    if cfg.diag:
        EARLY = f"s_memrealtime s[{sTmp2}:{sTmp2+1}]\ns_waitcnt lgkmcnt(0)\ns_mov_b32 s91, s{sTmp2}\ns_memtime s[{sTmp2}:{sTmp2+1}]\ns_waitcnt lgkmcnt(0)\ns_mov_b32 s90, s{sTmp2}"
    a(f"""
    s_cmp_ge_u32 s2, 256
    s_cbranch_scc1 L_end
    {EARLY}
    s_load_dwordx4 s[{P+2}:{P+5}], s[0:1], 0           ; x, K      (72..75)
    s_load_dwordx4 s[{P+6}:{P+9}], s[0:1], 16          ; V, wq     (76..79)
    s_load_dwordx2 s[{P+18}:{P+19}], s[0:1], 88        ; ws        (88..89)
    s_load_dwordx2 s[{P}:{P+1}], s[0:1], 32            ; wo        (70..71)
    s_load_dwordx4 s[{P+10}:{P+13}], s[0:1], 48
    s_load_dwordx4 s[{P+14}:{P+17}], s[0:1], 64
    v_lshrrev_b32 v{vT0}, 6, v0
    v_and_b32 v{vLane}, 63, v0
    v_and_b32 v{vR16}, 15, v0
    v_readfirstlane_b32 s{sW}, v{vT0}
    v_lshrrev_b32 v{vQd}, 4, v{vLane}
    """)
    if cfg.prefetch_code:
        a(f"""
        s_getpc_b64 s[{sTmp2}:{sTmp2+1}]
        L_pfbase:
        v_lshlrev_b32 v{vT1}, 7, v0
        s_mov_b32 s{sB}, (L_codeend - L_pfbase)
        v_cmp_gt_u32 vcc, s{sB}, v{vT1}
        s_and_saveexec_b64 s[{sEx}:{sEx+1}], vcc
        s_cbranch_execz L_nopf
        global_load_dword v{vU+15}, v{vT1}, s[{sTmp2}:{sTmp2+1}]
        L_nopf:
        s_mov_b64 exec, s[{sEx}:{sEx+1}]
        """)
    a(f"""
    s_and_b32 s{sJ}, s2, 7
    s_lshr_b32 s{sM}, s2, 3
    s_and_b32 s{sIdx}, s{sM}, 15
    s_and_b32 s{sRot}, s{sM}, 7
    s_lshl_b32 s{sRot}, s{sRot}, 1
    s_lshr_b32 s{sB}, s{sM}, 4
    s_lshl_b32 s{sB}, s{sB}, 3
    s_add_u32 s{sB}, s{sB}, s{sJ}
    s_lshl_b32 s{sB}, s{sB}, 23
    s_lshl_b32 s{sC}, s{sIdx}, 16
    s_add_u32 s{sKV}, s{sB}, s{sC}
    s_add_u32 s{sKV}, s{sKV}, 0x700000
    s_mul_i32 s{sOown}, s{sJ}, {O_J}
    s_mul_i32 s{sB}, s{sM}, {O_BLK}
    s_add_u32 s{sOown}, s{sOown}, s{sB}
    s_add_u32 s{sOown}, s{sOown}, {WS_O}
    """)
    XA = vA + 8
    a(f"""
    v_lshrrev_b32 v{vT2}, 1, v{vLane}
    v_lshlrev_b32 v{vT2}, 13, v{vT2}
    v_and_b32 v{vT3}, 1, v{vLane}
    v_lshl_add_u32 v{vT2}, v{vT3}, 4, v{vT2}
    v_lshlrev_b32 v{vT1}, 4, v{vLane}          ; lane*16
    """)
    for i in range(4):
        a(f"""
        v_add_u32 v{vT3}, {4*i}, v{vQd}
        v_xor_b32 v{vT3}, v{vT3}, v{vR16}
        v_lshlrev_b32 v{vT3}, 4, v{vT3}
        v_lshl_add_u32 v{vKs+i}, v{vQd}, 8, v{vT3}
        """)
    a(f"""
    s_lshr_b32 s{sC}, s{sM}, 4
    s_lshl_b32 s{sC}, s{sC}, 14
    s_lshl_b32 s{sD}, s{sJ}, 11
    s_add_u32 s{sC}, s{sC}, s{sD}
    s_lshl_b32 s{sD}, s{sIdx}, 7
    s_add_u32 s{sC}, s{sC}, s{sD}
    s_add_u32 s{sXw}, s{sC}, {WS_X}
    s_mov_b32 s{sXr}, {WS_X}
    s_lshl_b32 s{sHb}, s{sJ}, 10
    s_add_u32 s{sHb}, s{sHb}, {WS_H}
    s_lshl_b32 s{sQ2w}, s{sJ}, 11
    s_add_u32 s{sQ2r}, s{sQ2w}, {WS_Q2}
    s_lshl_b32 s{sB}, s{sM}, 6
    s_add_u32 s{sQ2w}, s{sQ2r}, s{sB}
    s_lshr_b32 s{sB}, s{sM}, 4
    s_lshl_b32 s{sB}, s{sB}, 5
    s_add_u32 s{sQ2r}, s{sQ2r}, s{sB}
    s_waitcnt lgkmcnt(0)
    """)
    srd(sWQ, P + 8, 0x400000)
    srd(sKS, P + 4, 0x8000000)
    srd(sWS, P + 18, WS_SIZE)
    if cfg.const_tag: a(f"s_mov_b32 s{sT}, 0x12345670")
    else: a(f"s_load_dword s{sT}, s[{P+18}:{P+19}], {WS_EPOCH}")
    SLN = " nt" if cfg.sl_nt else ""
    if cfg.no_clear0: a("s_branch L_clr_done")
    a(f"s_cmp_eq_u32 s{sW}, 2\ns_cbranch_scc0 L_clr_done")
    a(f"""
    v_mov_b32 v{vU}, -1
    v_mov_b32 v{vU+1}, -1
    v_mov_b32 v{vU+2}, -1
    v_mov_b32 v{vU+3}, -1
    v_and_b32 v{vT3}, 7, v{vLane}
    v_lshlrev_b32 v{vT3}, 4, v{vT3}        ; (l&7)*16
    v_mov_b32 v{vT0}, s{sXw}
    s_add_u32 s{sC}, s{sXw}, 32768
    """)
    setexec(0xFF00)
    a(f"v_mov_b32 v{vT0}, s{sC}")
    setexec(0xFFF << 16)
    a(f"""
    v_mov_b32 v{vT0}, s{sQ2w}
    v_and_b32 v{vT3}, 3, v{vLane}
    v_lshlrev_b32 v{vT3}, 4, v{vT3}
    s_cmp_lt_u32 s{sM}, 16
    s_cbranch_scc1 L_clr_noh
    s_cmp_ge_u32 s{sIdx}, 14
    s_cbranch_scc1 L_clr_noh
    s_lshl_b32 s{sD}, s{sIdx}, 6
    s_add_u32 s{sC}, s{sHb}, s{sD}
    """)
    setexec(0xF << 16)
    a(f"v_mov_b32 v{vT0}, s{sC}\ns_add_u32 s{sC}, s{sC}, 8192")
    setexec(0xF0 << 16)
    a(f"v_mov_b32 v{vT0}, s{sC}")
    a("L_clr_noh:")
    setexec((1 << 28) - 1)
    a(f"""
    v_add_u32 v{vT0}, v{vT0}, v{vT3}
    buffer_store_dwordx4 {vr(vU,4)}, v{vT0}, {sr(sWS,4)}, 0 offen sc1
    """)
    setexec(FULL)
    a("L_clr_done:")
    srd(sX0, P + 2, 2048)
    a(f"s_cmp_eq_u32 s{sW}, 0\ns_cbranch_scc0 L_nox0")
    a(f"""
    s_mov_b32 m0, {L_X0}
    s_nop 0
    buffer_load_dwordx4 v{vT1}, {sr(sX0,4)}, 0 offen lds
    buffer_load_dwordx4 v{vT1}, {sr(sX0,4)}, 0 offen offset:1024 lds
    L_nox0:
    """)
    if cfg.line_pf and "q" in cfg.pf_which:
        a(f"""
        v_lshrrev_b32 v{vT0}, 3, v{vLane}
        v_lshlrev_b32 v{vT0}, 13, v{vT0}
        v_and_b32 v{vT3}, 7, v{vLane}
        v_lshl_add_u32 v{vT0}, v{vT3}, 7, v{vT0}
        s_lshl_b32 s{sB}, s{sM}, 2
        s_add_u32 s{sB}, s{sB}, s{sW}
        s_lshl_b32 s{sB}, s{sB}, 15
        s_lshl_b32 s{sC}, s{sJ}, 10
        s_add_u32 s{sB}, s{sB}, s{sC}
        """)
        setexec(0xFFFFFFFF)
        a(f"buffer_load_dword v{vJ}, v{vT0}, {sr(sWQ,4)}, s{sB} offen{cfg.pf_pol}")
        setexec(FULL)
    a(f"""
    s_lshl_b32 s{sB}, s{sW}, 20
    s_lshl_b32 s{sC}, s{sJ}, 10
    s_add_u32 s{sB}, s{sB}, s{sC}
    s_lshl_b32 s{sC}, s{sM}, 5
    s_add_u32 s{sB}, s{sB}, s{sC}
    s_lshl_b32 s{sC}, s{sW}, 12
    s_add_u32 s{sC}, s{sC}, {L_WQ}
    """)
    for u in range(4):
        a(f"""
        s_mov_b32 m0, s{sC}
        s_add_u32 s{sC}, s{sC}, 1024
        buffer_load_dwordx4 v{vT2}, {sr(sWQ,4)}, s{sB} offen{SLN} lds
        s_add_u32 s{sB}, s{sB}, {32*8192}
        """)
    def page_off(t, dst):
        a(f"""
        s_add_u32 s{dst}, s{sW}, s{sRot}
        s_add_u32 s{dst}, s{dst}, {4*t}
        s_and_b32 s{dst}, s{dst}, 15
        s_lshl_b32 s{dst}, s{dst}, 12
        s_add_u32 s{dst}, s{dst}, s{sKV}
        """)
    def k_page(t):
        page_off(t, sD)
        a(f"s_lshl_b32 s{sC}, s{sW}, 14\ns_add_u32 s{sC}, s{sC}, {L_K + t*4096}\ns_mov_b32 m0, s{sC}\ns_nop 0")
        for ii in range(4):
            a(f"buffer_load_dwordx4 v{vKs+ii}, {sr(sKS,4)}, s{sD} offen offset:{ii*1024} nt lds")
    nKpA = cfg.nKA // 4
    for t in range(cfg.nKb1): k_page(t)
    ts("start")
    if cfg.ts_issue: ts("issued")

    srd(sVS, P + 6, 0x8000000)
    srd(sUP, P + 12, 512 * 1792 * 2)
    srd(sDN, P + 14, 1792 * 512 * 2)
    srd(sOUT, P + 16, 2048)
    a(f"""
    s_cmp_lt_u32 s{sM}, 16
    s_cselect_b32 s{sW2}, s{P}, s{P+10}
    s_cselect_b32 s{sW2+1}, s{P+1}, s{P+11}
    s_mov_b32 s{sW2+2}, {512*1792*2}
    s_cselect_b32 s{sW2+2}, 0x400000, s{sW2+2}
    s_and_b32 s{sW2+1}, s{sW2+1}, 0xffff
    s_mov_b32 s{sW2+3}, 0x20000
    s_mov_b32 s{sBud}, {cfg.budget}
    s_getreg_b32 s{sXcc}, hwreg(HW_REG_XCC_ID, 0, 4)
    s_mov_b32 s{sMDIAG}, 0x00ff00ff
    s_mov_b32 s{sMDIAG+1}, 0xff00ff00
    s_mov_b32 s{sM4}, 0x000f000f
    s_mov_b32 s{sM4+1}, 0x000f000f
    s_mov_b32 s{sM2}, 0x00030003
    s_mov_b32 s{sM2+1}, 0x00030003
    s_mov_b32 s{sMN1}, 0x00020002
    s_mov_b32 s{sMN1+1}, 0x00020002
    s_mov_b32 s{sMEV}, 0x55555555
    s_mov_b32 s{sMEV+1}, 0x55555555
    s_mov_b32 s{sL}, 0
    s_mul_i32 s{sOcons}, s{sJ}, {O_J}
    s_lshl_b32 s{sB}, s{sW}, 6
    s_add_u32 s{sOcons}, s{sOcons}, s{sB}
    s_add_u32 s{sOcons}, s{sOcons}, {WS_O}
    """)
    for i in range(4): a(f"v_mov_b32 v{vOnes+i}, 0x3f803f80")
    for i in range(16): a(f"v_mov_b32 v{vQ+i}, 0")
    for i in range(8): a(f"v_mov_b32 v{vHop+i}, 0")
    a(f"v_mov_b32 v{vQ1a}, 0\nv_mov_b32 v{vQ1d}, 0\nv_mov_b32 v{vQ1d+1}, 0")
    h3 = vU; qh = vU + 1; ql = vU + 2
    a(f"""
    v_and_b32 v{h3}, 3, v{vR16}
    v_lshrrev_b32 v{qh}, 1, v{vQd}
    v_and_b32 v{ql}, 1, v{vQd}
    v_and_b32 v{vT0}, 7, v{vR16}
    v_lshlrev_b32 v{vT0}, 11, v{vT0}
    v_lshrrev_b32 v{vT1}, 3, v{vR16}
    v_lshl_add_u32 v{vT0}, v{vT1}, 6, v{vT0}
    v_lshl_add_u32 v{vT0}, v{vQd}, 4, v{vT0}
    s_lshl_b32 s{sB}, s{sW}, 9
    v_add_u32 v{vaX}, s{sB}, v{vT0}
    v_mul_u32_u24 v{vT0}, {O_BLK}, v{vR16}
    v_lshl_add_u32 v{vaO0}, v{vQd}, 4, v{vT0}
    v_add_u32 v{vaO1}, {16*O_BLK}, v{vaO0}
    v_lshl_add_u32 v{vT0}, v{vQd}, 2, v{vR16}
    v_and_b32 v{vT0}, 15, v{vT0}
    v_mul_u32_u24 v{vT0}, {O_BLK}, v{vT0}
    s_mul_i32 s{sB}, s{sW}, 48
    s_sub_u32 s{sB}, 1024, s{sB}
    v_add_u32 v{vaS0}, s{sB}, v{vT0}
    v_add_u32 v{vaS1}, {16*O_BLK}, v{vaS0}
    v_lshlrev_b32 v{vT0}, 9, v{h3}
    v_lshl_add_u32 v{vT0}, v{qh}, 6, v{vT0}
    v_lshl_add_u32 v{vaQ2}, v{ql}, 4, v{vT0}
    v_and_b32 v{vT0}, 1, v{vR16}
    v_lshlrev_b32 v{vT0}, 5, v{vT0}
    v_lshl_add_u32 v{vT0}, v{qh}, 6, v{vT0}
    v_lshl_add_u32 v{vT0}, v{ql}, 4, v{vT0}
    s_lshl_b32 s{sB}, s{sW}, 7
    v_add_u32 v{vaH}, s{sB}, v{vT0}
    v_lshlrev_b32 v{vT0}, 6, v{vQd}
    v_lshl_add_u32 v{vT0}, v{h3}, 4, v{vT0}
    v_add_u32 v{vaPr}, {L_PBUF}, v{vT0}
    v_lshrrev_b32 v{vT1}, 2, v{vR16}
    v_lshl_add_u32 v{vT1}, v{vT1}, 9, v{vaPr}
    s_lshr_b32 s{sB}, s{sW}, 1
    s_lshl_b32 s{sB}, s{sB}, 8
    s_and_b32 s{sC}, s{sW}, 1
    s_lshl_b32 s{sC}, s{sC}, 3
    s_add_u32 s{sB}, s{sB}, s{sC}
    v_add_u32 v{vaPw}, s{sB}, v{vT1}
    v_lshlrev_b32 v{vT0}, 4, v{h3}
    v_add_u32 v{vaSm}, {L_SMAX}, v{vT0}
    s_lshl_b32 s{sB}, s{sW}, 2
    v_add_u32 v{vaSmW}, s{sB}, v{vaSm}
    v_lshlrev_b32 v{vT0}, 4, v{vLane}
    v_add_u32 v{vaRedW}, s{sB}, v{vT0}
    v_and_b32 v{vT1}, 1, v{vR16}
    v_lshl_add_u32 v{vT1}, v{qh}, 1, v{vT1}
    v_lshlrev_b32 v{vT1}, 4, v{vT1}
    v_add_u32 v{vaRedZ}, s{sB}, v{vT1}
    v_lshl_add_u32 v{vT0}, v{ql}, 5, v{vR16}
    v_lshlrev_b32 v{vaFinW}, 4, v{vT0}
    v_lshlrev_b32 v{vaFinZ}, 5, v{ql}
    v_lshlrev_b32 v{vT0}, 9, v{ql}
    v_add_u32 v{vaFinQZ}, 256, v{vT0}
    v_lshlrev_b32 v{vaFinO}, 4, v{vLane}
    v_lshlrev_b32 v{vT0}, 5, v{ql}
    v_lshl_add_u32 v{vaStH}, v{vR16}, 1, v{vT0}
    v_lshlrev_b32 v{vT0}, 6, v{ql}
    v_lshl_add_u32 v{vT0}, v{qh}, 5, v{vT0}
    v_lshl_add_u32 v{vaStX}, v{vR16}, 1, v{vT0}
    v_lshlrev_b32 v{vT0}, 6, v{vR16}
    v_lshl_add_u32 v{vT0}, v{vQd}, 4, v{vT0}
    s_lshl_b32 s{sB}, s{sW}, 8
    v_add_u32 v{vaStO}, s{sB}, v{vT0}
    v_lshlrev_b32 v{vT0}, 4, v{vLane}
    v_add_u32 v{vaStS}, 1024, v{vT0}
    """)
    a(f"s_lshl_b32 s{sB}, s{sW}, 14\ns_add_u32 s{sB}, s{sB}, {L_K}")
    for c in range(4):
        a(f"""
        v_add_u32 v{vT0}, {4*c}, v{vQd}
        v_xor_b32 v{vT0}, v{vT0}, v{vR16}
        v_lshlrev_b32 v{vT0}, 4, v{vT0}
        v_lshl_add_u32 v{vT0}, v{vR16}, 8, v{vT0}
        v_add_u32 v{vKr+c}, s{sB}, v{vT0}
        """)
    for e in range(2):
        a(f"""
        v_add_u32 v{vT1}, {4*e}, v{vQd}
        v_lshrrev_b32 v{vT2}, 1, v{vR16}
        v_xor_b32 v{vT1}, v{vT1}, v{vT2}
        v_lshlrev_b32 v{vT1}, 1, v{vT1}
        v_and_b32 v{vT2}, 1, v{vR16}
        v_or_b32 v{vT1}, v{vT1}, v{vT2}
        v_lshlrev_b32 v{vT1}, 4, v{vT1}
        v_lshl_add_u32 v{vVs+e}, v{vQd}, 8, v{vT1}
        """)
    for nt in range(2):
        a(f"""
        v_lshrrev_b32 v{vT1}, 2, v{vR16}
        v_lshl_add_u32 v{vT0}, v{vQd}, 2, v{vT1}
        v_and_b32 v{vT2}, 7, v{vT0}
        s_lshl_b32 s{sB}, s{sW}, 1
        s_add_u32 s{sB}, s{sB}, {nt}
        v_xor_b32 v{vT2}, s{sB}, v{vT2}
        v_lshlrev_b32 v{vT2}, 5, v{vT2}
        v_lshl_add_u32 v{vT0}, v{vT0}, 8, v{vT2}
        v_lshl_add_u32 v{vT0}, v{h3}, 3, v{vT0}
        v_add_u32 v{vVr+nt}, {L_V}, v{vT0}
        """)
    for i in range(16): a(f"v_mov_b32 v{XA+i}, 0")
    ts("setup")
    a(f"s_waitcnt vmcnt({4*cfg.nKb1})")
    ts("wq_landed")
    for t in range(cfg.nKb1, nKpA): k_page(t)

    def tr_base(dst, rowbytes, rowmul, sadd, const):
        sh = rowbytes.bit_length() - 1; rm = rowmul.bit_length() - 1
        a(f"""
        v_lshrrev_b32 v{vT1}, 2, v{vR16}
        v_lshl_add_u32 v{vT1}, v{vQd}, {rm}, v{vT1}
        v_lshlrev_b32 v{vT1}, {sh}, v{vT1}
        v_and_b32 v{vT2}, 3, v{vR16}
        v_lshl_add_u32 v{vT1}, v{vT2}, 3, v{vT1}
        v_add_u32 v{vT1}, s{sadd}, v{vT1}
        v_add_u32 v{dst}, {const}, v{vT1}
        """)

    def ln_stats(s1, s2, mean, rstd):
        a(f"""
        v_mul_f32 v{mean}, {f2u(1.0/512):#x}, v{s1}
        v_mul_f32 v{s2}, {f2u(1.0/512):#x}, v{s2}
        v_fma_f32 v{s2}, -v{mean}, v{mean}, v{s2}
        v_max_f32 v{s2}, 0, v{s2}
        v_add_f32 v{s2}, {f2u(1e-5):#x}, v{s2}
        v_rsq_f32 v{rstd}, v{s2}
        """)
    def sum4r(b):
        a(f"v_add_f32 v{b}, v{b}, v{b+1}\nv_add_f32 v{b+2}, v{b+2}, v{b+3}\nv_add_f32 v{b}, v{b}, v{b+2}")

    def stats_valu(z):
        L = [f"v_add_f32 v{z}, v{vAcc+8}, v{vAcc+9}", f"v_add_f32 v{vT3}, v{vAcc+10}, v{vAcc+11}", f"v_add_f32 v{z}, v{z}, v{vT3}",
             f"v_cndmask_b32 v{z}, 0, v{z}, s[{sMDIAG}:{sMDIAG+1}]"]
        for n in (8, 4, 2, 1):
            L.append(f"v_add_f32_dpp v{z}, v{z}, v{z} row_ror:{n} row_mask:0xf bank_mask:0xf")
        L += [f"v_add_f32 v{z+1}, v{vAcc+12}, v{vAcc+13}", f"v_add_f32 v{vT3}, v{vAcc+14}, v{vAcc+15}", f"v_add_f32 v{z+1}, v{z+1}, v{vT3}",
              f"v_cndmask_b32 v{z}, v{z+1}, v{z}, s[{sMN1}:{sMN1+1}]"]
        return L
    def stats_mf(X):
        return [mf(vAcc + 8, X + 4*u, X + 4*u, "0" if u == 0 else None) for u in range(4)] + \
               [mf(vAcc + 12, X + 4*u, vOnes, "0" if u == 0 else None) for u in range(4)]

    def q_core(X):
        M = stats_mf(X) + [mf(vAcc, X + 4*u, ar(aWq + 4*u, 4), "0" if u == 0 else None) for u in range(4)]
        interleave(M, stats_valu(vU), 8, 2)
        sum4(vU + 2, vAcc, vT3)
        a(f"""
        v_permlane16_swap_b32 v{vU+2}, v{vU}
        v_add_f32 v{vU}, v{vU}, v{vU+2}
        ds_write_b32 v{vaRedW}, v{vU} offset:{R_Q}
        s_waitcnt lgkmcnt(0)
        s_barrier
        """)
    def q_final(first):
        lab = a.label("qf")
        a(f"s_cmp_eq_u32 s{sW}, 0\ns_cbranch_scc0 {lab}")
        setexec(0xFFFFFFFF)
        a(f"""
        ds_read_b128 {vr(vU,4)}, v{vaFinW} offset:{R_Q}
        ds_read_b128 {vr(vU+4,4)}, v{vaFinQZ} offset:{R_Q}
        ds_read_b128 {vr(vU+8,4)}, v{vaFinQZ} offset:{R_Q+16}
        """)
        if first:
            a(f"ds_read_b128 {vr(vU+12,4)}, v{vaFinW} offset:{R_COL}")
        a("s_waitcnt lgkmcnt(0)")
        if first:
            sum4r(vU + 12); a(f"v_mov_b32 v{vCs}, v{vU+12}")
        sum4r(vU + 4); sum4r(vU + 8); sum4r(vU)
        ln_stats(vU + 4, vU + 8, vU + 5, vU + 6)
        a(f"""
        v_fma_f32 v{vU}, -v{vU+5}, v{vCs}, v{vU}
        v_mul_f32 v{vU}, v{vU}, v{vU+6}
        """)
        dpp("v_mov_b32", vU + 1, vU, None, "quad_perm:[1,0,3,2]")
        a(f"v_cvt_pk_bf16_f32 v{vU+2}, v{vU}, v{vU+1}")
        if first:
            a(f"""
            v_mov_b32 v{vQ1d}, v{vU+2}
            v_mov_b32 v{vQ1d+1}, s{sTX}
            s_lshl_b32 s{sB}, s{sJ}, 12
            s_lshl_b32 s{sC}, s{sM}, 7
            s_add_u32 s{sB}, s{sB}, s{sC}
            s_add_u32 s{sB}, s{sB}, {WS_Q1}
            v_lshlrev_b32 v{vT0}, 1, v{vaStH}
            v_add_u32 v{vQ1a}, s{sB}, v{vT0}
            """)
            setexec(0x55555555)
            a(f"buffer_store_dwordx2 {vr(vQ1d,2)}, v{vQ1a}, {sr(sWS,4)}, 0 offen" + (" sc1" if cfg.force_global else ""))
        else:
            a(f"v_min_u32 v{vU+2}, 0xfffffffe, v{vU+2}")
            setexec(0x55555555)
            store_local(f"buffer_store_dword v{vU+2}, v{vaStH}, {sr(sWS,4)}, s{sQ2w} offen")
        setexec(FULL)
        a(f"{lab}:")

    def s_qk_max():
        for c in range(4):
            for t in range(4):
                mfma(vS + 4*t, ar(aK + 16*t + 4*c, 4), vQ + 4*c, "0" if c == 0 else None)
        for t in range(1, 4):
            for r in range(4):
                dpp("v_mov_b32", vS + r, vS + 4*t + r, None, f"row_shr:{4*t}", bm=f"0x{1<<t:x}")
        a(f"v_max3_f32 v{vU}, v{vS}, v{vS+1}, v{vS+2}\nv_max_f32 v{vU}, v{vU}, v{vS+3}")
        row_reduce("v_max_f32", vU, (8, 4))
        xquad_reduce("v_max_f32", vU, vT0)
        setexec(0xF)
        a(f"ds_write_b32 v{vaSmW}, v{vU}")
        setexec(FULL)
        a("s_waitcnt lgkmcnt(0)\ns_barrier")
    def s_exp_p():
        a(f"""
        ds_read_b128 {vr(vU+4,4)}, v{vaSm}
        s_mov_b32 s{sB}, {f2u(C_SCALE):#x}
        s_waitcnt lgkmcnt(0)
        v_max3_f32 v{vU}, v{vU+4}, v{vU+5}, v{vU+6}
        v_max_f32 v{vU}, v{vU}, v{vU+7}
        v_mul_f32 v{vMc}, s{sB}, v{vU}
        """)
        for i in range(4): a(f"v_fma_f32 v{vS+i}, v{vS+i}, s{sB}, -v{vMc}")
        for i in range(4): a(f"v_exp_f32 v{vS+i}, v{vS+i}")
        a(f"""
        v_cvt_pk_bf16_f32 v{vU+2}, v{vS}, v{vS+1}
        v_cvt_pk_bf16_f32 v{vU+3}, v{vS+2}, v{vS+3}
        ds_write_b64 v{vaPw}, {vr(vU+2,2)}
        v_add_f32 v{vU}, v{vS}, v{vS+1}
        v_add_f32 v{vU+1}, v{vS+2}, v{vS+3}
        v_add_f32 v{vU}, v{vU}, v{vU+1}
        """)
        row_reduce("v_add_f32", vU, (8, 4))
        xquad_reduce("v_add_f32", vU, vT0)
        setexec(0xF)
        a(f"ds_write_b32 v{vaSmW}, v{vU} offset:{L_LSUM-L_SMAX}")
        setexec(FULL)
        a("s_waitcnt lgkmcnt(0)\ns_barrier")
        for blk in range(8):
            a(f"ds_read_b128 {vr(vP+4*blk,4)}, v{vaPr} offset:{blk*256}")
    def s_stats_prep():
        lab = a.label("st")
        a(f"s_cmp_eq_u32 s{sW}, 3\ns_cbranch_scc0 {lab}")
        a(f"""
        ds_read_b128 {vr(vU+4,4)}, v{vaSm} offset:{L_LSUM-L_SMAX}
        s_add_u32 s{sB}, s{sT}, s{sL}
        s_add_u32 s{sB}, s{sB}, 1
        v_mov_b32 v{vMc+2}, s{sB}
        s_waitcnt lgkmcnt(0)
        """)
        sum4r(vU + 4)
        a(f"v_mov_b32 v{vMc+1}, v{vU+4}")
        a(f"{lab}:")
    def s_stats_store(wait):
        lab = a.label("ss")
        a(f"s_cmp_eq_u32 s{sW}, 3\ns_cbranch_scc0 {lab}")
        if wait is not None: a(f"s_waitcnt vmcnt({wait})")
        setexec(0xF)
        store_local(f"buffer_store_dwordx4 {vr(vMc,4)}, v{vaStS}, {sr(sWS,4)}, s{sOown} offen")
        setexec(FULL)
        a(f"{lab}:")
    accO = vAcc
    def v_tr(blk):
        t, p = blk >> 1, blk & 1
        for nt in range(2):
            a(f"ds_read_b64_tr_b16 {ar(aV+8*blk+4*nt,2)}, v{vVr+nt} offset:{(4*t+2*p)*4096}")
            a(f"ds_read_b64_tr_b16 {ar(aV+8*blk+4*nt+2,2)}, v{vVr+nt} offset:{(4*t+2*p+1)*4096}")
    def pv(blks, first):
        for blk in blks:
            for nt in range(2):
                mfma(accO + 4*nt, ar(aV + 8*blk + 4*nt, 4), vP + 4*blk, "0" if (first and blk == blks[0]) else None)
    def s_out():
        for i in range(4):
            a(f"v_cvt_pk_bf16_f32 v{vU+i}, v{accO+2*i}, v{accO+2*i+1}")
        for i in range(4):
            a(f"v_min_u32 v{vU+i}, 0xfffffffe, v{vU+i}")
        setexec(EM4)
        store_local(f"buffer_store_dwordx4 {vr(vU,4)}, v{vaStO}, {sr(sWS,4)}, s{sOown} offen")
        setexec(FULL)

    a(f"s_lshl_b32 s{sB}, s{sW}, 12")
    tr_base(vT0, 32, 8, sB, L_WQ)
    for u in range(4):
        a(f"ds_read_b64_tr_b16 {ar(aWq+4*u,2)}, v{vT0} offset:{u*1024}")
        a(f"ds_read_b64_tr_b16 {ar(aWq+4*u+2,2)}, v{vT0} offset:{u*1024+128}")
    a(f"""
    v_lshrrev_b32 v{vT0}, 3, v{vR16}
    v_lshlrev_b32 v{vT0}, 10, v{vT0}
    v_lshl_add_u32 v{vT0}, v{vQd}, 4, v{vT0}
    s_lshl_b32 s{sB}, s{sW}, 8
    v_add_u32 v{vT0}, s{sB}, v{vT0}
    s_barrier
    """)
    setexec(0x0101010101010101)
    for u in range(4):
        a(f"ds_read_b128 {vr(XA+4*u,4)}, v{vT0} offset:{L_X0+u*64}")
    setexec(FULL)
    a(f"""
    s_waitcnt lgkmcnt(0)
    s_add_u32 s{sT}, s{sT}, 0x9e3779b0
    s_and_b32 s{sT}, s{sT}, 0xfffffff0
    s_or_b32 s{sTX}, s{sT}, s{sXcc}
    """)
    for u in range(4): mfma(vS, vOnes, ar(aWq + 4*u, 4), "0" if u == 0 else None)
    a(f"ds_write_b32 v{vaRedW}, v{vS} offset:{R_COL}")
    q_core(XA)
    q_final(True)
    a("s_barrier")
    ts("q1_pub")

    def v_group(t):
        page_off(t, sD)
        a(f"s_lshl_b32 s{sC}, s{sW}, 12\ns_add_u32 s{sC}, s{sC}, {L_V + t*16384}\ns_mov_b32 m0, s{sC}\ns_nop 0")
        for ii in range(4):
            a(f"buffer_load_dwordx4 v{vVs+(ii&1)}, {sr(sVS,4)}, s{sD} offen offset:{ii*1024} nt lds")
    def pace(): a(f"s_waitcnt vmcnt({cfg.pace})")
    for t in range(nKpA, 4):
        pace(); k_page(t)
    a(f"""
    v_lshrrev_b32 v{vT0}, 2, v{vLane}
    v_lshlrev_b32 v{vT0}, 7, v{vT0}
    v_and_b32 v{vT1}, 3, v{vLane}
    v_lshl_add_u32 v{vKs}, v{vT1}, 4, v{vT0}        ; (vKs is free once K is issued)
    s_lshl_b32 s{sA}, s{sJ}, 12
    s_lshr_b32 s{sB}, s{sM}, 4
    s_lshl_b32 s{sB}, s{sB}, 6
    s_add_u32 s{sA}, s{sA}, s{sB}
    s_add_u32 s{sA}, s{sA}, {WS_Q1}
    v_and_b32 v{vT0}, 3, v{vR16}
    v_lshlrev_b32 v{vT0}, 9, v{vT0}
    v_lshrrev_b32 v{vT1}, 1, v{vQd}
    v_lshl_add_u32 v{vT0}, v{vT1}, 6, v{vT0}
    v_and_b32 v{vT1}, 1, v{vQd}
    v_lshl_add_u32 v{vKs+1}, v{vT1}, 5, v{vT0}
    v_lshlrev_b32 v{vKs+2}, 5, v{vLane}
    """)
    def q1_dma(img):
        a(f"""
        s_mov_b32 m0, {L_QG + img*2048}
        s_add_u32 s{sB}, s{sA}, 2048
        buffer_load_dwordx4 v{vKs}, {sr(sWS,4)}, s{sA} offen sc1 lds
        s_mov_b32 m0, {L_QG + img*2048 + 1024}
        s_nop 0
        buffer_load_dwordx4 v{vKs}, {sr(sWS,4)}, s{sB} offen sc1 lds
        """)
    def w0(fn):
        lab = a.label("w0")
        a(f"s_cmp_eq_u32 s{sW}, 0\ns_cbranch_scc0 {lab}")
        fn()
        a(f"{lab}:")
    def q1_dup():
        setexec(0x55555555)
        a(f"buffer_store_dwordx2 {vr(vQ1d,2)}, v{vQ1a}, {sr(sWS,4)}, 0 offen sc1")
        setexec(FULL)
    g.q1_dup = lambda: w0(q1_dup)
    pace(); v_group(0)
    a("s_waitcnt vmcnt(4)")
    for t in range(4):
        for c in range(4):
            a(f"ds_read_b128 {ar(aK+16*t+4*c,4)}, v{vKr+c} offset:{t*4096}")
    ts("k_landed")
    w0(lambda: q1_dma(0))
    v_group(1)
    a("s_waitcnt vmcnt(4)")
    v_group(2)
    vG = vA
    def q1_tags(img):
        a(f"""
        ds_read_b128 {vr(vG,4)}, v{vKs+2} offset:{L_QG + img*2048}
        ds_read_b128 {vr(vG+4,4)}, v{vKs+2} offset:{L_QG + img*2048 + 16}
        s_waitcnt lgkmcnt(0)
        v_xor_b32 v{vT1}, s{sTX}, v{vG+1}
        v_xor_b32 v{vT2}, s{sTX}, v{vG+3}
        v_xor_b32 v{vT3}, s{sTX}, v{vG+5}
        v_xor_b32 v{vT0}, s{sTX}, v{vG+7}
        v_or3_b32 v{vT1}, v{vT1}, v{vT2}, v{vT3}
        v_or_b32 v{vT1}, v{vT1}, v{vT0}
        v_cmp_lt_u32 vcc, 15, v{vT1}
        """)
    a("s_barrier")
    q1_tags(0)
    a(f"s_mov_b32 s{sC}, {L_QG}\ns_cbranch_vccz L_q1ok")
    w0(lambda: (q1_dma(1), a("s_waitcnt vmcnt(0)")))
    a("s_barrier")
    q1_tags(1)
    a(f"s_mov_b32 s{sC}, {L_QG + 2048}\ns_cbranch_vccz L_q1ok")
    a("L_q1retry:")
    a(f"s_sub_u32 s{sBud}, s{sBud}, 1\ns_cbranch_scc1 L_abort\ns_barrier")
    w0(lambda: (q1_dup(), q1_dma(0), a("s_waitcnt vmcnt(0)")))
    a("s_barrier")
    q1_tags(0)
    a(f"s_mov_b32 s{sC}, {L_QG}\ns_cbranch_vccnz L_q1retry")
    a("L_q1ok:")
    a(f"""
    v_cmp_ne_u32 vcc, 0, v{vT1}
    v_add_u32 v{vT0}, s{sC}, v{vKs+1}
    s_cmp_eq_u64 vcc, 0
    s_cselect_b32 s{sLocal}, 1, 0
    """)
    setexec(EM4)
    for c in range(4):
        a(f"ds_read2_b32 {vr(vQ+4*c,2)}, v{vT0} offset0:{c*32} offset1:{c*32+2}")
        a(f"ds_read2_b32 {vr(vQ+4*c+2,2)}, v{vT0} offset0:{c*32+4} offset1:{c*32+6}")
    setexec(FULL)
    lab = a.label("nl")
    a(f"s_cmp_eq_u32 s{sLocal}, 0\ns_cbranch_scc0 {lab}")
    g.q1_dup()
    a(f"{lab}:")
    a("s_waitcnt lgkmcnt(0)")
    ts("q1_got")
    s_qk_max()
    ts("s1_max")
    lab = a.label("c0")
    a(f"""
    s_waitcnt vmcnt(4)
    s_cmp_eq_u32 s{sW}, 3
    s_cbranch_scc0 {lab}
    v_mov_b32 v{vU+8}, -1
    v_mov_b32 v{vU+9}, -1
    v_mov_b32 v{vU+10}, -1
    v_mov_b32 v{vU+11}, -1
    v_lshlrev_b32 v{vT1}, 4, v{vLane}
    """)
    store_local(f"buffer_store_dwordx4 {vr(vU+8,4)}, v{vT1}, {sr(sWS,4)}, s{sOown} offen")
    a(f"{lab}:")
    v_group(3)

    def s1_tail():
        s_exp_p()
        s_stats_prep()
        blks = [0, 1, 2, 3]
        for blk in blks: v_tr(blk)
        a("s_waitcnt lgkmcnt(0)")
        pv(blks, True)
        for t in (2, 3):
            a(f"s_waitcnt vmcnt({4*(3-t)})\ns_barrier")
            if t == 3: ts("v_landed")
            blks = [2*t, 2*t + 1]
            for blk in blks: v_tr(blk)
            a("s_waitcnt lgkmcnt(0)")
            pv(blks, False)
        s_out()
        s_stats_store(None)
        lab = a.label("c1")
        a(f"""
        s_cmp_eq_u32 s{sW}, 0
        s_cbranch_scc0 {lab}
        v_mov_b32 v{vU+8}, -1
        v_mov_b32 v{vU+9}, -1
        v_mov_b32 v{vU+10}, -1
        v_mov_b32 v{vU+11}, -1
        v_lshlrev_b32 v{vT1}, 4, v{vLane}
        s_add_u32 s{sB}, s{sOown}, {O_L}
        """)
        store_local(f"buffer_store_dwordx4 {vr(vU+8,4)}, v{vT1}, {sr(sWS,4)}, s{sB} offen")
        q1_dup()
        a(f"{lab}:")
        ts("s1_pub")

    def x_poll(sbase, dst, sleep):
        l = a.label("xp"); ok = a.label("xok")
        if cfg.sleep_x0: a(f"s_sleep {cfg.sleep_x0}")
        a(f"{l}:")
        for u in range(4):
            a(f"buffer_load_dwordx4 {vr(dst+4*u,4)}, v{vaX}, {sr(sWS,4)}, s{sbase} offen offset:{u*128} sc1")
        a("s_waitcnt vmcnt(0)")
        sent_check([dst+i for i in range(16)], vT0, ok)
        spin_fail(l, sleep)
        a(f"{ok}:")

    def tag_check_all():
        l = a.label("tc"); ok = a.label("tcok")
        a(f"""
        s_lshl_b32 s{sB}, s{sW}, 13
        s_add_u32 s{sB}, s{sB}, {WS_Q1+4}
        v_lshlrev_b32 v{vT0}, 7, v{vLane}
        {l}:
        buffer_load_dword v{vT1}, v{vT0}, {sr(sWS,4)}, s{sB} offen sc1
        s_waitcnt vmcnt(0)
        v_xor_b32 v{vT1}, s{sT}, v{vT1}
        v_cmp_lt_u32 vcc, 15, v{vT1}
        s_cbranch_vccz {ok}
        """)
        spin_fail(l, 2)
        a(f"{ok}:")

    def line_final(red):
        a(f"""
        ds_read_b128 {vr(vU,4)}, v{vaFinO} offset:{red}
        v_lshlrev_b32 v{vU+4}, 16, v{vRes}
        s_waitcnt lgkmcnt(0)
        v_add_f32 v{vU}, v{vU}, v{vU+1}
        v_add_f32 v{vU+2}, v{vU+2}, v{vU+3}
        v_add_f32 v{vU}, v{vU}, v{vU+4}
        v_add_f32 v{vU}, v{vU}, v{vU+2}
        """)
        dpp("v_mov_b32", vU + 1, vU, None, "quad_perm:[1,0,3,2]")
        a(f"v_cvt_pk_bf16_f32 v{vU}, v{vU}, v{vU+1}\nv_min_u32 v{vU}, 0xfffffffe, v{vU}")
        setexec(EMEV)
        a(f"buffer_store_dword v{vU}, v{vaStX}, {sr(sWS,4)}, s{sXw} offen sc1")
        setexec(FULL)

    def o_stats_poll():
        l = a.label("os"); ok = a.label("osok")
        a(f"s_add_u32 s{sA}, s{sT}, s{sL}\ns_add_u32 s{sA}, s{sA}, 1")
        a(f"{l}:")
        a(f"buffer_load_dwordx3 {vr(vSt,3)}, v{vaS0}, {sr(sWS,4)}, s{sOcons} offen sc1")
        a(f"buffer_load_dwordx3 {vr(vSt+4,3)}, v{vaS1}, {sr(sWS,4)}, s{sOcons} offen sc1")
        a("s_waitcnt vmcnt(0)")
        a(f"""
        v_xor_b32 v{vT0}, s{sA}, v{vSt+2}
        v_xor_b32 v{vT1}, s{sA}, v{vSt+6}
        v_or_b32 v{vT0}, v{vT0}, v{vT1}
        v_cmp_ne_u32 vcc, 0, v{vT0}
        s_cbranch_vccz {ok}
        """)
        spin_fail(l, cfg.sleep_o)
        a(f"{ok}:")

    def o_phase():
        OA = vA
        o_stats_poll()
        l2 = a.label("op"); ok2 = a.label("ook")
        a(f"{l2}:")
        for b in range(2):
            for c in range(4):
                a(f"buffer_load_dwordx4 {vr(OA+16*b+4*c,4)}, v{vaO0+b}, {sr(sWS,4)}, s{sOcons} offen offset:{c*256} sc1")
        for b in range(2):
            a(f"v_mov_b32 v{vU+b}, v{vSt+4*b}")
        for n in (8, 4, 2, 1):
            for b in range(2): dpp("v_max_f32", vU + b, vU + b, vU + b, f"row_ror:{n}")
        for b in range(2): a(f"v_sub_f32 v{vU+b}, v{vSt+4*b}, v{vU+b}")
        for b in range(2): a(f"v_exp_f32 v{vU+b}, v{vU+b}")
        for b in range(2): a(f"v_mul_f32 v{vU+2+b}, v{vU+b}, v{vSt+4*b+1}")
        for n in (8, 4, 2, 1):
            for b in range(2): dpp("v_add_f32", vU + 2 + b, vU + 2 + b, vU + 2 + b, f"row_ror:{n}")
        for b in range(2): a(f"v_rcp_f32 v{vU+2+b}, v{vU+2+b}")
        for b in range(2): a(f"v_mul_f32 v{vW+b}, v{vU+b}, v{vU+2+b}")
        a(f"v_mov_b32 v{vT0}, 0")
        for i in range(8):
            b, c = i >> 2, i & 3
            r = OA + 16*b + 4*c
            a(f"s_waitcnt vmcnt({7-i})")
            for nt in range(2):
                mfma(vAcc + 8*b + 4*nt, r, ar(aW2 + 8*c + 4*nt, 4), "0" if c == 0 else None)
            a(f"v_max3_u32 v{vT0}, v{vT0}, v{r}, v{r+1}\nv_max3_u32 v{vT0}, v{vT0}, v{r+2}, v{r+3}")
        a(f"v_cmp_eq_u32 vcc, -1, v{vT0}\ns_cbranch_vccz {ok2}")
        spin_fail(l2)
        a(f"{ok2}:")
        ts_dyn("o_got0", "o_got1")
        for b in range(2):
            for nt in range(2):
                t = vU + 2*b + nt; acc = vAcc + 8*b + 4*nt
                dpp("v_mul_f32", t, vW + b, acc, "row_newbcast:0")
                for r in range(1, 4):
                    dpp("v_fmac_f32", t, vW + b, acc + r, f"row_newbcast:{r}")
        a(f"""
        v_permlane32_swap_b32 v{vU}, v{vU+1}
        v_permlane32_swap_b32 v{vU+2}, v{vU+3}
        v_add_f32 v{vU}, v{vU}, v{vU+1}
        v_add_f32 v{vU+2}, v{vU+2}, v{vU+3}
        v_permlane16_swap_b32 v{vU}, v{vU+2}
        v_add_f32 v{vU}, v{vU}, v{vU+2}
        ds_write_b32 v{vaRedW}, v{vU} offset:{R_O}
        s_waitcnt lgkmcnt(0)
        s_barrier
        """)
        lab = a.label("of")
        a(f"s_cmp_eq_u32 s{sW}, 0\ns_cbranch_scc0 {lab}")
        line_final(R_O)
        a(f"{lab}:")
        ts_dyn("o_pub0", "o_pub1")

    def g_phase():
        X = vA
        x_poll(sXr, X, cfg.sleep_x)
        ts_dyn("g_got0", "g_got1")
        M = stats_mf(X)
        for u in range(4):
            M.append(mf(vAcc, X + 4*u, ar(aW2 + 8*u, 4), "0" if u == 0 else None))
            M.append(mf(vAcc + 4, X + 4*u, ar(aW2 + 8*u + 4, 4), "0" if u == 0 else None))
        V = stats_valu(vU) + [f"v_mov_b32 v{vU+1}, v{vU}", f"v_permlane16_swap_b32 v{vU}, v{vU+1}", f"v_add_f32 v{vU}, v{vU}, v{vU+1}"]
        interleave(M, V, 8, 2)
        setexec("s[%d:%d]" % (sM2, sM2 + 1))
        a(f"ds_write_b32 v{vaRedZ}, v{vU} offset:{R_GZ}")
        setexec(FULL)
        sum4(vU + 2, vAcc, vT3)
        sum4(vU + 3, vAcc + 4, vT3)
        a(f"""
        v_permlane16_swap_b32 v{vU+2}, v{vU+3}
        v_add_f32 v{vU+2}, v{vU+2}, v{vU+3}
        ds_write_b32 v{vaRedW}, v{vU+2} offset:{R_G}
        s_waitcnt lgkmcnt(0)
        s_barrier
        """)
        lab = a.label("gf")
        a(f"s_cmp_eq_u32 s{sW}, 0\ns_cbranch_scc0 {lab}")
        setexec(0xFFFFFFFF)
        a(f"""
        ds_read_b128 {vr(vU+8,4)}, v{vaFinZ} offset:{R_GZ}
        ds_read_b128 {vr(vU+12,4)}, v{vaFinZ} offset:{R_GZ+16}
        ds_read_b128 {vr(vU,4)}, v{vaFinW} offset:{R_G}
        ds_read_b128 {vr(vU+4,4)}, v{vaFinW} offset:{R_G+256}
        s_lshl_b32 s{sB}, s{sIdx}, 6
        s_add_u32 s{sB}, s{sB}, s{sHb}
        s_waitcnt lgkmcnt(2)
        """)
        sum4r(vU + 8); sum4r(vU + 12)
        ln_stats(vU + 8, vU + 12, vU + 9, vU + 10)
        a("s_waitcnt lgkmcnt(0)")
        sum4r(vU); sum4r(vU + 4)
        a(f"""
        v_fma_f32 v{vU}, -v{vU+9}, v{vCg}, v{vU}
        v_fma_f32 v{vU+4}, -v{vU+9}, v{vCu}, v{vU+4}
        v_mul_f32 v{vU+1}, {f2u(-1.4426950408889634):#x}, v{vU+10}
        v_mul_f32 v{vU}, v{vU}, v{vU+1}
        v_exp_f32 v{vU}, v{vU}
        v_mul_f32 v{vU+4}, v{vU+4}, v{vU+10}
        v_add_f32 v{vU}, 1.0, v{vU}
        v_rcp_f32 v{vU}, v{vU}
        s_nop 0
        v_mul_f32 v{vU}, v{vU}, v{vU+4}
        """)
        dpp("v_mov_b32", vU + 1, vU, None, "quad_perm:[1,0,3,2]")
        a(f"v_cvt_pk_bf16_f32 v{vU}, v{vU}, v{vU+1}\nv_min_u32 v{vU}, 0xfffffffe, v{vU}")
        setexec(0x55555555)
        store_local(f"buffer_store_dword v{vU}, v{vaStH}, {sr(sWS,4)}, s{sB} offen")
        setexec(FULL)
        a(f"{lab}:")
        ts_dyn("g_pub0", "g_pub1")

    def d_phase():
        lab0 = a.label("dr0"); l2 = a.label("dr"); ok2 = a.label("drok")
        l = a.label("dp"); ok = a.label("dok"); one = a.label("done"); l3 = a.label("dp1");
        a(f"s_cmp_eq_u32 s{sW}, 3\ns_cbranch_scc1 {l3}")
        setexec(EM2)
        a(f"{l}:")
        a(f"buffer_load_dwordx4 {vr(vHop,4)}, v{vaH}, {sr(sWS,4)}, s{sHb} offen sc1")
        a(f"buffer_load_dwordx4 {vr(vHop+4,4)}, v{vaH}, {sr(sWS,4)}, s{sHb} offen offset:512 sc1")
        a("s_waitcnt vmcnt(0)")
        sent_check([vHop+i for i in range(8)], vT1, ok)
        spin_fail(l)
        a(f"{l3}:")
        setexec(EM2)
        a(f"{l3}b:")
        a(f"buffer_load_dwordx4 {vr(vHop,4)}, v{vaH}, {sr(sWS,4)}, s{sHb} offen sc1")
        a("s_waitcnt vmcnt(0)")
        sent_check([vHop+i for i in range(4)], vT1, ok)
        spin_fail(f"{l3}b")
        a(f"{ok}:")
        setexec(FULL)
        for nt in range(2):
            mfma(vAcc + 4*nt, vHop, ar(aWd + 4*nt, 4), "0")
        for nt in range(2):
            mfma(vAcc + 4*nt, vHop + 4, ar(aWd + 8 + 4*nt, 4))
        a(f"s_cmp_eq_u32 s{sW}, 0\ns_cbranch_scc0 {lab0}")
        a(f"s_sub_u32 s{sB}, s{sXw}, 16384")
        a(f"{l2}:")
        a(f"buffer_load_ushort v{vRes}, v{vaStX}, {sr(sWS,4)}, s{sB} offen sc1")
        a(f"{lab0}:")
        a(f"""
        v_permlane16_swap_b32 v{vAcc}, v{vAcc+1}
        v_permlane16_swap_b32 v{vAcc+4}, v{vAcc+5}
        v_permlane32_swap_b32 v{vAcc}, v{vAcc+4}
        ds_write_b32 v{vaRedW}, v{vAcc} offset:{R_D}
        s_waitcnt lgkmcnt(0)
        s_barrier
        """)
        lab = a.label("df")
        a(f"s_cmp_eq_u32 s{sW}, 0\ns_cbranch_scc0 {lab}")
        a("s_waitcnt vmcnt(0)")
        line_final(R_D)
        a(f"{lab}:")
        ts_dyn("d_pub0", "d_pub1")

    a(f"s_cmp_lt_u32 s{sM}, 16\ns_cbranch_scc0 L_roleB")
    g.role = "A"; ts_split = g.ts
    def wo_slices():
        if cfg.line_pf and "o" in cfg.pf_which:
            a(f"""
            v_lshlrev_b32 v{vT0}, 7, v{vLane}
            s_lshl_b32 s{sB}, s{sJ}, 19
            s_lshl_b32 s{sC}, s{sIdx}, 15
            s_add_u32 s{sB}, s{sB}, s{sC}
            s_lshl_b32 s{sC}, s{sW}, 13
            s_add_u32 s{sB}, s{sB}, s{sC}
            buffer_load_dword v{vJ}, v{vT0}, {sr(sW2,4)}, s{sB} offen{cfg.pf_pol}
            """)
        a(f"""
        v_lshrrev_b32 v{vT0}, 2, v{vLane}
        v_lshlrev_b32 v{vT0}, 10, v{vT0}
        v_and_b32 v{vT1}, 3, v{vLane}
        v_lshl_add_u32 v{vT0}, v{vT1}, 4, v{vT0}
        s_lshl_b32 s{sB}, s{sJ}, 19
        s_lshl_b32 s{sC}, s{sW}, 17
        s_add_u32 s{sB}, s{sB}, s{sC}
        s_lshl_b32 s{sC}, s{sIdx}, 6
        s_add_u32 s{sB}, s{sB}, s{sC}
        s_lshl_b32 s{sC}, s{sW}, 14
        s_add_u32 s{sC}, s{sC}, {L_K}
        """)
        for u in range(8):
            a(f"""
            s_mov_b32 m0, s{sC}
            s_add_u32 s{sC}, s{sC}, 1024
            buffer_load_dwordx4 v{vT0}, {sr(sW2,4)}, s{sB} offen{SLN} lds
            s_add_u32 s{sB}, s{sB}, {16*1024}
            """)
    s1_tail()
    wo_slices()
    a(f"v_mov_b32 v{vRes}, 0")
    lab = a.label("r0")
    a(f"""
    s_cmp_eq_u32 s{sJ}, 0
    s_cbranch_scc0 {lab}
    v_and_b32 v{vT0}, 1, v{vQd}
    v_lshlrev_b32 v{vT0}, 10, v{vT0}
    v_lshrrev_b32 v{vT1}, 1, v{vQd}
    v_lshl_add_u32 v{vT0}, v{vT1}, 5, v{vT0}
    v_lshl_add_u32 v{vT0}, v{vR16}, 1, v{vT0}
    s_lshl_b32 s{sB}, s{sIdx}, 6
    buffer_load_ushort v{vRes}, v{vT0}, {sr(sX0,4)}, s{sB} offen
    {lab}:
    """)
    a(f"s_lshl_b32 s{sB}, s{sW}, 14")
    tr_base(vT0, 64, 4, sB, L_K)
    a("s_waitcnt vmcnt(0)")
    for c in range(4):
        for nt in range(2):
            a(f"ds_read_b64_tr_b16 {ar(aW2+8*c+4*nt,2)}, v{vT0} offset:{c*2048+nt*32}")
            a(f"ds_read_b64_tr_b16 {ar(aW2+8*c+4*nt+2,2)}, v{vT0} offset:{c*2048+nt*32+1024}")
    a("s_waitcnt lgkmcnt(0)")
    ts("wo_ready")
    a("L_loopA:")
    o_phase()
    a(f"s_cmp_eq_u32 s{sL}, 1\ns_cbranch_scc1 L_finalA")
    tag_check_all()
    a("s_barrier\ns_branch L_q2s2")

    a("L_roleB:")
    g.role = "B"; g.ts = ts_split
    s1_tail()
    if cfg.line_pf and "f" in cfg.pf_which:
        a(f"""
        v_mul_u32_u24 v{vT0}, 52, v{vLane}
        v_lshrrev_b32 v{vT0}, 8, v{vT0}            ; l/5 for l < 64
        v_mul_u32_u24 v{vT1}, 5, v{vT0}
        v_sub_u32 v{vT1}, v{vLane}, v{vT1}         ; l%5
        v_mul_u32_u24 v{vT0}, 3584, v{vT0}
        v_lshl_add_u32 v{vT0}, v{vT1}, 7, v{vT0}
        s_lshl_b32 s{sB}, s{sIdx}, 5
        s_lshl_b32 s{sC}, s{sW}, 3
        s_add_u32 s{sB}, s{sB}, s{sC}
        s_mul_i32 s{sB}, s{sB}, 3584
        s_mul_i32 s{sC}, s{sJ}, 448
        s_and_b32 s{sC}, s{sC}, 0xffffff80
        s_add_u32 s{sB}, s{sB}, s{sC}
        """)
        setexec((1 << 40) - 1)
        a(f"buffer_load_dword v{vJ}, v{vT0}, {sr(sW2,4)}, s{sB} offen{cfg.pf_pol}")
        a(f"buffer_load_dword v{vJ}, v{vT0}, {sr(sUP,4)}, s{sB} offen{cfg.pf_pol}")
        a(f"""
        s_mov_b64 exec, -1
        v_lshrrev_b32 v{vT0}, 3, v{vLane}
        v_lshlrev_b32 v{vT0}, 10, v{vT0}
        v_and_b32 v{vT1}, 7, v{vLane}
        v_lshl_add_u32 v{vT0}, v{vT1}, 7, v{vT0}
        s_mul_i32 s{sB}, s{sJ}, 224
        s_mul_i32 s{sC}, s{sIdx}, 14
        s_add_u32 s{sB}, s{sB}, s{sC}
        s_lshl_b32 s{sC}, s{sW}, 2
        s_add_u32 s{sB}, s{sB}, s{sC}
        s_lshl_b32 s{sB}, s{sB}, 10
        s_cmp_eq_u32 s{sW}, 3
        s_cselect_b32 exec_lo, 0xffff, -1
        s_mov_b32 exec_hi, 0
        buffer_load_dword v{vJ}, v{vT0}, {sr(sDN,4)}, s{sB} offen{cfg.pf_pol}
        s_mov_b64 exec, -1
        """)
    a(f"""
    s_cmp_ge_u32 s{sIdx}, 14
    s_cbranch_scc1 L_nogu
    v_lshrrev_b32 v{vT0}, 1, v{vLane}
    v_mul_u32_u24 v{vT0}, 3584, v{vT0}
    v_and_b32 v{vT1}, 1, v{vLane}
    v_lshl_add_u32 v{vT0}, v{vT1}, 4, v{vT0}
    s_mul_i32 s{sB}, s{sW}, {128*3584}
    s_mul_i32 s{sC}, s{sJ}, 448
    s_add_u32 s{sB}, s{sB}, s{sC}
    s_lshl_b32 s{sC}, s{sIdx}, 5
    s_add_u32 s{sB}, s{sB}, s{sC}
    s_lshl_b32 s{sC}, s{sW}, 14
    s_add_u32 s{sC}, s{sC}, {L_K + W_GATE}
    """)
    for u in range(4):
        a(f"""
        s_mov_b32 m0, s{sC}
        s_add_u32 s{sD}, s{sC}, {W_UP - W_GATE}
        buffer_load_dwordx4 v{vT0}, {sr(sW2,4)}, s{sB} offen{SLN} lds
        s_mov_b32 m0, s{sD}
        s_add_u32 s{sC}, s{sC}, 1024
        buffer_load_dwordx4 v{vT0}, {sr(sUP,4)}, s{sB} offen{SLN} lds
        s_add_u32 s{sB}, s{sB}, {32*3584}
        """)
    a("L_nogu:")
    a(f"""
    v_lshrrev_b32 v{vT0}, 2, v{vLane}
    v_lshlrev_b32 v{vT0}, 10, v{vT0}
    v_and_b32 v{vT1}, 3, v{vLane}
    v_lshl_add_u32 v{vT0}, v{vT1}, 4, v{vT0}
    s_mul_i32 s{sB}, s{sJ}, {224*1024}
    s_lshl_b32 s{sC}, s{sIdx}, 6
    s_add_u32 s{sB}, s{sB}, s{sC}
    s_lshl_b32 s{sC}, s{sW}, 15
    s_add_u32 s{sB}, s{sB}, s{sC}
    s_lshl_b32 s{sC}, s{sW}, 14
    s_add_u32 s{sC}, s{sC}, {L_K + W_DN}
    s_mov_b32 m0, s{sC}
    s_add_u32 s{sD}, s{sB}, 16384
    buffer_load_dwordx4 v{vT0}, {sr(sDN,4)}, s{sB} offen{SLN} lds
    s_add_u32 s{sC}, s{sC}, 1024
    s_mov_b32 m0, s{sC}
    s_nop 0
    buffer_load_dwordx4 v{vT0}, {sr(sDN,4)}, s{sD} offen{SLN} lds
    s_cmp_eq_u32 s{sW}, 3
    s_cbranch_scc1 L_nod2
    s_add_u32 s{sB}, s{sB}, {4*32768}
    s_add_u32 s{sC}, s{sC}, 1024
    s_mov_b32 m0, s{sC}
    s_add_u32 s{sD}, s{sB}, 16384
    buffer_load_dwordx4 v{vT0}, {sr(sDN,4)}, s{sB} offen{SLN} lds
    s_add_u32 s{sC}, s{sC}, 1024
    s_mov_b32 m0, s{sC}
    s_nop 0
    buffer_load_dwordx4 v{vT0}, {sr(sDN,4)}, s{sD} offen{SLN} lds
    L_nod2:
    """)
    tag_check_all()
    ts("ffn_landed")
    a(f"s_cmp_ge_u32 s{sIdx}, 14\ns_cbranch_scc1 L_nogu2")
    a(f"s_lshl_b32 s{sB}, s{sW}, 14")
    tr_base(vT0, 32, 8, sB, L_K + W_GATE)
    for u in range(4):
        for mat in range(2):
            a(f"ds_read_b64_tr_b16 {ar(aW2+8*u+4*mat,2)}, v{vT0} offset:{u*1024+mat*(W_UP-W_GATE)}")
            a(f"ds_read_b64_tr_b16 {ar(aW2+8*u+4*mat+2,2)}, v{vT0} offset:{u*1024+mat*(W_UP-W_GATE)+128}")
    a("s_waitcnt lgkmcnt(0)")
    for u in range(4):
        mfma(vAcc, vOnes, ar(aW2 + 8*u, 4), "0" if u == 0 else None)
        mfma(vAcc + 4, vOnes, ar(aW2 + 8*u + 4, 4), "0" if u == 0 else None)
    a(f"s_nop 7\nds_write_b32 v{vaRedW}, v{vAcc} offset:{R_COL}\nds_write_b32 v{vaRedW}, v{vAcc+4} offset:{R_COL2}")
    a("L_nogu2:")
    a(f"s_lshl_b32 s{sB}, s{sW}, 14")
    tr_base(vT0, 64, 8, sB, L_K + W_DN)
    for nt in range(2):
        a(f"ds_read_b64_tr_b16 {ar(aWd+4*nt,2)}, v{vT0} offset:{nt*32}")
        a(f"ds_read_b64_tr_b16 {ar(aWd+4*nt+2,2)}, v{vT0} offset:{nt*32+256}")
    a(f"s_cmp_eq_u32 s{sW}, 3\ns_cbranch_scc1 L_dn3")
    for nt in range(2):
        a(f"ds_read_b64_tr_b16 {ar(aWd+8+4*nt,2)}, v{vT0} offset:{2048+nt*32}")
        a(f"ds_read_b64_tr_b16 {ar(aWd+8+4*nt+2,2)}, v{vT0} offset:{2048+nt*32+256}")
    a("s_branch L_dn4\nL_dn3:")
    for i in range(8): a(f"v_accvgpr_write_b32 a{aWd+8+i}, 0")
    a("L_dn4:")
    a("s_waitcnt lgkmcnt(0)\ns_barrier")
    a(f"""
    ds_read_b128 {vr(vU,4)}, v{vaFinW} offset:{R_COL}
    ds_read_b128 {vr(vU+4,4)}, v{vaFinW} offset:{R_COL2}
    s_waitcnt lgkmcnt(0)
    """)
    sum4r(vU); sum4r(vU + 4)
    a(f"v_mov_b32 v{vCg}, v{vU}\nv_mov_b32 v{vCu}, v{vU+4}")
    ts("ffn_ready")
    a("L_loopB:")
    lg = a.label("nog")
    a(f"s_cmp_ge_u32 s{sIdx}, 14\ns_cbranch_scc1 {lg}")
    g_phase()
    a(f"{lg}:")
    d_phase()
    a(f"s_cmp_eq_u32 s{sL}, 1\ns_cbranch_scc1 L_fin")

    a("L_q2s2:")
    save_role, save_ts = g.role, g.ts
    g.role = "C"; g.ts = 19
    a(f"s_mov_b32 s{sD}, {WS_X + 16384}")
    x_poll(sD, XA, cfg.sleep_x)
    ts("q2_got")
    q_core(XA)
    lab = a.label("rs")
    a(f"""
    s_cmp_eq_u32 s{sW}, 0
    s_cbranch_scc0 {lab}
    s_lshl_b32 s{sB}, s{sJ}, 11
    s_lshl_b32 s{sC}, s{sIdx}, 7
    s_add_u32 s{sB}, s{sB}, s{sC}
    s_add_u32 s{sB}, s{sB}, {WS_X + 16384}
    buffer_load_ushort v{vRes}, v{vaStX}, {sr(sWS,4)}, s{sB} offen sc1
    {lab}:
    """)
    q_final(False)
    ts("q2_pub")
    l = a.label("qp"); ok = a.label("qok")
    setexec(EM4)
    a(f"{l}:")
    for c in range(4):
        a(f"buffer_load_dwordx4 {vr(vQ+4*c,4)}, v{vaQ2}, {sr(sWS,4)}, s{sQ2r} offen offset:{c*128} sc1")
    a("s_waitcnt vmcnt(0)")
    sent_check([vQ+i for i in range(16)], vT0, ok)
    spin_fail(l)
    a(f"{ok}:")
    setexec(FULL)
    ts("q2_gath")
    a(f"""
    s_add_u32 s{sOown}, s{sOown}, {O_L}
    s_add_u32 s{sOcons}, s{sOcons}, {O_L}
    s_add_u32 s{sXw}, s{sXw}, 32768
    s_add_u32 s{sXr}, s{sXr}, 32768
    s_add_u32 s{sHb}, s{sHb}, 8192
    s_mov_b32 s{sL}, 1
    """)
    s_qk_max()
    s_exp_p()
    s_stats_prep()
    a("s_waitcnt lgkmcnt(0)")
    pv(list(range(8)), True)
    s_out()
    s_stats_store(None)
    ts("s2_pub")
    a(f"s_cmp_lt_u32 s{sM}, 16\ns_cbranch_scc1 L_loopA\ns_branch L_loopB")

    a("L_finalA:")
    g.role = "A"; g.ts = 14
    a(f"""
    s_cmp_ge_u32 s{sIdx}, 2
    s_cbranch_scc1 L_fin
    s_cmp_eq_u32 s{sW}, 0
    s_cbranch_scc0 L_fin
    s_lshl_b32 s{sB}, s{sJ}, 1
    s_add_u32 s{sB}, s{sB}, s{sIdx}        ; cb
    s_lshl_b32 s{sC}, s{sB}, 7
    s_add_u32 s{sC}, s{sC}, {WS_X + 3*16384}
    """)
    for nt in range(2):
        for dd in range(4):
            a(f"""
            v_lshlrev_b32 v{vT0}, 3, v{vQd}
            v_add_u32 v{vT0}, {2*dd - 16*nt}, v{vT0}
            v_sub_u32 v{vT0}, v{vT0}, v{vR16}
            v_mov_b32 v{vP+4*nt+dd}, 0
            v_cmp_eq_u32 vcc, 0, v{vT0}
            v_mov_b32 v{vT1}, 0x3f80
            v_cndmask_b32 v{vP+4*nt+dd}, v{vP+4*nt+dd}, v{vT1}, vcc
            v_cmp_eq_u32 vcc, -1, v{vT0}
            v_mov_b32 v{vT1}, 0x3f800000
            v_cndmask_b32 v{vP+4*nt+dd}, v{vP+4*nt+dd}, v{vT1}, vcc
            """)
    a(f"""
    v_lshrrev_b32 v{vT2}, 1, v{vQd}
    v_lshlrev_b32 v{vT2}, 10, v{vT2}
    v_and_b32 v{vT1}, 1, v{vQd}
    v_lshl_add_u32 v{vT2}, v{vT1}, 5, v{vT2}
    v_lshl_add_u32 v{vT2}, v{vR16}, 1, v{vT2}
    s_lshl_b32 s{sB}, s{sB}, 6
    """)
    l = a.label("fp"); ok = a.label("fok")
    a(f"{l}:")
    a(f"buffer_load_dwordx4 {vr(vA,4)}, v{vaX}, {sr(sWS,4)}, s{sC} offen sc1")
    a("s_waitcnt vmcnt(0)")
    sent_check([vA+i for i in range(4)], vT0, ok)
    spin_fail(l, cfg.sleep_x)
    a(f"{ok}:")
    ts("fin_got")
    mfma(vAcc, vA, vP, "0"); mfma(vAcc + 4, vA, vP + 4, "0")
    sum4(vU, vAcc, vT3); sum4(vU + 1, vAcc + 4, vT3)
    a(f"""
    v_permlane16_swap_b32 v{vU}, v{vU+1}
    v_add_f32 v{vU}, v{vU}, v{vU+1}
    v_cvt_pk_bf16_f32 v{vU}, v{vU}, v{vU}
    buffer_store_short v{vU}, v{vT2}, {sr(sOUT,4)}, s{sB} offen
    s_cmp_eq_u32 s{sB}, 0
    s_cbranch_scc0 L_fin
    v_mov_b32 v{vT0}, {WS_EPOCH}
    v_mov_b32 v{vT1}, s{sT}
    """)
    setexec(1)
    a(f"buffer_store_dword v{vT1}, v{vT0}, {sr(sWS,4)}, 0 offen sc1")
    setexec(FULL)

    a("L_fin:")
    if cfg.diag:
        g.role = "E"
        g.tsn["E"].append((NTS - 1, "end"))
        a(f"s_memrealtime s[{sTmp2}:{sTmp2+1}]\ns_waitcnt lgkmcnt(0)\ns_mov_b32 s{sTS+NTS-2}, s{sTmp2}")
        a(f"s_memtime s[{sTmp2}:{sTmp2+1}]\ns_waitcnt lgkmcnt(0)\ns_mov_b32 s{sTS+NTS-1}, s{sTmp2}")
        a(f"s_lshl_b32 s{sB}, s2, 3\ns_add_u32 s{sB}, s{sB}, s{sW}\ns_lshl_b32 s{sB}, s{sB}, 7\ns_add_u32 s{sB}, s{sB}, {WS_DIAG}\nv_mov_b32 v{vT0}, 0")
        setexec(1)
        for i in range(NTS):
            a(f"v_mov_b32 v{vT1}, s{sTS+i}\nbuffer_store_dword v{vT1}, v{vT0}, {sr(sWS,4)}, s{sB} offen offset:{4*i}")
        setexec(FULL)
    a("s_waitcnt vmcnt(0)\ns_endpgm")
    a(f"""
    L_abort:
    s_mov_b64 exec, -1
    v_mov_b32 v{vT0}, 0
    v_mov_b32 v{vT1}, 0xdead
    s_load_dwordx2 s[{sTmp2}:{sTmp2+1}], s[0:1], 80
    s_waitcnt lgkmcnt(0)
    s_mov_b32 s{sA}, s{sTmp2}
    s_and_b32 s{sB}, s{sTmp2+1}, 0xffff
    s_mov_b32 s{sC}, 256
    s_mov_b32 s{sD}, 0x20000
    s_mov_b64 exec, 1
    buffer_store_dword v{vT1}, v{vT0}, s[{sA}:{sD}], 0 offen offset:4
    s_waitcnt vmcnt(0)
    L_end:
    s_endpgm
    """)
    for o in g.ool: a(o)
    a("L_codeend:\ns_endpgm")
    lines = a.text().rstrip("\n").split("\n")
    g.ninstr = sum(1 for l in lines if l.startswith("    ") and not l.strip().startswith(";"))
    lines = hazard.pad(lines)
    return g, "\n".join(lines) + "\n"

HEADER = open("interleave_layers__sliding_block_cached__glu_gated_glu__decode.s.ref").read().split("; Override launch")[0]

def full(cfg):
    g, body = build(cfg)
    txt = HEADER
    txt += "; Persistent single-launch kernel: 256 workgroups (one per CU) x 256 threads.\n"
    txt += f"; @launch grid=(256,1,1) block=(256,1,1) lds={LDS_BYTES}\n"
    txt += '.amdgcn_target "amdgcn-amd-amdhsa--gfx950"\n.text\n'
    txt += f".globl {NAME}\n.p2align 8\n.type {NAME},@function\n{NAME}:\n"
    txt += body
    txt += '.section .rodata,"a"\n.p2align 6\n'
    txt += f".amdhsa_kernel {NAME}\n  .amdhsa_next_free_vgpr {256 + g.amax}\n  .amdhsa_next_free_sgpr 102\n  .amdhsa_accum_offset 256\n"
    txt += "  .amdhsa_group_segment_fixed_size 0\n  .amdhsa_kernarg_size 96\n  .amdhsa_user_sgpr_count 2\n  .amdhsa_user_sgpr_kernarg_segment_ptr 1\n  .amdhsa_system_sgpr_workgroup_id_x 1\n.end_amdhsa_kernel\n"
    return g, txt

if __name__ == "__main__":
    cfg = Cfg()
    for kv in sys.argv[2:]:
        k, v = kv.split("="); setattr(cfg, k, eval(v))
    g, txt = full(cfg)
    open(sys.argv[1], "w").write(txt)
    print("vgprs", g.vmax, "agprs", g.amax, "instrs", g.ninstr, "ts", g.tsn)
```

```python
import sys, struct
from asmlib import Asm
import hazard

NAME = "interleave_layers__sliding_block_cached__glu_gated_glu__decode_kernel"

WS_EPOCH = 0x0
WS_Q1 = 0x10000
WS_Q2 = 0x20000
WS_H  = 0x28000
WS_X  = 0x30000
WS_O  = 0x40000
O_BLK = 1152
O_J = 32 * O_BLK
O_L = 8 * O_J
WS_DIAG = 0x100000
WS_SIZE = 0x200000

L_SMAX = 0
L_LSUM = 64
L_PBUF = 256
L_RED = 2560
R_Q, R_G, R_GZ, R_O, R_D, R_COL, R_COL2 = [L_RED + 1024 * i for i in range(7)]
L_QG = 10240
L_X0 = 14336
L_K = 16384
L_V = L_K + 65536
L_WQ = L_V + 65536
LDS_BYTES = 163840
W_GATE, W_UP, W_DN = 0, 4096, 8192

C_SCALE = 0.08838834764831845 * 1.4426950408889634
def f2u(x): return struct.unpack("<I", struct.pack("<f", x))[0]

class Cfg:
    nKA = 12
    nKb1 = 1
    pace = 8
    gpts = (1, 2, 4)
    diag = False
    ts_only = None
    ts_issue = False
    force_global = False
    budget = 400000
    prefetch_code = True
    sleep_x = 0
    sleep_x0 = 0
    sleep_o = 0
    sl_nt = True
    pf_pol = ""
    pf_which = "qof"
    dbg_span = False
    line_pf = False
    const_tag = False
    no_clear0 = False
    clr0_late = False

def vr(b, n=1): return f"v[{b}:{b+n-1}]" if n > 1 else f"v{b}"
def ar(b, n=1): return f"a[{b}:{b+n-1}]" if n > 1 else f"a{b}"
def sr(b, n=1): return f"s[{b}:{b+n-1}]" if n > 1 else f"s{b}"

sJ, sM, sW, sIdx, sL = 3, 4, 5, 6, 7
sWS, sKS, sVS, sWQ, sW2, sUP, sDN, sX0, sOUT = 8, 12, 16, 20, 24, 28, 32, 36, 40
sT, sTX, sLocal, sBud = 44, 45, 46, 47
sMDIAG = 48
sM4 = 50
sM2 = 52
sMN1 = 54
sMEV = 56
sEx = 58
sA, sB, sC, sD = 60, 61, 62, 63
sKV, sRot = 64, 65
sOown, sOcons, sXw, sXr, sHb, sQ2w, sQ2r = 66, 67, 68, 69, 70 - 70 + 96, 97, 98
sXcc = 99
sTmp2 = 100
sTS = 70
NTS = 26

class G:
    pass

def build(cfg):
    g = G(); a = Asm(); g.a = a
    g.tsn = {"C": [], "A": [], "B": [], "E": []}; g.role = "C"; g.ts = 0
    nv = [1]
    def valloc(n=1, align=1):
        nv[0] = (nv[0] + align - 1) // align * align
        r = nv[0]; nv[0] += n
        assert nv[0] <= 256
        return r
    vLane = valloc(); vR16 = valloc(); vQd = valloc()
    vT0 = valloc(); vT1 = valloc(); vT2 = valloc(); vT3 = valloc()
    vOnes = valloc(4, 4)
    vQ = valloc(16, 4)
    vA = valloc(40, 4)
    vAcc = valloc(16, 4)
    vS = valloc(16, 4)
    vP = valloc(32, 4)
    vJ = valloc()
    vHop = valloc(8, 4)
    vU = valloc(16, 4)
    vSt = valloc(8, 4)
    vW = valloc(2, 2)
    vCs = valloc(); vCg = valloc(); vCu = valloc()
    vRes = valloc()
    vQ1d = valloc(2, 2); vQ1a = valloc()
    vMc = valloc(4, 4)
    vaX = valloc(); vaO0 = valloc(); vaO1 = valloc(); vaS0 = valloc(); vaS1 = valloc(); vaQ2 = valloc(); vaH = valloc()
    vaPw = valloc(); vaPr = valloc(); vaSm = valloc(); vaSmW = valloc(); vaRedW = valloc(); vaRedZ = valloc()
    vaFinW = valloc(); vaFinZ = valloc(); vaFinQZ = valloc(); vaFinO = valloc()
    vaStH = valloc(); vaStX = valloc(); vaStO = valloc(); vaStS = valloc(); vaResU = valloc()
    vKs = valloc(4); vVs = valloc(2); vVr = valloc(2); vKr = valloc(4)
    g.vmax = nv[0]
    aK, aV, aWq, aW2, aWd = 0, 64, 128, 144, 176
    g.amax = 192

    FULL = (1 << 64) - 1
    def ts(name):
        if not cfg.diag: return
        i = g.ts; g.ts += 1
        assert i < NTS - 3, name
        g.tsn[g.role].append((i, name))
        if name == "start":
            return
        if name == "issued":
            g.i_issued = i
            a(f"s_memtime s[{sTmp2}:{sTmp2+1}]\ns_waitcnt lgkmcnt(0)\ns_mov_b32 s92, s{sTmp2}")
            return
        if name == "setup":
            a(f"s_mov_b32 s{sTS}, s90\ns_mov_b32 s{sTS+NTS-3}, s91")
            if cfg.ts_issue: a(f"s_mov_b32 s{sTmp2}, s92")
            for z in list(range(1, NTS - 3)) + [NTS - 2, NTS - 1]: a(f"s_mov_b32 s{sTS+z}, 0")
            if cfg.ts_issue: a(f"s_mov_b32 s{sTS+g.i_issued}, s{sTmp2}")
        if cfg.ts_only and name not in cfg.ts_only:
            return
        a(f"s_memtime s[{sTmp2}:{sTmp2+1}]\ns_waitcnt lgkmcnt(0)\ns_mov_b32 s{sTS+i}, s{sTmp2}")
    def ts_dyn(name0, name1):
        if not cfg.diag: return
        i = g.ts; g.ts += 2
        assert i + 1 < NTS - 3, name0
        g.tsn[g.role].append((i, name0)); g.tsn[g.role].append((i + 1, name1))
        if cfg.ts_only and name0 not in cfg.ts_only: return
        a(f"""s_memtime s[{sTmp2}:{sTmp2+1}]
        s_waitcnt lgkmcnt(0)
        s_cmp_eq_u32 s{sL}, 0
        s_cselect_b32 s{sTS+i}, s{sTmp2}, s{sTS+i}
        s_cselect_b32 s{sTS+i+1}, s{sTS+i+1}, s{sTmp2}""")

    def setexec(mask):
        if mask == FULL: a("s_mov_b64 exec, -1")
        elif isinstance(mask, str): a(f"s_mov_b64 exec, {mask}")
        elif mask < 65 or mask in (0xFFFF, 0xF, 0xFF):
            a(f"s_mov_b64 exec, 0x{mask:x}" if mask >= 65 else f"s_mov_b64 exec, {mask}")
        else:
            a(f"s_mov_b32 exec_lo, 0x{mask & 0xFFFFFFFF:x}\ns_mov_b32 exec_hi, 0x{mask >> 32:x}")
    EM4, EM2, EMEV = f"s[{sM4}:{sM4+1}]", f"s[{sM2}:{sM2+1}]", f"s[{sMEV}:{sMEV+1}]"

    def srd(dst, ptr_s, size):
        a(f"s_mov_b32 s{dst}, s{ptr_s}\ns_and_b32 s{dst+1}, s{ptr_s+1}, 0xffff\ns_mov_b32 s{dst+2}, 0x{size:x}\ns_mov_b32 s{dst+3}, 0x20000")

    def mfma(d, A, B, C=None):
        f = lambda x: x if isinstance(x, str) else vr(x, 4)
        c = f(d) if C is None else C
        a(f"v_mfma_f32_16x16x32_bf16 {f(d)}, {f(A)}, {f(B)}, {c}")

    def spin_fail(lbl_retry, sleep=0):
        if sleep: a(f"s_sleep {sleep}")
        a(f"s_sub_u32 s{sBud}, s{sBud}, 1\ns_cbranch_scc0 {lbl_retry}\ns_branch L_abort")
    def interleave(mf, va, start, per=2):
        va = list(va)
        for i, m in enumerate(mf):
            a(m)
            if i >= start:
                for _ in range(per):
                    if va: a(va.pop(0))
        for v in va: a(v)
    def mf(d, A, B, C=None):
        f = lambda x: x if isinstance(x, str) else vr(x, 4)
        return f"v_mfma_f32_16x16x32_bf16 {f(d)}, {f(A)}, {f(B)}, {f(d) if C is None else C}"

    def sent_max(regs, tmp):
        rs = list(regs)
        if len(rs) == 1: return rs[0]
        if len(rs) == 2:
            a(f"v_max_u32 v{tmp}, v{rs[0]}, v{rs[1]}"); rs = []
        else:
            a(f"v_max3_u32 v{tmp}, v{rs[0]}, v{rs[1]}, v{rs[2]}"); rs = rs[3:]
        while len(rs) >= 2:
            a(f"v_max3_u32 v{tmp}, v{tmp}, v{rs[0]}, v{rs[1]}"); rs = rs[2:]
        if rs: a(f"v_max_u32 v{tmp}, v{tmp}, v{rs[0]}")
        return tmp
    def sent_check(regs, tmp, lbl_ok):
        cur = sent_max(regs, tmp)
        a(f"v_cmp_eq_u32 vcc, -1, v{cur}\ns_cbranch_vccz {lbl_ok}")

    g.ool = []
    def store_local(instr):
        if cfg.force_global:
            a(instr + " sc1"); return
        l1 = a.label("stg"); l2 = a.label("std")
        a(f"s_cmp_eq_u32 s{sLocal}, 0\ns_cbranch_scc1 {l1}")
        a(instr)
        a(f"{l2}:")
        g.ool.append(f"{l1}:\n{instr} sc1\ns_branch {l2}")

    def dpp(op, d, s0, s1, ctrl, rm="0xf", bm="0xf"):
        if s1 is None: a(f"{op}_dpp v{d}, v{s0} {ctrl} row_mask:{rm} bank_mask:{bm}")
        else: a(f"{op}_dpp v{d}, v{s0}, v{s1} {ctrl} row_mask:{rm} bank_mask:{bm}")
    def row_reduce(op, v, steps=(8, 4, 2, 1)):
        for n in steps: dpp(op, v, v, v, f"row_ror:{n}")
    def xquad_reduce(op, v, tmp):
        a(f"v_mov_b32 v{tmp}, v{v}\nv_permlane32_swap_b32 v{v}, v{tmp}\n{op} v{v}, v{v}, v{tmp}")
        a(f"v_mov_b32 v{tmp}, v{v}\nv_permlane16_swap_b32 v{v}, v{tmp}\n{op} v{v}, v{v}, v{tmp}")
    def sum4(dst, b, tmp):
        a(f"v_add_f32 v{dst}, v{b}, v{b+1}\nv_add_f32 v{tmp}, v{b+2}, v{b+3}\nv_add_f32 v{dst}, v{dst}, v{tmp}")

    P = sTS
    EARLY = ""
    if cfg.dbg_span:
        EARLY = f"s_memrealtime s[94:95]"
    if cfg.diag:
        EARLY = f"s_memrealtime s[{sTmp2}:{sTmp2+1}]\ns_waitcnt lgkmcnt(0)\ns_mov_b32 s91, s{sTmp2}\ns_memtime s[{sTmp2}:{sTmp2+1}]\ns_waitcnt lgkmcnt(0)\ns_mov_b32 s90, s{sTmp2}"
    a(f"""
    s_cmp_ge_u32 s2, 256
    s_cbranch_scc1 L_end
    {EARLY}
    s_load_dwordx4 s[{P+2}:{P+5}], s[0:1], 0           ; x, K      (72..75)
    s_load_dwordx4 s[{P+6}:{P+9}], s[0:1], 16          ; V, wq     (76..79)
    s_load_dwordx2 s[{P+18}:{P+19}], s[0:1], 88        ; ws        (88..89)
    s_load_dwordx2 s[{P}:{P+1}], s[0:1], 32            ; wo        (70..71)
    s_load_dwordx4 s[{P+10}:{P+13}], s[0:1], 48
    s_load_dwordx4 s[{P+14}:{P+17}], s[0:1], 64
    v_lshrrev_b32 v{vT0}, 6, v0
    v_and_b32 v{vLane}, 63, v0
    v_and_b32 v{vR16}, 15, v0
    v_readfirstlane_b32 s{sW}, v{vT0}
    v_lshrrev_b32 v{vQd}, 4, v{vLane}
    """)
    if cfg.prefetch_code:
        a(f"""
        s_getpc_b64 s[{sTmp2}:{sTmp2+1}]
        L_pfbase:
        v_lshlrev_b32 v{vT1}, 7, v0
        s_mov_b32 s{sB}, (L_codeend - L_pfbase)
        v_cmp_gt_u32 vcc, s{sB}, v{vT1}
        s_and_saveexec_b64 s[{sEx}:{sEx+1}], vcc
        s_cbranch_execz L_nopf
        global_load_dword v{vU+15}, v{vT1}, s[{sTmp2}:{sTmp2+1}]
        L_nopf:
        s_mov_b64 exec, s[{sEx}:{sEx+1}]
        """)
    a(f"""
    s_and_b32 s{sJ}, s2, 7
    s_lshr_b32 s{sM}, s2, 3
    s_and_b32 s{sIdx}, s{sM}, 15
    s_and_b32 s{sRot}, s{sM}, 7
    s_lshl_b32 s{sRot}, s{sRot}, 1
    s_lshr_b32 s{sB}, s{sM}, 4
    s_lshl_b32 s{sB}, s{sB}, 3
    s_add_u32 s{sB}, s{sB}, s{sJ}
    s_lshl_b32 s{sB}, s{sB}, 23
    s_lshl_b32 s{sC}, s{sIdx}, 16
    s_add_u32 s{sKV}, s{sB}, s{sC}
    s_add_u32 s{sKV}, s{sKV}, 0x700000
    s_mul_i32 s{sOown}, s{sJ}, {O_J}
    s_mul_i32 s{sB}, s{sM}, {O_BLK}
    s_add_u32 s{sOown}, s{sOown}, s{sB}
    s_add_u32 s{sOown}, s{sOown}, {WS_O}
    """)
    XA = vA + 8
    a(f"""
    v_lshrrev_b32 v{vT2}, 1, v{vLane}
    v_lshlrev_b32 v{vT2}, 13, v{vT2}
    v_and_b32 v{vT3}, 1, v{vLane}
    v_lshl_add_u32 v{vT2}, v{vT3}, 4, v{vT2}
    v_lshlrev_b32 v{vT1}, 4, v{vLane}          ; lane*16
    """)
    for i in range(4):
        a(f"""
        v_add_u32 v{vT3}, {4*i}, v{vQd}
        v_xor_b32 v{vT3}, v{vT3}, v{vR16}
        v_lshlrev_b32 v{vT3}, 4, v{vT3}
        v_lshl_add_u32 v{vKs+i}, v{vQd}, 8, v{vT3}
        """)
    a(f"""
    s_lshr_b32 s{sC}, s{sM}, 4
    s_lshl_b32 s{sC}, s{sC}, 14
    s_lshl_b32 s{sD}, s{sJ}, 11
    s_add_u32 s{sC}, s{sC}, s{sD}
    s_lshl_b32 s{sD}, s{sIdx}, 7
    s_add_u32 s{sC}, s{sC}, s{sD}
    s_add_u32 s{sXw}, s{sC}, {WS_X}
    s_mov_b32 s{sXr}, {WS_X}
    s_lshl_b32 s{sHb}, s{sJ}, 10
    s_add_u32 s{sHb}, s{sHb}, {WS_H}
    s_lshl_b32 s{sQ2w}, s{sJ}, 11
    s_add_u32 s{sQ2r}, s{sQ2w}, {WS_Q2}
    s_lshl_b32 s{sB}, s{sM}, 6
    s_add_u32 s{sQ2w}, s{sQ2r}, s{sB}
    s_lshr_b32 s{sB}, s{sM}, 4
    s_lshl_b32 s{sB}, s{sB}, 5
    s_add_u32 s{sQ2r}, s{sQ2r}, s{sB}
    s_waitcnt lgkmcnt(0)
    """)
    srd(sWQ, P + 8, 0x400000)
    srd(sKS, P + 4, 0x8000000)
    srd(sWS, P + 18, WS_SIZE)
    if cfg.const_tag: a(f"s_mov_b32 s{sT}, 0x12345670")
    else: a(f"s_load_dword s{sT}, s[{P+18}:{P+19}], {WS_EPOCH}")
    SLN = " nt" if cfg.sl_nt else ""
    if cfg.no_clear0: a("s_branch L_clr_done")
    a(f"s_cmp_eq_u32 s{sW}, 2\ns_cbranch_scc0 L_clr_done")
    a(f"""
    v_mov_b32 v{vU}, -1
    v_mov_b32 v{vU+1}, -1
    v_mov_b32 v{vU+2}, -1
    v_mov_b32 v{vU+3}, -1
    v_and_b32 v{vT3}, 7, v{vLane}
    v_lshlrev_b32 v{vT3}, 4, v{vT3}        ; (l&7)*16
    v_mov_b32 v{vT0}, s{sXw}
    s_add_u32 s{sC}, s{sXw}, 32768
    """)
    setexec(0xFF00)
    a(f"v_mov_b32 v{vT0}, s{sC}")
    setexec(0xFFF << 16)
    a(f"""
    v_mov_b32 v{vT0}, s{sQ2w}
    v_and_b32 v{vT3}, 3, v{vLane}
    v_lshlrev_b32 v{vT3}, 4, v{vT3}
    s_cmp_lt_u32 s{sM}, 16
    s_cbranch_scc1 L_clr_noh
    s_cmp_ge_u32 s{sIdx}, 14
    s_cbranch_scc1 L_clr_noh
    s_lshl_b32 s{sD}, s{sIdx}, 6
    s_add_u32 s{sC}, s{sHb}, s{sD}
    """)
    setexec(0xF << 16)
    a(f"v_mov_b32 v{vT0}, s{sC}\ns_add_u32 s{sC}, s{sC}, 8192")
    setexec(0xF0 << 16)
    a(f"v_mov_b32 v{vT0}, s{sC}")
    a("L_clr_noh:")
    setexec((1 << 28) - 1)
    a(f"""
    v_add_u32 v{vT0}, v{vT0}, v{vT3}
    buffer_store_dwordx4 {vr(vU,4)}, v{vT0}, {sr(sWS,4)}, 0 offen sc1
    """)
    setexec(FULL)
    a("L_clr_done:")
    srd(sX0, P + 2, 2048)
    a(f"s_cmp_eq_u32 s{sW}, 0\ns_cbranch_scc0 L_nox0")
    a(f"""
    s_mov_b32 m0, {L_X0}
    s_nop 0
    buffer_load_dwordx4 v{vT1}, {sr(sX0,4)}, 0 offen lds
    buffer_load_dwordx4 v{vT1}, {sr(sX0,4)}, 0 offen offset:1024 lds
    L_nox0:
    """)
    if cfg.line_pf and "q" in cfg.pf_which:
        a(f"""
        v_lshrrev_b32 v{vT0}, 3, v{vLane}
        v_lshlrev_b32 v{vT0}, 13, v{vT0}
        v_and_b32 v{vT3}, 7, v{vLane}
        v_lshl_add_u32 v{vT0}, v{vT3}, 7, v{vT0}
        s_lshl_b32 s{sB}, s{sM}, 2
        s_add_u32 s{sB}, s{sB}, s{sW}
        s_lshl_b32 s{sB}, s{sB}, 15
        s_lshl_b32 s{sC}, s{sJ}, 10
        s_add_u32 s{sB}, s{sB}, s{sC}
        """)
        setexec(0xFFFFFFFF)
        a(f"buffer_load_dword v{vJ}, v{vT0}, {sr(sWQ,4)}, s{sB} offen{cfg.pf_pol}")
        setexec(FULL)
    a(f"""
    s_lshl_b32 s{sB}, s{sW}, 20
    s_lshl_b32 s{sC}, s{sJ}, 10
    s_add_u32 s{sB}, s{sB}, s{sC}
    s_lshl_b32 s{sC}, s{sM}, 5
    s_add_u32 s{sB}, s{sB}, s{sC}
    s_lshl_b32 s{sC}, s{sW}, 12
    s_add_u32 s{sC}, s{sC}, {L_WQ}
    """)
    for u in range(4):
        a(f"""
        s_mov_b32 m0, s{sC}
        s_add_u32 s{sC}, s{sC}, 1024
        buffer_load_dwordx4 v{vT2}, {sr(sWQ,4)}, s{sB} offen{SLN} lds
        s_add_u32 s{sB}, s{sB}, {32*8192}
        """)
    def page_off(t, dst):
        a(f"""
        s_add_u32 s{dst}, s{sW}, s{sRot}
        s_add_u32 s{dst}, s{dst}, {4*t}
        s_and_b32 s{dst}, s{dst}, 15
        s_lshl_b32 s{dst}, s{dst}, 12
        s_add_u32 s{dst}, s{dst}, s{sKV}
        """)
    def k_page(t):
        page_off(t, sD)
        a(f"s_lshl_b32 s{sC}, s{sW}, 14\ns_add_u32 s{sC}, s{sC}, {L_K + t*4096}\ns_mov_b32 m0, s{sC}\ns_nop 0")
        for ii in range(4):
            a(f"buffer_load_dwordx4 v{vKs+ii}, {sr(sKS,4)}, s{sD} offen offset:{ii*1024} nt lds")
    nKpA = cfg.nKA // 4
    for t in range(cfg.nKb1): k_page(t)
    ts("start")
    if cfg.ts_issue: ts("issued")

    srd(sVS, P + 6, 0x8000000)
    srd(sUP, P + 12, 512 * 1792 * 2)
    srd(sDN, P + 14, 1792 * 512 * 2)
    srd(sOUT, P + 16, 2048)
    a(f"""
    s_cmp_lt_u32 s{sM}, 16
    s_cselect_b32 s{sW2}, s{P}, s{P+10}
    s_cselect_b32 s{sW2+1}, s{P+1}, s{P+11}
    s_mov_b32 s{sW2+2}, {512*1792*2}
    s_cselect_b32 s{sW2+2}, 0x400000, s{sW2+2}
    s_and_b32 s{sW2+1}, s{sW2+1}, 0xffff
    s_mov_b32 s{sW2+3}, 0x20000
    s_mov_b32 s{sBud}, {cfg.budget}
    s_getreg_b32 s{sXcc}, hwreg(HW_REG_XCC_ID, 0, 4)
    s_mov_b32 s{sMDIAG}, 0x00ff00ff
    s_mov_b32 s{sMDIAG+1}, 0xff00ff00
    s_mov_b32 s{sM4}, 0x000f000f
    s_mov_b32 s{sM4+1}, 0x000f000f
    s_mov_b32 s{sM2}, 0x00030003
    s_mov_b32 s{sM2+1}, 0x00030003
    s_mov_b32 s{sMN1}, 0x00020002
    s_mov_b32 s{sMN1+1}, 0x00020002
    s_mov_b32 s{sMEV}, 0x55555555
    s_mov_b32 s{sMEV+1}, 0x55555555
    s_mov_b32 s{sL}, 0
    s_mul_i32 s{sOcons}, s{sJ}, {O_J}
    s_lshl_b32 s{sB}, s{sW}, 6
    s_add_u32 s{sOcons}, s{sOcons}, s{sB}
    s_add_u32 s{sOcons}, s{sOcons}, {WS_O}
    """)
    for i in range(4): a(f"v_mov_b32 v{vOnes+i}, 0x3f803f80")
    for i in range(16): a(f"v_mov_b32 v{vQ+i}, 0")
    for i in range(8): a(f"v_mov_b32 v{vHop+i}, 0")
    a(f"v_mov_b32 v{vQ1a}, 0\nv_mov_b32 v{vQ1d}, 0\nv_mov_b32 v{vQ1d+1}, 0")
    h3 = vU; qh = vU + 1; ql = vU + 2
    a(f"""
    v_and_b32 v{h3}, 3, v{vR16}
    v_lshrrev_b32 v{qh}, 1, v{vQd}
    v_and_b32 v{ql}, 1, v{vQd}
    v_and_b32 v{vT0}, 7, v{vR16}
    v_lshlrev_b32 v{vT0}, 11, v{vT0}
    v_lshrrev_b32 v{vT1}, 3, v{vR16}
    v_lshl_add_u32 v{vT0}, v{vT1}, 6, v{vT0}
    v_lshl_add_u32 v{vT0}, v{vQd}, 4, v{vT0}
    s_lshl_b32 s{sB}, s{sW}, 9
    v_add_u32 v{vaX}, s{sB}, v{vT0}
    v_mul_u32_u24 v{vT0}, {O_BLK}, v{vR16}
    v_lshl_add_u32 v{vaO0}, v{vQd}, 4, v{vT0}
    v_add_u32 v{vaO1}, {16*O_BLK}, v{vaO0}
    v_lshl_add_u32 v{vT0}, v{vQd}, 2, v{vR16}
    v_and_b32 v{vT0}, 15, v{vT0}
    v_mul_u32_u24 v{vT0}, {O_BLK}, v{vT0}
    s_mul_i32 s{sB}, s{sW}, 48
    s_sub_u32 s{sB}, 1024, s{sB}
    v_add_u32 v{vaS0}, s{sB}, v{vT0}
    v_add_u32 v{vaS1}, {16*O_BLK}, v{vaS0}
    v_lshlrev_b32 v{vT0}, 9, v{h3}
    v_lshl_add_u32 v{vT0}, v{qh}, 6, v{vT0}
    v_lshl_add_u32 v{vaQ2}, v{ql}, 4, v{vT0}
    v_and_b32 v{vT0}, 1, v{vR16}
    v_lshlrev_b32 v{vT0}, 5, v{vT0}
    v_lshl_add_u32 v{vT0}, v{qh}, 6, v{vT0}
    v_lshl_add_u32 v{vT0}, v{ql}, 4, v{vT0}
    s_lshl_b32 s{sB}, s{sW}, 7
    v_add_u32 v{vaH}, s{sB}, v{vT0}
    v_lshlrev_b32 v{vT0}, 6, v{vQd}
    v_lshl_add_u32 v{vT0}, v{h3}, 4, v{vT0}
    v_add_u32 v{vaPr}, {L_PBUF}, v{vT0}
    v_lshrrev_b32 v{vT1}, 2, v{vR16}
    v_lshl_add_u32 v{vT1}, v{vT1}, 9, v{vaPr}
    s_lshr_b32 s{sB}, s{sW}, 1
    s_lshl_b32 s{sB}, s{sB}, 8
    s_and_b32 s{sC}, s{sW}, 1
    s_lshl_b32 s{sC}, s{sC}, 3
    s_add_u32 s{sB}, s{sB}, s{sC}
    v_add_u32 v{vaPw}, s{sB}, v{vT1}
    v_lshlrev_b32 v{vT0}, 4, v{h3}
    v_add_u32 v{vaSm}, {L_SMAX}, v{vT0}
    s_lshl_b32 s{sB}, s{sW}, 2
    v_add_u32 v{vaSmW}, s{sB}, v{vaSm}
    v_lshlrev_b32 v{vT0}, 4, v{vLane}
    v_add_u32 v{vaRedW}, s{sB}, v{vT0}
    v_and_b32 v{vT1}, 1, v{vR16}
    v_lshl_add_u32 v{vT1}, v{qh}, 1, v{vT1}
    v_lshlrev_b32 v{vT1}, 4, v{vT1}
    v_add_u32 v{vaRedZ}, s{sB}, v{vT1}
    v_lshl_add_u32 v{vT0}, v{ql}, 5, v{vR16}
    v_lshlrev_b32 v{vaFinW}, 4, v{vT0}
    v_lshlrev_b32 v{vaFinZ}, 5, v{ql}
    v_lshlrev_b32 v{vT0}, 9, v{ql}
    v_add_u32 v{vaFinQZ}, 256, v{vT0}
    v_lshlrev_b32 v{vaFinO}, 4, v{vLane}
    v_lshlrev_b32 v{vT0}, 5, v{ql}
    v_lshl_add_u32 v{vaStH}, v{vR16}, 1, v{vT0}
    v_lshlrev_b32 v{vT0}, 6, v{ql}
    v_lshl_add_u32 v{vT0}, v{qh}, 5, v{vT0}
    v_lshl_add_u32 v{vaStX}, v{vR16}, 1, v{vT0}
    v_lshlrev_b32 v{vT0}, 6, v{vR16}
    v_lshl_add_u32 v{vT0}, v{vQd}, 4, v{vT0}
    s_lshl_b32 s{sB}, s{sW}, 8
    v_add_u32 v{vaStO}, s{sB}, v{vT0}
    v_lshlrev_b32 v{vT0}, 4, v{vLane}
    v_add_u32 v{vaStS}, 1024, v{vT0}
    """)
    a(f"s_lshl_b32 s{sB}, s{sW}, 14\ns_add_u32 s{sB}, s{sB}, {L_K}")
    for c in range(4):
        a(f"""
        v_add_u32 v{vT0}, {4*c}, v{vQd}
        v_xor_b32 v{vT0}, v{vT0}, v{vR16}
        v_lshlrev_b32 v{vT0}, 4, v{vT0}
        v_lshl_add_u32 v{vT0}, v{vR16}, 8, v{vT0}
        v_add_u32 v{vKr+c}, s{sB}, v{vT0}
        """)
    for e in range(2):
        a(f"""
        v_add_u32 v{vT1}, {4*e}, v{vQd}
        v_lshrrev_b32 v{vT2}, 1, v{vR16}
        v_xor_b32 v{vT1}, v{vT1}, v{vT2}
        v_lshlrev_b32 v{vT1}, 1, v{vT1}
        v_and_b32 v{vT2}, 1, v{vR16}
        v_or_b32 v{vT1}, v{vT1}, v{vT2}
        v_lshlrev_b32 v{vT1}, 4, v{vT1}
        v_lshl_add_u32 v{vVs+e}, v{vQd}, 8, v{vT1}
        """)
    for nt in range(2):
        a(f"""
        v_lshrrev_b32 v{vT1}, 2, v{vR16}
        v_lshl_add_u32 v{vT0}, v{vQd}, 2, v{vT1}
        v_and_b32 v{vT2}, 7, v{vT0}
        s_lshl_b32 s{sB}, s{sW}, 1
        s_add_u32 s{sB}, s{sB}, {nt}
        v_xor_b32 v{vT2}, s{sB}, v{vT2}
        v_lshlrev_b32 v{vT2}, 5, v{vT2}
        v_lshl_add_u32 v{vT0}, v{vT0}, 8, v{vT2}
        v_lshl_add_u32 v{vT0}, v{h3}, 3, v{vT0}
        v_add_u32 v{vVr+nt}, {L_V}, v{vT0}
        """)
    for i in range(16): a(f"v_mov_b32 v{XA+i}, 0")
    ts("setup")
    a(f"s_waitcnt vmcnt({4*cfg.nKb1})")
    ts("wq_landed")
    for t in range(cfg.nKb1, nKpA): k_page(t)

    def tr_base(dst, rowbytes, rowmul, sadd, const):
        sh = rowbytes.bit_length() - 1; rm = rowmul.bit_length() - 1
        a(f"""
        v_lshrrev_b32 v{vT1}, 2, v{vR16}
        v_lshl_add_u32 v{vT1}, v{vQd}, {rm}, v{vT1}
        v_lshlrev_b32 v{vT1}, {sh}, v{vT1}
        v_and_b32 v{vT2}, 3, v{vR16}
        v_lshl_add_u32 v{vT1}, v{vT2}, 3, v{vT1}
        v_add_u32 v{vT1}, s{sadd}, v{vT1}
        v_add_u32 v{dst}, {const}, v{vT1}
        """)

    def ln_stats(s1, s2, mean, rstd):
        a(f"""
        v_mul_f32 v{mean}, {f2u(1.0/512):#x}, v{s1}
        v_mul_f32 v{s2}, {f2u(1.0/512):#x}, v{s2}
        v_fma_f32 v{s2}, -v{mean}, v{mean}, v{s2}
        v_max_f32 v{s2}, 0, v{s2}
        v_add_f32 v{s2}, {f2u(1e-5):#x}, v{s2}
        v_rsq_f32 v{rstd}, v{s2}
        """)
    def sum4r(b):
        a(f"v_add_f32 v{b}, v{b}, v{b+1}\nv_add_f32 v{b+2}, v{b+2}, v{b+3}\nv_add_f32 v{b}, v{b}, v{b+2}")

    def stats_valu(z):
        L = [f"v_add_f32 v{z}, v{vAcc+8}, v{vAcc+9}", f"v_add_f32 v{vT3}, v{vAcc+10}, v{vAcc+11}", f"v_add_f32 v{z}, v{z}, v{vT3}",
             f"v_cndmask_b32 v{z}, 0, v{z}, s[{sMDIAG}:{sMDIAG+1}]"]
        for n in (8, 4, 2, 1):
            L.append(f"v_add_f32_dpp v{z}, v{z}, v{z} row_ror:{n} row_mask:0xf bank_mask:0xf")
        L += [f"v_add_f32 v{z+1}, v{vAcc+12}, v{vAcc+13}", f"v_add_f32 v{vT3}, v{vAcc+14}, v{vAcc+15}", f"v_add_f32 v{z+1}, v{z+1}, v{vT3}",
              f"v_cndmask_b32 v{z}, v{z+1}, v{z}, s[{sMN1}:{sMN1+1}]"]
        return L
    def stats_mf(X):
        return [mf(vAcc + 8, X + 4*u, X + 4*u, "0" if u == 0 else None) for u in range(4)] + \
               [mf(vAcc + 12, X + 4*u, vOnes, "0" if u == 0 else None) for u in range(4)]

    def q_core(X):
        M = stats_mf(X) + [mf(vAcc, X + 4*u, ar(aWq + 4*u, 4), "0" if u == 0 else None) for u in range(4)]
        interleave(M, stats_valu(vU), 8, 2)
        sum4(vU + 2, vAcc, vT3)
        a(f"""
        v_permlane16_swap_b32 v{vU+2}, v{vU}
        v_add_f32 v{vU}, v{vU}, v{vU+2}
        ds_write_b32 v{vaRedW}, v{vU} offset:{R_Q}
        s_waitcnt lgkmcnt(0)
        s_barrier
        """)
    def q_final(first):
        lab = a.label("qf")
        a(f"s_cmp_eq_u32 s{sW}, 0\ns_cbranch_scc0 {lab}")
        setexec(0xFFFFFFFF)
        a(f"""
        ds_read_b128 {vr(vU,4)}, v{vaFinW} offset:{R_Q}
        ds_read_b128 {vr(vU+4,4)}, v{vaFinQZ} offset:{R_Q}
        ds_read_b128 {vr(vU+8,4)}, v{vaFinQZ} offset:{R_Q+16}
        """)
        if first:
            a(f"ds_read_b128 {vr(vU+12,4)}, v{vaFinW} offset:{R_COL}")
        a("s_waitcnt lgkmcnt(0)")
        if first:
            sum4r(vU + 12); a(f"v_mov_b32 v{vCs}, v{vU+12}")
        sum4r(vU + 4); sum4r(vU + 8); sum4r(vU)
        ln_stats(vU + 4, vU + 8, vU + 5, vU + 6)
        a(f"""
        v_fma_f32 v{vU}, -v{vU+5}, v{vCs}, v{vU}
        v_mul_f32 v{vU}, v{vU}, v{vU+6}
        """)
        dpp("v_mov_b32", vU + 1, vU, None, "quad_perm:[1,0,3,2]")
        a(f"v_cvt_pk_bf16_f32 v{vU+2}, v{vU}, v{vU+1}")
        if first:
            a(f"""
            v_mov_b32 v{vQ1d}, v{vU+2}
            v_mov_b32 v{vQ1d+1}, s{sTX}
            s_lshl_b32 s{sB}, s{sJ}, 12
            s_lshl_b32 s{sC}, s{sM}, 7
            s_add_u32 s{sB}, s{sB}, s{sC}
            s_add_u32 s{sB}, s{sB}, {WS_Q1}
            v_lshlrev_b32 v{vT0}, 1, v{vaStH}
            v_add_u32 v{vQ1a}, s{sB}, v{vT0}
            """)
            setexec(0x55555555)
            a(f"buffer_store_dwordx2 {vr(vQ1d,2)}, v{vQ1a}, {sr(sWS,4)}, 0 offen" + (" sc1" if cfg.force_global else ""))
        else:
            a(f"v_min_u32 v{vU+2}, 0xfffffffe, v{vU+2}")
            setexec(0x55555555)
            store_local(f"buffer_store_dword v{vU+2}, v{vaStH}, {sr(sWS,4)}, s{sQ2w} offen")
        setexec(FULL)
        a(f"{lab}:")

    def s_qk_max():
        for c in range(4):
            for t in range(4):
                mfma(vS + 4*t, ar(aK + 16*t + 4*c, 4), vQ + 4*c, "0" if c == 0 else None)
        for t in range(1, 4):
            for r in range(4):
                dpp("v_mov_b32", vS + r, vS + 4*t + r, None, f"row_shr:{4*t}", bm=f"0x{1<<t:x}")
        a(f"v_max3_f32 v{vU}, v{vS}, v{vS+1}, v{vS+2}\nv_max_f32 v{vU}, v{vU}, v{vS+3}")
        row_reduce("v_max_f32", vU, (8, 4))
        xquad_reduce("v_max_f32", vU, vT0)
        setexec(0xF)
        a(f"ds_write_b32 v{vaSmW}, v{vU}")
        setexec(FULL)
        a("s_waitcnt lgkmcnt(0)\ns_barrier")
    def s_exp_p():
        a(f"""
        ds_read_b128 {vr(vU+4,4)}, v{vaSm}
        s_mov_b32 s{sB}, {f2u(C_SCALE):#x}
        s_waitcnt lgkmcnt(0)
        v_max3_f32 v{vU}, v{vU+4}, v{vU+5}, v{vU+6}
        v_max_f32 v{vU}, v{vU}, v{vU+7}
        v_mul_f32 v{vMc}, s{sB}, v{vU}
        """)
        for i in range(4): a(f"v_fma_f32 v{vS+i}, v{vS+i}, s{sB}, -v{vMc}")
        for i in range(4): a(f"v_exp_f32 v{vS+i}, v{vS+i}")
        a(f"""
        v_cvt_pk_bf16_f32 v{vU+2}, v{vS}, v{vS+1}
        v_cvt_pk_bf16_f32 v{vU+3}, v{vS+2}, v{vS+3}
        ds_write_b64 v{vaPw}, {vr(vU+2,2)}
        v_add_f32 v{vU}, v{vS}, v{vS+1}
        v_add_f32 v{vU+1}, v{vS+2}, v{vS+3}
        v_add_f32 v{vU}, v{vU}, v{vU+1}
        """)
        row_reduce("v_add_f32", vU, (8, 4))
        xquad_reduce("v_add_f32", vU, vT0)
        setexec(0xF)
        a(f"ds_write_b32 v{vaSmW}, v{vU} offset:{L_LSUM-L_SMAX}")
        setexec(FULL)
        a("s_waitcnt lgkmcnt(0)\ns_barrier")
        for blk in range(8):
            a(f"ds_read_b128 {vr(vP+4*blk,4)}, v{vaPr} offset:{blk*256}")
    def s_stats_prep():
        lab = a.label("st")
        a(f"s_cmp_eq_u32 s{sW}, 3\ns_cbranch_scc0 {lab}")
        a(f"""
        ds_read_b128 {vr(vU+4,4)}, v{vaSm} offset:{L_LSUM-L_SMAX}
        s_add_u32 s{sB}, s{sT}, s{sL}
        s_add_u32 s{sB}, s{sB}, 1
        v_mov_b32 v{vMc+2}, s{sB}
        s_waitcnt lgkmcnt(0)
        """)
        sum4r(vU + 4)
        a(f"v_mov_b32 v{vMc+1}, v{vU+4}")
        a(f"{lab}:")
    def s_stats_store(wait):
        lab = a.label("ss")
        a(f"s_cmp_eq_u32 s{sW}, 3\ns_cbranch_scc0 {lab}")
        if wait is not None: a(f"s_waitcnt vmcnt({wait})")
        setexec(0xF)
        store_local(f"buffer_store_dwordx4 {vr(vMc,4)}, v{vaStS}, {sr(sWS,4)}, s{sOown} offen")
        setexec(FULL)
        a(f"{lab}:")
    accO = vAcc
    def v_tr(blk):
        t, p = blk >> 1, blk & 1
        for nt in range(2):
            a(f"ds_read_b64_tr_b16 {ar(aV+8*blk+4*nt,2)}, v{vVr+nt} offset:{(4*t+2*p)*4096}")
            a(f"ds_read_b64_tr_b16 {ar(aV+8*blk+4*nt+2,2)}, v{vVr+nt} offset:{(4*t+2*p+1)*4096}")
    def pv(blks, first):
        for blk in blks:
            for nt in range(2):
                mfma(accO + 4*nt, ar(aV + 8*blk + 4*nt, 4), vP + 4*blk, "0" if (first and blk == blks[0]) else None)
    def s_out():
        for i in range(4):
            a(f"v_cvt_pk_bf16_f32 v{vU+i}, v{accO+2*i}, v{accO+2*i+1}")
        for i in range(4):
            a(f"v_min_u32 v{vU+i}, 0xfffffffe, v{vU+i}")
        setexec(EM4)
        store_local(f"buffer_store_dwordx4 {vr(vU,4)}, v{vaStO}, {sr(sWS,4)}, s{sOown} offen")
        setexec(FULL)

    a(f"s_lshl_b32 s{sB}, s{sW}, 12")
    tr_base(vT0, 32, 8, sB, L_WQ)
    for u in range(4):
        a(f"ds_read_b64_tr_b16 {ar(aWq+4*u,2)}, v{vT0} offset:{u*1024}")
        a(f"ds_read_b64_tr_b16 {ar(aWq+4*u+2,2)}, v{vT0} offset:{u*1024+128}")
    a(f"""
    v_lshrrev_b32 v{vT0}, 3, v{vR16}
    v_lshlrev_b32 v{vT0}, 10, v{vT0}
    v_lshl_add_u32 v{vT0}, v{vQd}, 4, v{vT0}
    s_lshl_b32 s{sB}, s{sW}, 8
    v_add_u32 v{vT0}, s{sB}, v{vT0}
    s_barrier
    """)
    setexec(0x0101010101010101)
    for u in range(4):
        a(f"ds_read_b128 {vr(XA+4*u,4)}, v{vT0} offset:{L_X0+u*64}")
    setexec(FULL)
    a(f"""
    s_waitcnt lgkmcnt(0)
    s_add_u32 s{sT}, s{sT}, 0x9e3779b0
    s_and_b32 s{sT}, s{sT}, 0xfffffff0
    s_or_b32 s{sTX}, s{sT}, s{sXcc}
    """)
    for u in range(4): mfma(vS, vOnes, ar(aWq + 4*u, 4), "0" if u == 0 else None)
    a(f"ds_write_b32 v{vaRedW}, v{vS} offset:{R_COL}")
    q_core(XA)
    q_final(True)
    a("s_barrier")
    ts("q1_pub")

    def v_group(t):
        page_off(t, sD)
        a(f"s_lshl_b32 s{sC}, s{sW}, 12\ns_add_u32 s{sC}, s{sC}, {L_V + t*16384}\ns_mov_b32 m0, s{sC}\ns_nop 0")
        for ii in range(4):
            a(f"buffer_load_dwordx4 v{vVs+(ii&1)}, {sr(sVS,4)}, s{sD} offen offset:{ii*1024} nt lds")
    def pace(): a(f"s_waitcnt vmcnt({cfg.pace})")
    for t in range(nKpA, 4):
        pace(); k_page(t)
    a(f"""
    v_lshrrev_b32 v{vT0}, 2, v{vLane}
    v_lshlrev_b32 v{vT0}, 7, v{vT0}
    v_and_b32 v{vT1}, 3, v{vLane}
    v_lshl_add_u32 v{vKs}, v{vT1}, 4, v{vT0}        ; (vKs is free once K is issued)
    s_lshl_b32 s{sA}, s{sJ}, 12
    s_lshr_b32 s{sB}, s{sM}, 4
    s_lshl_b32 s{sB}, s{sB}, 6
    s_add_u32 s{sA}, s{sA}, s{sB}
    s_add_u32 s{sA}, s{sA}, {WS_Q1}
    v_and_b32 v{vT0}, 3, v{vR16}
    v_lshlrev_b32 v{vT0}, 9, v{vT0}
    v_lshrrev_b32 v{vT1}, 1, v{vQd}
    v_lshl_add_u32 v{vT0}, v{vT1}, 6, v{vT0}
    v_and_b32 v{vT1}, 1, v{vQd}
    v_lshl_add_u32 v{vKs+1}, v{vT1}, 5, v{vT0}
    v_lshlrev_b32 v{vKs+2}, 5, v{vLane}
    """)
    def q1_dma(img):
        a(f"""
        s_mov_b32 m0, {L_QG + img*2048}
        s_add_u32 s{sB}, s{sA}, 2048
        buffer_load_dwordx4 v{vKs}, {sr(sWS,4)}, s{sA} offen sc1 lds
        s_mov_b32 m0, {L_QG + img*2048 + 1024}
        s_nop 0
        buffer_load_dwordx4 v{vKs}, {sr(sWS,4)}, s{sB} offen sc1 lds
        """)
    def w0(fn):
        lab = a.label("w0")
        a(f"s_cmp_eq_u32 s{sW}, 0\ns_cbranch_scc0 {lab}")
        fn()
        a(f"{lab}:")
    def q1_dup():
        setexec(0x55555555)
        a(f"buffer_store_dwordx2 {vr(vQ1d,2)}, v{vQ1a}, {sr(sWS,4)}, 0 offen sc1")
        setexec(FULL)
    g.q1_dup = lambda: w0(q1_dup)
    pace(); v_group(0)
    a("s_waitcnt vmcnt(4)")
    for t in range(4):
        for c in range(4):
            a(f"ds_read_b128 {ar(aK+16*t+4*c,4)}, v{vKr+c} offset:{t*4096}")
    ts("k_landed")
    w0(lambda: q1_dma(0))
    v_group(1)
    a("s_waitcnt vmcnt(4)")
    v_group(2)
    vG = vA
    def q1_tags(img):
        a(f"""
        ds_read_b128 {vr(vG,4)}, v{vKs+2} offset:{L_QG + img*2048}
        ds_read_b128 {vr(vG+4,4)}, v{vKs+2} offset:{L_QG + img*2048 + 16}
        s_waitcnt lgkmcnt(0)
        v_xor_b32 v{vT1}, s{sTX}, v{vG+1}
        v_xor_b32 v{vT2}, s{sTX}, v{vG+3}
        v_xor_b32 v{vT3}, s{sTX}, v{vG+5}
        v_xor_b32 v{vT0}, s{sTX}, v{vG+7}
        v_or3_b32 v{vT1}, v{vT1}, v{vT2}, v{vT3}
        v_or_b32 v{vT1}, v{vT1}, v{vT0}
        v_cmp_lt_u32 vcc, 15, v{vT1}
        """)
    a("s_barrier")
    q1_tags(0)
    a(f"s_mov_b32 s{sC}, {L_QG}\ns_cbranch_vccz L_q1ok")
    w0(lambda: (q1_dma(1), a("s_waitcnt vmcnt(0)")))
    a("s_barrier")
    q1_tags(1)
    a(f"s_mov_b32 s{sC}, {L_QG + 2048}\ns_cbranch_vccz L_q1ok")
    a("L_q1retry:")
    a(f"s_sub_u32 s{sBud}, s{sBud}, 1\ns_cbranch_scc1 L_abort\ns_barrier")
    w0(lambda: (q1_dup(), q1_dma(0), a("s_waitcnt vmcnt(0)")))
    a("s_barrier")
    q1_tags(0)
    a(f"s_mov_b32 s{sC}, {L_QG}\ns_cbranch_vccnz L_q1retry")
    a("L_q1ok:")
    a(f"""
    v_cmp_ne_u32 vcc, 0, v{vT1}
    v_add_u32 v{vT0}, s{sC}, v{vKs+1}
    s_cmp_eq_u64 vcc, 0
    s_cselect_b32 s{sLocal}, 1, 0
    """)
    setexec(EM4)
    for c in range(4):
        a(f"ds_read2_b32 {vr(vQ+4*c,2)}, v{vT0} offset0:{c*32} offset1:{c*32+2}")
        a(f"ds_read2_b32 {vr(vQ+4*c+2,2)}, v{vT0} offset0:{c*32+4} offset1:{c*32+6}")
    setexec(FULL)
    lab = a.label("nl")
    a(f"s_cmp_eq_u32 s{sLocal}, 0\ns_cbranch_scc0 {lab}")
    g.q1_dup()
    a(f"{lab}:")
    a("s_waitcnt lgkmcnt(0)")
    ts("q1_got")
    s_qk_max()
    ts("s1_max")
    lab = a.label("c0")
    a(f"""
    s_waitcnt vmcnt(4)
    s_cmp_eq_u32 s{sW}, 3
    s_cbranch_scc0 {lab}
    v_mov_b32 v{vU+8}, -1
    v_mov_b32 v{vU+9}, -1
    v_mov_b32 v{vU+10}, -1
    v_mov_b32 v{vU+11}, -1
    v_lshlrev_b32 v{vT1}, 4, v{vLane}
    """)
    store_local(f"buffer_store_dwordx4 {vr(vU+8,4)}, v{vT1}, {sr(sWS,4)}, s{sOown} offen")
    a(f"{lab}:")
    v_group(3)

    def s1_tail():
        s_exp_p()
        s_stats_prep()
        blks = [0, 1, 2, 3]
        for blk in blks: v_tr(blk)
        a("s_waitcnt lgkmcnt(0)")
        pv(blks, True)
        for t in (2, 3):
            a(f"s_waitcnt vmcnt({4*(3-t)})\ns_barrier")
            if t == 3: ts("v_landed")
            blks = [2*t, 2*t + 1]
            for blk in blks: v_tr(blk)
            a("s_waitcnt lgkmcnt(0)")
            pv(blks, False)
        s_out()
        s_stats_store(None)
        lab = a.label("c1")
        a(f"""
        s_cmp_eq_u32 s{sW}, 0
        s_cbranch_scc0 {lab}
        v_mov_b32 v{vU+8}, -1
        v_mov_b32 v{vU+9}, -1
        v_mov_b32 v{vU+10}, -1
        v_mov_b32 v{vU+11}, -1
        v_lshlrev_b32 v{vT1}, 4, v{vLane}
        s_add_u32 s{sB}, s{sOown}, {O_L}
        """)
        store_local(f"buffer_store_dwordx4 {vr(vU+8,4)}, v{vT1}, {sr(sWS,4)}, s{sB} offen")
        q1_dup()
        a(f"{lab}:")
        ts("s1_pub")

    def x_poll(sbase, dst, sleep):
        l = a.label("xp"); ok = a.label("xok")
        if cfg.sleep_x0: a(f"s_sleep {cfg.sleep_x0}")
        a(f"{l}:")
        for u in range(4):
            a(f"buffer_load_dwordx4 {vr(dst+4*u,4)}, v{vaX}, {sr(sWS,4)}, s{sbase} offen offset:{u*128} sc1")
        a("s_waitcnt vmcnt(0)")
        sent_check([dst+i for i in range(16)], vT0, ok)
        spin_fail(l, sleep)
        a(f"{ok}:")

    def tag_check_all():
        l = a.label("tc"); ok = a.label("tcok")
        a(f"""
        s_lshl_b32 s{sB}, s{sW}, 13
        s_add_u32 s{sB}, s{sB}, {WS_Q1+4}
        v_lshlrev_b32 v{vT0}, 7, v{vLane}
        {l}:
        buffer_load_dword v{vT1}, v{vT0}, {sr(sWS,4)}, s{sB} offen sc1
        s_waitcnt vmcnt(0)
        v_xor_b32 v{vT1}, s{sT}, v{vT1}
        v_cmp_lt_u32 vcc, 15, v{vT1}
        s_cbranch_vccz {ok}
        """)
        spin_fail(l, 2)
        a(f"{ok}:")

    def line_final(red):
        a(f"""
        ds_read_b128 {vr(vU,4)}, v{vaFinO} offset:{red}
        v_lshlrev_b32 v{vU+4}, 16, v{vRes}
        s_waitcnt lgkmcnt(0)
        v_add_f32 v{vU}, v{vU}, v{vU+1}
        v_add_f32 v{vU+2}, v{vU+2}, v{vU+3}
        v_add_f32 v{vU}, v{vU}, v{vU+4}
        v_add_f32 v{vU}, v{vU}, v{vU+2}
        """)
        dpp("v_mov_b32", vU + 1, vU, None, "quad_perm:[1,0,3,2]")
        a(f"v_cvt_pk_bf16_f32 v{vU}, v{vU}, v{vU+1}\nv_min_u32 v{vU}, 0xfffffffe, v{vU}")
        setexec(EMEV)
        a(f"buffer_store_dword v{vU}, v{vaStX}, {sr(sWS,4)}, s{sXw} offen sc1")
        setexec(FULL)

    def o_stats_poll():
        l = a.label("os"); ok = a.label("osok")
        a(f"s_add_u32 s{sA}, s{sT}, s{sL}\ns_add_u32 s{sA}, s{sA}, 1")
        a(f"{l}:")
        a(f"buffer_load_dwordx3 {vr(vSt,3)}, v{vaS0}, {sr(sWS,4)}, s{sOcons} offen sc1")
        a(f"buffer_load_dwordx3 {vr(vSt+4,3)}, v{vaS1}, {sr(sWS,4)}, s{sOcons} offen sc1")
        a("s_waitcnt vmcnt(0)")
        a(f"""
        v_xor_b32 v{vT0}, s{sA}, v{vSt+2}
        v_xor_b32 v{vT1}, s{sA}, v{vSt+6}
        v_or_b32 v{vT0}, v{vT0}, v{vT1}
        v_cmp_ne_u32 vcc, 0, v{vT0}
        s_cbranch_vccz {ok}
        """)
        spin_fail(l, cfg.sleep_o)
        a(f"{ok}:")

    def o_phase():
        OA = vA
        o_stats_poll()
        l2 = a.label("op"); ok2 = a.label("ook")
        a(f"{l2}:")
        for b in range(2):
            for c in range(4):
                a(f"buffer_load_dwordx4 {vr(OA+16*b+4*c,4)}, v{vaO0+b}, {sr(sWS,4)}, s{sOcons} offen offset:{c*256} sc1")
        for b in range(2):
            a(f"v_mov_b32 v{vU+b}, v{vSt+4*b}")
        for n in (8, 4, 2, 1):
            for b in range(2): dpp("v_max_f32", vU + b, vU + b, vU + b, f"row_ror:{n}")
        for b in range(2): a(f"v_sub_f32 v{vU+b}, v{vSt+4*b}, v{vU+b}")
        for b in range(2): a(f"v_exp_f32 v{vU+b}, v{vU+b}")
        for b in range(2): a(f"v_mul_f32 v{vU+2+b}, v{vU+b}, v{vSt+4*b+1}")
        for n in (8, 4, 2, 1):
            for b in range(2): dpp("v_add_f32", vU + 2 + b, vU + 2 + b, vU + 2 + b, f"row_ror:{n}")
        for b in range(2): a(f"v_rcp_f32 v{vU+2+b}, v{vU+2+b}")
        for b in range(2): a(f"v_mul_f32 v{vW+b}, v{vU+b}, v{vU+2+b}")
        a(f"v_mov_b32 v{vT0}, 0")
        for i in range(8):
            b, c = i >> 2, i & 3
            r = OA + 16*b + 4*c
            a(f"s_waitcnt vmcnt({7-i})")
            for nt in range(2):
                mfma(vAcc + 8*b + 4*nt, r, ar(aW2 + 8*c + 4*nt, 4), "0" if c == 0 else None)
            a(f"v_max3_u32 v{vT0}, v{vT0}, v{r}, v{r+1}\nv_max3_u32 v{vT0}, v{vT0}, v{r+2}, v{r+3}")
        a(f"v_cmp_eq_u32 vcc, -1, v{vT0}\ns_cbranch_vccz {ok2}")
        spin_fail(l2)
        a(f"{ok2}:")
        ts_dyn("o_got0", "o_got1")
        for b in range(2):
            for nt in range(2):
                t = vU + 2*b + nt; acc = vAcc + 8*b + 4*nt
                dpp("v_mul_f32", t, vW + b, acc, "row_newbcast:0")
                for r in range(1, 4):
                    dpp("v_fmac_f32", t, vW + b, acc + r, f"row_newbcast:{r}")
        a(f"""
        v_permlane32_swap_b32 v{vU}, v{vU+1}
        v_permlane32_swap_b32 v{vU+2}, v{vU+3}
        v_add_f32 v{vU}, v{vU}, v{vU+1}
        v_add_f32 v{vU+2}, v{vU+2}, v{vU+3}
        v_permlane16_swap_b32 v{vU}, v{vU+2}
        v_add_f32 v{vU}, v{vU}, v{vU+2}
        ds_write_b32 v{vaRedW}, v{vU} offset:{R_O}
        s_waitcnt lgkmcnt(0)
        s_barrier
        """)
        lab = a.label("of")
        a(f"s_cmp_eq_u32 s{sW}, 0\ns_cbranch_scc0 {lab}")
        line_final(R_O)
        a(f"{lab}:")
        ts_dyn("o_pub0", "o_pub1")

    def g_phase():
        X = vA
        x_poll(sXr, X, cfg.sleep_x)
        ts_dyn("g_got0", "g_got1")
        M = stats_mf(X)
        for u in range(4):
            M.append(mf(vAcc, X + 4*u, ar(aW2 + 8*u, 4), "0" if u == 0 else None))
            M.append(mf(vAcc + 4, X + 4*u, ar(aW2 + 8*u + 4, 4), "0" if u == 0 else None))
        V = stats_valu(vU) + [f"v_mov_b32 v{vU+1}, v{vU}", f"v_permlane16_swap_b32 v{vU}, v{vU+1}", f"v_add_f32 v{vU}, v{vU}, v{vU+1}"]
        interleave(M, V, 8, 2)
        setexec("s[%d:%d]" % (sM2, sM2 + 1))
        a(f"ds_write_b32 v{vaRedZ}, v{vU} offset:{R_GZ}")
        setexec(FULL)
        sum4(vU + 2, vAcc, vT3)
        sum4(vU + 3, vAcc + 4, vT3)
        a(f"""
        v_permlane16_swap_b32 v{vU+2}, v{vU+3}
        v_add_f32 v{vU+2}, v{vU+2}, v{vU+3}
        ds_write_b32 v{vaRedW}, v{vU+2} offset:{R_G}
        s_waitcnt lgkmcnt(0)
        s_barrier
        """)
        lab = a.label("gf")
        a(f"s_cmp_eq_u32 s{sW}, 0\ns_cbranch_scc0 {lab}")
        setexec(0xFFFFFFFF)
        a(f"""
        ds_read_b128 {vr(vU+8,4)}, v{vaFinZ} offset:{R_GZ}
        ds_read_b128 {vr(vU+12,4)}, v{vaFinZ} offset:{R_GZ+16}
        ds_read_b128 {vr(vU,4)}, v{vaFinW} offset:{R_G}
        ds_read_b128 {vr(vU+4,4)}, v{vaFinW} offset:{R_G+256}
        s_lshl_b32 s{sB}, s{sIdx}, 6
        s_add_u32 s{sB}, s{sB}, s{sHb}
        s_waitcnt lgkmcnt(2)
        """)
        sum4r(vU + 8); sum4r(vU + 12)
        ln_stats(vU + 8, vU + 12, vU + 9, vU + 10)
        a("s_waitcnt lgkmcnt(0)")
        sum4r(vU); sum4r(vU + 4)
        a(f"""
        v_fma_f32 v{vU}, -v{vU+9}, v{vCg}, v{vU}
        v_fma_f32 v{vU+4}, -v{vU+9}, v{vCu}, v{vU+4}
        v_mul_f32 v{vU+1}, {f2u(-1.4426950408889634):#x}, v{vU+10}
        v_mul_f32 v{vU}, v{vU}, v{vU+1}
        v_exp_f32 v{vU}, v{vU}
        v_mul_f32 v{vU+4}, v{vU+4}, v{vU+10}
        v_add_f32 v{vU}, 1.0, v{vU}
        v_rcp_f32 v{vU}, v{vU}
        s_nop 0
        v_mul_f32 v{vU}, v{vU}, v{vU+4}
        """)
        dpp("v_mov_b32", vU + 1, vU, None, "quad_perm:[1,0,3,2]")
        a(f"v_cvt_pk_bf16_f32 v{vU}, v{vU}, v{vU+1}\nv_min_u32 v{vU}, 0xfffffffe, v{vU}")
        setexec(0x55555555)
        store_local(f"buffer_store_dword v{vU}, v{vaStH}, {sr(sWS,4)}, s{sB} offen")
        setexec(FULL)
        a(f"{lab}:")
        ts_dyn("g_pub0", "g_pub1")

    def d_phase():
        lab0 = a.label("dr0"); l2 = a.label("dr"); ok2 = a.label("drok")
        l = a.label("dp"); ok = a.label("dok"); one = a.label("done"); l3 = a.label("dp1");
        a(f"s_cmp_eq_u32 s{sW}, 3\ns_cbranch_scc1 {l3}")
        setexec(EM2)
        a(f"{l}:")
        a(f"buffer_load_dwordx4 {vr(vHop,4)}, v{vaH}, {sr(sWS,4)}, s{sHb} offen sc1")
        a(f"buffer_load_dwordx4 {vr(vHop+4,4)}, v{vaH}, {sr(sWS,4)}, s{sHb} offen offset:512 sc1")
        a("s_waitcnt vmcnt(0)")
        sent_check([vHop+i for i in range(8)], vT1, ok)
        spin_fail(l)
        a(f"{l3}:")
        setexec(EM2)
        a(f"{l3}b:")
        a(f"buffer_load_dwordx4 {vr(vHop,4)}, v{vaH}, {sr(sWS,4)}, s{sHb} offen sc1")
        a("s_waitcnt vmcnt(0)")
        sent_check([vHop+i for i in range(4)], vT1, ok)
        spin_fail(f"{l3}b")
        a(f"{ok}:")
        setexec(FULL)
        for nt in range(2):
            mfma(vAcc + 4*nt, vHop, ar(aWd + 4*nt, 4), "0")
        for nt in range(2):
            mfma(vAcc + 4*nt, vHop + 4, ar(aWd + 8 + 4*nt, 4))
        a(f"s_cmp_eq_u32 s{sW}, 0\ns_cbranch_scc0 {lab0}")
        a(f"s_sub_u32 s{sB}, s{sXw}, 16384")
        a(f"{l2}:")
        a(f"buffer_load_ushort v{vRes}, v{vaStX}, {sr(sWS,4)}, s{sB} offen sc1")
        a(f"{lab0}:")
        a(f"""
        v_permlane16_swap_b32 v{vAcc}, v{vAcc+1}
        v_permlane16_swap_b32 v{vAcc+4}, v{vAcc+5}
        v_permlane32_swap_b32 v{vAcc}, v{vAcc+4}
        ds_write_b32 v{vaRedW}, v{vAcc} offset:{R_D}
        s_waitcnt lgkmcnt(0)
        s_barrier
        """)
        lab = a.label("df")
        a(f"s_cmp_eq_u32 s{sW}, 0\ns_cbranch_scc0 {lab}")
        a("s_waitcnt vmcnt(0)")
        line_final(R_D)
        a(f"{lab}:")
        ts_dyn("d_pub0", "d_pub1")

    a(f"s_cmp_lt_u32 s{sM}, 16\ns_cbranch_scc0 L_roleB")
    g.role = "A"; ts_split = g.ts
    def wo_slices():
        if cfg.line_pf and "o" in cfg.pf_which:
            a(f"""
            v_lshlrev_b32 v{vT0}, 7, v{vLane}
            s_lshl_b32 s{sB}, s{sJ}, 19
            s_lshl_b32 s{sC}, s{sIdx}, 15
            s_add_u32 s{sB}, s{sB}, s{sC}
            s_lshl_b32 s{sC}, s{sW}, 13
            s_add_u32 s{sB}, s{sB}, s{sC}
            buffer_load_dword v{vJ}, v{vT0}, {sr(sW2,4)}, s{sB} offen{cfg.pf_pol}
            """)
        a(f"""
        v_lshrrev_b32 v{vT0}, 2, v{vLane}
        v_lshlrev_b32 v{vT0}, 10, v{vT0}
        v_and_b32 v{vT1}, 3, v{vLane}
        v_lshl_add_u32 v{vT0}, v{vT1}, 4, v{vT0}
        s_lshl_b32 s{sB}, s{sJ}, 19
        s_lshl_b32 s{sC}, s{sW}, 17
        s_add_u32 s{sB}, s{sB}, s{sC}
        s_lshl_b32 s{sC}, s{sIdx}, 6
        s_add_u32 s{sB}, s{sB}, s{sC}
        s_lshl_b32 s{sC}, s{sW}, 14
        s_add_u32 s{sC}, s{sC}, {L_K}
        """)
        for u in range(8):
            a(f"""
            s_mov_b32 m0, s{sC}
            s_add_u32 s{sC}, s{sC}, 1024
            buffer_load_dwordx4 v{vT0}, {sr(sW2,4)}, s{sB} offen{SLN} lds
            s_add_u32 s{sB}, s{sB}, {16*1024}
            """)
    s1_tail()
    wo_slices()
    a(f"v_mov_b32 v{vRes}, 0")
    lab = a.label("r0")
    a(f"""
    s_cmp_eq_u32 s{sJ}, 0
    s_cbranch_scc0 {lab}
    v_and_b32 v{vT0}, 1, v{vQd}
    v_lshlrev_b32 v{vT0}, 10, v{vT0}
    v_lshrrev_b32 v{vT1}, 1, v{vQd}
    v_lshl_add_u32 v{vT0}, v{vT1}, 5, v{vT0}
    v_lshl_add_u32 v{vT0}, v{vR16}, 1, v{vT0}
    s_lshl_b32 s{sB}, s{sIdx}, 6
    buffer_load_ushort v{vRes}, v{vT0}, {sr(sX0,4)}, s{sB} offen
    {lab}:
    """)
    a(f"s_lshl_b32 s{sB}, s{sW}, 14")
    tr_base(vT0, 64, 4, sB, L_K)
    a("s_waitcnt vmcnt(0)")
    for c in range(4):
        for nt in range(2):
            a(f"ds_read_b64_tr_b16 {ar(aW2+8*c+4*nt,2)}, v{vT0} offset:{c*2048+nt*32}")
            a(f"ds_read_b64_tr_b16 {ar(aW2+8*c+4*nt+2,2)}, v{vT0} offset:{c*2048+nt*32+1024}")
    a("s_waitcnt lgkmcnt(0)")
    ts("wo_ready")
    a("L_loopA:")
    o_phase()
    a(f"s_cmp_eq_u32 s{sL}, 1\ns_cbranch_scc1 L_finalA")
    tag_check_all()
    a("s_barrier\ns_branch L_q2s2")

    a("L_roleB:")
    g.role = "B"; g.ts = ts_split
    s1_tail()
    if cfg.line_pf and "f" in cfg.pf_which:
        a(f"""
        v_mul_u32_u24 v{vT0}, 52, v{vLane}
        v_lshrrev_b32 v{vT0}, 8, v{vT0}            ; l/5 for l < 64
        v_mul_u32_u24 v{vT1}, 5, v{vT0}
        v_sub_u32 v{vT1}, v{vLane}, v{vT1}         ; l%5
        v_mul_u32_u24 v{vT0}, 3584, v{vT0}
        v_lshl_add_u32 v{vT0}, v{vT1}, 7, v{vT0}
        s_lshl_b32 s{sB}, s{sIdx}, 5
        s_lshl_b32 s{sC}, s{sW}, 3
        s_add_u32 s{sB}, s{sB}, s{sC}
        s_mul_i32 s{sB}, s{sB}, 3584
        s_mul_i32 s{sC}, s{sJ}, 448
        s_and_b32 s{sC}, s{sC}, 0xffffff80
        s_add_u32 s{sB}, s{sB}, s{sC}
        """)
        setexec((1 << 40) - 1)
        a(f"buffer_load_dword v{vJ}, v{vT0}, {sr(sW2,4)}, s{sB} offen{cfg.pf_pol}")
        a(f"buffer_load_dword v{vJ}, v{vT0}, {sr(sUP,4)}, s{sB} offen{cfg.pf_pol}")
        a(f"""
        s_mov_b64 exec, -1
        v_lshrrev_b32 v{vT0}, 3, v{vLane}
        v_lshlrev_b32 v{vT0}, 10, v{vT0}
        v_and_b32 v{vT1}, 7, v{vLane}
        v_lshl_add_u32 v{vT0}, v{vT1}, 7, v{vT0}
        s_mul_i32 s{sB}, s{sJ}, 224
        s_mul_i32 s{sC}, s{sIdx}, 14
        s_add_u32 s{sB}, s{sB}, s{sC}
        s_lshl_b32 s{sC}, s{sW}, 2
        s_add_u32 s{sB}, s{sB}, s{sC}
        s_lshl_b32 s{sB}, s{sB}, 10
        s_cmp_eq_u32 s{sW}, 3
        s_cselect_b32 exec_lo, 0xffff, -1
        s_mov_b32 exec_hi, 0
        buffer_load_dword v{vJ}, v{vT0}, {sr(sDN,4)}, s{sB} offen{cfg.pf_pol}
        s_mov_b64 exec, -1
        """)
    a(f"""
    s_cmp_ge_u32 s{sIdx}, 14
    s_cbranch_scc1 L_nogu
    v_lshrrev_b32 v{vT0}, 1, v{vLane}
    v_mul_u32_u24 v{vT0}, 3584, v{vT0}
    v_and_b32 v{vT1}, 1, v{vLane}
    v_lshl_add_u32 v{vT0}, v{vT1}, 4, v{vT0}
    s_mul_i32 s{sB}, s{sW}, {128*3584}
    s_mul_i32 s{sC}, s{sJ}, 448
    s_add_u32 s{sB}, s{sB}, s{sC}
    s_lshl_b32 s{sC}, s{sIdx}, 5
    s_add_u32 s{sB}, s{sB}, s{sC}
    s_lshl_b32 s{sC}, s{sW}, 14
    s_add_u32 s{sC}, s{sC}, {L_K + W_GATE}
    """)
    for u in range(4):
        a(f"""
        s_mov_b32 m0, s{sC}
        s_add_u32 s{sD}, s{sC}, {W_UP - W_GATE}
        buffer_load_dwordx4 v{vT0}, {sr(sW2,4)}, s{sB} offen{SLN} lds
        s_mov_b32 m0, s{sD}
        s_add_u32 s{sC}, s{sC}, 1024
        buffer_load_dwordx4 v{vT0}, {sr(sUP,4)}, s{sB} offen{SLN} lds
        s_add_u32 s{sB}, s{sB}, {32*3584}
        """)
    a("L_nogu:")
    a(f"""
    v_lshrrev_b32 v{vT0}, 2, v{vLane}
    v_lshlrev_b32 v{vT0}, 10, v{vT0}
    v_and_b32 v{vT1}, 3, v{vLane}
    v_lshl_add_u32 v{vT0}, v{vT1}, 4, v{vT0}
    s_mul_i32 s{sB}, s{sJ}, {224*1024}
    s_lshl_b32 s{sC}, s{sIdx}, 6
    s_add_u32 s{sB}, s{sB}, s{sC}
    s_lshl_b32 s{sC}, s{sW}, 15
    s_add_u32 s{sB}, s{sB}, s{sC}
    s_lshl_b32 s{sC}, s{sW}, 14
    s_add_u32 s{sC}, s{sC}, {L_K + W_DN}
    s_mov_b32 m0, s{sC}
    s_add_u32 s{sD}, s{sB}, 16384
    buffer_load_dwordx4 v{vT0}, {sr(sDN,4)}, s{sB} offen{SLN} lds
    s_add_u32 s{sC}, s{sC}, 1024
    s_mov_b32 m0, s{sC}
    s_nop 0
    buffer_load_dwordx4 v{vT0}, {sr(sDN,4)}, s{sD} offen{SLN} lds
    s_cmp_eq_u32 s{sW}, 3
    s_cbranch_scc1 L_nod2
    s_add_u32 s{sB}, s{sB}, {4*32768}
    s_add_u32 s{sC}, s{sC}, 1024
    s_mov_b32 m0, s{sC}
    s_add_u32 s{sD}, s{sB}, 16384
    buffer_load_dwordx4 v{vT0}, {sr(sDN,4)}, s{sB} offen{SLN} lds
    s_add_u32 s{sC}, s{sC}, 1024
    s_mov_b32 m0, s{sC}
    s_nop 0
    buffer_load_dwordx4 v{vT0}, {sr(sDN,4)}, s{sD} offen{SLN} lds
    L_nod2:
    """)
    tag_check_all()
    ts("ffn_landed")
    a(f"s_cmp_ge_u32 s{sIdx}, 14\ns_cbranch_scc1 L_nogu2")
    a(f"s_lshl_b32 s{sB}, s{sW}, 14")
    tr_base(vT0, 32, 8, sB, L_K + W_GATE)
    for u in range(4):
        for mat in range(2):
            a(f"ds_read_b64_tr_b16 {ar(aW2+8*u+4*mat,2)}, v{vT0} offset:{u*1024+mat*(W_UP-W_GATE)}")
            a(f"ds_read_b64_tr_b16 {ar(aW2+8*u+4*mat+2,2)}, v{vT0} offset:{u*1024+mat*(W_UP-W_GATE)+128}")
    a("s_waitcnt lgkmcnt(0)")
    for u in range(4):
        mfma(vAcc, vOnes, ar(aW2 + 8*u, 4), "0" if u == 0 else None)
        mfma(vAcc + 4, vOnes, ar(aW2 + 8*u + 4, 4), "0" if u == 0 else None)
    a(f"s_nop 7\nds_write_b32 v{vaRedW}, v{vAcc} offset:{R_COL}\nds_write_b32 v{vaRedW}, v{vAcc+4} offset:{R_COL2}")
    a("L_nogu2:")
    a(f"s_lshl_b32 s{sB}, s{sW}, 14")
    tr_base(vT0, 64, 8, sB, L_K + W_DN)
    for nt in range(2):
        a(f"ds_read_b64_tr_b16 {ar(aWd+4*nt,2)}, v{vT0} offset:{nt*32}")
        a(f"ds_read_b64_tr_b16 {ar(aWd+4*nt+2,2)}, v{vT0} offset:{nt*32+256}")
    a(f"s_cmp_eq_u32 s{sW}, 3\ns_cbranch_scc1 L_dn3")
    for nt in range(2):
        a(f"ds_read_b64_tr_b16 {ar(aWd+8+4*nt,2)}, v{vT0} offset:{2048+nt*32}")
        a(f"ds_read_b64_tr_b16 {ar(aWd+8+4*nt+2,2)}, v{vT0} offset:{2048+nt*32+256}")
    a("s_branch L_dn4\nL_dn3:")
    for i in range(8): a(f"v_accvgpr_write_b32 a{aWd+8+i}, 0")
    a("L_dn4:")
    a("s_waitcnt lgkmcnt(0)\ns_barrier")
    a(f"""
    ds_read_b128 {vr(vU,4)}, v{vaFinW} offset:{R_COL}
    ds_read_b128 {vr(vU+4,4)}, v{vaFinW} offset:{R_COL2}
    s_waitcnt lgkmcnt(0)
    """)
    sum4r(vU); sum4r(vU + 4)
    a(f"v_mov_b32 v{vCg}, v{vU}\nv_mov_b32 v{vCu}, v{vU+4}")
    ts("ffn_ready")
    a("L_loopB:")
    lg = a.label("nog")
    a(f"s_cmp_ge_u32 s{sIdx}, 14\ns_cbranch_scc1 {lg}")
    g_phase()
    a(f"{lg}:")
    d_phase()
    a(f"s_cmp_eq_u32 s{sL}, 1\ns_cbranch_scc1 L_fin")

    a("L_q2s2:")
    save_role, save_ts = g.role, g.ts
    g.role = "C"; g.ts = 19
    a(f"s_mov_b32 s{sD}, {WS_X + 16384}")
    x_poll(sD, XA, cfg.sleep_x)
    ts("q2_got")
    q_core(XA)
    lab = a.label("rs")
    a(f"""
    s_cmp_eq_u32 s{sW}, 0
    s_cbranch_scc0 {lab}
    s_lshl_b32 s{sB}, s{sJ}, 11
    s_lshl_b32 s{sC}, s{sIdx}, 7
    s_add_u32 s{sB}, s{sB}, s{sC}
    s_add_u32 s{sB}, s{sB}, {WS_X + 16384}
    buffer_load_ushort v{vRes}, v{vaStX}, {sr(sWS,4)}, s{sB} offen sc1
    {lab}:
    """)
    q_final(False)
    ts("q2_pub")
    l = a.label("qp"); ok = a.label("qok")
    setexec(EM4)
    a(f"{l}:")
    for c in range(4):
        a(f"buffer_load_dwordx4 {vr(vQ+4*c,4)}, v{vaQ2}, {sr(sWS,4)}, s{sQ2r} offen offset:{c*128} sc1")
    a("s_waitcnt vmcnt(0)")
    sent_check([vQ+i for i in range(16)], vT0, ok)
    spin_fail(l)
    a(f"{ok}:")
    setexec(FULL)
    ts("q2_gath")
    a(f"""
    s_add_u32 s{sOown}, s{sOown}, {O_L}
    s_add_u32 s{sOcons}, s{sOcons}, {O_L}
    s_add_u32 s{sXw}, s{sXw}, 32768
    s_add_u32 s{sXr}, s{sXr}, 32768
    s_add_u32 s{sHb}, s{sHb}, 8192
    s_mov_b32 s{sL}, 1
    """)
    s_qk_max()
    s_exp_p()
    s_stats_prep()
    a("s_waitcnt lgkmcnt(0)")
    pv(list(range(8)), True)
    s_out()
    s_stats_store(None)
    ts("s2_pub")
    a(f"s_cmp_lt_u32 s{sM}, 16\ns_cbranch_scc1 L_loopA\ns_branch L_loopB")

    a("L_finalA:")
    g.role = "A"; g.ts = 14
    a(f"""
    s_cmp_ge_u32 s{sIdx}, 2
    s_cbranch_scc1 L_fin
    s_cmp_eq_u32 s{sW}, 0
    s_cbranch_scc0 L_fin
    s_lshl_b32 s{sB}, s{sJ}, 1
    s_add_u32 s{sB}, s{sB}, s{sIdx}        ; cb
    s_lshl_b32 s{sC}, s{sB}, 7
    s_add_u32 s{sC}, s{sC}, {WS_X + 3*16384}
    """)
    for nt in range(2):
        for dd in range(4):
            a(f"""
            v_lshlrev_b32 v{vT0}, 3, v{vQd}
            v_add_u32 v{vT0}, {2*dd - 16*nt}, v{vT0}
            v_sub_u32 v{vT0}, v{vT0}, v{vR16}
            v_mov_b32 v{vP+4*nt+dd}, 0
            v_cmp_eq_u32 vcc, 0, v{vT0}
            v_mov_b32 v{vT1}, 0x3f80
            v_cndmask_b32 v{vP+4*nt+dd}, v{vP+4*nt+dd}, v{vT1}, vcc
            v_cmp_eq_u32 vcc, -1, v{vT0}
            v_mov_b32 v{vT1}, 0x3f800000
            v_cndmask_b32 v{vP+4*nt+dd}, v{vP+4*nt+dd}, v{vT1}, vcc
            """)
    a(f"""
    v_lshrrev_b32 v{vT2}, 1, v{vQd}
    v_lshlrev_b32 v{vT2}, 10, v{vT2}
    v_and_b32 v{vT1}, 1, v{vQd}
    v_lshl_add_u32 v{vT2}, v{vT1}, 5, v{vT2}
    v_lshl_add_u32 v{vT2}, v{vR16}, 1, v{vT2}
    s_lshl_b32 s{sB}, s{sB}, 6
    """)
    l = a.label("fp"); ok = a.label("fok")
    a(f"{l}:")
    a(f"buffer_load_dwordx4 {vr(vA,4)}, v{vaX}, {sr(sWS,4)}, s{sC} offen sc1")
    a("s_waitcnt vmcnt(0)")
    sent_check([vA+i for i in range(4)], vT0, ok)
    spin_fail(l, cfg.sleep_x)
    a(f"{ok}:")
    ts("fin_got")
    mfma(vAcc, vA, vP, "0"); mfma(vAcc + 4, vA, vP + 4, "0")
    sum4(vU, vAcc, vT3); sum4(vU + 1, vAcc + 4, vT3)
    a(f"""
    v_permlane16_swap_b32 v{vU}, v{vU+1}
    v_add_f32 v{vU}, v{vU}, v{vU+1}
    v_cvt_pk_bf16_f32 v{vU}, v{vU}, v{vU}
    buffer_store_short v{vU}, v{vT2}, {sr(sOUT,4)}, s{sB} offen
    s_cmp_eq_u32 s{sB}, 0
    s_cbranch_scc0 L_fin
    v_mov_b32 v{vT0}, {WS_EPOCH}
    v_mov_b32 v{vT1}, s{sT}
    """)
    setexec(1)
    a(f"buffer_store_dword v{vT1}, v{vT0}, {sr(sWS,4)}, 0 offen sc1")
    setexec(FULL)

    a("L_fin:")
    if cfg.diag:
        g.role = "E"
        g.tsn["E"].append((NTS - 1, "end"))
        a(f"s_memrealtime s[{sTmp2}:{sTmp2+1}]\ns_waitcnt lgkmcnt(0)\ns_mov_b32 s{sTS+NTS-2}, s{sTmp2}")
        a(f"s_memtime s[{sTmp2}:{sTmp2+1}]\ns_waitcnt lgkmcnt(0)\ns_mov_b32 s{sTS+NTS-1}, s{sTmp2}")
        a(f"s_lshl_b32 s{sB}, s2, 3\ns_add_u32 s{sB}, s{sB}, s{sW}\ns_lshl_b32 s{sB}, s{sB}, 7\ns_add_u32 s{sB}, s{sB}, {WS_DIAG}\nv_mov_b32 v{vT0}, 0")
        setexec(1)
        for i in range(NTS):
            a(f"v_mov_b32 v{vT1}, s{sTS+i}\nbuffer_store_dword v{vT1}, v{vT0}, {sr(sWS,4)}, s{sB} offen offset:{4*i}")
        setexec(FULL)
    if cfg.dbg_span:
        a(f"""
        s_waitcnt vmcnt(0)
        s_cmp_eq_u32 s{sW}, 0
        s_cbranch_scc0 L_nospan
        s_memrealtime s[{sTmp2}:{sTmp2+1}]
        s_load_dwordx2 s[92:93], s[0:1], 80
        s_waitcnt lgkmcnt(0)
        s_mov_b32 s{sA}, s92
        s_and_b32 s{sB}, s93, 0xffff
        s_mov_b32 s{sC}, 256
        s_mov_b32 s{sD}, 0x20000
        v_mov_b32 v{vT0}, 8
        v_mov_b32 v{vT1}, s{sTmp2}
        s_not_b32 s94, s94
        v_mov_b32 v{vT2}, s94
        s_mov_b64 exec, 1
        buffer_atomic_umax v{vT1}, v{vT0}, s[{sA}:{sD}], 0 offen sc1
        buffer_atomic_umax v{vT2}, v{vT0}, s[{sA}:{sD}], 0 offen offset:4 sc1
        s_waitcnt vmcnt(0)
        L_nospan:
        """)
    a("s_waitcnt vmcnt(0)\ns_endpgm")
    a(f"""
    L_abort:
    s_mov_b64 exec, -1
    v_mov_b32 v{vT0}, 0
    v_mov_b32 v{vT1}, 0xdead
    s_load_dwordx2 s[{sTmp2}:{sTmp2+1}], s[0:1], 80
    s_waitcnt lgkmcnt(0)
    s_mov_b32 s{sA}, s{sTmp2}
    s_and_b32 s{sB}, s{sTmp2+1}, 0xffff
    s_mov_b32 s{sC}, 256
    s_mov_b32 s{sD}, 0x20000
    s_mov_b64 exec, 1
    buffer_store_dword v{vT1}, v{vT0}, s[{sA}:{sD}], 0 offen offset:4
    s_waitcnt vmcnt(0)
    L_end:
    s_endpgm
    """)
    for o in g.ool: a(o)
    a("L_codeend:\ns_endpgm")
    lines = a.text().rstrip("\n").split("\n")
    g.ninstr = sum(1 for l in lines if l.startswith("    ") and not l.strip().startswith(";"))
    lines = hazard.pad(lines)
    return g, "\n".join(lines) + "\n"

HEADER = open("interleave_layers__sliding_block_cached__glu_gated_glu__decode.s.ref").read().split("; Override launch")[0]

def full(cfg):
    g, body = build(cfg)
    txt = HEADER
    txt += "; Persistent single-launch kernel: 256 workgroups (one per CU) x 256 threads.\n"
    txt += f"; @launch grid=(256,1,1) block=(256,1,1) lds={LDS_BYTES}\n"
    txt += '.amdgcn_target "amdgcn-amd-amdhsa--gfx950"\n.text\n'
    txt += f".globl {NAME}\n.p2align 8\n.type {NAME},@function\n{NAME}:\n"
    txt += body
    txt += '.section .rodata,"a"\n.p2align 6\n'
    txt += f".amdhsa_kernel {NAME}\n  .amdhsa_next_free_vgpr {256 + g.amax}\n  .amdhsa_next_free_sgpr 102\n  .amdhsa_accum_offset 256\n"
    txt += "  .amdhsa_group_segment_fixed_size 0\n  .amdhsa_kernarg_size 96\n  .amdhsa_user_sgpr_count 2\n  .amdhsa_user_sgpr_kernarg_segment_ptr 1\n  .amdhsa_system_sgpr_workgroup_id_x 1\n.end_amdhsa_kernel\n"
    return g, txt

if __name__ == "__main__":
    cfg = Cfg()
    for kv in sys.argv[2:]:
        k, v = kv.split("="); setattr(cfg, k, eval(v))
    g, txt = full(cfg)
    open(sys.argv[1], "w").write(txt)
    print("vgprs", g.vmax, "agprs", g.amax, "instrs", g.ninstr, "ts", g.tsn)
```

```python
import sys, struct
from asmlib import Asm
import hazard

NAME = "interleave_layers__sliding_block_cached__glu_gated_glu__decode_kernel"

WS_EPOCH = 0x0
WS_Q1 = 0x10000
WS_DB = 0x1c000
WS_Q2 = 0x20000
WS_H  = 0x28000
WS_X  = 0x30000
WS_O  = 0x40000
O_STATS = 32768
O_J = O_STATS + 2048
O_L = 8 * O_J
WS_DIAG = 0x100000
WS_SIZE = 0x200000

L_SMAX = 0
L_LSUM = 64
L_PBUF = 256
L_RED = 2560
R_Q, R_G, R_GZ, R_O, R_D, R_COL, R_COL2 = [L_RED + 1024 * i for i in range(7)]
L_QG = 10240
L_X0 = 14336
L_K = 16384
L_V = L_K + 65536
L_WQ = L_V + 65536
L_XI = L_V
LDS_BYTES = 163840
W_GATE, W_UP, W_DN = 0, 4096, 8192

C_SCALE = 0.08838834764831845 * 1.4426950408889634
def f2u(x): return struct.unpack("<I", struct.pack("<f", x))[0]

class Cfg:
    nKA = 12
    nKb1 = 1
    pace = 8
    gpts = (1, 2, 4)
    diag = False
    ts_only = None
    ts_issue = False
    force_global = False
    budget = 400000
    prefetch_code = True
    sleep_x = 0
    sleep_x0 = 0
    sleep_o = 0
    sl_nt = True
    pf_pol = ""
    pf_which = "qof"
    dbg_span = False
    counters = False
    doorbell = True
    warm = True
    pf_stream = ""
    pf_early = False
    pf_spol = " nt"
    wsA = False
    wsB = False
    warm_out = True
    line_pf = False
    const_tag = False
    no_clear0 = False
    clr0_late = False

def vr(b, n=1): return f"v[{b}:{b+n-1}]" if n > 1 else f"v{b}"
def ar(b, n=1): return f"a[{b}:{b+n-1}]" if n > 1 else f"a{b}"
def sr(b, n=1): return f"s[{b}:{b+n-1}]" if n > 1 else f"s{b}"

sJ, sM, sW, sIdx, sL = 3, 4, 5, 6, 7
sWS, sKS, sVS, sWQ, sW2, sUP, sDN, sX0, sOUT = 8, 12, 16, 20, 24, 28, 32, 36, 40
sT, sTX, sLocal, sBud = 44, 45, 46, 47
sMDIAG = 48
sM4 = 50
sM2 = 52
sMN1 = 54
sMEV = 56
sEx = 58
sA, sB, sC, sD = 60, 61, 62, 63
sKV, sRot = 64, 65
sOown, sOcons, sXw, sXr, sHb, sQ2w, sQ2r = 66, 67, 68, 69, 70 - 70 + 96, 97, 98
sXcc = 99
sDBtag = 59
sEx2 = 50
sDBw, sDBr = 64, 65
sXI = 58
sTmp2 = 100
sTS = 70
NTS = 26

class G:
    pass

def build(cfg):
    g = G(); a = Asm(); g.a = a
    g.tsn = {"C": [], "A": [], "B": [], "E": []}; g.role = "C"; g.ts = 0; g.cnts = {}; g.cnt_names = []
    nv = [1]
    def valloc(n=1, align=1):
        nv[0] = (nv[0] + align - 1) // align * align
        r = nv[0]; nv[0] += n
        assert nv[0] <= 256
        return r
    vLane = valloc(); vR16 = valloc(); vQd = valloc()
    vT0 = valloc(); vT1 = valloc(); vT2 = valloc(); vT3 = valloc()
    vOnes = valloc(4, 4)
    vQ = valloc(16, 4)
    vA = valloc(40, 4)
    vAcc = valloc(16, 4)
    vS = valloc(16, 4)
    vP = valloc(32, 4)
    vJ = valloc()
    vHop = valloc(8, 4)
    vU = valloc(16, 4)
    vSt = valloc(8, 4)
    vW = valloc(2, 2)
    vCs = valloc(); vCg = valloc(); vCu = valloc()
    vRes = valloc(); vResF = valloc()
    vQ1d = valloc(2, 2); vQ1a = valloc()
    vMc = valloc(4, 4)
    vaX = valloc(); vaXg = valloc(); vaXr = valloc(); vaStQ = valloc(); vaClrO = valloc(); vaO0 = valloc(); vaO1 = valloc(); vaS0 = valloc(); vaS1 = valloc(); vaQ2 = valloc(); vaH = valloc()
    vaPw = valloc(); vaPr = valloc(); vaSm = valloc(); vaSmW = valloc(); vaRedW = valloc(); vaRedZ = valloc()
    vaFinW = valloc(); vaFinZ = valloc(); vaFinQZ = valloc(); vaFinO = valloc()
    vaStH = valloc(); vaStX = valloc(); vaStO = valloc(); vaStS = valloc(); vaResU = valloc()
    vKs = valloc(4); vVs = valloc(2); vVr = valloc(2); vKr = valloc(4)
    g.vmax = nv[0]
    aK, aV, aWq, aW2, aWd = 0, 64, 128, 144, 176
    g.amax = 192

    FULL = (1 << 64) - 1
    def ts(name):
        if not cfg.diag: return
        i = g.ts; g.ts += 1
        assert i < NTS - 3, name
        g.tsn[g.role].append((i, name))
        if name == "start":
            return
        if name == "issued":
            g.i_issued = i
            a(f"s_memtime s[{sTmp2}:{sTmp2+1}]\ns_waitcnt lgkmcnt(0)\ns_mov_b32 s92, s{sTmp2}")
            return
        if name == "setup":
            a(f"s_mov_b32 s{sTS}, s90\ns_mov_b32 s{sTS+NTS-3}, s91")
            if cfg.ts_issue: a(f"s_mov_b32 s{sTmp2}, s92")
            for z in list(range(1, NTS - 3)) + [NTS - 2, NTS - 1]: a(f"s_mov_b32 s{sTS+z}, 0")
            if cfg.ts_issue: a(f"s_mov_b32 s{sTS+g.i_issued}, s{sTmp2}")
        if cfg.ts_only and name not in cfg.ts_only:
            return
        a(f"s_memtime s[{sTmp2}:{sTmp2+1}]\ns_waitcnt lgkmcnt(0)\ns_mov_b32 s{sTS+i}, s{sTmp2}")
    def ts_dyn(name0, name1):
        if not cfg.diag: return
        i = g.ts; g.ts += 2
        assert i + 1 < NTS - 3, name0
        g.tsn[g.role].append((i, name0)); g.tsn[g.role].append((i + 1, name1))
        if cfg.ts_only and name0 not in cfg.ts_only: return
        a(f"""s_memtime s[{sTmp2}:{sTmp2+1}]
        s_waitcnt lgkmcnt(0)
        s_cmp_eq_u32 s{sL}, 0
        s_cselect_b32 s{sTS+i}, s{sTmp2}, s{sTS+i}
        s_cselect_b32 s{sTS+i+1}, s{sTS+i+1}, s{sTmp2}""")

    def cnt(name):
        if not (cfg.diag and cfg.counters): return
        key = (g.role, name)
        if key not in g.cnts:
            i = g.ts; g.ts += 1
            assert i < NTS - 3, name
            g.cnts[key] = i; g.cnt_names.append((g.role, i, name))
        a(f"s_add_u32 s{sTS+g.cnts[key]}, s{sTS+g.cnts[key]}, 1")

    def setexec(mask):
        if mask == FULL: a("s_mov_b64 exec, -1")
        elif isinstance(mask, str): a(f"s_mov_b64 exec, {mask}")
        elif mask < 65 or mask in (0xFFFF, 0xF, 0xFF):
            a(f"s_mov_b64 exec, 0x{mask:x}" if mask >= 65 else f"s_mov_b64 exec, {mask}")
        else:
            a(f"s_mov_b32 exec_lo, 0x{mask & 0xFFFFFFFF:x}\ns_mov_b32 exec_hi, 0x{mask >> 32:x}")
    EM4, EM2, EMEV = f"s[{sM4}:{sM4+1}]", f"s[{sM2}:{sM2+1}]", f"s[{sMEV}:{sMEV+1}]"

    def srd(dst, ptr_s, size):
        a(f"s_mov_b32 s{dst}, s{ptr_s}\ns_and_b32 s{dst+1}, s{ptr_s+1}, 0xffff\ns_mov_b32 s{dst+2}, 0x{size:x}\ns_mov_b32 s{dst+3}, 0x20000")

    def mfma(d, A, B, C=None):
        f = lambda x: x if isinstance(x, str) else vr(x, 4)
        c = f(d) if C is None else C
        a(f"v_mfma_f32_16x16x32_bf16 {f(d)}, {f(A)}, {f(B)}, {c}")

    def spin_fail(lbl_retry, sleep=0):
        if sleep: a(f"s_sleep {sleep}")
        a(f"s_sub_u32 s{sBud}, s{sBud}, 1\ns_cbranch_scc0 {lbl_retry}\ns_branch L_abort")
    def interleave(mf, va, start, per=2):
        va = list(va)
        for i, m in enumerate(mf):
            a(m)
            if i >= start:
                for _ in range(per):
                    if va: a(va.pop(0))
        for v in va: a(v)
    def mf(d, A, B, C=None):
        f = lambda x: x if isinstance(x, str) else vr(x, 4)
        return f"v_mfma_f32_16x16x32_bf16 {f(d)}, {f(A)}, {f(B)}, {f(d) if C is None else C}"

    def sent_max(regs, tmp):
        rs = list(regs)
        if len(rs) == 1: return rs[0]
        if len(rs) == 2:
            a(f"v_max_u32 v{tmp}, v{rs[0]}, v{rs[1]}"); rs = []
        else:
            a(f"v_max3_u32 v{tmp}, v{rs[0]}, v{rs[1]}, v{rs[2]}"); rs = rs[3:]
        while len(rs) >= 2:
            a(f"v_max3_u32 v{tmp}, v{tmp}, v{rs[0]}, v{rs[1]}"); rs = rs[2:]
        if rs: a(f"v_max_u32 v{tmp}, v{tmp}, v{rs[0]}")
        return tmp
    def sent_check(regs, tmp, lbl_ok):
        cur = sent_max(regs, tmp)
        a(f"v_cmp_eq_u32 vcc, -1, v{cur}\ns_cbranch_vccz {lbl_ok}")

    g.ool = []
    def store_local(instr):
        if cfg.force_global:
            a(instr + " sc1"); return
        l1 = a.label("stg"); l2 = a.label("std")
        a(f"s_cmp_eq_u32 s{sLocal}, 0\ns_cbranch_scc1 {l1}")
        a(instr)
        a(f"{l2}:")
        g.ool.append(f"{l1}:\n{instr} sc1\ns_branch {l2}")

    def dpp(op, d, s0, s1, ctrl, rm="0xf", bm="0xf"):
        if s1 is None: a(f"{op}_dpp v{d}, v{s0} {ctrl} row_mask:{rm} bank_mask:{bm}")
        else: a(f"{op}_dpp v{d}, v{s0}, v{s1} {ctrl} row_mask:{rm} bank_mask:{bm}")
    def row_reduce(op, v, steps=(8, 4, 2, 1)):
        for n in steps: dpp(op, v, v, v, f"row_ror:{n}")
    def xquad_reduce(op, v, tmp):
        a(f"v_mov_b32 v{tmp}, v{v}\nv_permlane32_swap_b32 v{v}, v{tmp}\n{op} v{v}, v{v}, v{tmp}")
        a(f"v_mov_b32 v{tmp}, v{v}\nv_permlane16_swap_b32 v{v}, v{tmp}\n{op} v{v}, v{v}, v{tmp}")
    def sum4(dst, b, tmp):
        a(f"v_add_f32 v{dst}, v{b}, v{b+1}\nv_add_f32 v{tmp}, v{b+2}, v{b+3}\nv_add_f32 v{dst}, v{dst}, v{tmp}")

    P = sTS
    EARLY = ""
    if cfg.dbg_span:
        EARLY = f"s_memrealtime s[94:95]"
    if cfg.diag:
        EARLY = f"s_memrealtime s[{sTmp2}:{sTmp2+1}]\ns_waitcnt lgkmcnt(0)\ns_mov_b32 s91, s{sTmp2}\ns_memtime s[{sTmp2}:{sTmp2+1}]\ns_waitcnt lgkmcnt(0)\ns_mov_b32 s90, s{sTmp2}"
    a(f"""
    s_cmp_ge_u32 s2, 256
    s_cbranch_scc1 L_end
    {EARLY}
    s_load_dwordx4 s[{P+2}:{P+5}], s[0:1], 0           ; x, K      (72..75)
    s_load_dwordx4 s[{P+6}:{P+9}], s[0:1], 16          ; V, wq     (76..79)
    s_load_dwordx2 s[{P+18}:{P+19}], s[0:1], 88        ; ws        (88..89)
    s_load_dwordx2 s[{P}:{P+1}], s[0:1], 32            ; wo        (70..71)
    s_load_dwordx4 s[{P+10}:{P+13}], s[0:1], 48
    s_load_dwordx4 s[{P+14}:{P+17}], s[0:1], 64
    v_lshrrev_b32 v{vT0}, 6, v0
    v_and_b32 v{vLane}, 63, v0
    v_and_b32 v{vR16}, 15, v0
    v_readfirstlane_b32 s{sW}, v{vT0}
    v_lshrrev_b32 v{vQd}, 4, v{vLane}
    """)
    if cfg.prefetch_code:
        a(f"""
        s_getpc_b64 s[{sTmp2}:{sTmp2+1}]
        L_pfbase:
        v_lshlrev_b32 v{vT1}, 7, v0
        s_mov_b32 s{sB}, (L_codeend - L_pfbase)
        v_cmp_gt_u32 vcc, s{sB}, v{vT1}
        s_and_saveexec_b64 s[{sEx}:{sEx+1}], vcc
        s_cbranch_execz L_nopf
        global_load_dword v{vU+15}, v{vT1}, s[{sTmp2}:{sTmp2+1}]
        L_nopf:
        s_mov_b64 exec, s[{sEx}:{sEx+1}]
        """)
    a(f"""
    s_and_b32 s{sJ}, s2, 7
    s_lshr_b32 s{sM}, s2, 3
    s_and_b32 s{sIdx}, s{sM}, 15
    s_and_b32 s{sRot}, s{sM}, 7
    s_lshl_b32 s{sRot}, s{sRot}, 1
    s_lshr_b32 s{sB}, s{sM}, 4
    s_lshl_b32 s{sB}, s{sB}, 3
    s_add_u32 s{sB}, s{sB}, s{sJ}
    s_lshl_b32 s{sB}, s{sB}, 23
    s_lshl_b32 s{sC}, s{sIdx}, 16
    s_add_u32 s{sKV}, s{sB}, s{sC}
    s_add_u32 s{sKV}, s{sKV}, 0x700000
    s_mul_i32 s{sOown}, s{sJ}, {O_J}
    s_lshr_b32 s{sB}, s{sM}, 4
    s_lshl_b32 s{sB}, s{sB}, 14
    s_add_u32 s{sOown}, s{sOown}, s{sB}
    s_lshl_b32 s{sB}, s{sIdx}, 4
    s_add_u32 s{sOown}, s{sOown}, s{sB}
    s_add_u32 s{sOown}, s{sOown}, {WS_O}
    """)
    XA = vA + 8
    a(f"""
    v_lshrrev_b32 v{vT2}, 1, v{vLane}
    v_lshlrev_b32 v{vT2}, 13, v{vT2}
    v_and_b32 v{vT3}, 1, v{vLane}
    v_lshl_add_u32 v{vT2}, v{vT3}, 4, v{vT2}
    v_lshlrev_b32 v{vT1}, 4, v{vLane}          ; lane*16
    """)
    for i in range(4):
        a(f"""
        v_add_u32 v{vT3}, {4*i}, v{vQd}
        v_xor_b32 v{vT3}, v{vT3}, v{vR16}
        v_lshlrev_b32 v{vT3}, 4, v{vT3}
        v_lshl_add_u32 v{vKs+i}, v{vQd}, 8, v{vT3}
        """)
    a(f"""
    s_lshl_b32 s{sC}, s{sJ}, 11
    s_lshl_b32 s{sD}, s{sIdx}, 7
    s_add_u32 s{sC}, s{sC}, s{sD}
    s_add_u32 s{sXw}, s{sC}, {WS_X}
    s_mov_b32 s{sXr}, {WS_X}
    s_lshl_b32 s{sHb}, s{sJ}, 10
    s_add_u32 s{sHb}, s{sHb}, {WS_H}
    s_lshl_b32 s{sQ2w}, s{sJ}, 11
    s_add_u32 s{sQ2r}, s{sQ2w}, {WS_Q2}
    ; producer m: h = m>>3, c = (m>>1)&3, e0 = 2*(m&1)  ->  c*256 + e0*64 + h*16
    s_lshr_b32 s{sB}, s{sM}, 1
    s_and_b32 s{sB}, s{sB}, 3
    s_lshl_b32 s{sB}, s{sB}, 8
    s_add_u32 s{sQ2w}, s{sQ2r}, s{sB}
    s_and_b32 s{sB}, s{sM}, 1
    s_lshl_b32 s{sB}, s{sB}, 7
    s_add_u32 s{sQ2w}, s{sQ2w}, s{sB}
    s_lshr_b32 s{sB}, s{sM}, 3
    s_lshl_b32 s{sB}, s{sB}, 4
    s_add_u32 s{sQ2w}, s{sQ2w}, s{sB}
    s_lshr_b32 s{sB}, s{sM}, 4
    s_lshl_b32 s{sB}, s{sB}, 10
    s_add_u32 s{sQ2r}, s{sQ2r}, s{sB}
    s_waitcnt lgkmcnt(0)
    """)
    srd(sWQ, P + 8, 0x400000)
    srd(sKS, P + 4, 0x8000000)
    srd(sWS, P + 18, WS_SIZE)
    if cfg.const_tag: a(f"s_mov_b32 s{sT}, 0x12345670")
    else: a(f"s_load_dword s{sT}, s[{P+18}:{P+19}], {WS_EPOCH}")
    SLN = " nt" if cfg.sl_nt else ""
    if cfg.no_clear0: a("s_branch L_clr_done")
    a(f"s_cmp_eq_u32 s{sW}, 2\ns_cbranch_scc0 L_clr_done")
    a(f"""
    v_mov_b32 v{vU}, -1
    v_mov_b32 v{vU+1}, -1
    v_mov_b32 v{vU+2}, -1
    v_mov_b32 v{vU+3}, -1
    v_bfe_u32 v{vT3}, v{vLane}, 1, 1
    v_lshlrev_b32 v{vT3}, 10, v{vT3}
    v_and_b32 v{vT0}, 1, v{vLane}
    v_lshl_add_u32 v{vT3}, v{vT0}, 6, v{vT3}
    v_add_u32 v{vT0}, s{sQ2w}, v{vT3}
    s_cmp_lt_u32 s{sM}, 16
    s_cbranch_scc0 L_clr_B
    v_lshrrev_b32 v{vT3}, 3, v{vLane}
    v_lshlrev_b32 v{vT3}, 14, v{vT3}
    v_and_b32 v{vT1}, 7, v{vLane}
    v_lshl_add_u32 v{vT3}, v{vT1}, 4, v{vT3}
    """)
    setexec(0xFFFFFFFF)
    a(f"v_add_u32 v{vT0}, s{sXw}, v{vT3}")
    setexec((1 << 36) - 1)
    a("s_branch L_clr_st\nL_clr_B:")
    setexec(0xF)
    a(f"""
    s_cmp_ge_u32 s{sIdx}, 14
    s_cbranch_scc1 L_clr_st
    s_lshl_b32 s{sD}, s{sIdx}, 6
    s_add_u32 s{sC}, s{sHb}, s{sD}
    """)
    setexec(0xFF0)
    a(f"""
    v_bfe_u32 v{vT3}, v{vLane}, 3, 1
    v_lshlrev_b32 v{vT3}, 13, v{vT3}
    v_and_b32 v{vT1}, 3, v{vLane}
    v_lshl_add_u32 v{vT3}, v{vT1}, 4, v{vT3}
    v_add_u32 v{vT0}, s{sC}, v{vT3}
    """)
    setexec(0xFFF)
    a("L_clr_st:")
    a(f"buffer_store_dwordx4 {vr(vU,4)}, v{vT0}, {sr(sWS,4)}, 0 offen sc1")
    setexec(FULL)
    a("L_clr_done:")
    srd(sX0, P + 2, 2048)
    a(f"s_cmp_eq_u32 s{sW}, 0\ns_cbranch_scc0 L_nox0")
    a(f"""
    s_mov_b32 m0, {L_X0}
    s_nop 0
    buffer_load_dwordx4 v{vT1}, {sr(sX0,4)}, 0 offen lds
    buffer_load_dwordx4 v{vT1}, {sr(sX0,4)}, 0 offen offset:1024 lds
    L_nox0:
    """)
    if cfg.line_pf and "q" in cfg.pf_which:
        a(f"""
        v_lshrrev_b32 v{vT0}, 3, v{vLane}
        v_lshlrev_b32 v{vT0}, 13, v{vT0}
        v_and_b32 v{vT3}, 7, v{vLane}
        v_lshl_add_u32 v{vT0}, v{vT3}, 7, v{vT0}
        s_lshl_b32 s{sB}, s{sM}, 2
        s_add_u32 s{sB}, s{sB}, s{sW}
        s_lshl_b32 s{sB}, s{sB}, 15
        s_lshl_b32 s{sC}, s{sJ}, 10
        s_add_u32 s{sB}, s{sB}, s{sC}
        """)
        setexec(0xFFFFFFFF)
        a(f"buffer_load_dword v{vJ}, v{vT0}, {sr(sWQ,4)}, s{sB} offen{cfg.pf_pol}")
        setexec(FULL)
    a(f"""
    s_lshl_b32 s{sB}, s{sW}, 20
    s_lshl_b32 s{sC}, s{sJ}, 10
    s_add_u32 s{sB}, s{sB}, s{sC}
    s_lshl_b32 s{sC}, s{sM}, 5
    s_add_u32 s{sB}, s{sB}, s{sC}
    s_lshl_b32 s{sC}, s{sW}, 12
    s_add_u32 s{sC}, s{sC}, {L_WQ}
    """)
    for u in range(4):
        a(f"""
        s_mov_b32 m0, s{sC}
        s_add_u32 s{sC}, s{sC}, 1024
        buffer_load_dwordx4 v{vT2}, {sr(sWQ,4)}, s{sB} offen{SLN} lds
        s_add_u32 s{sB}, s{sB}, {32*8192}
        """)
    def emit_wpf(qWO, qGT, reload_ptrs):
        n = 0
        a(f"s_lshl_b32 s{sA}, s{sM}, 2\ns_add_u32 s{sA}, s{sA}, s{sW}               ; q = 4m + w")
        if reload_ptrs:
            a(f"""
            s_load_dwordx2 s[{qWO}:{qWO+1}], s[0:1], 32
            s_load_dwordx2 s[{qGT}:{qGT+1}], s[0:1], 48
            s_waitcnt lgkmcnt(0)
            s_and_b32 s{qWO+1}, s{qWO+1}, 0xffff
            s_mov_b32 s{qWO+2}, 0x400000
            s_and_b32 s{qGT+1}, s{qGT+1}, 0xffff
            s_mov_b32 s{qGT+2}, {512*1792*2}
            """)
        if "o" in cfg.pf_stream:
            a(f"""
            v_lshlrev_b32 v{vT0}, 7, v{vLane}
            s_lshl_b32 s{sB}, s{sJ}, 19
            s_lshl_b32 s{sC}, s{sA}, 12
            s_add_u32 s{sB}, s{sB}, s{sC}
            """)
            setexec(0xFFFFFFFF)
            a(f"buffer_load_dword v{vJ}, v{vT0}, {sr(qWO,4)}, s{sB} offen{cfg.pf_spol}")
            setexec(FULL); n += 1
        if "g" in cfg.pf_stream or "u" in cfg.pf_stream:
            a(f"""
            v_mul_u32_u24 v{vT0}, 52, v{vLane}
            v_lshrrev_b32 v{vT0}, 8, v{vT0}
            v_mul_u32_u24 v{vT1}, 5, v{vT0}
            v_sub_u32 v{vT1}, v{vLane}, v{vT1}
            v_mul_u32_u24 v{vT0}, 3584, v{vT0}
            v_lshl_add_u32 v{vT0}, v{vT1}, 7, v{vT0}
            s_mul_i32 s{sB}, s{sA}, {4*3584}
            s_mul_i32 s{sC}, s{sJ}, 448
            s_and_b32 s{sC}, s{sC}, 0xffffff80
            s_add_u32 s{sB}, s{sB}, s{sC}
            """)
            setexec((1 << 20) - 1)
            if "g" in cfg.pf_stream:
                a(f"buffer_load_dword v{vJ}, v{vT0}, {sr(qGT,4)}, s{sB} offen{cfg.pf_spol}"); n += 1
            if "u" in cfg.pf_stream:
                a(f"buffer_load_dword v{vJ}, v{vT0}, {sr(sUP,4)}, s{sB} offen{cfg.pf_spol}"); n += 1
            setexec(FULL)
        if "d" in cfg.pf_stream:
            a(f"""
            v_lshlrev_b32 v{vT0}, 7, v{vLane}
            s_min_u32 s{sB}, s{sA}, 111
            s_lshl_b32 s{sB}, s{sB}, 11
            s_mul_i32 s{sC}, s{sJ}, {224*1024}
            s_add_u32 s{sB}, s{sB}, s{sC}
            """)
            setexec(0xFFFF)
            a(f"buffer_load_dword v{vJ}, v{vT0}, {sr(sDN,4)}, s{sB} offen{cfg.pf_spol}")
            setexec(FULL); n += 1
        return n

    def page_off(t, dst):
        a(f"""
        s_add_u32 s{dst}, s{sW}, s{sRot}
        s_add_u32 s{dst}, s{dst}, {4*t}
        s_and_b32 s{dst}, s{dst}, 15
        s_lshl_b32 s{dst}, s{dst}, 12
        s_add_u32 s{dst}, s{dst}, s{sKV}
        """)
    def k_page(t):
        page_off(t, sD)
        a(f"s_lshl_b32 s{sC}, s{sW}, 14\ns_add_u32 s{sC}, s{sC}, {L_K + t*4096}\ns_mov_b32 m0, s{sC}\ns_nop 0")
        for ii in range(4):
            a(f"buffer_load_dwordx4 v{vKs+ii}, {sr(sKS,4)}, s{sD} offen offset:{ii*1024} nt lds")
    nKpA = cfg.nKA // 4
    for t in range(cfg.nKb1): k_page(t)
    nPFe = 0
    if cfg.pf_stream and cfg.pf_early:
        srd(sVS, P, 0x400000)
        srd(sOUT, P + 10, 512 * 1792 * 2)
        srd(sUP, P + 12, 512 * 1792 * 2)
        srd(sDN, P + 14, 1792 * 512 * 2)
        nPFe = emit_wpf(sVS, sOUT, False)
    ts("start")
    if cfg.ts_issue: ts("issued")

    srd(sVS, P + 6, 0x8000000)
    srd(sUP, P + 12, 512 * 1792 * 2)
    srd(sDN, P + 14, 1792 * 512 * 2)
    srd(sOUT, P + 16, 2048)
    a(f"""
    s_cmp_lt_u32 s{sM}, 16
    s_cselect_b32 s{sW2}, s{P}, s{P+10}
    s_cselect_b32 s{sW2+1}, s{P+1}, s{P+11}
    s_mov_b32 s{sW2+2}, {512*1792*2}
    s_cselect_b32 s{sW2+2}, 0x400000, s{sW2+2}
    s_and_b32 s{sW2+1}, s{sW2+1}, 0xffff
    s_mov_b32 s{sW2+3}, 0x20000
    s_mov_b32 s{sBud}, {cfg.budget}
    s_getreg_b32 s{sXcc}, hwreg(HW_REG_XCC_ID, 0, 4)
    s_mov_b32 s{sMDIAG}, 0x00ff00ff
    s_mov_b32 s{sMDIAG+1}, 0xff00ff00
    s_mov_b32 s{sM4}, 0x000f000f
    s_mov_b32 s{sM4+1}, 0x000f000f
    s_mov_b32 s{sM2}, 0x00030003
    s_mov_b32 s{sM2+1}, 0x00030003
    s_mov_b32 s{sMN1}, 0x00020002
    s_mov_b32 s{sMN1+1}, 0x00020002
    s_mov_b32 s{sMEV}, 0x55555555
    s_mov_b32 s{sMEV+1}, 0x55555555
    s_mov_b32 s{sL}, 0
    s_mul_i32 s{sOcons}, s{sJ}, {O_J}
    s_lshl_b32 s{sB}, s{sW}, 12
    s_add_u32 s{sOcons}, s{sOcons}, s{sB}
    s_add_u32 s{sOcons}, s{sOcons}, {WS_O}
    """)
    for i in range(4): a(f"v_mov_b32 v{vOnes+i}, 0x3f803f80")
    for i in range(16): a(f"v_mov_b32 v{vQ+i}, 0")
    for i in range(8): a(f"v_mov_b32 v{vHop+i}, 0")
    a(f"v_mov_b32 v{vQ1a}, 0\nv_mov_b32 v{vQ1d}, 0\nv_mov_b32 v{vQ1d+1}, 0")
    h3 = vU; qh = vU + 1; ql = vU + 2
    a(f"""
    v_and_b32 v{h3}, 3, v{vR16}
    v_lshrrev_b32 v{qh}, 1, v{vQd}
    v_and_b32 v{ql}, 1, v{vQd}
    v_and_b32 v{vT0}, 7, v{vR16}
    v_lshlrev_b32 v{vT0}, 11, v{vT0}
    v_lshrrev_b32 v{vT1}, 3, v{vR16}
    v_lshl_add_u32 v{vT0}, v{vT1}, 6, v{vT0}
    v_lshl_add_u32 v{vaX}, v{vQd}, 4, v{vT0}
    v_lshrrev_b32 v{vT0}, 3, v{vLane}
    v_and_b32 v{vT1}, 2, v{vT0}
    v_and_b32 v{vT2}, 7, v{vLane}
    v_xor_b32 v{vT1}, v{vT1}, v{vT2}
    v_lshlrev_b32 v{vT1}, 4, v{vT1}
    v_lshl_add_u32 v{vT0}, v{vT0}, 11, v{vT1}
    s_lshl_b32 s{sB}, s{sW}, 9
    v_add_u32 v{vaXg}, s{sB}, v{vT0}
    v_and_b32 v{vT0}, 7, v{vR16}
    v_lshrrev_b32 v{vT1}, 3, v{vR16}
    v_lshl_add_u32 v{vT1}, v{vT1}, 2, v{vQd}
    v_and_b32 v{vT2}, 2, v{vT0}
    v_xor_b32 v{vT1}, v{vT1}, v{vT2}
    v_lshlrev_b32 v{vT1}, 4, v{vT1}
    v_lshl_add_u32 v{vT0}, v{vT0}, 7, v{vT1}
    s_lshl_b32 s{sXI}, s{sW}, 12
    s_add_u32 s{sXI}, s{sXI}, {L_XI}
    v_add_u32 v{vaXr}, s{sXI}, v{vT0}
    v_lshlrev_b32 v{vaO0}, 4, v{vLane}
    v_add_u32 v{vaO1}, 16384, v{vaO0}
    v_lshl_add_u32 v{vT0}, v{vQd}, 2, v{vR16}
    v_and_b32 v{vT0}, 15, v{vT0}
    v_lshlrev_b32 v{vT0}, 4, v{vT0}
    s_mul_i32 s{sB}, s{sW}, 3840
    s_sub_u32 s{sB}, {O_STATS}, s{sB}
    v_add_u32 v{vaS0}, s{sB}, v{vT0}
    v_add_u32 v{vaS1}, 1024, v{vaS0}
    v_lshlrev_b32 v{vT0}, 6, v{vQd}
    v_lshl_add_u32 v{vaQ2}, v{h3}, 4, v{vT0}
    v_lshlrev_b32 v{vT0}, 10, v{ql}
    v_lshrrev_b32 v{vT1}, 3, v{vR16}
    v_lshl_add_u32 v{vT0}, v{vT1}, 6, v{vT0}
    v_and_b32 v{vT1}, 7, v{vR16}
    v_lshl_add_u32 v{vaStQ}, v{vT1}, 1, v{vT0}
    v_lshlrev_b32 v{vT0}, 12, v{h3}
    v_lshl_add_u32 v{vT0}, v{vQd}, 10, v{vT0}
    v_bfe_u32 v{vT1}, v{vLane}, 2, 2
    v_lshl_add_u32 v{vaClrO}, v{vT1}, 8, v{vT0}
    v_and_b32 v{vT0}, 1, v{vR16}
    v_lshlrev_b32 v{vT0}, 5, v{vT0}
    v_lshl_add_u32 v{vT0}, v{qh}, 6, v{vT0}
    v_lshl_add_u32 v{vT0}, v{ql}, 4, v{vT0}
    s_lshl_b32 s{sB}, s{sW}, 7
    v_add_u32 v{vaH}, s{sB}, v{vT0}
    v_lshlrev_b32 v{vT0}, 6, v{vQd}
    v_lshl_add_u32 v{vT0}, v{h3}, 4, v{vT0}
    v_add_u32 v{vaPr}, {L_PBUF}, v{vT0}
    v_lshrrev_b32 v{vT1}, 2, v{vR16}
    v_lshl_add_u32 v{vT1}, v{vT1}, 9, v{vaPr}
    s_lshr_b32 s{sB}, s{sW}, 1
    s_lshl_b32 s{sB}, s{sB}, 8
    s_and_b32 s{sC}, s{sW}, 1
    s_lshl_b32 s{sC}, s{sC}, 3
    s_add_u32 s{sB}, s{sB}, s{sC}
    v_add_u32 v{vaPw}, s{sB}, v{vT1}
    v_lshlrev_b32 v{vT0}, 4, v{h3}
    v_add_u32 v{vaSm}, {L_SMAX}, v{vT0}
    s_lshl_b32 s{sB}, s{sW}, 2
    v_add_u32 v{vaSmW}, s{sB}, v{vaSm}
    v_lshlrev_b32 v{vT0}, 4, v{vLane}
    v_add_u32 v{vaRedW}, s{sB}, v{vT0}
    v_and_b32 v{vT1}, 1, v{vR16}
    v_lshl_add_u32 v{vT1}, v{qh}, 1, v{vT1}
    v_lshlrev_b32 v{vT1}, 4, v{vT1}
    v_add_u32 v{vaRedZ}, s{sB}, v{vT1}
    v_lshl_add_u32 v{vT0}, v{ql}, 5, v{vR16}
    v_lshlrev_b32 v{vaFinW}, 4, v{vT0}
    v_lshlrev_b32 v{vaFinZ}, 5, v{ql}
    v_lshlrev_b32 v{vT0}, 9, v{ql}
    v_add_u32 v{vaFinQZ}, 256, v{vT0}
    v_lshlrev_b32 v{vaFinO}, 4, v{vLane}
    v_lshlrev_b32 v{vT0}, 5, v{ql}
    v_lshl_add_u32 v{vaStH}, v{vR16}, 1, v{vT0}
    v_lshlrev_b32 v{vT0}, 6, v{ql}
    v_lshl_add_u32 v{vT0}, v{qh}, 5, v{vT0}
    v_lshl_add_u32 v{vaStX}, v{vR16}, 1, v{vT0}
    v_lshlrev_b32 v{vT0}, 12, v{vR16}
    v_lshl_add_u32 v{vT0}, v{vQd}, 8, v{vT0}
    s_lshl_b32 s{sB}, s{sW}, 10
    v_add_u32 v{vaStO}, s{sB}, v{vT0}
    s_lshr_b32 s{sB}, s{sM}, 4
    s_mul_i32 s{sB}, s{sB}, 15360
    s_sub_u32 s{sB}, {O_STATS}, s{sB}
    v_lshlrev_b32 v{vT0}, 8, v{vLane}
    v_add_u32 v{vaStS}, s{sB}, v{vT0}
    """)
    a(f"s_lshl_b32 s{sB}, s{sW}, 14\ns_add_u32 s{sB}, s{sB}, {L_K}")
    for c in range(4):
        a(f"""
        v_add_u32 v{vT0}, {4*c}, v{vQd}
        v_xor_b32 v{vT0}, v{vT0}, v{vR16}
        v_lshlrev_b32 v{vT0}, 4, v{vT0}
        v_lshl_add_u32 v{vT0}, v{vR16}, 8, v{vT0}
        v_add_u32 v{vKr+c}, s{sB}, v{vT0}
        """)
    for e in range(2):
        a(f"""
        v_add_u32 v{vT1}, {4*e}, v{vQd}
        v_lshrrev_b32 v{vT2}, 1, v{vR16}
        v_xor_b32 v{vT1}, v{vT1}, v{vT2}
        v_lshlrev_b32 v{vT1}, 1, v{vT1}
        v_and_b32 v{vT2}, 1, v{vR16}
        v_or_b32 v{vT1}, v{vT1}, v{vT2}
        v_lshlrev_b32 v{vT1}, 4, v{vT1}
        v_lshl_add_u32 v{vVs+e}, v{vQd}, 8, v{vT1}
        """)
    for nt in range(2):
        a(f"""
        v_lshrrev_b32 v{vT1}, 2, v{vR16}
        v_lshl_add_u32 v{vT0}, v{vQd}, 2, v{vT1}
        v_and_b32 v{vT2}, 7, v{vT0}
        s_lshl_b32 s{sB}, s{sW}, 1
        s_add_u32 s{sB}, s{sB}, {nt}
        v_xor_b32 v{vT2}, s{sB}, v{vT2}
        v_lshlrev_b32 v{vT2}, 5, v{vT2}
        v_lshl_add_u32 v{vT0}, v{vT0}, 8, v{vT2}
        v_lshl_add_u32 v{vT0}, v{h3}, 3, v{vT0}
        v_add_u32 v{vVr+nt}, {L_V}, v{vT0}
        """)
    for i in range(16): a(f"v_mov_b32 v{XA+i}, 0")
    ts("setup")
    a(f"s_waitcnt vmcnt({4*cfg.nKb1 + nPFe})")
    ts("wq_landed")
    for t in range(cfg.nKb1, nKpA): k_page(t)

    def tr_base(dst, rowbytes, rowmul, sadd, const):
        sh = rowbytes.bit_length() - 1; rm = rowmul.bit_length() - 1
        a(f"""
        v_lshrrev_b32 v{vT1}, 2, v{vR16}
        v_lshl_add_u32 v{vT1}, v{vQd}, {rm}, v{vT1}
        v_lshlrev_b32 v{vT1}, {sh}, v{vT1}
        v_and_b32 v{vT2}, 3, v{vR16}
        v_lshl_add_u32 v{vT1}, v{vT2}, 3, v{vT1}
        v_add_u32 v{vT1}, s{sadd}, v{vT1}
        v_add_u32 v{dst}, {const}, v{vT1}
        """)

    def ln_stats(s1, s2, mean, rstd):
        a(f"""
        v_mul_f32 v{mean}, {f2u(1.0/512):#x}, v{s1}
        v_mul_f32 v{s2}, {f2u(1.0/512):#x}, v{s2}
        v_fma_f32 v{s2}, -v{mean}, v{mean}, v{s2}
        v_max_f32 v{s2}, 0, v{s2}
        v_add_f32 v{s2}, {f2u(1e-5):#x}, v{s2}
        v_rsq_f32 v{rstd}, v{s2}
        """)
    def sum4r(b):
        a(f"v_add_f32 v{b}, v{b}, v{b+1}\nv_add_f32 v{b+2}, v{b+2}, v{b+3}\nv_add_f32 v{b}, v{b}, v{b+2}")

    def stats_valu(z):
        L = [f"v_add_f32 v{z}, v{vAcc+8}, v{vAcc+9}", f"v_add_f32 v{vT3}, v{vAcc+10}, v{vAcc+11}", f"v_add_f32 v{z}, v{z}, v{vT3}",
             f"v_cndmask_b32 v{z}, 0, v{z}, s[{sMDIAG}:{sMDIAG+1}]"]
        for n in (8, 4, 2, 1):
            L.append(f"v_add_f32_dpp v{z}, v{z}, v{z} row_ror:{n} row_mask:0xf bank_mask:0xf")
        L += [f"v_add_f32 v{z+1}, v{vAcc+12}, v{vAcc+13}", f"v_add_f32 v{vT3}, v{vAcc+14}, v{vAcc+15}", f"v_add_f32 v{z+1}, v{z+1}, v{vT3}",
              f"v_cndmask_b32 v{z}, v{z+1}, v{z}, s[{sMN1}:{sMN1+1}]"]
        return L
    def stats_mf(X):
        return [mf(vAcc + 8, X + 4*u, X + 4*u, "0" if u == 0 else None) for u in range(4)] + \
               [mf(vAcc + 12, X + 4*u, vOnes, "0" if u == 0 else None) for u in range(4)]

    def q_core(X):
        M = stats_mf(X) + [mf(vAcc, X + 4*u, ar(aWq + 4*u, 4), "0" if u == 0 else None) for u in range(4)]
        interleave(M, stats_valu(vU), 8, 2)
        sum4(vU + 2, vAcc, vT3)
        a(f"""
        v_permlane16_swap_b32 v{vU+2}, v{vU}
        v_add_f32 v{vU}, v{vU}, v{vU+2}
        ds_write_b32 v{vaRedW}, v{vU} offset:{R_Q}
        s_waitcnt lgkmcnt(0)
        s_barrier
        """)
    def q_final(first):
        lab = a.label("qf")
        a(f"s_cmp_eq_u32 s{sW}, 0\ns_cbranch_scc0 {lab}")
        setexec(0xFFFFFFFF)
        a(f"""
        ds_read_b128 {vr(vU,4)}, v{vaFinW} offset:{R_Q}
        ds_read_b128 {vr(vU+4,4)}, v{vaFinQZ} offset:{R_Q}
        ds_read_b128 {vr(vU+8,4)}, v{vaFinQZ} offset:{R_Q+16}
        """)
        if first:
            a(f"ds_read_b128 {vr(vU+12,4)}, v{vaFinW} offset:{R_COL}")
        a("s_waitcnt lgkmcnt(0)")
        if first:
            sum4r(vU + 12); a(f"v_mov_b32 v{vCs}, v{vU+12}")
        sum4r(vU + 4); sum4r(vU + 8); sum4r(vU)
        ln_stats(vU + 4, vU + 8, vU + 5, vU + 6)
        a(f"""
        v_fma_f32 v{vU}, -v{vU+5}, v{vCs}, v{vU}
        v_mul_f32 v{vU}, v{vU}, v{vU+6}
        """)
        dpp("v_mov_b32", vU + 1, vU, None, "quad_perm:[1,0,3,2]")
        a(f"v_cvt_pk_bf16_f32 v{vU+2}, v{vU}, v{vU+1}")
        if first:
            a(f"""
            v_mov_b32 v{vQ1d}, v{vU+2}
            v_mov_b32 v{vQ1d+1}, s{sTX}
            s_lshl_b32 s{sB}, s{sJ}, 12
            s_lshl_b32 s{sC}, s{sM}, 7
            s_add_u32 s{sB}, s{sB}, s{sC}
            s_add_u32 s{sB}, s{sB}, {WS_Q1}
            v_lshlrev_b32 v{vT0}, 1, v{vaStH}
            v_add_u32 v{vQ1a}, s{sB}, v{vT0}
            """)
            setexec(0x55555555)
            a(f"buffer_store_dwordx2 {vr(vQ1d,2)}, v{vQ1a}, {sr(sWS,4)}, 0 offen" + (" sc1" if cfg.force_global else ""))
        else:
            a(f"v_min_u32 v{vU+2}, 0xfffffffe, v{vU+2}")
            setexec(0x55555555)
            store_local(f"buffer_store_dword v{vU+2}, v{vaStQ}, {sr(sWS,4)}, s{sQ2w} offen")
        setexec(FULL)
        a(f"{lab}:")

    def s_qk_max():
        for c in range(4):
            for t in range(4):
                mfma(vS + 4*t, ar(aK + 16*t + 4*c, 4), vQ + 4*c, "0" if c == 0 else None)
        for t in range(1, 4):
            for r in range(4):
                dpp("v_mov_b32", vS + r, vS + 4*t + r, None, f"row_shr:{4*t}", bm=f"0x{1<<t:x}")
        a(f"v_max3_f32 v{vU}, v{vS}, v{vS+1}, v{vS+2}\nv_max_f32 v{vU}, v{vU}, v{vS+3}")
        row_reduce("v_max_f32", vU, (8, 4))
        xquad_reduce("v_max_f32", vU, vT0)
        setexec(0xF)
        a(f"ds_write_b32 v{vaSmW}, v{vU}")
        setexec(FULL)
        a("s_waitcnt lgkmcnt(0)\ns_barrier")
    def s_exp_p():
        a(f"""
        ds_read_b128 {vr(vU+4,4)}, v{vaSm}
        s_mov_b32 s{sB}, {f2u(C_SCALE):#x}
        s_waitcnt lgkmcnt(0)
        v_max3_f32 v{vU}, v{vU+4}, v{vU+5}, v{vU+6}
        v_max_f32 v{vU}, v{vU}, v{vU+7}
        v_mul_f32 v{vMc}, s{sB}, v{vU}
        """)
        for i in range(4): a(f"v_fma_f32 v{vS+i}, v{vS+i}, s{sB}, -v{vMc}")
        for i in range(4): a(f"v_exp_f32 v{vS+i}, v{vS+i}")
        a(f"""
        v_cvt_pk_bf16_f32 v{vU+2}, v{vS}, v{vS+1}
        v_cvt_pk_bf16_f32 v{vU+3}, v{vS+2}, v{vS+3}
        ds_write_b64 v{vaPw}, {vr(vU+2,2)}
        v_add_f32 v{vU}, v{vS}, v{vS+1}
        v_add_f32 v{vU+1}, v{vS+2}, v{vS+3}
        v_add_f32 v{vU}, v{vU}, v{vU+1}
        """)
        row_reduce("v_add_f32", vU, (8, 4))
        xquad_reduce("v_add_f32", vU, vT0)
        setexec(0xF)
        a(f"ds_write_b32 v{vaSmW}, v{vU} offset:{L_LSUM-L_SMAX}")
        setexec(FULL)
        a("s_waitcnt lgkmcnt(0)\ns_barrier")
        for blk in range(8):
            a(f"ds_read_b128 {vr(vP+4*blk,4)}, v{vaPr} offset:{blk*256}")
    def s_stats_prep():
        lab = a.label("st")
        a(f"s_cmp_eq_u32 s{sW}, 3\ns_cbranch_scc0 {lab}")
        a(f"""
        ds_read_b128 {vr(vU+4,4)}, v{vaSm} offset:{L_LSUM-L_SMAX}
        s_add_u32 s{sB}, s{sT}, s{sL}
        s_add_u32 s{sB}, s{sB}, 1
        v_mov_b32 v{vMc+2}, s{sB}
        s_waitcnt lgkmcnt(0)
        """)
        sum4r(vU + 4)
        a(f"v_mov_b32 v{vMc+1}, v{vU+4}")
        a(f"{lab}:")
    def s_stats_store(wait):
        lab = a.label("ss")
        a(f"s_cmp_eq_u32 s{sW}, 3\ns_cbranch_scc0 {lab}")
        if wait is not None: a(f"s_waitcnt vmcnt({wait})")
        setexec(0xF)
        store_local(f"buffer_store_dwordx4 {vr(vMc,4)}, v{vaStS}, {sr(sWS,4)}, s{sOown} offen")
        setexec(FULL)
        a(f"{lab}:")
    accO = vAcc
    def v_tr(blk):
        t, p = blk >> 1, blk & 1
        for nt in range(2):
            a(f"ds_read_b64_tr_b16 {ar(aV+8*blk+4*nt,2)}, v{vVr+nt} offset:{(4*t+2*p)*4096}")
            a(f"ds_read_b64_tr_b16 {ar(aV+8*blk+4*nt+2,2)}, v{vVr+nt} offset:{(4*t+2*p+1)*4096}")
    def pv(blks, first):
        for blk in blks:
            for nt in range(2):
                mfma(accO + 4*nt, ar(aV + 8*blk + 4*nt, 4), vP + 4*blk, "0" if (first and blk == blks[0]) else None)
    def s_out():
        for i in range(4):
            a(f"v_cvt_pk_bf16_f32 v{vU+i}, v{accO+2*i}, v{accO+2*i+1}")
        for i in range(4):
            a(f"v_min_u32 v{vU+i}, 0xfffffffe, v{vU+i}")
        setexec(EM4)
        store_local(f"buffer_store_dwordx4 {vr(vU,4)}, v{vaStO}, {sr(sWS,4)}, s{sOown} offen")
        setexec(FULL)

    a(f"s_lshl_b32 s{sB}, s{sW}, 12")
    tr_base(vT0, 32, 8, sB, L_WQ)
    for u in range(4):
        a(f"ds_read_b64_tr_b16 {ar(aWq+4*u,2)}, v{vT0} offset:{u*1024}")
        a(f"ds_read_b64_tr_b16 {ar(aWq+4*u+2,2)}, v{vT0} offset:{u*1024+128}")
    a(f"""
    v_lshrrev_b32 v{vT0}, 3, v{vR16}
    v_lshlrev_b32 v{vT0}, 10, v{vT0}
    v_lshl_add_u32 v{vT0}, v{vQd}, 4, v{vT0}
    s_lshl_b32 s{sB}, s{sW}, 8
    v_add_u32 v{vT0}, s{sB}, v{vT0}
    s_barrier
    """)
    setexec(0x0101010101010101)
    for u in range(4):
        a(f"ds_read_b128 {vr(XA+4*u,4)}, v{vT0} offset:{L_X0+u*64}")
    setexec(FULL)
    a(f"""
    s_waitcnt lgkmcnt(0)
    s_add_u32 s{sT}, s{sT}, 0x9e3779b0
    s_and_b32 s{sT}, s{sT}, 0xfffffff0
    s_or_b32 s{sTX}, s{sT}, s{sXcc}
    """)
    for u in range(4): mfma(vS, vOnes, ar(aWq + 4*u, 4), "0" if u == 0 else None)
    a(f"ds_write_b32 v{vaRedW}, v{vS} offset:{R_COL}")
    q_core(XA)
    q_final(True)
    a("s_barrier")
    ts("q1_pub")

    def v_group(t):
        page_off(t, sD)
        a(f"s_lshl_b32 s{sC}, s{sW}, 12\ns_add_u32 s{sC}, s{sC}, {L_V + t*16384}\ns_mov_b32 m0, s{sC}\ns_nop 0")
        for ii in range(4):
            a(f"buffer_load_dwordx4 v{vVs+(ii&1)}, {sr(sVS,4)}, s{sD} offen offset:{ii*1024} nt lds")
    def pace(): a(f"s_waitcnt vmcnt({cfg.pace})")
    for t in range(nKpA, 4):
        pace(); k_page(t)
    a(f"""
    v_lshrrev_b32 v{vT0}, 2, v{vLane}
    v_lshlrev_b32 v{vT0}, 7, v{vT0}
    v_and_b32 v{vT1}, 3, v{vLane}
    v_lshl_add_u32 v{vKs}, v{vT1}, 4, v{vT0}        ; (vKs is free once K is issued)
    s_lshl_b32 s{sA}, s{sJ}, 12
    s_lshr_b32 s{sB}, s{sM}, 4
    s_lshl_b32 s{sB}, s{sB}, 6
    s_add_u32 s{sA}, s{sA}, s{sB}
    s_add_u32 s{sA}, s{sA}, {WS_Q1}
    v_and_b32 v{vT0}, 3, v{vR16}
    v_lshlrev_b32 v{vT0}, 9, v{vT0}
    v_lshrrev_b32 v{vT1}, 1, v{vQd}
    v_lshl_add_u32 v{vT0}, v{vT1}, 6, v{vT0}
    v_and_b32 v{vT1}, 1, v{vQd}
    v_lshl_add_u32 v{vKs+1}, v{vT1}, 5, v{vT0}
    v_lshlrev_b32 v{vKs+2}, 5, v{vLane}
    """)
    def q1_dma(img):
        a(f"""
        s_mov_b32 m0, {L_QG + img*2048}
        s_add_u32 s{sB}, s{sA}, 2048
        buffer_load_dwordx4 v{vKs}, {sr(sWS,4)}, s{sA} offen sc1 lds
        s_mov_b32 m0, {L_QG + img*2048 + 1024}
        s_nop 0
        buffer_load_dwordx4 v{vKs}, {sr(sWS,4)}, s{sB} offen sc1 lds
        """)
    def w0(fn):
        lab = a.label("w0")
        a(f"s_cmp_eq_u32 s{sW}, 0\ns_cbranch_scc0 {lab}")
        fn()
        a(f"{lab}:")
    def q1_dup():
        setexec(0x55555555)
        a(f"buffer_store_dwordx2 {vr(vQ1d,2)}, v{vQ1a}, {sr(sWS,4)}, 0 offen sc1")
        setexec(FULL)
    g.q1_dup = lambda: w0(q1_dup)
    pace(); v_group(0)
    a("s_waitcnt vmcnt(4)")
    for t in range(4):
        for c in range(4):
            a(f"ds_read_b128 {ar(aK+16*t+4*c,4)}, v{vKr+c} offset:{t*4096}")
    ts("k_landed")
    w0(lambda: q1_dma(0))
    v_group(1)
    a("s_waitcnt vmcnt(4)")
    v_group(2)
    vG = vA
    def q1_tags(img):
        a(f"""
        ds_read_b128 {vr(vG,4)}, v{vKs+2} offset:{L_QG + img*2048}
        ds_read_b128 {vr(vG+4,4)}, v{vKs+2} offset:{L_QG + img*2048 + 16}
        s_waitcnt lgkmcnt(0)
        v_xor_b32 v{vT1}, s{sTX}, v{vG+1}
        v_xor_b32 v{vT2}, s{sTX}, v{vG+3}
        v_xor_b32 v{vT3}, s{sTX}, v{vG+5}
        v_xor_b32 v{vT0}, s{sTX}, v{vG+7}
        v_or3_b32 v{vT1}, v{vT1}, v{vT2}, v{vT3}
        v_or_b32 v{vT1}, v{vT1}, v{vT0}
        v_cmp_lt_u32 vcc, 15, v{vT1}
        """)
    a("s_barrier")
    q1_tags(0)
    a(f"s_mov_b32 s{sC}, {L_QG}\ns_cbranch_vccz L_q1ok")
    w0(lambda: (q1_dma(1), a("s_waitcnt vmcnt(0)")))
    a("s_barrier")
    q1_tags(1)
    a(f"s_mov_b32 s{sC}, {L_QG + 2048}\ns_cbranch_vccz L_q1ok")
    a("L_q1retry:")
    a(f"s_sub_u32 s{sBud}, s{sBud}, 1\ns_cbranch_scc1 L_abort\ns_barrier")
    w0(lambda: (q1_dup(), q1_dma(0), a("s_waitcnt vmcnt(0)")))
    a("s_barrier")
    q1_tags(0)
    a(f"s_mov_b32 s{sC}, {L_QG}\ns_cbranch_vccnz L_q1retry")
    a("L_q1ok:")
    a(f"""
    v_cmp_ne_u32 vcc, 0, v{vT1}
    v_add_u32 v{vT0}, s{sC}, v{vKs+1}
    s_cmp_eq_u64 vcc, 0
    s_cselect_b32 s{sLocal}, 1, 0
    """)
    setexec(EM4)
    for c in range(4):
        a(f"ds_read2_b32 {vr(vQ+4*c,2)}, v{vT0} offset0:{c*32} offset1:{c*32+2}")
        a(f"ds_read2_b32 {vr(vQ+4*c+2,2)}, v{vT0} offset0:{c*32+4} offset1:{c*32+6}")
    setexec(FULL)
    lab = a.label("nl")
    a(f"s_cmp_eq_u32 s{sLocal}, 0\ns_cbranch_scc0 {lab}")
    g.q1_dup()
    a(f"{lab}:")
    a("s_waitcnt lgkmcnt(0)")
    ts("q1_got")
    s_qk_max()
    ts("s1_max")
    lab = a.label("c0")
    a(f"""
    s_waitcnt vmcnt(4)
    s_cmp_eq_u32 s{sW}, 3
    s_cbranch_scc0 {lab}
    v_mov_b32 v{vU+8}, -1
    v_mov_b32 v{vU+9}, -1
    v_mov_b32 v{vU+10}, -1
    v_mov_b32 v{vU+11}, -1
    """)
    store_local(f"buffer_store_dwordx4 {vr(vU+8,4)}, v{vaClrO}, {sr(sWS,4)}, s{sOown} offen")
    a(f"{lab}:")
    if cfg.warm:
        lab = a.label("ws")
        a(f"s_cmp_lt_u32 s{sM}, 16\ns_cbranch_scc0 {lab}")
        a(f"buffer_load_dword v{vJ}, v{vaS0}, {sr(sWS,4)}, s{sOcons} offen sc1")
        a(f"buffer_load_dword v{vJ}, v{vaS1}, {sr(sWS,4)}, s{sOcons} offen sc1")
        a(f"{lab}:")
    v_group(3)
    nPF = emit_wpf(sKS, sWQ, True) if (cfg.pf_stream and not cfg.pf_early) else 0

    def s1_tail(nW=0, maybe_none=False):
        def wait_v(base):
            if nW and maybe_none:
                l1 = a.label("wv"); l2 = a.label("wv")
                a(f"s_cmp_ge_u32 s{sIdx}, 14\ns_cbranch_scc1 {l1}\ns_waitcnt vmcnt({base + nW})\ns_branch {l2}\n{l1}:\ns_waitcnt vmcnt({base})\n{l2}:")
            else:
                a(f"s_waitcnt vmcnt({base + nW})")
        s_exp_p()
        s_stats_prep()
        blks = [0, 1, 2, 3]
        for blk in blks: v_tr(blk)
        a("s_waitcnt lgkmcnt(0)")
        pv(blks, True)
        for t in (2, 3):
            wait_v(4*(3-t))
            a("s_barrier")
            if t == 3: ts("v_landed")
            blks = [2*t, 2*t + 1]
            for blk in blks: v_tr(blk)
            a("s_waitcnt lgkmcnt(0)")
            pv(blks, False)
        s_out()
        s_stats_store(None)
        lab = a.label("c1")
        a(f"""
        s_cmp_eq_u32 s{sW}, 0
        s_cbranch_scc0 {lab}
        v_mov_b32 v{vU+8}, -1
        v_mov_b32 v{vU+9}, -1
        v_mov_b32 v{vU+10}, -1
        v_mov_b32 v{vU+11}, -1
        s_add_u32 s{sB}, s{sOown}, {O_L}
        """)
        store_local(f"buffer_store_dwordx4 {vr(vU+8,4)}, v{vaClrO}, {sr(sWS,4)}, s{sB} offen")
        q1_dup()
        a(f"{lab}:")
        ts("s1_pub")

    def x_poll(sbase, dst, sleep):
        l = a.label("xp"); ok = a.label("xok")
        if cfg.sleep_x0: a(f"s_sleep {cfg.sleep_x0}")
        a(f"{l}:")
        cnt("n_x")
        for u in range(4):
            if u == 0: a(f"s_mov_b32 m0, s{sXI}\ns_nop 0")
            else: a(f"s_add_u32 s{sB}, s{sXI}, {u*(1024-128)}\ns_mov_b32 m0, s{sB}\ns_nop 0")
            a(f"buffer_load_dwordx4 v{vaXg}, {sr(sWS,4)}, s{sbase} offen offset:{u*128} sc1 lds")
        a("s_waitcnt vmcnt(0)")
        for u in range(4):
            a(f"ds_read_b128 {vr(dst+4*u,4)}, v{vaXr} offset:{u*1024}")
        a("s_waitcnt lgkmcnt(0)")
        sent_check([dst+i for i in range(16)], vT0, ok)
        spin_fail(l, sleep)
        a(f"{ok}:")

    def warm_q2():
        if not cfg.warm: return
        a(f"s_lshl_b32 s{sB}, s{sJ}, 11\ns_add_u32 s{sB}, s{sB}, {WS_Q2}\nv_lshlrev_b32 v{vT0}, 7, v{vLane}")
        setexec(0xFFFF)
        a(f"buffer_load_dword v{vJ}, v{vT0}, {sr(sWS,4)}, s{sB} offen sc1")
        setexec(FULL)
    def warm_o(dl, data=True):
        if not cfg.warm: return
        a(f"s_add_u32 s{sB}, s{sOcons}, {dl*O_L}")
        if data:
            a(f"""
            v_and_b32 v{vT0}, 31, v{vLane}
            v_lshlrev_b32 v{vT0}, 7, v{vT0}
            v_lshrrev_b32 v{vT1}, 5, v{vLane}
            v_lshl_add_u32 v{vT0}, v{vT1}, 14, v{vT0}
            buffer_load_dword v{vJ}, v{vT0}, {sr(sWS,4)}, s{sB} offen sc1
            """)
        a(f"buffer_load_dword v{vJ}, v{vaS0}, {sr(sWS,4)}, s{sB} offen sc1")
        a(f"buffer_load_dword v{vJ}, v{vaS1}, {sr(sWS,4)}, s{sB} offen sc1")

    def tag_check_all():
        l = a.label("tc"); ok = a.label("tcok")
        a(f"""
        s_lshl_b32 s{sB}, s{sW}, 13
        s_add_u32 s{sB}, s{sB}, {WS_Q1+4}
        v_lshlrev_b32 v{vT0}, 7, v{vLane}
        {l}:
        buffer_load_dword v{vT1}, v{vT0}, {sr(sWS,4)}, s{sB} offen sc1
        s_waitcnt vmcnt(0)
        v_xor_b32 v{vT1}, s{sT}, v{vT1}
        v_cmp_lt_u32 vcc, 15, v{vT1}
        s_cbranch_vccz {ok}
        """)
        spin_fail(l, 2)
        a(f"{ok}:")

    def line_final(red):
        a(f"""
        ds_read_b128 {vr(vU,4)}, v{vaFinO} offset:{red}
        v_mov_b32 v{vT0}, 0
        v_mov_b32 v{vT1}, s{sDBtag}
        s_waitcnt lgkmcnt(0)
        v_add_f32 v{vU}, v{vU}, v{vU+1}
        v_add_f32 v{vU+2}, v{vU+2}, v{vU+3}
        v_add_f32 v{vU}, v{vU}, v{vResF}
        v_add_f32 v{vResF}, v{vU}, v{vU+2}
        """)
        dpp("v_mov_b32", vU + 1, vResF, None, "quad_perm:[1,0,3,2]")
        a(f"v_cvt_pk_bf16_f32 v{vU}, v{vResF}, v{vU+1}\nv_min_u32 v{vU}, 0xfffffffe, v{vU}")
        if cfg.doorbell:
            a("s_mov_b64 exec, 1")
            store_local(f"buffer_store_dword v{vT1}, v{vT0}, {sr(sWS,4)}, s{sDBw} offen")
        setexec(EMEV)
        a(f"buffer_store_dword v{vU}, v{vaStX}, {sr(sWS,4)}, s{sXw} offen sc1")
        setexec(FULL)
    def advance_hop():
        a(f"s_add_u32 s{sXw}, s{sXw}, 16384\ns_add_u32 s{sDBw}, s{sDBw}, 1024\ns_add_u32 s{sDBtag}, s{sDBtag}, 1")

    def db_setup(hop_w, hop_r):
        a(f"""
        s_lshl_b32 s{sDBr}, s{sJ}, 7
        s_add_u32 s{sDBr}, s{sDBr}, {WS_DB}
        s_lshl_b32 s{sDBw}, s{sIdx}, 2
        s_add_u32 s{sDBw}, s{sDBw}, s{sDBr}
        s_add_u32 s{sDBw}, s{sDBw}, {hop_w*1024}
        s_add_u32 s{sDBtag}, s{sT}, {8+hop_w}
        """)
    def db_wait(hop_off_s, tag_add_s=None, const_hop=None):
        if not cfg.doorbell: return
        l = a.label("db"); ok = a.label("dbok")
        if const_hop is not None:
            a(f"s_add_u32 s{sA}, s{sDBr}, {const_hop*1024}\ns_add_u32 s{sC}, s{sT}, {8+const_hop}")
        else:
            a(f"s_lshl_b32 s{sA}, s{sL}, 11\ns_add_u32 s{sA}, s{sA}, s{sDBr}\ns_add_u32 s{sA}, s{sA}, {hop_off_s*1024}")
            a(f"s_lshl_b32 s{sC}, s{sL}, 1\ns_add_u32 s{sC}, s{sC}, s{sT}\ns_add_u32 s{sC}, s{sC}, {8+hop_off_s}")
        a(f"v_lshlrev_b32 v{vT0}, 2, v{vLane}")
        setexec(0xFFFF)
        a(f"""
        {l}:
        buffer_load_dword v{vT1}, v{vT0}, {sr(sWS,4)}, s{sA} offen sc1
        s_waitcnt vmcnt(0)
        v_cmp_ne_u32 vcc, s{sC}, v{vT1}
        s_cbranch_vccz {ok}
        """)
        spin_fail(l)
        a(f"{ok}:")
        setexec(FULL)

    def o_stats_poll():
        l = a.label("os"); ok = a.label("osok")
        a(f"s_add_u32 s{sA}, s{sT}, s{sL}\ns_add_u32 s{sA}, s{sA}, 1")
        a(f"{l}:")
        cnt("n_ostat")
        a(f"buffer_load_dwordx3 {vr(vSt,3)}, v{vaS0}, {sr(sWS,4)}, s{sOcons} offen sc1")
        a(f"buffer_load_dwordx3 {vr(vSt+4,3)}, v{vaS1}, {sr(sWS,4)}, s{sOcons} offen sc1")
        a("s_waitcnt vmcnt(0)")
        a(f"""
        v_xor_b32 v{vT0}, s{sA}, v{vSt+2}
        v_xor_b32 v{vT1}, s{sA}, v{vSt+6}
        v_or_b32 v{vT0}, v{vT0}, v{vT1}
        v_cmp_ne_u32 vcc, 0, v{vT0}
        s_cbranch_vccz {ok}
        """)
        spin_fail(l, cfg.sleep_o)
        a(f"{ok}:")
        ts_dyn("o_st0", "o_st1")

    def o_phase():
        OA = vA
        o_stats_poll()
        l2 = a.label("op"); ok2 = a.label("ook")
        a(f"{l2}:")
        cnt("n_oheavy")
        for b in range(2):
            for c in range(4):
                a(f"buffer_load_dwordx4 {vr(OA+16*b+4*c,4)}, v{vaO0+b}, {sr(sWS,4)}, s{sOcons} offen offset:{c*1024} sc1")
        for b in range(2):
            a(f"v_mov_b32 v{vU+b}, v{vSt+4*b}")
        for n in (8, 4, 2, 1):
            for b in range(2): dpp("v_max_f32", vU + b, vU + b, vU + b, f"row_ror:{n}")
        for b in range(2): a(f"v_sub_f32 v{vU+b}, v{vSt+4*b}, v{vU+b}")
        for b in range(2): a(f"v_exp_f32 v{vU+b}, v{vU+b}")
        for b in range(2): a(f"v_mul_f32 v{vU+2+b}, v{vU+b}, v{vSt+4*b+1}")
        for n in (8, 4, 2, 1):
            for b in range(2): dpp("v_add_f32", vU + 2 + b, vU + 2 + b, vU + 2 + b, f"row_ror:{n}")
        for b in range(2): a(f"v_rcp_f32 v{vU+2+b}, v{vU+2+b}")
        for b in range(2): a(f"v_mul_f32 v{vW+b}, v{vU+b}, v{vU+2+b}")
        a(f"v_mov_b32 v{vT0}, 0")
        if cfg.diag and cfg.ts_only and "o_w0" in cfg.ts_only:
            ts_dyn("o_w0", "o_w1")
            a("s_waitcnt vmcnt(7)")
            ts_dyn("o_f0", "o_f1")
        for i in range(8):
            b, c = i >> 2, i & 3
            r = OA + 16*b + 4*c
            a(f"s_waitcnt vmcnt({7-i})")
            for nt in range(2):
                mfma(vAcc + 8*b + 4*nt, r, ar(aW2 + 8*c + 4*nt, 4), "0" if c == 0 else None)
            a(f"v_max3_u32 v{vT0}, v{vT0}, v{r}, v{r+1}\nv_max3_u32 v{vT0}, v{vT0}, v{r+2}, v{r+3}")
        a(f"v_cmp_eq_u32 vcc, -1, v{vT0}\ns_cbranch_vccz {ok2}")
        spin_fail(l2)
        a(f"{ok2}:")
        ts_dyn("o_got0", "o_got1")
        for b in range(2):
            for nt in range(2):
                t = vU + 2*b + nt; acc = vAcc + 8*b + 4*nt
                dpp("v_mul_f32", t, vW + b, acc, "row_newbcast:0")
                for r in range(1, 4):
                    dpp("v_fmac_f32", t, vW + b, acc + r, f"row_newbcast:{r}")
        a(f"""
        v_permlane32_swap_b32 v{vU}, v{vU+1}
        v_permlane32_swap_b32 v{vU+2}, v{vU+3}
        v_add_f32 v{vU}, v{vU}, v{vU+1}
        v_add_f32 v{vU+2}, v{vU+2}, v{vU+3}
        v_permlane16_swap_b32 v{vU}, v{vU+2}
        v_add_f32 v{vU}, v{vU}, v{vU+2}
        ds_write_b32 v{vaRedW}, v{vU} offset:{R_O}
        s_waitcnt lgkmcnt(0)
        s_barrier
        """)
        lab = a.label("of")
        a(f"s_cmp_eq_u32 s{sW}, 0\ns_cbranch_scc0 {lab}")
        line_final(R_O)
        a(f"{lab}:")
        advance_hop()
        ts_dyn("o_pub0", "o_pub1")

    def g_phase():
        X = vA
        db_wait(0)
        x_poll(sXr, X, cfg.sleep_x)
        ts_dyn("g_got0", "g_got1")
        M = stats_mf(X)
        for u in range(4):
            M.append(mf(vAcc, X + 4*u, ar(aW2 + 8*u, 4), "0" if u == 0 else None))
            M.append(mf(vAcc + 4, X + 4*u, ar(aW2 + 8*u + 4, 4), "0" if u == 0 else None))
        V = stats_valu(vU) + [f"v_mov_b32 v{vU+1}, v{vU}", f"v_permlane16_swap_b32 v{vU}, v{vU+1}", f"v_add_f32 v{vU}, v{vU}, v{vU+1}"]
        interleave(M, V, 8, 2)
        setexec("s[%d:%d]" % (sM2, sM2 + 1))
        a(f"ds_write_b32 v{vaRedZ}, v{vU} offset:{R_GZ}")
        setexec(FULL)
        sum4(vU + 2, vAcc, vT3)
        sum4(vU + 3, vAcc + 4, vT3)
        a(f"""
        v_permlane16_swap_b32 v{vU+2}, v{vU+3}
        v_add_f32 v{vU+2}, v{vU+2}, v{vU+3}
        ds_write_b32 v{vaRedW}, v{vU+2} offset:{R_G}
        s_waitcnt lgkmcnt(0)
        s_barrier
        """)
        lab = a.label("gf")
        a(f"s_cmp_eq_u32 s{sW}, 0\ns_cbranch_scc0 {lab}")
        setexec(0xFFFFFFFF)
        a(f"""
        ds_read_b128 {vr(vU+8,4)}, v{vaFinZ} offset:{R_GZ}
        ds_read_b128 {vr(vU+12,4)}, v{vaFinZ} offset:{R_GZ+16}
        ds_read_b128 {vr(vU,4)}, v{vaFinW} offset:{R_G}
        ds_read_b128 {vr(vU+4,4)}, v{vaFinW} offset:{R_G+256}
        s_lshl_b32 s{sB}, s{sIdx}, 6
        s_add_u32 s{sB}, s{sB}, s{sHb}
        s_waitcnt lgkmcnt(2)
        """)
        sum4r(vU + 8); sum4r(vU + 12)
        ln_stats(vU + 8, vU + 12, vU + 9, vU + 10)
        a("s_waitcnt lgkmcnt(0)")
        sum4r(vU); sum4r(vU + 4)
        a(f"""
        v_fma_f32 v{vU}, -v{vU+9}, v{vCg}, v{vU}
        v_fma_f32 v{vU+4}, -v{vU+9}, v{vCu}, v{vU+4}
        v_mul_f32 v{vU+1}, {f2u(-1.4426950408889634):#x}, v{vU+10}
        v_mul_f32 v{vU}, v{vU}, v{vU+1}
        v_exp_f32 v{vU}, v{vU}
        v_mul_f32 v{vU+4}, v{vU+4}, v{vU+10}
        v_add_f32 v{vU}, 1.0, v{vU}
        v_rcp_f32 v{vU}, v{vU}
        s_nop 0
        v_mul_f32 v{vU}, v{vU}, v{vU+4}
        """)
        dpp("v_mov_b32", vU + 1, vU, None, "quad_perm:[1,0,3,2]")
        a(f"v_cvt_pk_bf16_f32 v{vU}, v{vU}, v{vU+1}\nv_min_u32 v{vU}, 0xfffffffe, v{vU}")
        setexec(0x55555555)
        store_local(f"buffer_store_dword v{vU}, v{vaStH}, {sr(sWS,4)}, s{sB} offen")
        setexec(FULL)
        a(f"{lab}:")
        ts_dyn("g_pub0", "g_pub1")

    def d_phase():
        lab0 = a.label("dr0"); l2 = a.label("dr"); ok2 = a.label("drok")
        l = a.label("dp"); ok = a.label("dok"); one = a.label("done"); l3 = a.label("dp1");
        a(f"s_cmp_eq_u32 s{sW}, 3\ns_cbranch_scc1 {l3}")
        setexec(EM2)
        a(f"{l}:")
        a(f"buffer_load_dwordx4 {vr(vHop,4)}, v{vaH}, {sr(sWS,4)}, s{sHb} offen sc1")
        a(f"buffer_load_dwordx4 {vr(vHop+4,4)}, v{vaH}, {sr(sWS,4)}, s{sHb} offen offset:512 sc1")
        a("s_waitcnt vmcnt(0)")
        sent_check([vHop+i for i in range(8)], vT1, ok)
        spin_fail(l)
        a(f"{l3}:")
        setexec(EM2)
        a(f"{l3}b:")
        a(f"buffer_load_dwordx4 {vr(vHop,4)}, v{vaH}, {sr(sWS,4)}, s{sHb} offen sc1")
        a("s_waitcnt vmcnt(0)")
        sent_check([vHop+i for i in range(4)], vT1, ok)
        spin_fail(f"{l3}b")
        a(f"{ok}:")
        setexec(FULL)
        for nt in range(2):
            mfma(vAcc + 4*nt, vHop, ar(aWd + 4*nt, 4), "0")
        for nt in range(2):
            mfma(vAcc + 4*nt, vHop + 4, ar(aWd + 8 + 4*nt, 4))
        a(f"""
        v_permlane16_swap_b32 v{vAcc}, v{vAcc+1}
        v_permlane16_swap_b32 v{vAcc+4}, v{vAcc+5}
        v_permlane32_swap_b32 v{vAcc}, v{vAcc+4}
        ds_write_b32 v{vaRedW}, v{vAcc} offset:{R_D}
        s_waitcnt lgkmcnt(0)
        s_barrier
        """)
        lab = a.label("df")
        a(f"s_cmp_eq_u32 s{sW}, 0\ns_cbranch_scc0 {lab}")
        line_final(R_D)
        a(f"{lab}:")
        advance_hop()
        ts_dyn("d_pub0", "d_pub1")

    a(f"s_cmp_lt_u32 s{sM}, 16\ns_cbranch_scc0 L_roleB")
    def down_slices():
        a(f"""
        v_lshrrev_b32 v{vT0}, 2, v{vLane}
        v_lshlrev_b32 v{vT0}, 10, v{vT0}
        v_and_b32 v{vT1}, 3, v{vLane}
        v_lshl_add_u32 v{vT0}, v{vT1}, 4, v{vT0}
        s_mul_i32 s{sB}, s{sJ}, {224*1024}
        s_lshl_b32 s{sC}, s{sIdx}, 6
        s_add_u32 s{sB}, s{sB}, s{sC}
        s_lshl_b32 s{sC}, s{sW}, 15
        s_add_u32 s{sB}, s{sB}, s{sC}
        s_lshl_b32 s{sC}, s{sW}, 14
        s_add_u32 s{sC}, s{sC}, {L_K + W_DN}
        s_mov_b32 m0, s{sC}
        s_add_u32 s{sD}, s{sB}, 16384
        buffer_load_dwordx4 v{vT0}, {sr(sDN,4)}, s{sB} offen{SLN} lds
        s_add_u32 s{sC}, s{sC}, 1024
        s_mov_b32 m0, s{sC}
        s_nop 0
        buffer_load_dwordx4 v{vT0}, {sr(sDN,4)}, s{sD} offen{SLN} lds
        s_cmp_eq_u32 s{sW}, 3
        s_cbranch_scc1 L_nod2
        s_add_u32 s{sB}, s{sB}, {4*32768}
        s_add_u32 s{sC}, s{sC}, 1024
        s_mov_b32 m0, s{sC}
        s_add_u32 s{sD}, s{sB}, 16384
        buffer_load_dwordx4 v{vT0}, {sr(sDN,4)}, s{sB} offen{SLN} lds
        s_add_u32 s{sC}, s{sC}, 1024
        s_mov_b32 m0, s{sC}
        s_nop 0
        buffer_load_dwordx4 v{vT0}, {sr(sDN,4)}, s{sD} offen{SLN} lds
        L_nod2:
        """)
    def down_operands():
        a(f"s_lshl_b32 s{sB}, s{sW}, 14")
        tr_base(vT0, 64, 8, sB, L_K + W_DN)
        for nt in range(2):
            a(f"ds_read_b64_tr_b16 {ar(aWd+4*nt,2)}, v{vT0} offset:{nt*32}")
            a(f"ds_read_b64_tr_b16 {ar(aWd+4*nt+2,2)}, v{vT0} offset:{nt*32+256}")
        a(f"s_cmp_eq_u32 s{sW}, 3\ns_cbranch_scc1 L_dn3")
        for nt in range(2):
            a(f"ds_read_b64_tr_b16 {ar(aWd+8+4*nt,2)}, v{vT0} offset:{2048+nt*32}")
            a(f"ds_read_b64_tr_b16 {ar(aWd+8+4*nt+2,2)}, v{vT0} offset:{2048+nt*32+256}")
        a("s_branch L_dn4\nL_dn3:")
        for i in range(8): a(f"v_accvgpr_write_b32 a{aWd+8+i}, 0")
        a("L_dn4:")
    g.role = "A"; ts_split = g.ts
    def wo_slices():
        if cfg.line_pf and "o" in cfg.pf_which:
            a(f"""
            v_lshlrev_b32 v{vT0}, 7, v{vLane}
            s_lshl_b32 s{sB}, s{sJ}, 19
            s_lshl_b32 s{sC}, s{sIdx}, 15
            s_add_u32 s{sB}, s{sB}, s{sC}
            s_lshl_b32 s{sC}, s{sW}, 13
            s_add_u32 s{sB}, s{sB}, s{sC}
            buffer_load_dword v{vJ}, v{vT0}, {sr(sW2,4)}, s{sB} offen{cfg.pf_pol}
            """)
        a(f"""
        v_lshrrev_b32 v{vT0}, 2, v{vLane}
        v_lshlrev_b32 v{vT0}, 10, v{vT0}
        v_and_b32 v{vT1}, 3, v{vLane}
        v_lshl_add_u32 v{vT0}, v{vT1}, 4, v{vT0}
        s_lshl_b32 s{sB}, s{sJ}, 19
        s_lshl_b32 s{sC}, s{sW}, 17
        s_add_u32 s{sB}, s{sB}, s{sC}
        s_lshl_b32 s{sC}, s{sIdx}, 6
        s_add_u32 s{sB}, s{sB}, s{sC}
        s_lshl_b32 s{sC}, s{sW}, 14
        s_add_u32 s{sC}, s{sC}, {L_K}
        """)
        for u in range(8):
            a(f"""
            s_mov_b32 m0, s{sC}
            s_add_u32 s{sC}, s{sC}, 1024
            buffer_load_dwordx4 v{vT0}, {sr(sW2,4)}, s{sB} offen{SLN} lds
            s_add_u32 s{sB}, s{sB}, {16*1024}
            """)
    if cfg.wsA:
        wo_slices()
        s1_tail(8 + nPF)
        db_setup(0, 1)
    else:
        s1_tail(nPF)
        db_setup(0, 1)
        wo_slices()
    a(f"v_mov_b32 v{vRes}, 0")
    lab = a.label("r0")
    a(f"""
    s_cmp_eq_u32 s{sJ}, 0
    s_cbranch_scc0 {lab}
    v_and_b32 v{vT0}, 1, v{vQd}
    v_lshlrev_b32 v{vT0}, 10, v{vT0}
    v_lshrrev_b32 v{vT1}, 1, v{vQd}
    v_lshl_add_u32 v{vT0}, v{vT1}, 5, v{vT0}
    v_lshl_add_u32 v{vT0}, v{vR16}, 1, v{vT0}
    s_lshl_b32 s{sB}, s{sIdx}, 6
    buffer_load_ushort v{vRes}, v{vT0}, {sr(sX0,4)}, s{sB} offen
    {lab}:
    """)
    a(f"s_lshl_b32 s{sB}, s{sW}, 14")
    tr_base(vT0, 64, 4, sB, L_K)
    a("s_waitcnt vmcnt(0)")
    for c in range(4):
        for nt in range(2):
            a(f"ds_read_b64_tr_b16 {ar(aW2+8*c+4*nt,2)}, v{vT0} offset:{c*2048+nt*32}")
            a(f"ds_read_b64_tr_b16 {ar(aW2+8*c+4*nt+2,2)}, v{vT0} offset:{c*2048+nt*32+1024}")
    a(f"v_lshlrev_b32 v{vResF}, 16, v{vRes}")
    a("s_waitcnt lgkmcnt(0)")
    ts("wo_ready")
    a("L_loopA:")
    o_phase()
    lab = a.label("dn")
    a(f"s_cmp_eq_u32 s{sL}, 0\ns_cbranch_scc0 {lab}")
    down_slices()
    tag_check_all()
    down_operands()
    if cfg.warm_out:
        lw = a.label("wout")
        a(f"""
        s_cmp_ge_u32 s{sIdx}, 2
        s_cbranch_scc1 {lw}
        s_lshl_b32 s{sB}, s{sJ}, 1
        s_add_u32 s{sB}, s{sB}, s{sIdx}
        s_lshl_b32 s{sB}, s{sB}, 6
        v_lshlrev_b32 v{vT0}, 10, v{vLane}
        s_mov_b64 exec, 3
        buffer_load_dword v{vJ}, v{vT0}, {sr(sOUT,4)}, s{sB} offen
        s_mov_b64 exec, -1
        {lw}:
        """)
    a("s_waitcnt lgkmcnt(0)\ns_barrier")
    a(f"{lab}:")
    d_phase()
    a(f"s_cmp_eq_u32 s{sL}, 1\ns_cbranch_scc1 L_finalA")
    a("s_branch L_q2s2")

    a("L_roleB:")
    g.role = "B"; g.ts = ts_split
    def gu_slices():
        a(f"""
        s_cmp_ge_u32 s{sIdx}, 14
        s_cbranch_scc1 L_nogu
        v_lshrrev_b32 v{vT0}, 1, v{vLane}
        v_mul_u32_u24 v{vT0}, 3584, v{vT0}
        v_and_b32 v{vT1}, 1, v{vLane}
        v_lshl_add_u32 v{vT0}, v{vT1}, 4, v{vT0}
        s_mul_i32 s{sB}, s{sW}, {128*3584}
        s_mul_i32 s{sC}, s{sJ}, 448
        s_add_u32 s{sB}, s{sB}, s{sC}
        s_lshl_b32 s{sC}, s{sIdx}, 5
        s_add_u32 s{sB}, s{sB}, s{sC}
        s_lshl_b32 s{sC}, s{sW}, 14
        s_add_u32 s{sC}, s{sC}, {L_K + W_GATE}
        """)
        for u in range(4):
            a(f"""
            s_mov_b32 m0, s{sC}
            s_add_u32 s{sD}, s{sC}, {W_UP - W_GATE}
            buffer_load_dwordx4 v{vT0}, {sr(sW2,4)}, s{sB} offen{SLN} lds
            s_mov_b32 m0, s{sD}
            s_add_u32 s{sC}, s{sC}, 1024
            buffer_load_dwordx4 v{vT0}, {sr(sUP,4)}, s{sB} offen{SLN} lds
            s_add_u32 s{sB}, s{sB}, {32*3584}
            """)
        a("L_nogu:")
    if cfg.wsB:
        gu_slices()
        s1_tail(8, maybe_none=True)
    else:
        s1_tail(nPF)
    db_setup(1, 0)
    if cfg.line_pf and "f" in cfg.pf_which:
        a(f"""
        v_mul_u32_u24 v{vT0}, 52, v{vLane}
        v_lshrrev_b32 v{vT0}, 8, v{vT0}            ; l/5 for l < 64
        v_mul_u32_u24 v{vT1}, 5, v{vT0}
        v_sub_u32 v{vT1}, v{vLane}, v{vT1}         ; l%5
        v_mul_u32_u24 v{vT0}, 3584, v{vT0}
        v_lshl_add_u32 v{vT0}, v{vT1}, 7, v{vT0}
        s_lshl_b32 s{sB}, s{sIdx}, 5
        s_lshl_b32 s{sC}, s{sW}, 3
        s_add_u32 s{sB}, s{sB}, s{sC}
        s_mul_i32 s{sB}, s{sB}, 3584
        s_mul_i32 s{sC}, s{sJ}, 448
        s_and_b32 s{sC}, s{sC}, 0xffffff80
        s_add_u32 s{sB}, s{sB}, s{sC}
        """)
        setexec((1 << 40) - 1)
        a(f"buffer_load_dword v{vJ}, v{vT0}, {sr(sW2,4)}, s{sB} offen{cfg.pf_pol}")
        a(f"buffer_load_dword v{vJ}, v{vT0}, {sr(sUP,4)}, s{sB} offen{cfg.pf_pol}")
        a(f"""
        s_mov_b64 exec, -1
        v_lshrrev_b32 v{vT0}, 3, v{vLane}
        v_lshlrev_b32 v{vT0}, 10, v{vT0}
        v_and_b32 v{vT1}, 7, v{vLane}
        v_lshl_add_u32 v{vT0}, v{vT1}, 7, v{vT0}
        s_mul_i32 s{sB}, s{sJ}, 224
        s_mul_i32 s{sC}, s{sIdx}, 14
        s_add_u32 s{sB}, s{sB}, s{sC}
        s_lshl_b32 s{sC}, s{sW}, 2
        s_add_u32 s{sB}, s{sB}, s{sC}
        s_lshl_b32 s{sB}, s{sB}, 10
        s_cmp_eq_u32 s{sW}, 3
        s_cselect_b32 exec_lo, 0xffff, -1
        s_mov_b32 exec_hi, 0
        buffer_load_dword v{vJ}, v{vT0}, {sr(sDN,4)}, s{sB} offen{cfg.pf_pol}
        s_mov_b64 exec, -1
        """)
    if not cfg.wsB: gu_slices()
    tag_check_all()
    ts("ffn_landed")
    a(f"s_cmp_ge_u32 s{sIdx}, 14\ns_cbranch_scc1 L_nogu2")
    a(f"s_lshl_b32 s{sB}, s{sW}, 14")
    tr_base(vT0, 32, 8, sB, L_K + W_GATE)
    for u in range(4):
        for mat in range(2):
            a(f"ds_read_b64_tr_b16 {ar(aW2+8*u+4*mat,2)}, v{vT0} offset:{u*1024+mat*(W_UP-W_GATE)}")
            a(f"ds_read_b64_tr_b16 {ar(aW2+8*u+4*mat+2,2)}, v{vT0} offset:{u*1024+mat*(W_UP-W_GATE)+128}")
    a("s_waitcnt lgkmcnt(0)")
    for u in range(4):
        mfma(vAcc, vOnes, ar(aW2 + 8*u, 4), "0" if u == 0 else None)
        mfma(vAcc + 4, vOnes, ar(aW2 + 8*u + 4, 4), "0" if u == 0 else None)
    a(f"s_nop 7\nds_write_b32 v{vaRedW}, v{vAcc} offset:{R_COL}\nds_write_b32 v{vaRedW}, v{vAcc+4} offset:{R_COL2}")
    a("L_nogu2:")
    a("s_waitcnt lgkmcnt(0)\ns_barrier")
    a(f"""
    ds_read_b128 {vr(vU,4)}, v{vaFinW} offset:{R_COL}
    ds_read_b128 {vr(vU+4,4)}, v{vaFinW} offset:{R_COL2}
    s_waitcnt lgkmcnt(0)
    """)
    sum4r(vU); sum4r(vU + 4)
    a(f"v_mov_b32 v{vCg}, v{vU}\nv_mov_b32 v{vCu}, v{vU+4}")
    ts("ffn_ready")
    a("L_loopB:")
    lg = a.label("nog")
    a(f"s_cmp_ge_u32 s{sIdx}, 14\ns_cbranch_scc1 {lg}")
    g_phase()
    a(f"{lg}:")
    a(f"s_cmp_eq_u32 s{sL}, 1\ns_cbranch_scc1 L_fin")

    a("L_q2s2:")
    save_role, save_ts = g.role, g.ts
    g.role = "C"; g.ts = 19 if not cfg.counters else 18
    lab = a.label("wo")
    a(f"s_cmp_lt_u32 s{sM}, 16\ns_cbranch_scc0 {lab}")
    warm_q2()
    warm_o(1)
    a(f"{lab}:")
    db_wait(None, const_hop=1)
    a(f"s_mov_b32 s{sD}, {WS_X + 16384}")
    x_poll(sD, XA, cfg.sleep_x)
    ts("q2_got")
    q_core(XA)
    q_final(False)
    ts("q2_pub")
    l = a.label("qp"); ok = a.label("qok")
    setexec(EM4)
    a(f"{l}:")
    for c in range(4):
        a(f"buffer_load_dwordx4 {vr(vQ+4*c,4)}, v{vaQ2}, {sr(sWS,4)}, s{sQ2r} offen offset:{c*256} sc1")
    a("s_waitcnt vmcnt(0)")
    sent_check([vQ+i for i in range(16)], vT0, ok)
    spin_fail(l)
    a(f"{ok}:")
    setexec(FULL)
    ts("q2_gath")
    a(f"""
    s_add_u32 s{sOown}, s{sOown}, {O_L}
    s_add_u32 s{sOcons}, s{sOcons}, {O_L}
    s_add_u32 s{sXr}, s{sXr}, 32768
    s_add_u32 s{sHb}, s{sHb}, 8192
    s_mov_b32 s{sL}, 1
    """)
    s_qk_max()
    s_exp_p()
    s_stats_prep()
    a("s_waitcnt lgkmcnt(0)")
    pv(list(range(8)), True)
    s_out()
    s_stats_store(None)
    ts("s2_pub")
    if cfg.diag and cfg.ts_only and "s2_ack" in cfg.ts_only:
        a("s_waitcnt vmcnt(0)")
        save = g.ts; g.ts = 18; ts("s2_ack"); g.ts = save
    a(f"s_cmp_lt_u32 s{sM}, 16\ns_cbranch_scc1 L_loopA\ns_branch L_loopB")

    a("L_finalA:")
    g.role = "A"; g.ts = 18
    a(f"""
    s_cmp_ge_u32 s{sIdx}, 2
    s_cbranch_scc1 L_fin
    s_cmp_eq_u32 s{sW}, 0
    s_cbranch_scc0 L_fin
    s_lshl_b32 s{sB}, s{sJ}, 1
    s_add_u32 s{sB}, s{sB}, s{sIdx}        ; cb
    s_lshl_b32 s{sC}, s{sB}, 7
    s_add_u32 s{sC}, s{sC}, {WS_X + 3*16384}
    """)
    for nt in range(2):
        for dd in range(4):
            a(f"""
            v_lshlrev_b32 v{vT0}, 3, v{vQd}
            v_add_u32 v{vT0}, {2*dd - 16*nt}, v{vT0}
            v_sub_u32 v{vT0}, v{vT0}, v{vR16}
            v_mov_b32 v{vP+4*nt+dd}, 0
            v_cmp_eq_u32 vcc, 0, v{vT0}
            v_mov_b32 v{vT1}, 0x3f80
            v_cndmask_b32 v{vP+4*nt+dd}, v{vP+4*nt+dd}, v{vT1}, vcc
            v_cmp_eq_u32 vcc, -1, v{vT0}
            v_mov_b32 v{vT1}, 0x3f800000
            v_cndmask_b32 v{vP+4*nt+dd}, v{vP+4*nt+dd}, v{vT1}, vcc
            """)
    a(f"""
    v_lshrrev_b32 v{vT2}, 1, v{vQd}
    v_lshlrev_b32 v{vT2}, 10, v{vT2}
    v_and_b32 v{vT1}, 1, v{vQd}
    v_lshl_add_u32 v{vT2}, v{vT1}, 5, v{vT2}
    v_lshl_add_u32 v{vT2}, v{vR16}, 1, v{vT2}
    s_lshl_b32 s{sB}, s{sB}, 6
    """)
    a(f"s_mov_b32 s{sEx2}, s{sC}\ns_mov_b32 s{sEx2+1}, s{sB}")
    db_wait(None, const_hop=3)
    a(f"s_mov_b32 s{sC}, s{sEx2}\ns_mov_b32 s{sB}, s{sEx2+1}")
    l = a.label("fp"); ok = a.label("fok")
    a(f"{l}:")
    a(f"buffer_load_dwordx4 {vr(vA,4)}, v{vaX}, {sr(sWS,4)}, s{sC} offen sc1")
    a("s_waitcnt vmcnt(0)")
    sent_check([vA+i for i in range(4)], vT0, ok)
    spin_fail(l, cfg.sleep_x)
    a(f"{ok}:")
    ts("fin_got")
    mfma(vAcc, vA, vP, "0"); mfma(vAcc + 4, vA, vP + 4, "0")
    sum4(vU, vAcc, vT3); sum4(vU + 1, vAcc + 4, vT3)
    a(f"""
    v_permlane16_swap_b32 v{vU}, v{vU+1}
    v_add_f32 v{vU}, v{vU}, v{vU+1}
    v_cvt_pk_bf16_f32 v{vU}, v{vU}, v{vU}
    buffer_store_short v{vU}, v{vT2}, {sr(sOUT,4)}, s{sB} offen
    s_cmp_eq_u32 s{sB}, 0
    s_cbranch_scc0 L_fin
    v_mov_b32 v{vT0}, {WS_EPOCH}
    v_mov_b32 v{vT1}, s{sT}
    """)
    setexec(1)
    a(f"buffer_store_dword v{vT1}, v{vT0}, {sr(sWS,4)}, 0 offen sc1")
    setexec(FULL)

    a("L_fin:")
    if cfg.diag:
        g.role = "E"
        g.tsn["E"].append((NTS - 1, "end"))
        a(f"s_memrealtime s[{sTmp2}:{sTmp2+1}]\ns_waitcnt lgkmcnt(0)\ns_mov_b32 s{sTS+NTS-2}, s{sTmp2}")
        a(f"s_memtime s[{sTmp2}:{sTmp2+1}]\ns_waitcnt lgkmcnt(0)\ns_mov_b32 s{sTS+NTS-1}, s{sTmp2}")
        a(f"s_lshl_b32 s{sB}, s2, 3\ns_add_u32 s{sB}, s{sB}, s{sW}\ns_lshl_b32 s{sB}, s{sB}, 7\ns_add_u32 s{sB}, s{sB}, {WS_DIAG}\nv_mov_b32 v{vT0}, 0")
        setexec(1)
        for i in range(NTS):
            a(f"v_mov_b32 v{vT1}, s{sTS+i}\nbuffer_store_dword v{vT1}, v{vT0}, {sr(sWS,4)}, s{sB} offen offset:{4*i}")
        setexec(FULL)
    if cfg.dbg_span:
        a(f"""
        s_waitcnt vmcnt(0)
        s_cmp_eq_u32 s{sW}, 0
        s_cbranch_scc0 L_nospan
        s_memrealtime s[{sTmp2}:{sTmp2+1}]
        s_load_dwordx2 s[92:93], s[0:1], 80
        s_waitcnt lgkmcnt(0)
        s_mov_b32 s{sA}, s92
        s_and_b32 s{sB}, s93, 0xffff
        s_mov_b32 s{sC}, 256
        s_mov_b32 s{sD}, 0x20000
        v_mov_b32 v{vT0}, 8
        v_mov_b32 v{vT1}, s{sTmp2}
        s_not_b32 s94, s94
        v_mov_b32 v{vT2}, s94
        s_mov_b64 exec, 1
        buffer_atomic_umax v{vT1}, v{vT0}, s[{sA}:{sD}], 0 offen sc1
        buffer_atomic_umax v{vT2}, v{vT0}, s[{sA}:{sD}], 0 offen offset:4 sc1
        s_waitcnt vmcnt(0)
        L_nospan:
        """)
    a("s_waitcnt vmcnt(0)\ns_endpgm")
    a(f"""
    L_abort:
    s_mov_b64 exec, -1
    v_mov_b32 v{vT0}, 0
    v_mov_b32 v{vT1}, 0xdead
    s_load_dwordx2 s[{sTmp2}:{sTmp2+1}], s[0:1], 80
    s_waitcnt lgkmcnt(0)
    s_mov_b32 s{sA}, s{sTmp2}
    s_and_b32 s{sB}, s{sTmp2+1}, 0xffff
    s_mov_b32 s{sC}, 256
    s_mov_b32 s{sD}, 0x20000
    s_mov_b64 exec, 1
    buffer_store_dword v{vT1}, v{vT0}, s[{sA}:{sD}], 0 offen offset:4
    s_waitcnt vmcnt(0)
    L_end:
    s_endpgm
    """)
    for o in g.ool: a(o)
    a("L_codeend:\ns_endpgm")
    lines = a.text().rstrip("\n").split("\n")
    g.ninstr = sum(1 for l in lines if l.startswith("    ") and not l.strip().startswith(";"))
    lines = hazard.pad(lines)
    return g, "\n".join(lines) + "\n"

HEADER = open("interleave_layers__sliding_block_cached__glu_gated_glu__decode.s.ref").read().split("; Override launch")[0]

def full(cfg):
    g, body = build(cfg)
    txt = HEADER
    txt += "; Persistent single-launch kernel: 256 workgroups (one per CU) x 256 threads.\n"
    txt += f"; @launch grid=(256,1,1) block=(256,1,1) lds={LDS_BYTES}\n"
    txt += '.amdgcn_target "amdgcn-amd-amdhsa--gfx950"\n.text\n'
    txt += f".globl {NAME}\n.p2align 8\n.type {NAME},@function\n{NAME}:\n"
    txt += body
    txt += '.section .rodata,"a"\n.p2align 6\n'
    txt += f".amdhsa_kernel {NAME}\n  .amdhsa_next_free_vgpr {256 + g.amax}\n  .amdhsa_next_free_sgpr 102\n  .amdhsa_accum_offset 256\n"
    txt += "  .amdhsa_group_segment_fixed_size 0\n  .amdhsa_kernarg_size 96\n  .amdhsa_user_sgpr_count 2\n  .amdhsa_user_sgpr_kernarg_segment_ptr 1\n  .amdhsa_system_sgpr_workgroup_id_x 1\n.end_amdhsa_kernel\n"
    return g, txt

if __name__ == "__main__":
    cfg = Cfg()
    for kv in sys.argv[2:]:
        k, v = kv.split("="); setattr(cfg, k, eval(v))
    g, txt = full(cfg)
    open(sys.argv[1], "w").write(txt)
    print("vgprs", g.vmax, "agprs", g.amax, "instrs", g.ninstr, "ts", g.tsn)
```

```python
import sys, struct
from asmlib import Asm
import hazard

NAME = "interleave_layers__sliding_block_cached__glu_gated_glu__decode_kernel"

WS_EPOCH = 0x0
WS_Q1 = 0x10000
WS_DB = 0x1c000
WS_Q2 = 0x20000
WS_H  = 0x28000
WS_X  = 0x30000
WS_O  = 0x40000
O_STATS = 32768
O_J = O_STATS + 2048
O_L = 8 * O_J
WS_DIAG = 0x100000
WS_SIZE = 0x1000000

L_SMAX = 0
L_LSUM = 64
L_PBUF = 256
L_RED = 2560
R_Q, R_G, R_GZ, R_O, R_D, R_COL, R_COL2 = [L_RED + 1024 * i for i in range(7)]
L_QG = 10240
L_X0 = 14336
L_K = 16384
L_V = L_K + 65536
L_WQ = L_V + 65536
L_XI = L_V
LDS_BYTES = 163840
W_GATE, W_UP, W_DN = 0, 4096, 8192

C_SCALE = 0.08838834764831845 * 1.4426950408889634
def f2u(x): return struct.unpack("<I", struct.pack("<f", x))[0]

class Cfg:
    nKA = 12
    nKb1 = 1
    pace = 8
    gpts = (1, 2, 4)
    diag = False
    ts_only = None
    ts_issue = False
    force_global = False
    budget = 400000
    prefetch_code = True
    sleep_x = 0
    sleep_x0 = 0
    sleep_o = 0
    sl_nt = True
    pf_pol = ""
    pf_which = "qof"
    dbg_span = False
    counters = False
    db_early = True
    doorbell = True
    warm = True
    pf_stream = ""
    pf_pos = None
    pf_early = False
    pf_spol = " nt"
    wsA = False
    wsB = False
    junk_dirty = 0
    epoch_early = True
    warm_out = False
    line_pf = False
    const_tag = False
    no_clear0 = False
    clr0_late = False

def vr(b, n=1): return f"v[{b}:{b+n-1}]" if n > 1 else f"v{b}"
def ar(b, n=1): return f"a[{b}:{b+n-1}]" if n > 1 else f"a{b}"
def sr(b, n=1): return f"s[{b}:{b+n-1}]" if n > 1 else f"s{b}"

sJ, sM, sW, sIdx, sL = 3, 4, 5, 6, 7
sWS, sKS, sVS, sWQ, sW2, sUP, sDN, sX0, sOUT = 8, 12, 16, 20, 24, 28, 32, 36, 40
sT, sTX, sLocal, sBud = 44, 45, 46, 47
sMDIAG = 48
sM4 = 50
sM2 = 52
sMN1 = 54
sMEV = 56
sEx = 58
sA, sB, sC, sD = 60, 61, 62, 63
sKV, sRot = 64, 65
sOown, sOcons, sXw, sXr, sHb, sQ2w, sQ2r = 66, 67, 68, 69, 70 - 70 + 96, 97, 98
sXcc = 99
sKS2 = sKS
sDBtag = 59
sEx2 = 50
sDBw, sDBr = 64, 65
sXI = 58
sTmp2 = 100
sTS = 70
NTS = 26

class G:
    pass

def build(cfg):
    g = G(); a = Asm(); g.a = a
    g.tsn = {"C": [], "A": [], "B": [], "E": []}; g.role = "C"; g.ts = 0; g.cnts = {}; g.cnt_names = []
    nv = [1]
    def valloc(n=1, align=1):
        nv[0] = (nv[0] + align - 1) // align * align
        r = nv[0]; nv[0] += n
        assert nv[0] <= 256
        return r
    vLane = valloc(); vR16 = valloc(); vQd = valloc()
    vT0 = valloc(); vT1 = valloc(); vT2 = valloc(); vT3 = valloc()
    vOnes = valloc(4, 4)
    vQ = valloc(16, 4)
    vA = valloc(40, 4)
    vAcc = valloc(16, 4)
    vS = valloc(16, 4)
    vP = valloc(32, 4)
    vJ = valloc()
    vHop = valloc(8, 4)
    vU = valloc(16, 4)
    vSt = valloc(8, 4)
    vW = valloc(2, 2)
    vCs = valloc(); vCg = valloc(); vCu = valloc()
    vRes = valloc(); vResF = valloc()
    vQ1d = valloc(2, 2); vQ1a = valloc()
    vMc = valloc(4, 4)
    vaX = valloc(); vaXg = valloc(); vaXr = valloc(); vaStQ = valloc(); vaClrO = valloc(); vaO0 = valloc(); vaO1 = valloc(); vaS0 = valloc(); vaS1 = valloc(); vaQ2 = valloc(); vaH = valloc()
    vaPw = valloc(); vaPr = valloc(); vaSm = valloc(); vaSmW = valloc(); vaRedW = valloc(); vaRedZ = valloc()
    vaFinW = valloc(); vaFinZ = valloc(); vaFinQZ = valloc(); vaFinO = valloc()
    vaStH = valloc(); vaStX = valloc(); vaStO = valloc(); vaStS = valloc(); vaResU = valloc()
    vKs = valloc(4); vVs = valloc(2); vVr = valloc(2); vKr = valloc(4)
    g.vmax = nv[0]
    aK, aV, aWq, aW2, aWd = 0, 64, 128, 144, 176
    g.amax = 192

    FULL = (1 << 64) - 1
    def ts(name):
        if not cfg.diag: return
        i = g.ts; g.ts += 1
        assert i < NTS - 3, name
        g.tsn[g.role].append((i, name))
        if name == "start":
            return
        if name == "issued":
            g.i_issued = i
            a(f"s_memtime s[{sTmp2}:{sTmp2+1}]\ns_waitcnt lgkmcnt(0)\ns_mov_b32 s92, s{sTmp2}")
            return
        if name == "setup":
            a(f"s_mov_b32 s{sTS}, s90\ns_mov_b32 s{sTS+NTS-3}, s91")
            if cfg.ts_issue: a(f"s_mov_b32 s{sTmp2}, s92")
            for z in list(range(1, NTS - 3)) + [NTS - 2, NTS - 1]: a(f"s_mov_b32 s{sTS+z}, 0")
            if cfg.ts_issue: a(f"s_mov_b32 s{sTS+g.i_issued}, s{sTmp2}")
        if cfg.ts_only and name not in cfg.ts_only:
            return
        a(f"s_memtime s[{sTmp2}:{sTmp2+1}]\ns_waitcnt lgkmcnt(0)\ns_mov_b32 s{sTS+i}, s{sTmp2}")
    def ts_dyn(name0, name1):
        if not cfg.diag: return
        i = g.ts; g.ts += 2
        assert i + 1 < NTS - 3, name0
        g.tsn[g.role].append((i, name0)); g.tsn[g.role].append((i + 1, name1))
        if cfg.ts_only and name0 not in cfg.ts_only: return
        a(f"""s_memtime s[{sTmp2}:{sTmp2+1}]
        s_waitcnt lgkmcnt(0)
        s_cmp_eq_u32 s{sL}, 0
        s_cselect_b32 s{sTS+i}, s{sTmp2}, s{sTS+i}
        s_cselect_b32 s{sTS+i+1}, s{sTS+i+1}, s{sTmp2}""")

    def cnt(name):
        if not (cfg.diag and cfg.counters): return
        key = (g.role, name)
        if key not in g.cnts:
            i = g.ts; g.ts += 1
            assert i < NTS - 3, name
            g.cnts[key] = i; g.cnt_names.append((g.role, i, name))
        a(f"s_add_u32 s{sTS+g.cnts[key]}, s{sTS+g.cnts[key]}, 1")

    def setexec(mask):
        if mask == FULL: a("s_mov_b64 exec, -1")
        elif isinstance(mask, str): a(f"s_mov_b64 exec, {mask}")
        elif mask < 65 or mask in (0xFFFF, 0xF, 0xFF):
            a(f"s_mov_b64 exec, 0x{mask:x}" if mask >= 65 else f"s_mov_b64 exec, {mask}")
        else:
            a(f"s_mov_b32 exec_lo, 0x{mask & 0xFFFFFFFF:x}\ns_mov_b32 exec_hi, 0x{mask >> 32:x}")
    EM4, EM2, EMEV = f"s[{sM4}:{sM4+1}]", f"s[{sM2}:{sM2+1}]", f"s[{sMEV}:{sMEV+1}]"

    def srd(dst, ptr_s, size):
        a(f"s_mov_b32 s{dst}, s{ptr_s}\ns_and_b32 s{dst+1}, s{ptr_s+1}, 0xffff\ns_mov_b32 s{dst+2}, 0x{size:x}\ns_mov_b32 s{dst+3}, 0x20000")

    def mfma(d, A, B, C=None):
        f = lambda x: x if isinstance(x, str) else vr(x, 4)
        c = f(d) if C is None else C
        a(f"v_mfma_f32_16x16x32_bf16 {f(d)}, {f(A)}, {f(B)}, {c}")

    def spin_fail(lbl_retry, sleep=0):
        if sleep: a(f"s_sleep {sleep}")
        a(f"s_sub_u32 s{sBud}, s{sBud}, 1\ns_cbranch_scc0 {lbl_retry}\ns_branch L_abort")
    def interleave(mf, va, start, per=2):
        va = list(va)
        for i, m in enumerate(mf):
            a(m)
            if i >= start:
                for _ in range(per):
                    if va: a(va.pop(0))
        for v in va: a(v)
    def mf(d, A, B, C=None):
        f = lambda x: x if isinstance(x, str) else vr(x, 4)
        return f"v_mfma_f32_16x16x32_bf16 {f(d)}, {f(A)}, {f(B)}, {f(d) if C is None else C}"

    def sent_max(regs, tmp):
        rs = list(regs)
        if len(rs) == 1: return rs[0]
        if len(rs) == 2:
            a(f"v_max_u32 v{tmp}, v{rs[0]}, v{rs[1]}"); rs = []
        else:
            a(f"v_max3_u32 v{tmp}, v{rs[0]}, v{rs[1]}, v{rs[2]}"); rs = rs[3:]
        while len(rs) >= 2:
            a(f"v_max3_u32 v{tmp}, v{tmp}, v{rs[0]}, v{rs[1]}"); rs = rs[2:]
        if rs: a(f"v_max_u32 v{tmp}, v{tmp}, v{rs[0]}")
        return tmp
    def sent_check(regs, tmp, lbl_ok):
        cur = sent_max(regs, tmp)
        a(f"v_cmp_eq_u32 vcc, -1, v{cur}\ns_cbranch_vccz {lbl_ok}")

    g.ool = []
    def store_local(instr):
        if cfg.force_global:
            a(instr + " sc1"); return
        l1 = a.label("stg"); l2 = a.label("std")
        a(f"s_cmp_eq_u32 s{sLocal}, 0\ns_cbranch_scc1 {l1}")
        a(instr)
        a(f"{l2}:")
        g.ool.append(f"{l1}:\n{instr} sc1\ns_branch {l2}")

    def dpp(op, d, s0, s1, ctrl, rm="0xf", bm="0xf"):
        if s1 is None: a(f"{op}_dpp v{d}, v{s0} {ctrl} row_mask:{rm} bank_mask:{bm}")
        else: a(f"{op}_dpp v{d}, v{s0}, v{s1} {ctrl} row_mask:{rm} bank_mask:{bm}")
    def row_reduce(op, v, steps=(8, 4, 2, 1)):
        for n in steps: dpp(op, v, v, v, f"row_ror:{n}")
    def xquad_reduce(op, v, tmp):
        a(f"v_mov_b32 v{tmp}, v{v}\nv_permlane32_swap_b32 v{v}, v{tmp}\n{op} v{v}, v{v}, v{tmp}")
        a(f"v_mov_b32 v{tmp}, v{v}\nv_permlane16_swap_b32 v{v}, v{tmp}\n{op} v{v}, v{v}, v{tmp}")
    def sum4(dst, b, tmp):
        a(f"v_add_f32 v{dst}, v{b}, v{b+1}\nv_add_f32 v{tmp}, v{b+2}, v{b+3}\nv_add_f32 v{dst}, v{dst}, v{tmp}")

    P = sTS
    EARLY = ""
    if cfg.dbg_span:
        EARLY = f"s_memrealtime s[94:95]"
    if cfg.diag:
        EARLY = f"s_memrealtime s[{sTmp2}:{sTmp2+1}]\ns_waitcnt lgkmcnt(0)\ns_mov_b32 s91, s{sTmp2}\ns_memtime s[{sTmp2}:{sTmp2+1}]\ns_waitcnt lgkmcnt(0)\ns_mov_b32 s90, s{sTmp2}"
    a(f"""
    s_cmp_ge_u32 s2, 256
    s_cbranch_scc1 L_end
    {EARLY}
    s_load_dwordx4 s[{P+2}:{P+5}], s[0:1], 0           ; x, K      (72..75)
    s_load_dwordx4 s[{P+6}:{P+9}], s[0:1], 16          ; V, wq     (76..79)
    s_load_dwordx2 s[{P+18}:{P+19}], s[0:1], 88        ; ws        (88..89)
    s_load_dwordx2 s[{P}:{P+1}], s[0:1], 32            ; wo        (70..71)
    s_load_dwordx4 s[{P+10}:{P+13}], s[0:1], 48
    s_load_dwordx4 s[{P+14}:{P+17}], s[0:1], 64
    v_lshrrev_b32 v{vT0}, 6, v0
    v_and_b32 v{vLane}, 63, v0
    v_and_b32 v{vR16}, 15, v0
    v_readfirstlane_b32 s{sW}, v{vT0}
    v_lshrrev_b32 v{vQd}, 4, v{vLane}
    """)
    if cfg.prefetch_code:
        a(f"""
        s_getpc_b64 s[{sTmp2}:{sTmp2+1}]
        L_pfbase:
        v_lshlrev_b32 v{vT1}, 7, v0
        s_mov_b32 s{sB}, (L_codeend - L_pfbase)
        v_cmp_gt_u32 vcc, s{sB}, v{vT1}
        s_and_saveexec_b64 s[{sEx}:{sEx+1}], vcc
        s_cbranch_execz L_nopf
        global_load_dword v{vU+15}, v{vT1}, s[{sTmp2}:{sTmp2+1}]
        L_nopf:
        s_mov_b64 exec, s[{sEx}:{sEx+1}]
        """)
    a(f"""
    s_and_b32 s{sJ}, s2, 7
    s_lshr_b32 s{sM}, s2, 3
    s_and_b32 s{sIdx}, s{sM}, 15
    s_and_b32 s{sRot}, s{sM}, 7
    s_lshl_b32 s{sRot}, s{sRot}, 1
    s_lshr_b32 s{sB}, s{sM}, 4
    s_lshl_b32 s{sB}, s{sB}, 3
    s_add_u32 s{sB}, s{sB}, s{sJ}
    s_lshl_b32 s{sB}, s{sB}, 23
    s_lshl_b32 s{sC}, s{sIdx}, 16
    s_add_u32 s{sKV}, s{sB}, s{sC}
    s_add_u32 s{sKV}, s{sKV}, 0x700000
    s_mul_i32 s{sOown}, s{sJ}, {O_J}
    s_lshr_b32 s{sB}, s{sM}, 4
    s_lshl_b32 s{sB}, s{sB}, 14
    s_add_u32 s{sOown}, s{sOown}, s{sB}
    s_lshl_b32 s{sB}, s{sIdx}, 4
    s_add_u32 s{sOown}, s{sOown}, s{sB}
    s_add_u32 s{sOown}, s{sOown}, {WS_O}
    """)
    XA = vA + 8
    a(f"""
    v_lshrrev_b32 v{vT2}, 1, v{vLane}
    v_lshlrev_b32 v{vT2}, 13, v{vT2}
    v_and_b32 v{vT3}, 1, v{vLane}
    v_lshl_add_u32 v{vT2}, v{vT3}, 4, v{vT2}
    v_lshlrev_b32 v{vT1}, 4, v{vLane}          ; lane*16
    """)
    for i in range(4):
        a(f"""
        v_add_u32 v{vT3}, {4*i}, v{vQd}
        v_xor_b32 v{vT3}, v{vT3}, v{vR16}
        v_lshlrev_b32 v{vT3}, 4, v{vT3}
        v_lshl_add_u32 v{vKs+i}, v{vQd}, 8, v{vT3}
        """)
    a(f"""
    s_lshl_b32 s{sC}, s{sJ}, 11
    s_lshl_b32 s{sD}, s{sIdx}, 7
    s_add_u32 s{sC}, s{sC}, s{sD}
    s_add_u32 s{sXw}, s{sC}, {WS_X}
    s_mov_b32 s{sXr}, {WS_X}
    s_lshl_b32 s{sHb}, s{sJ}, 10
    s_add_u32 s{sHb}, s{sHb}, {WS_H}
    s_lshl_b32 s{sQ2w}, s{sJ}, 11
    s_add_u32 s{sQ2r}, s{sQ2w}, {WS_Q2}
    ; producer m: h = m>>3, c = (m>>1)&3, e0 = 2*(m&1)  ->  c*256 + e0*64 + h*16
    s_lshr_b32 s{sB}, s{sM}, 1
    s_and_b32 s{sB}, s{sB}, 3
    s_lshl_b32 s{sB}, s{sB}, 8
    s_add_u32 s{sQ2w}, s{sQ2r}, s{sB}
    s_and_b32 s{sB}, s{sM}, 1
    s_lshl_b32 s{sB}, s{sB}, 7
    s_add_u32 s{sQ2w}, s{sQ2w}, s{sB}
    s_lshr_b32 s{sB}, s{sM}, 3
    s_lshl_b32 s{sB}, s{sB}, 4
    s_add_u32 s{sQ2w}, s{sQ2w}, s{sB}
    s_lshr_b32 s{sB}, s{sM}, 4
    s_lshl_b32 s{sB}, s{sB}, 10
    s_add_u32 s{sQ2r}, s{sQ2r}, s{sB}
    s_waitcnt lgkmcnt(0)
    """)
    srd(sWQ, P + 8, 0x400000)
    srd(sKS, P + 4, 0x8000000)
    srd(sWS, P + 18, WS_SIZE)
    if cfg.const_tag: a(f"s_mov_b32 s{sT}, 0x12345670")
    else: a(f"s_load_dword s{sT}, s[{P+18}:{P+19}], {WS_EPOCH}")
    SLN = " nt" if cfg.sl_nt else ""
    if cfg.no_clear0: a("s_branch L_clr_done")
    a(f"s_cmp_eq_u32 s{sW}, 2\ns_cbranch_scc0 L_clr_done")
    a(f"""
    v_mov_b32 v{vU}, -1
    v_mov_b32 v{vU+1}, -1
    v_mov_b32 v{vU+2}, -1
    v_mov_b32 v{vU+3}, -1
    v_bfe_u32 v{vT3}, v{vLane}, 1, 1
    v_lshlrev_b32 v{vT3}, 10, v{vT3}
    v_and_b32 v{vT0}, 1, v{vLane}
    v_lshl_add_u32 v{vT3}, v{vT0}, 6, v{vT3}
    v_add_u32 v{vT0}, s{sQ2w}, v{vT3}
    s_cmp_lt_u32 s{sM}, 16
    s_cbranch_scc0 L_clr_B
    v_lshrrev_b32 v{vT3}, 3, v{vLane}
    v_lshlrev_b32 v{vT3}, 14, v{vT3}
    v_and_b32 v{vT1}, 7, v{vLane}
    v_lshl_add_u32 v{vT3}, v{vT1}, 4, v{vT3}
    """)
    setexec(0xFFFFFFFF)
    a(f"v_add_u32 v{vT0}, s{sXw}, v{vT3}")
    setexec((1 << 36) - 1)
    a("s_branch L_clr_st\nL_clr_B:")
    setexec(0xF)
    a(f"""
    s_cmp_ge_u32 s{sIdx}, 14
    s_cbranch_scc1 L_clr_st
    s_lshl_b32 s{sD}, s{sIdx}, 6
    s_add_u32 s{sC}, s{sHb}, s{sD}
    """)
    setexec(0xFF0)
    a(f"""
    v_bfe_u32 v{vT3}, v{vLane}, 3, 1
    v_lshlrev_b32 v{vT3}, 13, v{vT3}
    v_and_b32 v{vT1}, 3, v{vLane}
    v_lshl_add_u32 v{vT3}, v{vT1}, 4, v{vT3}
    v_add_u32 v{vT0}, s{sC}, v{vT3}
    """)
    setexec(0xFFF)
    a("L_clr_st:")
    a(f"buffer_store_dwordx4 {vr(vU,4)}, v{vT0}, {sr(sWS,4)}, 0 offen sc1")
    setexec(FULL)
    a("L_clr_done:")
    srd(sX0, P + 2, 2048)
    a(f"s_cmp_eq_u32 s{sW}, 0\ns_cbranch_scc0 L_nox0")
    a(f"""
    s_mov_b32 m0, {L_X0}
    s_nop 0
    buffer_load_dwordx4 v{vT1}, {sr(sX0,4)}, 0 offen lds
    buffer_load_dwordx4 v{vT1}, {sr(sX0,4)}, 0 offen offset:1024 lds
    L_nox0:
    """)
    if cfg.line_pf and "q" in cfg.pf_which:
        a(f"""
        v_lshrrev_b32 v{vT0}, 3, v{vLane}
        v_lshlrev_b32 v{vT0}, 13, v{vT0}
        v_and_b32 v{vT3}, 7, v{vLane}
        v_lshl_add_u32 v{vT0}, v{vT3}, 7, v{vT0}
        s_lshl_b32 s{sB}, s{sM}, 2
        s_add_u32 s{sB}, s{sB}, s{sW}
        s_lshl_b32 s{sB}, s{sB}, 15
        s_lshl_b32 s{sC}, s{sJ}, 10
        s_add_u32 s{sB}, s{sB}, s{sC}
        """)
        setexec(0xFFFFFFFF)
        a(f"buffer_load_dword v{vJ}, v{vT0}, {sr(sWQ,4)}, s{sB} offen{cfg.pf_pol}")
        setexec(FULL)
    a(f"""
    s_lshl_b32 s{sB}, s{sW}, 20
    s_lshl_b32 s{sC}, s{sJ}, 10
    s_add_u32 s{sB}, s{sB}, s{sC}
    s_lshl_b32 s{sC}, s{sM}, 5
    s_add_u32 s{sB}, s{sB}, s{sC}
    s_lshl_b32 s{sC}, s{sW}, 12
    s_add_u32 s{sC}, s{sC}, {L_WQ}
    """)
    for u in range(4):
        a(f"""
        s_mov_b32 m0, s{sC}
        s_add_u32 s{sC}, s{sC}, 1024
        buffer_load_dwordx4 v{vT2}, {sr(sWQ,4)}, s{sB} offen{SLN} lds
        s_add_u32 s{sB}, s{sB}, {32*8192}
        """)
    def emit_wpf(qWO, qGT, reload_ptrs):
        n = 0
        a(f"s_lshl_b32 s{sD}, s{sM}, 2\ns_add_u32 s{sD}, s{sD}, s{sW}               ; q = 4m + w")
        if reload_ptrs:
            a(f"""
            s_load_dwordx2 s[{qWO}:{qWO+1}], s[0:1], 32
            s_load_dwordx2 s[{qGT}:{qGT+1}], s[0:1], 48
            s_waitcnt lgkmcnt(0)
            s_and_b32 s{qWO+1}, s{qWO+1}, 0xffff
            s_mov_b32 s{qWO+2}, 0x400000
            s_and_b32 s{qGT+1}, s{qGT+1}, 0xffff
            s_mov_b32 s{qGT+2}, {512*1792*2}
            """)
        if "o" in cfg.pf_stream:
            a(f"""
            v_lshlrev_b32 v{vT0}, 7, v{vLane}
            s_lshl_b32 s{sB}, s{sJ}, 19
            s_lshl_b32 s{sC}, s{sD}, 12
            s_add_u32 s{sB}, s{sB}, s{sC}
            """)
            setexec(0xFFFFFFFF)
            a(f"buffer_load_dword v{vJ}, v{vT0}, {sr(qWO,4)}, s{sB} offen{cfg.pf_spol}")
            setexec(FULL); n += 1
        if "g" in cfg.pf_stream or "u" in cfg.pf_stream:
            a(f"""
            v_mul_u32_u24 v{vT0}, 52, v{vLane}
            v_lshrrev_b32 v{vT0}, 8, v{vT0}
            v_mul_u32_u24 v{vT1}, 5, v{vT0}
            v_sub_u32 v{vT1}, v{vLane}, v{vT1}
            v_mul_u32_u24 v{vT0}, 3584, v{vT0}
            v_lshl_add_u32 v{vT0}, v{vT1}, 7, v{vT0}
            s_mul_i32 s{sB}, s{sD}, {4*3584}
            s_mul_i32 s{sC}, s{sJ}, 448
            s_and_b32 s{sC}, s{sC}, 0xffffff80
            s_add_u32 s{sB}, s{sB}, s{sC}
            """)
            setexec((1 << 20) - 1)
            if "g" in cfg.pf_stream:
                a(f"buffer_load_dword v{vJ}, v{vT0}, {sr(qGT,4)}, s{sB} offen{cfg.pf_spol}"); n += 1
            if "u" in cfg.pf_stream:
                a(f"buffer_load_dword v{vJ}, v{vT0}, {sr(sUP,4)}, s{sB} offen{cfg.pf_spol}"); n += 1
            setexec(FULL)
        if "d" in cfg.pf_stream:
            a(f"""
            v_lshlrev_b32 v{vT0}, 7, v{vLane}
            s_min_u32 s{sB}, s{sD}, 111
            s_lshl_b32 s{sB}, s{sB}, 11
            s_mul_i32 s{sC}, s{sJ}, {224*1024}
            s_add_u32 s{sB}, s{sB}, s{sC}
            """)
            setexec(0xFFFF)
            a(f"buffer_load_dword v{vJ}, v{vT0}, {sr(sDN,4)}, s{sB} offen{cfg.pf_spol}")
            setexec(FULL); n += 1
        return n

    def page_off(t, dst):
        a(f"""
        s_add_u32 s{dst}, s{sW}, s{sRot}
        s_add_u32 s{dst}, s{dst}, {4*t}
        s_and_b32 s{dst}, s{dst}, 15
        s_lshl_b32 s{dst}, s{dst}, 12
        s_add_u32 s{dst}, s{dst}, s{sKV}
        """)
    def k_page(t):
        page_off(t, sD)
        a(f"s_lshl_b32 s{sC}, s{sW}, 14\ns_add_u32 s{sC}, s{sC}, {L_K + t*4096}\ns_mov_b32 m0, s{sC}\ns_nop 0")
        for ii in range(4):
            a(f"buffer_load_dwordx4 v{vKs+ii}, {sr(sKS,4)}, s{sD} offen offset:{ii*1024} nt lds")
    nKpA = cfg.nKA // 4
    for t in range(cfg.nKb1): k_page(t)
    nPFe = 0
    if cfg.pf_stream and cfg.pf_early:
        srd(sVS, P, 0x400000)
        srd(sOUT, P + 10, 512 * 1792 * 2)
        srd(sUP, P + 12, 512 * 1792 * 2)
        srd(sDN, P + 14, 1792 * 512 * 2)
        nPFe = emit_wpf(sVS, sOUT, False)
    ts("start")
    if cfg.ts_issue: ts("issued")

    srd(sVS, P + 6, 0x8000000)
    srd(sUP, P + 12, 512 * 1792 * 2)
    srd(sDN, P + 14, 1792 * 512 * 2)
    srd(sOUT, P + 16, 2048)
    a(f"""
    s_cmp_lt_u32 s{sM}, 16
    s_cselect_b32 s{sW2}, s{P}, s{P+10}
    s_cselect_b32 s{sW2+1}, s{P+1}, s{P+11}
    s_mov_b32 s{sW2+2}, {512*1792*2}
    s_cselect_b32 s{sW2+2}, 0x400000, s{sW2+2}
    s_and_b32 s{sW2+1}, s{sW2+1}, 0xffff
    s_mov_b32 s{sW2+3}, 0x20000
    s_mov_b32 s{sBud}, {cfg.budget}
    s_getreg_b32 s{sXcc}, hwreg(HW_REG_XCC_ID, 0, 4)
    s_mov_b32 s{sMDIAG}, 0x00ff00ff
    s_mov_b32 s{sMDIAG+1}, 0xff00ff00
    s_mov_b32 s{sM4}, 0x000f000f
    s_mov_b32 s{sM4+1}, 0x000f000f
    s_mov_b32 s{sM2}, 0x00030003
    s_mov_b32 s{sM2+1}, 0x00030003
    s_mov_b32 s{sMN1}, 0x00020002
    s_mov_b32 s{sMN1+1}, 0x00020002
    s_mov_b32 s{sMEV}, 0x55555555
    s_mov_b32 s{sMEV+1}, 0x55555555
    s_mov_b32 s{sL}, 0
    s_mul_i32 s{sOcons}, s{sJ}, {O_J}
    s_lshl_b32 s{sB}, s{sW}, 12
    s_add_u32 s{sOcons}, s{sOcons}, s{sB}
    s_add_u32 s{sOcons}, s{sOcons}, {WS_O}
    """)
    for i in range(4): a(f"v_mov_b32 v{vOnes+i}, 0x3f803f80")
    for i in range(16): a(f"v_mov_b32 v{vQ+i}, 0")
    for i in range(8): a(f"v_mov_b32 v{vHop+i}, 0")
    a(f"v_mov_b32 v{vQ1a}, 0\nv_mov_b32 v{vQ1d}, 0\nv_mov_b32 v{vQ1d+1}, 0")
    h3 = vU; qh = vU + 1; ql = vU + 2
    a(f"""
    v_and_b32 v{h3}, 3, v{vR16}
    v_lshrrev_b32 v{qh}, 1, v{vQd}
    v_and_b32 v{ql}, 1, v{vQd}
    v_and_b32 v{vT0}, 7, v{vR16}
    v_lshlrev_b32 v{vT0}, 11, v{vT0}
    v_lshrrev_b32 v{vT1}, 3, v{vR16}
    v_lshl_add_u32 v{vT0}, v{vT1}, 6, v{vT0}
    v_lshl_add_u32 v{vaX}, v{vQd}, 4, v{vT0}
    v_lshrrev_b32 v{vT0}, 3, v{vLane}
    v_and_b32 v{vT1}, 2, v{vT0}
    v_and_b32 v{vT2}, 7, v{vLane}
    v_xor_b32 v{vT1}, v{vT1}, v{vT2}
    v_lshlrev_b32 v{vT1}, 4, v{vT1}
    v_lshl_add_u32 v{vT0}, v{vT0}, 11, v{vT1}
    s_lshl_b32 s{sB}, s{sW}, 9
    v_add_u32 v{vaXg}, s{sB}, v{vT0}
    v_and_b32 v{vT0}, 7, v{vR16}
    v_lshrrev_b32 v{vT1}, 3, v{vR16}
    v_lshl_add_u32 v{vT1}, v{vT1}, 2, v{vQd}
    v_and_b32 v{vT2}, 2, v{vT0}
    v_xor_b32 v{vT1}, v{vT1}, v{vT2}
    v_lshlrev_b32 v{vT1}, 4, v{vT1}
    v_lshl_add_u32 v{vT0}, v{vT0}, 7, v{vT1}
    s_lshl_b32 s{sXI}, s{sW}, 12
    s_add_u32 s{sXI}, s{sXI}, {L_XI}
    v_add_u32 v{vaXr}, s{sXI}, v{vT0}
    v_lshlrev_b32 v{vaO0}, 4, v{vLane}
    v_add_u32 v{vaO1}, 16384, v{vaO0}
    v_lshl_add_u32 v{vT0}, v{vQd}, 2, v{vR16}
    v_and_b32 v{vT0}, 15, v{vT0}
    v_lshlrev_b32 v{vT0}, 4, v{vT0}
    s_mul_i32 s{sB}, s{sW}, 3840
    s_sub_u32 s{sB}, {O_STATS}, s{sB}
    v_add_u32 v{vaS0}, s{sB}, v{vT0}
    v_add_u32 v{vaS1}, 1024, v{vaS0}
    v_lshlrev_b32 v{vT0}, 6, v{vQd}
    v_lshl_add_u32 v{vaQ2}, v{h3}, 4, v{vT0}
    v_lshlrev_b32 v{vT0}, 10, v{ql}
    v_lshrrev_b32 v{vT1}, 3, v{vR16}
    v_lshl_add_u32 v{vT0}, v{vT1}, 6, v{vT0}
    v_and_b32 v{vT1}, 7, v{vR16}
    v_lshl_add_u32 v{vaStQ}, v{vT1}, 1, v{vT0}
    v_lshlrev_b32 v{vT0}, 12, v{h3}
    v_lshl_add_u32 v{vT0}, v{vQd}, 10, v{vT0}
    v_bfe_u32 v{vT1}, v{vLane}, 2, 2
    v_lshl_add_u32 v{vaClrO}, v{vT1}, 8, v{vT0}
    v_and_b32 v{vT0}, 1, v{vR16}
    v_lshlrev_b32 v{vT0}, 5, v{vT0}
    v_lshl_add_u32 v{vT0}, v{qh}, 6, v{vT0}
    v_lshl_add_u32 v{vT0}, v{ql}, 4, v{vT0}
    s_lshl_b32 s{sB}, s{sW}, 7
    v_add_u32 v{vaH}, s{sB}, v{vT0}
    v_lshlrev_b32 v{vT0}, 6, v{vQd}
    v_lshl_add_u32 v{vT0}, v{h3}, 4, v{vT0}
    v_add_u32 v{vaPr}, {L_PBUF}, v{vT0}
    v_lshrrev_b32 v{vT1}, 2, v{vR16}
    v_lshl_add_u32 v{vT1}, v{vT1}, 9, v{vaPr}
    s_lshr_b32 s{sB}, s{sW}, 1
    s_lshl_b32 s{sB}, s{sB}, 8
    s_and_b32 s{sC}, s{sW}, 1
    s_lshl_b32 s{sC}, s{sC}, 3
    s_add_u32 s{sB}, s{sB}, s{sC}
    v_add_u32 v{vaPw}, s{sB}, v{vT1}
    v_lshlrev_b32 v{vT0}, 4, v{h3}
    v_add_u32 v{vaSm}, {L_SMAX}, v{vT0}
    s_lshl_b32 s{sB}, s{sW}, 2
    v_add_u32 v{vaSmW}, s{sB}, v{vaSm}
    v_lshlrev_b32 v{vT0}, 4, v{vLane}
    v_add_u32 v{vaRedW}, s{sB}, v{vT0}
    v_and_b32 v{vT1}, 1, v{vR16}
    v_lshl_add_u32 v{vT1}, v{qh}, 1, v{vT1}
    v_lshlrev_b32 v{vT1}, 4, v{vT1}
    v_add_u32 v{vaRedZ}, s{sB}, v{vT1}
    v_lshl_add_u32 v{vT0}, v{ql}, 5, v{vR16}
    v_lshlrev_b32 v{vaFinW}, 4, v{vT0}
    v_lshlrev_b32 v{vaFinZ}, 5, v{ql}
    v_lshlrev_b32 v{vT0}, 9, v{ql}
    v_add_u32 v{vaFinQZ}, 256, v{vT0}
    v_lshlrev_b32 v{vaFinO}, 4, v{vLane}
    v_lshlrev_b32 v{vT0}, 5, v{ql}
    v_lshl_add_u32 v{vaStH}, v{vR16}, 1, v{vT0}
    v_lshlrev_b32 v{vT0}, 6, v{ql}
    v_lshl_add_u32 v{vT0}, v{qh}, 5, v{vT0}
    v_lshl_add_u32 v{vaStX}, v{vR16}, 1, v{vT0}
    v_lshlrev_b32 v{vT0}, 12, v{vR16}
    v_lshl_add_u32 v{vT0}, v{vQd}, 8, v{vT0}
    s_lshl_b32 s{sB}, s{sW}, 10
    v_add_u32 v{vaStO}, s{sB}, v{vT0}
    s_lshr_b32 s{sB}, s{sM}, 4
    s_mul_i32 s{sB}, s{sB}, 15360
    s_sub_u32 s{sB}, {O_STATS}, s{sB}
    v_lshlrev_b32 v{vT0}, 8, v{vLane}
    v_add_u32 v{vaStS}, s{sB}, v{vT0}
    """)
    a(f"s_lshl_b32 s{sB}, s{sW}, 14\ns_add_u32 s{sB}, s{sB}, {L_K}")
    for c in range(4):
        a(f"""
        v_add_u32 v{vT0}, {4*c}, v{vQd}
        v_xor_b32 v{vT0}, v{vT0}, v{vR16}
        v_lshlrev_b32 v{vT0}, 4, v{vT0}
        v_lshl_add_u32 v{vT0}, v{vR16}, 8, v{vT0}
        v_add_u32 v{vKr+c}, s{sB}, v{vT0}
        """)
    for e in range(2):
        a(f"""
        v_add_u32 v{vT1}, {4*e}, v{vQd}
        v_lshrrev_b32 v{vT2}, 1, v{vR16}
        v_xor_b32 v{vT1}, v{vT1}, v{vT2}
        v_lshlrev_b32 v{vT1}, 1, v{vT1}
        v_and_b32 v{vT2}, 1, v{vR16}
        v_or_b32 v{vT1}, v{vT1}, v{vT2}
        v_lshlrev_b32 v{vT1}, 4, v{vT1}
        v_lshl_add_u32 v{vVs+e}, v{vQd}, 8, v{vT1}
        """)
    for nt in range(2):
        a(f"""
        v_lshrrev_b32 v{vT1}, 2, v{vR16}
        v_lshl_add_u32 v{vT0}, v{vQd}, 2, v{vT1}
        v_and_b32 v{vT2}, 7, v{vT0}
        s_lshl_b32 s{sB}, s{sW}, 1
        s_add_u32 s{sB}, s{sB}, {nt}
        v_xor_b32 v{vT2}, s{sB}, v{vT2}
        v_lshlrev_b32 v{vT2}, 5, v{vT2}
        v_lshl_add_u32 v{vT0}, v{vT0}, 8, v{vT2}
        v_lshl_add_u32 v{vT0}, v{h3}, 3, v{vT0}
        v_add_u32 v{vVr+nt}, {L_V}, v{vT0}
        """)
    for i in range(16): a(f"v_mov_b32 v{XA+i}, 0")
    ts("setup")
    a(f"s_waitcnt vmcnt({4*cfg.nKb1 + nPFe})")
    ts("wq_landed")
    for t in range(cfg.nKb1, nKpA): k_page(t)

    def tr_base(dst, rowbytes, rowmul, sadd, const):
        sh = rowbytes.bit_length() - 1; rm = rowmul.bit_length() - 1
        a(f"""
        v_lshrrev_b32 v{vT1}, 2, v{vR16}
        v_lshl_add_u32 v{vT1}, v{vQd}, {rm}, v{vT1}
        v_lshlrev_b32 v{vT1}, {sh}, v{vT1}
        v_and_b32 v{vT2}, 3, v{vR16}
        v_lshl_add_u32 v{vT1}, v{vT2}, 3, v{vT1}
        v_add_u32 v{vT1}, s{sadd}, v{vT1}
        v_add_u32 v{dst}, {const}, v{vT1}
        """)

    def ln_stats(s1, s2, mean, rstd):
        a(f"""
        v_mul_f32 v{mean}, {f2u(1.0/512):#x}, v{s1}
        v_mul_f32 v{s2}, {f2u(1.0/512):#x}, v{s2}
        v_fma_f32 v{s2}, -v{mean}, v{mean}, v{s2}
        v_max_f32 v{s2}, 0, v{s2}
        v_add_f32 v{s2}, {f2u(1e-5):#x}, v{s2}
        v_rsq_f32 v{rstd}, v{s2}
        """)
    def sum4r(b):
        a(f"v_add_f32 v{b}, v{b}, v{b+1}\nv_add_f32 v{b+2}, v{b+2}, v{b+3}\nv_add_f32 v{b}, v{b}, v{b+2}")

    def stats_valu(z):
        L = [f"v_add_f32 v{z}, v{vAcc+8}, v{vAcc+9}", f"v_add_f32 v{vT3}, v{vAcc+10}, v{vAcc+11}", f"v_add_f32 v{z}, v{z}, v{vT3}",
             f"v_cndmask_b32 v{z}, 0, v{z}, s[{sMDIAG}:{sMDIAG+1}]"]
        for n in (8, 4, 2, 1):
            L.append(f"v_add_f32_dpp v{z}, v{z}, v{z} row_ror:{n} row_mask:0xf bank_mask:0xf")
        L += [f"v_add_f32 v{z+1}, v{vAcc+12}, v{vAcc+13}", f"v_add_f32 v{vT3}, v{vAcc+14}, v{vAcc+15}", f"v_add_f32 v{z+1}, v{z+1}, v{vT3}",
              f"v_cndmask_b32 v{z}, v{z+1}, v{z}, s[{sMN1}:{sMN1+1}]"]
        return L
    def stats_mf(X):
        return [mf(vAcc + 8, X + 4*u, X + 4*u, "0" if u == 0 else None) for u in range(4)] + \
               [mf(vAcc + 12, X + 4*u, vOnes, "0" if u == 0 else None) for u in range(4)]

    def q_core(X):
        M = stats_mf(X) + [mf(vAcc, X + 4*u, ar(aWq + 4*u, 4), "0" if u == 0 else None) for u in range(4)]
        interleave(M, stats_valu(vU), 8, 2)
        sum4(vU + 2, vAcc, vT3)
        a(f"""
        v_permlane16_swap_b32 v{vU+2}, v{vU}
        v_add_f32 v{vU}, v{vU}, v{vU+2}
        ds_write_b32 v{vaRedW}, v{vU} offset:{R_Q}
        s_waitcnt lgkmcnt(0)
        s_barrier
        """)
    def q_final(first):
        lab = a.label("qf")
        a(f"s_cmp_eq_u32 s{sW}, 0\ns_cbranch_scc0 {lab}")
        setexec(0xFFFFFFFF)
        a(f"""
        ds_read_b128 {vr(vU,4)}, v{vaFinW} offset:{R_Q}
        ds_read_b128 {vr(vU+4,4)}, v{vaFinQZ} offset:{R_Q}
        ds_read_b128 {vr(vU+8,4)}, v{vaFinQZ} offset:{R_Q+16}
        """)
        if first:
            a(f"ds_read_b128 {vr(vU+12,4)}, v{vaFinW} offset:{R_COL}")
        a("s_waitcnt lgkmcnt(0)")
        if first:
            sum4r(vU + 12); a(f"v_mov_b32 v{vCs}, v{vU+12}")
        sum4r(vU + 4); sum4r(vU + 8); sum4r(vU)
        ln_stats(vU + 4, vU + 8, vU + 5, vU + 6)
        a(f"""
        v_fma_f32 v{vU}, -v{vU+5}, v{vCs}, v{vU}
        v_mul_f32 v{vU}, v{vU}, v{vU+6}
        """)
        dpp("v_mov_b32", vU + 1, vU, None, "quad_perm:[1,0,3,2]")
        a(f"v_cvt_pk_bf16_f32 v{vU+2}, v{vU}, v{vU+1}")
        if first:
            a(f"""
            v_mov_b32 v{vQ1d}, v{vU+2}
            v_mov_b32 v{vQ1d+1}, s{sTX}
            s_lshl_b32 s{sB}, s{sJ}, 12
            s_lshl_b32 s{sC}, s{sM}, 7
            s_add_u32 s{sB}, s{sB}, s{sC}
            s_add_u32 s{sB}, s{sB}, {WS_Q1}
            v_lshlrev_b32 v{vT0}, 1, v{vaStH}
            v_add_u32 v{vQ1a}, s{sB}, v{vT0}
            """)
            setexec(0x55555555)
            a(f"buffer_store_dwordx2 {vr(vQ1d,2)}, v{vQ1a}, {sr(sWS,4)}, 0 offen" + (" sc1" if cfg.force_global else ""))
        else:
            a(f"v_min_u32 v{vU+2}, 0xfffffffe, v{vU+2}")
            setexec(0x55555555)
            store_local(f"buffer_store_dword v{vU+2}, v{vaStQ}, {sr(sWS,4)}, s{sQ2w} offen")
        setexec(FULL)
        a(f"{lab}:")

    def s_qk_max():
        for c in range(4):
            for t in range(4):
                mfma(vS + 4*t, ar(aK + 16*t + 4*c, 4), vQ + 4*c, "0" if c == 0 else None)
        for t in range(1, 4):
            for r in range(4):
                dpp("v_mov_b32", vS + r, vS + 4*t + r, None, f"row_shr:{4*t}", bm=f"0x{1<<t:x}")
        a(f"v_max3_f32 v{vU}, v{vS}, v{vS+1}, v{vS+2}\nv_max_f32 v{vU}, v{vU}, v{vS+3}")
        row_reduce("v_max_f32", vU, (8, 4))
        xquad_reduce("v_max_f32", vU, vT0)
        setexec(0xF)
        a(f"ds_write_b32 v{vaSmW}, v{vU}")
        setexec(FULL)
        a("s_waitcnt lgkmcnt(0)\ns_barrier")
    def s_exp_p():
        a(f"""
        ds_read_b128 {vr(vU+4,4)}, v{vaSm}
        s_mov_b32 s{sB}, {f2u(C_SCALE):#x}
        s_waitcnt lgkmcnt(0)
        v_max3_f32 v{vU}, v{vU+4}, v{vU+5}, v{vU+6}
        v_max_f32 v{vU}, v{vU}, v{vU+7}
        v_mul_f32 v{vMc}, s{sB}, v{vU}
        """)
        for i in range(4): a(f"v_fma_f32 v{vS+i}, v{vS+i}, s{sB}, -v{vMc}")
        for i in range(4): a(f"v_exp_f32 v{vS+i}, v{vS+i}")
        a(f"""
        v_cvt_pk_bf16_f32 v{vU+2}, v{vS}, v{vS+1}
        v_cvt_pk_bf16_f32 v{vU+3}, v{vS+2}, v{vS+3}
        ds_write_b64 v{vaPw}, {vr(vU+2,2)}
        v_add_f32 v{vU}, v{vS}, v{vS+1}
        v_add_f32 v{vU+1}, v{vS+2}, v{vS+3}
        v_add_f32 v{vU}, v{vU}, v{vU+1}
        """)
        row_reduce("v_add_f32", vU, (8, 4))
        xquad_reduce("v_add_f32", vU, vT0)
        setexec(0xF)
        a(f"ds_write_b32 v{vaSmW}, v{vU} offset:{L_LSUM-L_SMAX}")
        setexec(FULL)
        a("s_waitcnt lgkmcnt(0)\ns_barrier")
        for blk in range(8):
            a(f"ds_read_b128 {vr(vP+4*blk,4)}, v{vaPr} offset:{blk*256}")
    def s_stats_prep():
        lab = a.label("st")
        a(f"s_cmp_eq_u32 s{sW}, 3\ns_cbranch_scc0 {lab}")
        a(f"""
        ds_read_b128 {vr(vU+4,4)}, v{vaSm} offset:{L_LSUM-L_SMAX}
        s_add_u32 s{sB}, s{sT}, s{sL}
        s_add_u32 s{sB}, s{sB}, 1
        v_mov_b32 v{vMc+2}, s{sB}
        s_waitcnt lgkmcnt(0)
        """)
        sum4r(vU + 4)
        a(f"v_mov_b32 v{vMc+1}, v{vU+4}")
        a(f"{lab}:")
    def s_stats_store(wait):
        lab = a.label("ss")
        a(f"s_cmp_eq_u32 s{sW}, 3\ns_cbranch_scc0 {lab}")
        if wait is not None: a(f"s_waitcnt vmcnt({wait})")
        setexec(0xF)
        store_local(f"buffer_store_dwordx4 {vr(vMc,4)}, v{vaStS}, {sr(sWS,4)}, s{sOown} offen")
        setexec(FULL)
        a(f"{lab}:")
    accO = vAcc
    def v_tr(blk):
        t, p = blk >> 1, blk & 1
        for nt in range(2):
            a(f"ds_read_b64_tr_b16 {ar(aV+8*blk+4*nt,2)}, v{vVr+nt} offset:{(4*t+2*p)*4096}")
            a(f"ds_read_b64_tr_b16 {ar(aV+8*blk+4*nt+2,2)}, v{vVr+nt} offset:{(4*t+2*p+1)*4096}")
    def pv(blks, first):
        for blk in blks:
            for nt in range(2):
                mfma(accO + 4*nt, ar(aV + 8*blk + 4*nt, 4), vP + 4*blk, "0" if (first and blk == blks[0]) else None)
    def s_out():
        for i in range(4):
            a(f"v_cvt_pk_bf16_f32 v{vU+i}, v{accO+2*i}, v{accO+2*i+1}")
        for i in range(4):
            a(f"v_min_u32 v{vU+i}, 0xfffffffe, v{vU+i}")
        setexec(EM4)
        store_local(f"buffer_store_dwordx4 {vr(vU,4)}, v{vaStO}, {sr(sWS,4)}, s{sOown} offen")
        setexec(FULL)

    a(f"s_lshl_b32 s{sB}, s{sW}, 12")
    tr_base(vT0, 32, 8, sB, L_WQ)
    for u in range(4):
        a(f"ds_read_b64_tr_b16 {ar(aWq+4*u,2)}, v{vT0} offset:{u*1024}")
        a(f"ds_read_b64_tr_b16 {ar(aWq+4*u+2,2)}, v{vT0} offset:{u*1024+128}")
    a(f"""
    v_lshrrev_b32 v{vT0}, 3, v{vR16}
    v_lshlrev_b32 v{vT0}, 10, v{vT0}
    v_lshl_add_u32 v{vT0}, v{vQd}, 4, v{vT0}
    s_lshl_b32 s{sB}, s{sW}, 8
    v_add_u32 v{vT0}, s{sB}, v{vT0}
    s_barrier
    """)
    setexec(0x0101010101010101)
    for u in range(4):
        a(f"ds_read_b128 {vr(XA+4*u,4)}, v{vT0} offset:{L_X0+u*64}")
    setexec(FULL)
    a(f"""
    s_waitcnt lgkmcnt(0)
    s_add_u32 s{sT}, s{sT}, 0x9e3779b0
    s_and_b32 s{sT}, s{sT}, 0xfffffff0
    s_or_b32 s{sTX}, s{sT}, s{sXcc}
    """)
    for u in range(4): mfma(vS, vOnes, ar(aWq + 4*u, 4), "0" if u == 0 else None)
    a(f"ds_write_b32 v{vaRedW}, v{vS} offset:{R_COL}")
    q_core(XA)
    q_final(True)
    a("s_barrier")
    ts("q1_pub")

    def v_group(t):
        page_off(t, sD)
        a(f"s_lshl_b32 s{sC}, s{sW}, 12\ns_add_u32 s{sC}, s{sC}, {L_V + t*16384}\ns_mov_b32 m0, s{sC}\ns_nop 0")
        for ii in range(4):
            a(f"buffer_load_dwordx4 v{vVs+(ii&1)}, {sr(sVS,4)}, s{sD} offen offset:{ii*1024} nt lds")
    def pace(): a(f"s_waitcnt vmcnt({cfg.pace})")
    for t in range(nKpA, 4):
        pace(); k_page(t)
    a(f"""
    v_lshrrev_b32 v{vT0}, 2, v{vLane}
    v_lshlrev_b32 v{vT0}, 7, v{vT0}
    v_and_b32 v{vT1}, 3, v{vLane}
    v_lshl_add_u32 v{vKs}, v{vT1}, 4, v{vT0}        ; (vKs is free once K is issued)
    s_lshl_b32 s{sA}, s{sJ}, 12
    s_lshr_b32 s{sB}, s{sM}, 4
    s_lshl_b32 s{sB}, s{sB}, 6
    s_add_u32 s{sA}, s{sA}, s{sB}
    s_add_u32 s{sA}, s{sA}, {WS_Q1}
    v_and_b32 v{vT0}, 3, v{vR16}
    v_lshlrev_b32 v{vT0}, 9, v{vT0}
    v_lshrrev_b32 v{vT1}, 1, v{vQd}
    v_lshl_add_u32 v{vT0}, v{vT1}, 6, v{vT0}
    v_and_b32 v{vT1}, 1, v{vQd}
    v_lshl_add_u32 v{vKs+1}, v{vT1}, 5, v{vT0}
    v_lshlrev_b32 v{vKs+2}, 5, v{vLane}
    """)
    def q1_dma(img):
        a(f"""
        s_mov_b32 m0, {L_QG + img*2048}
        s_add_u32 s{sB}, s{sA}, 2048
        buffer_load_dwordx4 v{vKs}, {sr(sWS,4)}, s{sA} offen sc1 lds
        s_mov_b32 m0, {L_QG + img*2048 + 1024}
        s_nop 0
        buffer_load_dwordx4 v{vKs}, {sr(sWS,4)}, s{sB} offen sc1 lds
        """)
    def w0(fn):
        lab = a.label("w0")
        a(f"s_cmp_eq_u32 s{sW}, 0\ns_cbranch_scc0 {lab}")
        fn()
        a(f"{lab}:")
    def q1_dup():
        setexec(0x55555555)
        a(f"buffer_store_dwordx2 {vr(vQ1d,2)}, v{vQ1a}, {sr(sWS,4)}, 0 offen sc1")
        setexec(FULL)
    g.q1_dup = lambda: w0(q1_dup)
    pace()
    if cfg.pf_stream and cfg.pf_pos == 0: emit_wpf(sKS2, sWQ, True)
    v_group(0)
    a("s_waitcnt vmcnt(4)")
    for t in range(4):
        for c in range(4):
            a(f"ds_read_b128 {ar(aK+16*t+4*c,4)}, v{vKr+c} offset:{t*4096}")
    ts("k_landed")
    w0(lambda: q1_dma(0))
    if cfg.pf_stream and cfg.pf_pos == 1: emit_wpf(sKS, sWQ, True)
    v_group(1)
    a("s_waitcnt vmcnt(4)")
    if cfg.pf_stream and cfg.pf_pos == 2: emit_wpf(sKS, sWQ, True)
    v_group(2)
    vG = vA
    def q1_tags(img):
        a(f"""
        ds_read_b128 {vr(vG,4)}, v{vKs+2} offset:{L_QG + img*2048}
        ds_read_b128 {vr(vG+4,4)}, v{vKs+2} offset:{L_QG + img*2048 + 16}
        s_waitcnt lgkmcnt(0)
        v_xor_b32 v{vT1}, s{sTX}, v{vG+1}
        v_xor_b32 v{vT2}, s{sTX}, v{vG+3}
        v_xor_b32 v{vT3}, s{sTX}, v{vG+5}
        v_xor_b32 v{vT0}, s{sTX}, v{vG+7}
        v_or3_b32 v{vT1}, v{vT1}, v{vT2}, v{vT3}
        v_or_b32 v{vT1}, v{vT1}, v{vT0}
        v_cmp_lt_u32 vcc, 15, v{vT1}
        """)
    a("s_barrier")
    q1_tags(0)
    a(f"s_mov_b32 s{sC}, {L_QG}\ns_cbranch_vccz L_q1ok")
    w0(lambda: (q1_dma(1), a("s_waitcnt vmcnt(0)")))
    a("s_barrier")
    q1_tags(1)
    a(f"s_mov_b32 s{sC}, {L_QG + 2048}\ns_cbranch_vccz L_q1ok")
    a("L_q1retry:")
    a(f"s_sub_u32 s{sBud}, s{sBud}, 1\ns_cbranch_scc1 L_abort\ns_barrier")
    w0(lambda: (q1_dup(), q1_dma(0), a("s_waitcnt vmcnt(0)")))
    a("s_barrier")
    q1_tags(0)
    a(f"s_mov_b32 s{sC}, {L_QG}\ns_cbranch_vccnz L_q1retry")
    a("L_q1ok:")
    a(f"""
    v_cmp_ne_u32 vcc, 0, v{vT1}
    v_add_u32 v{vT0}, s{sC}, v{vKs+1}
    s_cmp_eq_u64 vcc, 0
    s_cselect_b32 s{sLocal}, 1, 0
    """)
    setexec(EM4)
    for c in range(4):
        a(f"ds_read2_b32 {vr(vQ+4*c,2)}, v{vT0} offset0:{c*32} offset1:{c*32+2}")
        a(f"ds_read2_b32 {vr(vQ+4*c+2,2)}, v{vT0} offset0:{c*32+4} offset1:{c*32+6}")
    setexec(FULL)
    lab = a.label("nl")
    a(f"s_cmp_eq_u32 s{sLocal}, 0\ns_cbranch_scc0 {lab}")
    g.q1_dup()
    a(f"{lab}:")
    a("s_waitcnt lgkmcnt(0)")
    ts("q1_got")
    s_qk_max()
    ts("s1_max")
    lab = a.label("c0")
    a(f"""
    s_waitcnt vmcnt(4)
    s_cmp_eq_u32 s{sW}, 3
    s_cbranch_scc0 {lab}
    v_mov_b32 v{vU+8}, -1
    v_mov_b32 v{vU+9}, -1
    v_mov_b32 v{vU+10}, -1
    v_mov_b32 v{vU+11}, -1
    """)
    store_local(f"buffer_store_dwordx4 {vr(vU+8,4)}, v{vaClrO}, {sr(sWS,4)}, s{sOown} offen")
    a(f"{lab}:")
    if cfg.warm:
        lab = a.label("ws")
        a(f"s_cmp_lt_u32 s{sM}, 16\ns_cbranch_scc0 {lab}")
        a(f"buffer_load_dword v{vJ}, v{vaS0}, {sr(sWS,4)}, s{sOcons} offen sc1")
        a(f"buffer_load_dword v{vJ}, v{vaS1}, {sr(sWS,4)}, s{sOcons} offen sc1")
        a(f"{lab}:")
    v_group(3)
    nPF = emit_wpf(sKS, sWQ, True) if (cfg.pf_stream and not cfg.pf_early and cfg.pf_pos is None) else 0

    def s1_tail(nW=0, maybe_none=False):
        def wait_v(base):
            if nW and maybe_none:
                l1 = a.label("wv"); l2 = a.label("wv")
                a(f"s_cmp_ge_u32 s{sIdx}, 14\ns_cbranch_scc1 {l1}\ns_waitcnt vmcnt({base + nW})\ns_branch {l2}\n{l1}:\ns_waitcnt vmcnt({base})\n{l2}:")
            else:
                a(f"s_waitcnt vmcnt({base + nW})")
        s_exp_p()
        s_stats_prep()
        blks = [0, 1, 2, 3]
        for blk in blks: v_tr(blk)
        a("s_waitcnt lgkmcnt(0)")
        pv(blks, True)
        for t in (2, 3):
            wait_v(4*(3-t))
            a("s_barrier")
            if t == 3: ts("v_landed")
            blks = [2*t, 2*t + 1]
            for blk in blks: v_tr(blk)
            a("s_waitcnt lgkmcnt(0)")
            pv(blks, False)
        s_out()
        s_stats_store(None)
        lab = a.label("c1")
        a(f"""
        s_cmp_eq_u32 s{sW}, 0
        s_cbranch_scc0 {lab}
        v_mov_b32 v{vU+8}, -1
        v_mov_b32 v{vU+9}, -1
        v_mov_b32 v{vU+10}, -1
        v_mov_b32 v{vU+11}, -1
        s_add_u32 s{sB}, s{sOown}, {O_L}
        """)
        store_local(f"buffer_store_dwordx4 {vr(vU+8,4)}, v{vaClrO}, {sr(sWS,4)}, s{sB} offen")
        q1_dup()
        a(f"{lab}:")
        ts("s1_pub")

    def x_poll(sbase, dst, sleep):
        l = a.label("xp"); ok = a.label("xok")
        if cfg.sleep_x0: a(f"s_sleep {cfg.sleep_x0}")
        a(f"{l}:")
        cnt("n_x")
        for u in range(4):
            if u == 0: a(f"s_mov_b32 m0, s{sXI}\ns_nop 0")
            else: a(f"s_add_u32 s{sB}, s{sXI}, {u*(1024-128)}\ns_mov_b32 m0, s{sB}\ns_nop 0")
            a(f"buffer_load_dwordx4 v{vaXg}, {sr(sWS,4)}, s{sbase} offen offset:{u*128} sc1 lds")
        a("s_waitcnt vmcnt(0)")
        for u in range(4):
            a(f"ds_read_b128 {vr(dst+4*u,4)}, v{vaXr} offset:{u*1024}")
        a("s_waitcnt lgkmcnt(0)")
        sent_check([dst+i for i in range(16)], vT0, ok)
        spin_fail(l, sleep)
        a(f"{ok}:")

    def warm_q2():
        if not cfg.warm: return
        a(f"s_lshl_b32 s{sB}, s{sJ}, 11\ns_add_u32 s{sB}, s{sB}, {WS_Q2}\nv_lshlrev_b32 v{vT0}, 7, v{vLane}")
        setexec(0xFFFF)
        a(f"buffer_load_dword v{vJ}, v{vT0}, {sr(sWS,4)}, s{sB} offen sc1")
        setexec(FULL)
    def warm_o(dl, data=True):
        if not cfg.warm: return
        a(f"s_add_u32 s{sB}, s{sOcons}, {dl*O_L}")
        if data:
            a(f"""
            v_and_b32 v{vT0}, 31, v{vLane}
            v_lshlrev_b32 v{vT0}, 7, v{vT0}
            v_lshrrev_b32 v{vT1}, 5, v{vLane}
            v_lshl_add_u32 v{vT0}, v{vT1}, 14, v{vT0}
            buffer_load_dword v{vJ}, v{vT0}, {sr(sWS,4)}, s{sB} offen sc1
            """)
        a(f"buffer_load_dword v{vJ}, v{vaS0}, {sr(sWS,4)}, s{sB} offen sc1")
        a(f"buffer_load_dword v{vJ}, v{vaS1}, {sr(sWS,4)}, s{sB} offen sc1")

    def tag_check_all():
        l = a.label("tc"); ok = a.label("tcok")
        a(f"""
        s_lshl_b32 s{sB}, s{sW}, 13
        s_add_u32 s{sB}, s{sB}, {WS_Q1+4}
        v_lshlrev_b32 v{vT0}, 7, v{vLane}
        {l}:
        buffer_load_dword v{vT1}, v{vT0}, {sr(sWS,4)}, s{sB} offen sc1
        s_waitcnt vmcnt(0)
        v_xor_b32 v{vT1}, s{sT}, v{vT1}
        v_cmp_lt_u32 vcc, 15, v{vT1}
        s_cbranch_vccz {ok}
        """)
        spin_fail(l, 2)
        a(f"{ok}:")

    def line_final(red):
        if cfg.doorbell and cfg.db_early:
            a(f"v_mov_b32 v{vT0}, 0\nv_mov_b32 v{vT1}, s{sDBtag}\ns_mov_b64 exec, 1")
            store_local(f"buffer_store_dword v{vT1}, v{vT0}, {sr(sWS,4)}, s{sDBw} offen")
            a("s_mov_b64 exec, -1")
        a(f"""
        ds_read_b128 {vr(vU,4)}, v{vaFinO} offset:{red}
        v_mov_b32 v{vT0}, 0
        v_mov_b32 v{vT1}, s{sDBtag}
        s_waitcnt lgkmcnt(0)
        v_add_f32 v{vU}, v{vU}, v{vU+1}
        v_add_f32 v{vU+2}, v{vU+2}, v{vU+3}
        v_add_f32 v{vU}, v{vU}, v{vResF}
        v_add_f32 v{vResF}, v{vU}, v{vU+2}
        """)
        dpp("v_mov_b32", vU + 1, vResF, None, "quad_perm:[1,0,3,2]")
        a(f"v_cvt_pk_bf16_f32 v{vU}, v{vResF}, v{vU+1}\nv_min_u32 v{vU}, 0xfffffffe, v{vU}")
        if cfg.doorbell and not cfg.db_early:
            a("s_mov_b64 exec, 1")
            store_local(f"buffer_store_dword v{vT1}, v{vT0}, {sr(sWS,4)}, s{sDBw} offen")
        setexec(EMEV)
        a(f"buffer_store_dword v{vU}, v{vaStX}, {sr(sWS,4)}, s{sXw} offen sc1")
        setexec(FULL)
    def advance_hop():
        a(f"s_add_u32 s{sXw}, s{sXw}, 16384\ns_add_u32 s{sDBw}, s{sDBw}, 1024\ns_add_u32 s{sDBtag}, s{sDBtag}, 1")

    def db_setup(hop_w, hop_r):
        a(f"""
        s_lshl_b32 s{sDBr}, s{sJ}, 7
        s_add_u32 s{sDBr}, s{sDBr}, {WS_DB}
        s_lshl_b32 s{sDBw}, s{sIdx}, 2
        s_add_u32 s{sDBw}, s{sDBw}, s{sDBr}
        s_add_u32 s{sDBw}, s{sDBw}, {hop_w*1024}
        s_add_u32 s{sDBtag}, s{sT}, {8+hop_w}
        """)
    def db_wait(hop_off_s, tag_add_s=None, const_hop=None):
        if not cfg.doorbell: return
        l = a.label("db"); ok = a.label("dbok")
        if const_hop is not None:
            a(f"s_add_u32 s{sA}, s{sDBr}, {const_hop*1024}\ns_add_u32 s{sC}, s{sT}, {8+const_hop}")
        else:
            a(f"s_lshl_b32 s{sA}, s{sL}, 11\ns_add_u32 s{sA}, s{sA}, s{sDBr}\ns_add_u32 s{sA}, s{sA}, {hop_off_s*1024}")
            a(f"s_lshl_b32 s{sC}, s{sL}, 1\ns_add_u32 s{sC}, s{sC}, s{sT}\ns_add_u32 s{sC}, s{sC}, {8+hop_off_s}")
        a(f"v_lshlrev_b32 v{vT0}, 2, v{vLane}")
        setexec(0xFFFF)
        a(f"""
        {l}:
        buffer_load_dword v{vT1}, v{vT0}, {sr(sWS,4)}, s{sA} offen sc1
        s_waitcnt vmcnt(0)
        v_cmp_ne_u32 vcc, s{sC}, v{vT1}
        s_cbranch_vccz {ok}
        """)
        spin_fail(l)
        a(f"{ok}:")
        setexec(FULL)

    def o_stats_poll():
        l = a.label("os"); ok = a.label("osok")
        a(f"s_add_u32 s{sA}, s{sT}, s{sL}\ns_add_u32 s{sA}, s{sA}, 1")
        a(f"{l}:")
        cnt("n_ostat")
        a(f"buffer_load_dwordx3 {vr(vSt,3)}, v{vaS0}, {sr(sWS,4)}, s{sOcons} offen sc1")
        a(f"buffer_load_dwordx3 {vr(vSt+4,3)}, v{vaS1}, {sr(sWS,4)}, s{sOcons} offen sc1")
        a("s_waitcnt vmcnt(0)")
        a(f"""
        v_xor_b32 v{vT0}, s{sA}, v{vSt+2}
        v_xor_b32 v{vT1}, s{sA}, v{vSt+6}
        v_or_b32 v{vT0}, v{vT0}, v{vT1}
        v_cmp_ne_u32 vcc, 0, v{vT0}
        s_cbranch_vccz {ok}
        """)
        spin_fail(l, cfg.sleep_o)
        a(f"{ok}:")
        ts_dyn("o_st0", "o_st1")

    def o_phase():
        OA = vA
        o_stats_poll()
        l2 = a.label("op"); ok2 = a.label("ook")
        a(f"{l2}:")
        cnt("n_oheavy")
        for b in range(2):
            for c in range(4):
                a(f"buffer_load_dwordx4 {vr(OA+16*b+4*c,4)}, v{vaO0+b}, {sr(sWS,4)}, s{sOcons} offen offset:{c*1024} sc1")
        for b in range(2):
            a(f"v_mov_b32 v{vU+b}, v{vSt+4*b}")
        for n in (8, 4, 2, 1):
            for b in range(2): dpp("v_max_f32", vU + b, vU + b, vU + b, f"row_ror:{n}")
        for b in range(2): a(f"v_sub_f32 v{vU+b}, v{vSt+4*b}, v{vU+b}")
        for b in range(2): a(f"v_exp_f32 v{vU+b}, v{vU+b}")
        for b in range(2): a(f"v_mul_f32 v{vU+2+b}, v{vU+b}, v{vSt+4*b+1}")
        for n in (8, 4, 2, 1):
            for b in range(2): dpp("v_add_f32", vU + 2 + b, vU + 2 + b, vU + 2 + b, f"row_ror:{n}")
        for b in range(2): a(f"v_rcp_f32 v{vU+2+b}, v{vU+2+b}")
        for b in range(2): a(f"v_mul_f32 v{vW+b}, v{vU+b}, v{vU+2+b}")
        a(f"v_mov_b32 v{vT0}, 0")
        if cfg.diag and cfg.ts_only and "o_w0" in cfg.ts_only:
            ts_dyn("o_w0", "o_w1")
            a("s_waitcnt vmcnt(7)")
            ts_dyn("o_f0", "o_f1")
        for i in range(8):
            b, c = i >> 2, i & 3
            r = OA + 16*b + 4*c
            a(f"s_waitcnt vmcnt({7-i})")
            for nt in range(2):
                mfma(vAcc + 8*b + 4*nt, r, ar(aW2 + 8*c + 4*nt, 4), "0" if c == 0 else None)
            a(f"v_max3_u32 v{vT0}, v{vT0}, v{r}, v{r+1}\nv_max3_u32 v{vT0}, v{vT0}, v{r+2}, v{r+3}")
        a(f"v_cmp_eq_u32 vcc, -1, v{vT0}\ns_cbranch_vccz {ok2}")
        spin_fail(l2)
        a(f"{ok2}:")
        ts_dyn("o_got0", "o_got1")
        for b in range(2):
            for nt in range(2):
                t = vU + 2*b + nt; acc = vAcc + 8*b + 4*nt
                dpp("v_mul_f32", t, vW + b, acc, "row_newbcast:0")
                for r in range(1, 4):
                    dpp("v_fmac_f32", t, vW + b, acc + r, f"row_newbcast:{r}")
        a(f"""
        v_permlane32_swap_b32 v{vU}, v{vU+1}
        v_permlane32_swap_b32 v{vU+2}, v{vU+3}
        v_add_f32 v{vU}, v{vU}, v{vU+1}
        v_add_f32 v{vU+2}, v{vU+2}, v{vU+3}
        v_permlane16_swap_b32 v{vU}, v{vU+2}
        v_add_f32 v{vU}, v{vU}, v{vU+2}
        ds_write_b32 v{vaRedW}, v{vU} offset:{R_O}
        s_waitcnt lgkmcnt(0)
        s_barrier
        """)
        lab = a.label("of")
        a(f"s_cmp_eq_u32 s{sW}, 0\ns_cbranch_scc0 {lab}")
        line_final(R_O)
        a(f"{lab}:")
        advance_hop()
        ts_dyn("o_pub0", "o_pub1")

    def g_phase():
        X = vA
        db_wait(0)
        x_poll(sXr, X, cfg.sleep_x)
        ts_dyn("g_got0", "g_got1")
        M = stats_mf(X)
        for u in range(4):
            M.append(mf(vAcc, X + 4*u, ar(aW2 + 8*u, 4), "0" if u == 0 else None))
            M.append(mf(vAcc + 4, X + 4*u, ar(aW2 + 8*u + 4, 4), "0" if u == 0 else None))
        V = stats_valu(vU) + [f"v_mov_b32 v{vU+1}, v{vU}", f"v_permlane16_swap_b32 v{vU}, v{vU+1}", f"v_add_f32 v{vU}, v{vU}, v{vU+1}"]
        interleave(M, V, 8, 2)
        setexec("s[%d:%d]" % (sM2, sM2 + 1))
        a(f"ds_write_b32 v{vaRedZ}, v{vU} offset:{R_GZ}")
        setexec(FULL)
        sum4(vU + 2, vAcc, vT3)
        sum4(vU + 3, vAcc + 4, vT3)
        a(f"""
        v_permlane16_swap_b32 v{vU+2}, v{vU+3}
        v_add_f32 v{vU+2}, v{vU+2}, v{vU+3}
        ds_write_b32 v{vaRedW}, v{vU+2} offset:{R_G}
        s_waitcnt lgkmcnt(0)
        s_barrier
        """)
        lab = a.label("gf")
        a(f"s_cmp_eq_u32 s{sW}, 0\ns_cbranch_scc0 {lab}")
        setexec(0xFFFFFFFF)
        a(f"""
        ds_read_b128 {vr(vU+8,4)}, v{vaFinZ} offset:{R_GZ}
        ds_read_b128 {vr(vU+12,4)}, v{vaFinZ} offset:{R_GZ+16}
        ds_read_b128 {vr(vU,4)}, v{vaFinW} offset:{R_G}
        ds_read_b128 {vr(vU+4,4)}, v{vaFinW} offset:{R_G+256}
        s_lshl_b32 s{sB}, s{sIdx}, 6
        s_add_u32 s{sB}, s{sB}, s{sHb}
        s_waitcnt lgkmcnt(2)
        """)
        sum4r(vU + 8); sum4r(vU + 12)
        ln_stats(vU + 8, vU + 12, vU + 9, vU + 10)
        a("s_waitcnt lgkmcnt(0)")
        sum4r(vU); sum4r(vU + 4)
        a(f"""
        v_fma_f32 v{vU}, -v{vU+9}, v{vCg}, v{vU}
        v_fma_f32 v{vU+4}, -v{vU+9}, v{vCu}, v{vU+4}
        v_mul_f32 v{vU+1}, {f2u(-1.4426950408889634):#x}, v{vU+10}
        v_mul_f32 v{vU}, v{vU}, v{vU+1}
        v_exp_f32 v{vU}, v{vU}
        v_mul_f32 v{vU+4}, v{vU+4}, v{vU+10}
        v_add_f32 v{vU}, 1.0, v{vU}
        v_rcp_f32 v{vU}, v{vU}
        s_nop 0
        v_mul_f32 v{vU}, v{vU}, v{vU+4}
        """)
        dpp("v_mov_b32", vU + 1, vU, None, "quad_perm:[1,0,3,2]")
        a(f"v_cvt_pk_bf16_f32 v{vU}, v{vU}, v{vU+1}\nv_min_u32 v{vU}, 0xfffffffe, v{vU}")
        setexec(0x55555555)
        store_local(f"buffer_store_dword v{vU}, v{vaStH}, {sr(sWS,4)}, s{sB} offen")
        setexec(FULL)
        a(f"{lab}:")
        ts_dyn("g_pub0", "g_pub1")

    def d_phase():
        lab0 = a.label("dr0"); l2 = a.label("dr"); ok2 = a.label("drok")
        l = a.label("dp"); ok = a.label("dok"); one = a.label("done"); l3 = a.label("dp1");
        a(f"s_cmp_eq_u32 s{sW}, 3\ns_cbranch_scc1 {l3}")
        setexec(EM2)
        a(f"{l}:")
        a(f"buffer_load_dwordx4 {vr(vHop,4)}, v{vaH}, {sr(sWS,4)}, s{sHb} offen sc1")
        a(f"buffer_load_dwordx4 {vr(vHop+4,4)}, v{vaH}, {sr(sWS,4)}, s{sHb} offen offset:512 sc1")
        a("s_waitcnt vmcnt(0)")
        sent_check([vHop+i for i in range(8)], vT1, ok)
        spin_fail(l)
        a(f"{l3}:")
        setexec(EM2)
        a(f"{l3}b:")
        a(f"buffer_load_dwordx4 {vr(vHop,4)}, v{vaH}, {sr(sWS,4)}, s{sHb} offen sc1")
        a("s_waitcnt vmcnt(0)")
        sent_check([vHop+i for i in range(4)], vT1, ok)
        spin_fail(f"{l3}b")
        a(f"{ok}:")
        setexec(FULL)
        for nt in range(2):
            mfma(vAcc + 4*nt, vHop, ar(aWd + 4*nt, 4), "0")
        for nt in range(2):
            mfma(vAcc + 4*nt, vHop + 4, ar(aWd + 8 + 4*nt, 4))
        a(f"""
        v_permlane16_swap_b32 v{vAcc}, v{vAcc+1}
        v_permlane16_swap_b32 v{vAcc+4}, v{vAcc+5}
        v_permlane32_swap_b32 v{vAcc}, v{vAcc+4}
        ds_write_b32 v{vaRedW}, v{vAcc} offset:{R_D}
        s_waitcnt lgkmcnt(0)
        s_barrier
        """)
        lab = a.label("df")
        a(f"s_cmp_eq_u32 s{sW}, 0\ns_cbranch_scc0 {lab}")
        line_final(R_D)
        a(f"{lab}:")
        advance_hop()
        ts_dyn("d_pub0", "d_pub1")

    a(f"s_cmp_lt_u32 s{sM}, 16\ns_cbranch_scc0 L_roleB")
    def down_slices():
        a(f"""
        v_lshrrev_b32 v{vT0}, 2, v{vLane}
        v_lshlrev_b32 v{vT0}, 10, v{vT0}
        v_and_b32 v{vT1}, 3, v{vLane}
        v_lshl_add_u32 v{vT0}, v{vT1}, 4, v{vT0}
        s_mul_i32 s{sB}, s{sJ}, {224*1024}
        s_lshl_b32 s{sC}, s{sIdx}, 6
        s_add_u32 s{sB}, s{sB}, s{sC}
        s_lshl_b32 s{sC}, s{sW}, 15
        s_add_u32 s{sB}, s{sB}, s{sC}
        s_lshl_b32 s{sC}, s{sW}, 14
        s_add_u32 s{sC}, s{sC}, {L_K + W_DN}
        s_mov_b32 m0, s{sC}
        s_add_u32 s{sD}, s{sB}, 16384
        buffer_load_dwordx4 v{vT0}, {sr(sDN,4)}, s{sB} offen{SLN} lds
        s_add_u32 s{sC}, s{sC}, 1024
        s_mov_b32 m0, s{sC}
        s_nop 0
        buffer_load_dwordx4 v{vT0}, {sr(sDN,4)}, s{sD} offen{SLN} lds
        s_cmp_eq_u32 s{sW}, 3
        s_cbranch_scc1 L_nod2
        s_add_u32 s{sB}, s{sB}, {4*32768}
        s_add_u32 s{sC}, s{sC}, 1024
        s_mov_b32 m0, s{sC}
        s_add_u32 s{sD}, s{sB}, 16384
        buffer_load_dwordx4 v{vT0}, {sr(sDN,4)}, s{sB} offen{SLN} lds
        s_add_u32 s{sC}, s{sC}, 1024
        s_mov_b32 m0, s{sC}
        s_nop 0
        buffer_load_dwordx4 v{vT0}, {sr(sDN,4)}, s{sD} offen{SLN} lds
        L_nod2:
        """)
    def down_operands():
        a(f"s_lshl_b32 s{sB}, s{sW}, 14")
        tr_base(vT0, 64, 8, sB, L_K + W_DN)
        for nt in range(2):
            a(f"ds_read_b64_tr_b16 {ar(aWd+4*nt,2)}, v{vT0} offset:{nt*32}")
            a(f"ds_read_b64_tr_b16 {ar(aWd+4*nt+2,2)}, v{vT0} offset:{nt*32+256}")
        a(f"s_cmp_eq_u32 s{sW}, 3\ns_cbranch_scc1 L_dn3")
        for nt in range(2):
            a(f"ds_read_b64_tr_b16 {ar(aWd+8+4*nt,2)}, v{vT0} offset:{2048+nt*32}")
            a(f"ds_read_b64_tr_b16 {ar(aWd+8+4*nt+2,2)}, v{vT0} offset:{2048+nt*32+256}")
        a("s_branch L_dn4\nL_dn3:")
        for i in range(8): a(f"v_accvgpr_write_b32 a{aWd+8+i}, 0")
        a("L_dn4:")
    g.role = "A"; ts_split = g.ts
    def wo_slices():
        if cfg.line_pf and "o" in cfg.pf_which:
            a(f"""
            v_lshlrev_b32 v{vT0}, 7, v{vLane}
            s_lshl_b32 s{sB}, s{sJ}, 19
            s_lshl_b32 s{sC}, s{sIdx}, 15
            s_add_u32 s{sB}, s{sB}, s{sC}
            s_lshl_b32 s{sC}, s{sW}, 13
            s_add_u32 s{sB}, s{sB}, s{sC}
            buffer_load_dword v{vJ}, v{vT0}, {sr(sW2,4)}, s{sB} offen{cfg.pf_pol}
            """)
        a(f"""
        v_lshrrev_b32 v{vT0}, 2, v{vLane}
        v_lshlrev_b32 v{vT0}, 10, v{vT0}
        v_and_b32 v{vT1}, 3, v{vLane}
        v_lshl_add_u32 v{vT0}, v{vT1}, 4, v{vT0}
        s_lshl_b32 s{sB}, s{sJ}, 19
        s_lshl_b32 s{sC}, s{sW}, 17
        s_add_u32 s{sB}, s{sB}, s{sC}
        s_lshl_b32 s{sC}, s{sIdx}, 6
        s_add_u32 s{sB}, s{sB}, s{sC}
        s_lshl_b32 s{sC}, s{sW}, 14
        s_add_u32 s{sC}, s{sC}, {L_K}
        """)
        for u in range(8):
            a(f"""
            s_mov_b32 m0, s{sC}
            s_add_u32 s{sC}, s{sC}, 1024
            buffer_load_dwordx4 v{vT0}, {sr(sW2,4)}, s{sB} offen{SLN} lds
            s_add_u32 s{sB}, s{sB}, {16*1024}
            """)
    if cfg.wsA:
        wo_slices()
        s1_tail(8 + nPF)
        db_setup(0, 1)
    else:
        s1_tail(nPF)
        db_setup(0, 1)
        wo_slices()
    a(f"v_mov_b32 v{vRes}, 0")
    lab = a.label("r0")
    a(f"""
    s_cmp_eq_u32 s{sJ}, 0
    s_cbranch_scc0 {lab}
    v_and_b32 v{vT0}, 1, v{vQd}
    v_lshlrev_b32 v{vT0}, 10, v{vT0}
    v_lshrrev_b32 v{vT1}, 1, v{vQd}
    v_lshl_add_u32 v{vT0}, v{vT1}, 5, v{vT0}
    v_lshl_add_u32 v{vT0}, v{vR16}, 1, v{vT0}
    s_lshl_b32 s{sB}, s{sIdx}, 6
    buffer_load_ushort v{vRes}, v{vT0}, {sr(sX0,4)}, s{sB} offen
    {lab}:
    """)
    a(f"s_lshl_b32 s{sB}, s{sW}, 14")
    tr_base(vT0, 64, 4, sB, L_K)
    a("s_waitcnt vmcnt(0)")
    for c in range(4):
        for nt in range(2):
            a(f"ds_read_b64_tr_b16 {ar(aW2+8*c+4*nt,2)}, v{vT0} offset:{c*2048+nt*32}")
            a(f"ds_read_b64_tr_b16 {ar(aW2+8*c+4*nt+2,2)}, v{vT0} offset:{c*2048+nt*32+1024}")
    a(f"v_lshlrev_b32 v{vResF}, 16, v{vRes}")
    a("s_waitcnt lgkmcnt(0)")
    ts("wo_ready")
    a("L_loopA:")
    o_phase()
    lab = a.label("dn")
    a(f"s_cmp_eq_u32 s{sL}, 0\ns_cbranch_scc0 {lab}")
    down_slices()
    tag_check_all()
    if cfg.epoch_early:
        le = a.label("ep")
        a(f"""
        s_or_b32 s{sB}, s{sJ}, s{sIdx}
        s_or_b32 s{sB}, s{sB}, s{sW}
        s_cmp_eq_u32 s{sB}, 0
        s_cbranch_scc0 {le}
        """)
        g.ep_lab = le
        a(f"v_mov_b32 v{vT0}, {WS_EPOCH}\nv_mov_b32 v{vT1}, s{sT}\ns_mov_b64 exec, 1")
        a(f"buffer_store_dword v{vT1}, v{vT0}, {sr(sWS,4)}, 0 offen sc1")
        a("s_mov_b64 exec, -1")
        a(f"{le}:")
    down_operands()
    if cfg.warm_out:
        lw = a.label("wout")
        a(f"""
        s_cmp_ge_u32 s{sIdx}, 2
        s_cbranch_scc1 {lw}
        s_lshl_b32 s{sB}, s{sJ}, 1
        s_add_u32 s{sB}, s{sB}, s{sIdx}
        s_lshl_b32 s{sB}, s{sB}, 6
        v_lshlrev_b32 v{vT0}, 10, v{vLane}
        s_mov_b64 exec, 3
        buffer_load_dword v{vJ}, v{vT0}, {sr(sOUT,4)}, s{sB} offen
        s_mov_b64 exec, -1
        {lw}:
        """)
    a("s_waitcnt lgkmcnt(0)\ns_barrier")
    a(f"{lab}:")
    d_phase()
    a(f"s_cmp_eq_u32 s{sL}, 1\ns_cbranch_scc1 L_finalA")
    a("s_branch L_q2s2")

    a("L_roleB:")
    g.role = "B"; g.ts = ts_split
    def gu_slices():
        a(f"""
        s_cmp_ge_u32 s{sIdx}, 14
        s_cbranch_scc1 L_nogu
        v_lshrrev_b32 v{vT0}, 1, v{vLane}
        v_mul_u32_u24 v{vT0}, 3584, v{vT0}
        v_and_b32 v{vT1}, 1, v{vLane}
        v_lshl_add_u32 v{vT0}, v{vT1}, 4, v{vT0}
        s_mul_i32 s{sB}, s{sW}, {128*3584}
        s_mul_i32 s{sC}, s{sJ}, 448
        s_add_u32 s{sB}, s{sB}, s{sC}
        s_lshl_b32 s{sC}, s{sIdx}, 5
        s_add_u32 s{sB}, s{sB}, s{sC}
        s_lshl_b32 s{sC}, s{sW}, 14
        s_add_u32 s{sC}, s{sC}, {L_K + W_GATE}
        """)
        for u in range(4):
            a(f"""
            s_mov_b32 m0, s{sC}
            s_add_u32 s{sD}, s{sC}, {W_UP - W_GATE}
            buffer_load_dwordx4 v{vT0}, {sr(sW2,4)}, s{sB} offen{SLN} lds
            s_mov_b32 m0, s{sD}
            s_add_u32 s{sC}, s{sC}, 1024
            buffer_load_dwordx4 v{vT0}, {sr(sUP,4)}, s{sB} offen{SLN} lds
            s_add_u32 s{sB}, s{sB}, {32*3584}
            """)
        a("L_nogu:")
    if cfg.wsB:
        gu_slices()
        s1_tail(8, maybe_none=True)
    else:
        s1_tail(nPF)
    db_setup(1, 0)
    if cfg.line_pf and "f" in cfg.pf_which:
        a(f"""
        v_mul_u32_u24 v{vT0}, 52, v{vLane}
        v_lshrrev_b32 v{vT0}, 8, v{vT0}            ; l/5 for l < 64
        v_mul_u32_u24 v{vT1}, 5, v{vT0}
        v_sub_u32 v{vT1}, v{vLane}, v{vT1}         ; l%5
        v_mul_u32_u24 v{vT0}, 3584, v{vT0}
        v_lshl_add_u32 v{vT0}, v{vT1}, 7, v{vT0}
        s_lshl_b32 s{sB}, s{sIdx}, 5
        s_lshl_b32 s{sC}, s{sW}, 3
        s_add_u32 s{sB}, s{sB}, s{sC}
        s_mul_i32 s{sB}, s{sB}, 3584
        s_mul_i32 s{sC}, s{sJ}, 448
        s_and_b32 s{sC}, s{sC}, 0xffffff80
        s_add_u32 s{sB}, s{sB}, s{sC}
        """)
        setexec((1 << 40) - 1)
        a(f"buffer_load_dword v{vJ}, v{vT0}, {sr(sW2,4)}, s{sB} offen{cfg.pf_pol}")
        a(f"buffer_load_dword v{vJ}, v{vT0}, {sr(sUP,4)}, s{sB} offen{cfg.pf_pol}")
        a(f"""
        s_mov_b64 exec, -1
        v_lshrrev_b32 v{vT0}, 3, v{vLane}
        v_lshlrev_b32 v{vT0}, 10, v{vT0}
        v_and_b32 v{vT1}, 7, v{vLane}
        v_lshl_add_u32 v{vT0}, v{vT1}, 7, v{vT0}
        s_mul_i32 s{sB}, s{sJ}, 224
        s_mul_i32 s{sC}, s{sIdx}, 14
        s_add_u32 s{sB}, s{sB}, s{sC}
        s_lshl_b32 s{sC}, s{sW}, 2
        s_add_u32 s{sB}, s{sB}, s{sC}
        s_lshl_b32 s{sB}, s{sB}, 10
        s_cmp_eq_u32 s{sW}, 3
        s_cselect_b32 exec_lo, 0xffff, -1
        s_mov_b32 exec_hi, 0
        buffer_load_dword v{vJ}, v{vT0}, {sr(sDN,4)}, s{sB} offen{cfg.pf_pol}
        s_mov_b64 exec, -1
        """)
    if not cfg.wsB: gu_slices()
    tag_check_all()
    ts("ffn_landed")
    a(f"s_cmp_ge_u32 s{sIdx}, 14\ns_cbranch_scc1 L_nogu2")
    a(f"s_lshl_b32 s{sB}, s{sW}, 14")
    tr_base(vT0, 32, 8, sB, L_K + W_GATE)
    for u in range(4):
        for mat in range(2):
            a(f"ds_read_b64_tr_b16 {ar(aW2+8*u+4*mat,2)}, v{vT0} offset:{u*1024+mat*(W_UP-W_GATE)}")
            a(f"ds_read_b64_tr_b16 {ar(aW2+8*u+4*mat+2,2)}, v{vT0} offset:{u*1024+mat*(W_UP-W_GATE)+128}")
    a("s_waitcnt lgkmcnt(0)")
    for u in range(4):
        mfma(vAcc, vOnes, ar(aW2 + 8*u, 4), "0" if u == 0 else None)
        mfma(vAcc + 4, vOnes, ar(aW2 + 8*u + 4, 4), "0" if u == 0 else None)
    a(f"s_nop 7\nds_write_b32 v{vaRedW}, v{vAcc} offset:{R_COL}\nds_write_b32 v{vaRedW}, v{vAcc+4} offset:{R_COL2}")
    a("L_nogu2:")
    a("s_waitcnt lgkmcnt(0)\ns_barrier")
    a(f"""
    ds_read_b128 {vr(vU,4)}, v{vaFinW} offset:{R_COL}
    ds_read_b128 {vr(vU+4,4)}, v{vaFinW} offset:{R_COL2}
    s_waitcnt lgkmcnt(0)
    """)
    sum4r(vU); sum4r(vU + 4)
    a(f"v_mov_b32 v{vCg}, v{vU}\nv_mov_b32 v{vCu}, v{vU+4}")
    ts("ffn_ready")
    a("L_loopB:")
    lg = a.label("nog")
    a(f"s_cmp_ge_u32 s{sIdx}, 14\ns_cbranch_scc1 {lg}")
    g_phase()
    a(f"{lg}:")
    if cfg.junk_dirty:
        lj = a.label("jk")
        a(f"s_cmp_eq_u32 s{sL}, 0\ns_cbranch_scc0 {lj}")
        a(f"s_lshl_b32 s{sB}, s2, 2\ns_add_u32 s{sB}, s{sB}, s{sW}\ns_mul_i32 s{sB}, s{sB}, {cfg.junk_dirty*1024}\ns_add_u32 s{sB}, s{sB}, 0x400000\nv_lshlrev_b32 v{vT0}, 4, v{vLane}")
        for i in range(cfg.junk_dirty):
            a(f"buffer_store_dwordx4 {vr(vP,4)}, v{vT0}, {sr(sWS,4)}, s{sB} offen\ns_add_u32 s{sB}, s{sB}, 1024")
        a(f"{lj}:")
    a(f"s_cmp_eq_u32 s{sL}, 1\ns_cbranch_scc1 L_fin")

    a("L_q2s2:")
    save_role, save_ts = g.role, g.ts
    g.role = "C"; g.ts = 19 if not cfg.counters else 18
    lab = a.label("wo")
    a(f"s_cmp_lt_u32 s{sM}, 16\ns_cbranch_scc0 {lab}")
    warm_q2()
    warm_o(1)
    a(f"{lab}:")
    db_wait(None, const_hop=1)
    a(f"s_mov_b32 s{sD}, {WS_X + 16384}")
    x_poll(sD, XA, cfg.sleep_x)
    ts("q2_got")
    q_core(XA)
    q_final(False)
    ts("q2_pub")
    l = a.label("qp"); ok = a.label("qok")
    setexec(EM4)
    a(f"{l}:")
    for c in range(4):
        a(f"buffer_load_dwordx4 {vr(vQ+4*c,4)}, v{vaQ2}, {sr(sWS,4)}, s{sQ2r} offen offset:{c*256} sc1")
    a("s_waitcnt vmcnt(0)")
    sent_check([vQ+i for i in range(16)], vT0, ok)
    spin_fail(l)
    a(f"{ok}:")
    setexec(FULL)
    ts("q2_gath")
    a(f"""
    s_add_u32 s{sOown}, s{sOown}, {O_L}
    s_add_u32 s{sOcons}, s{sOcons}, {O_L}
    s_add_u32 s{sXr}, s{sXr}, 32768
    s_add_u32 s{sHb}, s{sHb}, 8192
    s_mov_b32 s{sL}, 1
    """)
    s_qk_max()
    s_exp_p()
    s_stats_prep()
    a("s_waitcnt lgkmcnt(0)")
    pv(list(range(8)), True)
    s_out()
    s_stats_store(None)
    ts("s2_pub")
    if cfg.diag and cfg.ts_only and "s2_ack" in cfg.ts_only:
        a("s_waitcnt vmcnt(0)")
        save = g.ts; g.ts = 18; ts("s2_ack"); g.ts = save
    a(f"s_cmp_lt_u32 s{sM}, 16\ns_cbranch_scc1 L_loopA\ns_branch L_loopB")

    a("L_finalA:")
    g.role = "A"; g.ts = 18
    a(f"""
    s_cmp_ge_u32 s{sIdx}, 2
    s_cbranch_scc1 L_fin
    s_cmp_eq_u32 s{sW}, 0
    s_cbranch_scc0 L_fin
    s_lshl_b32 s{sB}, s{sJ}, 1
    s_add_u32 s{sB}, s{sB}, s{sIdx}        ; cb
    s_lshl_b32 s{sC}, s{sB}, 7
    s_add_u32 s{sC}, s{sC}, {WS_X + 3*16384}
    """)
    for nt in range(2):
        for dd in range(4):
            a(f"""
            v_lshlrev_b32 v{vT0}, 3, v{vQd}
            v_add_u32 v{vT0}, {2*dd - 16*nt}, v{vT0}
            v_sub_u32 v{vT0}, v{vT0}, v{vR16}
            v_mov_b32 v{vP+4*nt+dd}, 0
            v_cmp_eq_u32 vcc, 0, v{vT0}
            v_mov_b32 v{vT1}, 0x3f80
            v_cndmask_b32 v{vP+4*nt+dd}, v{vP+4*nt+dd}, v{vT1}, vcc
            v_cmp_eq_u32 vcc, -1, v{vT0}
            v_mov_b32 v{vT1}, 0x3f800000
            v_cndmask_b32 v{vP+4*nt+dd}, v{vP+4*nt+dd}, v{vT1}, vcc
            """)
    a(f"""
    v_lshrrev_b32 v{vT2}, 1, v{vQd}
    v_lshlrev_b32 v{vT2}, 10, v{vT2}
    v_and_b32 v{vT1}, 1, v{vQd}
    v_lshl_add_u32 v{vT2}, v{vT1}, 5, v{vT2}
    v_lshl_add_u32 v{vT2}, v{vR16}, 1, v{vT2}
    s_lshl_b32 s{sB}, s{sB}, 6
    """)
    a(f"s_mov_b32 s{sEx2}, s{sC}\ns_mov_b32 s{sEx2+1}, s{sB}")
    db_wait(None, const_hop=3)
    a(f"s_mov_b32 s{sC}, s{sEx2}\ns_mov_b32 s{sB}, s{sEx2+1}")
    l = a.label("fp"); ok = a.label("fok")
    a(f"{l}:")
    a(f"buffer_load_dwordx4 {vr(vA,4)}, v{vaX}, {sr(sWS,4)}, s{sC} offen sc1")
    a("s_waitcnt vmcnt(0)")
    sent_check([vA+i for i in range(4)], vT0, ok)
    spin_fail(l, cfg.sleep_x)
    a(f"{ok}:")
    ts("fin_got")
    mfma(vAcc, vA, vP, "0"); mfma(vAcc + 4, vA, vP + 4, "0")
    sum4(vU, vAcc, vT3); sum4(vU + 1, vAcc + 4, vT3)
    a(f"""
    v_permlane16_swap_b32 v{vU}, v{vU+1}
    v_add_f32 v{vU}, v{vU}, v{vU+1}
    v_cvt_pk_bf16_f32 v{vU}, v{vU}, v{vU}
    buffer_store_short v{vU}, v{vT2}, {sr(sOUT,4)}, s{sB} offen
    """)
    if not cfg.epoch_early:
        a(f"""
        s_cmp_eq_u32 s{sB}, 0
        s_cbranch_scc0 L_fin
        v_mov_b32 v{vT0}, {WS_EPOCH}
        v_mov_b32 v{vT1}, s{sT}
        """)
        setexec(1)
        a(f"buffer_store_dword v{vT1}, v{vT0}, {sr(sWS,4)}, 0 offen sc1")
        setexec(FULL)

    a("L_fin:")
    if cfg.diag:
        g.role = "E"
        g.tsn["E"].append((NTS - 1, "end"))
        a(f"s_memrealtime s[{sTmp2}:{sTmp2+1}]\ns_waitcnt lgkmcnt(0)\ns_mov_b32 s{sTS+NTS-2}, s{sTmp2}")
        a(f"s_memtime s[{sTmp2}:{sTmp2+1}]\ns_waitcnt lgkmcnt(0)\ns_mov_b32 s{sTS+NTS-1}, s{sTmp2}")
        a(f"s_lshl_b32 s{sB}, s2, 3\ns_add_u32 s{sB}, s{sB}, s{sW}\ns_lshl_b32 s{sB}, s{sB}, 7\ns_add_u32 s{sB}, s{sB}, {WS_DIAG}\nv_mov_b32 v{vT0}, 0")
        setexec(1)
        for i in range(NTS):
            a(f"v_mov_b32 v{vT1}, s{sTS+i}\nbuffer_store_dword v{vT1}, v{vT0}, {sr(sWS,4)}, s{sB} offen offset:{4*i}")
        setexec(FULL)
    if cfg.dbg_span:
        a(f"""
        s_waitcnt vmcnt(0)
        s_cmp_eq_u32 s{sW}, 0
        s_cbranch_scc0 L_nospan
        s_memrealtime s[{sTmp2}:{sTmp2+1}]
        s_load_dwordx2 s[92:93], s[0:1], 80
        s_waitcnt lgkmcnt(0)
        s_mov_b32 s{sA}, s92
        s_and_b32 s{sB}, s93, 0xffff
        s_mov_b32 s{sC}, 256
        s_mov_b32 s{sD}, 0x20000
        v_mov_b32 v{vT0}, 8
        v_mov_b32 v{vT1}, s{sTmp2}
        s_not_b32 s94, s94
        v_mov_b32 v{vT2}, s94
        s_mov_b64 exec, 1
        buffer_atomic_umax v{vT1}, v{vT0}, s[{sA}:{sD}], 0 offen sc1
        buffer_atomic_umax v{vT2}, v{vT0}, s[{sA}:{sD}], 0 offen offset:4 sc1
        s_waitcnt vmcnt(0)
        L_nospan:
        """)
    a("s_waitcnt vmcnt(0)\ns_endpgm")
    a(f"""
    L_abort:
    s_mov_b64 exec, -1
    v_mov_b32 v{vT0}, 0
    v_mov_b32 v{vT1}, 0xdead
    s_load_dwordx2 s[{sTmp2}:{sTmp2+1}], s[0:1], 80
    s_waitcnt lgkmcnt(0)
    s_mov_b32 s{sA}, s{sTmp2}
    s_and_b32 s{sB}, s{sTmp2+1}, 0xffff
    s_mov_b32 s{sC}, 256
    s_mov_b32 s{sD}, 0x20000
    s_mov_b64 exec, 1
    buffer_store_dword v{vT1}, v{vT0}, s[{sA}:{sD}], 0 offen offset:4
    s_waitcnt vmcnt(0)
    L_end:
    s_endpgm
    """)
    for o in g.ool: a(o)
    a("L_codeend:\ns_endpgm")
    lines = a.text().rstrip("\n").split("\n")
    g.ninstr = sum(1 for l in lines if l.startswith("    ") and not l.strip().startswith(";"))
    lines = hazard.pad(lines)
    return g, "\n".join(lines) + "\n"

HEADER = open("interleave_layers__sliding_block_cached__glu_gated_glu__decode.s.ref").read().split("; Override launch")[0]

def full(cfg):
    g, body = build(cfg)
    txt = HEADER
    txt += "; Persistent single-launch kernel: 256 workgroups (one per CU) x 256 threads.\n"
    txt += f"; @launch grid=(256,1,1) block=(256,1,1) lds={LDS_BYTES}\n"
    txt += '.amdgcn_target "amdgcn-amd-amdhsa--gfx950"\n.text\n'
    txt += f".globl {NAME}\n.p2align 8\n.type {NAME},@function\n{NAME}:\n"
    txt += body
    txt += '.section .rodata,"a"\n.p2align 6\n'
    txt += f".amdhsa_kernel {NAME}\n  .amdhsa_next_free_vgpr {256 + g.amax}\n  .amdhsa_next_free_sgpr 102\n  .amdhsa_accum_offset 256\n"
    txt += "  .amdhsa_group_segment_fixed_size 0\n  .amdhsa_kernarg_size 96\n  .amdhsa_user_sgpr_count 2\n  .amdhsa_user_sgpr_kernarg_segment_ptr 1\n  .amdhsa_system_sgpr_workgroup_id_x 1\n.end_amdhsa_kernel\n"
    return g, txt

if __name__ == "__main__":
    cfg = Cfg()
    for kv in sys.argv[2:]:
        k, v = kv.split("="); setattr(cfg, k, eval(v))
    g, txt = full(cfg)
    open(sys.argv[1], "w").write(txt)
    print("vgprs", g.vmax, "agprs", g.amax, "instrs", g.ninstr, "ts", g.tsn)
```

```python
import sys, struct
from asmlib import Asm
import hazard

NAME = "interleave_layers__sliding_block_cached__glu_gated_glu__decode_kernel"

WS_EPOCH = 0x0
WS_Q1 = 0x10000
WS_DB = 0x1c000
WS_Q2 = 0x20000
WS_H  = 0x28000
WS_X  = 0xE0000
X_HOP = 32768
WS_O  = 0x40000
O_STATS = 32768
O_J = O_STATS + 2048
O_L = 8 * O_J
WS_DIAG = 0x100000
WS_SIZE = 0x1000000

L_SMAX = 0
L_LSUM = 64
L_PBUF = 256
L_RED = 2560
R_Q, R_G, R_GZ, R_O, R_D, R_COL, R_COL2 = [L_RED + 1024 * i for i in range(7)]
L_QG = 10240
L_X0 = 14336
L_K = 16384
L_V = L_K + 65536
L_WQ = L_V + 65536
L_XI = L_V
LDS_BYTES = 163840
W_GATE, W_UP, W_DN = 0, 4096, 8192

C_SCALE = 0.08838834764831845 * 1.4426950408889634
def f2u(x): return struct.unpack("<I", struct.pack("<f", x))[0]

class Cfg:
    nKA = 12
    nKb1 = 1
    pace = 8
    gpts = (1, 2, 4)
    diag = False
    ts_only = None
    ts_issue = False
    force_global = False
    budget = 400000
    prefetch_code = True
    sleep_x = 0
    sleep_x0 = 0
    sleep_o = 0
    sl_nt = True
    pf_pol = ""
    pf_which = "q"
    dbg_span = False
    counters = False
    db_early = True
    doorbell = True
    warm = True
    pf_stream = ""
    pf_pos = None
    pf_early = False
    pf_spol = " nt"
    wsA = False
    wsB = False
    junk_dirty = 0
    epoch_early = True
    w_interB = "gu"
    w_inter = False
    v3_early = False
    warm_by_B = True
    o_spec = True
    warm_out = False
    line_pf = True
    const_tag = False
    no_clear0 = False
    clr0_late = False

def vr(b, n=1): return f"v[{b}:{b+n-1}]" if n > 1 else f"v{b}"
def ar(b, n=1): return f"a[{b}:{b+n-1}]" if n > 1 else f"a{b}"
def sr(b, n=1): return f"s[{b}:{b+n-1}]" if n > 1 else f"s{b}"

sJ, sM, sW, sIdx, sL = 3, 4, 5, 6, 7
sWS, sKS, sVS, sWQ, sW2, sUP, sDN, sX0, sOUT = 8, 12, 16, 20, 24, 28, 32, 36, 40
sT, sTX, sLocal, sBud = 44, 45, 46, 47
sMDIAG = 48
sM4 = 50
sM2 = 52
sMN1 = 54
sMEV = 56
sEx = 58
sA, sB, sC, sD = 60, 61, 62, 63
sKV, sRot = 64, 65
sOown, sOcons, sXw, sXr, sHb, sQ2w, sQ2r = 66, 67, 68, 69, 70 - 70 + 96, 97, 98
sXcc = 99
sWb2, sWst2 = 68, 60
sWb, sWst = 59, 69
sKS2 = sKS
sDBtag = 59
sEx2 = 50
sDBw, sDBr = 64, 65
sXI = 58
sTmp2 = 100
sTS = 70
NTS = 26

class G:
    pass

def build(cfg):
    g = G(); a = Asm(); g.a = a
    g.tsn = {"C": [], "A": [], "B": [], "E": []}; g.role = "C"; g.ts = 0; g.cnts = {}; g.cnt_names = []
    nv = [1]
    def valloc(n=1, align=1):
        nv[0] = (nv[0] + align - 1) // align * align
        r = nv[0]; nv[0] += n
        assert nv[0] <= 256
        return r
    vLane = valloc(); vR16 = valloc(); vQd = valloc()
    vT0 = valloc(); vT1 = valloc(); vT2 = valloc(); vT3 = valloc()
    vOnes = valloc(4, 4)
    vQ = valloc(16, 4)
    vA = valloc(40, 4)
    vAcc = valloc(16, 4)
    vS = valloc(16, 4)
    vP = valloc(32, 4)
    vJ = valloc()
    vHop = valloc(8, 4)
    vU = valloc(16, 4)
    vSt = valloc(8, 4)
    vW = valloc(2, 2)
    vCs = valloc(); vCg = valloc(); vCu = valloc()
    vRes = valloc(); vResF = valloc()
    vQ1d = valloc(2, 2); vQ1a = valloc()
    vMc = valloc(4, 4)
    vaX = valloc(); vaXg = valloc(); vaXr = valloc(); vaStQ = valloc(); vaClrO = valloc(); vaO0 = valloc(); vaO1 = valloc(); vaS0 = valloc(); vaS1 = valloc(); vaQ2 = valloc(); vaH = valloc()
    vaPw = valloc(); vaPr = valloc(); vaSm = valloc(); vaSmW = valloc(); vaRedW = valloc(); vaRedZ = valloc()
    vaFinW = valloc(); vaFinZ = valloc(); vaFinQZ = valloc(); vaFinO = valloc()
    vaStH = valloc(); vaStX = valloc(); vaStO = valloc(); vaStS = valloc(); vaResU = valloc()
    vWs = valloc()
    vKs = valloc(4); vVs = valloc(2); vVr = valloc(2); vKr = valloc(4)
    g.vmax = nv[0]
    aK, aV, aWq, aW2, aWd = 0, 64, 128, 144, 176
    g.amax = 192

    FULL = (1 << 64) - 1
    def ts(name):
        if not cfg.diag: return
        if cfg.ts_only and name not in cfg.ts_only and name not in ("start", "setup", "issued"): return
        i = g.ts; g.ts += 1; g.maxts = max(getattr(g, "maxts", 0), g.ts)
        assert i < NTS - 3, name
        g.tsn[g.role].append((i, name))
        if name == "start":
            return
        if name == "issued":
            g.i_issued = i
            a(f"s_memtime s[{sTmp2}:{sTmp2+1}]\ns_waitcnt lgkmcnt(0)\ns_mov_b32 s92, s{sTmp2}")
            return
        if name == "setup":
            a(f"s_mov_b32 s{sTS}, s90\ns_mov_b32 s{sTS+NTS-3}, s91")
            if cfg.ts_issue: a(f"s_mov_b32 s{sTmp2}, s92")
            for z in list(range(1, NTS - 3)) + [NTS - 2, NTS - 1]: a(f"s_mov_b32 s{sTS+z}, 0")
            if cfg.ts_issue: a(f"s_mov_b32 s{sTS+g.i_issued}, s{sTmp2}")
        if cfg.ts_only and name not in cfg.ts_only:
            return
        a(f"s_memtime s[{sTmp2}:{sTmp2+1}]\ns_waitcnt lgkmcnt(0)\ns_mov_b32 s{sTS+i}, s{sTmp2}")
    def ts_dyn(name0, name1):
        if not cfg.diag: return
        if cfg.ts_only and name0 not in cfg.ts_only: return
        i = g.ts; g.ts += 2; g.maxts = max(getattr(g, "maxts", 0), g.ts)
        assert i + 1 < NTS - 3, name0
        g.tsn[g.role].append((i, name0)); g.tsn[g.role].append((i + 1, name1))
        if cfg.ts_only and name0 not in cfg.ts_only: return
        a(f"""s_memtime s[{sTmp2}:{sTmp2+1}]
        s_waitcnt lgkmcnt(0)
        s_cmp_eq_u32 s{sL}, 0
        s_cselect_b32 s{sTS+i}, s{sTmp2}, s{sTS+i}
        s_cselect_b32 s{sTS+i+1}, s{sTS+i+1}, s{sTmp2}""")

    def cnt(name):
        if not (cfg.diag and cfg.counters): return
        key = (g.role, name)
        if key not in g.cnts:
            i = g.ts; g.ts += 1; g.maxts = max(getattr(g, "maxts", 0), g.ts)
            assert i < NTS - 3, name
            g.cnts[key] = i; g.cnt_names.append((g.role, i, name))
        a(f"s_add_u32 s{sTS+g.cnts[key]}, s{sTS+g.cnts[key]}, 1")

    def setexec(mask):
        if mask == FULL: a("s_mov_b64 exec, -1")
        elif isinstance(mask, str): a(f"s_mov_b64 exec, {mask}")
        elif mask < 65 or mask in (0xFFFF, 0xF, 0xFF):
            a(f"s_mov_b64 exec, 0x{mask:x}" if mask >= 65 else f"s_mov_b64 exec, {mask}")
        else:
            a(f"s_mov_b32 exec_lo, 0x{mask & 0xFFFFFFFF:x}\ns_mov_b32 exec_hi, 0x{mask >> 32:x}")
    EM4, EM2, EMEV = f"s[{sM4}:{sM4+1}]", f"s[{sM2}:{sM2+1}]", f"s[{sMEV}:{sMEV+1}]"

    def srd(dst, ptr_s, size):
        a(f"s_mov_b32 s{dst}, s{ptr_s}\ns_and_b32 s{dst+1}, s{ptr_s+1}, 0xffff\ns_mov_b32 s{dst+2}, 0x{size:x}\ns_mov_b32 s{dst+3}, 0x20000")

    def mfma(d, A, B, C=None):
        f = lambda x: x if isinstance(x, str) else vr(x, 4)
        c = f(d) if C is None else C
        a(f"v_mfma_f32_16x16x32_bf16 {f(d)}, {f(A)}, {f(B)}, {c}")

    def spin_fail(lbl_retry, sleep=0):
        if sleep: a(f"s_sleep {sleep}")
        a(f"s_sub_u32 s{sBud}, s{sBud}, 1\ns_cbranch_scc0 {lbl_retry}\ns_branch L_abort")
    def interleave(mf, va, start, per=2):
        va = list(va)
        for i, m in enumerate(mf):
            a(m)
            if i >= start:
                for _ in range(per):
                    if va: a(va.pop(0))
        for v in va: a(v)
    def mf(d, A, B, C=None):
        f = lambda x: x if isinstance(x, str) else vr(x, 4)
        return f"v_mfma_f32_16x16x32_bf16 {f(d)}, {f(A)}, {f(B)}, {f(d) if C is None else C}"

    def sent_max(regs, tmp):
        rs = list(regs)
        if len(rs) == 1: return rs[0]
        if len(rs) == 2:
            a(f"v_max_u32 v{tmp}, v{rs[0]}, v{rs[1]}"); rs = []
        else:
            a(f"v_max3_u32 v{tmp}, v{rs[0]}, v{rs[1]}, v{rs[2]}"); rs = rs[3:]
        while len(rs) >= 2:
            a(f"v_max3_u32 v{tmp}, v{tmp}, v{rs[0]}, v{rs[1]}"); rs = rs[2:]
        if rs: a(f"v_max_u32 v{tmp}, v{tmp}, v{rs[0]}")
        return tmp
    def sent_check(regs, tmp, lbl_ok):
        cur = sent_max(regs, tmp)
        a(f"v_cmp_eq_u32 vcc, -1, v{cur}\ns_cbranch_vccz {lbl_ok}")

    g.ool = []
    def store_local(instr):
        if cfg.force_global:
            a(instr + " sc1"); return
        l1 = a.label("stg"); l2 = a.label("std")
        a(f"s_cmp_eq_u32 s{sLocal}, 0\ns_cbranch_scc1 {l1}")
        a(instr)
        a(f"{l2}:")
        g.ool.append(f"{l1}:\n{instr} sc1\ns_branch {l2}")

    def dpp(op, d, s0, s1, ctrl, rm="0xf", bm="0xf"):
        if s1 is None: a(f"{op}_dpp v{d}, v{s0} {ctrl} row_mask:{rm} bank_mask:{bm}")
        else: a(f"{op}_dpp v{d}, v{s0}, v{s1} {ctrl} row_mask:{rm} bank_mask:{bm}")
    def row_reduce(op, v, steps=(8, 4, 2, 1)):
        for n in steps: dpp(op, v, v, v, f"row_ror:{n}")
    def xquad_reduce(op, v, tmp):
        a(f"v_mov_b32 v{tmp}, v{v}\nv_permlane32_swap_b32 v{v}, v{tmp}\n{op} v{v}, v{v}, v{tmp}")
        a(f"v_mov_b32 v{tmp}, v{v}\nv_permlane16_swap_b32 v{v}, v{tmp}\n{op} v{v}, v{v}, v{tmp}")
    def sum4(dst, b, tmp):
        a(f"v_add_f32 v{dst}, v{b}, v{b+1}\nv_add_f32 v{tmp}, v{b+2}, v{b+3}\nv_add_f32 v{dst}, v{dst}, v{tmp}")

    P = sTS
    EARLY = ""
    if cfg.dbg_span:
        EARLY = f"s_memrealtime s[94:95]"
    if cfg.diag:
        EARLY = f"s_memrealtime s[{sTmp2}:{sTmp2+1}]\ns_waitcnt lgkmcnt(0)\ns_mov_b32 s91, s{sTmp2}\ns_memtime s[{sTmp2}:{sTmp2+1}]\ns_waitcnt lgkmcnt(0)\ns_mov_b32 s90, s{sTmp2}"
    a(f"""
    s_cmp_ge_u32 s2, 256
    s_cbranch_scc1 L_end
    {EARLY}
    s_load_dwordx4 s[{P+2}:{P+5}], s[0:1], 0           ; x, K      (72..75)
    s_load_dwordx4 s[{P+6}:{P+9}], s[0:1], 16          ; V, wq     (76..79)
    s_load_dwordx2 s[{P+18}:{P+19}], s[0:1], 88        ; ws        (88..89)
    s_load_dwordx2 s[{P}:{P+1}], s[0:1], 32            ; wo        (70..71)
    s_load_dwordx4 s[{P+10}:{P+13}], s[0:1], 48
    s_load_dwordx4 s[{P+14}:{P+17}], s[0:1], 64
    v_lshrrev_b32 v{vT0}, 6, v0
    v_and_b32 v{vLane}, 63, v0
    v_and_b32 v{vR16}, 15, v0
    v_readfirstlane_b32 s{sW}, v{vT0}
    v_lshrrev_b32 v{vQd}, 4, v{vLane}
    """)
    if cfg.prefetch_code:
        a(f"""
        s_getpc_b64 s[{sTmp2}:{sTmp2+1}]
        L_pfbase:
        v_lshlrev_b32 v{vT1}, 7, v0
        s_mov_b32 s{sB}, (L_codeend - L_pfbase)
        v_cmp_gt_u32 vcc, s{sB}, v{vT1}
        s_and_saveexec_b64 s[{sEx}:{sEx+1}], vcc
        s_cbranch_execz L_nopf
        global_load_dword v{vU+15}, v{vT1}, s[{sTmp2}:{sTmp2+1}]
        L_nopf:
        s_mov_b64 exec, s[{sEx}:{sEx+1}]
        """)
    a(f"""
    s_and_b32 s{sJ}, s2, 7
    s_lshr_b32 s{sM}, s2, 3
    s_and_b32 s{sIdx}, s{sM}, 15
    s_and_b32 s{sRot}, s{sM}, 7
    s_lshl_b32 s{sRot}, s{sRot}, 1
    s_lshr_b32 s{sB}, s{sM}, 4
    s_lshl_b32 s{sB}, s{sB}, 3
    s_add_u32 s{sB}, s{sB}, s{sJ}
    s_lshl_b32 s{sB}, s{sB}, 23
    s_lshl_b32 s{sC}, s{sIdx}, 16
    s_add_u32 s{sKV}, s{sB}, s{sC}
    s_add_u32 s{sKV}, s{sKV}, 0x700000
    s_mul_i32 s{sOown}, s{sJ}, {O_J}
    s_lshr_b32 s{sB}, s{sM}, 4
    s_lshl_b32 s{sB}, s{sB}, 14
    s_add_u32 s{sOown}, s{sOown}, s{sB}
    s_lshl_b32 s{sB}, s{sIdx}, 4
    s_add_u32 s{sOown}, s{sOown}, s{sB}
    s_add_u32 s{sOown}, s{sOown}, {WS_O}
    """)
    XA = vA + 8
    a(f"""
    v_lshrrev_b32 v{vT2}, 1, v{vLane}
    v_lshlrev_b32 v{vT2}, 13, v{vT2}
    v_and_b32 v{vT3}, 1, v{vLane}
    v_lshl_add_u32 v{vT2}, v{vT3}, 4, v{vT2}
    v_lshlrev_b32 v{vT1}, 4, v{vLane}          ; lane*16
    """)
    for i in range(4):
        a(f"""
        v_add_u32 v{vT3}, {4*i}, v{vQd}
        v_xor_b32 v{vT3}, v{vT3}, v{vR16}
        v_lshlrev_b32 v{vT3}, 4, v{vT3}
        v_lshl_add_u32 v{vKs+i}, v{vQd}, 8, v{vT3}
        """)
    a(f"""
    s_lshl_b32 s{sC}, s{sJ}, 11
    s_lshl_b32 s{sD}, s{sIdx}, 7
    s_add_u32 s{sC}, s{sC}, s{sD}
    s_add_u32 s{sXw}, s{sC}, {WS_X}
    s_mov_b32 s{sXr}, {WS_X}
    s_lshl_b32 s{sHb}, s{sJ}, 10
    s_add_u32 s{sHb}, s{sHb}, {WS_H}
    s_lshl_b32 s{sQ2w}, s{sJ}, 11
    s_add_u32 s{sQ2r}, s{sQ2w}, {WS_Q2}
    ; producer m: h = m>>3, c = (m>>1)&3, e0 = 2*(m&1)  ->  c*256 + e0*64 + h*16
    s_lshr_b32 s{sB}, s{sM}, 1
    s_and_b32 s{sB}, s{sB}, 3
    s_lshl_b32 s{sB}, s{sB}, 8
    s_add_u32 s{sQ2w}, s{sQ2r}, s{sB}
    s_and_b32 s{sB}, s{sM}, 1
    s_lshl_b32 s{sB}, s{sB}, 7
    s_add_u32 s{sQ2w}, s{sQ2w}, s{sB}
    s_lshr_b32 s{sB}, s{sM}, 3
    s_lshl_b32 s{sB}, s{sB}, 4
    s_add_u32 s{sQ2w}, s{sQ2w}, s{sB}
    s_lshr_b32 s{sB}, s{sM}, 4
    s_lshl_b32 s{sB}, s{sB}, 10
    s_add_u32 s{sQ2r}, s{sQ2r}, s{sB}
    s_waitcnt lgkmcnt(0)
    """)
    srd(sWQ, P + 8, 0x400000)
    srd(sKS, P + 4, 0x8000000)
    srd(sWS, P + 18, WS_SIZE)
    if cfg.const_tag: a(f"s_mov_b32 s{sT}, 0x12345670")
    else: a(f"s_load_dword s{sT}, s[{P+18}:{P+19}], {WS_EPOCH}")
    SLN = " nt" if cfg.sl_nt else ""
    if cfg.no_clear0: a("s_branch L_clr_done")
    a(f"""
    v_mov_b32 v{vU}, -1
    v_mov_b32 v{vU+1}, -1
    v_mov_b32 v{vU+2}, -1
    v_mov_b32 v{vU+3}, -1
    v_bfe_u32 v{vT3}, v{vLane}, 1, 1
    v_lshlrev_b32 v{vT3}, 10, v{vT3}
    v_and_b32 v{vT0}, 1, v{vLane}
    v_lshl_add_u32 v{vT3}, v{vT0}, 6, v{vT3}
    v_add_u32 v{vT0}, s{sQ2w}, v{vT3}
    s_cmp_lt_u32 s{sM}, 16
    s_cbranch_scc0 L_clr_B
    s_cmp_eq_u32 s{sW}, 1
    s_cbranch_scc0 L_clr_A2
    """)
    setexec(0xF)
    a(f"""
    s_branch L_clr_st
    L_clr_A2:
    s_cmp_eq_u32 s{sW}, 2
    s_cbranch_scc0 L_clr_done
    s_xor_b32 s{sC}, s{sXw}, 0x2000
    s_add_u32 s{sC}, s{sC}, 16384
    v_mov_b32 v{vT0}, s{sXw}
    v_mov_b32 v{vT1}, s{sC}
    v_bfe_u32 v{vT3}, v{vLane}, 3, 1
    v_cmp_eq_u32 vcc, 1, v{vT3}
    v_cndmask_b32 v{vT0}, v{vT0}, v{vT1}, vcc
    v_lshrrev_b32 v{vT3}, 4, v{vLane}
    v_lshlrev_b32 v{vT3}, 15, v{vT3}
    v_and_b32 v{vT1}, 7, v{vLane}
    v_lshl_add_u32 v{vT3}, v{vT1}, 4, v{vT3}
    v_add_u32 v{vT0}, v{vT0}, v{vT3}
    s_branch L_clr_st
    L_clr_B:
    s_cmp_eq_u32 s{sW}, 2
    s_cbranch_scc0 L_clr_done
    """)
    setexec(0xF)
    a(f"""
    s_cmp_ge_u32 s{sIdx}, 14
    s_cbranch_scc1 L_clr_st
    s_lshl_b32 s{sD}, s{sIdx}, 6
    s_add_u32 s{sC}, s{sHb}, s{sD}
    """)
    setexec(0xFF0)
    a(f"""
    v_bfe_u32 v{vT3}, v{vLane}, 3, 1
    v_lshlrev_b32 v{vT3}, 13, v{vT3}
    v_and_b32 v{vT1}, 3, v{vLane}
    v_lshl_add_u32 v{vT3}, v{vT1}, 4, v{vT3}
    v_add_u32 v{vT0}, s{sC}, v{vT3}
    """)
    setexec(0xFFF)
    a("L_clr_st:")
    a(f"buffer_store_dwordx4 {vr(vU,4)}, v{vT0}, {sr(sWS,4)}, 0 offen sc1")
    setexec(FULL)
    a("L_clr_done:")
    srd(sX0, P + 2, 2048)
    a(f"s_cmp_eq_u32 s{sW}, 0\ns_cbranch_scc0 L_nox0")
    a(f"""
    s_mov_b32 m0, {L_X0}
    s_nop 0
    buffer_load_dwordx4 v{vT1}, {sr(sX0,4)}, 0 offen lds
    buffer_load_dwordx4 v{vT1}, {sr(sX0,4)}, 0 offen offset:1024 lds
    L_nox0:
    """)
    if cfg.line_pf and "q" in cfg.pf_which:
        a(f"""
        v_lshrrev_b32 v{vT0}, 3, v{vLane}
        v_lshlrev_b32 v{vT0}, 13, v{vT0}
        v_and_b32 v{vT3}, 7, v{vLane}
        v_lshl_add_u32 v{vT0}, v{vT3}, 7, v{vT0}
        s_lshl_b32 s{sB}, s{sM}, 2
        s_add_u32 s{sB}, s{sB}, s{sW}
        s_lshl_b32 s{sB}, s{sB}, 15
        s_lshl_b32 s{sC}, s{sJ}, 10
        s_add_u32 s{sB}, s{sB}, s{sC}
        """)
        setexec(0xFFFFFFFF)
        a(f"buffer_load_dword v{vJ}, v{vT0}, {sr(sWQ,4)}, s{sB} offen{cfg.pf_pol}")
        setexec(FULL)
    a(f"""
    s_lshl_b32 s{sB}, s{sW}, 20
    s_lshl_b32 s{sC}, s{sJ}, 10
    s_add_u32 s{sB}, s{sB}, s{sC}
    s_lshl_b32 s{sC}, s{sM}, 5
    s_add_u32 s{sB}, s{sB}, s{sC}
    s_lshl_b32 s{sC}, s{sW}, 12
    s_add_u32 s{sC}, s{sC}, {L_WQ}
    """)
    for u in range(4):
        a(f"""
        s_mov_b32 m0, s{sC}
        s_add_u32 s{sC}, s{sC}, 1024
        buffer_load_dwordx4 v{vT2}, {sr(sWQ,4)}, s{sB} offen{SLN} lds
        s_add_u32 s{sB}, s{sB}, {32*8192}
        """)
    def emit_wpf(qWO, qGT, reload_ptrs):
        n = 0
        a(f"s_lshl_b32 s{sD}, s{sM}, 2\ns_add_u32 s{sD}, s{sD}, s{sW}               ; q = 4m + w")
        if reload_ptrs:
            a(f"""
            s_load_dwordx2 s[{qWO}:{qWO+1}], s[0:1], 32
            s_load_dwordx2 s[{qGT}:{qGT+1}], s[0:1], 48
            s_waitcnt lgkmcnt(0)
            s_and_b32 s{qWO+1}, s{qWO+1}, 0xffff
            s_mov_b32 s{qWO+2}, 0x400000
            s_and_b32 s{qGT+1}, s{qGT+1}, 0xffff
            s_mov_b32 s{qGT+2}, {512*1792*2}
            """)
        if "o" in cfg.pf_stream:
            a(f"""
            v_lshlrev_b32 v{vT0}, 7, v{vLane}
            s_lshl_b32 s{sB}, s{sJ}, 19
            s_lshl_b32 s{sC}, s{sD}, 12
            s_add_u32 s{sB}, s{sB}, s{sC}
            """)
            setexec(0xFFFFFFFF)
            a(f"buffer_load_dword v{vJ}, v{vT0}, {sr(qWO,4)}, s{sB} offen{cfg.pf_spol}")
            setexec(FULL); n += 1
        if "g" in cfg.pf_stream or "u" in cfg.pf_stream:
            a(f"""
            v_mul_u32_u24 v{vT0}, 52, v{vLane}
            v_lshrrev_b32 v{vT0}, 8, v{vT0}
            v_mul_u32_u24 v{vT1}, 5, v{vT0}
            v_sub_u32 v{vT1}, v{vLane}, v{vT1}
            v_mul_u32_u24 v{vT0}, 3584, v{vT0}
            v_lshl_add_u32 v{vT0}, v{vT1}, 7, v{vT0}
            s_mul_i32 s{sB}, s{sD}, {4*3584}
            s_mul_i32 s{sC}, s{sJ}, 448
            s_and_b32 s{sC}, s{sC}, 0xffffff80
            s_add_u32 s{sB}, s{sB}, s{sC}
            """)
            setexec((1 << 20) - 1)
            if "g" in cfg.pf_stream:
                a(f"buffer_load_dword v{vJ}, v{vT0}, {sr(qGT,4)}, s{sB} offen{cfg.pf_spol}"); n += 1
            if "u" in cfg.pf_stream:
                a(f"buffer_load_dword v{vJ}, v{vT0}, {sr(sUP,4)}, s{sB} offen{cfg.pf_spol}"); n += 1
            setexec(FULL)
        if "d" in cfg.pf_stream:
            a(f"""
            v_lshlrev_b32 v{vT0}, 7, v{vLane}
            s_min_u32 s{sB}, s{sD}, 111
            s_lshl_b32 s{sB}, s{sB}, 11
            s_mul_i32 s{sC}, s{sJ}, {224*1024}
            s_add_u32 s{sB}, s{sB}, s{sC}
            """)
            setexec(0xFFFF)
            a(f"buffer_load_dword v{vJ}, v{vT0}, {sr(sDN,4)}, s{sB} offen{cfg.pf_spol}")
            setexec(FULL); n += 1
        return n

    def page_off(t, dst):
        a(f"""
        s_add_u32 s{dst}, s{sW}, s{sRot}
        s_add_u32 s{dst}, s{dst}, {4*t}
        s_and_b32 s{dst}, s{dst}, 15
        s_lshl_b32 s{dst}, s{dst}, 12
        s_add_u32 s{dst}, s{dst}, s{sKV}
        """)
    def k_page(t):
        page_off(t, sD)
        a(f"s_lshl_b32 s{sC}, s{sW}, 14\ns_add_u32 s{sC}, s{sC}, {L_K + t*4096}\ns_mov_b32 m0, s{sC}\ns_nop 0")
        for ii in range(4):
            a(f"buffer_load_dwordx4 v{vKs+ii}, {sr(sKS,4)}, s{sD} offen offset:{ii*1024} nt lds")
    nKpA = cfg.nKA // 4
    for t in range(cfg.nKb1): k_page(t)
    nPFe = 0
    if cfg.pf_stream and cfg.pf_early:
        srd(sVS, P, 0x400000)
        srd(sOUT, P + 10, 512 * 1792 * 2)
        srd(sUP, P + 12, 512 * 1792 * 2)
        srd(sDN, P + 14, 1792 * 512 * 2)
        nPFe = emit_wpf(sVS, sOUT, False)
    ts("start")
    if cfg.ts_issue: ts("issued")

    srd(sVS, P + 6, 0x8000000)
    srd(sUP, P + 12, 512 * 1792 * 2)
    srd(sDN, P + 14, 1792 * 512 * 2)
    srd(sOUT, P + 16, 2048)
    a(f"""
    s_cmp_lt_u32 s{sM}, 16
    s_cselect_b32 s{sW2}, s{P}, s{P+10}
    s_cselect_b32 s{sW2+1}, s{P+1}, s{P+11}
    s_mov_b32 s{sW2+2}, {512*1792*2}
    s_cselect_b32 s{sW2+2}, 0x400000, s{sW2+2}
    s_and_b32 s{sW2+1}, s{sW2+1}, 0xffff
    s_mov_b32 s{sW2+3}, 0x20000
    s_mov_b32 s{sBud}, {cfg.budget}
    s_getreg_b32 s{sXcc}, hwreg(HW_REG_XCC_ID, 0, 4)
    s_mov_b32 s{sMDIAG}, 0x00ff00ff
    s_mov_b32 s{sMDIAG+1}, 0xff00ff00
    s_mov_b32 s{sM4}, 0x000f000f
    s_mov_b32 s{sM4+1}, 0x000f000f
    s_mov_b32 s{sM2}, 0x00030003
    s_mov_b32 s{sM2+1}, 0x00030003
    s_mov_b32 s{sMN1}, 0x00020002
    s_mov_b32 s{sMN1+1}, 0x00020002
    s_mov_b32 s{sMEV}, 0x55555555
    s_mov_b32 s{sMEV+1}, 0x55555555
    s_mov_b32 s{sL}, 0
    s_mul_i32 s{sOcons}, s{sJ}, {O_J}
    s_lshl_b32 s{sB}, s{sW}, 12
    s_add_u32 s{sOcons}, s{sOcons}, s{sB}
    s_add_u32 s{sOcons}, s{sOcons}, {WS_O}
    """)
    for i in range(4): a(f"v_mov_b32 v{vOnes+i}, 0x3f803f80")
    for i in range(16): a(f"v_mov_b32 v{vQ+i}, 0")
    for i in range(8): a(f"v_mov_b32 v{vHop+i}, 0")
    a(f"v_mov_b32 v{vQ1a}, 0\nv_mov_b32 v{vQ1d}, 0\nv_mov_b32 v{vQ1d+1}, 0")
    h3 = vU; qh = vU + 1; ql = vU + 2
    a(f"""
    v_and_b32 v{h3}, 3, v{vR16}
    v_lshrrev_b32 v{qh}, 1, v{vQd}
    v_and_b32 v{ql}, 1, v{vQd}
    v_and_b32 v{vT0}, 7, v{vR16}
    v_lshlrev_b32 v{vT0}, 11, v{vT0}
    v_lshrrev_b32 v{vT1}, 3, v{vR16}
    v_lshl_add_u32 v{vT0}, v{vT1}, 6, v{vT0}
    v_lshl_add_u32 v{vaX}, v{vQd}, 4, v{vT0}
    s_lshr_b32 s{sA}, s{sXcc}, 2
    v_bfe_u32 v{vT1}, v{vaX}, 13, 1
    v_cmp_ne_u32 vcc, s{sA}, v{vT1}
    v_xor_b32 v{vT1}, 0x2000, v{vaX}
    v_add_u32 v{vT1}, 16384, v{vT1}
    v_cndmask_b32 v{vaX}, v{vaX}, v{vT1}, vcc
    v_lshrrev_b32 v{vT0}, 3, v{vLane}
    v_and_b32 v{vT1}, 2, v{vT0}
    v_and_b32 v{vT2}, 7, v{vLane}
    v_xor_b32 v{vT1}, v{vT1}, v{vT2}
    v_lshlrev_b32 v{vT1}, 4, v{vT1}
    v_lshl_add_u32 v{vT0}, v{vT0}, 11, v{vT1}
    s_lshl_b32 s{sB}, s{sW}, 9
    v_add_u32 v{vaXg}, s{sB}, v{vT0}
    v_bfe_u32 v{vT1}, v{vaXg}, 13, 1
    v_cmp_ne_u32 vcc, s{sA}, v{vT1}
    v_xor_b32 v{vT1}, 0x2000, v{vaXg}
    v_add_u32 v{vT1}, 16384, v{vT1}
    v_cndmask_b32 v{vaXg}, v{vaXg}, v{vT1}, vcc
    v_and_b32 v{vT0}, 7, v{vR16}
    v_lshrrev_b32 v{vT1}, 3, v{vR16}
    v_lshl_add_u32 v{vT1}, v{vT1}, 2, v{vQd}
    v_and_b32 v{vT2}, 2, v{vT0}
    v_xor_b32 v{vT1}, v{vT1}, v{vT2}
    v_lshlrev_b32 v{vT1}, 4, v{vT1}
    v_lshl_add_u32 v{vT0}, v{vT0}, 7, v{vT1}
    s_lshl_b32 s{sXI}, s{sW}, 12
    s_add_u32 s{sXI}, s{sXI}, {L_XI}
    v_add_u32 v{vaXr}, s{sXI}, v{vT0}
    v_lshlrev_b32 v{vaO0}, 4, v{vLane}
    v_add_u32 v{vaO1}, 16384, v{vaO0}
    v_lshl_add_u32 v{vT0}, v{vQd}, 2, v{vR16}
    v_and_b32 v{vT0}, 15, v{vT0}
    v_lshlrev_b32 v{vT0}, 4, v{vT0}
    s_mul_i32 s{sB}, s{sW}, 3840
    s_sub_u32 s{sB}, {O_STATS}, s{sB}
    v_add_u32 v{vaS0}, s{sB}, v{vT0}
    v_add_u32 v{vaS1}, 1024, v{vaS0}
    v_lshlrev_b32 v{vT0}, 6, v{vQd}
    v_lshl_add_u32 v{vaQ2}, v{h3}, 4, v{vT0}
    v_lshlrev_b32 v{vT0}, 10, v{ql}
    v_lshrrev_b32 v{vT1}, 3, v{vR16}
    v_lshl_add_u32 v{vT0}, v{vT1}, 6, v{vT0}
    v_and_b32 v{vT1}, 7, v{vR16}
    v_lshl_add_u32 v{vaStQ}, v{vT1}, 1, v{vT0}
    v_lshlrev_b32 v{vT0}, 12, v{h3}
    v_lshl_add_u32 v{vT0}, v{vQd}, 10, v{vT0}
    v_bfe_u32 v{vT1}, v{vLane}, 2, 2
    v_lshl_add_u32 v{vaClrO}, v{vT1}, 8, v{vT0}
    v_and_b32 v{vT0}, 1, v{vR16}
    v_lshlrev_b32 v{vT0}, 5, v{vT0}
    v_lshl_add_u32 v{vT0}, v{qh}, 6, v{vT0}
    v_lshl_add_u32 v{vT0}, v{ql}, 4, v{vT0}
    s_lshl_b32 s{sB}, s{sW}, 7
    v_add_u32 v{vaH}, s{sB}, v{vT0}
    v_lshlrev_b32 v{vT0}, 6, v{vQd}
    v_lshl_add_u32 v{vT0}, v{h3}, 4, v{vT0}
    v_add_u32 v{vaPr}, {L_PBUF}, v{vT0}
    v_lshrrev_b32 v{vT1}, 2, v{vR16}
    v_lshl_add_u32 v{vT1}, v{vT1}, 9, v{vaPr}
    s_lshr_b32 s{sB}, s{sW}, 1
    s_lshl_b32 s{sB}, s{sB}, 8
    s_and_b32 s{sC}, s{sW}, 1
    s_lshl_b32 s{sC}, s{sC}, 3
    s_add_u32 s{sB}, s{sB}, s{sC}
    v_add_u32 v{vaPw}, s{sB}, v{vT1}
    v_lshlrev_b32 v{vT0}, 4, v{h3}
    v_add_u32 v{vaSm}, {L_SMAX}, v{vT0}
    s_lshl_b32 s{sB}, s{sW}, 2
    v_add_u32 v{vaSmW}, s{sB}, v{vaSm}
    v_lshlrev_b32 v{vT0}, 4, v{vLane}
    v_add_u32 v{vaRedW}, s{sB}, v{vT0}
    v_and_b32 v{vT1}, 1, v{vR16}
    v_lshl_add_u32 v{vT1}, v{qh}, 1, v{vT1}
    v_lshlrev_b32 v{vT1}, 4, v{vT1}
    v_add_u32 v{vaRedZ}, s{sB}, v{vT1}
    v_lshl_add_u32 v{vT0}, v{ql}, 5, v{vR16}
    v_lshlrev_b32 v{vaFinW}, 4, v{vT0}
    v_lshlrev_b32 v{vaFinZ}, 5, v{ql}
    v_lshlrev_b32 v{vT0}, 9, v{ql}
    v_add_u32 v{vaFinQZ}, 256, v{vT0}
    v_lshlrev_b32 v{vaFinO}, 4, v{vLane}
    v_lshlrev_b32 v{vT0}, 5, v{ql}
    v_lshl_add_u32 v{vaStH}, v{vR16}, 1, v{vT0}
    v_lshlrev_b32 v{vT0}, 6, v{ql}
    v_lshl_add_u32 v{vT0}, v{qh}, 5, v{vT0}
    v_lshl_add_u32 v{vaStX}, v{vR16}, 1, v{vT0}
    v_lshlrev_b32 v{vT0}, 12, v{vR16}
    v_lshl_add_u32 v{vT0}, v{vQd}, 8, v{vT0}
    s_lshl_b32 s{sB}, s{sW}, 10
    v_add_u32 v{vaStO}, s{sB}, v{vT0}
    s_lshr_b32 s{sB}, s{sM}, 4
    s_mul_i32 s{sB}, s{sB}, 15360
    s_sub_u32 s{sB}, {O_STATS}, s{sB}
    v_lshlrev_b32 v{vT0}, 8, v{vLane}
    v_add_u32 v{vaStS}, s{sB}, v{vT0}
    """)
    a(f"s_lshl_b32 s{sB}, s{sW}, 14\ns_add_u32 s{sB}, s{sB}, {L_K}")
    for c in range(4):
        a(f"""
        v_add_u32 v{vT0}, {4*c}, v{vQd}
        v_xor_b32 v{vT0}, v{vT0}, v{vR16}
        v_lshlrev_b32 v{vT0}, 4, v{vT0}
        v_lshl_add_u32 v{vT0}, v{vR16}, 8, v{vT0}
        v_add_u32 v{vKr+c}, s{sB}, v{vT0}
        """)
    for e in range(2):
        a(f"""
        v_add_u32 v{vT1}, {4*e}, v{vQd}
        v_lshrrev_b32 v{vT2}, 1, v{vR16}
        v_xor_b32 v{vT1}, v{vT1}, v{vT2}
        v_lshlrev_b32 v{vT1}, 1, v{vT1}
        v_and_b32 v{vT2}, 1, v{vR16}
        v_or_b32 v{vT1}, v{vT1}, v{vT2}
        v_lshlrev_b32 v{vT1}, 4, v{vT1}
        v_lshl_add_u32 v{vVs+e}, v{vQd}, 8, v{vT1}
        """)
    for nt in range(2):
        a(f"""
        v_lshrrev_b32 v{vT1}, 2, v{vR16}
        v_lshl_add_u32 v{vT0}, v{vQd}, 2, v{vT1}
        v_and_b32 v{vT2}, 7, v{vT0}
        s_lshl_b32 s{sB}, s{sW}, 1
        s_add_u32 s{sB}, s{sB}, {nt}
        v_xor_b32 v{vT2}, s{sB}, v{vT2}
        v_lshlrev_b32 v{vT2}, 5, v{vT2}
        v_lshl_add_u32 v{vT0}, v{vT0}, 8, v{vT2}
        v_lshl_add_u32 v{vT0}, v{h3}, 3, v{vT0}
        v_add_u32 v{vVr+nt}, {L_V}, v{vT0}
        """)
    for i in range(16): a(f"v_mov_b32 v{XA+i}, 0")
    if cfg.w_inter:
        a(f"""
        s_cmp_lt_u32 s{sM}, 16
        s_cbranch_scc0 L_wsB
        v_lshrrev_b32 v{vT0}, 2, v{vLane}
        v_lshlrev_b32 v{vT0}, 10, v{vT0}
        v_and_b32 v{vT1}, 3, v{vLane}
        v_lshl_add_u32 v{vWs}, v{vT1}, 4, v{vT0}
        s_lshl_b32 s{sWb}, s{sJ}, 19
        s_lshl_b32 s{sC}, s{sW}, 17
        s_add_u32 s{sWb}, s{sWb}, s{sC}
        s_lshl_b32 s{sC}, s{sIdx}, 6
        s_add_u32 s{sWb}, s{sWb}, s{sC}
        s_mov_b32 s{sWst}, 16384
        s_mov_b32 s{sUP}, s{sW2}
        s_mov_b32 s{sUP+1}, s{sW2+1}
        s_mov_b32 s{sUP+2}, s{sW2+2}
        s_branch L_wsD
        L_wsB:
        v_lshrrev_b32 v{vT0}, 1, v{vLane}
        v_mul_u32_u24 v{vT0}, 3584, v{vT0}
        v_and_b32 v{vT1}, 1, v{vLane}
        v_lshl_add_u32 v{vWs}, v{vT1}, 4, v{vT0}
        s_mul_i32 s{sWb}, s{sW}, {128*3584}
        s_mul_i32 s{sC}, s{sJ}, 448
        s_add_u32 s{sWb}, s{sWb}, s{sC}
        s_lshl_b32 s{sC}, s{sIdx}, 5
        s_add_u32 s{sWb}, s{sWb}, s{sC}
        s_mov_b32 s{sWst}, {32*3584}
        L_wsD:
        """)
    ts("setup")
    a(f"s_waitcnt vmcnt({4*cfg.nKb1 + nPFe})")
    ts("wq_landed")
    for t in range(cfg.nKb1, nKpA): k_page(t)

    def tr_base(dst, rowbytes, rowmul, sadd, const):
        sh = rowbytes.bit_length() - 1; rm = rowmul.bit_length() - 1
        a(f"""
        v_lshrrev_b32 v{vT1}, 2, v{vR16}
        v_lshl_add_u32 v{vT1}, v{vQd}, {rm}, v{vT1}
        v_lshlrev_b32 v{vT1}, {sh}, v{vT1}
        v_and_b32 v{vT2}, 3, v{vR16}
        v_lshl_add_u32 v{vT1}, v{vT2}, 3, v{vT1}
        v_add_u32 v{vT1}, s{sadd}, v{vT1}
        v_add_u32 v{dst}, {const}, v{vT1}
        """)

    def ln_stats(s1, s2, mean, rstd):
        a(f"""
        v_mul_f32 v{mean}, {f2u(1.0/512):#x}, v{s1}
        v_mul_f32 v{s2}, {f2u(1.0/512):#x}, v{s2}
        v_fma_f32 v{s2}, -v{mean}, v{mean}, v{s2}
        v_max_f32 v{s2}, 0, v{s2}
        v_add_f32 v{s2}, {f2u(1e-5):#x}, v{s2}
        v_rsq_f32 v{rstd}, v{s2}
        """)
    def sum4r(b):
        a(f"v_add_f32 v{b}, v{b}, v{b+1}\nv_add_f32 v{b+2}, v{b+2}, v{b+3}\nv_add_f32 v{b}, v{b}, v{b+2}")

    def stats_valu(z):
        L = [f"v_add_f32 v{z}, v{vAcc+8}, v{vAcc+9}", f"v_add_f32 v{vT3}, v{vAcc+10}, v{vAcc+11}", f"v_add_f32 v{z}, v{z}, v{vT3}",
             f"v_cndmask_b32 v{z}, 0, v{z}, s[{sMDIAG}:{sMDIAG+1}]"]
        for n in (8, 4, 2, 1):
            L.append(f"v_add_f32_dpp v{z}, v{z}, v{z} row_ror:{n} row_mask:0xf bank_mask:0xf")
        L += [f"v_add_f32 v{z+1}, v{vAcc+12}, v{vAcc+13}", f"v_add_f32 v{vT3}, v{vAcc+14}, v{vAcc+15}", f"v_add_f32 v{z+1}, v{z+1}, v{vT3}",
              f"v_cndmask_b32 v{z}, v{z+1}, v{z}, s[{sMN1}:{sMN1+1}]"]
        return L
    def stats_mf(X):
        return [mf(vAcc + 8, X + 4*u, X + 4*u, "0" if u == 0 else None) for u in range(4)] + \
               [mf(vAcc + 12, X + 4*u, vOnes, "0" if u == 0 else None) for u in range(4)]

    def q_core(X):
        M = stats_mf(X) + [mf(vAcc, X + 4*u, ar(aWq + 4*u, 4), "0" if u == 0 else None) for u in range(4)]
        interleave(M, stats_valu(vU), 8, 2)
        sum4(vU + 2, vAcc, vT3)
        a(f"""
        v_permlane16_swap_b32 v{vU+2}, v{vU}
        v_add_f32 v{vU}, v{vU}, v{vU+2}
        ds_write_b32 v{vaRedW}, v{vU} offset:{R_Q}
        s_waitcnt lgkmcnt(0)
        s_barrier
        """)
    def q_final(first):
        lab = a.label("qf")
        a(f"s_cmp_eq_u32 s{sW}, 0\ns_cbranch_scc0 {lab}")
        setexec(0xFFFFFFFF)
        a(f"""
        ds_read_b128 {vr(vU,4)}, v{vaFinW} offset:{R_Q}
        ds_read_b128 {vr(vU+4,4)}, v{vaFinQZ} offset:{R_Q}
        ds_read_b128 {vr(vU+8,4)}, v{vaFinQZ} offset:{R_Q+16}
        """)
        if first:
            a(f"ds_read_b128 {vr(vU+12,4)}, v{vaFinW} offset:{R_COL}")
        a("s_waitcnt lgkmcnt(0)")
        if first:
            sum4r(vU + 12); a(f"v_mov_b32 v{vCs}, v{vU+12}")
        sum4r(vU + 4); sum4r(vU + 8); sum4r(vU)
        ln_stats(vU + 4, vU + 8, vU + 5, vU + 6)
        a(f"""
        v_fma_f32 v{vU}, -v{vU+5}, v{vCs}, v{vU}
        v_mul_f32 v{vU}, v{vU}, v{vU+6}
        """)
        dpp("v_mov_b32", vU + 1, vU, None, "quad_perm:[1,0,3,2]")
        a(f"v_cvt_pk_bf16_f32 v{vU+2}, v{vU}, v{vU+1}")
        if first:
            a(f"""
            v_mov_b32 v{vQ1d}, v{vU+2}
            v_mov_b32 v{vQ1d+1}, s{sTX}
            s_lshl_b32 s{sB}, s{sJ}, 12
            s_lshl_b32 s{sC}, s{sM}, 7
            s_add_u32 s{sB}, s{sB}, s{sC}
            s_add_u32 s{sB}, s{sB}, {WS_Q1}
            v_lshlrev_b32 v{vT0}, 1, v{vaStH}
            v_add_u32 v{vQ1a}, s{sB}, v{vT0}
            """)
            setexec(0x55555555)
            a(f"buffer_store_dwordx2 {vr(vQ1d,2)}, v{vQ1a}, {sr(sWS,4)}, 0 offen" + (" sc1" if cfg.force_global else ""))
        else:
            a(f"v_min_u32 v{vU+2}, 0xfffffffe, v{vU+2}")
            setexec(0x55555555)
            store_local(f"buffer_store_dword v{vU+2}, v{vaStQ}, {sr(sWS,4)}, s{sQ2w} offen")
        setexec(FULL)
        a(f"{lab}:")

    def s_qk_max():
        for c in range(4):
            for t in range(4):
                mfma(vS + 4*t, ar(aK + 16*t + 4*c, 4), vQ + 4*c, "0" if c == 0 else None)
        for t in range(1, 4):
            for r in range(4):
                dpp("v_mov_b32", vS + r, vS + 4*t + r, None, f"row_shr:{4*t}", bm=f"0x{1<<t:x}")
        a(f"v_max3_f32 v{vU}, v{vS}, v{vS+1}, v{vS+2}\nv_max_f32 v{vU}, v{vU}, v{vS+3}")
        row_reduce("v_max_f32", vU, (8, 4))
        xquad_reduce("v_max_f32", vU, vT0)
        setexec(0xF)
        a(f"ds_write_b32 v{vaSmW}, v{vU}")
        setexec(FULL)
        a("s_waitcnt lgkmcnt(0)\ns_barrier")
    def s_exp_p():
        a(f"""
        ds_read_b128 {vr(vU+4,4)}, v{vaSm}
        s_mov_b32 s{sB}, {f2u(C_SCALE):#x}
        s_waitcnt lgkmcnt(0)
        v_max3_f32 v{vU}, v{vU+4}, v{vU+5}, v{vU+6}
        v_max_f32 v{vU}, v{vU}, v{vU+7}
        v_mul_f32 v{vMc}, s{sB}, v{vU}
        """)
        for i in range(4): a(f"v_fma_f32 v{vS+i}, v{vS+i}, s{sB}, -v{vMc}")
        for i in range(4): a(f"v_exp_f32 v{vS+i}, v{vS+i}")
        a(f"""
        v_cvt_pk_bf16_f32 v{vU+2}, v{vS}, v{vS+1}
        v_cvt_pk_bf16_f32 v{vU+3}, v{vS+2}, v{vS+3}
        ds_write_b64 v{vaPw}, {vr(vU+2,2)}
        v_add_f32 v{vU}, v{vS}, v{vS+1}
        v_add_f32 v{vU+1}, v{vS+2}, v{vS+3}
        v_add_f32 v{vU}, v{vU}, v{vU+1}
        """)
        row_reduce("v_add_f32", vU, (8, 4))
        xquad_reduce("v_add_f32", vU, vT0)
        setexec(0xF)
        a(f"ds_write_b32 v{vaSmW}, v{vU} offset:{L_LSUM-L_SMAX}")
        setexec(FULL)
        a("s_waitcnt lgkmcnt(0)\ns_barrier")
        for blk in range(8):
            a(f"ds_read_b128 {vr(vP+4*blk,4)}, v{vaPr} offset:{blk*256}")
    def s_stats_prep():
        lab = a.label("st")
        a(f"s_cmp_eq_u32 s{sW}, 3\ns_cbranch_scc0 {lab}")
        a(f"""
        ds_read_b128 {vr(vU+4,4)}, v{vaSm} offset:{L_LSUM-L_SMAX}
        s_add_u32 s{sB}, s{sT}, s{sL}
        s_add_u32 s{sB}, s{sB}, 1
        v_mov_b32 v{vMc+2}, s{sB}
        s_waitcnt lgkmcnt(0)
        """)
        sum4r(vU + 4)
        a(f"v_mov_b32 v{vMc+1}, v{vU+4}")
        a(f"{lab}:")
    def s_stats_store(wait):
        lab = a.label("ss")
        a(f"s_cmp_eq_u32 s{sW}, 3\ns_cbranch_scc0 {lab}")
        if wait is not None: a(f"s_waitcnt vmcnt({wait})")
        setexec(0xF)
        store_local(f"buffer_store_dwordx4 {vr(vMc,4)}, v{vaStS}, {sr(sWS,4)}, s{sOown} offen")
        setexec(FULL)
        a(f"{lab}:")
    accO = vAcc
    def v_tr(blk):
        t, p = blk >> 1, blk & 1
        for nt in range(2):
            a(f"ds_read_b64_tr_b16 {ar(aV+8*blk+4*nt,2)}, v{vVr+nt} offset:{(4*t+2*p)*4096}")
            a(f"ds_read_b64_tr_b16 {ar(aV+8*blk+4*nt+2,2)}, v{vVr+nt} offset:{(4*t+2*p+1)*4096}")
    def pv(blks, first):
        for blk in blks:
            for nt in range(2):
                mfma(accO + 4*nt, ar(aV + 8*blk + 4*nt, 4), vP + 4*blk, "0" if (first and blk == blks[0]) else None)
    def s_out():
        for i in range(4):
            a(f"v_cvt_pk_bf16_f32 v{vU+i}, v{accO+2*i}, v{accO+2*i+1}")
        for i in range(4):
            a(f"v_min_u32 v{vU+i}, 0xfffffffe, v{vU+i}")
        setexec(EM4)
        store_local(f"buffer_store_dwordx4 {vr(vU,4)}, v{vaStO}, {sr(sWS,4)}, s{sOown} offen")
        setexec(FULL)

    a(f"s_lshl_b32 s{sB}, s{sW}, 12")
    tr_base(vT0, 32, 8, sB, L_WQ)
    for u in range(4):
        a(f"ds_read_b64_tr_b16 {ar(aWq+4*u,2)}, v{vT0} offset:{u*1024}")
        a(f"ds_read_b64_tr_b16 {ar(aWq+4*u+2,2)}, v{vT0} offset:{u*1024+128}")
    a(f"""
    v_lshrrev_b32 v{vT0}, 3, v{vR16}
    v_lshlrev_b32 v{vT0}, 10, v{vT0}
    v_lshl_add_u32 v{vT0}, v{vQd}, 4, v{vT0}
    s_lshl_b32 s{sB}, s{sW}, 8
    v_add_u32 v{vT0}, s{sB}, v{vT0}
    s_barrier
    """)
    setexec(0x0101010101010101)
    for u in range(4):
        a(f"ds_read_b128 {vr(XA+4*u,4)}, v{vT0} offset:{L_X0+u*64}")
    setexec(FULL)
    a(f"""
    s_waitcnt lgkmcnt(0)
    s_add_u32 s{sT}, s{sT}, 0x9e3779b0
    s_and_b32 s{sT}, s{sT}, 0xfffffff0
    s_or_b32 s{sTX}, s{sT}, s{sXcc}
    """)
    for u in range(4): mfma(vS, vOnes, ar(aWq + 4*u, 4), "0" if u == 0 else None)
    a(f"ds_write_b32 v{vaRedW}, v{vS} offset:{R_COL}")
    q_core(XA)
    q_final(True)
    a("s_barrier")
    ts("q1_pub")

    def v_group(t):
        page_off(t, sD)
        a(f"s_lshl_b32 s{sC}, s{sW}, 12\ns_add_u32 s{sC}, s{sC}, {L_V + t*16384}\ns_mov_b32 m0, s{sC}\ns_nop 0")
        for ii in range(4):
            a(f"buffer_load_dwordx4 v{vVs+(ii&1)}, {sr(sVS,4)}, s{sD} offen offset:{ii*1024} nt lds")
    def pace(): a(f"s_waitcnt vmcnt({cfg.pace})")
    def w_part(part, lo, hi):
        if not cfg.w_inter: return
        lab = a.label("wp")
        lim = 30
        if (part == 0 and "g" not in cfg.w_interB) or (part == 1 and "u" not in cfg.w_interB): lim = 16
        a(f"s_cmp_ge_u32 s{sM}, {lim}\ns_cbranch_scc1 {lab}")
        for u in range(lo, hi):
            if part == 0:
                a(f"s_mul_i32 s{sB}, s{sWst}, {u}\ns_add_u32 s{sB}, s{sB}, s{sWb}")
                a(f"s_lshl_b32 s{sC}, s{sW}, 12\ns_add_u32 s{sC}, s{sC}, {L_WQ + u*1024}")
            else:
                a(f"s_cmp_lt_u32 s{sM}, 16\ns_cselect_b32 s{sB}, {4+u}, {u}\ns_mul_i32 s{sB}, s{sB}, s{sWst}\ns_add_u32 s{sB}, s{sB}, s{sWb}")
                a(f"s_lshl_b32 s{sC}, s{sW}, 14\ns_add_u32 s{sC}, s{sC}, {L_K + u*1024}")
            a(f"s_mov_b32 m0, s{sC}\ns_nop 0")
            a(f"buffer_load_dwordx4 v{vWs}, {sr(sW2 if part == 0 else sUP,4)}, s{sB} offen{SLN} lds")
        a(f"{lab}:")
    for t in range(nKpA, 4):
        pace()
        if t == 3: w_part(0, 0, 4)
        k_page(t)
    a(f"""
    v_lshrrev_b32 v{vT0}, 2, v{vLane}
    v_lshlrev_b32 v{vT0}, 7, v{vT0}
    v_and_b32 v{vT1}, 3, v{vLane}
    v_lshl_add_u32 v{vKs}, v{vT1}, 4, v{vT0}        ; (vKs is free once K is issued)
    s_lshl_b32 s{sA}, s{sJ}, 12
    s_lshr_b32 s{sB}, s{sM}, 4
    s_lshl_b32 s{sB}, s{sB}, 6
    s_add_u32 s{sA}, s{sA}, s{sB}
    s_add_u32 s{sA}, s{sA}, {WS_Q1}
    v_and_b32 v{vT0}, 3, v{vR16}
    v_lshlrev_b32 v{vT0}, 9, v{vT0}
    v_lshrrev_b32 v{vT1}, 1, v{vQd}
    v_lshl_add_u32 v{vT0}, v{vT1}, 6, v{vT0}
    v_and_b32 v{vT1}, 1, v{vQd}
    v_lshl_add_u32 v{vKs+1}, v{vT1}, 5, v{vT0}
    v_lshlrev_b32 v{vKs+2}, 5, v{vLane}
    """)
    def q1_dma(img):
        a(f"""
        s_mov_b32 m0, {L_QG + img*2048}
        s_add_u32 s{sB}, s{sA}, 2048
        buffer_load_dwordx4 v{vKs}, {sr(sWS,4)}, s{sA} offen sc1 lds
        s_mov_b32 m0, {L_QG + img*2048 + 1024}
        s_nop 0
        buffer_load_dwordx4 v{vKs}, {sr(sWS,4)}, s{sB} offen sc1 lds
        """)
    def w0(fn):
        lab = a.label("w0")
        a(f"s_cmp_eq_u32 s{sW}, 0\ns_cbranch_scc0 {lab}")
        fn()
        a(f"{lab}:")
    def q1_dup():
        setexec(0x55555555)
        a(f"buffer_store_dwordx2 {vr(vQ1d,2)}, v{vQ1a}, {sr(sWS,4)}, 0 offen sc1")
        setexec(FULL)
    g.q1_dup = lambda: w0(q1_dup)
    pace()
    if cfg.pf_stream and cfg.pf_pos == 0: emit_wpf(sKS2, sWQ, True)
    v_group(0)
    a("s_waitcnt vmcnt(4)")
    for t in range(4):
        for c in range(4):
            a(f"ds_read_b128 {ar(aK+16*t+4*c,4)}, v{vKr+c} offset:{t*4096}")
    ts("k_landed")
    w0(lambda: q1_dma(0))
    if cfg.pf_stream and cfg.pf_pos == 1: emit_wpf(sKS, sWQ, True)
    v_group(1)
    a("s_waitcnt vmcnt(4)")
    ts("v0_landed")
    if cfg.pf_stream and cfg.pf_pos == 2: emit_wpf(sKS, sWQ, True)
    if cfg.w_inter:
        a("s_waitcnt lgkmcnt(0)")
        w_part(1, 0, 2)
    def warm_stats0():
        if cfg.warm:
            lab = a.label("ws")
            a(f"s_cmp_lt_u32 s{sM}, 16\ns_cbranch_scc0 {lab}")
            a(f"buffer_load_dword v{vJ}, v{vaS0}, {sr(sWS,4)}, s{sOcons} offen sc1")
            a(f"buffer_load_dword v{vJ}, v{vaS1}, {sr(sWS,4)}, s{sOcons} offen sc1")
            a(f"{lab}:")
    if cfg.v3_early: warm_stats0()
    v_group(2)
    if cfg.v3_early:
        assert not cfg.w_inter
        v_group(3)
    def _o0():
        lab = a.label("c0")
        a(f"""
        s_cmp_eq_u32 s{sW}, 3
        s_cbranch_scc0 {lab}
        v_mov_b32 v{vU+8}, -1
        v_mov_b32 v{vU+9}, -1
        v_mov_b32 v{vU+10}, -1
        v_mov_b32 v{vU+11}, -1
        """)
        store_local(f"buffer_store_dwordx4 {vr(vU+8,4)}, v{vaClrO}, {sr(sWS,4)}, s{sOown} offen")
        a(f"{lab}:")
    g.o0_clear_hook = _o0
    vG = vA
    def q1_tags(img):
        a(f"""
        ds_read_b128 {vr(vG,4)}, v{vKs+2} offset:{L_QG + img*2048}
        ds_read_b128 {vr(vG+4,4)}, v{vKs+2} offset:{L_QG + img*2048 + 16}
        s_waitcnt lgkmcnt(0)
        v_xor_b32 v{vT1}, s{sTX}, v{vG+1}
        v_xor_b32 v{vT2}, s{sTX}, v{vG+3}
        v_xor_b32 v{vT3}, s{sTX}, v{vG+5}
        v_xor_b32 v{vT0}, s{sTX}, v{vG+7}
        v_or3_b32 v{vT1}, v{vT1}, v{vT2}, v{vT3}
        v_or_b32 v{vT1}, v{vT1}, v{vT0}
        v_cmp_lt_u32 vcc, 15, v{vT1}
        """)
    a("s_barrier")
    q1_tags(0)
    a(f"s_mov_b32 s{sC}, {L_QG}\ns_cbranch_vccz L_q1ok")
    cnt("g0fail")
    w0(lambda: (q1_dma(1), a("s_waitcnt vmcnt(0)")))
    a("s_barrier")
    q1_tags(1)
    a(f"s_mov_b32 s{sC}, {L_QG + 2048}\ns_cbranch_vccz L_q1ok")
    a("L_q1retry:")
    cnt("g1fail")
    a(f"s_sub_u32 s{sBud}, s{sBud}, 1\ns_cbranch_scc1 L_abort\ns_barrier")
    w0(lambda: (q1_dup(), q1_dma(0), a("s_waitcnt vmcnt(0)")))
    a("s_barrier")
    q1_tags(0)
    a(f"s_mov_b32 s{sC}, {L_QG}\ns_cbranch_vccnz L_q1retry")
    a("L_q1ok:")
    a(f"""
    v_cmp_ne_u32 vcc, 0, v{vT1}
    v_add_u32 v{vT0}, s{sC}, v{vKs+1}
    s_cmp_eq_u64 vcc, 0
    s_cselect_b32 s{sLocal}, 1, 0
    """)
    if cfg.v3_early: g.o0_clear_hook()
    setexec(EM4)
    for c in range(4):
        a(f"ds_read2_b32 {vr(vQ+4*c,2)}, v{vT0} offset0:{c*32} offset1:{c*32+2}")
        a(f"ds_read2_b32 {vr(vQ+4*c+2,2)}, v{vT0} offset0:{c*32+4} offset1:{c*32+6}")
    setexec(FULL)
    lab = a.label("nl")
    a(f"s_cmp_eq_u32 s{sLocal}, 0\ns_cbranch_scc0 {lab}")
    g.q1_dup()
    a(f"{lab}:")
    a("s_waitcnt lgkmcnt(0)")
    ts("q1_got")
    s_qk_max()
    ts("s1_max")
    def o0_clear():
        lab = a.label("c0")
        a(f"""
        s_cmp_eq_u32 s{sW}, 3
        s_cbranch_scc0 {lab}
        v_mov_b32 v{vU+8}, -1
        v_mov_b32 v{vU+9}, -1
        v_mov_b32 v{vU+10}, -1
        v_mov_b32 v{vU+11}, -1
        """)
        store_local(f"buffer_store_dwordx4 {vr(vU+8,4)}, v{vaClrO}, {sr(sWS,4)}, s{sOown} offen")
        a(f"{lab}:")
    if not cfg.v3_early:
        a("s_waitcnt vmcnt(4)")
        o0_clear()
        warm_stats0()
        w_part(1, 2, 4)
        v_group(3)
    else:
        a("s_waitcnt vmcnt(8)")
    nPF = emit_wpf(sKS, sWQ, True) if (cfg.pf_stream and not cfg.pf_early and cfg.pf_pos is None) else 0

    def s1_tail(nW=0, maybe_none=False):
        def wait_v(base):
            if nW and maybe_none:
                l1 = a.label("wv"); l2 = a.label("wv")
                a(f"s_cmp_ge_u32 s{sIdx}, 14\ns_cbranch_scc1 {l1}\ns_waitcnt vmcnt({base + nW})\ns_branch {l2}\n{l1}:\ns_waitcnt vmcnt({base})\n{l2}:")
            else:
                a(f"s_waitcnt vmcnt({base + nW})")
        s_exp_p()
        s_stats_prep()
        blks = [0, 1, 2, 3]
        for blk in blks: v_tr(blk)
        a("s_waitcnt lgkmcnt(0)")
        pv(blks, True)
        for t in (2, 3):
            if t == 3 and cfg.v3_early:
                l3 = a.label("v3"); l4 = a.label("v4")
                a(f"s_cmp_eq_u32 s{sW}, 3\ns_cbranch_scc1 {l3}\ns_waitcnt vmcnt({nW})\ns_branch {l4}\n{l3}:\ns_waitcnt vmcnt({nW + 1})\n{l4}:")
            else:
                wait_v(4*(3-t))
            a("s_barrier")
            if t == 3: ts("v_landed")
            blks = [2*t, 2*t + 1]
            for blk in blks: v_tr(blk)
            a("s_waitcnt lgkmcnt(0)")
            pv(blks, False)
        s_out()
        s_stats_store(1 if cfg.v3_early else None)
        lab = a.label("c1")
        a(f"""
        s_cmp_eq_u32 s{sW}, 0
        s_cbranch_scc0 {lab}
        v_mov_b32 v{vU+8}, -1
        v_mov_b32 v{vU+9}, -1
        v_mov_b32 v{vU+10}, -1
        v_mov_b32 v{vU+11}, -1
        s_add_u32 s{sB}, s{sOown}, {O_L}
        """)
        store_local(f"buffer_store_dwordx4 {vr(vU+8,4)}, v{vaClrO}, {sr(sWS,4)}, s{sB} offen")
        q1_dup()
        a(f"{lab}:")
        ts("s1_pub")

    def x_poll(sbase, dst, sleep):
        l = a.label("xp"); ok = a.label("xok")
        if cfg.sleep_x0: a(f"s_sleep {cfg.sleep_x0}")
        a(f"{l}:")
        cnt("n_x")
        for u in range(4):
            if u == 0: a(f"s_mov_b32 m0, s{sXI}\ns_nop 0")
            else: a(f"s_add_u32 s{sB}, s{sXI}, {u*(1024-128)}\ns_mov_b32 m0, s{sB}\ns_nop 0")
            a(f"buffer_load_dwordx4 v{vaXg}, {sr(sWS,4)}, s{sbase} offen offset:{u*128} sc1 lds")
        a("s_waitcnt vmcnt(0)")
        for u in range(4):
            a(f"ds_read_b128 {vr(dst+4*u,4)}, v{vaXr} offset:{u*1024}")
        a("s_waitcnt lgkmcnt(0)")
        sent_check([dst+i for i in range(16)], vT0, ok)
        spin_fail(l, sleep)
        a(f"{ok}:")

    def warm_q2():
        if not cfg.warm: return
        a(f"s_lshl_b32 s{sB}, s{sJ}, 11\ns_add_u32 s{sB}, s{sB}, {WS_Q2}\nv_lshlrev_b32 v{vT0}, 7, v{vLane}")
        setexec(0xFFFF)
        a(f"buffer_load_dword v{vJ}, v{vT0}, {sr(sWS,4)}, s{sB} offen sc1")
        setexec(FULL)
    def warm_o(dl, data=True):
        if not cfg.warm: return
        a(f"s_add_u32 s{sB}, s{sOcons}, {dl*O_L}")
        if data:
            a(f"""
            v_and_b32 v{vT0}, 31, v{vLane}
            v_lshlrev_b32 v{vT0}, 7, v{vT0}
            v_lshrrev_b32 v{vT1}, 5, v{vLane}
            v_lshl_add_u32 v{vT0}, v{vT1}, 14, v{vT0}
            buffer_load_dword v{vJ}, v{vT0}, {sr(sWS,4)}, s{sB} offen sc1
            """)
        a(f"buffer_load_dword v{vJ}, v{vaS0}, {sr(sWS,4)}, s{sB} offen sc1")
        a(f"buffer_load_dword v{vJ}, v{vaS1}, {sr(sWS,4)}, s{sB} offen sc1")

    def tag_check_all():
        l = a.label("tc"); ok = a.label("tcok")
        a(f"""
        s_lshl_b32 s{sB}, s{sW}, 13
        s_add_u32 s{sB}, s{sB}, {WS_Q1+4}
        v_lshlrev_b32 v{vT0}, 7, v{vLane}
        {l}:
        buffer_load_dword v{vT1}, v{vT0}, {sr(sWS,4)}, s{sB} offen sc1
        s_waitcnt vmcnt(0)
        v_xor_b32 v{vT1}, s{sT}, v{vT1}
        v_cmp_lt_u32 vcc, 15, v{vT1}
        s_cbranch_vccz {ok}
        """)
        spin_fail(l, 2)
        a(f"{ok}:")

    def line_final(red):
        if cfg.doorbell and cfg.db_early:
            a(f"v_mov_b32 v{vT0}, 0\nv_mov_b32 v{vT1}, s{sDBtag}\ns_mov_b64 exec, 1")
            store_local(f"buffer_store_dword v{vT1}, v{vT0}, {sr(sWS,4)}, s{sDBw} offen")
            a("s_mov_b64 exec, -1")
        a(f"""
        ds_read_b128 {vr(vU,4)}, v{vaFinO} offset:{red}
        v_mov_b32 v{vT0}, 0
        v_mov_b32 v{vT1}, s{sDBtag}
        s_waitcnt lgkmcnt(0)
        v_add_f32 v{vU}, v{vU}, v{vU+1}
        v_add_f32 v{vU+2}, v{vU+2}, v{vU+3}
        v_add_f32 v{vU}, v{vU}, v{vResF}
        v_add_f32 v{vResF}, v{vU}, v{vU+2}
        """)
        dpp("v_mov_b32", vU + 1, vResF, None, "quad_perm:[1,0,3,2]")
        a(f"v_cvt_pk_bf16_f32 v{vU}, v{vResF}, v{vU+1}\nv_min_u32 v{vU}, 0xfffffffe, v{vU}")
        if cfg.doorbell and not cfg.db_early:
            a("s_mov_b64 exec, 1")
            store_local(f"buffer_store_dword v{vT1}, v{vT0}, {sr(sWS,4)}, s{sDBw} offen")
        a(f"s_xor_b32 s{sB}, s{sXw}, 0x2000\ns_add_u32 s{sB}, s{sB}, 16384")
        setexec(EMEV)
        a(f"buffer_store_dword v{vU}, v{vaStX}, {sr(sWS,4)}, s{sXw} offen sc1")
        a(f"buffer_store_dword v{vU}, v{vaStX}, {sr(sWS,4)}, s{sB} offen sc1")
        setexec(FULL)
    def advance_hop():
        a(f"s_add_u32 s{sXw}, s{sXw}, {X_HOP}\ns_add_u32 s{sDBw}, s{sDBw}, 1024\ns_add_u32 s{sDBtag}, s{sDBtag}, 1")

    def db_setup(hop_w, hop_r):
        a(f"""
        s_lshl_b32 s{sDBr}, s{sJ}, 7
        s_add_u32 s{sDBr}, s{sDBr}, {WS_DB}
        s_lshl_b32 s{sDBw}, s{sIdx}, 2
        s_add_u32 s{sDBw}, s{sDBw}, s{sDBr}
        s_add_u32 s{sDBw}, s{sDBw}, {hop_w*1024}
        s_add_u32 s{sDBtag}, s{sT}, {8+hop_w}
        """)
    def db_wait(hop_off_s, tag_add_s=None, const_hop=None):
        if not cfg.doorbell: return
        l = a.label("db"); ok = a.label("dbok")
        if const_hop is not None:
            a(f"s_add_u32 s{sA}, s{sDBr}, {const_hop*1024}\ns_add_u32 s{sC}, s{sT}, {8+const_hop}")
        else:
            a(f"s_lshl_b32 s{sA}, s{sL}, 11\ns_add_u32 s{sA}, s{sA}, s{sDBr}\ns_add_u32 s{sA}, s{sA}, {hop_off_s*1024}")
            a(f"s_lshl_b32 s{sC}, s{sL}, 1\ns_add_u32 s{sC}, s{sC}, s{sT}\ns_add_u32 s{sC}, s{sC}, {8+hop_off_s}")
        a(f"v_lshlrev_b32 v{vT0}, 2, v{vLane}")
        setexec(0xFFFF)
        a(f"""
        {l}:
        buffer_load_dword v{vT1}, v{vT0}, {sr(sWS,4)}, s{sA} offen sc1
        s_waitcnt vmcnt(0)
        v_cmp_ne_u32 vcc, s{sC}, v{vT1}
        s_cbranch_vccz {ok}
        """)
        spin_fail(l)
        a(f"{ok}:")
        setexec(FULL)

    def o_stats_poll():
        l = a.label("os"); ok = a.label("osok")
        a(f"s_add_u32 s{sA}, s{sT}, s{sL}\ns_add_u32 s{sA}, s{sA}, 1")
        a(f"{l}:")
        cnt("n_ostat")
        a(f"buffer_load_dwordx3 {vr(vSt,3)}, v{vaS0}, {sr(sWS,4)}, s{sOcons} offen sc1")
        a(f"buffer_load_dwordx3 {vr(vSt+4,3)}, v{vaS1}, {sr(sWS,4)}, s{sOcons} offen sc1")
        a("s_waitcnt vmcnt(0)")
        a(f"""
        v_xor_b32 v{vT0}, s{sA}, v{vSt+2}
        v_xor_b32 v{vT1}, s{sA}, v{vSt+6}
        v_or_b32 v{vT0}, v{vT0}, v{vT1}
        v_cmp_ne_u32 vcc, 0, v{vT0}
        s_cbranch_vccz {ok}
        """)
        spin_fail(l, cfg.sleep_o)
        a(f"{ok}:")
        ts_dyn("o_st0", "o_st1")

    def o_phase():
        OA = vA
        o_stats_poll()
        l2 = a.label("op"); ok2 = a.label("ook")
        a(f"L_heavy:\n{l2}:")
        cnt("n_oheavy")
        for b in range(2):
            for c in range(4):
                a(f"buffer_load_dwordx4 {vr(OA+16*b+4*c,4)}, v{vaO0+b}, {sr(sWS,4)}, s{sOcons} offen offset:{c*1024} sc1")
        for b in range(2):
            a(f"v_mov_b32 v{vU+b}, v{vSt+4*b}")
        for n in (8, 4, 2, 1):
            for b in range(2): dpp("v_max_f32", vU + b, vU + b, vU + b, f"row_ror:{n}")
        for b in range(2): a(f"v_sub_f32 v{vU+b}, v{vSt+4*b}, v{vU+b}")
        for b in range(2): a(f"v_exp_f32 v{vU+b}, v{vU+b}")
        for b in range(2): a(f"v_mul_f32 v{vU+2+b}, v{vU+b}, v{vSt+4*b+1}")
        for n in (8, 4, 2, 1):
            for b in range(2): dpp("v_add_f32", vU + 2 + b, vU + 2 + b, vU + 2 + b, f"row_ror:{n}")
        for b in range(2): a(f"v_rcp_f32 v{vU+2+b}, v{vU+2+b}")
        for b in range(2): a(f"v_mul_f32 v{vW+b}, v{vU+b}, v{vU+2+b}")
        a(f"v_mov_b32 v{vT0}, 0")
        if cfg.diag and cfg.ts_only and "o_w0" in cfg.ts_only:
            ts_dyn("o_w0", "o_w1")
            a("s_waitcnt vmcnt(7)")
            ts_dyn("o_f0", "o_f1")
        for i in range(8):
            b, c = i >> 2, i & 3
            r = OA + 16*b + 4*c
            a(f"s_waitcnt vmcnt({7-i})")
            for nt in range(2):
                mfma(vAcc + 8*b + 4*nt, r, ar(aW2 + 8*c + 4*nt, 4), "0" if c == 0 else None)
            a(f"v_max3_u32 v{vT0}, v{vT0}, v{r}, v{r+1}\nv_max3_u32 v{vT0}, v{vT0}, v{r+2}, v{r+3}")
        a(f"v_cmp_eq_u32 vcc, -1, v{vT0}\ns_cbranch_vccz {ok2}")
        spin_fail(l2)
        a(f"{ok2}:")
        ts_dyn("o_got0", "o_got1")
        for b in range(2):
            for nt in range(2):
                t = vU + 2*b + nt; acc = vAcc + 8*b + 4*nt
                dpp("v_mul_f32", t, vW + b, acc, "row_newbcast:0")
                for r in range(1, 4):
                    dpp("v_fmac_f32", t, vW + b, acc + r, f"row_newbcast:{r}")
        a(f"""
        v_permlane32_swap_b32 v{vU}, v{vU+1}
        v_permlane32_swap_b32 v{vU+2}, v{vU+3}
        v_add_f32 v{vU}, v{vU}, v{vU+1}
        v_add_f32 v{vU+2}, v{vU+2}, v{vU+3}
        v_permlane16_swap_b32 v{vU}, v{vU+2}
        v_add_f32 v{vU}, v{vU}, v{vU+2}
        ds_write_b32 v{vaRedW}, v{vU} offset:{R_O}
        s_waitcnt lgkmcnt(0)
        s_barrier
        """)
        lab = a.label("of")
        a(f"s_cmp_eq_u32 s{sW}, 0\ns_cbranch_scc0 {lab}")
        line_final(R_O)
        a(f"{lab}:")
        advance_hop()
        ts_dyn("o_pub0", "o_pub1")

    def g_phase():
        X = vA
        db_wait(0)
        if cfg.diag and cfg.ts_only and "g_db0" in cfg.ts_only: ts_dyn("g_db0", "g_db1")
        x_poll(sXr, X, cfg.sleep_x)
        ts_dyn("g_got0", "g_got1")
        M = stats_mf(X)
        for u in range(4):
            M.append(mf(vAcc, X + 4*u, ar(aW2 + 8*u, 4), "0" if u == 0 else None))
            M.append(mf(vAcc + 4, X + 4*u, ar(aW2 + 8*u + 4, 4), "0" if u == 0 else None))
        V = stats_valu(vU) + [f"v_mov_b32 v{vU+1}, v{vU}", f"v_permlane16_swap_b32 v{vU}, v{vU+1}", f"v_add_f32 v{vU}, v{vU}, v{vU+1}"]
        interleave(M, V, 8, 2)
        setexec("s[%d:%d]" % (sM2, sM2 + 1))
        a(f"ds_write_b32 v{vaRedZ}, v{vU} offset:{R_GZ}")
        setexec(FULL)
        sum4(vU + 2, vAcc, vT3)
        sum4(vU + 3, vAcc + 4, vT3)
        a(f"""
        v_permlane16_swap_b32 v{vU+2}, v{vU+3}
        v_add_f32 v{vU+2}, v{vU+2}, v{vU+3}
        ds_write_b32 v{vaRedW}, v{vU+2} offset:{R_G}
        s_waitcnt lgkmcnt(0)
        s_barrier
        """)
        lab = a.label("gf")
        a(f"s_cmp_eq_u32 s{sW}, 0\ns_cbranch_scc0 {lab}")
        setexec(0xFFFFFFFF)
        a(f"""
        ds_read_b128 {vr(vU+8,4)}, v{vaFinZ} offset:{R_GZ}
        ds_read_b128 {vr(vU+12,4)}, v{vaFinZ} offset:{R_GZ+16}
        ds_read_b128 {vr(vU,4)}, v{vaFinW} offset:{R_G}
        ds_read_b128 {vr(vU+4,4)}, v{vaFinW} offset:{R_G+256}
        s_lshl_b32 s{sB}, s{sIdx}, 6
        s_add_u32 s{sB}, s{sB}, s{sHb}
        s_waitcnt lgkmcnt(2)
        """)
        sum4r(vU + 8); sum4r(vU + 12)
        ln_stats(vU + 8, vU + 12, vU + 9, vU + 10)
        a("s_waitcnt lgkmcnt(0)")
        sum4r(vU); sum4r(vU + 4)
        a(f"""
        v_fma_f32 v{vU}, -v{vU+9}, v{vCg}, v{vU}
        v_fma_f32 v{vU+4}, -v{vU+9}, v{vCu}, v{vU+4}
        v_mul_f32 v{vU+1}, {f2u(-1.4426950408889634):#x}, v{vU+10}
        v_mul_f32 v{vU}, v{vU}, v{vU+1}
        v_exp_f32 v{vU}, v{vU}
        v_mul_f32 v{vU+4}, v{vU+4}, v{vU+10}
        v_add_f32 v{vU}, 1.0, v{vU}
        v_rcp_f32 v{vU}, v{vU}
        s_nop 0
        v_mul_f32 v{vU}, v{vU}, v{vU+4}
        """)
        dpp("v_mov_b32", vU + 1, vU, None, "quad_perm:[1,0,3,2]")
        a(f"v_cvt_pk_bf16_f32 v{vU}, v{vU}, v{vU+1}\nv_min_u32 v{vU}, 0xfffffffe, v{vU}")
        setexec(0x55555555)
        store_local(f"buffer_store_dword v{vU}, v{vaStH}, {sr(sWS,4)}, s{sB} offen")
        setexec(FULL)
        a(f"{lab}:")
        ts_dyn("g_pub0", "g_pub1")

    def d_phase():
        lab0 = a.label("dr0"); l2 = a.label("dr"); ok2 = a.label("drok")
        l = a.label("dp"); ok = a.label("dok"); one = a.label("done"); l3 = a.label("dp1");
        a(f"s_cmp_eq_u32 s{sW}, 3\ns_cbranch_scc1 {l3}")
        setexec(EM2)
        a(f"{l}:")
        a(f"buffer_load_dwordx4 {vr(vHop,4)}, v{vaH}, {sr(sWS,4)}, s{sHb} offen sc1")
        a(f"buffer_load_dwordx4 {vr(vHop+4,4)}, v{vaH}, {sr(sWS,4)}, s{sHb} offen offset:512 sc1")
        a("s_waitcnt vmcnt(0)")
        sent_check([vHop+i for i in range(8)], vT1, ok)
        spin_fail(l)
        a(f"{l3}:")
        setexec(EM2)
        a(f"{l3}b:")
        a(f"buffer_load_dwordx4 {vr(vHop,4)}, v{vaH}, {sr(sWS,4)}, s{sHb} offen sc1")
        a("s_waitcnt vmcnt(0)")
        sent_check([vHop+i for i in range(4)], vT1, ok)
        spin_fail(f"{l3}b")
        a(f"{ok}:")
        setexec(FULL)
        for nt in range(2):
            mfma(vAcc + 4*nt, vHop, ar(aWd + 4*nt, 4), "0")
        for nt in range(2):
            mfma(vAcc + 4*nt, vHop + 4, ar(aWd + 8 + 4*nt, 4))
        a(f"""
        v_permlane16_swap_b32 v{vAcc}, v{vAcc+1}
        v_permlane16_swap_b32 v{vAcc+4}, v{vAcc+5}
        v_permlane32_swap_b32 v{vAcc}, v{vAcc+4}
        ds_write_b32 v{vaRedW}, v{vAcc} offset:{R_D}
        s_waitcnt lgkmcnt(0)
        s_barrier
        """)
        lab = a.label("df")
        a(f"s_cmp_eq_u32 s{sW}, 0\ns_cbranch_scc0 {lab}")
        line_final(R_D)
        a(f"{lab}:")
        advance_hop()
        ts_dyn("d_pub0", "d_pub1")

    a(f"s_cmp_lt_u32 s{sM}, 16\ns_cbranch_scc0 L_roleB")
    def down_slices():
        a(f"""
        v_lshrrev_b32 v{vT0}, 2, v{vLane}
        v_lshlrev_b32 v{vT0}, 10, v{vT0}
        v_and_b32 v{vT1}, 3, v{vLane}
        v_lshl_add_u32 v{vT0}, v{vT1}, 4, v{vT0}
        s_mul_i32 s{sB}, s{sJ}, {224*1024}
        s_lshl_b32 s{sC}, s{sIdx}, 6
        s_add_u32 s{sB}, s{sB}, s{sC}
        s_lshl_b32 s{sC}, s{sW}, 15
        s_add_u32 s{sB}, s{sB}, s{sC}
        s_lshl_b32 s{sC}, s{sW}, 14
        s_add_u32 s{sC}, s{sC}, {L_K + W_DN}
        s_mov_b32 m0, s{sC}
        s_add_u32 s{sD}, s{sB}, 16384
        buffer_load_dwordx4 v{vT0}, {sr(sDN,4)}, s{sB} offen{SLN} lds
        s_add_u32 s{sC}, s{sC}, 1024
        s_mov_b32 m0, s{sC}
        s_nop 0
        buffer_load_dwordx4 v{vT0}, {sr(sDN,4)}, s{sD} offen{SLN} lds
        s_cmp_eq_u32 s{sW}, 3
        s_cbranch_scc1 L_nod2
        s_add_u32 s{sB}, s{sB}, {4*32768}
        s_add_u32 s{sC}, s{sC}, 1024
        s_mov_b32 m0, s{sC}
        s_add_u32 s{sD}, s{sB}, 16384
        buffer_load_dwordx4 v{vT0}, {sr(sDN,4)}, s{sB} offen{SLN} lds
        s_add_u32 s{sC}, s{sC}, 1024
        s_mov_b32 m0, s{sC}
        s_nop 0
        buffer_load_dwordx4 v{vT0}, {sr(sDN,4)}, s{sD} offen{SLN} lds
        L_nod2:
        """)
    def down_operands():
        a(f"s_lshl_b32 s{sB}, s{sW}, 14")
        tr_base(vT0, 64, 8, sB, L_K + W_DN)
        for nt in range(2):
            a(f"ds_read_b64_tr_b16 {ar(aWd+4*nt,2)}, v{vT0} offset:{nt*32}")
            a(f"ds_read_b64_tr_b16 {ar(aWd+4*nt+2,2)}, v{vT0} offset:{nt*32+256}")
        a(f"s_cmp_eq_u32 s{sW}, 3\ns_cbranch_scc1 L_dn3")
        for nt in range(2):
            a(f"ds_read_b64_tr_b16 {ar(aWd+8+4*nt,2)}, v{vT0} offset:{2048+nt*32}")
            a(f"ds_read_b64_tr_b16 {ar(aWd+8+4*nt+2,2)}, v{vT0} offset:{2048+nt*32+256}")
        a("s_branch L_dn4\nL_dn3:")
        for i in range(8): a(f"v_accvgpr_write_b32 a{aWd+8+i}, 0")
        a("L_dn4:")
    g.role = "A"; ts_split = g.ts
    def wo_slices():
        if cfg.line_pf and "o" in cfg.pf_which:
            a(f"""
            v_lshlrev_b32 v{vT0}, 7, v{vLane}
            s_lshl_b32 s{sB}, s{sJ}, 19
            s_lshl_b32 s{sC}, s{sIdx}, 15
            s_add_u32 s{sB}, s{sB}, s{sC}
            s_lshl_b32 s{sC}, s{sW}, 13
            s_add_u32 s{sB}, s{sB}, s{sC}
            buffer_load_dword v{vJ}, v{vT0}, {sr(sW2,4)}, s{sB} offen{cfg.pf_pol}
            """)
        a(f"""
        v_lshrrev_b32 v{vT0}, 2, v{vLane}
        v_lshlrev_b32 v{vT0}, 10, v{vT0}
        v_and_b32 v{vT1}, 3, v{vLane}
        v_lshl_add_u32 v{vT0}, v{vT1}, 4, v{vT0}
        s_lshl_b32 s{sB}, s{sJ}, 19
        s_lshl_b32 s{sC}, s{sW}, 17
        s_add_u32 s{sB}, s{sB}, s{sC}
        s_lshl_b32 s{sC}, s{sIdx}, 6
        s_add_u32 s{sB}, s{sB}, s{sC}
        s_lshl_b32 s{sC}, s{sW}, 14
        s_add_u32 s{sC}, s{sC}, {L_K}
        """)
        for u in range(8):
            a(f"""
            s_mov_b32 m0, s{sC}
            s_add_u32 s{sC}, s{sC}, 1024
            buffer_load_dwordx4 v{vT0}, {sr(sW2,4)}, s{sB} offen{SLN} lds
            s_add_u32 s{sB}, s{sB}, {16*1024}
            """)
    if cfg.w_inter:
        s1_tail(nPF)
        db_setup(0, 1)
        a(f"s_mov_b32 s{sXr}, {WS_X}")
    elif cfg.wsA:
        wo_slices()
        s1_tail(8 + nPF)
        db_setup(0, 1)
    else:
        s1_tail(nPF)
        db_setup(0, 1)
        wo_slices()
    a(f"v_mov_b32 v{vRes}, 0")
    lab = a.label("r0")
    a(f"""
    s_cmp_eq_u32 s{sJ}, 0
    s_cbranch_scc0 {lab}
    v_and_b32 v{vT0}, 1, v{vQd}
    v_lshlrev_b32 v{vT0}, 10, v{vT0}
    v_lshrrev_b32 v{vT1}, 1, v{vQd}
    v_lshl_add_u32 v{vT0}, v{vT1}, 5, v{vT0}
    v_lshl_add_u32 v{vT0}, v{vR16}, 1, v{vT0}
    s_lshl_b32 s{sB}, s{sIdx}, 6
    buffer_load_ushort v{vRes}, v{vT0}, {sr(sX0,4)}, s{sB} offen
    {lab}:
    """)
    nspec = 0
    if cfg.o_spec:
        a(f"buffer_load_dwordx3 {vr(vSt,3)}, v{vaS0}, {sr(sWS,4)}, s{sOcons} offen sc1")
        a(f"buffer_load_dwordx3 {vr(vSt+4,3)}, v{vaS1}, {sr(sWS,4)}, s{sOcons} offen sc1")
        nspec = 2
    if cfg.w_inter:
        a(f"s_waitcnt vmcnt({nspec})")
        for half, (sh, base) in enumerate(((12, L_WQ), (14, L_K))):
            a(f"s_lshl_b32 s{sB}, s{sW}, {sh}")
            tr_base(vT0, 64, 4, sB, base)
            for c2 in range(2):
                c = 2*half + c2
                for nt in range(2):
                    a(f"ds_read_b64_tr_b16 {ar(aW2+8*c+4*nt,2)}, v{vT0} offset:{c2*2048+nt*32}")
                    a(f"ds_read_b64_tr_b16 {ar(aW2+8*c+4*nt+2,2)}, v{vT0} offset:{c2*2048+nt*32+1024}")
    else:
        a(f"s_lshl_b32 s{sB}, s{sW}, 14")
        tr_base(vT0, 64, 4, sB, L_K)
        a(f"s_waitcnt vmcnt({nspec})")
        for c in range(4):
            for nt in range(2):
                a(f"ds_read_b64_tr_b16 {ar(aW2+8*c+4*nt,2)}, v{vT0} offset:{c*2048+nt*32}")
                a(f"ds_read_b64_tr_b16 {ar(aW2+8*c+4*nt+2,2)}, v{vT0} offset:{c*2048+nt*32+1024}")
    a(f"v_lshlrev_b32 v{vResF}, 16, v{vRes}")
    a("s_waitcnt lgkmcnt(0)")
    ts("wo_ready")
    if cfg.o_spec:
        a(f"""
        s_add_u32 s{sA}, s{sT}, 1
        s_waitcnt vmcnt(0)
        v_xor_b32 v{vT0}, s{sA}, v{vSt+2}
        v_xor_b32 v{vT1}, s{sA}, v{vSt+6}
        v_or_b32 v{vT0}, v{vT0}, v{vT1}
        v_cmp_ne_u32 vcc, 0, v{vT0}
        s_cbranch_vccz L_heavy
        """)
    a("L_loopA:")
    o_phase()
    lab = a.label("dn")
    a(f"s_cmp_eq_u32 s{sL}, 0\ns_cbranch_scc0 {lab}")
    down_slices()
    tag_check_all()
    if cfg.epoch_early:
        le = a.label("ep")
        a(f"""
        s_or_b32 s{sB}, s{sJ}, s{sIdx}
        s_or_b32 s{sB}, s{sB}, s{sW}
        s_cmp_eq_u32 s{sB}, 0
        s_cbranch_scc0 {le}
        """)
        g.ep_lab = le
        a(f"v_mov_b32 v{vT0}, {WS_EPOCH}\nv_mov_b32 v{vT1}, s{sT}\ns_mov_b64 exec, 1")
        a(f"buffer_store_dword v{vT1}, v{vT0}, {sr(sWS,4)}, 0 offen sc1")
        a("s_mov_b64 exec, -1")
        a(f"{le}:")
    down_operands()
    if cfg.warm_out:
        lw = a.label("wout")
        a(f"""
        s_cmp_ge_u32 s{sIdx}, 2
        s_cbranch_scc1 {lw}
        s_lshl_b32 s{sB}, s{sJ}, 1
        s_add_u32 s{sB}, s{sB}, s{sIdx}
        s_lshl_b32 s{sB}, s{sB}, 6
        v_lshlrev_b32 v{vT0}, 10, v{vLane}
        s_mov_b64 exec, 3
        buffer_load_dword v{vJ}, v{vT0}, {sr(sOUT,4)}, s{sB} offen
        s_mov_b64 exec, -1
        {lw}:
        """)
    a("s_waitcnt lgkmcnt(0)\ns_barrier")
    a(f"{lab}:")
    d_phase()
    a(f"s_cmp_eq_u32 s{sL}, 1\ns_cbranch_scc1 L_finalA")
    a("s_branch L_q2s2")

    a("L_roleB:")
    g.role = "B"; g.ts = ts_split
    def gu_slices():
        a(f"""
        s_cmp_ge_u32 s{sIdx}, 14
        s_cbranch_scc1 L_nogu
        v_lshrrev_b32 v{vT0}, 1, v{vLane}
        v_mul_u32_u24 v{vT0}, 3584, v{vT0}
        v_and_b32 v{vT1}, 1, v{vLane}
        v_lshl_add_u32 v{vT0}, v{vT1}, 4, v{vT0}
        s_mul_i32 s{sB}, s{sW}, {128*3584}
        s_mul_i32 s{sC}, s{sJ}, 448
        s_add_u32 s{sB}, s{sB}, s{sC}
        s_lshl_b32 s{sC}, s{sIdx}, 5
        s_add_u32 s{sB}, s{sB}, s{sC}
        s_lshl_b32 s{sC}, s{sW}, 14
        s_add_u32 s{sC}, s{sC}, {L_K + W_GATE}
        """)
        for u in range(4):
            a(f"""
            s_mov_b32 m0, s{sC}
            s_add_u32 s{sD}, s{sC}, {W_UP - W_GATE}
            buffer_load_dwordx4 v{vT0}, {sr(sW2,4)}, s{sB} offen{SLN} lds
            s_mov_b32 m0, s{sD}
            s_add_u32 s{sC}, s{sC}, 1024
            buffer_load_dwordx4 v{vT0}, {sr(sUP,4)}, s{sB} offen{SLN} lds
            s_add_u32 s{sB}, s{sB}, {32*3584}
            """)
        a("L_nogu:")
    if cfg.wsB:
        gu_slices()
        s1_tail(8, maybe_none=True)
    else:
        s1_tail(nPF)
    if cfg.w_inter: a(f"s_mov_b32 s{sWb2}, s{sWb}\ns_mov_b32 s{sWst2}, s{sWst}")
    db_setup(1, 0)
    if cfg.w_inter: a(f"s_mov_b32 s{sXr}, {WS_X}")
    if cfg.line_pf and "f" in cfg.pf_which:
        a(f"""
        v_mul_u32_u24 v{vT0}, 52, v{vLane}
        v_lshrrev_b32 v{vT0}, 8, v{vT0}            ; l/5 for l < 64
        v_mul_u32_u24 v{vT1}, 5, v{vT0}
        v_sub_u32 v{vT1}, v{vLane}, v{vT1}         ; l%5
        v_mul_u32_u24 v{vT0}, 3584, v{vT0}
        v_lshl_add_u32 v{vT0}, v{vT1}, 7, v{vT0}
        s_lshl_b32 s{sB}, s{sIdx}, 5
        s_lshl_b32 s{sC}, s{sW}, 3
        s_add_u32 s{sB}, s{sB}, s{sC}
        s_mul_i32 s{sB}, s{sB}, 3584
        s_mul_i32 s{sC}, s{sJ}, 448
        s_and_b32 s{sC}, s{sC}, 0xffffff80
        s_add_u32 s{sB}, s{sB}, s{sC}
        """)
        setexec((1 << 40) - 1)
        a(f"buffer_load_dword v{vJ}, v{vT0}, {sr(sW2,4)}, s{sB} offen{cfg.pf_pol}")
        a(f"buffer_load_dword v{vJ}, v{vT0}, {sr(sUP,4)}, s{sB} offen{cfg.pf_pol}")
        a(f"""
        s_mov_b64 exec, -1
        v_lshrrev_b32 v{vT0}, 3, v{vLane}
        v_lshlrev_b32 v{vT0}, 10, v{vT0}
        v_and_b32 v{vT1}, 7, v{vLane}
        v_lshl_add_u32 v{vT0}, v{vT1}, 7, v{vT0}
        s_mul_i32 s{sB}, s{sJ}, 224
        s_mul_i32 s{sC}, s{sIdx}, 14
        s_add_u32 s{sB}, s{sB}, s{sC}
        s_lshl_b32 s{sC}, s{sW}, 2
        s_add_u32 s{sB}, s{sB}, s{sC}
        s_lshl_b32 s{sB}, s{sB}, 10
        s_cmp_eq_u32 s{sW}, 3
        s_cselect_b32 exec_lo, 0xffff, -1
        s_mov_b32 exec_hi, 0
        buffer_load_dword v{vJ}, v{vT0}, {sr(sDN,4)}, s{sB} offen{cfg.pf_pol}
        s_mov_b64 exec, -1
        """)
    if not cfg.wsB and not cfg.w_inter: gu_slices()
    if cfg.w_inter and cfg.w_interB != "gu":
        lab = a.label("wl")
        a(f"s_cmp_ge_u32 s{sIdx}, 14\ns_cbranch_scc1 {lab}")
        for part, key, srdq, sh, base in ((0, "g", sW2, 12, L_WQ), (1, "u", sUP, 14, L_K)):
            if key in cfg.w_interB: continue
            for u in range(4):
                a(f"""
                s_mul_i32 s{sB}, s{sWst2}, {u}
                s_add_u32 s{sB}, s{sB}, s{sWb2}
                s_lshl_b32 s{sC}, s{sW}, {sh}
                s_add_u32 s{sC}, s{sC}, {base + u*1024}
                s_mov_b32 m0, s{sC}
                s_nop 0
                buffer_load_dwordx4 v{vWs}, {sr(srdq,4)}, s{sB} offen{SLN} lds
                """)
        a(f"{lab}:")
    tag_check_all()
    ts("ffn_landed")
    a(f"s_cmp_ge_u32 s{sIdx}, 14\ns_cbranch_scc1 L_nogu2")
    if cfg.w_inter:
        for mat, (sh, base) in enumerate(((12, L_WQ), (14, L_K))):
            a(f"s_lshl_b32 s{sB}, s{sW}, {sh}")
            tr_base(vT0, 32, 8, sB, base)
            for u in range(4):
                a(f"ds_read_b64_tr_b16 {ar(aW2+8*u+4*mat,2)}, v{vT0} offset:{u*1024}")
                a(f"ds_read_b64_tr_b16 {ar(aW2+8*u+4*mat+2,2)}, v{vT0} offset:{u*1024+128}")
    else:
        a(f"s_lshl_b32 s{sB}, s{sW}, 14")
        tr_base(vT0, 32, 8, sB, L_K + W_GATE)
        for u in range(4):
            for mat in range(2):
                a(f"ds_read_b64_tr_b16 {ar(aW2+8*u+4*mat,2)}, v{vT0} offset:{u*1024+mat*(W_UP-W_GATE)}")
                a(f"ds_read_b64_tr_b16 {ar(aW2+8*u+4*mat+2,2)}, v{vT0} offset:{u*1024+mat*(W_UP-W_GATE)+128}")
    a("s_waitcnt lgkmcnt(0)")
    for u in range(4):
        mfma(vAcc, vOnes, ar(aW2 + 8*u, 4), "0" if u == 0 else None)
        mfma(vAcc + 4, vOnes, ar(aW2 + 8*u + 4, 4), "0" if u == 0 else None)
    a(f"s_nop 7\nds_write_b32 v{vaRedW}, v{vAcc} offset:{R_COL}\nds_write_b32 v{vaRedW}, v{vAcc+4} offset:{R_COL2}")
    a("L_nogu2:")
    a("s_waitcnt lgkmcnt(0)\ns_barrier")
    a(f"""
    ds_read_b128 {vr(vU,4)}, v{vaFinW} offset:{R_COL}
    ds_read_b128 {vr(vU+4,4)}, v{vaFinW} offset:{R_COL2}
    s_waitcnt lgkmcnt(0)
    """)
    sum4r(vU); sum4r(vU + 4)
    a(f"v_mov_b32 v{vCg}, v{vU}\nv_mov_b32 v{vCu}, v{vU+4}")
    ts("ffn_ready")
    a("L_loopB:")
    lg = a.label("nog")
    a(f"s_cmp_ge_u32 s{sIdx}, 14\ns_cbranch_scc1 {lg}")
    g_phase()
    a(f"{lg}:")
    if cfg.junk_dirty:
        lj = a.label("jk")
        a(f"s_cmp_eq_u32 s{sL}, 0\ns_cbranch_scc0 {lj}")
        a(f"s_lshl_b32 s{sB}, s2, 2\ns_add_u32 s{sB}, s{sB}, s{sW}\ns_mul_i32 s{sB}, s{sB}, {cfg.junk_dirty*1024}\ns_add_u32 s{sB}, s{sB}, 0x400000\nv_lshlrev_b32 v{vT0}, 4, v{vLane}")
        for i in range(cfg.junk_dirty):
            a(f"buffer_store_dwordx4 {vr(vP,4)}, v{vT0}, {sr(sWS,4)}, s{sB} offen\ns_add_u32 s{sB}, s{sB}, 1024")
        a(f"{lj}:")
    a(f"s_cmp_eq_u32 s{sL}, 1\ns_cbranch_scc1 L_fin")

    a("L_q2s2:")
    save_role, save_ts = g.role, g.ts
    g.role = "C"; g.ts = getattr(g, "maxts", g.ts)
    lab = a.label("wo")
    a(f"s_cmp_lt_u32 s{sM}, 16\ns_cbranch_scc{1 if cfg.warm_by_B else 0} {lab}")
    warm_q2()
    warm_o(1)
    a(f"{lab}:")
    db_wait(None, const_hop=1)
    if cfg.diag and cfg.ts_only and "q2_db" in cfg.ts_only:
        ts("q2_db")
    a(f"s_mov_b32 s{sD}, {WS_X + X_HOP}")
    x_poll(sD, XA, cfg.sleep_x)
    ts("q2_got")
    q_core(XA)
    q_final(False)
    ts("q2_pub")
    l = a.label("qp"); ok = a.label("qok")
    setexec(EM4)
    a(f"{l}:")
    for c in range(4):
        a(f"buffer_load_dwordx4 {vr(vQ+4*c,4)}, v{vaQ2}, {sr(sWS,4)}, s{sQ2r} offen offset:{c*256} sc1")
    a("s_waitcnt vmcnt(0)")
    sent_check([vQ+i for i in range(16)], vT0, ok)
    spin_fail(l)
    a(f"{ok}:")
    setexec(FULL)
    ts("q2_gath")
    a(f"""
    s_add_u32 s{sOown}, s{sOown}, {O_L}
    s_add_u32 s{sOcons}, s{sOcons}, {O_L}
    s_add_u32 s{sXr}, s{sXr}, {2*X_HOP}
    s_add_u32 s{sHb}, s{sHb}, 8192
    s_mov_b32 s{sL}, 1
    """)
    s_qk_max()
    s_exp_p()
    s_stats_prep()
    a("s_waitcnt lgkmcnt(0)")
    pv(list(range(8)), True)
    s_out()
    s_stats_store(None)
    ts("s2_pub")
    if cfg.diag and cfg.ts_only and "s2_ack" in cfg.ts_only:
        a("s_waitcnt vmcnt(0)")
        ts("s2_ack")
    a(f"s_cmp_lt_u32 s{sM}, 16\ns_cbranch_scc1 L_loopA\ns_branch L_loopB")

    a("L_finalA:")
    g.role = "A"; g.ts = getattr(g, "maxts", g.ts)
    a(f"""
    s_cmp_ge_u32 s{sIdx}, 2
    s_cbranch_scc1 L_fin
    s_cmp_eq_u32 s{sW}, 0
    s_cbranch_scc0 L_fin
    s_lshl_b32 s{sB}, s{sJ}, 1
    s_add_u32 s{sB}, s{sB}, s{sIdx}        ; cb
    s_lshl_b32 s{sC}, s{sB}, 7
    s_add_u32 s{sC}, s{sC}, {WS_X + 3*X_HOP}
    """)
    for nt in range(2):
        for dd in range(4):
            a(f"""
            v_lshlrev_b32 v{vT0}, 3, v{vQd}
            v_add_u32 v{vT0}, {2*dd - 16*nt}, v{vT0}
            v_sub_u32 v{vT0}, v{vT0}, v{vR16}
            v_mov_b32 v{vP+4*nt+dd}, 0
            v_cmp_eq_u32 vcc, 0, v{vT0}
            v_mov_b32 v{vT1}, 0x3f80
            v_cndmask_b32 v{vP+4*nt+dd}, v{vP+4*nt+dd}, v{vT1}, vcc
            v_cmp_eq_u32 vcc, -1, v{vT0}
            v_mov_b32 v{vT1}, 0x3f800000
            v_cndmask_b32 v{vP+4*nt+dd}, v{vP+4*nt+dd}, v{vT1}, vcc
            """)
    a(f"""
    v_lshrrev_b32 v{vT2}, 1, v{vQd}
    v_lshlrev_b32 v{vT2}, 10, v{vT2}
    v_and_b32 v{vT1}, 1, v{vQd}
    v_lshl_add_u32 v{vT2}, v{vT1}, 5, v{vT2}
    v_lshl_add_u32 v{vT2}, v{vR16}, 1, v{vT2}
    s_lshl_b32 s{sB}, s{sB}, 6
    """)
    a(f"s_mov_b32 s{sEx2}, s{sC}\ns_mov_b32 s{sEx2+1}, s{sB}")
    db_wait(None, const_hop=3)
    a(f"s_mov_b32 s{sC}, s{sEx2}\ns_mov_b32 s{sB}, s{sEx2+1}")
    l = a.label("fp"); ok = a.label("fok")
    a(f"{l}:")
    a(f"buffer_load_dwordx4 {vr(vA,4)}, v{vaX}, {sr(sWS,4)}, s{sC} offen sc1")
    a("s_waitcnt vmcnt(0)")
    sent_check([vA+i for i in range(4)], vT0, ok)
    spin_fail(l, cfg.sleep_x)
    a(f"{ok}:")
    ts("fin_got")
    mfma(vAcc, vA, vP, "0"); mfma(vAcc + 4, vA, vP + 4, "0")
    sum4(vU, vAcc, vT3); sum4(vU + 1, vAcc + 4, vT3)
    a(f"""
    v_permlane16_swap_b32 v{vU}, v{vU+1}
    v_add_f32 v{vU}, v{vU}, v{vU+1}
    v_cvt_pk_bf16_f32 v{vU}, v{vU}, v{vU}
    buffer_store_short v{vU}, v{vT2}, {sr(sOUT,4)}, s{sB} offen
    """)
    if not cfg.epoch_early:
        a(f"""
        s_cmp_eq_u32 s{sB}, 0
        s_cbranch_scc0 L_fin
        v_mov_b32 v{vT0}, {WS_EPOCH}
        v_mov_b32 v{vT1}, s{sT}
        """)
        setexec(1)
        a(f"buffer_store_dword v{vT1}, v{vT0}, {sr(sWS,4)}, 0 offen sc1")
        setexec(FULL)

    a("L_fin:")
    if cfg.diag:
        g.role = "E"
        g.tsn["E"].append((NTS - 1, "end"))
        a(f"s_memrealtime s[{sTmp2}:{sTmp2+1}]\ns_waitcnt lgkmcnt(0)\ns_mov_b32 s{sTS+NTS-2}, s{sTmp2}")
        a(f"s_memtime s[{sTmp2}:{sTmp2+1}]\ns_waitcnt lgkmcnt(0)\ns_mov_b32 s{sTS+NTS-1}, s{sTmp2}")
        a(f"s_lshl_b32 s{sB}, s2, 3\ns_add_u32 s{sB}, s{sB}, s{sW}\ns_lshl_b32 s{sB}, s{sB}, 7\ns_add_u32 s{sB}, s{sB}, {WS_DIAG}\nv_mov_b32 v{vT0}, 0")
        setexec(1)
        for i in range(NTS):
            a(f"v_mov_b32 v{vT1}, s{sTS+i}\nbuffer_store_dword v{vT1}, v{vT0}, {sr(sWS,4)}, s{sB} offen offset:{4*i}")
        setexec(FULL)
    if cfg.dbg_span:
        a(f"""
        s_waitcnt vmcnt(0)
        s_cmp_eq_u32 s{sW}, 0
        s_cbranch_scc0 L_nospan
        s_memrealtime s[{sTmp2}:{sTmp2+1}]
        s_load_dwordx2 s[92:93], s[0:1], 80
        s_waitcnt lgkmcnt(0)
        s_mov_b32 s{sA}, s92
        s_and_b32 s{sB}, s93, 0xffff
        s_mov_b32 s{sC}, 256
        s_mov_b32 s{sD}, 0x20000
        v_mov_b32 v{vT0}, 8
        v_mov_b32 v{vT1}, s{sTmp2}
        s_not_b32 s94, s94
        v_mov_b32 v{vT2}, s94
        s_mov_b64 exec, 1
        buffer_atomic_umax v{vT1}, v{vT0}, s[{sA}:{sD}], 0 offen sc1
        buffer_atomic_umax v{vT2}, v{vT0}, s[{sA}:{sD}], 0 offen offset:4 sc1
        s_waitcnt vmcnt(0)
        L_nospan:
        """)
    a("s_waitcnt vmcnt(0)\ns_endpgm")
    a(f"""
    L_abort:
    s_mov_b64 exec, -1
    v_mov_b32 v{vT0}, 0
    v_mov_b32 v{vT1}, 0xdead
    s_load_dwordx2 s[{sTmp2}:{sTmp2+1}], s[0:1], 80
    s_waitcnt lgkmcnt(0)
    s_mov_b32 s{sA}, s{sTmp2}
    s_and_b32 s{sB}, s{sTmp2+1}, 0xffff
    s_mov_b32 s{sC}, 256
    s_mov_b32 s{sD}, 0x20000
    s_mov_b64 exec, 1
    buffer_store_dword v{vT1}, v{vT0}, s[{sA}:{sD}], 0 offen offset:4
    s_waitcnt vmcnt(0)
    L_end:
    s_endpgm
    """)
    for o in g.ool: a(o)
    a("L_codeend:\ns_endpgm")
    lines = a.text().rstrip("\n").split("\n")
    g.ninstr = sum(1 for l in lines if l.startswith("    ") and not l.strip().startswith(";"))
    lines = hazard.pad(lines)
    return g, "\n".join(lines) + "\n"

HEADER = open("interleave_layers__sliding_block_cached__glu_gated_glu__decode.s.ref").read().split("; Override launch")[0]

def full(cfg):
    g, body = build(cfg)
    txt = HEADER
    txt += "; Persistent single-launch kernel: 256 workgroups (one per CU) x 256 threads.\n"
    txt += f"; @launch grid=(256,1,1) block=(256,1,1) lds={LDS_BYTES}\n"
    txt += '.amdgcn_target "amdgcn-amd-amdhsa--gfx950"\n.text\n'
    txt += f".globl {NAME}\n.p2align 8\n.type {NAME},@function\n{NAME}:\n"
    txt += body
    txt += '.section .rodata,"a"\n.p2align 6\n'
    txt += f".amdhsa_kernel {NAME}\n  .amdhsa_next_free_vgpr {256 + g.amax}\n  .amdhsa_next_free_sgpr 102\n  .amdhsa_accum_offset 256\n"
    txt += "  .amdhsa_group_segment_fixed_size 0\n  .amdhsa_kernarg_size 96\n  .amdhsa_user_sgpr_count 2\n  .amdhsa_user_sgpr_kernarg_segment_ptr 1\n  .amdhsa_system_sgpr_workgroup_id_x 1\n.end_amdhsa_kernel\n"
    return g, txt

if __name__ == "__main__":
    cfg = Cfg()
    for kv in sys.argv[2:]:
        k, v = kv.split("="); setattr(cfg, k, eval(v))
    g, txt = full(cfg)
    open(sys.argv[1], "w").write(txt)
    print("vgprs", g.vmax, "agprs", g.amax, "instrs", g.ninstr, "ts", g.tsn)
```

```python
import sys, struct
from asmlib import Asm
import hazard

NAME = "interleave_layers__sliding_block_cached__glu_gated_glu__decode_kernel"

WS_EPOCH = 0x0
WS_Q1 = 0x10000
WS_DB = 0x1c000
WS_Q2 = 0x20000
WS_H  = 0x28000
WS_X  = 0xE0000
X_HOP = 32768
WS_O  = 0x40000
O_STATS = 32768
O_J = O_STATS + 2048
O_L = 8 * O_J
WS_DIAG = 0x100000
WS_SIZE = 0x1000000

L_SMAX = 0
L_LSUM = 64
L_PBUF = 256
L_RED = 2560
R_Q, R_G, R_GZ, R_O, R_D, R_COL, R_COL2 = [L_RED + 1024 * i for i in range(7)]
L_QG = 10240
L_X0 = 14336
L_K = 16384
L_V = L_K + 65536
L_WQ = L_V + 65536
L_XI = L_V
LDS_BYTES = 163840
W_GATE, W_UP, W_DN = 0, 4096, 8192

C_SCALE = 0.08838834764831845 * 1.4426950408889634
def f2u(x): return struct.unpack("<I", struct.pack("<f", x))[0]

class Cfg:
    nKA = 8
    nKb1 = 1
    pace = 8
    gpts = (1, 2, 4)
    diag = False
    ts_only = None
    ts_issue = False
    force_global = False
    budget = 400000
    prefetch_code = True
    sleep_x = 0
    sleep_x0 = 0
    sleep_o = 0
    sl_nt = True
    pf_pol = ""
    pf_which = "q"
    dbg_span = False
    counters = False
    db_early = True
    doorbell = True
    warm = True
    pf_stream = ""
    pf_pos = None
    pf_early = False
    pf_spol = " nt"
    wsA = False
    wsB = False
    junk_dirty = 0
    epoch_early = True
    w_interB = "gu"
    w_inter = False
    v3_early = False
    warm_by_B = True
    o_spec = True
    db_g = True
    db_q = True
    db_final = False
    stats_mid = True
    warm_out = False
    line_pf = True
    const_tag = False
    no_clear0 = False
    clr0_late = False

def vr(b, n=1): return f"v[{b}:{b+n-1}]" if n > 1 else f"v{b}"
def ar(b, n=1): return f"a[{b}:{b+n-1}]" if n > 1 else f"a{b}"
def sr(b, n=1): return f"s[{b}:{b+n-1}]" if n > 1 else f"s{b}"

sJ, sM, sW, sIdx, sL = 3, 4, 5, 6, 7
sWS, sKS, sVS, sWQ, sW2, sUP, sDN, sX0, sOUT = 8, 12, 16, 20, 24, 28, 32, 36, 40
sT, sTX, sLocal, sBud = 44, 45, 46, 47
sMDIAG = 48
sM4 = 50
sM2 = 52
sMN1 = 54
sMEV = 56
sEx = 58
sA, sB, sC, sD = 60, 61, 62, 63
sKV, sRot = 64, 65
sOown, sOcons, sXw, sXr, sHb, sQ2w, sQ2r = 66, 67, 68, 69, 70 - 70 + 96, 97, 98
sXcc = 99
sWb2, sWst2 = 68, 60
sWb, sWst = 59, 69
sKS2 = sKS
sDBtag = 59
sEx2 = 50
sDBw, sDBr = 64, 65
sXI = 58
sTmp2 = 100
sTS = 70
NTS = 26

class G:
    pass

def build(cfg):
    g = G(); a = Asm(); g.a = a
    g.tsn = {"C": [], "A": [], "B": [], "E": []}; g.role = "C"; g.ts = 0; g.cnts = {}; g.cnt_names = []
    nv = [1]
    def valloc(n=1, align=1):
        nv[0] = (nv[0] + align - 1) // align * align
        r = nv[0]; nv[0] += n
        assert nv[0] <= 256
        return r
    vLane = valloc(); vR16 = valloc(); vQd = valloc()
    vT0 = valloc(); vT1 = valloc(); vT2 = valloc(); vT3 = valloc()
    vOnes = valloc(4, 4)
    vQ = valloc(16, 4)
    vA = valloc(40, 4)
    vAcc = valloc(16, 4)
    vS = valloc(16, 4)
    vP = valloc(32, 4)
    vJ = valloc()
    vHop = valloc(8, 4)
    vU = valloc(16, 4)
    vSt = valloc(8, 4)
    vW = valloc(2, 2)
    vCs = valloc(); vCg = valloc(); vCu = valloc()
    vRes = valloc(); vResF = valloc()
    vQ1d = valloc(2, 2); vQ1a = valloc()
    vMc = valloc(4, 4)
    vaX = valloc(); vaXg = valloc(); vaXr = valloc(); vaStQ = valloc(); vaClrO = valloc(); vaO0 = valloc(); vaO1 = valloc(); vaS0 = valloc(); vaS1 = valloc(); vaQ2 = valloc(); vaH = valloc()
    vaPw = valloc(); vaPr = valloc(); vaSm = valloc(); vaSmW = valloc(); vaRedW = valloc(); vaRedZ = valloc()
    vaFinW = valloc(); vaFinZ = valloc(); vaFinQZ = valloc(); vaFinO = valloc()
    vaStH = valloc(); vaStX = valloc(); vaStO = valloc(); vaStS = valloc(); vaResU = valloc()
    vWs = valloc()
    vKs = valloc(4); vVs = valloc(2); vVr = valloc(2); vKr = valloc(4)
    g.vmax = nv[0]
    aK, aV, aWq, aW2, aWd = 0, 64, 128, 144, 176
    g.amax = 192

    FULL = (1 << 64) - 1
    def ts(name):
        if not cfg.diag: return
        if cfg.ts_only and name not in cfg.ts_only and name not in ("start", "setup", "issued"): return
        i = g.ts; g.ts += 1; g.maxts = max(getattr(g, "maxts", 0), g.ts)
        assert i < NTS - 3, name
        g.tsn[g.role].append((i, name))
        if name == "start":
            return
        if name == "issued":
            g.i_issued = i
            a(f"s_memtime s[{sTmp2}:{sTmp2+1}]\ns_waitcnt lgkmcnt(0)\ns_mov_b32 s92, s{sTmp2}")
            return
        if name == "setup":
            a(f"s_mov_b32 s{sTS}, s90\ns_mov_b32 s{sTS+NTS-3}, s91")
            if cfg.ts_issue: a(f"s_mov_b32 s{sTmp2}, s92")
            for z in list(range(1, NTS - 3)) + [NTS - 2, NTS - 1]: a(f"s_mov_b32 s{sTS+z}, 0")
            if cfg.ts_issue: a(f"s_mov_b32 s{sTS+g.i_issued}, s{sTmp2}")
        if cfg.ts_only and name not in cfg.ts_only:
            return
        a(f"s_memtime s[{sTmp2}:{sTmp2+1}]\ns_waitcnt lgkmcnt(0)\ns_mov_b32 s{sTS+i}, s{sTmp2}")
    def ts_dyn(name0, name1):
        if not cfg.diag: return
        if cfg.ts_only and name0 not in cfg.ts_only: return
        i = g.ts; g.ts += 2; g.maxts = max(getattr(g, "maxts", 0), g.ts)
        assert i + 1 < NTS - 3, name0
        g.tsn[g.role].append((i, name0)); g.tsn[g.role].append((i + 1, name1))
        if cfg.ts_only and name0 not in cfg.ts_only: return
        a(f"""s_memtime s[{sTmp2}:{sTmp2+1}]
        s_waitcnt lgkmcnt(0)
        s_cmp_eq_u32 s{sL}, 0
        s_cselect_b32 s{sTS+i}, s{sTmp2}, s{sTS+i}
        s_cselect_b32 s{sTS+i+1}, s{sTS+i+1}, s{sTmp2}""")

    def cnt(name):
        if not (cfg.diag and cfg.counters): return
        key = (g.role, name)
        if key not in g.cnts:
            i = g.ts; g.ts += 1; g.maxts = max(getattr(g, "maxts", 0), g.ts)
            assert i < NTS - 3, name
            g.cnts[key] = i; g.cnt_names.append((g.role, i, name))
        a(f"s_add_u32 s{sTS+g.cnts[key]}, s{sTS+g.cnts[key]}, 1")

    def setexec(mask):
        if mask == FULL: a("s_mov_b64 exec, -1")
        elif isinstance(mask, str): a(f"s_mov_b64 exec, {mask}")
        elif mask < 65 or mask in (0xFFFF, 0xF, 0xFF):
            a(f"s_mov_b64 exec, 0x{mask:x}" if mask >= 65 else f"s_mov_b64 exec, {mask}")
        else:
            a(f"s_mov_b32 exec_lo, 0x{mask & 0xFFFFFFFF:x}\ns_mov_b32 exec_hi, 0x{mask >> 32:x}")
    EM4, EM2, EMEV = f"s[{sM4}:{sM4+1}]", f"s[{sM2}:{sM2+1}]", f"s[{sMEV}:{sMEV+1}]"

    def srd(dst, ptr_s, size):
        a(f"s_mov_b32 s{dst}, s{ptr_s}\ns_and_b32 s{dst+1}, s{ptr_s+1}, 0xffff\ns_mov_b32 s{dst+2}, 0x{size:x}\ns_mov_b32 s{dst+3}, 0x20000")

    def mfma(d, A, B, C=None):
        f = lambda x: x if isinstance(x, str) else vr(x, 4)
        c = f(d) if C is None else C
        a(f"v_mfma_f32_16x16x32_bf16 {f(d)}, {f(A)}, {f(B)}, {c}")

    def spin_fail(lbl_retry, sleep=0):
        if sleep: a(f"s_sleep {sleep}")
        a(f"s_sub_u32 s{sBud}, s{sBud}, 1\ns_cbranch_scc0 {lbl_retry}\ns_branch L_abort")
    def interleave(mf, va, start, per=2):
        va = list(va)
        for i, m in enumerate(mf):
            a(m)
            if i >= start:
                for _ in range(per):
                    if va: a(va.pop(0))
        for v in va: a(v)
    def mf(d, A, B, C=None):
        f = lambda x: x if isinstance(x, str) else vr(x, 4)
        return f"v_mfma_f32_16x16x32_bf16 {f(d)}, {f(A)}, {f(B)}, {f(d) if C is None else C}"

    def sent_max(regs, tmp):
        rs = list(regs)
        if len(rs) == 1: return rs[0]
        if len(rs) == 2:
            a(f"v_max_u32 v{tmp}, v{rs[0]}, v{rs[1]}"); rs = []
        else:
            a(f"v_max3_u32 v{tmp}, v{rs[0]}, v{rs[1]}, v{rs[2]}"); rs = rs[3:]
        while len(rs) >= 2:
            a(f"v_max3_u32 v{tmp}, v{tmp}, v{rs[0]}, v{rs[1]}"); rs = rs[2:]
        if rs: a(f"v_max_u32 v{tmp}, v{tmp}, v{rs[0]}")
        return tmp
    def sent_check(regs, tmp, lbl_ok):
        cur = sent_max(regs, tmp)
        a(f"v_cmp_eq_u32 vcc, -1, v{cur}\ns_cbranch_vccz {lbl_ok}")

    g.ool = []
    def store_local(instr):
        if cfg.force_global:
            a(instr + " sc1"); return
        l1 = a.label("stg"); l2 = a.label("std")
        a(f"s_cmp_eq_u32 s{sLocal}, 0\ns_cbranch_scc1 {l1}")
        a(instr)
        a(f"{l2}:")
        g.ool.append(f"{l1}:\n{instr} sc1\ns_branch {l2}")

    def dpp(op, d, s0, s1, ctrl, rm="0xf", bm="0xf"):
        if s1 is None: a(f"{op}_dpp v{d}, v{s0} {ctrl} row_mask:{rm} bank_mask:{bm}")
        else: a(f"{op}_dpp v{d}, v{s0}, v{s1} {ctrl} row_mask:{rm} bank_mask:{bm}")
    def row_reduce(op, v, steps=(8, 4, 2, 1)):
        for n in steps: dpp(op, v, v, v, f"row_ror:{n}")
    def xquad_reduce(op, v, tmp):
        a(f"v_mov_b32 v{tmp}, v{v}\nv_permlane32_swap_b32 v{v}, v{tmp}\n{op} v{v}, v{v}, v{tmp}")
        a(f"v_mov_b32 v{tmp}, v{v}\nv_permlane16_swap_b32 v{v}, v{tmp}\n{op} v{v}, v{v}, v{tmp}")
    def sum4(dst, b, tmp):
        a(f"v_add_f32 v{dst}, v{b}, v{b+1}\nv_add_f32 v{tmp}, v{b+2}, v{b+3}\nv_add_f32 v{dst}, v{dst}, v{tmp}")

    P = sTS
    EARLY = ""
    if cfg.dbg_span:
        EARLY = f"s_memrealtime s[94:95]"
    if cfg.diag:
        EARLY = f"s_memrealtime s[{sTmp2}:{sTmp2+1}]\ns_waitcnt lgkmcnt(0)\ns_mov_b32 s91, s{sTmp2}\ns_memtime s[{sTmp2}:{sTmp2+1}]\ns_waitcnt lgkmcnt(0)\ns_mov_b32 s90, s{sTmp2}"
    SLN = " nt" if cfg.sl_nt else ""
    a(f"""
    s_cmp_ge_u32 s2, 256
    s_cbranch_scc1 L_end
    {EARLY}
    s_load_dwordx4 s[{P+6}:{P+9}], s[0:1], 16          ; V, wq     (76..79)
    s_load_dwordx4 s[{P+2}:{P+5}], s[0:1], 0           ; x, K      (72..75)
    s_load_dwordx2 s[{P+18}:{P+19}], s[0:1], 88        ; ws        (88..89)
    s_load_dwordx2 s[{P}:{P+1}], s[0:1], 32            ; wo        (70..71)
    s_load_dwordx4 s[{P+10}:{P+13}], s[0:1], 48
    s_load_dwordx4 s[{P+14}:{P+17}], s[0:1], 64
    v_lshrrev_b32 v{vT0}, 6, v0
    v_and_b32 v{vLane}, 63, v0
    """)
    if cfg.prefetch_code:
        a(f"""
        s_getpc_b64 s[{sTmp2}:{sTmp2+1}]
        L_pfbase:
        v_readfirstlane_b32 s{sW}, v{vT0}
        v_lshlrev_b32 v{vT1}, 7, v0
        s_mov_b32 s{sB}, (L_codeend - L_pfbase)
        v_cmp_gt_u32 vcc, s{sB}, v{vT1}
        s_and_b32 s{sJ}, s2, 7
        s_and_saveexec_b64 s[{sEx}:{sEx+1}], vcc
        s_cbranch_execz L_nopf
        global_load_dword v{vU+15}, v{vT1}, s[{sTmp2}:{sTmp2+1}]
        L_nopf:
        s_mov_b64 exec, s[{sEx}:{sEx+1}]
        """)
    else:
        a(f"s_and_b32 s{sJ}, s2, 7\nv_readfirstlane_b32 s{sW}, v{vT0}")
    a(f"""
    s_lshr_b32 s{sM}, s2, 3
    v_lshrrev_b32 v{vT2}, 1, v{vLane}
    v_lshlrev_b32 v{vT2}, 13, v{vT2}
    v_and_b32 v{vT3}, 1, v{vLane}
    v_lshl_add_u32 v{vT2}, v{vT3}, 4, v{vT2}
    v_lshrrev_b32 v{vT0}, 3, v{vLane}
    v_lshlrev_b32 v{vT0}, 13, v{vT0}
    v_and_b32 v{vT3}, 7, v{vLane}
    v_lshl_add_u32 v{vT0}, v{vT3}, 7, v{vT0}
    s_lshl_b32 s{sC}, s{sJ}, 10
    s_lshl_b32 s{sA}, s{sM}, 2
    s_add_u32 s{sA}, s{sA}, s{sW}
    s_lshl_b32 s{sA}, s{sA}, 15
    s_add_u32 s{sA}, s{sA}, s{sC}
    s_lshl_b32 s{sB}, s{sW}, 20
    s_add_u32 s{sB}, s{sB}, s{sC}
    s_lshl_b32 s{sC}, s{sM}, 5
    s_add_u32 s{sB}, s{sB}, s{sC}
    s_lshl_b32 s{sC}, s{sW}, 12
    s_add_u32 s{sC}, s{sC}, {L_WQ}
    s_mov_b32 s{sWQ+2}, 0x400000
    s_mov_b32 s{sWQ+3}, 0x20000
    s_waitcnt lgkmcnt(0)
    s_mov_b32 s{sWQ}, s{P+8}
    s_and_b32 s{sWQ+1}, s{P+9}, 0xffff
    """)
    if cfg.line_pf and "q" in cfg.pf_which:
        setexec(0xFFFFFFFF)
        a(f"buffer_load_dword v{vJ}, v{vT0}, {sr(sWQ,4)}, s{sA} offen{cfg.pf_pol}")
        setexec(FULL)
    for u in range(4):
        a(f"""
        s_mov_b32 m0, s{sC}
        s_add_u32 s{sC}, s{sC}, 1024
        buffer_load_dwordx4 v{vT2}, {sr(sWQ,4)}, s{sB} offen{SLN} lds
        s_add_u32 s{sB}, s{sB}, {32*8192}
        """)
    XA = vA + 8
    a(f"""
    v_and_b32 v{vR16}, 15, v0
    v_lshrrev_b32 v{vQd}, 4, v{vLane}
    s_and_b32 s{sIdx}, s{sM}, 15
    s_and_b32 s{sRot}, s{sM}, 7
    s_lshl_b32 s{sRot}, s{sRot}, 1
    s_lshr_b32 s{sB}, s{sM}, 4
    s_lshl_b32 s{sB}, s{sB}, 3
    s_add_u32 s{sB}, s{sB}, s{sJ}
    s_lshl_b32 s{sB}, s{sB}, 23
    s_lshl_b32 s{sC}, s{sIdx}, 16
    s_add_u32 s{sKV}, s{sB}, s{sC}
    s_add_u32 s{sKV}, s{sKV}, 0x700000
    v_lshlrev_b32 v{vT1}, 4, v{vLane}          ; lane*16
    """)
    srd(sKS, P + 4, 0x8000000)
    for i in range(4):
        a(f"""
        v_add_u32 v{vT3}, {4*i}, v{vQd}
        v_xor_b32 v{vT3}, v{vT3}, v{vR16}
        v_lshlrev_b32 v{vT3}, 4, v{vT3}
        v_lshl_add_u32 v{vKs+i}, v{vQd}, 8, v{vT3}
        """)
    srd(sWS, P + 18, WS_SIZE)
    if cfg.const_tag: a(f"s_mov_b32 s{sT}, 0x12345670")
    else: a(f"s_load_dword s{sT}, s[{P+18}:{P+19}], {WS_EPOCH}")
    srd(sX0, P + 2, 2048)
    a(f"s_cmp_eq_u32 s{sW}, 0\ns_cbranch_scc0 L_nox0")
    a(f"""
    s_mov_b32 m0, {L_X0}
    s_nop 0
    buffer_load_dwordx4 v{vT1}, {sr(sX0,4)}, 0 offen lds
    buffer_load_dwordx4 v{vT1}, {sr(sX0,4)}, 0 offen offset:1024 lds
    L_nox0:
    """)
    a(f"""
    s_mul_i32 s{sOown}, s{sJ}, {O_J}
    s_lshr_b32 s{sB}, s{sM}, 4
    s_lshl_b32 s{sB}, s{sB}, 14
    s_add_u32 s{sOown}, s{sOown}, s{sB}
    s_lshl_b32 s{sB}, s{sIdx}, 4
    s_add_u32 s{sOown}, s{sOown}, s{sB}
    s_add_u32 s{sOown}, s{sOown}, {WS_O}
    s_lshl_b32 s{sC}, s{sJ}, 11
    s_lshl_b32 s{sD}, s{sIdx}, 7
    s_add_u32 s{sC}, s{sC}, s{sD}
    s_add_u32 s{sXw}, s{sC}, {WS_X}
    s_mov_b32 s{sXr}, {WS_X}
    s_lshl_b32 s{sHb}, s{sJ}, 10
    s_add_u32 s{sHb}, s{sHb}, {WS_H}
    s_lshl_b32 s{sQ2w}, s{sJ}, 11
    s_add_u32 s{sQ2r}, s{sQ2w}, {WS_Q2}
    ; producer m: h = m>>3, c = (m>>1)&3, e0 = 2*(m&1)  ->  c*256 + e0*64 + h*16
    s_lshr_b32 s{sB}, s{sM}, 1
    s_and_b32 s{sB}, s{sB}, 3
    s_lshl_b32 s{sB}, s{sB}, 8
    s_add_u32 s{sQ2w}, s{sQ2r}, s{sB}
    s_and_b32 s{sB}, s{sM}, 1
    s_lshl_b32 s{sB}, s{sB}, 7
    s_add_u32 s{sQ2w}, s{sQ2w}, s{sB}
    s_lshr_b32 s{sB}, s{sM}, 3
    s_lshl_b32 s{sB}, s{sB}, 4
    s_add_u32 s{sQ2w}, s{sQ2w}, s{sB}
    s_lshr_b32 s{sB}, s{sM}, 4
    s_lshl_b32 s{sB}, s{sB}, 10
    s_add_u32 s{sQ2r}, s{sQ2r}, s{sB}
    """)
    if cfg.no_clear0: a("s_branch L_clr_done")
    a(f"""
    v_mov_b32 v{vU}, -1
    v_mov_b32 v{vU+1}, -1
    v_mov_b32 v{vU+2}, -1
    v_mov_b32 v{vU+3}, -1
    v_bfe_u32 v{vT3}, v{vLane}, 1, 1
    v_lshlrev_b32 v{vT3}, 10, v{vT3}
    v_and_b32 v{vT0}, 1, v{vLane}
    v_lshl_add_u32 v{vT3}, v{vT0}, 6, v{vT3}
    v_add_u32 v{vT0}, s{sQ2w}, v{vT3}
    s_cmp_lt_u32 s{sM}, 16
    s_cbranch_scc0 L_clr_B
    s_cmp_eq_u32 s{sW}, 1
    s_cbranch_scc0 L_clr_A2
    """)
    setexec(0xF)
    a(f"""
    s_branch L_clr_st
    L_clr_A2:
    s_cmp_eq_u32 s{sW}, 2
    s_cbranch_scc0 L_clr_done
    s_xor_b32 s{sC}, s{sXw}, 0x2000
    s_add_u32 s{sC}, s{sC}, 16384
    v_mov_b32 v{vT0}, s{sXw}
    v_mov_b32 v{vT1}, s{sC}
    v_bfe_u32 v{vT3}, v{vLane}, 3, 1
    v_cmp_eq_u32 vcc, 1, v{vT3}
    v_cndmask_b32 v{vT0}, v{vT0}, v{vT1}, vcc
    v_lshrrev_b32 v{vT3}, 4, v{vLane}
    v_lshlrev_b32 v{vT3}, 15, v{vT3}
    v_and_b32 v{vT1}, 7, v{vLane}
    v_lshl_add_u32 v{vT3}, v{vT1}, 4, v{vT3}
    v_add_u32 v{vT0}, v{vT0}, v{vT3}
    s_branch L_clr_st
    L_clr_B:
    s_cmp_eq_u32 s{sW}, 2
    s_cbranch_scc0 L_clr_done
    """)
    setexec(0xF)
    a(f"""
    s_cmp_ge_u32 s{sIdx}, 14
    s_cbranch_scc1 L_clr_st
    s_lshl_b32 s{sD}, s{sIdx}, 6
    s_add_u32 s{sC}, s{sHb}, s{sD}
    """)
    setexec(0xFF0)
    a(f"""
    v_bfe_u32 v{vT3}, v{vLane}, 3, 1
    v_lshlrev_b32 v{vT3}, 13, v{vT3}
    v_and_b32 v{vT1}, 3, v{vLane}
    v_lshl_add_u32 v{vT3}, v{vT1}, 4, v{vT3}
    v_add_u32 v{vT0}, s{sC}, v{vT3}
    """)
    setexec(0xFFF)
    a("L_clr_st:")
    a(f"buffer_store_dwordx4 {vr(vU,4)}, v{vT0}, {sr(sWS,4)}, 0 offen sc1")
    setexec(FULL)
    a("L_clr_done:")
    def emit_wpf(qWO, qGT, reload_ptrs):
        n = 0
        a(f"s_lshl_b32 s{sD}, s{sM}, 2\ns_add_u32 s{sD}, s{sD}, s{sW}               ; q = 4m + w")
        if reload_ptrs:
            a(f"""
            s_load_dwordx2 s[{qWO}:{qWO+1}], s[0:1], 32
            s_load_dwordx2 s[{qGT}:{qGT+1}], s[0:1], 48
            s_waitcnt lgkmcnt(0)
            s_and_b32 s{qWO+1}, s{qWO+1}, 0xffff
            s_mov_b32 s{qWO+2}, 0x400000
            s_and_b32 s{qGT+1}, s{qGT+1}, 0xffff
            s_mov_b32 s{qGT+2}, {512*1792*2}
            """)
        if "o" in cfg.pf_stream:
            a(f"""
            v_lshlrev_b32 v{vT0}, 7, v{vLane}
            s_lshl_b32 s{sB}, s{sJ}, 19
            s_lshl_b32 s{sC}, s{sD}, 12
            s_add_u32 s{sB}, s{sB}, s{sC}
            """)
            setexec(0xFFFFFFFF)
            a(f"buffer_load_dword v{vJ}, v{vT0}, {sr(qWO,4)}, s{sB} offen{cfg.pf_spol}")
            setexec(FULL); n += 1
        if "g" in cfg.pf_stream or "u" in cfg.pf_stream:
            a(f"""
            v_mul_u32_u24 v{vT0}, 52, v{vLane}
            v_lshrrev_b32 v{vT0}, 8, v{vT0}
            v_mul_u32_u24 v{vT1}, 5, v{vT0}
            v_sub_u32 v{vT1}, v{vLane}, v{vT1}
            v_mul_u32_u24 v{vT0}, 3584, v{vT0}
            v_lshl_add_u32 v{vT0}, v{vT1}, 7, v{vT0}
            s_mul_i32 s{sB}, s{sD}, {4*3584}
            s_mul_i32 s{sC}, s{sJ}, 448
            s_and_b32 s{sC}, s{sC}, 0xffffff80
            s_add_u32 s{sB}, s{sB}, s{sC}
            """)
            setexec((1 << 20) - 1)
            if "g" in cfg.pf_stream:
                a(f"buffer_load_dword v{vJ}, v{vT0}, {sr(qGT,4)}, s{sB} offen{cfg.pf_spol}"); n += 1
            if "u" in cfg.pf_stream:
                a(f"buffer_load_dword v{vJ}, v{vT0}, {sr(sUP,4)}, s{sB} offen{cfg.pf_spol}"); n += 1
            setexec(FULL)
        if "d" in cfg.pf_stream:
            a(f"""
            v_lshlrev_b32 v{vT0}, 7, v{vLane}
            s_min_u32 s{sB}, s{sD}, 111
            s_lshl_b32 s{sB}, s{sB}, 11
            s_mul_i32 s{sC}, s{sJ}, {224*1024}
            s_add_u32 s{sB}, s{sB}, s{sC}
            """)
            setexec(0xFFFF)
            a(f"buffer_load_dword v{vJ}, v{vT0}, {sr(sDN,4)}, s{sB} offen{cfg.pf_spol}")
            setexec(FULL); n += 1
        return n

    def page_off(t, dst):
        a(f"""
        s_add_u32 s{dst}, s{sW}, s{sRot}
        s_add_u32 s{dst}, s{dst}, {4*t}
        s_and_b32 s{dst}, s{dst}, 15
        s_lshl_b32 s{dst}, s{dst}, 12
        s_add_u32 s{dst}, s{dst}, s{sKV}
        """)
    def k_page(t):
        page_off(t, sD)
        a(f"s_lshl_b32 s{sC}, s{sW}, 14\ns_add_u32 s{sC}, s{sC}, {L_K + t*4096}\ns_mov_b32 m0, s{sC}\ns_nop 0")
        for ii in range(4):
            a(f"buffer_load_dwordx4 v{vKs+ii}, {sr(sKS,4)}, s{sD} offen offset:{ii*1024} nt lds")
    nKpA = cfg.nKA // 4
    for t in range(cfg.nKb1): k_page(t)
    nPFe = 0
    if cfg.pf_stream and cfg.pf_early:
        srd(sVS, P, 0x400000)
        srd(sOUT, P + 10, 512 * 1792 * 2)
        srd(sUP, P + 12, 512 * 1792 * 2)
        srd(sDN, P + 14, 1792 * 512 * 2)
        nPFe = emit_wpf(sVS, sOUT, False)
    ts("start")
    if cfg.ts_issue: ts("issued")

    srd(sVS, P + 6, 0x8000000)
    srd(sUP, P + 12, 512 * 1792 * 2)
    srd(sDN, P + 14, 1792 * 512 * 2)
    srd(sOUT, P + 16, 2048)
    a(f"""
    s_cmp_lt_u32 s{sM}, 16
    s_cselect_b32 s{sW2}, s{P}, s{P+10}
    s_cselect_b32 s{sW2+1}, s{P+1}, s{P+11}
    s_mov_b32 s{sW2+2}, {512*1792*2}
    s_cselect_b32 s{sW2+2}, 0x400000, s{sW2+2}
    s_and_b32 s{sW2+1}, s{sW2+1}, 0xffff
    s_mov_b32 s{sW2+3}, 0x20000
    s_mov_b32 s{sBud}, {cfg.budget}
    s_getreg_b32 s{sXcc}, hwreg(HW_REG_XCC_ID, 0, 4)
    s_mov_b32 s{sMDIAG}, 0x00ff00ff
    s_mov_b32 s{sMDIAG+1}, 0xff00ff00
    s_mov_b32 s{sM4}, 0x000f000f
    s_mov_b32 s{sM4+1}, 0x000f000f
    s_mov_b32 s{sM2}, 0x00030003
    s_mov_b32 s{sM2+1}, 0x00030003
    s_mov_b32 s{sMN1}, 0x00020002
    s_mov_b32 s{sMN1+1}, 0x00020002
    s_mov_b32 s{sMEV}, 0x55555555
    s_mov_b32 s{sMEV+1}, 0x55555555
    s_mov_b32 s{sL}, 0
    s_mul_i32 s{sOcons}, s{sJ}, {O_J}
    s_lshl_b32 s{sB}, s{sW}, 12
    s_add_u32 s{sOcons}, s{sOcons}, s{sB}
    s_add_u32 s{sOcons}, s{sOcons}, {WS_O}
    """)
    for i in range(4): a(f"v_mov_b32 v{vOnes+i}, 0x3f803f80")
    for i in range(16): a(f"v_mov_b32 v{vQ+i}, 0")
    for i in range(8): a(f"v_mov_b32 v{vHop+i}, 0")
    a(f"v_mov_b32 v{vQ1a}, 0\nv_mov_b32 v{vQ1d}, 0\nv_mov_b32 v{vQ1d+1}, 0")
    h3 = vU; qh = vU + 1; ql = vU + 2
    a(f"""
    v_and_b32 v{h3}, 3, v{vR16}
    v_lshrrev_b32 v{qh}, 1, v{vQd}
    v_and_b32 v{ql}, 1, v{vQd}
    v_and_b32 v{vT0}, 7, v{vR16}
    v_lshlrev_b32 v{vT0}, 11, v{vT0}
    v_lshrrev_b32 v{vT1}, 3, v{vR16}
    v_lshl_add_u32 v{vT0}, v{vT1}, 6, v{vT0}
    v_lshl_add_u32 v{vaX}, v{vQd}, 4, v{vT0}
    s_lshr_b32 s{sA}, s{sXcc}, 2
    v_bfe_u32 v{vT1}, v{vaX}, 13, 1
    v_cmp_ne_u32 vcc, s{sA}, v{vT1}
    v_xor_b32 v{vT1}, 0x2000, v{vaX}
    v_add_u32 v{vT1}, 16384, v{vT1}
    v_cndmask_b32 v{vaX}, v{vaX}, v{vT1}, vcc
    v_lshrrev_b32 v{vT0}, 3, v{vLane}
    v_and_b32 v{vT1}, 2, v{vT0}
    v_and_b32 v{vT2}, 7, v{vLane}
    v_xor_b32 v{vT1}, v{vT1}, v{vT2}
    v_lshlrev_b32 v{vT1}, 4, v{vT1}
    v_lshl_add_u32 v{vT0}, v{vT0}, 11, v{vT1}
    s_lshl_b32 s{sB}, s{sW}, 9
    v_add_u32 v{vaXg}, s{sB}, v{vT0}
    v_bfe_u32 v{vT1}, v{vaXg}, 13, 1
    v_cmp_ne_u32 vcc, s{sA}, v{vT1}
    v_xor_b32 v{vT1}, 0x2000, v{vaXg}
    v_add_u32 v{vT1}, 16384, v{vT1}
    v_cndmask_b32 v{vaXg}, v{vaXg}, v{vT1}, vcc
    v_and_b32 v{vT0}, 7, v{vR16}
    v_lshrrev_b32 v{vT1}, 3, v{vR16}
    v_lshl_add_u32 v{vT1}, v{vT1}, 2, v{vQd}
    v_and_b32 v{vT2}, 2, v{vT0}
    v_xor_b32 v{vT1}, v{vT1}, v{vT2}
    v_lshlrev_b32 v{vT1}, 4, v{vT1}
    v_lshl_add_u32 v{vT0}, v{vT0}, 7, v{vT1}
    s_lshl_b32 s{sXI}, s{sW}, 12
    s_add_u32 s{sXI}, s{sXI}, {L_XI}
    v_add_u32 v{vaXr}, s{sXI}, v{vT0}
    v_lshlrev_b32 v{vaO0}, 4, v{vLane}
    v_add_u32 v{vaO1}, 16384, v{vaO0}
    v_lshl_add_u32 v{vT0}, v{vQd}, 2, v{vR16}
    v_and_b32 v{vT0}, 15, v{vT0}
    v_lshlrev_b32 v{vT0}, 4, v{vT0}
    s_mul_i32 s{sB}, s{sW}, 3840
    s_sub_u32 s{sB}, {O_STATS}, s{sB}
    v_add_u32 v{vaS0}, s{sB}, v{vT0}
    v_add_u32 v{vaS1}, 1024, v{vaS0}
    v_lshlrev_b32 v{vT0}, 6, v{vQd}
    v_lshl_add_u32 v{vaQ2}, v{h3}, 4, v{vT0}
    v_lshlrev_b32 v{vT0}, 10, v{ql}
    v_lshrrev_b32 v{vT1}, 3, v{vR16}
    v_lshl_add_u32 v{vT0}, v{vT1}, 6, v{vT0}
    v_and_b32 v{vT1}, 7, v{vR16}
    v_lshl_add_u32 v{vaStQ}, v{vT1}, 1, v{vT0}
    v_lshlrev_b32 v{vT0}, 12, v{h3}
    v_lshl_add_u32 v{vT0}, v{vQd}, 10, v{vT0}
    v_bfe_u32 v{vT1}, v{vLane}, 2, 2
    v_lshl_add_u32 v{vaClrO}, v{vT1}, 8, v{vT0}
    v_and_b32 v{vT0}, 1, v{vR16}
    v_lshlrev_b32 v{vT0}, 5, v{vT0}
    v_lshl_add_u32 v{vT0}, v{qh}, 6, v{vT0}
    v_lshl_add_u32 v{vT0}, v{ql}, 4, v{vT0}
    s_lshl_b32 s{sB}, s{sW}, 7
    v_add_u32 v{vaH}, s{sB}, v{vT0}
    v_lshlrev_b32 v{vT0}, 6, v{vQd}
    v_lshl_add_u32 v{vT0}, v{h3}, 4, v{vT0}
    v_add_u32 v{vaPr}, {L_PBUF}, v{vT0}
    v_lshrrev_b32 v{vT1}, 2, v{vR16}
    v_lshl_add_u32 v{vT1}, v{vT1}, 9, v{vaPr}
    s_lshr_b32 s{sB}, s{sW}, 1
    s_lshl_b32 s{sB}, s{sB}, 8
    s_and_b32 s{sC}, s{sW}, 1
    s_lshl_b32 s{sC}, s{sC}, 3
    s_add_u32 s{sB}, s{sB}, s{sC}
    v_add_u32 v{vaPw}, s{sB}, v{vT1}
    v_lshlrev_b32 v{vT0}, 4, v{h3}
    v_add_u32 v{vaSm}, {L_SMAX}, v{vT0}
    s_lshl_b32 s{sB}, s{sW}, 2
    v_add_u32 v{vaSmW}, s{sB}, v{vaSm}
    v_lshlrev_b32 v{vT0}, 4, v{vLane}
    v_add_u32 v{vaRedW}, s{sB}, v{vT0}
    v_and_b32 v{vT1}, 1, v{vR16}
    v_lshl_add_u32 v{vT1}, v{qh}, 1, v{vT1}
    v_lshlrev_b32 v{vT1}, 4, v{vT1}
    v_add_u32 v{vaRedZ}, s{sB}, v{vT1}
    v_lshl_add_u32 v{vT0}, v{ql}, 5, v{vR16}
    v_lshlrev_b32 v{vaFinW}, 4, v{vT0}
    v_lshlrev_b32 v{vaFinZ}, 5, v{ql}
    v_lshlrev_b32 v{vT0}, 9, v{ql}
    v_add_u32 v{vaFinQZ}, 256, v{vT0}
    v_lshlrev_b32 v{vaFinO}, 4, v{vLane}
    v_lshlrev_b32 v{vT0}, 5, v{ql}
    v_lshl_add_u32 v{vaStH}, v{vR16}, 1, v{vT0}
    v_lshlrev_b32 v{vT0}, 6, v{ql}
    v_lshl_add_u32 v{vT0}, v{qh}, 5, v{vT0}
    v_lshl_add_u32 v{vaStX}, v{vR16}, 1, v{vT0}
    v_lshlrev_b32 v{vT0}, 12, v{vR16}
    v_lshl_add_u32 v{vT0}, v{vQd}, 8, v{vT0}
    s_lshl_b32 s{sB}, s{sW}, 10
    v_add_u32 v{vaStO}, s{sB}, v{vT0}
    s_lshr_b32 s{sB}, s{sM}, 4
    s_mul_i32 s{sB}, s{sB}, 15360
    s_sub_u32 s{sB}, {O_STATS}, s{sB}
    v_lshlrev_b32 v{vT0}, 8, v{vLane}
    v_add_u32 v{vaStS}, s{sB}, v{vT0}
    """)
    a(f"s_lshl_b32 s{sB}, s{sW}, 14\ns_add_u32 s{sB}, s{sB}, {L_K}")
    for c in range(4):
        a(f"""
        v_add_u32 v{vT0}, {4*c}, v{vQd}
        v_xor_b32 v{vT0}, v{vT0}, v{vR16}
        v_lshlrev_b32 v{vT0}, 4, v{vT0}
        v_lshl_add_u32 v{vT0}, v{vR16}, 8, v{vT0}
        v_add_u32 v{vKr+c}, s{sB}, v{vT0}
        """)
    for e in range(2):
        a(f"""
        v_add_u32 v{vT1}, {4*e}, v{vQd}
        v_lshrrev_b32 v{vT2}, 1, v{vR16}
        v_xor_b32 v{vT1}, v{vT1}, v{vT2}
        v_lshlrev_b32 v{vT1}, 1, v{vT1}
        v_and_b32 v{vT2}, 1, v{vR16}
        v_or_b32 v{vT1}, v{vT1}, v{vT2}
        v_lshlrev_b32 v{vT1}, 4, v{vT1}
        v_lshl_add_u32 v{vVs+e}, v{vQd}, 8, v{vT1}
        """)
    for nt in range(2):
        a(f"""
        v_lshrrev_b32 v{vT1}, 2, v{vR16}
        v_lshl_add_u32 v{vT0}, v{vQd}, 2, v{vT1}
        v_and_b32 v{vT2}, 7, v{vT0}
        s_lshl_b32 s{sB}, s{sW}, 1
        s_add_u32 s{sB}, s{sB}, {nt}
        v_xor_b32 v{vT2}, s{sB}, v{vT2}
        v_lshlrev_b32 v{vT2}, 5, v{vT2}
        v_lshl_add_u32 v{vT0}, v{vT0}, 8, v{vT2}
        v_lshl_add_u32 v{vT0}, v{h3}, 3, v{vT0}
        v_add_u32 v{vVr+nt}, {L_V}, v{vT0}
        """)
    for i in range(16): a(f"v_mov_b32 v{XA+i}, 0")
    if cfg.w_inter:
        a(f"""
        s_cmp_lt_u32 s{sM}, 16
        s_cbranch_scc0 L_wsB
        v_lshrrev_b32 v{vT0}, 2, v{vLane}
        v_lshlrev_b32 v{vT0}, 10, v{vT0}
        v_and_b32 v{vT1}, 3, v{vLane}
        v_lshl_add_u32 v{vWs}, v{vT1}, 4, v{vT0}
        s_lshl_b32 s{sWb}, s{sJ}, 19
        s_lshl_b32 s{sC}, s{sW}, 17
        s_add_u32 s{sWb}, s{sWb}, s{sC}
        s_lshl_b32 s{sC}, s{sIdx}, 6
        s_add_u32 s{sWb}, s{sWb}, s{sC}
        s_mov_b32 s{sWst}, 16384
        s_mov_b32 s{sUP}, s{sW2}
        s_mov_b32 s{sUP+1}, s{sW2+1}
        s_mov_b32 s{sUP+2}, s{sW2+2}
        s_branch L_wsD
        L_wsB:
        v_lshrrev_b32 v{vT0}, 1, v{vLane}
        v_mul_u32_u24 v{vT0}, 3584, v{vT0}
        v_and_b32 v{vT1}, 1, v{vLane}
        v_lshl_add_u32 v{vWs}, v{vT1}, 4, v{vT0}
        s_mul_i32 s{sWb}, s{sW}, {128*3584}
        s_mul_i32 s{sC}, s{sJ}, 448
        s_add_u32 s{sWb}, s{sWb}, s{sC}
        s_lshl_b32 s{sC}, s{sIdx}, 5
        s_add_u32 s{sWb}, s{sWb}, s{sC}
        s_mov_b32 s{sWst}, {32*3584}
        L_wsD:
        """)
    ts("setup")
    a(f"s_waitcnt vmcnt({4*cfg.nKb1 + nPFe})")
    ts("wq_landed")
    for t in range(cfg.nKb1, nKpA): k_page(t)

    def tr_base(dst, rowbytes, rowmul, sadd, const):
        sh = rowbytes.bit_length() - 1; rm = rowmul.bit_length() - 1
        a(f"""
        v_lshrrev_b32 v{vT1}, 2, v{vR16}
        v_lshl_add_u32 v{vT1}, v{vQd}, {rm}, v{vT1}
        v_lshlrev_b32 v{vT1}, {sh}, v{vT1}
        v_and_b32 v{vT2}, 3, v{vR16}
        v_lshl_add_u32 v{vT1}, v{vT2}, 3, v{vT1}
        v_add_u32 v{vT1}, s{sadd}, v{vT1}
        v_add_u32 v{dst}, {const}, v{vT1}
        """)

    def ln_stats(s1, s2, mean, rstd):
        a(f"""
        v_mul_f32 v{mean}, {f2u(1.0/512):#x}, v{s1}
        v_mul_f32 v{s2}, {f2u(1.0/512):#x}, v{s2}
        v_fma_f32 v{s2}, -v{mean}, v{mean}, v{s2}
        v_max_f32 v{s2}, 0, v{s2}
        v_add_f32 v{s2}, {f2u(1e-5):#x}, v{s2}
        v_rsq_f32 v{rstd}, v{s2}
        """)
    def sum4r(b):
        a(f"v_add_f32 v{b}, v{b}, v{b+1}\nv_add_f32 v{b+2}, v{b+2}, v{b+3}\nv_add_f32 v{b}, v{b}, v{b+2}")

    def stats_valu(z):
        L = [f"v_add_f32 v{z}, v{vAcc+8}, v{vAcc+9}", f"v_add_f32 v{vT3}, v{vAcc+10}, v{vAcc+11}", f"v_add_f32 v{z}, v{z}, v{vT3}",
             f"v_cndmask_b32 v{z}, 0, v{z}, s[{sMDIAG}:{sMDIAG+1}]"]
        for n in (8, 4, 2, 1):
            L.append(f"v_add_f32_dpp v{z}, v{z}, v{z} row_ror:{n} row_mask:0xf bank_mask:0xf")
        L += [f"v_add_f32 v{z+1}, v{vAcc+12}, v{vAcc+13}", f"v_add_f32 v{vT3}, v{vAcc+14}, v{vAcc+15}", f"v_add_f32 v{z+1}, v{z+1}, v{vT3}",
              f"v_cndmask_b32 v{z}, v{z+1}, v{z}, s[{sMN1}:{sMN1+1}]"]
        return L
    def stats_mf(X):
        return [mf(vAcc + 8, X + 4*u, X + 4*u, "0" if u == 0 else None) for u in range(4)] + \
               [mf(vAcc + 12, X + 4*u, vOnes, "0" if u == 0 else None) for u in range(4)]

    def q_core(X):
        M = stats_mf(X) + [mf(vAcc, X + 4*u, ar(aWq + 4*u, 4), "0" if u == 0 else None) for u in range(4)]
        interleave(M, stats_valu(vU), 8, 2)
        sum4(vU + 2, vAcc, vT3)
        a(f"""
        v_permlane16_swap_b32 v{vU+2}, v{vU}
        v_add_f32 v{vU}, v{vU}, v{vU+2}
        ds_write_b32 v{vaRedW}, v{vU} offset:{R_Q}
        s_waitcnt lgkmcnt(0)
        s_barrier
        """)
    def q_final(first):
        lab = a.label("qf")
        a(f"s_cmp_eq_u32 s{sW}, 0\ns_cbranch_scc0 {lab}")
        setexec(0xFFFFFFFF)
        a(f"""
        ds_read_b128 {vr(vU,4)}, v{vaFinW} offset:{R_Q}
        ds_read_b128 {vr(vU+4,4)}, v{vaFinQZ} offset:{R_Q}
        ds_read_b128 {vr(vU+8,4)}, v{vaFinQZ} offset:{R_Q+16}
        """)
        if first:
            a(f"ds_read_b128 {vr(vU+12,4)}, v{vaFinW} offset:{R_COL}")
        a("s_waitcnt lgkmcnt(0)")
        if first:
            sum4r(vU + 12); a(f"v_mov_b32 v{vCs}, v{vU+12}")
        sum4r(vU + 4); sum4r(vU + 8); sum4r(vU)
        ln_stats(vU + 4, vU + 8, vU + 5, vU + 6)
        a(f"""
        v_fma_f32 v{vU}, -v{vU+5}, v{vCs}, v{vU}
        v_mul_f32 v{vU}, v{vU}, v{vU+6}
        """)
        dpp("v_mov_b32", vU + 1, vU, None, "quad_perm:[1,0,3,2]")
        a(f"v_cvt_pk_bf16_f32 v{vU+2}, v{vU}, v{vU+1}")
        if first:
            a(f"""
            v_mov_b32 v{vQ1d}, v{vU+2}
            v_mov_b32 v{vQ1d+1}, s{sTX}
            s_lshl_b32 s{sB}, s{sJ}, 12
            s_lshl_b32 s{sC}, s{sM}, 7
            s_add_u32 s{sB}, s{sB}, s{sC}
            s_add_u32 s{sB}, s{sB}, {WS_Q1}
            v_lshlrev_b32 v{vT0}, 1, v{vaStH}
            v_add_u32 v{vQ1a}, s{sB}, v{vT0}
            """)
            setexec(0x55555555)
            a(f"buffer_store_dwordx2 {vr(vQ1d,2)}, v{vQ1a}, {sr(sWS,4)}, 0 offen" + (" sc1" if cfg.force_global else ""))
        else:
            a(f"v_min_u32 v{vU+2}, 0xfffffffe, v{vU+2}")
            setexec(0x55555555)
            store_local(f"buffer_store_dword v{vU+2}, v{vaStQ}, {sr(sWS,4)}, s{sQ2w} offen")
        setexec(FULL)
        a(f"{lab}:")

    def s_qk_max():
        for c in range(4):
            for t in range(4):
                mfma(vS + 4*t, ar(aK + 16*t + 4*c, 4), vQ + 4*c, "0" if c == 0 else None)
        for t in range(1, 4):
            for r in range(4):
                dpp("v_mov_b32", vS + r, vS + 4*t + r, None, f"row_shr:{4*t}", bm=f"0x{1<<t:x}")
        a(f"v_max3_f32 v{vU}, v{vS}, v{vS+1}, v{vS+2}\nv_max_f32 v{vU}, v{vU}, v{vS+3}")
        row_reduce("v_max_f32", vU, (8, 4))
        xquad_reduce("v_max_f32", vU, vT0)
        setexec(0xF)
        a(f"ds_write_b32 v{vaSmW}, v{vU}")
        setexec(FULL)
        a("s_waitcnt lgkmcnt(0)\ns_barrier")
    def s_exp_p():
        a(f"""
        ds_read_b128 {vr(vU+4,4)}, v{vaSm}
        s_mov_b32 s{sB}, {f2u(C_SCALE):#x}
        s_waitcnt lgkmcnt(0)
        v_max3_f32 v{vU}, v{vU+4}, v{vU+5}, v{vU+6}
        v_max_f32 v{vU}, v{vU}, v{vU+7}
        v_mul_f32 v{vMc}, s{sB}, v{vU}
        """)
        for i in range(4): a(f"v_fma_f32 v{vS+i}, v{vS+i}, s{sB}, -v{vMc}")
        for i in range(4): a(f"v_exp_f32 v{vS+i}, v{vS+i}")
        a(f"""
        v_cvt_pk_bf16_f32 v{vU+2}, v{vS}, v{vS+1}
        v_cvt_pk_bf16_f32 v{vU+3}, v{vS+2}, v{vS+3}
        ds_write_b64 v{vaPw}, {vr(vU+2,2)}
        v_add_f32 v{vU}, v{vS}, v{vS+1}
        v_add_f32 v{vU+1}, v{vS+2}, v{vS+3}
        v_add_f32 v{vU}, v{vU}, v{vU+1}
        """)
        row_reduce("v_add_f32", vU, (8, 4))
        xquad_reduce("v_add_f32", vU, vT0)
        setexec(0xF)
        a(f"ds_write_b32 v{vaSmW}, v{vU} offset:{L_LSUM-L_SMAX}")
        setexec(FULL)
        a("s_waitcnt lgkmcnt(0)\ns_barrier")
        for blk in range(8):
            a(f"ds_read_b128 {vr(vP+4*blk,4)}, v{vaPr} offset:{blk*256}")
    def s_stats_prep():
        lab = a.label("st")
        a(f"s_cmp_eq_u32 s{sW}, 3\ns_cbranch_scc0 {lab}")
        a(f"""
        ds_read_b128 {vr(vU+4,4)}, v{vaSm} offset:{L_LSUM-L_SMAX}
        s_add_u32 s{sB}, s{sT}, s{sL}
        s_add_u32 s{sB}, s{sB}, 1
        v_mov_b32 v{vMc+2}, s{sB}
        s_waitcnt lgkmcnt(0)
        """)
        sum4r(vU + 4)
        a(f"v_mov_b32 v{vMc+1}, v{vU+4}")
        a(f"{lab}:")
    def s_stats_store(wait):
        lab = a.label("ss")
        a(f"s_cmp_eq_u32 s{sW}, 3\ns_cbranch_scc0 {lab}")
        if wait is not None: a(f"s_waitcnt vmcnt({wait})")
        setexec(0xF)
        store_local(f"buffer_store_dwordx4 {vr(vMc,4)}, v{vaStS}, {sr(sWS,4)}, s{sOown} offen")
        setexec(FULL)
        a(f"{lab}:")
    accO = vAcc
    def v_tr(blk):
        t, p = blk >> 1, blk & 1
        for nt in range(2):
            a(f"ds_read_b64_tr_b16 {ar(aV+8*blk+4*nt,2)}, v{vVr+nt} offset:{(4*t+2*p)*4096}")
            a(f"ds_read_b64_tr_b16 {ar(aV+8*blk+4*nt+2,2)}, v{vVr+nt} offset:{(4*t+2*p+1)*4096}")
    def pv(blks, first):
        for blk in blks:
            for nt in range(2):
                mfma(accO + 4*nt, ar(aV + 8*blk + 4*nt, 4), vP + 4*blk, "0" if (first and blk == blks[0]) else None)
    def s_out():
        for i in range(4):
            a(f"v_cvt_pk_bf16_f32 v{vU+i}, v{accO+2*i}, v{accO+2*i+1}")
        for i in range(4):
            a(f"v_min_u32 v{vU+i}, 0xfffffffe, v{vU+i}")
        setexec(EM4)
        store_local(f"buffer_store_dwordx4 {vr(vU,4)}, v{vaStO}, {sr(sWS,4)}, s{sOown} offen")
        setexec(FULL)

    a(f"s_lshl_b32 s{sB}, s{sW}, 12")
    tr_base(vT0, 32, 8, sB, L_WQ)
    for u in range(4):
        a(f"ds_read_b64_tr_b16 {ar(aWq+4*u,2)}, v{vT0} offset:{u*1024}")
        a(f"ds_read_b64_tr_b16 {ar(aWq+4*u+2,2)}, v{vT0} offset:{u*1024+128}")
    a(f"""
    v_lshrrev_b32 v{vT0}, 3, v{vR16}
    v_lshlrev_b32 v{vT0}, 10, v{vT0}
    v_lshl_add_u32 v{vT0}, v{vQd}, 4, v{vT0}
    s_lshl_b32 s{sB}, s{sW}, 8
    v_add_u32 v{vT0}, s{sB}, v{vT0}
    s_barrier
    """)
    setexec(0x0101010101010101)
    for u in range(4):
        a(f"ds_read_b128 {vr(XA+4*u,4)}, v{vT0} offset:{L_X0+u*64}")
    setexec(FULL)
    a(f"""
    s_waitcnt lgkmcnt(0)
    s_add_u32 s{sT}, s{sT}, 0x9e3779b0
    s_and_b32 s{sT}, s{sT}, 0xfffffff0
    s_or_b32 s{sTX}, s{sT}, s{sXcc}
    """)
    for u in range(4): mfma(vS, vOnes, ar(aWq + 4*u, 4), "0" if u == 0 else None)
    a(f"ds_write_b32 v{vaRedW}, v{vS} offset:{R_COL}")
    q_core(XA)
    q_final(True)
    a("s_barrier")
    ts("q1_pub")

    def v_group(t):
        page_off(t, sD)
        a(f"s_lshl_b32 s{sC}, s{sW}, 12\ns_add_u32 s{sC}, s{sC}, {L_V + t*16384}\ns_mov_b32 m0, s{sC}\ns_nop 0")
        for ii in range(4):
            a(f"buffer_load_dwordx4 v{vVs+(ii&1)}, {sr(sVS,4)}, s{sD} offen offset:{ii*1024} nt lds")
    def pace(): a(f"s_waitcnt vmcnt({cfg.pace})")
    def w_part(part, lo, hi):
        if not cfg.w_inter: return
        lab = a.label("wp")
        lim = 30
        if (part == 0 and "g" not in cfg.w_interB) or (part == 1 and "u" not in cfg.w_interB): lim = 16
        a(f"s_cmp_ge_u32 s{sM}, {lim}\ns_cbranch_scc1 {lab}")
        for u in range(lo, hi):
            if part == 0:
                a(f"s_mul_i32 s{sB}, s{sWst}, {u}\ns_add_u32 s{sB}, s{sB}, s{sWb}")
                a(f"s_lshl_b32 s{sC}, s{sW}, 12\ns_add_u32 s{sC}, s{sC}, {L_WQ + u*1024}")
            else:
                a(f"s_cmp_lt_u32 s{sM}, 16\ns_cselect_b32 s{sB}, {4+u}, {u}\ns_mul_i32 s{sB}, s{sB}, s{sWst}\ns_add_u32 s{sB}, s{sB}, s{sWb}")
                a(f"s_lshl_b32 s{sC}, s{sW}, 14\ns_add_u32 s{sC}, s{sC}, {L_K + u*1024}")
            a(f"s_mov_b32 m0, s{sC}\ns_nop 0")
            a(f"buffer_load_dwordx4 v{vWs}, {sr(sW2 if part == 0 else sUP,4)}, s{sB} offen{SLN} lds")
        a(f"{lab}:")
    for t in range(nKpA, 4):
        pace()
        if t == 3: w_part(0, 0, 4)
        k_page(t)
    a(f"""
    v_lshrrev_b32 v{vT0}, 2, v{vLane}
    v_lshlrev_b32 v{vT0}, 7, v{vT0}
    v_and_b32 v{vT1}, 3, v{vLane}
    v_lshl_add_u32 v{vKs}, v{vT1}, 4, v{vT0}        ; (vKs is free once K is issued)
    s_lshl_b32 s{sA}, s{sJ}, 12
    s_lshr_b32 s{sB}, s{sM}, 4
    s_lshl_b32 s{sB}, s{sB}, 6
    s_add_u32 s{sA}, s{sA}, s{sB}
    s_add_u32 s{sA}, s{sA}, {WS_Q1}
    v_and_b32 v{vT0}, 3, v{vR16}
    v_lshlrev_b32 v{vT0}, 9, v{vT0}
    v_lshrrev_b32 v{vT1}, 1, v{vQd}
    v_lshl_add_u32 v{vT0}, v{vT1}, 6, v{vT0}
    v_and_b32 v{vT1}, 1, v{vQd}
    v_lshl_add_u32 v{vKs+1}, v{vT1}, 5, v{vT0}
    v_lshlrev_b32 v{vKs+2}, 5, v{vLane}
    """)
    def q1_dma(img):
        a(f"""
        s_mov_b32 m0, {L_QG + img*2048}
        s_add_u32 s{sB}, s{sA}, 2048
        buffer_load_dwordx4 v{vKs}, {sr(sWS,4)}, s{sA} offen sc1 lds
        s_mov_b32 m0, {L_QG + img*2048 + 1024}
        s_nop 0
        buffer_load_dwordx4 v{vKs}, {sr(sWS,4)}, s{sB} offen sc1 lds
        """)
    def w0(fn):
        lab = a.label("w0")
        a(f"s_cmp_eq_u32 s{sW}, 0\ns_cbranch_scc0 {lab}")
        fn()
        a(f"{lab}:")
    def q1_dup():
        setexec(0x55555555)
        a(f"buffer_store_dwordx2 {vr(vQ1d,2)}, v{vQ1a}, {sr(sWS,4)}, 0 offen sc1")
        setexec(FULL)
    g.q1_dup = lambda: w0(q1_dup)
    pace()
    if cfg.pf_stream and cfg.pf_pos == 0: emit_wpf(sKS2, sWQ, True)
    v_group(0)
    a("s_waitcnt vmcnt(4)")
    for t in range(4):
        for c in range(4):
            a(f"ds_read_b128 {ar(aK+16*t+4*c,4)}, v{vKr+c} offset:{t*4096}")
    ts("k_landed")
    w0(lambda: q1_dma(0))
    if cfg.pf_stream and cfg.pf_pos == 1: emit_wpf(sKS, sWQ, True)
    v_group(1)
    a("s_waitcnt vmcnt(4)")
    ts("v0_landed")
    if cfg.pf_stream and cfg.pf_pos == 2: emit_wpf(sKS, sWQ, True)
    if cfg.w_inter:
        a("s_waitcnt lgkmcnt(0)")
        w_part(1, 0, 2)
    def warm_stats0():
        if cfg.warm:
            lab = a.label("ws")
            a(f"s_cmp_lt_u32 s{sM}, 16\ns_cbranch_scc0 {lab}")
            a(f"buffer_load_dword v{vJ}, v{vaS0}, {sr(sWS,4)}, s{sOcons} offen sc1")
            a(f"buffer_load_dword v{vJ}, v{vaS1}, {sr(sWS,4)}, s{sOcons} offen sc1")
            a(f"{lab}:")
    if cfg.v3_early: warm_stats0()
    v_group(2)
    if cfg.v3_early:
        assert not cfg.w_inter
        v_group(3)
    def _o0():
        lab = a.label("c0")
        a(f"""
        s_cmp_eq_u32 s{sW}, 3
        s_cbranch_scc0 {lab}
        v_mov_b32 v{vU+8}, -1
        v_mov_b32 v{vU+9}, -1
        v_mov_b32 v{vU+10}, -1
        v_mov_b32 v{vU+11}, -1
        """)
        store_local(f"buffer_store_dwordx4 {vr(vU+8,4)}, v{vaClrO}, {sr(sWS,4)}, s{sOown} offen")
        a(f"{lab}:")
    g.o0_clear_hook = _o0
    vG = vA
    def q1_tags(img):
        a(f"""
        ds_read_b128 {vr(vG,4)}, v{vKs+2} offset:{L_QG + img*2048}
        ds_read_b128 {vr(vG+4,4)}, v{vKs+2} offset:{L_QG + img*2048 + 16}
        s_waitcnt lgkmcnt(0)
        v_xor_b32 v{vT1}, s{sTX}, v{vG+1}
        v_xor_b32 v{vT2}, s{sTX}, v{vG+3}
        v_xor_b32 v{vT3}, s{sTX}, v{vG+5}
        v_xor_b32 v{vT0}, s{sTX}, v{vG+7}
        v_or3_b32 v{vT1}, v{vT1}, v{vT2}, v{vT3}
        v_or_b32 v{vT1}, v{vT1}, v{vT0}
        v_cmp_lt_u32 vcc, 15, v{vT1}
        """)
    a("s_barrier")
    q1_tags(0)
    a(f"s_mov_b32 s{sC}, {L_QG}\ns_cbranch_vccz L_q1ok")
    cnt("g0fail")
    w0(lambda: (q1_dma(1), a("s_waitcnt vmcnt(0)")))
    a("s_barrier")
    q1_tags(1)
    a(f"s_mov_b32 s{sC}, {L_QG + 2048}\ns_cbranch_vccz L_q1ok")
    a("L_q1retry:")
    cnt("g1fail")
    a(f"s_sub_u32 s{sBud}, s{sBud}, 1\ns_cbranch_scc1 L_abort\ns_barrier")
    w0(lambda: (q1_dup(), q1_dma(0), a("s_waitcnt vmcnt(0)")))
    a("s_barrier")
    q1_tags(0)
    a(f"s_mov_b32 s{sC}, {L_QG}\ns_cbranch_vccnz L_q1retry")
    a("L_q1ok:")
    a(f"""
    v_cmp_ne_u32 vcc, 0, v{vT1}
    v_add_u32 v{vT0}, s{sC}, v{vKs+1}
    s_cmp_eq_u64 vcc, 0
    s_cselect_b32 s{sLocal}, 1, 0
    """)
    if cfg.v3_early: g.o0_clear_hook()
    setexec(EM4)
    for c in range(4):
        a(f"ds_read2_b32 {vr(vQ+4*c,2)}, v{vT0} offset0:{c*32} offset1:{c*32+2}")
        a(f"ds_read2_b32 {vr(vQ+4*c+2,2)}, v{vT0} offset0:{c*32+4} offset1:{c*32+6}")
    setexec(FULL)
    lab = a.label("nl")
    a(f"s_cmp_eq_u32 s{sLocal}, 0\ns_cbranch_scc0 {lab}")
    g.q1_dup()
    a(f"{lab}:")
    a("s_waitcnt lgkmcnt(0)")
    ts("q1_got")
    s_qk_max()
    ts("s1_max")
    def o0_clear():
        lab = a.label("c0")
        a(f"""
        s_cmp_eq_u32 s{sW}, 3
        s_cbranch_scc0 {lab}
        v_mov_b32 v{vU+8}, -1
        v_mov_b32 v{vU+9}, -1
        v_mov_b32 v{vU+10}, -1
        v_mov_b32 v{vU+11}, -1
        """)
        store_local(f"buffer_store_dwordx4 {vr(vU+8,4)}, v{vaClrO}, {sr(sWS,4)}, s{sOown} offen")
        a(f"{lab}:")
    if not cfg.v3_early:
        a("s_waitcnt vmcnt(4)")
        o0_clear()
        warm_stats0()
        w_part(1, 2, 4)
        v_group(3)
    else:
        a("s_waitcnt vmcnt(8)")
    nPF = emit_wpf(sKS, sWQ, True) if (cfg.pf_stream and not cfg.pf_early and cfg.pf_pos is None) else 0

    def s1_tail(nW=0, maybe_none=False):
        def wait_v(base):
            if nW and maybe_none:
                l1 = a.label("wv"); l2 = a.label("wv")
                a(f"s_cmp_ge_u32 s{sIdx}, 14\ns_cbranch_scc1 {l1}\ns_waitcnt vmcnt({base + nW})\ns_branch {l2}\n{l1}:\ns_waitcnt vmcnt({base})\n{l2}:")
            else:
                a(f"s_waitcnt vmcnt({base + nW})")
        s_exp_p()
        s_stats_prep()
        blks = [0, 1, 2, 3]
        for blk in blks: v_tr(blk)
        a("s_waitcnt lgkmcnt(0)")
        pv(blks, True)
        for t in (2, 3):
            if t == 3 and cfg.v3_early:
                l3 = a.label("v3"); l4 = a.label("v4")
                a(f"s_cmp_eq_u32 s{sW}, 3\ns_cbranch_scc1 {l3}\ns_waitcnt vmcnt({nW})\ns_branch {l4}\n{l3}:\ns_waitcnt vmcnt({nW + 1})\n{l4}:")
            else:
                wait_v(4*(3-t))
            a("s_barrier")
            if t == 3: ts("v_landed")
            blks = [2*t, 2*t + 1]
            for blk in blks: v_tr(blk)
            a("s_waitcnt lgkmcnt(0)")
            pv(blks, False)
        s_out()
        s_stats_store(1 if cfg.v3_early else None)
        lab = a.label("c1")
        a(f"""
        s_cmp_eq_u32 s{sW}, 0
        s_cbranch_scc0 {lab}
        v_mov_b32 v{vU+8}, -1
        v_mov_b32 v{vU+9}, -1
        v_mov_b32 v{vU+10}, -1
        v_mov_b32 v{vU+11}, -1
        s_add_u32 s{sB}, s{sOown}, {O_L}
        """)
        store_local(f"buffer_store_dwordx4 {vr(vU+8,4)}, v{vaClrO}, {sr(sWS,4)}, s{sB} offen")
        q1_dup()
        a(f"{lab}:")
        ts("s1_pub")

    def x_poll(sbase, dst, sleep):
        l = a.label("xp"); ok = a.label("xok")
        if cfg.sleep_x0: a(f"s_sleep {cfg.sleep_x0}")
        a(f"{l}:")
        cnt("n_x")
        for u in range(4):
            if u == 0: a(f"s_mov_b32 m0, s{sXI}\ns_nop 0")
            else: a(f"s_add_u32 s{sB}, s{sXI}, {u*(1024-128)}\ns_mov_b32 m0, s{sB}\ns_nop 0")
            a(f"buffer_load_dwordx4 v{vaXg}, {sr(sWS,4)}, s{sbase} offen offset:{u*128} sc1 lds")
        a("s_waitcnt vmcnt(0)")
        for u in range(4):
            a(f"ds_read_b128 {vr(dst+4*u,4)}, v{vaXr} offset:{u*1024}")
        a("s_waitcnt lgkmcnt(0)")
        sent_check([dst+i for i in range(16)], vT0, ok)
        spin_fail(l, sleep)
        a(f"{ok}:")

    def warm_q2():
        if not cfg.warm: return
        a(f"s_lshl_b32 s{sB}, s{sJ}, 11\ns_add_u32 s{sB}, s{sB}, {WS_Q2}\nv_lshlrev_b32 v{vT0}, 7, v{vLane}")
        setexec(0xFFFF)
        a(f"buffer_load_dword v{vJ}, v{vT0}, {sr(sWS,4)}, s{sB} offen sc1")
        setexec(FULL)
    def warm_o(dl, data=True):
        if not cfg.warm: return
        a(f"s_add_u32 s{sB}, s{sOcons}, {dl*O_L}")
        if data:
            a(f"""
            v_and_b32 v{vT0}, 31, v{vLane}
            v_lshlrev_b32 v{vT0}, 7, v{vT0}
            v_lshrrev_b32 v{vT1}, 5, v{vLane}
            v_lshl_add_u32 v{vT0}, v{vT1}, 14, v{vT0}
            buffer_load_dword v{vJ}, v{vT0}, {sr(sWS,4)}, s{sB} offen sc1
            """)
        a(f"buffer_load_dword v{vJ}, v{vaS0}, {sr(sWS,4)}, s{sB} offen sc1")
        a(f"buffer_load_dword v{vJ}, v{vaS1}, {sr(sWS,4)}, s{sB} offen sc1")

    def tag_check_all():
        l = a.label("tc"); ok = a.label("tcok")
        a(f"""
        s_lshl_b32 s{sB}, s{sW}, 13
        s_add_u32 s{sB}, s{sB}, {WS_Q1+4}
        v_lshlrev_b32 v{vT0}, 7, v{vLane}
        {l}:
        buffer_load_dword v{vT1}, v{vT0}, {sr(sWS,4)}, s{sB} offen sc1
        s_waitcnt vmcnt(0)
        v_xor_b32 v{vT1}, s{sT}, v{vT1}
        v_cmp_lt_u32 vcc, 15, v{vT1}
        s_cbranch_vccz {ok}
        """)
        spin_fail(l, 2)
        a(f"{ok}:")

    def line_final(red):
        if cfg.doorbell and cfg.db_early:
            a(f"v_mov_b32 v{vT0}, 0\nv_mov_b32 v{vT1}, s{sDBtag}\ns_mov_b64 exec, 1")
            store_local(f"buffer_store_dword v{vT1}, v{vT0}, {sr(sWS,4)}, s{sDBw} offen")
            a("s_mov_b64 exec, -1")
        a(f"""
        ds_read_b128 {vr(vU,4)}, v{vaFinO} offset:{red}
        v_mov_b32 v{vT0}, 0
        v_mov_b32 v{vT1}, s{sDBtag}
        s_waitcnt lgkmcnt(0)
        v_add_f32 v{vU}, v{vU}, v{vU+1}
        v_add_f32 v{vU+2}, v{vU+2}, v{vU+3}
        v_add_f32 v{vU}, v{vU}, v{vResF}
        v_add_f32 v{vResF}, v{vU}, v{vU+2}
        """)
        dpp("v_mov_b32", vU + 1, vResF, None, "quad_perm:[1,0,3,2]")
        a(f"v_cvt_pk_bf16_f32 v{vU}, v{vResF}, v{vU+1}\nv_min_u32 v{vU}, 0xfffffffe, v{vU}")
        if cfg.doorbell and not cfg.db_early:
            a("s_mov_b64 exec, 1")
            store_local(f"buffer_store_dword v{vT1}, v{vT0}, {sr(sWS,4)}, s{sDBw} offen")
        a(f"s_xor_b32 s{sB}, s{sXw}, 0x2000\ns_add_u32 s{sB}, s{sB}, 16384")
        setexec(EMEV)
        a(f"buffer_store_dword v{vU}, v{vaStX}, {sr(sWS,4)}, s{sXw} offen sc1")
        a(f"buffer_store_dword v{vU}, v{vaStX}, {sr(sWS,4)}, s{sB} offen sc1")
        setexec(FULL)
    def advance_hop():
        a(f"s_add_u32 s{sXw}, s{sXw}, {X_HOP}\ns_add_u32 s{sDBw}, s{sDBw}, 1024\ns_add_u32 s{sDBtag}, s{sDBtag}, 1")

    def db_setup(hop_w, hop_r):
        a(f"""
        s_lshl_b32 s{sDBr}, s{sJ}, 7
        s_add_u32 s{sDBr}, s{sDBr}, {WS_DB}
        s_lshl_b32 s{sDBw}, s{sIdx}, 2
        s_add_u32 s{sDBw}, s{sDBw}, s{sDBr}
        s_add_u32 s{sDBw}, s{sDBw}, {hop_w*1024}
        s_add_u32 s{sDBtag}, s{sT}, {8+hop_w}
        """)
    def db_wait(hop_off_s, tag_add_s=None, const_hop=None):
        if not cfg.doorbell: return
        l = a.label("db"); ok = a.label("dbok")
        if const_hop is not None:
            a(f"s_add_u32 s{sA}, s{sDBr}, {const_hop*1024}\ns_add_u32 s{sC}, s{sT}, {8+const_hop}")
        else:
            a(f"s_lshl_b32 s{sA}, s{sL}, 11\ns_add_u32 s{sA}, s{sA}, s{sDBr}\ns_add_u32 s{sA}, s{sA}, {hop_off_s*1024}")
            a(f"s_lshl_b32 s{sC}, s{sL}, 1\ns_add_u32 s{sC}, s{sC}, s{sT}\ns_add_u32 s{sC}, s{sC}, {8+hop_off_s}")
        a(f"v_lshlrev_b32 v{vT0}, 2, v{vLane}")
        setexec(0xFFFF)
        a(f"""
        {l}:
        buffer_load_dword v{vT1}, v{vT0}, {sr(sWS,4)}, s{sA} offen sc1
        s_waitcnt vmcnt(0)
        v_cmp_ne_u32 vcc, s{sC}, v{vT1}
        s_cbranch_vccz {ok}
        """)
        spin_fail(l)
        a(f"{ok}:")
        setexec(FULL)

    def o_stats_poll():
        l = a.label("os"); ok = a.label("osok")
        a(f"s_add_u32 s{sA}, s{sT}, s{sL}\ns_add_u32 s{sA}, s{sA}, 1")
        a(f"{l}:")
        cnt("n_ostat")
        a(f"buffer_load_dwordx3 {vr(vSt,3)}, v{vaS0}, {sr(sWS,4)}, s{sOcons} offen sc1")
        a(f"buffer_load_dwordx3 {vr(vSt+4,3)}, v{vaS1}, {sr(sWS,4)}, s{sOcons} offen sc1")
        a("s_waitcnt vmcnt(0)")
        a(f"""
        v_xor_b32 v{vT0}, s{sA}, v{vSt+2}
        v_xor_b32 v{vT1}, s{sA}, v{vSt+6}
        v_or_b32 v{vT0}, v{vT0}, v{vT1}
        v_cmp_ne_u32 vcc, 0, v{vT0}
        s_cbranch_vccz {ok}
        """)
        spin_fail(l, cfg.sleep_o)
        a(f"{ok}:")
        ts_dyn("o_st0", "o_st1")

    def o_phase():
        OA = vA
        o_stats_poll()
        l2 = a.label("op"); ok2 = a.label("ook")
        a(f"L_heavy:\n{l2}:")
        cnt("n_oheavy")
        for b in range(2):
            for c in range(4):
                a(f"buffer_load_dwordx4 {vr(OA+16*b+4*c,4)}, v{vaO0+b}, {sr(sWS,4)}, s{sOcons} offen offset:{c*1024} sc1")
        for b in range(2):
            a(f"v_mov_b32 v{vU+b}, v{vSt+4*b}")
        for n in (8, 4, 2, 1):
            for b in range(2): dpp("v_max_f32", vU + b, vU + b, vU + b, f"row_ror:{n}")
        for b in range(2): a(f"v_sub_f32 v{vU+b}, v{vSt+4*b}, v{vU+b}")
        for b in range(2): a(f"v_exp_f32 v{vU+b}, v{vU+b}")
        for b in range(2): a(f"v_mul_f32 v{vU+2+b}, v{vU+b}, v{vSt+4*b+1}")
        for n in (8, 4, 2, 1):
            for b in range(2): dpp("v_add_f32", vU + 2 + b, vU + 2 + b, vU + 2 + b, f"row_ror:{n}")
        for b in range(2): a(f"v_rcp_f32 v{vU+2+b}, v{vU+2+b}")
        for b in range(2): a(f"v_mul_f32 v{vW+b}, v{vU+b}, v{vU+2+b}")
        a(f"v_mov_b32 v{vT0}, 0")
        if cfg.diag and cfg.ts_only and "o_w0" in cfg.ts_only:
            ts_dyn("o_w0", "o_w1")
            a("s_waitcnt vmcnt(7)")
            ts_dyn("o_f0", "o_f1")
        for i in range(8):
            b, c = i >> 2, i & 3
            r = OA + 16*b + 4*c
            a(f"s_waitcnt vmcnt({7-i})")
            for nt in range(2):
                mfma(vAcc + 8*b + 4*nt, r, ar(aW2 + 8*c + 4*nt, 4), "0" if c == 0 else None)
            a(f"v_max3_u32 v{vT0}, v{vT0}, v{r}, v{r+1}\nv_max3_u32 v{vT0}, v{vT0}, v{r+2}, v{r+3}")
        a(f"v_cmp_eq_u32 vcc, -1, v{vT0}\ns_cbranch_vccz {ok2}")
        spin_fail(l2)
        a(f"{ok2}:")
        ts_dyn("o_got0", "o_got1")
        for b in range(2):
            for nt in range(2):
                t = vU + 2*b + nt; acc = vAcc + 8*b + 4*nt
                dpp("v_mul_f32", t, vW + b, acc, "row_newbcast:0")
                for r in range(1, 4):
                    dpp("v_fmac_f32", t, vW + b, acc + r, f"row_newbcast:{r}")
        a(f"""
        v_permlane32_swap_b32 v{vU}, v{vU+1}
        v_permlane32_swap_b32 v{vU+2}, v{vU+3}
        v_add_f32 v{vU}, v{vU}, v{vU+1}
        v_add_f32 v{vU+2}, v{vU+2}, v{vU+3}
        v_permlane16_swap_b32 v{vU}, v{vU+2}
        v_add_f32 v{vU}, v{vU}, v{vU+2}
        ds_write_b32 v{vaRedW}, v{vU} offset:{R_O}
        s_waitcnt lgkmcnt(0)
        s_barrier
        """)
        lab = a.label("of")
        a(f"s_cmp_eq_u32 s{sW}, 0\ns_cbranch_scc0 {lab}")
        line_final(R_O)
        a(f"{lab}:")
        advance_hop()
        ts_dyn("o_pub0", "o_pub1")

    def g_phase():
        X = vA
        if cfg.db_g: db_wait(0)
        if cfg.diag and cfg.ts_only and "g_db0" in cfg.ts_only: ts_dyn("g_db0", "g_db1")
        x_poll(sXr, X, cfg.sleep_x)
        ts_dyn("g_got0", "g_got1")
        M = stats_mf(X)
        for u in range(4):
            M.append(mf(vAcc, X + 4*u, ar(aW2 + 8*u, 4), "0" if u == 0 else None))
            M.append(mf(vAcc + 4, X + 4*u, ar(aW2 + 8*u + 4, 4), "0" if u == 0 else None))
        V = stats_valu(vU) + [f"v_mov_b32 v{vU+1}, v{vU}", f"v_permlane16_swap_b32 v{vU}, v{vU+1}", f"v_add_f32 v{vU}, v{vU}, v{vU+1}"]
        interleave(M, V, 8, 2)
        setexec("s[%d:%d]" % (sM2, sM2 + 1))
        a(f"ds_write_b32 v{vaRedZ}, v{vU} offset:{R_GZ}")
        setexec(FULL)
        sum4(vU + 2, vAcc, vT3)
        sum4(vU + 3, vAcc + 4, vT3)
        a(f"""
        v_permlane16_swap_b32 v{vU+2}, v{vU+3}
        v_add_f32 v{vU+2}, v{vU+2}, v{vU+3}
        ds_write_b32 v{vaRedW}, v{vU+2} offset:{R_G}
        s_waitcnt lgkmcnt(0)
        s_barrier
        """)
        lab = a.label("gf")
        a(f"s_cmp_eq_u32 s{sW}, 0\ns_cbranch_scc0 {lab}")
        setexec(0xFFFFFFFF)
        a(f"""
        ds_read_b128 {vr(vU+8,4)}, v{vaFinZ} offset:{R_GZ}
        ds_read_b128 {vr(vU+12,4)}, v{vaFinZ} offset:{R_GZ+16}
        ds_read_b128 {vr(vU,4)}, v{vaFinW} offset:{R_G}
        ds_read_b128 {vr(vU+4,4)}, v{vaFinW} offset:{R_G+256}
        s_lshl_b32 s{sB}, s{sIdx}, 6
        s_add_u32 s{sB}, s{sB}, s{sHb}
        s_waitcnt lgkmcnt(2)
        """)
        sum4r(vU + 8); sum4r(vU + 12)
        ln_stats(vU + 8, vU + 12, vU + 9, vU + 10)
        a("s_waitcnt lgkmcnt(0)")
        sum4r(vU); sum4r(vU + 4)
        a(f"""
        v_fma_f32 v{vU}, -v{vU+9}, v{vCg}, v{vU}
        v_fma_f32 v{vU+4}, -v{vU+9}, v{vCu}, v{vU+4}
        v_mul_f32 v{vU+1}, {f2u(-1.4426950408889634):#x}, v{vU+10}
        v_mul_f32 v{vU}, v{vU}, v{vU+1}
        v_exp_f32 v{vU}, v{vU}
        v_mul_f32 v{vU+4}, v{vU+4}, v{vU+10}
        v_add_f32 v{vU}, 1.0, v{vU}
        v_rcp_f32 v{vU}, v{vU}
        s_nop 0
        v_mul_f32 v{vU}, v{vU}, v{vU+4}
        """)
        dpp("v_mov_b32", vU + 1, vU, None, "quad_perm:[1,0,3,2]")
        a(f"v_cvt_pk_bf16_f32 v{vU}, v{vU}, v{vU+1}\nv_min_u32 v{vU}, 0xfffffffe, v{vU}")
        setexec(0x55555555)
        store_local(f"buffer_store_dword v{vU}, v{vaStH}, {sr(sWS,4)}, s{sB} offen")
        setexec(FULL)
        a(f"{lab}:")
        ts_dyn("g_pub0", "g_pub1")

    def d_phase():
        lab0 = a.label("dr0"); l2 = a.label("dr"); ok2 = a.label("drok")
        l = a.label("dp"); ok = a.label("dok"); one = a.label("done"); l3 = a.label("dp1");
        a(f"s_cmp_eq_u32 s{sW}, 3\ns_cbranch_scc1 {l3}")
        setexec(EM2)
        a(f"{l}:")
        a(f"buffer_load_dwordx4 {vr(vHop,4)}, v{vaH}, {sr(sWS,4)}, s{sHb} offen sc1")
        a(f"buffer_load_dwordx4 {vr(vHop+4,4)}, v{vaH}, {sr(sWS,4)}, s{sHb} offen offset:512 sc1")
        a("s_waitcnt vmcnt(0)")
        sent_check([vHop+i for i in range(8)], vT1, ok)
        spin_fail(l)
        a(f"{l3}:")
        setexec(EM2)
        a(f"{l3}b:")
        a(f"buffer_load_dwordx4 {vr(vHop,4)}, v{vaH}, {sr(sWS,4)}, s{sHb} offen sc1")
        a("s_waitcnt vmcnt(0)")
        sent_check([vHop+i for i in range(4)], vT1, ok)
        spin_fail(f"{l3}b")
        a(f"{ok}:")
        setexec(FULL)
        for nt in range(2):
            mfma(vAcc + 4*nt, vHop, ar(aWd + 4*nt, 4), "0")
        for nt in range(2):
            mfma(vAcc + 4*nt, vHop + 4, ar(aWd + 8 + 4*nt, 4))
        a(f"""
        v_permlane16_swap_b32 v{vAcc}, v{vAcc+1}
        v_permlane16_swap_b32 v{vAcc+4}, v{vAcc+5}
        v_permlane32_swap_b32 v{vAcc}, v{vAcc+4}
        ds_write_b32 v{vaRedW}, v{vAcc} offset:{R_D}
        s_waitcnt lgkmcnt(0)
        s_barrier
        """)
        lab = a.label("df")
        a(f"s_cmp_eq_u32 s{sW}, 0\ns_cbranch_scc0 {lab}")
        line_final(R_D)
        a(f"{lab}:")
        advance_hop()
        ts_dyn("d_pub0", "d_pub1")

    a(f"s_cmp_lt_u32 s{sM}, 16\ns_cbranch_scc0 L_roleB")
    def down_slices():
        a(f"""
        v_lshrrev_b32 v{vT0}, 2, v{vLane}
        v_lshlrev_b32 v{vT0}, 10, v{vT0}
        v_and_b32 v{vT1}, 3, v{vLane}
        v_lshl_add_u32 v{vT0}, v{vT1}, 4, v{vT0}
        s_mul_i32 s{sB}, s{sJ}, {224*1024}
        s_lshl_b32 s{sC}, s{sIdx}, 6
        s_add_u32 s{sB}, s{sB}, s{sC}
        s_lshl_b32 s{sC}, s{sW}, 15
        s_add_u32 s{sB}, s{sB}, s{sC}
        s_lshl_b32 s{sC}, s{sW}, 14
        s_add_u32 s{sC}, s{sC}, {L_K + W_DN}
        s_mov_b32 m0, s{sC}
        s_add_u32 s{sD}, s{sB}, 16384
        buffer_load_dwordx4 v{vT0}, {sr(sDN,4)}, s{sB} offen{SLN} lds
        s_add_u32 s{sC}, s{sC}, 1024
        s_mov_b32 m0, s{sC}
        s_nop 0
        buffer_load_dwordx4 v{vT0}, {sr(sDN,4)}, s{sD} offen{SLN} lds
        s_cmp_eq_u32 s{sW}, 3
        s_cbranch_scc1 L_nod2
        s_add_u32 s{sB}, s{sB}, {4*32768}
        s_add_u32 s{sC}, s{sC}, 1024
        s_mov_b32 m0, s{sC}
        s_add_u32 s{sD}, s{sB}, 16384
        buffer_load_dwordx4 v{vT0}, {sr(sDN,4)}, s{sB} offen{SLN} lds
        s_add_u32 s{sC}, s{sC}, 1024
        s_mov_b32 m0, s{sC}
        s_nop 0
        buffer_load_dwordx4 v{vT0}, {sr(sDN,4)}, s{sD} offen{SLN} lds
        L_nod2:
        """)
    def down_operands():
        a(f"s_lshl_b32 s{sB}, s{sW}, 14")
        tr_base(vT0, 64, 8, sB, L_K + W_DN)
        for nt in range(2):
            a(f"ds_read_b64_tr_b16 {ar(aWd+4*nt,2)}, v{vT0} offset:{nt*32}")
            a(f"ds_read_b64_tr_b16 {ar(aWd+4*nt+2,2)}, v{vT0} offset:{nt*32+256}")
        a(f"s_cmp_eq_u32 s{sW}, 3\ns_cbranch_scc1 L_dn3")
        for nt in range(2):
            a(f"ds_read_b64_tr_b16 {ar(aWd+8+4*nt,2)}, v{vT0} offset:{2048+nt*32}")
            a(f"ds_read_b64_tr_b16 {ar(aWd+8+4*nt+2,2)}, v{vT0} offset:{2048+nt*32+256}")
        a("s_branch L_dn4\nL_dn3:")
        for i in range(8): a(f"v_accvgpr_write_b32 a{aWd+8+i}, 0")
        a("L_dn4:")
    g.role = "A"; ts_split = g.ts
    def wo_slices():
        if cfg.line_pf and "o" in cfg.pf_which:
            a(f"""
            v_lshlrev_b32 v{vT0}, 7, v{vLane}
            s_lshl_b32 s{sB}, s{sJ}, 19
            s_lshl_b32 s{sC}, s{sIdx}, 15
            s_add_u32 s{sB}, s{sB}, s{sC}
            s_lshl_b32 s{sC}, s{sW}, 13
            s_add_u32 s{sB}, s{sB}, s{sC}
            buffer_load_dword v{vJ}, v{vT0}, {sr(sW2,4)}, s{sB} offen{cfg.pf_pol}
            """)
        a(f"""
        v_lshrrev_b32 v{vT0}, 2, v{vLane}
        v_lshlrev_b32 v{vT0}, 10, v{vT0}
        v_and_b32 v{vT1}, 3, v{vLane}
        v_lshl_add_u32 v{vT0}, v{vT1}, 4, v{vT0}
        s_lshl_b32 s{sB}, s{sJ}, 19
        s_lshl_b32 s{sC}, s{sW}, 17
        s_add_u32 s{sB}, s{sB}, s{sC}
        s_lshl_b32 s{sC}, s{sIdx}, 6
        s_add_u32 s{sB}, s{sB}, s{sC}
        s_lshl_b32 s{sC}, s{sW}, 14
        s_add_u32 s{sC}, s{sC}, {L_K}
        """)
        for u in range(8):
            a(f"""
            s_mov_b32 m0, s{sC}
            s_add_u32 s{sC}, s{sC}, 1024
            buffer_load_dwordx4 v{vT0}, {sr(sW2,4)}, s{sB} offen{SLN} lds
            s_add_u32 s{sB}, s{sB}, {16*1024}
            """)
    if cfg.w_inter:
        s1_tail(nPF)
        db_setup(0, 1)
        a(f"s_mov_b32 s{sXr}, {WS_X}")
    elif cfg.wsA:
        wo_slices()
        s1_tail(8 + nPF)
        db_setup(0, 1)
    else:
        s1_tail(nPF)
        db_setup(0, 1)
        wo_slices()
    a(f"v_mov_b32 v{vRes}, 0")
    lab = a.label("r0")
    a(f"""
    s_cmp_eq_u32 s{sJ}, 0
    s_cbranch_scc0 {lab}
    v_and_b32 v{vT0}, 1, v{vQd}
    v_lshlrev_b32 v{vT0}, 10, v{vT0}
    v_lshrrev_b32 v{vT1}, 1, v{vQd}
    v_lshl_add_u32 v{vT0}, v{vT1}, 5, v{vT0}
    v_lshl_add_u32 v{vT0}, v{vR16}, 1, v{vT0}
    s_lshl_b32 s{sB}, s{sIdx}, 6
    buffer_load_ushort v{vRes}, v{vT0}, {sr(sX0,4)}, s{sB} offen
    {lab}:
    """)
    nspec = 0
    if cfg.o_spec:
        a(f"buffer_load_dwordx3 {vr(vSt,3)}, v{vaS0}, {sr(sWS,4)}, s{sOcons} offen sc1")
        a(f"buffer_load_dwordx3 {vr(vSt+4,3)}, v{vaS1}, {sr(sWS,4)}, s{sOcons} offen sc1")
        nspec = 2
    if cfg.w_inter:
        a(f"s_waitcnt vmcnt({nspec})")
        for half, (sh, base) in enumerate(((12, L_WQ), (14, L_K))):
            a(f"s_lshl_b32 s{sB}, s{sW}, {sh}")
            tr_base(vT0, 64, 4, sB, base)
            for c2 in range(2):
                c = 2*half + c2
                for nt in range(2):
                    a(f"ds_read_b64_tr_b16 {ar(aW2+8*c+4*nt,2)}, v{vT0} offset:{c2*2048+nt*32}")
                    a(f"ds_read_b64_tr_b16 {ar(aW2+8*c+4*nt+2,2)}, v{vT0} offset:{c2*2048+nt*32+1024}")
    else:
        a(f"s_lshl_b32 s{sB}, s{sW}, 14")
        tr_base(vT0, 64, 4, sB, L_K)
        a(f"s_waitcnt vmcnt({nspec})")
        for c in range(4):
            for nt in range(2):
                a(f"ds_read_b64_tr_b16 {ar(aW2+8*c+4*nt,2)}, v{vT0} offset:{c*2048+nt*32}")
                a(f"ds_read_b64_tr_b16 {ar(aW2+8*c+4*nt+2,2)}, v{vT0} offset:{c*2048+nt*32+1024}")
    a(f"v_lshlrev_b32 v{vResF}, 16, v{vRes}")
    a("s_waitcnt lgkmcnt(0)")
    ts("wo_ready")
    if cfg.o_spec:
        a(f"""
        s_add_u32 s{sA}, s{sT}, 1
        s_waitcnt vmcnt(0)
        v_xor_b32 v{vT0}, s{sA}, v{vSt+2}
        v_xor_b32 v{vT1}, s{sA}, v{vSt+6}
        v_or_b32 v{vT0}, v{vT0}, v{vT1}
        v_cmp_ne_u32 vcc, 0, v{vT0}
        s_cbranch_vccz L_heavy
        """)
    a("L_loopA:")
    o_phase()
    lab = a.label("dn")
    a(f"s_cmp_eq_u32 s{sL}, 0\ns_cbranch_scc0 {lab}")
    down_slices()
    tag_check_all()
    if cfg.epoch_early:
        le = a.label("ep")
        a(f"""
        s_or_b32 s{sB}, s{sJ}, s{sIdx}
        s_or_b32 s{sB}, s{sB}, s{sW}
        s_cmp_eq_u32 s{sB}, 0
        s_cbranch_scc0 {le}
        """)
        g.ep_lab = le
        a(f"v_mov_b32 v{vT0}, {WS_EPOCH}\nv_mov_b32 v{vT1}, s{sT}\ns_mov_b64 exec, 1")
        a(f"buffer_store_dword v{vT1}, v{vT0}, {sr(sWS,4)}, 0 offen sc1")
        a("s_mov_b64 exec, -1")
        a(f"{le}:")
    down_operands()
    if cfg.warm_out:
        lw = a.label("wout")
        a(f"""
        s_cmp_ge_u32 s{sIdx}, 2
        s_cbranch_scc1 {lw}
        s_lshl_b32 s{sB}, s{sJ}, 1
        s_add_u32 s{sB}, s{sB}, s{sIdx}
        s_lshl_b32 s{sB}, s{sB}, 6
        v_lshlrev_b32 v{vT0}, 10, v{vLane}
        s_mov_b64 exec, 3
        buffer_load_dword v{vJ}, v{vT0}, {sr(sOUT,4)}, s{sB} offen
        s_mov_b64 exec, -1
        {lw}:
        """)
    a("s_waitcnt lgkmcnt(0)\ns_barrier")
    a(f"{lab}:")
    d_phase()
    a(f"s_cmp_eq_u32 s{sL}, 1\ns_cbranch_scc1 L_finalA")
    a("s_branch L_q2s2")

    a("L_roleB:")
    g.role = "B"; g.ts = ts_split
    def gu_slices():
        a(f"""
        s_cmp_ge_u32 s{sIdx}, 14
        s_cbranch_scc1 L_nogu
        v_lshrrev_b32 v{vT0}, 1, v{vLane}
        v_mul_u32_u24 v{vT0}, 3584, v{vT0}
        v_and_b32 v{vT1}, 1, v{vLane}
        v_lshl_add_u32 v{vT0}, v{vT1}, 4, v{vT0}
        s_mul_i32 s{sB}, s{sW}, {128*3584}
        s_mul_i32 s{sC}, s{sJ}, 448
        s_add_u32 s{sB}, s{sB}, s{sC}
        s_lshl_b32 s{sC}, s{sIdx}, 5
        s_add_u32 s{sB}, s{sB}, s{sC}
        s_lshl_b32 s{sC}, s{sW}, 14
        s_add_u32 s{sC}, s{sC}, {L_K + W_GATE}
        """)
        for u in range(4):
            a(f"""
            s_mov_b32 m0, s{sC}
            s_add_u32 s{sD}, s{sC}, {W_UP - W_GATE}
            buffer_load_dwordx4 v{vT0}, {sr(sW2,4)}, s{sB} offen{SLN} lds
            s_mov_b32 m0, s{sD}
            s_add_u32 s{sC}, s{sC}, 1024
            buffer_load_dwordx4 v{vT0}, {sr(sUP,4)}, s{sB} offen{SLN} lds
            s_add_u32 s{sB}, s{sB}, {32*3584}
            """)
        a("L_nogu:")
    if cfg.wsB:
        gu_slices()
        s1_tail(8, maybe_none=True)
    else:
        s1_tail(nPF)
    if cfg.w_inter: a(f"s_mov_b32 s{sWb2}, s{sWb}\ns_mov_b32 s{sWst2}, s{sWst}")
    db_setup(1, 0)
    if cfg.w_inter: a(f"s_mov_b32 s{sXr}, {WS_X}")
    if cfg.line_pf and "f" in cfg.pf_which:
        a(f"""
        v_mul_u32_u24 v{vT0}, 52, v{vLane}
        v_lshrrev_b32 v{vT0}, 8, v{vT0}            ; l/5 for l < 64
        v_mul_u32_u24 v{vT1}, 5, v{vT0}
        v_sub_u32 v{vT1}, v{vLane}, v{vT1}         ; l%5
        v_mul_u32_u24 v{vT0}, 3584, v{vT0}
        v_lshl_add_u32 v{vT0}, v{vT1}, 7, v{vT0}
        s_lshl_b32 s{sB}, s{sIdx}, 5
        s_lshl_b32 s{sC}, s{sW}, 3
        s_add_u32 s{sB}, s{sB}, s{sC}
        s_mul_i32 s{sB}, s{sB}, 3584
        s_mul_i32 s{sC}, s{sJ}, 448
        s_and_b32 s{sC}, s{sC}, 0xffffff80
        s_add_u32 s{sB}, s{sB}, s{sC}
        """)
        setexec((1 << 40) - 1)
        a(f"buffer_load_dword v{vJ}, v{vT0}, {sr(sW2,4)}, s{sB} offen{cfg.pf_pol}")
        a(f"buffer_load_dword v{vJ}, v{vT0}, {sr(sUP,4)}, s{sB} offen{cfg.pf_pol}")
        a(f"""
        s_mov_b64 exec, -1
        v_lshrrev_b32 v{vT0}, 3, v{vLane}
        v_lshlrev_b32 v{vT0}, 10, v{vT0}
        v_and_b32 v{vT1}, 7, v{vLane}
        v_lshl_add_u32 v{vT0}, v{vT1}, 7, v{vT0}
        s_mul_i32 s{sB}, s{sJ}, 224
        s_mul_i32 s{sC}, s{sIdx}, 14
        s_add_u32 s{sB}, s{sB}, s{sC}
        s_lshl_b32 s{sC}, s{sW}, 2
        s_add_u32 s{sB}, s{sB}, s{sC}
        s_lshl_b32 s{sB}, s{sB}, 10
        s_cmp_eq_u32 s{sW}, 3
        s_cselect_b32 exec_lo, 0xffff, -1
        s_mov_b32 exec_hi, 0
        buffer_load_dword v{vJ}, v{vT0}, {sr(sDN,4)}, s{sB} offen{cfg.pf_pol}
        s_mov_b64 exec, -1
        """)
    if not cfg.wsB and not cfg.w_inter: gu_slices()
    if cfg.w_inter and cfg.w_interB != "gu":
        lab = a.label("wl")
        a(f"s_cmp_ge_u32 s{sIdx}, 14\ns_cbranch_scc1 {lab}")
        for part, key, srdq, sh, base in ((0, "g", sW2, 12, L_WQ), (1, "u", sUP, 14, L_K)):
            if key in cfg.w_interB: continue
            for u in range(4):
                a(f"""
                s_mul_i32 s{sB}, s{sWst2}, {u}
                s_add_u32 s{sB}, s{sB}, s{sWb2}
                s_lshl_b32 s{sC}, s{sW}, {sh}
                s_add_u32 s{sC}, s{sC}, {base + u*1024}
                s_mov_b32 m0, s{sC}
                s_nop 0
                buffer_load_dwordx4 v{vWs}, {sr(srdq,4)}, s{sB} offen{SLN} lds
                """)
        a(f"{lab}:")
    tag_check_all()
    ts("ffn_landed")
    a(f"s_cmp_ge_u32 s{sIdx}, 14\ns_cbranch_scc1 L_nogu2")
    if cfg.w_inter:
        for mat, (sh, base) in enumerate(((12, L_WQ), (14, L_K))):
            a(f"s_lshl_b32 s{sB}, s{sW}, {sh}")
            tr_base(vT0, 32, 8, sB, base)
            for u in range(4):
                a(f"ds_read_b64_tr_b16 {ar(aW2+8*u+4*mat,2)}, v{vT0} offset:{u*1024}")
                a(f"ds_read_b64_tr_b16 {ar(aW2+8*u+4*mat+2,2)}, v{vT0} offset:{u*1024+128}")
    else:
        a(f"s_lshl_b32 s{sB}, s{sW}, 14")
        tr_base(vT0, 32, 8, sB, L_K + W_GATE)
        for u in range(4):
            for mat in range(2):
                a(f"ds_read_b64_tr_b16 {ar(aW2+8*u+4*mat,2)}, v{vT0} offset:{u*1024+mat*(W_UP-W_GATE)}")
                a(f"ds_read_b64_tr_b16 {ar(aW2+8*u+4*mat+2,2)}, v{vT0} offset:{u*1024+mat*(W_UP-W_GATE)+128}")
    a("s_waitcnt lgkmcnt(0)")
    for u in range(4):
        mfma(vAcc, vOnes, ar(aW2 + 8*u, 4), "0" if u == 0 else None)
        mfma(vAcc + 4, vOnes, ar(aW2 + 8*u + 4, 4), "0" if u == 0 else None)
    a(f"s_nop 7\nds_write_b32 v{vaRedW}, v{vAcc} offset:{R_COL}\nds_write_b32 v{vaRedW}, v{vAcc+4} offset:{R_COL2}")
    a("L_nogu2:")
    a("s_waitcnt lgkmcnt(0)\ns_barrier")
    a(f"""
    ds_read_b128 {vr(vU,4)}, v{vaFinW} offset:{R_COL}
    ds_read_b128 {vr(vU+4,4)}, v{vaFinW} offset:{R_COL2}
    s_waitcnt lgkmcnt(0)
    """)
    sum4r(vU); sum4r(vU + 4)
    a(f"v_mov_b32 v{vCg}, v{vU}\nv_mov_b32 v{vCu}, v{vU+4}")
    ts("ffn_ready")
    a("L_loopB:")
    lg = a.label("nog")
    a(f"s_cmp_ge_u32 s{sIdx}, 14\ns_cbranch_scc1 {lg}")
    g_phase()
    a(f"{lg}:")
    if cfg.junk_dirty:
        lj = a.label("jk")
        a(f"s_cmp_eq_u32 s{sL}, 0\ns_cbranch_scc0 {lj}")
        a(f"s_lshl_b32 s{sB}, s2, 2\ns_add_u32 s{sB}, s{sB}, s{sW}\ns_mul_i32 s{sB}, s{sB}, {cfg.junk_dirty*1024}\ns_add_u32 s{sB}, s{sB}, 0x400000\nv_lshlrev_b32 v{vT0}, 4, v{vLane}")
        for i in range(cfg.junk_dirty):
            a(f"buffer_store_dwordx4 {vr(vP,4)}, v{vT0}, {sr(sWS,4)}, s{sB} offen\ns_add_u32 s{sB}, s{sB}, 1024")
        a(f"{lj}:")
    a(f"s_cmp_eq_u32 s{sL}, 1\ns_cbranch_scc1 L_fin")

    a("L_q2s2:")
    save_role, save_ts = g.role, g.ts
    g.role = "C"; g.ts = getattr(g, "maxts", g.ts)
    lab = a.label("wo")
    a(f"s_cmp_lt_u32 s{sM}, 16\ns_cbranch_scc{1 if cfg.warm_by_B else 0} {lab}")
    warm_q2()
    warm_o(1)
    a(f"{lab}:")
    if cfg.db_q: db_wait(None, const_hop=1)
    if cfg.diag and cfg.ts_only and "q2_db" in cfg.ts_only:
        ts("q2_db")
    a(f"s_mov_b32 s{sD}, {WS_X + X_HOP}")
    x_poll(sD, XA, cfg.sleep_x)
    ts("q2_got")
    q_core(XA)
    q_final(False)
    ts("q2_pub")
    l = a.label("qp"); ok = a.label("qok")
    setexec(EM4)
    a(f"{l}:")
    for c in range(4):
        a(f"buffer_load_dwordx4 {vr(vQ+4*c,4)}, v{vaQ2}, {sr(sWS,4)}, s{sQ2r} offen offset:{c*256} sc1")
    a("s_waitcnt vmcnt(0)")
    sent_check([vQ+i for i in range(16)], vT0, ok)
    spin_fail(l)
    a(f"{ok}:")
    setexec(FULL)
    ts("q2_gath")
    a(f"""
    s_add_u32 s{sOown}, s{sOown}, {O_L}
    s_add_u32 s{sOcons}, s{sOcons}, {O_L}
    s_add_u32 s{sXr}, s{sXr}, {2*X_HOP}
    s_add_u32 s{sHb}, s{sHb}, 8192
    s_mov_b32 s{sL}, 1
    """)
    s_qk_max()
    s_exp_p()
    if cfg.stats_mid:
        lw3 = a.label("s3"); lw4 = a.label("s4")
        a(f"s_cmp_eq_u32 s{sW}, 3\ns_cbranch_scc1 {lw3}")
        for blk in range(8):
            a(f"s_waitcnt lgkmcnt({7-blk})")
            pv([blk], blk == 0)
        a(f"s_branch {lw4}\n{lw3}:")
        a(f"""
        ds_read_b128 {vr(vU+4,4)}, v{vaSm} offset:{L_LSUM-L_SMAX}
        s_add_u32 s{sB}, s{sT}, s{sL}
        s_add_u32 s{sB}, s{sB}, 1
        v_mov_b32 v{vMc+2}, s{sB}
        """)
        for blk in range(4):
            a(f"s_waitcnt lgkmcnt({8-blk})")
            pv([blk], blk == 0)
        a("s_waitcnt lgkmcnt(0)")
        sum4r(vU + 4)
        a(f"v_mov_b32 v{vMc+1}, v{vU+4}")
        setexec(0xF)
        store_local(f"buffer_store_dwordx4 {vr(vMc,4)}, v{vaStS}, {sr(sWS,4)}, s{sOown} offen")
        setexec(FULL)
        for blk in range(4, 8):
            pv([blk], False)
        a(f"{lw4}:")
        s_out()
    else:
        s_stats_prep()
        a("s_waitcnt lgkmcnt(0)")
        pv(list(range(8)), True)
        s_out()
        s_stats_store(None)
    ts("s2_pub")
    if cfg.diag and cfg.ts_only and "s2_ack" in cfg.ts_only:
        a("s_waitcnt vmcnt(0)")
        ts("s2_ack")
    a(f"s_cmp_lt_u32 s{sM}, 16\ns_cbranch_scc1 L_loopA\ns_branch L_loopB")

    a("L_finalA:")
    g.role = "A"; g.ts = getattr(g, "maxts", g.ts)
    a(f"""
    s_cmp_ge_u32 s{sIdx}, 2
    s_cbranch_scc1 L_fin
    s_cmp_eq_u32 s{sW}, 0
    s_cbranch_scc0 L_fin
    s_lshl_b32 s{sB}, s{sJ}, 1
    s_add_u32 s{sB}, s{sB}, s{sIdx}        ; cb
    s_lshl_b32 s{sC}, s{sB}, 7
    s_add_u32 s{sC}, s{sC}, {WS_X + 3*X_HOP}
    """)
    for nt in range(2):
        for dd in range(4):
            a(f"""
            v_lshlrev_b32 v{vT0}, 3, v{vQd}
            v_add_u32 v{vT0}, {2*dd - 16*nt}, v{vT0}
            v_sub_u32 v{vT0}, v{vT0}, v{vR16}
            v_mov_b32 v{vP+4*nt+dd}, 0
            v_cmp_eq_u32 vcc, 0, v{vT0}
            v_mov_b32 v{vT1}, 0x3f80
            v_cndmask_b32 v{vP+4*nt+dd}, v{vP+4*nt+dd}, v{vT1}, vcc
            v_cmp_eq_u32 vcc, -1, v{vT0}
            v_mov_b32 v{vT1}, 0x3f800000
            v_cndmask_b32 v{vP+4*nt+dd}, v{vP+4*nt+dd}, v{vT1}, vcc
            """)
    a(f"""
    v_lshrrev_b32 v{vT2}, 1, v{vQd}
    v_lshlrev_b32 v{vT2}, 10, v{vT2}
    v_and_b32 v{vT1}, 1, v{vQd}
    v_lshl_add_u32 v{vT2}, v{vT1}, 5, v{vT2}
    v_lshl_add_u32 v{vT2}, v{vR16}, 1, v{vT2}
    s_lshl_b32 s{sB}, s{sB}, 6
    """)
    a(f"s_mov_b32 s{sEx2}, s{sC}\ns_mov_b32 s{sEx2+1}, s{sB}")
    if cfg.db_final: db_wait(None, const_hop=3)
    a(f"s_mov_b32 s{sC}, s{sEx2}\ns_mov_b32 s{sB}, s{sEx2+1}")
    l = a.label("fp"); ok = a.label("fok")
    a(f"{l}:")
    a(f"buffer_load_dwordx4 {vr(vA,4)}, v{vaX}, {sr(sWS,4)}, s{sC} offen sc1")
    a("s_waitcnt vmcnt(0)")
    sent_check([vA+i for i in range(4)], vT0, ok)
    spin_fail(l, cfg.sleep_x)
    a(f"{ok}:")
    ts("fin_got")
    mfma(vAcc, vA, vP, "0"); mfma(vAcc + 4, vA, vP + 4, "0")
    sum4(vU, vAcc, vT3); sum4(vU + 1, vAcc + 4, vT3)
    a(f"""
    v_permlane16_swap_b32 v{vU}, v{vU+1}
    v_add_f32 v{vU}, v{vU}, v{vU+1}
    v_cvt_pk_bf16_f32 v{vU}, v{vU}, v{vU}
    buffer_store_short v{vU}, v{vT2}, {sr(sOUT,4)}, s{sB} offen
    """)
    if not cfg.epoch_early:
        a(f"""
        s_cmp_eq_u32 s{sB}, 0
        s_cbranch_scc0 L_fin
        v_mov_b32 v{vT0}, {WS_EPOCH}
        v_mov_b32 v{vT1}, s{sT}
        """)
        setexec(1)
        a(f"buffer_store_dword v{vT1}, v{vT0}, {sr(sWS,4)}, 0 offen sc1")
        setexec(FULL)

    a("L_fin:")
    if cfg.diag:
        g.role = "E"
        g.tsn["E"].append((NTS - 1, "end"))
        a(f"s_memrealtime s[{sTmp2}:{sTmp2+1}]\ns_waitcnt lgkmcnt(0)\ns_mov_b32 s{sTS+NTS-2}, s{sTmp2}")
        a(f"s_memtime s[{sTmp2}:{sTmp2+1}]\ns_waitcnt lgkmcnt(0)\ns_mov_b32 s{sTS+NTS-1}, s{sTmp2}")
        a(f"s_lshl_b32 s{sB}, s2, 3\ns_add_u32 s{sB}, s{sB}, s{sW}\ns_lshl_b32 s{sB}, s{sB}, 7\ns_add_u32 s{sB}, s{sB}, {WS_DIAG}\nv_mov_b32 v{vT0}, 0")
        setexec(1)
        for i in range(NTS):
            a(f"v_mov_b32 v{vT1}, s{sTS+i}\nbuffer_store_dword v{vT1}, v{vT0}, {sr(sWS,4)}, s{sB} offen offset:{4*i}")
        setexec(FULL)
    if cfg.dbg_span:
        a(f"""
        s_waitcnt vmcnt(0)
        s_cmp_eq_u32 s{sW}, 0
        s_cbranch_scc0 L_nospan
        s_memrealtime s[{sTmp2}:{sTmp2+1}]
        s_load_dwordx2 s[92:93], s[0:1], 80
        s_waitcnt lgkmcnt(0)
        s_mov_b32 s{sA}, s92
        s_and_b32 s{sB}, s93, 0xffff
        s_mov_b32 s{sC}, 256
        s_mov_b32 s{sD}, 0x20000
        v_mov_b32 v{vT0}, 8
        v_mov_b32 v{vT1}, s{sTmp2}
        s_not_b32 s94, s94
        v_mov_b32 v{vT2}, s94
        s_mov_b64 exec, 1
        buffer_atomic_umax v{vT1}, v{vT0}, s[{sA}:{sD}], 0 offen sc1
        buffer_atomic_umax v{vT2}, v{vT0}, s[{sA}:{sD}], 0 offen offset:4 sc1
        s_waitcnt vmcnt(0)
        L_nospan:
        """)
    a("s_waitcnt vmcnt(0)\ns_endpgm")
    a(f"""
    L_abort:
    s_mov_b64 exec, -1
    v_mov_b32 v{vT0}, 0
    v_mov_b32 v{vT1}, 0xdead
    s_load_dwordx2 s[{sTmp2}:{sTmp2+1}], s[0:1], 80
    s_waitcnt lgkmcnt(0)
    s_mov_b32 s{sA}, s{sTmp2}
    s_and_b32 s{sB}, s{sTmp2+1}, 0xffff
    s_mov_b32 s{sC}, 256
    s_mov_b32 s{sD}, 0x20000
    s_mov_b64 exec, 1
    buffer_store_dword v{vT1}, v{vT0}, s[{sA}:{sD}], 0 offen offset:4
    s_waitcnt vmcnt(0)
    L_end:
    s_endpgm
    """)
    for o in g.ool: a(o)
    a("L_codeend:\ns_endpgm")
    lines = a.text().rstrip("\n").split("\n")
    g.ninstr = sum(1 for l in lines if l.startswith("    ") and not l.strip().startswith(";"))
    lines = hazard.pad(lines)
    return g, "\n".join(lines) + "\n"

HEADER = open("interleave_layers__sliding_block_cached__glu_gated_glu__decode.s.ref").read().split("; Override launch")[0]

def full(cfg):
    g, body = build(cfg)
    txt = HEADER
    txt += "; Persistent single-launch kernel: 256 workgroups (one per CU) x 256 threads.\n"
    txt += f"; @launch grid=(256,1,1) block=(256,1,1) lds={LDS_BYTES}\n"
    txt += '.amdgcn_target "amdgcn-amd-amdhsa--gfx950"\n.text\n'
    txt += f".globl {NAME}\n.p2align 8\n.type {NAME},@function\n{NAME}:\n"
    txt += body
    txt += '.section .rodata,"a"\n.p2align 6\n'
    txt += f".amdhsa_kernel {NAME}\n  .amdhsa_next_free_vgpr {256 + g.amax}\n  .amdhsa_next_free_sgpr 102\n  .amdhsa_accum_offset 256\n"
    txt += "  .amdhsa_group_segment_fixed_size 0\n  .amdhsa_kernarg_size 96\n  .amdhsa_user_sgpr_count 2\n  .amdhsa_user_sgpr_kernarg_segment_ptr 1\n  .amdhsa_system_sgpr_workgroup_id_x 1\n.end_amdhsa_kernel\n"
    return g, txt

if __name__ == "__main__":
    cfg = Cfg()
    for kv in sys.argv[2:]:
        k, v = kv.split("="); setattr(cfg, k, eval(v))
    g, txt = full(cfg)
    open(sys.argv[1], "w").write(txt)
    print("vgprs", g.vmax, "agprs", g.amax, "instrs", g.ninstr, "ts", g.tsn)
```

```python
import sys, struct
from asmlib import Asm
import hazard

NAME = "interleave_layers__sliding_block_cached__glu_gated_glu__decode_kernel"

WS_EPOCH = 0x0
WS_Q1 = 0x10000
WS_DB = 0x1c000
WS_Q2 = 0x20000
WS_H  = 0x28000
WS_X  = 0xE0000
X_HOP = 32768
WS_O  = 0x40000
O_STATS = 32768
O_J = O_STATS + 2048
O_L = 8 * O_J
WS_DIAG = 0x100000
WS_SIZE = 0x1000000

L_SMAX = 0
L_LSUM = 64
L_PBUF = 256
L_RED = 2560
R_Q, R_G, R_GZ, R_O, R_D, R_COL, R_COL2 = [L_RED + 1024 * i for i in range(7)]
L_QG = 10240
L_X0 = 14336
L_K = 16384
L_V = L_K + 65536
L_WQ = L_V + 65536
L_XI = L_V
LDS_BYTES = 163840
W_GATE, W_UP, W_DN = 0, 4096, 8192

C_SCALE = 0.08838834764831845 * 1.4426950408889634
def f2u(x): return struct.unpack("<I", struct.pack("<f", x))[0]

class Cfg:
    nKA = 8
    nKb1 = 1
    pace = 8
    gpts = (1, 2, 4)
    diag = False
    ts_only = None
    ts_issue = False
    force_global = False
    budget = 400000
    prefetch_code = True
    sleep_x = 0
    sleep_x0 = 0
    sleep_o = 0
    sl_nt = True
    pf_pol = ""
    pf_pol_f = ""
    pf_pol_o = " nt"
    pf_which = "q"
    dbg_span = False
    counters = False
    db_early = True
    doorbell = True
    warm = True
    pf_stream = ""
    pf_pos = None
    pf_early = False
    pf_spol = " nt"
    wsA = False
    wsB = False
    junk_dirty = 0
    epoch_early = True
    w_interB = "gu"
    w_inter = False
    v3_early = False
    warm_by_B = True
    o_spec = True
    db_g = True
    db_q = True
    db_final = False
    stats_mid = True
    pf_down = False
    pf_down_pol = " nt"
    warm_out = False
    line_pf = True
    const_tag = False
    no_clear0 = False
    clr0_late = False

def vr(b, n=1): return f"v[{b}:{b+n-1}]" if n > 1 else f"v{b}"
def ar(b, n=1): return f"a[{b}:{b+n-1}]" if n > 1 else f"a{b}"
def sr(b, n=1): return f"s[{b}:{b+n-1}]" if n > 1 else f"s{b}"

sJ, sM, sW, sIdx, sL = 3, 4, 5, 6, 7
sWS, sKS, sVS, sWQ, sW2, sUP, sDN, sX0, sOUT = 8, 12, 16, 20, 24, 28, 32, 36, 40
sT, sTX, sLocal, sBud = 44, 45, 46, 47
sMDIAG = 48
sM4 = 50
sM2 = 52
sMN1 = 54
sMEV = 56
sEx = 58
sA, sB, sC, sD = 60, 61, 62, 63
sKV, sRot = 64, 65
sOown, sOcons, sXw, sXr, sHb, sQ2w, sQ2r = 66, 67, 68, 69, 70 - 70 + 96, 97, 98
sXcc = 99
sWb2, sWst2 = 68, 60
sWb, sWst = 59, 69
sKS2 = sKS
sDBtag = 59
sEx2 = 50
sDBw, sDBr = 64, 65
sXI = 58
sTmp2 = 100
sTS = 70
NTS = 26

class G:
    pass

def build(cfg):
    g = G(); a = Asm(); g.a = a
    g.tsn = {"C": [], "A": [], "B": [], "E": []}; g.role = "C"; g.ts = 0; g.cnts = {}; g.cnt_names = []
    nv = [1]
    def valloc(n=1, align=1):
        nv[0] = (nv[0] + align - 1) // align * align
        r = nv[0]; nv[0] += n
        assert nv[0] <= 256
        return r
    vLane = valloc(); vR16 = valloc(); vQd = valloc()
    vT0 = valloc(); vT1 = valloc(); vT2 = valloc(); vT3 = valloc()
    vOnes = valloc(4, 4)
    vQ = valloc(16, 4)
    vA = valloc(40, 4)
    vAcc = valloc(16, 4)
    vS = valloc(16, 4)
    vP = valloc(32, 4)
    vJ = valloc()
    vHop = valloc(8, 4)
    vU = valloc(16, 4)
    vSt = valloc(8, 4)
    vW = valloc(2, 2)
    vCs = valloc(); vCg = valloc(); vCu = valloc()
    vRes = valloc(); vResF = valloc()
    vQ1d = valloc(2, 2); vQ1a = valloc()
    vMc = valloc(4, 4)
    vaX = valloc(); vaXg = valloc(); vaXr = valloc(); vaStQ = valloc(); vaClrO = valloc(); vaO0 = valloc(); vaO1 = valloc(); vaS0 = valloc(); vaS1 = valloc(); vaQ2 = valloc(); vaH = valloc()
    vaPw = valloc(); vaPr = valloc(); vaSm = valloc(); vaSmW = valloc(); vaRedW = valloc(); vaRedZ = valloc()
    vaFinW = valloc(); vaFinZ = valloc(); vaFinQZ = valloc(); vaFinO = valloc()
    vaStH = valloc(); vaStX = valloc(); vaStO = valloc(); vaStS = valloc(); vaResU = valloc()
    vWs = valloc()
    vKs = valloc(4); vVs = valloc(2); vVr = valloc(2); vKr = valloc(4)
    g.vmax = nv[0]
    aK, aV, aWq, aW2, aWd = 0, 64, 128, 144, 176
    g.amax = 192

    FULL = (1 << 64) - 1
    def ts(name):
        if not cfg.diag: return
        if cfg.ts_only and name not in cfg.ts_only and name not in ("start", "setup", "issued"): return
        i = g.ts; g.ts += 1; g.maxts = max(getattr(g, "maxts", 0), g.ts)
        assert i < NTS - 3, name
        g.tsn[g.role].append((i, name))
        if name == "start":
            return
        if name == "issued":
            g.i_issued = i
            a(f"s_memtime s[{sTmp2}:{sTmp2+1}]\ns_waitcnt lgkmcnt(0)\ns_mov_b32 s92, s{sTmp2}")
            return
        if name == "setup":
            a(f"s_mov_b32 s{sTS}, s90\ns_mov_b32 s{sTS+NTS-3}, s91")
            if cfg.ts_issue: a(f"s_mov_b32 s{sTmp2}, s92")
            for z in list(range(1, NTS - 3)) + [NTS - 2, NTS - 1]: a(f"s_mov_b32 s{sTS+z}, 0")
            if cfg.ts_issue: a(f"s_mov_b32 s{sTS+g.i_issued}, s{sTmp2}")
        if cfg.ts_only and name not in cfg.ts_only:
            return
        a(f"s_memtime s[{sTmp2}:{sTmp2+1}]\ns_waitcnt lgkmcnt(0)\ns_mov_b32 s{sTS+i}, s{sTmp2}")
    def ts_dyn(name0, name1):
        if not cfg.diag: return
        if cfg.ts_only and name0 not in cfg.ts_only: return
        i = g.ts; g.ts += 2; g.maxts = max(getattr(g, "maxts", 0), g.ts)
        assert i + 1 < NTS - 3, name0
        g.tsn[g.role].append((i, name0)); g.tsn[g.role].append((i + 1, name1))
        if cfg.ts_only and name0 not in cfg.ts_only: return
        a(f"""s_memtime s[{sTmp2}:{sTmp2+1}]
        s_waitcnt lgkmcnt(0)
        s_cmp_eq_u32 s{sL}, 0
        s_cselect_b32 s{sTS+i}, s{sTmp2}, s{sTS+i}
        s_cselect_b32 s{sTS+i+1}, s{sTS+i+1}, s{sTmp2}""")

    def cnt(name):
        if not (cfg.diag and cfg.counters): return
        key = (g.role, name)
        if key not in g.cnts:
            i = g.ts; g.ts += 1; g.maxts = max(getattr(g, "maxts", 0), g.ts)
            assert i < NTS - 3, name
            g.cnts[key] = i; g.cnt_names.append((g.role, i, name))
        a(f"s_add_u32 s{sTS+g.cnts[key]}, s{sTS+g.cnts[key]}, 1")

    def setexec(mask):
        if mask == FULL: a("s_mov_b64 exec, -1")
        elif isinstance(mask, str): a(f"s_mov_b64 exec, {mask}")
        elif mask < 65 or mask in (0xFFFF, 0xF, 0xFF):
            a(f"s_mov_b64 exec, 0x{mask:x}" if mask >= 65 else f"s_mov_b64 exec, {mask}")
        else:
            a(f"s_mov_b32 exec_lo, 0x{mask & 0xFFFFFFFF:x}\ns_mov_b32 exec_hi, 0x{mask >> 32:x}")
    EM4, EM2, EMEV = f"s[{sM4}:{sM4+1}]", f"s[{sM2}:{sM2+1}]", f"s[{sMEV}:{sMEV+1}]"

    def srd(dst, ptr_s, size):
        a(f"s_mov_b32 s{dst}, s{ptr_s}\ns_and_b32 s{dst+1}, s{ptr_s+1}, 0xffff\ns_mov_b32 s{dst+2}, 0x{size:x}\ns_mov_b32 s{dst+3}, 0x20000")

    def mfma(d, A, B, C=None):
        f = lambda x: x if isinstance(x, str) else vr(x, 4)
        c = f(d) if C is None else C
        a(f"v_mfma_f32_16x16x32_bf16 {f(d)}, {f(A)}, {f(B)}, {c}")

    def spin_fail(lbl_retry, sleep=0):
        if sleep: a(f"s_sleep {sleep}")
        a(f"s_sub_u32 s{sBud}, s{sBud}, 1\ns_cbranch_scc0 {lbl_retry}\ns_branch L_abort")
    def interleave(mf, va, start, per=2):
        va = list(va)
        for i, m in enumerate(mf):
            a(m)
            if i >= start:
                for _ in range(per):
                    if va: a(va.pop(0))
        for v in va: a(v)
    def mf(d, A, B, C=None):
        f = lambda x: x if isinstance(x, str) else vr(x, 4)
        return f"v_mfma_f32_16x16x32_bf16 {f(d)}, {f(A)}, {f(B)}, {f(d) if C is None else C}"

    def sent_max(regs, tmp):
        rs = list(regs)
        if len(rs) == 1: return rs[0]
        if len(rs) == 2:
            a(f"v_max_u32 v{tmp}, v{rs[0]}, v{rs[1]}"); rs = []
        else:
            a(f"v_max3_u32 v{tmp}, v{rs[0]}, v{rs[1]}, v{rs[2]}"); rs = rs[3:]
        while len(rs) >= 2:
            a(f"v_max3_u32 v{tmp}, v{tmp}, v{rs[0]}, v{rs[1]}"); rs = rs[2:]
        if rs: a(f"v_max_u32 v{tmp}, v{tmp}, v{rs[0]}")
        return tmp
    def sent_check(regs, tmp, lbl_ok):
        cur = sent_max(regs, tmp)
        a(f"v_cmp_eq_u32 vcc, -1, v{cur}\ns_cbranch_vccz {lbl_ok}")

    g.ool = []
    def store_local(instr):
        if cfg.force_global:
            a(instr + " sc1"); return
        l1 = a.label("stg"); l2 = a.label("std")
        a(f"s_cmp_eq_u32 s{sLocal}, 0\ns_cbranch_scc1 {l1}")
        a(instr)
        a(f"{l2}:")
        g.ool.append(f"{l1}:\n{instr} sc1\ns_branch {l2}")

    def dpp(op, d, s0, s1, ctrl, rm="0xf", bm="0xf"):
        if s1 is None: a(f"{op}_dpp v{d}, v{s0} {ctrl} row_mask:{rm} bank_mask:{bm}")
        else: a(f"{op}_dpp v{d}, v{s0}, v{s1} {ctrl} row_mask:{rm} bank_mask:{bm}")
    def row_reduce(op, v, steps=(8, 4, 2, 1)):
        for n in steps: dpp(op, v, v, v, f"row_ror:{n}")
    def xquad_reduce(op, v, tmp):
        a(f"v_mov_b32 v{tmp}, v{v}\nv_permlane32_swap_b32 v{v}, v{tmp}\n{op} v{v}, v{v}, v{tmp}")
        a(f"v_mov_b32 v{tmp}, v{v}\nv_permlane16_swap_b32 v{v}, v{tmp}\n{op} v{v}, v{v}, v{tmp}")
    def sum4(dst, b, tmp):
        a(f"v_add_f32 v{dst}, v{b}, v{b+1}\nv_add_f32 v{tmp}, v{b+2}, v{b+3}\nv_add_f32 v{dst}, v{dst}, v{tmp}")

    P = sTS
    EARLY = ""
    if cfg.dbg_span:
        EARLY = f"s_memrealtime s[94:95]"
    if cfg.diag:
        EARLY = f"s_memrealtime s[{sTmp2}:{sTmp2+1}]\ns_waitcnt lgkmcnt(0)\ns_mov_b32 s91, s{sTmp2}\ns_memtime s[{sTmp2}:{sTmp2+1}]\ns_waitcnt lgkmcnt(0)\ns_mov_b32 s90, s{sTmp2}"
    SLN = " nt" if cfg.sl_nt else ""
    a(f"""
    s_cmp_ge_u32 s2, 256
    s_cbranch_scc1 L_end
    {EARLY}
    s_load_dwordx4 s[{P+6}:{P+9}], s[0:1], 16          ; V, wq     (76..79)
    s_load_dwordx4 s[{P+2}:{P+5}], s[0:1], 0           ; x, K      (72..75)
    s_load_dwordx2 s[{P+18}:{P+19}], s[0:1], 88        ; ws        (88..89)
    s_load_dwordx2 s[{P}:{P+1}], s[0:1], 32            ; wo        (70..71)
    s_load_dwordx4 s[{P+10}:{P+13}], s[0:1], 48
    s_load_dwordx4 s[{P+14}:{P+17}], s[0:1], 64
    v_lshrrev_b32 v{vT0}, 6, v0
    v_and_b32 v{vLane}, 63, v0
    """)
    if cfg.prefetch_code:
        a(f"""
        s_getpc_b64 s[{sTmp2}:{sTmp2+1}]
        L_pfbase:
        v_readfirstlane_b32 s{sW}, v{vT0}
        v_lshlrev_b32 v{vT1}, 7, v0
        s_mov_b32 s{sB}, (L_codeend - L_pfbase)
        v_cmp_gt_u32 vcc, s{sB}, v{vT1}
        s_and_b32 s{sJ}, s2, 7
        s_and_saveexec_b64 s[{sEx}:{sEx+1}], vcc
        s_cbranch_execz L_nopf
        global_load_dword v{vU+15}, v{vT1}, s[{sTmp2}:{sTmp2+1}]
        L_nopf:
        s_mov_b64 exec, s[{sEx}:{sEx+1}]
        """)
    else:
        a(f"s_and_b32 s{sJ}, s2, 7\nv_readfirstlane_b32 s{sW}, v{vT0}")
    a(f"""
    s_lshr_b32 s{sM}, s2, 3
    v_lshrrev_b32 v{vT2}, 1, v{vLane}
    v_lshlrev_b32 v{vT2}, 13, v{vT2}
    v_and_b32 v{vT3}, 1, v{vLane}
    v_lshl_add_u32 v{vT2}, v{vT3}, 4, v{vT2}
    v_lshrrev_b32 v{vT0}, 3, v{vLane}
    v_lshlrev_b32 v{vT0}, 13, v{vT0}
    v_and_b32 v{vT3}, 7, v{vLane}
    v_lshl_add_u32 v{vT0}, v{vT3}, 7, v{vT0}
    s_lshl_b32 s{sC}, s{sJ}, 10
    s_lshl_b32 s{sA}, s{sM}, 2
    s_add_u32 s{sA}, s{sA}, s{sW}
    s_lshl_b32 s{sA}, s{sA}, 15
    s_add_u32 s{sA}, s{sA}, s{sC}
    s_lshl_b32 s{sB}, s{sW}, 20
    s_add_u32 s{sB}, s{sB}, s{sC}
    s_lshl_b32 s{sC}, s{sM}, 5
    s_add_u32 s{sB}, s{sB}, s{sC}
    s_lshl_b32 s{sC}, s{sW}, 12
    s_add_u32 s{sC}, s{sC}, {L_WQ}
    s_mov_b32 s{sWQ+2}, 0x400000
    s_mov_b32 s{sWQ+3}, 0x20000
    s_waitcnt lgkmcnt(0)
    s_mov_b32 s{sWQ}, s{P+8}
    s_and_b32 s{sWQ+1}, s{P+9}, 0xffff
    """)
    if cfg.line_pf and "q" in cfg.pf_which:
        setexec(0xFFFFFFFF)
        a(f"buffer_load_dword v{vJ}, v{vT0}, {sr(sWQ,4)}, s{sA} offen{cfg.pf_pol}")
        setexec(FULL)
    for u in range(4):
        a(f"""
        s_mov_b32 m0, s{sC}
        s_add_u32 s{sC}, s{sC}, 1024
        buffer_load_dwordx4 v{vT2}, {sr(sWQ,4)}, s{sB} offen{SLN} lds
        s_add_u32 s{sB}, s{sB}, {32*8192}
        """)
    XA = vA + 8
    a(f"""
    v_and_b32 v{vR16}, 15, v0
    v_lshrrev_b32 v{vQd}, 4, v{vLane}
    s_and_b32 s{sIdx}, s{sM}, 15
    s_and_b32 s{sRot}, s{sM}, 7
    s_lshl_b32 s{sRot}, s{sRot}, 1
    s_lshr_b32 s{sB}, s{sM}, 4
    s_lshl_b32 s{sB}, s{sB}, 3
    s_add_u32 s{sB}, s{sB}, s{sJ}
    s_lshl_b32 s{sB}, s{sB}, 23
    s_lshl_b32 s{sC}, s{sIdx}, 16
    s_add_u32 s{sKV}, s{sB}, s{sC}
    s_add_u32 s{sKV}, s{sKV}, 0x700000
    v_lshlrev_b32 v{vT1}, 4, v{vLane}          ; lane*16
    """)
    srd(sKS, P + 4, 0x8000000)
    for i in range(4):
        a(f"""
        v_add_u32 v{vT3}, {4*i}, v{vQd}
        v_xor_b32 v{vT3}, v{vT3}, v{vR16}
        v_lshlrev_b32 v{vT3}, 4, v{vT3}
        v_lshl_add_u32 v{vKs+i}, v{vQd}, 8, v{vT3}
        """)
    srd(sWS, P + 18, WS_SIZE)
    if cfg.const_tag: a(f"s_mov_b32 s{sT}, 0x12345670")
    else: a(f"s_load_dword s{sT}, s[{P+18}:{P+19}], {WS_EPOCH}")
    srd(sX0, P + 2, 2048)
    a(f"s_cmp_eq_u32 s{sW}, 0\ns_cbranch_scc0 L_nox0")
    a(f"""
    s_mov_b32 m0, {L_X0}
    s_nop 0
    buffer_load_dwordx4 v{vT1}, {sr(sX0,4)}, 0 offen lds
    buffer_load_dwordx4 v{vT1}, {sr(sX0,4)}, 0 offen offset:1024 lds
    L_nox0:
    """)
    a(f"""
    s_mul_i32 s{sOown}, s{sJ}, {O_J}
    s_lshr_b32 s{sB}, s{sM}, 4
    s_lshl_b32 s{sB}, s{sB}, 14
    s_add_u32 s{sOown}, s{sOown}, s{sB}
    s_lshl_b32 s{sB}, s{sIdx}, 4
    s_add_u32 s{sOown}, s{sOown}, s{sB}
    s_add_u32 s{sOown}, s{sOown}, {WS_O}
    s_lshl_b32 s{sC}, s{sJ}, 11
    s_lshl_b32 s{sD}, s{sIdx}, 7
    s_add_u32 s{sC}, s{sC}, s{sD}
    s_add_u32 s{sXw}, s{sC}, {WS_X}
    s_mov_b32 s{sXr}, {WS_X}
    s_lshl_b32 s{sHb}, s{sJ}, 10
    s_add_u32 s{sHb}, s{sHb}, {WS_H}
    s_lshl_b32 s{sQ2w}, s{sJ}, 11
    s_add_u32 s{sQ2r}, s{sQ2w}, {WS_Q2}
    ; producer m: h = m>>3, c = (m>>1)&3, e0 = 2*(m&1)  ->  c*256 + e0*64 + h*16
    s_lshr_b32 s{sB}, s{sM}, 1
    s_and_b32 s{sB}, s{sB}, 3
    s_lshl_b32 s{sB}, s{sB}, 8
    s_add_u32 s{sQ2w}, s{sQ2r}, s{sB}
    s_and_b32 s{sB}, s{sM}, 1
    s_lshl_b32 s{sB}, s{sB}, 7
    s_add_u32 s{sQ2w}, s{sQ2w}, s{sB}
    s_lshr_b32 s{sB}, s{sM}, 3
    s_lshl_b32 s{sB}, s{sB}, 4
    s_add_u32 s{sQ2w}, s{sQ2w}, s{sB}
    s_lshr_b32 s{sB}, s{sM}, 4
    s_lshl_b32 s{sB}, s{sB}, 10
    s_add_u32 s{sQ2r}, s{sQ2r}, s{sB}
    """)
    if cfg.no_clear0: a("s_branch L_clr_done")
    a(f"""
    v_mov_b32 v{vU}, -1
    v_mov_b32 v{vU+1}, -1
    v_mov_b32 v{vU+2}, -1
    v_mov_b32 v{vU+3}, -1
    v_bfe_u32 v{vT3}, v{vLane}, 1, 1
    v_lshlrev_b32 v{vT3}, 10, v{vT3}
    v_and_b32 v{vT0}, 1, v{vLane}
    v_lshl_add_u32 v{vT3}, v{vT0}, 6, v{vT3}
    v_add_u32 v{vT0}, s{sQ2w}, v{vT3}
    s_cmp_lt_u32 s{sM}, 16
    s_cbranch_scc0 L_clr_B
    s_cmp_eq_u32 s{sW}, 1
    s_cbranch_scc0 L_clr_A2
    """)
    setexec(0xF)
    a(f"""
    s_branch L_clr_st
    L_clr_A2:
    s_cmp_eq_u32 s{sW}, 2
    s_cbranch_scc0 L_clr_done
    s_xor_b32 s{sC}, s{sXw}, 0x2000
    s_add_u32 s{sC}, s{sC}, 16384
    v_mov_b32 v{vT0}, s{sXw}
    v_mov_b32 v{vT1}, s{sC}
    v_bfe_u32 v{vT3}, v{vLane}, 3, 1
    v_cmp_eq_u32 vcc, 1, v{vT3}
    v_cndmask_b32 v{vT0}, v{vT0}, v{vT1}, vcc
    v_lshrrev_b32 v{vT3}, 4, v{vLane}
    v_lshlrev_b32 v{vT3}, 15, v{vT3}
    v_and_b32 v{vT1}, 7, v{vLane}
    v_lshl_add_u32 v{vT3}, v{vT1}, 4, v{vT3}
    v_add_u32 v{vT0}, v{vT0}, v{vT3}
    s_branch L_clr_st
    L_clr_B:
    s_cmp_eq_u32 s{sW}, 2
    s_cbranch_scc0 L_clr_done
    """)
    setexec(0xF)
    a(f"""
    s_cmp_ge_u32 s{sIdx}, 14
    s_cbranch_scc1 L_clr_st
    s_lshl_b32 s{sD}, s{sIdx}, 6
    s_add_u32 s{sC}, s{sHb}, s{sD}
    """)
    setexec(0xFF0)
    a(f"""
    v_bfe_u32 v{vT3}, v{vLane}, 3, 1
    v_lshlrev_b32 v{vT3}, 13, v{vT3}
    v_and_b32 v{vT1}, 3, v{vLane}
    v_lshl_add_u32 v{vT3}, v{vT1}, 4, v{vT3}
    v_add_u32 v{vT0}, s{sC}, v{vT3}
    """)
    setexec(0xFFF)
    a("L_clr_st:")
    a(f"buffer_store_dwordx4 {vr(vU,4)}, v{vT0}, {sr(sWS,4)}, 0 offen sc1")
    setexec(FULL)
    a("L_clr_done:")
    def emit_wpf(qWO, qGT, reload_ptrs):
        n = 0
        a(f"s_lshl_b32 s{sD}, s{sM}, 2\ns_add_u32 s{sD}, s{sD}, s{sW}               ; q = 4m + w")
        if reload_ptrs:
            a(f"""
            s_load_dwordx2 s[{qWO}:{qWO+1}], s[0:1], 32
            s_load_dwordx2 s[{qGT}:{qGT+1}], s[0:1], 48
            s_waitcnt lgkmcnt(0)
            s_and_b32 s{qWO+1}, s{qWO+1}, 0xffff
            s_mov_b32 s{qWO+2}, 0x400000
            s_and_b32 s{qGT+1}, s{qGT+1}, 0xffff
            s_mov_b32 s{qGT+2}, {512*1792*2}
            """)
        if "o" in cfg.pf_stream:
            a(f"""
            v_lshlrev_b32 v{vT0}, 7, v{vLane}
            s_lshl_b32 s{sB}, s{sJ}, 19
            s_lshl_b32 s{sC}, s{sD}, 12
            s_add_u32 s{sB}, s{sB}, s{sC}
            """)
            setexec(0xFFFFFFFF)
            a(f"buffer_load_dword v{vJ}, v{vT0}, {sr(qWO,4)}, s{sB} offen{cfg.pf_spol}")
            setexec(FULL); n += 1
        if "g" in cfg.pf_stream or "u" in cfg.pf_stream:
            a(f"""
            v_mul_u32_u24 v{vT0}, 52, v{vLane}
            v_lshrrev_b32 v{vT0}, 8, v{vT0}
            v_mul_u32_u24 v{vT1}, 5, v{vT0}
            v_sub_u32 v{vT1}, v{vLane}, v{vT1}
            v_mul_u32_u24 v{vT0}, 3584, v{vT0}
            v_lshl_add_u32 v{vT0}, v{vT1}, 7, v{vT0}
            s_mul_i32 s{sB}, s{sD}, {4*3584}
            s_mul_i32 s{sC}, s{sJ}, 448
            s_and_b32 s{sC}, s{sC}, 0xffffff80
            s_add_u32 s{sB}, s{sB}, s{sC}
            """)
            setexec((1 << 20) - 1)
            if "g" in cfg.pf_stream:
                a(f"buffer_load_dword v{vJ}, v{vT0}, {sr(qGT,4)}, s{sB} offen{cfg.pf_spol}"); n += 1
            if "u" in cfg.pf_stream:
                a(f"buffer_load_dword v{vJ}, v{vT0}, {sr(sUP,4)}, s{sB} offen{cfg.pf_spol}"); n += 1
            setexec(FULL)
        if "d" in cfg.pf_stream:
            a(f"""
            v_lshlrev_b32 v{vT0}, 7, v{vLane}
            s_min_u32 s{sB}, s{sD}, 111
            s_lshl_b32 s{sB}, s{sB}, 11
            s_mul_i32 s{sC}, s{sJ}, {224*1024}
            s_add_u32 s{sB}, s{sB}, s{sC}
            """)
            setexec(0xFFFF)
            a(f"buffer_load_dword v{vJ}, v{vT0}, {sr(sDN,4)}, s{sB} offen{cfg.pf_spol}")
            setexec(FULL); n += 1
        return n

    def page_off(t, dst):
        a(f"""
        s_add_u32 s{dst}, s{sW}, s{sRot}
        s_add_u32 s{dst}, s{dst}, {4*t}
        s_and_b32 s{dst}, s{dst}, 15
        s_lshl_b32 s{dst}, s{dst}, 12
        s_add_u32 s{dst}, s{dst}, s{sKV}
        """)
    def k_page(t):
        page_off(t, sD)
        a(f"s_lshl_b32 s{sC}, s{sW}, 14\ns_add_u32 s{sC}, s{sC}, {L_K + t*4096}\ns_mov_b32 m0, s{sC}\ns_nop 0")
        for ii in range(4):
            a(f"buffer_load_dwordx4 v{vKs+ii}, {sr(sKS,4)}, s{sD} offen offset:{ii*1024} nt lds")
    nKpA = cfg.nKA // 4
    for t in range(cfg.nKb1): k_page(t)
    nPFe = 0
    if cfg.pf_stream and cfg.pf_early:
        srd(sVS, P, 0x400000)
        srd(sOUT, P + 10, 512 * 1792 * 2)
        srd(sUP, P + 12, 512 * 1792 * 2)
        srd(sDN, P + 14, 1792 * 512 * 2)
        nPFe = emit_wpf(sVS, sOUT, False)
    ts("start")
    if cfg.ts_issue: ts("issued")

    srd(sVS, P + 6, 0x8000000)
    srd(sUP, P + 12, 512 * 1792 * 2)
    srd(sDN, P + 14, 1792 * 512 * 2)
    srd(sOUT, P + 16, 2048)
    a(f"""
    s_cmp_lt_u32 s{sM}, 16
    s_cselect_b32 s{sW2}, s{P}, s{P+10}
    s_cselect_b32 s{sW2+1}, s{P+1}, s{P+11}
    s_mov_b32 s{sW2+2}, {512*1792*2}
    s_cselect_b32 s{sW2+2}, 0x400000, s{sW2+2}
    s_and_b32 s{sW2+1}, s{sW2+1}, 0xffff
    s_mov_b32 s{sW2+3}, 0x20000
    s_mov_b32 s{sBud}, {cfg.budget}
    s_getreg_b32 s{sXcc}, hwreg(HW_REG_XCC_ID, 0, 4)
    s_mov_b32 s{sMDIAG}, 0x00ff00ff
    s_mov_b32 s{sMDIAG+1}, 0xff00ff00
    s_mov_b32 s{sM4}, 0x000f000f
    s_mov_b32 s{sM4+1}, 0x000f000f
    s_mov_b32 s{sM2}, 0x00030003
    s_mov_b32 s{sM2+1}, 0x00030003
    s_mov_b32 s{sMN1}, 0x00020002
    s_mov_b32 s{sMN1+1}, 0x00020002
    s_mov_b32 s{sMEV}, 0x55555555
    s_mov_b32 s{sMEV+1}, 0x55555555
    s_mov_b32 s{sL}, 0
    s_mul_i32 s{sOcons}, s{sJ}, {O_J}
    s_lshl_b32 s{sB}, s{sW}, 12
    s_add_u32 s{sOcons}, s{sOcons}, s{sB}
    s_add_u32 s{sOcons}, s{sOcons}, {WS_O}
    """)
    for i in range(4): a(f"v_mov_b32 v{vOnes+i}, 0x3f803f80")
    for i in range(16): a(f"v_mov_b32 v{vQ+i}, 0")
    for i in range(8): a(f"v_mov_b32 v{vHop+i}, 0")
    a(f"v_mov_b32 v{vQ1a}, 0\nv_mov_b32 v{vQ1d}, 0\nv_mov_b32 v{vQ1d+1}, 0")
    h3 = vU; qh = vU + 1; ql = vU + 2
    a(f"""
    v_and_b32 v{h3}, 3, v{vR16}
    v_lshrrev_b32 v{qh}, 1, v{vQd}
    v_and_b32 v{ql}, 1, v{vQd}
    v_and_b32 v{vT0}, 7, v{vR16}
    v_lshlrev_b32 v{vT0}, 11, v{vT0}
    v_lshrrev_b32 v{vT1}, 3, v{vR16}
    v_lshl_add_u32 v{vT0}, v{vT1}, 6, v{vT0}
    v_lshl_add_u32 v{vaX}, v{vQd}, 4, v{vT0}
    s_lshr_b32 s{sA}, s{sXcc}, 2
    v_bfe_u32 v{vT1}, v{vaX}, 13, 1
    v_cmp_ne_u32 vcc, s{sA}, v{vT1}
    v_xor_b32 v{vT1}, 0x2000, v{vaX}
    v_add_u32 v{vT1}, 16384, v{vT1}
    v_cndmask_b32 v{vaX}, v{vaX}, v{vT1}, vcc
    v_lshrrev_b32 v{vT0}, 3, v{vLane}
    v_and_b32 v{vT1}, 2, v{vT0}
    v_and_b32 v{vT2}, 7, v{vLane}
    v_xor_b32 v{vT1}, v{vT1}, v{vT2}
    v_lshlrev_b32 v{vT1}, 4, v{vT1}
    v_lshl_add_u32 v{vT0}, v{vT0}, 11, v{vT1}
    s_lshl_b32 s{sB}, s{sW}, 9
    v_add_u32 v{vaXg}, s{sB}, v{vT0}
    v_bfe_u32 v{vT1}, v{vaXg}, 13, 1
    v_cmp_ne_u32 vcc, s{sA}, v{vT1}
    v_xor_b32 v{vT1}, 0x2000, v{vaXg}
    v_add_u32 v{vT1}, 16384, v{vT1}
    v_cndmask_b32 v{vaXg}, v{vaXg}, v{vT1}, vcc
    v_and_b32 v{vT0}, 7, v{vR16}
    v_lshrrev_b32 v{vT1}, 3, v{vR16}
    v_lshl_add_u32 v{vT1}, v{vT1}, 2, v{vQd}
    v_and_b32 v{vT2}, 2, v{vT0}
    v_xor_b32 v{vT1}, v{vT1}, v{vT2}
    v_lshlrev_b32 v{vT1}, 4, v{vT1}
    v_lshl_add_u32 v{vT0}, v{vT0}, 7, v{vT1}
    s_lshl_b32 s{sXI}, s{sW}, 12
    s_add_u32 s{sXI}, s{sXI}, {L_XI}
    v_add_u32 v{vaXr}, s{sXI}, v{vT0}
    v_lshlrev_b32 v{vaO0}, 4, v{vLane}
    v_add_u32 v{vaO1}, 16384, v{vaO0}
    v_lshl_add_u32 v{vT0}, v{vQd}, 2, v{vR16}
    v_and_b32 v{vT0}, 15, v{vT0}
    v_lshlrev_b32 v{vT0}, 4, v{vT0}
    s_mul_i32 s{sB}, s{sW}, 3840
    s_sub_u32 s{sB}, {O_STATS}, s{sB}
    v_add_u32 v{vaS0}, s{sB}, v{vT0}
    v_add_u32 v{vaS1}, 1024, v{vaS0}
    v_lshlrev_b32 v{vT0}, 6, v{vQd}
    v_lshl_add_u32 v{vaQ2}, v{h3}, 4, v{vT0}
    v_lshlrev_b32 v{vT0}, 10, v{ql}
    v_lshrrev_b32 v{vT1}, 3, v{vR16}
    v_lshl_add_u32 v{vT0}, v{vT1}, 6, v{vT0}
    v_and_b32 v{vT1}, 7, v{vR16}
    v_lshl_add_u32 v{vaStQ}, v{vT1}, 1, v{vT0}
    v_lshlrev_b32 v{vT0}, 12, v{h3}
    v_lshl_add_u32 v{vT0}, v{vQd}, 10, v{vT0}
    v_bfe_u32 v{vT1}, v{vLane}, 2, 2
    v_lshl_add_u32 v{vaClrO}, v{vT1}, 8, v{vT0}
    v_and_b32 v{vT0}, 1, v{vR16}
    v_lshlrev_b32 v{vT0}, 5, v{vT0}
    v_lshl_add_u32 v{vT0}, v{qh}, 6, v{vT0}
    v_lshl_add_u32 v{vT0}, v{ql}, 4, v{vT0}
    s_lshl_b32 s{sB}, s{sW}, 7
    v_add_u32 v{vaH}, s{sB}, v{vT0}
    v_lshlrev_b32 v{vT0}, 6, v{vQd}
    v_lshl_add_u32 v{vT0}, v{h3}, 4, v{vT0}
    v_add_u32 v{vaPr}, {L_PBUF}, v{vT0}
    v_lshrrev_b32 v{vT1}, 2, v{vR16}
    v_lshl_add_u32 v{vT1}, v{vT1}, 9, v{vaPr}
    s_lshr_b32 s{sB}, s{sW}, 1
    s_lshl_b32 s{sB}, s{sB}, 8
    s_and_b32 s{sC}, s{sW}, 1
    s_lshl_b32 s{sC}, s{sC}, 3
    s_add_u32 s{sB}, s{sB}, s{sC}
    v_add_u32 v{vaPw}, s{sB}, v{vT1}
    v_lshlrev_b32 v{vT0}, 4, v{h3}
    v_add_u32 v{vaSm}, {L_SMAX}, v{vT0}
    s_lshl_b32 s{sB}, s{sW}, 2
    v_add_u32 v{vaSmW}, s{sB}, v{vaSm}
    v_lshlrev_b32 v{vT0}, 4, v{vLane}
    v_add_u32 v{vaRedW}, s{sB}, v{vT0}
    v_and_b32 v{vT1}, 1, v{vR16}
    v_lshl_add_u32 v{vT1}, v{qh}, 1, v{vT1}
    v_lshlrev_b32 v{vT1}, 4, v{vT1}
    v_add_u32 v{vaRedZ}, s{sB}, v{vT1}
    v_lshl_add_u32 v{vT0}, v{ql}, 5, v{vR16}
    v_lshlrev_b32 v{vaFinW}, 4, v{vT0}
    v_lshlrev_b32 v{vaFinZ}, 5, v{ql}
    v_lshlrev_b32 v{vT0}, 9, v{ql}
    v_add_u32 v{vaFinQZ}, 256, v{vT0}
    v_lshlrev_b32 v{vaFinO}, 4, v{vLane}
    v_lshlrev_b32 v{vT0}, 5, v{ql}
    v_lshl_add_u32 v{vaStH}, v{vR16}, 1, v{vT0}
    v_lshlrev_b32 v{vT0}, 6, v{ql}
    v_lshl_add_u32 v{vT0}, v{qh}, 5, v{vT0}
    v_lshl_add_u32 v{vaStX}, v{vR16}, 1, v{vT0}
    v_lshlrev_b32 v{vT0}, 12, v{vR16}
    v_lshl_add_u32 v{vT0}, v{vQd}, 8, v{vT0}
    s_lshl_b32 s{sB}, s{sW}, 10
    v_add_u32 v{vaStO}, s{sB}, v{vT0}
    s_lshr_b32 s{sB}, s{sM}, 4
    s_mul_i32 s{sB}, s{sB}, 15360
    s_sub_u32 s{sB}, {O_STATS}, s{sB}
    v_lshlrev_b32 v{vT0}, 8, v{vLane}
    v_add_u32 v{vaStS}, s{sB}, v{vT0}
    """)
    a(f"s_lshl_b32 s{sB}, s{sW}, 14\ns_add_u32 s{sB}, s{sB}, {L_K}")
    for c in range(4):
        a(f"""
        v_add_u32 v{vT0}, {4*c}, v{vQd}
        v_xor_b32 v{vT0}, v{vT0}, v{vR16}
        v_lshlrev_b32 v{vT0}, 4, v{vT0}
        v_lshl_add_u32 v{vT0}, v{vR16}, 8, v{vT0}
        v_add_u32 v{vKr+c}, s{sB}, v{vT0}
        """)
    for e in range(2):
        a(f"""
        v_add_u32 v{vT1}, {4*e}, v{vQd}
        v_lshrrev_b32 v{vT2}, 1, v{vR16}
        v_xor_b32 v{vT1}, v{vT1}, v{vT2}
        v_lshlrev_b32 v{vT1}, 1, v{vT1}
        v_and_b32 v{vT2}, 1, v{vR16}
        v_or_b32 v{vT1}, v{vT1}, v{vT2}
        v_lshlrev_b32 v{vT1}, 4, v{vT1}
        v_lshl_add_u32 v{vVs+e}, v{vQd}, 8, v{vT1}
        """)
    for nt in range(2):
        a(f"""
        v_lshrrev_b32 v{vT1}, 2, v{vR16}
        v_lshl_add_u32 v{vT0}, v{vQd}, 2, v{vT1}
        v_and_b32 v{vT2}, 7, v{vT0}
        s_lshl_b32 s{sB}, s{sW}, 1
        s_add_u32 s{sB}, s{sB}, {nt}
        v_xor_b32 v{vT2}, s{sB}, v{vT2}
        v_lshlrev_b32 v{vT2}, 5, v{vT2}
        v_lshl_add_u32 v{vT0}, v{vT0}, 8, v{vT2}
        v_lshl_add_u32 v{vT0}, v{h3}, 3, v{vT0}
        v_add_u32 v{vVr+nt}, {L_V}, v{vT0}
        """)
    for i in range(16): a(f"v_mov_b32 v{XA+i}, 0")
    if cfg.w_inter:
        a(f"""
        s_cmp_lt_u32 s{sM}, 16
        s_cbranch_scc0 L_wsB
        v_lshrrev_b32 v{vT0}, 2, v{vLane}
        v_lshlrev_b32 v{vT0}, 10, v{vT0}
        v_and_b32 v{vT1}, 3, v{vLane}
        v_lshl_add_u32 v{vWs}, v{vT1}, 4, v{vT0}
        s_lshl_b32 s{sWb}, s{sJ}, 19
        s_lshl_b32 s{sC}, s{sW}, 17
        s_add_u32 s{sWb}, s{sWb}, s{sC}
        s_lshl_b32 s{sC}, s{sIdx}, 6
        s_add_u32 s{sWb}, s{sWb}, s{sC}
        s_mov_b32 s{sWst}, 16384
        s_mov_b32 s{sUP}, s{sW2}
        s_mov_b32 s{sUP+1}, s{sW2+1}
        s_mov_b32 s{sUP+2}, s{sW2+2}
        s_branch L_wsD
        L_wsB:
        v_lshrrev_b32 v{vT0}, 1, v{vLane}
        v_mul_u32_u24 v{vT0}, 3584, v{vT0}
        v_and_b32 v{vT1}, 1, v{vLane}
        v_lshl_add_u32 v{vWs}, v{vT1}, 4, v{vT0}
        s_mul_i32 s{sWb}, s{sW}, {128*3584}
        s_mul_i32 s{sC}, s{sJ}, 448
        s_add_u32 s{sWb}, s{sWb}, s{sC}
        s_lshl_b32 s{sC}, s{sIdx}, 5
        s_add_u32 s{sWb}, s{sWb}, s{sC}
        s_mov_b32 s{sWst}, {32*3584}
        L_wsD:
        """)
    ts("setup")
    a(f"s_waitcnt vmcnt({4*cfg.nKb1 + nPFe})")
    ts("wq_landed")
    for t in range(cfg.nKb1, nKpA): k_page(t)

    def tr_base(dst, rowbytes, rowmul, sadd, const):
        sh = rowbytes.bit_length() - 1; rm = rowmul.bit_length() - 1
        a(f"""
        v_lshrrev_b32 v{vT1}, 2, v{vR16}
        v_lshl_add_u32 v{vT1}, v{vQd}, {rm}, v{vT1}
        v_lshlrev_b32 v{vT1}, {sh}, v{vT1}
        v_and_b32 v{vT2}, 3, v{vR16}
        v_lshl_add_u32 v{vT1}, v{vT2}, 3, v{vT1}
        v_add_u32 v{vT1}, s{sadd}, v{vT1}
        v_add_u32 v{dst}, {const}, v{vT1}
        """)

    def ln_stats(s1, s2, mean, rstd):
        a(f"""
        v_mul_f32 v{mean}, {f2u(1.0/512):#x}, v{s1}
        v_mul_f32 v{s2}, {f2u(1.0/512):#x}, v{s2}
        v_fma_f32 v{s2}, -v{mean}, v{mean}, v{s2}
        v_max_f32 v{s2}, 0, v{s2}
        v_add_f32 v{s2}, {f2u(1e-5):#x}, v{s2}
        v_rsq_f32 v{rstd}, v{s2}
        """)
    def sum4r(b):
        a(f"v_add_f32 v{b}, v{b}, v{b+1}\nv_add_f32 v{b+2}, v{b+2}, v{b+3}\nv_add_f32 v{b}, v{b}, v{b+2}")

    def stats_valu(z):
        L = [f"v_add_f32 v{z}, v{vAcc+8}, v{vAcc+9}", f"v_add_f32 v{vT3}, v{vAcc+10}, v{vAcc+11}", f"v_add_f32 v{z}, v{z}, v{vT3}",
             f"v_cndmask_b32 v{z}, 0, v{z}, s[{sMDIAG}:{sMDIAG+1}]"]
        for n in (8, 4, 2, 1):
            L.append(f"v_add_f32_dpp v{z}, v{z}, v{z} row_ror:{n} row_mask:0xf bank_mask:0xf")
        L += [f"v_add_f32 v{z+1}, v{vAcc+12}, v{vAcc+13}", f"v_add_f32 v{vT3}, v{vAcc+14}, v{vAcc+15}", f"v_add_f32 v{z+1}, v{z+1}, v{vT3}",
              f"v_cndmask_b32 v{z}, v{z+1}, v{z}, s[{sMN1}:{sMN1+1}]"]
        return L
    def stats_mf(X):
        return [mf(vAcc + 8, X + 4*u, X + 4*u, "0" if u == 0 else None) for u in range(4)] + \
               [mf(vAcc + 12, X + 4*u, vOnes, "0" if u == 0 else None) for u in range(4)]

    def q_core(X):
        M = stats_mf(X) + [mf(vAcc, X + 4*u, ar(aWq + 4*u, 4), "0" if u == 0 else None) for u in range(4)]
        interleave(M, stats_valu(vU), 8, 2)
        sum4(vU + 2, vAcc, vT3)
        a(f"""
        v_permlane16_swap_b32 v{vU+2}, v{vU}
        v_add_f32 v{vU}, v{vU}, v{vU+2}
        ds_write_b32 v{vaRedW}, v{vU} offset:{R_Q}
        s_waitcnt lgkmcnt(0)
        s_barrier
        """)
    def q_final(first):
        lab = a.label("qf")
        a(f"s_cmp_eq_u32 s{sW}, 0\ns_cbranch_scc0 {lab}")
        setexec(0xFFFFFFFF)
        a(f"""
        ds_read_b128 {vr(vU,4)}, v{vaFinW} offset:{R_Q}
        ds_read_b128 {vr(vU+4,4)}, v{vaFinQZ} offset:{R_Q}
        ds_read_b128 {vr(vU+8,4)}, v{vaFinQZ} offset:{R_Q+16}
        """)
        if first:
            a(f"ds_read_b128 {vr(vU+12,4)}, v{vaFinW} offset:{R_COL}")
        a("s_waitcnt lgkmcnt(0)")
        if first:
            sum4r(vU + 12); a(f"v_mov_b32 v{vCs}, v{vU+12}")
        sum4r(vU + 4); sum4r(vU + 8); sum4r(vU)
        ln_stats(vU + 4, vU + 8, vU + 5, vU + 6)
        a(f"""
        v_fma_f32 v{vU}, -v{vU+5}, v{vCs}, v{vU}
        v_mul_f32 v{vU}, v{vU}, v{vU+6}
        """)
        dpp("v_mov_b32", vU + 1, vU, None, "quad_perm:[1,0,3,2]")
        a(f"v_cvt_pk_bf16_f32 v{vU+2}, v{vU}, v{vU+1}")
        if first:
            a(f"""
            v_mov_b32 v{vQ1d}, v{vU+2}
            v_mov_b32 v{vQ1d+1}, s{sTX}
            s_lshl_b32 s{sB}, s{sJ}, 12
            s_lshl_b32 s{sC}, s{sM}, 7
            s_add_u32 s{sB}, s{sB}, s{sC}
            s_add_u32 s{sB}, s{sB}, {WS_Q1}
            v_lshlrev_b32 v{vT0}, 1, v{vaStH}
            v_add_u32 v{vQ1a}, s{sB}, v{vT0}
            """)
            setexec(0x55555555)
            a(f"buffer_store_dwordx2 {vr(vQ1d,2)}, v{vQ1a}, {sr(sWS,4)}, 0 offen" + (" sc1" if cfg.force_global else ""))
        else:
            a(f"v_min_u32 v{vU+2}, 0xfffffffe, v{vU+2}")
            setexec(0x55555555)
            store_local(f"buffer_store_dword v{vU+2}, v{vaStQ}, {sr(sWS,4)}, s{sQ2w} offen")
        setexec(FULL)
        a(f"{lab}:")

    def s_qk_max():
        for c in range(4):
            for t in range(4):
                mfma(vS + 4*t, ar(aK + 16*t + 4*c, 4), vQ + 4*c, "0" if c == 0 else None)
        for t in range(1, 4):
            for r in range(4):
                dpp("v_mov_b32", vS + r, vS + 4*t + r, None, f"row_shr:{4*t}", bm=f"0x{1<<t:x}")
        a(f"v_max3_f32 v{vU}, v{vS}, v{vS+1}, v{vS+2}\nv_max_f32 v{vU}, v{vU}, v{vS+3}")
        row_reduce("v_max_f32", vU, (8, 4))
        xquad_reduce("v_max_f32", vU, vT0)
        setexec(0xF)
        a(f"ds_write_b32 v{vaSmW}, v{vU}")
        setexec(FULL)
        a("s_waitcnt lgkmcnt(0)\ns_barrier")
    def s_exp_p():
        a(f"""
        ds_read_b128 {vr(vU+4,4)}, v{vaSm}
        s_mov_b32 s{sB}, {f2u(C_SCALE):#x}
        s_waitcnt lgkmcnt(0)
        v_max3_f32 v{vU}, v{vU+4}, v{vU+5}, v{vU+6}
        v_max_f32 v{vU}, v{vU}, v{vU+7}
        v_mul_f32 v{vMc}, s{sB}, v{vU}
        """)
        for i in range(4): a(f"v_fma_f32 v{vS+i}, v{vS+i}, s{sB}, -v{vMc}")
        for i in range(4): a(f"v_exp_f32 v{vS+i}, v{vS+i}")
        a(f"""
        v_cvt_pk_bf16_f32 v{vU+2}, v{vS}, v{vS+1}
        v_cvt_pk_bf16_f32 v{vU+3}, v{vS+2}, v{vS+3}
        ds_write_b64 v{vaPw}, {vr(vU+2,2)}
        v_add_f32 v{vU}, v{vS}, v{vS+1}
        v_add_f32 v{vU+1}, v{vS+2}, v{vS+3}
        v_add_f32 v{vU}, v{vU}, v{vU+1}
        """)
        row_reduce("v_add_f32", vU, (8, 4))
        xquad_reduce("v_add_f32", vU, vT0)
        setexec(0xF)
        a(f"ds_write_b32 v{vaSmW}, v{vU} offset:{L_LSUM-L_SMAX}")
        setexec(FULL)
        a("s_waitcnt lgkmcnt(0)\ns_barrier")
        for blk in range(8):
            a(f"ds_read_b128 {vr(vP+4*blk,4)}, v{vaPr} offset:{blk*256}")
    def s_stats_prep():
        lab = a.label("st")
        a(f"s_cmp_eq_u32 s{sW}, 3\ns_cbranch_scc0 {lab}")
        a(f"""
        ds_read_b128 {vr(vU+4,4)}, v{vaSm} offset:{L_LSUM-L_SMAX}
        s_add_u32 s{sB}, s{sT}, s{sL}
        s_add_u32 s{sB}, s{sB}, 1
        v_mov_b32 v{vMc+2}, s{sB}
        s_waitcnt lgkmcnt(0)
        """)
        sum4r(vU + 4)
        a(f"v_mov_b32 v{vMc+1}, v{vU+4}")
        a(f"{lab}:")
    def s_stats_store(wait):
        lab = a.label("ss")
        a(f"s_cmp_eq_u32 s{sW}, 3\ns_cbranch_scc0 {lab}")
        if wait is not None: a(f"s_waitcnt vmcnt({wait})")
        setexec(0xF)
        store_local(f"buffer_store_dwordx4 {vr(vMc,4)}, v{vaStS}, {sr(sWS,4)}, s{sOown} offen")
        setexec(FULL)
        a(f"{lab}:")
    accO = vAcc
    def v_tr(blk):
        t, p = blk >> 1, blk & 1
        for nt in range(2):
            a(f"ds_read_b64_tr_b16 {ar(aV+8*blk+4*nt,2)}, v{vVr+nt} offset:{(4*t+2*p)*4096}")
            a(f"ds_read_b64_tr_b16 {ar(aV+8*blk+4*nt+2,2)}, v{vVr+nt} offset:{(4*t+2*p+1)*4096}")
    def pv(blks, first):
        for blk in blks:
            for nt in range(2):
                mfma(accO + 4*nt, ar(aV + 8*blk + 4*nt, 4), vP + 4*blk, "0" if (first and blk == blks[0]) else None)
    def s_out():
        for i in range(4):
            a(f"v_cvt_pk_bf16_f32 v{vU+i}, v{accO+2*i}, v{accO+2*i+1}")
        for i in range(4):
            a(f"v_min_u32 v{vU+i}, 0xfffffffe, v{vU+i}")
        setexec(EM4)
        store_local(f"buffer_store_dwordx4 {vr(vU,4)}, v{vaStO}, {sr(sWS,4)}, s{sOown} offen")
        setexec(FULL)

    a(f"s_lshl_b32 s{sB}, s{sW}, 12")
    tr_base(vT0, 32, 8, sB, L_WQ)
    for u in range(4):
        a(f"ds_read_b64_tr_b16 {ar(aWq+4*u,2)}, v{vT0} offset:{u*1024}")
        a(f"ds_read_b64_tr_b16 {ar(aWq+4*u+2,2)}, v{vT0} offset:{u*1024+128}")
    a(f"""
    v_lshrrev_b32 v{vT0}, 3, v{vR16}
    v_lshlrev_b32 v{vT0}, 10, v{vT0}
    v_lshl_add_u32 v{vT0}, v{vQd}, 4, v{vT0}
    s_lshl_b32 s{sB}, s{sW}, 8
    v_add_u32 v{vT0}, s{sB}, v{vT0}
    s_barrier
    """)
    setexec(0x0101010101010101)
    for u in range(4):
        a(f"ds_read_b128 {vr(XA+4*u,4)}, v{vT0} offset:{L_X0+u*64}")
    setexec(FULL)
    a(f"""
    s_waitcnt lgkmcnt(0)
    s_add_u32 s{sT}, s{sT}, 0x9e3779b0
    s_and_b32 s{sT}, s{sT}, 0xfffffff0
    s_or_b32 s{sTX}, s{sT}, s{sXcc}
    """)
    for u in range(4): mfma(vS, vOnes, ar(aWq + 4*u, 4), "0" if u == 0 else None)
    a(f"ds_write_b32 v{vaRedW}, v{vS} offset:{R_COL}")
    q_core(XA)
    q_final(True)
    a("s_barrier")
    ts("q1_pub")

    def v_group(t):
        page_off(t, sD)
        a(f"s_lshl_b32 s{sC}, s{sW}, 12\ns_add_u32 s{sC}, s{sC}, {L_V + t*16384}\ns_mov_b32 m0, s{sC}\ns_nop 0")
        for ii in range(4):
            a(f"buffer_load_dwordx4 v{vVs+(ii&1)}, {sr(sVS,4)}, s{sD} offen offset:{ii*1024} nt lds")
    def pace(): a(f"s_waitcnt vmcnt({cfg.pace})")
    def w_part(part, lo, hi):
        if not cfg.w_inter: return
        lab = a.label("wp")
        lim = 30
        if (part == 0 and "g" not in cfg.w_interB) or (part == 1 and "u" not in cfg.w_interB): lim = 16
        a(f"s_cmp_ge_u32 s{sM}, {lim}\ns_cbranch_scc1 {lab}")
        for u in range(lo, hi):
            if part == 0:
                a(f"s_mul_i32 s{sB}, s{sWst}, {u}\ns_add_u32 s{sB}, s{sB}, s{sWb}")
                a(f"s_lshl_b32 s{sC}, s{sW}, 12\ns_add_u32 s{sC}, s{sC}, {L_WQ + u*1024}")
            else:
                a(f"s_cmp_lt_u32 s{sM}, 16\ns_cselect_b32 s{sB}, {4+u}, {u}\ns_mul_i32 s{sB}, s{sB}, s{sWst}\ns_add_u32 s{sB}, s{sB}, s{sWb}")
                a(f"s_lshl_b32 s{sC}, s{sW}, 14\ns_add_u32 s{sC}, s{sC}, {L_K + u*1024}")
            a(f"s_mov_b32 m0, s{sC}\ns_nop 0")
            a(f"buffer_load_dwordx4 v{vWs}, {sr(sW2 if part == 0 else sUP,4)}, s{sB} offen{SLN} lds")
        a(f"{lab}:")
    for t in range(nKpA, 4):
        pace()
        if t == 3: w_part(0, 0, 4)
        k_page(t)
    a(f"""
    v_lshrrev_b32 v{vT0}, 2, v{vLane}
    v_lshlrev_b32 v{vT0}, 7, v{vT0}
    v_and_b32 v{vT1}, 3, v{vLane}
    v_lshl_add_u32 v{vKs}, v{vT1}, 4, v{vT0}        ; (vKs is free once K is issued)
    s_lshl_b32 s{sA}, s{sJ}, 12
    s_lshr_b32 s{sB}, s{sM}, 4
    s_lshl_b32 s{sB}, s{sB}, 6
    s_add_u32 s{sA}, s{sA}, s{sB}
    s_add_u32 s{sA}, s{sA}, {WS_Q1}
    v_and_b32 v{vT0}, 3, v{vR16}
    v_lshlrev_b32 v{vT0}, 9, v{vT0}
    v_lshrrev_b32 v{vT1}, 1, v{vQd}
    v_lshl_add_u32 v{vT0}, v{vT1}, 6, v{vT0}
    v_and_b32 v{vT1}, 1, v{vQd}
    v_lshl_add_u32 v{vKs+1}, v{vT1}, 5, v{vT0}
    v_lshlrev_b32 v{vKs+2}, 5, v{vLane}
    """)
    def q1_dma(img):
        a(f"""
        s_mov_b32 m0, {L_QG + img*2048}
        s_add_u32 s{sB}, s{sA}, 2048
        buffer_load_dwordx4 v{vKs}, {sr(sWS,4)}, s{sA} offen sc1 lds
        s_mov_b32 m0, {L_QG + img*2048 + 1024}
        s_nop 0
        buffer_load_dwordx4 v{vKs}, {sr(sWS,4)}, s{sB} offen sc1 lds
        """)
    def w0(fn):
        lab = a.label("w0")
        a(f"s_cmp_eq_u32 s{sW}, 0\ns_cbranch_scc0 {lab}")
        fn()
        a(f"{lab}:")
    def q1_dup():
        setexec(0x55555555)
        a(f"buffer_store_dwordx2 {vr(vQ1d,2)}, v{vQ1a}, {sr(sWS,4)}, 0 offen sc1")
        setexec(FULL)
    g.q1_dup = lambda: w0(q1_dup)
    pace()
    if cfg.pf_stream and cfg.pf_pos == 0: emit_wpf(sKS2, sWQ, True)
    v_group(0)
    a("s_waitcnt vmcnt(4)")
    for t in range(4):
        for c in range(4):
            a(f"ds_read_b128 {ar(aK+16*t+4*c,4)}, v{vKr+c} offset:{t*4096}")
    ts("k_landed")
    w0(lambda: q1_dma(0))
    if cfg.pf_stream and cfg.pf_pos == 1: emit_wpf(sKS, sWQ, True)
    v_group(1)
    a("s_waitcnt vmcnt(4)")
    ts("v0_landed")
    if cfg.pf_stream and cfg.pf_pos == 2: emit_wpf(sKS, sWQ, True)
    if cfg.w_inter:
        a("s_waitcnt lgkmcnt(0)")
        w_part(1, 0, 2)
    def warm_stats0():
        if cfg.warm:
            lab = a.label("ws")
            a(f"s_cmp_lt_u32 s{sM}, 16\ns_cbranch_scc0 {lab}")
            a(f"buffer_load_dword v{vJ}, v{vaS0}, {sr(sWS,4)}, s{sOcons} offen sc1")
            a(f"buffer_load_dword v{vJ}, v{vaS1}, {sr(sWS,4)}, s{sOcons} offen sc1")
            a(f"{lab}:")
    if cfg.v3_early: warm_stats0()
    v_group(2)
    if cfg.v3_early:
        assert not cfg.w_inter
        v_group(3)
    def _o0():
        lab = a.label("c0")
        a(f"""
        s_cmp_eq_u32 s{sW}, 3
        s_cbranch_scc0 {lab}
        v_mov_b32 v{vU+8}, -1
        v_mov_b32 v{vU+9}, -1
        v_mov_b32 v{vU+10}, -1
        v_mov_b32 v{vU+11}, -1
        """)
        store_local(f"buffer_store_dwordx4 {vr(vU+8,4)}, v{vaClrO}, {sr(sWS,4)}, s{sOown} offen")
        a(f"{lab}:")
    g.o0_clear_hook = _o0
    vG = vA
    def q1_tags(img):
        a(f"""
        ds_read_b128 {vr(vG,4)}, v{vKs+2} offset:{L_QG + img*2048}
        ds_read_b128 {vr(vG+4,4)}, v{vKs+2} offset:{L_QG + img*2048 + 16}
        s_waitcnt lgkmcnt(0)
        v_xor_b32 v{vT1}, s{sTX}, v{vG+1}
        v_xor_b32 v{vT2}, s{sTX}, v{vG+3}
        v_xor_b32 v{vT3}, s{sTX}, v{vG+5}
        v_xor_b32 v{vT0}, s{sTX}, v{vG+7}
        v_or3_b32 v{vT1}, v{vT1}, v{vT2}, v{vT3}
        v_or_b32 v{vT1}, v{vT1}, v{vT0}
        v_cmp_lt_u32 vcc, 15, v{vT1}
        """)
    a("s_barrier")
    q1_tags(0)
    a(f"s_mov_b32 s{sC}, {L_QG}\ns_cbranch_vccz L_q1ok")
    cnt("g0fail")
    w0(lambda: (q1_dma(1), a("s_waitcnt vmcnt(0)")))
    a("s_barrier")
    q1_tags(1)
    a(f"s_mov_b32 s{sC}, {L_QG + 2048}\ns_cbranch_vccz L_q1ok")
    a("L_q1retry:")
    cnt("g1fail")
    a(f"s_sub_u32 s{sBud}, s{sBud}, 1\ns_cbranch_scc1 L_abort\ns_barrier")
    w0(lambda: (q1_dup(), q1_dma(0), a("s_waitcnt vmcnt(0)")))
    a("s_barrier")
    q1_tags(0)
    a(f"s_mov_b32 s{sC}, {L_QG}\ns_cbranch_vccnz L_q1retry")
    a("L_q1ok:")
    a(f"""
    v_cmp_ne_u32 vcc, 0, v{vT1}
    v_add_u32 v{vT0}, s{sC}, v{vKs+1}
    s_cmp_eq_u64 vcc, 0
    s_cselect_b32 s{sLocal}, 1, 0
    """)
    if cfg.v3_early: g.o0_clear_hook()
    setexec(EM4)
    for c in range(4):
        a(f"ds_read2_b32 {vr(vQ+4*c,2)}, v{vT0} offset0:{c*32} offset1:{c*32+2}")
        a(f"ds_read2_b32 {vr(vQ+4*c+2,2)}, v{vT0} offset0:{c*32+4} offset1:{c*32+6}")
    setexec(FULL)
    lab = a.label("nl")
    a(f"s_cmp_eq_u32 s{sLocal}, 0\ns_cbranch_scc0 {lab}")
    g.q1_dup()
    a(f"{lab}:")
    a("s_waitcnt lgkmcnt(0)")
    ts("q1_got")
    s_qk_max()
    ts("s1_max")
    def o0_clear():
        lab = a.label("c0")
        a(f"""
        s_cmp_eq_u32 s{sW}, 3
        s_cbranch_scc0 {lab}
        v_mov_b32 v{vU+8}, -1
        v_mov_b32 v{vU+9}, -1
        v_mov_b32 v{vU+10}, -1
        v_mov_b32 v{vU+11}, -1
        """)
        store_local(f"buffer_store_dwordx4 {vr(vU+8,4)}, v{vaClrO}, {sr(sWS,4)}, s{sOown} offen")
        a(f"{lab}:")
    if not cfg.v3_early:
        a("s_waitcnt vmcnt(4)")
        o0_clear()
        warm_stats0()
        w_part(1, 2, 4)
        v_group(3)
    else:
        a("s_waitcnt vmcnt(8)")
    nPF = emit_wpf(sKS, sWQ, True) if (cfg.pf_stream and not cfg.pf_early and cfg.pf_pos is None) else 0

    def s1_tail(nW=0, maybe_none=False):
        def wait_v(base):
            if nW and maybe_none:
                l1 = a.label("wv"); l2 = a.label("wv")
                a(f"s_cmp_ge_u32 s{sIdx}, 14\ns_cbranch_scc1 {l1}\ns_waitcnt vmcnt({base + nW})\ns_branch {l2}\n{l1}:\ns_waitcnt vmcnt({base})\n{l2}:")
            else:
                a(f"s_waitcnt vmcnt({base + nW})")
        s_exp_p()
        s_stats_prep()
        blks = [0, 1, 2, 3]
        for blk in blks: v_tr(blk)
        a("s_waitcnt lgkmcnt(0)")
        pv(blks, True)
        for t in (2, 3):
            if t == 3 and cfg.v3_early:
                l3 = a.label("v3"); l4 = a.label("v4")
                a(f"s_cmp_eq_u32 s{sW}, 3\ns_cbranch_scc1 {l3}\ns_waitcnt vmcnt({nW})\ns_branch {l4}\n{l3}:\ns_waitcnt vmcnt({nW + 1})\n{l4}:")
            else:
                wait_v(4*(3-t))
            a("s_barrier")
            if t == 3: ts("v_landed")
            blks = [2*t, 2*t + 1]
            for blk in blks: v_tr(blk)
            a("s_waitcnt lgkmcnt(0)")
            pv(blks, False)
        s_out()
        s_stats_store(1 if cfg.v3_early else None)
        lab = a.label("c1")
        a(f"""
        s_cmp_eq_u32 s{sW}, 0
        s_cbranch_scc0 {lab}
        v_mov_b32 v{vU+8}, -1
        v_mov_b32 v{vU+9}, -1
        v_mov_b32 v{vU+10}, -1
        v_mov_b32 v{vU+11}, -1
        s_add_u32 s{sB}, s{sOown}, {O_L}
        """)
        store_local(f"buffer_store_dwordx4 {vr(vU+8,4)}, v{vaClrO}, {sr(sWS,4)}, s{sB} offen")
        q1_dup()
        a(f"{lab}:")
        ts("s1_pub")

    def x_poll(sbase, dst, sleep):
        l = a.label("xp"); ok = a.label("xok")
        if cfg.sleep_x0: a(f"s_sleep {cfg.sleep_x0}")
        a(f"{l}:")
        cnt("n_x")
        for u in range(4):
            if u == 0: a(f"s_mov_b32 m0, s{sXI}\ns_nop 0")
            else: a(f"s_add_u32 s{sB}, s{sXI}, {u*(1024-128)}\ns_mov_b32 m0, s{sB}\ns_nop 0")
            a(f"buffer_load_dwordx4 v{vaXg}, {sr(sWS,4)}, s{sbase} offen offset:{u*128} sc1 lds")
        a("s_waitcnt vmcnt(0)")
        for u in range(4):
            a(f"ds_read_b128 {vr(dst+4*u,4)}, v{vaXr} offset:{u*1024}")
        a("s_waitcnt lgkmcnt(0)")
        sent_check([dst+i for i in range(16)], vT0, ok)
        spin_fail(l, sleep)
        a(f"{ok}:")

    def warm_q2():
        if not cfg.warm: return
        a(f"s_lshl_b32 s{sB}, s{sJ}, 11\ns_add_u32 s{sB}, s{sB}, {WS_Q2}\nv_lshlrev_b32 v{vT0}, 7, v{vLane}")
        setexec(0xFFFF)
        a(f"buffer_load_dword v{vJ}, v{vT0}, {sr(sWS,4)}, s{sB} offen sc1")
        setexec(FULL)
    def warm_o(dl, data=True):
        if not cfg.warm: return
        a(f"s_add_u32 s{sB}, s{sOcons}, {dl*O_L}")
        if data:
            a(f"""
            v_and_b32 v{vT0}, 31, v{vLane}
            v_lshlrev_b32 v{vT0}, 7, v{vT0}
            v_lshrrev_b32 v{vT1}, 5, v{vLane}
            v_lshl_add_u32 v{vT0}, v{vT1}, 14, v{vT0}
            buffer_load_dword v{vJ}, v{vT0}, {sr(sWS,4)}, s{sB} offen sc1
            """)
        a(f"buffer_load_dword v{vJ}, v{vaS0}, {sr(sWS,4)}, s{sB} offen sc1")
        a(f"buffer_load_dword v{vJ}, v{vaS1}, {sr(sWS,4)}, s{sB} offen sc1")

    def tag_check_all():
        l = a.label("tc"); ok = a.label("tcok")
        a(f"""
        s_lshl_b32 s{sB}, s{sW}, 13
        s_add_u32 s{sB}, s{sB}, {WS_Q1+4}
        v_lshlrev_b32 v{vT0}, 7, v{vLane}
        {l}:
        buffer_load_dword v{vT1}, v{vT0}, {sr(sWS,4)}, s{sB} offen sc1
        s_waitcnt vmcnt(0)
        v_xor_b32 v{vT1}, s{sT}, v{vT1}
        v_cmp_lt_u32 vcc, 15, v{vT1}
        s_cbranch_vccz {ok}
        """)
        spin_fail(l, 2)
        a(f"{ok}:")

    def line_final(red):
        if cfg.doorbell and cfg.db_early:
            a(f"v_mov_b32 v{vT0}, 0\nv_mov_b32 v{vT1}, s{sDBtag}\ns_mov_b64 exec, 1")
            store_local(f"buffer_store_dword v{vT1}, v{vT0}, {sr(sWS,4)}, s{sDBw} offen")
            a("s_mov_b64 exec, -1")
        a(f"""
        ds_read_b128 {vr(vU,4)}, v{vaFinO} offset:{red}
        v_mov_b32 v{vT0}, 0
        v_mov_b32 v{vT1}, s{sDBtag}
        s_waitcnt lgkmcnt(0)
        v_add_f32 v{vU}, v{vU}, v{vU+1}
        v_add_f32 v{vU+2}, v{vU+2}, v{vU+3}
        v_add_f32 v{vU}, v{vU}, v{vResF}
        v_add_f32 v{vResF}, v{vU}, v{vU+2}
        """)
        dpp("v_mov_b32", vU + 1, vResF, None, "quad_perm:[1,0,3,2]")
        a(f"v_cvt_pk_bf16_f32 v{vU}, v{vResF}, v{vU+1}\nv_min_u32 v{vU}, 0xfffffffe, v{vU}")
        if cfg.doorbell and not cfg.db_early:
            a("s_mov_b64 exec, 1")
            store_local(f"buffer_store_dword v{vT1}, v{vT0}, {sr(sWS,4)}, s{sDBw} offen")
        a(f"s_xor_b32 s{sB}, s{sXw}, 0x2000\ns_add_u32 s{sB}, s{sB}, 16384")
        setexec(EMEV)
        a(f"buffer_store_dword v{vU}, v{vaStX}, {sr(sWS,4)}, s{sXw} offen sc1")
        a(f"buffer_store_dword v{vU}, v{vaStX}, {sr(sWS,4)}, s{sB} offen sc1")
        setexec(FULL)
    def advance_hop():
        a(f"s_add_u32 s{sXw}, s{sXw}, {X_HOP}\ns_add_u32 s{sDBw}, s{sDBw}, 1024\ns_add_u32 s{sDBtag}, s{sDBtag}, 1")

    def db_setup(hop_w, hop_r):
        a(f"""
        s_lshl_b32 s{sDBr}, s{sJ}, 7
        s_add_u32 s{sDBr}, s{sDBr}, {WS_DB}
        s_lshl_b32 s{sDBw}, s{sIdx}, 2
        s_add_u32 s{sDBw}, s{sDBw}, s{sDBr}
        s_add_u32 s{sDBw}, s{sDBw}, {hop_w*1024}
        s_add_u32 s{sDBtag}, s{sT}, {8+hop_w}
        """)
    def db_wait(hop_off_s, tag_add_s=None, const_hop=None):
        if not cfg.doorbell: return
        l = a.label("db"); ok = a.label("dbok")
        if const_hop is not None:
            a(f"s_add_u32 s{sA}, s{sDBr}, {const_hop*1024}\ns_add_u32 s{sC}, s{sT}, {8+const_hop}")
        else:
            a(f"s_lshl_b32 s{sA}, s{sL}, 11\ns_add_u32 s{sA}, s{sA}, s{sDBr}\ns_add_u32 s{sA}, s{sA}, {hop_off_s*1024}")
            a(f"s_lshl_b32 s{sC}, s{sL}, 1\ns_add_u32 s{sC}, s{sC}, s{sT}\ns_add_u32 s{sC}, s{sC}, {8+hop_off_s}")
        a(f"v_lshlrev_b32 v{vT0}, 2, v{vLane}")
        setexec(0xFFFF)
        a(f"""
        {l}:
        buffer_load_dword v{vT1}, v{vT0}, {sr(sWS,4)}, s{sA} offen sc1
        s_waitcnt vmcnt(0)
        v_cmp_ne_u32 vcc, s{sC}, v{vT1}
        s_cbranch_vccz {ok}
        """)
        spin_fail(l)
        a(f"{ok}:")
        setexec(FULL)

    def o_stats_poll():
        l = a.label("os"); ok = a.label("osok")
        a(f"s_add_u32 s{sA}, s{sT}, s{sL}\ns_add_u32 s{sA}, s{sA}, 1")
        a(f"{l}:")
        cnt("n_ostat")
        a(f"buffer_load_dwordx3 {vr(vSt,3)}, v{vaS0}, {sr(sWS,4)}, s{sOcons} offen sc1")
        a(f"buffer_load_dwordx3 {vr(vSt+4,3)}, v{vaS1}, {sr(sWS,4)}, s{sOcons} offen sc1")
        a("s_waitcnt vmcnt(0)")
        a(f"""
        v_xor_b32 v{vT0}, s{sA}, v{vSt+2}
        v_xor_b32 v{vT1}, s{sA}, v{vSt+6}
        v_or_b32 v{vT0}, v{vT0}, v{vT1}
        v_cmp_ne_u32 vcc, 0, v{vT0}
        s_cbranch_vccz {ok}
        """)
        spin_fail(l, cfg.sleep_o)
        a(f"{ok}:")
        ts_dyn("o_st0", "o_st1")

    def o_phase():
        OA = vA
        o_stats_poll()
        l2 = a.label("op"); ok2 = a.label("ook")
        a(f"L_heavy:\n{l2}:")
        cnt("n_oheavy")
        for b in range(2):
            for c in range(4):
                a(f"buffer_load_dwordx4 {vr(OA+16*b+4*c,4)}, v{vaO0+b}, {sr(sWS,4)}, s{sOcons} offen offset:{c*1024} sc1")
        for b in range(2):
            a(f"v_mov_b32 v{vU+b}, v{vSt+4*b}")
        for n in (8, 4, 2, 1):
            for b in range(2): dpp("v_max_f32", vU + b, vU + b, vU + b, f"row_ror:{n}")
        for b in range(2): a(f"v_sub_f32 v{vU+b}, v{vSt+4*b}, v{vU+b}")
        for b in range(2): a(f"v_exp_f32 v{vU+b}, v{vU+b}")
        for b in range(2): a(f"v_mul_f32 v{vU+2+b}, v{vU+b}, v{vSt+4*b+1}")
        for n in (8, 4, 2, 1):
            for b in range(2): dpp("v_add_f32", vU + 2 + b, vU + 2 + b, vU + 2 + b, f"row_ror:{n}")
        for b in range(2): a(f"v_rcp_f32 v{vU+2+b}, v{vU+2+b}")
        for b in range(2): a(f"v_mul_f32 v{vW+b}, v{vU+b}, v{vU+2+b}")
        a(f"v_mov_b32 v{vT0}, 0")
        if cfg.diag and cfg.ts_only and "o_w0" in cfg.ts_only:
            ts_dyn("o_w0", "o_w1")
            a("s_waitcnt vmcnt(7)")
            ts_dyn("o_f0", "o_f1")
        for i in range(8):
            b, c = i >> 2, i & 3
            r = OA + 16*b + 4*c
            a(f"s_waitcnt vmcnt({7-i})")
            for nt in range(2):
                mfma(vAcc + 8*b + 4*nt, r, ar(aW2 + 8*c + 4*nt, 4), "0" if c == 0 else None)
            a(f"v_max3_u32 v{vT0}, v{vT0}, v{r}, v{r+1}\nv_max3_u32 v{vT0}, v{vT0}, v{r+2}, v{r+3}")
        a(f"v_cmp_eq_u32 vcc, -1, v{vT0}\ns_cbranch_vccz {ok2}")
        spin_fail(l2)
        a(f"{ok2}:")
        ts_dyn("o_got0", "o_got1")
        for b in range(2):
            for nt in range(2):
                t = vU + 2*b + nt; acc = vAcc + 8*b + 4*nt
                dpp("v_mul_f32", t, vW + b, acc, "row_newbcast:0")
                for r in range(1, 4):
                    dpp("v_fmac_f32", t, vW + b, acc + r, f"row_newbcast:{r}")
        a(f"""
        v_permlane32_swap_b32 v{vU}, v{vU+1}
        v_permlane32_swap_b32 v{vU+2}, v{vU+3}
        v_add_f32 v{vU}, v{vU}, v{vU+1}
        v_add_f32 v{vU+2}, v{vU+2}, v{vU+3}
        v_permlane16_swap_b32 v{vU}, v{vU+2}
        v_add_f32 v{vU}, v{vU}, v{vU+2}
        ds_write_b32 v{vaRedW}, v{vU} offset:{R_O}
        s_waitcnt lgkmcnt(0)
        s_barrier
        """)
        lab = a.label("of")
        a(f"s_cmp_eq_u32 s{sW}, 0\ns_cbranch_scc0 {lab}")
        line_final(R_O)
        a(f"{lab}:")
        advance_hop()
        ts_dyn("o_pub0", "o_pub1")

    def g_phase():
        X = vA
        if cfg.db_g: db_wait(0)
        if cfg.diag and cfg.ts_only and "g_db0" in cfg.ts_only: ts_dyn("g_db0", "g_db1")
        x_poll(sXr, X, cfg.sleep_x)
        ts_dyn("g_got0", "g_got1")
        M = stats_mf(X)
        for u in range(4):
            M.append(mf(vAcc, X + 4*u, ar(aW2 + 8*u, 4), "0" if u == 0 else None))
            M.append(mf(vAcc + 4, X + 4*u, ar(aW2 + 8*u + 4, 4), "0" if u == 0 else None))
        V = stats_valu(vU) + [f"v_mov_b32 v{vU+1}, v{vU}", f"v_permlane16_swap_b32 v{vU}, v{vU+1}", f"v_add_f32 v{vU}, v{vU}, v{vU+1}"]
        interleave(M, V, 8, 2)
        setexec("s[%d:%d]" % (sM2, sM2 + 1))
        a(f"ds_write_b32 v{vaRedZ}, v{vU} offset:{R_GZ}")
        setexec(FULL)
        sum4(vU + 2, vAcc, vT3)
        sum4(vU + 3, vAcc + 4, vT3)
        a(f"""
        v_permlane16_swap_b32 v{vU+2}, v{vU+3}
        v_add_f32 v{vU+2}, v{vU+2}, v{vU+3}
        ds_write_b32 v{vaRedW}, v{vU+2} offset:{R_G}
        s_waitcnt lgkmcnt(0)
        s_barrier
        """)
        lab = a.label("gf")
        a(f"s_cmp_eq_u32 s{sW}, 0\ns_cbranch_scc0 {lab}")
        setexec(0xFFFFFFFF)
        a(f"""
        ds_read_b128 {vr(vU+8,4)}, v{vaFinZ} offset:{R_GZ}
        ds_read_b128 {vr(vU+12,4)}, v{vaFinZ} offset:{R_GZ+16}
        ds_read_b128 {vr(vU,4)}, v{vaFinW} offset:{R_G}
        ds_read_b128 {vr(vU+4,4)}, v{vaFinW} offset:{R_G+256}
        s_lshl_b32 s{sB}, s{sIdx}, 6
        s_add_u32 s{sB}, s{sB}, s{sHb}
        s_waitcnt lgkmcnt(2)
        """)
        sum4r(vU + 8); sum4r(vU + 12)
        ln_stats(vU + 8, vU + 12, vU + 9, vU + 10)
        a("s_waitcnt lgkmcnt(0)")
        sum4r(vU); sum4r(vU + 4)
        a(f"""
        v_fma_f32 v{vU}, -v{vU+9}, v{vCg}, v{vU}
        v_fma_f32 v{vU+4}, -v{vU+9}, v{vCu}, v{vU+4}
        v_mul_f32 v{vU+1}, {f2u(-1.4426950408889634):#x}, v{vU+10}
        v_mul_f32 v{vU}, v{vU}, v{vU+1}
        v_exp_f32 v{vU}, v{vU}
        v_mul_f32 v{vU+4}, v{vU+4}, v{vU+10}
        v_add_f32 v{vU}, 1.0, v{vU}
        v_rcp_f32 v{vU}, v{vU}
        s_nop 0
        v_mul_f32 v{vU}, v{vU}, v{vU+4}
        """)
        dpp("v_mov_b32", vU + 1, vU, None, "quad_perm:[1,0,3,2]")
        a(f"v_cvt_pk_bf16_f32 v{vU}, v{vU}, v{vU+1}\nv_min_u32 v{vU}, 0xfffffffe, v{vU}")
        setexec(0x55555555)
        store_local(f"buffer_store_dword v{vU}, v{vaStH}, {sr(sWS,4)}, s{sB} offen")
        setexec(FULL)
        a(f"{lab}:")
        ts_dyn("g_pub0", "g_pub1")

    def d_phase():
        lab0 = a.label("dr0"); l2 = a.label("dr"); ok2 = a.label("drok")
        l = a.label("dp"); ok = a.label("dok"); one = a.label("done"); l3 = a.label("dp1");
        a(f"s_cmp_eq_u32 s{sW}, 3\ns_cbranch_scc1 {l3}")
        setexec(EM2)
        a(f"{l}:")
        a(f"buffer_load_dwordx4 {vr(vHop,4)}, v{vaH}, {sr(sWS,4)}, s{sHb} offen sc1")
        a(f"buffer_load_dwordx4 {vr(vHop+4,4)}, v{vaH}, {sr(sWS,4)}, s{sHb} offen offset:512 sc1")
        a("s_waitcnt vmcnt(0)")
        sent_check([vHop+i for i in range(8)], vT1, ok)
        spin_fail(l)
        a(f"{l3}:")
        setexec(EM2)
        a(f"{l3}b:")
        a(f"buffer_load_dwordx4 {vr(vHop,4)}, v{vaH}, {sr(sWS,4)}, s{sHb} offen sc1")
        a("s_waitcnt vmcnt(0)")
        sent_check([vHop+i for i in range(4)], vT1, ok)
        spin_fail(f"{l3}b")
        a(f"{ok}:")
        setexec(FULL)
        for nt in range(2):
            mfma(vAcc + 4*nt, vHop, ar(aWd + 4*nt, 4), "0")
        for nt in range(2):
            mfma(vAcc + 4*nt, vHop + 4, ar(aWd + 8 + 4*nt, 4))
        a(f"""
        v_permlane16_swap_b32 v{vAcc}, v{vAcc+1}
        v_permlane16_swap_b32 v{vAcc+4}, v{vAcc+5}
        v_permlane32_swap_b32 v{vAcc}, v{vAcc+4}
        ds_write_b32 v{vaRedW}, v{vAcc} offset:{R_D}
        s_waitcnt lgkmcnt(0)
        s_barrier
        """)
        lab = a.label("df")
        a(f"s_cmp_eq_u32 s{sW}, 0\ns_cbranch_scc0 {lab}")
        line_final(R_D)
        a(f"{lab}:")
        advance_hop()
        ts_dyn("d_pub0", "d_pub1")

    a(f"s_cmp_lt_u32 s{sM}, 16\ns_cbranch_scc0 L_roleB")
    def down_slices():
        a(f"""
        v_lshrrev_b32 v{vT0}, 2, v{vLane}
        v_lshlrev_b32 v{vT0}, 10, v{vT0}
        v_and_b32 v{vT1}, 3, v{vLane}
        v_lshl_add_u32 v{vT0}, v{vT1}, 4, v{vT0}
        s_mul_i32 s{sB}, s{sJ}, {224*1024}
        s_lshl_b32 s{sC}, s{sIdx}, 6
        s_add_u32 s{sB}, s{sB}, s{sC}
        s_lshl_b32 s{sC}, s{sW}, 15
        s_add_u32 s{sB}, s{sB}, s{sC}
        s_lshl_b32 s{sC}, s{sW}, 14
        s_add_u32 s{sC}, s{sC}, {L_K + W_DN}
        s_mov_b32 m0, s{sC}
        s_add_u32 s{sD}, s{sB}, 16384
        buffer_load_dwordx4 v{vT0}, {sr(sDN,4)}, s{sB} offen{SLN} lds
        s_add_u32 s{sC}, s{sC}, 1024
        s_mov_b32 m0, s{sC}
        s_nop 0
        buffer_load_dwordx4 v{vT0}, {sr(sDN,4)}, s{sD} offen{SLN} lds
        s_cmp_eq_u32 s{sW}, 3
        s_cbranch_scc1 L_nod2
        s_add_u32 s{sB}, s{sB}, {4*32768}
        s_add_u32 s{sC}, s{sC}, 1024
        s_mov_b32 m0, s{sC}
        s_add_u32 s{sD}, s{sB}, 16384
        buffer_load_dwordx4 v{vT0}, {sr(sDN,4)}, s{sB} offen{SLN} lds
        s_add_u32 s{sC}, s{sC}, 1024
        s_mov_b32 m0, s{sC}
        s_nop 0
        buffer_load_dwordx4 v{vT0}, {sr(sDN,4)}, s{sD} offen{SLN} lds
        L_nod2:
        """)
    def down_operands():
        a(f"s_lshl_b32 s{sB}, s{sW}, 14")
        tr_base(vT0, 64, 8, sB, L_K + W_DN)
        for nt in range(2):
            a(f"ds_read_b64_tr_b16 {ar(aWd+4*nt,2)}, v{vT0} offset:{nt*32}")
            a(f"ds_read_b64_tr_b16 {ar(aWd+4*nt+2,2)}, v{vT0} offset:{nt*32+256}")
        a(f"s_cmp_eq_u32 s{sW}, 3\ns_cbranch_scc1 L_dn3")
        for nt in range(2):
            a(f"ds_read_b64_tr_b16 {ar(aWd+8+4*nt,2)}, v{vT0} offset:{2048+nt*32}")
            a(f"ds_read_b64_tr_b16 {ar(aWd+8+4*nt+2,2)}, v{vT0} offset:{2048+nt*32+256}")
        a("s_branch L_dn4\nL_dn3:")
        for i in range(8): a(f"v_accvgpr_write_b32 a{aWd+8+i}, 0")
        a("L_dn4:")
    g.role = "A"; ts_split = g.ts
    def wo_slices():
        if cfg.line_pf and "o" in cfg.pf_which:
            a(f"""
            v_lshlrev_b32 v{vT0}, 7, v{vLane}
            s_lshl_b32 s{sB}, s{sJ}, 19
            s_lshl_b32 s{sC}, s{sIdx}, 15
            s_add_u32 s{sB}, s{sB}, s{sC}
            s_lshl_b32 s{sC}, s{sW}, 13
            s_add_u32 s{sB}, s{sB}, s{sC}
            buffer_load_dword v{vJ}, v{vT0}, {sr(sW2,4)}, s{sB} offen{cfg.pf_pol_o}
            """)
        a(f"""
        v_lshrrev_b32 v{vT0}, 2, v{vLane}
        v_lshlrev_b32 v{vT0}, 10, v{vT0}
        v_and_b32 v{vT1}, 3, v{vLane}
        v_lshl_add_u32 v{vT0}, v{vT1}, 4, v{vT0}
        s_lshl_b32 s{sB}, s{sJ}, 19
        s_lshl_b32 s{sC}, s{sW}, 17
        s_add_u32 s{sB}, s{sB}, s{sC}
        s_lshl_b32 s{sC}, s{sIdx}, 6
        s_add_u32 s{sB}, s{sB}, s{sC}
        s_lshl_b32 s{sC}, s{sW}, 14
        s_add_u32 s{sC}, s{sC}, {L_K}
        """)
        for u in range(8):
            a(f"""
            s_mov_b32 m0, s{sC}
            s_add_u32 s{sC}, s{sC}, 1024
            buffer_load_dwordx4 v{vT0}, {sr(sW2,4)}, s{sB} offen{SLN} lds
            s_add_u32 s{sB}, s{sB}, {16*1024}
            """)
    if cfg.w_inter:
        s1_tail(nPF)
        db_setup(0, 1)
        a(f"s_mov_b32 s{sXr}, {WS_X}")
    elif cfg.wsA:
        wo_slices()
        s1_tail(8 + nPF)
        db_setup(0, 1)
    else:
        s1_tail(nPF)
        db_setup(0, 1)
        wo_slices()
    a(f"v_mov_b32 v{vRes}, 0")
    lab = a.label("r0")
    a(f"""
    s_cmp_eq_u32 s{sJ}, 0
    s_cbranch_scc0 {lab}
    v_and_b32 v{vT0}, 1, v{vQd}
    v_lshlrev_b32 v{vT0}, 10, v{vT0}
    v_lshrrev_b32 v{vT1}, 1, v{vQd}
    v_lshl_add_u32 v{vT0}, v{vT1}, 5, v{vT0}
    v_lshl_add_u32 v{vT0}, v{vR16}, 1, v{vT0}
    s_lshl_b32 s{sB}, s{sIdx}, 6
    buffer_load_ushort v{vRes}, v{vT0}, {sr(sX0,4)}, s{sB} offen
    {lab}:
    """)
    nspec = 0
    if cfg.o_spec:
        a(f"buffer_load_dwordx3 {vr(vSt,3)}, v{vaS0}, {sr(sWS,4)}, s{sOcons} offen sc1")
        a(f"buffer_load_dwordx3 {vr(vSt+4,3)}, v{vaS1}, {sr(sWS,4)}, s{sOcons} offen sc1")
        nspec = 2
    if cfg.w_inter:
        a(f"s_waitcnt vmcnt({nspec})")
        for half, (sh, base) in enumerate(((12, L_WQ), (14, L_K))):
            a(f"s_lshl_b32 s{sB}, s{sW}, {sh}")
            tr_base(vT0, 64, 4, sB, base)
            for c2 in range(2):
                c = 2*half + c2
                for nt in range(2):
                    a(f"ds_read_b64_tr_b16 {ar(aW2+8*c+4*nt,2)}, v{vT0} offset:{c2*2048+nt*32}")
                    a(f"ds_read_b64_tr_b16 {ar(aW2+8*c+4*nt+2,2)}, v{vT0} offset:{c2*2048+nt*32+1024}")
    else:
        a(f"s_lshl_b32 s{sB}, s{sW}, 14")
        tr_base(vT0, 64, 4, sB, L_K)
        a(f"s_waitcnt vmcnt({nspec})")
        for c in range(4):
            for nt in range(2):
                a(f"ds_read_b64_tr_b16 {ar(aW2+8*c+4*nt,2)}, v{vT0} offset:{c*2048+nt*32}")
                a(f"ds_read_b64_tr_b16 {ar(aW2+8*c+4*nt+2,2)}, v{vT0} offset:{c*2048+nt*32+1024}")
    a(f"v_lshlrev_b32 v{vResF}, 16, v{vRes}")
    a("s_waitcnt lgkmcnt(0)")
    ts("wo_ready")
    if cfg.o_spec:
        a(f"""
        s_add_u32 s{sA}, s{sT}, 1
        s_waitcnt vmcnt(0)
        v_xor_b32 v{vT0}, s{sA}, v{vSt+2}
        v_xor_b32 v{vT1}, s{sA}, v{vSt+6}
        v_or_b32 v{vT0}, v{vT0}, v{vT1}
        v_cmp_ne_u32 vcc, 0, v{vT0}
        s_cbranch_vccz L_heavy
        """)
    a("L_loopA:")
    o_phase()
    lab = a.label("dn")
    a(f"s_cmp_eq_u32 s{sL}, 0\ns_cbranch_scc0 {lab}")
    down_slices()
    tag_check_all()
    if cfg.epoch_early:
        le = a.label("ep")
        a(f"""
        s_or_b32 s{sB}, s{sJ}, s{sIdx}
        s_or_b32 s{sB}, s{sB}, s{sW}
        s_cmp_eq_u32 s{sB}, 0
        s_cbranch_scc0 {le}
        """)
        g.ep_lab = le
        a(f"v_mov_b32 v{vT0}, {WS_EPOCH}\nv_mov_b32 v{vT1}, s{sT}\ns_mov_b64 exec, 1")
        a(f"buffer_store_dword v{vT1}, v{vT0}, {sr(sWS,4)}, 0 offen sc1")
        a("s_mov_b64 exec, -1")
        a(f"{le}:")
    down_operands()
    if cfg.warm_out:
        lw = a.label("wout")
        a(f"""
        s_cmp_ge_u32 s{sIdx}, 2
        s_cbranch_scc1 {lw}
        s_lshl_b32 s{sB}, s{sJ}, 1
        s_add_u32 s{sB}, s{sB}, s{sIdx}
        s_lshl_b32 s{sB}, s{sB}, 6
        v_lshlrev_b32 v{vT0}, 10, v{vLane}
        s_mov_b64 exec, 3
        buffer_load_dword v{vJ}, v{vT0}, {sr(sOUT,4)}, s{sB} offen
        s_mov_b64 exec, -1
        {lw}:
        """)
    a("s_waitcnt lgkmcnt(0)\ns_barrier")
    a(f"{lab}:")
    d_phase()
    a(f"s_cmp_eq_u32 s{sL}, 1\ns_cbranch_scc1 L_finalA")
    a("s_branch L_q2s2")

    a("L_roleB:")
    g.role = "B"; g.ts = ts_split
    def gu_slices():
        a(f"""
        s_cmp_ge_u32 s{sIdx}, 14
        s_cbranch_scc1 L_nogu
        v_lshrrev_b32 v{vT0}, 1, v{vLane}
        v_mul_u32_u24 v{vT0}, 3584, v{vT0}
        v_and_b32 v{vT1}, 1, v{vLane}
        v_lshl_add_u32 v{vT0}, v{vT1}, 4, v{vT0}
        s_mul_i32 s{sB}, s{sW}, {128*3584}
        s_mul_i32 s{sC}, s{sJ}, 448
        s_add_u32 s{sB}, s{sB}, s{sC}
        s_lshl_b32 s{sC}, s{sIdx}, 5
        s_add_u32 s{sB}, s{sB}, s{sC}
        s_lshl_b32 s{sC}, s{sW}, 14
        s_add_u32 s{sC}, s{sC}, {L_K + W_GATE}
        """)
        for u in range(4):
            a(f"""
            s_mov_b32 m0, s{sC}
            s_add_u32 s{sD}, s{sC}, {W_UP - W_GATE}
            buffer_load_dwordx4 v{vT0}, {sr(sW2,4)}, s{sB} offen{SLN} lds
            s_mov_b32 m0, s{sD}
            s_add_u32 s{sC}, s{sC}, 1024
            buffer_load_dwordx4 v{vT0}, {sr(sUP,4)}, s{sB} offen{SLN} lds
            s_add_u32 s{sB}, s{sB}, {32*3584}
            """)
        a("L_nogu:")
    if cfg.wsB:
        gu_slices()
        s1_tail(8, maybe_none=True)
    else:
        s1_tail(nPF)
    if cfg.w_inter: a(f"s_mov_b32 s{sWb2}, s{sWb}\ns_mov_b32 s{sWst2}, s{sWst}")
    db_setup(1, 0)
    if cfg.w_inter: a(f"s_mov_b32 s{sXr}, {WS_X}")
    if cfg.pf_down:
        a(f"""
        v_lshrrev_b32 v{vT0}, 3, v{vLane}
        v_lshlrev_b32 v{vT0}, 10, v{vT0}
        v_and_b32 v{vT1}, 7, v{vLane}
        v_lshl_add_u32 v{vT0}, v{vT1}, 7, v{vT0}
        s_mul_i32 s{sB}, s{sJ}, 224
        s_mul_i32 s{sC}, s{sIdx}, 14
        s_add_u32 s{sB}, s{sB}, s{sC}
        s_lshl_b32 s{sC}, s{sW}, 2
        s_add_u32 s{sB}, s{sB}, s{sC}
        s_lshl_b32 s{sB}, s{sB}, 10
        s_cmp_eq_u32 s{sW}, 3
        s_cselect_b32 exec_lo, 0xffff, -1
        s_mov_b32 exec_hi, 0
        buffer_load_dword v{vJ}, v{vT0}, {sr(sDN,4)}, s{sB} offen{cfg.pf_down_pol}
        s_mov_b64 exec, -1
        """)
    if cfg.line_pf and "f" in cfg.pf_which:
        a(f"""
        v_mul_u32_u24 v{vT0}, 52, v{vLane}
        v_lshrrev_b32 v{vT0}, 8, v{vT0}            ; l/5 for l < 64
        v_mul_u32_u24 v{vT1}, 5, v{vT0}
        v_sub_u32 v{vT1}, v{vLane}, v{vT1}         ; l%5
        v_mul_u32_u24 v{vT0}, 3584, v{vT0}
        v_lshl_add_u32 v{vT0}, v{vT1}, 7, v{vT0}
        s_lshl_b32 s{sB}, s{sIdx}, 5
        s_lshl_b32 s{sC}, s{sW}, 3
        s_add_u32 s{sB}, s{sB}, s{sC}
        s_mul_i32 s{sB}, s{sB}, 3584
        s_mul_i32 s{sC}, s{sJ}, 448
        s_and_b32 s{sC}, s{sC}, 0xffffff80
        s_add_u32 s{sB}, s{sB}, s{sC}
        """)
        setexec((1 << 40) - 1)
        a(f"buffer_load_dword v{vJ}, v{vT0}, {sr(sW2,4)}, s{sB} offen{cfg.pf_pol_f}")
        a(f"buffer_load_dword v{vJ}, v{vT0}, {sr(sUP,4)}, s{sB} offen{cfg.pf_pol_f}")
        setexec(FULL)
    if not cfg.wsB and not cfg.w_inter: gu_slices()
    if cfg.w_inter and cfg.w_interB != "gu":
        lab = a.label("wl")
        a(f"s_cmp_ge_u32 s{sIdx}, 14\ns_cbranch_scc1 {lab}")
        for part, key, srdq, sh, base in ((0, "g", sW2, 12, L_WQ), (1, "u", sUP, 14, L_K)):
            if key in cfg.w_interB: continue
            for u in range(4):
                a(f"""
                s_mul_i32 s{sB}, s{sWst2}, {u}
                s_add_u32 s{sB}, s{sB}, s{sWb2}
                s_lshl_b32 s{sC}, s{sW}, {sh}
                s_add_u32 s{sC}, s{sC}, {base + u*1024}
                s_mov_b32 m0, s{sC}
                s_nop 0
                buffer_load_dwordx4 v{vWs}, {sr(srdq,4)}, s{sB} offen{SLN} lds
                """)
        a(f"{lab}:")
    tag_check_all()
    ts("ffn_landed")
    a(f"s_cmp_ge_u32 s{sIdx}, 14\ns_cbranch_scc1 L_nogu2")
    if cfg.w_inter:
        for mat, (sh, base) in enumerate(((12, L_WQ), (14, L_K))):
            a(f"s_lshl_b32 s{sB}, s{sW}, {sh}")
            tr_base(vT0, 32, 8, sB, base)
            for u in range(4):
                a(f"ds_read_b64_tr_b16 {ar(aW2+8*u+4*mat,2)}, v{vT0} offset:{u*1024}")
                a(f"ds_read_b64_tr_b16 {ar(aW2+8*u+4*mat+2,2)}, v{vT0} offset:{u*1024+128}")
    else:
        a(f"s_lshl_b32 s{sB}, s{sW}, 14")
        tr_base(vT0, 32, 8, sB, L_K + W_GATE)
        for u in range(4):
            for mat in range(2):
                a(f"ds_read_b64_tr_b16 {ar(aW2+8*u+4*mat,2)}, v{vT0} offset:{u*1024+mat*(W_UP-W_GATE)}")
                a(f"ds_read_b64_tr_b16 {ar(aW2+8*u+4*mat+2,2)}, v{vT0} offset:{u*1024+mat*(W_UP-W_GATE)+128}")
    a("s_waitcnt lgkmcnt(0)")
    for u in range(4):
        mfma(vAcc, vOnes, ar(aW2 + 8*u, 4), "0" if u == 0 else None)
        mfma(vAcc + 4, vOnes, ar(aW2 + 8*u + 4, 4), "0" if u == 0 else None)
    a(f"s_nop 7\nds_write_b32 v{vaRedW}, v{vAcc} offset:{R_COL}\nds_write_b32 v{vaRedW}, v{vAcc+4} offset:{R_COL2}")
    a("L_nogu2:")
    a("s_waitcnt lgkmcnt(0)\ns_barrier")
    a(f"""
    ds_read_b128 {vr(vU,4)}, v{vaFinW} offset:{R_COL}
    ds_read_b128 {vr(vU+4,4)}, v{vaFinW} offset:{R_COL2}
    s_waitcnt lgkmcnt(0)
    """)
    sum4r(vU); sum4r(vU + 4)
    a(f"v_mov_b32 v{vCg}, v{vU}\nv_mov_b32 v{vCu}, v{vU+4}")
    ts("ffn_ready")
    a("L_loopB:")
    lg = a.label("nog")
    a(f"s_cmp_ge_u32 s{sIdx}, 14\ns_cbranch_scc1 {lg}")
    g_phase()
    a(f"{lg}:")
    if cfg.junk_dirty:
        lj = a.label("jk")
        a(f"s_cmp_eq_u32 s{sL}, 0\ns_cbranch_scc0 {lj}")
        a(f"s_lshl_b32 s{sB}, s2, 2\ns_add_u32 s{sB}, s{sB}, s{sW}\ns_mul_i32 s{sB}, s{sB}, {cfg.junk_dirty*1024}\ns_add_u32 s{sB}, s{sB}, 0x400000\nv_lshlrev_b32 v{vT0}, 4, v{vLane}")
        for i in range(cfg.junk_dirty):
            a(f"buffer_store_dwordx4 {vr(vP,4)}, v{vT0}, {sr(sWS,4)}, s{sB} offen\ns_add_u32 s{sB}, s{sB}, 1024")
        a(f"{lj}:")
    a(f"s_cmp_eq_u32 s{sL}, 1\ns_cbranch_scc1 L_fin")

    a("L_q2s2:")
    save_role, save_ts = g.role, g.ts
    g.role = "C"; g.ts = getattr(g, "maxts", g.ts)
    lab = a.label("wo")
    a(f"s_cmp_lt_u32 s{sM}, 16\ns_cbranch_scc{1 if cfg.warm_by_B else 0} {lab}")
    warm_q2()
    warm_o(1)
    a(f"{lab}:")
    if cfg.db_q: db_wait(None, const_hop=1)
    if cfg.diag and cfg.ts_only and "q2_db" in cfg.ts_only:
        ts("q2_db")
    a(f"s_mov_b32 s{sD}, {WS_X + X_HOP}")
    x_poll(sD, XA, cfg.sleep_x)
    ts("q2_got")
    q_core(XA)
    q_final(False)
    ts("q2_pub")
    l = a.label("qp"); ok = a.label("qok")
    setexec(EM4)
    a(f"{l}:")
    for c in range(4):
        a(f"buffer_load_dwordx4 {vr(vQ+4*c,4)}, v{vaQ2}, {sr(sWS,4)}, s{sQ2r} offen offset:{c*256} sc1")
    a("s_waitcnt vmcnt(0)")
    sent_check([vQ+i for i in range(16)], vT0, ok)
    spin_fail(l)
    a(f"{ok}:")
    setexec(FULL)
    ts("q2_gath")
    a(f"""
    s_add_u32 s{sOown}, s{sOown}, {O_L}
    s_add_u32 s{sOcons}, s{sOcons}, {O_L}
    s_add_u32 s{sXr}, s{sXr}, {2*X_HOP}
    s_add_u32 s{sHb}, s{sHb}, 8192
    s_mov_b32 s{sL}, 1
    """)
    s_qk_max()
    s_exp_p()
    if cfg.stats_mid:
        lw3 = a.label("s3"); lw4 = a.label("s4")
        a(f"s_cmp_eq_u32 s{sW}, 3\ns_cbranch_scc1 {lw3}")
        for blk in range(8):
            a(f"s_waitcnt lgkmcnt({7-blk})")
            pv([blk], blk == 0)
        a(f"s_branch {lw4}\n{lw3}:")
        a(f"""
        ds_read_b128 {vr(vU+4,4)}, v{vaSm} offset:{L_LSUM-L_SMAX}
        s_add_u32 s{sB}, s{sT}, s{sL}
        s_add_u32 s{sB}, s{sB}, 1
        v_mov_b32 v{vMc+2}, s{sB}
        """)
        for blk in range(4):
            a(f"s_waitcnt lgkmcnt({8-blk})")
            pv([blk], blk == 0)
        a("s_waitcnt lgkmcnt(0)")
        sum4r(vU + 4)
        a(f"v_mov_b32 v{vMc+1}, v{vU+4}")
        setexec(0xF)
        store_local(f"buffer_store_dwordx4 {vr(vMc,4)}, v{vaStS}, {sr(sWS,4)}, s{sOown} offen")
        setexec(FULL)
        for blk in range(4, 8):
            pv([blk], False)
        a(f"{lw4}:")
        s_out()
    else:
        s_stats_prep()
        a("s_waitcnt lgkmcnt(0)")
        pv(list(range(8)), True)
        s_out()
        s_stats_store(None)
    ts("s2_pub")
    if cfg.diag and cfg.ts_only and "s2_ack" in cfg.ts_only:
        a("s_waitcnt vmcnt(0)")
        ts("s2_ack")
    a(f"s_cmp_lt_u32 s{sM}, 16\ns_cbranch_scc1 L_loopA\ns_branch L_loopB")

    a("L_finalA:")
    g.role = "A"; g.ts = getattr(g, "maxts", g.ts)
    a(f"""
    s_cmp_ge_u32 s{sIdx}, 2
    s_cbranch_scc1 L_fin
    s_cmp_eq_u32 s{sW}, 0
    s_cbranch_scc0 L_fin
    s_lshl_b32 s{sB}, s{sJ}, 1
    s_add_u32 s{sB}, s{sB}, s{sIdx}        ; cb
    s_lshl_b32 s{sC}, s{sB}, 7
    s_add_u32 s{sC}, s{sC}, {WS_X + 3*X_HOP}
    """)
    for nt in range(2):
        for dd in range(4):
            a(f"""
            v_lshlrev_b32 v{vT0}, 3, v{vQd}
            v_add_u32 v{vT0}, {2*dd - 16*nt}, v{vT0}
            v_sub_u32 v{vT0}, v{vT0}, v{vR16}
            v_mov_b32 v{vP+4*nt+dd}, 0
            v_cmp_eq_u32 vcc, 0, v{vT0}
            v_mov_b32 v{vT1}, 0x3f80
            v_cndmask_b32 v{vP+4*nt+dd}, v{vP+4*nt+dd}, v{vT1}, vcc
            v_cmp_eq_u32 vcc, -1, v{vT0}
            v_mov_b32 v{vT1}, 0x3f800000
            v_cndmask_b32 v{vP+4*nt+dd}, v{vP+4*nt+dd}, v{vT1}, vcc
            """)
    a(f"""
    v_lshrrev_b32 v{vT2}, 1, v{vQd}
    v_lshlrev_b32 v{vT2}, 10, v{vT2}
    v_and_b32 v{vT1}, 1, v{vQd}
    v_lshl_add_u32 v{vT2}, v{vT1}, 5, v{vT2}
    v_lshl_add_u32 v{vT2}, v{vR16}, 1, v{vT2}
    s_lshl_b32 s{sB}, s{sB}, 6
    """)
    a(f"s_mov_b32 s{sEx2}, s{sC}\ns_mov_b32 s{sEx2+1}, s{sB}")
    if cfg.db_final: db_wait(None, const_hop=3)
    a(f"s_mov_b32 s{sC}, s{sEx2}\ns_mov_b32 s{sB}, s{sEx2+1}")
    l = a.label("fp"); ok = a.label("fok")
    a(f"{l}:")
    a(f"buffer_load_dwordx4 {vr(vA,4)}, v{vaX}, {sr(sWS,4)}, s{sC} offen sc1")
    a("s_waitcnt vmcnt(0)")
    sent_check([vA+i for i in range(4)], vT0, ok)
    spin_fail(l, cfg.sleep_x)
    a(f"{ok}:")
    ts("fin_got")
    mfma(vAcc, vA, vP, "0"); mfma(vAcc + 4, vA, vP + 4, "0")
    sum4(vU, vAcc, vT3); sum4(vU + 1, vAcc + 4, vT3)
    a(f"""
    v_permlane16_swap_b32 v{vU}, v{vU+1}
    v_add_f32 v{vU}, v{vU}, v{vU+1}
    v_cvt_pk_bf16_f32 v{vU}, v{vU}, v{vU}
    buffer_store_short v{vU}, v{vT2}, {sr(sOUT,4)}, s{sB} offen
    """)
    if not cfg.epoch_early:
        a(f"""
        s_cmp_eq_u32 s{sB}, 0
        s_cbranch_scc0 L_fin
        v_mov_b32 v{vT0}, {WS_EPOCH}
        v_mov_b32 v{vT1}, s{sT}
        """)
        setexec(1)
        a(f"buffer_store_dword v{vT1}, v{vT0}, {sr(sWS,4)}, 0 offen sc1")
        setexec(FULL)

    a("L_fin:")
    if cfg.diag:
        g.role = "E"
        g.tsn["E"].append((NTS - 1, "end"))
        a(f"s_memrealtime s[{sTmp2}:{sTmp2+1}]\ns_waitcnt lgkmcnt(0)\ns_mov_b32 s{sTS+NTS-2}, s{sTmp2}")
        a(f"s_memtime s[{sTmp2}:{sTmp2+1}]\ns_waitcnt lgkmcnt(0)\ns_mov_b32 s{sTS+NTS-1}, s{sTmp2}")
        a(f"s_lshl_b32 s{sB}, s2, 3\ns_add_u32 s{sB}, s{sB}, s{sW}\ns_lshl_b32 s{sB}, s{sB}, 7\ns_add_u32 s{sB}, s{sB}, {WS_DIAG}\nv_mov_b32 v{vT0}, 0")
        setexec(1)
        for i in range(NTS):
            a(f"v_mov_b32 v{vT1}, s{sTS+i}\nbuffer_store_dword v{vT1}, v{vT0}, {sr(sWS,4)}, s{sB} offen offset:{4*i}")
        setexec(FULL)
    if cfg.dbg_span:
        a(f"""
        s_waitcnt vmcnt(0)
        s_cmp_eq_u32 s{sW}, 0
        s_cbranch_scc0 L_nospan
        s_memrealtime s[{sTmp2}:{sTmp2+1}]
        s_load_dwordx2 s[92:93], s[0:1], 80
        s_waitcnt lgkmcnt(0)
        s_mov_b32 s{sA}, s92
        s_and_b32 s{sB}, s93, 0xffff
        s_mov_b32 s{sC}, 256
        s_mov_b32 s{sD}, 0x20000
        v_mov_b32 v{vT0}, 8
        v_mov_b32 v{vT1}, s{sTmp2}
        s_not_b32 s94, s94
        v_mov_b32 v{vT2}, s94
        s_mov_b64 exec, 1
        buffer_atomic_umax v{vT1}, v{vT0}, s[{sA}:{sD}], 0 offen sc1
        buffer_atomic_umax v{vT2}, v{vT0}, s[{sA}:{sD}], 0 offen offset:4 sc1
        s_waitcnt vmcnt(0)
        L_nospan:
        """)
    a("s_waitcnt vmcnt(0)\ns_endpgm")
    a(f"""
    L_abort:
    s_mov_b64 exec, -1
    v_mov_b32 v{vT0}, 0
    v_mov_b32 v{vT1}, 0xdead
    s_load_dwordx2 s[{sTmp2}:{sTmp2+1}], s[0:1], 80
    s_waitcnt lgkmcnt(0)
    s_mov_b32 s{sA}, s{sTmp2}
    s_and_b32 s{sB}, s{sTmp2+1}, 0xffff
    s_mov_b32 s{sC}, 256
    s_mov_b32 s{sD}, 0x20000
    s_mov_b64 exec, 1
    buffer_store_dword v{vT1}, v{vT0}, s[{sA}:{sD}], 0 offen offset:4
    s_waitcnt vmcnt(0)
    L_end:
    s_endpgm
    """)
    for o in g.ool: a(o)
    a("L_codeend:\ns_endpgm")
    lines = a.text().rstrip("\n").split("\n")
    g.ninstr = sum(1 for l in lines if l.startswith("    ") and not l.strip().startswith(";"))
    lines = hazard.pad(lines)
    return g, "\n".join(lines) + "\n"

HEADER = open("interleave_layers__sliding_block_cached__glu_gated_glu__decode.s.ref").read().split("; Override launch")[0]

def full(cfg):
    g, body = build(cfg)
    txt = HEADER
    txt += "; Persistent single-launch kernel: 256 workgroups (one per CU) x 256 threads.\n"
    txt += f"; @launch grid=(256,1,1) block=(256,1,1) lds={LDS_BYTES}\n"
    txt += '.amdgcn_target "amdgcn-amd-amdhsa--gfx950"\n.text\n'
    txt += f".globl {NAME}\n.p2align 8\n.type {NAME},@function\n{NAME}:\n"
    txt += body
    txt += '.section .rodata,"a"\n.p2align 6\n'
    txt += f".amdhsa_kernel {NAME}\n  .amdhsa_next_free_vgpr {256 + g.amax}\n  .amdhsa_next_free_sgpr 102\n  .amdhsa_accum_offset 256\n"
    txt += "  .amdhsa_group_segment_fixed_size 0\n  .amdhsa_kernarg_size 96\n  .amdhsa_user_sgpr_count 2\n  .amdhsa_user_sgpr_kernarg_segment_ptr 1\n  .amdhsa_system_sgpr_workgroup_id_x 1\n.end_amdhsa_kernel\n"
    return g, txt

if __name__ == "__main__":
    cfg = Cfg()
    for kv in sys.argv[2:]:
        k, v = kv.split("="); setattr(cfg, k, eval(v))
    g, txt = full(cfg)
    open(sys.argv[1], "w").write(txt)
    print("vgprs", g.vmax, "agprs", g.amax, "instrs", g.ninstr, "ts", g.tsn)
```

```python
import sys, struct
from asmlib import Asm
import hazard

NAME = "interleave_layers__sliding_block_cached__glu_gated_glu__decode_kernel"

WS_EPOCH = 0x0
WS_Q1 = 0x10000
WS_DB = 0x1c000
WS_Q2 = 0x20000
WS_H  = 0x28000
WS_X  = 0xE0000
X_HOP = 32768
WS_O  = 0x40000
O_STATS = 32768
O_J = O_STATS + 2048
O_L = 8 * O_J
WS_DIAG = 0x100000
WS_SIZE = 0x1000000

L_SMAX = 0
L_LSUM = 64
L_PBUF = 256
L_RED = 2560
R_Q, R_G, R_GZ, R_O, R_D, R_COL, R_COL2 = [L_RED + 1024 * i for i in range(7)]
L_QG = 10240
L_X0 = 14336
L_K = 16384
L_V = L_K + 65536
L_WQ = L_V + 65536
L_XI = L_V
LDS_BYTES = 163840
W_GATE, W_UP, W_DN = 0, 4096, 8192

C_SCALE = 0.08838834764831845 * 1.4426950408889634
def f2u(x): return struct.unpack("<I", struct.pack("<f", x))[0]

class Cfg:
    nKA = 8
    nKb1 = 1
    pace = 8
    gpts = (1, 2, 4)
    diag = False
    ts_only = None
    ts_issue = False
    force_global = False
    budget = 400000
    prefetch_code = True
    sleep_x = 0
    sleep_x0 = 0
    sleep_o = 0
    sl_nt = True
    pf_pol = ""
    pf_pol_f = ""
    pf_pol_o = " nt"
    pf_which = "qf"
    dbg_span = False
    counters = False
    db_early = False
    doorbell = True
    warm = True
    pf_stream = ""
    pf_pos = None
    pf_early = False
    pf_spol = " nt"
    wsA = False
    wsB = False
    junk_dirty = 0
    epoch_early = True
    w_interB = "gu"
    w_inter = False
    v3_early = False
    warm_by_B = True
    o_spec = True
    db_g = True
    db_q = True
    db_final = False
    stats_mid = True
    pf_down = False
    pf_down_pol = " nt"
    kv_pol = " nt"
    warm_out = False
    line_pf = True
    const_tag = False
    no_clear0 = False
    clr0_late = False

def vr(b, n=1): return f"v[{b}:{b+n-1}]" if n > 1 else f"v{b}"
def ar(b, n=1): return f"a[{b}:{b+n-1}]" if n > 1 else f"a{b}"
def sr(b, n=1): return f"s[{b}:{b+n-1}]" if n > 1 else f"s{b}"

sJ, sM, sW, sIdx, sL = 3, 4, 5, 6, 7
sWS, sKS, sVS, sWQ, sW2, sUP, sDN, sX0, sOUT = 8, 12, 16, 20, 24, 28, 32, 36, 40
sT, sTX, sLocal, sBud = 44, 45, 46, 47
sMDIAG = 48
sM4 = 50
sM2 = 52
sMN1 = 54
sMEV = 56
sEx = 58
sA, sB, sC, sD = 60, 61, 62, 63
sKV, sRot = 64, 65
sOown, sOcons, sXw, sXr, sHb, sQ2w, sQ2r = 66, 67, 68, 69, 70 - 70 + 96, 97, 98
sXcc = 99
sWb2, sWst2 = 68, 60
sWb, sWst = 59, 69
sKS2 = sKS
sDBtag = 59
sEx2 = 50
sDBw, sDBr = 64, 65
sXI = 58
sTmp2 = 100
sTS = 70
NTS = 26

class G:
    pass

def build(cfg):
    g = G(); a = Asm(); g.a = a
    g.tsn = {"C": [], "A": [], "B": [], "E": []}; g.role = "C"; g.ts = 0; g.cnts = {}; g.cnt_names = []
    nv = [1]
    def valloc(n=1, align=1):
        nv[0] = (nv[0] + align - 1) // align * align
        r = nv[0]; nv[0] += n
        assert nv[0] <= 256
        return r
    vLane = valloc(); vR16 = valloc(); vQd = valloc()
    vT0 = valloc(); vT1 = valloc(); vT2 = valloc(); vT3 = valloc()
    vOnes = valloc(4, 4)
    vQ = valloc(16, 4)
    vA = valloc(40, 4)
    vAcc = valloc(16, 4)
    vS = valloc(16, 4)
    vP = valloc(32, 4)
    vJ = valloc()
    vHop = valloc(8, 4)
    vU = valloc(16, 4)
    vSt = valloc(8, 4)
    vW = valloc(2, 2)
    vCs = valloc(); vCg = valloc(); vCu = valloc()
    vRes = valloc(); vResF = valloc()
    vQ1d = valloc(2, 2); vQ1a = valloc()
    vMc = valloc(4, 4)
    vaX = valloc(); vaXg = valloc(); vaXr = valloc(); vaStQ = valloc(); vaClrO = valloc(); vaO0 = valloc(); vaO1 = valloc(); vaS0 = valloc(); vaS1 = valloc(); vaQ2 = valloc(); vaH = valloc()
    vaPw = valloc(); vaPr = valloc(); vaSm = valloc(); vaSmW = valloc(); vaRedW = valloc(); vaRedZ = valloc()
    vaFinW = valloc(); vaFinZ = valloc(); vaFinQZ = valloc(); vaFinO = valloc()
    vaStH = valloc(); vaStX = valloc(); vaStO = valloc(); vaStS = valloc(); vaResU = valloc()
    vWs = valloc()
    vKs = valloc(4); vVs = valloc(2); vVr = valloc(2); vKr = valloc(4)
    g.vmax = nv[0]
    aK, aV, aWq, aW2, aWd = 0, 64, 128, 144, 176
    g.amax = 192

    FULL = (1 << 64) - 1
    def ts(name):
        if not cfg.diag: return
        if cfg.ts_only and name not in cfg.ts_only and name not in ("start", "setup", "issued"): return
        i = g.ts; g.ts += 1; g.maxts = max(getattr(g, "maxts", 0), g.ts)
        assert i < NTS - 3, name
        g.tsn[g.role].append((i, name))
        if name == "start":
            return
        if name == "issued":
            g.i_issued = i
            a(f"s_memtime s[{sTmp2}:{sTmp2+1}]\ns_waitcnt lgkmcnt(0)\ns_mov_b32 s92, s{sTmp2}")
            return
        if name == "setup":
            a(f"s_mov_b32 s{sTS}, s90\ns_mov_b32 s{sTS+NTS-3}, s91")
            if cfg.ts_issue: a(f"s_mov_b32 s{sTmp2}, s92")
            for z in list(range(1, NTS - 3)) + [NTS - 2, NTS - 1]: a(f"s_mov_b32 s{sTS+z}, 0")
            if cfg.ts_issue: a(f"s_mov_b32 s{sTS+g.i_issued}, s{sTmp2}")
        if cfg.ts_only and name not in cfg.ts_only:
            return
        a(f"s_memtime s[{sTmp2}:{sTmp2+1}]\ns_waitcnt lgkmcnt(0)\ns_mov_b32 s{sTS+i}, s{sTmp2}")
    def ts_dyn(name0, name1):
        if not cfg.diag: return
        if cfg.ts_only and name0 not in cfg.ts_only: return
        i = g.ts; g.ts += 2; g.maxts = max(getattr(g, "maxts", 0), g.ts)
        assert i + 1 < NTS - 3, name0
        g.tsn[g.role].append((i, name0)); g.tsn[g.role].append((i + 1, name1))
        if cfg.ts_only and name0 not in cfg.ts_only: return
        a(f"""s_memtime s[{sTmp2}:{sTmp2+1}]
        s_waitcnt lgkmcnt(0)
        s_cmp_eq_u32 s{sL}, 0
        s_cselect_b32 s{sTS+i}, s{sTmp2}, s{sTS+i}
        s_cselect_b32 s{sTS+i+1}, s{sTS+i+1}, s{sTmp2}""")

    def cnt(name):
        if not (cfg.diag and cfg.counters): return
        key = (g.role, name)
        if key not in g.cnts:
            i = g.ts; g.ts += 1; g.maxts = max(getattr(g, "maxts", 0), g.ts)
            assert i < NTS - 3, name
            g.cnts[key] = i; g.cnt_names.append((g.role, i, name))
        a(f"s_add_u32 s{sTS+g.cnts[key]}, s{sTS+g.cnts[key]}, 1")

    def setexec(mask):
        if mask == FULL: a("s_mov_b64 exec, -1")
        elif isinstance(mask, str): a(f"s_mov_b64 exec, {mask}")
        elif mask < 65 or mask in (0xFFFF, 0xF, 0xFF):
            a(f"s_mov_b64 exec, 0x{mask:x}" if mask >= 65 else f"s_mov_b64 exec, {mask}")
        else:
            a(f"s_mov_b32 exec_lo, 0x{mask & 0xFFFFFFFF:x}\ns_mov_b32 exec_hi, 0x{mask >> 32:x}")
    EM4, EM2, EMEV = f"s[{sM4}:{sM4+1}]", f"s[{sM2}:{sM2+1}]", f"s[{sMEV}:{sMEV+1}]"

    def srd(dst, ptr_s, size):
        a(f"s_mov_b32 s{dst}, s{ptr_s}\ns_and_b32 s{dst+1}, s{ptr_s+1}, 0xffff\ns_mov_b32 s{dst+2}, 0x{size:x}\ns_mov_b32 s{dst+3}, 0x20000")

    def mfma(d, A, B, C=None):
        f = lambda x: x if isinstance(x, str) else vr(x, 4)
        c = f(d) if C is None else C
        a(f"v_mfma_f32_16x16x32_bf16 {f(d)}, {f(A)}, {f(B)}, {c}")

    def spin_fail(lbl_retry, sleep=0):
        if sleep: a(f"s_sleep {sleep}")
        a(f"s_sub_u32 s{sBud}, s{sBud}, 1\ns_cbranch_scc0 {lbl_retry}\ns_branch L_abort")
    def interleave(mf, va, start, per=2):
        va = list(va)
        for i, m in enumerate(mf):
            a(m)
            if i >= start:
                for _ in range(per):
                    if va: a(va.pop(0))
        for v in va: a(v)
    def mf(d, A, B, C=None):
        f = lambda x: x if isinstance(x, str) else vr(x, 4)
        return f"v_mfma_f32_16x16x32_bf16 {f(d)}, {f(A)}, {f(B)}, {f(d) if C is None else C}"

    def sent_max(regs, tmp):
        rs = list(regs)
        if len(rs) == 1: return rs[0]
        if len(rs) == 2:
            a(f"v_max_u32 v{tmp}, v{rs[0]}, v{rs[1]}"); rs = []
        else:
            a(f"v_max3_u32 v{tmp}, v{rs[0]}, v{rs[1]}, v{rs[2]}"); rs = rs[3:]
        while len(rs) >= 2:
            a(f"v_max3_u32 v{tmp}, v{tmp}, v{rs[0]}, v{rs[1]}"); rs = rs[2:]
        if rs: a(f"v_max_u32 v{tmp}, v{tmp}, v{rs[0]}")
        return tmp
    def sent_check(regs, tmp, lbl_ok):
        cur = sent_max(regs, tmp)
        a(f"v_cmp_eq_u32 vcc, -1, v{cur}\ns_cbranch_vccz {lbl_ok}")

    g.ool = []
    def store_local(instr):
        if cfg.force_global:
            a(instr + " sc1"); return
        l1 = a.label("stg"); l2 = a.label("std")
        a(f"s_cmp_eq_u32 s{sLocal}, 0\ns_cbranch_scc1 {l1}")
        a(instr)
        a(f"{l2}:")
        g.ool.append(f"{l1}:\n{instr} sc1\ns_branch {l2}")

    def dpp(op, d, s0, s1, ctrl, rm="0xf", bm="0xf"):
        if s1 is None: a(f"{op}_dpp v{d}, v{s0} {ctrl} row_mask:{rm} bank_mask:{bm}")
        else: a(f"{op}_dpp v{d}, v{s0}, v{s1} {ctrl} row_mask:{rm} bank_mask:{bm}")
    def row_reduce(op, v, steps=(8, 4, 2, 1)):
        for n in steps: dpp(op, v, v, v, f"row_ror:{n}")
    def xquad_reduce(op, v, tmp):
        a(f"v_mov_b32 v{tmp}, v{v}\nv_permlane32_swap_b32 v{v}, v{tmp}\n{op} v{v}, v{v}, v{tmp}")
        a(f"v_mov_b32 v{tmp}, v{v}\nv_permlane16_swap_b32 v{v}, v{tmp}\n{op} v{v}, v{v}, v{tmp}")
    def sum4(dst, b, tmp):
        a(f"v_add_f32 v{dst}, v{b}, v{b+1}\nv_add_f32 v{tmp}, v{b+2}, v{b+3}\nv_add_f32 v{dst}, v{dst}, v{tmp}")

    P = sTS
    EARLY = ""
    if cfg.dbg_span:
        EARLY = f"s_memrealtime s[94:95]"
    if cfg.diag:
        EARLY = f"s_memrealtime s[{sTmp2}:{sTmp2+1}]\ns_waitcnt lgkmcnt(0)\ns_mov_b32 s91, s{sTmp2}\ns_memtime s[{sTmp2}:{sTmp2+1}]\ns_waitcnt lgkmcnt(0)\ns_mov_b32 s90, s{sTmp2}"
    SLN = " nt" if cfg.sl_nt else ""
    a(f"""
    s_cmp_ge_u32 s2, 256
    s_cbranch_scc1 L_end
    {EARLY}
    s_load_dwordx4 s[{P+6}:{P+9}], s[0:1], 16          ; V, wq     (76..79)
    s_load_dwordx4 s[{P+2}:{P+5}], s[0:1], 0           ; x, K      (72..75)
    s_load_dwordx2 s[{P+18}:{P+19}], s[0:1], 88        ; ws        (88..89)
    s_load_dwordx2 s[{P}:{P+1}], s[0:1], 32            ; wo        (70..71)
    s_load_dwordx4 s[{P+10}:{P+13}], s[0:1], 48
    s_load_dwordx4 s[{P+14}:{P+17}], s[0:1], 64
    v_lshrrev_b32 v{vT0}, 6, v0
    v_and_b32 v{vLane}, 63, v0
    """)
    if cfg.prefetch_code:
        a(f"""
        s_getpc_b64 s[{sTmp2}:{sTmp2+1}]
        L_pfbase:
        v_readfirstlane_b32 s{sW}, v{vT0}
        v_lshlrev_b32 v{vT1}, 7, v0
        s_mov_b32 s{sB}, (L_codeend - L_pfbase)
        v_cmp_gt_u32 vcc, s{sB}, v{vT1}
        s_and_b32 s{sJ}, s2, 7
        s_and_saveexec_b64 s[{sEx}:{sEx+1}], vcc
        s_cbranch_execz L_nopf
        global_load_dword v{vU+15}, v{vT1}, s[{sTmp2}:{sTmp2+1}]
        L_nopf:
        s_mov_b64 exec, s[{sEx}:{sEx+1}]
        """)
    else:
        a(f"s_and_b32 s{sJ}, s2, 7\nv_readfirstlane_b32 s{sW}, v{vT0}")
    a(f"""
    s_lshr_b32 s{sM}, s2, 3
    v_lshrrev_b32 v{vT2}, 1, v{vLane}
    v_lshlrev_b32 v{vT2}, 13, v{vT2}
    v_and_b32 v{vT3}, 1, v{vLane}
    v_lshl_add_u32 v{vT2}, v{vT3}, 4, v{vT2}
    v_lshrrev_b32 v{vT0}, 3, v{vLane}
    v_lshlrev_b32 v{vT0}, 13, v{vT0}
    v_and_b32 v{vT3}, 7, v{vLane}
    v_lshl_add_u32 v{vT0}, v{vT3}, 7, v{vT0}
    s_lshl_b32 s{sC}, s{sJ}, 10
    s_lshl_b32 s{sA}, s{sM}, 2
    s_add_u32 s{sA}, s{sA}, s{sW}
    s_lshl_b32 s{sA}, s{sA}, 15
    s_add_u32 s{sA}, s{sA}, s{sC}
    s_lshl_b32 s{sB}, s{sW}, 20
    s_add_u32 s{sB}, s{sB}, s{sC}
    s_lshl_b32 s{sC}, s{sM}, 5
    s_add_u32 s{sB}, s{sB}, s{sC}
    s_lshl_b32 s{sC}, s{sW}, 12
    s_add_u32 s{sC}, s{sC}, {L_WQ}
    s_mov_b32 s{sWQ+2}, 0x400000
    s_mov_b32 s{sWQ+3}, 0x20000
    s_waitcnt lgkmcnt(0)
    s_mov_b32 s{sWQ}, s{P+8}
    s_and_b32 s{sWQ+1}, s{P+9}, 0xffff
    """)
    if cfg.line_pf and "q" in cfg.pf_which:
        setexec(0xFFFFFFFF)
        a(f"buffer_load_dword v{vJ}, v{vT0}, {sr(sWQ,4)}, s{sA} offen{cfg.pf_pol}")
        setexec(FULL)
    for u in range(4):
        a(f"""
        s_mov_b32 m0, s{sC}
        s_add_u32 s{sC}, s{sC}, 1024
        buffer_load_dwordx4 v{vT2}, {sr(sWQ,4)}, s{sB} offen{SLN} lds
        s_add_u32 s{sB}, s{sB}, {32*8192}
        """)
    XA = vA + 8
    a(f"""
    v_and_b32 v{vR16}, 15, v0
    v_lshrrev_b32 v{vQd}, 4, v{vLane}
    s_and_b32 s{sIdx}, s{sM}, 15
    s_and_b32 s{sRot}, s{sM}, 7
    s_lshl_b32 s{sRot}, s{sRot}, 1
    s_lshr_b32 s{sB}, s{sM}, 4
    s_lshl_b32 s{sB}, s{sB}, 3
    s_add_u32 s{sB}, s{sB}, s{sJ}
    s_lshl_b32 s{sB}, s{sB}, 23
    s_lshl_b32 s{sC}, s{sIdx}, 16
    s_add_u32 s{sKV}, s{sB}, s{sC}
    s_add_u32 s{sKV}, s{sKV}, 0x700000
    v_lshlrev_b32 v{vT1}, 4, v{vLane}          ; lane*16
    """)
    srd(sKS, P + 4, 0x8000000)
    for i in range(4):
        a(f"""
        v_add_u32 v{vT3}, {4*i}, v{vQd}
        v_xor_b32 v{vT3}, v{vT3}, v{vR16}
        v_lshlrev_b32 v{vT3}, 4, v{vT3}
        v_lshl_add_u32 v{vKs+i}, v{vQd}, 8, v{vT3}
        """)
    srd(sWS, P + 18, WS_SIZE)
    if cfg.const_tag: a(f"s_mov_b32 s{sT}, 0x12345670")
    else: a(f"s_load_dword s{sT}, s[{P+18}:{P+19}], {WS_EPOCH}")
    srd(sX0, P + 2, 2048)
    a(f"s_cmp_eq_u32 s{sW}, 0\ns_cbranch_scc0 L_nox0")
    a(f"""
    s_mov_b32 m0, {L_X0}
    s_nop 0
    buffer_load_dwordx4 v{vT1}, {sr(sX0,4)}, 0 offen lds
    buffer_load_dwordx4 v{vT1}, {sr(sX0,4)}, 0 offen offset:1024 lds
    L_nox0:
    """)
    a(f"""
    s_mul_i32 s{sOown}, s{sJ}, {O_J}
    s_lshr_b32 s{sB}, s{sM}, 4
    s_lshl_b32 s{sB}, s{sB}, 14
    s_add_u32 s{sOown}, s{sOown}, s{sB}
    s_lshl_b32 s{sB}, s{sIdx}, 4
    s_add_u32 s{sOown}, s{sOown}, s{sB}
    s_add_u32 s{sOown}, s{sOown}, {WS_O}
    s_lshl_b32 s{sC}, s{sJ}, 11
    s_lshl_b32 s{sD}, s{sIdx}, 7
    s_add_u32 s{sC}, s{sC}, s{sD}
    s_add_u32 s{sXw}, s{sC}, {WS_X}
    s_mov_b32 s{sXr}, {WS_X}
    s_lshl_b32 s{sHb}, s{sJ}, 10
    s_add_u32 s{sHb}, s{sHb}, {WS_H}
    s_lshl_b32 s{sQ2w}, s{sJ}, 11
    s_add_u32 s{sQ2r}, s{sQ2w}, {WS_Q2}
    ; producer m: h = m>>3, c = (m>>1)&3, e0 = 2*(m&1)  ->  c*256 + e0*64 + h*16
    s_lshr_b32 s{sB}, s{sM}, 1
    s_and_b32 s{sB}, s{sB}, 3
    s_lshl_b32 s{sB}, s{sB}, 8
    s_add_u32 s{sQ2w}, s{sQ2r}, s{sB}
    s_and_b32 s{sB}, s{sM}, 1
    s_lshl_b32 s{sB}, s{sB}, 7
    s_add_u32 s{sQ2w}, s{sQ2w}, s{sB}
    s_lshr_b32 s{sB}, s{sM}, 3
    s_lshl_b32 s{sB}, s{sB}, 4
    s_add_u32 s{sQ2w}, s{sQ2w}, s{sB}
    s_lshr_b32 s{sB}, s{sM}, 4
    s_lshl_b32 s{sB}, s{sB}, 10
    s_add_u32 s{sQ2r}, s{sQ2r}, s{sB}
    """)
    if cfg.no_clear0: a("s_branch L_clr_done")
    a(f"""
    v_mov_b32 v{vU}, -1
    v_mov_b32 v{vU+1}, -1
    v_mov_b32 v{vU+2}, -1
    v_mov_b32 v{vU+3}, -1
    v_bfe_u32 v{vT3}, v{vLane}, 1, 1
    v_lshlrev_b32 v{vT3}, 10, v{vT3}
    v_and_b32 v{vT0}, 1, v{vLane}
    v_lshl_add_u32 v{vT3}, v{vT0}, 6, v{vT3}
    v_add_u32 v{vT0}, s{sQ2w}, v{vT3}
    s_cmp_lt_u32 s{sM}, 16
    s_cbranch_scc0 L_clr_B
    s_cmp_eq_u32 s{sW}, 1
    s_cbranch_scc0 L_clr_A2
    """)
    setexec(0xF)
    a(f"""
    s_branch L_clr_st
    L_clr_A2:
    s_cmp_eq_u32 s{sW}, 2
    s_cbranch_scc0 L_clr_done
    s_xor_b32 s{sC}, s{sXw}, 0x2000
    s_add_u32 s{sC}, s{sC}, 16384
    v_mov_b32 v{vT0}, s{sXw}
    v_mov_b32 v{vT1}, s{sC}
    v_bfe_u32 v{vT3}, v{vLane}, 3, 1
    v_cmp_eq_u32 vcc, 1, v{vT3}
    v_cndmask_b32 v{vT0}, v{vT0}, v{vT1}, vcc
    v_lshrrev_b32 v{vT3}, 4, v{vLane}
    v_lshlrev_b32 v{vT3}, 15, v{vT3}
    v_and_b32 v{vT1}, 7, v{vLane}
    v_lshl_add_u32 v{vT3}, v{vT1}, 4, v{vT3}
    v_add_u32 v{vT0}, v{vT0}, v{vT3}
    s_branch L_clr_st
    L_clr_B:
    s_cmp_eq_u32 s{sW}, 2
    s_cbranch_scc0 L_clr_done
    """)
    setexec(0xF)
    a(f"""
    s_cmp_ge_u32 s{sIdx}, 14
    s_cbranch_scc1 L_clr_st
    s_lshl_b32 s{sD}, s{sIdx}, 6
    s_add_u32 s{sC}, s{sHb}, s{sD}
    """)
    setexec(0xFF0)
    a(f"""
    v_bfe_u32 v{vT3}, v{vLane}, 3, 1
    v_lshlrev_b32 v{vT3}, 13, v{vT3}
    v_and_b32 v{vT1}, 3, v{vLane}
    v_lshl_add_u32 v{vT3}, v{vT1}, 4, v{vT3}
    v_add_u32 v{vT0}, s{sC}, v{vT3}
    """)
    setexec(0xFFF)
    a("L_clr_st:")
    a(f"buffer_store_dwordx4 {vr(vU,4)}, v{vT0}, {sr(sWS,4)}, 0 offen sc1")
    setexec(FULL)
    a("L_clr_done:")
    def emit_wpf(qWO, qGT, reload_ptrs):
        n = 0
        a(f"s_lshl_b32 s{sD}, s{sM}, 2\ns_add_u32 s{sD}, s{sD}, s{sW}               ; q = 4m + w")
        if reload_ptrs:
            a(f"""
            s_load_dwordx2 s[{qWO}:{qWO+1}], s[0:1], 32
            s_load_dwordx2 s[{qGT}:{qGT+1}], s[0:1], 48
            s_waitcnt lgkmcnt(0)
            s_and_b32 s{qWO+1}, s{qWO+1}, 0xffff
            s_mov_b32 s{qWO+2}, 0x400000
            s_and_b32 s{qGT+1}, s{qGT+1}, 0xffff
            s_mov_b32 s{qGT+2}, {512*1792*2}
            """)
        if "o" in cfg.pf_stream:
            a(f"""
            v_lshlrev_b32 v{vT0}, 7, v{vLane}
            s_lshl_b32 s{sB}, s{sJ}, 19
            s_lshl_b32 s{sC}, s{sD}, 12
            s_add_u32 s{sB}, s{sB}, s{sC}
            """)
            setexec(0xFFFFFFFF)
            a(f"buffer_load_dword v{vJ}, v{vT0}, {sr(qWO,4)}, s{sB} offen{cfg.pf_spol}")
            setexec(FULL); n += 1
        if "g" in cfg.pf_stream or "u" in cfg.pf_stream:
            a(f"""
            v_mul_u32_u24 v{vT0}, 52, v{vLane}
            v_lshrrev_b32 v{vT0}, 8, v{vT0}
            v_mul_u32_u24 v{vT1}, 5, v{vT0}
            v_sub_u32 v{vT1}, v{vLane}, v{vT1}
            v_mul_u32_u24 v{vT0}, 3584, v{vT0}
            v_lshl_add_u32 v{vT0}, v{vT1}, 7, v{vT0}
            s_mul_i32 s{sB}, s{sD}, {4*3584}
            s_mul_i32 s{sC}, s{sJ}, 448
            s_and_b32 s{sC}, s{sC}, 0xffffff80
            s_add_u32 s{sB}, s{sB}, s{sC}
            """)
            setexec((1 << 20) - 1)
            if "g" in cfg.pf_stream:
                a(f"buffer_load_dword v{vJ}, v{vT0}, {sr(qGT,4)}, s{sB} offen{cfg.pf_spol}"); n += 1
            if "u" in cfg.pf_stream:
                a(f"buffer_load_dword v{vJ}, v{vT0}, {sr(sUP,4)}, s{sB} offen{cfg.pf_spol}"); n += 1
            setexec(FULL)
        if "d" in cfg.pf_stream:
            a(f"""
            v_lshlrev_b32 v{vT0}, 7, v{vLane}
            s_min_u32 s{sB}, s{sD}, 111
            s_lshl_b32 s{sB}, s{sB}, 11
            s_mul_i32 s{sC}, s{sJ}, {224*1024}
            s_add_u32 s{sB}, s{sB}, s{sC}
            """)
            setexec(0xFFFF)
            a(f"buffer_load_dword v{vJ}, v{vT0}, {sr(sDN,4)}, s{sB} offen{cfg.pf_spol}")
            setexec(FULL); n += 1
        return n

    def page_off(t, dst):
        a(f"""
        s_add_u32 s{dst}, s{sW}, s{sRot}
        s_add_u32 s{dst}, s{dst}, {4*t}
        s_and_b32 s{dst}, s{dst}, 15
        s_lshl_b32 s{dst}, s{dst}, 12
        s_add_u32 s{dst}, s{dst}, s{sKV}
        """)
    def k_page(t):
        page_off(t, sD)
        a(f"s_lshl_b32 s{sC}, s{sW}, 14\ns_add_u32 s{sC}, s{sC}, {L_K + t*4096}\ns_mov_b32 m0, s{sC}\ns_nop 0")
        for ii in range(4):
            a(f"buffer_load_dwordx4 v{vKs+ii}, {sr(sKS,4)}, s{sD} offen offset:{ii*1024}{cfg.kv_pol} lds")
    nKpA = cfg.nKA // 4
    for t in range(cfg.nKb1): k_page(t)
    nPFe = 0
    if cfg.pf_stream and cfg.pf_early:
        srd(sVS, P, 0x400000)
        srd(sOUT, P + 10, 512 * 1792 * 2)
        srd(sUP, P + 12, 512 * 1792 * 2)
        srd(sDN, P + 14, 1792 * 512 * 2)
        nPFe = emit_wpf(sVS, sOUT, False)
    ts("start")
    if cfg.ts_issue: ts("issued")

    srd(sVS, P + 6, 0x8000000)
    srd(sUP, P + 12, 512 * 1792 * 2)
    srd(sDN, P + 14, 1792 * 512 * 2)
    srd(sOUT, P + 16, 2048)
    a(f"""
    s_cmp_lt_u32 s{sM}, 16
    s_cselect_b32 s{sW2}, s{P}, s{P+10}
    s_cselect_b32 s{sW2+1}, s{P+1}, s{P+11}
    s_mov_b32 s{sW2+2}, {512*1792*2}
    s_cselect_b32 s{sW2+2}, 0x400000, s{sW2+2}
    s_and_b32 s{sW2+1}, s{sW2+1}, 0xffff
    s_mov_b32 s{sW2+3}, 0x20000
    s_mov_b32 s{sBud}, {cfg.budget}
    s_getreg_b32 s{sXcc}, hwreg(HW_REG_XCC_ID, 0, 4)
    s_mov_b32 s{sMDIAG}, 0x00ff00ff
    s_mov_b32 s{sMDIAG+1}, 0xff00ff00
    s_mov_b32 s{sM4}, 0x000f000f
    s_mov_b32 s{sM4+1}, 0x000f000f
    s_mov_b32 s{sM2}, 0x00030003
    s_mov_b32 s{sM2+1}, 0x00030003
    s_mov_b32 s{sMN1}, 0x00020002
    s_mov_b32 s{sMN1+1}, 0x00020002
    s_mov_b32 s{sMEV}, 0x55555555
    s_mov_b32 s{sMEV+1}, 0x55555555
    s_mov_b32 s{sL}, 0
    s_mul_i32 s{sOcons}, s{sJ}, {O_J}
    s_lshl_b32 s{sB}, s{sW}, 12
    s_add_u32 s{sOcons}, s{sOcons}, s{sB}
    s_add_u32 s{sOcons}, s{sOcons}, {WS_O}
    """)
    for i in range(4): a(f"v_mov_b32 v{vOnes+i}, 0x3f803f80")
    for i in range(16): a(f"v_mov_b32 v{vQ+i}, 0")
    for i in range(8): a(f"v_mov_b32 v{vHop+i}, 0")
    a(f"v_mov_b32 v{vQ1a}, 0\nv_mov_b32 v{vQ1d}, 0\nv_mov_b32 v{vQ1d+1}, 0")
    h3 = vU; qh = vU + 1; ql = vU + 2
    a(f"""
    v_and_b32 v{h3}, 3, v{vR16}
    v_lshrrev_b32 v{qh}, 1, v{vQd}
    v_and_b32 v{ql}, 1, v{vQd}
    v_and_b32 v{vT0}, 7, v{vR16}
    v_lshlrev_b32 v{vT0}, 11, v{vT0}
    v_lshrrev_b32 v{vT1}, 3, v{vR16}
    v_lshl_add_u32 v{vT0}, v{vT1}, 6, v{vT0}
    v_lshl_add_u32 v{vaX}, v{vQd}, 4, v{vT0}
    s_lshr_b32 s{sA}, s{sXcc}, 2
    v_bfe_u32 v{vT1}, v{vaX}, 13, 1
    v_cmp_ne_u32 vcc, s{sA}, v{vT1}
    v_xor_b32 v{vT1}, 0x2000, v{vaX}
    v_add_u32 v{vT1}, 16384, v{vT1}
    v_cndmask_b32 v{vaX}, v{vaX}, v{vT1}, vcc
    v_lshrrev_b32 v{vT0}, 3, v{vLane}
    v_and_b32 v{vT1}, 2, v{vT0}
    v_and_b32 v{vT2}, 7, v{vLane}
    v_xor_b32 v{vT1}, v{vT1}, v{vT2}
    v_lshlrev_b32 v{vT1}, 4, v{vT1}
    v_lshl_add_u32 v{vT0}, v{vT0}, 11, v{vT1}
    s_lshl_b32 s{sB}, s{sW}, 9
    v_add_u32 v{vaXg}, s{sB}, v{vT0}
    v_bfe_u32 v{vT1}, v{vaXg}, 13, 1
    v_cmp_ne_u32 vcc, s{sA}, v{vT1}
    v_xor_b32 v{vT1}, 0x2000, v{vaXg}
    v_add_u32 v{vT1}, 16384, v{vT1}
    v_cndmask_b32 v{vaXg}, v{vaXg}, v{vT1}, vcc
    v_and_b32 v{vT0}, 7, v{vR16}
    v_lshrrev_b32 v{vT1}, 3, v{vR16}
    v_lshl_add_u32 v{vT1}, v{vT1}, 2, v{vQd}
    v_and_b32 v{vT2}, 2, v{vT0}
    v_xor_b32 v{vT1}, v{vT1}, v{vT2}
    v_lshlrev_b32 v{vT1}, 4, v{vT1}
    v_lshl_add_u32 v{vT0}, v{vT0}, 7, v{vT1}
    s_lshl_b32 s{sXI}, s{sW}, 12
    s_add_u32 s{sXI}, s{sXI}, {L_XI}
    v_add_u32 v{vaXr}, s{sXI}, v{vT0}
    v_lshlrev_b32 v{vaO0}, 4, v{vLane}
    v_add_u32 v{vaO1}, 16384, v{vaO0}
    v_lshl_add_u32 v{vT0}, v{vQd}, 2, v{vR16}
    v_and_b32 v{vT0}, 15, v{vT0}
    v_lshlrev_b32 v{vT0}, 4, v{vT0}
    s_mul_i32 s{sB}, s{sW}, 3840
    s_sub_u32 s{sB}, {O_STATS}, s{sB}
    v_add_u32 v{vaS0}, s{sB}, v{vT0}
    v_add_u32 v{vaS1}, 1024, v{vaS0}
    v_lshlrev_b32 v{vT0}, 6, v{vQd}
    v_lshl_add_u32 v{vaQ2}, v{h3}, 4, v{vT0}
    v_lshlrev_b32 v{vT0}, 10, v{ql}
    v_lshrrev_b32 v{vT1}, 3, v{vR16}
    v_lshl_add_u32 v{vT0}, v{vT1}, 6, v{vT0}
    v_and_b32 v{vT1}, 7, v{vR16}
    v_lshl_add_u32 v{vaStQ}, v{vT1}, 1, v{vT0}
    v_lshlrev_b32 v{vT0}, 12, v{h3}
    v_lshl_add_u32 v{vT0}, v{vQd}, 10, v{vT0}
    v_bfe_u32 v{vT1}, v{vLane}, 2, 2
    v_lshl_add_u32 v{vaClrO}, v{vT1}, 8, v{vT0}
    v_and_b32 v{vT0}, 1, v{vR16}
    v_lshlrev_b32 v{vT0}, 5, v{vT0}
    v_lshl_add_u32 v{vT0}, v{qh}, 6, v{vT0}
    v_lshl_add_u32 v{vT0}, v{ql}, 4, v{vT0}
    s_lshl_b32 s{sB}, s{sW}, 7
    v_add_u32 v{vaH}, s{sB}, v{vT0}
    v_lshlrev_b32 v{vT0}, 6, v{vQd}
    v_lshl_add_u32 v{vT0}, v{h3}, 4, v{vT0}
    v_add_u32 v{vaPr}, {L_PBUF}, v{vT0}
    v_lshrrev_b32 v{vT1}, 2, v{vR16}
    v_lshl_add_u32 v{vT1}, v{vT1}, 9, v{vaPr}
    s_lshr_b32 s{sB}, s{sW}, 1
    s_lshl_b32 s{sB}, s{sB}, 8
    s_and_b32 s{sC}, s{sW}, 1
    s_lshl_b32 s{sC}, s{sC}, 3
    s_add_u32 s{sB}, s{sB}, s{sC}
    v_add_u32 v{vaPw}, s{sB}, v{vT1}
    v_lshlrev_b32 v{vT0}, 4, v{h3}
    v_add_u32 v{vaSm}, {L_SMAX}, v{vT0}
    s_lshl_b32 s{sB}, s{sW}, 2
    v_add_u32 v{vaSmW}, s{sB}, v{vaSm}
    v_lshlrev_b32 v{vT0}, 4, v{vLane}
    v_add_u32 v{vaRedW}, s{sB}, v{vT0}
    v_and_b32 v{vT1}, 1, v{vR16}
    v_lshl_add_u32 v{vT1}, v{qh}, 1, v{vT1}
    v_lshlrev_b32 v{vT1}, 4, v{vT1}
    v_add_u32 v{vaRedZ}, s{sB}, v{vT1}
    v_lshl_add_u32 v{vT0}, v{ql}, 5, v{vR16}
    v_lshlrev_b32 v{vaFinW}, 4, v{vT0}
    v_lshlrev_b32 v{vaFinZ}, 5, v{ql}
    v_lshlrev_b32 v{vT0}, 9, v{ql}
    v_add_u32 v{vaFinQZ}, 256, v{vT0}
    v_lshlrev_b32 v{vaFinO}, 4, v{vLane}
    v_lshlrev_b32 v{vT0}, 5, v{ql}
    v_lshl_add_u32 v{vaStH}, v{vR16}, 1, v{vT0}
    v_lshlrev_b32 v{vT0}, 6, v{ql}
    v_lshl_add_u32 v{vT0}, v{qh}, 5, v{vT0}
    v_lshl_add_u32 v{vaStX}, v{vR16}, 1, v{vT0}
    v_lshlrev_b32 v{vT0}, 12, v{vR16}
    v_lshl_add_u32 v{vT0}, v{vQd}, 8, v{vT0}
    s_lshl_b32 s{sB}, s{sW}, 10
    v_add_u32 v{vaStO}, s{sB}, v{vT0}
    s_lshr_b32 s{sB}, s{sM}, 4
    s_mul_i32 s{sB}, s{sB}, 15360
    s_sub_u32 s{sB}, {O_STATS}, s{sB}
    v_lshlrev_b32 v{vT0}, 8, v{vLane}
    v_add_u32 v{vaStS}, s{sB}, v{vT0}
    """)
    a(f"s_lshl_b32 s{sB}, s{sW}, 14\ns_add_u32 s{sB}, s{sB}, {L_K}")
    for c in range(4):
        a(f"""
        v_add_u32 v{vT0}, {4*c}, v{vQd}
        v_xor_b32 v{vT0}, v{vT0}, v{vR16}
        v_lshlrev_b32 v{vT0}, 4, v{vT0}
        v_lshl_add_u32 v{vT0}, v{vR16}, 8, v{vT0}
        v_add_u32 v{vKr+c}, s{sB}, v{vT0}
        """)
    for e in range(2):
        a(f"""
        v_add_u32 v{vT1}, {4*e}, v{vQd}
        v_lshrrev_b32 v{vT2}, 1, v{vR16}
        v_xor_b32 v{vT1}, v{vT1}, v{vT2}
        v_lshlrev_b32 v{vT1}, 1, v{vT1}
        v_and_b32 v{vT2}, 1, v{vR16}
        v_or_b32 v{vT1}, v{vT1}, v{vT2}
        v_lshlrev_b32 v{vT1}, 4, v{vT1}
        v_lshl_add_u32 v{vVs+e}, v{vQd}, 8, v{vT1}
        """)
    for nt in range(2):
        a(f"""
        v_lshrrev_b32 v{vT1}, 2, v{vR16}
        v_lshl_add_u32 v{vT0}, v{vQd}, 2, v{vT1}
        v_and_b32 v{vT2}, 7, v{vT0}
        s_lshl_b32 s{sB}, s{sW}, 1
        s_add_u32 s{sB}, s{sB}, {nt}
        v_xor_b32 v{vT2}, s{sB}, v{vT2}
        v_lshlrev_b32 v{vT2}, 5, v{vT2}
        v_lshl_add_u32 v{vT0}, v{vT0}, 8, v{vT2}
        v_lshl_add_u32 v{vT0}, v{h3}, 3, v{vT0}
        v_add_u32 v{vVr+nt}, {L_V}, v{vT0}
        """)
    for i in range(16): a(f"v_mov_b32 v{XA+i}, 0")
    if cfg.w_inter:
        a(f"""
        s_cmp_lt_u32 s{sM}, 16
        s_cbranch_scc0 L_wsB
        v_lshrrev_b32 v{vT0}, 2, v{vLane}
        v_lshlrev_b32 v{vT0}, 10, v{vT0}
        v_and_b32 v{vT1}, 3, v{vLane}
        v_lshl_add_u32 v{vWs}, v{vT1}, 4, v{vT0}
        s_lshl_b32 s{sWb}, s{sJ}, 19
        s_lshl_b32 s{sC}, s{sW}, 17
        s_add_u32 s{sWb}, s{sWb}, s{sC}
        s_lshl_b32 s{sC}, s{sIdx}, 6
        s_add_u32 s{sWb}, s{sWb}, s{sC}
        s_mov_b32 s{sWst}, 16384
        s_mov_b32 s{sUP}, s{sW2}
        s_mov_b32 s{sUP+1}, s{sW2+1}
        s_mov_b32 s{sUP+2}, s{sW2+2}
        s_branch L_wsD
        L_wsB:
        v_lshrrev_b32 v{vT0}, 1, v{vLane}
        v_mul_u32_u24 v{vT0}, 3584, v{vT0}
        v_and_b32 v{vT1}, 1, v{vLane}
        v_lshl_add_u32 v{vWs}, v{vT1}, 4, v{vT0}
        s_mul_i32 s{sWb}, s{sW}, {128*3584}
        s_mul_i32 s{sC}, s{sJ}, 448
        s_add_u32 s{sWb}, s{sWb}, s{sC}
        s_lshl_b32 s{sC}, s{sIdx}, 5
        s_add_u32 s{sWb}, s{sWb}, s{sC}
        s_mov_b32 s{sWst}, {32*3584}
        L_wsD:
        """)
    ts("setup")
    a(f"s_waitcnt vmcnt({4*cfg.nKb1 + nPFe})")
    ts("wq_landed")
    for t in range(cfg.nKb1, nKpA): k_page(t)

    def tr_base(dst, rowbytes, rowmul, sadd, const):
        sh = rowbytes.bit_length() - 1; rm = rowmul.bit_length() - 1
        a(f"""
        v_lshrrev_b32 v{vT1}, 2, v{vR16}
        v_lshl_add_u32 v{vT1}, v{vQd}, {rm}, v{vT1}
        v_lshlrev_b32 v{vT1}, {sh}, v{vT1}
        v_and_b32 v{vT2}, 3, v{vR16}
        v_lshl_add_u32 v{vT1}, v{vT2}, 3, v{vT1}
        v_add_u32 v{vT1}, s{sadd}, v{vT1}
        v_add_u32 v{dst}, {const}, v{vT1}
        """)

    def ln_stats(s1, s2, mean, rstd):
        a(f"""
        v_mul_f32 v{mean}, {f2u(1.0/512):#x}, v{s1}
        v_mul_f32 v{s2}, {f2u(1.0/512):#x}, v{s2}
        v_fma_f32 v{s2}, -v{mean}, v{mean}, v{s2}
        v_max_f32 v{s2}, 0, v{s2}
        v_add_f32 v{s2}, {f2u(1e-5):#x}, v{s2}
        v_rsq_f32 v{rstd}, v{s2}
        """)
    def sum4r(b):
        a(f"v_add_f32 v{b}, v{b}, v{b+1}\nv_add_f32 v{b+2}, v{b+2}, v{b+3}\nv_add_f32 v{b}, v{b}, v{b+2}")

    def stats_valu(z):
        L = [f"v_add_f32 v{z}, v{vAcc+8}, v{vAcc+9}", f"v_add_f32 v{vT3}, v{vAcc+10}, v{vAcc+11}", f"v_add_f32 v{z}, v{z}, v{vT3}",
             f"v_cndmask_b32 v{z}, 0, v{z}, s[{sMDIAG}:{sMDIAG+1}]"]
        for n in (8, 4, 2, 1):
            L.append(f"v_add_f32_dpp v{z}, v{z}, v{z} row_ror:{n} row_mask:0xf bank_mask:0xf")
        L += [f"v_add_f32 v{z+1}, v{vAcc+12}, v{vAcc+13}", f"v_add_f32 v{vT3}, v{vAcc+14}, v{vAcc+15}", f"v_add_f32 v{z+1}, v{z+1}, v{vT3}",
              f"v_cndmask_b32 v{z}, v{z+1}, v{z}, s[{sMN1}:{sMN1+1}]"]
        return L
    def stats_mf(X):
        return [mf(vAcc + 8, X + 4*u, X + 4*u, "0" if u == 0 else None) for u in range(4)] + \
               [mf(vAcc + 12, X + 4*u, vOnes, "0" if u == 0 else None) for u in range(4)]

    def q_core(X):
        M = stats_mf(X) + [mf(vAcc, X + 4*u, ar(aWq + 4*u, 4), "0" if u == 0 else None) for u in range(4)]
        interleave(M, stats_valu(vU), 8, 2)
        sum4(vU + 2, vAcc, vT3)
        a(f"""
        v_permlane16_swap_b32 v{vU+2}, v{vU}
        v_add_f32 v{vU}, v{vU}, v{vU+2}
        ds_write_b32 v{vaRedW}, v{vU} offset:{R_Q}
        s_waitcnt lgkmcnt(0)
        s_barrier
        """)
    def q_final(first):
        lab = a.label("qf")
        a(f"s_cmp_eq_u32 s{sW}, 0\ns_cbranch_scc0 {lab}")
        setexec(0xFFFFFFFF)
        a(f"""
        ds_read_b128 {vr(vU,4)}, v{vaFinW} offset:{R_Q}
        ds_read_b128 {vr(vU+4,4)}, v{vaFinQZ} offset:{R_Q}
        ds_read_b128 {vr(vU+8,4)}, v{vaFinQZ} offset:{R_Q+16}
        """)
        if first:
            a(f"ds_read_b128 {vr(vU+12,4)}, v{vaFinW} offset:{R_COL}")
        a("s_waitcnt lgkmcnt(0)")
        if first:
            sum4r(vU + 12); a(f"v_mov_b32 v{vCs}, v{vU+12}")
        sum4r(vU + 4); sum4r(vU + 8); sum4r(vU)
        ln_stats(vU + 4, vU + 8, vU + 5, vU + 6)
        a(f"""
        v_fma_f32 v{vU}, -v{vU+5}, v{vCs}, v{vU}
        v_mul_f32 v{vU}, v{vU}, v{vU+6}
        """)
        dpp("v_mov_b32", vU + 1, vU, None, "quad_perm:[1,0,3,2]")
        a(f"v_cvt_pk_bf16_f32 v{vU+2}, v{vU}, v{vU+1}")
        if first:
            a(f"""
            v_mov_b32 v{vQ1d}, v{vU+2}
            v_mov_b32 v{vQ1d+1}, s{sTX}
            s_lshl_b32 s{sB}, s{sJ}, 12
            s_lshl_b32 s{sC}, s{sM}, 7
            s_add_u32 s{sB}, s{sB}, s{sC}
            s_add_u32 s{sB}, s{sB}, {WS_Q1}
            v_lshlrev_b32 v{vT0}, 1, v{vaStH}
            v_add_u32 v{vQ1a}, s{sB}, v{vT0}
            """)
            setexec(0x55555555)
            a(f"buffer_store_dwordx2 {vr(vQ1d,2)}, v{vQ1a}, {sr(sWS,4)}, 0 offen" + (" sc1" if cfg.force_global else ""))
        else:
            a(f"v_min_u32 v{vU+2}, 0xfffffffe, v{vU+2}")
            setexec(0x55555555)
            store_local(f"buffer_store_dword v{vU+2}, v{vaStQ}, {sr(sWS,4)}, s{sQ2w} offen")
        setexec(FULL)
        a(f"{lab}:")

    def s_qk_max():
        for c in range(4):
            for t in range(4):
                mfma(vS + 4*t, ar(aK + 16*t + 4*c, 4), vQ + 4*c, "0" if c == 0 else None)
        for t in range(1, 4):
            for r in range(4):
                dpp("v_mov_b32", vS + r, vS + 4*t + r, None, f"row_shr:{4*t}", bm=f"0x{1<<t:x}")
        a(f"v_max3_f32 v{vU}, v{vS}, v{vS+1}, v{vS+2}\nv_max_f32 v{vU}, v{vU}, v{vS+3}")
        row_reduce("v_max_f32", vU, (8, 4))
        xquad_reduce("v_max_f32", vU, vT0)
        setexec(0xF)
        a(f"ds_write_b32 v{vaSmW}, v{vU}")
        setexec(FULL)
        a("s_waitcnt lgkmcnt(0)\ns_barrier")
    def s_exp_p():
        a(f"""
        ds_read_b128 {vr(vU+4,4)}, v{vaSm}
        s_mov_b32 s{sB}, {f2u(C_SCALE):#x}
        s_waitcnt lgkmcnt(0)
        v_max3_f32 v{vU}, v{vU+4}, v{vU+5}, v{vU+6}
        v_max_f32 v{vU}, v{vU}, v{vU+7}
        v_mul_f32 v{vMc}, s{sB}, v{vU}
        """)
        for i in range(4): a(f"v_fma_f32 v{vS+i}, v{vS+i}, s{sB}, -v{vMc}")
        for i in range(4): a(f"v_exp_f32 v{vS+i}, v{vS+i}")
        a(f"""
        v_cvt_pk_bf16_f32 v{vU+2}, v{vS}, v{vS+1}
        v_cvt_pk_bf16_f32 v{vU+3}, v{vS+2}, v{vS+3}
        ds_write_b64 v{vaPw}, {vr(vU+2,2)}
        v_add_f32 v{vU}, v{vS}, v{vS+1}
        v_add_f32 v{vU+1}, v{vS+2}, v{vS+3}
        v_add_f32 v{vU}, v{vU}, v{vU+1}
        """)
        row_reduce("v_add_f32", vU, (8, 4))
        xquad_reduce("v_add_f32", vU, vT0)
        setexec(0xF)
        a(f"ds_write_b32 v{vaSmW}, v{vU} offset:{L_LSUM-L_SMAX}")
        setexec(FULL)
        a("s_waitcnt lgkmcnt(0)\ns_barrier")
        for blk in range(8):
            a(f"ds_read_b128 {vr(vP+4*blk,4)}, v{vaPr} offset:{blk*256}")
    def s_stats_prep():
        lab = a.label("st")
        a(f"s_cmp_eq_u32 s{sW}, 3\ns_cbranch_scc0 {lab}")
        a(f"""
        ds_read_b128 {vr(vU+4,4)}, v{vaSm} offset:{L_LSUM-L_SMAX}
        s_add_u32 s{sB}, s{sT}, s{sL}
        s_add_u32 s{sB}, s{sB}, 1
        v_mov_b32 v{vMc+2}, s{sB}
        s_waitcnt lgkmcnt(0)
        """)
        sum4r(vU + 4)
        a(f"v_mov_b32 v{vMc+1}, v{vU+4}")
        a(f"{lab}:")
    def s_stats_store(wait):
        lab = a.label("ss")
        a(f"s_cmp_eq_u32 s{sW}, 3\ns_cbranch_scc0 {lab}")
        if wait is not None: a(f"s_waitcnt vmcnt({wait})")
        setexec(0xF)
        store_local(f"buffer_store_dwordx4 {vr(vMc,4)}, v{vaStS}, {sr(sWS,4)}, s{sOown} offen")
        setexec(FULL)
        a(f"{lab}:")
    accO = vAcc
    def v_tr(blk):
        t, p = blk >> 1, blk & 1
        for nt in range(2):
            a(f"ds_read_b64_tr_b16 {ar(aV+8*blk+4*nt,2)}, v{vVr+nt} offset:{(4*t+2*p)*4096}")
            a(f"ds_read_b64_tr_b16 {ar(aV+8*blk+4*nt+2,2)}, v{vVr+nt} offset:{(4*t+2*p+1)*4096}")
    def pv(blks, first):
        for blk in blks:
            for nt in range(2):
                mfma(accO + 4*nt, ar(aV + 8*blk + 4*nt, 4), vP + 4*blk, "0" if (first and blk == blks[0]) else None)
    def s_out():
        for i in range(4):
            a(f"v_cvt_pk_bf16_f32 v{vU+i}, v{accO+2*i}, v{accO+2*i+1}")
        for i in range(4):
            a(f"v_min_u32 v{vU+i}, 0xfffffffe, v{vU+i}")
        setexec(EM4)
        store_local(f"buffer_store_dwordx4 {vr(vU,4)}, v{vaStO}, {sr(sWS,4)}, s{sOown} offen")
        setexec(FULL)

    a(f"s_lshl_b32 s{sB}, s{sW}, 12")
    tr_base(vT0, 32, 8, sB, L_WQ)
    for u in range(4):
        a(f"ds_read_b64_tr_b16 {ar(aWq+4*u,2)}, v{vT0} offset:{u*1024}")
        a(f"ds_read_b64_tr_b16 {ar(aWq+4*u+2,2)}, v{vT0} offset:{u*1024+128}")
    a(f"""
    v_lshrrev_b32 v{vT0}, 3, v{vR16}
    v_lshlrev_b32 v{vT0}, 10, v{vT0}
    v_lshl_add_u32 v{vT0}, v{vQd}, 4, v{vT0}
    s_lshl_b32 s{sB}, s{sW}, 8
    v_add_u32 v{vT0}, s{sB}, v{vT0}
    s_barrier
    """)
    setexec(0x0101010101010101)
    for u in range(4):
        a(f"ds_read_b128 {vr(XA+4*u,4)}, v{vT0} offset:{L_X0+u*64}")
    setexec(FULL)
    a(f"""
    s_waitcnt lgkmcnt(0)
    s_add_u32 s{sT}, s{sT}, 0x9e3779b0
    s_and_b32 s{sT}, s{sT}, 0xfffffff0
    s_or_b32 s{sTX}, s{sT}, s{sXcc}
    """)
    for u in range(4): mfma(vS, vOnes, ar(aWq + 4*u, 4), "0" if u == 0 else None)
    a(f"ds_write_b32 v{vaRedW}, v{vS} offset:{R_COL}")
    q_core(XA)
    q_final(True)
    a("s_barrier")
    ts("q1_pub")

    def v_group(t):
        page_off(t, sD)
        a(f"s_lshl_b32 s{sC}, s{sW}, 12\ns_add_u32 s{sC}, s{sC}, {L_V + t*16384}\ns_mov_b32 m0, s{sC}\ns_nop 0")
        for ii in range(4):
            a(f"buffer_load_dwordx4 v{vVs+(ii&1)}, {sr(sVS,4)}, s{sD} offen offset:{ii*1024}{cfg.kv_pol} lds")
    def pace(): a(f"s_waitcnt vmcnt({cfg.pace})")
    def w_part(part, lo, hi):
        if not cfg.w_inter: return
        lab = a.label("wp")
        lim = 30
        if (part == 0 and "g" not in cfg.w_interB) or (part == 1 and "u" not in cfg.w_interB): lim = 16
        a(f"s_cmp_ge_u32 s{sM}, {lim}\ns_cbranch_scc1 {lab}")
        for u in range(lo, hi):
            if part == 0:
                a(f"s_mul_i32 s{sB}, s{sWst}, {u}\ns_add_u32 s{sB}, s{sB}, s{sWb}")
                a(f"s_lshl_b32 s{sC}, s{sW}, 12\ns_add_u32 s{sC}, s{sC}, {L_WQ + u*1024}")
            else:
                a(f"s_cmp_lt_u32 s{sM}, 16\ns_cselect_b32 s{sB}, {4+u}, {u}\ns_mul_i32 s{sB}, s{sB}, s{sWst}\ns_add_u32 s{sB}, s{sB}, s{sWb}")
                a(f"s_lshl_b32 s{sC}, s{sW}, 14\ns_add_u32 s{sC}, s{sC}, {L_K + u*1024}")
            a(f"s_mov_b32 m0, s{sC}\ns_nop 0")
            a(f"buffer_load_dwordx4 v{vWs}, {sr(sW2 if part == 0 else sUP,4)}, s{sB} offen{SLN} lds")
        a(f"{lab}:")
    for t in range(nKpA, 4):
        pace()
        if t == 3: w_part(0, 0, 4)
        k_page(t)
    a(f"""
    v_lshrrev_b32 v{vT0}, 2, v{vLane}
    v_lshlrev_b32 v{vT0}, 7, v{vT0}
    v_and_b32 v{vT1}, 3, v{vLane}
    v_lshl_add_u32 v{vKs}, v{vT1}, 4, v{vT0}        ; (vKs is free once K is issued)
    s_lshl_b32 s{sA}, s{sJ}, 12
    s_lshr_b32 s{sB}, s{sM}, 4
    s_lshl_b32 s{sB}, s{sB}, 6
    s_add_u32 s{sA}, s{sA}, s{sB}
    s_add_u32 s{sA}, s{sA}, {WS_Q1}
    v_and_b32 v{vT0}, 3, v{vR16}
    v_lshlrev_b32 v{vT0}, 9, v{vT0}
    v_lshrrev_b32 v{vT1}, 1, v{vQd}
    v_lshl_add_u32 v{vT0}, v{vT1}, 6, v{vT0}
    v_and_b32 v{vT1}, 1, v{vQd}
    v_lshl_add_u32 v{vKs+1}, v{vT1}, 5, v{vT0}
    v_lshlrev_b32 v{vKs+2}, 5, v{vLane}
    """)
    def q1_dma(img):
        a(f"""
        s_mov_b32 m0, {L_QG + img*2048}
        s_add_u32 s{sB}, s{sA}, 2048
        buffer_load_dwordx4 v{vKs}, {sr(sWS,4)}, s{sA} offen sc1 lds
        s_mov_b32 m0, {L_QG + img*2048 + 1024}
        s_nop 0
        buffer_load_dwordx4 v{vKs}, {sr(sWS,4)}, s{sB} offen sc1 lds
        """)
    def w0(fn):
        lab = a.label("w0")
        a(f"s_cmp_eq_u32 s{sW}, 0\ns_cbranch_scc0 {lab}")
        fn()
        a(f"{lab}:")
    def q1_dup():
        setexec(0x55555555)
        a(f"buffer_store_dwordx2 {vr(vQ1d,2)}, v{vQ1a}, {sr(sWS,4)}, 0 offen sc1")
        setexec(FULL)
    g.q1_dup = lambda: w0(q1_dup)
    pace()
    if cfg.pf_stream and cfg.pf_pos == 0: emit_wpf(sKS2, sWQ, True)
    v_group(0)
    a("s_waitcnt vmcnt(4)")
    for t in range(4):
        for c in range(4):
            a(f"ds_read_b128 {ar(aK+16*t+4*c,4)}, v{vKr+c} offset:{t*4096}")
    ts("k_landed")
    w0(lambda: q1_dma(0))
    if cfg.pf_stream and cfg.pf_pos == 1: emit_wpf(sKS, sWQ, True)
    v_group(1)
    a("s_waitcnt vmcnt(4)")
    ts("v0_landed")
    if cfg.pf_stream and cfg.pf_pos == 2: emit_wpf(sKS, sWQ, True)
    if cfg.w_inter:
        a("s_waitcnt lgkmcnt(0)")
        w_part(1, 0, 2)
    def warm_stats0():
        if cfg.warm:
            lab = a.label("ws")
            a(f"s_cmp_lt_u32 s{sM}, 16\ns_cbranch_scc0 {lab}")
            a(f"buffer_load_dword v{vJ}, v{vaS0}, {sr(sWS,4)}, s{sOcons} offen sc1")
            a(f"buffer_load_dword v{vJ}, v{vaS1}, {sr(sWS,4)}, s{sOcons} offen sc1")
            a(f"{lab}:")
    if cfg.v3_early: warm_stats0()
    v_group(2)
    if cfg.v3_early:
        assert not cfg.w_inter
        v_group(3)
    def _o0():
        lab = a.label("c0")
        a(f"""
        s_cmp_eq_u32 s{sW}, 3
        s_cbranch_scc0 {lab}
        v_mov_b32 v{vU+8}, -1
        v_mov_b32 v{vU+9}, -1
        v_mov_b32 v{vU+10}, -1
        v_mov_b32 v{vU+11}, -1
        """)
        store_local(f"buffer_store_dwordx4 {vr(vU+8,4)}, v{vaClrO}, {sr(sWS,4)}, s{sOown} offen")
        a(f"{lab}:")
    g.o0_clear_hook = _o0
    vG = vA
    def q1_tags(img):
        a(f"""
        ds_read_b128 {vr(vG,4)}, v{vKs+2} offset:{L_QG + img*2048}
        ds_read_b128 {vr(vG+4,4)}, v{vKs+2} offset:{L_QG + img*2048 + 16}
        s_waitcnt lgkmcnt(0)
        v_xor_b32 v{vT1}, s{sTX}, v{vG+1}
        v_xor_b32 v{vT2}, s{sTX}, v{vG+3}
        v_xor_b32 v{vT3}, s{sTX}, v{vG+5}
        v_xor_b32 v{vT0}, s{sTX}, v{vG+7}
        v_or3_b32 v{vT1}, v{vT1}, v{vT2}, v{vT3}
        v_or_b32 v{vT1}, v{vT1}, v{vT0}
        v_cmp_lt_u32 vcc, 15, v{vT1}
        """)
    a("s_barrier")
    q1_tags(0)
    a(f"s_mov_b32 s{sC}, {L_QG}\ns_cbranch_vccz L_q1ok")
    cnt("g0fail")
    w0(lambda: (q1_dma(1), a("s_waitcnt vmcnt(0)")))
    a("s_barrier")
    q1_tags(1)
    a(f"s_mov_b32 s{sC}, {L_QG + 2048}\ns_cbranch_vccz L_q1ok")
    a("L_q1retry:")
    cnt("g1fail")
    a(f"s_sub_u32 s{sBud}, s{sBud}, 1\ns_cbranch_scc1 L_abort\ns_barrier")
    w0(lambda: (q1_dup(), q1_dma(0), a("s_waitcnt vmcnt(0)")))
    a("s_barrier")
    q1_tags(0)
    a(f"s_mov_b32 s{sC}, {L_QG}\ns_cbranch_vccnz L_q1retry")
    a("L_q1ok:")
    a(f"""
    v_cmp_ne_u32 vcc, 0, v{vT1}
    v_add_u32 v{vT0}, s{sC}, v{vKs+1}
    s_cmp_eq_u64 vcc, 0
    s_cselect_b32 s{sLocal}, 1, 0
    """)
    if cfg.v3_early: g.o0_clear_hook()
    setexec(EM4)
    for c in range(4):
        a(f"ds_read2_b32 {vr(vQ+4*c,2)}, v{vT0} offset0:{c*32} offset1:{c*32+2}")
        a(f"ds_read2_b32 {vr(vQ+4*c+2,2)}, v{vT0} offset0:{c*32+4} offset1:{c*32+6}")
    setexec(FULL)
    lab = a.label("nl")
    a(f"s_cmp_eq_u32 s{sLocal}, 0\ns_cbranch_scc0 {lab}")
    g.q1_dup()
    a(f"{lab}:")
    a("s_waitcnt lgkmcnt(0)")
    ts("q1_got")
    s_qk_max()
    ts("s1_max")
    def o0_clear():
        lab = a.label("c0")
        a(f"""
        s_cmp_eq_u32 s{sW}, 3
        s_cbranch_scc0 {lab}
        v_mov_b32 v{vU+8}, -1
        v_mov_b32 v{vU+9}, -1
        v_mov_b32 v{vU+10}, -1
        v_mov_b32 v{vU+11}, -1
        """)
        store_local(f"buffer_store_dwordx4 {vr(vU+8,4)}, v{vaClrO}, {sr(sWS,4)}, s{sOown} offen")
        a(f"{lab}:")
    if not cfg.v3_early:
        a("s_waitcnt vmcnt(4)")
        o0_clear()
        warm_stats0()
        w_part(1, 2, 4)
        v_group(3)
    else:
        a("s_waitcnt vmcnt(8)")
    nPF = emit_wpf(sKS, sWQ, True) if (cfg.pf_stream and not cfg.pf_early and cfg.pf_pos is None) else 0

    def s1_tail(nW=0, maybe_none=False):
        def wait_v(base):
            if nW and maybe_none:
                l1 = a.label("wv"); l2 = a.label("wv")
                a(f"s_cmp_ge_u32 s{sIdx}, 14\ns_cbranch_scc1 {l1}\ns_waitcnt vmcnt({base + nW})\ns_branch {l2}\n{l1}:\ns_waitcnt vmcnt({base})\n{l2}:")
            else:
                a(f"s_waitcnt vmcnt({base + nW})")
        s_exp_p()
        s_stats_prep()
        blks = [0, 1, 2, 3]
        for blk in blks: v_tr(blk)
        a("s_waitcnt lgkmcnt(0)")
        pv(blks, True)
        for t in (2, 3):
            if t == 3 and cfg.v3_early:
                l3 = a.label("v3"); l4 = a.label("v4")
                a(f"s_cmp_eq_u32 s{sW}, 3\ns_cbranch_scc1 {l3}\ns_waitcnt vmcnt({nW})\ns_branch {l4}\n{l3}:\ns_waitcnt vmcnt({nW + 1})\n{l4}:")
            else:
                wait_v(4*(3-t))
            a("s_barrier")
            if t == 3: ts("v_landed")
            blks = [2*t, 2*t + 1]
            for blk in blks: v_tr(blk)
            a("s_waitcnt lgkmcnt(0)")
            pv(blks, False)
        s_out()
        s_stats_store(1 if cfg.v3_early else None)
        lab = a.label("c1")
        a(f"""
        s_cmp_eq_u32 s{sW}, 0
        s_cbranch_scc0 {lab}
        v_mov_b32 v{vU+8}, -1
        v_mov_b32 v{vU+9}, -1
        v_mov_b32 v{vU+10}, -1
        v_mov_b32 v{vU+11}, -1
        s_add_u32 s{sB}, s{sOown}, {O_L}
        """)
        store_local(f"buffer_store_dwordx4 {vr(vU+8,4)}, v{vaClrO}, {sr(sWS,4)}, s{sB} offen")
        q1_dup()
        a(f"{lab}:")
        ts("s1_pub")

    def x_poll(sbase, dst, sleep):
        l = a.label("xp"); ok = a.label("xok")
        if cfg.sleep_x0: a(f"s_sleep {cfg.sleep_x0}")
        a(f"{l}:")
        cnt("n_x")
        for u in range(4):
            if u == 0: a(f"s_mov_b32 m0, s{sXI}\ns_nop 0")
            else: a(f"s_add_u32 s{sB}, s{sXI}, {u*(1024-128)}\ns_mov_b32 m0, s{sB}\ns_nop 0")
            a(f"buffer_load_dwordx4 v{vaXg}, {sr(sWS,4)}, s{sbase} offen offset:{u*128} sc1 lds")
        a("s_waitcnt vmcnt(0)")
        for u in range(4):
            a(f"ds_read_b128 {vr(dst+4*u,4)}, v{vaXr} offset:{u*1024}")
        a("s_waitcnt lgkmcnt(0)")
        sent_check([dst+i for i in range(16)], vT0, ok)
        spin_fail(l, sleep)
        a(f"{ok}:")

    def warm_q2():
        if not cfg.warm: return
        a(f"s_lshl_b32 s{sB}, s{sJ}, 11\ns_add_u32 s{sB}, s{sB}, {WS_Q2}\nv_lshlrev_b32 v{vT0}, 7, v{vLane}")
        setexec(0xFFFF)
        a(f"buffer_load_dword v{vJ}, v{vT0}, {sr(sWS,4)}, s{sB} offen sc1")
        setexec(FULL)
    def warm_o(dl, data=True):
        if not cfg.warm: return
        a(f"s_add_u32 s{sB}, s{sOcons}, {dl*O_L}")
        if data:
            a(f"""
            v_and_b32 v{vT0}, 31, v{vLane}
            v_lshlrev_b32 v{vT0}, 7, v{vT0}
            v_lshrrev_b32 v{vT1}, 5, v{vLane}
            v_lshl_add_u32 v{vT0}, v{vT1}, 14, v{vT0}
            buffer_load_dword v{vJ}, v{vT0}, {sr(sWS,4)}, s{sB} offen sc1
            """)
        a(f"buffer_load_dword v{vJ}, v{vaS0}, {sr(sWS,4)}, s{sB} offen sc1")
        a(f"buffer_load_dword v{vJ}, v{vaS1}, {sr(sWS,4)}, s{sB} offen sc1")

    def tag_check_all():
        l = a.label("tc"); ok = a.label("tcok")
        a(f"""
        s_lshl_b32 s{sB}, s{sW}, 13
        s_add_u32 s{sB}, s{sB}, {WS_Q1+4}
        v_lshlrev_b32 v{vT0}, 7, v{vLane}
        {l}:
        buffer_load_dword v{vT1}, v{vT0}, {sr(sWS,4)}, s{sB} offen sc1
        s_waitcnt vmcnt(0)
        v_xor_b32 v{vT1}, s{sT}, v{vT1}
        v_cmp_lt_u32 vcc, 15, v{vT1}
        s_cbranch_vccz {ok}
        """)
        spin_fail(l, 2)
        a(f"{ok}:")

    def line_final(red):
        if cfg.doorbell and cfg.db_early:
            a(f"v_mov_b32 v{vT0}, 0\nv_mov_b32 v{vT1}, s{sDBtag}\ns_mov_b64 exec, 1")
            store_local(f"buffer_store_dword v{vT1}, v{vT0}, {sr(sWS,4)}, s{sDBw} offen")
            a("s_mov_b64 exec, -1")
        a(f"""
        ds_read_b128 {vr(vU,4)}, v{vaFinO} offset:{red}
        v_mov_b32 v{vT0}, 0
        v_mov_b32 v{vT1}, s{sDBtag}
        s_waitcnt lgkmcnt(0)
        v_add_f32 v{vU}, v{vU}, v{vU+1}
        v_add_f32 v{vU+2}, v{vU+2}, v{vU+3}
        v_add_f32 v{vU}, v{vU}, v{vResF}
        v_add_f32 v{vResF}, v{vU}, v{vU+2}
        """)
        dpp("v_mov_b32", vU + 1, vResF, None, "quad_perm:[1,0,3,2]")
        a(f"v_cvt_pk_bf16_f32 v{vU}, v{vResF}, v{vU+1}\nv_min_u32 v{vU}, 0xfffffffe, v{vU}")
        if cfg.doorbell and not cfg.db_early:
            a("s_mov_b64 exec, 1")
            store_local(f"buffer_store_dword v{vT1}, v{vT0}, {sr(sWS,4)}, s{sDBw} offen")
        a(f"s_xor_b32 s{sB}, s{sXw}, 0x2000\ns_add_u32 s{sB}, s{sB}, 16384")
        setexec(EMEV)
        a(f"buffer_store_dword v{vU}, v{vaStX}, {sr(sWS,4)}, s{sXw} offen sc1")
        a(f"buffer_store_dword v{vU}, v{vaStX}, {sr(sWS,4)}, s{sB} offen sc1")
        setexec(FULL)
    def advance_hop():
        a(f"s_add_u32 s{sXw}, s{sXw}, {X_HOP}\ns_add_u32 s{sDBw}, s{sDBw}, 1024\ns_add_u32 s{sDBtag}, s{sDBtag}, 1")

    def db_setup(hop_w, hop_r):
        a(f"""
        s_lshl_b32 s{sDBr}, s{sJ}, 7
        s_add_u32 s{sDBr}, s{sDBr}, {WS_DB}
        s_lshl_b32 s{sDBw}, s{sIdx}, 2
        s_add_u32 s{sDBw}, s{sDBw}, s{sDBr}
        s_add_u32 s{sDBw}, s{sDBw}, {hop_w*1024}
        s_add_u32 s{sDBtag}, s{sT}, {8+hop_w}
        """)
    def db_wait(hop_off_s, tag_add_s=None, const_hop=None):
        if not cfg.doorbell: return
        l = a.label("db"); ok = a.label("dbok")
        if const_hop is not None:
            a(f"s_add_u32 s{sA}, s{sDBr}, {const_hop*1024}\ns_add_u32 s{sC}, s{sT}, {8+const_hop}")
        else:
            a(f"s_lshl_b32 s{sA}, s{sL}, 11\ns_add_u32 s{sA}, s{sA}, s{sDBr}\ns_add_u32 s{sA}, s{sA}, {hop_off_s*1024}")
            a(f"s_lshl_b32 s{sC}, s{sL}, 1\ns_add_u32 s{sC}, s{sC}, s{sT}\ns_add_u32 s{sC}, s{sC}, {8+hop_off_s}")
        a(f"v_lshlrev_b32 v{vT0}, 2, v{vLane}")
        setexec(0xFFFF)
        a(f"""
        {l}:
        buffer_load_dword v{vT1}, v{vT0}, {sr(sWS,4)}, s{sA} offen sc1
        s_waitcnt vmcnt(0)
        v_cmp_ne_u32 vcc, s{sC}, v{vT1}
        s_cbranch_vccz {ok}
        """)
        spin_fail(l)
        a(f"{ok}:")
        setexec(FULL)

    def o_stats_poll():
        l = a.label("os"); ok = a.label("osok")
        a(f"s_add_u32 s{sA}, s{sT}, s{sL}\ns_add_u32 s{sA}, s{sA}, 1")
        a(f"{l}:")
        cnt("n_ostat")
        a(f"buffer_load_dwordx3 {vr(vSt,3)}, v{vaS0}, {sr(sWS,4)}, s{sOcons} offen sc1")
        a(f"buffer_load_dwordx3 {vr(vSt+4,3)}, v{vaS1}, {sr(sWS,4)}, s{sOcons} offen sc1")
        a("s_waitcnt vmcnt(0)")
        a(f"""
        v_xor_b32 v{vT0}, s{sA}, v{vSt+2}
        v_xor_b32 v{vT1}, s{sA}, v{vSt+6}
        v_or_b32 v{vT0}, v{vT0}, v{vT1}
        v_cmp_ne_u32 vcc, 0, v{vT0}
        s_cbranch_vccz {ok}
        """)
        spin_fail(l, cfg.sleep_o)
        a(f"{ok}:")
        ts_dyn("o_st0", "o_st1")

    def o_phase():
        OA = vA
        o_stats_poll()
        l2 = a.label("op"); ok2 = a.label("ook")
        a(f"L_heavy:\n{l2}:")
        cnt("n_oheavy")
        for b in range(2):
            for c in range(4):
                a(f"buffer_load_dwordx4 {vr(OA+16*b+4*c,4)}, v{vaO0+b}, {sr(sWS,4)}, s{sOcons} offen offset:{c*1024} sc1")
        for b in range(2):
            a(f"v_mov_b32 v{vU+b}, v{vSt+4*b}")
        for n in (8, 4, 2, 1):
            for b in range(2): dpp("v_max_f32", vU + b, vU + b, vU + b, f"row_ror:{n}")
        for b in range(2): a(f"v_sub_f32 v{vU+b}, v{vSt+4*b}, v{vU+b}")
        for b in range(2): a(f"v_exp_f32 v{vU+b}, v{vU+b}")
        for b in range(2): a(f"v_mul_f32 v{vU+2+b}, v{vU+b}, v{vSt+4*b+1}")
        for n in (8, 4, 2, 1):
            for b in range(2): dpp("v_add_f32", vU + 2 + b, vU + 2 + b, vU + 2 + b, f"row_ror:{n}")
        for b in range(2): a(f"v_rcp_f32 v{vU+2+b}, v{vU+2+b}")
        for b in range(2): a(f"v_mul_f32 v{vW+b}, v{vU+b}, v{vU+2+b}")
        a(f"v_mov_b32 v{vT0}, 0")
        if cfg.diag and cfg.ts_only and "o_w0" in cfg.ts_only:
            ts_dyn("o_w0", "o_w1")
            a("s_waitcnt vmcnt(7)")
            ts_dyn("o_f0", "o_f1")
        for i in range(8):
            b, c = i >> 2, i & 3
            r = OA + 16*b + 4*c
            a(f"s_waitcnt vmcnt({7-i})")
            for nt in range(2):
                mfma(vAcc + 8*b + 4*nt, r, ar(aW2 + 8*c + 4*nt, 4), "0" if c == 0 else None)
            a(f"v_max3_u32 v{vT0}, v{vT0}, v{r}, v{r+1}\nv_max3_u32 v{vT0}, v{vT0}, v{r+2}, v{r+3}")
        a(f"v_cmp_eq_u32 vcc, -1, v{vT0}\ns_cbranch_vccz {ok2}")
        spin_fail(l2)
        a(f"{ok2}:")
        ts_dyn("o_got0", "o_got1")
        for b in range(2):
            for nt in range(2):
                t = vU + 2*b + nt; acc = vAcc + 8*b + 4*nt
                dpp("v_mul_f32", t, vW + b, acc, "row_newbcast:0")
                for r in range(1, 4):
                    dpp("v_fmac_f32", t, vW + b, acc + r, f"row_newbcast:{r}")
        a(f"""
        v_permlane32_swap_b32 v{vU}, v{vU+1}
        v_permlane32_swap_b32 v{vU+2}, v{vU+3}
        v_add_f32 v{vU}, v{vU}, v{vU+1}
        v_add_f32 v{vU+2}, v{vU+2}, v{vU+3}
        v_permlane16_swap_b32 v{vU}, v{vU+2}
        v_add_f32 v{vU}, v{vU}, v{vU+2}
        ds_write_b32 v{vaRedW}, v{vU} offset:{R_O}
        s_waitcnt lgkmcnt(0)
        s_barrier
        """)
        lab = a.label("of")
        a(f"s_cmp_eq_u32 s{sW}, 0\ns_cbranch_scc0 {lab}")
        line_final(R_O)
        a(f"{lab}:")
        advance_hop()
        ts_dyn("o_pub0", "o_pub1")

    def g_phase():
        X = vA
        if cfg.db_g: db_wait(0)
        if cfg.diag and cfg.ts_only and "g_db0" in cfg.ts_only: ts_dyn("g_db0", "g_db1")
        x_poll(sXr, X, cfg.sleep_x)
        ts_dyn("g_got0", "g_got1")
        M = stats_mf(X)
        for u in range(4):
            M.append(mf(vAcc, X + 4*u, ar(aW2 + 8*u, 4), "0" if u == 0 else None))
            M.append(mf(vAcc + 4, X + 4*u, ar(aW2 + 8*u + 4, 4), "0" if u == 0 else None))
        V = stats_valu(vU) + [f"v_mov_b32 v{vU+1}, v{vU}", f"v_permlane16_swap_b32 v{vU}, v{vU+1}", f"v_add_f32 v{vU}, v{vU}, v{vU+1}"]
        interleave(M, V, 8, 2)
        setexec("s[%d:%d]" % (sM2, sM2 + 1))
        a(f"ds_write_b32 v{vaRedZ}, v{vU} offset:{R_GZ}")
        setexec(FULL)
        sum4(vU + 2, vAcc, vT3)
        sum4(vU + 3, vAcc + 4, vT3)
        a(f"""
        v_permlane16_swap_b32 v{vU+2}, v{vU+3}
        v_add_f32 v{vU+2}, v{vU+2}, v{vU+3}
        ds_write_b32 v{vaRedW}, v{vU+2} offset:{R_G}
        s_waitcnt lgkmcnt(0)
        s_barrier
        """)
        lab = a.label("gf")
        a(f"s_cmp_eq_u32 s{sW}, 0\ns_cbranch_scc0 {lab}")
        setexec(0xFFFFFFFF)
        a(f"""
        ds_read_b128 {vr(vU+8,4)}, v{vaFinZ} offset:{R_GZ}
        ds_read_b128 {vr(vU+12,4)}, v{vaFinZ} offset:{R_GZ+16}
        ds_read_b128 {vr(vU,4)}, v{vaFinW} offset:{R_G}
        ds_read_b128 {vr(vU+4,4)}, v{vaFinW} offset:{R_G+256}
        s_lshl_b32 s{sB}, s{sIdx}, 6
        s_add_u32 s{sB}, s{sB}, s{sHb}
        s_waitcnt lgkmcnt(2)
        """)
        sum4r(vU + 8); sum4r(vU + 12)
        ln_stats(vU + 8, vU + 12, vU + 9, vU + 10)
        a("s_waitcnt lgkmcnt(0)")
        sum4r(vU); sum4r(vU + 4)
        a(f"""
        v_fma_f32 v{vU}, -v{vU+9}, v{vCg}, v{vU}
        v_fma_f32 v{vU+4}, -v{vU+9}, v{vCu}, v{vU+4}
        v_mul_f32 v{vU+1}, {f2u(-1.4426950408889634):#x}, v{vU+10}
        v_mul_f32 v{vU}, v{vU}, v{vU+1}
        v_exp_f32 v{vU}, v{vU}
        v_mul_f32 v{vU+4}, v{vU+4}, v{vU+10}
        v_add_f32 v{vU}, 1.0, v{vU}
        v_rcp_f32 v{vU}, v{vU}
        s_nop 0
        v_mul_f32 v{vU}, v{vU}, v{vU+4}
        """)
        dpp("v_mov_b32", vU + 1, vU, None, "quad_perm:[1,0,3,2]")
        a(f"v_cvt_pk_bf16_f32 v{vU}, v{vU}, v{vU+1}\nv_min_u32 v{vU}, 0xfffffffe, v{vU}")
        setexec(0x55555555)
        store_local(f"buffer_store_dword v{vU}, v{vaStH}, {sr(sWS,4)}, s{sB} offen")
        setexec(FULL)
        a(f"{lab}:")
        ts_dyn("g_pub0", "g_pub1")

    def d_phase():
        lab0 = a.label("dr0"); l2 = a.label("dr"); ok2 = a.label("drok")
        l = a.label("dp"); ok = a.label("dok"); one = a.label("done"); l3 = a.label("dp1");
        a(f"s_cmp_eq_u32 s{sW}, 3\ns_cbranch_scc1 {l3}")
        setexec(EM2)
        a(f"{l}:")
        a(f"buffer_load_dwordx4 {vr(vHop,4)}, v{vaH}, {sr(sWS,4)}, s{sHb} offen sc1")
        a(f"buffer_load_dwordx4 {vr(vHop+4,4)}, v{vaH}, {sr(sWS,4)}, s{sHb} offen offset:512 sc1")
        a("s_waitcnt vmcnt(0)")
        sent_check([vHop+i for i in range(8)], vT1, ok)
        spin_fail(l)
        a(f"{l3}:")
        setexec(EM2)
        a(f"{l3}b:")
        a(f"buffer_load_dwordx4 {vr(vHop,4)}, v{vaH}, {sr(sWS,4)}, s{sHb} offen sc1")
        a("s_waitcnt vmcnt(0)")
        sent_check([vHop+i for i in range(4)], vT1, ok)
        spin_fail(f"{l3}b")
        a(f"{ok}:")
        setexec(FULL)
        for nt in range(2):
            mfma(vAcc + 4*nt, vHop, ar(aWd + 4*nt, 4), "0")
        for nt in range(2):
            mfma(vAcc + 4*nt, vHop + 4, ar(aWd + 8 + 4*nt, 4))
        a(f"""
        v_permlane16_swap_b32 v{vAcc}, v{vAcc+1}
        v_permlane16_swap_b32 v{vAcc+4}, v{vAcc+5}
        v_permlane32_swap_b32 v{vAcc}, v{vAcc+4}
        ds_write_b32 v{vaRedW}, v{vAcc} offset:{R_D}
        s_waitcnt lgkmcnt(0)
        s_barrier
        """)
        lab = a.label("df")
        a(f"s_cmp_eq_u32 s{sW}, 0\ns_cbranch_scc0 {lab}")
        line_final(R_D)
        a(f"{lab}:")
        advance_hop()
        ts_dyn("d_pub0", "d_pub1")

    a(f"s_cmp_lt_u32 s{sM}, 16\ns_cbranch_scc0 L_roleB")
    def down_slices():
        a(f"""
        v_lshrrev_b32 v{vT0}, 2, v{vLane}
        v_lshlrev_b32 v{vT0}, 10, v{vT0}
        v_and_b32 v{vT1}, 3, v{vLane}
        v_lshl_add_u32 v{vT0}, v{vT1}, 4, v{vT0}
        s_mul_i32 s{sB}, s{sJ}, {224*1024}
        s_lshl_b32 s{sC}, s{sIdx}, 6
        s_add_u32 s{sB}, s{sB}, s{sC}
        s_lshl_b32 s{sC}, s{sW}, 15
        s_add_u32 s{sB}, s{sB}, s{sC}
        s_lshl_b32 s{sC}, s{sW}, 14
        s_add_u32 s{sC}, s{sC}, {L_K + W_DN}
        s_mov_b32 m0, s{sC}
        s_add_u32 s{sD}, s{sB}, 16384
        buffer_load_dwordx4 v{vT0}, {sr(sDN,4)}, s{sB} offen{SLN} lds
        s_add_u32 s{sC}, s{sC}, 1024
        s_mov_b32 m0, s{sC}
        s_nop 0
        buffer_load_dwordx4 v{vT0}, {sr(sDN,4)}, s{sD} offen{SLN} lds
        s_cmp_eq_u32 s{sW}, 3
        s_cbranch_scc1 L_nod2
        s_add_u32 s{sB}, s{sB}, {4*32768}
        s_add_u32 s{sC}, s{sC}, 1024
        s_mov_b32 m0, s{sC}
        s_add_u32 s{sD}, s{sB}, 16384
        buffer_load_dwordx4 v{vT0}, {sr(sDN,4)}, s{sB} offen{SLN} lds
        s_add_u32 s{sC}, s{sC}, 1024
        s_mov_b32 m0, s{sC}
        s_nop 0
        buffer_load_dwordx4 v{vT0}, {sr(sDN,4)}, s{sD} offen{SLN} lds
        L_nod2:
        """)
    def down_operands():
        a(f"s_lshl_b32 s{sB}, s{sW}, 14")
        tr_base(vT0, 64, 8, sB, L_K + W_DN)
        for nt in range(2):
            a(f"ds_read_b64_tr_b16 {ar(aWd+4*nt,2)}, v{vT0} offset:{nt*32}")
            a(f"ds_read_b64_tr_b16 {ar(aWd+4*nt+2,2)}, v{vT0} offset:{nt*32+256}")
        a(f"s_cmp_eq_u32 s{sW}, 3\ns_cbranch_scc1 L_dn3")
        for nt in range(2):
            a(f"ds_read_b64_tr_b16 {ar(aWd+8+4*nt,2)}, v{vT0} offset:{2048+nt*32}")
            a(f"ds_read_b64_tr_b16 {ar(aWd+8+4*nt+2,2)}, v{vT0} offset:{2048+nt*32+256}")
        a("s_branch L_dn4\nL_dn3:")
        for i in range(8): a(f"v_accvgpr_write_b32 a{aWd+8+i}, 0")
        a("L_dn4:")
    g.role = "A"; ts_split = g.ts
    def wo_slices():
        if cfg.line_pf and "o" in cfg.pf_which:
            a(f"""
            v_lshlrev_b32 v{vT0}, 7, v{vLane}
            s_lshl_b32 s{sB}, s{sJ}, 19
            s_lshl_b32 s{sC}, s{sIdx}, 15
            s_add_u32 s{sB}, s{sB}, s{sC}
            s_lshl_b32 s{sC}, s{sW}, 13
            s_add_u32 s{sB}, s{sB}, s{sC}
            buffer_load_dword v{vJ}, v{vT0}, {sr(sW2,4)}, s{sB} offen{cfg.pf_pol_o}
            """)
        a(f"""
        v_lshrrev_b32 v{vT0}, 2, v{vLane}
        v_lshlrev_b32 v{vT0}, 10, v{vT0}
        v_and_b32 v{vT1}, 3, v{vLane}
        v_lshl_add_u32 v{vT0}, v{vT1}, 4, v{vT0}
        s_lshl_b32 s{sB}, s{sJ}, 19
        s_lshl_b32 s{sC}, s{sW}, 17
        s_add_u32 s{sB}, s{sB}, s{sC}
        s_lshl_b32 s{sC}, s{sIdx}, 6
        s_add_u32 s{sB}, s{sB}, s{sC}
        s_lshl_b32 s{sC}, s{sW}, 14
        s_add_u32 s{sC}, s{sC}, {L_K}
        """)
        for u in range(8):
            a(f"""
            s_mov_b32 m0, s{sC}
            s_add_u32 s{sC}, s{sC}, 1024
            buffer_load_dwordx4 v{vT0}, {sr(sW2,4)}, s{sB} offen{SLN} lds
            s_add_u32 s{sB}, s{sB}, {16*1024}
            """)
    if cfg.w_inter:
        s1_tail(nPF)
        db_setup(0, 1)
        a(f"s_mov_b32 s{sXr}, {WS_X}")
    elif cfg.wsA:
        wo_slices()
        s1_tail(8 + nPF)
        db_setup(0, 1)
    else:
        s1_tail(nPF)
        db_setup(0, 1)
        wo_slices()
    a(f"v_mov_b32 v{vRes}, 0")
    lab = a.label("r0")
    a(f"""
    s_cmp_eq_u32 s{sJ}, 0
    s_cbranch_scc0 {lab}
    v_and_b32 v{vT0}, 1, v{vQd}
    v_lshlrev_b32 v{vT0}, 10, v{vT0}
    v_lshrrev_b32 v{vT1}, 1, v{vQd}
    v_lshl_add_u32 v{vT0}, v{vT1}, 5, v{vT0}
    v_lshl_add_u32 v{vT0}, v{vR16}, 1, v{vT0}
    s_lshl_b32 s{sB}, s{sIdx}, 6
    buffer_load_ushort v{vRes}, v{vT0}, {sr(sX0,4)}, s{sB} offen
    {lab}:
    """)
    nspec = 0
    if cfg.o_spec:
        a(f"buffer_load_dwordx3 {vr(vSt,3)}, v{vaS0}, {sr(sWS,4)}, s{sOcons} offen sc1")
        a(f"buffer_load_dwordx3 {vr(vSt+4,3)}, v{vaS1}, {sr(sWS,4)}, s{sOcons} offen sc1")
        nspec = 2
    if cfg.w_inter:
        a(f"s_waitcnt vmcnt({nspec})")
        for half, (sh, base) in enumerate(((12, L_WQ), (14, L_K))):
            a(f"s_lshl_b32 s{sB}, s{sW}, {sh}")
            tr_base(vT0, 64, 4, sB, base)
            for c2 in range(2):
                c = 2*half + c2
                for nt in range(2):
                    a(f"ds_read_b64_tr_b16 {ar(aW2+8*c+4*nt,2)}, v{vT0} offset:{c2*2048+nt*32}")
                    a(f"ds_read_b64_tr_b16 {ar(aW2+8*c+4*nt+2,2)}, v{vT0} offset:{c2*2048+nt*32+1024}")
    else:
        a(f"s_lshl_b32 s{sB}, s{sW}, 14")
        tr_base(vT0, 64, 4, sB, L_K)
        a(f"s_waitcnt vmcnt({nspec})")
        for c in range(4):
            for nt in range(2):
                a(f"ds_read_b64_tr_b16 {ar(aW2+8*c+4*nt,2)}, v{vT0} offset:{c*2048+nt*32}")
                a(f"ds_read_b64_tr_b16 {ar(aW2+8*c+4*nt+2,2)}, v{vT0} offset:{c*2048+nt*32+1024}")
    a(f"v_lshlrev_b32 v{vResF}, 16, v{vRes}")
    a("s_waitcnt lgkmcnt(0)")
    ts("wo_ready")
    if cfg.o_spec:
        a(f"""
        s_add_u32 s{sA}, s{sT}, 1
        s_waitcnt vmcnt(0)
        v_xor_b32 v{vT0}, s{sA}, v{vSt+2}
        v_xor_b32 v{vT1}, s{sA}, v{vSt+6}
        v_or_b32 v{vT0}, v{vT0}, v{vT1}
        v_cmp_ne_u32 vcc, 0, v{vT0}
        s_cbranch_vccz L_heavy
        """)
    a("L_loopA:")
    o_phase()
    lab = a.label("dn")
    a(f"s_cmp_eq_u32 s{sL}, 0\ns_cbranch_scc0 {lab}")
    down_slices()
    tag_check_all()
    if cfg.epoch_early:
        le = a.label("ep")
        a(f"""
        s_or_b32 s{sB}, s{sJ}, s{sIdx}
        s_or_b32 s{sB}, s{sB}, s{sW}
        s_cmp_eq_u32 s{sB}, 0
        s_cbranch_scc0 {le}
        """)
        g.ep_lab = le
        a(f"v_mov_b32 v{vT0}, {WS_EPOCH}\nv_mov_b32 v{vT1}, s{sT}\ns_mov_b64 exec, 1")
        a(f"buffer_store_dword v{vT1}, v{vT0}, {sr(sWS,4)}, 0 offen sc1")
        a("s_mov_b64 exec, -1")
        a(f"{le}:")
    down_operands()
    if cfg.warm_out:
        lw = a.label("wout")
        a(f"""
        s_cmp_ge_u32 s{sIdx}, 2
        s_cbranch_scc1 {lw}
        s_lshl_b32 s{sB}, s{sJ}, 1
        s_add_u32 s{sB}, s{sB}, s{sIdx}
        s_lshl_b32 s{sB}, s{sB}, 6
        v_lshlrev_b32 v{vT0}, 10, v{vLane}
        s_mov_b64 exec, 3
        buffer_load_dword v{vJ}, v{vT0}, {sr(sOUT,4)}, s{sB} offen
        s_mov_b64 exec, -1
        {lw}:
        """)
    a("s_waitcnt lgkmcnt(0)\ns_barrier")
    a(f"{lab}:")
    d_phase()
    a(f"s_cmp_eq_u32 s{sL}, 1\ns_cbranch_scc1 L_finalA")
    a("s_branch L_q2s2")

    a("L_roleB:")
    g.role = "B"; g.ts = ts_split
    def gu_slices():
        a(f"""
        s_cmp_ge_u32 s{sIdx}, 14
        s_cbranch_scc1 L_nogu
        v_lshrrev_b32 v{vT0}, 1, v{vLane}
        v_mul_u32_u24 v{vT0}, 3584, v{vT0}
        v_and_b32 v{vT1}, 1, v{vLane}
        v_lshl_add_u32 v{vT0}, v{vT1}, 4, v{vT0}
        s_mul_i32 s{sB}, s{sW}, {128*3584}
        s_mul_i32 s{sC}, s{sJ}, 448
        s_add_u32 s{sB}, s{sB}, s{sC}
        s_lshl_b32 s{sC}, s{sIdx}, 5
        s_add_u32 s{sB}, s{sB}, s{sC}
        s_lshl_b32 s{sC}, s{sW}, 14
        s_add_u32 s{sC}, s{sC}, {L_K + W_GATE}
        """)
        for u in range(4):
            a(f"""
            s_mov_b32 m0, s{sC}
            s_add_u32 s{sD}, s{sC}, {W_UP - W_GATE}
            buffer_load_dwordx4 v{vT0}, {sr(sW2,4)}, s{sB} offen{SLN} lds
            s_mov_b32 m0, s{sD}
            s_add_u32 s{sC}, s{sC}, 1024
            buffer_load_dwordx4 v{vT0}, {sr(sUP,4)}, s{sB} offen{SLN} lds
            s_add_u32 s{sB}, s{sB}, {32*3584}
            """)
        a("L_nogu:")
    if cfg.wsB:
        gu_slices()
        s1_tail(8, maybe_none=True)
    else:
        s1_tail(nPF)
    if cfg.w_inter: a(f"s_mov_b32 s{sWb2}, s{sWb}\ns_mov_b32 s{sWst2}, s{sWst}")
    db_setup(1, 0)
    if cfg.w_inter: a(f"s_mov_b32 s{sXr}, {WS_X}")
    if cfg.pf_down:
        a(f"""
        v_lshrrev_b32 v{vT0}, 3, v{vLane}
        v_lshlrev_b32 v{vT0}, 10, v{vT0}
        v_and_b32 v{vT1}, 7, v{vLane}
        v_lshl_add_u32 v{vT0}, v{vT1}, 7, v{vT0}
        s_mul_i32 s{sB}, s{sJ}, 224
        s_mul_i32 s{sC}, s{sIdx}, 14
        s_add_u32 s{sB}, s{sB}, s{sC}
        s_lshl_b32 s{sC}, s{sW}, 2
        s_add_u32 s{sB}, s{sB}, s{sC}
        s_lshl_b32 s{sB}, s{sB}, 10
        s_cmp_eq_u32 s{sW}, 3
        s_cselect_b32 exec_lo, 0xffff, -1
        s_mov_b32 exec_hi, 0
        buffer_load_dword v{vJ}, v{vT0}, {sr(sDN,4)}, s{sB} offen{cfg.pf_down_pol}
        s_mov_b64 exec, -1
        """)
    if cfg.line_pf and "f" in cfg.pf_which:
        a(f"""
        v_mul_u32_u24 v{vT0}, 52, v{vLane}
        v_lshrrev_b32 v{vT0}, 8, v{vT0}            ; l/5 for l < 64
        v_mul_u32_u24 v{vT1}, 5, v{vT0}
        v_sub_u32 v{vT1}, v{vLane}, v{vT1}         ; l%5
        v_mul_u32_u24 v{vT0}, 3584, v{vT0}
        v_lshl_add_u32 v{vT0}, v{vT1}, 7, v{vT0}
        s_lshl_b32 s{sB}, s{sIdx}, 5
        s_lshl_b32 s{sC}, s{sW}, 3
        s_add_u32 s{sB}, s{sB}, s{sC}
        s_mul_i32 s{sB}, s{sB}, 3584
        s_mul_i32 s{sC}, s{sJ}, 448
        s_and_b32 s{sC}, s{sC}, 0xffffff80
        s_add_u32 s{sB}, s{sB}, s{sC}
        """)
        setexec((1 << 40) - 1)
        a(f"buffer_load_dword v{vJ}, v{vT0}, {sr(sW2,4)}, s{sB} offen{cfg.pf_pol_f}")
        a(f"buffer_load_dword v{vJ}, v{vT0}, {sr(sUP,4)}, s{sB} offen{cfg.pf_pol_f}")
        setexec(FULL)
    if not cfg.wsB and not cfg.w_inter: gu_slices()
    if cfg.w_inter and cfg.w_interB != "gu":
        lab = a.label("wl")
        a(f"s_cmp_ge_u32 s{sIdx}, 14\ns_cbranch_scc1 {lab}")
        for part, key, srdq, sh, base in ((0, "g", sW2, 12, L_WQ), (1, "u", sUP, 14, L_K)):
            if key in cfg.w_interB: continue
            for u in range(4):
                a(f"""
                s_mul_i32 s{sB}, s{sWst2}, {u}
                s_add_u32 s{sB}, s{sB}, s{sWb2}
                s_lshl_b32 s{sC}, s{sW}, {sh}
                s_add_u32 s{sC}, s{sC}, {base + u*1024}
                s_mov_b32 m0, s{sC}
                s_nop 0
                buffer_load_dwordx4 v{vWs}, {sr(srdq,4)}, s{sB} offen{SLN} lds
                """)
        a(f"{lab}:")
    tag_check_all()
    ts("ffn_landed")
    a(f"s_cmp_ge_u32 s{sIdx}, 14\ns_cbranch_scc1 L_nogu2")
    if cfg.w_inter:
        for mat, (sh, base) in enumerate(((12, L_WQ), (14, L_K))):
            a(f"s_lshl_b32 s{sB}, s{sW}, {sh}")
            tr_base(vT0, 32, 8, sB, base)
            for u in range(4):
                a(f"ds_read_b64_tr_b16 {ar(aW2+8*u+4*mat,2)}, v{vT0} offset:{u*1024}")
                a(f"ds_read_b64_tr_b16 {ar(aW2+8*u+4*mat+2,2)}, v{vT0} offset:{u*1024+128}")
    else:
        a(f"s_lshl_b32 s{sB}, s{sW}, 14")
        tr_base(vT0, 32, 8, sB, L_K + W_GATE)
        for u in range(4):
            for mat in range(2):
                a(f"ds_read_b64_tr_b16 {ar(aW2+8*u+4*mat,2)}, v{vT0} offset:{u*1024+mat*(W_UP-W_GATE)}")
                a(f"ds_read_b64_tr_b16 {ar(aW2+8*u+4*mat+2,2)}, v{vT0} offset:{u*1024+mat*(W_UP-W_GATE)+128}")
    a("s_waitcnt lgkmcnt(0)")
    for u in range(4):
        mfma(vAcc, vOnes, ar(aW2 + 8*u, 4), "0" if u == 0 else None)
        mfma(vAcc + 4, vOnes, ar(aW2 + 8*u + 4, 4), "0" if u == 0 else None)
    a(f"s_nop 7\nds_write_b32 v{vaRedW}, v{vAcc} offset:{R_COL}\nds_write_b32 v{vaRedW}, v{vAcc+4} offset:{R_COL2}")
    a("L_nogu2:")
    a("s_waitcnt lgkmcnt(0)\ns_barrier")
    a(f"""
    ds_read_b128 {vr(vU,4)}, v{vaFinW} offset:{R_COL}
    ds_read_b128 {vr(vU+4,4)}, v{vaFinW} offset:{R_COL2}
    s_waitcnt lgkmcnt(0)
    """)
    sum4r(vU); sum4r(vU + 4)
    a(f"v_mov_b32 v{vCg}, v{vU}\nv_mov_b32 v{vCu}, v{vU+4}")
    ts("ffn_ready")
    a("L_loopB:")
    lg = a.label("nog")
    a(f"s_cmp_ge_u32 s{sIdx}, 14\ns_cbranch_scc1 {lg}")
    g_phase()
    a(f"{lg}:")
    if cfg.junk_dirty:
        lj = a.label("jk")
        a(f"s_cmp_eq_u32 s{sL}, 0\ns_cbranch_scc0 {lj}")
        a(f"s_lshl_b32 s{sB}, s2, 2\ns_add_u32 s{sB}, s{sB}, s{sW}\ns_mul_i32 s{sB}, s{sB}, {cfg.junk_dirty*1024}\ns_add_u32 s{sB}, s{sB}, 0x400000\nv_lshlrev_b32 v{vT0}, 4, v{vLane}")
        for i in range(cfg.junk_dirty):
            a(f"buffer_store_dwordx4 {vr(vP,4)}, v{vT0}, {sr(sWS,4)}, s{sB} offen\ns_add_u32 s{sB}, s{sB}, 1024")
        a(f"{lj}:")
    a(f"s_cmp_eq_u32 s{sL}, 1\ns_cbranch_scc1 L_fin")

    a("L_q2s2:")
    save_role, save_ts = g.role, g.ts
    g.role = "C"; g.ts = getattr(g, "maxts", g.ts)
    lab = a.label("wo")
    a(f"s_cmp_lt_u32 s{sM}, 16\ns_cbranch_scc{1 if cfg.warm_by_B else 0} {lab}")
    warm_q2()
    warm_o(1)
    a(f"{lab}:")
    if cfg.db_q: db_wait(None, const_hop=1)
    if cfg.diag and cfg.ts_only and "q2_db" in cfg.ts_only:
        ts("q2_db")
    a(f"s_mov_b32 s{sD}, {WS_X + X_HOP}")
    x_poll(sD, XA, cfg.sleep_x)
    ts("q2_got")
    q_core(XA)
    q_final(False)
    ts("q2_pub")
    l = a.label("qp"); ok = a.label("qok")
    setexec(EM4)
    a(f"{l}:")
    for c in range(4):
        a(f"buffer_load_dwordx4 {vr(vQ+4*c,4)}, v{vaQ2}, {sr(sWS,4)}, s{sQ2r} offen offset:{c*256} sc1")
    a("s_waitcnt vmcnt(0)")
    sent_check([vQ+i for i in range(16)], vT0, ok)
    spin_fail(l)
    a(f"{ok}:")
    setexec(FULL)
    ts("q2_gath")
    a(f"""
    s_add_u32 s{sOown}, s{sOown}, {O_L}
    s_add_u32 s{sOcons}, s{sOcons}, {O_L}
    s_add_u32 s{sXr}, s{sXr}, {2*X_HOP}
    s_add_u32 s{sHb}, s{sHb}, 8192
    s_mov_b32 s{sL}, 1
    """)
    s_qk_max()
    s_exp_p()
    if cfg.stats_mid:
        lw3 = a.label("s3"); lw4 = a.label("s4")
        a(f"s_cmp_eq_u32 s{sW}, 3\ns_cbranch_scc1 {lw3}")
        for blk in range(8):
            a(f"s_waitcnt lgkmcnt({7-blk})")
            pv([blk], blk == 0)
        a(f"s_branch {lw4}\n{lw3}:")
        a(f"""
        ds_read_b128 {vr(vU+4,4)}, v{vaSm} offset:{L_LSUM-L_SMAX}
        s_add_u32 s{sB}, s{sT}, s{sL}
        s_add_u32 s{sB}, s{sB}, 1
        v_mov_b32 v{vMc+2}, s{sB}
        """)
        for blk in range(4):
            a(f"s_waitcnt lgkmcnt({8-blk})")
            pv([blk], blk == 0)
        a("s_waitcnt lgkmcnt(0)")
        sum4r(vU + 4)
        a(f"v_mov_b32 v{vMc+1}, v{vU+4}")
        setexec(0xF)
        store_local(f"buffer_store_dwordx4 {vr(vMc,4)}, v{vaStS}, {sr(sWS,4)}, s{sOown} offen")
        setexec(FULL)
        for blk in range(4, 8):
            pv([blk], False)
        a(f"{lw4}:")
        s_out()
    else:
        s_stats_prep()
        a("s_waitcnt lgkmcnt(0)")
        pv(list(range(8)), True)
        s_out()
        s_stats_store(None)
    ts("s2_pub")
    if cfg.diag and cfg.ts_only and "s2_ack" in cfg.ts_only:
        a("s_waitcnt vmcnt(0)")
        ts("s2_ack")
    a(f"s_cmp_lt_u32 s{sM}, 16\ns_cbranch_scc1 L_loopA\ns_branch L_loopB")

    a("L_finalA:")
    g.role = "A"; g.ts = getattr(g, "maxts", g.ts)
    a(f"""
    s_cmp_ge_u32 s{sIdx}, 2
    s_cbranch_scc1 L_fin
    s_cmp_eq_u32 s{sW}, 0
    s_cbranch_scc0 L_fin
    s_lshl_b32 s{sB}, s{sJ}, 1
    s_add_u32 s{sB}, s{sB}, s{sIdx}        ; cb
    s_lshl_b32 s{sC}, s{sB}, 7
    s_add_u32 s{sC}, s{sC}, {WS_X + 3*X_HOP}
    """)
    for nt in range(2):
        for dd in range(4):
            a(f"""
            v_lshlrev_b32 v{vT0}, 3, v{vQd}
            v_add_u32 v{vT0}, {2*dd - 16*nt}, v{vT0}
            v_sub_u32 v{vT0}, v{vT0}, v{vR16}
            v_mov_b32 v{vP+4*nt+dd}, 0
            v_cmp_eq_u32 vcc, 0, v{vT0}
            v_mov_b32 v{vT1}, 0x3f80
            v_cndmask_b32 v{vP+4*nt+dd}, v{vP+4*nt+dd}, v{vT1}, vcc
            v_cmp_eq_u32 vcc, -1, v{vT0}
            v_mov_b32 v{vT1}, 0x3f800000
            v_cndmask_b32 v{vP+4*nt+dd}, v{vP+4*nt+dd}, v{vT1}, vcc
            """)
    a(f"""
    v_lshrrev_b32 v{vT2}, 1, v{vQd}
    v_lshlrev_b32 v{vT2}, 10, v{vT2}
    v_and_b32 v{vT1}, 1, v{vQd}
    v_lshl_add_u32 v{vT2}, v{vT1}, 5, v{vT2}
    v_lshl_add_u32 v{vT2}, v{vR16}, 1, v{vT2}
    s_lshl_b32 s{sB}, s{sB}, 6
    """)
    a(f"s_mov_b32 s{sEx2}, s{sC}\ns_mov_b32 s{sEx2+1}, s{sB}")
    if cfg.db_final: db_wait(None, const_hop=3)
    a(f"s_mov_b32 s{sC}, s{sEx2}\ns_mov_b32 s{sB}, s{sEx2+1}")
    l = a.label("fp"); ok = a.label("fok")
    a(f"{l}:")
    a(f"buffer_load_dwordx4 {vr(vA,4)}, v{vaX}, {sr(sWS,4)}, s{sC} offen sc1")
    a("s_waitcnt vmcnt(0)")
    sent_check([vA+i for i in range(4)], vT0, ok)
    spin_fail(l, cfg.sleep_x)
    a(f"{ok}:")
    ts("fin_got")
    mfma(vAcc, vA, vP, "0"); mfma(vAcc + 4, vA, vP + 4, "0")
    sum4(vU, vAcc, vT3); sum4(vU + 1, vAcc + 4, vT3)
    a(f"""
    v_permlane16_swap_b32 v{vU}, v{vU+1}
    v_add_f32 v{vU}, v{vU}, v{vU+1}
    v_cvt_pk_bf16_f32 v{vU}, v{vU}, v{vU}
    buffer_store_short v{vU}, v{vT2}, {sr(sOUT,4)}, s{sB} offen
    """)
    if not cfg.epoch_early:
        a(f"""
        s_cmp_eq_u32 s{sB}, 0
        s_cbranch_scc0 L_fin
        v_mov_b32 v{vT0}, {WS_EPOCH}
        v_mov_b32 v{vT1}, s{sT}
        """)
        setexec(1)
        a(f"buffer_store_dword v{vT1}, v{vT0}, {sr(sWS,4)}, 0 offen sc1")
        setexec(FULL)

    a("L_fin:")
    if cfg.diag:
        g.role = "E"
        g.tsn["E"].append((NTS - 1, "end"))
        a(f"s_memrealtime s[{sTmp2}:{sTmp2+1}]\ns_waitcnt lgkmcnt(0)\ns_mov_b32 s{sTS+NTS-2}, s{sTmp2}")
        a(f"s_memtime s[{sTmp2}:{sTmp2+1}]\ns_waitcnt lgkmcnt(0)\ns_mov_b32 s{sTS+NTS-1}, s{sTmp2}")
        a(f"s_lshl_b32 s{sB}, s2, 3\ns_add_u32 s{sB}, s{sB}, s{sW}\ns_lshl_b32 s{sB}, s{sB}, 7\ns_add_u32 s{sB}, s{sB}, {WS_DIAG}\nv_mov_b32 v{vT0}, 0")
        setexec(1)
        for i in range(NTS):
            a(f"v_mov_b32 v{vT1}, s{sTS+i}\nbuffer_store_dword v{vT1}, v{vT0}, {sr(sWS,4)}, s{sB} offen offset:{4*i}")
        setexec(FULL)
    if cfg.dbg_span:
        a(f"""
        s_waitcnt vmcnt(0)
        s_cmp_eq_u32 s{sW}, 0
        s_cbranch_scc0 L_nospan
        s_memrealtime s[{sTmp2}:{sTmp2+1}]
        s_load_dwordx2 s[92:93], s[0:1], 80
        s_waitcnt lgkmcnt(0)
        s_mov_b32 s{sA}, s92
        s_and_b32 s{sB}, s93, 0xffff
        s_mov_b32 s{sC}, 256
        s_mov_b32 s{sD}, 0x20000
        v_mov_b32 v{vT0}, 8
        v_mov_b32 v{vT1}, s{sTmp2}
        s_not_b32 s94, s94
        v_mov_b32 v{vT2}, s94
        s_mov_b64 exec, 1
        buffer_atomic_umax v{vT1}, v{vT0}, s[{sA}:{sD}], 0 offen sc1
        buffer_atomic_umax v{vT2}, v{vT0}, s[{sA}:{sD}], 0 offen offset:4 sc1
        s_waitcnt vmcnt(0)
        L_nospan:
        """)
    a("s_waitcnt vmcnt(0)\ns_endpgm")
    a(f"""
    L_abort:
    s_mov_b64 exec, -1
    v_mov_b32 v{vT0}, 0
    v_mov_b32 v{vT1}, 0xdead
    s_load_dwordx2 s[{sTmp2}:{sTmp2+1}], s[0:1], 80
    s_waitcnt lgkmcnt(0)
    s_mov_b32 s{sA}, s{sTmp2}
    s_and_b32 s{sB}, s{sTmp2+1}, 0xffff
    s_mov_b32 s{sC}, 256
    s_mov_b32 s{sD}, 0x20000
    s_mov_b64 exec, 1
    buffer_store_dword v{vT1}, v{vT0}, s[{sA}:{sD}], 0 offen offset:4
    s_waitcnt vmcnt(0)
    L_end:
    s_endpgm
    """)
    for o in g.ool: a(o)
    a("L_codeend:\ns_endpgm")
    lines = a.text().rstrip("\n").split("\n")
    g.ninstr = sum(1 for l in lines if l.startswith("    ") and not l.strip().startswith(";"))
    lines = hazard.pad(lines)
    return g, "\n".join(lines) + "\n"

HEADER = open("interleave_layers__sliding_block_cached__glu_gated_glu__decode.s.ref").read().split("; Override launch")[0]

def full(cfg):
    g, body = build(cfg)
    txt = HEADER
    txt += "; Persistent single-launch kernel: 256 workgroups (one per CU) x 256 threads.\n"
    txt += f"; @launch grid=(256,1,1) block=(256,1,1) lds={LDS_BYTES}\n"
    txt += '.amdgcn_target "amdgcn-amd-amdhsa--gfx950"\n.text\n'
    txt += f".globl {NAME}\n.p2align 8\n.type {NAME},@function\n{NAME}:\n"
    txt += body
    txt += '.section .rodata,"a"\n.p2align 6\n'
    txt += f".amdhsa_kernel {NAME}\n  .amdhsa_next_free_vgpr {256 + g.amax}\n  .amdhsa_next_free_sgpr 102\n  .amdhsa_accum_offset 256\n"
    txt += "  .amdhsa_group_segment_fixed_size 0\n  .amdhsa_kernarg_size 96\n  .amdhsa_user_sgpr_count 2\n  .amdhsa_user_sgpr_kernarg_segment_ptr 1\n  .amdhsa_system_sgpr_workgroup_id_x 1\n.end_amdhsa_kernel\n"
    return g, txt

if __name__ == "__main__":
    cfg = Cfg()
    for kv in sys.argv[2:]:
        k, v = kv.split("="); setattr(cfg, k, eval(v))
    g, txt = full(cfg)
    open(sys.argv[1], "w").write(txt)
    print("vgprs", g.vmax, "agprs", g.amax, "instrs", g.ninstr, "ts", g.tsn)
```

```python
import sys, struct
from asmlib import Asm
import hazard

NAME = "interleave_layers__sliding_block_cached__glu_gated_glu__decode_kernel"

WS_EPOCH = 0x0
WS_Q1 = 0x10000
WS_DB = 0x1c000
WS_Q2 = 0x20000
WS_H  = 0x28000
WS_X  = 0xE0000
X_HOP = 32768
WS_O  = 0x40000
O_STATS = 32768
O_J = O_STATS + 2048
O_L = 8 * O_J
WS_DIAG = 0x100000
WS_SIZE = 0x1000000

L_SMAX = 0
L_LSUM = 64
L_PBUF = 256
L_RED = 2560
R_Q, R_G, R_GZ, R_O, R_D, R_COL, R_COL2 = [L_RED + 1024 * i for i in range(7)]
L_QG = 10240
L_X0 = 14336
L_K = 16384
L_V = L_K + 65536
L_WQ = L_V + 65536
L_XI = L_V
LDS_BYTES = 163840
W_GATE, W_UP, W_DN = 0, 4096, 8192

C_SCALE = 0.08838834764831845 * 1.4426950408889634
def f2u(x): return struct.unpack("<I", struct.pack("<f", x))[0]

class Cfg:
    nKA = 8
    nKb1 = 1
    pace = 8
    gpts = (1, 2, 4)
    diag = False
    ts_only = None
    ts_issue = False
    force_global = False
    budget = 400000
    prefetch_code = True
    sleep_x = 0
    sleep_x0 = 0
    sleep_o = 0
    sl_nt = True
    pf_pol = ""
    pf_pol_f = ""
    pf_pol_o = " nt"
    pf_which = "qf"
    dbg_span = False
    counters = False
    db_early = False
    doorbell = True
    warm = True
    pf_stream = "o"
    pf_pos = 2
    pf_early = False
    pf_spol = ""
    wsA = False
    wsB = False
    junk_dirty = 0
    epoch_early = True
    w_interB = "gu"
    w_inter = False
    v3_early = False
    warm_by_B = True
    o_spec = True
    db_g = True
    db_q = True
    db_final = False
    stats_mid = True
    pf_down = False
    pf_down_pol = " nt"
    kv_pol = " nt"
    sub2 = ""
    warm_out = False
    line_pf = True
    const_tag = False
    no_clear0 = False
    clr0_late = False

def vr(b, n=1): return f"v[{b}:{b+n-1}]" if n > 1 else f"v{b}"
def ar(b, n=1): return f"a[{b}:{b+n-1}]" if n > 1 else f"a{b}"
def sr(b, n=1): return f"s[{b}:{b+n-1}]" if n > 1 else f"s{b}"

sJ, sM, sW, sIdx, sL = 3, 4, 5, 6, 7
sWS, sKS, sVS, sWQ, sW2, sUP, sDN, sX0, sOUT = 8, 12, 16, 20, 24, 28, 32, 36, 40
sT, sTX, sLocal, sBud = 44, 45, 46, 47
sMDIAG = 48
sM4 = 50
sM2 = 52
sMN1 = 54
sMEV = 56
sEx = 58
sA, sB, sC, sD = 60, 61, 62, 63
sKV, sRot = 64, 65
sOown, sOcons, sXw, sXr, sHb, sQ2w, sQ2r = 66, 67, 68, 69, 70 - 70 + 96, 97, 98
sXcc = 99
sWb2, sWst2 = 68, 60
sWb, sWst = 59, 69
sKS2 = sKS
sDBtag = 59
sEx2 = 50
sDBw, sDBr = 64, 65
sXI = 58
sTmp2 = 100
sTS = 70
NTS = 26

class G:
    pass

def build(cfg):
    g = G(); a = Asm(); g.a = a
    g.tsn = {"C": [], "A": [], "B": [], "E": []}; g.role = "C"; g.ts = 0; g.cnts = {}; g.cnt_names = []
    nv = [1]
    def valloc(n=1, align=1):
        nv[0] = (nv[0] + align - 1) // align * align
        r = nv[0]; nv[0] += n
        assert nv[0] <= 256
        return r
    vLane = valloc(); vR16 = valloc(); vQd = valloc()
    vT0 = valloc(); vT1 = valloc(); vT2 = valloc(); vT3 = valloc()
    vOnes = valloc(4, 4)
    vQ = valloc(16, 4)
    vA = valloc(40, 4)
    vAcc = valloc(16, 4)
    vS = valloc(16, 4)
    vP = valloc(32, 4)
    vJ = valloc()
    vHop = valloc(8, 4)
    vU = valloc(16, 4)
    vSt = valloc(8, 4)
    vW = valloc(2, 2)
    vCs = valloc(); vCg = valloc(); vCu = valloc()
    vRes = valloc(); vResF = valloc()
    vQ1d = valloc(2, 2); vQ1a = valloc()
    vMc = valloc(4, 4)
    vaX = valloc(); vaXg = valloc(); vaXr = valloc(); vaStQ = valloc(); vaClrO = valloc(); vaO0 = valloc(); vaO1 = valloc(); vaS0 = valloc(); vaS1 = valloc(); vaQ2 = valloc(); vaH = valloc()
    vaPw = valloc(); vaPr = valloc(); vaSm = valloc(); vaSmW = valloc(); vaRedW = valloc(); vaRedZ = valloc()
    vaFinW = valloc(); vaFinZ = valloc(); vaFinQZ = valloc(); vaFinO = valloc()
    vaStH = valloc(); vaStX = valloc(); vaStO = valloc(); vaStS = valloc(); vaResU = valloc()
    vWs = valloc()
    vKs = valloc(4); vVs = valloc(2); vVr = valloc(2); vKr = valloc(4)
    g.vmax = nv[0]
    aK, aV, aWq, aW2, aWd = 0, 64, 128, 144, 176
    g.amax = 192

    FULL = (1 << 64) - 1
    def ts(name):
        if not cfg.diag: return
        if cfg.ts_only and name not in cfg.ts_only and name not in ("start", "setup", "issued"): return
        i = g.ts; g.ts += 1; g.maxts = max(getattr(g, "maxts", 0), g.ts)
        assert i < NTS - 3, name
        g.tsn[g.role].append((i, name))
        if name == "start":
            return
        if name == "issued":
            g.i_issued = i
            a(f"s_memtime s[{sTmp2}:{sTmp2+1}]\ns_waitcnt lgkmcnt(0)\ns_mov_b32 s92, s{sTmp2}")
            return
        if name == "setup":
            a(f"s_mov_b32 s{sTS}, s90\ns_mov_b32 s{sTS+NTS-3}, s91")
            if cfg.ts_issue: a(f"s_mov_b32 s{sTmp2}, s92")
            for z in list(range(1, NTS - 3)) + [NTS - 2, NTS - 1]: a(f"s_mov_b32 s{sTS+z}, 0")
            if cfg.ts_issue: a(f"s_mov_b32 s{sTS+g.i_issued}, s{sTmp2}")
        if cfg.ts_only and name not in cfg.ts_only:
            return
        a(f"s_memtime s[{sTmp2}:{sTmp2+1}]\ns_waitcnt lgkmcnt(0)\ns_mov_b32 s{sTS+i}, s{sTmp2}")
    def ts_dyn(name0, name1):
        if not cfg.diag: return
        if cfg.ts_only and name0 not in cfg.ts_only: return
        i = g.ts; g.ts += 2; g.maxts = max(getattr(g, "maxts", 0), g.ts)
        assert i + 1 < NTS - 3, name0
        g.tsn[g.role].append((i, name0)); g.tsn[g.role].append((i + 1, name1))
        if cfg.ts_only and name0 not in cfg.ts_only: return
        a(f"""s_memtime s[{sTmp2}:{sTmp2+1}]
        s_waitcnt lgkmcnt(0)
        s_cmp_eq_u32 s{sL}, 0
        s_cselect_b32 s{sTS+i}, s{sTmp2}, s{sTS+i}
        s_cselect_b32 s{sTS+i+1}, s{sTS+i+1}, s{sTmp2}""")

    def cnt(name):
        if not (cfg.diag and cfg.counters): return
        key = (g.role, name)
        if key not in g.cnts:
            i = g.ts; g.ts += 1; g.maxts = max(getattr(g, "maxts", 0), g.ts)
            assert i < NTS - 3, name
            g.cnts[key] = i; g.cnt_names.append((g.role, i, name))
        a(f"s_add_u32 s{sTS+g.cnts[key]}, s{sTS+g.cnts[key]}, 1")

    def setexec(mask):
        if mask == FULL: a("s_mov_b64 exec, -1")
        elif isinstance(mask, str): a(f"s_mov_b64 exec, {mask}")
        elif mask < 65 or mask in (0xFFFF, 0xF, 0xFF):
            a(f"s_mov_b64 exec, 0x{mask:x}" if mask >= 65 else f"s_mov_b64 exec, {mask}")
        else:
            a(f"s_mov_b32 exec_lo, 0x{mask & 0xFFFFFFFF:x}\ns_mov_b32 exec_hi, 0x{mask >> 32:x}")
    EM4, EM2, EMEV = f"s[{sM4}:{sM4+1}]", f"s[{sM2}:{sM2+1}]", f"s[{sMEV}:{sMEV+1}]"

    def srd(dst, ptr_s, size):
        a(f"s_mov_b32 s{dst}, s{ptr_s}\ns_and_b32 s{dst+1}, s{ptr_s+1}, 0xffff\ns_mov_b32 s{dst+2}, 0x{size:x}\ns_mov_b32 s{dst+3}, 0x20000")

    def mfma(d, A, B, C=None):
        f = lambda x: x if isinstance(x, str) else vr(x, 4)
        c = f(d) if C is None else C
        a(f"v_mfma_f32_16x16x32_bf16 {f(d)}, {f(A)}, {f(B)}, {c}")

    def spin_fail(lbl_retry, sleep=0):
        if sleep: a(f"s_sleep {sleep}")
        a(f"s_sub_u32 s{sBud}, s{sBud}, 1\ns_cbranch_scc0 {lbl_retry}\ns_branch L_abort")
    def interleave(mf, va, start, per=2):
        va = list(va)
        for i, m in enumerate(mf):
            a(m)
            if i >= start:
                for _ in range(per):
                    if va: a(va.pop(0))
        for v in va: a(v)
    def mf(d, A, B, C=None):
        f = lambda x: x if isinstance(x, str) else vr(x, 4)
        return f"v_mfma_f32_16x16x32_bf16 {f(d)}, {f(A)}, {f(B)}, {f(d) if C is None else C}"

    def sent_max(regs, tmp):
        rs = list(regs)
        if len(rs) == 1: return rs[0]
        if len(rs) == 2:
            a(f"v_max_u32 v{tmp}, v{rs[0]}, v{rs[1]}"); rs = []
        else:
            a(f"v_max3_u32 v{tmp}, v{rs[0]}, v{rs[1]}, v{rs[2]}"); rs = rs[3:]
        while len(rs) >= 2:
            a(f"v_max3_u32 v{tmp}, v{tmp}, v{rs[0]}, v{rs[1]}"); rs = rs[2:]
        if rs: a(f"v_max_u32 v{tmp}, v{tmp}, v{rs[0]}")
        return tmp
    def sent_check(regs, tmp, lbl_ok):
        cur = sent_max(regs, tmp)
        a(f"v_cmp_eq_u32 vcc, -1, v{cur}\ns_cbranch_vccz {lbl_ok}")

    g.ool = []
    def store_local(instr):
        if cfg.force_global:
            a(instr + " sc1"); return
        l1 = a.label("stg"); l2 = a.label("std")
        a(f"s_cmp_eq_u32 s{sLocal}, 0\ns_cbranch_scc1 {l1}")
        a(instr)
        a(f"{l2}:")
        g.ool.append(f"{l1}:\n{instr} sc1\ns_branch {l2}")

    def dpp(op, d, s0, s1, ctrl, rm="0xf", bm="0xf"):
        if s1 is None: a(f"{op}_dpp v{d}, v{s0} {ctrl} row_mask:{rm} bank_mask:{bm}")
        else: a(f"{op}_dpp v{d}, v{s0}, v{s1} {ctrl} row_mask:{rm} bank_mask:{bm}")
    def row_reduce(op, v, steps=(8, 4, 2, 1)):
        for n in steps: dpp(op, v, v, v, f"row_ror:{n}")
    def xquad_reduce(op, v, tmp):
        a(f"v_mov_b32 v{tmp}, v{v}\nv_permlane32_swap_b32 v{v}, v{tmp}\n{op} v{v}, v{v}, v{tmp}")
        a(f"v_mov_b32 v{tmp}, v{v}\nv_permlane16_swap_b32 v{v}, v{tmp}\n{op} v{v}, v{v}, v{tmp}")
    def sum4(dst, b, tmp):
        a(f"v_add_f32 v{dst}, v{b}, v{b+1}\nv_add_f32 v{tmp}, v{b+2}, v{b+3}\nv_add_f32 v{dst}, v{dst}, v{tmp}")

    P = sTS
    EARLY = ""
    if cfg.dbg_span:
        EARLY = f"s_memrealtime s[94:95]"
    if cfg.diag:
        EARLY = f"s_memrealtime s[{sTmp2}:{sTmp2+1}]\ns_waitcnt lgkmcnt(0)\ns_mov_b32 s91, s{sTmp2}\ns_memtime s[{sTmp2}:{sTmp2+1}]\ns_waitcnt lgkmcnt(0)\ns_mov_b32 s90, s{sTmp2}"
    SLN = " nt" if cfg.sl_nt else ""
    a(f"""
    s_cmp_ge_u32 s2, 256
    s_cbranch_scc1 L_end
    {EARLY}
    s_load_dwordx4 s[{P+6}:{P+9}], s[0:1], 16          ; V, wq     (76..79)
    s_load_dwordx4 s[{P+2}:{P+5}], s[0:1], 0           ; x, K      (72..75)
    s_load_dwordx2 s[{P+18}:{P+19}], s[0:1], 88        ; ws        (88..89)
    s_load_dwordx2 s[{P}:{P+1}], s[0:1], 32            ; wo        (70..71)
    s_load_dwordx4 s[{P+10}:{P+13}], s[0:1], 48
    s_load_dwordx4 s[{P+14}:{P+17}], s[0:1], 64
    v_lshrrev_b32 v{vT0}, 6, v0
    v_and_b32 v{vLane}, 63, v0
    """)
    if cfg.prefetch_code:
        a(f"""
        s_getpc_b64 s[{sTmp2}:{sTmp2+1}]
        L_pfbase:
        v_readfirstlane_b32 s{sW}, v{vT0}
        v_lshlrev_b32 v{vT1}, 7, v0
        s_mov_b32 s{sB}, (L_codeend - L_pfbase)
        v_cmp_gt_u32 vcc, s{sB}, v{vT1}
        s_and_b32 s{sJ}, s2, 7
        s_and_saveexec_b64 s[{sEx}:{sEx+1}], vcc
        s_cbranch_execz L_nopf
        global_load_dword v{vU+15}, v{vT1}, s[{sTmp2}:{sTmp2+1}]
        L_nopf:
        s_mov_b64 exec, s[{sEx}:{sEx+1}]
        """)
    else:
        a(f"s_and_b32 s{sJ}, s2, 7\nv_readfirstlane_b32 s{sW}, v{vT0}")
    a(f"""
    s_lshr_b32 s{sM}, s2, 3
    v_lshrrev_b32 v{vT2}, 1, v{vLane}
    v_lshlrev_b32 v{vT2}, 13, v{vT2}
    v_and_b32 v{vT3}, 1, v{vLane}
    v_lshl_add_u32 v{vT2}, v{vT3}, 4, v{vT2}
    v_lshrrev_b32 v{vT0}, {4 if "q" in cfg.sub2 else 3}, v{vLane}
    v_lshlrev_b32 v{vT0}, 13, v{vT0}
    v_and_b32 v{vT3}, {15 if "q" in cfg.sub2 else 7}, v{vLane}
    v_lshl_add_u32 v{vT0}, v{vT3}, {6 if "q" in cfg.sub2 else 7}, v{vT0}
    s_lshl_b32 s{sC}, s{sJ}, 10
    s_lshl_b32 s{sA}, s{sM}, 2
    s_add_u32 s{sA}, s{sA}, s{sW}
    s_lshl_b32 s{sA}, s{sA}, 15
    s_add_u32 s{sA}, s{sA}, s{sC}
    s_lshl_b32 s{sB}, s{sW}, 20
    s_add_u32 s{sB}, s{sB}, s{sC}
    s_lshl_b32 s{sC}, s{sM}, 5
    s_add_u32 s{sB}, s{sB}, s{sC}
    s_lshl_b32 s{sC}, s{sW}, 12
    s_add_u32 s{sC}, s{sC}, {L_WQ}
    s_mov_b32 s{sWQ+2}, 0x400000
    s_mov_b32 s{sWQ+3}, 0x20000
    s_waitcnt lgkmcnt(0)
    s_mov_b32 s{sWQ}, s{P+8}
    s_and_b32 s{sWQ+1}, s{P+9}, 0xffff
    """)
    if cfg.line_pf and "q" in cfg.pf_which:
        if "q" not in cfg.sub2: setexec(0xFFFFFFFF)
        a(f"buffer_load_dword v{vJ}, v{vT0}, {sr(sWQ,4)}, s{sA} offen{cfg.pf_pol}")
        if "q" not in cfg.sub2: setexec(FULL)
    for u in range(4):
        a(f"""
        s_mov_b32 m0, s{sC}
        s_add_u32 s{sC}, s{sC}, 1024
        buffer_load_dwordx4 v{vT2}, {sr(sWQ,4)}, s{sB} offen{SLN} lds
        s_add_u32 s{sB}, s{sB}, {32*8192}
        """)
    XA = vA + 8
    a(f"""
    v_and_b32 v{vR16}, 15, v0
    v_lshrrev_b32 v{vQd}, 4, v{vLane}
    s_and_b32 s{sIdx}, s{sM}, 15
    s_and_b32 s{sRot}, s{sM}, 7
    s_lshl_b32 s{sRot}, s{sRot}, 1
    s_lshr_b32 s{sB}, s{sM}, 4
    s_lshl_b32 s{sB}, s{sB}, 3
    s_add_u32 s{sB}, s{sB}, s{sJ}
    s_lshl_b32 s{sB}, s{sB}, 23
    s_lshl_b32 s{sC}, s{sIdx}, 16
    s_add_u32 s{sKV}, s{sB}, s{sC}
    s_add_u32 s{sKV}, s{sKV}, 0x700000
    v_lshlrev_b32 v{vT1}, 4, v{vLane}          ; lane*16
    """)
    srd(sKS, P + 4, 0x8000000)
    for i in range(4):
        a(f"""
        v_add_u32 v{vT3}, {4*i}, v{vQd}
        v_xor_b32 v{vT3}, v{vT3}, v{vR16}
        v_lshlrev_b32 v{vT3}, 4, v{vT3}
        v_lshl_add_u32 v{vKs+i}, v{vQd}, 8, v{vT3}
        """)
    srd(sWS, P + 18, WS_SIZE)
    if cfg.const_tag: a(f"s_mov_b32 s{sT}, 0x12345670")
    else: a(f"s_load_dword s{sT}, s[{P+18}:{P+19}], {WS_EPOCH}")
    srd(sX0, P + 2, 2048)
    a(f"s_cmp_eq_u32 s{sW}, 0\ns_cbranch_scc0 L_nox0")
    a(f"""
    s_mov_b32 m0, {L_X0}
    s_nop 0
    buffer_load_dwordx4 v{vT1}, {sr(sX0,4)}, 0 offen lds
    buffer_load_dwordx4 v{vT1}, {sr(sX0,4)}, 0 offen offset:1024 lds
    L_nox0:
    """)
    a(f"""
    s_mul_i32 s{sOown}, s{sJ}, {O_J}
    s_lshr_b32 s{sB}, s{sM}, 4
    s_lshl_b32 s{sB}, s{sB}, 14
    s_add_u32 s{sOown}, s{sOown}, s{sB}
    s_lshl_b32 s{sB}, s{sIdx}, 4
    s_add_u32 s{sOown}, s{sOown}, s{sB}
    s_add_u32 s{sOown}, s{sOown}, {WS_O}
    s_lshl_b32 s{sC}, s{sJ}, 11
    s_lshl_b32 s{sD}, s{sIdx}, 7
    s_add_u32 s{sC}, s{sC}, s{sD}
    s_add_u32 s{sXw}, s{sC}, {WS_X}
    s_mov_b32 s{sXr}, {WS_X}
    s_lshl_b32 s{sHb}, s{sJ}, 10
    s_add_u32 s{sHb}, s{sHb}, {WS_H}
    s_lshl_b32 s{sQ2w}, s{sJ}, 11
    s_add_u32 s{sQ2r}, s{sQ2w}, {WS_Q2}
    ; producer m: h = m>>3, c = (m>>1)&3, e0 = 2*(m&1)  ->  c*256 + e0*64 + h*16
    s_lshr_b32 s{sB}, s{sM}, 1
    s_and_b32 s{sB}, s{sB}, 3
    s_lshl_b32 s{sB}, s{sB}, 8
    s_add_u32 s{sQ2w}, s{sQ2r}, s{sB}
    s_and_b32 s{sB}, s{sM}, 1
    s_lshl_b32 s{sB}, s{sB}, 7
    s_add_u32 s{sQ2w}, s{sQ2w}, s{sB}
    s_lshr_b32 s{sB}, s{sM}, 3
    s_lshl_b32 s{sB}, s{sB}, 4
    s_add_u32 s{sQ2w}, s{sQ2w}, s{sB}
    s_lshr_b32 s{sB}, s{sM}, 4
    s_lshl_b32 s{sB}, s{sB}, 10
    s_add_u32 s{sQ2r}, s{sQ2r}, s{sB}
    """)
    if cfg.no_clear0: a("s_branch L_clr_done")
    a(f"""
    v_mov_b32 v{vU}, -1
    v_mov_b32 v{vU+1}, -1
    v_mov_b32 v{vU+2}, -1
    v_mov_b32 v{vU+3}, -1
    v_bfe_u32 v{vT3}, v{vLane}, 1, 1
    v_lshlrev_b32 v{vT3}, 10, v{vT3}
    v_and_b32 v{vT0}, 1, v{vLane}
    v_lshl_add_u32 v{vT3}, v{vT0}, 6, v{vT3}
    v_add_u32 v{vT0}, s{sQ2w}, v{vT3}
    s_cmp_lt_u32 s{sM}, 16
    s_cbranch_scc0 L_clr_B
    s_cmp_eq_u32 s{sW}, 1
    s_cbranch_scc0 L_clr_A2
    """)
    setexec(0xF)
    a(f"""
    s_branch L_clr_st
    L_clr_A2:
    s_cmp_eq_u32 s{sW}, 2
    s_cbranch_scc0 L_clr_done
    s_xor_b32 s{sC}, s{sXw}, 0x2000
    s_add_u32 s{sC}, s{sC}, 16384
    v_mov_b32 v{vT0}, s{sXw}
    v_mov_b32 v{vT1}, s{sC}
    v_bfe_u32 v{vT3}, v{vLane}, 3, 1
    v_cmp_eq_u32 vcc, 1, v{vT3}
    v_cndmask_b32 v{vT0}, v{vT0}, v{vT1}, vcc
    v_lshrrev_b32 v{vT3}, 4, v{vLane}
    v_lshlrev_b32 v{vT3}, 15, v{vT3}
    v_and_b32 v{vT1}, 7, v{vLane}
    v_lshl_add_u32 v{vT3}, v{vT1}, 4, v{vT3}
    v_add_u32 v{vT0}, v{vT0}, v{vT3}
    s_branch L_clr_st
    L_clr_B:
    s_cmp_eq_u32 s{sW}, 2
    s_cbranch_scc0 L_clr_done
    """)
    setexec(0xF)
    a(f"""
    s_cmp_ge_u32 s{sIdx}, 14
    s_cbranch_scc1 L_clr_st
    s_lshl_b32 s{sD}, s{sIdx}, 6
    s_add_u32 s{sC}, s{sHb}, s{sD}
    """)
    setexec(0xFF0)
    a(f"""
    v_bfe_u32 v{vT3}, v{vLane}, 3, 1
    v_lshlrev_b32 v{vT3}, 13, v{vT3}
    v_and_b32 v{vT1}, 3, v{vLane}
    v_lshl_add_u32 v{vT3}, v{vT1}, 4, v{vT3}
    v_add_u32 v{vT0}, s{sC}, v{vT3}
    """)
    setexec(0xFFF)
    a("L_clr_st:")
    a(f"buffer_store_dwordx4 {vr(vU,4)}, v{vT0}, {sr(sWS,4)}, 0 offen sc1")
    setexec(FULL)
    a("L_clr_done:")
    def emit_wpf(qWO, qGT, reload_ptrs):
        n = 0
        a(f"s_lshl_b32 s{sD}, s{sM}, 2\ns_add_u32 s{sD}, s{sD}, s{sW}               ; q = 4m + w")
        if reload_ptrs:
            a(f"""
            s_load_dwordx2 s[{qWO}:{qWO+1}], s[0:1], 32
            s_load_dwordx2 s[{qGT}:{qGT+1}], s[0:1], 48
            s_waitcnt lgkmcnt(0)
            s_and_b32 s{qWO+1}, s{qWO+1}, 0xffff
            s_mov_b32 s{qWO+2}, 0x400000
            s_and_b32 s{qGT+1}, s{qGT+1}, 0xffff
            s_mov_b32 s{qGT+2}, {512*1792*2}
            """)
        if "o" in cfg.pf_stream:
            a(f"""
            v_lshlrev_b32 v{vT0}, {6 if "o" in cfg.sub2 else 7}, v{vLane}
            s_lshl_b32 s{sB}, s{sJ}, 19
            s_lshl_b32 s{sC}, s{sD}, 12
            s_add_u32 s{sB}, s{sB}, s{sC}
            """)
            if "o" not in cfg.sub2: setexec(0xFFFFFFFF)
            a(f"buffer_load_dword v{vJ}, v{vT0}, {sr(qWO,4)}, s{sB} offen{cfg.pf_spol}")
            setexec(FULL); n += 1
        if "g" in cfg.pf_stream or "u" in cfg.pf_stream:
            a(f"""
            v_mul_u32_u24 v{vT0}, 52, v{vLane}
            v_lshrrev_b32 v{vT0}, 8, v{vT0}
            v_mul_u32_u24 v{vT1}, 5, v{vT0}
            v_sub_u32 v{vT1}, v{vLane}, v{vT1}
            v_mul_u32_u24 v{vT0}, 3584, v{vT0}
            v_lshl_add_u32 v{vT0}, v{vT1}, 7, v{vT0}
            s_mul_i32 s{sB}, s{sD}, {4*3584}
            s_mul_i32 s{sC}, s{sJ}, 448
            s_and_b32 s{sC}, s{sC}, 0xffffff80
            s_add_u32 s{sB}, s{sB}, s{sC}
            """)
            setexec((1 << 20) - 1)
            if "g" in cfg.pf_stream:
                a(f"buffer_load_dword v{vJ}, v{vT0}, {sr(qGT,4)}, s{sB} offen{cfg.pf_spol}"); n += 1
            if "u" in cfg.pf_stream:
                a(f"buffer_load_dword v{vJ}, v{vT0}, {sr(sUP,4)}, s{sB} offen{cfg.pf_spol}"); n += 1
            setexec(FULL)
        if "d" in cfg.pf_stream:
            a(f"""
            v_lshlrev_b32 v{vT0}, 7, v{vLane}
            s_min_u32 s{sB}, s{sD}, 111
            s_lshl_b32 s{sB}, s{sB}, 11
            s_mul_i32 s{sC}, s{sJ}, {224*1024}
            s_add_u32 s{sB}, s{sB}, s{sC}
            """)
            setexec(0xFFFF)
            a(f"buffer_load_dword v{vJ}, v{vT0}, {sr(sDN,4)}, s{sB} offen{cfg.pf_spol}")
            setexec(FULL); n += 1
        return n

    def page_off(t, dst):
        a(f"""
        s_add_u32 s{dst}, s{sW}, s{sRot}
        s_add_u32 s{dst}, s{dst}, {4*t}
        s_and_b32 s{dst}, s{dst}, 15
        s_lshl_b32 s{dst}, s{dst}, 12
        s_add_u32 s{dst}, s{dst}, s{sKV}
        """)
    def k_page(t):
        page_off(t, sD)
        a(f"s_lshl_b32 s{sC}, s{sW}, 14\ns_add_u32 s{sC}, s{sC}, {L_K + t*4096}\ns_mov_b32 m0, s{sC}\ns_nop 0")
        for ii in range(4):
            a(f"buffer_load_dwordx4 v{vKs+ii}, {sr(sKS,4)}, s{sD} offen offset:{ii*1024}{cfg.kv_pol} lds")
    nKpA = cfg.nKA // 4
    for t in range(cfg.nKb1): k_page(t)
    nPFe = 0
    if cfg.pf_stream and cfg.pf_early:
        srd(sVS, P, 0x400000)
        srd(sOUT, P + 10, 512 * 1792 * 2)
        srd(sUP, P + 12, 512 * 1792 * 2)
        srd(sDN, P + 14, 1792 * 512 * 2)
        nPFe = emit_wpf(sVS, sOUT, False)
    ts("start")
    if cfg.ts_issue: ts("issued")

    srd(sVS, P + 6, 0x8000000)
    srd(sUP, P + 12, 512 * 1792 * 2)
    srd(sDN, P + 14, 1792 * 512 * 2)
    srd(sOUT, P + 16, 2048)
    a(f"""
    s_cmp_lt_u32 s{sM}, 16
    s_cselect_b32 s{sW2}, s{P}, s{P+10}
    s_cselect_b32 s{sW2+1}, s{P+1}, s{P+11}
    s_mov_b32 s{sW2+2}, {512*1792*2}
    s_cselect_b32 s{sW2+2}, 0x400000, s{sW2+2}
    s_and_b32 s{sW2+1}, s{sW2+1}, 0xffff
    s_mov_b32 s{sW2+3}, 0x20000
    s_mov_b32 s{sBud}, {cfg.budget}
    s_getreg_b32 s{sXcc}, hwreg(HW_REG_XCC_ID, 0, 4)
    s_mov_b32 s{sMDIAG}, 0x00ff00ff
    s_mov_b32 s{sMDIAG+1}, 0xff00ff00
    s_mov_b32 s{sM4}, 0x000f000f
    s_mov_b32 s{sM4+1}, 0x000f000f
    s_mov_b32 s{sM2}, 0x00030003
    s_mov_b32 s{sM2+1}, 0x00030003
    s_mov_b32 s{sMN1}, 0x00020002
    s_mov_b32 s{sMN1+1}, 0x00020002
    s_mov_b32 s{sMEV}, 0x55555555
    s_mov_b32 s{sMEV+1}, 0x55555555
    s_mov_b32 s{sL}, 0
    s_mul_i32 s{sOcons}, s{sJ}, {O_J}
    s_lshl_b32 s{sB}, s{sW}, 12
    s_add_u32 s{sOcons}, s{sOcons}, s{sB}
    s_add_u32 s{sOcons}, s{sOcons}, {WS_O}
    """)
    for i in range(4): a(f"v_mov_b32 v{vOnes+i}, 0x3f803f80")
    for i in range(16): a(f"v_mov_b32 v{vQ+i}, 0")
    for i in range(8): a(f"v_mov_b32 v{vHop+i}, 0")
    a(f"v_mov_b32 v{vQ1a}, 0\nv_mov_b32 v{vQ1d}, 0\nv_mov_b32 v{vQ1d+1}, 0")
    h3 = vU; qh = vU + 1; ql = vU + 2
    a(f"""
    v_and_b32 v{h3}, 3, v{vR16}
    v_lshrrev_b32 v{qh}, 1, v{vQd}
    v_and_b32 v{ql}, 1, v{vQd}
    v_and_b32 v{vT0}, 7, v{vR16}
    v_lshlrev_b32 v{vT0}, 11, v{vT0}
    v_lshrrev_b32 v{vT1}, 3, v{vR16}
    v_lshl_add_u32 v{vT0}, v{vT1}, 6, v{vT0}
    v_lshl_add_u32 v{vaX}, v{vQd}, 4, v{vT0}
    s_lshr_b32 s{sA}, s{sXcc}, 2
    v_bfe_u32 v{vT1}, v{vaX}, 13, 1
    v_cmp_ne_u32 vcc, s{sA}, v{vT1}
    v_xor_b32 v{vT1}, 0x2000, v{vaX}
    v_add_u32 v{vT1}, 16384, v{vT1}
    v_cndmask_b32 v{vaX}, v{vaX}, v{vT1}, vcc
    v_lshrrev_b32 v{vT0}, 3, v{vLane}
    v_and_b32 v{vT1}, 2, v{vT0}
    v_and_b32 v{vT2}, 7, v{vLane}
    v_xor_b32 v{vT1}, v{vT1}, v{vT2}
    v_lshlrev_b32 v{vT1}, 4, v{vT1}
    v_lshl_add_u32 v{vT0}, v{vT0}, 11, v{vT1}
    s_lshl_b32 s{sB}, s{sW}, 9
    v_add_u32 v{vaXg}, s{sB}, v{vT0}
    v_bfe_u32 v{vT1}, v{vaXg}, 13, 1
    v_cmp_ne_u32 vcc, s{sA}, v{vT1}
    v_xor_b32 v{vT1}, 0x2000, v{vaXg}
    v_add_u32 v{vT1}, 16384, v{vT1}
    v_cndmask_b32 v{vaXg}, v{vaXg}, v{vT1}, vcc
    v_and_b32 v{vT0}, 7, v{vR16}
    v_lshrrev_b32 v{vT1}, 3, v{vR16}
    v_lshl_add_u32 v{vT1}, v{vT1}, 2, v{vQd}
    v_and_b32 v{vT2}, 2, v{vT0}
    v_xor_b32 v{vT1}, v{vT1}, v{vT2}
    v_lshlrev_b32 v{vT1}, 4, v{vT1}
    v_lshl_add_u32 v{vT0}, v{vT0}, 7, v{vT1}
    s_lshl_b32 s{sXI}, s{sW}, 12
    s_add_u32 s{sXI}, s{sXI}, {L_XI}
    v_add_u32 v{vaXr}, s{sXI}, v{vT0}
    v_lshlrev_b32 v{vaO0}, 4, v{vLane}
    v_add_u32 v{vaO1}, 16384, v{vaO0}
    v_lshl_add_u32 v{vT0}, v{vQd}, 2, v{vR16}
    v_and_b32 v{vT0}, 15, v{vT0}
    v_lshlrev_b32 v{vT0}, 4, v{vT0}
    s_mul_i32 s{sB}, s{sW}, 3840
    s_sub_u32 s{sB}, {O_STATS}, s{sB}
    v_add_u32 v{vaS0}, s{sB}, v{vT0}
    v_add_u32 v{vaS1}, 1024, v{vaS0}
    v_lshlrev_b32 v{vT0}, 6, v{vQd}
    v_lshl_add_u32 v{vaQ2}, v{h3}, 4, v{vT0}
    v_lshlrev_b32 v{vT0}, 10, v{ql}
    v_lshrrev_b32 v{vT1}, 3, v{vR16}
    v_lshl_add_u32 v{vT0}, v{vT1}, 6, v{vT0}
    v_and_b32 v{vT1}, 7, v{vR16}
    v_lshl_add_u32 v{vaStQ}, v{vT1}, 1, v{vT0}
    v_lshlrev_b32 v{vT0}, 12, v{h3}
    v_lshl_add_u32 v{vT0}, v{vQd}, 10, v{vT0}
    v_bfe_u32 v{vT1}, v{vLane}, 2, 2
    v_lshl_add_u32 v{vaClrO}, v{vT1}, 8, v{vT0}
    v_and_b32 v{vT0}, 1, v{vR16}
    v_lshlrev_b32 v{vT0}, 5, v{vT0}
    v_lshl_add_u32 v{vT0}, v{qh}, 6, v{vT0}
    v_lshl_add_u32 v{vT0}, v{ql}, 4, v{vT0}
    s_lshl_b32 s{sB}, s{sW}, 7
    v_add_u32 v{vaH}, s{sB}, v{vT0}
    v_lshlrev_b32 v{vT0}, 6, v{vQd}
    v_lshl_add_u32 v{vT0}, v{h3}, 4, v{vT0}
    v_add_u32 v{vaPr}, {L_PBUF}, v{vT0}
    v_lshrrev_b32 v{vT1}, 2, v{vR16}
    v_lshl_add_u32 v{vT1}, v{vT1}, 9, v{vaPr}
    s_lshr_b32 s{sB}, s{sW}, 1
    s_lshl_b32 s{sB}, s{sB}, 8
    s_and_b32 s{sC}, s{sW}, 1
    s_lshl_b32 s{sC}, s{sC}, 3
    s_add_u32 s{sB}, s{sB}, s{sC}
    v_add_u32 v{vaPw}, s{sB}, v{vT1}
    v_lshlrev_b32 v{vT0}, 4, v{h3}
    v_add_u32 v{vaSm}, {L_SMAX}, v{vT0}
    s_lshl_b32 s{sB}, s{sW}, 2
    v_add_u32 v{vaSmW}, s{sB}, v{vaSm}
    v_lshlrev_b32 v{vT0}, 4, v{vLane}
    v_add_u32 v{vaRedW}, s{sB}, v{vT0}
    v_and_b32 v{vT1}, 1, v{vR16}
    v_lshl_add_u32 v{vT1}, v{qh}, 1, v{vT1}
    v_lshlrev_b32 v{vT1}, 4, v{vT1}
    v_add_u32 v{vaRedZ}, s{sB}, v{vT1}
    v_lshl_add_u32 v{vT0}, v{ql}, 5, v{vR16}
    v_lshlrev_b32 v{vaFinW}, 4, v{vT0}
    v_lshlrev_b32 v{vaFinZ}, 5, v{ql}
    v_lshlrev_b32 v{vT0}, 9, v{ql}
    v_add_u32 v{vaFinQZ}, 256, v{vT0}
    v_lshlrev_b32 v{vaFinO}, 4, v{vLane}
    v_lshlrev_b32 v{vT0}, 5, v{ql}
    v_lshl_add_u32 v{vaStH}, v{vR16}, 1, v{vT0}
    v_lshlrev_b32 v{vT0}, 6, v{ql}
    v_lshl_add_u32 v{vT0}, v{qh}, 5, v{vT0}
    v_lshl_add_u32 v{vaStX}, v{vR16}, 1, v{vT0}
    v_lshlrev_b32 v{vT0}, 12, v{vR16}
    v_lshl_add_u32 v{vT0}, v{vQd}, 8, v{vT0}
    s_lshl_b32 s{sB}, s{sW}, 10
    v_add_u32 v{vaStO}, s{sB}, v{vT0}
    s_lshr_b32 s{sB}, s{sM}, 4
    s_mul_i32 s{sB}, s{sB}, 15360
    s_sub_u32 s{sB}, {O_STATS}, s{sB}
    v_lshlrev_b32 v{vT0}, 8, v{vLane}
    v_add_u32 v{vaStS}, s{sB}, v{vT0}
    """)
    a(f"s_lshl_b32 s{sB}, s{sW}, 14\ns_add_u32 s{sB}, s{sB}, {L_K}")
    for c in range(4):
        a(f"""
        v_add_u32 v{vT0}, {4*c}, v{vQd}
        v_xor_b32 v{vT0}, v{vT0}, v{vR16}
        v_lshlrev_b32 v{vT0}, 4, v{vT0}
        v_lshl_add_u32 v{vT0}, v{vR16}, 8, v{vT0}
        v_add_u32 v{vKr+c}, s{sB}, v{vT0}
        """)
    for e in range(2):
        a(f"""
        v_add_u32 v{vT1}, {4*e}, v{vQd}
        v_lshrrev_b32 v{vT2}, 1, v{vR16}
        v_xor_b32 v{vT1}, v{vT1}, v{vT2}
        v_lshlrev_b32 v{vT1}, 1, v{vT1}
        v_and_b32 v{vT2}, 1, v{vR16}
        v_or_b32 v{vT1}, v{vT1}, v{vT2}
        v_lshlrev_b32 v{vT1}, 4, v{vT1}
        v_lshl_add_u32 v{vVs+e}, v{vQd}, 8, v{vT1}
        """)
    for nt in range(2):
        a(f"""
        v_lshrrev_b32 v{vT1}, 2, v{vR16}
        v_lshl_add_u32 v{vT0}, v{vQd}, 2, v{vT1}
        v_and_b32 v{vT2}, 7, v{vT0}
        s_lshl_b32 s{sB}, s{sW}, 1
        s_add_u32 s{sB}, s{sB}, {nt}
        v_xor_b32 v{vT2}, s{sB}, v{vT2}
        v_lshlrev_b32 v{vT2}, 5, v{vT2}
        v_lshl_add_u32 v{vT0}, v{vT0}, 8, v{vT2}
        v_lshl_add_u32 v{vT0}, v{h3}, 3, v{vT0}
        v_add_u32 v{vVr+nt}, {L_V}, v{vT0}
        """)
    for i in range(16): a(f"v_mov_b32 v{XA+i}, 0")
    if cfg.w_inter:
        a(f"""
        s_cmp_lt_u32 s{sM}, 16
        s_cbranch_scc0 L_wsB
        v_lshrrev_b32 v{vT0}, 2, v{vLane}
        v_lshlrev_b32 v{vT0}, 10, v{vT0}
        v_and_b32 v{vT1}, 3, v{vLane}
        v_lshl_add_u32 v{vWs}, v{vT1}, 4, v{vT0}
        s_lshl_b32 s{sWb}, s{sJ}, 19
        s_lshl_b32 s{sC}, s{sW}, 17
        s_add_u32 s{sWb}, s{sWb}, s{sC}
        s_lshl_b32 s{sC}, s{sIdx}, 6
        s_add_u32 s{sWb}, s{sWb}, s{sC}
        s_mov_b32 s{sWst}, 16384
        s_mov_b32 s{sUP}, s{sW2}
        s_mov_b32 s{sUP+1}, s{sW2+1}
        s_mov_b32 s{sUP+2}, s{sW2+2}
        s_branch L_wsD
        L_wsB:
        v_lshrrev_b32 v{vT0}, 1, v{vLane}
        v_mul_u32_u24 v{vT0}, 3584, v{vT0}
        v_and_b32 v{vT1}, 1, v{vLane}
        v_lshl_add_u32 v{vWs}, v{vT1}, 4, v{vT0}
        s_mul_i32 s{sWb}, s{sW}, {128*3584}
        s_mul_i32 s{sC}, s{sJ}, 448
        s_add_u32 s{sWb}, s{sWb}, s{sC}
        s_lshl_b32 s{sC}, s{sIdx}, 5
        s_add_u32 s{sWb}, s{sWb}, s{sC}
        s_mov_b32 s{sWst}, {32*3584}
        L_wsD:
        """)
    ts("setup")
    a(f"s_waitcnt vmcnt({4*cfg.nKb1 + nPFe})")
    ts("wq_landed")
    for t in range(cfg.nKb1, nKpA): k_page(t)

    def tr_base(dst, rowbytes, rowmul, sadd, const):
        sh = rowbytes.bit_length() - 1; rm = rowmul.bit_length() - 1
        a(f"""
        v_lshrrev_b32 v{vT1}, 2, v{vR16}
        v_lshl_add_u32 v{vT1}, v{vQd}, {rm}, v{vT1}
        v_lshlrev_b32 v{vT1}, {sh}, v{vT1}
        v_and_b32 v{vT2}, 3, v{vR16}
        v_lshl_add_u32 v{vT1}, v{vT2}, 3, v{vT1}
        v_add_u32 v{vT1}, s{sadd}, v{vT1}
        v_add_u32 v{dst}, {const}, v{vT1}
        """)

    def ln_stats(s1, s2, mean, rstd):
        a(f"""
        v_mul_f32 v{mean}, {f2u(1.0/512):#x}, v{s1}
        v_mul_f32 v{s2}, {f2u(1.0/512):#x}, v{s2}
        v_fma_f32 v{s2}, -v{mean}, v{mean}, v{s2}
        v_max_f32 v{s2}, 0, v{s2}
        v_add_f32 v{s2}, {f2u(1e-5):#x}, v{s2}
        v_rsq_f32 v{rstd}, v{s2}
        """)
    def sum4r(b):
        a(f"v_add_f32 v{b}, v{b}, v{b+1}\nv_add_f32 v{b+2}, v{b+2}, v{b+3}\nv_add_f32 v{b}, v{b}, v{b+2}")

    def stats_valu(z):
        L = [f"v_add_f32 v{z}, v{vAcc+8}, v{vAcc+9}", f"v_add_f32 v{vT3}, v{vAcc+10}, v{vAcc+11}", f"v_add_f32 v{z}, v{z}, v{vT3}",
             f"v_cndmask_b32 v{z}, 0, v{z}, s[{sMDIAG}:{sMDIAG+1}]"]
        for n in (8, 4, 2, 1):
            L.append(f"v_add_f32_dpp v{z}, v{z}, v{z} row_ror:{n} row_mask:0xf bank_mask:0xf")
        L += [f"v_add_f32 v{z+1}, v{vAcc+12}, v{vAcc+13}", f"v_add_f32 v{vT3}, v{vAcc+14}, v{vAcc+15}", f"v_add_f32 v{z+1}, v{z+1}, v{vT3}",
              f"v_cndmask_b32 v{z}, v{z+1}, v{z}, s[{sMN1}:{sMN1+1}]"]
        return L
    def stats_mf(X):
        return [mf(vAcc + 8, X + 4*u, X + 4*u, "0" if u == 0 else None) for u in range(4)] + \
               [mf(vAcc + 12, X + 4*u, vOnes, "0" if u == 0 else None) for u in range(4)]

    def q_core(X):
        M = stats_mf(X) + [mf(vAcc, X + 4*u, ar(aWq + 4*u, 4), "0" if u == 0 else None) for u in range(4)]
        interleave(M, stats_valu(vU), 8, 2)
        sum4(vU + 2, vAcc, vT3)
        a(f"""
        v_permlane16_swap_b32 v{vU+2}, v{vU}
        v_add_f32 v{vU}, v{vU}, v{vU+2}
        ds_write_b32 v{vaRedW}, v{vU} offset:{R_Q}
        s_waitcnt lgkmcnt(0)
        s_barrier
        """)
    def q_final(first):
        lab = a.label("qf")
        a(f"s_cmp_eq_u32 s{sW}, 0\ns_cbranch_scc0 {lab}")
        setexec(0xFFFFFFFF)
        a(f"""
        ds_read_b128 {vr(vU,4)}, v{vaFinW} offset:{R_Q}
        ds_read_b128 {vr(vU+4,4)}, v{vaFinQZ} offset:{R_Q}
        ds_read_b128 {vr(vU+8,4)}, v{vaFinQZ} offset:{R_Q+16}
        """)
        if first:
            a(f"ds_read_b128 {vr(vU+12,4)}, v{vaFinW} offset:{R_COL}")
        a("s_waitcnt lgkmcnt(0)")
        if first:
            sum4r(vU + 12); a(f"v_mov_b32 v{vCs}, v{vU+12}")
        sum4r(vU + 4); sum4r(vU + 8); sum4r(vU)
        ln_stats(vU + 4, vU + 8, vU + 5, vU + 6)
        a(f"""
        v_fma_f32 v{vU}, -v{vU+5}, v{vCs}, v{vU}
        v_mul_f32 v{vU}, v{vU}, v{vU+6}
        """)
        dpp("v_mov_b32", vU + 1, vU, None, "quad_perm:[1,0,3,2]")
        a(f"v_cvt_pk_bf16_f32 v{vU+2}, v{vU}, v{vU+1}")
        if first:
            a(f"""
            v_mov_b32 v{vQ1d}, v{vU+2}
            v_mov_b32 v{vQ1d+1}, s{sTX}
            s_lshl_b32 s{sB}, s{sJ}, 12
            s_lshl_b32 s{sC}, s{sM}, 7
            s_add_u32 s{sB}, s{sB}, s{sC}
            s_add_u32 s{sB}, s{sB}, {WS_Q1}
            v_lshlrev_b32 v{vT0}, 1, v{vaStH}
            v_add_u32 v{vQ1a}, s{sB}, v{vT0}
            """)
            setexec(0x55555555)
            a(f"buffer_store_dwordx2 {vr(vQ1d,2)}, v{vQ1a}, {sr(sWS,4)}, 0 offen" + (" sc1" if cfg.force_global else ""))
        else:
            a(f"v_min_u32 v{vU+2}, 0xfffffffe, v{vU+2}")
            setexec(0x55555555)
            store_local(f"buffer_store_dword v{vU+2}, v{vaStQ}, {sr(sWS,4)}, s{sQ2w} offen")
        setexec(FULL)
        a(f"{lab}:")

    def s_qk_max():
        for c in range(4):
            for t in range(4):
                mfma(vS + 4*t, ar(aK + 16*t + 4*c, 4), vQ + 4*c, "0" if c == 0 else None)
        for t in range(1, 4):
            for r in range(4):
                dpp("v_mov_b32", vS + r, vS + 4*t + r, None, f"row_shr:{4*t}", bm=f"0x{1<<t:x}")
        a(f"v_max3_f32 v{vU}, v{vS}, v{vS+1}, v{vS+2}\nv_max_f32 v{vU}, v{vU}, v{vS+3}")
        row_reduce("v_max_f32", vU, (8, 4))
        xquad_reduce("v_max_f32", vU, vT0)
        setexec(0xF)
        a(f"ds_write_b32 v{vaSmW}, v{vU}")
        setexec(FULL)
        a("s_waitcnt lgkmcnt(0)\ns_barrier")
    def s_exp_p():
        a(f"""
        ds_read_b128 {vr(vU+4,4)}, v{vaSm}
        s_mov_b32 s{sB}, {f2u(C_SCALE):#x}
        s_waitcnt lgkmcnt(0)
        v_max3_f32 v{vU}, v{vU+4}, v{vU+5}, v{vU+6}
        v_max_f32 v{vU}, v{vU}, v{vU+7}
        v_mul_f32 v{vMc}, s{sB}, v{vU}
        """)
        for i in range(4): a(f"v_fma_f32 v{vS+i}, v{vS+i}, s{sB}, -v{vMc}")
        for i in range(4): a(f"v_exp_f32 v{vS+i}, v{vS+i}")
        a(f"""
        v_cvt_pk_bf16_f32 v{vU+2}, v{vS}, v{vS+1}
        v_cvt_pk_bf16_f32 v{vU+3}, v{vS+2}, v{vS+3}
        ds_write_b64 v{vaPw}, {vr(vU+2,2)}
        v_add_f32 v{vU}, v{vS}, v{vS+1}
        v_add_f32 v{vU+1}, v{vS+2}, v{vS+3}
        v_add_f32 v{vU}, v{vU}, v{vU+1}
        """)
        row_reduce("v_add_f32", vU, (8, 4))
        xquad_reduce("v_add_f32", vU, vT0)
        setexec(0xF)
        a(f"ds_write_b32 v{vaSmW}, v{vU} offset:{L_LSUM-L_SMAX}")
        setexec(FULL)
        a("s_waitcnt lgkmcnt(0)\ns_barrier")
        for blk in range(8):
            a(f"ds_read_b128 {vr(vP+4*blk,4)}, v{vaPr} offset:{blk*256}")
    def s_stats_prep():
        lab = a.label("st")
        a(f"s_cmp_eq_u32 s{sW}, 3\ns_cbranch_scc0 {lab}")
        a(f"""
        ds_read_b128 {vr(vU+4,4)}, v{vaSm} offset:{L_LSUM-L_SMAX}
        s_add_u32 s{sB}, s{sT}, s{sL}
        s_add_u32 s{sB}, s{sB}, 1
        v_mov_b32 v{vMc+2}, s{sB}
        s_waitcnt lgkmcnt(0)
        """)
        sum4r(vU + 4)
        a(f"v_mov_b32 v{vMc+1}, v{vU+4}")
        a(f"{lab}:")
    def s_stats_store(wait):
        lab = a.label("ss")
        a(f"s_cmp_eq_u32 s{sW}, 3\ns_cbranch_scc0 {lab}")
        if wait is not None: a(f"s_waitcnt vmcnt({wait})")
        setexec(0xF)
        store_local(f"buffer_store_dwordx4 {vr(vMc,4)}, v{vaStS}, {sr(sWS,4)}, s{sOown} offen")
        setexec(FULL)
        a(f"{lab}:")
    accO = vAcc
    def v_tr(blk):
        t, p = blk >> 1, blk & 1
        for nt in range(2):
            a(f"ds_read_b64_tr_b16 {ar(aV+8*blk+4*nt,2)}, v{vVr+nt} offset:{(4*t+2*p)*4096}")
            a(f"ds_read_b64_tr_b16 {ar(aV+8*blk+4*nt+2,2)}, v{vVr+nt} offset:{(4*t+2*p+1)*4096}")
    def pv(blks, first):
        for blk in blks:
            for nt in range(2):
                mfma(accO + 4*nt, ar(aV + 8*blk + 4*nt, 4), vP + 4*blk, "0" if (first and blk == blks[0]) else None)
    def s_out():
        for i in range(4):
            a(f"v_cvt_pk_bf16_f32 v{vU+i}, v{accO+2*i}, v{accO+2*i+1}")
        for i in range(4):
            a(f"v_min_u32 v{vU+i}, 0xfffffffe, v{vU+i}")
        setexec(EM4)
        store_local(f"buffer_store_dwordx4 {vr(vU,4)}, v{vaStO}, {sr(sWS,4)}, s{sOown} offen")
        setexec(FULL)

    a(f"s_lshl_b32 s{sB}, s{sW}, 12")
    tr_base(vT0, 32, 8, sB, L_WQ)
    for u in range(4):
        a(f"ds_read_b64_tr_b16 {ar(aWq+4*u,2)}, v{vT0} offset:{u*1024}")
        a(f"ds_read_b64_tr_b16 {ar(aWq+4*u+2,2)}, v{vT0} offset:{u*1024+128}")
    a(f"""
    v_lshrrev_b32 v{vT0}, 3, v{vR16}
    v_lshlrev_b32 v{vT0}, 10, v{vT0}
    v_lshl_add_u32 v{vT0}, v{vQd}, 4, v{vT0}
    s_lshl_b32 s{sB}, s{sW}, 8
    v_add_u32 v{vT0}, s{sB}, v{vT0}
    s_barrier
    """)
    setexec(0x0101010101010101)
    for u in range(4):
        a(f"ds_read_b128 {vr(XA+4*u,4)}, v{vT0} offset:{L_X0+u*64}")
    setexec(FULL)
    a(f"""
    s_waitcnt lgkmcnt(0)
    s_add_u32 s{sT}, s{sT}, 0x9e3779b0
    s_and_b32 s{sT}, s{sT}, 0xfffffff0
    s_or_b32 s{sTX}, s{sT}, s{sXcc}
    """)
    for u in range(4): mfma(vS, vOnes, ar(aWq + 4*u, 4), "0" if u == 0 else None)
    a(f"ds_write_b32 v{vaRedW}, v{vS} offset:{R_COL}")
    q_core(XA)
    q_final(True)
    a("s_barrier")
    ts("q1_pub")

    def v_group(t):
        page_off(t, sD)
        a(f"s_lshl_b32 s{sC}, s{sW}, 12\ns_add_u32 s{sC}, s{sC}, {L_V + t*16384}\ns_mov_b32 m0, s{sC}\ns_nop 0")
        for ii in range(4):
            a(f"buffer_load_dwordx4 v{vVs+(ii&1)}, {sr(sVS,4)}, s{sD} offen offset:{ii*1024}{cfg.kv_pol} lds")
    def pace(): a(f"s_waitcnt vmcnt({cfg.pace})")
    def w_part(part, lo, hi):
        if not cfg.w_inter: return
        lab = a.label("wp")
        lim = 30
        if (part == 0 and "g" not in cfg.w_interB) or (part == 1 and "u" not in cfg.w_interB): lim = 16
        a(f"s_cmp_ge_u32 s{sM}, {lim}\ns_cbranch_scc1 {lab}")
        for u in range(lo, hi):
            if part == 0:
                a(f"s_mul_i32 s{sB}, s{sWst}, {u}\ns_add_u32 s{sB}, s{sB}, s{sWb}")
                a(f"s_lshl_b32 s{sC}, s{sW}, 12\ns_add_u32 s{sC}, s{sC}, {L_WQ + u*1024}")
            else:
                a(f"s_cmp_lt_u32 s{sM}, 16\ns_cselect_b32 s{sB}, {4+u}, {u}\ns_mul_i32 s{sB}, s{sB}, s{sWst}\ns_add_u32 s{sB}, s{sB}, s{sWb}")
                a(f"s_lshl_b32 s{sC}, s{sW}, 14\ns_add_u32 s{sC}, s{sC}, {L_K + u*1024}")
            a(f"s_mov_b32 m0, s{sC}\ns_nop 0")
            a(f"buffer_load_dwordx4 v{vWs}, {sr(sW2 if part == 0 else sUP,4)}, s{sB} offen{SLN} lds")
        a(f"{lab}:")
    for t in range(nKpA, 4):
        pace()
        if t == 3: w_part(0, 0, 4)
        k_page(t)
    a(f"""
    v_lshrrev_b32 v{vT0}, 2, v{vLane}
    v_lshlrev_b32 v{vT0}, 7, v{vT0}
    v_and_b32 v{vT1}, 3, v{vLane}
    v_lshl_add_u32 v{vKs}, v{vT1}, 4, v{vT0}        ; (vKs is free once K is issued)
    s_lshl_b32 s{sA}, s{sJ}, 12
    s_lshr_b32 s{sB}, s{sM}, 4
    s_lshl_b32 s{sB}, s{sB}, 6
    s_add_u32 s{sA}, s{sA}, s{sB}
    s_add_u32 s{sA}, s{sA}, {WS_Q1}
    v_and_b32 v{vT0}, 3, v{vR16}
    v_lshlrev_b32 v{vT0}, 9, v{vT0}
    v_lshrrev_b32 v{vT1}, 1, v{vQd}
    v_lshl_add_u32 v{vT0}, v{vT1}, 6, v{vT0}
    v_and_b32 v{vT1}, 1, v{vQd}
    v_lshl_add_u32 v{vKs+1}, v{vT1}, 5, v{vT0}
    v_lshlrev_b32 v{vKs+2}, 5, v{vLane}
    """)
    def q1_dma(img):
        a(f"""
        s_mov_b32 m0, {L_QG + img*2048}
        s_add_u32 s{sB}, s{sA}, 2048
        buffer_load_dwordx4 v{vKs}, {sr(sWS,4)}, s{sA} offen sc1 lds
        s_mov_b32 m0, {L_QG + img*2048 + 1024}
        s_nop 0
        buffer_load_dwordx4 v{vKs}, {sr(sWS,4)}, s{sB} offen sc1 lds
        """)
    def w0(fn):
        lab = a.label("w0")
        a(f"s_cmp_eq_u32 s{sW}, 0\ns_cbranch_scc0 {lab}")
        fn()
        a(f"{lab}:")
    def q1_dup():
        setexec(0x55555555)
        a(f"buffer_store_dwordx2 {vr(vQ1d,2)}, v{vQ1a}, {sr(sWS,4)}, 0 offen sc1")
        setexec(FULL)
    g.q1_dup = lambda: w0(q1_dup)
    pace()
    if cfg.pf_stream and cfg.pf_pos == 0: emit_wpf(sKS2, sWQ, True)
    v_group(0)
    a("s_waitcnt vmcnt(4)")
    for t in range(4):
        for c in range(4):
            a(f"ds_read_b128 {ar(aK+16*t+4*c,4)}, v{vKr+c} offset:{t*4096}")
    ts("k_landed")
    w0(lambda: q1_dma(0))
    if cfg.pf_stream and cfg.pf_pos == 1: emit_wpf(sKS, sWQ, True)
    v_group(1)
    a("s_waitcnt vmcnt(4)")
    ts("v0_landed")
    if cfg.pf_stream and cfg.pf_pos == 2: emit_wpf(sKS, sWQ, True)
    if cfg.w_inter:
        a("s_waitcnt lgkmcnt(0)")
        w_part(1, 0, 2)
    def warm_stats0():
        if cfg.warm:
            lab = a.label("ws")
            a(f"s_cmp_lt_u32 s{sM}, 16\ns_cbranch_scc0 {lab}")
            a(f"buffer_load_dword v{vJ}, v{vaS0}, {sr(sWS,4)}, s{sOcons} offen sc1")
            a(f"buffer_load_dword v{vJ}, v{vaS1}, {sr(sWS,4)}, s{sOcons} offen sc1")
            a(f"{lab}:")
    if cfg.v3_early: warm_stats0()
    v_group(2)
    if cfg.v3_early:
        assert not cfg.w_inter
        v_group(3)
    def _o0():
        lab = a.label("c0")
        a(f"""
        s_cmp_eq_u32 s{sW}, 3
        s_cbranch_scc0 {lab}
        v_mov_b32 v{vU+8}, -1
        v_mov_b32 v{vU+9}, -1
        v_mov_b32 v{vU+10}, -1
        v_mov_b32 v{vU+11}, -1
        """)
        store_local(f"buffer_store_dwordx4 {vr(vU+8,4)}, v{vaClrO}, {sr(sWS,4)}, s{sOown} offen")
        a(f"{lab}:")
    g.o0_clear_hook = _o0
    vG = vA
    def q1_tags(img):
        a(f"""
        ds_read_b128 {vr(vG,4)}, v{vKs+2} offset:{L_QG + img*2048}
        ds_read_b128 {vr(vG+4,4)}, v{vKs+2} offset:{L_QG + img*2048 + 16}
        s_waitcnt lgkmcnt(0)
        v_xor_b32 v{vT1}, s{sTX}, v{vG+1}
        v_xor_b32 v{vT2}, s{sTX}, v{vG+3}
        v_xor_b32 v{vT3}, s{sTX}, v{vG+5}
        v_xor_b32 v{vT0}, s{sTX}, v{vG+7}
        v_or3_b32 v{vT1}, v{vT1}, v{vT2}, v{vT3}
        v_or_b32 v{vT1}, v{vT1}, v{vT0}
        v_cmp_lt_u32 vcc, 15, v{vT1}
        """)
    a("s_barrier")
    q1_tags(0)
    a(f"s_mov_b32 s{sC}, {L_QG}\ns_cbranch_vccz L_q1ok")
    cnt("g0fail")
    w0(lambda: (q1_dma(1), a("s_waitcnt vmcnt(0)")))
    a("s_barrier")
    q1_tags(1)
    a(f"s_mov_b32 s{sC}, {L_QG + 2048}\ns_cbranch_vccz L_q1ok")
    a("L_q1retry:")
    cnt("g1fail")
    a(f"s_sub_u32 s{sBud}, s{sBud}, 1\ns_cbranch_scc1 L_abort\ns_barrier")
    w0(lambda: (q1_dup(), q1_dma(0), a("s_waitcnt vmcnt(0)")))
    a("s_barrier")
    q1_tags(0)
    a(f"s_mov_b32 s{sC}, {L_QG}\ns_cbranch_vccnz L_q1retry")
    a("L_q1ok:")
    a(f"""
    v_cmp_ne_u32 vcc, 0, v{vT1}
    v_add_u32 v{vT0}, s{sC}, v{vKs+1}
    s_cmp_eq_u64 vcc, 0
    s_cselect_b32 s{sLocal}, 1, 0
    """)
    if cfg.v3_early: g.o0_clear_hook()
    setexec(EM4)
    for c in range(4):
        a(f"ds_read2_b32 {vr(vQ+4*c,2)}, v{vT0} offset0:{c*32} offset1:{c*32+2}")
        a(f"ds_read2_b32 {vr(vQ+4*c+2,2)}, v{vT0} offset0:{c*32+4} offset1:{c*32+6}")
    setexec(FULL)
    lab = a.label("nl")
    a(f"s_cmp_eq_u32 s{sLocal}, 0\ns_cbranch_scc0 {lab}")
    g.q1_dup()
    a(f"{lab}:")
    a("s_waitcnt lgkmcnt(0)")
    ts("q1_got")
    s_qk_max()
    ts("s1_max")
    def o0_clear():
        lab = a.label("c0")
        a(f"""
        s_cmp_eq_u32 s{sW}, 3
        s_cbranch_scc0 {lab}
        v_mov_b32 v{vU+8}, -1
        v_mov_b32 v{vU+9}, -1
        v_mov_b32 v{vU+10}, -1
        v_mov_b32 v{vU+11}, -1
        """)
        store_local(f"buffer_store_dwordx4 {vr(vU+8,4)}, v{vaClrO}, {sr(sWS,4)}, s{sOown} offen")
        a(f"{lab}:")
    if not cfg.v3_early:
        a("s_waitcnt vmcnt(4)")
        o0_clear()
        warm_stats0()
        w_part(1, 2, 4)
        v_group(3)
    else:
        a("s_waitcnt vmcnt(8)")
    nPF = emit_wpf(sKS, sWQ, True) if (cfg.pf_stream and not cfg.pf_early and cfg.pf_pos is None) else 0

    def s1_tail(nW=0, maybe_none=False):
        def wait_v(base):
            if nW and maybe_none:
                l1 = a.label("wv"); l2 = a.label("wv")
                a(f"s_cmp_ge_u32 s{sIdx}, 14\ns_cbranch_scc1 {l1}\ns_waitcnt vmcnt({base + nW})\ns_branch {l2}\n{l1}:\ns_waitcnt vmcnt({base})\n{l2}:")
            else:
                a(f"s_waitcnt vmcnt({base + nW})")
        s_exp_p()
        s_stats_prep()
        blks = [0, 1, 2, 3]
        for blk in blks: v_tr(blk)
        a("s_waitcnt lgkmcnt(0)")
        pv(blks, True)
        for t in (2, 3):
            if t == 3 and cfg.v3_early:
                l3 = a.label("v3"); l4 = a.label("v4")
                a(f"s_cmp_eq_u32 s{sW}, 3\ns_cbranch_scc1 {l3}\ns_waitcnt vmcnt({nW})\ns_branch {l4}\n{l3}:\ns_waitcnt vmcnt({nW + 1})\n{l4}:")
            else:
                wait_v(4*(3-t))
            a("s_barrier")
            if t == 3: ts("v_landed")
            blks = [2*t, 2*t + 1]
            for blk in blks: v_tr(blk)
            a("s_waitcnt lgkmcnt(0)")
            pv(blks, False)
        s_out()
        s_stats_store(1 if cfg.v3_early else None)
        lab = a.label("c1")
        a(f"""
        s_cmp_eq_u32 s{sW}, 0
        s_cbranch_scc0 {lab}
        v_mov_b32 v{vU+8}, -1
        v_mov_b32 v{vU+9}, -1
        v_mov_b32 v{vU+10}, -1
        v_mov_b32 v{vU+11}, -1
        s_add_u32 s{sB}, s{sOown}, {O_L}
        """)
        store_local(f"buffer_store_dwordx4 {vr(vU+8,4)}, v{vaClrO}, {sr(sWS,4)}, s{sB} offen")
        q1_dup()
        a(f"{lab}:")
        ts("s1_pub")

    def x_poll(sbase, dst, sleep):
        l = a.label("xp"); ok = a.label("xok")
        if cfg.sleep_x0: a(f"s_sleep {cfg.sleep_x0}")
        a(f"{l}:")
        cnt("n_x")
        for u in range(4):
            if u == 0: a(f"s_mov_b32 m0, s{sXI}\ns_nop 0")
            else: a(f"s_add_u32 s{sB}, s{sXI}, {u*(1024-128)}\ns_mov_b32 m0, s{sB}\ns_nop 0")
            a(f"buffer_load_dwordx4 v{vaXg}, {sr(sWS,4)}, s{sbase} offen offset:{u*128} sc1 lds")
        a("s_waitcnt vmcnt(0)")
        for u in range(4):
            a(f"ds_read_b128 {vr(dst+4*u,4)}, v{vaXr} offset:{u*1024}")
        a("s_waitcnt lgkmcnt(0)")
        sent_check([dst+i for i in range(16)], vT0, ok)
        spin_fail(l, sleep)
        a(f"{ok}:")

    def warm_q2():
        if not cfg.warm: return
        a(f"s_lshl_b32 s{sB}, s{sJ}, 11\ns_add_u32 s{sB}, s{sB}, {WS_Q2}\nv_lshlrev_b32 v{vT0}, 7, v{vLane}")
        setexec(0xFFFF)
        a(f"buffer_load_dword v{vJ}, v{vT0}, {sr(sWS,4)}, s{sB} offen sc1")
        setexec(FULL)
    def warm_o(dl, data=True):
        if not cfg.warm: return
        a(f"s_add_u32 s{sB}, s{sOcons}, {dl*O_L}")
        if data:
            a(f"""
            v_and_b32 v{vT0}, 31, v{vLane}
            v_lshlrev_b32 v{vT0}, 7, v{vT0}
            v_lshrrev_b32 v{vT1}, 5, v{vLane}
            v_lshl_add_u32 v{vT0}, v{vT1}, 14, v{vT0}
            buffer_load_dword v{vJ}, v{vT0}, {sr(sWS,4)}, s{sB} offen sc1
            """)
        a(f"buffer_load_dword v{vJ}, v{vaS0}, {sr(sWS,4)}, s{sB} offen sc1")
        a(f"buffer_load_dword v{vJ}, v{vaS1}, {sr(sWS,4)}, s{sB} offen sc1")

    def tag_check_all():
        l = a.label("tc"); ok = a.label("tcok")
        a(f"""
        s_lshl_b32 s{sB}, s{sW}, 13
        s_add_u32 s{sB}, s{sB}, {WS_Q1+4}
        v_lshlrev_b32 v{vT0}, 7, v{vLane}
        {l}:
        buffer_load_dword v{vT1}, v{vT0}, {sr(sWS,4)}, s{sB} offen sc1
        s_waitcnt vmcnt(0)
        v_xor_b32 v{vT1}, s{sT}, v{vT1}
        v_cmp_lt_u32 vcc, 15, v{vT1}
        s_cbranch_vccz {ok}
        """)
        spin_fail(l, 2)
        a(f"{ok}:")

    def line_final(red):
        if cfg.doorbell and cfg.db_early:
            a(f"v_mov_b32 v{vT0}, 0\nv_mov_b32 v{vT1}, s{sDBtag}\ns_mov_b64 exec, 1")
            store_local(f"buffer_store_dword v{vT1}, v{vT0}, {sr(sWS,4)}, s{sDBw} offen")
            a("s_mov_b64 exec, -1")
        a(f"""
        ds_read_b128 {vr(vU,4)}, v{vaFinO} offset:{red}
        v_mov_b32 v{vT0}, 0
        v_mov_b32 v{vT1}, s{sDBtag}
        s_waitcnt lgkmcnt(0)
        v_add_f32 v{vU}, v{vU}, v{vU+1}
        v_add_f32 v{vU+2}, v{vU+2}, v{vU+3}
        v_add_f32 v{vU}, v{vU}, v{vResF}
        v_add_f32 v{vResF}, v{vU}, v{vU+2}
        """)
        dpp("v_mov_b32", vU + 1, vResF, None, "quad_perm:[1,0,3,2]")
        a(f"v_cvt_pk_bf16_f32 v{vU}, v{vResF}, v{vU+1}\nv_min_u32 v{vU}, 0xfffffffe, v{vU}")
        if cfg.doorbell and not cfg.db_early:
            a("s_mov_b64 exec, 1")
            store_local(f"buffer_store_dword v{vT1}, v{vT0}, {sr(sWS,4)}, s{sDBw} offen")
        a(f"s_xor_b32 s{sB}, s{sXw}, 0x2000\ns_add_u32 s{sB}, s{sB}, 16384")
        setexec(EMEV)
        a(f"buffer_store_dword v{vU}, v{vaStX}, {sr(sWS,4)}, s{sXw} offen sc1")
        a(f"buffer_store_dword v{vU}, v{vaStX}, {sr(sWS,4)}, s{sB} offen sc1")
        setexec(FULL)
    def advance_hop():
        a(f"s_add_u32 s{sXw}, s{sXw}, {X_HOP}\ns_add_u32 s{sDBw}, s{sDBw}, 1024\ns_add_u32 s{sDBtag}, s{sDBtag}, 1")

    def db_setup(hop_w, hop_r):
        a(f"""
        s_lshl_b32 s{sDBr}, s{sJ}, 7
        s_add_u32 s{sDBr}, s{sDBr}, {WS_DB}
        s_lshl_b32 s{sDBw}, s{sIdx}, 2
        s_add_u32 s{sDBw}, s{sDBw}, s{sDBr}
        s_add_u32 s{sDBw}, s{sDBw}, {hop_w*1024}
        s_add_u32 s{sDBtag}, s{sT}, {8+hop_w}
        """)
    def db_wait(hop_off_s, tag_add_s=None, const_hop=None):
        if not cfg.doorbell: return
        l = a.label("db"); ok = a.label("dbok")
        if const_hop is not None:
            a(f"s_add_u32 s{sA}, s{sDBr}, {const_hop*1024}\ns_add_u32 s{sC}, s{sT}, {8+const_hop}")
        else:
            a(f"s_lshl_b32 s{sA}, s{sL}, 11\ns_add_u32 s{sA}, s{sA}, s{sDBr}\ns_add_u32 s{sA}, s{sA}, {hop_off_s*1024}")
            a(f"s_lshl_b32 s{sC}, s{sL}, 1\ns_add_u32 s{sC}, s{sC}, s{sT}\ns_add_u32 s{sC}, s{sC}, {8+hop_off_s}")
        a(f"v_lshlrev_b32 v{vT0}, 2, v{vLane}")
        setexec(0xFFFF)
        a(f"""
        {l}:
        buffer_load_dword v{vT1}, v{vT0}, {sr(sWS,4)}, s{sA} offen sc1
        s_waitcnt vmcnt(0)
        v_cmp_ne_u32 vcc, s{sC}, v{vT1}
        s_cbranch_vccz {ok}
        """)
        spin_fail(l)
        a(f"{ok}:")
        setexec(FULL)

    def o_stats_poll():
        l = a.label("os"); ok = a.label("osok")
        a(f"s_add_u32 s{sA}, s{sT}, s{sL}\ns_add_u32 s{sA}, s{sA}, 1")
        a(f"{l}:")
        cnt("n_ostat")
        a(f"buffer_load_dwordx3 {vr(vSt,3)}, v{vaS0}, {sr(sWS,4)}, s{sOcons} offen sc1")
        a(f"buffer_load_dwordx3 {vr(vSt+4,3)}, v{vaS1}, {sr(sWS,4)}, s{sOcons} offen sc1")
        a("s_waitcnt vmcnt(0)")
        a(f"""
        v_xor_b32 v{vT0}, s{sA}, v{vSt+2}
        v_xor_b32 v{vT1}, s{sA}, v{vSt+6}
        v_or_b32 v{vT0}, v{vT0}, v{vT1}
        v_cmp_ne_u32 vcc, 0, v{vT0}
        s_cbranch_vccz {ok}
        """)
        spin_fail(l, cfg.sleep_o)
        a(f"{ok}:")
        ts_dyn("o_st0", "o_st1")

    def o_phase():
        OA = vA
        o_stats_poll()
        l2 = a.label("op"); ok2 = a.label("ook")
        a(f"L_heavy:\n{l2}:")
        cnt("n_oheavy")
        for b in range(2):
            for c in range(4):
                a(f"buffer_load_dwordx4 {vr(OA+16*b+4*c,4)}, v{vaO0+b}, {sr(sWS,4)}, s{sOcons} offen offset:{c*1024} sc1")
        for b in range(2):
            a(f"v_mov_b32 v{vU+b}, v{vSt+4*b}")
        for n in (8, 4, 2, 1):
            for b in range(2): dpp("v_max_f32", vU + b, vU + b, vU + b, f"row_ror:{n}")
        for b in range(2): a(f"v_sub_f32 v{vU+b}, v{vSt+4*b}, v{vU+b}")
        for b in range(2): a(f"v_exp_f32 v{vU+b}, v{vU+b}")
        for b in range(2): a(f"v_mul_f32 v{vU+2+b}, v{vU+b}, v{vSt+4*b+1}")
        for n in (8, 4, 2, 1):
            for b in range(2): dpp("v_add_f32", vU + 2 + b, vU + 2 + b, vU + 2 + b, f"row_ror:{n}")
        for b in range(2): a(f"v_rcp_f32 v{vU+2+b}, v{vU+2+b}")
        for b in range(2): a(f"v_mul_f32 v{vW+b}, v{vU+b}, v{vU+2+b}")
        a(f"v_mov_b32 v{vT0}, 0")
        if cfg.diag and cfg.ts_only and "o_w0" in cfg.ts_only:
            ts_dyn("o_w0", "o_w1")
            a("s_waitcnt vmcnt(7)")
            ts_dyn("o_f0", "o_f1")
        for i in range(8):
            b, c = i >> 2, i & 3
            r = OA + 16*b + 4*c
            a(f"s_waitcnt vmcnt({7-i})")
            for nt in range(2):
                mfma(vAcc + 8*b + 4*nt, r, ar(aW2 + 8*c + 4*nt, 4), "0" if c == 0 else None)
            a(f"v_max3_u32 v{vT0}, v{vT0}, v{r}, v{r+1}\nv_max3_u32 v{vT0}, v{vT0}, v{r+2}, v{r+3}")
        a(f"v_cmp_eq_u32 vcc, -1, v{vT0}\ns_cbranch_vccz {ok2}")
        spin_fail(l2)
        a(f"{ok2}:")
        ts_dyn("o_got0", "o_got1")
        for b in range(2):
            for nt in range(2):
                t = vU + 2*b + nt; acc = vAcc + 8*b + 4*nt
                dpp("v_mul_f32", t, vW + b, acc, "row_newbcast:0")
                for r in range(1, 4):
                    dpp("v_fmac_f32", t, vW + b, acc + r, f"row_newbcast:{r}")
        a(f"""
        v_permlane32_swap_b32 v{vU}, v{vU+1}
        v_permlane32_swap_b32 v{vU+2}, v{vU+3}
        v_add_f32 v{vU}, v{vU}, v{vU+1}
        v_add_f32 v{vU+2}, v{vU+2}, v{vU+3}
        v_permlane16_swap_b32 v{vU}, v{vU+2}
        v_add_f32 v{vU}, v{vU}, v{vU+2}
        ds_write_b32 v{vaRedW}, v{vU} offset:{R_O}
        s_waitcnt lgkmcnt(0)
        s_barrier
        """)
        lab = a.label("of")
        a(f"s_cmp_eq_u32 s{sW}, 0\ns_cbranch_scc0 {lab}")
        line_final(R_O)
        a(f"{lab}:")
        advance_hop()
        ts_dyn("o_pub0", "o_pub1")

    def g_phase():
        X = vA
        if cfg.db_g: db_wait(0)
        if cfg.diag and cfg.ts_only and "g_db0" in cfg.ts_only: ts_dyn("g_db0", "g_db1")
        x_poll(sXr, X, cfg.sleep_x)
        ts_dyn("g_got0", "g_got1")
        M = stats_mf(X)
        for u in range(4):
            M.append(mf(vAcc, X + 4*u, ar(aW2 + 8*u, 4), "0" if u == 0 else None))
            M.append(mf(vAcc + 4, X + 4*u, ar(aW2 + 8*u + 4, 4), "0" if u == 0 else None))
        V = stats_valu(vU) + [f"v_mov_b32 v{vU+1}, v{vU}", f"v_permlane16_swap_b32 v{vU}, v{vU+1}", f"v_add_f32 v{vU}, v{vU}, v{vU+1}"]
        interleave(M, V, 8, 2)
        setexec("s[%d:%d]" % (sM2, sM2 + 1))
        a(f"ds_write_b32 v{vaRedZ}, v{vU} offset:{R_GZ}")
        setexec(FULL)
        sum4(vU + 2, vAcc, vT3)
        sum4(vU + 3, vAcc + 4, vT3)
        a(f"""
        v_permlane16_swap_b32 v{vU+2}, v{vU+3}
        v_add_f32 v{vU+2}, v{vU+2}, v{vU+3}
        ds_write_b32 v{vaRedW}, v{vU+2} offset:{R_G}
        s_waitcnt lgkmcnt(0)
        s_barrier
        """)
        lab = a.label("gf")
        a(f"s_cmp_eq_u32 s{sW}, 0\ns_cbranch_scc0 {lab}")
        setexec(0xFFFFFFFF)
        a(f"""
        ds_read_b128 {vr(vU+8,4)}, v{vaFinZ} offset:{R_GZ}
        ds_read_b128 {vr(vU+12,4)}, v{vaFinZ} offset:{R_GZ+16}
        ds_read_b128 {vr(vU,4)}, v{vaFinW} offset:{R_G}
        ds_read_b128 {vr(vU+4,4)}, v{vaFinW} offset:{R_G+256}
        s_lshl_b32 s{sB}, s{sIdx}, 6
        s_add_u32 s{sB}, s{sB}, s{sHb}
        s_waitcnt lgkmcnt(2)
        """)
        sum4r(vU + 8); sum4r(vU + 12)
        ln_stats(vU + 8, vU + 12, vU + 9, vU + 10)
        a("s_waitcnt lgkmcnt(0)")
        sum4r(vU); sum4r(vU + 4)
        a(f"""
        v_fma_f32 v{vU}, -v{vU+9}, v{vCg}, v{vU}
        v_fma_f32 v{vU+4}, -v{vU+9}, v{vCu}, v{vU+4}
        v_mul_f32 v{vU+1}, {f2u(-1.4426950408889634):#x}, v{vU+10}
        v_mul_f32 v{vU}, v{vU}, v{vU+1}
        v_exp_f32 v{vU}, v{vU}
        v_mul_f32 v{vU+4}, v{vU+4}, v{vU+10}
        v_add_f32 v{vU}, 1.0, v{vU}
        v_rcp_f32 v{vU}, v{vU}
        s_nop 0
        v_mul_f32 v{vU}, v{vU}, v{vU+4}
        """)
        dpp("v_mov_b32", vU + 1, vU, None, "quad_perm:[1,0,3,2]")
        a(f"v_cvt_pk_bf16_f32 v{vU}, v{vU}, v{vU+1}\nv_min_u32 v{vU}, 0xfffffffe, v{vU}")
        setexec(0x55555555)
        store_local(f"buffer_store_dword v{vU}, v{vaStH}, {sr(sWS,4)}, s{sB} offen")
        setexec(FULL)
        a(f"{lab}:")
        ts_dyn("g_pub0", "g_pub1")

    def d_phase():
        lab0 = a.label("dr0"); l2 = a.label("dr"); ok2 = a.label("drok")
        l = a.label("dp"); ok = a.label("dok"); one = a.label("done"); l3 = a.label("dp1");
        a(f"s_cmp_eq_u32 s{sW}, 3\ns_cbranch_scc1 {l3}")
        setexec(EM2)
        a(f"{l}:")
        a(f"buffer_load_dwordx4 {vr(vHop,4)}, v{vaH}, {sr(sWS,4)}, s{sHb} offen sc1")
        a(f"buffer_load_dwordx4 {vr(vHop+4,4)}, v{vaH}, {sr(sWS,4)}, s{sHb} offen offset:512 sc1")
        a("s_waitcnt vmcnt(0)")
        sent_check([vHop+i for i in range(8)], vT1, ok)
        spin_fail(l)
        a(f"{l3}:")
        setexec(EM2)
        a(f"{l3}b:")
        a(f"buffer_load_dwordx4 {vr(vHop,4)}, v{vaH}, {sr(sWS,4)}, s{sHb} offen sc1")
        a("s_waitcnt vmcnt(0)")
        sent_check([vHop+i for i in range(4)], vT1, ok)
        spin_fail(f"{l3}b")
        a(f"{ok}:")
        setexec(FULL)
        for nt in range(2):
            mfma(vAcc + 4*nt, vHop, ar(aWd + 4*nt, 4), "0")
        for nt in range(2):
            mfma(vAcc + 4*nt, vHop + 4, ar(aWd + 8 + 4*nt, 4))
        a(f"""
        v_permlane16_swap_b32 v{vAcc}, v{vAcc+1}
        v_permlane16_swap_b32 v{vAcc+4}, v{vAcc+5}
        v_permlane32_swap_b32 v{vAcc}, v{vAcc+4}
        ds_write_b32 v{vaRedW}, v{vAcc} offset:{R_D}
        s_waitcnt lgkmcnt(0)
        s_barrier
        """)
        lab = a.label("df")
        a(f"s_cmp_eq_u32 s{sW}, 0\ns_cbranch_scc0 {lab}")
        line_final(R_D)
        a(f"{lab}:")
        advance_hop()
        ts_dyn("d_pub0", "d_pub1")

    a(f"s_cmp_lt_u32 s{sM}, 16\ns_cbranch_scc0 L_roleB")
    def down_slices():
        a(f"""
        v_lshrrev_b32 v{vT0}, 2, v{vLane}
        v_lshlrev_b32 v{vT0}, 10, v{vT0}
        v_and_b32 v{vT1}, 3, v{vLane}
        v_lshl_add_u32 v{vT0}, v{vT1}, 4, v{vT0}
        s_mul_i32 s{sB}, s{sJ}, {224*1024}
        s_lshl_b32 s{sC}, s{sIdx}, 6
        s_add_u32 s{sB}, s{sB}, s{sC}
        s_lshl_b32 s{sC}, s{sW}, 15
        s_add_u32 s{sB}, s{sB}, s{sC}
        s_lshl_b32 s{sC}, s{sW}, 14
        s_add_u32 s{sC}, s{sC}, {L_K + W_DN}
        s_mov_b32 m0, s{sC}
        s_add_u32 s{sD}, s{sB}, 16384
        buffer_load_dwordx4 v{vT0}, {sr(sDN,4)}, s{sB} offen{SLN} lds
        s_add_u32 s{sC}, s{sC}, 1024
        s_mov_b32 m0, s{sC}
        s_nop 0
        buffer_load_dwordx4 v{vT0}, {sr(sDN,4)}, s{sD} offen{SLN} lds
        s_cmp_eq_u32 s{sW}, 3
        s_cbranch_scc1 L_nod2
        s_add_u32 s{sB}, s{sB}, {4*32768}
        s_add_u32 s{sC}, s{sC}, 1024
        s_mov_b32 m0, s{sC}
        s_add_u32 s{sD}, s{sB}, 16384
        buffer_load_dwordx4 v{vT0}, {sr(sDN,4)}, s{sB} offen{SLN} lds
        s_add_u32 s{sC}, s{sC}, 1024
        s_mov_b32 m0, s{sC}
        s_nop 0
        buffer_load_dwordx4 v{vT0}, {sr(sDN,4)}, s{sD} offen{SLN} lds
        L_nod2:
        """)
    def down_operands():
        a(f"s_lshl_b32 s{sB}, s{sW}, 14")
        tr_base(vT0, 64, 8, sB, L_K + W_DN)
        for nt in range(2):
            a(f"ds_read_b64_tr_b16 {ar(aWd+4*nt,2)}, v{vT0} offset:{nt*32}")
            a(f"ds_read_b64_tr_b16 {ar(aWd+4*nt+2,2)}, v{vT0} offset:{nt*32+256}")
        a(f"s_cmp_eq_u32 s{sW}, 3\ns_cbranch_scc1 L_dn3")
        for nt in range(2):
            a(f"ds_read_b64_tr_b16 {ar(aWd+8+4*nt,2)}, v{vT0} offset:{2048+nt*32}")
            a(f"ds_read_b64_tr_b16 {ar(aWd+8+4*nt+2,2)}, v{vT0} offset:{2048+nt*32+256}")
        a("s_branch L_dn4\nL_dn3:")
        for i in range(8): a(f"v_accvgpr_write_b32 a{aWd+8+i}, 0")
        a("L_dn4:")
    g.role = "A"; ts_split = g.ts
    def wo_slices():
        if cfg.line_pf and "o" in cfg.pf_which:
            a(f"""
            v_lshlrev_b32 v{vT0}, 7, v{vLane}
            s_lshl_b32 s{sB}, s{sJ}, 19
            s_lshl_b32 s{sC}, s{sIdx}, 15
            s_add_u32 s{sB}, s{sB}, s{sC}
            s_lshl_b32 s{sC}, s{sW}, 13
            s_add_u32 s{sB}, s{sB}, s{sC}
            buffer_load_dword v{vJ}, v{vT0}, {sr(sW2,4)}, s{sB} offen{cfg.pf_pol_o}
            """)
        a(f"""
        v_lshrrev_b32 v{vT0}, 2, v{vLane}
        v_lshlrev_b32 v{vT0}, 10, v{vT0}
        v_and_b32 v{vT1}, 3, v{vLane}
        v_lshl_add_u32 v{vT0}, v{vT1}, 4, v{vT0}
        s_lshl_b32 s{sB}, s{sJ}, 19
        s_lshl_b32 s{sC}, s{sW}, 17
        s_add_u32 s{sB}, s{sB}, s{sC}
        s_lshl_b32 s{sC}, s{sIdx}, 6
        s_add_u32 s{sB}, s{sB}, s{sC}
        s_lshl_b32 s{sC}, s{sW}, 14
        s_add_u32 s{sC}, s{sC}, {L_K}
        """)
        for u in range(8):
            a(f"""
            s_mov_b32 m0, s{sC}
            s_add_u32 s{sC}, s{sC}, 1024
            buffer_load_dwordx4 v{vT0}, {sr(sW2,4)}, s{sB} offen{SLN} lds
            s_add_u32 s{sB}, s{sB}, {16*1024}
            """)
    if cfg.w_inter:
        s1_tail(nPF)
        db_setup(0, 1)
        a(f"s_mov_b32 s{sXr}, {WS_X}")
    elif cfg.wsA:
        wo_slices()
        s1_tail(8 + nPF)
        db_setup(0, 1)
    else:
        s1_tail(nPF)
        db_setup(0, 1)
        wo_slices()
    a(f"v_mov_b32 v{vRes}, 0")
    lab = a.label("r0")
    a(f"""
    s_cmp_eq_u32 s{sJ}, 0
    s_cbranch_scc0 {lab}
    v_and_b32 v{vT0}, 1, v{vQd}
    v_lshlrev_b32 v{vT0}, 10, v{vT0}
    v_lshrrev_b32 v{vT1}, 1, v{vQd}
    v_lshl_add_u32 v{vT0}, v{vT1}, 5, v{vT0}
    v_lshl_add_u32 v{vT0}, v{vR16}, 1, v{vT0}
    s_lshl_b32 s{sB}, s{sIdx}, 6
    buffer_load_ushort v{vRes}, v{vT0}, {sr(sX0,4)}, s{sB} offen
    {lab}:
    """)
    nspec = 0
    if cfg.o_spec:
        a(f"buffer_load_dwordx3 {vr(vSt,3)}, v{vaS0}, {sr(sWS,4)}, s{sOcons} offen sc1")
        a(f"buffer_load_dwordx3 {vr(vSt+4,3)}, v{vaS1}, {sr(sWS,4)}, s{sOcons} offen sc1")
        nspec = 2
    if cfg.w_inter:
        a(f"s_waitcnt vmcnt({nspec})")
        for half, (sh, base) in enumerate(((12, L_WQ), (14, L_K))):
            a(f"s_lshl_b32 s{sB}, s{sW}, {sh}")
            tr_base(vT0, 64, 4, sB, base)
            for c2 in range(2):
                c = 2*half + c2
                for nt in range(2):
                    a(f"ds_read_b64_tr_b16 {ar(aW2+8*c+4*nt,2)}, v{vT0} offset:{c2*2048+nt*32}")
                    a(f"ds_read_b64_tr_b16 {ar(aW2+8*c+4*nt+2,2)}, v{vT0} offset:{c2*2048+nt*32+1024}")
    else:
        a(f"s_lshl_b32 s{sB}, s{sW}, 14")
        tr_base(vT0, 64, 4, sB, L_K)
        a(f"s_waitcnt vmcnt({nspec})")
        for c in range(4):
            for nt in range(2):
                a(f"ds_read_b64_tr_b16 {ar(aW2+8*c+4*nt,2)}, v{vT0} offset:{c*2048+nt*32}")
                a(f"ds_read_b64_tr_b16 {ar(aW2+8*c+4*nt+2,2)}, v{vT0} offset:{c*2048+nt*32+1024}")
    a(f"v_lshlrev_b32 v{vResF}, 16, v{vRes}")
    a("s_waitcnt lgkmcnt(0)")
    ts("wo_ready")
    if cfg.o_spec:
        a(f"""
        s_add_u32 s{sA}, s{sT}, 1
        s_waitcnt vmcnt(0)
        v_xor_b32 v{vT0}, s{sA}, v{vSt+2}
        v_xor_b32 v{vT1}, s{sA}, v{vSt+6}
        v_or_b32 v{vT0}, v{vT0}, v{vT1}
        v_cmp_ne_u32 vcc, 0, v{vT0}
        s_cbranch_vccz L_heavy
        """)
    a("L_loopA:")
    o_phase()
    lab = a.label("dn")
    a(f"s_cmp_eq_u32 s{sL}, 0\ns_cbranch_scc0 {lab}")
    down_slices()
    tag_check_all()
    if cfg.epoch_early:
        le = a.label("ep")
        a(f"""
        s_or_b32 s{sB}, s{sJ}, s{sIdx}
        s_or_b32 s{sB}, s{sB}, s{sW}
        s_cmp_eq_u32 s{sB}, 0
        s_cbranch_scc0 {le}
        """)
        g.ep_lab = le
        a(f"v_mov_b32 v{vT0}, {WS_EPOCH}\nv_mov_b32 v{vT1}, s{sT}\ns_mov_b64 exec, 1")
        a(f"buffer_store_dword v{vT1}, v{vT0}, {sr(sWS,4)}, 0 offen sc1")
        a("s_mov_b64 exec, -1")
        a(f"{le}:")
    down_operands()
    if cfg.warm_out:
        lw = a.label("wout")
        a(f"""
        s_cmp_ge_u32 s{sIdx}, 2
        s_cbranch_scc1 {lw}
        s_lshl_b32 s{sB}, s{sJ}, 1
        s_add_u32 s{sB}, s{sB}, s{sIdx}
        s_lshl_b32 s{sB}, s{sB}, 6
        v_lshlrev_b32 v{vT0}, 10, v{vLane}
        s_mov_b64 exec, 3
        buffer_load_dword v{vJ}, v{vT0}, {sr(sOUT,4)}, s{sB} offen
        s_mov_b64 exec, -1
        {lw}:
        """)
    a("s_waitcnt lgkmcnt(0)\ns_barrier")
    a(f"{lab}:")
    d_phase()
    a(f"s_cmp_eq_u32 s{sL}, 1\ns_cbranch_scc1 L_finalA")
    a("s_branch L_q2s2")

    a("L_roleB:")
    g.role = "B"; g.ts = ts_split
    def gu_slices():
        a(f"""
        s_cmp_ge_u32 s{sIdx}, 14
        s_cbranch_scc1 L_nogu
        v_lshrrev_b32 v{vT0}, 1, v{vLane}
        v_mul_u32_u24 v{vT0}, 3584, v{vT0}
        v_and_b32 v{vT1}, 1, v{vLane}
        v_lshl_add_u32 v{vT0}, v{vT1}, 4, v{vT0}
        s_mul_i32 s{sB}, s{sW}, {128*3584}
        s_mul_i32 s{sC}, s{sJ}, 448
        s_add_u32 s{sB}, s{sB}, s{sC}
        s_lshl_b32 s{sC}, s{sIdx}, 5
        s_add_u32 s{sB}, s{sB}, s{sC}
        s_lshl_b32 s{sC}, s{sW}, 14
        s_add_u32 s{sC}, s{sC}, {L_K + W_GATE}
        """)
        for u in range(4):
            a(f"""
            s_mov_b32 m0, s{sC}
            s_add_u32 s{sD}, s{sC}, {W_UP - W_GATE}
            buffer_load_dwordx4 v{vT0}, {sr(sW2,4)}, s{sB} offen{SLN} lds
            s_mov_b32 m0, s{sD}
            s_add_u32 s{sC}, s{sC}, 1024
            buffer_load_dwordx4 v{vT0}, {sr(sUP,4)}, s{sB} offen{SLN} lds
            s_add_u32 s{sB}, s{sB}, {32*3584}
            """)
        a("L_nogu:")
    if cfg.wsB:
        gu_slices()
        s1_tail(8, maybe_none=True)
    else:
        s1_tail(nPF)
    if cfg.w_inter: a(f"s_mov_b32 s{sWb2}, s{sWb}\ns_mov_b32 s{sWst2}, s{sWst}")
    db_setup(1, 0)
    if cfg.w_inter: a(f"s_mov_b32 s{sXr}, {WS_X}")
    if cfg.pf_down:
        a(f"""
        v_lshrrev_b32 v{vT0}, 3, v{vLane}
        v_lshlrev_b32 v{vT0}, 10, v{vT0}
        v_and_b32 v{vT1}, 7, v{vLane}
        v_lshl_add_u32 v{vT0}, v{vT1}, 7, v{vT0}
        s_mul_i32 s{sB}, s{sJ}, 224
        s_mul_i32 s{sC}, s{sIdx}, 14
        s_add_u32 s{sB}, s{sB}, s{sC}
        s_lshl_b32 s{sC}, s{sW}, 2
        s_add_u32 s{sB}, s{sB}, s{sC}
        s_lshl_b32 s{sB}, s{sB}, 10
        s_cmp_eq_u32 s{sW}, 3
        s_cselect_b32 exec_lo, 0xffff, -1
        s_mov_b32 exec_hi, 0
        buffer_load_dword v{vJ}, v{vT0}, {sr(sDN,4)}, s{sB} offen{cfg.pf_down_pol}
        s_mov_b64 exec, -1
        """)
    if cfg.line_pf and "f" in cfg.pf_which:
        a(f"""
        v_mul_u32_u24 v{vT0}, 52, v{vLane}
        v_lshrrev_b32 v{vT0}, 8, v{vT0}            ; l/5 for l < 64
        v_mul_u32_u24 v{vT1}, 5, v{vT0}
        v_sub_u32 v{vT1}, v{vLane}, v{vT1}         ; l%5
        v_mul_u32_u24 v{vT0}, 3584, v{vT0}
        v_lshl_add_u32 v{vT0}, v{vT1}, 7, v{vT0}
        s_lshl_b32 s{sB}, s{sIdx}, 5
        s_lshl_b32 s{sC}, s{sW}, 3
        s_add_u32 s{sB}, s{sB}, s{sC}
        s_mul_i32 s{sB}, s{sB}, 3584
        s_mul_i32 s{sC}, s{sJ}, 448
        s_and_b32 s{sC}, s{sC}, 0xffffff80
        s_add_u32 s{sB}, s{sB}, s{sC}
        """)
        setexec((1 << 40) - 1)
        for off in ((0, 64) if "f" in cfg.sub2 else (0,)):
            a(f"buffer_load_dword v{vJ}, v{vT0}, {sr(sW2,4)}, s{sB} offen offset:{off}{cfg.pf_pol_f}")
            a(f"buffer_load_dword v{vJ}, v{vT0}, {sr(sUP,4)}, s{sB} offen offset:{off}{cfg.pf_pol_f}")
        setexec(FULL)
    if not cfg.wsB and not cfg.w_inter: gu_slices()
    if cfg.w_inter and cfg.w_interB != "gu":
        lab = a.label("wl")
        a(f"s_cmp_ge_u32 s{sIdx}, 14\ns_cbranch_scc1 {lab}")
        for part, key, srdq, sh, base in ((0, "g", sW2, 12, L_WQ), (1, "u", sUP, 14, L_K)):
            if key in cfg.w_interB: continue
            for u in range(4):
                a(f"""
                s_mul_i32 s{sB}, s{sWst2}, {u}
                s_add_u32 s{sB}, s{sB}, s{sWb2}
                s_lshl_b32 s{sC}, s{sW}, {sh}
                s_add_u32 s{sC}, s{sC}, {base + u*1024}
                s_mov_b32 m0, s{sC}
                s_nop 0
                buffer_load_dwordx4 v{vWs}, {sr(srdq,4)}, s{sB} offen{SLN} lds
                """)
        a(f"{lab}:")
    tag_check_all()
    ts("ffn_landed")
    a(f"s_cmp_ge_u32 s{sIdx}, 14\ns_cbranch_scc1 L_nogu2")
    if cfg.w_inter:
        for mat, (sh, base) in enumerate(((12, L_WQ), (14, L_K))):
            a(f"s_lshl_b32 s{sB}, s{sW}, {sh}")
            tr_base(vT0, 32, 8, sB, base)
            for u in range(4):
                a(f"ds_read_b64_tr_b16 {ar(aW2+8*u+4*mat,2)}, v{vT0} offset:{u*1024}")
                a(f"ds_read_b64_tr_b16 {ar(aW2+8*u+4*mat+2,2)}, v{vT0} offset:{u*1024+128}")
    else:
        a(f"s_lshl_b32 s{sB}, s{sW}, 14")
        tr_base(vT0, 32, 8, sB, L_K + W_GATE)
        for u in range(4):
            for mat in range(2):
                a(f"ds_read_b64_tr_b16 {ar(aW2+8*u+4*mat,2)}, v{vT0} offset:{u*1024+mat*(W_UP-W_GATE)}")
                a(f"ds_read_b64_tr_b16 {ar(aW2+8*u+4*mat+2,2)}, v{vT0} offset:{u*1024+mat*(W_UP-W_GATE)+128}")
    a("s_waitcnt lgkmcnt(0)")
    for u in range(4):
        mfma(vAcc, vOnes, ar(aW2 + 8*u, 4), "0" if u == 0 else None)
        mfma(vAcc + 4, vOnes, ar(aW2 + 8*u + 4, 4), "0" if u == 0 else None)
    a(f"s_nop 7\nds_write_b32 v{vaRedW}, v{vAcc} offset:{R_COL}\nds_write_b32 v{vaRedW}, v{vAcc+4} offset:{R_COL2}")
    a("L_nogu2:")
    a("s_waitcnt lgkmcnt(0)\ns_barrier")
    a(f"""
    ds_read_b128 {vr(vU,4)}, v{vaFinW} offset:{R_COL}
    ds_read_b128 {vr(vU+4,4)}, v{vaFinW} offset:{R_COL2}
    s_waitcnt lgkmcnt(0)
    """)
    sum4r(vU); sum4r(vU + 4)
    a(f"v_mov_b32 v{vCg}, v{vU}\nv_mov_b32 v{vCu}, v{vU+4}")
    ts("ffn_ready")
    a("L_loopB:")
    lg = a.label("nog")
    a(f"s_cmp_ge_u32 s{sIdx}, 14\ns_cbranch_scc1 {lg}")
    g_phase()
    a(f"{lg}:")
    if cfg.junk_dirty:
        lj = a.label("jk")
        a(f"s_cmp_eq_u32 s{sL}, 0\ns_cbranch_scc0 {lj}")
        a(f"s_lshl_b32 s{sB}, s2, 2\ns_add_u32 s{sB}, s{sB}, s{sW}\ns_mul_i32 s{sB}, s{sB}, {cfg.junk_dirty*1024}\ns_add_u32 s{sB}, s{sB}, 0x400000\nv_lshlrev_b32 v{vT0}, 4, v{vLane}")
        for i in range(cfg.junk_dirty):
            a(f"buffer_store_dwordx4 {vr(vP,4)}, v{vT0}, {sr(sWS,4)}, s{sB} offen\ns_add_u32 s{sB}, s{sB}, 1024")
        a(f"{lj}:")
    a(f"s_cmp_eq_u32 s{sL}, 1\ns_cbranch_scc1 L_fin")

    a("L_q2s2:")
    save_role, save_ts = g.role, g.ts
    g.role = "C"; g.ts = getattr(g, "maxts", g.ts)
    lab = a.label("wo")
    a(f"s_cmp_lt_u32 s{sM}, 16\ns_cbranch_scc{1 if cfg.warm_by_B else 0} {lab}")
    warm_q2()
    warm_o(1)
    a(f"{lab}:")
    if cfg.db_q: db_wait(None, const_hop=1)
    if cfg.diag and cfg.ts_only and "q2_db" in cfg.ts_only:
        ts("q2_db")
    a(f"s_mov_b32 s{sD}, {WS_X + X_HOP}")
    x_poll(sD, XA, cfg.sleep_x)
    ts("q2_got")
    q_core(XA)
    q_final(False)
    ts("q2_pub")
    l = a.label("qp"); ok = a.label("qok")
    setexec(EM4)
    a(f"{l}:")
    for c in range(4):
        a(f"buffer_load_dwordx4 {vr(vQ+4*c,4)}, v{vaQ2}, {sr(sWS,4)}, s{sQ2r} offen offset:{c*256} sc1")
    a("s_waitcnt vmcnt(0)")
    sent_check([vQ+i for i in range(16)], vT0, ok)
    spin_fail(l)
    a(f"{ok}:")
    setexec(FULL)
    ts("q2_gath")
    a(f"""
    s_add_u32 s{sOown}, s{sOown}, {O_L}
    s_add_u32 s{sOcons}, s{sOcons}, {O_L}
    s_add_u32 s{sXr}, s{sXr}, {2*X_HOP}
    s_add_u32 s{sHb}, s{sHb}, 8192
    s_mov_b32 s{sL}, 1
    """)
    s_qk_max()
    s_exp_p()
    if cfg.stats_mid:
        lw3 = a.label("s3"); lw4 = a.label("s4")
        a(f"s_cmp_eq_u32 s{sW}, 3\ns_cbranch_scc1 {lw3}")
        for blk in range(8):
            a(f"s_waitcnt lgkmcnt({7-blk})")
            pv([blk], blk == 0)
        a(f"s_branch {lw4}\n{lw3}:")
        a(f"""
        ds_read_b128 {vr(vU+4,4)}, v{vaSm} offset:{L_LSUM-L_SMAX}
        s_add_u32 s{sB}, s{sT}, s{sL}
        s_add_u32 s{sB}, s{sB}, 1
        v_mov_b32 v{vMc+2}, s{sB}
        """)
        for blk in range(4):
            a(f"s_waitcnt lgkmcnt({8-blk})")
            pv([blk], blk == 0)
        a("s_waitcnt lgkmcnt(0)")
        sum4r(vU + 4)
        a(f"v_mov_b32 v{vMc+1}, v{vU+4}")
        setexec(0xF)
        store_local(f"buffer_store_dwordx4 {vr(vMc,4)}, v{vaStS}, {sr(sWS,4)}, s{sOown} offen")
        setexec(FULL)
        for blk in range(4, 8):
            pv([blk], False)
        a(f"{lw4}:")
        s_out()
    else:
        s_stats_prep()
        a("s_waitcnt lgkmcnt(0)")
        pv(list(range(8)), True)
        s_out()
        s_stats_store(None)
    ts("s2_pub")
    if cfg.diag and cfg.ts_only and "s2_ack" in cfg.ts_only:
        a("s_waitcnt vmcnt(0)")
        ts("s2_ack")
    a(f"s_cmp_lt_u32 s{sM}, 16\ns_cbranch_scc1 L_loopA\ns_branch L_loopB")

    a("L_finalA:")
    g.role = "A"; g.ts = getattr(g, "maxts", g.ts)
    a(f"""
    s_cmp_ge_u32 s{sIdx}, 2
    s_cbranch_scc1 L_fin
    s_cmp_eq_u32 s{sW}, 0
    s_cbranch_scc0 L_fin
    s_lshl_b32 s{sB}, s{sJ}, 1
    s_add_u32 s{sB}, s{sB}, s{sIdx}        ; cb
    s_lshl_b32 s{sC}, s{sB}, 7
    s_add_u32 s{sC}, s{sC}, {WS_X + 3*X_HOP}
    """)
    for nt in range(2):
        for dd in range(4):
            a(f"""
            v_lshlrev_b32 v{vT0}, 3, v{vQd}
            v_add_u32 v{vT0}, {2*dd - 16*nt}, v{vT0}
            v_sub_u32 v{vT0}, v{vT0}, v{vR16}
            v_mov_b32 v{vP+4*nt+dd}, 0
            v_cmp_eq_u32 vcc, 0, v{vT0}
            v_mov_b32 v{vT1}, 0x3f80
            v_cndmask_b32 v{vP+4*nt+dd}, v{vP+4*nt+dd}, v{vT1}, vcc
            v_cmp_eq_u32 vcc, -1, v{vT0}
            v_mov_b32 v{vT1}, 0x3f800000
            v_cndmask_b32 v{vP+4*nt+dd}, v{vP+4*nt+dd}, v{vT1}, vcc
            """)
    a(f"""
    v_lshrrev_b32 v{vT2}, 1, v{vQd}
    v_lshlrev_b32 v{vT2}, 10, v{vT2}
    v_and_b32 v{vT1}, 1, v{vQd}
    v_lshl_add_u32 v{vT2}, v{vT1}, 5, v{vT2}
    v_lshl_add_u32 v{vT2}, v{vR16}, 1, v{vT2}
    s_lshl_b32 s{sB}, s{sB}, 6
    """)
    a(f"s_mov_b32 s{sEx2}, s{sC}\ns_mov_b32 s{sEx2+1}, s{sB}")
    if cfg.db_final: db_wait(None, const_hop=3)
    a(f"s_mov_b32 s{sC}, s{sEx2}\ns_mov_b32 s{sB}, s{sEx2+1}")
    l = a.label("fp"); ok = a.label("fok")
    a(f"{l}:")
    a(f"buffer_load_dwordx4 {vr(vA,4)}, v{vaX}, {sr(sWS,4)}, s{sC} offen sc1")
    a("s_waitcnt vmcnt(0)")
    sent_check([vA+i for i in range(4)], vT0, ok)
    spin_fail(l, cfg.sleep_x)
    a(f"{ok}:")
    ts("fin_got")
    mfma(vAcc, vA, vP, "0"); mfma(vAcc + 4, vA, vP + 4, "0")
    sum4(vU, vAcc, vT3); sum4(vU + 1, vAcc + 4, vT3)
    a(f"""
    v_permlane16_swap_b32 v{vU}, v{vU+1}
    v_add_f32 v{vU}, v{vU}, v{vU+1}
    v_cvt_pk_bf16_f32 v{vU}, v{vU}, v{vU}
    buffer_store_short v{vU}, v{vT2}, {sr(sOUT,4)}, s{sB} offen
    """)
    if not cfg.epoch_early:
        a(f"""
        s_cmp_eq_u32 s{sB}, 0
        s_cbranch_scc0 L_fin
        v_mov_b32 v{vT0}, {WS_EPOCH}
        v_mov_b32 v{vT1}, s{sT}
        """)
        setexec(1)
        a(f"buffer_store_dword v{vT1}, v{vT0}, {sr(sWS,4)}, 0 offen sc1")
        setexec(FULL)

    a("L_fin:")
    if cfg.diag:
        g.role = "E"
        g.tsn["E"].append((NTS - 1, "end"))
        a(f"s_memrealtime s[{sTmp2}:{sTmp2+1}]\ns_waitcnt lgkmcnt(0)\ns_mov_b32 s{sTS+NTS-2}, s{sTmp2}")
        a(f"s_memtime s[{sTmp2}:{sTmp2+1}]\ns_waitcnt lgkmcnt(0)\ns_mov_b32 s{sTS+NTS-1}, s{sTmp2}")
        a(f"s_lshl_b32 s{sB}, s2, 3\ns_add_u32 s{sB}, s{sB}, s{sW}\ns_lshl_b32 s{sB}, s{sB}, 7\ns_add_u32 s{sB}, s{sB}, {WS_DIAG}\nv_mov_b32 v{vT0}, 0")
        setexec(1)
        for i in range(NTS):
            a(f"v_mov_b32 v{vT1}, s{sTS+i}\nbuffer_store_dword v{vT1}, v{vT0}, {sr(sWS,4)}, s{sB} offen offset:{4*i}")
        setexec(FULL)
    if cfg.dbg_span:
        a(f"""
        s_waitcnt vmcnt(0)
        s_cmp_eq_u32 s{sW}, 0
        s_cbranch_scc0 L_nospan
        s_memrealtime s[{sTmp2}:{sTmp2+1}]
        s_load_dwordx2 s[92:93], s[0:1], 80
        s_waitcnt lgkmcnt(0)
        s_mov_b32 s{sA}, s92
        s_and_b32 s{sB}, s93, 0xffff
        s_mov_b32 s{sC}, 256
        s_mov_b32 s{sD}, 0x20000
        v_mov_b32 v{vT0}, 8
        v_mov_b32 v{vT1}, s{sTmp2}
        s_not_b32 s94, s94
        v_mov_b32 v{vT2}, s94
        s_mov_b64 exec, 1
        buffer_atomic_umax v{vT1}, v{vT0}, s[{sA}:{sD}], 0 offen sc1
        buffer_atomic_umax v{vT2}, v{vT0}, s[{sA}:{sD}], 0 offen offset:4 sc1
        s_waitcnt vmcnt(0)
        L_nospan:
        """)
    a("s_waitcnt vmcnt(0)\ns_endpgm")
    a(f"""
    L_abort:
    s_mov_b64 exec, -1
    v_mov_b32 v{vT0}, 0
    v_mov_b32 v{vT1}, 0xdead
    s_load_dwordx2 s[{sTmp2}:{sTmp2+1}], s[0:1], 80
    s_waitcnt lgkmcnt(0)
    s_mov_b32 s{sA}, s{sTmp2}
    s_and_b32 s{sB}, s{sTmp2+1}, 0xffff
    s_mov_b32 s{sC}, 256
    s_mov_b32 s{sD}, 0x20000
    s_mov_b64 exec, 1
    buffer_store_dword v{vT1}, v{vT0}, s[{sA}:{sD}], 0 offen offset:4
    s_waitcnt vmcnt(0)
    L_end:
    s_endpgm
    """)
    for o in g.ool: a(o)
    a("L_codeend:\ns_endpgm")
    lines = a.text().rstrip("\n").split("\n")
    g.ninstr = sum(1 for l in lines if l.startswith("    ") and not l.strip().startswith(";"))
    lines = hazard.pad(lines)
    return g, "\n".join(lines) + "\n"

HEADER = open("interleave_layers__sliding_block_cached__glu_gated_glu__decode.s.ref").read().split("; Override launch")[0]

def full(cfg):
    g, body = build(cfg)
    txt = HEADER
    txt += "; Persistent single-launch kernel: 256 workgroups (one per CU) x 256 threads.\n"
    txt += f"; @launch grid=(256,1,1) block=(256,1,1) lds={LDS_BYTES}\n"
    txt += '.amdgcn_target "amdgcn-amd-amdhsa--gfx950"\n.text\n'
    txt += f".globl {NAME}\n.p2align 8\n.type {NAME},@function\n{NAME}:\n"
    txt += body
    txt += '.section .rodata,"a"\n.p2align 6\n'
    txt += f".amdhsa_kernel {NAME}\n  .amdhsa_next_free_vgpr {256 + g.amax}\n  .amdhsa_next_free_sgpr 102\n  .amdhsa_accum_offset 256\n"
    txt += "  .amdhsa_group_segment_fixed_size 0\n  .amdhsa_kernarg_size 96\n  .amdhsa_user_sgpr_count 2\n  .amdhsa_user_sgpr_kernarg_segment_ptr 1\n  .amdhsa_system_sgpr_workgroup_id_x 1\n.end_amdhsa_kernel\n"
    return g, txt

if __name__ == "__main__":
    cfg = Cfg()
    for kv in sys.argv[2:]:
        k, v = kv.split("="); setattr(cfg, k, eval(v))
    g, txt = full(cfg)
    open(sys.argv[1], "w").write(txt)
    print("vgprs", g.vmax, "agprs", g.amax, "instrs", g.ninstr, "ts", g.tsn)
```

```python
import sys, struct
from asmlib import Asm
import hazard

NAME = "interleave_layers__sliding_block_cached__glu_gated_glu__decode_kernel"

WS_EPOCH = 0x0
WS_Q1 = 0x10000
WS_DB = 0x1c000
WS_Q2 = 0x20000
WS_H  = 0x28000
WS_X  = 0xE0000
X_HOP = 32768
WS_O  = 0x40000
O_STATS = 32768
O_J = O_STATS + 2048
O_L = 8 * O_J
WS_DIAG = 0x100000
WS_SIZE = 0x1000000

L_SMAX = 0
L_LSUM = 64
L_PBUF = 256
L_RED = 2560
R_Q, R_G, R_GZ, R_O, R_D, R_COL, R_COL2 = [L_RED + 1024 * i for i in range(7)]
L_QG = 10240
L_X0 = 14336
L_K = 16384
L_V = L_K + 65536
L_WQ = L_V + 65536
L_XI = L_V
LDS_BYTES = 163840
W_GATE, W_UP, W_DN = 0, 4096, 8192

C_SCALE = 0.08838834764831845 * 1.4426950408889634
def f2u(x): return struct.unpack("<I", struct.pack("<f", x))[0]

class Cfg:
    nKA = 8
    nKb1 = 1
    pace = 8
    gpts = (1, 2, 4)
    diag = False
    ts_only = None
    ts_issue = False
    force_global = False
    budget = 400000
    prefetch_code = True
    sleep_x = 0
    sleep_x0 = 0
    sleep_o = 0
    sl_nt = True
    pf_pol = ""
    pf_pol_f = ""
    pf_pol_o = " nt"
    pf_which = "qf"
    dbg_span = False
    counters = False
    db_early = False
    doorbell = True
    warm = True
    pf_stream = "o"
    pf_pos = 2
    pf_early = False
    pf_spol = ""
    wsA = False
    wsB = False
    junk_dirty = 0
    epoch_early = True
    w_interB = "gu"
    w_inter = False
    v3_early = False
    warm_by_B = True
    o_spec = True
    db_g = True
    db_q = True
    db_final = False
    stats_mid = True
    pf_down = False
    pf_down_pol = " nt"
    kv_pol = " nt"
    sub2 = ""
    dbg_dump = None
    warm_out = False
    line_pf = True
    const_tag = False
    no_clear0 = False
    clr0_late = False

def vr(b, n=1): return f"v[{b}:{b+n-1}]" if n > 1 else f"v{b}"
def ar(b, n=1): return f"a[{b}:{b+n-1}]" if n > 1 else f"a{b}"
def sr(b, n=1): return f"s[{b}:{b+n-1}]" if n > 1 else f"s{b}"

sJ, sM, sW, sIdx, sL = 3, 4, 5, 6, 7
sWS, sKS, sVS, sWQ, sW2, sUP, sDN, sX0, sOUT = 8, 12, 16, 20, 24, 28, 32, 36, 40
sT, sTX, sLocal, sBud = 44, 45, 46, 47
sMDIAG = 48
sM4 = 50
sM2 = 52
sMN1 = 54
sMEV = 56
sEx = 58
sA, sB, sC, sD = 60, 61, 62, 63
sKV, sRot = 64, 65
sOown, sOcons, sXw, sXr, sHb, sQ2w, sQ2r = 66, 67, 68, 69, 70 - 70 + 96, 97, 98
sXcc = 99
sWb2, sWst2 = 68, 60
sWb, sWst = 59, 69
sKS2 = sKS
sDBtag = 59
sEx2 = 50
sDBw, sDBr = 64, 65
sXI = 58
sTmp2 = 100
sTS = 70
NTS = 26

class G:
    pass

def build(cfg):
    g = G(); a = Asm(); g.a = a
    g.tsn = {"C": [], "A": [], "B": [], "E": []}; g.role = "C"; g.ts = 0; g.cnts = {}; g.cnt_names = []
    nv = [1]
    def valloc(n=1, align=1):
        nv[0] = (nv[0] + align - 1) // align * align
        r = nv[0]; nv[0] += n
        assert nv[0] <= 256
        return r
    vLane = valloc(); vR16 = valloc(); vQd = valloc()
    vT0 = valloc(); vT1 = valloc(); vT2 = valloc(); vT3 = valloc()
    vOnes = valloc(4, 4)
    vQ = valloc(16, 4)
    vA = valloc(40, 4)
    vAcc = valloc(16, 4)
    vS = valloc(16, 4)
    vP = valloc(32, 4)
    vJ = valloc()
    vHop = valloc(8, 4)
    vU = valloc(16, 4)
    vSt = valloc(8, 4)
    vW = valloc(2, 2)
    vCs = valloc(); vCg = valloc(); vCu = valloc()
    vRes = valloc(); vResF = valloc()
    vQ1d = valloc(2, 2); vQ1a = valloc()
    vMc = valloc(4, 4)
    vaX = valloc(); vaXg = valloc(); vaXr = valloc(); vaStQ = valloc(); vaClrO = valloc(); vaO0 = valloc(); vaO1 = valloc(); vaS0 = valloc(); vaS1 = valloc(); vaQ2 = valloc(); vaH = valloc()
    vaPw = valloc(); vaPr = valloc(); vaSm = valloc(); vaSmW = valloc(); vaRedW = valloc(); vaRedZ = valloc()
    vaFinW = valloc(); vaFinZ = valloc(); vaFinQZ = valloc(); vaFinO = valloc()
    vaStH = valloc(); vaStX = valloc(); vaStO = valloc(); vaStS = valloc(); vaResU = valloc()
    vWs = valloc()
    vKs = valloc(4); vVs = valloc(2); vVr = valloc(2); vKr = valloc(4)
    g.vmax = nv[0]
    aK, aV, aWq, aW2, aWd = 0, 64, 128, 144, 176
    g.amax = 192

    FULL = (1 << 64) - 1
    def ts(name):
        if not cfg.diag: return
        if cfg.ts_only and name not in cfg.ts_only and name not in ("start", "setup", "issued"): return
        i = g.ts; g.ts += 1; g.maxts = max(getattr(g, "maxts", 0), g.ts)
        assert i < NTS - 3, name
        g.tsn[g.role].append((i, name))
        if name == "start":
            return
        if name == "issued":
            g.i_issued = i
            a(f"s_memtime s[{sTmp2}:{sTmp2+1}]\ns_waitcnt lgkmcnt(0)\ns_mov_b32 s92, s{sTmp2}")
            return
        if name == "setup":
            a(f"s_mov_b32 s{sTS}, s90\ns_mov_b32 s{sTS+NTS-3}, s91")
            if cfg.ts_issue: a(f"s_mov_b32 s{sTmp2}, s92")
            for z in list(range(1, NTS - 3)) + [NTS - 2, NTS - 1]: a(f"s_mov_b32 s{sTS+z}, 0")
            if cfg.ts_issue: a(f"s_mov_b32 s{sTS+g.i_issued}, s{sTmp2}")
        if cfg.ts_only and name not in cfg.ts_only:
            return
        a(f"s_memtime s[{sTmp2}:{sTmp2+1}]\ns_waitcnt lgkmcnt(0)\ns_mov_b32 s{sTS+i}, s{sTmp2}")
    def ts_dyn(name0, name1):
        if not cfg.diag: return
        if cfg.ts_only and name0 not in cfg.ts_only: return
        i = g.ts; g.ts += 2; g.maxts = max(getattr(g, "maxts", 0), g.ts)
        assert i + 1 < NTS - 3, name0
        g.tsn[g.role].append((i, name0)); g.tsn[g.role].append((i + 1, name1))
        if cfg.ts_only and name0 not in cfg.ts_only: return
        a(f"""s_memtime s[{sTmp2}:{sTmp2+1}]
        s_waitcnt lgkmcnt(0)
        s_cmp_eq_u32 s{sL}, 0
        s_cselect_b32 s{sTS+i}, s{sTmp2}, s{sTS+i}
        s_cselect_b32 s{sTS+i+1}, s{sTS+i+1}, s{sTmp2}""")

    def cnt(name):
        if not (cfg.diag and cfg.counters): return
        key = (g.role, name)
        if key not in g.cnts:
            i = g.ts; g.ts += 1; g.maxts = max(getattr(g, "maxts", 0), g.ts)
            assert i < NTS - 3, name
            g.cnts[key] = i; g.cnt_names.append((g.role, i, name))
        a(f"s_add_u32 s{sTS+g.cnts[key]}, s{sTS+g.cnts[key]}, 1")

    def setexec(mask):
        if mask == FULL: a("s_mov_b64 exec, -1")
        elif isinstance(mask, str): a(f"s_mov_b64 exec, {mask}")
        elif mask < 65 or mask in (0xFFFF, 0xF, 0xFF):
            a(f"s_mov_b64 exec, 0x{mask:x}" if mask >= 65 else f"s_mov_b64 exec, {mask}")
        else:
            a(f"s_mov_b32 exec_lo, 0x{mask & 0xFFFFFFFF:x}\ns_mov_b32 exec_hi, 0x{mask >> 32:x}")
    EM4, EM2, EMEV = f"s[{sM4}:{sM4+1}]", f"s[{sM2}:{sM2+1}]", f"s[{sMEV}:{sMEV+1}]"

    def srd(dst, ptr_s, size):
        a(f"s_mov_b32 s{dst}, s{ptr_s}\ns_and_b32 s{dst+1}, s{ptr_s+1}, 0xffff\ns_mov_b32 s{dst+2}, 0x{size:x}\ns_mov_b32 s{dst+3}, 0x20000")

    def mfma(d, A, B, C=None):
        f = lambda x: x if isinstance(x, str) else vr(x, 4)
        c = f(d) if C is None else C
        a(f"v_mfma_f32_16x16x32_bf16 {f(d)}, {f(A)}, {f(B)}, {c}")

    def spin_fail(lbl_retry, sleep=0):
        if sleep: a(f"s_sleep {sleep}")
        a(f"s_sub_u32 s{sBud}, s{sBud}, 1\ns_cbranch_scc0 {lbl_retry}\ns_branch L_abort")
    def interleave(mf, va, start, per=2):
        va = list(va)
        for i, m in enumerate(mf):
            a(m)
            if i >= start:
                for _ in range(per):
                    if va: a(va.pop(0))
        for v in va: a(v)
    def mf(d, A, B, C=None):
        f = lambda x: x if isinstance(x, str) else vr(x, 4)
        return f"v_mfma_f32_16x16x32_bf16 {f(d)}, {f(A)}, {f(B)}, {f(d) if C is None else C}"

    def sent_max(regs, tmp):
        rs = list(regs)
        if len(rs) == 1: return rs[0]
        if len(rs) == 2:
            a(f"v_max_u32 v{tmp}, v{rs[0]}, v{rs[1]}"); rs = []
        else:
            a(f"v_max3_u32 v{tmp}, v{rs[0]}, v{rs[1]}, v{rs[2]}"); rs = rs[3:]
        while len(rs) >= 2:
            a(f"v_max3_u32 v{tmp}, v{tmp}, v{rs[0]}, v{rs[1]}"); rs = rs[2:]
        if rs: a(f"v_max_u32 v{tmp}, v{tmp}, v{rs[0]}")
        return tmp
    def sent_check(regs, tmp, lbl_ok):
        cur = sent_max(regs, tmp)
        a(f"v_cmp_eq_u32 vcc, -1, v{cur}\ns_cbranch_vccz {lbl_ok}")

    g.ool = []
    def store_local(instr):
        if cfg.force_global:
            a(instr + " sc1"); return
        l1 = a.label("stg"); l2 = a.label("std")
        a(f"s_cmp_eq_u32 s{sLocal}, 0\ns_cbranch_scc1 {l1}")
        a(instr)
        a(f"{l2}:")
        g.ool.append(f"{l1}:\n{instr} sc1\ns_branch {l2}")

    def dpp(op, d, s0, s1, ctrl, rm="0xf", bm="0xf"):
        if s1 is None: a(f"{op}_dpp v{d}, v{s0} {ctrl} row_mask:{rm} bank_mask:{bm}")
        else: a(f"{op}_dpp v{d}, v{s0}, v{s1} {ctrl} row_mask:{rm} bank_mask:{bm}")
    def row_reduce(op, v, steps=(8, 4, 2, 1)):
        for n in steps: dpp(op, v, v, v, f"row_ror:{n}")
    def xquad_reduce(op, v, tmp):
        a(f"v_mov_b32 v{tmp}, v{v}\nv_permlane32_swap_b32 v{v}, v{tmp}\n{op} v{v}, v{v}, v{tmp}")
        a(f"v_mov_b32 v{tmp}, v{v}\nv_permlane16_swap_b32 v{v}, v{tmp}\n{op} v{v}, v{v}, v{tmp}")
    def sum4(dst, b, tmp):
        a(f"v_add_f32 v{dst}, v{b}, v{b+1}\nv_add_f32 v{tmp}, v{b+2}, v{b+3}\nv_add_f32 v{dst}, v{dst}, v{tmp}")

    P = sTS
    EARLY = ""
    if cfg.dbg_span:
        EARLY = f"s_memrealtime s[94:95]"
    if cfg.diag:
        EARLY = f"s_memrealtime s[{sTmp2}:{sTmp2+1}]\ns_waitcnt lgkmcnt(0)\ns_mov_b32 s91, s{sTmp2}\ns_memtime s[{sTmp2}:{sTmp2+1}]\ns_waitcnt lgkmcnt(0)\ns_mov_b32 s90, s{sTmp2}"
    SLN = " nt" if cfg.sl_nt else ""
    a(f"""
    s_cmp_ge_u32 s2, 256
    s_cbranch_scc1 L_end
    {EARLY}
    s_load_dwordx4 s[{P+6}:{P+9}], s[0:1], 16          ; V, wq     (76..79)
    s_load_dwordx4 s[{P+2}:{P+5}], s[0:1], 0           ; x, K      (72..75)
    s_load_dwordx2 s[{P+18}:{P+19}], s[0:1], 88        ; ws        (88..89)
    s_load_dwordx2 s[{P}:{P+1}], s[0:1], 32            ; wo        (70..71)
    s_load_dwordx4 s[{P+10}:{P+13}], s[0:1], 48
    s_load_dwordx4 s[{P+14}:{P+17}], s[0:1], 64
    v_lshrrev_b32 v{vT0}, 6, v0
    v_and_b32 v{vLane}, 63, v0
    """)
    if cfg.prefetch_code:
        a(f"""
        s_getpc_b64 s[{sTmp2}:{sTmp2+1}]
        L_pfbase:
        v_readfirstlane_b32 s{sW}, v{vT0}
        v_lshlrev_b32 v{vT1}, 7, v0
        s_mov_b32 s{sB}, (L_codeend - L_pfbase)
        v_cmp_gt_u32 vcc, s{sB}, v{vT1}
        s_and_b32 s{sJ}, s2, 7
        s_and_saveexec_b64 s[{sEx}:{sEx+1}], vcc
        s_cbranch_execz L_nopf
        global_load_dword v{vU+15}, v{vT1}, s[{sTmp2}:{sTmp2+1}]
        L_nopf:
        s_mov_b64 exec, s[{sEx}:{sEx+1}]
        """)
    else:
        a(f"s_and_b32 s{sJ}, s2, 7\nv_readfirstlane_b32 s{sW}, v{vT0}")
    a(f"""
    s_lshr_b32 s{sM}, s2, 3
    v_lshrrev_b32 v{vT2}, 1, v{vLane}
    v_lshlrev_b32 v{vT2}, 13, v{vT2}
    v_and_b32 v{vT3}, 1, v{vLane}
    v_lshl_add_u32 v{vT2}, v{vT3}, 4, v{vT2}
    v_lshrrev_b32 v{vT0}, {4 if "q" in cfg.sub2 else 3}, v{vLane}
    v_lshlrev_b32 v{vT0}, 13, v{vT0}
    v_and_b32 v{vT3}, {15 if "q" in cfg.sub2 else 7}, v{vLane}
    v_lshl_add_u32 v{vT0}, v{vT3}, {6 if "q" in cfg.sub2 else 7}, v{vT0}
    s_lshl_b32 s{sC}, s{sJ}, 10
    s_lshl_b32 s{sA}, s{sM}, 2
    s_add_u32 s{sA}, s{sA}, s{sW}
    s_lshl_b32 s{sA}, s{sA}, 15
    s_add_u32 s{sA}, s{sA}, s{sC}
    s_lshl_b32 s{sB}, s{sW}, 20
    s_add_u32 s{sB}, s{sB}, s{sC}
    s_lshl_b32 s{sC}, s{sM}, 5
    s_add_u32 s{sB}, s{sB}, s{sC}
    s_lshl_b32 s{sC}, s{sW}, 12
    s_add_u32 s{sC}, s{sC}, {L_WQ}
    s_mov_b32 s{sWQ+2}, 0x400000
    s_mov_b32 s{sWQ+3}, 0x20000
    s_waitcnt lgkmcnt(0)
    s_mov_b32 s{sWQ}, s{P+8}
    s_and_b32 s{sWQ+1}, s{P+9}, 0xffff
    """)
    if cfg.line_pf and "q" in cfg.pf_which:
        if "q" not in cfg.sub2: setexec(0xFFFFFFFF)
        a(f"buffer_load_dword v{vJ}, v{vT0}, {sr(sWQ,4)}, s{sA} offen{cfg.pf_pol}")
        if "q" not in cfg.sub2: setexec(FULL)
    for u in range(4):
        a(f"""
        s_mov_b32 m0, s{sC}
        s_add_u32 s{sC}, s{sC}, 1024
        buffer_load_dwordx4 v{vT2}, {sr(sWQ,4)}, s{sB} offen{SLN} lds
        s_add_u32 s{sB}, s{sB}, {32*8192}
        """)
    XA = vA + 8
    a(f"""
    v_and_b32 v{vR16}, 15, v0
    v_lshrrev_b32 v{vQd}, 4, v{vLane}
    s_and_b32 s{sIdx}, s{sM}, 15
    s_and_b32 s{sRot}, s{sM}, 7
    s_lshl_b32 s{sRot}, s{sRot}, 1
    s_lshr_b32 s{sB}, s{sM}, 4
    s_lshl_b32 s{sB}, s{sB}, 3
    s_add_u32 s{sB}, s{sB}, s{sJ}
    s_lshl_b32 s{sB}, s{sB}, 23
    s_lshl_b32 s{sC}, s{sIdx}, 16
    s_add_u32 s{sKV}, s{sB}, s{sC}
    s_add_u32 s{sKV}, s{sKV}, 0x700000
    v_lshlrev_b32 v{vT1}, 4, v{vLane}          ; lane*16
    """)
    srd(sKS, P + 4, 0x8000000)
    for i in range(4):
        a(f"""
        v_add_u32 v{vT3}, {4*i}, v{vQd}
        v_xor_b32 v{vT3}, v{vT3}, v{vR16}
        v_lshlrev_b32 v{vT3}, 4, v{vT3}
        v_lshl_add_u32 v{vKs+i}, v{vQd}, 8, v{vT3}
        """)
    srd(sWS, P + 18, WS_SIZE)
    if cfg.const_tag: a(f"s_mov_b32 s{sT}, 0x12345670")
    else: a(f"s_load_dword s{sT}, s[{P+18}:{P+19}], {WS_EPOCH}")
    srd(sX0, P + 2, 2048)
    a(f"s_cmp_eq_u32 s{sW}, 0\ns_cbranch_scc0 L_nox0")
    a(f"""
    s_mov_b32 m0, {L_X0}
    s_nop 0
    buffer_load_dwordx4 v{vT1}, {sr(sX0,4)}, 0 offen lds
    buffer_load_dwordx4 v{vT1}, {sr(sX0,4)}, 0 offen offset:1024 lds
    L_nox0:
    """)
    a(f"""
    s_mul_i32 s{sOown}, s{sJ}, {O_J}
    s_lshr_b32 s{sB}, s{sM}, 4
    s_lshl_b32 s{sB}, s{sB}, 14
    s_add_u32 s{sOown}, s{sOown}, s{sB}
    s_lshl_b32 s{sB}, s{sIdx}, 4
    s_add_u32 s{sOown}, s{sOown}, s{sB}
    s_add_u32 s{sOown}, s{sOown}, {WS_O}
    s_lshl_b32 s{sC}, s{sJ}, 11
    s_lshl_b32 s{sD}, s{sIdx}, 7
    s_add_u32 s{sC}, s{sC}, s{sD}
    s_add_u32 s{sXw}, s{sC}, {WS_X}
    s_mov_b32 s{sXr}, {WS_X}
    s_lshl_b32 s{sHb}, s{sJ}, 10
    s_add_u32 s{sHb}, s{sHb}, {WS_H}
    s_lshl_b32 s{sQ2w}, s{sJ}, 11
    s_add_u32 s{sQ2r}, s{sQ2w}, {WS_Q2}
    ; producer m: h = m>>3, c = (m>>1)&3, e0 = 2*(m&1)  ->  c*256 + e0*64 + h*16
    s_lshr_b32 s{sB}, s{sM}, 1
    s_and_b32 s{sB}, s{sB}, 3
    s_lshl_b32 s{sB}, s{sB}, 8
    s_add_u32 s{sQ2w}, s{sQ2r}, s{sB}
    s_and_b32 s{sB}, s{sM}, 1
    s_lshl_b32 s{sB}, s{sB}, 7
    s_add_u32 s{sQ2w}, s{sQ2w}, s{sB}
    s_lshr_b32 s{sB}, s{sM}, 3
    s_lshl_b32 s{sB}, s{sB}, 4
    s_add_u32 s{sQ2w}, s{sQ2w}, s{sB}
    s_lshr_b32 s{sB}, s{sM}, 4
    s_lshl_b32 s{sB}, s{sB}, 10
    s_add_u32 s{sQ2r}, s{sQ2r}, s{sB}
    """)
    if cfg.no_clear0: a("s_branch L_clr_done")
    a(f"""
    v_mov_b32 v{vU}, -1
    v_mov_b32 v{vU+1}, -1
    v_mov_b32 v{vU+2}, -1
    v_mov_b32 v{vU+3}, -1
    v_bfe_u32 v{vT3}, v{vLane}, 1, 1
    v_lshlrev_b32 v{vT3}, 10, v{vT3}
    v_and_b32 v{vT0}, 1, v{vLane}
    v_lshl_add_u32 v{vT3}, v{vT0}, 6, v{vT3}
    v_add_u32 v{vT0}, s{sQ2w}, v{vT3}
    s_cmp_lt_u32 s{sM}, 16
    s_cbranch_scc0 L_clr_B
    s_cmp_eq_u32 s{sW}, 1
    s_cbranch_scc0 L_clr_A2
    """)
    setexec(0xF)
    a(f"""
    s_branch L_clr_st
    L_clr_A2:
    s_cmp_eq_u32 s{sW}, 2
    s_cbranch_scc0 L_clr_done
    s_xor_b32 s{sC}, s{sXw}, 0x2000
    s_add_u32 s{sC}, s{sC}, 16384
    v_mov_b32 v{vT0}, s{sXw}
    v_mov_b32 v{vT1}, s{sC}
    v_bfe_u32 v{vT3}, v{vLane}, 3, 1
    v_cmp_eq_u32 vcc, 1, v{vT3}
    v_cndmask_b32 v{vT0}, v{vT0}, v{vT1}, vcc
    v_lshrrev_b32 v{vT3}, 4, v{vLane}
    v_lshlrev_b32 v{vT3}, 15, v{vT3}
    v_and_b32 v{vT1}, 7, v{vLane}
    v_lshl_add_u32 v{vT3}, v{vT1}, 4, v{vT3}
    v_add_u32 v{vT0}, v{vT0}, v{vT3}
    s_branch L_clr_st
    L_clr_B:
    s_cmp_eq_u32 s{sW}, 2
    s_cbranch_scc0 L_clr_done
    """)
    setexec(0xF)
    a(f"""
    s_cmp_ge_u32 s{sIdx}, 14
    s_cbranch_scc1 L_clr_st
    s_lshl_b32 s{sD}, s{sIdx}, 6
    s_add_u32 s{sC}, s{sHb}, s{sD}
    """)
    setexec(0xFF0)
    a(f"""
    v_bfe_u32 v{vT3}, v{vLane}, 3, 1
    v_lshlrev_b32 v{vT3}, 13, v{vT3}
    v_and_b32 v{vT1}, 3, v{vLane}
    v_lshl_add_u32 v{vT3}, v{vT1}, 4, v{vT3}
    v_add_u32 v{vT0}, s{sC}, v{vT3}
    """)
    setexec(0xFFF)
    a("L_clr_st:")
    a(f"buffer_store_dwordx4 {vr(vU,4)}, v{vT0}, {sr(sWS,4)}, 0 offen sc1")
    setexec(FULL)
    a("L_clr_done:")
    def emit_wpf(qWO, qGT, reload_ptrs):
        n = 0
        a(f"s_lshl_b32 s{sD}, s{sM}, 2\ns_add_u32 s{sD}, s{sD}, s{sW}               ; q = 4m + w")
        if reload_ptrs:
            a(f"""
            s_load_dwordx2 s[{qWO}:{qWO+1}], s[0:1], 32
            s_load_dwordx2 s[{qGT}:{qGT+1}], s[0:1], 48
            s_waitcnt lgkmcnt(0)
            s_and_b32 s{qWO+1}, s{qWO+1}, 0xffff
            s_mov_b32 s{qWO+2}, 0x400000
            s_and_b32 s{qGT+1}, s{qGT+1}, 0xffff
            s_mov_b32 s{qGT+2}, {512*1792*2}
            """)
        if "o" in cfg.pf_stream:
            a(f"""
            v_lshlrev_b32 v{vT0}, {6 if "o" in cfg.sub2 else 7}, v{vLane}
            s_lshl_b32 s{sB}, s{sJ}, 19
            s_lshl_b32 s{sC}, s{sD}, 12
            s_add_u32 s{sB}, s{sB}, s{sC}
            """)
            if "o" not in cfg.sub2: setexec(0xFFFFFFFF)
            a(f"buffer_load_dword v{vJ}, v{vT0}, {sr(qWO,4)}, s{sB} offen{cfg.pf_spol}")
            setexec(FULL); n += 1
        if "g" in cfg.pf_stream or "u" in cfg.pf_stream:
            a(f"""
            v_mul_u32_u24 v{vT0}, 52, v{vLane}
            v_lshrrev_b32 v{vT0}, 8, v{vT0}
            v_mul_u32_u24 v{vT1}, 5, v{vT0}
            v_sub_u32 v{vT1}, v{vLane}, v{vT1}
            v_mul_u32_u24 v{vT0}, 3584, v{vT0}
            v_lshl_add_u32 v{vT0}, v{vT1}, 7, v{vT0}
            s_mul_i32 s{sB}, s{sD}, {4*3584}
            s_mul_i32 s{sC}, s{sJ}, 448
            s_and_b32 s{sC}, s{sC}, 0xffffff80
            s_add_u32 s{sB}, s{sB}, s{sC}
            """)
            setexec((1 << 20) - 1)
            if "g" in cfg.pf_stream:
                a(f"buffer_load_dword v{vJ}, v{vT0}, {sr(qGT,4)}, s{sB} offen{cfg.pf_spol}"); n += 1
            if "u" in cfg.pf_stream:
                a(f"buffer_load_dword v{vJ}, v{vT0}, {sr(sUP,4)}, s{sB} offen{cfg.pf_spol}"); n += 1
            setexec(FULL)
        if "d" in cfg.pf_stream:
            a(f"""
            v_lshlrev_b32 v{vT0}, 7, v{vLane}
            s_min_u32 s{sB}, s{sD}, 111
            s_lshl_b32 s{sB}, s{sB}, 11
            s_mul_i32 s{sC}, s{sJ}, {224*1024}
            s_add_u32 s{sB}, s{sB}, s{sC}
            """)
            setexec(0xFFFF)
            a(f"buffer_load_dword v{vJ}, v{vT0}, {sr(sDN,4)}, s{sB} offen{cfg.pf_spol}")
            setexec(FULL); n += 1
        return n

    def page_off(t, dst):
        a(f"""
        s_add_u32 s{dst}, s{sW}, s{sRot}
        s_add_u32 s{dst}, s{dst}, {4*t}
        s_and_b32 s{dst}, s{dst}, 15
        s_lshl_b32 s{dst}, s{dst}, 12
        s_add_u32 s{dst}, s{dst}, s{sKV}
        """)
    def k_page(t):
        page_off(t, sD)
        a(f"s_lshl_b32 s{sC}, s{sW}, 14\ns_add_u32 s{sC}, s{sC}, {L_K + t*4096}\ns_mov_b32 m0, s{sC}\ns_nop 0")
        for ii in range(4):
            a(f"buffer_load_dwordx4 v{vKs+ii}, {sr(sKS,4)}, s{sD} offen offset:{ii*1024}{cfg.kv_pol} lds")
    nKpA = cfg.nKA // 4
    for t in range(cfg.nKb1): k_page(t)
    nPFe = 0
    if cfg.pf_stream and cfg.pf_early:
        srd(sVS, P, 0x400000)
        srd(sOUT, P + 10, 512 * 1792 * 2)
        srd(sUP, P + 12, 512 * 1792 * 2)
        srd(sDN, P + 14, 1792 * 512 * 2)
        nPFe = emit_wpf(sVS, sOUT, False)
    ts("start")
    if cfg.ts_issue: ts("issued")

    srd(sVS, P + 6, 0x8000000)
    srd(sUP, P + 12, 512 * 1792 * 2)
    srd(sDN, P + 14, 1792 * 512 * 2)
    srd(sOUT, P + 16, 2048)
    a(f"""
    s_cmp_lt_u32 s{sM}, 16
    s_cselect_b32 s{sW2}, s{P}, s{P+10}
    s_cselect_b32 s{sW2+1}, s{P+1}, s{P+11}
    s_mov_b32 s{sW2+2}, {512*1792*2}
    s_cselect_b32 s{sW2+2}, 0x400000, s{sW2+2}
    s_and_b32 s{sW2+1}, s{sW2+1}, 0xffff
    s_mov_b32 s{sW2+3}, 0x20000
    s_mov_b32 s{sBud}, {cfg.budget}
    s_getreg_b32 s{sXcc}, hwreg(HW_REG_XCC_ID, 0, 4)
    s_mov_b32 s{sMDIAG}, 0x00ff00ff
    s_mov_b32 s{sMDIAG+1}, 0xff00ff00
    s_mov_b32 s{sM4}, 0x000f000f
    s_mov_b32 s{sM4+1}, 0x000f000f
    s_mov_b32 s{sM2}, 0x00030003
    s_mov_b32 s{sM2+1}, 0x00030003
    s_mov_b32 s{sMN1}, 0x00020002
    s_mov_b32 s{sMN1+1}, 0x00020002
    s_mov_b32 s{sMEV}, 0x55555555
    s_mov_b32 s{sMEV+1}, 0x55555555
    s_mov_b32 s{sL}, 0
    s_mul_i32 s{sOcons}, s{sJ}, {O_J}
    s_lshl_b32 s{sB}, s{sW}, 12
    s_add_u32 s{sOcons}, s{sOcons}, s{sB}
    s_add_u32 s{sOcons}, s{sOcons}, {WS_O}
    """)
    for i in range(4): a(f"v_mov_b32 v{vOnes+i}, 0x3f803f80")
    for i in range(16): a(f"v_mov_b32 v{vQ+i}, 0")
    for i in range(8): a(f"v_mov_b32 v{vHop+i}, 0")
    a(f"v_mov_b32 v{vQ1a}, 0\nv_mov_b32 v{vQ1d}, 0\nv_mov_b32 v{vQ1d+1}, 0")
    h3 = vU; qh = vU + 1; ql = vU + 2
    a(f"""
    v_and_b32 v{h3}, 3, v{vR16}
    v_lshrrev_b32 v{qh}, 1, v{vQd}
    v_and_b32 v{ql}, 1, v{vQd}
    v_and_b32 v{vT0}, 7, v{vR16}
    v_lshlrev_b32 v{vT0}, 11, v{vT0}
    v_lshrrev_b32 v{vT1}, 3, v{vR16}
    v_lshl_add_u32 v{vT0}, v{vT1}, 6, v{vT0}
    v_lshl_add_u32 v{vaX}, v{vQd}, 4, v{vT0}
    s_lshr_b32 s{sA}, s{sXcc}, 2
    v_bfe_u32 v{vT1}, v{vaX}, 13, 1
    v_cmp_ne_u32 vcc, s{sA}, v{vT1}
    v_xor_b32 v{vT1}, 0x2000, v{vaX}
    v_add_u32 v{vT1}, 16384, v{vT1}
    v_cndmask_b32 v{vaX}, v{vaX}, v{vT1}, vcc
    v_lshrrev_b32 v{vT0}, 3, v{vLane}
    v_and_b32 v{vT1}, 2, v{vT0}
    v_and_b32 v{vT2}, 7, v{vLane}
    v_xor_b32 v{vT1}, v{vT1}, v{vT2}
    v_lshlrev_b32 v{vT1}, 4, v{vT1}
    v_lshl_add_u32 v{vT0}, v{vT0}, 11, v{vT1}
    s_lshl_b32 s{sB}, s{sW}, 9
    v_add_u32 v{vaXg}, s{sB}, v{vT0}
    v_bfe_u32 v{vT1}, v{vaXg}, 13, 1
    v_cmp_ne_u32 vcc, s{sA}, v{vT1}
    v_xor_b32 v{vT1}, 0x2000, v{vaXg}
    v_add_u32 v{vT1}, 16384, v{vT1}
    v_cndmask_b32 v{vaXg}, v{vaXg}, v{vT1}, vcc
    v_and_b32 v{vT0}, 7, v{vR16}
    v_lshrrev_b32 v{vT1}, 3, v{vR16}
    v_lshl_add_u32 v{vT1}, v{vT1}, 2, v{vQd}
    v_and_b32 v{vT2}, 2, v{vT0}
    v_xor_b32 v{vT1}, v{vT1}, v{vT2}
    v_lshlrev_b32 v{vT1}, 4, v{vT1}
    v_lshl_add_u32 v{vT0}, v{vT0}, 7, v{vT1}
    s_lshl_b32 s{sXI}, s{sW}, 12
    s_add_u32 s{sXI}, s{sXI}, {L_XI}
    v_add_u32 v{vaXr}, s{sXI}, v{vT0}
    v_lshlrev_b32 v{vaO0}, 4, v{vLane}
    v_add_u32 v{vaO1}, 16384, v{vaO0}
    v_lshl_add_u32 v{vT0}, v{vQd}, 2, v{vR16}
    v_and_b32 v{vT0}, 15, v{vT0}
    v_lshlrev_b32 v{vT0}, 4, v{vT0}
    s_mul_i32 s{sB}, s{sW}, 3840
    s_sub_u32 s{sB}, {O_STATS}, s{sB}
    v_add_u32 v{vaS0}, s{sB}, v{vT0}
    v_add_u32 v{vaS1}, 1024, v{vaS0}
    v_lshlrev_b32 v{vT0}, 6, v{vQd}
    v_lshl_add_u32 v{vaQ2}, v{h3}, 4, v{vT0}
    v_lshlrev_b32 v{vT0}, 10, v{ql}
    v_lshrrev_b32 v{vT1}, 3, v{vR16}
    v_lshl_add_u32 v{vT0}, v{vT1}, 6, v{vT0}
    v_and_b32 v{vT1}, 7, v{vR16}
    v_lshl_add_u32 v{vaStQ}, v{vT1}, 1, v{vT0}
    v_lshlrev_b32 v{vT0}, 12, v{h3}
    v_lshl_add_u32 v{vT0}, v{vQd}, 10, v{vT0}
    v_bfe_u32 v{vT1}, v{vLane}, 2, 2
    v_lshl_add_u32 v{vaClrO}, v{vT1}, 8, v{vT0}
    v_and_b32 v{vT0}, 1, v{vR16}
    v_lshlrev_b32 v{vT0}, 5, v{vT0}
    v_lshl_add_u32 v{vT0}, v{qh}, 6, v{vT0}
    v_lshl_add_u32 v{vT0}, v{ql}, 4, v{vT0}
    s_lshl_b32 s{sB}, s{sW}, 7
    v_add_u32 v{vaH}, s{sB}, v{vT0}
    v_lshlrev_b32 v{vT0}, 6, v{vQd}
    v_lshl_add_u32 v{vT0}, v{h3}, 4, v{vT0}
    v_add_u32 v{vaPr}, {L_PBUF}, v{vT0}
    v_lshrrev_b32 v{vT1}, 2, v{vR16}
    v_lshl_add_u32 v{vT1}, v{vT1}, 9, v{vaPr}
    s_lshr_b32 s{sB}, s{sW}, 1
    s_lshl_b32 s{sB}, s{sB}, 8
    s_and_b32 s{sC}, s{sW}, 1
    s_lshl_b32 s{sC}, s{sC}, 3
    s_add_u32 s{sB}, s{sB}, s{sC}
    v_add_u32 v{vaPw}, s{sB}, v{vT1}
    v_lshlrev_b32 v{vT0}, 4, v{h3}
    v_add_u32 v{vaSm}, {L_SMAX}, v{vT0}
    s_lshl_b32 s{sB}, s{sW}, 2
    v_add_u32 v{vaSmW}, s{sB}, v{vaSm}
    v_lshlrev_b32 v{vT0}, 4, v{vLane}
    v_add_u32 v{vaRedW}, s{sB}, v{vT0}
    v_and_b32 v{vT1}, 1, v{vR16}
    v_lshl_add_u32 v{vT1}, v{qh}, 1, v{vT1}
    v_lshlrev_b32 v{vT1}, 4, v{vT1}
    v_add_u32 v{vaRedZ}, s{sB}, v{vT1}
    v_lshl_add_u32 v{vT0}, v{ql}, 5, v{vR16}
    v_lshlrev_b32 v{vaFinW}, 4, v{vT0}
    v_lshlrev_b32 v{vaFinZ}, 5, v{ql}
    v_lshlrev_b32 v{vT0}, 9, v{ql}
    v_add_u32 v{vaFinQZ}, 256, v{vT0}
    v_lshlrev_b32 v{vaFinO}, 4, v{vLane}
    v_lshlrev_b32 v{vT0}, 5, v{ql}
    v_lshl_add_u32 v{vaStH}, v{vR16}, 1, v{vT0}
    v_lshlrev_b32 v{vT0}, 6, v{ql}
    v_lshl_add_u32 v{vT0}, v{qh}, 5, v{vT0}
    v_lshl_add_u32 v{vaStX}, v{vR16}, 1, v{vT0}
    v_lshlrev_b32 v{vT0}, 12, v{vR16}
    v_lshl_add_u32 v{vT0}, v{vQd}, 8, v{vT0}
    s_lshl_b32 s{sB}, s{sW}, 10
    v_add_u32 v{vaStO}, s{sB}, v{vT0}
    s_lshr_b32 s{sB}, s{sM}, 4
    s_mul_i32 s{sB}, s{sB}, 15360
    s_sub_u32 s{sB}, {O_STATS}, s{sB}
    v_lshlrev_b32 v{vT0}, 8, v{vLane}
    v_add_u32 v{vaStS}, s{sB}, v{vT0}
    """)
    a(f"s_lshl_b32 s{sB}, s{sW}, 14\ns_add_u32 s{sB}, s{sB}, {L_K}")
    for c in range(4):
        a(f"""
        v_add_u32 v{vT0}, {4*c}, v{vQd}
        v_xor_b32 v{vT0}, v{vT0}, v{vR16}
        v_lshlrev_b32 v{vT0}, 4, v{vT0}
        v_lshl_add_u32 v{vT0}, v{vR16}, 8, v{vT0}
        v_add_u32 v{vKr+c}, s{sB}, v{vT0}
        """)
    for e in range(2):
        a(f"""
        v_add_u32 v{vT1}, {4*e}, v{vQd}
        v_lshrrev_b32 v{vT2}, 1, v{vR16}
        v_xor_b32 v{vT1}, v{vT1}, v{vT2}
        v_lshlrev_b32 v{vT1}, 1, v{vT1}
        v_and_b32 v{vT2}, 1, v{vR16}
        v_or_b32 v{vT1}, v{vT1}, v{vT2}
        v_lshlrev_b32 v{vT1}, 4, v{vT1}
        v_lshl_add_u32 v{vVs+e}, v{vQd}, 8, v{vT1}
        """)
    for nt in range(2):
        a(f"""
        v_lshrrev_b32 v{vT1}, 2, v{vR16}
        v_lshl_add_u32 v{vT0}, v{vQd}, 2, v{vT1}
        v_and_b32 v{vT2}, 7, v{vT0}
        s_lshl_b32 s{sB}, s{sW}, 1
        s_add_u32 s{sB}, s{sB}, {nt}
        v_xor_b32 v{vT2}, s{sB}, v{vT2}
        v_lshlrev_b32 v{vT2}, 5, v{vT2}
        v_lshl_add_u32 v{vT0}, v{vT0}, 8, v{vT2}
        v_lshl_add_u32 v{vT0}, v{h3}, 3, v{vT0}
        v_add_u32 v{vVr+nt}, {L_V}, v{vT0}
        """)
    for i in range(16): a(f"v_mov_b32 v{XA+i}, 0")
    if cfg.w_inter:
        a(f"""
        s_cmp_lt_u32 s{sM}, 16
        s_cbranch_scc0 L_wsB
        v_lshrrev_b32 v{vT0}, 2, v{vLane}
        v_lshlrev_b32 v{vT0}, 10, v{vT0}
        v_and_b32 v{vT1}, 3, v{vLane}
        v_lshl_add_u32 v{vWs}, v{vT1}, 4, v{vT0}
        s_lshl_b32 s{sWb}, s{sJ}, 19
        s_lshl_b32 s{sC}, s{sW}, 17
        s_add_u32 s{sWb}, s{sWb}, s{sC}
        s_lshl_b32 s{sC}, s{sIdx}, 6
        s_add_u32 s{sWb}, s{sWb}, s{sC}
        s_mov_b32 s{sWst}, 16384
        s_mov_b32 s{sUP}, s{sW2}
        s_mov_b32 s{sUP+1}, s{sW2+1}
        s_mov_b32 s{sUP+2}, s{sW2+2}
        s_branch L_wsD
        L_wsB:
        v_lshrrev_b32 v{vT0}, 1, v{vLane}
        v_mul_u32_u24 v{vT0}, 3584, v{vT0}
        v_and_b32 v{vT1}, 1, v{vLane}
        v_lshl_add_u32 v{vWs}, v{vT1}, 4, v{vT0}
        s_mul_i32 s{sWb}, s{sW}, {128*3584}
        s_mul_i32 s{sC}, s{sJ}, 448
        s_add_u32 s{sWb}, s{sWb}, s{sC}
        s_lshl_b32 s{sC}, s{sIdx}, 5
        s_add_u32 s{sWb}, s{sWb}, s{sC}
        s_mov_b32 s{sWst}, {32*3584}
        L_wsD:
        """)
    ts("setup")
    a(f"s_waitcnt vmcnt({4*cfg.nKb1 + nPFe})")
    ts("wq_landed")
    for t in range(cfg.nKb1, nKpA): k_page(t)

    def tr_base(dst, rowbytes, rowmul, sadd, const):
        sh = rowbytes.bit_length() - 1; rm = rowmul.bit_length() - 1
        a(f"""
        v_lshrrev_b32 v{vT1}, 2, v{vR16}
        v_lshl_add_u32 v{vT1}, v{vQd}, {rm}, v{vT1}
        v_lshlrev_b32 v{vT1}, {sh}, v{vT1}
        v_and_b32 v{vT2}, 3, v{vR16}
        v_lshl_add_u32 v{vT1}, v{vT2}, 3, v{vT1}
        v_add_u32 v{vT1}, s{sadd}, v{vT1}
        v_add_u32 v{dst}, {const}, v{vT1}
        """)

    def ln_stats(s1, s2, mean, rstd):
        a(f"""
        v_mul_f32 v{mean}, {f2u(1.0/512):#x}, v{s1}
        v_mul_f32 v{s2}, {f2u(1.0/512):#x}, v{s2}
        v_fma_f32 v{s2}, -v{mean}, v{mean}, v{s2}
        v_max_f32 v{s2}, 0, v{s2}
        v_add_f32 v{s2}, {f2u(1e-5):#x}, v{s2}
        v_rsq_f32 v{rstd}, v{s2}
        """)
    def sum4r(b):
        a(f"v_add_f32 v{b}, v{b}, v{b+1}\nv_add_f32 v{b+2}, v{b+2}, v{b+3}\nv_add_f32 v{b}, v{b}, v{b+2}")

    def stats_valu(z):
        L = [f"v_add_f32 v{z}, v{vAcc+8}, v{vAcc+9}", f"v_add_f32 v{vT3}, v{vAcc+10}, v{vAcc+11}", f"v_add_f32 v{z}, v{z}, v{vT3}",
             f"v_cndmask_b32 v{z}, 0, v{z}, s[{sMDIAG}:{sMDIAG+1}]"]
        for n in (8, 4, 2, 1):
            L.append(f"v_add_f32_dpp v{z}, v{z}, v{z} row_ror:{n} row_mask:0xf bank_mask:0xf")
        L += [f"v_add_f32 v{z+1}, v{vAcc+12}, v{vAcc+13}", f"v_add_f32 v{vT3}, v{vAcc+14}, v{vAcc+15}", f"v_add_f32 v{z+1}, v{z+1}, v{vT3}",
              f"v_cndmask_b32 v{z}, v{z+1}, v{z}, s[{sMN1}:{sMN1+1}]"]
        return L
    def stats_mf(X):
        return [mf(vAcc + 8, X + 4*u, X + 4*u, "0" if u == 0 else None) for u in range(4)] + \
               [mf(vAcc + 12, X + 4*u, vOnes, "0" if u == 0 else None) for u in range(4)]

    def q_core(X):
        M = stats_mf(X) + [mf(vAcc, X + 4*u, ar(aWq + 4*u, 4), "0" if u == 0 else None) for u in range(4)]
        interleave(M, stats_valu(vU), 8, 2)
        sum4(vU + 2, vAcc, vT3)
        a(f"""
        v_permlane16_swap_b32 v{vU+2}, v{vU}
        v_add_f32 v{vU}, v{vU}, v{vU+2}
        ds_write_b32 v{vaRedW}, v{vU} offset:{R_Q}
        s_waitcnt lgkmcnt(0)
        s_barrier
        """)
    def q_final(first):
        lab = a.label("qf")
        a(f"s_cmp_eq_u32 s{sW}, 0\ns_cbranch_scc0 {lab}")
        setexec(0xFFFFFFFF)
        a(f"""
        ds_read_b128 {vr(vU,4)}, v{vaFinW} offset:{R_Q}
        ds_read_b128 {vr(vU+4,4)}, v{vaFinQZ} offset:{R_Q}
        ds_read_b128 {vr(vU+8,4)}, v{vaFinQZ} offset:{R_Q+16}
        """)
        if first:
            a(f"ds_read_b128 {vr(vU+12,4)}, v{vaFinW} offset:{R_COL}")
        a("s_waitcnt lgkmcnt(0)")
        if first:
            sum4r(vU + 12); a(f"v_mov_b32 v{vCs}, v{vU+12}")
        sum4r(vU + 4); sum4r(vU + 8); sum4r(vU)
        ln_stats(vU + 4, vU + 8, vU + 5, vU + 6)
        a(f"""
        v_fma_f32 v{vU}, -v{vU+5}, v{vCs}, v{vU}
        v_mul_f32 v{vU}, v{vU}, v{vU+6}
        """)
        dpp("v_mov_b32", vU + 1, vU, None, "quad_perm:[1,0,3,2]")
        a(f"v_cvt_pk_bf16_f32 v{vU+2}, v{vU}, v{vU+1}")
        if first:
            a(f"""
            v_mov_b32 v{vQ1d}, v{vU+2}
            v_mov_b32 v{vQ1d+1}, s{sTX}
            s_lshl_b32 s{sB}, s{sJ}, 12
            s_lshl_b32 s{sC}, s{sM}, 7
            s_add_u32 s{sB}, s{sB}, s{sC}
            s_add_u32 s{sB}, s{sB}, {WS_Q1}
            v_lshlrev_b32 v{vT0}, 1, v{vaStH}
            v_add_u32 v{vQ1a}, s{sB}, v{vT0}
            """)
            setexec(0x55555555)
            a(f"buffer_store_dwordx2 {vr(vQ1d,2)}, v{vQ1a}, {sr(sWS,4)}, 0 offen" + (" sc1" if cfg.force_global else ""))
        else:
            a(f"v_min_u32 v{vU+2}, 0xfffffffe, v{vU+2}")
            setexec(0x55555555)
            store_local(f"buffer_store_dword v{vU+2}, v{vaStQ}, {sr(sWS,4)}, s{sQ2w} offen")
        setexec(FULL)
        a(f"{lab}:")

    def s_qk_max():
        for c in range(4):
            for t in range(4):
                mfma(vS + 4*t, ar(aK + 16*t + 4*c, 4), vQ + 4*c, "0" if c == 0 else None)
        for t in range(1, 4):
            for r in range(4):
                dpp("v_mov_b32", vS + r, vS + 4*t + r, None, f"row_shr:{4*t}", bm=f"0x{1<<t:x}")
        a(f"v_max3_f32 v{vU}, v{vS}, v{vS+1}, v{vS+2}\nv_max_f32 v{vU}, v{vU}, v{vS+3}")
        row_reduce("v_max_f32", vU, (8, 4))
        xquad_reduce("v_max_f32", vU, vT0)
        setexec(0xF)
        a(f"ds_write_b32 v{vaSmW}, v{vU}")
        setexec(FULL)
        a("s_waitcnt lgkmcnt(0)\ns_barrier")
    def s_exp_p():
        a(f"""
        ds_read_b128 {vr(vU+4,4)}, v{vaSm}
        s_mov_b32 s{sB}, {f2u(C_SCALE):#x}
        s_waitcnt lgkmcnt(0)
        v_max3_f32 v{vU}, v{vU+4}, v{vU+5}, v{vU+6}
        v_max_f32 v{vU}, v{vU}, v{vU+7}
        v_mul_f32 v{vMc}, s{sB}, v{vU}
        """)
        for i in range(4): a(f"v_fma_f32 v{vS+i}, v{vS+i}, s{sB}, -v{vMc}")
        for i in range(4): a(f"v_exp_f32 v{vS+i}, v{vS+i}")
        a(f"""
        v_cvt_pk_bf16_f32 v{vU+2}, v{vS}, v{vS+1}
        v_cvt_pk_bf16_f32 v{vU+3}, v{vS+2}, v{vS+3}
        ds_write_b64 v{vaPw}, {vr(vU+2,2)}
        v_add_f32 v{vU}, v{vS}, v{vS+1}
        v_add_f32 v{vU+1}, v{vS+2}, v{vS+3}
        v_add_f32 v{vU}, v{vU}, v{vU+1}
        """)
        row_reduce("v_add_f32", vU, (8, 4))
        xquad_reduce("v_add_f32", vU, vT0)
        setexec(0xF)
        a(f"ds_write_b32 v{vaSmW}, v{vU} offset:{L_LSUM-L_SMAX}")
        setexec(FULL)
        a("s_waitcnt lgkmcnt(0)\ns_barrier")
        for blk in range(8):
            a(f"ds_read_b128 {vr(vP+4*blk,4)}, v{vaPr} offset:{blk*256}")
    def s_stats_prep():
        lab = a.label("st")
        a(f"s_cmp_eq_u32 s{sW}, 3\ns_cbranch_scc0 {lab}")
        a(f"""
        ds_read_b128 {vr(vU+4,4)}, v{vaSm} offset:{L_LSUM-L_SMAX}
        s_add_u32 s{sB}, s{sT}, s{sL}
        s_add_u32 s{sB}, s{sB}, 1
        v_mov_b32 v{vMc+2}, s{sB}
        s_waitcnt lgkmcnt(0)
        """)
        sum4r(vU + 4)
        a(f"v_mov_b32 v{vMc+1}, v{vU+4}")
        a(f"{lab}:")
    def s_stats_store(wait):
        lab = a.label("ss")
        a(f"s_cmp_eq_u32 s{sW}, 3\ns_cbranch_scc0 {lab}")
        if wait is not None: a(f"s_waitcnt vmcnt({wait})")
        setexec(0xF)
        store_local(f"buffer_store_dwordx4 {vr(vMc,4)}, v{vaStS}, {sr(sWS,4)}, s{sOown} offen")
        setexec(FULL)
        a(f"{lab}:")
    accO = vAcc
    def v_tr(blk):
        t, p = blk >> 1, blk & 1
        for nt in range(2):
            a(f"ds_read_b64_tr_b16 {ar(aV+8*blk+4*nt,2)}, v{vVr+nt} offset:{(4*t+2*p)*4096}")
            a(f"ds_read_b64_tr_b16 {ar(aV+8*blk+4*nt+2,2)}, v{vVr+nt} offset:{(4*t+2*p+1)*4096}")
    def pv(blks, first):
        for blk in blks:
            for nt in range(2):
                mfma(accO + 4*nt, ar(aV + 8*blk + 4*nt, 4), vP + 4*blk, "0" if (first and blk == blks[0]) else None)
    def s_out():
        for i in range(4):
            a(f"v_cvt_pk_bf16_f32 v{vU+i}, v{accO+2*i}, v{accO+2*i+1}")
        for i in range(4):
            a(f"v_min_u32 v{vU+i}, 0xfffffffe, v{vU+i}")
        setexec(EM4)
        store_local(f"buffer_store_dwordx4 {vr(vU,4)}, v{vaStO}, {sr(sWS,4)}, s{sOown} offen")
        setexec(FULL)

    a(f"s_lshl_b32 s{sB}, s{sW}, 12")
    tr_base(vT0, 32, 8, sB, L_WQ)
    for u in range(4):
        a(f"ds_read_b64_tr_b16 {ar(aWq+4*u,2)}, v{vT0} offset:{u*1024}")
        a(f"ds_read_b64_tr_b16 {ar(aWq+4*u+2,2)}, v{vT0} offset:{u*1024+128}")
    a(f"""
    v_lshrrev_b32 v{vT0}, 3, v{vR16}
    v_lshlrev_b32 v{vT0}, 10, v{vT0}
    v_lshl_add_u32 v{vT0}, v{vQd}, 4, v{vT0}
    s_lshl_b32 s{sB}, s{sW}, 8
    v_add_u32 v{vT0}, s{sB}, v{vT0}
    s_barrier
    """)
    setexec(0x0101010101010101)
    for u in range(4):
        a(f"ds_read_b128 {vr(XA+4*u,4)}, v{vT0} offset:{L_X0+u*64}")
    setexec(FULL)
    a(f"""
    s_waitcnt lgkmcnt(0)
    s_add_u32 s{sT}, s{sT}, 0x9e3779b0
    s_and_b32 s{sT}, s{sT}, 0xfffffff0
    s_or_b32 s{sTX}, s{sT}, s{sXcc}
    """)
    for u in range(4): mfma(vS, vOnes, ar(aWq + 4*u, 4), "0" if u == 0 else None)
    a(f"ds_write_b32 v{vaRedW}, v{vS} offset:{R_COL}")
    q_core(XA)
    q_final(True)
    a("s_barrier")
    ts("q1_pub")

    def v_group(t):
        page_off(t, sD)
        a(f"s_lshl_b32 s{sC}, s{sW}, 12\ns_add_u32 s{sC}, s{sC}, {L_V + t*16384}\ns_mov_b32 m0, s{sC}\ns_nop 0")
        for ii in range(4):
            a(f"buffer_load_dwordx4 v{vVs+(ii&1)}, {sr(sVS,4)}, s{sD} offen offset:{ii*1024}{cfg.kv_pol} lds")
    def pace(): a(f"s_waitcnt vmcnt({cfg.pace})")
    def w_part(part, lo, hi):
        if not cfg.w_inter: return
        lab = a.label("wp")
        lim = 30
        if (part == 0 and "g" not in cfg.w_interB) or (part == 1 and "u" not in cfg.w_interB): lim = 16
        a(f"s_cmp_ge_u32 s{sM}, {lim}\ns_cbranch_scc1 {lab}")
        for u in range(lo, hi):
            if part == 0:
                a(f"s_mul_i32 s{sB}, s{sWst}, {u}\ns_add_u32 s{sB}, s{sB}, s{sWb}")
                a(f"s_lshl_b32 s{sC}, s{sW}, 12\ns_add_u32 s{sC}, s{sC}, {L_WQ + u*1024}")
            else:
                a(f"s_cmp_lt_u32 s{sM}, 16\ns_cselect_b32 s{sB}, {4+u}, {u}\ns_mul_i32 s{sB}, s{sB}, s{sWst}\ns_add_u32 s{sB}, s{sB}, s{sWb}")
                a(f"s_lshl_b32 s{sC}, s{sW}, 14\ns_add_u32 s{sC}, s{sC}, {L_K + u*1024}")
            a(f"s_mov_b32 m0, s{sC}\ns_nop 0")
            a(f"buffer_load_dwordx4 v{vWs}, {sr(sW2 if part == 0 else sUP,4)}, s{sB} offen{SLN} lds")
        a(f"{lab}:")
    for t in range(nKpA, 4):
        pace()
        if t == 3: w_part(0, 0, 4)
        k_page(t)
    a(f"""
    v_lshrrev_b32 v{vT0}, 2, v{vLane}
    v_lshlrev_b32 v{vT0}, 7, v{vT0}
    v_and_b32 v{vT1}, 3, v{vLane}
    v_lshl_add_u32 v{vKs}, v{vT1}, 4, v{vT0}        ; (vKs is free once K is issued)
    s_lshl_b32 s{sA}, s{sJ}, 12
    s_lshr_b32 s{sB}, s{sM}, 4
    s_lshl_b32 s{sB}, s{sB}, 6
    s_add_u32 s{sA}, s{sA}, s{sB}
    s_add_u32 s{sA}, s{sA}, {WS_Q1}
    v_and_b32 v{vT0}, 3, v{vR16}
    v_lshlrev_b32 v{vT0}, 9, v{vT0}
    v_lshrrev_b32 v{vT1}, 1, v{vQd}
    v_lshl_add_u32 v{vT0}, v{vT1}, 6, v{vT0}
    v_and_b32 v{vT1}, 1, v{vQd}
    v_lshl_add_u32 v{vKs+1}, v{vT1}, 5, v{vT0}
    v_lshlrev_b32 v{vKs+2}, 5, v{vLane}
    """)
    def q1_dma(img):
        a(f"""
        s_mov_b32 m0, {L_QG + img*2048}
        s_add_u32 s{sB}, s{sA}, 2048
        buffer_load_dwordx4 v{vKs}, {sr(sWS,4)}, s{sA} offen sc1 lds
        s_mov_b32 m0, {L_QG + img*2048 + 1024}
        s_nop 0
        buffer_load_dwordx4 v{vKs}, {sr(sWS,4)}, s{sB} offen sc1 lds
        """)
    def w0(fn):
        lab = a.label("w0")
        a(f"s_cmp_eq_u32 s{sW}, 0\ns_cbranch_scc0 {lab}")
        fn()
        a(f"{lab}:")
    def q1_dup():
        setexec(0x55555555)
        a(f"buffer_store_dwordx2 {vr(vQ1d,2)}, v{vQ1a}, {sr(sWS,4)}, 0 offen sc1")
        setexec(FULL)
    g.q1_dup = lambda: w0(q1_dup)
    pace()
    if cfg.pf_stream and cfg.pf_pos == 0: emit_wpf(sKS2, sWQ, True)
    v_group(0)
    a("s_waitcnt vmcnt(4)")
    for t in range(4):
        for c in range(4):
            a(f"ds_read_b128 {ar(aK+16*t+4*c,4)}, v{vKr+c} offset:{t*4096}")
    ts("k_landed")
    w0(lambda: q1_dma(0))
    if cfg.pf_stream and cfg.pf_pos == 1: emit_wpf(sKS, sWQ, True)
    v_group(1)
    a("s_waitcnt vmcnt(4)")
    ts("v0_landed")
    if cfg.pf_stream and cfg.pf_pos == 2: emit_wpf(sKS, sWQ, True)
    if cfg.w_inter:
        a("s_waitcnt lgkmcnt(0)")
        w_part(1, 0, 2)
    def warm_stats0():
        if cfg.warm:
            lab = a.label("ws")
            a(f"s_cmp_lt_u32 s{sM}, 16\ns_cbranch_scc0 {lab}")
            a(f"buffer_load_dword v{vJ}, v{vaS0}, {sr(sWS,4)}, s{sOcons} offen sc1")
            a(f"buffer_load_dword v{vJ}, v{vaS1}, {sr(sWS,4)}, s{sOcons} offen sc1")
            a(f"{lab}:")
    if cfg.v3_early: warm_stats0()
    v_group(2)
    if cfg.v3_early:
        assert not cfg.w_inter
        v_group(3)
    def _o0():
        lab = a.label("c0")
        a(f"""
        s_cmp_eq_u32 s{sW}, 3
        s_cbranch_scc0 {lab}
        v_mov_b32 v{vU+8}, -1
        v_mov_b32 v{vU+9}, -1
        v_mov_b32 v{vU+10}, -1
        v_mov_b32 v{vU+11}, -1
        """)
        store_local(f"buffer_store_dwordx4 {vr(vU+8,4)}, v{vaClrO}, {sr(sWS,4)}, s{sOown} offen")
        a(f"{lab}:")
    g.o0_clear_hook = _o0
    vG = vA
    def q1_tags(img):
        a(f"""
        ds_read_b128 {vr(vG,4)}, v{vKs+2} offset:{L_QG + img*2048}
        ds_read_b128 {vr(vG+4,4)}, v{vKs+2} offset:{L_QG + img*2048 + 16}
        s_waitcnt lgkmcnt(0)
        v_xor_b32 v{vT1}, s{sTX}, v{vG+1}
        v_xor_b32 v{vT2}, s{sTX}, v{vG+3}
        v_xor_b32 v{vT3}, s{sTX}, v{vG+5}
        v_xor_b32 v{vT0}, s{sTX}, v{vG+7}
        v_or3_b32 v{vT1}, v{vT1}, v{vT2}, v{vT3}
        v_or_b32 v{vT1}, v{vT1}, v{vT0}
        v_cmp_lt_u32 vcc, 15, v{vT1}
        """)
    a("s_barrier")
    q1_tags(0)
    a(f"s_mov_b32 s{sC}, {L_QG}\ns_cbranch_vccz L_q1ok")
    cnt("g0fail")
    w0(lambda: (q1_dma(1), a("s_waitcnt vmcnt(0)")))
    a("s_barrier")
    q1_tags(1)
    a(f"s_mov_b32 s{sC}, {L_QG + 2048}\ns_cbranch_vccz L_q1ok")
    a("L_q1retry:")
    cnt("g1fail")
    a(f"s_sub_u32 s{sBud}, s{sBud}, 1\ns_cbranch_scc1 L_abort\ns_barrier")
    w0(lambda: (q1_dup(), q1_dma(0), a("s_waitcnt vmcnt(0)")))
    a("s_barrier")
    q1_tags(0)
    a(f"s_mov_b32 s{sC}, {L_QG}\ns_cbranch_vccnz L_q1retry")
    a("L_q1ok:")
    a(f"""
    v_cmp_ne_u32 vcc, 0, v{vT1}
    v_add_u32 v{vT0}, s{sC}, v{vKs+1}
    s_cmp_eq_u64 vcc, 0
    s_cselect_b32 s{sLocal}, 1, 0
    """)
    if cfg.v3_early: g.o0_clear_hook()
    setexec(EM4)
    for c in range(4):
        a(f"ds_read2_b32 {vr(vQ+4*c,2)}, v{vT0} offset0:{c*32} offset1:{c*32+2}")
        a(f"ds_read2_b32 {vr(vQ+4*c+2,2)}, v{vT0} offset0:{c*32+4} offset1:{c*32+6}")
    setexec(FULL)
    lab = a.label("nl")
    a(f"s_cmp_eq_u32 s{sLocal}, 0\ns_cbranch_scc0 {lab}")
    g.q1_dup()
    a(f"{lab}:")
    a("s_waitcnt lgkmcnt(0)")
    ts("q1_got")
    s_qk_max()
    ts("s1_max")
    def o0_clear():
        lab = a.label("c0")
        a(f"""
        s_cmp_eq_u32 s{sW}, 3
        s_cbranch_scc0 {lab}
        v_mov_b32 v{vU+8}, -1
        v_mov_b32 v{vU+9}, -1
        v_mov_b32 v{vU+10}, -1
        v_mov_b32 v{vU+11}, -1
        """)
        store_local(f"buffer_store_dwordx4 {vr(vU+8,4)}, v{vaClrO}, {sr(sWS,4)}, s{sOown} offen")
        a(f"{lab}:")
    if not cfg.v3_early:
        a("s_waitcnt vmcnt(4)")
        o0_clear()
        warm_stats0()
        w_part(1, 2, 4)
        v_group(3)
    else:
        a("s_waitcnt vmcnt(8)")
    nPF = emit_wpf(sKS, sWQ, True) if (cfg.pf_stream and not cfg.pf_early and cfg.pf_pos is None) else 0

    def s1_tail(nW=0, maybe_none=False):
        def wait_v(base):
            if nW and maybe_none:
                l1 = a.label("wv"); l2 = a.label("wv")
                a(f"s_cmp_ge_u32 s{sIdx}, 14\ns_cbranch_scc1 {l1}\ns_waitcnt vmcnt({base + nW})\ns_branch {l2}\n{l1}:\ns_waitcnt vmcnt({base})\n{l2}:")
            else:
                a(f"s_waitcnt vmcnt({base + nW})")
        s_exp_p()
        s_stats_prep()
        blks = [0, 1, 2, 3]
        for blk in blks: v_tr(blk)
        a("s_waitcnt lgkmcnt(0)")
        pv(blks, True)
        for t in (2, 3):
            if t == 3 and cfg.v3_early:
                l3 = a.label("v3"); l4 = a.label("v4")
                a(f"s_cmp_eq_u32 s{sW}, 3\ns_cbranch_scc1 {l3}\ns_waitcnt vmcnt({nW})\ns_branch {l4}\n{l3}:\ns_waitcnt vmcnt({nW + 1})\n{l4}:")
            else:
                wait_v(4*(3-t))
            a("s_barrier")
            if t == 3: ts("v_landed")
            blks = [2*t, 2*t + 1]
            for blk in blks: v_tr(blk)
            a("s_waitcnt lgkmcnt(0)")
            pv(blks, False)
        s_out()
        s_stats_store(1 if cfg.v3_early else None)
        lab = a.label("c1")
        a(f"""
        s_cmp_eq_u32 s{sW}, 0
        s_cbranch_scc0 {lab}
        v_mov_b32 v{vU+8}, -1
        v_mov_b32 v{vU+9}, -1
        v_mov_b32 v{vU+10}, -1
        v_mov_b32 v{vU+11}, -1
        s_add_u32 s{sB}, s{sOown}, {O_L}
        """)
        store_local(f"buffer_store_dwordx4 {vr(vU+8,4)}, v{vaClrO}, {sr(sWS,4)}, s{sB} offen")
        q1_dup()
        a(f"{lab}:")
        ts("s1_pub")

    def x_poll(sbase, dst, sleep):
        l = a.label("xp"); ok = a.label("xok")
        if cfg.sleep_x0: a(f"s_sleep {cfg.sleep_x0}")
        a(f"{l}:")
        cnt("n_x")
        for u in range(4):
            if u == 0: a(f"s_mov_b32 m0, s{sXI}\ns_nop 0")
            else: a(f"s_add_u32 s{sB}, s{sXI}, {u*(1024-128)}\ns_mov_b32 m0, s{sB}\ns_nop 0")
            a(f"buffer_load_dwordx4 v{vaXg}, {sr(sWS,4)}, s{sbase} offen offset:{u*128} sc1 lds")
        a("s_waitcnt vmcnt(0)")
        for u in range(4):
            a(f"ds_read_b128 {vr(dst+4*u,4)}, v{vaXr} offset:{u*1024}")
        a("s_waitcnt lgkmcnt(0)")
        sent_check([dst+i for i in range(16)], vT0, ok)
        spin_fail(l, sleep)
        a(f"{ok}:")

    def warm_q2():
        if not cfg.warm: return
        a(f"s_lshl_b32 s{sB}, s{sJ}, 11\ns_add_u32 s{sB}, s{sB}, {WS_Q2}\nv_lshlrev_b32 v{vT0}, 7, v{vLane}")
        setexec(0xFFFF)
        a(f"buffer_load_dword v{vJ}, v{vT0}, {sr(sWS,4)}, s{sB} offen sc1")
        setexec(FULL)
    def warm_o(dl, data=True):
        if not cfg.warm: return
        a(f"s_add_u32 s{sB}, s{sOcons}, {dl*O_L}")
        if data:
            a(f"""
            v_and_b32 v{vT0}, 31, v{vLane}
            v_lshlrev_b32 v{vT0}, 7, v{vT0}
            v_lshrrev_b32 v{vT1}, 5, v{vLane}
            v_lshl_add_u32 v{vT0}, v{vT1}, 14, v{vT0}
            buffer_load_dword v{vJ}, v{vT0}, {sr(sWS,4)}, s{sB} offen sc1
            """)
        a(f"buffer_load_dword v{vJ}, v{vaS0}, {sr(sWS,4)}, s{sB} offen sc1")
        a(f"buffer_load_dword v{vJ}, v{vaS1}, {sr(sWS,4)}, s{sB} offen sc1")

    def tag_check_all():
        l = a.label("tc"); ok = a.label("tcok")
        a(f"""
        s_lshl_b32 s{sB}, s{sW}, 13
        s_add_u32 s{sB}, s{sB}, {WS_Q1+4}
        v_lshlrev_b32 v{vT0}, 7, v{vLane}
        {l}:
        buffer_load_dword v{vT1}, v{vT0}, {sr(sWS,4)}, s{sB} offen sc1
        s_waitcnt vmcnt(0)
        v_xor_b32 v{vT1}, s{sT}, v{vT1}
        v_cmp_lt_u32 vcc, 15, v{vT1}
        s_cbranch_vccz {ok}
        """)
        spin_fail(l, 2)
        a(f"{ok}:")

    def line_final(red):
        if cfg.doorbell and cfg.db_early:
            a(f"v_mov_b32 v{vT0}, 0\nv_mov_b32 v{vT1}, s{sDBtag}\ns_mov_b64 exec, 1")
            store_local(f"buffer_store_dword v{vT1}, v{vT0}, {sr(sWS,4)}, s{sDBw} offen")
            a("s_mov_b64 exec, -1")
        a(f"""
        ds_read_b128 {vr(vU,4)}, v{vaFinO} offset:{red}
        v_mov_b32 v{vT0}, 0
        v_mov_b32 v{vT1}, s{sDBtag}
        s_waitcnt lgkmcnt(0)
        v_add_f32 v{vU}, v{vU}, v{vU+1}
        v_add_f32 v{vU+2}, v{vU+2}, v{vU+3}
        v_add_f32 v{vU}, v{vU}, v{vResF}
        v_add_f32 v{vResF}, v{vU}, v{vU+2}
        """)
        dpp("v_mov_b32", vU + 1, vResF, None, "quad_perm:[1,0,3,2]")
        a(f"v_cvt_pk_bf16_f32 v{vU}, v{vResF}, v{vU+1}\nv_min_u32 v{vU}, 0xfffffffe, v{vU}")
        if cfg.doorbell and not cfg.db_early:
            a("s_mov_b64 exec, 1")
            store_local(f"buffer_store_dword v{vT1}, v{vT0}, {sr(sWS,4)}, s{sDBw} offen")
        a(f"s_xor_b32 s{sB}, s{sXw}, 0x2000\ns_add_u32 s{sB}, s{sB}, 16384")
        setexec(EMEV)
        a(f"buffer_store_dword v{vU}, v{vaStX}, {sr(sWS,4)}, s{sXw} offen sc1")
        a(f"buffer_store_dword v{vU}, v{vaStX}, {sr(sWS,4)}, s{sB} offen sc1")
        setexec(FULL)
    def advance_hop():
        a(f"s_add_u32 s{sXw}, s{sXw}, {X_HOP}\ns_add_u32 s{sDBw}, s{sDBw}, 1024\ns_add_u32 s{sDBtag}, s{sDBtag}, 1")

    def db_setup(hop_w, hop_r):
        a(f"""
        s_lshl_b32 s{sDBr}, s{sJ}, 7
        s_add_u32 s{sDBr}, s{sDBr}, {WS_DB}
        s_lshl_b32 s{sDBw}, s{sIdx}, 2
        s_add_u32 s{sDBw}, s{sDBw}, s{sDBr}
        s_add_u32 s{sDBw}, s{sDBw}, {hop_w*1024}
        s_add_u32 s{sDBtag}, s{sT}, {8+hop_w}
        """)
    def db_wait(hop_off_s, tag_add_s=None, const_hop=None):
        if not cfg.doorbell: return
        l = a.label("db"); ok = a.label("dbok")
        if const_hop is not None:
            a(f"s_add_u32 s{sA}, s{sDBr}, {const_hop*1024}\ns_add_u32 s{sC}, s{sT}, {8+const_hop}")
        else:
            a(f"s_lshl_b32 s{sA}, s{sL}, 11\ns_add_u32 s{sA}, s{sA}, s{sDBr}\ns_add_u32 s{sA}, s{sA}, {hop_off_s*1024}")
            a(f"s_lshl_b32 s{sC}, s{sL}, 1\ns_add_u32 s{sC}, s{sC}, s{sT}\ns_add_u32 s{sC}, s{sC}, {8+hop_off_s}")
        a(f"v_lshlrev_b32 v{vT0}, 2, v{vLane}")
        setexec(0xFFFF)
        a(f"""
        {l}:
        buffer_load_dword v{vT1}, v{vT0}, {sr(sWS,4)}, s{sA} offen sc1
        s_waitcnt vmcnt(0)
        v_cmp_ne_u32 vcc, s{sC}, v{vT1}
        s_cbranch_vccz {ok}
        """)
        spin_fail(l)
        a(f"{ok}:")
        setexec(FULL)

    def o_stats_poll():
        l = a.label("os"); ok = a.label("osok")
        a(f"s_add_u32 s{sA}, s{sT}, s{sL}\ns_add_u32 s{sA}, s{sA}, 1")
        a(f"{l}:")
        cnt("n_ostat")
        a(f"buffer_load_dwordx3 {vr(vSt,3)}, v{vaS0}, {sr(sWS,4)}, s{sOcons} offen sc1")
        a(f"buffer_load_dwordx3 {vr(vSt+4,3)}, v{vaS1}, {sr(sWS,4)}, s{sOcons} offen sc1")
        a("s_waitcnt vmcnt(0)")
        a(f"""
        v_xor_b32 v{vT0}, s{sA}, v{vSt+2}
        v_xor_b32 v{vT1}, s{sA}, v{vSt+6}
        v_or_b32 v{vT0}, v{vT0}, v{vT1}
        v_cmp_ne_u32 vcc, 0, v{vT0}
        s_cbranch_vccz {ok}
        """)
        spin_fail(l, cfg.sleep_o)
        a(f"{ok}:")
        ts_dyn("o_st0", "o_st1")

    def o_phase():
        OA = vA
        o_stats_poll()
        l2 = a.label("op"); ok2 = a.label("ook")
        a(f"L_heavy:\n{l2}:")
        cnt("n_oheavy")
        for b in range(2):
            for c in range(4):
                a(f"buffer_load_dwordx4 {vr(OA+16*b+4*c,4)}, v{vaO0+b}, {sr(sWS,4)}, s{sOcons} offen offset:{c*1024} sc1")
        for b in range(2):
            a(f"v_mov_b32 v{vU+b}, v{vSt+4*b}")
        for n in (8, 4, 2, 1):
            for b in range(2): dpp("v_max_f32", vU + b, vU + b, vU + b, f"row_ror:{n}")
        for b in range(2): a(f"v_sub_f32 v{vU+b}, v{vSt+4*b}, v{vU+b}")
        for b in range(2): a(f"v_exp_f32 v{vU+b}, v{vU+b}")
        for b in range(2): a(f"v_mul_f32 v{vU+2+b}, v{vU+b}, v{vSt+4*b+1}")
        for n in (8, 4, 2, 1):
            for b in range(2): dpp("v_add_f32", vU + 2 + b, vU + 2 + b, vU + 2 + b, f"row_ror:{n}")
        for b in range(2): a(f"v_rcp_f32 v{vU+2+b}, v{vU+2+b}")
        for b in range(2): a(f"v_mul_f32 v{vW+b}, v{vU+b}, v{vU+2+b}")
        a(f"v_mov_b32 v{vT0}, 0")
        if cfg.diag and cfg.ts_only and "o_w0" in cfg.ts_only:
            ts_dyn("o_w0", "o_w1")
            a("s_waitcnt vmcnt(7)")
            ts_dyn("o_f0", "o_f1")
        for i in range(8):
            b, c = i >> 2, i & 3
            r = OA + 16*b + 4*c
            a(f"s_waitcnt vmcnt({7-i})")
            for nt in range(2):
                mfma(vAcc + 8*b + 4*nt, r, ar(aW2 + 8*c + 4*nt, 4), "0" if c == 0 else None)
            a(f"v_max3_u32 v{vT0}, v{vT0}, v{r}, v{r+1}\nv_max3_u32 v{vT0}, v{vT0}, v{r+2}, v{r+3}")
        a(f"v_cmp_eq_u32 vcc, -1, v{vT0}\ns_cbranch_vccz {ok2}")
        spin_fail(l2)
        a(f"{ok2}:")
        ts_dyn("o_got0", "o_got1")
        for b in range(2):
            for nt in range(2):
                t = vU + 2*b + nt; acc = vAcc + 8*b + 4*nt
                dpp("v_mul_f32", t, vW + b, acc, "row_newbcast:0")
                for r in range(1, 4):
                    dpp("v_fmac_f32", t, vW + b, acc + r, f"row_newbcast:{r}")
        a(f"""
        v_permlane32_swap_b32 v{vU}, v{vU+1}
        v_permlane32_swap_b32 v{vU+2}, v{vU+3}
        v_add_f32 v{vU}, v{vU}, v{vU+1}
        v_add_f32 v{vU+2}, v{vU+2}, v{vU+3}
        v_permlane16_swap_b32 v{vU}, v{vU+2}
        v_add_f32 v{vU}, v{vU}, v{vU+2}
        ds_write_b32 v{vaRedW}, v{vU} offset:{R_O}
        s_waitcnt lgkmcnt(0)
        s_barrier
        """)
        lab = a.label("of")
        a(f"s_cmp_eq_u32 s{sW}, 0\ns_cbranch_scc0 {lab}")
        line_final(R_O)
        a(f"{lab}:")
        advance_hop()
        ts_dyn("o_pub0", "o_pub1")

    def g_phase():
        X = vA
        if cfg.db_g: db_wait(0)
        if cfg.diag and cfg.ts_only and "g_db0" in cfg.ts_only: ts_dyn("g_db0", "g_db1")
        x_poll(sXr, X, cfg.sleep_x)
        ts_dyn("g_got0", "g_got1")
        M = stats_mf(X)
        for u in range(4):
            M.append(mf(vAcc, X + 4*u, ar(aW2 + 8*u, 4), "0" if u == 0 else None))
            M.append(mf(vAcc + 4, X + 4*u, ar(aW2 + 8*u + 4, 4), "0" if u == 0 else None))
        V = stats_valu(vU) + [f"v_mov_b32 v{vU+1}, v{vU}", f"v_permlane16_swap_b32 v{vU}, v{vU+1}", f"v_add_f32 v{vU}, v{vU}, v{vU+1}"]
        interleave(M, V, 8, 2)
        setexec("s[%d:%d]" % (sM2, sM2 + 1))
        a(f"ds_write_b32 v{vaRedZ}, v{vU} offset:{R_GZ}")
        setexec(FULL)
        sum4(vU + 2, vAcc, vT3)
        sum4(vU + 3, vAcc + 4, vT3)
        a(f"""
        v_permlane16_swap_b32 v{vU+2}, v{vU+3}
        v_add_f32 v{vU+2}, v{vU+2}, v{vU+3}
        ds_write_b32 v{vaRedW}, v{vU+2} offset:{R_G}
        s_waitcnt lgkmcnt(0)
        s_barrier
        """)
        lab = a.label("gf")
        a(f"s_cmp_eq_u32 s{sW}, 0\ns_cbranch_scc0 {lab}")
        setexec(0xFFFFFFFF)
        a(f"""
        ds_read_b128 {vr(vU+8,4)}, v{vaFinZ} offset:{R_GZ}
        ds_read_b128 {vr(vU+12,4)}, v{vaFinZ} offset:{R_GZ+16}
        ds_read_b128 {vr(vU,4)}, v{vaFinW} offset:{R_G}
        ds_read_b128 {vr(vU+4,4)}, v{vaFinW} offset:{R_G+256}
        s_lshl_b32 s{sB}, s{sIdx}, 6
        s_add_u32 s{sB}, s{sB}, s{sHb}
        s_waitcnt lgkmcnt(2)
        """)
        sum4r(vU + 8); sum4r(vU + 12)
        ln_stats(vU + 8, vU + 12, vU + 9, vU + 10)
        a("s_waitcnt lgkmcnt(0)")
        sum4r(vU); sum4r(vU + 4)
        a(f"""
        v_fma_f32 v{vU}, -v{vU+9}, v{vCg}, v{vU}
        v_fma_f32 v{vU+4}, -v{vU+9}, v{vCu}, v{vU+4}
        v_mul_f32 v{vU+1}, {f2u(-1.4426950408889634):#x}, v{vU+10}
        v_mul_f32 v{vU}, v{vU}, v{vU+1}
        v_exp_f32 v{vU}, v{vU}
        v_mul_f32 v{vU+4}, v{vU+4}, v{vU+10}
        v_add_f32 v{vU}, 1.0, v{vU}
        v_rcp_f32 v{vU}, v{vU}
        s_nop 0
        v_mul_f32 v{vU}, v{vU}, v{vU+4}
        """)
        dpp("v_mov_b32", vU + 1, vU, None, "quad_perm:[1,0,3,2]")
        a(f"v_cvt_pk_bf16_f32 v{vU}, v{vU}, v{vU+1}\nv_min_u32 v{vU}, 0xfffffffe, v{vU}")
        setexec(0x55555555)
        store_local(f"buffer_store_dword v{vU}, v{vaStH}, {sr(sWS,4)}, s{sB} offen")
        setexec(FULL)
        a(f"{lab}:")
        ts_dyn("g_pub0", "g_pub1")

    def d_phase():
        lab0 = a.label("dr0"); l2 = a.label("dr"); ok2 = a.label("drok")
        l = a.label("dp"); ok = a.label("dok"); one = a.label("done"); l3 = a.label("dp1");
        a(f"s_cmp_eq_u32 s{sW}, 3\ns_cbranch_scc1 {l3}")
        setexec(EM2)
        a(f"{l}:")
        a(f"buffer_load_dwordx4 {vr(vHop,4)}, v{vaH}, {sr(sWS,4)}, s{sHb} offen sc1")
        a(f"buffer_load_dwordx4 {vr(vHop+4,4)}, v{vaH}, {sr(sWS,4)}, s{sHb} offen offset:512 sc1")
        a("s_waitcnt vmcnt(0)")
        sent_check([vHop+i for i in range(8)], vT1, ok)
        spin_fail(l)
        a(f"{l3}:")
        setexec(EM2)
        a(f"{l3}b:")
        a(f"buffer_load_dwordx4 {vr(vHop,4)}, v{vaH}, {sr(sWS,4)}, s{sHb} offen sc1")
        a("s_waitcnt vmcnt(0)")
        sent_check([vHop+i for i in range(4)], vT1, ok)
        spin_fail(f"{l3}b")
        a(f"{ok}:")
        setexec(FULL)
        for nt in range(2):
            mfma(vAcc + 4*nt, vHop, ar(aWd + 4*nt, 4), "0")
        for nt in range(2):
            mfma(vAcc + 4*nt, vHop + 4, ar(aWd + 8 + 4*nt, 4))
        a(f"""
        v_permlane16_swap_b32 v{vAcc}, v{vAcc+1}
        v_permlane16_swap_b32 v{vAcc+4}, v{vAcc+5}
        v_permlane32_swap_b32 v{vAcc}, v{vAcc+4}
        ds_write_b32 v{vaRedW}, v{vAcc} offset:{R_D}
        s_waitcnt lgkmcnt(0)
        s_barrier
        """)
        lab = a.label("df")
        a(f"s_cmp_eq_u32 s{sW}, 0\ns_cbranch_scc0 {lab}")
        line_final(R_D)
        a(f"{lab}:")
        advance_hop()
        ts_dyn("d_pub0", "d_pub1")

    a(f"s_cmp_lt_u32 s{sM}, 16\ns_cbranch_scc0 L_roleB")
    def down_slices():
        a(f"""
        v_lshrrev_b32 v{vT0}, 2, v{vLane}
        v_lshlrev_b32 v{vT0}, 10, v{vT0}
        v_and_b32 v{vT1}, 3, v{vLane}
        v_lshl_add_u32 v{vT0}, v{vT1}, 4, v{vT0}
        s_mul_i32 s{sB}, s{sJ}, {224*1024}
        s_lshl_b32 s{sC}, s{sIdx}, 6
        s_add_u32 s{sB}, s{sB}, s{sC}
        s_lshl_b32 s{sC}, s{sW}, 15
        s_add_u32 s{sB}, s{sB}, s{sC}
        s_lshl_b32 s{sC}, s{sW}, 14
        s_add_u32 s{sC}, s{sC}, {L_K + W_DN}
        s_mov_b32 m0, s{sC}
        s_add_u32 s{sD}, s{sB}, 16384
        buffer_load_dwordx4 v{vT0}, {sr(sDN,4)}, s{sB} offen{SLN} lds
        s_add_u32 s{sC}, s{sC}, 1024
        s_mov_b32 m0, s{sC}
        s_nop 0
        buffer_load_dwordx4 v{vT0}, {sr(sDN,4)}, s{sD} offen{SLN} lds
        s_cmp_eq_u32 s{sW}, 3
        s_cbranch_scc1 L_nod2
        s_add_u32 s{sB}, s{sB}, {4*32768}
        s_add_u32 s{sC}, s{sC}, 1024
        s_mov_b32 m0, s{sC}
        s_add_u32 s{sD}, s{sB}, 16384
        buffer_load_dwordx4 v{vT0}, {sr(sDN,4)}, s{sB} offen{SLN} lds
        s_add_u32 s{sC}, s{sC}, 1024
        s_mov_b32 m0, s{sC}
        s_nop 0
        buffer_load_dwordx4 v{vT0}, {sr(sDN,4)}, s{sD} offen{SLN} lds
        L_nod2:
        """)
    def down_operands():
        a(f"s_lshl_b32 s{sB}, s{sW}, 14")
        tr_base(vT0, 64, 8, sB, L_K + W_DN)
        for nt in range(2):
            a(f"ds_read_b64_tr_b16 {ar(aWd+4*nt,2)}, v{vT0} offset:{nt*32}")
            a(f"ds_read_b64_tr_b16 {ar(aWd+4*nt+2,2)}, v{vT0} offset:{nt*32+256}")
        a(f"s_cmp_eq_u32 s{sW}, 3\ns_cbranch_scc1 L_dn3")
        for nt in range(2):
            a(f"ds_read_b64_tr_b16 {ar(aWd+8+4*nt,2)}, v{vT0} offset:{2048+nt*32}")
            a(f"ds_read_b64_tr_b16 {ar(aWd+8+4*nt+2,2)}, v{vT0} offset:{2048+nt*32+256}")
        a("s_branch L_dn4\nL_dn3:")
        for i in range(8): a(f"v_accvgpr_write_b32 a{aWd+8+i}, 0")
        a("L_dn4:")
    g.role = "A"; ts_split = g.ts
    def wo_slices():
        if cfg.line_pf and "o" in cfg.pf_which:
            a(f"""
            v_lshlrev_b32 v{vT0}, 7, v{vLane}
            s_lshl_b32 s{sB}, s{sJ}, 19
            s_lshl_b32 s{sC}, s{sIdx}, 15
            s_add_u32 s{sB}, s{sB}, s{sC}
            s_lshl_b32 s{sC}, s{sW}, 13
            s_add_u32 s{sB}, s{sB}, s{sC}
            buffer_load_dword v{vJ}, v{vT0}, {sr(sW2,4)}, s{sB} offen{cfg.pf_pol_o}
            """)
        a(f"""
        v_lshrrev_b32 v{vT0}, 2, v{vLane}
        v_lshlrev_b32 v{vT0}, 10, v{vT0}
        v_and_b32 v{vT1}, 3, v{vLane}
        v_lshl_add_u32 v{vT0}, v{vT1}, 4, v{vT0}
        s_lshl_b32 s{sB}, s{sJ}, 19
        s_lshl_b32 s{sC}, s{sW}, 17
        s_add_u32 s{sB}, s{sB}, s{sC}
        s_lshl_b32 s{sC}, s{sIdx}, 6
        s_add_u32 s{sB}, s{sB}, s{sC}
        s_lshl_b32 s{sC}, s{sW}, 14
        s_add_u32 s{sC}, s{sC}, {L_K}
        """)
        for u in range(8):
            a(f"""
            s_mov_b32 m0, s{sC}
            s_add_u32 s{sC}, s{sC}, 1024
            buffer_load_dwordx4 v{vT0}, {sr(sW2,4)}, s{sB} offen{SLN} lds
            s_add_u32 s{sB}, s{sB}, {16*1024}
            """)
    if cfg.w_inter:
        s1_tail(nPF)
        db_setup(0, 1)
        a(f"s_mov_b32 s{sXr}, {WS_X}")
    elif cfg.wsA:
        wo_slices()
        s1_tail(8 + nPF)
        db_setup(0, 1)
    else:
        s1_tail(nPF)
        db_setup(0, 1)
        wo_slices()
    a(f"v_mov_b32 v{vRes}, 0")
    lab = a.label("r0")
    a(f"""
    s_cmp_eq_u32 s{sJ}, 0
    s_cbranch_scc0 {lab}
    v_and_b32 v{vT0}, 1, v{vQd}
    v_lshlrev_b32 v{vT0}, 10, v{vT0}
    v_lshrrev_b32 v{vT1}, 1, v{vQd}
    v_lshl_add_u32 v{vT0}, v{vT1}, 5, v{vT0}
    v_lshl_add_u32 v{vT0}, v{vR16}, 1, v{vT0}
    s_lshl_b32 s{sB}, s{sIdx}, 6
    buffer_load_ushort v{vRes}, v{vT0}, {sr(sX0,4)}, s{sB} offen
    {lab}:
    """)
    nspec = 0
    if cfg.o_spec:
        a(f"buffer_load_dwordx3 {vr(vSt,3)}, v{vaS0}, {sr(sWS,4)}, s{sOcons} offen sc1")
        a(f"buffer_load_dwordx3 {vr(vSt+4,3)}, v{vaS1}, {sr(sWS,4)}, s{sOcons} offen sc1")
        nspec = 2
    if cfg.w_inter:
        a(f"s_waitcnt vmcnt({nspec})")
        for half, (sh, base) in enumerate(((12, L_WQ), (14, L_K))):
            a(f"s_lshl_b32 s{sB}, s{sW}, {sh}")
            tr_base(vT0, 64, 4, sB, base)
            for c2 in range(2):
                c = 2*half + c2
                for nt in range(2):
                    a(f"ds_read_b64_tr_b16 {ar(aW2+8*c+4*nt,2)}, v{vT0} offset:{c2*2048+nt*32}")
                    a(f"ds_read_b64_tr_b16 {ar(aW2+8*c+4*nt+2,2)}, v{vT0} offset:{c2*2048+nt*32+1024}")
    else:
        a(f"s_lshl_b32 s{sB}, s{sW}, 14")
        tr_base(vT0, 64, 4, sB, L_K)
        a(f"s_waitcnt vmcnt({nspec})")
        for c in range(4):
            for nt in range(2):
                a(f"ds_read_b64_tr_b16 {ar(aW2+8*c+4*nt,2)}, v{vT0} offset:{c*2048+nt*32}")
                a(f"ds_read_b64_tr_b16 {ar(aW2+8*c+4*nt+2,2)}, v{vT0} offset:{c*2048+nt*32+1024}")
    a(f"v_lshlrev_b32 v{vResF}, 16, v{vRes}")
    a("s_waitcnt lgkmcnt(0)")
    ts("wo_ready")
    if cfg.o_spec:
        a(f"""
        s_add_u32 s{sA}, s{sT}, 1
        s_waitcnt vmcnt(0)
        v_xor_b32 v{vT0}, s{sA}, v{vSt+2}
        v_xor_b32 v{vT1}, s{sA}, v{vSt+6}
        v_or_b32 v{vT0}, v{vT0}, v{vT1}
        v_cmp_ne_u32 vcc, 0, v{vT0}
        s_cbranch_vccz L_heavy
        """)
    a("L_loopA:")
    o_phase()
    lab = a.label("dn")
    a(f"s_cmp_eq_u32 s{sL}, 0\ns_cbranch_scc0 {lab}")
    down_slices()
    tag_check_all()
    if cfg.epoch_early:
        le = a.label("ep")
        a(f"""
        s_or_b32 s{sB}, s{sJ}, s{sIdx}
        s_or_b32 s{sB}, s{sB}, s{sW}
        s_cmp_eq_u32 s{sB}, 0
        s_cbranch_scc0 {le}
        """)
        g.ep_lab = le
        a(f"v_mov_b32 v{vT0}, {WS_EPOCH}\nv_mov_b32 v{vT1}, s{sT}\ns_mov_b64 exec, 1")
        a(f"buffer_store_dword v{vT1}, v{vT0}, {sr(sWS,4)}, 0 offen sc1")
        a("s_mov_b64 exec, -1")
        a(f"{le}:")
    down_operands()
    if cfg.warm_out:
        lw = a.label("wout")
        a(f"""
        s_cmp_ge_u32 s{sIdx}, 2
        s_cbranch_scc1 {lw}
        s_lshl_b32 s{sB}, s{sJ}, 1
        s_add_u32 s{sB}, s{sB}, s{sIdx}
        s_lshl_b32 s{sB}, s{sB}, 6
        v_lshlrev_b32 v{vT0}, 10, v{vLane}
        s_mov_b64 exec, 3
        buffer_load_dword v{vJ}, v{vT0}, {sr(sOUT,4)}, s{sB} offen
        s_mov_b64 exec, -1
        {lw}:
        """)
    a("s_waitcnt lgkmcnt(0)\ns_barrier")
    a(f"{lab}:")
    d_phase()
    a(f"s_cmp_eq_u32 s{sL}, 1\ns_cbranch_scc1 L_finalA")
    a("s_branch L_q2s2")

    a("L_roleB:")
    g.role = "B"; g.ts = ts_split
    def gu_slices():
        a(f"""
        s_cmp_ge_u32 s{sIdx}, 14
        s_cbranch_scc1 L_nogu
        v_lshrrev_b32 v{vT0}, 1, v{vLane}
        v_mul_u32_u24 v{vT0}, 3584, v{vT0}
        v_and_b32 v{vT1}, 1, v{vLane}
        v_lshl_add_u32 v{vT0}, v{vT1}, 4, v{vT0}
        s_mul_i32 s{sB}, s{sW}, {128*3584}
        s_mul_i32 s{sC}, s{sJ}, 448
        s_add_u32 s{sB}, s{sB}, s{sC}
        s_lshl_b32 s{sC}, s{sIdx}, 5
        s_add_u32 s{sB}, s{sB}, s{sC}
        s_lshl_b32 s{sC}, s{sW}, 14
        s_add_u32 s{sC}, s{sC}, {L_K + W_GATE}
        """)
        for u in range(4):
            a(f"""
            s_mov_b32 m0, s{sC}
            s_add_u32 s{sD}, s{sC}, {W_UP - W_GATE}
            buffer_load_dwordx4 v{vT0}, {sr(sW2,4)}, s{sB} offen{SLN} lds
            s_mov_b32 m0, s{sD}
            s_add_u32 s{sC}, s{sC}, 1024
            buffer_load_dwordx4 v{vT0}, {sr(sUP,4)}, s{sB} offen{SLN} lds
            s_add_u32 s{sB}, s{sB}, {32*3584}
            """)
        a("L_nogu:")
    if cfg.wsB:
        gu_slices()
        s1_tail(8, maybe_none=True)
    else:
        s1_tail(nPF)
    if cfg.w_inter: a(f"s_mov_b32 s{sWb2}, s{sWb}\ns_mov_b32 s{sWst2}, s{sWst}")
    db_setup(1, 0)
    if cfg.w_inter: a(f"s_mov_b32 s{sXr}, {WS_X}")
    if cfg.pf_down:
        a(f"""
        v_lshrrev_b32 v{vT0}, 3, v{vLane}
        v_lshlrev_b32 v{vT0}, 10, v{vT0}
        v_and_b32 v{vT1}, 7, v{vLane}
        v_lshl_add_u32 v{vT0}, v{vT1}, 7, v{vT0}
        s_mul_i32 s{sB}, s{sJ}, 224
        s_mul_i32 s{sC}, s{sIdx}, 14
        s_add_u32 s{sB}, s{sB}, s{sC}
        s_lshl_b32 s{sC}, s{sW}, 2
        s_add_u32 s{sB}, s{sB}, s{sC}
        s_lshl_b32 s{sB}, s{sB}, 10
        s_cmp_eq_u32 s{sW}, 3
        s_cselect_b32 exec_lo, 0xffff, -1
        s_mov_b32 exec_hi, 0
        buffer_load_dword v{vJ}, v{vT0}, {sr(sDN,4)}, s{sB} offen{cfg.pf_down_pol}
        s_mov_b64 exec, -1
        """)
    if cfg.line_pf and "f" in cfg.pf_which:
        a(f"""
        v_mul_u32_u24 v{vT0}, 52, v{vLane}
        v_lshrrev_b32 v{vT0}, 8, v{vT0}            ; l/5 for l < 64
        v_mul_u32_u24 v{vT1}, 5, v{vT0}
        v_sub_u32 v{vT1}, v{vLane}, v{vT1}         ; l%5
        v_mul_u32_u24 v{vT0}, 3584, v{vT0}
        v_lshl_add_u32 v{vT0}, v{vT1}, 7, v{vT0}
        s_lshl_b32 s{sB}, s{sIdx}, 5
        s_lshl_b32 s{sC}, s{sW}, 3
        s_add_u32 s{sB}, s{sB}, s{sC}
        s_mul_i32 s{sB}, s{sB}, 3584
        s_mul_i32 s{sC}, s{sJ}, 448
        s_and_b32 s{sC}, s{sC}, 0xffffff80
        s_add_u32 s{sB}, s{sB}, s{sC}
        """)
        setexec((1 << 40) - 1)
        for off in ((0, 64) if "f" in cfg.sub2 else (0,)):
            a(f"buffer_load_dword v{vJ}, v{vT0}, {sr(sW2,4)}, s{sB} offen offset:{off}{cfg.pf_pol_f}")
            a(f"buffer_load_dword v{vJ}, v{vT0}, {sr(sUP,4)}, s{sB} offen offset:{off}{cfg.pf_pol_f}")
        setexec(FULL)
    if not cfg.wsB and not cfg.w_inter: gu_slices()
    if cfg.w_inter and cfg.w_interB != "gu":
        lab = a.label("wl")
        a(f"s_cmp_ge_u32 s{sIdx}, 14\ns_cbranch_scc1 {lab}")
        for part, key, srdq, sh, base in ((0, "g", sW2, 12, L_WQ), (1, "u", sUP, 14, L_K)):
            if key in cfg.w_interB: continue
            for u in range(4):
                a(f"""
                s_mul_i32 s{sB}, s{sWst2}, {u}
                s_add_u32 s{sB}, s{sB}, s{sWb2}
                s_lshl_b32 s{sC}, s{sW}, {sh}
                s_add_u32 s{sC}, s{sC}, {base + u*1024}
                s_mov_b32 m0, s{sC}
                s_nop 0
                buffer_load_dwordx4 v{vWs}, {sr(srdq,4)}, s{sB} offen{SLN} lds
                """)
        a(f"{lab}:")
    tag_check_all()
    ts("ffn_landed")
    a(f"s_cmp_ge_u32 s{sIdx}, 14\ns_cbranch_scc1 L_nogu2")
    if cfg.w_inter:
        for mat, (sh, base) in enumerate(((12, L_WQ), (14, L_K))):
            a(f"s_lshl_b32 s{sB}, s{sW}, {sh}")
            tr_base(vT0, 32, 8, sB, base)
            for u in range(4):
                a(f"ds_read_b64_tr_b16 {ar(aW2+8*u+4*mat,2)}, v{vT0} offset:{u*1024}")
                a(f"ds_read_b64_tr_b16 {ar(aW2+8*u+4*mat+2,2)}, v{vT0} offset:{u*1024+128}")
    else:
        a(f"s_lshl_b32 s{sB}, s{sW}, 14")
        tr_base(vT0, 32, 8, sB, L_K + W_GATE)
        for u in range(4):
            for mat in range(2):
                a(f"ds_read_b64_tr_b16 {ar(aW2+8*u+4*mat,2)}, v{vT0} offset:{u*1024+mat*(W_UP-W_GATE)}")
                a(f"ds_read_b64_tr_b16 {ar(aW2+8*u+4*mat+2,2)}, v{vT0} offset:{u*1024+mat*(W_UP-W_GATE)+128}")
    a("s_waitcnt lgkmcnt(0)")
    for u in range(4):
        mfma(vAcc, vOnes, ar(aW2 + 8*u, 4), "0" if u == 0 else None)
        mfma(vAcc + 4, vOnes, ar(aW2 + 8*u + 4, 4), "0" if u == 0 else None)
    a(f"s_nop 7\nds_write_b32 v{vaRedW}, v{vAcc} offset:{R_COL}\nds_write_b32 v{vaRedW}, v{vAcc+4} offset:{R_COL2}")
    a("L_nogu2:")
    a("s_waitcnt lgkmcnt(0)\ns_barrier")
    a(f"""
    ds_read_b128 {vr(vU,4)}, v{vaFinW} offset:{R_COL}
    ds_read_b128 {vr(vU+4,4)}, v{vaFinW} offset:{R_COL2}
    s_waitcnt lgkmcnt(0)
    """)
    sum4r(vU); sum4r(vU + 4)
    a(f"v_mov_b32 v{vCg}, v{vU}\nv_mov_b32 v{vCu}, v{vU+4}")
    ts("ffn_ready")
    a("L_loopB:")
    lg = a.label("nog")
    a(f"s_cmp_ge_u32 s{sIdx}, 14\ns_cbranch_scc1 {lg}")
    g_phase()
    a(f"{lg}:")
    if cfg.junk_dirty:
        lj = a.label("jk")
        a(f"s_cmp_eq_u32 s{sL}, 0\ns_cbranch_scc0 {lj}")
        a(f"s_lshl_b32 s{sB}, s2, 2\ns_add_u32 s{sB}, s{sB}, s{sW}\ns_mul_i32 s{sB}, s{sB}, {cfg.junk_dirty*1024}\ns_add_u32 s{sB}, s{sB}, 0x400000\nv_lshlrev_b32 v{vT0}, 4, v{vLane}")
        for i in range(cfg.junk_dirty):
            a(f"buffer_store_dwordx4 {vr(vP,4)}, v{vT0}, {sr(sWS,4)}, s{sB} offen\ns_add_u32 s{sB}, s{sB}, 1024")
        a(f"{lj}:")
    a(f"s_cmp_eq_u32 s{sL}, 1\ns_cbranch_scc1 L_fin")

    a("L_q2s2:")
    save_role, save_ts = g.role, g.ts
    g.role = "C"; g.ts = getattr(g, "maxts", g.ts)
    lab = a.label("wo")
    a(f"s_cmp_lt_u32 s{sM}, 16\ns_cbranch_scc{1 if cfg.warm_by_B else 0} {lab}")
    warm_q2()
    warm_o(1)
    a(f"{lab}:")
    if cfg.db_q: db_wait(None, const_hop=1)
    if cfg.diag and cfg.ts_only and "q2_db" in cfg.ts_only:
        ts("q2_db")
    a(f"s_mov_b32 s{sD}, {WS_X + X_HOP}")
    x_poll(sD, XA, cfg.sleep_x)
    ts("q2_got")
    q_core(XA)
    q_final(False)
    ts("q2_pub")
    l = a.label("qp"); ok = a.label("qok")
    setexec(EM4)
    a(f"{l}:")
    for c in range(4):
        a(f"buffer_load_dwordx4 {vr(vQ+4*c,4)}, v{vaQ2}, {sr(sWS,4)}, s{sQ2r} offen offset:{c*256} sc1")
    a("s_waitcnt vmcnt(0)")
    sent_check([vQ+i for i in range(16)], vT0, ok)
    spin_fail(l)
    a(f"{ok}:")
    setexec(FULL)
    ts("q2_gath")
    a(f"""
    s_add_u32 s{sOown}, s{sOown}, {O_L}
    s_add_u32 s{sOcons}, s{sOcons}, {O_L}
    s_add_u32 s{sXr}, s{sXr}, {2*X_HOP}
    s_add_u32 s{sHb}, s{sHb}, 8192
    s_mov_b32 s{sL}, 1
    """)
    s_qk_max()
    s_exp_p()
    if cfg.stats_mid:
        lw3 = a.label("s3"); lw4 = a.label("s4")
        a(f"s_cmp_eq_u32 s{sW}, 3\ns_cbranch_scc1 {lw3}")
        for blk in range(8):
            a(f"s_waitcnt lgkmcnt({7-blk})")
            pv([blk], blk == 0)
        a(f"s_branch {lw4}\n{lw3}:")
        a(f"""
        ds_read_b128 {vr(vU+4,4)}, v{vaSm} offset:{L_LSUM-L_SMAX}
        s_add_u32 s{sB}, s{sT}, s{sL}
        s_add_u32 s{sB}, s{sB}, 1
        v_mov_b32 v{vMc+2}, s{sB}
        """)
        for blk in range(4):
            a(f"s_waitcnt lgkmcnt({8-blk})")
            pv([blk], blk == 0)
        a("s_waitcnt lgkmcnt(0)")
        sum4r(vU + 4)
        a(f"v_mov_b32 v{vMc+1}, v{vU+4}")
        setexec(0xF)
        store_local(f"buffer_store_dwordx4 {vr(vMc,4)}, v{vaStS}, {sr(sWS,4)}, s{sOown} offen")
        setexec(FULL)
        for blk in range(4, 8):
            pv([blk], False)
        a(f"{lw4}:")
        s_out()
    else:
        s_stats_prep()
        a("s_waitcnt lgkmcnt(0)")
        pv(list(range(8)), True)
        s_out()
        s_stats_store(None)
    ts("s2_pub")
    if cfg.diag and cfg.ts_only and "s2_ack" in cfg.ts_only:
        a("s_waitcnt vmcnt(0)")
        ts("s2_ack")
    a(f"s_cmp_lt_u32 s{sM}, 16\ns_cbranch_scc1 L_loopA\ns_branch L_loopB")

    a("L_finalA:")
    g.role = "A"; g.ts = getattr(g, "maxts", g.ts)
    a(f"""
    s_cmp_ge_u32 s{sIdx}, 2
    s_cbranch_scc1 L_fin
    s_cmp_eq_u32 s{sW}, 0
    s_cbranch_scc0 L_fin
    s_lshl_b32 s{sB}, s{sJ}, 1
    s_add_u32 s{sB}, s{sB}, s{sIdx}        ; cb
    s_lshl_b32 s{sC}, s{sB}, 7
    s_add_u32 s{sC}, s{sC}, {WS_X + 3*X_HOP}
    """)
    for nt in range(2):
        for dd in range(4):
            a(f"""
            v_lshlrev_b32 v{vT0}, 3, v{vQd}
            v_add_u32 v{vT0}, {2*dd - 16*nt}, v{vT0}
            v_sub_u32 v{vT0}, v{vT0}, v{vR16}
            v_mov_b32 v{vP+4*nt+dd}, 0
            v_cmp_eq_u32 vcc, 0, v{vT0}
            v_mov_b32 v{vT1}, 0x3f80
            v_cndmask_b32 v{vP+4*nt+dd}, v{vP+4*nt+dd}, v{vT1}, vcc
            v_cmp_eq_u32 vcc, -1, v{vT0}
            v_mov_b32 v{vT1}, 0x3f800000
            v_cndmask_b32 v{vP+4*nt+dd}, v{vP+4*nt+dd}, v{vT1}, vcc
            """)
    a(f"""
    v_lshrrev_b32 v{vT2}, 1, v{vQd}
    v_lshlrev_b32 v{vT2}, 10, v{vT2}
    v_and_b32 v{vT1}, 1, v{vQd}
    v_lshl_add_u32 v{vT2}, v{vT1}, 5, v{vT2}
    v_lshl_add_u32 v{vT2}, v{vR16}, 1, v{vT2}
    s_lshl_b32 s{sB}, s{sB}, 6
    """)
    a(f"s_mov_b32 s{sEx2}, s{sC}\ns_mov_b32 s{sEx2+1}, s{sB}")
    if cfg.db_final: db_wait(None, const_hop=3)
    a(f"s_mov_b32 s{sC}, s{sEx2}\ns_mov_b32 s{sB}, s{sEx2+1}")
    l = a.label("fp"); ok = a.label("fok")
    a(f"{l}:")
    a(f"buffer_load_dwordx4 {vr(vA,4)}, v{vaX}, {sr(sWS,4)}, s{sC} offen sc1")
    a("s_waitcnt vmcnt(0)")
    sent_check([vA+i for i in range(4)], vT0, ok)
    spin_fail(l, cfg.sleep_x)
    a(f"{ok}:")
    ts("fin_got")
    mfma(vAcc, vA, vP, "0"); mfma(vAcc + 4, vA, vP + 4, "0")
    sum4(vU, vAcc, vT3); sum4(vU + 1, vAcc + 4, vT3)
    a(f"""
    v_permlane16_swap_b32 v{vU}, v{vU+1}
    v_add_f32 v{vU}, v{vU}, v{vU+1}
    v_cvt_pk_bf16_f32 v{vU}, v{vU}, v{vU}
    buffer_store_short v{vU}, v{vT2}, {sr(sOUT,4)}, s{sB} offen
    """)
    if not cfg.epoch_early:
        a(f"""
        s_cmp_eq_u32 s{sB}, 0
        s_cbranch_scc0 L_fin
        v_mov_b32 v{vT0}, {WS_EPOCH}
        v_mov_b32 v{vT1}, s{sT}
        """)
        setexec(1)
        a(f"buffer_store_dword v{vT1}, v{vT0}, {sr(sWS,4)}, 0 offen sc1")
        setexec(FULL)

    a("L_fin:")
    if cfg.diag:
        g.role = "E"
        g.tsn["E"].append((NTS - 1, "end"))
        a(f"s_memrealtime s[{sTmp2}:{sTmp2+1}]\ns_waitcnt lgkmcnt(0)\ns_mov_b32 s{sTS+NTS-2}, s{sTmp2}")
        a(f"s_memtime s[{sTmp2}:{sTmp2+1}]\ns_waitcnt lgkmcnt(0)\ns_mov_b32 s{sTS+NTS-1}, s{sTmp2}")
        a(f"s_lshl_b32 s{sB}, s2, 3\ns_add_u32 s{sB}, s{sB}, s{sW}\ns_lshl_b32 s{sB}, s{sB}, 7\ns_add_u32 s{sB}, s{sB}, {WS_DIAG}\nv_mov_b32 v{vT0}, 0")
        setexec(1)
        for i in range(NTS):
            a(f"v_mov_b32 v{vT1}, s{sTS+i}\nbuffer_store_dword v{vT1}, v{vT0}, {sr(sWS,4)}, s{sB} offen offset:{4*i}")
        setexec(FULL)
        if cfg.dbg_dump is not None:
            a(f"""
            s_cmp_eq_u32 s2, {cfg.dbg_dump}
            s_cbranch_scc0 L_nodump
            s_cmp_eq_u32 s{sW}, 0
            s_cbranch_scc0 L_nodump
            s_load_dwordx2 s[{sTmp2}:{sTmp2+1}], s[0:1], 80
            s_waitcnt lgkmcnt(0)
            s_mov_b32 s{sA}, s{sTmp2}
            s_and_b32 s{sB}, s{sTmp2+1}, 0xffff
            s_mov_b32 s{sC}, 256
            s_mov_b32 s{sD}, 0x20000
            v_mov_b32 v{vT0}, 0
            s_mov_b64 exec, 1
            """)
            for i in range(1, 16):
                a(f"s_sub_u32 s{sTmp2}, s{sTS+i}, s{sTS}\nv_mov_b32 v{vT1}, s{sTmp2}\nbuffer_store_dword v{vT1}, v{vT0}, s[{sA}:{sD}], 0 offen offset:{4*(i-1)}")
            a(f"s_sub_u32 s{sTmp2}, s{sTS+NTS-1}, s{sTS}\nv_mov_b32 v{vT1}, s{sTmp2}\nbuffer_store_dword v{vT1}, v{vT0}, s[{sA}:{sD}], 0 offen offset:60")
            a("s_mov_b64 exec, -1\nL_nodump:")
    if cfg.dbg_span:
        a(f"""
        s_waitcnt vmcnt(0)
        s_cmp_eq_u32 s{sW}, 0
        s_cbranch_scc0 L_nospan
        s_memrealtime s[{sTmp2}:{sTmp2+1}]
        s_load_dwordx2 s[92:93], s[0:1], 80
        s_waitcnt lgkmcnt(0)
        s_mov_b32 s{sA}, s92
        s_and_b32 s{sB}, s93, 0xffff
        s_mov_b32 s{sC}, 256
        s_mov_b32 s{sD}, 0x20000
        v_mov_b32 v{vT0}, 8
        v_mov_b32 v{vT1}, s{sTmp2}
        s_not_b32 s94, s94
        v_mov_b32 v{vT2}, s94
        s_mov_b64 exec, 1
        buffer_atomic_umax v{vT1}, v{vT0}, s[{sA}:{sD}], 0 offen sc1
        buffer_atomic_umax v{vT2}, v{vT0}, s[{sA}:{sD}], 0 offen offset:4 sc1
        s_waitcnt vmcnt(0)
        L_nospan:
        """)
    a("s_waitcnt vmcnt(0)\ns_endpgm")
    a(f"""
    L_abort:
    s_mov_b64 exec, -1
    v_mov_b32 v{vT0}, 0
    v_mov_b32 v{vT1}, 0xdead
    s_load_dwordx2 s[{sTmp2}:{sTmp2+1}], s[0:1], 80
    s_waitcnt lgkmcnt(0)
    s_mov_b32 s{sA}, s{sTmp2}
    s_and_b32 s{sB}, s{sTmp2+1}, 0xffff
    s_mov_b32 s{sC}, 256
    s_mov_b32 s{sD}, 0x20000
    s_mov_b64 exec, 1
    buffer_store_dword v{vT1}, v{vT0}, s[{sA}:{sD}], 0 offen offset:4
    s_waitcnt vmcnt(0)
    L_end:
    s_endpgm
    """)
    for o in g.ool: a(o)
    a("L_codeend:\ns_endpgm")
    lines = a.text().rstrip("\n").split("\n")
    g.ninstr = sum(1 for l in lines if l.startswith("    ") and not l.strip().startswith(";"))
    lines = hazard.pad(lines)
    return g, "\n".join(lines) + "\n"

HEADER = open("interleave_layers__sliding_block_cached__glu_gated_glu__decode.s.ref").read().split("; Override launch")[0]

def full(cfg):
    g, body = build(cfg)
    txt = HEADER
    txt += "; Persistent single-launch kernel: 256 workgroups (one per CU) x 256 threads.\n"
    txt += f"; @launch grid=(256,1,1) block=(256,1,1) lds={LDS_BYTES}\n"
    txt += '.amdgcn_target "amdgcn-amd-amdhsa--gfx950"\n.text\n'
    txt += f".globl {NAME}\n.p2align 8\n.type {NAME},@function\n{NAME}:\n"
    txt += body
    txt += '.section .rodata,"a"\n.p2align 6\n'
    txt += f".amdhsa_kernel {NAME}\n  .amdhsa_next_free_vgpr {256 + g.amax}\n  .amdhsa_next_free_sgpr 102\n  .amdhsa_accum_offset 256\n"
    txt += "  .amdhsa_group_segment_fixed_size 0\n  .amdhsa_kernarg_size 96\n  .amdhsa_user_sgpr_count 2\n  .amdhsa_user_sgpr_kernarg_segment_ptr 1\n  .amdhsa_system_sgpr_workgroup_id_x 1\n.end_amdhsa_kernel\n"
    return g, txt

if __name__ == "__main__":
    cfg = Cfg()
    for kv in sys.argv[2:]:
        k, v = kv.split("="); setattr(cfg, k, eval(v))
    g, txt = full(cfg)
    open(sys.argv[1], "w").write(txt)
    print("vgprs", g.vmax, "agprs", g.amax, "instrs", g.ninstr, "ts", g.tsn)
```

```python
import sys, struct
from asmlib import Asm
import hazard

NAME = "interleave_layers__sliding_block_cached__glu_gated_glu__decode_kernel"

WS_EPOCH = 0x0
WS_Q1 = 0x10000
WS_DB = 0x1c000
WS_Q2 = 0x20000
WS_H  = 0x28000
WS_X  = 0xE0000
X_HOP = 32768
WS_O  = 0x40000
O_STATS = 32768
O_J = O_STATS + 2048
O_L = 8 * O_J
WS_DIAG = 0x100000
WS_SIZE = 0x1000000

L_SMAX = 0
L_LSUM = 64
L_PBUF = 256
L_RED = 2560
R_Q, R_G, R_GZ, R_O, R_D, R_COL, R_COL2 = [L_RED + 1024 * i for i in range(7)]
L_QG = 10240
L_X0 = 14336
L_K = 16384
L_V = L_K + 65536
L_WQ = L_V + 65536
L_XI = L_V
LDS_BYTES = 163840
W_GATE, W_UP, W_DN = 0, 4096, 8192

C_SCALE = 0.08838834764831845 * 1.4426950408889634
def f2u(x): return struct.unpack("<I", struct.pack("<f", x))[0]

class Cfg:
    nKA = 8
    nKb1 = 1
    pace = 8
    gpts = (1, 2, 4)
    diag = False
    ts_only = None
    ts_issue = False
    force_global = False
    budget = 400000
    prefetch_code = True
    sleep_x = 0
    sleep_x0 = 0
    sleep_o = 0
    sl_nt = True
    pf_pol = ""
    pf_pol_f = ""
    pf_pol_o = " nt"
    pf_which = "qf"
    dbg_span = False
    counters = False
    db_early = False
    doorbell = True
    warm = True
    pf_stream = "o"
    pf_pos = 2
    pf_early = False
    pf_spol = ""
    wsA = False
    wsB = False
    junk_dirty = 0
    epoch_early = True
    w_interB = "gu"
    w_inter = False
    v3_early = False
    warm_by_B = True
    o_spec = True
    db_g = True
    db_q = True
    db_final = False
    stats_mid = True
    pf_down = False
    pf_down_pol = " nt"
    kv_pol = " nt"
    sub2 = ""
    dbg_dump = None
    db_pipe = False
    rot_mode = "m8"
    warm_out = False
    line_pf = True
    const_tag = False
    no_clear0 = False
    clr0_late = False

def vr(b, n=1): return f"v[{b}:{b+n-1}]" if n > 1 else f"v{b}"
def ar(b, n=1): return f"a[{b}:{b+n-1}]" if n > 1 else f"a{b}"
def sr(b, n=1): return f"s[{b}:{b+n-1}]" if n > 1 else f"s{b}"

sJ, sM, sW, sIdx, sL = 3, 4, 5, 6, 7
sWS, sKS, sVS, sWQ, sW2, sUP, sDN, sX0, sOUT = 8, 12, 16, 20, 24, 28, 32, 36, 40
sT, sTX, sLocal, sBud = 44, 45, 46, 47
sMDIAG = 48
sM4 = 50
sM2 = 52
sMN1 = 54
sMEV = 56
sEx = 58
sA, sB, sC, sD = 60, 61, 62, 63
sKV, sRot = 64, 65
sOown, sOcons, sXw, sXr, sHb, sQ2w, sQ2r = 66, 67, 68, 69, 70 - 70 + 96, 97, 98
sXcc = 99
sWb2, sWst2 = 68, 60
sWb, sWst = 59, 69
sKS2 = sKS
sDBtag = 59
sEx2 = 50
sDBw, sDBr = 64, 65
sXI = 58
sTmp2 = 100
sTS = 70
NTS = 26

class G:
    pass

def build(cfg):
    g = G(); a = Asm(); g.a = a
    g.tsn = {"C": [], "A": [], "B": [], "E": []}; g.role = "C"; g.ts = 0; g.cnts = {}; g.cnt_names = []
    nv = [1]
    def valloc(n=1, align=1):
        nv[0] = (nv[0] + align - 1) // align * align
        r = nv[0]; nv[0] += n
        assert nv[0] <= 256
        return r
    vLane = valloc(); vR16 = valloc(); vQd = valloc()
    vT0 = valloc(); vT1 = valloc(); vT2 = valloc(); vT3 = valloc()
    vOnes = valloc(4, 4)
    vQ = valloc(16, 4)
    vA = valloc(40, 4)
    vAcc = valloc(16, 4)
    vS = valloc(16, 4)
    vP = valloc(32, 4)
    vJ = valloc()
    vHop = valloc(8, 4)
    vU = valloc(16, 4)
    vSt = valloc(8, 4)
    vW = valloc(2, 2)
    vCs = valloc(); vCg = valloc(); vCu = valloc()
    vRes = valloc(); vResF = valloc()
    vQ1d = valloc(2, 2); vQ1a = valloc()
    vMc = valloc(4, 4)
    vaX = valloc(); vaXg = valloc(); vaXr = valloc(); vaStQ = valloc(); vaClrO = valloc(); vaO0 = valloc(); vaO1 = valloc(); vaS0 = valloc(); vaS1 = valloc(); vaQ2 = valloc(); vaH = valloc()
    vaPw = valloc(); vaPr = valloc(); vaSm = valloc(); vaSmW = valloc(); vaRedW = valloc(); vaRedZ = valloc()
    vaFinW = valloc(); vaFinZ = valloc(); vaFinQZ = valloc(); vaFinO = valloc()
    vaStH = valloc(); vaStX = valloc(); vaStO = valloc(); vaStS = valloc(); vaResU = valloc()
    vWs = valloc()
    vKs = valloc(4); vVs = valloc(2); vVr = valloc(2); vKr = valloc(4)
    g.vmax = nv[0]
    aK, aV, aWq, aW2, aWd = 0, 64, 128, 144, 176
    g.amax = 192

    FULL = (1 << 64) - 1
    def ts(name):
        if not cfg.diag: return
        if cfg.ts_only and name not in cfg.ts_only and name not in ("start", "setup", "issued"): return
        i = g.ts; g.ts += 1; g.maxts = max(getattr(g, "maxts", 0), g.ts)
        assert i < NTS - 3, name
        g.tsn[g.role].append((i, name))
        if name == "start":
            return
        if name == "issued":
            g.i_issued = i
            a(f"s_memtime s[{sTmp2}:{sTmp2+1}]\ns_waitcnt lgkmcnt(0)\ns_mov_b32 s92, s{sTmp2}")
            return
        if name == "setup":
            a(f"s_mov_b32 s{sTS}, s90\ns_mov_b32 s{sTS+NTS-3}, s91")
            if cfg.ts_issue: a(f"s_mov_b32 s{sTmp2}, s92")
            for z in list(range(1, NTS - 3)) + [NTS - 2, NTS - 1]: a(f"s_mov_b32 s{sTS+z}, 0")
            if cfg.ts_issue: a(f"s_mov_b32 s{sTS+g.i_issued}, s{sTmp2}")
        if cfg.ts_only and name not in cfg.ts_only:
            return
        a(f"s_memtime s[{sTmp2}:{sTmp2+1}]\ns_waitcnt lgkmcnt(0)\ns_mov_b32 s{sTS+i}, s{sTmp2}")
    def ts_dyn(name0, name1):
        if not cfg.diag: return
        if cfg.ts_only and name0 not in cfg.ts_only: return
        i = g.ts; g.ts += 2; g.maxts = max(getattr(g, "maxts", 0), g.ts)
        assert i + 1 < NTS - 3, name0
        g.tsn[g.role].append((i, name0)); g.tsn[g.role].append((i + 1, name1))
        if cfg.ts_only and name0 not in cfg.ts_only: return
        a(f"""s_memtime s[{sTmp2}:{sTmp2+1}]
        s_waitcnt lgkmcnt(0)
        s_cmp_eq_u32 s{sL}, 0
        s_cselect_b32 s{sTS+i}, s{sTmp2}, s{sTS+i}
        s_cselect_b32 s{sTS+i+1}, s{sTS+i+1}, s{sTmp2}""")

    def cnt(name):
        if not (cfg.diag and cfg.counters): return
        key = (g.role, name)
        if key not in g.cnts:
            i = g.ts; g.ts += 1; g.maxts = max(getattr(g, "maxts", 0), g.ts)
            assert i < NTS - 3, name
            g.cnts[key] = i; g.cnt_names.append((g.role, i, name))
        a(f"s_add_u32 s{sTS+g.cnts[key]}, s{sTS+g.cnts[key]}, 1")

    def setexec(mask):
        if mask == FULL: a("s_mov_b64 exec, -1")
        elif isinstance(mask, str): a(f"s_mov_b64 exec, {mask}")
        elif mask < 65 or mask in (0xFFFF, 0xF, 0xFF):
            a(f"s_mov_b64 exec, 0x{mask:x}" if mask >= 65 else f"s_mov_b64 exec, {mask}")
        else:
            a(f"s_mov_b32 exec_lo, 0x{mask & 0xFFFFFFFF:x}\ns_mov_b32 exec_hi, 0x{mask >> 32:x}")
    EM4, EM2, EMEV = f"s[{sM4}:{sM4+1}]", f"s[{sM2}:{sM2+1}]", f"s[{sMEV}:{sMEV+1}]"

    def srd(dst, ptr_s, size):
        a(f"s_mov_b32 s{dst}, s{ptr_s}\ns_and_b32 s{dst+1}, s{ptr_s+1}, 0xffff\ns_mov_b32 s{dst+2}, 0x{size:x}\ns_mov_b32 s{dst+3}, 0x20000")

    def mfma(d, A, B, C=None):
        f = lambda x: x if isinstance(x, str) else vr(x, 4)
        c = f(d) if C is None else C
        a(f"v_mfma_f32_16x16x32_bf16 {f(d)}, {f(A)}, {f(B)}, {c}")

    def spin_fail(lbl_retry, sleep=0):
        if sleep: a(f"s_sleep {sleep}")
        a(f"s_sub_u32 s{sBud}, s{sBud}, 1\ns_cbranch_scc0 {lbl_retry}\ns_branch L_abort")
    def interleave(mf, va, start, per=2):
        va = list(va)
        for i, m in enumerate(mf):
            a(m)
            if i >= start:
                for _ in range(per):
                    if va: a(va.pop(0))
        for v in va: a(v)
    def mf(d, A, B, C=None):
        f = lambda x: x if isinstance(x, str) else vr(x, 4)
        return f"v_mfma_f32_16x16x32_bf16 {f(d)}, {f(A)}, {f(B)}, {f(d) if C is None else C}"

    def sent_max(regs, tmp):
        rs = list(regs)
        if len(rs) == 1: return rs[0]
        if len(rs) == 2:
            a(f"v_max_u32 v{tmp}, v{rs[0]}, v{rs[1]}"); rs = []
        else:
            a(f"v_max3_u32 v{tmp}, v{rs[0]}, v{rs[1]}, v{rs[2]}"); rs = rs[3:]
        while len(rs) >= 2:
            a(f"v_max3_u32 v{tmp}, v{tmp}, v{rs[0]}, v{rs[1]}"); rs = rs[2:]
        if rs: a(f"v_max_u32 v{tmp}, v{tmp}, v{rs[0]}")
        return tmp
    def sent_check(regs, tmp, lbl_ok):
        cur = sent_max(regs, tmp)
        a(f"v_cmp_eq_u32 vcc, -1, v{cur}\ns_cbranch_vccz {lbl_ok}")

    g.ool = []
    def store_local(instr):
        if cfg.force_global:
            a(instr + " sc1"); return
        l1 = a.label("stg"); l2 = a.label("std")
        a(f"s_cmp_eq_u32 s{sLocal}, 0\ns_cbranch_scc1 {l1}")
        a(instr)
        a(f"{l2}:")
        g.ool.append(f"{l1}:\n{instr} sc1\ns_branch {l2}")

    def dpp(op, d, s0, s1, ctrl, rm="0xf", bm="0xf"):
        if s1 is None: a(f"{op}_dpp v{d}, v{s0} {ctrl} row_mask:{rm} bank_mask:{bm}")
        else: a(f"{op}_dpp v{d}, v{s0}, v{s1} {ctrl} row_mask:{rm} bank_mask:{bm}")
    def row_reduce(op, v, steps=(8, 4, 2, 1)):
        for n in steps: dpp(op, v, v, v, f"row_ror:{n}")
    def xquad_reduce(op, v, tmp):
        a(f"v_mov_b32 v{tmp}, v{v}\nv_permlane32_swap_b32 v{v}, v{tmp}\n{op} v{v}, v{v}, v{tmp}")
        a(f"v_mov_b32 v{tmp}, v{v}\nv_permlane16_swap_b32 v{v}, v{tmp}\n{op} v{v}, v{v}, v{tmp}")
    def sum4(dst, b, tmp):
        a(f"v_add_f32 v{dst}, v{b}, v{b+1}\nv_add_f32 v{tmp}, v{b+2}, v{b+3}\nv_add_f32 v{dst}, v{dst}, v{tmp}")

    P = sTS
    EARLY = ""
    if cfg.dbg_span:
        EARLY = f"s_memrealtime s[94:95]"
    if cfg.diag:
        EARLY = f"s_memrealtime s[{sTmp2}:{sTmp2+1}]\ns_waitcnt lgkmcnt(0)\ns_mov_b32 s91, s{sTmp2}\ns_memtime s[{sTmp2}:{sTmp2+1}]\ns_waitcnt lgkmcnt(0)\ns_mov_b32 s90, s{sTmp2}"
    SLN = " nt" if cfg.sl_nt else ""
    a(f"""
    s_cmp_ge_u32 s2, 256
    s_cbranch_scc1 L_end
    {EARLY}
    s_load_dwordx4 s[{P+6}:{P+9}], s[0:1], 16          ; V, wq     (76..79)
    s_load_dwordx4 s[{P+2}:{P+5}], s[0:1], 0           ; x, K      (72..75)
    s_load_dwordx2 s[{P+18}:{P+19}], s[0:1], 88        ; ws        (88..89)
    s_load_dwordx2 s[{P}:{P+1}], s[0:1], 32            ; wo        (70..71)
    s_load_dwordx4 s[{P+10}:{P+13}], s[0:1], 48
    s_load_dwordx4 s[{P+14}:{P+17}], s[0:1], 64
    v_lshrrev_b32 v{vT0}, 6, v0
    v_and_b32 v{vLane}, 63, v0
    """)
    if cfg.prefetch_code:
        a(f"""
        s_getpc_b64 s[{sTmp2}:{sTmp2+1}]
        L_pfbase:
        v_readfirstlane_b32 s{sW}, v{vT0}
        v_lshlrev_b32 v{vT1}, 7, v0
        s_mov_b32 s{sB}, (L_codeend - L_pfbase)
        v_cmp_gt_u32 vcc, s{sB}, v{vT1}
        s_and_b32 s{sJ}, s2, 7
        s_and_saveexec_b64 s[{sEx}:{sEx+1}], vcc
        s_cbranch_execz L_nopf
        global_load_dword v{vU+15}, v{vT1}, s[{sTmp2}:{sTmp2+1}]
        L_nopf:
        s_mov_b64 exec, s[{sEx}:{sEx+1}]
        """)
    else:
        a(f"s_and_b32 s{sJ}, s2, 7\nv_readfirstlane_b32 s{sW}, v{vT0}")
    a(f"""
    s_lshr_b32 s{sM}, s2, 3
    v_lshrrev_b32 v{vT2}, 1, v{vLane}
    v_lshlrev_b32 v{vT2}, 13, v{vT2}
    v_and_b32 v{vT3}, 1, v{vLane}
    v_lshl_add_u32 v{vT2}, v{vT3}, 4, v{vT2}
    v_lshrrev_b32 v{vT0}, {4 if "q" in cfg.sub2 else 3}, v{vLane}
    v_lshlrev_b32 v{vT0}, 13, v{vT0}
    v_and_b32 v{vT3}, {15 if "q" in cfg.sub2 else 7}, v{vLane}
    v_lshl_add_u32 v{vT0}, v{vT3}, {6 if "q" in cfg.sub2 else 7}, v{vT0}
    s_lshl_b32 s{sC}, s{sJ}, 10
    s_lshl_b32 s{sA}, s{sM}, 2
    s_add_u32 s{sA}, s{sA}, s{sW}
    s_lshl_b32 s{sA}, s{sA}, 15
    s_add_u32 s{sA}, s{sA}, s{sC}
    s_lshl_b32 s{sB}, s{sW}, 20
    s_add_u32 s{sB}, s{sB}, s{sC}
    s_lshl_b32 s{sC}, s{sM}, 5
    s_add_u32 s{sB}, s{sB}, s{sC}
    s_lshl_b32 s{sC}, s{sW}, 12
    s_add_u32 s{sC}, s{sC}, {L_WQ}
    s_mov_b32 s{sWQ+2}, 0x400000
    s_mov_b32 s{sWQ+3}, 0x20000
    s_waitcnt lgkmcnt(0)
    s_mov_b32 s{sWQ}, s{P+8}
    s_and_b32 s{sWQ+1}, s{P+9}, 0xffff
    """)
    if cfg.line_pf and "q" in cfg.pf_which:
        if "q" not in cfg.sub2: setexec(0xFFFFFFFF)
        a(f"buffer_load_dword v{vJ}, v{vT0}, {sr(sWQ,4)}, s{sA} offen{cfg.pf_pol}")
        if "q" not in cfg.sub2: setexec(FULL)
    for u in range(4):
        a(f"""
        s_mov_b32 m0, s{sC}
        s_add_u32 s{sC}, s{sC}, 1024
        buffer_load_dwordx4 v{vT2}, {sr(sWQ,4)}, s{sB} offen{SLN} lds
        s_add_u32 s{sB}, s{sB}, {32*8192}
        """)
    XA = vA + 8
    ROT = {"m8": f"s_and_b32 s{sRot}, s{sM}, 7\ns_lshl_b32 s{sRot}, s{sRot}, 1",
           "mj8": f"s_add_u32 s{sRot}, s{sM}, s{sJ}\ns_and_b32 s{sRot}, s{sRot}, 7\ns_lshl_b32 s{sRot}, s{sRot}, 1",
           "m16": f"s_and_b32 s{sRot}, s{sM}, 15",
           "mj16": f"s_lshl_b32 s{sRot}, s{sJ}, 1\ns_add_u32 s{sRot}, s{sRot}, s{sM}\ns_and_b32 s{sRot}, s{sRot}, 15",
           "none": f"s_mov_b32 s{sRot}, 0",
           "m4x4": f"s_and_b32 s{sRot}, s{sM}, 3\ns_lshl_b32 s{sRot}, s{sRot}, 2"}[cfg.rot_mode]
    a(f"""
    v_and_b32 v{vR16}, 15, v0
    v_lshrrev_b32 v{vQd}, 4, v{vLane}
    s_and_b32 s{sIdx}, s{sM}, 15
    {ROT}
    s_lshr_b32 s{sB}, s{sM}, 4
    s_lshl_b32 s{sB}, s{sB}, 3
    s_add_u32 s{sB}, s{sB}, s{sJ}
    s_lshl_b32 s{sB}, s{sB}, 23
    s_lshl_b32 s{sC}, s{sIdx}, 16
    s_add_u32 s{sKV}, s{sB}, s{sC}
    s_add_u32 s{sKV}, s{sKV}, 0x700000
    v_lshlrev_b32 v{vT1}, 4, v{vLane}          ; lane*16
    """)
    srd(sKS, P + 4, 0x8000000)
    for i in range(4):
        a(f"""
        v_add_u32 v{vT3}, {4*i}, v{vQd}
        v_xor_b32 v{vT3}, v{vT3}, v{vR16}
        v_lshlrev_b32 v{vT3}, 4, v{vT3}
        v_lshl_add_u32 v{vKs+i}, v{vQd}, 8, v{vT3}
        """)
    srd(sWS, P + 18, WS_SIZE)
    if cfg.const_tag: a(f"s_mov_b32 s{sT}, 0x12345670")
    else: a(f"s_load_dword s{sT}, s[{P+18}:{P+19}], {WS_EPOCH}")
    srd(sX0, P + 2, 2048)
    a(f"s_cmp_eq_u32 s{sW}, 0\ns_cbranch_scc0 L_nox0")
    a(f"""
    s_mov_b32 m0, {L_X0}
    s_nop 0
    buffer_load_dwordx4 v{vT1}, {sr(sX0,4)}, 0 offen lds
    buffer_load_dwordx4 v{vT1}, {sr(sX0,4)}, 0 offen offset:1024 lds
    L_nox0:
    """)
    a(f"""
    s_mul_i32 s{sOown}, s{sJ}, {O_J}
    s_lshr_b32 s{sB}, s{sM}, 4
    s_lshl_b32 s{sB}, s{sB}, 14
    s_add_u32 s{sOown}, s{sOown}, s{sB}
    s_lshl_b32 s{sB}, s{sIdx}, 4
    s_add_u32 s{sOown}, s{sOown}, s{sB}
    s_add_u32 s{sOown}, s{sOown}, {WS_O}
    s_lshl_b32 s{sC}, s{sIdx}, 10
    s_lshl_b32 s{sD}, s{sJ}, 7
    s_add_u32 s{sC}, s{sC}, s{sD}
    s_add_u32 s{sXw}, s{sC}, {WS_X}
    s_mov_b32 s{sXr}, {WS_X}
    s_lshl_b32 s{sHb}, s{sJ}, 10
    s_add_u32 s{sHb}, s{sHb}, {WS_H}
    s_lshl_b32 s{sQ2w}, s{sJ}, 11
    s_add_u32 s{sQ2r}, s{sQ2w}, {WS_Q2}
    ; producer m: h = m>>3, c = (m>>1)&3, e0 = 2*(m&1)  ->  c*256 + e0*64 + h*16
    s_lshr_b32 s{sB}, s{sM}, 1
    s_and_b32 s{sB}, s{sB}, 3
    s_lshl_b32 s{sB}, s{sB}, 8
    s_add_u32 s{sQ2w}, s{sQ2r}, s{sB}
    s_and_b32 s{sB}, s{sM}, 1
    s_lshl_b32 s{sB}, s{sB}, 7
    s_add_u32 s{sQ2w}, s{sQ2w}, s{sB}
    s_lshr_b32 s{sB}, s{sM}, 3
    s_lshl_b32 s{sB}, s{sB}, 4
    s_add_u32 s{sQ2w}, s{sQ2w}, s{sB}
    s_lshr_b32 s{sB}, s{sM}, 4
    s_lshl_b32 s{sB}, s{sB}, 10
    s_add_u32 s{sQ2r}, s{sQ2r}, s{sB}
    """)
    if cfg.no_clear0: a("s_branch L_clr_done")
    a(f"""
    v_mov_b32 v{vU}, -1
    v_mov_b32 v{vU+1}, -1
    v_mov_b32 v{vU+2}, -1
    v_mov_b32 v{vU+3}, -1
    v_bfe_u32 v{vT3}, v{vLane}, 1, 1
    v_lshlrev_b32 v{vT3}, 10, v{vT3}
    v_and_b32 v{vT0}, 1, v{vLane}
    v_lshl_add_u32 v{vT3}, v{vT0}, 6, v{vT3}
    v_add_u32 v{vT0}, s{sQ2w}, v{vT3}
    s_cmp_lt_u32 s{sM}, 16
    s_cbranch_scc0 L_clr_B
    s_cmp_eq_u32 s{sW}, 1
    s_cbranch_scc0 L_clr_A2
    """)
    setexec(0xF)
    a(f"""
    s_branch L_clr_st
    L_clr_A2:
    s_cmp_eq_u32 s{sW}, 2
    s_cbranch_scc0 L_clr_done
    s_xor_b32 s{sC}, s{sXw}, 0x2000
    s_add_u32 s{sC}, s{sC}, 16384
    v_mov_b32 v{vT0}, s{sXw}
    v_mov_b32 v{vT1}, s{sC}
    v_bfe_u32 v{vT3}, v{vLane}, 3, 1
    v_cmp_eq_u32 vcc, 1, v{vT3}
    v_cndmask_b32 v{vT0}, v{vT0}, v{vT1}, vcc
    v_lshrrev_b32 v{vT3}, 4, v{vLane}
    v_lshlrev_b32 v{vT3}, 15, v{vT3}
    v_and_b32 v{vT1}, 7, v{vLane}
    v_lshl_add_u32 v{vT3}, v{vT1}, 4, v{vT3}
    v_add_u32 v{vT0}, v{vT0}, v{vT3}
    s_branch L_clr_st
    L_clr_B:
    s_cmp_eq_u32 s{sW}, 2
    s_cbranch_scc0 L_clr_done
    """)
    setexec(0xF)
    a(f"""
    s_cmp_ge_u32 s{sIdx}, 14
    s_cbranch_scc1 L_clr_st
    s_lshl_b32 s{sD}, s{sIdx}, 6
    s_add_u32 s{sC}, s{sHb}, s{sD}
    """)
    setexec(0xFF0)
    a(f"""
    v_bfe_u32 v{vT3}, v{vLane}, 3, 1
    v_lshlrev_b32 v{vT3}, 13, v{vT3}
    v_and_b32 v{vT1}, 3, v{vLane}
    v_lshl_add_u32 v{vT3}, v{vT1}, 4, v{vT3}
    v_add_u32 v{vT0}, s{sC}, v{vT3}
    """)
    setexec(0xFFF)
    a("L_clr_st:")
    a(f"buffer_store_dwordx4 {vr(vU,4)}, v{vT0}, {sr(sWS,4)}, 0 offen sc1")
    setexec(FULL)
    a("L_clr_done:")
    def emit_wpf(qWO, qGT, reload_ptrs):
        n = 0
        a(f"s_lshl_b32 s{sD}, s{sM}, 2\ns_add_u32 s{sD}, s{sD}, s{sW}               ; q = 4m + w")
        if reload_ptrs:
            a(f"""
            s_load_dwordx2 s[{qWO}:{qWO+1}], s[0:1], 32
            s_load_dwordx2 s[{qGT}:{qGT+1}], s[0:1], 48
            s_waitcnt lgkmcnt(0)
            s_and_b32 s{qWO+1}, s{qWO+1}, 0xffff
            s_mov_b32 s{qWO+2}, 0x400000
            s_and_b32 s{qGT+1}, s{qGT+1}, 0xffff
            s_mov_b32 s{qGT+2}, {512*1792*2}
            """)
        if "o" in cfg.pf_stream:
            a(f"""
            v_lshlrev_b32 v{vT0}, {6 if "o" in cfg.sub2 else 7}, v{vLane}
            s_lshl_b32 s{sB}, s{sJ}, 19
            s_lshl_b32 s{sC}, s{sD}, 12
            s_add_u32 s{sB}, s{sB}, s{sC}
            """)
            if "o" not in cfg.sub2: setexec(0xFFFFFFFF)
            a(f"buffer_load_dword v{vJ}, v{vT0}, {sr(qWO,4)}, s{sB} offen{cfg.pf_spol}")
            setexec(FULL); n += 1
        if "g" in cfg.pf_stream or "u" in cfg.pf_stream:
            a(f"""
            v_mul_u32_u24 v{vT0}, 52, v{vLane}
            v_lshrrev_b32 v{vT0}, 8, v{vT0}
            v_mul_u32_u24 v{vT1}, 5, v{vT0}
            v_sub_u32 v{vT1}, v{vLane}, v{vT1}
            v_mul_u32_u24 v{vT0}, 3584, v{vT0}
            v_lshl_add_u32 v{vT0}, v{vT1}, 7, v{vT0}
            s_mul_i32 s{sB}, s{sD}, {4*3584}
            s_mul_i32 s{sC}, s{sJ}, 448
            s_and_b32 s{sC}, s{sC}, 0xffffff80
            s_add_u32 s{sB}, s{sB}, s{sC}
            """)
            setexec((1 << 20) - 1)
            if "g" in cfg.pf_stream:
                a(f"buffer_load_dword v{vJ}, v{vT0}, {sr(qGT,4)}, s{sB} offen{cfg.pf_spol}"); n += 1
            if "u" in cfg.pf_stream:
                a(f"buffer_load_dword v{vJ}, v{vT0}, {sr(sUP,4)}, s{sB} offen{cfg.pf_spol}"); n += 1
            setexec(FULL)
        if "d" in cfg.pf_stream:
            a(f"""
            v_lshlrev_b32 v{vT0}, 7, v{vLane}
            s_min_u32 s{sB}, s{sD}, 111
            s_lshl_b32 s{sB}, s{sB}, 11
            s_mul_i32 s{sC}, s{sJ}, {224*1024}
            s_add_u32 s{sB}, s{sB}, s{sC}
            """)
            setexec(0xFFFF)
            a(f"buffer_load_dword v{vJ}, v{vT0}, {sr(sDN,4)}, s{sB} offen{cfg.pf_spol}")
            setexec(FULL); n += 1
        return n

    def page_off(t, dst):
        a(f"""
        s_add_u32 s{dst}, s{sW}, s{sRot}
        s_add_u32 s{dst}, s{dst}, {4*t}
        s_and_b32 s{dst}, s{dst}, 15
        s_lshl_b32 s{dst}, s{dst}, 12
        s_add_u32 s{dst}, s{dst}, s{sKV}
        """)
    def k_page(t):
        page_off(t, sD)
        a(f"s_lshl_b32 s{sC}, s{sW}, 14\ns_add_u32 s{sC}, s{sC}, {L_K + t*4096}\ns_mov_b32 m0, s{sC}\ns_nop 0")
        for ii in range(4):
            a(f"buffer_load_dwordx4 v{vKs+ii}, {sr(sKS,4)}, s{sD} offen offset:{ii*1024}{cfg.kv_pol} lds")
    nKpA = cfg.nKA // 4
    for t in range(cfg.nKb1): k_page(t)
    nPFe = 0
    if cfg.pf_stream and cfg.pf_early:
        srd(sVS, P, 0x400000)
        srd(sOUT, P + 10, 512 * 1792 * 2)
        srd(sUP, P + 12, 512 * 1792 * 2)
        srd(sDN, P + 14, 1792 * 512 * 2)
        nPFe = emit_wpf(sVS, sOUT, False)
    ts("start")
    if cfg.ts_issue: ts("issued")

    srd(sVS, P + 6, 0x8000000)
    srd(sUP, P + 12, 512 * 1792 * 2)
    srd(sDN, P + 14, 1792 * 512 * 2)
    srd(sOUT, P + 16, 2048)
    a(f"""
    s_cmp_lt_u32 s{sM}, 16
    s_cselect_b32 s{sW2}, s{P}, s{P+10}
    s_cselect_b32 s{sW2+1}, s{P+1}, s{P+11}
    s_mov_b32 s{sW2+2}, {512*1792*2}
    s_cselect_b32 s{sW2+2}, 0x400000, s{sW2+2}
    s_and_b32 s{sW2+1}, s{sW2+1}, 0xffff
    s_mov_b32 s{sW2+3}, 0x20000
    s_mov_b32 s{sBud}, {cfg.budget}
    s_getreg_b32 s{sXcc}, hwreg(HW_REG_XCC_ID, 0, 4)
    s_mov_b32 s{sMDIAG}, 0x00ff00ff
    s_mov_b32 s{sMDIAG+1}, 0xff00ff00
    s_mov_b32 s{sM4}, 0x000f000f
    s_mov_b32 s{sM4+1}, 0x000f000f
    s_mov_b32 s{sM2}, 0x00030003
    s_mov_b32 s{sM2+1}, 0x00030003
    s_mov_b32 s{sMN1}, 0x00020002
    s_mov_b32 s{sMN1+1}, 0x00020002
    s_mov_b32 s{sMEV}, 0x55555555
    s_mov_b32 s{sMEV+1}, 0x55555555
    s_mov_b32 s{sL}, 0
    s_mul_i32 s{sOcons}, s{sJ}, {O_J}
    s_lshl_b32 s{sB}, s{sW}, 12
    s_add_u32 s{sOcons}, s{sOcons}, s{sB}
    s_add_u32 s{sOcons}, s{sOcons}, {WS_O}
    """)
    for i in range(4): a(f"v_mov_b32 v{vOnes+i}, 0x3f803f80")
    for i in range(16): a(f"v_mov_b32 v{vQ+i}, 0")
    for i in range(8): a(f"v_mov_b32 v{vHop+i}, 0")
    a(f"v_mov_b32 v{vQ1a}, 0\nv_mov_b32 v{vQ1d}, 0\nv_mov_b32 v{vQ1d+1}, 0")
    h3 = vU; qh = vU + 1; ql = vU + 2
    a(f"""
    v_and_b32 v{h3}, 3, v{vR16}
    v_lshrrev_b32 v{qh}, 1, v{vQd}
    v_and_b32 v{ql}, 1, v{vQd}
    v_and_b32 v{vT0}, 7, v{vR16}
    v_lshlrev_b32 v{vT0}, 7, v{vT0}
    v_lshrrev_b32 v{vT1}, 3, v{vR16}
    v_lshl_add_u32 v{vT0}, v{vT1}, 6, v{vT0}
    v_lshl_add_u32 v{vaX}, v{vQd}, 4, v{vT0}
    v_lshrrev_b32 v{vT0}, 3, v{vLane}
    v_and_b32 v{vT1}, 2, v{vT0}
    v_and_b32 v{vT2}, 7, v{vLane}
    v_xor_b32 v{vT1}, v{vT1}, v{vT2}
    v_lshlrev_b32 v{vT1}, 4, v{vT1}
    v_lshl_add_u32 v{vT0}, v{vT0}, 7, v{vT1}
    s_lshl_b32 s{sB}, s{sW}, 12
    s_xor_b32 s{sC}, s{sB}, 0x2000
    s_add_u32 s{sC}, s{sC}, 16384
    s_lshr_b32 s{sA}, s{sXcc}, 2
    s_lshr_b32 s{sD}, s{sW}, 1
    s_cmp_eq_u32 s{sA}, s{sD}
    s_cselect_b32 s{sB}, s{sB}, s{sC}
    v_add_u32 v{vaXg}, s{sB}, v{vT0}
    v_and_b32 v{vT0}, 7, v{vR16}
    v_lshrrev_b32 v{vT1}, 3, v{vR16}
    v_lshl_add_u32 v{vT1}, v{vT1}, 2, v{vQd}
    v_and_b32 v{vT2}, 2, v{vT0}
    v_xor_b32 v{vT1}, v{vT1}, v{vT2}
    v_lshlrev_b32 v{vT1}, 4, v{vT1}
    v_lshl_add_u32 v{vT0}, v{vT0}, 7, v{vT1}
    s_lshl_b32 s{sXI}, s{sW}, 12
    s_add_u32 s{sXI}, s{sXI}, {L_XI}
    v_add_u32 v{vaXr}, s{sXI}, v{vT0}
    v_lshlrev_b32 v{vaO0}, 4, v{vLane}
    v_add_u32 v{vaO1}, 16384, v{vaO0}
    v_lshl_add_u32 v{vT0}, v{vQd}, 2, v{vR16}
    v_and_b32 v{vT0}, 15, v{vT0}
    v_lshlrev_b32 v{vT0}, 4, v{vT0}
    s_mul_i32 s{sB}, s{sW}, 3840
    s_sub_u32 s{sB}, {O_STATS}, s{sB}
    v_add_u32 v{vaS0}, s{sB}, v{vT0}
    v_add_u32 v{vaS1}, 1024, v{vaS0}
    v_lshlrev_b32 v{vT0}, 6, v{vQd}
    v_lshl_add_u32 v{vaQ2}, v{h3}, 4, v{vT0}
    v_lshlrev_b32 v{vT0}, 10, v{ql}
    v_lshrrev_b32 v{vT1}, 3, v{vR16}
    v_lshl_add_u32 v{vT0}, v{vT1}, 6, v{vT0}
    v_and_b32 v{vT1}, 7, v{vR16}
    v_lshl_add_u32 v{vaStQ}, v{vT1}, 1, v{vT0}
    v_lshlrev_b32 v{vT0}, 12, v{h3}
    v_lshl_add_u32 v{vT0}, v{vQd}, 10, v{vT0}
    v_bfe_u32 v{vT1}, v{vLane}, 2, 2
    v_lshl_add_u32 v{vaClrO}, v{vT1}, 8, v{vT0}
    v_and_b32 v{vT0}, 1, v{vR16}
    v_lshlrev_b32 v{vT0}, 5, v{vT0}
    v_lshl_add_u32 v{vT0}, v{qh}, 6, v{vT0}
    v_lshl_add_u32 v{vT0}, v{ql}, 4, v{vT0}
    s_lshl_b32 s{sB}, s{sW}, 7
    v_add_u32 v{vaH}, s{sB}, v{vT0}
    v_lshlrev_b32 v{vT0}, 6, v{vQd}
    v_lshl_add_u32 v{vT0}, v{h3}, 4, v{vT0}
    v_add_u32 v{vaPr}, {L_PBUF}, v{vT0}
    v_lshrrev_b32 v{vT1}, 2, v{vR16}
    v_lshl_add_u32 v{vT1}, v{vT1}, 9, v{vaPr}
    s_lshr_b32 s{sB}, s{sW}, 1
    s_lshl_b32 s{sB}, s{sB}, 8
    s_and_b32 s{sC}, s{sW}, 1
    s_lshl_b32 s{sC}, s{sC}, 3
    s_add_u32 s{sB}, s{sB}, s{sC}
    v_add_u32 v{vaPw}, s{sB}, v{vT1}
    v_lshlrev_b32 v{vT0}, 4, v{h3}
    v_add_u32 v{vaSm}, {L_SMAX}, v{vT0}
    s_lshl_b32 s{sB}, s{sW}, 2
    v_add_u32 v{vaSmW}, s{sB}, v{vaSm}
    v_lshlrev_b32 v{vT0}, 4, v{vLane}
    v_add_u32 v{vaRedW}, s{sB}, v{vT0}
    v_and_b32 v{vT1}, 1, v{vR16}
    v_lshl_add_u32 v{vT1}, v{qh}, 1, v{vT1}
    v_lshlrev_b32 v{vT1}, 4, v{vT1}
    v_add_u32 v{vaRedZ}, s{sB}, v{vT1}
    v_lshl_add_u32 v{vT0}, v{ql}, 5, v{vR16}
    v_lshlrev_b32 v{vaFinW}, 4, v{vT0}
    v_lshlrev_b32 v{vaFinZ}, 5, v{ql}
    v_lshlrev_b32 v{vT0}, 9, v{ql}
    v_add_u32 v{vaFinQZ}, 256, v{vT0}
    v_lshlrev_b32 v{vaFinO}, 4, v{vLane}
    v_lshlrev_b32 v{vT0}, 5, v{ql}
    v_lshl_add_u32 v{vaStH}, v{vR16}, 1, v{vT0}
    v_lshlrev_b32 v{vT0}, 6, v{ql}
    v_lshl_add_u32 v{vT0}, v{qh}, 5, v{vT0}
    v_lshl_add_u32 v{vaStX}, v{vR16}, 1, v{vT0}
    v_lshlrev_b32 v{vT0}, 12, v{vR16}
    v_lshl_add_u32 v{vT0}, v{vQd}, 8, v{vT0}
    s_lshl_b32 s{sB}, s{sW}, 10
    v_add_u32 v{vaStO}, s{sB}, v{vT0}
    s_lshr_b32 s{sB}, s{sM}, 4
    s_mul_i32 s{sB}, s{sB}, 15360
    s_sub_u32 s{sB}, {O_STATS}, s{sB}
    v_lshlrev_b32 v{vT0}, 8, v{vLane}
    v_add_u32 v{vaStS}, s{sB}, v{vT0}
    """)
    a(f"s_lshl_b32 s{sB}, s{sW}, 14\ns_add_u32 s{sB}, s{sB}, {L_K}")
    for c in range(4):
        a(f"""
        v_add_u32 v{vT0}, {4*c}, v{vQd}
        v_xor_b32 v{vT0}, v{vT0}, v{vR16}
        v_lshlrev_b32 v{vT0}, 4, v{vT0}
        v_lshl_add_u32 v{vT0}, v{vR16}, 8, v{vT0}
        v_add_u32 v{vKr+c}, s{sB}, v{vT0}
        """)
    for e in range(2):
        a(f"""
        v_add_u32 v{vT1}, {4*e}, v{vQd}
        v_lshrrev_b32 v{vT2}, 1, v{vR16}
        v_xor_b32 v{vT1}, v{vT1}, v{vT2}
        v_lshlrev_b32 v{vT1}, 1, v{vT1}
        v_and_b32 v{vT2}, 1, v{vR16}
        v_or_b32 v{vT1}, v{vT1}, v{vT2}
        v_lshlrev_b32 v{vT1}, 4, v{vT1}
        v_lshl_add_u32 v{vVs+e}, v{vQd}, 8, v{vT1}
        """)
    for nt in range(2):
        a(f"""
        v_lshrrev_b32 v{vT1}, 2, v{vR16}
        v_lshl_add_u32 v{vT0}, v{vQd}, 2, v{vT1}
        v_and_b32 v{vT2}, 7, v{vT0}
        s_lshl_b32 s{sB}, s{sW}, 1
        s_add_u32 s{sB}, s{sB}, {nt}
        v_xor_b32 v{vT2}, s{sB}, v{vT2}
        v_lshlrev_b32 v{vT2}, 5, v{vT2}
        v_lshl_add_u32 v{vT0}, v{vT0}, 8, v{vT2}
        v_lshl_add_u32 v{vT0}, v{h3}, 3, v{vT0}
        v_add_u32 v{vVr+nt}, {L_V}, v{vT0}
        """)
    for i in range(16): a(f"v_mov_b32 v{XA+i}, 0")
    if cfg.w_inter:
        a(f"""
        s_cmp_lt_u32 s{sM}, 16
        s_cbranch_scc0 L_wsB
        v_lshrrev_b32 v{vT0}, 2, v{vLane}
        v_lshlrev_b32 v{vT0}, 10, v{vT0}
        v_and_b32 v{vT1}, 3, v{vLane}
        v_lshl_add_u32 v{vWs}, v{vT1}, 4, v{vT0}
        s_lshl_b32 s{sWb}, s{sJ}, 19
        s_lshl_b32 s{sC}, s{sW}, 17
        s_add_u32 s{sWb}, s{sWb}, s{sC}
        s_lshl_b32 s{sC}, s{sIdx}, 6
        s_add_u32 s{sWb}, s{sWb}, s{sC}
        s_mov_b32 s{sWst}, 16384
        s_mov_b32 s{sUP}, s{sW2}
        s_mov_b32 s{sUP+1}, s{sW2+1}
        s_mov_b32 s{sUP+2}, s{sW2+2}
        s_branch L_wsD
        L_wsB:
        v_lshrrev_b32 v{vT0}, 1, v{vLane}
        v_mul_u32_u24 v{vT0}, 3584, v{vT0}
        v_and_b32 v{vT1}, 1, v{vLane}
        v_lshl_add_u32 v{vWs}, v{vT1}, 4, v{vT0}
        s_mul_i32 s{sWb}, s{sW}, {128*3584}
        s_mul_i32 s{sC}, s{sJ}, 448
        s_add_u32 s{sWb}, s{sWb}, s{sC}
        s_lshl_b32 s{sC}, s{sIdx}, 5
        s_add_u32 s{sWb}, s{sWb}, s{sC}
        s_mov_b32 s{sWst}, {32*3584}
        L_wsD:
        """)
    ts("setup")
    a(f"s_waitcnt vmcnt({4*cfg.nKb1 + nPFe})")
    ts("wq_landed")
    for t in range(cfg.nKb1, nKpA): k_page(t)

    def tr_base(dst, rowbytes, rowmul, sadd, const):
        sh = rowbytes.bit_length() - 1; rm = rowmul.bit_length() - 1
        a(f"""
        v_lshrrev_b32 v{vT1}, 2, v{vR16}
        v_lshl_add_u32 v{vT1}, v{vQd}, {rm}, v{vT1}
        v_lshlrev_b32 v{vT1}, {sh}, v{vT1}
        v_and_b32 v{vT2}, 3, v{vR16}
        v_lshl_add_u32 v{vT1}, v{vT2}, 3, v{vT1}
        v_add_u32 v{vT1}, s{sadd}, v{vT1}
        v_add_u32 v{dst}, {const}, v{vT1}
        """)

    def ln_stats(s1, s2, mean, rstd):
        a(f"""
        v_mul_f32 v{mean}, {f2u(1.0/512):#x}, v{s1}
        v_mul_f32 v{s2}, {f2u(1.0/512):#x}, v{s2}
        v_fma_f32 v{s2}, -v{mean}, v{mean}, v{s2}
        v_max_f32 v{s2}, 0, v{s2}
        v_add_f32 v{s2}, {f2u(1e-5):#x}, v{s2}
        v_rsq_f32 v{rstd}, v{s2}
        """)
    def sum4r(b):
        a(f"v_add_f32 v{b}, v{b}, v{b+1}\nv_add_f32 v{b+2}, v{b+2}, v{b+3}\nv_add_f32 v{b}, v{b}, v{b+2}")

    def stats_valu(z):
        L = [f"v_add_f32 v{z}, v{vAcc+8}, v{vAcc+9}", f"v_add_f32 v{vT3}, v{vAcc+10}, v{vAcc+11}", f"v_add_f32 v{z}, v{z}, v{vT3}",
             f"v_cndmask_b32 v{z}, 0, v{z}, s[{sMDIAG}:{sMDIAG+1}]"]
        for n in (8, 4, 2, 1):
            L.append(f"v_add_f32_dpp v{z}, v{z}, v{z} row_ror:{n} row_mask:0xf bank_mask:0xf")
        L += [f"v_add_f32 v{z+1}, v{vAcc+12}, v{vAcc+13}", f"v_add_f32 v{vT3}, v{vAcc+14}, v{vAcc+15}", f"v_add_f32 v{z+1}, v{z+1}, v{vT3}",
              f"v_cndmask_b32 v{z}, v{z+1}, v{z}, s[{sMN1}:{sMN1+1}]"]
        return L
    def stats_mf(X):
        return [mf(vAcc + 8, X + 4*u, X + 4*u, "0" if u == 0 else None) for u in range(4)] + \
               [mf(vAcc + 12, X + 4*u, vOnes, "0" if u == 0 else None) for u in range(4)]

    def q_core(X):
        M = stats_mf(X) + [mf(vAcc, X + 4*u, ar(aWq + 4*u, 4), "0" if u == 0 else None) for u in range(4)]
        interleave(M, stats_valu(vU), 8, 2)
        sum4(vU + 2, vAcc, vT3)
        a(f"""
        v_permlane16_swap_b32 v{vU+2}, v{vU}
        v_add_f32 v{vU}, v{vU}, v{vU+2}
        ds_write_b32 v{vaRedW}, v{vU} offset:{R_Q}
        s_waitcnt lgkmcnt(0)
        s_barrier
        """)
    def q_final(first):
        lab = a.label("qf")
        a(f"s_cmp_eq_u32 s{sW}, 0\ns_cbranch_scc0 {lab}")
        setexec(0xFFFFFFFF)
        a(f"""
        ds_read_b128 {vr(vU,4)}, v{vaFinW} offset:{R_Q}
        ds_read_b128 {vr(vU+4,4)}, v{vaFinQZ} offset:{R_Q}
        ds_read_b128 {vr(vU+8,4)}, v{vaFinQZ} offset:{R_Q+16}
        """)
        if first:
            a(f"ds_read_b128 {vr(vU+12,4)}, v{vaFinW} offset:{R_COL}")
        a("s_waitcnt lgkmcnt(0)")
        if first:
            sum4r(vU + 12); a(f"v_mov_b32 v{vCs}, v{vU+12}")
        sum4r(vU + 4); sum4r(vU + 8); sum4r(vU)
        ln_stats(vU + 4, vU + 8, vU + 5, vU + 6)
        a(f"""
        v_fma_f32 v{vU}, -v{vU+5}, v{vCs}, v{vU}
        v_mul_f32 v{vU}, v{vU}, v{vU+6}
        """)
        dpp("v_mov_b32", vU + 1, vU, None, "quad_perm:[1,0,3,2]")
        a(f"v_cvt_pk_bf16_f32 v{vU+2}, v{vU}, v{vU+1}")
        if first:
            a(f"""
            v_mov_b32 v{vQ1d}, v{vU+2}
            v_mov_b32 v{vQ1d+1}, s{sTX}
            s_lshl_b32 s{sB}, s{sJ}, 12
            s_lshl_b32 s{sC}, s{sM}, 7
            s_add_u32 s{sB}, s{sB}, s{sC}
            s_add_u32 s{sB}, s{sB}, {WS_Q1}
            v_lshlrev_b32 v{vT0}, 1, v{vaStH}
            v_add_u32 v{vQ1a}, s{sB}, v{vT0}
            """)
            setexec(0x55555555)
            a(f"buffer_store_dwordx2 {vr(vQ1d,2)}, v{vQ1a}, {sr(sWS,4)}, 0 offen" + (" sc1" if cfg.force_global else ""))
        else:
            a(f"v_min_u32 v{vU+2}, 0xfffffffe, v{vU+2}")
            setexec(0x55555555)
            store_local(f"buffer_store_dword v{vU+2}, v{vaStQ}, {sr(sWS,4)}, s{sQ2w} offen")
        setexec(FULL)
        a(f"{lab}:")

    def s_qk_max():
        for c in range(4):
            for t in range(4):
                mfma(vS + 4*t, ar(aK + 16*t + 4*c, 4), vQ + 4*c, "0" if c == 0 else None)
        for t in range(1, 4):
            for r in range(4):
                dpp("v_mov_b32", vS + r, vS + 4*t + r, None, f"row_shr:{4*t}", bm=f"0x{1<<t:x}")
        a(f"v_max3_f32 v{vU}, v{vS}, v{vS+1}, v{vS+2}\nv_max_f32 v{vU}, v{vU}, v{vS+3}")
        row_reduce("v_max_f32", vU, (8, 4))
        xquad_reduce("v_max_f32", vU, vT0)
        setexec(0xF)
        a(f"ds_write_b32 v{vaSmW}, v{vU}")
        setexec(FULL)
        a("s_waitcnt lgkmcnt(0)\ns_barrier")
    def s_exp_p():
        a(f"""
        ds_read_b128 {vr(vU+4,4)}, v{vaSm}
        s_mov_b32 s{sB}, {f2u(C_SCALE):#x}
        s_waitcnt lgkmcnt(0)
        v_max3_f32 v{vU}, v{vU+4}, v{vU+5}, v{vU+6}
        v_max_f32 v{vU}, v{vU}, v{vU+7}
        v_mul_f32 v{vMc}, s{sB}, v{vU}
        """)
        for i in range(4): a(f"v_fma_f32 v{vS+i}, v{vS+i}, s{sB}, -v{vMc}")
        for i in range(4): a(f"v_exp_f32 v{vS+i}, v{vS+i}")
        a(f"""
        v_cvt_pk_bf16_f32 v{vU+2}, v{vS}, v{vS+1}
        v_cvt_pk_bf16_f32 v{vU+3}, v{vS+2}, v{vS+3}
        ds_write_b64 v{vaPw}, {vr(vU+2,2)}
        v_add_f32 v{vU}, v{vS}, v{vS+1}
        v_add_f32 v{vU+1}, v{vS+2}, v{vS+3}
        v_add_f32 v{vU}, v{vU}, v{vU+1}
        """)
        row_reduce("v_add_f32", vU, (8, 4))
        xquad_reduce("v_add_f32", vU, vT0)
        setexec(0xF)
        a(f"ds_write_b32 v{vaSmW}, v{vU} offset:{L_LSUM-L_SMAX}")
        setexec(FULL)
        a("s_waitcnt lgkmcnt(0)\ns_barrier")
        for blk in range(8):
            a(f"ds_read_b128 {vr(vP+4*blk,4)}, v{vaPr} offset:{blk*256}")
    def s_stats_prep():
        lab = a.label("st")
        a(f"s_cmp_eq_u32 s{sW}, 3\ns_cbranch_scc0 {lab}")
        a(f"""
        ds_read_b128 {vr(vU+4,4)}, v{vaSm} offset:{L_LSUM-L_SMAX}
        s_add_u32 s{sB}, s{sT}, s{sL}
        s_add_u32 s{sB}, s{sB}, 1
        v_mov_b32 v{vMc+2}, s{sB}
        s_waitcnt lgkmcnt(0)
        """)
        sum4r(vU + 4)
        a(f"v_mov_b32 v{vMc+1}, v{vU+4}")
        a(f"{lab}:")
    def s_stats_store(wait):
        lab = a.label("ss")
        a(f"s_cmp_eq_u32 s{sW}, 3\ns_cbranch_scc0 {lab}")
        if wait is not None: a(f"s_waitcnt vmcnt({wait})")
        setexec(0xF)
        store_local(f"buffer_store_dwordx4 {vr(vMc,4)}, v{vaStS}, {sr(sWS,4)}, s{sOown} offen")
        setexec(FULL)
        a(f"{lab}:")
    accO = vAcc
    def v_tr(blk):
        t, p = blk >> 1, blk & 1
        for nt in range(2):
            a(f"ds_read_b64_tr_b16 {ar(aV+8*blk+4*nt,2)}, v{vVr+nt} offset:{(4*t+2*p)*4096}")
            a(f"ds_read_b64_tr_b16 {ar(aV+8*blk+4*nt+2,2)}, v{vVr+nt} offset:{(4*t+2*p+1)*4096}")
    def pv(blks, first):
        for blk in blks:
            for nt in range(2):
                mfma(accO + 4*nt, ar(aV + 8*blk + 4*nt, 4), vP + 4*blk, "0" if (first and blk == blks[0]) else None)
    def s_out():
        for i in range(4):
            a(f"v_cvt_pk_bf16_f32 v{vU+i}, v{accO+2*i}, v{accO+2*i+1}")
        for i in range(4):
            a(f"v_min_u32 v{vU+i}, 0xfffffffe, v{vU+i}")
        setexec(EM4)
        store_local(f"buffer_store_dwordx4 {vr(vU,4)}, v{vaStO}, {sr(sWS,4)}, s{sOown} offen")
        setexec(FULL)

    a(f"s_lshl_b32 s{sB}, s{sW}, 12")
    tr_base(vT0, 32, 8, sB, L_WQ)
    for u in range(4):
        a(f"ds_read_b64_tr_b16 {ar(aWq+4*u,2)}, v{vT0} offset:{u*1024}")
        a(f"ds_read_b64_tr_b16 {ar(aWq+4*u+2,2)}, v{vT0} offset:{u*1024+128}")
    a(f"""
    v_lshrrev_b32 v{vT0}, 3, v{vR16}
    v_lshlrev_b32 v{vT0}, 10, v{vT0}
    v_lshl_add_u32 v{vT0}, v{vQd}, 4, v{vT0}
    s_lshl_b32 s{sB}, s{sW}, 8
    v_add_u32 v{vT0}, s{sB}, v{vT0}
    s_barrier
    """)
    setexec(0x0101010101010101)
    for u in range(4):
        a(f"ds_read_b128 {vr(XA+4*u,4)}, v{vT0} offset:{L_X0+u*64}")
    setexec(FULL)
    a(f"""
    s_waitcnt lgkmcnt(0)
    s_add_u32 s{sT}, s{sT}, 0x9e3779b0
    s_and_b32 s{sT}, s{sT}, 0xfffffff0
    s_or_b32 s{sTX}, s{sT}, s{sXcc}
    """)
    for u in range(4): mfma(vS, vOnes, ar(aWq + 4*u, 4), "0" if u == 0 else None)
    a(f"ds_write_b32 v{vaRedW}, v{vS} offset:{R_COL}")
    q_core(XA)
    q_final(True)
    a("s_barrier")
    ts("q1_pub")

    def v_group(t):
        page_off(t, sD)
        a(f"s_lshl_b32 s{sC}, s{sW}, 12\ns_add_u32 s{sC}, s{sC}, {L_V + t*16384}\ns_mov_b32 m0, s{sC}\ns_nop 0")
        for ii in range(4):
            a(f"buffer_load_dwordx4 v{vVs+(ii&1)}, {sr(sVS,4)}, s{sD} offen offset:{ii*1024}{cfg.kv_pol} lds")
    def pace(): a(f"s_waitcnt vmcnt({cfg.pace})")
    def w_part(part, lo, hi):
        if not cfg.w_inter: return
        lab = a.label("wp")
        lim = 30
        if (part == 0 and "g" not in cfg.w_interB) or (part == 1 and "u" not in cfg.w_interB): lim = 16
        a(f"s_cmp_ge_u32 s{sM}, {lim}\ns_cbranch_scc1 {lab}")
        for u in range(lo, hi):
            if part == 0:
                a(f"s_mul_i32 s{sB}, s{sWst}, {u}\ns_add_u32 s{sB}, s{sB}, s{sWb}")
                a(f"s_lshl_b32 s{sC}, s{sW}, 12\ns_add_u32 s{sC}, s{sC}, {L_WQ + u*1024}")
            else:
                a(f"s_cmp_lt_u32 s{sM}, 16\ns_cselect_b32 s{sB}, {4+u}, {u}\ns_mul_i32 s{sB}, s{sB}, s{sWst}\ns_add_u32 s{sB}, s{sB}, s{sWb}")
                a(f"s_lshl_b32 s{sC}, s{sW}, 14\ns_add_u32 s{sC}, s{sC}, {L_K + u*1024}")
            a(f"s_mov_b32 m0, s{sC}\ns_nop 0")
            a(f"buffer_load_dwordx4 v{vWs}, {sr(sW2 if part == 0 else sUP,4)}, s{sB} offen{SLN} lds")
        a(f"{lab}:")
    for t in range(nKpA, 4):
        pace()
        if t == 3: w_part(0, 0, 4)
        k_page(t)
    a(f"""
    v_lshrrev_b32 v{vT0}, 2, v{vLane}
    v_lshlrev_b32 v{vT0}, 7, v{vT0}
    v_and_b32 v{vT1}, 3, v{vLane}
    v_lshl_add_u32 v{vKs}, v{vT1}, 4, v{vT0}        ; (vKs is free once K is issued)
    s_lshl_b32 s{sA}, s{sJ}, 12
    s_lshr_b32 s{sB}, s{sM}, 4
    s_lshl_b32 s{sB}, s{sB}, 6
    s_add_u32 s{sA}, s{sA}, s{sB}
    s_add_u32 s{sA}, s{sA}, {WS_Q1}
    v_and_b32 v{vT0}, 3, v{vR16}
    v_lshlrev_b32 v{vT0}, 9, v{vT0}
    v_lshrrev_b32 v{vT1}, 1, v{vQd}
    v_lshl_add_u32 v{vT0}, v{vT1}, 6, v{vT0}
    v_and_b32 v{vT1}, 1, v{vQd}
    v_lshl_add_u32 v{vKs+1}, v{vT1}, 5, v{vT0}
    v_lshlrev_b32 v{vKs+2}, 5, v{vLane}
    """)
    def q1_dma(img):
        a(f"""
        s_mov_b32 m0, {L_QG + img*2048}
        s_add_u32 s{sB}, s{sA}, 2048
        buffer_load_dwordx4 v{vKs}, {sr(sWS,4)}, s{sA} offen sc1 lds
        s_mov_b32 m0, {L_QG + img*2048 + 1024}
        s_nop 0
        buffer_load_dwordx4 v{vKs}, {sr(sWS,4)}, s{sB} offen sc1 lds
        """)
    def w0(fn):
        lab = a.label("w0")
        a(f"s_cmp_eq_u32 s{sW}, 0\ns_cbranch_scc0 {lab}")
        fn()
        a(f"{lab}:")
    def q1_dup():
        setexec(0x55555555)
        a(f"buffer_store_dwordx2 {vr(vQ1d,2)}, v{vQ1a}, {sr(sWS,4)}, 0 offen sc1")
        setexec(FULL)
    g.q1_dup = lambda: w0(q1_dup)
    pace()
    if cfg.pf_stream and cfg.pf_pos == 0: emit_wpf(sKS2, sWQ, True)
    v_group(0)
    a("s_waitcnt vmcnt(4)")
    for t in range(4):
        for c in range(4):
            a(f"ds_read_b128 {ar(aK+16*t+4*c,4)}, v{vKr+c} offset:{t*4096}")
    ts("k_landed")
    w0(lambda: q1_dma(0))
    if cfg.pf_stream and cfg.pf_pos == 1: emit_wpf(sKS, sWQ, True)
    v_group(1)
    a("s_waitcnt vmcnt(4)")
    ts("v0_landed")
    if cfg.pf_stream and cfg.pf_pos == 2: emit_wpf(sKS, sWQ, True)
    if cfg.w_inter:
        a("s_waitcnt lgkmcnt(0)")
        w_part(1, 0, 2)
    def warm_stats0():
        if cfg.warm:
            lab = a.label("ws")
            a(f"s_cmp_lt_u32 s{sM}, 16\ns_cbranch_scc0 {lab}")
            a(f"buffer_load_dword v{vJ}, v{vaS0}, {sr(sWS,4)}, s{sOcons} offen sc1")
            a(f"buffer_load_dword v{vJ}, v{vaS1}, {sr(sWS,4)}, s{sOcons} offen sc1")
            a(f"{lab}:")
    if cfg.v3_early: warm_stats0()
    v_group(2)
    if cfg.v3_early:
        assert not cfg.w_inter
        v_group(3)
    def _o0():
        lab = a.label("c0")
        a(f"""
        s_cmp_eq_u32 s{sW}, 3
        s_cbranch_scc0 {lab}
        v_mov_b32 v{vU+8}, -1
        v_mov_b32 v{vU+9}, -1
        v_mov_b32 v{vU+10}, -1
        v_mov_b32 v{vU+11}, -1
        """)
        store_local(f"buffer_store_dwordx4 {vr(vU+8,4)}, v{vaClrO}, {sr(sWS,4)}, s{sOown} offen")
        a(f"{lab}:")
    g.o0_clear_hook = _o0
    vG = vA
    def q1_tags(img):
        a(f"""
        ds_read_b128 {vr(vG,4)}, v{vKs+2} offset:{L_QG + img*2048}
        ds_read_b128 {vr(vG+4,4)}, v{vKs+2} offset:{L_QG + img*2048 + 16}
        s_waitcnt lgkmcnt(0)
        v_xor_b32 v{vT1}, s{sTX}, v{vG+1}
        v_xor_b32 v{vT2}, s{sTX}, v{vG+3}
        v_xor_b32 v{vT3}, s{sTX}, v{vG+5}
        v_xor_b32 v{vT0}, s{sTX}, v{vG+7}
        v_or3_b32 v{vT1}, v{vT1}, v{vT2}, v{vT3}
        v_or_b32 v{vT1}, v{vT1}, v{vT0}
        v_cmp_lt_u32 vcc, 15, v{vT1}
        """)
    a("s_barrier")
    q1_tags(0)
    a(f"s_mov_b32 s{sC}, {L_QG}\ns_cbranch_vccz L_q1ok")
    cnt("g0fail")
    w0(lambda: (q1_dma(1), a("s_waitcnt vmcnt(0)")))
    a("s_barrier")
    q1_tags(1)
    a(f"s_mov_b32 s{sC}, {L_QG + 2048}\ns_cbranch_vccz L_q1ok")
    a("L_q1retry:")
    cnt("g1fail")
    a(f"s_sub_u32 s{sBud}, s{sBud}, 1\ns_cbranch_scc1 L_abort\ns_barrier")
    w0(lambda: (q1_dup(), q1_dma(0), a("s_waitcnt vmcnt(0)")))
    a("s_barrier")
    q1_tags(0)
    a(f"s_mov_b32 s{sC}, {L_QG}\ns_cbranch_vccnz L_q1retry")
    a("L_q1ok:")
    a(f"""
    v_cmp_ne_u32 vcc, 0, v{vT1}
    v_add_u32 v{vT0}, s{sC}, v{vKs+1}
    s_cmp_eq_u64 vcc, 0
    s_cselect_b32 s{sLocal}, 1, 0
    """)
    if cfg.v3_early: g.o0_clear_hook()
    setexec(EM4)
    for c in range(4):
        a(f"ds_read2_b32 {vr(vQ+4*c,2)}, v{vT0} offset0:{c*32} offset1:{c*32+2}")
        a(f"ds_read2_b32 {vr(vQ+4*c+2,2)}, v{vT0} offset0:{c*32+4} offset1:{c*32+6}")
    setexec(FULL)
    lab = a.label("nl")
    a(f"s_cmp_eq_u32 s{sLocal}, 0\ns_cbranch_scc0 {lab}")
    g.q1_dup()
    a(f"{lab}:")
    a("s_waitcnt lgkmcnt(0)")
    ts("q1_got")
    s_qk_max()
    ts("s1_max")
    def o0_clear():
        lab = a.label("c0")
        a(f"""
        s_cmp_eq_u32 s{sW}, 3
        s_cbranch_scc0 {lab}
        v_mov_b32 v{vU+8}, -1
        v_mov_b32 v{vU+9}, -1
        v_mov_b32 v{vU+10}, -1
        v_mov_b32 v{vU+11}, -1
        """)
        store_local(f"buffer_store_dwordx4 {vr(vU+8,4)}, v{vaClrO}, {sr(sWS,4)}, s{sOown} offen")
        a(f"{lab}:")
    if not cfg.v3_early:
        a("s_waitcnt vmcnt(4)")
        o0_clear()
        warm_stats0()
        w_part(1, 2, 4)
        v_group(3)
    else:
        a("s_waitcnt vmcnt(8)")
    nPF = emit_wpf(sKS, sWQ, True) if (cfg.pf_stream and not cfg.pf_early and cfg.pf_pos is None) else 0

    def s1_tail(nW=0, maybe_none=False):
        def wait_v(base):
            if nW and maybe_none:
                l1 = a.label("wv"); l2 = a.label("wv")
                a(f"s_cmp_ge_u32 s{sIdx}, 14\ns_cbranch_scc1 {l1}\ns_waitcnt vmcnt({base + nW})\ns_branch {l2}\n{l1}:\ns_waitcnt vmcnt({base})\n{l2}:")
            else:
                a(f"s_waitcnt vmcnt({base + nW})")
        s_exp_p()
        s_stats_prep()
        blks = [0, 1, 2, 3]
        for blk in blks: v_tr(blk)
        a("s_waitcnt lgkmcnt(0)")
        pv(blks, True)
        for t in (2, 3):
            if t == 3 and cfg.v3_early:
                l3 = a.label("v3"); l4 = a.label("v4")
                a(f"s_cmp_eq_u32 s{sW}, 3\ns_cbranch_scc1 {l3}\ns_waitcnt vmcnt({nW})\ns_branch {l4}\n{l3}:\ns_waitcnt vmcnt({nW + 1})\n{l4}:")
            else:
                wait_v(4*(3-t))
            a("s_barrier")
            if t == 3: ts("v_landed")
            blks = [2*t, 2*t + 1]
            for blk in blks: v_tr(blk)
            a("s_waitcnt lgkmcnt(0)")
            pv(blks, False)
        s_out()
        s_stats_store(1 if cfg.v3_early else None)
        lab = a.label("c1")
        a(f"""
        s_cmp_eq_u32 s{sW}, 0
        s_cbranch_scc0 {lab}
        v_mov_b32 v{vU+8}, -1
        v_mov_b32 v{vU+9}, -1
        v_mov_b32 v{vU+10}, -1
        v_mov_b32 v{vU+11}, -1
        s_add_u32 s{sB}, s{sOown}, {O_L}
        """)
        store_local(f"buffer_store_dwordx4 {vr(vU+8,4)}, v{vaClrO}, {sr(sWS,4)}, s{sB} offen")
        q1_dup()
        a(f"{lab}:")
        ts("s1_pub")

    def x_poll(sbase, dst, sleep):
        l = a.label("xp"); ok = a.label("xok")
        if cfg.sleep_x0: a(f"s_sleep {cfg.sleep_x0}")
        a(f"s_mov_b32 m0, s{sXI}")
        a(f"{l}:")
        cnt("n_x")
        for u in range(4):
            a(f"buffer_load_dwordx4 v{vaXg}, {sr(sWS,4)}, s{sbase} offen offset:{u*1024} sc1 lds")
        for u in range(4):
            a(f"s_waitcnt vmcnt({3-u})")
            a(f"ds_read_b128 {vr(dst+4*u,4)}, v{vaXr} offset:{u*1024}")
        a(f"s_waitcnt lgkmcnt(3)\nv_max3_u32 v{vT0}, v{dst}, v{dst+1}, v{dst+2}")
        a(f"s_waitcnt lgkmcnt(2)\nv_max3_u32 v{vT0}, v{vT0}, v{dst+3}, v{dst+4}\nv_max3_u32 v{vT0}, v{vT0}, v{dst+5}, v{dst+6}")
        a(f"s_waitcnt lgkmcnt(1)\nv_max3_u32 v{vT0}, v{vT0}, v{dst+7}, v{dst+8}\nv_max3_u32 v{vT0}, v{vT0}, v{dst+9}, v{dst+10}")
        a(f"s_waitcnt lgkmcnt(0)\nv_max3_u32 v{vT0}, v{vT0}, v{dst+11}, v{dst+12}\nv_max3_u32 v{vT0}, v{vT0}, v{dst+13}, v{dst+14}\nv_max_u32 v{vT0}, v{vT0}, v{dst+15}")
        a(f"v_cmp_eq_u32 vcc, -1, v{vT0}\ns_cbranch_vccz {ok}")
        spin_fail(l, sleep)
        a(f"{ok}:")

    def warm_q2():
        if not cfg.warm: return
        a(f"s_lshl_b32 s{sB}, s{sJ}, 11\ns_add_u32 s{sB}, s{sB}, {WS_Q2}\nv_lshlrev_b32 v{vT0}, 7, v{vLane}")
        setexec(0xFFFF)
        a(f"buffer_load_dword v{vJ}, v{vT0}, {sr(sWS,4)}, s{sB} offen sc1")
        setexec(FULL)
    def warm_o(dl, data=True):
        if not cfg.warm: return
        a(f"s_add_u32 s{sB}, s{sOcons}, {dl*O_L}")
        if data:
            a(f"""
            v_and_b32 v{vT0}, 31, v{vLane}
            v_lshlrev_b32 v{vT0}, 7, v{vT0}
            v_lshrrev_b32 v{vT1}, 5, v{vLane}
            v_lshl_add_u32 v{vT0}, v{vT1}, 14, v{vT0}
            buffer_load_dword v{vJ}, v{vT0}, {sr(sWS,4)}, s{sB} offen sc1
            """)
        a(f"buffer_load_dword v{vJ}, v{vaS0}, {sr(sWS,4)}, s{sB} offen sc1")
        a(f"buffer_load_dword v{vJ}, v{vaS1}, {sr(sWS,4)}, s{sB} offen sc1")

    def tag_check_all():
        l = a.label("tc"); ok = a.label("tcok")
        a(f"""
        s_lshl_b32 s{sB}, s{sW}, 13
        s_add_u32 s{sB}, s{sB}, {WS_Q1+4}
        v_lshlrev_b32 v{vT0}, 7, v{vLane}
        {l}:
        buffer_load_dword v{vT1}, v{vT0}, {sr(sWS,4)}, s{sB} offen sc1
        s_waitcnt vmcnt(0)
        v_xor_b32 v{vT1}, s{sT}, v{vT1}
        v_cmp_lt_u32 vcc, 15, v{vT1}
        s_cbranch_vccz {ok}
        """)
        spin_fail(l, 2)
        a(f"{ok}:")

    def line_final(red):
        if cfg.doorbell and cfg.db_early:
            a(f"v_mov_b32 v{vT0}, 0\nv_mov_b32 v{vT1}, s{sDBtag}\ns_mov_b64 exec, 1")
            store_local(f"buffer_store_dword v{vT1}, v{vT0}, {sr(sWS,4)}, s{sDBw} offen")
            a("s_mov_b64 exec, -1")
        a(f"""
        ds_read_b128 {vr(vU,4)}, v{vaFinO} offset:{red}
        v_mov_b32 v{vT0}, 0
        v_mov_b32 v{vT1}, s{sDBtag}
        s_waitcnt lgkmcnt(0)
        v_add_f32 v{vU}, v{vU}, v{vU+1}
        v_add_f32 v{vU+2}, v{vU+2}, v{vU+3}
        v_add_f32 v{vU}, v{vU}, v{vResF}
        v_add_f32 v{vResF}, v{vU}, v{vU+2}
        """)
        dpp("v_mov_b32", vU + 1, vResF, None, "quad_perm:[1,0,3,2]")
        a(f"v_cvt_pk_bf16_f32 v{vU}, v{vResF}, v{vU+1}\nv_min_u32 v{vU}, 0xfffffffe, v{vU}")
        if cfg.doorbell and not cfg.db_early:
            a("s_mov_b64 exec, 1")
            store_local(f"buffer_store_dword v{vT1}, v{vT0}, {sr(sWS,4)}, s{sDBw} offen")
        a(f"s_xor_b32 s{sB}, s{sXw}, 0x2000\ns_add_u32 s{sB}, s{sB}, 16384")
        setexec(EMEV)
        a(f"buffer_store_dword v{vU}, v{vaStX}, {sr(sWS,4)}, s{sXw} offen sc1")
        a(f"buffer_store_dword v{vU}, v{vaStX}, {sr(sWS,4)}, s{sB} offen sc1")
        setexec(FULL)
    def advance_hop():
        a(f"s_add_u32 s{sXw}, s{sXw}, {X_HOP}\ns_add_u32 s{sDBw}, s{sDBw}, 1024\ns_add_u32 s{sDBtag}, s{sDBtag}, 1")

    def db_setup(hop_w, hop_r):
        a(f"""
        s_lshl_b32 s{sDBr}, s{sJ}, 7
        s_add_u32 s{sDBr}, s{sDBr}, {WS_DB}
        s_lshl_b32 s{sDBw}, s{sIdx}, 2
        s_add_u32 s{sDBw}, s{sDBw}, s{sDBr}
        s_add_u32 s{sDBw}, s{sDBw}, {hop_w*1024}
        s_add_u32 s{sDBtag}, s{sT}, {8+hop_w}
        """)
    def db_wait(hop_off_s, tag_add_s=None, const_hop=None):
        if not cfg.doorbell: return
        l = a.label("db"); ok = a.label("dbok")
        if const_hop is not None:
            a(f"s_add_u32 s{sA}, s{sDBr}, {const_hop*1024}\ns_add_u32 s{sC}, s{sT}, {8+const_hop}")
        else:
            a(f"s_lshl_b32 s{sA}, s{sL}, 11\ns_add_u32 s{sA}, s{sA}, s{sDBr}\ns_add_u32 s{sA}, s{sA}, {hop_off_s*1024}")
            a(f"s_lshl_b32 s{sC}, s{sL}, 1\ns_add_u32 s{sC}, s{sC}, s{sT}\ns_add_u32 s{sC}, s{sC}, {8+hop_off_s}")
        a(f"v_lshlrev_b32 v{vT0}, 2, v{vLane}")
        setexec(0xFFFF)
        if cfg.db_pipe:
            a(f"""
            buffer_load_dword v{vT1}, v{vT0}, {sr(sWS,4)}, s{sA} offen sc1
            s_nop 15
            s_nop 11
            buffer_load_dword v{vT2}, v{vT0}, {sr(sWS,4)}, s{sA} offen sc1
            {l}:
            s_waitcnt vmcnt(1)
            v_cmp_ne_u32 vcc, s{sC}, v{vT1}
            s_cbranch_vccz {ok}
            buffer_load_dword v{vT1}, v{vT0}, {sr(sWS,4)}, s{sA} offen sc1
            s_waitcnt vmcnt(1)
            v_cmp_ne_u32 vcc, s{sC}, v{vT2}
            s_cbranch_vccz {ok}
            buffer_load_dword v{vT2}, v{vT0}, {sr(sWS,4)}, s{sA} offen sc1
            """)
        else:
            a(f"""
            {l}:
            buffer_load_dword v{vT1}, v{vT0}, {sr(sWS,4)}, s{sA} offen sc1
            s_waitcnt vmcnt(0)
            v_cmp_ne_u32 vcc, s{sC}, v{vT1}
            s_cbranch_vccz {ok}
            """)
        spin_fail(l)
        a(f"{ok}:")
        setexec(FULL)

    def o_stats_poll():
        l = a.label("os"); ok = a.label("osok")
        a(f"s_add_u32 s{sA}, s{sT}, s{sL}\ns_add_u32 s{sA}, s{sA}, 1")
        a(f"{l}:")
        cnt("n_ostat")
        a(f"buffer_load_dwordx3 {vr(vSt,3)}, v{vaS0}, {sr(sWS,4)}, s{sOcons} offen sc1")
        a(f"buffer_load_dwordx3 {vr(vSt+4,3)}, v{vaS1}, {sr(sWS,4)}, s{sOcons} offen sc1")
        a("s_waitcnt vmcnt(0)")
        a(f"""
        v_xor_b32 v{vT0}, s{sA}, v{vSt+2}
        v_xor_b32 v{vT1}, s{sA}, v{vSt+6}
        v_or_b32 v{vT0}, v{vT0}, v{vT1}
        v_cmp_ne_u32 vcc, 0, v{vT0}
        s_cbranch_vccz {ok}
        """)
        spin_fail(l, cfg.sleep_o)
        a(f"{ok}:")
        ts_dyn("o_st0", "o_st1")

    def o_phase():
        OA = vA
        o_stats_poll()
        l2 = a.label("op"); ok2 = a.label("ook")
        a(f"L_heavy:\n{l2}:")
        cnt("n_oheavy")
        for b in range(2):
            for c in range(4):
                a(f"buffer_load_dwordx4 {vr(OA+16*b+4*c,4)}, v{vaO0+b}, {sr(sWS,4)}, s{sOcons} offen offset:{c*1024} sc1")
        for b in range(2):
            a(f"v_mov_b32 v{vU+b}, v{vSt+4*b}")
        for n in (8, 4, 2, 1):
            for b in range(2): dpp("v_max_f32", vU + b, vU + b, vU + b, f"row_ror:{n}")
        for b in range(2): a(f"v_sub_f32 v{vU+b}, v{vSt+4*b}, v{vU+b}")
        for b in range(2): a(f"v_exp_f32 v{vU+b}, v{vU+b}")
        for b in range(2): a(f"v_mul_f32 v{vU+2+b}, v{vU+b}, v{vSt+4*b+1}")
        for n in (8, 4, 2, 1):
            for b in range(2): dpp("v_add_f32", vU + 2 + b, vU + 2 + b, vU + 2 + b, f"row_ror:{n}")
        for b in range(2): a(f"v_rcp_f32 v{vU+2+b}, v{vU+2+b}")
        for b in range(2): a(f"v_mul_f32 v{vW+b}, v{vU+b}, v{vU+2+b}")
        a(f"v_mov_b32 v{vT0}, 0")
        if cfg.diag and cfg.ts_only and "o_w0" in cfg.ts_only:
            ts_dyn("o_w0", "o_w1")
            a("s_waitcnt vmcnt(7)")
            ts_dyn("o_f0", "o_f1")
        for i in range(8):
            b, c = i >> 2, i & 3
            r = OA + 16*b + 4*c
            a(f"s_waitcnt vmcnt({7-i})")
            for nt in range(2):
                mfma(vAcc + 8*b + 4*nt, r, ar(aW2 + 8*c + 4*nt, 4), "0" if c == 0 else None)
            a(f"v_max3_u32 v{vT0}, v{vT0}, v{r}, v{r+1}\nv_max3_u32 v{vT0}, v{vT0}, v{r+2}, v{r+3}")
        a(f"v_cmp_eq_u32 vcc, -1, v{vT0}\ns_cbranch_vccz {ok2}")
        spin_fail(l2)
        a(f"{ok2}:")
        ts_dyn("o_got0", "o_got1")
        for b in range(2):
            for nt in range(2):
                t = vU + 2*b + nt; acc = vAcc + 8*b + 4*nt
                dpp("v_mul_f32", t, vW + b, acc, "row_newbcast:0")
                for r in range(1, 4):
                    dpp("v_fmac_f32", t, vW + b, acc + r, f"row_newbcast:{r}")
        a(f"""
        v_permlane32_swap_b32 v{vU}, v{vU+1}
        v_permlane32_swap_b32 v{vU+2}, v{vU+3}
        v_add_f32 v{vU}, v{vU}, v{vU+1}
        v_add_f32 v{vU+2}, v{vU+2}, v{vU+3}
        v_permlane16_swap_b32 v{vU}, v{vU+2}
        v_add_f32 v{vU}, v{vU}, v{vU+2}
        ds_write_b32 v{vaRedW}, v{vU} offset:{R_O}
        s_waitcnt lgkmcnt(0)
        s_barrier
        """)
        lab = a.label("of")
        a(f"s_cmp_eq_u32 s{sW}, 0\ns_cbranch_scc0 {lab}")
        line_final(R_O)
        a(f"{lab}:")
        advance_hop()
        ts_dyn("o_pub0", "o_pub1")

    def g_phase():
        X = vA
        if cfg.db_g: db_wait(0)
        if cfg.diag and cfg.ts_only and "g_db0" in cfg.ts_only: ts_dyn("g_db0", "g_db1")
        x_poll(sXr, X, cfg.sleep_x)
        ts_dyn("g_got0", "g_got1")
        M = stats_mf(X)
        for u in range(4):
            M.append(mf(vAcc, X + 4*u, ar(aW2 + 8*u, 4), "0" if u == 0 else None))
            M.append(mf(vAcc + 4, X + 4*u, ar(aW2 + 8*u + 4, 4), "0" if u == 0 else None))
        V = stats_valu(vU) + [f"v_mov_b32 v{vU+1}, v{vU}", f"v_permlane16_swap_b32 v{vU}, v{vU+1}", f"v_add_f32 v{vU}, v{vU}, v{vU+1}"]
        interleave(M, V, 8, 2)
        setexec("s[%d:%d]" % (sM2, sM2 + 1))
        a(f"ds_write_b32 v{vaRedZ}, v{vU} offset:{R_GZ}")
        setexec(FULL)
        sum4(vU + 2, vAcc, vT3)
        sum4(vU + 3, vAcc + 4, vT3)
        a(f"""
        v_permlane16_swap_b32 v{vU+2}, v{vU+3}
        v_add_f32 v{vU+2}, v{vU+2}, v{vU+3}
        ds_write_b32 v{vaRedW}, v{vU+2} offset:{R_G}
        s_waitcnt lgkmcnt(0)
        s_barrier
        """)
        lab = a.label("gf")
        a(f"s_cmp_eq_u32 s{sW}, 0\ns_cbranch_scc0 {lab}")
        setexec(0xFFFFFFFF)
        a(f"""
        ds_read_b128 {vr(vU+8,4)}, v{vaFinZ} offset:{R_GZ}
        ds_read_b128 {vr(vU+12,4)}, v{vaFinZ} offset:{R_GZ+16}
        ds_read_b128 {vr(vU,4)}, v{vaFinW} offset:{R_G}
        ds_read_b128 {vr(vU+4,4)}, v{vaFinW} offset:{R_G+256}
        s_lshl_b32 s{sB}, s{sIdx}, 6
        s_add_u32 s{sB}, s{sB}, s{sHb}
        s_waitcnt lgkmcnt(2)
        """)
        sum4r(vU + 8); sum4r(vU + 12)
        ln_stats(vU + 8, vU + 12, vU + 9, vU + 10)
        a("s_waitcnt lgkmcnt(0)")
        sum4r(vU); sum4r(vU + 4)
        a(f"""
        v_fma_f32 v{vU}, -v{vU+9}, v{vCg}, v{vU}
        v_fma_f32 v{vU+4}, -v{vU+9}, v{vCu}, v{vU+4}
        v_mul_f32 v{vU+1}, {f2u(-1.4426950408889634):#x}, v{vU+10}
        v_mul_f32 v{vU}, v{vU}, v{vU+1}
        v_exp_f32 v{vU}, v{vU}
        v_mul_f32 v{vU+4}, v{vU+4}, v{vU+10}
        v_add_f32 v{vU}, 1.0, v{vU}
        v_rcp_f32 v{vU}, v{vU}
        s_nop 0
        v_mul_f32 v{vU}, v{vU}, v{vU+4}
        """)
        dpp("v_mov_b32", vU + 1, vU, None, "quad_perm:[1,0,3,2]")
        a(f"v_cvt_pk_bf16_f32 v{vU}, v{vU}, v{vU+1}\nv_min_u32 v{vU}, 0xfffffffe, v{vU}")
        setexec(0x55555555)
        store_local(f"buffer_store_dword v{vU}, v{vaStH}, {sr(sWS,4)}, s{sB} offen")
        setexec(FULL)
        a(f"{lab}:")
        ts_dyn("g_pub0", "g_pub1")

    def d_phase():
        lab0 = a.label("dr0"); l2 = a.label("dr"); ok2 = a.label("drok")
        l = a.label("dp"); ok = a.label("dok"); one = a.label("done"); l3 = a.label("dp1");
        a(f"s_cmp_eq_u32 s{sW}, 3\ns_cbranch_scc1 {l3}")
        setexec(EM2)
        a(f"{l}:")
        a(f"buffer_load_dwordx4 {vr(vHop,4)}, v{vaH}, {sr(sWS,4)}, s{sHb} offen sc1")
        a(f"buffer_load_dwordx4 {vr(vHop+4,4)}, v{vaH}, {sr(sWS,4)}, s{sHb} offen offset:512 sc1")
        a("s_waitcnt vmcnt(0)")
        sent_check([vHop+i for i in range(8)], vT1, ok)
        spin_fail(l)
        a(f"{l3}:")
        setexec(EM2)
        a(f"{l3}b:")
        a(f"buffer_load_dwordx4 {vr(vHop,4)}, v{vaH}, {sr(sWS,4)}, s{sHb} offen sc1")
        a("s_waitcnt vmcnt(0)")
        sent_check([vHop+i for i in range(4)], vT1, ok)
        spin_fail(f"{l3}b")
        a(f"{ok}:")
        setexec(FULL)
        for nt in range(2):
            mfma(vAcc + 4*nt, vHop, ar(aWd + 4*nt, 4), "0")
        for nt in range(2):
            mfma(vAcc + 4*nt, vHop + 4, ar(aWd + 8 + 4*nt, 4))
        a(f"""
        v_permlane16_swap_b32 v{vAcc}, v{vAcc+1}
        v_permlane16_swap_b32 v{vAcc+4}, v{vAcc+5}
        v_permlane32_swap_b32 v{vAcc}, v{vAcc+4}
        ds_write_b32 v{vaRedW}, v{vAcc} offset:{R_D}
        s_waitcnt lgkmcnt(0)
        s_barrier
        """)
        lab = a.label("df")
        a(f"s_cmp_eq_u32 s{sW}, 0\ns_cbranch_scc0 {lab}")
        line_final(R_D)
        a(f"{lab}:")
        advance_hop()
        ts_dyn("d_pub0", "d_pub1")

    a(f"s_cmp_lt_u32 s{sM}, 16\ns_cbranch_scc0 L_roleB")
    def down_slices():
        a(f"""
        v_lshrrev_b32 v{vT0}, 2, v{vLane}
        v_lshlrev_b32 v{vT0}, 10, v{vT0}
        v_and_b32 v{vT1}, 3, v{vLane}
        v_lshl_add_u32 v{vT0}, v{vT1}, 4, v{vT0}
        s_mul_i32 s{sB}, s{sJ}, {224*1024}
        s_lshl_b32 s{sC}, s{sIdx}, 6
        s_add_u32 s{sB}, s{sB}, s{sC}
        s_lshl_b32 s{sC}, s{sW}, 15
        s_add_u32 s{sB}, s{sB}, s{sC}
        s_lshl_b32 s{sC}, s{sW}, 14
        s_add_u32 s{sC}, s{sC}, {L_K + W_DN}
        s_mov_b32 m0, s{sC}
        s_add_u32 s{sD}, s{sB}, 16384
        buffer_load_dwordx4 v{vT0}, {sr(sDN,4)}, s{sB} offen{SLN} lds
        s_add_u32 s{sC}, s{sC}, 1024
        s_mov_b32 m0, s{sC}
        s_nop 0
        buffer_load_dwordx4 v{vT0}, {sr(sDN,4)}, s{sD} offen{SLN} lds
        s_cmp_eq_u32 s{sW}, 3
        s_cbranch_scc1 L_nod2
        s_add_u32 s{sB}, s{sB}, {4*32768}
        s_add_u32 s{sC}, s{sC}, 1024
        s_mov_b32 m0, s{sC}
        s_add_u32 s{sD}, s{sB}, 16384
        buffer_load_dwordx4 v{vT0}, {sr(sDN,4)}, s{sB} offen{SLN} lds
        s_add_u32 s{sC}, s{sC}, 1024
        s_mov_b32 m0, s{sC}
        s_nop 0
        buffer_load_dwordx4 v{vT0}, {sr(sDN,4)}, s{sD} offen{SLN} lds
        L_nod2:
        """)
    def down_operands():
        a(f"s_lshl_b32 s{sB}, s{sW}, 14")
        tr_base(vT0, 64, 8, sB, L_K + W_DN)
        for nt in range(2):
            a(f"ds_read_b64_tr_b16 {ar(aWd+4*nt,2)}, v{vT0} offset:{nt*32}")
            a(f"ds_read_b64_tr_b16 {ar(aWd+4*nt+2,2)}, v{vT0} offset:{nt*32+256}")
        a(f"s_cmp_eq_u32 s{sW}, 3\ns_cbranch_scc1 L_dn3")
        for nt in range(2):
            a(f"ds_read_b64_tr_b16 {ar(aWd+8+4*nt,2)}, v{vT0} offset:{2048+nt*32}")
            a(f"ds_read_b64_tr_b16 {ar(aWd+8+4*nt+2,2)}, v{vT0} offset:{2048+nt*32+256}")
        a("s_branch L_dn4\nL_dn3:")
        for i in range(8): a(f"v_accvgpr_write_b32 a{aWd+8+i}, 0")
        a("L_dn4:")
    g.role = "A"; ts_split = g.ts
    def wo_slices():
        if cfg.line_pf and "o" in cfg.pf_which:
            a(f"""
            v_lshlrev_b32 v{vT0}, 7, v{vLane}
            s_lshl_b32 s{sB}, s{sJ}, 19
            s_lshl_b32 s{sC}, s{sIdx}, 15
            s_add_u32 s{sB}, s{sB}, s{sC}
            s_lshl_b32 s{sC}, s{sW}, 13
            s_add_u32 s{sB}, s{sB}, s{sC}
            buffer_load_dword v{vJ}, v{vT0}, {sr(sW2,4)}, s{sB} offen{cfg.pf_pol_o}
            """)
        a(f"""
        v_lshrrev_b32 v{vT0}, 2, v{vLane}
        v_lshlrev_b32 v{vT0}, 10, v{vT0}
        v_and_b32 v{vT1}, 3, v{vLane}
        v_lshl_add_u32 v{vT0}, v{vT1}, 4, v{vT0}
        s_lshl_b32 s{sB}, s{sJ}, 19
        s_lshl_b32 s{sC}, s{sW}, 17
        s_add_u32 s{sB}, s{sB}, s{sC}
        s_lshl_b32 s{sC}, s{sIdx}, 6
        s_add_u32 s{sB}, s{sB}, s{sC}
        s_lshl_b32 s{sC}, s{sW}, 14
        s_add_u32 s{sC}, s{sC}, {L_K}
        """)
        for u in range(8):
            a(f"""
            s_mov_b32 m0, s{sC}
            s_add_u32 s{sC}, s{sC}, 1024
            buffer_load_dwordx4 v{vT0}, {sr(sW2,4)}, s{sB} offen{SLN} lds
            s_add_u32 s{sB}, s{sB}, {16*1024}
            """)
    if cfg.w_inter:
        s1_tail(nPF)
        db_setup(0, 1)
        a(f"s_mov_b32 s{sXr}, {WS_X}")
    elif cfg.wsA:
        wo_slices()
        s1_tail(8 + nPF)
        db_setup(0, 1)
    else:
        s1_tail(nPF)
        db_setup(0, 1)
        wo_slices()
    a(f"v_mov_b32 v{vRes}, 0")
    lab = a.label("r0")
    a(f"""
    s_cmp_eq_u32 s{sJ}, 0
    s_cbranch_scc0 {lab}
    v_and_b32 v{vT0}, 1, v{vQd}
    v_lshlrev_b32 v{vT0}, 10, v{vT0}
    v_lshrrev_b32 v{vT1}, 1, v{vQd}
    v_lshl_add_u32 v{vT0}, v{vT1}, 5, v{vT0}
    v_lshl_add_u32 v{vT0}, v{vR16}, 1, v{vT0}
    s_lshl_b32 s{sB}, s{sIdx}, 6
    buffer_load_ushort v{vRes}, v{vT0}, {sr(sX0,4)}, s{sB} offen
    {lab}:
    """)
    nspec = 0
    if cfg.o_spec:
        a(f"buffer_load_dwordx3 {vr(vSt,3)}, v{vaS0}, {sr(sWS,4)}, s{sOcons} offen sc1")
        a(f"buffer_load_dwordx3 {vr(vSt+4,3)}, v{vaS1}, {sr(sWS,4)}, s{sOcons} offen sc1")
        nspec = 2
    if cfg.w_inter:
        a(f"s_waitcnt vmcnt({nspec})")
        for half, (sh, base) in enumerate(((12, L_WQ), (14, L_K))):
            a(f"s_lshl_b32 s{sB}, s{sW}, {sh}")
            tr_base(vT0, 64, 4, sB, base)
            for c2 in range(2):
                c = 2*half + c2
                for nt in range(2):
                    a(f"ds_read_b64_tr_b16 {ar(aW2+8*c+4*nt,2)}, v{vT0} offset:{c2*2048+nt*32}")
                    a(f"ds_read_b64_tr_b16 {ar(aW2+8*c+4*nt+2,2)}, v{vT0} offset:{c2*2048+nt*32+1024}")
    else:
        a(f"s_lshl_b32 s{sB}, s{sW}, 14")
        tr_base(vT0, 64, 4, sB, L_K)
        a(f"s_waitcnt vmcnt({nspec})")
        for c in range(4):
            for nt in range(2):
                a(f"ds_read_b64_tr_b16 {ar(aW2+8*c+4*nt,2)}, v{vT0} offset:{c*2048+nt*32}")
                a(f"ds_read_b64_tr_b16 {ar(aW2+8*c+4*nt+2,2)}, v{vT0} offset:{c*2048+nt*32+1024}")
    a(f"v_lshlrev_b32 v{vResF}, 16, v{vRes}")
    a("s_waitcnt lgkmcnt(0)")
    ts("wo_ready")
    if cfg.o_spec:
        a(f"""
        s_add_u32 s{sA}, s{sT}, 1
        s_waitcnt vmcnt(0)
        v_xor_b32 v{vT0}, s{sA}, v{vSt+2}
        v_xor_b32 v{vT1}, s{sA}, v{vSt+6}
        v_or_b32 v{vT0}, v{vT0}, v{vT1}
        v_cmp_ne_u32 vcc, 0, v{vT0}
        s_cbranch_vccz L_heavy
        """)
    a("L_loopA:")
    o_phase()
    lab = a.label("dn")
    a(f"s_cmp_eq_u32 s{sL}, 0\ns_cbranch_scc0 {lab}")
    down_slices()
    tag_check_all()
    if cfg.epoch_early:
        le = a.label("ep")
        a(f"""
        s_or_b32 s{sB}, s{sJ}, s{sIdx}
        s_or_b32 s{sB}, s{sB}, s{sW}
        s_cmp_eq_u32 s{sB}, 0
        s_cbranch_scc0 {le}
        """)
        g.ep_lab = le
        a(f"v_mov_b32 v{vT0}, {WS_EPOCH}\nv_mov_b32 v{vT1}, s{sT}\ns_mov_b64 exec, 1")
        a(f"buffer_store_dword v{vT1}, v{vT0}, {sr(sWS,4)}, 0 offen sc1")
        a("s_mov_b64 exec, -1")
        a(f"{le}:")
    down_operands()
    if cfg.warm_out:
        lw = a.label("wout")
        a(f"""
        s_cmp_ge_u32 s{sIdx}, 2
        s_cbranch_scc1 {lw}
        s_lshl_b32 s{sB}, s{sJ}, 1
        s_add_u32 s{sB}, s{sB}, s{sIdx}
        s_lshl_b32 s{sB}, s{sB}, 6
        v_lshlrev_b32 v{vT0}, 10, v{vLane}
        s_mov_b64 exec, 3
        buffer_load_dword v{vJ}, v{vT0}, {sr(sOUT,4)}, s{sB} offen
        s_mov_b64 exec, -1
        {lw}:
        """)
    a("s_waitcnt lgkmcnt(0)\ns_barrier")
    a(f"{lab}:")
    d_phase()
    a(f"s_cmp_eq_u32 s{sL}, 1\ns_cbranch_scc1 L_finalA")
    a("s_branch L_q2s2")

    a("L_roleB:")
    g.role = "B"; g.ts = ts_split
    def gu_slices():
        a(f"""
        s_cmp_ge_u32 s{sIdx}, 14
        s_cbranch_scc1 L_nogu
        v_lshrrev_b32 v{vT0}, 1, v{vLane}
        v_mul_u32_u24 v{vT0}, 3584, v{vT0}
        v_and_b32 v{vT1}, 1, v{vLane}
        v_lshl_add_u32 v{vT0}, v{vT1}, 4, v{vT0}
        s_mul_i32 s{sB}, s{sW}, {128*3584}
        s_mul_i32 s{sC}, s{sJ}, 448
        s_add_u32 s{sB}, s{sB}, s{sC}
        s_lshl_b32 s{sC}, s{sIdx}, 5
        s_add_u32 s{sB}, s{sB}, s{sC}
        s_lshl_b32 s{sC}, s{sW}, 14
        s_add_u32 s{sC}, s{sC}, {L_K + W_GATE}
        """)
        for u in range(4):
            a(f"""
            s_mov_b32 m0, s{sC}
            s_add_u32 s{sD}, s{sC}, {W_UP - W_GATE}
            buffer_load_dwordx4 v{vT0}, {sr(sW2,4)}, s{sB} offen{SLN} lds
            s_mov_b32 m0, s{sD}
            s_add_u32 s{sC}, s{sC}, 1024
            buffer_load_dwordx4 v{vT0}, {sr(sUP,4)}, s{sB} offen{SLN} lds
            s_add_u32 s{sB}, s{sB}, {32*3584}
            """)
        a("L_nogu:")
    if cfg.wsB:
        gu_slices()
        s1_tail(8, maybe_none=True)
    else:
        s1_tail(nPF)
    if cfg.w_inter: a(f"s_mov_b32 s{sWb2}, s{sWb}\ns_mov_b32 s{sWst2}, s{sWst}")
    db_setup(1, 0)
    if cfg.w_inter: a(f"s_mov_b32 s{sXr}, {WS_X}")
    if cfg.pf_down:
        a(f"""
        v_lshrrev_b32 v{vT0}, 3, v{vLane}
        v_lshlrev_b32 v{vT0}, 10, v{vT0}
        v_and_b32 v{vT1}, 7, v{vLane}
        v_lshl_add_u32 v{vT0}, v{vT1}, 7, v{vT0}
        s_mul_i32 s{sB}, s{sJ}, 224
        s_mul_i32 s{sC}, s{sIdx}, 14
        s_add_u32 s{sB}, s{sB}, s{sC}
        s_lshl_b32 s{sC}, s{sW}, 2
        s_add_u32 s{sB}, s{sB}, s{sC}
        s_lshl_b32 s{sB}, s{sB}, 10
        s_cmp_eq_u32 s{sW}, 3
        s_cselect_b32 exec_lo, 0xffff, -1
        s_mov_b32 exec_hi, 0
        buffer_load_dword v{vJ}, v{vT0}, {sr(sDN,4)}, s{sB} offen{cfg.pf_down_pol}
        s_mov_b64 exec, -1
        """)
    if cfg.line_pf and "f" in cfg.pf_which:
        a(f"""
        v_mul_u32_u24 v{vT0}, 52, v{vLane}
        v_lshrrev_b32 v{vT0}, 8, v{vT0}            ; l/5 for l < 64
        v_mul_u32_u24 v{vT1}, 5, v{vT0}
        v_sub_u32 v{vT1}, v{vLane}, v{vT1}         ; l%5
        v_mul_u32_u24 v{vT0}, 3584, v{vT0}
        v_lshl_add_u32 v{vT0}, v{vT1}, 7, v{vT0}
        s_lshl_b32 s{sB}, s{sIdx}, 5
        s_lshl_b32 s{sC}, s{sW}, 3
        s_add_u32 s{sB}, s{sB}, s{sC}
        s_mul_i32 s{sB}, s{sB}, 3584
        s_mul_i32 s{sC}, s{sJ}, 448
        s_and_b32 s{sC}, s{sC}, 0xffffff80
        s_add_u32 s{sB}, s{sB}, s{sC}
        """)
        setexec((1 << 40) - 1)
        for off in ((0, 64) if "f" in cfg.sub2 else (0,)):
            a(f"buffer_load_dword v{vJ}, v{vT0}, {sr(sW2,4)}, s{sB} offen offset:{off}{cfg.pf_pol_f}")
            a(f"buffer_load_dword v{vJ}, v{vT0}, {sr(sUP,4)}, s{sB} offen offset:{off}{cfg.pf_pol_f}")
        setexec(FULL)
    if not cfg.wsB and not cfg.w_inter: gu_slices()
    if cfg.w_inter and cfg.w_interB != "gu":
        lab = a.label("wl")
        a(f"s_cmp_ge_u32 s{sIdx}, 14\ns_cbranch_scc1 {lab}")
        for part, key, srdq, sh, base in ((0, "g", sW2, 12, L_WQ), (1, "u", sUP, 14, L_K)):
            if key in cfg.w_interB: continue
            for u in range(4):
                a(f"""
                s_mul_i32 s{sB}, s{sWst2}, {u}
                s_add_u32 s{sB}, s{sB}, s{sWb2}
                s_lshl_b32 s{sC}, s{sW}, {sh}
                s_add_u32 s{sC}, s{sC}, {base + u*1024}
                s_mov_b32 m0, s{sC}
                s_nop 0
                buffer_load_dwordx4 v{vWs}, {sr(srdq,4)}, s{sB} offen{SLN} lds
                """)
        a(f"{lab}:")
    tag_check_all()
    ts("ffn_landed")
    a(f"s_cmp_ge_u32 s{sIdx}, 14\ns_cbranch_scc1 L_nogu2")
    if cfg.w_inter:
        for mat, (sh, base) in enumerate(((12, L_WQ), (14, L_K))):
            a(f"s_lshl_b32 s{sB}, s{sW}, {sh}")
            tr_base(vT0, 32, 8, sB, base)
            for u in range(4):
                a(f"ds_read_b64_tr_b16 {ar(aW2+8*u+4*mat,2)}, v{vT0} offset:{u*1024}")
                a(f"ds_read_b64_tr_b16 {ar(aW2+8*u+4*mat+2,2)}, v{vT0} offset:{u*1024+128}")
    else:
        a(f"s_lshl_b32 s{sB}, s{sW}, 14")
        tr_base(vT0, 32, 8, sB, L_K + W_GATE)
        for u in range(4):
            for mat in range(2):
                a(f"ds_read_b64_tr_b16 {ar(aW2+8*u+4*mat,2)}, v{vT0} offset:{u*1024+mat*(W_UP-W_GATE)}")
                a(f"ds_read_b64_tr_b16 {ar(aW2+8*u+4*mat+2,2)}, v{vT0} offset:{u*1024+mat*(W_UP-W_GATE)+128}")
    a("s_waitcnt lgkmcnt(0)")
    for u in range(4):
        mfma(vAcc, vOnes, ar(aW2 + 8*u, 4), "0" if u == 0 else None)
        mfma(vAcc + 4, vOnes, ar(aW2 + 8*u + 4, 4), "0" if u == 0 else None)
    a(f"s_nop 7\nds_write_b32 v{vaRedW}, v{vAcc} offset:{R_COL}\nds_write_b32 v{vaRedW}, v{vAcc+4} offset:{R_COL2}")
    a("L_nogu2:")
    a("s_waitcnt lgkmcnt(0)\ns_barrier")
    a(f"""
    ds_read_b128 {vr(vU,4)}, v{vaFinW} offset:{R_COL}
    ds_read_b128 {vr(vU+4,4)}, v{vaFinW} offset:{R_COL2}
    s_waitcnt lgkmcnt(0)
    """)
    sum4r(vU); sum4r(vU + 4)
    a(f"v_mov_b32 v{vCg}, v{vU}\nv_mov_b32 v{vCu}, v{vU+4}")
    ts("ffn_ready")
    a("L_loopB:")
    lg = a.label("nog")
    a(f"s_cmp_ge_u32 s{sIdx}, 14\ns_cbranch_scc1 {lg}")
    g_phase()
    a(f"{lg}:")
    if cfg.junk_dirty:
        lj = a.label("jk")
        a(f"s_cmp_eq_u32 s{sL}, 0\ns_cbranch_scc0 {lj}")
        a(f"s_lshl_b32 s{sB}, s2, 2\ns_add_u32 s{sB}, s{sB}, s{sW}\ns_mul_i32 s{sB}, s{sB}, {cfg.junk_dirty*1024}\ns_add_u32 s{sB}, s{sB}, 0x400000\nv_lshlrev_b32 v{vT0}, 4, v{vLane}")
        for i in range(cfg.junk_dirty):
            a(f"buffer_store_dwordx4 {vr(vP,4)}, v{vT0}, {sr(sWS,4)}, s{sB} offen\ns_add_u32 s{sB}, s{sB}, 1024")
        a(f"{lj}:")
    a(f"s_cmp_eq_u32 s{sL}, 1\ns_cbranch_scc1 L_fin")

    a("L_q2s2:")
    save_role, save_ts = g.role, g.ts
    g.role = "C"; g.ts = getattr(g, "maxts", g.ts)
    lab = a.label("wo")
    a(f"s_cmp_lt_u32 s{sM}, 16\ns_cbranch_scc{1 if cfg.warm_by_B else 0} {lab}")
    warm_q2()
    warm_o(1)
    a(f"{lab}:")
    if cfg.db_q: db_wait(None, const_hop=1)
    if cfg.diag and cfg.ts_only and "q2_db" in cfg.ts_only:
        ts("q2_db")
    a(f"s_mov_b32 s{sD}, {WS_X + X_HOP}")
    x_poll(sD, XA, cfg.sleep_x)
    ts("q2_got")
    q_core(XA)
    q_final(False)
    ts("q2_pub")
    l = a.label("qp"); ok = a.label("qok")
    setexec(EM4)
    a(f"{l}:")
    for c in range(4):
        a(f"buffer_load_dwordx4 {vr(vQ+4*c,4)}, v{vaQ2}, {sr(sWS,4)}, s{sQ2r} offen offset:{c*256} sc1")
    a("s_waitcnt vmcnt(0)")
    sent_check([vQ+i for i in range(16)], vT0, ok)
    spin_fail(l)
    a(f"{ok}:")
    setexec(FULL)
    ts("q2_gath")
    a(f"""
    s_add_u32 s{sOown}, s{sOown}, {O_L}
    s_add_u32 s{sOcons}, s{sOcons}, {O_L}
    s_add_u32 s{sXr}, s{sXr}, {2*X_HOP}
    s_add_u32 s{sHb}, s{sHb}, 8192
    s_mov_b32 s{sL}, 1
    """)
    s_qk_max()
    s_exp_p()
    if cfg.stats_mid:
        lw3 = a.label("s3"); lw4 = a.label("s4")
        a(f"s_cmp_eq_u32 s{sW}, 3\ns_cbranch_scc1 {lw3}")
        for blk in range(8):
            a(f"s_waitcnt lgkmcnt({7-blk})")
            pv([blk], blk == 0)
        a(f"s_branch {lw4}\n{lw3}:")
        a(f"""
        ds_read_b128 {vr(vU+4,4)}, v{vaSm} offset:{L_LSUM-L_SMAX}
        s_add_u32 s{sB}, s{sT}, s{sL}
        s_add_u32 s{sB}, s{sB}, 1
        v_mov_b32 v{vMc+2}, s{sB}
        """)
        for blk in range(4):
            a(f"s_waitcnt lgkmcnt({8-blk})")
            pv([blk], blk == 0)
        a("s_waitcnt lgkmcnt(0)")
        sum4r(vU + 4)
        a(f"v_mov_b32 v{vMc+1}, v{vU+4}")
        setexec(0xF)
        store_local(f"buffer_store_dwordx4 {vr(vMc,4)}, v{vaStS}, {sr(sWS,4)}, s{sOown} offen")
        setexec(FULL)
        for blk in range(4, 8):
            pv([blk], False)
        a(f"{lw4}:")
        s_out()
    else:
        s_stats_prep()
        a("s_waitcnt lgkmcnt(0)")
        pv(list(range(8)), True)
        s_out()
        s_stats_store(None)
    ts("s2_pub")
    if cfg.diag and cfg.ts_only and "s2_ack" in cfg.ts_only:
        a("s_waitcnt vmcnt(0)")
        ts("s2_ack")
    a(f"s_cmp_lt_u32 s{sM}, 16\ns_cbranch_scc1 L_loopA\ns_branch L_loopB")

    a("L_finalA:")
    g.role = "A"; g.ts = getattr(g, "maxts", g.ts)
    a(f"""
    s_cmp_ge_u32 s{sIdx}, 2
    s_cbranch_scc1 L_fin
    s_cmp_eq_u32 s{sW}, 0
    s_cbranch_scc0 L_fin
    s_lshl_b32 s{sB}, s{sJ}, 1
    s_add_u32 s{sB}, s{sB}, s{sIdx}        ; cb
    s_lshl_b32 s{sC}, s{sB}, 10
    s_xor_b32 s{sD}, s{sC}, 0x2000
    s_add_u32 s{sD}, s{sD}, 16384
    s_lshr_b32 s{sA}, s{sXcc}, 2
    s_lshr_b32 s{sTmp2}, s{sB}, 3
    s_cmp_eq_u32 s{sA}, s{sTmp2}
    s_cselect_b32 s{sC}, s{sC}, s{sD}
    s_add_u32 s{sC}, s{sC}, {WS_X + 3*X_HOP}
    """)
    for nt in range(2):
        for dd in range(4):
            a(f"""
            v_lshlrev_b32 v{vT0}, 3, v{vQd}
            v_add_u32 v{vT0}, {2*dd - 16*nt}, v{vT0}
            v_sub_u32 v{vT0}, v{vT0}, v{vR16}
            v_mov_b32 v{vP+4*nt+dd}, 0
            v_cmp_eq_u32 vcc, 0, v{vT0}
            v_mov_b32 v{vT1}, 0x3f80
            v_cndmask_b32 v{vP+4*nt+dd}, v{vP+4*nt+dd}, v{vT1}, vcc
            v_cmp_eq_u32 vcc, -1, v{vT0}
            v_mov_b32 v{vT1}, 0x3f800000
            v_cndmask_b32 v{vP+4*nt+dd}, v{vP+4*nt+dd}, v{vT1}, vcc
            """)
    a(f"""
    v_lshrrev_b32 v{vT2}, 1, v{vQd}
    v_lshlrev_b32 v{vT2}, 10, v{vT2}
    v_and_b32 v{vT1}, 1, v{vQd}
    v_lshl_add_u32 v{vT2}, v{vT1}, 5, v{vT2}
    v_lshl_add_u32 v{vT2}, v{vR16}, 1, v{vT2}
    s_lshl_b32 s{sB}, s{sB}, 6
    """)
    a(f"s_mov_b32 s{sEx2}, s{sC}\ns_mov_b32 s{sEx2+1}, s{sB}")
    if cfg.db_final: db_wait(None, const_hop=3)
    a(f"s_mov_b32 s{sC}, s{sEx2}\ns_mov_b32 s{sB}, s{sEx2+1}")
    l = a.label("fp"); ok = a.label("fok")
    a(f"{l}:")
    a(f"buffer_load_dwordx4 {vr(vA,4)}, v{vaX}, {sr(sWS,4)}, s{sC} offen sc1")
    a("s_waitcnt vmcnt(0)")
    sent_check([vA+i for i in range(4)], vT0, ok)
    spin_fail(l, cfg.sleep_x)
    a(f"{ok}:")
    ts("fin_got")
    mfma(vAcc, vA, vP, "0"); mfma(vAcc + 4, vA, vP + 4, "0")
    sum4(vU, vAcc, vT3); sum4(vU + 1, vAcc + 4, vT3)
    a(f"""
    v_permlane16_swap_b32 v{vU}, v{vU+1}
    v_add_f32 v{vU}, v{vU}, v{vU+1}
    v_cvt_pk_bf16_f32 v{vU}, v{vU}, v{vU}
    buffer_store_short v{vU}, v{vT2}, {sr(sOUT,4)}, s{sB} offen
    """)
    if not cfg.epoch_early:
        a(f"""
        s_cmp_eq_u32 s{sB}, 0
        s_cbranch_scc0 L_fin
        v_mov_b32 v{vT0}, {WS_EPOCH}
        v_mov_b32 v{vT1}, s{sT}
        """)
        setexec(1)
        a(f"buffer_store_dword v{vT1}, v{vT0}, {sr(sWS,4)}, 0 offen sc1")
        setexec(FULL)

    a("L_fin:")
    if cfg.diag:
        g.role = "E"
        g.tsn["E"].append((NTS - 1, "end"))
        a(f"s_memrealtime s[{sTmp2}:{sTmp2+1}]\ns_waitcnt lgkmcnt(0)\ns_mov_b32 s{sTS+NTS-2}, s{sTmp2}")
        a(f"s_memtime s[{sTmp2}:{sTmp2+1}]\ns_waitcnt lgkmcnt(0)\ns_mov_b32 s{sTS+NTS-1}, s{sTmp2}")
        a(f"s_lshl_b32 s{sB}, s2, 3\ns_add_u32 s{sB}, s{sB}, s{sW}\ns_lshl_b32 s{sB}, s{sB}, 7\ns_add_u32 s{sB}, s{sB}, {WS_DIAG}\nv_mov_b32 v{vT0}, 0")
        setexec(1)
        for i in range(NTS):
            a(f"v_mov_b32 v{vT1}, s{sTS+i}\nbuffer_store_dword v{vT1}, v{vT0}, {sr(sWS,4)}, s{sB} offen offset:{4*i}")
        setexec(FULL)
        if cfg.dbg_dump is not None:
            a(f"""
            s_cmp_eq_u32 s2, {cfg.dbg_dump}
            s_cbranch_scc0 L_nodump
            s_cmp_eq_u32 s{sW}, 0
            s_cbranch_scc0 L_nodump
            s_load_dwordx2 s[{sTmp2}:{sTmp2+1}], s[0:1], 80
            s_waitcnt lgkmcnt(0)
            s_mov_b32 s{sA}, s{sTmp2}
            s_and_b32 s{sB}, s{sTmp2+1}, 0xffff
            s_mov_b32 s{sC}, 256
            s_mov_b32 s{sD}, 0x20000
            v_mov_b32 v{vT0}, 0
            s_mov_b64 exec, 1
            """)
            for i in range(1, 16):
                a(f"s_sub_u32 s{sTmp2}, s{sTS+i}, s{sTS}\nv_mov_b32 v{vT1}, s{sTmp2}\nbuffer_store_dword v{vT1}, v{vT0}, s[{sA}:{sD}], 0 offen offset:{4*(i-1)}")
            a(f"s_sub_u32 s{sTmp2}, s{sTS+NTS-1}, s{sTS}\nv_mov_b32 v{vT1}, s{sTmp2}\nbuffer_store_dword v{vT1}, v{vT0}, s[{sA}:{sD}], 0 offen offset:60")
            a("s_mov_b64 exec, -1\nL_nodump:")
    if cfg.dbg_span:
        a(f"""
        s_waitcnt vmcnt(0)
        s_cmp_eq_u32 s{sW}, 0
        s_cbranch_scc0 L_nospan
        s_memrealtime s[{sTmp2}:{sTmp2+1}]
        s_load_dwordx2 s[92:93], s[0:1], 80
        s_waitcnt lgkmcnt(0)
        s_mov_b32 s{sA}, s92
        s_and_b32 s{sB}, s93, 0xffff
        s_mov_b32 s{sC}, 256
        s_mov_b32 s{sD}, 0x20000
        v_mov_b32 v{vT0}, 8
        v_mov_b32 v{vT1}, s{sTmp2}
        s_not_b32 s94, s94
        v_mov_b32 v{vT2}, s94
        s_mov_b64 exec, 1
        buffer_atomic_umax v{vT1}, v{vT0}, s[{sA}:{sD}], 0 offen sc1
        buffer_atomic_umax v{vT2}, v{vT0}, s[{sA}:{sD}], 0 offen offset:4 sc1
        s_waitcnt vmcnt(0)
        L_nospan:
        """)
    a("s_waitcnt vmcnt(0)\ns_endpgm")
    a(f"""
    L_abort:
    s_mov_b64 exec, -1
    v_mov_b32 v{vT0}, 0
    v_mov_b32 v{vT1}, 0xdead
    s_load_dwordx2 s[{sTmp2}:{sTmp2+1}], s[0:1], 80
    s_waitcnt lgkmcnt(0)
    s_mov_b32 s{sA}, s{sTmp2}
    s_and_b32 s{sB}, s{sTmp2+1}, 0xffff
    s_mov_b32 s{sC}, 256
    s_mov_b32 s{sD}, 0x20000
    s_mov_b64 exec, 1
    buffer_store_dword v{vT1}, v{vT0}, s[{sA}:{sD}], 0 offen offset:4
    s_waitcnt vmcnt(0)
    L_end:
    s_endpgm
    """)
    for o in g.ool: a(o)
    a("L_codeend:\ns_endpgm")
    lines = a.text().rstrip("\n").split("\n")
    g.ninstr = sum(1 for l in lines if l.startswith("    ") and not l.strip().startswith(";"))
    lines = hazard.pad(lines)
    return g, "\n".join(lines) + "\n"

HEADER = open("interleave_layers__sliding_block_cached__glu_gated_glu__decode.s.ref").read().split("; Override launch")[0]

def full(cfg):
    g, body = build(cfg)
    txt = HEADER
    txt += "; Persistent single-launch kernel: 256 workgroups (one per CU) x 256 threads.\n"
    txt += f"; @launch grid=(256,1,1) block=(256,1,1) lds={LDS_BYTES}\n"
    txt += '.amdgcn_target "amdgcn-amd-amdhsa--gfx950"\n.text\n'
    txt += f".globl {NAME}\n.p2align 8\n.type {NAME},@function\n{NAME}:\n"
    txt += body
    txt += '.section .rodata,"a"\n.p2align 6\n'
    txt += f".amdhsa_kernel {NAME}\n  .amdhsa_next_free_vgpr {256 + g.amax}\n  .amdhsa_next_free_sgpr 102\n  .amdhsa_accum_offset 256\n"
    txt += "  .amdhsa_group_segment_fixed_size 0\n  .amdhsa_kernarg_size 96\n  .amdhsa_user_sgpr_count 2\n  .amdhsa_user_sgpr_kernarg_segment_ptr 1\n  .amdhsa_system_sgpr_workgroup_id_x 1\n.end_amdhsa_kernel\n"
    return g, txt

if __name__ == "__main__":
    cfg = Cfg()
    for kv in sys.argv[2:]:
        k, v = kv.split("="); setattr(cfg, k, eval(v))
    g, txt = full(cfg)
    open(sys.argv[1], "w").write(txt)
    print("vgprs", g.vmax, "agprs", g.amax, "instrs", g.ninstr, "ts", g.tsn)
```

```python
import sys, struct
from asmlib import Asm
import hazard

NAME = "interleave_layers__sliding_block_cached__glu_gated_glu__decode_kernel"

WS_EPOCH = 0x0
WS_Q1 = 0x10000
WS_DB = 0x1c000
WS_Q2 = 0x20000
WS_H  = 0x28000
WS_X  = 0xE0000
X_HOP = 32768
WS_O  = 0x40000
O_STATS = 32768
O_J = O_STATS + 2048
O_L = 8 * O_J
WS_DIAG = 0x100000
WS_SIZE = 0x1000000

L_SMAX = 0
L_LSUM = 64
L_PBUF = 256
L_RED = 2560
R_Q, R_G, R_GZ, R_O, R_D, R_COL, R_COL2 = [L_RED + 1024 * i for i in range(7)]
L_QG = 10240
L_X0 = 14336
L_K = 16384
L_V = L_K + 65536
L_WQ = L_V + 65536
L_XI = L_V
LDS_BYTES = 163840
W_GATE, W_UP, W_DN = 0, 4096, 8192

C_SCALE = 0.08838834764831845 * 1.4426950408889634
def f2u(x): return struct.unpack("<I", struct.pack("<f", x))[0]

class Cfg:
    nKA = 8
    nKb1 = 1
    pace = 8
    gpts = (1, 2, 4)
    diag = False
    ts_only = None
    ts_issue = False
    force_global = False
    budget = 400000
    prefetch_code = True
    sleep_x = 0
    sleep_x0 = 0
    sleep_o = 0
    sl_nt = True
    pf_pol = ""
    pf_pol_f = ""
    pf_pol_o = " nt"
    pf_which = "qf"
    dbg_span = False
    counters = False
    db_early = False
    doorbell = True
    warm = True
    pf_stream = "o"
    pf_pos = 2
    pf_early = False
    pf_spol = ""
    wsA = False
    wsB = False
    junk_dirty = 0
    epoch_early = True
    w_interB = "gu"
    w_inter = False
    v3_early = False
    warm_by_B = True
    o_spec = True
    db_g = True
    db_q = True
    db_final = False
    stats_mid = True
    pf_down = False
    pf_down_pol = " nt"
    kv_pol = " nt"
    sub2 = ""
    dbg_dump = None
    db_pipe = False
    rt_probe = None
    rot_mode = "m8"
    warm_out = False
    line_pf = True
    const_tag = False
    no_clear0 = False
    clr0_late = False

def vr(b, n=1): return f"v[{b}:{b+n-1}]" if n > 1 else f"v{b}"
def ar(b, n=1): return f"a[{b}:{b+n-1}]" if n > 1 else f"a{b}"
def sr(b, n=1): return f"s[{b}:{b+n-1}]" if n > 1 else f"s{b}"

sJ, sM, sW, sIdx, sL = 3, 4, 5, 6, 7
sWS, sKS, sVS, sWQ, sW2, sUP, sDN, sX0, sOUT = 8, 12, 16, 20, 24, 28, 32, 36, 40
sT, sTX, sLocal, sBud = 44, 45, 46, 47
sMDIAG = 48
sM4 = 50
sM2 = 52
sMN1 = 54
sMEV = 56
sEx = 58
sA, sB, sC, sD = 60, 61, 62, 63
sKV, sRot = 64, 65
sOown, sOcons, sXw, sXr, sHb, sQ2w, sQ2r = 66, 67, 68, 69, 70 - 70 + 96, 97, 98
sXcc = 99
sWb2, sWst2 = 68, 60
sWb, sWst = 59, 69
sKS2 = sKS
sDBtag = 59
sEx2 = 50
sDBw, sDBr = 64, 65
sXI = 58
sTmp2 = 100
sTS = 70
NTS = 26

class G:
    pass

def build(cfg):
    g = G(); a = Asm(); g.a = a
    g.tsn = {"C": [], "A": [], "B": [], "E": []}; g.role = "C"; g.ts = 0; g.cnts = {}; g.cnt_names = []
    nv = [1]
    def valloc(n=1, align=1):
        nv[0] = (nv[0] + align - 1) // align * align
        r = nv[0]; nv[0] += n
        assert nv[0] <= 256
        return r
    vLane = valloc(); vR16 = valloc(); vQd = valloc()
    vT0 = valloc(); vT1 = valloc(); vT2 = valloc(); vT3 = valloc()
    vOnes = valloc(4, 4)
    vQ = valloc(16, 4)
    vA = valloc(40, 4)
    vAcc = valloc(16, 4)
    vS = valloc(16, 4)
    vP = valloc(32, 4)
    vJ = valloc()
    vHop = valloc(8, 4)
    vU = valloc(16, 4)
    vSt = valloc(8, 4)
    vW = valloc(2, 2)
    vCs = valloc(); vCg = valloc(); vCu = valloc()
    vRes = valloc(); vResF = valloc()
    vQ1d = valloc(2, 2); vQ1a = valloc()
    vMc = valloc(4, 4)
    vaX = valloc(); vaXg = valloc(); vaXr = valloc(); vaStQ = valloc(); vaClrO = valloc(); vaO0 = valloc(); vaO1 = valloc(); vaS0 = valloc(); vaS1 = valloc(); vaQ2 = valloc(); vaH = valloc()
    vaPw = valloc(); vaPr = valloc(); vaSm = valloc(); vaSmW = valloc(); vaRedW = valloc(); vaRedZ = valloc()
    vaFinW = valloc(); vaFinZ = valloc(); vaFinQZ = valloc(); vaFinO = valloc()
    vaStH = valloc(); vaStX = valloc(); vaStO = valloc(); vaStS = valloc(); vaResU = valloc()
    vWs = valloc()
    vKs = valloc(4); vVs = valloc(2); vVr = valloc(2); vKr = valloc(4)
    g.vmax = nv[0]
    aK, aV, aWq, aW2, aWd = 0, 64, 128, 144, 176
    g.amax = 192

    FULL = (1 << 64) - 1
    def ts(name):
        if not cfg.diag: return
        if cfg.ts_only and name not in cfg.ts_only and name not in ("start", "setup", "issued"): return
        i = g.ts; g.ts += 1; g.maxts = max(getattr(g, "maxts", 0), g.ts)
        assert i < NTS - 3, name
        g.tsn[g.role].append((i, name))
        if name == "start":
            return
        if name == "issued":
            g.i_issued = i
            a(f"s_memtime s[{sTmp2}:{sTmp2+1}]\ns_waitcnt lgkmcnt(0)\ns_mov_b32 s92, s{sTmp2}")
            return
        if name == "setup":
            a(f"s_mov_b32 s{sTS}, s90\ns_mov_b32 s{sTS+NTS-3}, s91")
            if cfg.ts_issue: a(f"s_mov_b32 s{sTmp2}, s92")
            for z in list(range(1, NTS - 3)) + [NTS - 2, NTS - 1]: a(f"s_mov_b32 s{sTS+z}, 0")
            if cfg.ts_issue: a(f"s_mov_b32 s{sTS+g.i_issued}, s{sTmp2}")
        if cfg.ts_only and name not in cfg.ts_only:
            return
        a(f"s_memtime s[{sTmp2}:{sTmp2+1}]\ns_waitcnt lgkmcnt(0)\ns_mov_b32 s{sTS+i}, s{sTmp2}")
    def ts_dyn(name0, name1):
        if not cfg.diag: return
        if cfg.ts_only and name0 not in cfg.ts_only: return
        i = g.ts; g.ts += 2; g.maxts = max(getattr(g, "maxts", 0), g.ts)
        assert i + 1 < NTS - 3, name0
        g.tsn[g.role].append((i, name0)); g.tsn[g.role].append((i + 1, name1))
        if cfg.ts_only and name0 not in cfg.ts_only: return
        a(f"""s_memtime s[{sTmp2}:{sTmp2+1}]
        s_waitcnt lgkmcnt(0)
        s_cmp_eq_u32 s{sL}, 0
        s_cselect_b32 s{sTS+i}, s{sTmp2}, s{sTS+i}
        s_cselect_b32 s{sTS+i+1}, s{sTS+i+1}, s{sTmp2}""")

    def cnt(name):
        if not (cfg.diag and cfg.counters): return
        key = (g.role, name)
        if key not in g.cnts:
            i = g.ts; g.ts += 1; g.maxts = max(getattr(g, "maxts", 0), g.ts)
            assert i < NTS - 3, name
            g.cnts[key] = i; g.cnt_names.append((g.role, i, name))
        a(f"s_add_u32 s{sTS+g.cnts[key]}, s{sTS+g.cnts[key]}, 1")

    def rt_probe(name):
        if cfg.rt_probe != name: return
        lab = a.label("rp")
        if name == "start":
            cond = f"s_cmp_eq_u32 s2, 0\ns_cbranch_scc0 {lab}"
        else:
            cond = f"s_mul_hi_u32 s{sA}, s2, {(2**32 + 16) // 17}\ns_mul_i32 s{sB}, s{sA}, 17\ns_cmp_eq_u32 s{sB}, s2\ns_cbranch_scc0 {lab}"
        a(f"""
        s_cmp_eq_u32 s{sW}, 0
        s_cbranch_scc0 {lab}
        {cond}
        s_memrealtime s[{sTmp2}:{sTmp2+1}]
        s_load_dwordx2 s[92:93], s[0:1], 80
        s_waitcnt lgkmcnt(0)
        s_lshl_b32 s{sA}, s{sA}, 2
        v_mov_b32 v{vT0}, s{sA}
        v_mov_b32 v{vT1}, s{sTmp2}
        s_mov_b64 exec, 1
        global_store_dword v{vT0}, v{vT1}, s[92:93]
        s_mov_b64 exec, -1
        {lab}:
        """)

    def setexec(mask):
        if mask == FULL: a("s_mov_b64 exec, -1")
        elif isinstance(mask, str): a(f"s_mov_b64 exec, {mask}")
        elif mask < 65 or mask in (0xFFFF, 0xF, 0xFF):
            a(f"s_mov_b64 exec, 0x{mask:x}" if mask >= 65 else f"s_mov_b64 exec, {mask}")
        else:
            a(f"s_mov_b32 exec_lo, 0x{mask & 0xFFFFFFFF:x}\ns_mov_b32 exec_hi, 0x{mask >> 32:x}")
    EM4, EM2, EMEV = f"s[{sM4}:{sM4+1}]", f"s[{sM2}:{sM2+1}]", f"s[{sMEV}:{sMEV+1}]"

    def srd(dst, ptr_s, size):
        a(f"s_mov_b32 s{dst}, s{ptr_s}\ns_and_b32 s{dst+1}, s{ptr_s+1}, 0xffff\ns_mov_b32 s{dst+2}, 0x{size:x}\ns_mov_b32 s{dst+3}, 0x20000")

    def mfma(d, A, B, C=None):
        f = lambda x: x if isinstance(x, str) else vr(x, 4)
        c = f(d) if C is None else C
        a(f"v_mfma_f32_16x16x32_bf16 {f(d)}, {f(A)}, {f(B)}, {c}")

    def spin_fail(lbl_retry, sleep=0):
        if sleep: a(f"s_sleep {sleep}")
        a(f"s_sub_u32 s{sBud}, s{sBud}, 1\ns_cbranch_scc0 {lbl_retry}\ns_branch L_abort")
    def interleave(mf, va, start, per=2):
        va = list(va)
        for i, m in enumerate(mf):
            a(m)
            if i >= start:
                for _ in range(per):
                    if va: a(va.pop(0))
        for v in va: a(v)
    def mf(d, A, B, C=None):
        f = lambda x: x if isinstance(x, str) else vr(x, 4)
        return f"v_mfma_f32_16x16x32_bf16 {f(d)}, {f(A)}, {f(B)}, {f(d) if C is None else C}"

    def sent_max(regs, tmp):
        rs = list(regs)
        if len(rs) == 1: return rs[0]
        if len(rs) == 2:
            a(f"v_max_u32 v{tmp}, v{rs[0]}, v{rs[1]}"); rs = []
        else:
            a(f"v_max3_u32 v{tmp}, v{rs[0]}, v{rs[1]}, v{rs[2]}"); rs = rs[3:]
        while len(rs) >= 2:
            a(f"v_max3_u32 v{tmp}, v{tmp}, v{rs[0]}, v{rs[1]}"); rs = rs[2:]
        if rs: a(f"v_max_u32 v{tmp}, v{tmp}, v{rs[0]}")
        return tmp
    def sent_check(regs, tmp, lbl_ok):
        cur = sent_max(regs, tmp)
        a(f"v_cmp_eq_u32 vcc, -1, v{cur}\ns_cbranch_vccz {lbl_ok}")

    g.ool = []
    def store_local(instr):
        if cfg.force_global:
            a(instr + " sc1"); return
        l1 = a.label("stg"); l2 = a.label("std")
        a(f"s_cmp_eq_u32 s{sLocal}, 0\ns_cbranch_scc1 {l1}")
        a(instr)
        a(f"{l2}:")
        g.ool.append(f"{l1}:\n{instr} sc1\ns_branch {l2}")

    def dpp(op, d, s0, s1, ctrl, rm="0xf", bm="0xf"):
        if s1 is None: a(f"{op}_dpp v{d}, v{s0} {ctrl} row_mask:{rm} bank_mask:{bm}")
        else: a(f"{op}_dpp v{d}, v{s0}, v{s1} {ctrl} row_mask:{rm} bank_mask:{bm}")
    def row_reduce(op, v, steps=(8, 4, 2, 1)):
        for n in steps: dpp(op, v, v, v, f"row_ror:{n}")
    def xquad_reduce(op, v, tmp):
        a(f"v_mov_b32 v{tmp}, v{v}\nv_permlane32_swap_b32 v{v}, v{tmp}\n{op} v{v}, v{v}, v{tmp}")
        a(f"v_mov_b32 v{tmp}, v{v}\nv_permlane16_swap_b32 v{v}, v{tmp}\n{op} v{v}, v{v}, v{tmp}")
    def sum4(dst, b, tmp):
        a(f"v_add_f32 v{dst}, v{b}, v{b+1}\nv_add_f32 v{tmp}, v{b+2}, v{b+3}\nv_add_f32 v{dst}, v{dst}, v{tmp}")

    P = sTS
    EARLY = ""
    if cfg.dbg_span:
        EARLY = f"s_memrealtime s[94:95]"
    if cfg.diag:
        EARLY = f"s_memrealtime s[{sTmp2}:{sTmp2+1}]\ns_waitcnt lgkmcnt(0)\ns_mov_b32 s91, s{sTmp2}\ns_memtime s[{sTmp2}:{sTmp2+1}]\ns_waitcnt lgkmcnt(0)\ns_mov_b32 s90, s{sTmp2}"
    SLN = " nt" if cfg.sl_nt else ""
    a(f"""
    s_cmp_ge_u32 s2, 256
    s_cbranch_scc1 L_end
    {EARLY}
    s_load_dwordx4 s[{P+6}:{P+9}], s[0:1], 16          ; V, wq     (76..79)
    s_load_dwordx4 s[{P+2}:{P+5}], s[0:1], 0           ; x, K      (72..75)
    s_load_dwordx2 s[{P+18}:{P+19}], s[0:1], 88        ; ws        (88..89)
    s_load_dwordx2 s[{P}:{P+1}], s[0:1], 32            ; wo        (70..71)
    s_load_dwordx4 s[{P+10}:{P+13}], s[0:1], 48
    s_load_dwordx4 s[{P+14}:{P+17}], s[0:1], 64
    v_lshrrev_b32 v{vT0}, 6, v0
    v_and_b32 v{vLane}, 63, v0
    """)
    if cfg.prefetch_code:
        a(f"""
        s_getpc_b64 s[{sTmp2}:{sTmp2+1}]
        L_pfbase:
        v_readfirstlane_b32 s{sW}, v{vT0}
        v_lshlrev_b32 v{vT1}, 7, v0
        s_mov_b32 s{sB}, (L_codeend - L_pfbase)
        v_cmp_gt_u32 vcc, s{sB}, v{vT1}
        s_and_b32 s{sJ}, s2, 7
        s_and_saveexec_b64 s[{sEx}:{sEx+1}], vcc
        s_cbranch_execz L_nopf
        global_load_dword v{vU+15}, v{vT1}, s[{sTmp2}:{sTmp2+1}]
        L_nopf:
        s_mov_b64 exec, s[{sEx}:{sEx+1}]
        """)
    else:
        a(f"s_and_b32 s{sJ}, s2, 7\nv_readfirstlane_b32 s{sW}, v{vT0}")
    a(f"""
    s_lshr_b32 s{sM}, s2, 3
    v_lshrrev_b32 v{vT2}, 1, v{vLane}
    v_lshlrev_b32 v{vT2}, 13, v{vT2}
    v_and_b32 v{vT3}, 1, v{vLane}
    v_lshl_add_u32 v{vT2}, v{vT3}, 4, v{vT2}
    v_lshrrev_b32 v{vT0}, {4 if "q" in cfg.sub2 else 3}, v{vLane}
    v_lshlrev_b32 v{vT0}, 13, v{vT0}
    v_and_b32 v{vT3}, {15 if "q" in cfg.sub2 else 7}, v{vLane}
    v_lshl_add_u32 v{vT0}, v{vT3}, {6 if "q" in cfg.sub2 else 7}, v{vT0}
    s_lshl_b32 s{sC}, s{sJ}, 10
    s_lshl_b32 s{sA}, s{sM}, 2
    s_add_u32 s{sA}, s{sA}, s{sW}
    s_lshl_b32 s{sA}, s{sA}, 15
    s_add_u32 s{sA}, s{sA}, s{sC}
    s_lshl_b32 s{sB}, s{sW}, 20
    s_add_u32 s{sB}, s{sB}, s{sC}
    s_lshl_b32 s{sC}, s{sM}, 5
    s_add_u32 s{sB}, s{sB}, s{sC}
    s_lshl_b32 s{sC}, s{sW}, 12
    s_add_u32 s{sC}, s{sC}, {L_WQ}
    s_mov_b32 s{sWQ+2}, 0x400000
    s_mov_b32 s{sWQ+3}, 0x20000
    s_waitcnt lgkmcnt(0)
    s_mov_b32 s{sWQ}, s{P+8}
    s_and_b32 s{sWQ+1}, s{P+9}, 0xffff
    """)
    if cfg.line_pf and "q" in cfg.pf_which:
        if "q" not in cfg.sub2: setexec(0xFFFFFFFF)
        a(f"buffer_load_dword v{vJ}, v{vT0}, {sr(sWQ,4)}, s{sA} offen{cfg.pf_pol}")
        if "q" not in cfg.sub2: setexec(FULL)
    for u in range(4):
        a(f"""
        s_mov_b32 m0, s{sC}
        s_add_u32 s{sC}, s{sC}, 1024
        buffer_load_dwordx4 v{vT2}, {sr(sWQ,4)}, s{sB} offen{SLN} lds
        s_add_u32 s{sB}, s{sB}, {32*8192}
        """)
    XA = vA + 8
    ROT = {"m8": f"s_and_b32 s{sRot}, s{sM}, 7\ns_lshl_b32 s{sRot}, s{sRot}, 1",
           "mj8": f"s_add_u32 s{sRot}, s{sM}, s{sJ}\ns_and_b32 s{sRot}, s{sRot}, 7\ns_lshl_b32 s{sRot}, s{sRot}, 1",
           "m16": f"s_and_b32 s{sRot}, s{sM}, 15",
           "mj16": f"s_lshl_b32 s{sRot}, s{sJ}, 1\ns_add_u32 s{sRot}, s{sRot}, s{sM}\ns_and_b32 s{sRot}, s{sRot}, 15",
           "none": f"s_mov_b32 s{sRot}, 0",
           "m4x4": f"s_and_b32 s{sRot}, s{sM}, 3\ns_lshl_b32 s{sRot}, s{sRot}, 2"}[cfg.rot_mode]
    a(f"""
    v_and_b32 v{vR16}, 15, v0
    v_lshrrev_b32 v{vQd}, 4, v{vLane}
    s_and_b32 s{sIdx}, s{sM}, 15
    {ROT}
    s_lshr_b32 s{sB}, s{sM}, 4
    s_lshl_b32 s{sB}, s{sB}, 3
    s_add_u32 s{sB}, s{sB}, s{sJ}
    s_lshl_b32 s{sB}, s{sB}, 23
    s_lshl_b32 s{sC}, s{sIdx}, 16
    s_add_u32 s{sKV}, s{sB}, s{sC}
    s_add_u32 s{sKV}, s{sKV}, 0x700000
    v_lshlrev_b32 v{vT1}, 4, v{vLane}          ; lane*16
    """)
    srd(sKS, P + 4, 0x8000000)
    for i in range(4):
        a(f"""
        v_add_u32 v{vT3}, {4*i}, v{vQd}
        v_xor_b32 v{vT3}, v{vT3}, v{vR16}
        v_lshlrev_b32 v{vT3}, 4, v{vT3}
        v_lshl_add_u32 v{vKs+i}, v{vQd}, 8, v{vT3}
        """)
    srd(sWS, P + 18, WS_SIZE)
    if cfg.const_tag: a(f"s_mov_b32 s{sT}, 0x12345670")
    else: a(f"s_load_dword s{sT}, s[{P+18}:{P+19}], {WS_EPOCH}")
    srd(sX0, P + 2, 2048)
    a(f"s_cmp_eq_u32 s{sW}, 0\ns_cbranch_scc0 L_nox0")
    a(f"""
    s_mov_b32 m0, {L_X0}
    s_nop 0
    buffer_load_dwordx4 v{vT1}, {sr(sX0,4)}, 0 offen lds
    buffer_load_dwordx4 v{vT1}, {sr(sX0,4)}, 0 offen offset:1024 lds
    L_nox0:
    """)
    a(f"""
    s_mul_i32 s{sOown}, s{sJ}, {O_J}
    s_lshr_b32 s{sB}, s{sM}, 4
    s_lshl_b32 s{sB}, s{sB}, 14
    s_add_u32 s{sOown}, s{sOown}, s{sB}
    s_lshl_b32 s{sB}, s{sIdx}, 4
    s_add_u32 s{sOown}, s{sOown}, s{sB}
    s_add_u32 s{sOown}, s{sOown}, {WS_O}
    s_lshl_b32 s{sC}, s{sIdx}, 10
    s_lshl_b32 s{sD}, s{sJ}, 7
    s_add_u32 s{sC}, s{sC}, s{sD}
    s_add_u32 s{sXw}, s{sC}, {WS_X}
    s_mov_b32 s{sXr}, {WS_X}
    s_lshl_b32 s{sHb}, s{sJ}, 10
    s_add_u32 s{sHb}, s{sHb}, {WS_H}
    s_lshl_b32 s{sQ2w}, s{sJ}, 11
    s_add_u32 s{sQ2r}, s{sQ2w}, {WS_Q2}
    ; producer m: h = m>>3, c = (m>>1)&3, e0 = 2*(m&1)  ->  c*256 + e0*64 + h*16
    s_lshr_b32 s{sB}, s{sM}, 1
    s_and_b32 s{sB}, s{sB}, 3
    s_lshl_b32 s{sB}, s{sB}, 8
    s_add_u32 s{sQ2w}, s{sQ2r}, s{sB}
    s_and_b32 s{sB}, s{sM}, 1
    s_lshl_b32 s{sB}, s{sB}, 7
    s_add_u32 s{sQ2w}, s{sQ2w}, s{sB}
    s_lshr_b32 s{sB}, s{sM}, 3
    s_lshl_b32 s{sB}, s{sB}, 4
    s_add_u32 s{sQ2w}, s{sQ2w}, s{sB}
    s_lshr_b32 s{sB}, s{sM}, 4
    s_lshl_b32 s{sB}, s{sB}, 10
    s_add_u32 s{sQ2r}, s{sQ2r}, s{sB}
    """)
    if cfg.no_clear0: a("s_branch L_clr_done")
    a(f"""
    v_mov_b32 v{vU}, -1
    v_mov_b32 v{vU+1}, -1
    v_mov_b32 v{vU+2}, -1
    v_mov_b32 v{vU+3}, -1
    v_bfe_u32 v{vT3}, v{vLane}, 1, 1
    v_lshlrev_b32 v{vT3}, 10, v{vT3}
    v_and_b32 v{vT0}, 1, v{vLane}
    v_lshl_add_u32 v{vT3}, v{vT0}, 6, v{vT3}
    v_add_u32 v{vT0}, s{sQ2w}, v{vT3}
    s_cmp_lt_u32 s{sM}, 16
    s_cbranch_scc0 L_clr_B
    s_cmp_eq_u32 s{sW}, 1
    s_cbranch_scc0 L_clr_A2
    """)
    setexec(0xF)
    a(f"""
    s_branch L_clr_st
    L_clr_A2:
    s_cmp_eq_u32 s{sW}, 2
    s_cbranch_scc0 L_clr_done
    s_xor_b32 s{sC}, s{sXw}, 0x2000
    s_add_u32 s{sC}, s{sC}, 16384
    v_mov_b32 v{vT0}, s{sXw}
    v_mov_b32 v{vT1}, s{sC}
    v_bfe_u32 v{vT3}, v{vLane}, 3, 1
    v_cmp_eq_u32 vcc, 1, v{vT3}
    v_cndmask_b32 v{vT0}, v{vT0}, v{vT1}, vcc
    v_lshrrev_b32 v{vT3}, 4, v{vLane}
    v_lshlrev_b32 v{vT3}, 15, v{vT3}
    v_and_b32 v{vT1}, 7, v{vLane}
    v_lshl_add_u32 v{vT3}, v{vT1}, 4, v{vT3}
    v_add_u32 v{vT0}, v{vT0}, v{vT3}
    s_branch L_clr_st
    L_clr_B:
    s_cmp_eq_u32 s{sW}, 2
    s_cbranch_scc0 L_clr_done
    """)
    setexec(0xF)
    a(f"""
    s_cmp_ge_u32 s{sIdx}, 14
    s_cbranch_scc1 L_clr_st
    s_lshl_b32 s{sD}, s{sIdx}, 6
    s_add_u32 s{sC}, s{sHb}, s{sD}
    """)
    setexec(0xFF0)
    a(f"""
    v_bfe_u32 v{vT3}, v{vLane}, 3, 1
    v_lshlrev_b32 v{vT3}, 13, v{vT3}
    v_and_b32 v{vT1}, 3, v{vLane}
    v_lshl_add_u32 v{vT3}, v{vT1}, 4, v{vT3}
    v_add_u32 v{vT0}, s{sC}, v{vT3}
    """)
    setexec(0xFFF)
    a("L_clr_st:")
    a(f"buffer_store_dwordx4 {vr(vU,4)}, v{vT0}, {sr(sWS,4)}, 0 offen sc1")
    setexec(FULL)
    a("L_clr_done:")
    def emit_wpf(qWO, qGT, reload_ptrs):
        n = 0
        a(f"s_lshl_b32 s{sD}, s{sM}, 2\ns_add_u32 s{sD}, s{sD}, s{sW}               ; q = 4m + w")
        if reload_ptrs:
            a(f"""
            s_load_dwordx2 s[{qWO}:{qWO+1}], s[0:1], 32
            s_load_dwordx2 s[{qGT}:{qGT+1}], s[0:1], 48
            s_waitcnt lgkmcnt(0)
            s_and_b32 s{qWO+1}, s{qWO+1}, 0xffff
            s_mov_b32 s{qWO+2}, 0x400000
            s_and_b32 s{qGT+1}, s{qGT+1}, 0xffff
            s_mov_b32 s{qGT+2}, {512*1792*2}
            """)
        if "o" in cfg.pf_stream:
            a(f"""
            v_lshlrev_b32 v{vT0}, {6 if "o" in cfg.sub2 else 7}, v{vLane}
            s_lshl_b32 s{sB}, s{sJ}, 19
            s_lshl_b32 s{sC}, s{sD}, 12
            s_add_u32 s{sB}, s{sB}, s{sC}
            """)
            if "o" not in cfg.sub2: setexec(0xFFFFFFFF)
            a(f"buffer_load_dword v{vJ}, v{vT0}, {sr(qWO,4)}, s{sB} offen{cfg.pf_spol}")
            setexec(FULL); n += 1
        if "g" in cfg.pf_stream or "u" in cfg.pf_stream:
            a(f"""
            v_mul_u32_u24 v{vT0}, 52, v{vLane}
            v_lshrrev_b32 v{vT0}, 8, v{vT0}
            v_mul_u32_u24 v{vT1}, 5, v{vT0}
            v_sub_u32 v{vT1}, v{vLane}, v{vT1}
            v_mul_u32_u24 v{vT0}, 3584, v{vT0}
            v_lshl_add_u32 v{vT0}, v{vT1}, 7, v{vT0}
            s_mul_i32 s{sB}, s{sD}, {4*3584}
            s_mul_i32 s{sC}, s{sJ}, 448
            s_and_b32 s{sC}, s{sC}, 0xffffff80
            s_add_u32 s{sB}, s{sB}, s{sC}
            """)
            setexec((1 << 20) - 1)
            if "g" in cfg.pf_stream:
                a(f"buffer_load_dword v{vJ}, v{vT0}, {sr(qGT,4)}, s{sB} offen{cfg.pf_spol}"); n += 1
            if "u" in cfg.pf_stream:
                a(f"buffer_load_dword v{vJ}, v{vT0}, {sr(sUP,4)}, s{sB} offen{cfg.pf_spol}"); n += 1
            setexec(FULL)
        if "d" in cfg.pf_stream:
            a(f"""
            v_lshlrev_b32 v{vT0}, 7, v{vLane}
            s_min_u32 s{sB}, s{sD}, 111
            s_lshl_b32 s{sB}, s{sB}, 11
            s_mul_i32 s{sC}, s{sJ}, {224*1024}
            s_add_u32 s{sB}, s{sB}, s{sC}
            """)
            setexec(0xFFFF)
            a(f"buffer_load_dword v{vJ}, v{vT0}, {sr(sDN,4)}, s{sB} offen{cfg.pf_spol}")
            setexec(FULL); n += 1
        return n

    def page_off(t, dst):
        a(f"""
        s_add_u32 s{dst}, s{sW}, s{sRot}
        s_add_u32 s{dst}, s{dst}, {4*t}
        s_and_b32 s{dst}, s{dst}, 15
        s_lshl_b32 s{dst}, s{dst}, 12
        s_add_u32 s{dst}, s{dst}, s{sKV}
        """)
    def k_page(t):
        page_off(t, sD)
        a(f"s_lshl_b32 s{sC}, s{sW}, 14\ns_add_u32 s{sC}, s{sC}, {L_K + t*4096}\ns_mov_b32 m0, s{sC}\ns_nop 0")
        for ii in range(4):
            a(f"buffer_load_dwordx4 v{vKs+ii}, {sr(sKS,4)}, s{sD} offen offset:{ii*1024}{cfg.kv_pol} lds")
    nKpA = cfg.nKA // 4
    for t in range(cfg.nKb1): k_page(t)
    nPFe = 0
    if cfg.pf_stream and cfg.pf_early:
        srd(sVS, P, 0x400000)
        srd(sOUT, P + 10, 512 * 1792 * 2)
        srd(sUP, P + 12, 512 * 1792 * 2)
        srd(sDN, P + 14, 1792 * 512 * 2)
        nPFe = emit_wpf(sVS, sOUT, False)
    ts("start")
    if cfg.ts_issue: ts("issued")

    srd(sVS, P + 6, 0x8000000)
    srd(sUP, P + 12, 512 * 1792 * 2)
    srd(sDN, P + 14, 1792 * 512 * 2)
    srd(sOUT, P + 16, 2048)
    a(f"""
    s_cmp_lt_u32 s{sM}, 16
    s_cselect_b32 s{sW2}, s{P}, s{P+10}
    s_cselect_b32 s{sW2+1}, s{P+1}, s{P+11}
    s_mov_b32 s{sW2+2}, {512*1792*2}
    s_cselect_b32 s{sW2+2}, 0x400000, s{sW2+2}
    s_and_b32 s{sW2+1}, s{sW2+1}, 0xffff
    s_mov_b32 s{sW2+3}, 0x20000
    s_mov_b32 s{sBud}, {cfg.budget}
    s_getreg_b32 s{sXcc}, hwreg(HW_REG_XCC_ID, 0, 4)
    s_mov_b32 s{sMDIAG}, 0x00ff00ff
    s_mov_b32 s{sMDIAG+1}, 0xff00ff00
    s_mov_b32 s{sM4}, 0x000f000f
    s_mov_b32 s{sM4+1}, 0x000f000f
    s_mov_b32 s{sM2}, 0x00030003
    s_mov_b32 s{sM2+1}, 0x00030003
    s_mov_b32 s{sMN1}, 0x00020002
    s_mov_b32 s{sMN1+1}, 0x00020002
    s_mov_b32 s{sMEV}, 0x55555555
    s_mov_b32 s{sMEV+1}, 0x55555555
    s_mov_b32 s{sL}, 0
    s_mul_i32 s{sOcons}, s{sJ}, {O_J}
    s_lshl_b32 s{sB}, s{sW}, 12
    s_add_u32 s{sOcons}, s{sOcons}, s{sB}
    s_add_u32 s{sOcons}, s{sOcons}, {WS_O}
    """)
    for i in range(4): a(f"v_mov_b32 v{vOnes+i}, 0x3f803f80")
    for i in range(16): a(f"v_mov_b32 v{vQ+i}, 0")
    for i in range(8): a(f"v_mov_b32 v{vHop+i}, 0")
    a(f"v_mov_b32 v{vQ1a}, 0\nv_mov_b32 v{vQ1d}, 0\nv_mov_b32 v{vQ1d+1}, 0")
    h3 = vU; qh = vU + 1; ql = vU + 2
    a(f"""
    v_and_b32 v{h3}, 3, v{vR16}
    v_lshrrev_b32 v{qh}, 1, v{vQd}
    v_and_b32 v{ql}, 1, v{vQd}
    v_and_b32 v{vT0}, 7, v{vR16}
    v_lshlrev_b32 v{vT0}, 7, v{vT0}
    v_lshrrev_b32 v{vT1}, 3, v{vR16}
    v_lshl_add_u32 v{vT0}, v{vT1}, 6, v{vT0}
    v_lshl_add_u32 v{vaX}, v{vQd}, 4, v{vT0}
    v_lshrrev_b32 v{vT0}, 3, v{vLane}
    v_and_b32 v{vT1}, 2, v{vT0}
    v_and_b32 v{vT2}, 7, v{vLane}
    v_xor_b32 v{vT1}, v{vT1}, v{vT2}
    v_lshlrev_b32 v{vT1}, 4, v{vT1}
    v_lshl_add_u32 v{vT0}, v{vT0}, 7, v{vT1}
    s_lshl_b32 s{sB}, s{sW}, 12
    s_xor_b32 s{sC}, s{sB}, 0x2000
    s_add_u32 s{sC}, s{sC}, 16384
    s_lshr_b32 s{sA}, s{sXcc}, 2
    s_lshr_b32 s{sD}, s{sW}, 1
    s_cmp_eq_u32 s{sA}, s{sD}
    s_cselect_b32 s{sB}, s{sB}, s{sC}
    v_add_u32 v{vaXg}, s{sB}, v{vT0}
    v_and_b32 v{vT0}, 7, v{vR16}
    v_lshrrev_b32 v{vT1}, 3, v{vR16}
    v_lshl_add_u32 v{vT1}, v{vT1}, 2, v{vQd}
    v_and_b32 v{vT2}, 2, v{vT0}
    v_xor_b32 v{vT1}, v{vT1}, v{vT2}
    v_lshlrev_b32 v{vT1}, 4, v{vT1}
    v_lshl_add_u32 v{vT0}, v{vT0}, 7, v{vT1}
    s_lshl_b32 s{sXI}, s{sW}, 12
    s_add_u32 s{sXI}, s{sXI}, {L_XI}
    v_add_u32 v{vaXr}, s{sXI}, v{vT0}
    v_lshlrev_b32 v{vaO0}, 4, v{vLane}
    v_add_u32 v{vaO1}, 16384, v{vaO0}
    v_lshl_add_u32 v{vT0}, v{vQd}, 2, v{vR16}
    v_and_b32 v{vT0}, 15, v{vT0}
    v_lshlrev_b32 v{vT0}, 4, v{vT0}
    s_mul_i32 s{sB}, s{sW}, 3840
    s_sub_u32 s{sB}, {O_STATS}, s{sB}
    v_add_u32 v{vaS0}, s{sB}, v{vT0}
    v_add_u32 v{vaS1}, 1024, v{vaS0}
    v_lshlrev_b32 v{vT0}, 6, v{vQd}
    v_lshl_add_u32 v{vaQ2}, v{h3}, 4, v{vT0}
    v_lshlrev_b32 v{vT0}, 10, v{ql}
    v_lshrrev_b32 v{vT1}, 3, v{vR16}
    v_lshl_add_u32 v{vT0}, v{vT1}, 6, v{vT0}
    v_and_b32 v{vT1}, 7, v{vR16}
    v_lshl_add_u32 v{vaStQ}, v{vT1}, 1, v{vT0}
    v_lshlrev_b32 v{vT0}, 12, v{h3}
    v_lshl_add_u32 v{vT0}, v{vQd}, 10, v{vT0}
    v_bfe_u32 v{vT1}, v{vLane}, 2, 2
    v_lshl_add_u32 v{vaClrO}, v{vT1}, 8, v{vT0}
    v_and_b32 v{vT0}, 1, v{vR16}
    v_lshlrev_b32 v{vT0}, 5, v{vT0}
    v_lshl_add_u32 v{vT0}, v{qh}, 6, v{vT0}
    v_lshl_add_u32 v{vT0}, v{ql}, 4, v{vT0}
    s_lshl_b32 s{sB}, s{sW}, 7
    v_add_u32 v{vaH}, s{sB}, v{vT0}
    v_lshlrev_b32 v{vT0}, 6, v{vQd}
    v_lshl_add_u32 v{vT0}, v{h3}, 4, v{vT0}
    v_add_u32 v{vaPr}, {L_PBUF}, v{vT0}
    v_lshrrev_b32 v{vT1}, 2, v{vR16}
    v_lshl_add_u32 v{vT1}, v{vT1}, 9, v{vaPr}
    s_lshr_b32 s{sB}, s{sW}, 1
    s_lshl_b32 s{sB}, s{sB}, 8
    s_and_b32 s{sC}, s{sW}, 1
    s_lshl_b32 s{sC}, s{sC}, 3
    s_add_u32 s{sB}, s{sB}, s{sC}
    v_add_u32 v{vaPw}, s{sB}, v{vT1}
    v_lshlrev_b32 v{vT0}, 4, v{h3}
    v_add_u32 v{vaSm}, {L_SMAX}, v{vT0}
    s_lshl_b32 s{sB}, s{sW}, 2
    v_add_u32 v{vaSmW}, s{sB}, v{vaSm}
    v_lshlrev_b32 v{vT0}, 4, v{vLane}
    v_add_u32 v{vaRedW}, s{sB}, v{vT0}
    v_and_b32 v{vT1}, 1, v{vR16}
    v_lshl_add_u32 v{vT1}, v{qh}, 1, v{vT1}
    v_lshlrev_b32 v{vT1}, 4, v{vT1}
    v_add_u32 v{vaRedZ}, s{sB}, v{vT1}
    v_lshl_add_u32 v{vT0}, v{ql}, 5, v{vR16}
    v_lshlrev_b32 v{vaFinW}, 4, v{vT0}
    v_lshlrev_b32 v{vaFinZ}, 5, v{ql}
    v_lshlrev_b32 v{vT0}, 9, v{ql}
    v_add_u32 v{vaFinQZ}, 256, v{vT0}
    v_lshlrev_b32 v{vaFinO}, 4, v{vLane}
    v_lshlrev_b32 v{vT0}, 5, v{ql}
    v_lshl_add_u32 v{vaStH}, v{vR16}, 1, v{vT0}
    v_lshlrev_b32 v{vT0}, 6, v{ql}
    v_lshl_add_u32 v{vT0}, v{qh}, 5, v{vT0}
    v_lshl_add_u32 v{vaStX}, v{vR16}, 1, v{vT0}
    v_lshlrev_b32 v{vT0}, 12, v{vR16}
    v_lshl_add_u32 v{vT0}, v{vQd}, 8, v{vT0}
    s_lshl_b32 s{sB}, s{sW}, 10
    v_add_u32 v{vaStO}, s{sB}, v{vT0}
    s_lshr_b32 s{sB}, s{sM}, 4
    s_mul_i32 s{sB}, s{sB}, 15360
    s_sub_u32 s{sB}, {O_STATS}, s{sB}
    v_lshlrev_b32 v{vT0}, 8, v{vLane}
    v_add_u32 v{vaStS}, s{sB}, v{vT0}
    """)
    a(f"s_lshl_b32 s{sB}, s{sW}, 14\ns_add_u32 s{sB}, s{sB}, {L_K}")
    for c in range(4):
        a(f"""
        v_add_u32 v{vT0}, {4*c}, v{vQd}
        v_xor_b32 v{vT0}, v{vT0}, v{vR16}
        v_lshlrev_b32 v{vT0}, 4, v{vT0}
        v_lshl_add_u32 v{vT0}, v{vR16}, 8, v{vT0}
        v_add_u32 v{vKr+c}, s{sB}, v{vT0}
        """)
    for e in range(2):
        a(f"""
        v_add_u32 v{vT1}, {4*e}, v{vQd}
        v_lshrrev_b32 v{vT2}, 1, v{vR16}
        v_xor_b32 v{vT1}, v{vT1}, v{vT2}
        v_lshlrev_b32 v{vT1}, 1, v{vT1}
        v_and_b32 v{vT2}, 1, v{vR16}
        v_or_b32 v{vT1}, v{vT1}, v{vT2}
        v_lshlrev_b32 v{vT1}, 4, v{vT1}
        v_lshl_add_u32 v{vVs+e}, v{vQd}, 8, v{vT1}
        """)
    for nt in range(2):
        a(f"""
        v_lshrrev_b32 v{vT1}, 2, v{vR16}
        v_lshl_add_u32 v{vT0}, v{vQd}, 2, v{vT1}
        v_and_b32 v{vT2}, 7, v{vT0}
        s_lshl_b32 s{sB}, s{sW}, 1
        s_add_u32 s{sB}, s{sB}, {nt}
        v_xor_b32 v{vT2}, s{sB}, v{vT2}
        v_lshlrev_b32 v{vT2}, 5, v{vT2}
        v_lshl_add_u32 v{vT0}, v{vT0}, 8, v{vT2}
        v_lshl_add_u32 v{vT0}, v{h3}, 3, v{vT0}
        v_add_u32 v{vVr+nt}, {L_V}, v{vT0}
        """)
    for i in range(16): a(f"v_mov_b32 v{XA+i}, 0")
    if cfg.w_inter:
        a(f"""
        s_cmp_lt_u32 s{sM}, 16
        s_cbranch_scc0 L_wsB
        v_lshrrev_b32 v{vT0}, 2, v{vLane}
        v_lshlrev_b32 v{vT0}, 10, v{vT0}
        v_and_b32 v{vT1}, 3, v{vLane}
        v_lshl_add_u32 v{vWs}, v{vT1}, 4, v{vT0}
        s_lshl_b32 s{sWb}, s{sJ}, 19
        s_lshl_b32 s{sC}, s{sW}, 17
        s_add_u32 s{sWb}, s{sWb}, s{sC}
        s_lshl_b32 s{sC}, s{sIdx}, 6
        s_add_u32 s{sWb}, s{sWb}, s{sC}
        s_mov_b32 s{sWst}, 16384
        s_mov_b32 s{sUP}, s{sW2}
        s_mov_b32 s{sUP+1}, s{sW2+1}
        s_mov_b32 s{sUP+2}, s{sW2+2}
        s_branch L_wsD
        L_wsB:
        v_lshrrev_b32 v{vT0}, 1, v{vLane}
        v_mul_u32_u24 v{vT0}, 3584, v{vT0}
        v_and_b32 v{vT1}, 1, v{vLane}
        v_lshl_add_u32 v{vWs}, v{vT1}, 4, v{vT0}
        s_mul_i32 s{sWb}, s{sW}, {128*3584}
        s_mul_i32 s{sC}, s{sJ}, 448
        s_add_u32 s{sWb}, s{sWb}, s{sC}
        s_lshl_b32 s{sC}, s{sIdx}, 5
        s_add_u32 s{sWb}, s{sWb}, s{sC}
        s_mov_b32 s{sWst}, {32*3584}
        L_wsD:
        """)
    rt_probe("setup")
    ts("setup")
    a(f"s_waitcnt vmcnt({4*cfg.nKb1 + nPFe})")
    ts("wq_landed")
    for t in range(cfg.nKb1, nKpA): k_page(t)

    def tr_base(dst, rowbytes, rowmul, sadd, const):
        sh = rowbytes.bit_length() - 1; rm = rowmul.bit_length() - 1
        a(f"""
        v_lshrrev_b32 v{vT1}, 2, v{vR16}
        v_lshl_add_u32 v{vT1}, v{vQd}, {rm}, v{vT1}
        v_lshlrev_b32 v{vT1}, {sh}, v{vT1}
        v_and_b32 v{vT2}, 3, v{vR16}
        v_lshl_add_u32 v{vT1}, v{vT2}, 3, v{vT1}
        v_add_u32 v{vT1}, s{sadd}, v{vT1}
        v_add_u32 v{dst}, {const}, v{vT1}
        """)

    def ln_stats(s1, s2, mean, rstd):
        a(f"""
        v_mul_f32 v{mean}, {f2u(1.0/512):#x}, v{s1}
        v_mul_f32 v{s2}, {f2u(1.0/512):#x}, v{s2}
        v_fma_f32 v{s2}, -v{mean}, v{mean}, v{s2}
        v_max_f32 v{s2}, 0, v{s2}
        v_add_f32 v{s2}, {f2u(1e-5):#x}, v{s2}
        v_rsq_f32 v{rstd}, v{s2}
        """)
    def sum4r(b):
        a(f"v_add_f32 v{b}, v{b}, v{b+1}\nv_add_f32 v{b+2}, v{b+2}, v{b+3}\nv_add_f32 v{b}, v{b}, v{b+2}")

    def stats_valu(z):
        L = [f"v_add_f32 v{z}, v{vAcc+8}, v{vAcc+9}", f"v_add_f32 v{vT3}, v{vAcc+10}, v{vAcc+11}", f"v_add_f32 v{z}, v{z}, v{vT3}",
             f"v_cndmask_b32 v{z}, 0, v{z}, s[{sMDIAG}:{sMDIAG+1}]"]
        for n in (8, 4, 2, 1):
            L.append(f"v_add_f32_dpp v{z}, v{z}, v{z} row_ror:{n} row_mask:0xf bank_mask:0xf")
        L += [f"v_add_f32 v{z+1}, v{vAcc+12}, v{vAcc+13}", f"v_add_f32 v{vT3}, v{vAcc+14}, v{vAcc+15}", f"v_add_f32 v{z+1}, v{z+1}, v{vT3}",
              f"v_cndmask_b32 v{z}, v{z+1}, v{z}, s[{sMN1}:{sMN1+1}]"]
        return L
    def stats_mf(X):
        return [mf(vAcc + 8, X + 4*u, X + 4*u, "0" if u == 0 else None) for u in range(4)] + \
               [mf(vAcc + 12, X + 4*u, vOnes, "0" if u == 0 else None) for u in range(4)]

    def q_core(X):
        M = stats_mf(X) + [mf(vAcc, X + 4*u, ar(aWq + 4*u, 4), "0" if u == 0 else None) for u in range(4)]
        interleave(M, stats_valu(vU), 8, 2)
        sum4(vU + 2, vAcc, vT3)
        a(f"""
        v_permlane16_swap_b32 v{vU+2}, v{vU}
        v_add_f32 v{vU}, v{vU}, v{vU+2}
        ds_write_b32 v{vaRedW}, v{vU} offset:{R_Q}
        s_waitcnt lgkmcnt(0)
        s_barrier
        """)
    def q_final(first):
        lab = a.label("qf")
        a(f"s_cmp_eq_u32 s{sW}, 0\ns_cbranch_scc0 {lab}")
        setexec(0xFFFFFFFF)
        a(f"""
        ds_read_b128 {vr(vU,4)}, v{vaFinW} offset:{R_Q}
        ds_read_b128 {vr(vU+4,4)}, v{vaFinQZ} offset:{R_Q}
        ds_read_b128 {vr(vU+8,4)}, v{vaFinQZ} offset:{R_Q+16}
        """)
        if first:
            a(f"ds_read_b128 {vr(vU+12,4)}, v{vaFinW} offset:{R_COL}")
        a("s_waitcnt lgkmcnt(0)")
        if first:
            sum4r(vU + 12); a(f"v_mov_b32 v{vCs}, v{vU+12}")
        sum4r(vU + 4); sum4r(vU + 8); sum4r(vU)
        ln_stats(vU + 4, vU + 8, vU + 5, vU + 6)
        a(f"""
        v_fma_f32 v{vU}, -v{vU+5}, v{vCs}, v{vU}
        v_mul_f32 v{vU}, v{vU}, v{vU+6}
        """)
        dpp("v_mov_b32", vU + 1, vU, None, "quad_perm:[1,0,3,2]")
        a(f"v_cvt_pk_bf16_f32 v{vU+2}, v{vU}, v{vU+1}")
        if first:
            a(f"""
            v_mov_b32 v{vQ1d}, v{vU+2}
            v_mov_b32 v{vQ1d+1}, s{sTX}
            s_lshl_b32 s{sB}, s{sJ}, 12
            s_lshl_b32 s{sC}, s{sM}, 7
            s_add_u32 s{sB}, s{sB}, s{sC}
            s_add_u32 s{sB}, s{sB}, {WS_Q1}
            v_lshlrev_b32 v{vT0}, 1, v{vaStH}
            v_add_u32 v{vQ1a}, s{sB}, v{vT0}
            """)
            setexec(0x55555555)
            a(f"buffer_store_dwordx2 {vr(vQ1d,2)}, v{vQ1a}, {sr(sWS,4)}, 0 offen" + (" sc1" if cfg.force_global else ""))
        else:
            a(f"v_min_u32 v{vU+2}, 0xfffffffe, v{vU+2}")
            setexec(0x55555555)
            store_local(f"buffer_store_dword v{vU+2}, v{vaStQ}, {sr(sWS,4)}, s{sQ2w} offen")
        setexec(FULL)
        a(f"{lab}:")

    def s_qk_max():
        for c in range(4):
            for t in range(4):
                mfma(vS + 4*t, ar(aK + 16*t + 4*c, 4), vQ + 4*c, "0" if c == 0 else None)
        for t in range(1, 4):
            for r in range(4):
                dpp("v_mov_b32", vS + r, vS + 4*t + r, None, f"row_shr:{4*t}", bm=f"0x{1<<t:x}")
        a(f"v_max3_f32 v{vU}, v{vS}, v{vS+1}, v{vS+2}\nv_max_f32 v{vU}, v{vU}, v{vS+3}")
        row_reduce("v_max_f32", vU, (8, 4))
        xquad_reduce("v_max_f32", vU, vT0)
        setexec(0xF)
        a(f"ds_write_b32 v{vaSmW}, v{vU}")
        setexec(FULL)
        a("s_waitcnt lgkmcnt(0)\ns_barrier")
    def s_exp_p():
        a(f"""
        ds_read_b128 {vr(vU+4,4)}, v{vaSm}
        s_mov_b32 s{sB}, {f2u(C_SCALE):#x}
        s_waitcnt lgkmcnt(0)
        v_max3_f32 v{vU}, v{vU+4}, v{vU+5}, v{vU+6}
        v_max_f32 v{vU}, v{vU}, v{vU+7}
        v_mul_f32 v{vMc}, s{sB}, v{vU}
        """)
        for i in range(4): a(f"v_fma_f32 v{vS+i}, v{vS+i}, s{sB}, -v{vMc}")
        for i in range(4): a(f"v_exp_f32 v{vS+i}, v{vS+i}")
        a(f"""
        v_cvt_pk_bf16_f32 v{vU+2}, v{vS}, v{vS+1}
        v_cvt_pk_bf16_f32 v{vU+3}, v{vS+2}, v{vS+3}
        ds_write_b64 v{vaPw}, {vr(vU+2,2)}
        v_add_f32 v{vU}, v{vS}, v{vS+1}
        v_add_f32 v{vU+1}, v{vS+2}, v{vS+3}
        v_add_f32 v{vU}, v{vU}, v{vU+1}
        """)
        row_reduce("v_add_f32", vU, (8, 4))
        xquad_reduce("v_add_f32", vU, vT0)
        setexec(0xF)
        a(f"ds_write_b32 v{vaSmW}, v{vU} offset:{L_LSUM-L_SMAX}")
        setexec(FULL)
        a("s_waitcnt lgkmcnt(0)\ns_barrier")
        for blk in range(8):
            a(f"ds_read_b128 {vr(vP+4*blk,4)}, v{vaPr} offset:{blk*256}")
    def s_stats_prep():
        lab = a.label("st")
        a(f"s_cmp_eq_u32 s{sW}, 3\ns_cbranch_scc0 {lab}")
        a(f"""
        ds_read_b128 {vr(vU+4,4)}, v{vaSm} offset:{L_LSUM-L_SMAX}
        s_add_u32 s{sB}, s{sT}, s{sL}
        s_add_u32 s{sB}, s{sB}, 1
        v_mov_b32 v{vMc+2}, s{sB}
        s_waitcnt lgkmcnt(0)
        """)
        sum4r(vU + 4)
        a(f"v_mov_b32 v{vMc+1}, v{vU+4}")
        a(f"{lab}:")
    def s_stats_store(wait):
        lab = a.label("ss")
        a(f"s_cmp_eq_u32 s{sW}, 3\ns_cbranch_scc0 {lab}")
        if wait is not None: a(f"s_waitcnt vmcnt({wait})")
        setexec(0xF)
        store_local(f"buffer_store_dwordx4 {vr(vMc,4)}, v{vaStS}, {sr(sWS,4)}, s{sOown} offen")
        setexec(FULL)
        a(f"{lab}:")
    accO = vAcc
    def v_tr(blk):
        t, p = blk >> 1, blk & 1
        for nt in range(2):
            a(f"ds_read_b64_tr_b16 {ar(aV+8*blk+4*nt,2)}, v{vVr+nt} offset:{(4*t+2*p)*4096}")
            a(f"ds_read_b64_tr_b16 {ar(aV+8*blk+4*nt+2,2)}, v{vVr+nt} offset:{(4*t+2*p+1)*4096}")
    def pv(blks, first):
        for blk in blks:
            for nt in range(2):
                mfma(accO + 4*nt, ar(aV + 8*blk + 4*nt, 4), vP + 4*blk, "0" if (first and blk == blks[0]) else None)
    def s_out():
        for i in range(4):
            a(f"v_cvt_pk_bf16_f32 v{vU+i}, v{accO+2*i}, v{accO+2*i+1}")
        for i in range(4):
            a(f"v_min_u32 v{vU+i}, 0xfffffffe, v{vU+i}")
        setexec(EM4)
        store_local(f"buffer_store_dwordx4 {vr(vU,4)}, v{vaStO}, {sr(sWS,4)}, s{sOown} offen")
        setexec(FULL)

    a(f"s_lshl_b32 s{sB}, s{sW}, 12")
    tr_base(vT0, 32, 8, sB, L_WQ)
    for u in range(4):
        a(f"ds_read_b64_tr_b16 {ar(aWq+4*u,2)}, v{vT0} offset:{u*1024}")
        a(f"ds_read_b64_tr_b16 {ar(aWq+4*u+2,2)}, v{vT0} offset:{u*1024+128}")
    a(f"""
    v_lshrrev_b32 v{vT0}, 3, v{vR16}
    v_lshlrev_b32 v{vT0}, 10, v{vT0}
    v_lshl_add_u32 v{vT0}, v{vQd}, 4, v{vT0}
    s_lshl_b32 s{sB}, s{sW}, 8
    v_add_u32 v{vT0}, s{sB}, v{vT0}
    s_barrier
    """)
    setexec(0x0101010101010101)
    for u in range(4):
        a(f"ds_read_b128 {vr(XA+4*u,4)}, v{vT0} offset:{L_X0+u*64}")
    setexec(FULL)
    a(f"""
    s_waitcnt lgkmcnt(0)
    s_add_u32 s{sT}, s{sT}, 0x9e3779b0
    s_and_b32 s{sT}, s{sT}, 0xfffffff0
    s_or_b32 s{sTX}, s{sT}, s{sXcc}
    """)
    for u in range(4): mfma(vS, vOnes, ar(aWq + 4*u, 4), "0" if u == 0 else None)
    a(f"ds_write_b32 v{vaRedW}, v{vS} offset:{R_COL}")
    q_core(XA)
    q_final(True)
    a("s_barrier")
    rt_probe("q1_pub")
    ts("q1_pub")

    def v_group(t):
        page_off(t, sD)
        a(f"s_lshl_b32 s{sC}, s{sW}, 12\ns_add_u32 s{sC}, s{sC}, {L_V + t*16384}\ns_mov_b32 m0, s{sC}\ns_nop 0")
        for ii in range(4):
            a(f"buffer_load_dwordx4 v{vVs+(ii&1)}, {sr(sVS,4)}, s{sD} offen offset:{ii*1024}{cfg.kv_pol} lds")
    def pace(): a(f"s_waitcnt vmcnt({cfg.pace})")
    def w_part(part, lo, hi):
        if not cfg.w_inter: return
        lab = a.label("wp")
        lim = 30
        if (part == 0 and "g" not in cfg.w_interB) or (part == 1 and "u" not in cfg.w_interB): lim = 16
        a(f"s_cmp_ge_u32 s{sM}, {lim}\ns_cbranch_scc1 {lab}")
        for u in range(lo, hi):
            if part == 0:
                a(f"s_mul_i32 s{sB}, s{sWst}, {u}\ns_add_u32 s{sB}, s{sB}, s{sWb}")
                a(f"s_lshl_b32 s{sC}, s{sW}, 12\ns_add_u32 s{sC}, s{sC}, {L_WQ + u*1024}")
            else:
                a(f"s_cmp_lt_u32 s{sM}, 16\ns_cselect_b32 s{sB}, {4+u}, {u}\ns_mul_i32 s{sB}, s{sB}, s{sWst}\ns_add_u32 s{sB}, s{sB}, s{sWb}")
                a(f"s_lshl_b32 s{sC}, s{sW}, 14\ns_add_u32 s{sC}, s{sC}, {L_K + u*1024}")
            a(f"s_mov_b32 m0, s{sC}\ns_nop 0")
            a(f"buffer_load_dwordx4 v{vWs}, {sr(sW2 if part == 0 else sUP,4)}, s{sB} offen{SLN} lds")
        a(f"{lab}:")
    for t in range(nKpA, 4):
        pace()
        if t == 3: w_part(0, 0, 4)
        k_page(t)
    a(f"""
    v_lshrrev_b32 v{vT0}, 2, v{vLane}
    v_lshlrev_b32 v{vT0}, 7, v{vT0}
    v_and_b32 v{vT1}, 3, v{vLane}
    v_lshl_add_u32 v{vKs}, v{vT1}, 4, v{vT0}        ; (vKs is free once K is issued)
    s_lshl_b32 s{sA}, s{sJ}, 12
    s_lshr_b32 s{sB}, s{sM}, 4
    s_lshl_b32 s{sB}, s{sB}, 6
    s_add_u32 s{sA}, s{sA}, s{sB}
    s_add_u32 s{sA}, s{sA}, {WS_Q1}
    v_and_b32 v{vT0}, 3, v{vR16}
    v_lshlrev_b32 v{vT0}, 9, v{vT0}
    v_lshrrev_b32 v{vT1}, 1, v{vQd}
    v_lshl_add_u32 v{vT0}, v{vT1}, 6, v{vT0}
    v_and_b32 v{vT1}, 1, v{vQd}
    v_lshl_add_u32 v{vKs+1}, v{vT1}, 5, v{vT0}
    v_lshlrev_b32 v{vKs+2}, 5, v{vLane}
    """)
    def q1_dma(img):
        a(f"""
        s_mov_b32 m0, {L_QG + img*2048}
        s_add_u32 s{sB}, s{sA}, 2048
        buffer_load_dwordx4 v{vKs}, {sr(sWS,4)}, s{sA} offen sc1 lds
        s_mov_b32 m0, {L_QG + img*2048 + 1024}
        s_nop 0
        buffer_load_dwordx4 v{vKs}, {sr(sWS,4)}, s{sB} offen sc1 lds
        """)
    def w0(fn):
        lab = a.label("w0")
        a(f"s_cmp_eq_u32 s{sW}, 0\ns_cbranch_scc0 {lab}")
        fn()
        a(f"{lab}:")
    def q1_dup():
        setexec(0x55555555)
        a(f"buffer_store_dwordx2 {vr(vQ1d,2)}, v{vQ1a}, {sr(sWS,4)}, 0 offen sc1")
        setexec(FULL)
    g.q1_dup = lambda: w0(q1_dup)
    pace()
    if cfg.pf_stream and cfg.pf_pos == 0: emit_wpf(sKS2, sWQ, True)
    v_group(0)
    a("s_waitcnt vmcnt(4)")
    for t in range(4):
        for c in range(4):
            a(f"ds_read_b128 {ar(aK+16*t+4*c,4)}, v{vKr+c} offset:{t*4096}")
    ts("k_landed")
    w0(lambda: q1_dma(0))
    if cfg.pf_stream and cfg.pf_pos == 1: emit_wpf(sKS, sWQ, True)
    v_group(1)
    a("s_waitcnt vmcnt(4)")
    ts("v0_landed")
    if cfg.pf_stream and cfg.pf_pos == 2: emit_wpf(sKS, sWQ, True)
    if cfg.w_inter:
        a("s_waitcnt lgkmcnt(0)")
        w_part(1, 0, 2)
    def warm_stats0():
        if cfg.warm:
            lab = a.label("ws")
            a(f"s_cmp_lt_u32 s{sM}, 16\ns_cbranch_scc0 {lab}")
            a(f"buffer_load_dword v{vJ}, v{vaS0}, {sr(sWS,4)}, s{sOcons} offen sc1")
            a(f"buffer_load_dword v{vJ}, v{vaS1}, {sr(sWS,4)}, s{sOcons} offen sc1")
            a(f"{lab}:")
    if cfg.v3_early: warm_stats0()
    v_group(2)
    if cfg.v3_early:
        assert not cfg.w_inter
        v_group(3)
    def _o0():
        lab = a.label("c0")
        a(f"""
        s_cmp_eq_u32 s{sW}, 3
        s_cbranch_scc0 {lab}
        v_mov_b32 v{vU+8}, -1
        v_mov_b32 v{vU+9}, -1
        v_mov_b32 v{vU+10}, -1
        v_mov_b32 v{vU+11}, -1
        """)
        store_local(f"buffer_store_dwordx4 {vr(vU+8,4)}, v{vaClrO}, {sr(sWS,4)}, s{sOown} offen")
        a(f"{lab}:")
    g.o0_clear_hook = _o0
    vG = vA
    def q1_tags(img):
        a(f"""
        ds_read_b128 {vr(vG,4)}, v{vKs+2} offset:{L_QG + img*2048}
        ds_read_b128 {vr(vG+4,4)}, v{vKs+2} offset:{L_QG + img*2048 + 16}
        s_waitcnt lgkmcnt(0)
        v_xor_b32 v{vT1}, s{sTX}, v{vG+1}
        v_xor_b32 v{vT2}, s{sTX}, v{vG+3}
        v_xor_b32 v{vT3}, s{sTX}, v{vG+5}
        v_xor_b32 v{vT0}, s{sTX}, v{vG+7}
        v_or3_b32 v{vT1}, v{vT1}, v{vT2}, v{vT3}
        v_or_b32 v{vT1}, v{vT1}, v{vT0}
        v_cmp_lt_u32 vcc, 15, v{vT1}
        """)
    a("s_barrier")
    q1_tags(0)
    a(f"s_mov_b32 s{sC}, {L_QG}\ns_cbranch_vccz L_q1ok")
    cnt("g0fail")
    w0(lambda: (q1_dma(1), a("s_waitcnt vmcnt(0)")))
    a("s_barrier")
    q1_tags(1)
    a(f"s_mov_b32 s{sC}, {L_QG + 2048}\ns_cbranch_vccz L_q1ok")
    a("L_q1retry:")
    cnt("g1fail")
    a(f"s_sub_u32 s{sBud}, s{sBud}, 1\ns_cbranch_scc1 L_abort\ns_barrier")
    w0(lambda: (q1_dup(), q1_dma(0), a("s_waitcnt vmcnt(0)")))
    a("s_barrier")
    q1_tags(0)
    a(f"s_mov_b32 s{sC}, {L_QG}\ns_cbranch_vccnz L_q1retry")
    a("L_q1ok:")
    a(f"""
    v_cmp_ne_u32 vcc, 0, v{vT1}
    v_add_u32 v{vT0}, s{sC}, v{vKs+1}
    s_cmp_eq_u64 vcc, 0
    s_cselect_b32 s{sLocal}, 1, 0
    """)
    if cfg.v3_early: g.o0_clear_hook()
    setexec(EM4)
    for c in range(4):
        a(f"ds_read2_b32 {vr(vQ+4*c,2)}, v{vT0} offset0:{c*32} offset1:{c*32+2}")
        a(f"ds_read2_b32 {vr(vQ+4*c+2,2)}, v{vT0} offset0:{c*32+4} offset1:{c*32+6}")
    setexec(FULL)
    lab = a.label("nl")
    a(f"s_cmp_eq_u32 s{sLocal}, 0\ns_cbranch_scc0 {lab}")
    g.q1_dup()
    a(f"{lab}:")
    a("s_waitcnt lgkmcnt(0)")
    rt_probe("q1_got")
    ts("q1_got")
    s_qk_max()
    ts("s1_max")
    def o0_clear():
        lab = a.label("c0")
        a(f"""
        s_cmp_eq_u32 s{sW}, 3
        s_cbranch_scc0 {lab}
        v_mov_b32 v{vU+8}, -1
        v_mov_b32 v{vU+9}, -1
        v_mov_b32 v{vU+10}, -1
        v_mov_b32 v{vU+11}, -1
        """)
        store_local(f"buffer_store_dwordx4 {vr(vU+8,4)}, v{vaClrO}, {sr(sWS,4)}, s{sOown} offen")
        a(f"{lab}:")
    if not cfg.v3_early:
        a("s_waitcnt vmcnt(4)")
        o0_clear()
        warm_stats0()
        w_part(1, 2, 4)
        v_group(3)
    else:
        a("s_waitcnt vmcnt(8)")
    nPF = emit_wpf(sKS, sWQ, True) if (cfg.pf_stream and not cfg.pf_early and cfg.pf_pos is None) else 0

    def s1_tail(nW=0, maybe_none=False):
        def wait_v(base):
            if nW and maybe_none:
                l1 = a.label("wv"); l2 = a.label("wv")
                a(f"s_cmp_ge_u32 s{sIdx}, 14\ns_cbranch_scc1 {l1}\ns_waitcnt vmcnt({base + nW})\ns_branch {l2}\n{l1}:\ns_waitcnt vmcnt({base})\n{l2}:")
            else:
                a(f"s_waitcnt vmcnt({base + nW})")
        s_exp_p()
        s_stats_prep()
        blks = [0, 1, 2, 3]
        for blk in blks: v_tr(blk)
        a("s_waitcnt lgkmcnt(0)")
        pv(blks, True)
        for t in (2, 3):
            if t == 3 and cfg.v3_early:
                l3 = a.label("v3"); l4 = a.label("v4")
                a(f"s_cmp_eq_u32 s{sW}, 3\ns_cbranch_scc1 {l3}\ns_waitcnt vmcnt({nW})\ns_branch {l4}\n{l3}:\ns_waitcnt vmcnt({nW + 1})\n{l4}:")
            else:
                wait_v(4*(3-t))
            a("s_barrier")
            if t == 3: ts("v_landed")
            blks = [2*t, 2*t + 1]
            for blk in blks: v_tr(blk)
            a("s_waitcnt lgkmcnt(0)")
            pv(blks, False)
        s_out()
        s_stats_store(1 if cfg.v3_early else None)
        lab = a.label("c1")
        a(f"""
        s_cmp_eq_u32 s{sW}, 0
        s_cbranch_scc0 {lab}
        v_mov_b32 v{vU+8}, -1
        v_mov_b32 v{vU+9}, -1
        v_mov_b32 v{vU+10}, -1
        v_mov_b32 v{vU+11}, -1
        s_add_u32 s{sB}, s{sOown}, {O_L}
        """)
        store_local(f"buffer_store_dwordx4 {vr(vU+8,4)}, v{vaClrO}, {sr(sWS,4)}, s{sB} offen")
        q1_dup()
        a(f"{lab}:")
        rt_probe("s1_pub")
        ts("s1_pub")

    def x_poll(sbase, dst, sleep):
        l = a.label("xp"); ok = a.label("xok")
        if cfg.sleep_x0: a(f"s_sleep {cfg.sleep_x0}")
        a(f"s_mov_b32 m0, s{sXI}")
        a(f"{l}:")
        cnt("n_x")
        for u in range(4):
            a(f"buffer_load_dwordx4 v{vaXg}, {sr(sWS,4)}, s{sbase} offen offset:{u*1024} sc1 lds")
        for u in range(4):
            a(f"s_waitcnt vmcnt({3-u})")
            a(f"ds_read_b128 {vr(dst+4*u,4)}, v{vaXr} offset:{u*1024}")
        a(f"s_waitcnt lgkmcnt(3)\nv_max3_u32 v{vT0}, v{dst}, v{dst+1}, v{dst+2}")
        a(f"s_waitcnt lgkmcnt(2)\nv_max3_u32 v{vT0}, v{vT0}, v{dst+3}, v{dst+4}\nv_max3_u32 v{vT0}, v{vT0}, v{dst+5}, v{dst+6}")
        a(f"s_waitcnt lgkmcnt(1)\nv_max3_u32 v{vT0}, v{vT0}, v{dst+7}, v{dst+8}\nv_max3_u32 v{vT0}, v{vT0}, v{dst+9}, v{dst+10}")
        a(f"s_waitcnt lgkmcnt(0)\nv_max3_u32 v{vT0}, v{vT0}, v{dst+11}, v{dst+12}\nv_max3_u32 v{vT0}, v{vT0}, v{dst+13}, v{dst+14}\nv_max_u32 v{vT0}, v{vT0}, v{dst+15}")
        a(f"v_cmp_eq_u32 vcc, -1, v{vT0}\ns_cbranch_vccz {ok}")
        spin_fail(l, sleep)
        a(f"{ok}:")

    def warm_q2():
        if not cfg.warm: return
        a(f"s_lshl_b32 s{sB}, s{sJ}, 11\ns_add_u32 s{sB}, s{sB}, {WS_Q2}\nv_lshlrev_b32 v{vT0}, 7, v{vLane}")
        setexec(0xFFFF)
        a(f"buffer_load_dword v{vJ}, v{vT0}, {sr(sWS,4)}, s{sB} offen sc1")
        setexec(FULL)
    def warm_o(dl, data=True):
        if not cfg.warm: return
        a(f"s_add_u32 s{sB}, s{sOcons}, {dl*O_L}")
        if data:
            a(f"""
            v_and_b32 v{vT0}, 31, v{vLane}
            v_lshlrev_b32 v{vT0}, 7, v{vT0}
            v_lshrrev_b32 v{vT1}, 5, v{vLane}
            v_lshl_add_u32 v{vT0}, v{vT1}, 14, v{vT0}
            buffer_load_dword v{vJ}, v{vT0}, {sr(sWS,4)}, s{sB} offen sc1
            """)
        a(f"buffer_load_dword v{vJ}, v{vaS0}, {sr(sWS,4)}, s{sB} offen sc1")
        a(f"buffer_load_dword v{vJ}, v{vaS1}, {sr(sWS,4)}, s{sB} offen sc1")

    def tag_check_all():
        l = a.label("tc"); ok = a.label("tcok")
        a(f"""
        s_lshl_b32 s{sB}, s{sW}, 13
        s_add_u32 s{sB}, s{sB}, {WS_Q1+4}
        v_lshlrev_b32 v{vT0}, 7, v{vLane}
        {l}:
        buffer_load_dword v{vT1}, v{vT0}, {sr(sWS,4)}, s{sB} offen sc1
        s_waitcnt vmcnt(0)
        v_xor_b32 v{vT1}, s{sT}, v{vT1}
        v_cmp_lt_u32 vcc, 15, v{vT1}
        s_cbranch_vccz {ok}
        """)
        spin_fail(l, 2)
        a(f"{ok}:")

    def line_final(red):
        if cfg.doorbell and cfg.db_early:
            a(f"v_mov_b32 v{vT0}, 0\nv_mov_b32 v{vT1}, s{sDBtag}\ns_mov_b64 exec, 1")
            store_local(f"buffer_store_dword v{vT1}, v{vT0}, {sr(sWS,4)}, s{sDBw} offen")
            a("s_mov_b64 exec, -1")
        a(f"""
        ds_read_b128 {vr(vU,4)}, v{vaFinO} offset:{red}
        v_mov_b32 v{vT0}, 0
        v_mov_b32 v{vT1}, s{sDBtag}
        s_waitcnt lgkmcnt(0)
        v_add_f32 v{vU}, v{vU}, v{vU+1}
        v_add_f32 v{vU+2}, v{vU+2}, v{vU+3}
        v_add_f32 v{vU}, v{vU}, v{vResF}
        v_add_f32 v{vResF}, v{vU}, v{vU+2}
        """)
        dpp("v_mov_b32", vU + 1, vResF, None, "quad_perm:[1,0,3,2]")
        a(f"v_cvt_pk_bf16_f32 v{vU}, v{vResF}, v{vU+1}\nv_min_u32 v{vU}, 0xfffffffe, v{vU}")
        if cfg.doorbell and not cfg.db_early:
            a("s_mov_b64 exec, 1")
            store_local(f"buffer_store_dword v{vT1}, v{vT0}, {sr(sWS,4)}, s{sDBw} offen")
        a(f"s_xor_b32 s{sB}, s{sXw}, 0x2000\ns_add_u32 s{sB}, s{sB}, 16384")
        setexec(EMEV)
        a(f"buffer_store_dword v{vU}, v{vaStX}, {sr(sWS,4)}, s{sXw} offen sc1")
        a(f"buffer_store_dword v{vU}, v{vaStX}, {sr(sWS,4)}, s{sB} offen sc1")
        setexec(FULL)
    def advance_hop():
        a(f"s_add_u32 s{sXw}, s{sXw}, {X_HOP}\ns_add_u32 s{sDBw}, s{sDBw}, 1024\ns_add_u32 s{sDBtag}, s{sDBtag}, 1")

    def db_setup(hop_w, hop_r):
        a(f"""
        s_lshl_b32 s{sDBr}, s{sJ}, 7
        s_add_u32 s{sDBr}, s{sDBr}, {WS_DB}
        s_lshl_b32 s{sDBw}, s{sIdx}, 2
        s_add_u32 s{sDBw}, s{sDBw}, s{sDBr}
        s_add_u32 s{sDBw}, s{sDBw}, {hop_w*1024}
        s_add_u32 s{sDBtag}, s{sT}, {8+hop_w}
        """)
    def db_wait(hop_off_s, tag_add_s=None, const_hop=None):
        if not cfg.doorbell: return
        l = a.label("db"); ok = a.label("dbok")
        if const_hop is not None:
            a(f"s_add_u32 s{sA}, s{sDBr}, {const_hop*1024}\ns_add_u32 s{sC}, s{sT}, {8+const_hop}")
        else:
            a(f"s_lshl_b32 s{sA}, s{sL}, 11\ns_add_u32 s{sA}, s{sA}, s{sDBr}\ns_add_u32 s{sA}, s{sA}, {hop_off_s*1024}")
            a(f"s_lshl_b32 s{sC}, s{sL}, 1\ns_add_u32 s{sC}, s{sC}, s{sT}\ns_add_u32 s{sC}, s{sC}, {8+hop_off_s}")
        a(f"v_lshlrev_b32 v{vT0}, 2, v{vLane}")
        setexec(0xFFFF)
        if cfg.db_pipe:
            a(f"""
            buffer_load_dword v{vT1}, v{vT0}, {sr(sWS,4)}, s{sA} offen sc1
            s_nop 15
            s_nop 11
            buffer_load_dword v{vT2}, v{vT0}, {sr(sWS,4)}, s{sA} offen sc1
            {l}:
            s_waitcnt vmcnt(1)
            v_cmp_ne_u32 vcc, s{sC}, v{vT1}
            s_cbranch_vccz {ok}
            buffer_load_dword v{vT1}, v{vT0}, {sr(sWS,4)}, s{sA} offen sc1
            s_waitcnt vmcnt(1)
            v_cmp_ne_u32 vcc, s{sC}, v{vT2}
            s_cbranch_vccz {ok}
            buffer_load_dword v{vT2}, v{vT0}, {sr(sWS,4)}, s{sA} offen sc1
            """)
        else:
            a(f"""
            {l}:
            buffer_load_dword v{vT1}, v{vT0}, {sr(sWS,4)}, s{sA} offen sc1
            s_waitcnt vmcnt(0)
            v_cmp_ne_u32 vcc, s{sC}, v{vT1}
            s_cbranch_vccz {ok}
            """)
        spin_fail(l)
        a(f"{ok}:")
        setexec(FULL)

    def o_stats_poll():
        l = a.label("os"); ok = a.label("osok")
        a(f"s_add_u32 s{sA}, s{sT}, s{sL}\ns_add_u32 s{sA}, s{sA}, 1")
        a(f"{l}:")
        cnt("n_ostat")
        a(f"buffer_load_dwordx3 {vr(vSt,3)}, v{vaS0}, {sr(sWS,4)}, s{sOcons} offen sc1")
        a(f"buffer_load_dwordx3 {vr(vSt+4,3)}, v{vaS1}, {sr(sWS,4)}, s{sOcons} offen sc1")
        a("s_waitcnt vmcnt(0)")
        a(f"""
        v_xor_b32 v{vT0}, s{sA}, v{vSt+2}
        v_xor_b32 v{vT1}, s{sA}, v{vSt+6}
        v_or_b32 v{vT0}, v{vT0}, v{vT1}
        v_cmp_ne_u32 vcc, 0, v{vT0}
        s_cbranch_vccz {ok}
        """)
        spin_fail(l, cfg.sleep_o)
        a(f"{ok}:")
        ts_dyn("o_st0", "o_st1")

    def o_phase():
        OA = vA
        o_stats_poll()
        l2 = a.label("op"); ok2 = a.label("ook")
        a(f"L_heavy:\n{l2}:")
        cnt("n_oheavy")
        for b in range(2):
            for c in range(4):
                a(f"buffer_load_dwordx4 {vr(OA+16*b+4*c,4)}, v{vaO0+b}, {sr(sWS,4)}, s{sOcons} offen offset:{c*1024} sc1")
        for b in range(2):
            a(f"v_mov_b32 v{vU+b}, v{vSt+4*b}")
        for n in (8, 4, 2, 1):
            for b in range(2): dpp("v_max_f32", vU + b, vU + b, vU + b, f"row_ror:{n}")
        for b in range(2): a(f"v_sub_f32 v{vU+b}, v{vSt+4*b}, v{vU+b}")
        for b in range(2): a(f"v_exp_f32 v{vU+b}, v{vU+b}")
        for b in range(2): a(f"v_mul_f32 v{vU+2+b}, v{vU+b}, v{vSt+4*b+1}")
        for n in (8, 4, 2, 1):
            for b in range(2): dpp("v_add_f32", vU + 2 + b, vU + 2 + b, vU + 2 + b, f"row_ror:{n}")
        for b in range(2): a(f"v_rcp_f32 v{vU+2+b}, v{vU+2+b}")
        for b in range(2): a(f"v_mul_f32 v{vW+b}, v{vU+b}, v{vU+2+b}")
        a(f"v_mov_b32 v{vT0}, 0")
        if cfg.diag and cfg.ts_only and "o_w0" in cfg.ts_only:
            ts_dyn("o_w0", "o_w1")
            a("s_waitcnt vmcnt(7)")
            ts_dyn("o_f0", "o_f1")
        for i in range(8):
            b, c = i >> 2, i & 3
            r = OA + 16*b + 4*c
            a(f"s_waitcnt vmcnt({7-i})")
            for nt in range(2):
                mfma(vAcc + 8*b + 4*nt, r, ar(aW2 + 8*c + 4*nt, 4), "0" if c == 0 else None)
            a(f"v_max3_u32 v{vT0}, v{vT0}, v{r}, v{r+1}\nv_max3_u32 v{vT0}, v{vT0}, v{r+2}, v{r+3}")
        a(f"v_cmp_eq_u32 vcc, -1, v{vT0}\ns_cbranch_vccz {ok2}")
        spin_fail(l2)
        a(f"{ok2}:")
        ts_dyn("o_got0", "o_got1")
        for b in range(2):
            for nt in range(2):
                t = vU + 2*b + nt; acc = vAcc + 8*b + 4*nt
                dpp("v_mul_f32", t, vW + b, acc, "row_newbcast:0")
                for r in range(1, 4):
                    dpp("v_fmac_f32", t, vW + b, acc + r, f"row_newbcast:{r}")
        a(f"""
        v_permlane32_swap_b32 v{vU}, v{vU+1}
        v_permlane32_swap_b32 v{vU+2}, v{vU+3}
        v_add_f32 v{vU}, v{vU}, v{vU+1}
        v_add_f32 v{vU+2}, v{vU+2}, v{vU+3}
        v_permlane16_swap_b32 v{vU}, v{vU+2}
        v_add_f32 v{vU}, v{vU}, v{vU+2}
        ds_write_b32 v{vaRedW}, v{vU} offset:{R_O}
        s_waitcnt lgkmcnt(0)
        s_barrier
        """)
        lab = a.label("of")
        a(f"s_cmp_eq_u32 s{sW}, 0\ns_cbranch_scc0 {lab}")
        line_final(R_O)
        a(f"{lab}:")
        advance_hop()
        ts_dyn("o_pub0", "o_pub1")

    def g_phase():
        X = vA
        if cfg.db_g: db_wait(0)
        if cfg.diag and cfg.ts_only and "g_db0" in cfg.ts_only: ts_dyn("g_db0", "g_db1")
        x_poll(sXr, X, cfg.sleep_x)
        ts_dyn("g_got0", "g_got1")
        M = stats_mf(X)
        for u in range(4):
            M.append(mf(vAcc, X + 4*u, ar(aW2 + 8*u, 4), "0" if u == 0 else None))
            M.append(mf(vAcc + 4, X + 4*u, ar(aW2 + 8*u + 4, 4), "0" if u == 0 else None))
        V = stats_valu(vU) + [f"v_mov_b32 v{vU+1}, v{vU}", f"v_permlane16_swap_b32 v{vU}, v{vU+1}", f"v_add_f32 v{vU}, v{vU}, v{vU+1}"]
        interleave(M, V, 8, 2)
        setexec("s[%d:%d]" % (sM2, sM2 + 1))
        a(f"ds_write_b32 v{vaRedZ}, v{vU} offset:{R_GZ}")
        setexec(FULL)
        sum4(vU + 2, vAcc, vT3)
        sum4(vU + 3, vAcc + 4, vT3)
        a(f"""
        v_permlane16_swap_b32 v{vU+2}, v{vU+3}
        v_add_f32 v{vU+2}, v{vU+2}, v{vU+3}
        ds_write_b32 v{vaRedW}, v{vU+2} offset:{R_G}
        s_waitcnt lgkmcnt(0)
        s_barrier
        """)
        lab = a.label("gf")
        a(f"s_cmp_eq_u32 s{sW}, 0\ns_cbranch_scc0 {lab}")
        setexec(0xFFFFFFFF)
        a(f"""
        ds_read_b128 {vr(vU+8,4)}, v{vaFinZ} offset:{R_GZ}
        ds_read_b128 {vr(vU+12,4)}, v{vaFinZ} offset:{R_GZ+16}
        ds_read_b128 {vr(vU,4)}, v{vaFinW} offset:{R_G}
        ds_read_b128 {vr(vU+4,4)}, v{vaFinW} offset:{R_G+256}
        s_lshl_b32 s{sB}, s{sIdx}, 6
        s_add_u32 s{sB}, s{sB}, s{sHb}
        s_waitcnt lgkmcnt(2)
        """)
        sum4r(vU + 8); sum4r(vU + 12)
        ln_stats(vU + 8, vU + 12, vU + 9, vU + 10)
        a("s_waitcnt lgkmcnt(0)")
        sum4r(vU); sum4r(vU + 4)
        a(f"""
        v_fma_f32 v{vU}, -v{vU+9}, v{vCg}, v{vU}
        v_fma_f32 v{vU+4}, -v{vU+9}, v{vCu}, v{vU+4}
        v_mul_f32 v{vU+1}, {f2u(-1.4426950408889634):#x}, v{vU+10}
        v_mul_f32 v{vU}, v{vU}, v{vU+1}
        v_exp_f32 v{vU}, v{vU}
        v_mul_f32 v{vU+4}, v{vU+4}, v{vU+10}
        v_add_f32 v{vU}, 1.0, v{vU}
        v_rcp_f32 v{vU}, v{vU}
        s_nop 0
        v_mul_f32 v{vU}, v{vU}, v{vU+4}
        """)
        dpp("v_mov_b32", vU + 1, vU, None, "quad_perm:[1,0,3,2]")
        a(f"v_cvt_pk_bf16_f32 v{vU}, v{vU}, v{vU+1}\nv_min_u32 v{vU}, 0xfffffffe, v{vU}")
        setexec(0x55555555)
        store_local(f"buffer_store_dword v{vU}, v{vaStH}, {sr(sWS,4)}, s{sB} offen")
        setexec(FULL)
        a(f"{lab}:")
        ts_dyn("g_pub0", "g_pub1")

    def d_phase():
        lab0 = a.label("dr0"); l2 = a.label("dr"); ok2 = a.label("drok")
        l = a.label("dp"); ok = a.label("dok"); one = a.label("done"); l3 = a.label("dp1");
        a(f"s_cmp_eq_u32 s{sW}, 3\ns_cbranch_scc1 {l3}")
        setexec(EM2)
        a(f"{l}:")
        a(f"buffer_load_dwordx4 {vr(vHop,4)}, v{vaH}, {sr(sWS,4)}, s{sHb} offen sc1")
        a(f"buffer_load_dwordx4 {vr(vHop+4,4)}, v{vaH}, {sr(sWS,4)}, s{sHb} offen offset:512 sc1")
        a("s_waitcnt vmcnt(0)")
        sent_check([vHop+i for i in range(8)], vT1, ok)
        spin_fail(l)
        a(f"{l3}:")
        setexec(EM2)
        a(f"{l3}b:")
        a(f"buffer_load_dwordx4 {vr(vHop,4)}, v{vaH}, {sr(sWS,4)}, s{sHb} offen sc1")
        a("s_waitcnt vmcnt(0)")
        sent_check([vHop+i for i in range(4)], vT1, ok)
        spin_fail(f"{l3}b")
        a(f"{ok}:")
        setexec(FULL)
        for nt in range(2):
            mfma(vAcc + 4*nt, vHop, ar(aWd + 4*nt, 4), "0")
        for nt in range(2):
            mfma(vAcc + 4*nt, vHop + 4, ar(aWd + 8 + 4*nt, 4))
        a(f"""
        v_permlane16_swap_b32 v{vAcc}, v{vAcc+1}
        v_permlane16_swap_b32 v{vAcc+4}, v{vAcc+5}
        v_permlane32_swap_b32 v{vAcc}, v{vAcc+4}
        ds_write_b32 v{vaRedW}, v{vAcc} offset:{R_D}
        s_waitcnt lgkmcnt(0)
        s_barrier
        """)
        lab = a.label("df")
        a(f"s_cmp_eq_u32 s{sW}, 0\ns_cbranch_scc0 {lab}")
        line_final(R_D)
        a(f"{lab}:")
        advance_hop()
        ts_dyn("d_pub0", "d_pub1")

    a(f"s_cmp_lt_u32 s{sM}, 16\ns_cbranch_scc0 L_roleB")
    def down_slices():
        a(f"""
        v_lshrrev_b32 v{vT0}, 2, v{vLane}
        v_lshlrev_b32 v{vT0}, 10, v{vT0}
        v_and_b32 v{vT1}, 3, v{vLane}
        v_lshl_add_u32 v{vT0}, v{vT1}, 4, v{vT0}
        s_mul_i32 s{sB}, s{sJ}, {224*1024}
        s_lshl_b32 s{sC}, s{sIdx}, 6
        s_add_u32 s{sB}, s{sB}, s{sC}
        s_lshl_b32 s{sC}, s{sW}, 15
        s_add_u32 s{sB}, s{sB}, s{sC}
        s_lshl_b32 s{sC}, s{sW}, 14
        s_add_u32 s{sC}, s{sC}, {L_K + W_DN}
        s_mov_b32 m0, s{sC}
        s_add_u32 s{sD}, s{sB}, 16384
        buffer_load_dwordx4 v{vT0}, {sr(sDN,4)}, s{sB} offen{SLN} lds
        s_add_u32 s{sC}, s{sC}, 1024
        s_mov_b32 m0, s{sC}
        s_nop 0
        buffer_load_dwordx4 v{vT0}, {sr(sDN,4)}, s{sD} offen{SLN} lds
        s_cmp_eq_u32 s{sW}, 3
        s_cbranch_scc1 L_nod2
        s_add_u32 s{sB}, s{sB}, {4*32768}
        s_add_u32 s{sC}, s{sC}, 1024
        s_mov_b32 m0, s{sC}
        s_add_u32 s{sD}, s{sB}, 16384
        buffer_load_dwordx4 v{vT0}, {sr(sDN,4)}, s{sB} offen{SLN} lds
        s_add_u32 s{sC}, s{sC}, 1024
        s_mov_b32 m0, s{sC}
        s_nop 0
        buffer_load_dwordx4 v{vT0}, {sr(sDN,4)}, s{sD} offen{SLN} lds
        L_nod2:
        """)
    def down_operands():
        a(f"s_lshl_b32 s{sB}, s{sW}, 14")
        tr_base(vT0, 64, 8, sB, L_K + W_DN)
        for nt in range(2):
            a(f"ds_read_b64_tr_b16 {ar(aWd+4*nt,2)}, v{vT0} offset:{nt*32}")
            a(f"ds_read_b64_tr_b16 {ar(aWd+4*nt+2,2)}, v{vT0} offset:{nt*32+256}")
        a(f"s_cmp_eq_u32 s{sW}, 3\ns_cbranch_scc1 L_dn3")
        for nt in range(2):
            a(f"ds_read_b64_tr_b16 {ar(aWd+8+4*nt,2)}, v{vT0} offset:{2048+nt*32}")
            a(f"ds_read_b64_tr_b16 {ar(aWd+8+4*nt+2,2)}, v{vT0} offset:{2048+nt*32+256}")
        a("s_branch L_dn4\nL_dn3:")
        for i in range(8): a(f"v_accvgpr_write_b32 a{aWd+8+i}, 0")
        a("L_dn4:")
    g.role = "A"; ts_split = g.ts
    def wo_slices():
        if cfg.line_pf and "o" in cfg.pf_which:
            a(f"""
            v_lshlrev_b32 v{vT0}, 7, v{vLane}
            s_lshl_b32 s{sB}, s{sJ}, 19
            s_lshl_b32 s{sC}, s{sIdx}, 15
            s_add_u32 s{sB}, s{sB}, s{sC}
            s_lshl_b32 s{sC}, s{sW}, 13
            s_add_u32 s{sB}, s{sB}, s{sC}
            buffer_load_dword v{vJ}, v{vT0}, {sr(sW2,4)}, s{sB} offen{cfg.pf_pol_o}
            """)
        a(f"""
        v_lshrrev_b32 v{vT0}, 2, v{vLane}
        v_lshlrev_b32 v{vT0}, 10, v{vT0}
        v_and_b32 v{vT1}, 3, v{vLane}
        v_lshl_add_u32 v{vT0}, v{vT1}, 4, v{vT0}
        s_lshl_b32 s{sB}, s{sJ}, 19
        s_lshl_b32 s{sC}, s{sW}, 17
        s_add_u32 s{sB}, s{sB}, s{sC}
        s_lshl_b32 s{sC}, s{sIdx}, 6
        s_add_u32 s{sB}, s{sB}, s{sC}
        s_lshl_b32 s{sC}, s{sW}, 14
        s_add_u32 s{sC}, s{sC}, {L_K}
        """)
        for u in range(8):
            a(f"""
            s_mov_b32 m0, s{sC}
            s_add_u32 s{sC}, s{sC}, 1024
            buffer_load_dwordx4 v{vT0}, {sr(sW2,4)}, s{sB} offen{SLN} lds
            s_add_u32 s{sB}, s{sB}, {16*1024}
            """)
    if cfg.w_inter:
        s1_tail(nPF)
        db_setup(0, 1)
        a(f"s_mov_b32 s{sXr}, {WS_X}")
    elif cfg.wsA:
        wo_slices()
        s1_tail(8 + nPF)
        db_setup(0, 1)
    else:
        s1_tail(nPF)
        db_setup(0, 1)
        wo_slices()
    a(f"v_mov_b32 v{vRes}, 0")
    lab = a.label("r0")
    a(f"""
    s_cmp_eq_u32 s{sJ}, 0
    s_cbranch_scc0 {lab}
    v_and_b32 v{vT0}, 1, v{vQd}
    v_lshlrev_b32 v{vT0}, 10, v{vT0}
    v_lshrrev_b32 v{vT1}, 1, v{vQd}
    v_lshl_add_u32 v{vT0}, v{vT1}, 5, v{vT0}
    v_lshl_add_u32 v{vT0}, v{vR16}, 1, v{vT0}
    s_lshl_b32 s{sB}, s{sIdx}, 6
    buffer_load_ushort v{vRes}, v{vT0}, {sr(sX0,4)}, s{sB} offen
    {lab}:
    """)
    nspec = 0
    if cfg.o_spec:
        a(f"buffer_load_dwordx3 {vr(vSt,3)}, v{vaS0}, {sr(sWS,4)}, s{sOcons} offen sc1")
        a(f"buffer_load_dwordx3 {vr(vSt+4,3)}, v{vaS1}, {sr(sWS,4)}, s{sOcons} offen sc1")
        nspec = 2
    if cfg.w_inter:
        a(f"s_waitcnt vmcnt({nspec})")
        for half, (sh, base) in enumerate(((12, L_WQ), (14, L_K))):
            a(f"s_lshl_b32 s{sB}, s{sW}, {sh}")
            tr_base(vT0, 64, 4, sB, base)
            for c2 in range(2):
                c = 2*half + c2
                for nt in range(2):
                    a(f"ds_read_b64_tr_b16 {ar(aW2+8*c+4*nt,2)}, v{vT0} offset:{c2*2048+nt*32}")
                    a(f"ds_read_b64_tr_b16 {ar(aW2+8*c+4*nt+2,2)}, v{vT0} offset:{c2*2048+nt*32+1024}")
    else:
        a(f"s_lshl_b32 s{sB}, s{sW}, 14")
        tr_base(vT0, 64, 4, sB, L_K)
        a(f"s_waitcnt vmcnt({nspec})")
        for c in range(4):
            for nt in range(2):
                a(f"ds_read_b64_tr_b16 {ar(aW2+8*c+4*nt,2)}, v{vT0} offset:{c*2048+nt*32}")
                a(f"ds_read_b64_tr_b16 {ar(aW2+8*c+4*nt+2,2)}, v{vT0} offset:{c*2048+nt*32+1024}")
    a(f"v_lshlrev_b32 v{vResF}, 16, v{vRes}")
    a("s_waitcnt lgkmcnt(0)")
    ts("wo_ready")
    if cfg.o_spec:
        a(f"""
        s_add_u32 s{sA}, s{sT}, 1
        s_waitcnt vmcnt(0)
        v_xor_b32 v{vT0}, s{sA}, v{vSt+2}
        v_xor_b32 v{vT1}, s{sA}, v{vSt+6}
        v_or_b32 v{vT0}, v{vT0}, v{vT1}
        v_cmp_ne_u32 vcc, 0, v{vT0}
        s_cbranch_vccz L_heavy
        """)
    a("L_loopA:")
    o_phase()
    lab = a.label("dn")
    a(f"s_cmp_eq_u32 s{sL}, 0\ns_cbranch_scc0 {lab}")
    down_slices()
    tag_check_all()
    if cfg.epoch_early:
        le = a.label("ep")
        a(f"""
        s_or_b32 s{sB}, s{sJ}, s{sIdx}
        s_or_b32 s{sB}, s{sB}, s{sW}
        s_cmp_eq_u32 s{sB}, 0
        s_cbranch_scc0 {le}
        """)
        g.ep_lab = le
        a(f"v_mov_b32 v{vT0}, {WS_EPOCH}\nv_mov_b32 v{vT1}, s{sT}\ns_mov_b64 exec, 1")
        a(f"buffer_store_dword v{vT1}, v{vT0}, {sr(sWS,4)}, 0 offen sc1")
        a("s_mov_b64 exec, -1")
        a(f"{le}:")
    down_operands()
    if cfg.warm_out:
        lw = a.label("wout")
        a(f"""
        s_cmp_ge_u32 s{sIdx}, 2
        s_cbranch_scc1 {lw}
        s_lshl_b32 s{sB}, s{sJ}, 1
        s_add_u32 s{sB}, s{sB}, s{sIdx}
        s_lshl_b32 s{sB}, s{sB}, 6
        v_lshlrev_b32 v{vT0}, 10, v{vLane}
        s_mov_b64 exec, 3
        buffer_load_dword v{vJ}, v{vT0}, {sr(sOUT,4)}, s{sB} offen
        s_mov_b64 exec, -1
        {lw}:
        """)
    a("s_waitcnt lgkmcnt(0)\ns_barrier")
    a(f"{lab}:")
    d_phase()
    a(f"s_cmp_eq_u32 s{sL}, 1\ns_cbranch_scc1 L_finalA")
    a("s_branch L_q2s2")

    a("L_roleB:")
    g.role = "B"; g.ts = ts_split
    def gu_slices():
        a(f"""
        s_cmp_ge_u32 s{sIdx}, 14
        s_cbranch_scc1 L_nogu
        v_lshrrev_b32 v{vT0}, 1, v{vLane}
        v_mul_u32_u24 v{vT0}, 3584, v{vT0}
        v_and_b32 v{vT1}, 1, v{vLane}
        v_lshl_add_u32 v{vT0}, v{vT1}, 4, v{vT0}
        s_mul_i32 s{sB}, s{sW}, {128*3584}
        s_mul_i32 s{sC}, s{sJ}, 448
        s_add_u32 s{sB}, s{sB}, s{sC}
        s_lshl_b32 s{sC}, s{sIdx}, 5
        s_add_u32 s{sB}, s{sB}, s{sC}
        s_lshl_b32 s{sC}, s{sW}, 14
        s_add_u32 s{sC}, s{sC}, {L_K + W_GATE}
        """)
        for u in range(4):
            a(f"""
            s_mov_b32 m0, s{sC}
            s_add_u32 s{sD}, s{sC}, {W_UP - W_GATE}
            buffer_load_dwordx4 v{vT0}, {sr(sW2,4)}, s{sB} offen{SLN} lds
            s_mov_b32 m0, s{sD}
            s_add_u32 s{sC}, s{sC}, 1024
            buffer_load_dwordx4 v{vT0}, {sr(sUP,4)}, s{sB} offen{SLN} lds
            s_add_u32 s{sB}, s{sB}, {32*3584}
            """)
        a("L_nogu:")
    if cfg.wsB:
        gu_slices()
        s1_tail(8, maybe_none=True)
    else:
        s1_tail(nPF)
    if cfg.w_inter: a(f"s_mov_b32 s{sWb2}, s{sWb}\ns_mov_b32 s{sWst2}, s{sWst}")
    db_setup(1, 0)
    if cfg.w_inter: a(f"s_mov_b32 s{sXr}, {WS_X}")
    if cfg.pf_down:
        a(f"""
        v_lshrrev_b32 v{vT0}, 3, v{vLane}
        v_lshlrev_b32 v{vT0}, 10, v{vT0}
        v_and_b32 v{vT1}, 7, v{vLane}
        v_lshl_add_u32 v{vT0}, v{vT1}, 7, v{vT0}
        s_mul_i32 s{sB}, s{sJ}, 224
        s_mul_i32 s{sC}, s{sIdx}, 14
        s_add_u32 s{sB}, s{sB}, s{sC}
        s_lshl_b32 s{sC}, s{sW}, 2
        s_add_u32 s{sB}, s{sB}, s{sC}
        s_lshl_b32 s{sB}, s{sB}, 10
        s_cmp_eq_u32 s{sW}, 3
        s_cselect_b32 exec_lo, 0xffff, -1
        s_mov_b32 exec_hi, 0
        buffer_load_dword v{vJ}, v{vT0}, {sr(sDN,4)}, s{sB} offen{cfg.pf_down_pol}
        s_mov_b64 exec, -1
        """)
    if cfg.line_pf and "f" in cfg.pf_which:
        a(f"""
        v_mul_u32_u24 v{vT0}, 52, v{vLane}
        v_lshrrev_b32 v{vT0}, 8, v{vT0}            ; l/5 for l < 64
        v_mul_u32_u24 v{vT1}, 5, v{vT0}
        v_sub_u32 v{vT1}, v{vLane}, v{vT1}         ; l%5
        v_mul_u32_u24 v{vT0}, 3584, v{vT0}
        v_lshl_add_u32 v{vT0}, v{vT1}, 7, v{vT0}
        s_lshl_b32 s{sB}, s{sIdx}, 5
        s_lshl_b32 s{sC}, s{sW}, 3
        s_add_u32 s{sB}, s{sB}, s{sC}
        s_mul_i32 s{sB}, s{sB}, 3584
        s_mul_i32 s{sC}, s{sJ}, 448
        s_and_b32 s{sC}, s{sC}, 0xffffff80
        s_add_u32 s{sB}, s{sB}, s{sC}
        """)
        setexec((1 << 40) - 1)
        for off in ((0, 64) if "f" in cfg.sub2 else (0,)):
            a(f"buffer_load_dword v{vJ}, v{vT0}, {sr(sW2,4)}, s{sB} offen offset:{off}{cfg.pf_pol_f}")
            a(f"buffer_load_dword v{vJ}, v{vT0}, {sr(sUP,4)}, s{sB} offen offset:{off}{cfg.pf_pol_f}")
        setexec(FULL)
    if not cfg.wsB and not cfg.w_inter: gu_slices()
    if cfg.w_inter and cfg.w_interB != "gu":
        lab = a.label("wl")
        a(f"s_cmp_ge_u32 s{sIdx}, 14\ns_cbranch_scc1 {lab}")
        for part, key, srdq, sh, base in ((0, "g", sW2, 12, L_WQ), (1, "u", sUP, 14, L_K)):
            if key in cfg.w_interB: continue
            for u in range(4):
                a(f"""
                s_mul_i32 s{sB}, s{sWst2}, {u}
                s_add_u32 s{sB}, s{sB}, s{sWb2}
                s_lshl_b32 s{sC}, s{sW}, {sh}
                s_add_u32 s{sC}, s{sC}, {base + u*1024}
                s_mov_b32 m0, s{sC}
                s_nop 0
                buffer_load_dwordx4 v{vWs}, {sr(srdq,4)}, s{sB} offen{SLN} lds
                """)
        a(f"{lab}:")
    tag_check_all()
    ts("ffn_landed")
    a(f"s_cmp_ge_u32 s{sIdx}, 14\ns_cbranch_scc1 L_nogu2")
    if cfg.w_inter:
        for mat, (sh, base) in enumerate(((12, L_WQ), (14, L_K))):
            a(f"s_lshl_b32 s{sB}, s{sW}, {sh}")
            tr_base(vT0, 32, 8, sB, base)
            for u in range(4):
                a(f"ds_read_b64_tr_b16 {ar(aW2+8*u+4*mat,2)}, v{vT0} offset:{u*1024}")
                a(f"ds_read_b64_tr_b16 {ar(aW2+8*u+4*mat+2,2)}, v{vT0} offset:{u*1024+128}")
    else:
        a(f"s_lshl_b32 s{sB}, s{sW}, 14")
        tr_base(vT0, 32, 8, sB, L_K + W_GATE)
        for u in range(4):
            for mat in range(2):
                a(f"ds_read_b64_tr_b16 {ar(aW2+8*u+4*mat,2)}, v{vT0} offset:{u*1024+mat*(W_UP-W_GATE)}")
                a(f"ds_read_b64_tr_b16 {ar(aW2+8*u+4*mat+2,2)}, v{vT0} offset:{u*1024+mat*(W_UP-W_GATE)+128}")
    a("s_waitcnt lgkmcnt(0)")
    for u in range(4):
        mfma(vAcc, vOnes, ar(aW2 + 8*u, 4), "0" if u == 0 else None)
        mfma(vAcc + 4, vOnes, ar(aW2 + 8*u + 4, 4), "0" if u == 0 else None)
    a(f"s_nop 7\nds_write_b32 v{vaRedW}, v{vAcc} offset:{R_COL}\nds_write_b32 v{vaRedW}, v{vAcc+4} offset:{R_COL2}")
    a("L_nogu2:")
    a("s_waitcnt lgkmcnt(0)\ns_barrier")
    a(f"""
    ds_read_b128 {vr(vU,4)}, v{vaFinW} offset:{R_COL}
    ds_read_b128 {vr(vU+4,4)}, v{vaFinW} offset:{R_COL2}
    s_waitcnt lgkmcnt(0)
    """)
    sum4r(vU); sum4r(vU + 4)
    a(f"v_mov_b32 v{vCg}, v{vU}\nv_mov_b32 v{vCu}, v{vU+4}")
    ts("ffn_ready")
    a("L_loopB:")
    lg = a.label("nog")
    a(f"s_cmp_ge_u32 s{sIdx}, 14\ns_cbranch_scc1 {lg}")
    g_phase()
    a(f"{lg}:")
    if cfg.junk_dirty:
        lj = a.label("jk")
        a(f"s_cmp_eq_u32 s{sL}, 0\ns_cbranch_scc0 {lj}")
        a(f"s_lshl_b32 s{sB}, s2, 2\ns_add_u32 s{sB}, s{sB}, s{sW}\ns_mul_i32 s{sB}, s{sB}, {cfg.junk_dirty*1024}\ns_add_u32 s{sB}, s{sB}, 0x400000\nv_lshlrev_b32 v{vT0}, 4, v{vLane}")
        for i in range(cfg.junk_dirty):
            a(f"buffer_store_dwordx4 {vr(vP,4)}, v{vT0}, {sr(sWS,4)}, s{sB} offen\ns_add_u32 s{sB}, s{sB}, 1024")
        a(f"{lj}:")
    a(f"s_cmp_eq_u32 s{sL}, 1\ns_cbranch_scc1 L_fin")

    a("L_q2s2:")
    save_role, save_ts = g.role, g.ts
    g.role = "C"; g.ts = getattr(g, "maxts", g.ts)
    lab = a.label("wo")
    a(f"s_cmp_lt_u32 s{sM}, 16\ns_cbranch_scc{1 if cfg.warm_by_B else 0} {lab}")
    warm_q2()
    warm_o(1)
    a(f"{lab}:")
    if cfg.db_q: db_wait(None, const_hop=1)
    if cfg.diag and cfg.ts_only and "q2_db" in cfg.ts_only:
        ts("q2_db")
    a(f"s_mov_b32 s{sD}, {WS_X + X_HOP}")
    x_poll(sD, XA, cfg.sleep_x)
    ts("q2_got")
    q_core(XA)
    q_final(False)
    ts("q2_pub")
    l = a.label("qp"); ok = a.label("qok")
    setexec(EM4)
    a(f"{l}:")
    for c in range(4):
        a(f"buffer_load_dwordx4 {vr(vQ+4*c,4)}, v{vaQ2}, {sr(sWS,4)}, s{sQ2r} offen offset:{c*256} sc1")
    a("s_waitcnt vmcnt(0)")
    sent_check([vQ+i for i in range(16)], vT0, ok)
    spin_fail(l)
    a(f"{ok}:")
    setexec(FULL)
    ts("q2_gath")
    a(f"""
    s_add_u32 s{sOown}, s{sOown}, {O_L}
    s_add_u32 s{sOcons}, s{sOcons}, {O_L}
    s_add_u32 s{sXr}, s{sXr}, {2*X_HOP}
    s_add_u32 s{sHb}, s{sHb}, 8192
    s_mov_b32 s{sL}, 1
    """)
    s_qk_max()
    s_exp_p()
    if cfg.stats_mid:
        lw3 = a.label("s3"); lw4 = a.label("s4")
        a(f"s_cmp_eq_u32 s{sW}, 3\ns_cbranch_scc1 {lw3}")
        for blk in range(8):
            a(f"s_waitcnt lgkmcnt({7-blk})")
            pv([blk], blk == 0)
        a(f"s_branch {lw4}\n{lw3}:")
        a(f"""
        ds_read_b128 {vr(vU+4,4)}, v{vaSm} offset:{L_LSUM-L_SMAX}
        s_add_u32 s{sB}, s{sT}, s{sL}
        s_add_u32 s{sB}, s{sB}, 1
        v_mov_b32 v{vMc+2}, s{sB}
        """)
        for blk in range(4):
            a(f"s_waitcnt lgkmcnt({8-blk})")
            pv([blk], blk == 0)
        a("s_waitcnt lgkmcnt(0)")
        sum4r(vU + 4)
        a(f"v_mov_b32 v{vMc+1}, v{vU+4}")
        setexec(0xF)
        store_local(f"buffer_store_dwordx4 {vr(vMc,4)}, v{vaStS}, {sr(sWS,4)}, s{sOown} offen")
        setexec(FULL)
        for blk in range(4, 8):
            pv([blk], False)
        a(f"{lw4}:")
        s_out()
    else:
        s_stats_prep()
        a("s_waitcnt lgkmcnt(0)")
        pv(list(range(8)), True)
        s_out()
        s_stats_store(None)
    ts("s2_pub")
    if cfg.diag and cfg.ts_only and "s2_ack" in cfg.ts_only:
        a("s_waitcnt vmcnt(0)")
        ts("s2_ack")
    a(f"s_cmp_lt_u32 s{sM}, 16\ns_cbranch_scc1 L_loopA\ns_branch L_loopB")

    a("L_finalA:")
    g.role = "A"; g.ts = getattr(g, "maxts", g.ts)
    a(f"""
    s_cmp_ge_u32 s{sIdx}, 2
    s_cbranch_scc1 L_fin
    s_cmp_eq_u32 s{sW}, 0
    s_cbranch_scc0 L_fin
    s_lshl_b32 s{sB}, s{sJ}, 1
    s_add_u32 s{sB}, s{sB}, s{sIdx}        ; cb
    s_lshl_b32 s{sC}, s{sB}, 10
    s_xor_b32 s{sD}, s{sC}, 0x2000
    s_add_u32 s{sD}, s{sD}, 16384
    s_lshr_b32 s{sA}, s{sXcc}, 2
    s_lshr_b32 s{sTmp2}, s{sB}, 3
    s_cmp_eq_u32 s{sA}, s{sTmp2}
    s_cselect_b32 s{sC}, s{sC}, s{sD}
    s_add_u32 s{sC}, s{sC}, {WS_X + 3*X_HOP}
    """)
    for nt in range(2):
        for dd in range(4):
            a(f"""
            v_lshlrev_b32 v{vT0}, 3, v{vQd}
            v_add_u32 v{vT0}, {2*dd - 16*nt}, v{vT0}
            v_sub_u32 v{vT0}, v{vT0}, v{vR16}
            v_mov_b32 v{vP+4*nt+dd}, 0
            v_cmp_eq_u32 vcc, 0, v{vT0}
            v_mov_b32 v{vT1}, 0x3f80
            v_cndmask_b32 v{vP+4*nt+dd}, v{vP+4*nt+dd}, v{vT1}, vcc
            v_cmp_eq_u32 vcc, -1, v{vT0}
            v_mov_b32 v{vT1}, 0x3f800000
            v_cndmask_b32 v{vP+4*nt+dd}, v{vP+4*nt+dd}, v{vT1}, vcc
            """)
    a(f"""
    v_lshrrev_b32 v{vT2}, 1, v{vQd}
    v_lshlrev_b32 v{vT2}, 10, v{vT2}
    v_and_b32 v{vT1}, 1, v{vQd}
    v_lshl_add_u32 v{vT2}, v{vT1}, 5, v{vT2}
    v_lshl_add_u32 v{vT2}, v{vR16}, 1, v{vT2}
    s_lshl_b32 s{sB}, s{sB}, 6
    """)
    a(f"s_mov_b32 s{sEx2}, s{sC}\ns_mov_b32 s{sEx2+1}, s{sB}")
    if cfg.db_final: db_wait(None, const_hop=3)
    a(f"s_mov_b32 s{sC}, s{sEx2}\ns_mov_b32 s{sB}, s{sEx2+1}")
    l = a.label("fp"); ok = a.label("fok")
    a(f"{l}:")
    a(f"buffer_load_dwordx4 {vr(vA,4)}, v{vaX}, {sr(sWS,4)}, s{sC} offen sc1")
    a("s_waitcnt vmcnt(0)")
    sent_check([vA+i for i in range(4)], vT0, ok)
    spin_fail(l, cfg.sleep_x)
    a(f"{ok}:")
    ts("fin_got")
    mfma(vAcc, vA, vP, "0"); mfma(vAcc + 4, vA, vP + 4, "0")
    sum4(vU, vAcc, vT3); sum4(vU + 1, vAcc + 4, vT3)
    a(f"""
    v_permlane16_swap_b32 v{vU}, v{vU+1}
    v_add_f32 v{vU}, v{vU}, v{vU+1}
    v_cvt_pk_bf16_f32 v{vU}, v{vU}, v{vU}
    buffer_store_short v{vU}, v{vT2}, {sr(sOUT,4)}, s{sB} offen
    """)
    if not cfg.epoch_early:
        a(f"""
        s_cmp_eq_u32 s{sB}, 0
        s_cbranch_scc0 L_fin
        v_mov_b32 v{vT0}, {WS_EPOCH}
        v_mov_b32 v{vT1}, s{sT}
        """)
        setexec(1)
        a(f"buffer_store_dword v{vT1}, v{vT0}, {sr(sWS,4)}, 0 offen sc1")
        setexec(FULL)

    a("L_fin:")
    if cfg.diag:
        g.role = "E"
        g.tsn["E"].append((NTS - 1, "end"))
        a(f"s_memrealtime s[{sTmp2}:{sTmp2+1}]\ns_waitcnt lgkmcnt(0)\ns_mov_b32 s{sTS+NTS-2}, s{sTmp2}")
        a(f"s_memtime s[{sTmp2}:{sTmp2+1}]\ns_waitcnt lgkmcnt(0)\ns_mov_b32 s{sTS+NTS-1}, s{sTmp2}")
        a(f"s_lshl_b32 s{sB}, s2, 3\ns_add_u32 s{sB}, s{sB}, s{sW}\ns_lshl_b32 s{sB}, s{sB}, 7\ns_add_u32 s{sB}, s{sB}, {WS_DIAG}\nv_mov_b32 v{vT0}, 0")
        setexec(1)
        for i in range(NTS):
            a(f"v_mov_b32 v{vT1}, s{sTS+i}\nbuffer_store_dword v{vT1}, v{vT0}, {sr(sWS,4)}, s{sB} offen offset:{4*i}")
        setexec(FULL)
        if cfg.dbg_dump is not None:
            a(f"""
            s_cmp_eq_u32 s2, {cfg.dbg_dump}
            s_cbranch_scc0 L_nodump
            s_cmp_eq_u32 s{sW}, 0
            s_cbranch_scc0 L_nodump
            s_load_dwordx2 s[{sTmp2}:{sTmp2+1}], s[0:1], 80
            s_waitcnt lgkmcnt(0)
            s_mov_b32 s{sA}, s{sTmp2}
            s_and_b32 s{sB}, s{sTmp2+1}, 0xffff
            s_mov_b32 s{sC}, 256
            s_mov_b32 s{sD}, 0x20000
            v_mov_b32 v{vT0}, 0
            s_mov_b64 exec, 1
            """)
            for i in range(1, 16):
                a(f"s_sub_u32 s{sTmp2}, s{sTS+i}, s{sTS}\nv_mov_b32 v{vT1}, s{sTmp2}\nbuffer_store_dword v{vT1}, v{vT0}, s[{sA}:{sD}], 0 offen offset:{4*(i-1)}")
            a(f"s_sub_u32 s{sTmp2}, s{sTS+NTS-1}, s{sTS}\nv_mov_b32 v{vT1}, s{sTmp2}\nbuffer_store_dword v{vT1}, v{vT0}, s[{sA}:{sD}], 0 offen offset:60")
            a("s_mov_b64 exec, -1\nL_nodump:")
    if cfg.dbg_span:
        a(f"""
        s_waitcnt vmcnt(0)
        s_cmp_eq_u32 s{sW}, 0
        s_cbranch_scc0 L_nospan
        s_memrealtime s[{sTmp2}:{sTmp2+1}]
        s_load_dwordx2 s[92:93], s[0:1], 80
        s_waitcnt lgkmcnt(0)
        s_mov_b32 s{sA}, s92
        s_and_b32 s{sB}, s93, 0xffff
        s_mov_b32 s{sC}, 256
        s_mov_b32 s{sD}, 0x20000
        v_mov_b32 v{vT0}, 8
        v_mov_b32 v{vT1}, s{sTmp2}
        s_not_b32 s94, s94
        v_mov_b32 v{vT2}, s94
        s_mov_b64 exec, 1
        buffer_atomic_umax v{vT1}, v{vT0}, s[{sA}:{sD}], 0 offen sc1
        buffer_atomic_umax v{vT2}, v{vT0}, s[{sA}:{sD}], 0 offen offset:4 sc1
        s_waitcnt vmcnt(0)
        L_nospan:
        """)
    a("s_waitcnt vmcnt(0)\ns_endpgm")
    a(f"""
    L_abort:
    s_mov_b64 exec, -1
    v_mov_b32 v{vT0}, 0
    v_mov_b32 v{vT1}, 0xdead
    s_load_dwordx2 s[{sTmp2}:{sTmp2+1}], s[0:1], 80
    s_waitcnt lgkmcnt(0)
    s_mov_b32 s{sA}, s{sTmp2}
    s_and_b32 s{sB}, s{sTmp2+1}, 0xffff
    s_mov_b32 s{sC}, 256
    s_mov_b32 s{sD}, 0x20000
    s_mov_b64 exec, 1
    buffer_store_dword v{vT1}, v{vT0}, s[{sA}:{sD}], 0 offen offset:4
    s_waitcnt vmcnt(0)
    L_end:
    s_endpgm
    """)
    for o in g.ool: a(o)
    a("L_codeend:\ns_endpgm")
    lines = a.text().rstrip("\n").split("\n")
    g.ninstr = sum(1 for l in lines if l.startswith("    ") and not l.strip().startswith(";"))
    lines = hazard.pad(lines)
    return g, "\n".join(lines) + "\n"

HEADER = open("interleave_layers__sliding_block_cached__glu_gated_glu__decode.s.ref").read().split("; Override launch")[0]

def full(cfg):
    g, body = build(cfg)
    txt = HEADER
    txt += "; Persistent single-launch kernel: 256 workgroups (one per CU) x 256 threads.\n"
    txt += f"; @launch grid=(256,1,1) block=(256,1,1) lds={LDS_BYTES}\n"
    txt += '.amdgcn_target "amdgcn-amd-amdhsa--gfx950"\n.text\n'
    txt += f".globl {NAME}\n.p2align 8\n.type {NAME},@function\n{NAME}:\n"
    txt += body
    txt += '.section .rodata,"a"\n.p2align 6\n'
    txt += f".amdhsa_kernel {NAME}\n  .amdhsa_next_free_vgpr {256 + g.amax}\n  .amdhsa_next_free_sgpr 102\n  .amdhsa_accum_offset 256\n"
    txt += "  .amdhsa_group_segment_fixed_size 0\n  .amdhsa_kernarg_size 96\n  .amdhsa_user_sgpr_count 2\n  .amdhsa_user_sgpr_kernarg_segment_ptr 1\n  .amdhsa_system_sgpr_workgroup_id_x 1\n.end_amdhsa_kernel\n"
    return g, txt

if __name__ == "__main__":
    cfg = Cfg()
    for kv in sys.argv[2:]:
        k, v = kv.split("="); setattr(cfg, k, eval(v))
    g, txt = full(cfg)
    open(sys.argv[1], "w").write(txt)
    print("vgprs", g.vmax, "agprs", g.amax, "instrs", g.ninstr, "ts", g.tsn)
```

```python
import sys, struct
from asmlib import Asm
import hazard

NAME = "interleave_layers__sliding_block_cached__glu_gated_glu__decode_kernel"

WS_EPOCH = 0x0
WS_Q1 = 0x10000
WS_DB = 0x1c000
WS_Q2 = 0x20000
WS_H  = 0x28000
WS_X  = 0xE0000
X_HOP = 32768
WS_O  = 0x40000
O_STATS = 32768
O_J = O_STATS + 2048
O_L = 8 * O_J
WS_DIAG = 0x100000
WS_SIZE = 0x1000000

L_SMAX = 0
L_LSUM = 64
L_PBUF = 256
L_RED = 2560
R_Q, R_G, R_GZ, R_O, R_D, R_COL, R_COL2 = [L_RED + 1024 * i for i in range(7)]
L_QG = 10240
L_X0 = 14336
L_K = 16384
L_V = L_K + 65536
L_WQ = L_V + 65536
L_XI = L_V
LDS_BYTES = 163840
W_GATE, W_UP, W_DN = 0, 4096, 8192

C_SCALE = 0.08838834764831845 * 1.4426950408889634
def f2u(x): return struct.unpack("<I", struct.pack("<f", x))[0]

class Cfg:
    nKA = 8
    nKb1 = 1
    pace = 8
    gpts = (1, 2, 4)
    diag = False
    ts_only = None
    ts_issue = False
    force_global = False
    budget = 400000
    prefetch_code = True
    sleep_x = 0
    sleep_x0 = 0
    sleep_o = 0
    sl_nt = True
    pf_pol = ""
    pf_pol_f = ""
    pf_pol_o = " nt"
    pf_which = "qf"
    dbg_span = False
    counters = False
    db_early = False
    doorbell = True
    warm = True
    pf_stream = "o"
    pf_pos = 2
    pf_early = False
    pf_spol = ""
    wsA = False
    wsB = False
    junk_dirty = 0
    epoch_early = True
    w_interB = "gu"
    w_inter = False
    v3_early = False
    warm_by_B = True
    o_spec = True
    db_g = True
    db_q = True
    db_final = False
    stats_mid = True
    pf_down = False
    pf_down_pol = " nt"
    kv_pol = " nt"
    sub2 = ""
    dbg_dump = None
    db_pipe = False
    code_pf_shift = 6
    gE_mode = 0
    g_early = True
    rt_probe = None
    rot_mode = "m8"
    warm_out = False
    line_pf = True
    const_tag = False
    no_clear0 = False
    clr0_late = False

def vr(b, n=1): return f"v[{b}:{b+n-1}]" if n > 1 else f"v{b}"
def ar(b, n=1): return f"a[{b}:{b+n-1}]" if n > 1 else f"a{b}"
def sr(b, n=1): return f"s[{b}:{b+n-1}]" if n > 1 else f"s{b}"

sJ, sM, sW, sIdx, sL = 3, 4, 5, 6, 7
sWS, sKS, sVS, sWQ, sW2, sUP, sDN, sX0, sOUT = 8, 12, 16, 20, 24, 28, 32, 36, 40
sT, sTX, sLocal, sBud = 44, 45, 46, 47
sMDIAG = 48
sM4 = 50
sM2 = 52
sMN1 = 54
sMEV = 56
sEx = 58
sA, sB, sC, sD = 60, 61, 62, 63
sKV, sRot = 64, 65
sOown, sOcons, sXw, sXr, sHb, sQ2w, sQ2r = 66, 67, 68, 69, 70 - 70 + 96, 97, 98
sXcc = 99
sEarly = 59
sWb2, sWst2 = 68, 60
sWb, sWst = 59, 69
sKS2 = sKS
sDBtag = 59
sEx2 = 50
sDBw, sDBr = 64, 65
sXI = 58
sTmp2 = 100
sTS = 70
NTS = 26

class G:
    pass

def build(cfg):
    g = G(); a = Asm(); g.a = a
    g.tsn = {"C": [], "A": [], "B": [], "E": []}; g.role = "C"; g.ts = 0; g.cnts = {}; g.cnt_names = []
    nv = [1]
    def valloc(n=1, align=1):
        nv[0] = (nv[0] + align - 1) // align * align
        r = nv[0]; nv[0] += n
        assert nv[0] <= 256
        return r
    vLane = valloc(); vR16 = valloc(); vQd = valloc()
    vT0 = valloc(); vT1 = valloc(); vT2 = valloc(); vT3 = valloc()
    vOnes = valloc(4, 4)
    vQ = valloc(16, 4)
    vA = valloc(40, 4)
    vAcc = valloc(16, 4)
    vS = valloc(16, 4)
    vP = valloc(32, 4)
    vJ = valloc()
    vHop = valloc(8, 4)
    vU = valloc(16, 4)
    vSt = valloc(8, 4)
    vW = valloc(2, 2)
    vCs = valloc(); vCg = valloc(); vCu = valloc()
    vRes = valloc(); vResF = valloc()
    vQ1d = valloc(2, 2); vQ1a = valloc()
    vMc = valloc(4, 4)
    vaX = valloc(); vaXg = valloc(); vaXr = valloc(); vaStQ = valloc(); vaClrO = valloc(); vaO0 = valloc(); vaO1 = valloc(); vaS0 = valloc(); vaS1 = valloc(); vaQ2 = valloc(); vaH = valloc()
    vaPw = valloc(); vaPr = valloc(); vaSm = valloc(); vaSmW = valloc(); vaRedW = valloc(); vaRedZ = valloc()
    vaFinW = valloc(); vaFinZ = valloc(); vaFinQZ = valloc(); vaFinO = valloc()
    vaStH = valloc(); vaStX = valloc(); vaStO = valloc(); vaStS = valloc(); vaResU = valloc()
    vWs = valloc()
    vKs = valloc(4); vVs = valloc(2); vVr = valloc(2); vKr = valloc(4)
    g.vmax = nv[0]
    aK, aV, aWq, aW2, aWd = 0, 64, 128, 144, 176
    g.amax = 192

    FULL = (1 << 64) - 1
    def ts(name):
        if not cfg.diag: return
        if cfg.ts_only and name not in cfg.ts_only and name not in ("start", "setup", "issued"): return
        i = g.ts; g.ts += 1; g.maxts = max(getattr(g, "maxts", 0), g.ts)
        assert i < NTS - 3, name
        g.tsn[g.role].append((i, name))
        if name == "start":
            return
        if name == "issued":
            g.i_issued = i
            a(f"s_memtime s[{sTmp2}:{sTmp2+1}]\ns_waitcnt lgkmcnt(0)\ns_mov_b32 s92, s{sTmp2}")
            return
        if name == "setup":
            a(f"s_mov_b32 s{sTS}, s90\ns_mov_b32 s{sTS+NTS-3}, s91")
            if cfg.ts_issue: a(f"s_mov_b32 s{sTmp2}, s92")
            for z in list(range(1, NTS - 3)) + [NTS - 2, NTS - 1]: a(f"s_mov_b32 s{sTS+z}, 0")
            if cfg.ts_issue: a(f"s_mov_b32 s{sTS+g.i_issued}, s{sTmp2}")
        if cfg.ts_only and name not in cfg.ts_only:
            return
        a(f"s_memtime s[{sTmp2}:{sTmp2+1}]\ns_waitcnt lgkmcnt(0)\ns_mov_b32 s{sTS+i}, s{sTmp2}")
    def ts_dyn(name0, name1):
        if not cfg.diag: return
        if cfg.ts_only and name0 not in cfg.ts_only: return
        i = g.ts; g.ts += 2; g.maxts = max(getattr(g, "maxts", 0), g.ts)
        assert i + 1 < NTS - 3, name0
        g.tsn[g.role].append((i, name0)); g.tsn[g.role].append((i + 1, name1))
        if cfg.ts_only and name0 not in cfg.ts_only: return
        a(f"""s_memtime s[{sTmp2}:{sTmp2+1}]
        s_waitcnt lgkmcnt(0)
        s_cmp_eq_u32 s{sL}, 0
        s_cselect_b32 s{sTS+i}, s{sTmp2}, s{sTS+i}
        s_cselect_b32 s{sTS+i+1}, s{sTS+i+1}, s{sTmp2}""")

    def cnt(name):
        if not (cfg.diag and cfg.counters): return
        key = (g.role, name)
        if key not in g.cnts:
            i = g.ts; g.ts += 1; g.maxts = max(getattr(g, "maxts", 0), g.ts)
            assert i < NTS - 3, name
            g.cnts[key] = i; g.cnt_names.append((g.role, i, name))
        a(f"s_add_u32 s{sTS+g.cnts[key]}, s{sTS+g.cnts[key]}, 1")

    def rt_probe(name):
        if cfg.rt_probe != name: return
        lab = a.label("rp")
        if name == "start":
            cond = f"s_cmp_eq_u32 s2, 0\ns_cbranch_scc0 {lab}"
        else:
            cond = f"s_mul_hi_u32 s{sA}, s2, {(2**32 + 16) // 17}\ns_mul_i32 s{sB}, s{sA}, 17\ns_cmp_eq_u32 s{sB}, s2\ns_cbranch_scc0 {lab}"
        a(f"""
        s_cmp_eq_u32 s{sW}, 0
        s_cbranch_scc0 {lab}
        {cond}
        s_memrealtime s[{sTmp2}:{sTmp2+1}]
        s_load_dwordx2 s[92:93], s[0:1], 80
        s_waitcnt lgkmcnt(0)
        s_lshl_b32 s{sA}, s{sA}, 2
        v_mov_b32 v{vT0}, s{sA}
        v_mov_b32 v{vT1}, s{sTmp2}
        s_mov_b64 exec, 1
        global_store_dword v{vT0}, v{vT1}, s[92:93]
        s_mov_b64 exec, -1
        {lab}:
        """)

    def setexec(mask):
        if mask == FULL: a("s_mov_b64 exec, -1")
        elif isinstance(mask, str): a(f"s_mov_b64 exec, {mask}")
        elif mask < 65 or mask in (0xFFFF, 0xF, 0xFF):
            a(f"s_mov_b64 exec, 0x{mask:x}" if mask >= 65 else f"s_mov_b64 exec, {mask}")
        else:
            a(f"s_mov_b32 exec_lo, 0x{mask & 0xFFFFFFFF:x}\ns_mov_b32 exec_hi, 0x{mask >> 32:x}")
    EM4, EM2, EMEV = f"s[{sM4}:{sM4+1}]", f"s[{sM2}:{sM2+1}]", f"s[{sMEV}:{sMEV+1}]"

    def srd(dst, ptr_s, size):
        a(f"s_mov_b32 s{dst}, s{ptr_s}\ns_and_b32 s{dst+1}, s{ptr_s+1}, 0xffff\ns_mov_b32 s{dst+2}, 0x{size:x}\ns_mov_b32 s{dst+3}, 0x20000")

    def mfma(d, A, B, C=None):
        f = lambda x: x if isinstance(x, str) else vr(x, 4)
        c = f(d) if C is None else C
        a(f"v_mfma_f32_16x16x32_bf16 {f(d)}, {f(A)}, {f(B)}, {c}")

    def spin_fail(lbl_retry, sleep=0):
        if sleep: a(f"s_sleep {sleep}")
        a(f"s_sub_u32 s{sBud}, s{sBud}, 1\ns_cbranch_scc0 {lbl_retry}\ns_branch L_abort")
    def interleave(mf, va, start, per=2):
        va = list(va)
        for i, m in enumerate(mf):
            a(m)
            if i >= start:
                for _ in range(per):
                    if va: a(va.pop(0))
        for v in va: a(v)
    def mf(d, A, B, C=None):
        f = lambda x: x if isinstance(x, str) else vr(x, 4)
        return f"v_mfma_f32_16x16x32_bf16 {f(d)}, {f(A)}, {f(B)}, {f(d) if C is None else C}"

    def sent_max(regs, tmp):
        rs = list(regs)
        if len(rs) == 1: return rs[0]
        if len(rs) == 2:
            a(f"v_max_u32 v{tmp}, v{rs[0]}, v{rs[1]}"); rs = []
        else:
            a(f"v_max3_u32 v{tmp}, v{rs[0]}, v{rs[1]}, v{rs[2]}"); rs = rs[3:]
        while len(rs) >= 2:
            a(f"v_max3_u32 v{tmp}, v{tmp}, v{rs[0]}, v{rs[1]}"); rs = rs[2:]
        if rs: a(f"v_max_u32 v{tmp}, v{tmp}, v{rs[0]}")
        return tmp
    def sent_check(regs, tmp, lbl_ok):
        cur = sent_max(regs, tmp)
        a(f"v_cmp_eq_u32 vcc, -1, v{cur}\ns_cbranch_vccz {lbl_ok}")

    g.ool = []
    def store_local(instr):
        if cfg.force_global:
            a(instr + " sc1"); return
        l1 = a.label("stg"); l2 = a.label("std")
        a(f"s_cmp_eq_u32 s{sLocal}, 0\ns_cbranch_scc1 {l1}")
        a(instr)
        a(f"{l2}:")
        g.ool.append(f"{l1}:\n{instr} sc1\ns_branch {l2}")

    def dpp(op, d, s0, s1, ctrl, rm="0xf", bm="0xf"):
        if s1 is None: a(f"{op}_dpp v{d}, v{s0} {ctrl} row_mask:{rm} bank_mask:{bm}")
        else: a(f"{op}_dpp v{d}, v{s0}, v{s1} {ctrl} row_mask:{rm} bank_mask:{bm}")
    def row_reduce(op, v, steps=(8, 4, 2, 1)):
        for n in steps: dpp(op, v, v, v, f"row_ror:{n}")
    def xquad_reduce(op, v, tmp):
        a(f"v_mov_b32 v{tmp}, v{v}\nv_permlane32_swap_b32 v{v}, v{tmp}\n{op} v{v}, v{v}, v{tmp}")
        a(f"v_mov_b32 v{tmp}, v{v}\nv_permlane16_swap_b32 v{v}, v{tmp}\n{op} v{v}, v{v}, v{tmp}")
    def sum4(dst, b, tmp):
        a(f"v_add_f32 v{dst}, v{b}, v{b+1}\nv_add_f32 v{tmp}, v{b+2}, v{b+3}\nv_add_f32 v{dst}, v{dst}, v{tmp}")

    P = sTS
    EARLY = ""
    if cfg.dbg_span:
        EARLY = f"s_memrealtime s[94:95]"
    if cfg.diag:
        EARLY = f"s_memrealtime s[{sTmp2}:{sTmp2+1}]\ns_waitcnt lgkmcnt(0)\ns_mov_b32 s91, s{sTmp2}\ns_memtime s[{sTmp2}:{sTmp2+1}]\ns_waitcnt lgkmcnt(0)\ns_mov_b32 s90, s{sTmp2}"
    SLN = " nt" if cfg.sl_nt else ""
    a(f"""
    s_cmp_ge_u32 s2, 256
    s_cbranch_scc1 L_end
    {EARLY}
    s_load_dwordx4 s[{P+6}:{P+9}], s[0:1], 16          ; V, wq     (76..79)
    s_load_dwordx4 s[{P+2}:{P+5}], s[0:1], 0           ; x, K      (72..75)
    s_load_dwordx2 s[{P+18}:{P+19}], s[0:1], 88        ; ws        (88..89)
    s_load_dwordx2 s[{P}:{P+1}], s[0:1], 32            ; wo        (70..71)
    s_load_dwordx4 s[{P+10}:{P+13}], s[0:1], 48
    s_load_dwordx4 s[{P+14}:{P+17}], s[0:1], 64
    v_lshrrev_b32 v{vT0}, 6, v0
    v_and_b32 v{vLane}, 63, v0
    """)
    if cfg.prefetch_code:
        a(f"""
        s_getpc_b64 s[{sTmp2}:{sTmp2+1}]
        L_pfbase:
        v_readfirstlane_b32 s{sW}, v{vT0}
        v_lshlrev_b32 v{vT1}, {cfg.code_pf_shift}, v0
        s_mov_b32 s{sB}, (L_codeend - L_pfbase)
        v_cmp_gt_u32 vcc, s{sB}, v{vT1}
        s_and_b32 s{sJ}, s2, 7
        s_and_saveexec_b64 s[{sEx}:{sEx+1}], vcc
        s_cbranch_execz L_nopf
        global_load_dword v{vU+15}, v{vT1}, s[{sTmp2}:{sTmp2+1}]
        L_nopf:
        s_mov_b64 exec, s[{sEx}:{sEx+1}]
        """)
    else:
        a(f"s_and_b32 s{sJ}, s2, 7\nv_readfirstlane_b32 s{sW}, v{vT0}")
    a(f"""
    s_lshr_b32 s{sM}, s2, 3
    v_lshrrev_b32 v{vT2}, 1, v{vLane}
    v_lshlrev_b32 v{vT2}, 13, v{vT2}
    v_and_b32 v{vT3}, 1, v{vLane}
    v_lshl_add_u32 v{vT2}, v{vT3}, 4, v{vT2}
    v_lshrrev_b32 v{vT0}, {4 if "q" in cfg.sub2 else 3}, v{vLane}
    v_lshlrev_b32 v{vT0}, 13, v{vT0}
    v_and_b32 v{vT3}, {15 if "q" in cfg.sub2 else 7}, v{vLane}
    v_lshl_add_u32 v{vT0}, v{vT3}, {6 if "q" in cfg.sub2 else 7}, v{vT0}
    s_lshl_b32 s{sC}, s{sJ}, 10
    s_lshl_b32 s{sA}, s{sM}, 2
    s_add_u32 s{sA}, s{sA}, s{sW}
    s_lshl_b32 s{sA}, s{sA}, 15
    s_add_u32 s{sA}, s{sA}, s{sC}
    s_lshl_b32 s{sB}, s{sW}, 20
    s_add_u32 s{sB}, s{sB}, s{sC}
    s_lshl_b32 s{sC}, s{sM}, 5
    s_add_u32 s{sB}, s{sB}, s{sC}
    s_lshl_b32 s{sC}, s{sW}, 12
    s_add_u32 s{sC}, s{sC}, {L_WQ}
    s_mov_b32 s{sWQ+2}, 0x400000
    s_mov_b32 s{sWQ+3}, 0x20000
    s_waitcnt lgkmcnt(0)
    s_mov_b32 s{sWQ}, s{P+8}
    s_and_b32 s{sWQ+1}, s{P+9}, 0xffff
    """)
    if cfg.line_pf and "q" in cfg.pf_which:
        if "q" not in cfg.sub2: setexec(0xFFFFFFFF)
        a(f"buffer_load_dword v{vJ}, v{vT0}, {sr(sWQ,4)}, s{sA} offen{cfg.pf_pol}")
        if "q" not in cfg.sub2: setexec(FULL)
    for u in range(4):
        a(f"""
        s_mov_b32 m0, s{sC}
        s_add_u32 s{sC}, s{sC}, 1024
        buffer_load_dwordx4 v{vT2}, {sr(sWQ,4)}, s{sB} offen{SLN} lds
        s_add_u32 s{sB}, s{sB}, {32*8192}
        """)
    XA = vA + 8
    ROT = {"m8": f"s_and_b32 s{sRot}, s{sM}, 7\ns_lshl_b32 s{sRot}, s{sRot}, 1",
           "mj8": f"s_add_u32 s{sRot}, s{sM}, s{sJ}\ns_and_b32 s{sRot}, s{sRot}, 7\ns_lshl_b32 s{sRot}, s{sRot}, 1",
           "m16": f"s_and_b32 s{sRot}, s{sM}, 15",
           "mj16": f"s_lshl_b32 s{sRot}, s{sJ}, 1\ns_add_u32 s{sRot}, s{sRot}, s{sM}\ns_and_b32 s{sRot}, s{sRot}, 15",
           "none": f"s_mov_b32 s{sRot}, 0",
           "m4x4": f"s_and_b32 s{sRot}, s{sM}, 3\ns_lshl_b32 s{sRot}, s{sRot}, 2"}[cfg.rot_mode]
    a(f"""
    v_and_b32 v{vR16}, 15, v0
    v_lshrrev_b32 v{vQd}, 4, v{vLane}
    s_and_b32 s{sIdx}, s{sM}, 15
    {ROT}
    s_lshr_b32 s{sB}, s{sM}, 4
    s_lshl_b32 s{sB}, s{sB}, 3
    s_add_u32 s{sB}, s{sB}, s{sJ}
    s_lshl_b32 s{sB}, s{sB}, 23
    s_lshl_b32 s{sC}, s{sIdx}, 16
    s_add_u32 s{sKV}, s{sB}, s{sC}
    s_add_u32 s{sKV}, s{sKV}, 0x700000
    v_lshlrev_b32 v{vT1}, 4, v{vLane}          ; lane*16
    """)
    srd(sKS, P + 4, 0x8000000)
    for i in range(4):
        a(f"""
        v_add_u32 v{vT3}, {4*i}, v{vQd}
        v_xor_b32 v{vT3}, v{vT3}, v{vR16}
        v_lshlrev_b32 v{vT3}, 4, v{vT3}
        v_lshl_add_u32 v{vKs+i}, v{vQd}, 8, v{vT3}
        """)
    srd(sWS, P + 18, WS_SIZE)
    if cfg.const_tag: a(f"s_mov_b32 s{sT}, 0x12345670")
    else: a(f"s_load_dword s{sT}, s[{P+18}:{P+19}], {WS_EPOCH}")
    srd(sX0, P + 2, 2048)
    a(f"s_cmp_eq_u32 s{sW}, 0\ns_cbranch_scc0 L_nox0")
    a(f"""
    s_mov_b32 m0, {L_X0}
    s_nop 0
    buffer_load_dwordx4 v{vT1}, {sr(sX0,4)}, 0 offen lds
    buffer_load_dwordx4 v{vT1}, {sr(sX0,4)}, 0 offen offset:1024 lds
    L_nox0:
    """)
    a(f"""
    s_mul_i32 s{sOown}, s{sJ}, {O_J}
    s_lshr_b32 s{sB}, s{sM}, 4
    s_lshl_b32 s{sB}, s{sB}, 14
    s_add_u32 s{sOown}, s{sOown}, s{sB}
    s_lshl_b32 s{sB}, s{sIdx}, 4
    s_add_u32 s{sOown}, s{sOown}, s{sB}
    s_add_u32 s{sOown}, s{sOown}, {WS_O}
    s_lshl_b32 s{sC}, s{sIdx}, 10
    s_lshl_b32 s{sD}, s{sJ}, 7
    s_add_u32 s{sC}, s{sC}, s{sD}
    s_add_u32 s{sXw}, s{sC}, {WS_X}
    s_mov_b32 s{sXr}, {WS_X}
    s_lshl_b32 s{sHb}, s{sJ}, 10
    s_add_u32 s{sHb}, s{sHb}, {WS_H}
    s_lshl_b32 s{sQ2w}, s{sJ}, 11
    s_add_u32 s{sQ2r}, s{sQ2w}, {WS_Q2}
    ; producer m: h = m>>3, c = (m>>1)&3, e0 = 2*(m&1)  ->  c*256 + e0*64 + h*16
    s_lshr_b32 s{sB}, s{sM}, 1
    s_and_b32 s{sB}, s{sB}, 3
    s_lshl_b32 s{sB}, s{sB}, 8
    s_add_u32 s{sQ2w}, s{sQ2r}, s{sB}
    s_and_b32 s{sB}, s{sM}, 1
    s_lshl_b32 s{sB}, s{sB}, 7
    s_add_u32 s{sQ2w}, s{sQ2w}, s{sB}
    s_lshr_b32 s{sB}, s{sM}, 3
    s_lshl_b32 s{sB}, s{sB}, 4
    s_add_u32 s{sQ2w}, s{sQ2w}, s{sB}
    s_lshr_b32 s{sB}, s{sM}, 4
    s_lshl_b32 s{sB}, s{sB}, 10
    s_add_u32 s{sQ2r}, s{sQ2r}, s{sB}
    """)
    if cfg.no_clear0: a("s_branch L_clr_done")
    a(f"""
    v_mov_b32 v{vU}, -1
    v_mov_b32 v{vU+1}, -1
    v_mov_b32 v{vU+2}, -1
    v_mov_b32 v{vU+3}, -1
    v_bfe_u32 v{vT3}, v{vLane}, 1, 1
    v_lshlrev_b32 v{vT3}, 10, v{vT3}
    v_and_b32 v{vT0}, 1, v{vLane}
    v_lshl_add_u32 v{vT3}, v{vT0}, 6, v{vT3}
    v_add_u32 v{vT0}, s{sQ2w}, v{vT3}
    s_cmp_lt_u32 s{sM}, 16
    s_cbranch_scc0 L_clr_B
    s_cmp_eq_u32 s{sW}, 1
    s_cbranch_scc0 L_clr_A2
    """)
    setexec(0xF)
    a(f"""
    s_branch L_clr_st
    L_clr_A2:
    s_cmp_eq_u32 s{sW}, 2
    s_cbranch_scc0 L_clr_done
    s_xor_b32 s{sC}, s{sXw}, 0x2000
    s_add_u32 s{sC}, s{sC}, 16384
    v_mov_b32 v{vT0}, s{sXw}
    v_mov_b32 v{vT1}, s{sC}
    v_bfe_u32 v{vT3}, v{vLane}, 3, 1
    v_cmp_eq_u32 vcc, 1, v{vT3}
    v_cndmask_b32 v{vT0}, v{vT0}, v{vT1}, vcc
    v_lshrrev_b32 v{vT3}, 4, v{vLane}
    v_lshlrev_b32 v{vT3}, 15, v{vT3}
    v_and_b32 v{vT1}, 7, v{vLane}
    v_lshl_add_u32 v{vT3}, v{vT1}, 4, v{vT3}
    v_add_u32 v{vT0}, v{vT0}, v{vT3}
    s_branch L_clr_st
    L_clr_B:
    s_cmp_eq_u32 s{sW}, 2
    s_cbranch_scc0 L_clr_done
    """)
    setexec(0xF)
    a(f"""
    s_cmp_ge_u32 s{sIdx}, 14
    s_cbranch_scc1 L_clr_st
    s_lshl_b32 s{sD}, s{sIdx}, 6
    s_add_u32 s{sC}, s{sHb}, s{sD}
    """)
    setexec(0xFF0)
    a(f"""
    v_bfe_u32 v{vT3}, v{vLane}, 3, 1
    v_lshlrev_b32 v{vT3}, 13, v{vT3}
    v_and_b32 v{vT1}, 3, v{vLane}
    v_lshl_add_u32 v{vT3}, v{vT1}, 4, v{vT3}
    v_add_u32 v{vT0}, s{sC}, v{vT3}
    """)
    setexec(0xFFF)
    a("L_clr_st:")
    a(f"buffer_store_dwordx4 {vr(vU,4)}, v{vT0}, {sr(sWS,4)}, 0 offen sc1")
    setexec(FULL)
    a("L_clr_done:")
    def emit_wpf(qWO, qGT, reload_ptrs):
        n = 0
        a(f"s_lshl_b32 s{sD}, s{sM}, 2\ns_add_u32 s{sD}, s{sD}, s{sW}               ; q = 4m + w")
        if reload_ptrs:
            a(f"""
            s_load_dwordx2 s[{qWO}:{qWO+1}], s[0:1], 32
            s_load_dwordx2 s[{qGT}:{qGT+1}], s[0:1], 48
            s_waitcnt lgkmcnt(0)
            s_and_b32 s{qWO+1}, s{qWO+1}, 0xffff
            s_mov_b32 s{qWO+2}, 0x400000
            s_and_b32 s{qGT+1}, s{qGT+1}, 0xffff
            s_mov_b32 s{qGT+2}, {512*1792*2}
            """)
        if "o" in cfg.pf_stream:
            a(f"""
            v_lshlrev_b32 v{vT0}, {6 if "o" in cfg.sub2 else 7}, v{vLane}
            s_lshl_b32 s{sB}, s{sJ}, 19
            s_lshl_b32 s{sC}, s{sD}, 12
            s_add_u32 s{sB}, s{sB}, s{sC}
            """)
            if "o" not in cfg.sub2: setexec(0xFFFFFFFF)
            a(f"buffer_load_dword v{vJ}, v{vT0}, {sr(qWO,4)}, s{sB} offen{cfg.pf_spol}")
            setexec(FULL); n += 1
        if "g" in cfg.pf_stream or "u" in cfg.pf_stream:
            a(f"""
            v_mul_u32_u24 v{vT0}, 52, v{vLane}
            v_lshrrev_b32 v{vT0}, 8, v{vT0}
            v_mul_u32_u24 v{vT1}, 5, v{vT0}
            v_sub_u32 v{vT1}, v{vLane}, v{vT1}
            v_mul_u32_u24 v{vT0}, 3584, v{vT0}
            v_lshl_add_u32 v{vT0}, v{vT1}, 7, v{vT0}
            s_mul_i32 s{sB}, s{sD}, {4*3584}
            s_mul_i32 s{sC}, s{sJ}, 448
            s_and_b32 s{sC}, s{sC}, 0xffffff80
            s_add_u32 s{sB}, s{sB}, s{sC}
            """)
            setexec((1 << 20) - 1)
            if "g" in cfg.pf_stream:
                a(f"buffer_load_dword v{vJ}, v{vT0}, {sr(qGT,4)}, s{sB} offen{cfg.pf_spol}"); n += 1
            if "u" in cfg.pf_stream:
                a(f"buffer_load_dword v{vJ}, v{vT0}, {sr(sUP,4)}, s{sB} offen{cfg.pf_spol}"); n += 1
            setexec(FULL)
        if "d" in cfg.pf_stream:
            a(f"""
            v_lshlrev_b32 v{vT0}, 7, v{vLane}
            s_min_u32 s{sB}, s{sD}, 111
            s_lshl_b32 s{sB}, s{sB}, 11
            s_mul_i32 s{sC}, s{sJ}, {224*1024}
            s_add_u32 s{sB}, s{sB}, s{sC}
            """)
            setexec(0xFFFF)
            a(f"buffer_load_dword v{vJ}, v{vT0}, {sr(sDN,4)}, s{sB} offen{cfg.pf_spol}")
            setexec(FULL); n += 1
        return n

    def page_off(t, dst):
        a(f"""
        s_add_u32 s{dst}, s{sW}, s{sRot}
        s_add_u32 s{dst}, s{dst}, {4*t}
        s_and_b32 s{dst}, s{dst}, 15
        s_lshl_b32 s{dst}, s{dst}, 12
        s_add_u32 s{dst}, s{dst}, s{sKV}
        """)
    def k_page(t):
        page_off(t, sD)
        a(f"s_lshl_b32 s{sC}, s{sW}, 14\ns_add_u32 s{sC}, s{sC}, {L_K + t*4096}\ns_mov_b32 m0, s{sC}\ns_nop 0")
        for ii in range(4):
            a(f"buffer_load_dwordx4 v{vKs+ii}, {sr(sKS,4)}, s{sD} offen offset:{ii*1024}{cfg.kv_pol} lds")
    nKpA = cfg.nKA // 4
    for t in range(cfg.nKb1): k_page(t)
    nPFe = 0
    if cfg.pf_stream and cfg.pf_early:
        srd(sVS, P, 0x400000)
        srd(sOUT, P + 10, 512 * 1792 * 2)
        srd(sUP, P + 12, 512 * 1792 * 2)
        srd(sDN, P + 14, 1792 * 512 * 2)
        nPFe = emit_wpf(sVS, sOUT, False)
    ts("start")
    if cfg.ts_issue: ts("issued")

    srd(sVS, P + 6, 0x8000000)
    srd(sUP, P + 12, 512 * 1792 * 2)
    srd(sDN, P + 14, 1792 * 512 * 2)
    srd(sOUT, P + 16, 2048)
    a(f"""
    s_cmp_lt_u32 s{sM}, 16
    s_cselect_b32 s{sW2}, s{P}, s{P+10}
    s_cselect_b32 s{sW2+1}, s{P+1}, s{P+11}
    s_mov_b32 s{sW2+2}, {512*1792*2}
    s_cselect_b32 s{sW2+2}, 0x400000, s{sW2+2}
    s_and_b32 s{sW2+1}, s{sW2+1}, 0xffff
    s_mov_b32 s{sW2+3}, 0x20000
    s_mov_b32 s{sBud}, {cfg.budget}
    s_getreg_b32 s{sXcc}, hwreg(HW_REG_XCC_ID, 0, 4)
    s_mov_b32 s{sMDIAG}, 0x00ff00ff
    s_mov_b32 s{sMDIAG+1}, 0xff00ff00
    s_mov_b32 s{sM4}, 0x000f000f
    s_mov_b32 s{sM4+1}, 0x000f000f
    s_mov_b32 s{sM2}, 0x00030003
    s_mov_b32 s{sM2+1}, 0x00030003
    s_mov_b32 s{sMN1}, 0x00020002
    s_mov_b32 s{sMN1+1}, 0x00020002
    s_mov_b32 s{sMEV}, 0x55555555
    s_mov_b32 s{sMEV+1}, 0x55555555
    s_mov_b32 s{sL}, 0
    s_mul_i32 s{sOcons}, s{sJ}, {O_J}
    s_lshl_b32 s{sB}, s{sW}, 12
    s_add_u32 s{sOcons}, s{sOcons}, s{sB}
    s_add_u32 s{sOcons}, s{sOcons}, {WS_O}
    """)
    for i in range(4): a(f"v_mov_b32 v{vOnes+i}, 0x3f803f80")
    for i in range(16): a(f"v_mov_b32 v{vQ+i}, 0")
    for i in range(8): a(f"v_mov_b32 v{vHop+i}, 0")
    a(f"v_mov_b32 v{vQ1a}, 0\nv_mov_b32 v{vQ1d}, 0\nv_mov_b32 v{vQ1d+1}, 0")
    h3 = vU; qh = vU + 1; ql = vU + 2
    a(f"""
    v_and_b32 v{h3}, 3, v{vR16}
    v_lshrrev_b32 v{qh}, 1, v{vQd}
    v_and_b32 v{ql}, 1, v{vQd}
    v_and_b32 v{vT0}, 7, v{vR16}
    v_lshlrev_b32 v{vT0}, 7, v{vT0}
    v_lshrrev_b32 v{vT1}, 3, v{vR16}
    v_lshl_add_u32 v{vT0}, v{vT1}, 6, v{vT0}
    v_lshl_add_u32 v{vaX}, v{vQd}, 4, v{vT0}
    v_lshrrev_b32 v{vT0}, 3, v{vLane}
    v_and_b32 v{vT1}, 2, v{vT0}
    v_and_b32 v{vT2}, 7, v{vLane}
    v_xor_b32 v{vT1}, v{vT1}, v{vT2}
    v_lshlrev_b32 v{vT1}, 4, v{vT1}
    v_lshl_add_u32 v{vT0}, v{vT0}, 7, v{vT1}
    s_lshl_b32 s{sB}, s{sW}, 12
    s_xor_b32 s{sC}, s{sB}, 0x2000
    s_add_u32 s{sC}, s{sC}, 16384
    s_lshr_b32 s{sA}, s{sXcc}, 2
    s_lshr_b32 s{sD}, s{sW}, 1
    s_cmp_eq_u32 s{sA}, s{sD}
    s_cselect_b32 s{sB}, s{sB}, s{sC}
    v_add_u32 v{vaXg}, s{sB}, v{vT0}
    v_and_b32 v{vT0}, 7, v{vR16}
    v_lshrrev_b32 v{vT1}, 3, v{vR16}
    v_lshl_add_u32 v{vT1}, v{vT1}, 2, v{vQd}
    v_and_b32 v{vT2}, 2, v{vT0}
    v_xor_b32 v{vT1}, v{vT1}, v{vT2}
    v_lshlrev_b32 v{vT1}, 4, v{vT1}
    v_lshl_add_u32 v{vT0}, v{vT0}, 7, v{vT1}
    s_lshl_b32 s{sXI}, s{sW}, 12
    s_add_u32 s{sXI}, s{sXI}, {L_XI}
    v_add_u32 v{vaXr}, s{sXI}, v{vT0}
    v_lshlrev_b32 v{vaO0}, 4, v{vLane}
    v_add_u32 v{vaO1}, 16384, v{vaO0}
    v_lshl_add_u32 v{vT0}, v{vQd}, 2, v{vR16}
    v_and_b32 v{vT0}, 15, v{vT0}
    v_lshlrev_b32 v{vT0}, 4, v{vT0}
    s_mul_i32 s{sB}, s{sW}, 3840
    s_sub_u32 s{sB}, {O_STATS}, s{sB}
    v_add_u32 v{vaS0}, s{sB}, v{vT0}
    v_add_u32 v{vaS1}, 1024, v{vaS0}
    v_lshlrev_b32 v{vT0}, 6, v{vQd}
    v_lshl_add_u32 v{vaQ2}, v{h3}, 4, v{vT0}
    v_lshlrev_b32 v{vT0}, 10, v{ql}
    v_lshrrev_b32 v{vT1}, 3, v{vR16}
    v_lshl_add_u32 v{vT0}, v{vT1}, 6, v{vT0}
    v_and_b32 v{vT1}, 7, v{vR16}
    v_lshl_add_u32 v{vaStQ}, v{vT1}, 1, v{vT0}
    v_lshlrev_b32 v{vT0}, 12, v{h3}
    v_lshl_add_u32 v{vT0}, v{vQd}, 10, v{vT0}
    v_bfe_u32 v{vT1}, v{vLane}, 2, 2
    v_lshl_add_u32 v{vaClrO}, v{vT1}, 8, v{vT0}
    v_and_b32 v{vT0}, 1, v{vR16}
    v_lshlrev_b32 v{vT0}, 5, v{vT0}
    v_lshl_add_u32 v{vT0}, v{qh}, 6, v{vT0}
    v_lshl_add_u32 v{vT0}, v{ql}, 4, v{vT0}
    s_lshl_b32 s{sB}, s{sW}, 7
    v_add_u32 v{vaH}, s{sB}, v{vT0}
    v_lshlrev_b32 v{vT0}, 6, v{vQd}
    v_lshl_add_u32 v{vT0}, v{h3}, 4, v{vT0}
    v_add_u32 v{vaPr}, {L_PBUF}, v{vT0}
    v_lshrrev_b32 v{vT1}, 2, v{vR16}
    v_lshl_add_u32 v{vT1}, v{vT1}, 9, v{vaPr}
    s_lshr_b32 s{sB}, s{sW}, 1
    s_lshl_b32 s{sB}, s{sB}, 8
    s_and_b32 s{sC}, s{sW}, 1
    s_lshl_b32 s{sC}, s{sC}, 3
    s_add_u32 s{sB}, s{sB}, s{sC}
    v_add_u32 v{vaPw}, s{sB}, v{vT1}
    v_lshlrev_b32 v{vT0}, 4, v{h3}
    v_add_u32 v{vaSm}, {L_SMAX}, v{vT0}
    s_lshl_b32 s{sB}, s{sW}, 2
    v_add_u32 v{vaSmW}, s{sB}, v{vaSm}
    v_lshlrev_b32 v{vT0}, 4, v{vLane}
    v_add_u32 v{vaRedW}, s{sB}, v{vT0}
    v_and_b32 v{vT1}, 1, v{vR16}
    v_lshl_add_u32 v{vT1}, v{qh}, 1, v{vT1}
    v_lshlrev_b32 v{vT1}, 4, v{vT1}
    v_add_u32 v{vaRedZ}, s{sB}, v{vT1}
    v_lshl_add_u32 v{vT0}, v{ql}, 5, v{vR16}
    v_lshlrev_b32 v{vaFinW}, 4, v{vT0}
    v_lshlrev_b32 v{vaFinZ}, 5, v{ql}
    v_lshlrev_b32 v{vT0}, 9, v{ql}
    v_add_u32 v{vaFinQZ}, 256, v{vT0}
    v_lshlrev_b32 v{vaFinO}, 4, v{vLane}
    v_lshlrev_b32 v{vT0}, 5, v{ql}
    v_lshl_add_u32 v{vaStH}, v{vR16}, 1, v{vT0}
    v_lshlrev_b32 v{vT0}, 6, v{ql}
    v_lshl_add_u32 v{vT0}, v{qh}, 5, v{vT0}
    v_lshl_add_u32 v{vaStX}, v{vR16}, 1, v{vT0}
    v_lshlrev_b32 v{vT0}, 12, v{vR16}
    v_lshl_add_u32 v{vT0}, v{vQd}, 8, v{vT0}
    s_lshl_b32 s{sB}, s{sW}, 10
    v_add_u32 v{vaStO}, s{sB}, v{vT0}
    s_lshr_b32 s{sB}, s{sM}, 4
    s_mul_i32 s{sB}, s{sB}, 15360
    s_sub_u32 s{sB}, {O_STATS}, s{sB}
    v_lshlrev_b32 v{vT0}, 8, v{vLane}
    v_add_u32 v{vaStS}, s{sB}, v{vT0}
    """)
    a(f"s_lshl_b32 s{sB}, s{sW}, 14\ns_add_u32 s{sB}, s{sB}, {L_K}")
    for c in range(4):
        a(f"""
        v_add_u32 v{vT0}, {4*c}, v{vQd}
        v_xor_b32 v{vT0}, v{vT0}, v{vR16}
        v_lshlrev_b32 v{vT0}, 4, v{vT0}
        v_lshl_add_u32 v{vT0}, v{vR16}, 8, v{vT0}
        v_add_u32 v{vKr+c}, s{sB}, v{vT0}
        """)
    for e in range(2):
        a(f"""
        v_add_u32 v{vT1}, {4*e}, v{vQd}
        v_lshrrev_b32 v{vT2}, 1, v{vR16}
        v_xor_b32 v{vT1}, v{vT1}, v{vT2}
        v_lshlrev_b32 v{vT1}, 1, v{vT1}
        v_and_b32 v{vT2}, 1, v{vR16}
        v_or_b32 v{vT1}, v{vT1}, v{vT2}
        v_lshlrev_b32 v{vT1}, 4, v{vT1}
        v_lshl_add_u32 v{vVs+e}, v{vQd}, 8, v{vT1}
        """)
    for nt in range(2):
        a(f"""
        v_lshrrev_b32 v{vT1}, 2, v{vR16}
        v_lshl_add_u32 v{vT0}, v{vQd}, 2, v{vT1}
        v_and_b32 v{vT2}, 7, v{vT0}
        s_lshl_b32 s{sB}, s{sW}, 1
        s_add_u32 s{sB}, s{sB}, {nt}
        v_xor_b32 v{vT2}, s{sB}, v{vT2}
        v_lshlrev_b32 v{vT2}, 5, v{vT2}
        v_lshl_add_u32 v{vT0}, v{vT0}, 8, v{vT2}
        v_lshl_add_u32 v{vT0}, v{h3}, 3, v{vT0}
        v_add_u32 v{vVr+nt}, {L_V}, v{vT0}
        """)
    for i in range(16): a(f"v_mov_b32 v{XA+i}, 0")
    if cfg.w_inter:
        a(f"""
        s_cmp_lt_u32 s{sM}, 16
        s_cbranch_scc0 L_wsB
        v_lshrrev_b32 v{vT0}, 2, v{vLane}
        v_lshlrev_b32 v{vT0}, 10, v{vT0}
        v_and_b32 v{vT1}, 3, v{vLane}
        v_lshl_add_u32 v{vWs}, v{vT1}, 4, v{vT0}
        s_lshl_b32 s{sWb}, s{sJ}, 19
        s_lshl_b32 s{sC}, s{sW}, 17
        s_add_u32 s{sWb}, s{sWb}, s{sC}
        s_lshl_b32 s{sC}, s{sIdx}, 6
        s_add_u32 s{sWb}, s{sWb}, s{sC}
        s_mov_b32 s{sWst}, 16384
        s_mov_b32 s{sUP}, s{sW2}
        s_mov_b32 s{sUP+1}, s{sW2+1}
        s_mov_b32 s{sUP+2}, s{sW2+2}
        s_branch L_wsD
        L_wsB:
        v_lshrrev_b32 v{vT0}, 1, v{vLane}
        v_mul_u32_u24 v{vT0}, 3584, v{vT0}
        v_and_b32 v{vT1}, 1, v{vLane}
        v_lshl_add_u32 v{vWs}, v{vT1}, 4, v{vT0}
        s_mul_i32 s{sWb}, s{sW}, {128*3584}
        s_mul_i32 s{sC}, s{sJ}, 448
        s_add_u32 s{sWb}, s{sWb}, s{sC}
        s_lshl_b32 s{sC}, s{sIdx}, 5
        s_add_u32 s{sWb}, s{sWb}, s{sC}
        s_mov_b32 s{sWst}, {32*3584}
        L_wsD:
        """)
    rt_probe("setup")
    ts("setup")
    a(f"s_waitcnt vmcnt({4*cfg.nKb1 + nPFe})")
    ts("wq_landed")
    for t in range(cfg.nKb1, nKpA): k_page(t)

    def tr_base(dst, rowbytes, rowmul, sadd, const):
        sh = rowbytes.bit_length() - 1; rm = rowmul.bit_length() - 1
        a(f"""
        v_lshrrev_b32 v{vT1}, 2, v{vR16}
        v_lshl_add_u32 v{vT1}, v{vQd}, {rm}, v{vT1}
        v_lshlrev_b32 v{vT1}, {sh}, v{vT1}
        v_and_b32 v{vT2}, 3, v{vR16}
        v_lshl_add_u32 v{vT1}, v{vT2}, 3, v{vT1}
        v_add_u32 v{vT1}, s{sadd}, v{vT1}
        v_add_u32 v{dst}, {const}, v{vT1}
        """)

    def ln_stats(s1, s2, mean, rstd):
        a(f"""
        v_mul_f32 v{mean}, {f2u(1.0/512):#x}, v{s1}
        v_mul_f32 v{s2}, {f2u(1.0/512):#x}, v{s2}
        v_fma_f32 v{s2}, -v{mean}, v{mean}, v{s2}
        v_max_f32 v{s2}, 0, v{s2}
        v_add_f32 v{s2}, {f2u(1e-5):#x}, v{s2}
        v_rsq_f32 v{rstd}, v{s2}
        """)
    def sum4r(b):
        a(f"v_add_f32 v{b}, v{b}, v{b+1}\nv_add_f32 v{b+2}, v{b+2}, v{b+3}\nv_add_f32 v{b}, v{b}, v{b+2}")

    def stats_valu(z):
        L = [f"v_add_f32 v{z}, v{vAcc+8}, v{vAcc+9}", f"v_add_f32 v{vT3}, v{vAcc+10}, v{vAcc+11}", f"v_add_f32 v{z}, v{z}, v{vT3}",
             f"v_cndmask_b32 v{z}, 0, v{z}, s[{sMDIAG}:{sMDIAG+1}]"]
        for n in (8, 4, 2, 1):
            L.append(f"v_add_f32_dpp v{z}, v{z}, v{z} row_ror:{n} row_mask:0xf bank_mask:0xf")
        L += [f"v_add_f32 v{z+1}, v{vAcc+12}, v{vAcc+13}", f"v_add_f32 v{vT3}, v{vAcc+14}, v{vAcc+15}", f"v_add_f32 v{z+1}, v{z+1}, v{vT3}",
              f"v_cndmask_b32 v{z}, v{z+1}, v{z}, s[{sMN1}:{sMN1+1}]"]
        return L
    def stats_mf(X):
        return [mf(vAcc + 8, X + 4*u, X + 4*u, "0" if u == 0 else None) for u in range(4)] + \
               [mf(vAcc + 12, X + 4*u, vOnes, "0" if u == 0 else None) for u in range(4)]

    def q_core(X):
        M = stats_mf(X) + [mf(vAcc, X + 4*u, ar(aWq + 4*u, 4), "0" if u == 0 else None) for u in range(4)]
        interleave(M, stats_valu(vU), 8, 2)
        sum4(vU + 2, vAcc, vT3)
        a(f"""
        v_permlane16_swap_b32 v{vU+2}, v{vU}
        v_add_f32 v{vU}, v{vU}, v{vU+2}
        ds_write_b32 v{vaRedW}, v{vU} offset:{R_Q}
        s_waitcnt lgkmcnt(0)
        s_barrier
        """)
    def q_final(first):
        lab = a.label("qf")
        a(f"s_cmp_eq_u32 s{sW}, 0\ns_cbranch_scc0 {lab}")
        setexec(0xFFFFFFFF)
        a(f"""
        ds_read_b128 {vr(vU,4)}, v{vaFinW} offset:{R_Q}
        ds_read_b128 {vr(vU+4,4)}, v{vaFinQZ} offset:{R_Q}
        ds_read_b128 {vr(vU+8,4)}, v{vaFinQZ} offset:{R_Q+16}
        """)
        if first:
            a(f"ds_read_b128 {vr(vU+12,4)}, v{vaFinW} offset:{R_COL}")
        a("s_waitcnt lgkmcnt(0)")
        if first:
            sum4r(vU + 12); a(f"v_mov_b32 v{vCs}, v{vU+12}")
        sum4r(vU + 4); sum4r(vU + 8); sum4r(vU)
        ln_stats(vU + 4, vU + 8, vU + 5, vU + 6)
        a(f"""
        v_fma_f32 v{vU}, -v{vU+5}, v{vCs}, v{vU}
        v_mul_f32 v{vU}, v{vU}, v{vU+6}
        """)
        dpp("v_mov_b32", vU + 1, vU, None, "quad_perm:[1,0,3,2]")
        a(f"v_cvt_pk_bf16_f32 v{vU+2}, v{vU}, v{vU+1}")
        if first:
            a(f"""
            v_mov_b32 v{vQ1d}, v{vU+2}
            v_mov_b32 v{vQ1d+1}, s{sTX}
            s_lshl_b32 s{sB}, s{sJ}, 12
            s_lshl_b32 s{sC}, s{sM}, 7
            s_add_u32 s{sB}, s{sB}, s{sC}
            s_add_u32 s{sB}, s{sB}, {WS_Q1}
            v_lshlrev_b32 v{vT0}, 1, v{vaStH}
            v_add_u32 v{vQ1a}, s{sB}, v{vT0}
            """)
            setexec(0x55555555)
            a(f"buffer_store_dwordx2 {vr(vQ1d,2)}, v{vQ1a}, {sr(sWS,4)}, 0 offen" + (" sc1" if cfg.force_global else ""))
        else:
            a(f"v_min_u32 v{vU+2}, 0xfffffffe, v{vU+2}")
            setexec(0x55555555)
            store_local(f"buffer_store_dword v{vU+2}, v{vaStQ}, {sr(sWS,4)}, s{sQ2w} offen")
        setexec(FULL)
        a(f"{lab}:")

    def s_qk_max():
        for c in range(4):
            for t in range(4):
                mfma(vS + 4*t, ar(aK + 16*t + 4*c, 4), vQ + 4*c, "0" if c == 0 else None)
        for t in range(1, 4):
            for r in range(4):
                dpp("v_mov_b32", vS + r, vS + 4*t + r, None, f"row_shr:{4*t}", bm=f"0x{1<<t:x}")
        a(f"v_max3_f32 v{vU}, v{vS}, v{vS+1}, v{vS+2}\nv_max_f32 v{vU}, v{vU}, v{vS+3}")
        row_reduce("v_max_f32", vU, (8, 4))
        xquad_reduce("v_max_f32", vU, vT0)
        setexec(0xF)
        a(f"ds_write_b32 v{vaSmW}, v{vU}")
        setexec(FULL)
        a("s_waitcnt lgkmcnt(0)\ns_barrier")
    def s_exp_p():
        a(f"""
        ds_read_b128 {vr(vU+4,4)}, v{vaSm}
        s_mov_b32 s{sB}, {f2u(C_SCALE):#x}
        s_waitcnt lgkmcnt(0)
        v_max3_f32 v{vU}, v{vU+4}, v{vU+5}, v{vU+6}
        v_max_f32 v{vU}, v{vU}, v{vU+7}
        v_mul_f32 v{vMc}, s{sB}, v{vU}
        """)
        for i in range(4): a(f"v_fma_f32 v{vS+i}, v{vS+i}, s{sB}, -v{vMc}")
        for i in range(4): a(f"v_exp_f32 v{vS+i}, v{vS+i}")
        a(f"""
        v_cvt_pk_bf16_f32 v{vU+2}, v{vS}, v{vS+1}
        v_cvt_pk_bf16_f32 v{vU+3}, v{vS+2}, v{vS+3}
        ds_write_b64 v{vaPw}, {vr(vU+2,2)}
        v_add_f32 v{vU}, v{vS}, v{vS+1}
        v_add_f32 v{vU+1}, v{vS+2}, v{vS+3}
        v_add_f32 v{vU}, v{vU}, v{vU+1}
        """)
        row_reduce("v_add_f32", vU, (8, 4))
        xquad_reduce("v_add_f32", vU, vT0)
        setexec(0xF)
        a(f"ds_write_b32 v{vaSmW}, v{vU} offset:{L_LSUM-L_SMAX}")
        setexec(FULL)
        a("s_waitcnt lgkmcnt(0)\ns_barrier")
        for blk in range(8):
            a(f"ds_read_b128 {vr(vP+4*blk,4)}, v{vaPr} offset:{blk*256}")
    def s_stats_prep():
        lab = a.label("st")
        a(f"s_cmp_eq_u32 s{sW}, 3\ns_cbranch_scc0 {lab}")
        a(f"""
        ds_read_b128 {vr(vU+4,4)}, v{vaSm} offset:{L_LSUM-L_SMAX}
        s_add_u32 s{sB}, s{sT}, s{sL}
        s_add_u32 s{sB}, s{sB}, 1
        v_mov_b32 v{vMc+2}, s{sB}
        s_waitcnt lgkmcnt(0)
        """)
        sum4r(vU + 4)
        a(f"v_mov_b32 v{vMc+1}, v{vU+4}")
        a(f"{lab}:")
    def s_stats_store(wait):
        lab = a.label("ss")
        a(f"s_cmp_eq_u32 s{sW}, 3\ns_cbranch_scc0 {lab}")
        if wait is not None: a(f"s_waitcnt vmcnt({wait})")
        setexec(0xF)
        store_local(f"buffer_store_dwordx4 {vr(vMc,4)}, v{vaStS}, {sr(sWS,4)}, s{sOown} offen")
        setexec(FULL)
        a(f"{lab}:")
    accO = vAcc
    def v_tr(blk):
        t, p = blk >> 1, blk & 1
        for nt in range(2):
            a(f"ds_read_b64_tr_b16 {ar(aV+8*blk+4*nt,2)}, v{vVr+nt} offset:{(4*t+2*p)*4096}")
            a(f"ds_read_b64_tr_b16 {ar(aV+8*blk+4*nt+2,2)}, v{vVr+nt} offset:{(4*t+2*p+1)*4096}")
    def pv(blks, first):
        for blk in blks:
            for nt in range(2):
                mfma(accO + 4*nt, ar(aV + 8*blk + 4*nt, 4), vP + 4*blk, "0" if (first and blk == blks[0]) else None)
    def s_out():
        for i in range(4):
            a(f"v_cvt_pk_bf16_f32 v{vU+i}, v{accO+2*i}, v{accO+2*i+1}")
        for i in range(4):
            a(f"v_min_u32 v{vU+i}, 0xfffffffe, v{vU+i}")
        setexec(EM4)
        store_local(f"buffer_store_dwordx4 {vr(vU,4)}, v{vaStO}, {sr(sWS,4)}, s{sOown} offen")
        setexec(FULL)

    a(f"s_lshl_b32 s{sB}, s{sW}, 12")
    tr_base(vT0, 32, 8, sB, L_WQ)
    for u in range(4):
        a(f"ds_read_b64_tr_b16 {ar(aWq+4*u,2)}, v{vT0} offset:{u*1024}")
        a(f"ds_read_b64_tr_b16 {ar(aWq+4*u+2,2)}, v{vT0} offset:{u*1024+128}")
    a(f"""
    v_lshrrev_b32 v{vT0}, 3, v{vR16}
    v_lshlrev_b32 v{vT0}, 10, v{vT0}
    v_lshl_add_u32 v{vT0}, v{vQd}, 4, v{vT0}
    s_lshl_b32 s{sB}, s{sW}, 8
    v_add_u32 v{vT0}, s{sB}, v{vT0}
    s_barrier
    """)
    setexec(0x0101010101010101)
    for u in range(4):
        a(f"ds_read_b128 {vr(XA+4*u,4)}, v{vT0} offset:{L_X0+u*64}")
    setexec(FULL)
    a(f"""
    s_waitcnt lgkmcnt(0)
    s_add_u32 s{sT}, s{sT}, 0x9e3779b0
    s_and_b32 s{sT}, s{sT}, 0xfffffff0
    s_or_b32 s{sTX}, s{sT}, s{sXcc}
    """)
    for u in range(4): mfma(vS, vOnes, ar(aWq + 4*u, 4), "0" if u == 0 else None)
    a(f"ds_write_b32 v{vaRedW}, v{vS} offset:{R_COL}")
    q_core(XA)
    q_final(True)
    a("s_barrier")
    rt_probe("q1_pub")
    ts("q1_pub")

    def v_group(t):
        page_off(t, sD)
        a(f"s_lshl_b32 s{sC}, s{sW}, 12\ns_add_u32 s{sC}, s{sC}, {L_V + t*16384}\ns_mov_b32 m0, s{sC}\ns_nop 0")
        for ii in range(4):
            a(f"buffer_load_dwordx4 v{vVs+(ii&1)}, {sr(sVS,4)}, s{sD} offen offset:{ii*1024}{cfg.kv_pol} lds")
    def pace(): a(f"s_waitcnt vmcnt({cfg.pace})")
    def w_part(part, lo, hi):
        if not cfg.w_inter: return
        lab = a.label("wp")
        lim = 30
        if (part == 0 and "g" not in cfg.w_interB) or (part == 1 and "u" not in cfg.w_interB): lim = 16
        a(f"s_cmp_ge_u32 s{sM}, {lim}\ns_cbranch_scc1 {lab}")
        for u in range(lo, hi):
            if part == 0:
                a(f"s_mul_i32 s{sB}, s{sWst}, {u}\ns_add_u32 s{sB}, s{sB}, s{sWb}")
                a(f"s_lshl_b32 s{sC}, s{sW}, 12\ns_add_u32 s{sC}, s{sC}, {L_WQ + u*1024}")
            else:
                a(f"s_cmp_lt_u32 s{sM}, 16\ns_cselect_b32 s{sB}, {4+u}, {u}\ns_mul_i32 s{sB}, s{sB}, s{sWst}\ns_add_u32 s{sB}, s{sB}, s{sWb}")
                a(f"s_lshl_b32 s{sC}, s{sW}, 14\ns_add_u32 s{sC}, s{sC}, {L_K + u*1024}")
            a(f"s_mov_b32 m0, s{sC}\ns_nop 0")
            a(f"buffer_load_dwordx4 v{vWs}, {sr(sW2 if part == 0 else sUP,4)}, s{sB} offen{SLN} lds")
        a(f"{lab}:")
    for t in range(nKpA, 4):
        pace()
        if t == 3: w_part(0, 0, 4)
        k_page(t)
    a(f"""
    v_lshrrev_b32 v{vT0}, 2, v{vLane}
    v_lshlrev_b32 v{vT0}, 7, v{vT0}
    v_and_b32 v{vT1}, 3, v{vLane}
    v_lshl_add_u32 v{vKs}, v{vT1}, 4, v{vT0}        ; (vKs is free once K is issued)
    s_lshl_b32 s{sA}, s{sJ}, 12
    s_lshr_b32 s{sB}, s{sM}, 4
    s_lshl_b32 s{sB}, s{sB}, 6
    s_add_u32 s{sA}, s{sA}, s{sB}
    s_add_u32 s{sA}, s{sA}, {WS_Q1}
    v_and_b32 v{vT0}, 3, v{vR16}
    v_lshlrev_b32 v{vT0}, 9, v{vT0}
    v_lshrrev_b32 v{vT1}, 1, v{vQd}
    v_lshl_add_u32 v{vT0}, v{vT1}, 6, v{vT0}
    v_and_b32 v{vT1}, 1, v{vQd}
    v_lshl_add_u32 v{vKs+1}, v{vT1}, 5, v{vT0}
    v_lshlrev_b32 v{vKs+2}, 5, v{vLane}
    """)
    def q1_dma(img):
        a(f"""
        s_mov_b32 m0, {L_QG + img*2048}
        s_add_u32 s{sB}, s{sA}, 2048
        buffer_load_dwordx4 v{vKs}, {sr(sWS,4)}, s{sA} offen sc1 lds
        s_mov_b32 m0, {L_QG + img*2048 + 1024}
        s_nop 0
        buffer_load_dwordx4 v{vKs}, {sr(sWS,4)}, s{sB} offen sc1 lds
        """)
    def w0(fn):
        lab = a.label("w0")
        a(f"s_cmp_eq_u32 s{sW}, 0\ns_cbranch_scc0 {lab}")
        fn()
        a(f"{lab}:")
    def q1_dup():
        setexec(0x55555555)
        a(f"buffer_store_dwordx2 {vr(vQ1d,2)}, v{vQ1a}, {sr(sWS,4)}, 0 offen sc1")
        setexec(FULL)
    g.q1_dup = lambda: w0(q1_dup)
    vG = vA
    def q1_tags(img):
        a(f"""
        ds_read_b128 {vr(vG,4)}, v{vKs+2} offset:{L_QG + img*2048}
        ds_read_b128 {vr(vG+4,4)}, v{vKs+2} offset:{L_QG + img*2048 + 16}
        s_waitcnt lgkmcnt(0)
        v_xor_b32 v{vT1}, s{sTX}, v{vG+1}
        v_xor_b32 v{vT2}, s{sTX}, v{vG+3}
        v_xor_b32 v{vT3}, s{sTX}, v{vG+5}
        v_xor_b32 v{vT0}, s{sTX}, v{vG+7}
        v_or3_b32 v{vT1}, v{vT1}, v{vT2}, v{vT3}
        v_or_b32 v{vT1}, v{vT1}, v{vT0}
        v_cmp_lt_u32 vcc, 15, v{vT1}
        """)
    def early_tail():
        lab = a.label("c0")
        a(f"""
        s_cmp_eq_u32 s{sW}, 3
        s_cbranch_scc0 {lab}
        v_mov_b32 v{vU+8}, -1
        v_mov_b32 v{vU+9}, -1
        v_mov_b32 v{vU+10}, -1
        v_mov_b32 v{vU+11}, -1
        """)
        store_local(f"buffer_store_dwordx4 {vr(vU+8,4)}, v{vaClrO}, {sr(sWS,4)}, s{sOown} offen")
        a(f"{lab}:")
        if cfg.warm:
            lab = a.label("ws")
            a(f"s_cmp_lt_u32 s{sM}, 16\ns_cbranch_scc0 {lab}")
            a(f"buffer_load_dword v{vJ}, v{vaS0}, {sr(sWS,4)}, s{sOcons} offen sc1")
            a(f"buffer_load_dword v{vJ}, v{vaS1}, {sr(sWS,4)}, s{sOcons} offen sc1")
            a(f"{lab}:")
        v_group(3)
    g.early_tail = early_tail
    def locality():
        a(f"""
        v_cmp_ne_u32 vcc, 0, v{vT1}
        s_cmp_eq_u64 vcc, 0
        s_cselect_b32 s{sLocal}, 1, 0
        """)
    if cfg.g_early:
        assert not cfg.w_inter and not cfg.v3_early and cfg.pf_pos in (None, 2)
        a(f"s_mov_b32 s{sEarly}, 0")
        w0(lambda: q1_dma(2))
    pace()
    if cfg.pf_stream and cfg.pf_pos == 0: emit_wpf(sKS2, sWQ, True)
    v_group(0)
    a("s_waitcnt vmcnt(4)")
    for t in range(4):
        for c in range(4):
            a(f"ds_read_b128 {ar(aK+16*t+4*c,4)}, v{vKr+c} offset:{t*4096}")
    ts("k_landed")
    if cfg.g_early:
        a("s_barrier")
        q1_tags(2)
        a("s_cbranch_vccnz L_noearly")
        locality()
        a(f"s_mov_b32 s{sEarly}, 1")
        v_group(1)
        if cfg.gE_mode >= 1:
            if cfg.pf_stream and cfg.pf_pos == 2: emit_wpf(sKS, sWQ, True)
            v_group(2)
        if cfg.gE_mode >= 2:
            g.early_tail()
        a(f"s_mov_b32 s{sC}, {L_QG + 2*2048}\ns_branch L_q1ok2\nL_noearly:")
        cnt("gEfail")
    w0(lambda: q1_dma(0))
    if cfg.pf_stream and cfg.pf_pos == 1: emit_wpf(sKS, sWQ, True)
    v_group(1)
    a("s_waitcnt vmcnt(4)")
    ts("v0_landed")
    if cfg.pf_stream and cfg.pf_pos == 2: emit_wpf(sKS, sWQ, True)
    if cfg.w_inter:
        a("s_waitcnt lgkmcnt(0)")
        w_part(1, 0, 2)
    def warm_stats0():
        if cfg.warm:
            lab = a.label("ws")
            a(f"s_cmp_lt_u32 s{sM}, 16\ns_cbranch_scc0 {lab}")
            a(f"buffer_load_dword v{vJ}, v{vaS0}, {sr(sWS,4)}, s{sOcons} offen sc1")
            a(f"buffer_load_dword v{vJ}, v{vaS1}, {sr(sWS,4)}, s{sOcons} offen sc1")
            a(f"{lab}:")
    if cfg.v3_early: warm_stats0()
    v_group(2)
    if cfg.v3_early:
        assert not cfg.w_inter
        v_group(3)
    def _o0():
        lab = a.label("c0")
        a(f"""
        s_cmp_eq_u32 s{sW}, 3
        s_cbranch_scc0 {lab}
        v_mov_b32 v{vU+8}, -1
        v_mov_b32 v{vU+9}, -1
        v_mov_b32 v{vU+10}, -1
        v_mov_b32 v{vU+11}, -1
        """)
        store_local(f"buffer_store_dwordx4 {vr(vU+8,4)}, v{vaClrO}, {sr(sWS,4)}, s{sOown} offen")
        a(f"{lab}:")
    g.o0_clear_hook = _o0
    a("s_barrier")
    q1_tags(0)
    a(f"s_mov_b32 s{sC}, {L_QG}\ns_cbranch_vccz L_q1ok")
    cnt("g0fail")
    w0(lambda: (q1_dma(1), a("s_waitcnt vmcnt(0)")))
    a("s_barrier")
    q1_tags(1)
    a(f"s_mov_b32 s{sC}, {L_QG + 2048}\ns_cbranch_vccz L_q1ok")
    a("L_q1retry:")
    cnt("g1fail")
    a(f"s_sub_u32 s{sBud}, s{sBud}, 1\ns_cbranch_scc1 L_abort\ns_barrier")
    w0(lambda: (q1_dup(), q1_dma(0), a("s_waitcnt vmcnt(0)")))
    a("s_barrier")
    q1_tags(0)
    a(f"s_mov_b32 s{sC}, {L_QG}\ns_cbranch_vccnz L_q1retry")
    a("L_q1ok:")
    locality()
    a("L_q1ok2:")
    a(f"v_add_u32 v{vT0}, s{sC}, v{vKs+1}")
    if cfg.v3_early: g.o0_clear_hook()
    setexec(EM4)
    for c in range(4):
        a(f"ds_read2_b32 {vr(vQ+4*c,2)}, v{vT0} offset0:{c*32} offset1:{c*32+2}")
        a(f"ds_read2_b32 {vr(vQ+4*c+2,2)}, v{vT0} offset0:{c*32+4} offset1:{c*32+6}")
    setexec(FULL)
    lab = a.label("nl")
    a(f"s_cmp_eq_u32 s{sLocal}, 0\ns_cbranch_scc0 {lab}")
    g.q1_dup()
    a(f"{lab}:")
    a("s_waitcnt lgkmcnt(0)")
    rt_probe("q1_got")
    ts("q1_got")
    s_qk_max()
    ts("s1_max")
    def o0_clear():
        lab = a.label("c0")
        a(f"""
        s_cmp_eq_u32 s{sW}, 3
        s_cbranch_scc0 {lab}
        v_mov_b32 v{vU+8}, -1
        v_mov_b32 v{vU+9}, -1
        v_mov_b32 v{vU+10}, -1
        v_mov_b32 v{vU+11}, -1
        """)
        store_local(f"buffer_store_dwordx4 {vr(vU+8,4)}, v{vaClrO}, {sr(sWS,4)}, s{sOown} offen")
        a(f"{lab}:")
    if cfg.g_early and cfg.gE_mode == 1:
        a("s_waitcnt vmcnt(4)")
        early_tail()
    elif cfg.g_early:
        lE = a.label("mE"); lD = a.label("mD")
        a(f"s_cmp_eq_u32 s{sEarly}, 1\ns_cbranch_scc1 {lE}")
        a("s_waitcnt vmcnt(4)")
        early_tail()
        a(f"s_branch {lD}\n{lE}:")
        if cfg.gE_mode == 0:
            a("s_waitcnt vmcnt(4)")
            o0_clear()
            warm_stats0()
            if cfg.pf_stream and cfg.pf_pos == 2: emit_wpf(sKS, sWQ, True)
            v_group(2)
            v_group(3)
        a("s_waitcnt vmcnt(8)")
        a(f"{lD}:")
    elif not cfg.v3_early:
        a("s_waitcnt vmcnt(4)")
        o0_clear()
        warm_stats0()
        w_part(1, 2, 4)
        v_group(3)
    else:
        a("s_waitcnt vmcnt(8)")
    nPF = emit_wpf(sKS, sWQ, True) if (cfg.pf_stream and not cfg.pf_early and cfg.pf_pos is None) else 0

    def s1_tail(nW=0, maybe_none=False):
        def wait_v(base):
            if nW and maybe_none:
                l1 = a.label("wv"); l2 = a.label("wv")
                a(f"s_cmp_ge_u32 s{sIdx}, 14\ns_cbranch_scc1 {l1}\ns_waitcnt vmcnt({base + nW})\ns_branch {l2}\n{l1}:\ns_waitcnt vmcnt({base})\n{l2}:")
            else:
                a(f"s_waitcnt vmcnt({base + nW})")
        s_exp_p()
        s_stats_prep()
        blks = [0, 1, 2, 3]
        for blk in blks: v_tr(blk)
        a("s_waitcnt lgkmcnt(0)")
        pv(blks, True)
        for t in (2, 3):
            if t == 3 and cfg.v3_early:
                l3 = a.label("v3"); l4 = a.label("v4")
                a(f"s_cmp_eq_u32 s{sW}, 3\ns_cbranch_scc1 {l3}\ns_waitcnt vmcnt({nW})\ns_branch {l4}\n{l3}:\ns_waitcnt vmcnt({nW + 1})\n{l4}:")
            else:
                wait_v(4*(3-t))
            a("s_barrier")
            if t == 3: ts("v_landed")
            blks = [2*t, 2*t + 1]
            for blk in blks: v_tr(blk)
            a("s_waitcnt lgkmcnt(0)")
            pv(blks, False)
        s_out()
        s_stats_store(1 if cfg.v3_early else None)
        lab = a.label("c1")
        a(f"""
        s_cmp_eq_u32 s{sW}, 0
        s_cbranch_scc0 {lab}
        v_mov_b32 v{vU+8}, -1
        v_mov_b32 v{vU+9}, -1
        v_mov_b32 v{vU+10}, -1
        v_mov_b32 v{vU+11}, -1
        s_add_u32 s{sB}, s{sOown}, {O_L}
        """)
        store_local(f"buffer_store_dwordx4 {vr(vU+8,4)}, v{vaClrO}, {sr(sWS,4)}, s{sB} offen")
        q1_dup()
        a(f"{lab}:")
        rt_probe("s1_pub")
        ts("s1_pub")

    def x_poll(sbase, dst, sleep):
        l = a.label("xp"); ok = a.label("xok")
        if cfg.sleep_x0: a(f"s_sleep {cfg.sleep_x0}")
        a(f"s_mov_b32 m0, s{sXI}")
        a(f"{l}:")
        cnt("n_x")
        for u in range(4):
            a(f"buffer_load_dwordx4 v{vaXg}, {sr(sWS,4)}, s{sbase} offen offset:{u*1024} sc1 lds")
        for u in range(4):
            a(f"s_waitcnt vmcnt({3-u})")
            a(f"ds_read_b128 {vr(dst+4*u,4)}, v{vaXr} offset:{u*1024}")
        a(f"s_waitcnt lgkmcnt(3)\nv_max3_u32 v{vT0}, v{dst}, v{dst+1}, v{dst+2}")
        a(f"s_waitcnt lgkmcnt(2)\nv_max3_u32 v{vT0}, v{vT0}, v{dst+3}, v{dst+4}\nv_max3_u32 v{vT0}, v{vT0}, v{dst+5}, v{dst+6}")
        a(f"s_waitcnt lgkmcnt(1)\nv_max3_u32 v{vT0}, v{vT0}, v{dst+7}, v{dst+8}\nv_max3_u32 v{vT0}, v{vT0}, v{dst+9}, v{dst+10}")
        a(f"s_waitcnt lgkmcnt(0)\nv_max3_u32 v{vT0}, v{vT0}, v{dst+11}, v{dst+12}\nv_max3_u32 v{vT0}, v{vT0}, v{dst+13}, v{dst+14}\nv_max_u32 v{vT0}, v{vT0}, v{dst+15}")
        a(f"v_cmp_eq_u32 vcc, -1, v{vT0}\ns_cbranch_vccz {ok}")
        spin_fail(l, sleep)
        a(f"{ok}:")

    def warm_q2():
        if not cfg.warm: return
        a(f"s_lshl_b32 s{sB}, s{sJ}, 11\ns_add_u32 s{sB}, s{sB}, {WS_Q2}\nv_lshlrev_b32 v{vT0}, 7, v{vLane}")
        setexec(0xFFFF)
        a(f"buffer_load_dword v{vJ}, v{vT0}, {sr(sWS,4)}, s{sB} offen sc1")
        setexec(FULL)
    def warm_o(dl, data=True):
        if not cfg.warm: return
        a(f"s_add_u32 s{sB}, s{sOcons}, {dl*O_L}")
        if data:
            a(f"""
            v_and_b32 v{vT0}, 31, v{vLane}
            v_lshlrev_b32 v{vT0}, 7, v{vT0}
            v_lshrrev_b32 v{vT1}, 5, v{vLane}
            v_lshl_add_u32 v{vT0}, v{vT1}, 14, v{vT0}
            buffer_load_dword v{vJ}, v{vT0}, {sr(sWS,4)}, s{sB} offen sc1
            """)
        a(f"buffer_load_dword v{vJ}, v{vaS0}, {sr(sWS,4)}, s{sB} offen sc1")
        a(f"buffer_load_dword v{vJ}, v{vaS1}, {sr(sWS,4)}, s{sB} offen sc1")

    def tag_check_all():
        l = a.label("tc"); ok = a.label("tcok")
        a(f"""
        s_lshl_b32 s{sB}, s{sW}, 13
        s_add_u32 s{sB}, s{sB}, {WS_Q1+4}
        v_lshlrev_b32 v{vT0}, 7, v{vLane}
        {l}:
        buffer_load_dword v{vT1}, v{vT0}, {sr(sWS,4)}, s{sB} offen sc1
        s_waitcnt vmcnt(0)
        v_xor_b32 v{vT1}, s{sT}, v{vT1}
        v_cmp_lt_u32 vcc, 15, v{vT1}
        s_cbranch_vccz {ok}
        """)
        spin_fail(l, 2)
        a(f"{ok}:")

    def line_final(red):
        if cfg.doorbell and cfg.db_early:
            a(f"v_mov_b32 v{vT0}, 0\nv_mov_b32 v{vT1}, s{sDBtag}\ns_mov_b64 exec, 1")
            store_local(f"buffer_store_dword v{vT1}, v{vT0}, {sr(sWS,4)}, s{sDBw} offen")
            a("s_mov_b64 exec, -1")
        a(f"""
        ds_read_b128 {vr(vU,4)}, v{vaFinO} offset:{red}
        v_mov_b32 v{vT0}, 0
        v_mov_b32 v{vT1}, s{sDBtag}
        s_waitcnt lgkmcnt(0)
        v_add_f32 v{vU}, v{vU}, v{vU+1}
        v_add_f32 v{vU+2}, v{vU+2}, v{vU+3}
        v_add_f32 v{vU}, v{vU}, v{vResF}
        v_add_f32 v{vResF}, v{vU}, v{vU+2}
        """)
        dpp("v_mov_b32", vU + 1, vResF, None, "quad_perm:[1,0,3,2]")
        a(f"v_cvt_pk_bf16_f32 v{vU}, v{vResF}, v{vU+1}\nv_min_u32 v{vU}, 0xfffffffe, v{vU}")
        if cfg.doorbell and not cfg.db_early:
            a("s_mov_b64 exec, 1")
            store_local(f"buffer_store_dword v{vT1}, v{vT0}, {sr(sWS,4)}, s{sDBw} offen")
        a(f"s_xor_b32 s{sB}, s{sXw}, 0x2000\ns_add_u32 s{sB}, s{sB}, 16384")
        setexec(EMEV)
        a(f"buffer_store_dword v{vU}, v{vaStX}, {sr(sWS,4)}, s{sXw} offen sc1")
        a(f"buffer_store_dword v{vU}, v{vaStX}, {sr(sWS,4)}, s{sB} offen sc1")
        setexec(FULL)
    def advance_hop():
        a(f"s_add_u32 s{sXw}, s{sXw}, {X_HOP}\ns_add_u32 s{sDBw}, s{sDBw}, 1024\ns_add_u32 s{sDBtag}, s{sDBtag}, 1")

    def db_setup(hop_w, hop_r):
        a(f"""
        s_lshl_b32 s{sDBr}, s{sJ}, 7
        s_add_u32 s{sDBr}, s{sDBr}, {WS_DB}
        s_lshl_b32 s{sDBw}, s{sIdx}, 2
        s_add_u32 s{sDBw}, s{sDBw}, s{sDBr}
        s_add_u32 s{sDBw}, s{sDBw}, {hop_w*1024}
        s_add_u32 s{sDBtag}, s{sT}, {8+hop_w}
        """)
    def db_wait(hop_off_s, tag_add_s=None, const_hop=None):
        if not cfg.doorbell: return
        l = a.label("db"); ok = a.label("dbok")
        if const_hop is not None:
            a(f"s_add_u32 s{sA}, s{sDBr}, {const_hop*1024}\ns_add_u32 s{sC}, s{sT}, {8+const_hop}")
        else:
            a(f"s_lshl_b32 s{sA}, s{sL}, 11\ns_add_u32 s{sA}, s{sA}, s{sDBr}\ns_add_u32 s{sA}, s{sA}, {hop_off_s*1024}")
            a(f"s_lshl_b32 s{sC}, s{sL}, 1\ns_add_u32 s{sC}, s{sC}, s{sT}\ns_add_u32 s{sC}, s{sC}, {8+hop_off_s}")
        a(f"v_lshlrev_b32 v{vT0}, 2, v{vLane}")
        setexec(0xFFFF)
        if cfg.db_pipe:
            a(f"""
            buffer_load_dword v{vT1}, v{vT0}, {sr(sWS,4)}, s{sA} offen sc1
            s_nop 15
            s_nop 11
            buffer_load_dword v{vT2}, v{vT0}, {sr(sWS,4)}, s{sA} offen sc1
            {l}:
            s_waitcnt vmcnt(1)
            v_cmp_ne_u32 vcc, s{sC}, v{vT1}
            s_cbranch_vccz {ok}
            buffer_load_dword v{vT1}, v{vT0}, {sr(sWS,4)}, s{sA} offen sc1
            s_waitcnt vmcnt(1)
            v_cmp_ne_u32 vcc, s{sC}, v{vT2}
            s_cbranch_vccz {ok}
            buffer_load_dword v{vT2}, v{vT0}, {sr(sWS,4)}, s{sA} offen sc1
            """)
        else:
            a(f"""
            {l}:
            buffer_load_dword v{vT1}, v{vT0}, {sr(sWS,4)}, s{sA} offen sc1
            s_waitcnt vmcnt(0)
            v_cmp_ne_u32 vcc, s{sC}, v{vT1}
            s_cbranch_vccz {ok}
            """)
        spin_fail(l)
        a(f"{ok}:")
        setexec(FULL)

    def o_stats_poll():
        l = a.label("os"); ok = a.label("osok")
        a(f"s_add_u32 s{sA}, s{sT}, s{sL}\ns_add_u32 s{sA}, s{sA}, 1")
        a(f"{l}:")
        cnt("n_ostat")
        a(f"buffer_load_dwordx3 {vr(vSt,3)}, v{vaS0}, {sr(sWS,4)}, s{sOcons} offen sc1")
        a(f"buffer_load_dwordx3 {vr(vSt+4,3)}, v{vaS1}, {sr(sWS,4)}, s{sOcons} offen sc1")
        a("s_waitcnt vmcnt(0)")
        a(f"""
        v_xor_b32 v{vT0}, s{sA}, v{vSt+2}
        v_xor_b32 v{vT1}, s{sA}, v{vSt+6}
        v_or_b32 v{vT0}, v{vT0}, v{vT1}
        v_cmp_ne_u32 vcc, 0, v{vT0}
        s_cbranch_vccz {ok}
        """)
        spin_fail(l, cfg.sleep_o)
        a(f"{ok}:")
        ts_dyn("o_st0", "o_st1")

    def o_phase():
        OA = vA
        o_stats_poll()
        l2 = a.label("op"); ok2 = a.label("ook")
        a(f"L_heavy:\n{l2}:")
        cnt("n_oheavy")
        for b in range(2):
            for c in range(4):
                a(f"buffer_load_dwordx4 {vr(OA+16*b+4*c,4)}, v{vaO0+b}, {sr(sWS,4)}, s{sOcons} offen offset:{c*1024} sc1")
        for b in range(2):
            a(f"v_mov_b32 v{vU+b}, v{vSt+4*b}")
        for n in (8, 4, 2, 1):
            for b in range(2): dpp("v_max_f32", vU + b, vU + b, vU + b, f"row_ror:{n}")
        for b in range(2): a(f"v_sub_f32 v{vU+b}, v{vSt+4*b}, v{vU+b}")
        for b in range(2): a(f"v_exp_f32 v{vU+b}, v{vU+b}")
        for b in range(2): a(f"v_mul_f32 v{vU+2+b}, v{vU+b}, v{vSt+4*b+1}")
        for n in (8, 4, 2, 1):
            for b in range(2): dpp("v_add_f32", vU + 2 + b, vU + 2 + b, vU + 2 + b, f"row_ror:{n}")
        for b in range(2): a(f"v_rcp_f32 v{vU+2+b}, v{vU+2+b}")
        for b in range(2): a(f"v_mul_f32 v{vW+b}, v{vU+b}, v{vU+2+b}")
        a(f"v_mov_b32 v{vT0}, 0")
        if cfg.diag and cfg.ts_only and "o_w0" in cfg.ts_only:
            ts_dyn("o_w0", "o_w1")
            a("s_waitcnt vmcnt(7)")
            ts_dyn("o_f0", "o_f1")
        for i in range(8):
            b, c = i >> 2, i & 3
            r = OA + 16*b + 4*c
            a(f"s_waitcnt vmcnt({7-i})")
            for nt in range(2):
                mfma(vAcc + 8*b + 4*nt, r, ar(aW2 + 8*c + 4*nt, 4), "0" if c == 0 else None)
            a(f"v_max3_u32 v{vT0}, v{vT0}, v{r}, v{r+1}\nv_max3_u32 v{vT0}, v{vT0}, v{r+2}, v{r+3}")
        a(f"v_cmp_eq_u32 vcc, -1, v{vT0}\ns_cbranch_vccz {ok2}")
        spin_fail(l2)
        a(f"{ok2}:")
        ts_dyn("o_got0", "o_got1")
        for b in range(2):
            for nt in range(2):
                t = vU + 2*b + nt; acc = vAcc + 8*b + 4*nt
                dpp("v_mul_f32", t, vW + b, acc, "row_newbcast:0")
                for r in range(1, 4):
                    dpp("v_fmac_f32", t, vW + b, acc + r, f"row_newbcast:{r}")
        a(f"""
        v_permlane32_swap_b32 v{vU}, v{vU+1}
        v_permlane32_swap_b32 v{vU+2}, v{vU+3}
        v_add_f32 v{vU}, v{vU}, v{vU+1}
        v_add_f32 v{vU+2}, v{vU+2}, v{vU+3}
        v_permlane16_swap_b32 v{vU}, v{vU+2}
        v_add_f32 v{vU}, v{vU}, v{vU+2}
        ds_write_b32 v{vaRedW}, v{vU} offset:{R_O}
        s_waitcnt lgkmcnt(0)
        s_barrier
        """)
        lab = a.label("of")
        a(f"s_cmp_eq_u32 s{sW}, 0\ns_cbranch_scc0 {lab}")
        line_final(R_O)
        a(f"{lab}:")
        advance_hop()
        ts_dyn("o_pub0", "o_pub1")

    def g_phase():
        X = vA
        if cfg.db_g: db_wait(0)
        if cfg.diag and cfg.ts_only and "g_db0" in cfg.ts_only: ts_dyn("g_db0", "g_db1")
        x_poll(sXr, X, cfg.sleep_x)
        ts_dyn("g_got0", "g_got1")
        M = stats_mf(X)
        for u in range(4):
            M.append(mf(vAcc, X + 4*u, ar(aW2 + 8*u, 4), "0" if u == 0 else None))
            M.append(mf(vAcc + 4, X + 4*u, ar(aW2 + 8*u + 4, 4), "0" if u == 0 else None))
        V = stats_valu(vU) + [f"v_mov_b32 v{vU+1}, v{vU}", f"v_permlane16_swap_b32 v{vU}, v{vU+1}", f"v_add_f32 v{vU}, v{vU}, v{vU+1}"]
        interleave(M, V, 8, 2)
        setexec("s[%d:%d]" % (sM2, sM2 + 1))
        a(f"ds_write_b32 v{vaRedZ}, v{vU} offset:{R_GZ}")
        setexec(FULL)
        sum4(vU + 2, vAcc, vT3)
        sum4(vU + 3, vAcc + 4, vT3)
        a(f"""
        v_permlane16_swap_b32 v{vU+2}, v{vU+3}
        v_add_f32 v{vU+2}, v{vU+2}, v{vU+3}
        ds_write_b32 v{vaRedW}, v{vU+2} offset:{R_G}
        s_waitcnt lgkmcnt(0)
        s_barrier
        """)
        lab = a.label("gf")
        a(f"s_cmp_eq_u32 s{sW}, 0\ns_cbranch_scc0 {lab}")
        setexec(0xFFFFFFFF)
        a(f"""
        ds_read_b128 {vr(vU+8,4)}, v{vaFinZ} offset:{R_GZ}
        ds_read_b128 {vr(vU+12,4)}, v{vaFinZ} offset:{R_GZ+16}
        ds_read_b128 {vr(vU,4)}, v{vaFinW} offset:{R_G}
        ds_read_b128 {vr(vU+4,4)}, v{vaFinW} offset:{R_G+256}
        s_lshl_b32 s{sB}, s{sIdx}, 6
        s_add_u32 s{sB}, s{sB}, s{sHb}
        s_waitcnt lgkmcnt(2)
        """)
        sum4r(vU + 8); sum4r(vU + 12)
        ln_stats(vU + 8, vU + 12, vU + 9, vU + 10)
        a("s_waitcnt lgkmcnt(0)")
        sum4r(vU); sum4r(vU + 4)
        a(f"""
        v_fma_f32 v{vU}, -v{vU+9}, v{vCg}, v{vU}
        v_fma_f32 v{vU+4}, -v{vU+9}, v{vCu}, v{vU+4}
        v_mul_f32 v{vU+1}, {f2u(-1.4426950408889634):#x}, v{vU+10}
        v_mul_f32 v{vU}, v{vU}, v{vU+1}
        v_exp_f32 v{vU}, v{vU}
        v_mul_f32 v{vU+4}, v{vU+4}, v{vU+10}
        v_add_f32 v{vU}, 1.0, v{vU}
        v_rcp_f32 v{vU}, v{vU}
        s_nop 0
        v_mul_f32 v{vU}, v{vU}, v{vU+4}
        """)
        dpp("v_mov_b32", vU + 1, vU, None, "quad_perm:[1,0,3,2]")
        a(f"v_cvt_pk_bf16_f32 v{vU}, v{vU}, v{vU+1}\nv_min_u32 v{vU}, 0xfffffffe, v{vU}")
        setexec(0x55555555)
        store_local(f"buffer_store_dword v{vU}, v{vaStH}, {sr(sWS,4)}, s{sB} offen")
        setexec(FULL)
        a(f"{lab}:")
        ts_dyn("g_pub0", "g_pub1")

    def d_phase():
        lab0 = a.label("dr0"); l2 = a.label("dr"); ok2 = a.label("drok")
        l = a.label("dp"); ok = a.label("dok"); one = a.label("done"); l3 = a.label("dp1");
        a(f"s_cmp_eq_u32 s{sW}, 3\ns_cbranch_scc1 {l3}")
        setexec(EM2)
        a(f"{l}:")
        a(f"buffer_load_dwordx4 {vr(vHop,4)}, v{vaH}, {sr(sWS,4)}, s{sHb} offen sc1")
        a(f"buffer_load_dwordx4 {vr(vHop+4,4)}, v{vaH}, {sr(sWS,4)}, s{sHb} offen offset:512 sc1")
        a("s_waitcnt vmcnt(0)")
        sent_check([vHop+i for i in range(8)], vT1, ok)
        spin_fail(l)
        a(f"{l3}:")
        setexec(EM2)
        a(f"{l3}b:")
        a(f"buffer_load_dwordx4 {vr(vHop,4)}, v{vaH}, {sr(sWS,4)}, s{sHb} offen sc1")
        a("s_waitcnt vmcnt(0)")
        sent_check([vHop+i for i in range(4)], vT1, ok)
        spin_fail(f"{l3}b")
        a(f"{ok}:")
        setexec(FULL)
        for nt in range(2):
            mfma(vAcc + 4*nt, vHop, ar(aWd + 4*nt, 4), "0")
        for nt in range(2):
            mfma(vAcc + 4*nt, vHop + 4, ar(aWd + 8 + 4*nt, 4))
        a(f"""
        v_permlane16_swap_b32 v{vAcc}, v{vAcc+1}
        v_permlane16_swap_b32 v{vAcc+4}, v{vAcc+5}
        v_permlane32_swap_b32 v{vAcc}, v{vAcc+4}
        ds_write_b32 v{vaRedW}, v{vAcc} offset:{R_D}
        s_waitcnt lgkmcnt(0)
        s_barrier
        """)
        lab = a.label("df")
        a(f"s_cmp_eq_u32 s{sW}, 0\ns_cbranch_scc0 {lab}")
        line_final(R_D)
        a(f"{lab}:")
        advance_hop()
        ts_dyn("d_pub0", "d_pub1")

    a(f"s_cmp_lt_u32 s{sM}, 16\ns_cbranch_scc0 L_roleB")
    def down_slices():
        a(f"""
        v_lshrrev_b32 v{vT0}, 2, v{vLane}
        v_lshlrev_b32 v{vT0}, 10, v{vT0}
        v_and_b32 v{vT1}, 3, v{vLane}
        v_lshl_add_u32 v{vT0}, v{vT1}, 4, v{vT0}
        s_mul_i32 s{sB}, s{sJ}, {224*1024}
        s_lshl_b32 s{sC}, s{sIdx}, 6
        s_add_u32 s{sB}, s{sB}, s{sC}
        s_lshl_b32 s{sC}, s{sW}, 15
        s_add_u32 s{sB}, s{sB}, s{sC}
        s_lshl_b32 s{sC}, s{sW}, 14
        s_add_u32 s{sC}, s{sC}, {L_K + W_DN}
        s_mov_b32 m0, s{sC}
        s_add_u32 s{sD}, s{sB}, 16384
        buffer_load_dwordx4 v{vT0}, {sr(sDN,4)}, s{sB} offen{SLN} lds
        s_add_u32 s{sC}, s{sC}, 1024
        s_mov_b32 m0, s{sC}
        s_nop 0
        buffer_load_dwordx4 v{vT0}, {sr(sDN,4)}, s{sD} offen{SLN} lds
        s_cmp_eq_u32 s{sW}, 3
        s_cbranch_scc1 L_nod2
        s_add_u32 s{sB}, s{sB}, {4*32768}
        s_add_u32 s{sC}, s{sC}, 1024
        s_mov_b32 m0, s{sC}
        s_add_u32 s{sD}, s{sB}, 16384
        buffer_load_dwordx4 v{vT0}, {sr(sDN,4)}, s{sB} offen{SLN} lds
        s_add_u32 s{sC}, s{sC}, 1024
        s_mov_b32 m0, s{sC}
        s_nop 0
        buffer_load_dwordx4 v{vT0}, {sr(sDN,4)}, s{sD} offen{SLN} lds
        L_nod2:
        """)
    def down_operands():
        a(f"s_lshl_b32 s{sB}, s{sW}, 14")
        tr_base(vT0, 64, 8, sB, L_K + W_DN)
        for nt in range(2):
            a(f"ds_read_b64_tr_b16 {ar(aWd+4*nt,2)}, v{vT0} offset:{nt*32}")
            a(f"ds_read_b64_tr_b16 {ar(aWd+4*nt+2,2)}, v{vT0} offset:{nt*32+256}")
        a(f"s_cmp_eq_u32 s{sW}, 3\ns_cbranch_scc1 L_dn3")
        for nt in range(2):
            a(f"ds_read_b64_tr_b16 {ar(aWd+8+4*nt,2)}, v{vT0} offset:{2048+nt*32}")
            a(f"ds_read_b64_tr_b16 {ar(aWd+8+4*nt+2,2)}, v{vT0} offset:{2048+nt*32+256}")
        a("s_branch L_dn4\nL_dn3:")
        for i in range(8): a(f"v_accvgpr_write_b32 a{aWd+8+i}, 0")
        a("L_dn4:")
    g.role = "A"; ts_split = g.ts
    def wo_slices():
        if cfg.line_pf and "o" in cfg.pf_which:
            a(f"""
            v_lshlrev_b32 v{vT0}, 7, v{vLane}
            s_lshl_b32 s{sB}, s{sJ}, 19
            s_lshl_b32 s{sC}, s{sIdx}, 15
            s_add_u32 s{sB}, s{sB}, s{sC}
            s_lshl_b32 s{sC}, s{sW}, 13
            s_add_u32 s{sB}, s{sB}, s{sC}
            buffer_load_dword v{vJ}, v{vT0}, {sr(sW2,4)}, s{sB} offen{cfg.pf_pol_o}
            """)
        a(f"""
        v_lshrrev_b32 v{vT0}, 2, v{vLane}
        v_lshlrev_b32 v{vT0}, 10, v{vT0}
        v_and_b32 v{vT1}, 3, v{vLane}
        v_lshl_add_u32 v{vT0}, v{vT1}, 4, v{vT0}
        s_lshl_b32 s{sB}, s{sJ}, 19
        s_lshl_b32 s{sC}, s{sW}, 17
        s_add_u32 s{sB}, s{sB}, s{sC}
        s_lshl_b32 s{sC}, s{sIdx}, 6
        s_add_u32 s{sB}, s{sB}, s{sC}
        s_lshl_b32 s{sC}, s{sW}, 14
        s_add_u32 s{sC}, s{sC}, {L_K}
        """)
        for u in range(8):
            a(f"""
            s_mov_b32 m0, s{sC}
            s_add_u32 s{sC}, s{sC}, 1024
            buffer_load_dwordx4 v{vT0}, {sr(sW2,4)}, s{sB} offen{SLN} lds
            s_add_u32 s{sB}, s{sB}, {16*1024}
            """)
    if cfg.w_inter:
        s1_tail(nPF)
        db_setup(0, 1)
        a(f"s_mov_b32 s{sXr}, {WS_X}")
    elif cfg.wsA:
        wo_slices()
        s1_tail(8 + nPF)
        db_setup(0, 1)
    else:
        s1_tail(nPF)
        db_setup(0, 1)
        wo_slices()
    a(f"v_mov_b32 v{vRes}, 0")
    lab = a.label("r0")
    a(f"""
    s_cmp_eq_u32 s{sJ}, 0
    s_cbranch_scc0 {lab}
    v_and_b32 v{vT0}, 1, v{vQd}
    v_lshlrev_b32 v{vT0}, 10, v{vT0}
    v_lshrrev_b32 v{vT1}, 1, v{vQd}
    v_lshl_add_u32 v{vT0}, v{vT1}, 5, v{vT0}
    v_lshl_add_u32 v{vT0}, v{vR16}, 1, v{vT0}
    s_lshl_b32 s{sB}, s{sIdx}, 6
    buffer_load_ushort v{vRes}, v{vT0}, {sr(sX0,4)}, s{sB} offen
    {lab}:
    """)
    nspec = 0
    if cfg.o_spec:
        a(f"buffer_load_dwordx3 {vr(vSt,3)}, v{vaS0}, {sr(sWS,4)}, s{sOcons} offen sc1")
        a(f"buffer_load_dwordx3 {vr(vSt+4,3)}, v{vaS1}, {sr(sWS,4)}, s{sOcons} offen sc1")
        nspec = 2
    if cfg.w_inter:
        a(f"s_waitcnt vmcnt({nspec})")
        for half, (sh, base) in enumerate(((12, L_WQ), (14, L_K))):
            a(f"s_lshl_b32 s{sB}, s{sW}, {sh}")
            tr_base(vT0, 64, 4, sB, base)
            for c2 in range(2):
                c = 2*half + c2
                for nt in range(2):
                    a(f"ds_read_b64_tr_b16 {ar(aW2+8*c+4*nt,2)}, v{vT0} offset:{c2*2048+nt*32}")
                    a(f"ds_read_b64_tr_b16 {ar(aW2+8*c+4*nt+2,2)}, v{vT0} offset:{c2*2048+nt*32+1024}")
    else:
        a(f"s_lshl_b32 s{sB}, s{sW}, 14")
        tr_base(vT0, 64, 4, sB, L_K)
        a(f"s_waitcnt vmcnt({nspec})")
        for c in range(4):
            for nt in range(2):
                a(f"ds_read_b64_tr_b16 {ar(aW2+8*c+4*nt,2)}, v{vT0} offset:{c*2048+nt*32}")
                a(f"ds_read_b64_tr_b16 {ar(aW2+8*c+4*nt+2,2)}, v{vT0} offset:{c*2048+nt*32+1024}")
    a(f"v_lshlrev_b32 v{vResF}, 16, v{vRes}")
    a("s_waitcnt lgkmcnt(0)")
    ts("wo_ready")
    if cfg.o_spec:
        a(f"""
        s_add_u32 s{sA}, s{sT}, 1
        s_waitcnt vmcnt(0)
        v_xor_b32 v{vT0}, s{sA}, v{vSt+2}
        v_xor_b32 v{vT1}, s{sA}, v{vSt+6}
        v_or_b32 v{vT0}, v{vT0}, v{vT1}
        v_cmp_ne_u32 vcc, 0, v{vT0}
        s_cbranch_vccz L_heavy
        """)
    a("L_loopA:")
    o_phase()
    lab = a.label("dn")
    a(f"s_cmp_eq_u32 s{sL}, 0\ns_cbranch_scc0 {lab}")
    down_slices()
    tag_check_all()
    if cfg.epoch_early:
        le = a.label("ep")
        a(f"""
        s_or_b32 s{sB}, s{sJ}, s{sIdx}
        s_or_b32 s{sB}, s{sB}, s{sW}
        s_cmp_eq_u32 s{sB}, 0
        s_cbranch_scc0 {le}
        """)
        g.ep_lab = le
        a(f"v_mov_b32 v{vT0}, {WS_EPOCH}\nv_mov_b32 v{vT1}, s{sT}\ns_mov_b64 exec, 1")
        a(f"buffer_store_dword v{vT1}, v{vT0}, {sr(sWS,4)}, 0 offen sc1")
        a("s_mov_b64 exec, -1")
        a(f"{le}:")
    down_operands()
    if cfg.warm_out:
        lw = a.label("wout")
        a(f"""
        s_cmp_ge_u32 s{sIdx}, 2
        s_cbranch_scc1 {lw}
        s_lshl_b32 s{sB}, s{sJ}, 1
        s_add_u32 s{sB}, s{sB}, s{sIdx}
        s_lshl_b32 s{sB}, s{sB}, 6
        v_lshlrev_b32 v{vT0}, 10, v{vLane}
        s_mov_b64 exec, 3
        buffer_load_dword v{vJ}, v{vT0}, {sr(sOUT,4)}, s{sB} offen
        s_mov_b64 exec, -1
        {lw}:
        """)
    a("s_waitcnt lgkmcnt(0)\ns_barrier")
    a(f"{lab}:")
    d_phase()
    a(f"s_cmp_eq_u32 s{sL}, 1\ns_cbranch_scc1 L_finalA")
    a("s_branch L_q2s2")

    a("L_roleB:")
    g.role = "B"; g.ts = ts_split
    def gu_slices():
        a(f"""
        s_cmp_ge_u32 s{sIdx}, 14
        s_cbranch_scc1 L_nogu
        v_lshrrev_b32 v{vT0}, 1, v{vLane}
        v_mul_u32_u24 v{vT0}, 3584, v{vT0}
        v_and_b32 v{vT1}, 1, v{vLane}
        v_lshl_add_u32 v{vT0}, v{vT1}, 4, v{vT0}
        s_mul_i32 s{sB}, s{sW}, {128*3584}
        s_mul_i32 s{sC}, s{sJ}, 448
        s_add_u32 s{sB}, s{sB}, s{sC}
        s_lshl_b32 s{sC}, s{sIdx}, 5
        s_add_u32 s{sB}, s{sB}, s{sC}
        s_lshl_b32 s{sC}, s{sW}, 14
        s_add_u32 s{sC}, s{sC}, {L_K + W_GATE}
        """)
        for u in range(4):
            a(f"""
            s_mov_b32 m0, s{sC}
            s_add_u32 s{sD}, s{sC}, {W_UP - W_GATE}
            buffer_load_dwordx4 v{vT0}, {sr(sW2,4)}, s{sB} offen{SLN} lds
            s_mov_b32 m0, s{sD}
            s_add_u32 s{sC}, s{sC}, 1024
            buffer_load_dwordx4 v{vT0}, {sr(sUP,4)}, s{sB} offen{SLN} lds
            s_add_u32 s{sB}, s{sB}, {32*3584}
            """)
        a("L_nogu:")
    if cfg.wsB:
        gu_slices()
        s1_tail(8, maybe_none=True)
    else:
        s1_tail(nPF)
    if cfg.w_inter: a(f"s_mov_b32 s{sWb2}, s{sWb}\ns_mov_b32 s{sWst2}, s{sWst}")
    db_setup(1, 0)
    if cfg.w_inter: a(f"s_mov_b32 s{sXr}, {WS_X}")
    if cfg.pf_down:
        a(f"""
        v_lshrrev_b32 v{vT0}, 3, v{vLane}
        v_lshlrev_b32 v{vT0}, 10, v{vT0}
        v_and_b32 v{vT1}, 7, v{vLane}
        v_lshl_add_u32 v{vT0}, v{vT1}, 7, v{vT0}
        s_mul_i32 s{sB}, s{sJ}, 224
        s_mul_i32 s{sC}, s{sIdx}, 14
        s_add_u32 s{sB}, s{sB}, s{sC}
        s_lshl_b32 s{sC}, s{sW}, 2
        s_add_u32 s{sB}, s{sB}, s{sC}
        s_lshl_b32 s{sB}, s{sB}, 10
        s_cmp_eq_u32 s{sW}, 3
        s_cselect_b32 exec_lo, 0xffff, -1
        s_mov_b32 exec_hi, 0
        buffer_load_dword v{vJ}, v{vT0}, {sr(sDN,4)}, s{sB} offen{cfg.pf_down_pol}
        s_mov_b64 exec, -1
        """)
    if cfg.line_pf and "f" in cfg.pf_which:
        a(f"""
        v_mul_u32_u24 v{vT0}, 52, v{vLane}
        v_lshrrev_b32 v{vT0}, 8, v{vT0}            ; l/5 for l < 64
        v_mul_u32_u24 v{vT1}, 5, v{vT0}
        v_sub_u32 v{vT1}, v{vLane}, v{vT1}         ; l%5
        v_mul_u32_u24 v{vT0}, 3584, v{vT0}
        v_lshl_add_u32 v{vT0}, v{vT1}, 7, v{vT0}
        s_lshl_b32 s{sB}, s{sIdx}, 5
        s_lshl_b32 s{sC}, s{sW}, 3
        s_add_u32 s{sB}, s{sB}, s{sC}
        s_mul_i32 s{sB}, s{sB}, 3584
        s_mul_i32 s{sC}, s{sJ}, 448
        s_and_b32 s{sC}, s{sC}, 0xffffff80
        s_add_u32 s{sB}, s{sB}, s{sC}
        """)
        setexec((1 << 40) - 1)
        for off in ((0, 64) if "f" in cfg.sub2 else (0,)):
            a(f"buffer_load_dword v{vJ}, v{vT0}, {sr(sW2,4)}, s{sB} offen offset:{off}{cfg.pf_pol_f}")
            a(f"buffer_load_dword v{vJ}, v{vT0}, {sr(sUP,4)}, s{sB} offen offset:{off}{cfg.pf_pol_f}")
        setexec(FULL)
    if not cfg.wsB and not cfg.w_inter: gu_slices()
    if cfg.w_inter and cfg.w_interB != "gu":
        lab = a.label("wl")
        a(f"s_cmp_ge_u32 s{sIdx}, 14\ns_cbranch_scc1 {lab}")
        for part, key, srdq, sh, base in ((0, "g", sW2, 12, L_WQ), (1, "u", sUP, 14, L_K)):
            if key in cfg.w_interB: continue
            for u in range(4):
                a(f"""
                s_mul_i32 s{sB}, s{sWst2}, {u}
                s_add_u32 s{sB}, s{sB}, s{sWb2}
                s_lshl_b32 s{sC}, s{sW}, {sh}
                s_add_u32 s{sC}, s{sC}, {base + u*1024}
                s_mov_b32 m0, s{sC}
                s_nop 0
                buffer_load_dwordx4 v{vWs}, {sr(srdq,4)}, s{sB} offen{SLN} lds
                """)
        a(f"{lab}:")
    tag_check_all()
    ts("ffn_landed")
    a(f"s_cmp_ge_u32 s{sIdx}, 14\ns_cbranch_scc1 L_nogu2")
    if cfg.w_inter:
        for mat, (sh, base) in enumerate(((12, L_WQ), (14, L_K))):
            a(f"s_lshl_b32 s{sB}, s{sW}, {sh}")
            tr_base(vT0, 32, 8, sB, base)
            for u in range(4):
                a(f"ds_read_b64_tr_b16 {ar(aW2+8*u+4*mat,2)}, v{vT0} offset:{u*1024}")
                a(f"ds_read_b64_tr_b16 {ar(aW2+8*u+4*mat+2,2)}, v{vT0} offset:{u*1024+128}")
    else:
        a(f"s_lshl_b32 s{sB}, s{sW}, 14")
        tr_base(vT0, 32, 8, sB, L_K + W_GATE)
        for u in range(4):
            for mat in range(2):
                a(f"ds_read_b64_tr_b16 {ar(aW2+8*u+4*mat,2)}, v{vT0} offset:{u*1024+mat*(W_UP-W_GATE)}")
                a(f"ds_read_b64_tr_b16 {ar(aW2+8*u+4*mat+2,2)}, v{vT0} offset:{u*1024+mat*(W_UP-W_GATE)+128}")
    a("s_waitcnt lgkmcnt(0)")
    for u in range(4):
        mfma(vAcc, vOnes, ar(aW2 + 8*u, 4), "0" if u == 0 else None)
        mfma(vAcc + 4, vOnes, ar(aW2 + 8*u + 4, 4), "0" if u == 0 else None)
    a(f"s_nop 7\nds_write_b32 v{vaRedW}, v{vAcc} offset:{R_COL}\nds_write_b32 v{vaRedW}, v{vAcc+4} offset:{R_COL2}")
    a("L_nogu2:")
    a("s_waitcnt lgkmcnt(0)\ns_barrier")
    a(f"""
    ds_read_b128 {vr(vU,4)}, v{vaFinW} offset:{R_COL}
    ds_read_b128 {vr(vU+4,4)}, v{vaFinW} offset:{R_COL2}
    s_waitcnt lgkmcnt(0)
    """)
    sum4r(vU); sum4r(vU + 4)
    a(f"v_mov_b32 v{vCg}, v{vU}\nv_mov_b32 v{vCu}, v{vU+4}")
    ts("ffn_ready")
    a("L_loopB:")
    lg = a.label("nog")
    a(f"s_cmp_ge_u32 s{sIdx}, 14\ns_cbranch_scc1 {lg}")
    g_phase()
    a(f"{lg}:")
    if cfg.junk_dirty:
        lj = a.label("jk")
        a(f"s_cmp_eq_u32 s{sL}, 0\ns_cbranch_scc0 {lj}")
        a(f"s_lshl_b32 s{sB}, s2, 2\ns_add_u32 s{sB}, s{sB}, s{sW}\ns_mul_i32 s{sB}, s{sB}, {cfg.junk_dirty*1024}\ns_add_u32 s{sB}, s{sB}, 0x400000\nv_lshlrev_b32 v{vT0}, 4, v{vLane}")
        for i in range(cfg.junk_dirty):
            a(f"buffer_store_dwordx4 {vr(vP,4)}, v{vT0}, {sr(sWS,4)}, s{sB} offen\ns_add_u32 s{sB}, s{sB}, 1024")
        a(f"{lj}:")
    a(f"s_cmp_eq_u32 s{sL}, 1\ns_cbranch_scc1 L_fin")

    a("L_q2s2:")
    save_role, save_ts = g.role, g.ts
    g.role = "C"; g.ts = getattr(g, "maxts", g.ts)
    lab = a.label("wo")
    a(f"s_cmp_lt_u32 s{sM}, 16\ns_cbranch_scc{1 if cfg.warm_by_B else 0} {lab}")
    warm_q2()
    warm_o(1)
    a(f"{lab}:")
    if cfg.db_q: db_wait(None, const_hop=1)
    if cfg.diag and cfg.ts_only and "q2_db" in cfg.ts_only:
        ts("q2_db")
    a(f"s_mov_b32 s{sD}, {WS_X + X_HOP}")
    x_poll(sD, XA, cfg.sleep_x)
    ts("q2_got")
    q_core(XA)
    q_final(False)
    ts("q2_pub")
    l = a.label("qp"); ok = a.label("qok")
    setexec(EM4)
    a(f"{l}:")
    for c in range(4):
        a(f"buffer_load_dwordx4 {vr(vQ+4*c,4)}, v{vaQ2}, {sr(sWS,4)}, s{sQ2r} offen offset:{c*256} sc1")
    a("s_waitcnt vmcnt(0)")
    sent_check([vQ+i for i in range(16)], vT0, ok)
    spin_fail(l)
    a(f"{ok}:")
    setexec(FULL)
    ts("q2_gath")
    a(f"""
    s_add_u32 s{sOown}, s{sOown}, {O_L}
    s_add_u32 s{sOcons}, s{sOcons}, {O_L}
    s_add_u32 s{sXr}, s{sXr}, {2*X_HOP}
    s_add_u32 s{sHb}, s{sHb}, 8192
    s_mov_b32 s{sL}, 1
    """)
    s_qk_max()
    s_exp_p()
    if cfg.stats_mid:
        lw3 = a.label("s3"); lw4 = a.label("s4")
        a(f"s_cmp_eq_u32 s{sW}, 3\ns_cbranch_scc1 {lw3}")
        for blk in range(8):
            a(f"s_waitcnt lgkmcnt({7-blk})")
            pv([blk], blk == 0)
        a(f"s_branch {lw4}\n{lw3}:")
        a(f"""
        ds_read_b128 {vr(vU+4,4)}, v{vaSm} offset:{L_LSUM-L_SMAX}
        s_add_u32 s{sB}, s{sT}, s{sL}
        s_add_u32 s{sB}, s{sB}, 1
        v_mov_b32 v{vMc+2}, s{sB}
        """)
        for blk in range(4):
            a(f"s_waitcnt lgkmcnt({8-blk})")
            pv([blk], blk == 0)
        a("s_waitcnt lgkmcnt(0)")
        sum4r(vU + 4)
        a(f"v_mov_b32 v{vMc+1}, v{vU+4}")
        setexec(0xF)
        store_local(f"buffer_store_dwordx4 {vr(vMc,4)}, v{vaStS}, {sr(sWS,4)}, s{sOown} offen")
        setexec(FULL)
        for blk in range(4, 8):
            pv([blk], False)
        a(f"{lw4}:")
        s_out()
    else:
        s_stats_prep()
        a("s_waitcnt lgkmcnt(0)")
        pv(list(range(8)), True)
        s_out()
        s_stats_store(None)
    ts("s2_pub")
    if cfg.diag and cfg.ts_only and "s2_ack" in cfg.ts_only:
        a("s_waitcnt vmcnt(0)")
        ts("s2_ack")
    a(f"s_cmp_lt_u32 s{sM}, 16\ns_cbranch_scc1 L_loopA\ns_branch L_loopB")

    a("L_finalA:")
    g.role = "A"; g.ts = getattr(g, "maxts", g.ts)
    a(f"""
    s_cmp_ge_u32 s{sIdx}, 2
    s_cbranch_scc1 L_fin
    s_cmp_eq_u32 s{sW}, 0
    s_cbranch_scc0 L_fin
    s_lshl_b32 s{sB}, s{sJ}, 1
    s_add_u32 s{sB}, s{sB}, s{sIdx}        ; cb
    s_lshl_b32 s{sC}, s{sB}, 10
    s_xor_b32 s{sD}, s{sC}, 0x2000
    s_add_u32 s{sD}, s{sD}, 16384
    s_lshr_b32 s{sA}, s{sXcc}, 2
    s_lshr_b32 s{sTmp2}, s{sB}, 3
    s_cmp_eq_u32 s{sA}, s{sTmp2}
    s_cselect_b32 s{sC}, s{sC}, s{sD}
    s_add_u32 s{sC}, s{sC}, {WS_X + 3*X_HOP}
    """)
    for nt in range(2):
        for dd in range(4):
            a(f"""
            v_lshlrev_b32 v{vT0}, 3, v{vQd}
            v_add_u32 v{vT0}, {2*dd - 16*nt}, v{vT0}
            v_sub_u32 v{vT0}, v{vT0}, v{vR16}
            v_mov_b32 v{vP+4*nt+dd}, 0
            v_cmp_eq_u32 vcc, 0, v{vT0}
            v_mov_b32 v{vT1}, 0x3f80
            v_cndmask_b32 v{vP+4*nt+dd}, v{vP+4*nt+dd}, v{vT1}, vcc
            v_cmp_eq_u32 vcc, -1, v{vT0}
            v_mov_b32 v{vT1}, 0x3f800000
            v_cndmask_b32 v{vP+4*nt+dd}, v{vP+4*nt+dd}, v{vT1}, vcc
            """)
    a(f"""
    v_lshrrev_b32 v{vT2}, 1, v{vQd}
    v_lshlrev_b32 v{vT2}, 10, v{vT2}
    v_and_b32 v{vT1}, 1, v{vQd}
    v_lshl_add_u32 v{vT2}, v{vT1}, 5, v{vT2}
    v_lshl_add_u32 v{vT2}, v{vR16}, 1, v{vT2}
    s_lshl_b32 s{sB}, s{sB}, 6
    """)
    a(f"s_mov_b32 s{sEx2}, s{sC}\ns_mov_b32 s{sEx2+1}, s{sB}")
    if cfg.db_final: db_wait(None, const_hop=3)
    a(f"s_mov_b32 s{sC}, s{sEx2}\ns_mov_b32 s{sB}, s{sEx2+1}")
    l = a.label("fp"); ok = a.label("fok")
    a(f"{l}:")
    a(f"buffer_load_dwordx4 {vr(vA,4)}, v{vaX}, {sr(sWS,4)}, s{sC} offen sc1")
    a("s_waitcnt vmcnt(0)")
    sent_check([vA+i for i in range(4)], vT0, ok)
    spin_fail(l, cfg.sleep_x)
    a(f"{ok}:")
    ts("fin_got")
    mfma(vAcc, vA, vP, "0"); mfma(vAcc + 4, vA, vP + 4, "0")
    sum4(vU, vAcc, vT3); sum4(vU + 1, vAcc + 4, vT3)
    a(f"""
    v_permlane16_swap_b32 v{vU}, v{vU+1}
    v_add_f32 v{vU}, v{vU}, v{vU+1}
    v_cvt_pk_bf16_f32 v{vU}, v{vU}, v{vU}
    buffer_store_short v{vU}, v{vT2}, {sr(sOUT,4)}, s{sB} offen
    """)
    if not cfg.epoch_early:
        a(f"""
        s_cmp_eq_u32 s{sB}, 0
        s_cbranch_scc0 L_fin
        v_mov_b32 v{vT0}, {WS_EPOCH}
        v_mov_b32 v{vT1}, s{sT}
        """)
        setexec(1)
        a(f"buffer_store_dword v{vT1}, v{vT0}, {sr(sWS,4)}, 0 offen sc1")
        setexec(FULL)

    a("L_fin:")
    if cfg.diag:
        g.role = "E"
        g.tsn["E"].append((NTS - 1, "end"))
        a(f"s_memrealtime s[{sTmp2}:{sTmp2+1}]\ns_waitcnt lgkmcnt(0)\ns_mov_b32 s{sTS+NTS-2}, s{sTmp2}")
        a(f"s_memtime s[{sTmp2}:{sTmp2+1}]\ns_waitcnt lgkmcnt(0)\ns_mov_b32 s{sTS+NTS-1}, s{sTmp2}")
        a(f"s_lshl_b32 s{sB}, s2, 3\ns_add_u32 s{sB}, s{sB}, s{sW}\ns_lshl_b32 s{sB}, s{sB}, 7\ns_add_u32 s{sB}, s{sB}, {WS_DIAG}\nv_mov_b32 v{vT0}, 0")
        setexec(1)
        for i in range(NTS):
            a(f"v_mov_b32 v{vT1}, s{sTS+i}\nbuffer_store_dword v{vT1}, v{vT0}, {sr(sWS,4)}, s{sB} offen offset:{4*i}")
        setexec(FULL)
        if cfg.dbg_dump is not None:
            a(f"""
            s_cmp_eq_u32 s2, {cfg.dbg_dump}
            s_cbranch_scc0 L_nodump
            s_cmp_eq_u32 s{sW}, 0
            s_cbranch_scc0 L_nodump
            s_load_dwordx2 s[{sTmp2}:{sTmp2+1}], s[0:1], 80
            s_waitcnt lgkmcnt(0)
            s_mov_b32 s{sA}, s{sTmp2}
            s_and_b32 s{sB}, s{sTmp2+1}, 0xffff
            s_mov_b32 s{sC}, 256
            s_mov_b32 s{sD}, 0x20000
            v_mov_b32 v{vT0}, 0
            s_mov_b64 exec, 1
            """)
            for i in range(1, 16):
                a(f"s_sub_u32 s{sTmp2}, s{sTS+i}, s{sTS}\nv_mov_b32 v{vT1}, s{sTmp2}\nbuffer_store_dword v{vT1}, v{vT0}, s[{sA}:{sD}], 0 offen offset:{4*(i-1)}")
            a(f"s_sub_u32 s{sTmp2}, s{sTS+NTS-1}, s{sTS}\nv_mov_b32 v{vT1}, s{sTmp2}\nbuffer_store_dword v{vT1}, v{vT0}, s[{sA}:{sD}], 0 offen offset:60")
            a("s_mov_b64 exec, -1\nL_nodump:")
    if cfg.dbg_span:
        a(f"""
        s_waitcnt vmcnt(0)
        s_cmp_eq_u32 s{sW}, 0
        s_cbranch_scc0 L_nospan
        s_memrealtime s[{sTmp2}:{sTmp2+1}]
        s_load_dwordx2 s[92:93], s[0:1], 80
        s_waitcnt lgkmcnt(0)
        s_mov_b32 s{sA}, s92
        s_and_b32 s{sB}, s93, 0xffff
        s_mov_b32 s{sC}, 256
        s_mov_b32 s{sD}, 0x20000
        v_mov_b32 v{vT0}, 8
        v_mov_b32 v{vT1}, s{sTmp2}
        s_not_b32 s94, s94
        v_mov_b32 v{vT2}, s94
        s_mov_b64 exec, 1
        buffer_atomic_umax v{vT1}, v{vT0}, s[{sA}:{sD}], 0 offen sc1
        buffer_atomic_umax v{vT2}, v{vT0}, s[{sA}:{sD}], 0 offen offset:4 sc1
        s_waitcnt vmcnt(0)
        L_nospan:
        """)
    a("s_waitcnt vmcnt(0)\ns_endpgm")
    a(f"""
    L_abort:
    s_mov_b64 exec, -1
    v_mov_b32 v{vT0}, 0
    v_mov_b32 v{vT1}, 0xdead
    s_load_dwordx2 s[{sTmp2}:{sTmp2+1}], s[0:1], 80
    s_waitcnt lgkmcnt(0)
    s_mov_b32 s{sA}, s{sTmp2}
    s_and_b32 s{sB}, s{sTmp2+1}, 0xffff
    s_mov_b32 s{sC}, 256
    s_mov_b32 s{sD}, 0x20000
    s_mov_b64 exec, 1
    buffer_store_dword v{vT1}, v{vT0}, s[{sA}:{sD}], 0 offen offset:4
    s_waitcnt vmcnt(0)
    L_end:
    s_endpgm
    """)
    for o in g.ool: a(o)
    a("L_codeend:\ns_endpgm")
    lines = a.text().rstrip("\n").split("\n")
    g.ninstr = sum(1 for l in lines if l.startswith("    ") and not l.strip().startswith(";"))
    lines = hazard.pad(lines)
    return g, "\n".join(lines) + "\n"

HEADER = open("interleave_layers__sliding_block_cached__glu_gated_glu__decode.s.ref").read().split("; Override launch")[0]

def full(cfg):
    g, body = build(cfg)
    txt = HEADER
    txt += "; Persistent single-launch kernel: 256 workgroups (one per CU) x 256 threads.\n"
    txt += f"; @launch grid=(256,1,1) block=(256,1,1) lds={LDS_BYTES}\n"
    txt += '.amdgcn_target "amdgcn-amd-amdhsa--gfx950"\n.text\n'
    txt += f".globl {NAME}\n.p2align 8\n.type {NAME},@function\n{NAME}:\n"
    txt += body
    txt += '.section .rodata,"a"\n.p2align 6\n'
    txt += f".amdhsa_kernel {NAME}\n  .amdhsa_next_free_vgpr {256 + g.amax}\n  .amdhsa_next_free_sgpr 102\n  .amdhsa_accum_offset 256\n"
    txt += "  .amdhsa_group_segment_fixed_size 0\n  .amdhsa_kernarg_size 96\n  .amdhsa_user_sgpr_count 2\n  .amdhsa_user_sgpr_kernarg_segment_ptr 1\n  .amdhsa_system_sgpr_workgroup_id_x 1\n.end_amdhsa_kernel\n"
    return g, txt

if __name__ == "__main__":
    cfg = Cfg()
    for kv in sys.argv[2:]:
        k, v = kv.split("="); setattr(cfg, k, eval(v))
    g, txt = full(cfg)
    open(sys.argv[1], "w").write(txt)
    print("vgprs", g.vmax, "agprs", g.amax, "instrs", g.ninstr, "ts", g.tsn)
```

```python
import sys, struct
from asmlib import Asm
import hazard

NAME = "interleave_layers__sliding_block_cached__glu_gated_glu__decode_kernel"

WS_EPOCH = 0x0
WS_Q1 = 0x10000
WS_DB = 0x1c000
WS_Q2 = 0x20000
WS_H  = 0x28000
WS_X  = 0xE0000
X_HOP = 32768
WS_O  = 0x40000
O_STATS = 32768
O_J = O_STATS + 2048
O_L = 8 * O_J
WS_DIAG = 0x100000
WS_SIZE = 0x1000000

L_SMAX = 0
L_LSUM = 64
L_PBUF = 256
L_RED = 2560
R_Q, R_G, R_GZ, R_O, R_D, R_COL, R_COL2 = [L_RED + 1024 * i for i in range(7)]
L_QG = 10240
L_X0 = 14336
L_K = 16384
L_V = L_K + 65536
L_WQ = L_V + 65536
L_XI = L_V
LDS_BYTES = 163840
W_GATE, W_UP, W_DN = 0, 4096, 8192

C_SCALE = 0.08838834764831845 * 1.4426950408889634
def f2u(x): return struct.unpack("<I", struct.pack("<f", x))[0]

class Cfg:
    nKA = 8
    nKb1 = 1
    pace = 8
    gpts = (1, 2, 4)
    diag = False
    ts_only = None
    ts_issue = False
    force_global = False
    budget = 400000
    prefetch_code = True
    sleep_x = 0
    sleep_x0 = 0
    sleep_o = 0
    sl_nt = True
    pf_pol = ""
    pf_pol_f = ""
    pf_pol_o = " nt"
    pf_which = "qf"
    dbg_span = False
    counters = False
    db_early = False
    doorbell = True
    warm = True
    pf_stream = "o"
    pf_pos = 2
    pf_early = False
    pf_spol = ""
    wsA = False
    wsB = False
    junk_dirty = 0
    epoch_early = True
    w_interB = "gu"
    w_inter = False
    v3_early = False
    warm_by_B = True
    o_spec = True
    db_g = True
    db_q = True
    db_final = False
    stats_mid = True
    pf_down = False
    pf_down_pol = " nt"
    kv_pol = " nt"
    sub2 = ""
    dbg_dump = None
    db_pipe = False
    tag_split = True
    code_pf_shift = 6
    gE_mode = 0
    g_early = True
    rt_probe = None
    rot_mode = "m8"
    warm_out = False
    line_pf = True
    const_tag = False
    no_clear0 = False
    clr0_late = False

def vr(b, n=1): return f"v[{b}:{b+n-1}]" if n > 1 else f"v{b}"
def ar(b, n=1): return f"a[{b}:{b+n-1}]" if n > 1 else f"a{b}"
def sr(b, n=1): return f"s[{b}:{b+n-1}]" if n > 1 else f"s{b}"

sJ, sM, sW, sIdx, sL = 3, 4, 5, 6, 7
sWS, sKS, sVS, sWQ, sW2, sUP, sDN, sX0, sOUT = 8, 12, 16, 20, 24, 28, 32, 36, 40
sT, sTX, sLocal, sBud = 44, 45, 46, 47
sMDIAG = 48
sM4 = 50
sM2 = 52
sMN1 = 54
sMEV = 56
sEx = 58
sA, sB, sC, sD = 60, 61, 62, 63
sKV, sRot = 64, 65
sOown, sOcons, sXw, sXr, sHb, sQ2w, sQ2r = 66, 67, 68, 69, 70 - 70 + 96, 97, 98
sXcc = 99
sEarly = 59
sWb2, sWst2 = 68, 60
sWb, sWst = 59, 69
sKS2 = sKS
sDBtag = 59
sEx2 = 50
sDBw, sDBr = 64, 65
sXI = 58
sTmp2 = 100
sTS = 70
NTS = 26

class G:
    pass

def build(cfg):
    g = G(); a = Asm(); g.a = a
    g.tsn = {"C": [], "A": [], "B": [], "E": []}; g.role = "C"; g.ts = 0; g.cnts = {}; g.cnt_names = []
    nv = [1]
    def valloc(n=1, align=1):
        nv[0] = (nv[0] + align - 1) // align * align
        r = nv[0]; nv[0] += n
        assert nv[0] <= 256
        return r
    vLane = valloc(); vR16 = valloc(); vQd = valloc()
    vT0 = valloc(); vT1 = valloc(); vT2 = valloc(); vT3 = valloc()
    vOnes = valloc(4, 4)
    vQ = valloc(16, 4)
    vA = valloc(40, 4)
    vAcc = valloc(16, 4)
    vS = valloc(16, 4)
    vP = valloc(32, 4)
    vJ = valloc()
    vHop = valloc(8, 4)
    vU = valloc(16, 4)
    vSt = valloc(8, 4)
    vW = valloc(2, 2)
    vCs = valloc(); vCg = valloc(); vCu = valloc()
    vRes = valloc(); vResF = valloc(); vTg = valloc(2)
    vQ1d = valloc(2, 2); vQ1a = valloc()
    vMc = valloc(4, 4)
    vaX = valloc(); vaXg = valloc(); vaXr = valloc(); vaStQ = valloc(); vaClrO = valloc(); vaO0 = valloc(); vaO1 = valloc(); vaS0 = valloc(); vaS1 = valloc(); vaQ2 = valloc(); vaH = valloc()
    vaPw = valloc(); vaPr = valloc(); vaSm = valloc(); vaSmW = valloc(); vaRedW = valloc(); vaRedZ = valloc()
    vaFinW = valloc(); vaFinZ = valloc(); vaFinQZ = valloc(); vaFinO = valloc()
    vaStH = valloc(); vaStX = valloc(); vaStO = valloc(); vaStS = valloc(); vaResU = valloc()
    vWs = valloc()
    vKs = valloc(4); vVs = valloc(2); vVr = valloc(2); vKr = valloc(4)
    g.vmax = nv[0]
    aK, aV, aWq, aW2, aWd = 0, 64, 128, 144, 176
    g.amax = 192

    FULL = (1 << 64) - 1
    def ts(name):
        if not cfg.diag: return
        if cfg.ts_only and name not in cfg.ts_only and name not in ("start", "setup", "issued"): return
        i = g.ts; g.ts += 1; g.maxts = max(getattr(g, "maxts", 0), g.ts)
        assert i < NTS - 3, name
        g.tsn[g.role].append((i, name))
        if name == "start":
            return
        if name == "issued":
            g.i_issued = i
            a(f"s_memtime s[{sTmp2}:{sTmp2+1}]\ns_waitcnt lgkmcnt(0)\ns_mov_b32 s92, s{sTmp2}")
            return
        if name == "setup":
            a(f"s_mov_b32 s{sTS}, s90\ns_mov_b32 s{sTS+NTS-3}, s91")
            if cfg.ts_issue: a(f"s_mov_b32 s{sTmp2}, s92")
            for z in list(range(1, NTS - 3)) + [NTS - 2, NTS - 1]: a(f"s_mov_b32 s{sTS+z}, 0")
            if cfg.ts_issue: a(f"s_mov_b32 s{sTS+g.i_issued}, s{sTmp2}")
        if cfg.ts_only and name not in cfg.ts_only:
            return
        a(f"s_memtime s[{sTmp2}:{sTmp2+1}]\ns_waitcnt lgkmcnt(0)\ns_mov_b32 s{sTS+i}, s{sTmp2}")
    def ts_dyn(name0, name1):
        if not cfg.diag: return
        if cfg.ts_only and name0 not in cfg.ts_only: return
        i = g.ts; g.ts += 2; g.maxts = max(getattr(g, "maxts", 0), g.ts)
        assert i + 1 < NTS - 3, name0
        g.tsn[g.role].append((i, name0)); g.tsn[g.role].append((i + 1, name1))
        if cfg.ts_only and name0 not in cfg.ts_only: return
        a(f"""s_memtime s[{sTmp2}:{sTmp2+1}]
        s_waitcnt lgkmcnt(0)
        s_cmp_eq_u32 s{sL}, 0
        s_cselect_b32 s{sTS+i}, s{sTmp2}, s{sTS+i}
        s_cselect_b32 s{sTS+i+1}, s{sTS+i+1}, s{sTmp2}""")

    def cnt(name):
        if not (cfg.diag and cfg.counters): return
        key = (g.role, name)
        if key not in g.cnts:
            i = g.ts; g.ts += 1; g.maxts = max(getattr(g, "maxts", 0), g.ts)
            assert i < NTS - 3, name
            g.cnts[key] = i; g.cnt_names.append((g.role, i, name))
        a(f"s_add_u32 s{sTS+g.cnts[key]}, s{sTS+g.cnts[key]}, 1")

    def rt_probe(name):
        if cfg.rt_probe != name: return
        lab = a.label("rp")
        if name == "start":
            cond = f"s_cmp_eq_u32 s2, 0\ns_cbranch_scc0 {lab}"
        else:
            cond = f"s_mul_hi_u32 s{sA}, s2, {(2**32 + 16) // 17}\ns_mul_i32 s{sB}, s{sA}, 17\ns_cmp_eq_u32 s{sB}, s2\ns_cbranch_scc0 {lab}"
        a(f"""
        s_cmp_eq_u32 s{sW}, 0
        s_cbranch_scc0 {lab}
        {cond}
        s_memrealtime s[{sTmp2}:{sTmp2+1}]
        s_load_dwordx2 s[92:93], s[0:1], 80
        s_waitcnt lgkmcnt(0)
        s_lshl_b32 s{sA}, s{sA}, 2
        v_mov_b32 v{vT0}, s{sA}
        v_mov_b32 v{vT1}, s{sTmp2}
        s_mov_b64 exec, 1
        global_store_dword v{vT0}, v{vT1}, s[92:93]
        s_mov_b64 exec, -1
        {lab}:
        """)

    def setexec(mask):
        if mask == FULL: a("s_mov_b64 exec, -1")
        elif isinstance(mask, str): a(f"s_mov_b64 exec, {mask}")
        elif mask < 65 or mask in (0xFFFF, 0xF, 0xFF):
            a(f"s_mov_b64 exec, 0x{mask:x}" if mask >= 65 else f"s_mov_b64 exec, {mask}")
        else:
            a(f"s_mov_b32 exec_lo, 0x{mask & 0xFFFFFFFF:x}\ns_mov_b32 exec_hi, 0x{mask >> 32:x}")
    EM4, EM2, EMEV = f"s[{sM4}:{sM4+1}]", f"s[{sM2}:{sM2+1}]", f"s[{sMEV}:{sMEV+1}]"

    def srd(dst, ptr_s, size):
        a(f"s_mov_b32 s{dst}, s{ptr_s}\ns_and_b32 s{dst+1}, s{ptr_s+1}, 0xffff\ns_mov_b32 s{dst+2}, 0x{size:x}\ns_mov_b32 s{dst+3}, 0x20000")

    def mfma(d, A, B, C=None):
        f = lambda x: x if isinstance(x, str) else vr(x, 4)
        c = f(d) if C is None else C
        a(f"v_mfma_f32_16x16x32_bf16 {f(d)}, {f(A)}, {f(B)}, {c}")

    def spin_fail(lbl_retry, sleep=0):
        if sleep: a(f"s_sleep {sleep}")
        a(f"s_sub_u32 s{sBud}, s{sBud}, 1\ns_cbranch_scc0 {lbl_retry}\ns_branch L_abort")
    def interleave(mf, va, start, per=2):
        va = list(va)
        for i, m in enumerate(mf):
            a(m)
            if i >= start:
                for _ in range(per):
                    if va: a(va.pop(0))
        for v in va: a(v)
    def mf(d, A, B, C=None):
        f = lambda x: x if isinstance(x, str) else vr(x, 4)
        return f"v_mfma_f32_16x16x32_bf16 {f(d)}, {f(A)}, {f(B)}, {f(d) if C is None else C}"

    def sent_max(regs, tmp):
        rs = list(regs)
        if len(rs) == 1: return rs[0]
        if len(rs) == 2:
            a(f"v_max_u32 v{tmp}, v{rs[0]}, v{rs[1]}"); rs = []
        else:
            a(f"v_max3_u32 v{tmp}, v{rs[0]}, v{rs[1]}, v{rs[2]}"); rs = rs[3:]
        while len(rs) >= 2:
            a(f"v_max3_u32 v{tmp}, v{tmp}, v{rs[0]}, v{rs[1]}"); rs = rs[2:]
        if rs: a(f"v_max_u32 v{tmp}, v{tmp}, v{rs[0]}")
        return tmp
    def sent_check(regs, tmp, lbl_ok):
        cur = sent_max(regs, tmp)
        a(f"v_cmp_eq_u32 vcc, -1, v{cur}\ns_cbranch_vccz {lbl_ok}")

    g.ool = []
    def store_local(instr):
        if cfg.force_global:
            a(instr + " sc1"); return
        l1 = a.label("stg"); l2 = a.label("std")
        a(f"s_cmp_eq_u32 s{sLocal}, 0\ns_cbranch_scc1 {l1}")
        a(instr)
        a(f"{l2}:")
        g.ool.append(f"{l1}:\n{instr} sc1\ns_branch {l2}")

    def dpp(op, d, s0, s1, ctrl, rm="0xf", bm="0xf"):
        if s1 is None: a(f"{op}_dpp v{d}, v{s0} {ctrl} row_mask:{rm} bank_mask:{bm}")
        else: a(f"{op}_dpp v{d}, v{s0}, v{s1} {ctrl} row_mask:{rm} bank_mask:{bm}")
    def row_reduce(op, v, steps=(8, 4, 2, 1)):
        for n in steps: dpp(op, v, v, v, f"row_ror:{n}")
    def xquad_reduce(op, v, tmp):
        a(f"v_mov_b32 v{tmp}, v{v}\nv_permlane32_swap_b32 v{v}, v{tmp}\n{op} v{v}, v{v}, v{tmp}")
        a(f"v_mov_b32 v{tmp}, v{v}\nv_permlane16_swap_b32 v{v}, v{tmp}\n{op} v{v}, v{v}, v{tmp}")
    def sum4(dst, b, tmp):
        a(f"v_add_f32 v{dst}, v{b}, v{b+1}\nv_add_f32 v{tmp}, v{b+2}, v{b+3}\nv_add_f32 v{dst}, v{dst}, v{tmp}")

    P = sTS
    EARLY = ""
    if cfg.dbg_span:
        EARLY = f"s_memrealtime s[94:95]"
    if cfg.diag:
        EARLY = f"s_memrealtime s[{sTmp2}:{sTmp2+1}]\ns_waitcnt lgkmcnt(0)\ns_mov_b32 s91, s{sTmp2}\ns_memtime s[{sTmp2}:{sTmp2+1}]\ns_waitcnt lgkmcnt(0)\ns_mov_b32 s90, s{sTmp2}"
    SLN = " nt" if cfg.sl_nt else ""
    a(f"""
    s_cmp_ge_u32 s2, 256
    s_cbranch_scc1 L_end
    {EARLY}
    s_load_dwordx4 s[{P+6}:{P+9}], s[0:1], 16          ; V, wq     (76..79)
    s_load_dwordx4 s[{P+2}:{P+5}], s[0:1], 0           ; x, K      (72..75)
    s_load_dwordx2 s[{P+18}:{P+19}], s[0:1], 88        ; ws        (88..89)
    s_load_dwordx2 s[{P}:{P+1}], s[0:1], 32            ; wo        (70..71)
    s_load_dwordx4 s[{P+10}:{P+13}], s[0:1], 48
    s_load_dwordx4 s[{P+14}:{P+17}], s[0:1], 64
    v_lshrrev_b32 v{vT0}, 6, v0
    v_and_b32 v{vLane}, 63, v0
    """)
    if cfg.prefetch_code:
        a(f"""
        s_getpc_b64 s[{sTmp2}:{sTmp2+1}]
        L_pfbase:
        v_readfirstlane_b32 s{sW}, v{vT0}
        v_lshlrev_b32 v{vT1}, {cfg.code_pf_shift}, v0
        s_mov_b32 s{sB}, (L_codeend - L_pfbase)
        v_cmp_gt_u32 vcc, s{sB}, v{vT1}
        s_and_b32 s{sJ}, s2, 7
        s_and_saveexec_b64 s[{sEx}:{sEx+1}], vcc
        s_cbranch_execz L_nopf
        global_load_dword v{vU+15}, v{vT1}, s[{sTmp2}:{sTmp2+1}]
        L_nopf:
        s_mov_b64 exec, s[{sEx}:{sEx+1}]
        """)
    else:
        a(f"s_and_b32 s{sJ}, s2, 7\nv_readfirstlane_b32 s{sW}, v{vT0}")
    a(f"""
    s_lshr_b32 s{sM}, s2, 3
    v_lshrrev_b32 v{vT2}, 1, v{vLane}
    v_lshlrev_b32 v{vT2}, 13, v{vT2}
    v_and_b32 v{vT3}, 1, v{vLane}
    v_lshl_add_u32 v{vT2}, v{vT3}, 4, v{vT2}
    v_lshrrev_b32 v{vT0}, {4 if "q" in cfg.sub2 else 3}, v{vLane}
    v_lshlrev_b32 v{vT0}, 13, v{vT0}
    v_and_b32 v{vT3}, {15 if "q" in cfg.sub2 else 7}, v{vLane}
    v_lshl_add_u32 v{vT0}, v{vT3}, {6 if "q" in cfg.sub2 else 7}, v{vT0}
    s_lshl_b32 s{sC}, s{sJ}, 10
    s_lshl_b32 s{sA}, s{sM}, 2
    s_add_u32 s{sA}, s{sA}, s{sW}
    s_lshl_b32 s{sA}, s{sA}, 15
    s_add_u32 s{sA}, s{sA}, s{sC}
    s_lshl_b32 s{sB}, s{sW}, 20
    s_add_u32 s{sB}, s{sB}, s{sC}
    s_lshl_b32 s{sC}, s{sM}, 5
    s_add_u32 s{sB}, s{sB}, s{sC}
    s_lshl_b32 s{sC}, s{sW}, 12
    s_add_u32 s{sC}, s{sC}, {L_WQ}
    s_mov_b32 s{sWQ+2}, 0x400000
    s_mov_b32 s{sWQ+3}, 0x20000
    s_waitcnt lgkmcnt(0)
    s_mov_b32 s{sWQ}, s{P+8}
    s_and_b32 s{sWQ+1}, s{P+9}, 0xffff
    """)
    if cfg.line_pf and "q" in cfg.pf_which:
        if "q" not in cfg.sub2: setexec(0xFFFFFFFF)
        a(f"buffer_load_dword v{vJ}, v{vT0}, {sr(sWQ,4)}, s{sA} offen{cfg.pf_pol}")
        if "q" not in cfg.sub2: setexec(FULL)
    for u in range(4):
        a(f"""
        s_mov_b32 m0, s{sC}
        s_add_u32 s{sC}, s{sC}, 1024
        buffer_load_dwordx4 v{vT2}, {sr(sWQ,4)}, s{sB} offen{SLN} lds
        s_add_u32 s{sB}, s{sB}, {32*8192}
        """)
    XA = vA + 8
    ROT = {"m8": f"s_and_b32 s{sRot}, s{sM}, 7\ns_lshl_b32 s{sRot}, s{sRot}, 1",
           "mj8": f"s_add_u32 s{sRot}, s{sM}, s{sJ}\ns_and_b32 s{sRot}, s{sRot}, 7\ns_lshl_b32 s{sRot}, s{sRot}, 1",
           "m16": f"s_and_b32 s{sRot}, s{sM}, 15",
           "mj16": f"s_lshl_b32 s{sRot}, s{sJ}, 1\ns_add_u32 s{sRot}, s{sRot}, s{sM}\ns_and_b32 s{sRot}, s{sRot}, 15",
           "none": f"s_mov_b32 s{sRot}, 0",
           "m4x4": f"s_and_b32 s{sRot}, s{sM}, 3\ns_lshl_b32 s{sRot}, s{sRot}, 2"}[cfg.rot_mode]
    a(f"""
    v_and_b32 v{vR16}, 15, v0
    v_lshrrev_b32 v{vQd}, 4, v{vLane}
    s_and_b32 s{sIdx}, s{sM}, 15
    {ROT}
    s_lshr_b32 s{sB}, s{sM}, 4
    s_lshl_b32 s{sB}, s{sB}, 3
    s_add_u32 s{sB}, s{sB}, s{sJ}
    s_lshl_b32 s{sB}, s{sB}, 23
    s_lshl_b32 s{sC}, s{sIdx}, 16
    s_add_u32 s{sKV}, s{sB}, s{sC}
    s_add_u32 s{sKV}, s{sKV}, 0x700000
    v_lshlrev_b32 v{vT1}, 4, v{vLane}          ; lane*16
    """)
    srd(sKS, P + 4, 0x8000000)
    for i in range(4):
        a(f"""
        v_add_u32 v{vT3}, {4*i}, v{vQd}
        v_xor_b32 v{vT3}, v{vT3}, v{vR16}
        v_lshlrev_b32 v{vT3}, 4, v{vT3}
        v_lshl_add_u32 v{vKs+i}, v{vQd}, 8, v{vT3}
        """)
    srd(sWS, P + 18, WS_SIZE)
    if cfg.const_tag: a(f"s_mov_b32 s{sT}, 0x12345670")
    else: a(f"s_load_dword s{sT}, s[{P+18}:{P+19}], {WS_EPOCH}")
    srd(sX0, P + 2, 2048)
    a(f"s_cmp_eq_u32 s{sW}, 0\ns_cbranch_scc0 L_nox0")
    a(f"""
    s_mov_b32 m0, {L_X0}
    s_nop 0
    buffer_load_dwordx4 v{vT1}, {sr(sX0,4)}, 0 offen lds
    buffer_load_dwordx4 v{vT1}, {sr(sX0,4)}, 0 offen offset:1024 lds
    L_nox0:
    """)
    a(f"""
    s_mul_i32 s{sOown}, s{sJ}, {O_J}
    s_lshr_b32 s{sB}, s{sM}, 4
    s_lshl_b32 s{sB}, s{sB}, 14
    s_add_u32 s{sOown}, s{sOown}, s{sB}
    s_lshl_b32 s{sB}, s{sIdx}, 4
    s_add_u32 s{sOown}, s{sOown}, s{sB}
    s_add_u32 s{sOown}, s{sOown}, {WS_O}
    s_lshl_b32 s{sC}, s{sIdx}, 10
    s_lshl_b32 s{sD}, s{sJ}, 7
    s_add_u32 s{sC}, s{sC}, s{sD}
    s_add_u32 s{sXw}, s{sC}, {WS_X}
    s_mov_b32 s{sXr}, {WS_X}
    s_lshl_b32 s{sHb}, s{sJ}, 10
    s_add_u32 s{sHb}, s{sHb}, {WS_H}
    s_lshl_b32 s{sQ2w}, s{sJ}, 11
    s_add_u32 s{sQ2r}, s{sQ2w}, {WS_Q2}
    ; producer m: h = m>>3, c = (m>>1)&3, e0 = 2*(m&1)  ->  c*256 + e0*64 + h*16
    s_lshr_b32 s{sB}, s{sM}, 1
    s_and_b32 s{sB}, s{sB}, 3
    s_lshl_b32 s{sB}, s{sB}, 8
    s_add_u32 s{sQ2w}, s{sQ2r}, s{sB}
    s_and_b32 s{sB}, s{sM}, 1
    s_lshl_b32 s{sB}, s{sB}, 7
    s_add_u32 s{sQ2w}, s{sQ2w}, s{sB}
    s_lshr_b32 s{sB}, s{sM}, 3
    s_lshl_b32 s{sB}, s{sB}, 4
    s_add_u32 s{sQ2w}, s{sQ2w}, s{sB}
    s_lshr_b32 s{sB}, s{sM}, 4
    s_lshl_b32 s{sB}, s{sB}, 10
    s_add_u32 s{sQ2r}, s{sQ2r}, s{sB}
    """)
    if cfg.no_clear0: a("s_branch L_clr_done")
    a(f"""
    v_mov_b32 v{vU}, -1
    v_mov_b32 v{vU+1}, -1
    v_mov_b32 v{vU+2}, -1
    v_mov_b32 v{vU+3}, -1
    v_bfe_u32 v{vT3}, v{vLane}, 1, 1
    v_lshlrev_b32 v{vT3}, 10, v{vT3}
    v_and_b32 v{vT0}, 1, v{vLane}
    v_lshl_add_u32 v{vT3}, v{vT0}, 6, v{vT3}
    v_add_u32 v{vT0}, s{sQ2w}, v{vT3}
    s_cmp_lt_u32 s{sM}, 16
    s_cbranch_scc0 L_clr_B
    s_cmp_eq_u32 s{sW}, 1
    s_cbranch_scc0 L_clr_A2
    """)
    setexec(0xF)
    a(f"""
    s_branch L_clr_st
    L_clr_A2:
    s_cmp_eq_u32 s{sW}, 2
    s_cbranch_scc0 L_clr_done
    s_xor_b32 s{sC}, s{sXw}, 0x2000
    s_add_u32 s{sC}, s{sC}, 16384
    v_mov_b32 v{vT0}, s{sXw}
    v_mov_b32 v{vT1}, s{sC}
    v_bfe_u32 v{vT3}, v{vLane}, 3, 1
    v_cmp_eq_u32 vcc, 1, v{vT3}
    v_cndmask_b32 v{vT0}, v{vT0}, v{vT1}, vcc
    v_lshrrev_b32 v{vT3}, 4, v{vLane}
    v_lshlrev_b32 v{vT3}, 15, v{vT3}
    v_and_b32 v{vT1}, 7, v{vLane}
    v_lshl_add_u32 v{vT3}, v{vT1}, 4, v{vT3}
    v_add_u32 v{vT0}, v{vT0}, v{vT3}
    s_branch L_clr_st
    L_clr_B:
    s_cmp_eq_u32 s{sW}, 2
    s_cbranch_scc0 L_clr_done
    """)
    setexec(0xF)
    a(f"""
    s_cmp_ge_u32 s{sIdx}, 14
    s_cbranch_scc1 L_clr_st
    s_lshl_b32 s{sD}, s{sIdx}, 6
    s_add_u32 s{sC}, s{sHb}, s{sD}
    """)
    setexec(0xFF0)
    a(f"""
    v_bfe_u32 v{vT3}, v{vLane}, 3, 1
    v_lshlrev_b32 v{vT3}, 13, v{vT3}
    v_and_b32 v{vT1}, 3, v{vLane}
    v_lshl_add_u32 v{vT3}, v{vT1}, 4, v{vT3}
    v_add_u32 v{vT0}, s{sC}, v{vT3}
    """)
    setexec(0xFFF)
    a("L_clr_st:")
    a(f"buffer_store_dwordx4 {vr(vU,4)}, v{vT0}, {sr(sWS,4)}, 0 offen sc1")
    setexec(FULL)
    a("L_clr_done:")
    def emit_wpf(qWO, qGT, reload_ptrs):
        n = 0
        a(f"s_lshl_b32 s{sD}, s{sM}, 2\ns_add_u32 s{sD}, s{sD}, s{sW}               ; q = 4m + w")
        if reload_ptrs:
            a(f"""
            s_load_dwordx2 s[{qWO}:{qWO+1}], s[0:1], 32
            s_load_dwordx2 s[{qGT}:{qGT+1}], s[0:1], 48
            s_waitcnt lgkmcnt(0)
            s_and_b32 s{qWO+1}, s{qWO+1}, 0xffff
            s_mov_b32 s{qWO+2}, 0x400000
            s_and_b32 s{qGT+1}, s{qGT+1}, 0xffff
            s_mov_b32 s{qGT+2}, {512*1792*2}
            """)
        if "o" in cfg.pf_stream:
            a(f"""
            v_lshlrev_b32 v{vT0}, {6 if "o" in cfg.sub2 else 7}, v{vLane}
            s_lshl_b32 s{sB}, s{sJ}, 19
            s_lshl_b32 s{sC}, s{sD}, 12
            s_add_u32 s{sB}, s{sB}, s{sC}
            """)
            if "o" not in cfg.sub2: setexec(0xFFFFFFFF)
            a(f"buffer_load_dword v{vJ}, v{vT0}, {sr(qWO,4)}, s{sB} offen{cfg.pf_spol}")
            setexec(FULL); n += 1
        if "g" in cfg.pf_stream or "u" in cfg.pf_stream:
            a(f"""
            v_mul_u32_u24 v{vT0}, 52, v{vLane}
            v_lshrrev_b32 v{vT0}, 8, v{vT0}
            v_mul_u32_u24 v{vT1}, 5, v{vT0}
            v_sub_u32 v{vT1}, v{vLane}, v{vT1}
            v_mul_u32_u24 v{vT0}, 3584, v{vT0}
            v_lshl_add_u32 v{vT0}, v{vT1}, 7, v{vT0}
            s_mul_i32 s{sB}, s{sD}, {4*3584}
            s_mul_i32 s{sC}, s{sJ}, 448
            s_and_b32 s{sC}, s{sC}, 0xffffff80
            s_add_u32 s{sB}, s{sB}, s{sC}
            """)
            setexec((1 << 20) - 1)
            if "g" in cfg.pf_stream:
                a(f"buffer_load_dword v{vJ}, v{vT0}, {sr(qGT,4)}, s{sB} offen{cfg.pf_spol}"); n += 1
            if "u" in cfg.pf_stream:
                a(f"buffer_load_dword v{vJ}, v{vT0}, {sr(sUP,4)}, s{sB} offen{cfg.pf_spol}"); n += 1
            setexec(FULL)
        if "d" in cfg.pf_stream:
            a(f"""
            v_lshlrev_b32 v{vT0}, 7, v{vLane}
            s_min_u32 s{sB}, s{sD}, 111
            s_lshl_b32 s{sB}, s{sB}, 11
            s_mul_i32 s{sC}, s{sJ}, {224*1024}
            s_add_u32 s{sB}, s{sB}, s{sC}
            """)
            setexec(0xFFFF)
            a(f"buffer_load_dword v{vJ}, v{vT0}, {sr(sDN,4)}, s{sB} offen{cfg.pf_spol}")
            setexec(FULL); n += 1
        return n

    def page_off(t, dst):
        a(f"""
        s_add_u32 s{dst}, s{sW}, s{sRot}
        s_add_u32 s{dst}, s{dst}, {4*t}
        s_and_b32 s{dst}, s{dst}, 15
        s_lshl_b32 s{dst}, s{dst}, 12
        s_add_u32 s{dst}, s{dst}, s{sKV}
        """)
    def k_page(t):
        page_off(t, sD)
        a(f"s_lshl_b32 s{sC}, s{sW}, 14\ns_add_u32 s{sC}, s{sC}, {L_K + t*4096}\ns_mov_b32 m0, s{sC}\ns_nop 0")
        for ii in range(4):
            a(f"buffer_load_dwordx4 v{vKs+ii}, {sr(sKS,4)}, s{sD} offen offset:{ii*1024}{cfg.kv_pol} lds")
    nKpA = cfg.nKA // 4
    for t in range(cfg.nKb1): k_page(t)
    nPFe = 0
    if cfg.pf_stream and cfg.pf_early:
        srd(sVS, P, 0x400000)
        srd(sOUT, P + 10, 512 * 1792 * 2)
        srd(sUP, P + 12, 512 * 1792 * 2)
        srd(sDN, P + 14, 1792 * 512 * 2)
        nPFe = emit_wpf(sVS, sOUT, False)
    ts("start")
    if cfg.ts_issue: ts("issued")

    srd(sVS, P + 6, 0x8000000)
    srd(sUP, P + 12, 512 * 1792 * 2)
    srd(sDN, P + 14, 1792 * 512 * 2)
    srd(sOUT, P + 16, 2048)
    a(f"""
    s_cmp_lt_u32 s{sM}, 16
    s_cselect_b32 s{sW2}, s{P}, s{P+10}
    s_cselect_b32 s{sW2+1}, s{P+1}, s{P+11}
    s_mov_b32 s{sW2+2}, {512*1792*2}
    s_cselect_b32 s{sW2+2}, 0x400000, s{sW2+2}
    s_and_b32 s{sW2+1}, s{sW2+1}, 0xffff
    s_mov_b32 s{sW2+3}, 0x20000
    s_mov_b32 s{sBud}, {cfg.budget}
    s_getreg_b32 s{sXcc}, hwreg(HW_REG_XCC_ID, 0, 4)
    s_mov_b32 s{sMDIAG}, 0x00ff00ff
    s_mov_b32 s{sMDIAG+1}, 0xff00ff00
    s_mov_b32 s{sM4}, 0x000f000f
    s_mov_b32 s{sM4+1}, 0x000f000f
    s_mov_b32 s{sM2}, 0x00030003
    s_mov_b32 s{sM2+1}, 0x00030003
    s_mov_b32 s{sMN1}, 0x00020002
    s_mov_b32 s{sMN1+1}, 0x00020002
    s_mov_b32 s{sMEV}, 0x55555555
    s_mov_b32 s{sMEV+1}, 0x55555555
    s_mov_b32 s{sL}, 0
    s_mul_i32 s{sOcons}, s{sJ}, {O_J}
    s_lshl_b32 s{sB}, s{sW}, 12
    s_add_u32 s{sOcons}, s{sOcons}, s{sB}
    s_add_u32 s{sOcons}, s{sOcons}, {WS_O}
    """)
    for i in range(4): a(f"v_mov_b32 v{vOnes+i}, 0x3f803f80")
    for i in range(16): a(f"v_mov_b32 v{vQ+i}, 0")
    for i in range(8): a(f"v_mov_b32 v{vHop+i}, 0")
    a(f"v_mov_b32 v{vQ1a}, 0\nv_mov_b32 v{vQ1d}, 0\nv_mov_b32 v{vQ1d+1}, 0")
    h3 = vU; qh = vU + 1; ql = vU + 2
    a(f"""
    v_and_b32 v{h3}, 3, v{vR16}
    v_lshrrev_b32 v{qh}, 1, v{vQd}
    v_and_b32 v{ql}, 1, v{vQd}
    v_and_b32 v{vT0}, 7, v{vR16}
    v_lshlrev_b32 v{vT0}, 7, v{vT0}
    v_lshrrev_b32 v{vT1}, 3, v{vR16}
    v_lshl_add_u32 v{vT0}, v{vT1}, 6, v{vT0}
    v_lshl_add_u32 v{vaX}, v{vQd}, 4, v{vT0}
    v_lshrrev_b32 v{vT0}, 3, v{vLane}
    v_and_b32 v{vT1}, 2, v{vT0}
    v_and_b32 v{vT2}, 7, v{vLane}
    v_xor_b32 v{vT1}, v{vT1}, v{vT2}
    v_lshlrev_b32 v{vT1}, 4, v{vT1}
    v_lshl_add_u32 v{vT0}, v{vT0}, 7, v{vT1}
    s_lshl_b32 s{sB}, s{sW}, 12
    s_xor_b32 s{sC}, s{sB}, 0x2000
    s_add_u32 s{sC}, s{sC}, 16384
    s_lshr_b32 s{sA}, s{sXcc}, 2
    s_lshr_b32 s{sD}, s{sW}, 1
    s_cmp_eq_u32 s{sA}, s{sD}
    s_cselect_b32 s{sB}, s{sB}, s{sC}
    v_add_u32 v{vaXg}, s{sB}, v{vT0}
    v_and_b32 v{vT0}, 7, v{vR16}
    v_lshrrev_b32 v{vT1}, 3, v{vR16}
    v_lshl_add_u32 v{vT1}, v{vT1}, 2, v{vQd}
    v_and_b32 v{vT2}, 2, v{vT0}
    v_xor_b32 v{vT1}, v{vT1}, v{vT2}
    v_lshlrev_b32 v{vT1}, 4, v{vT1}
    v_lshl_add_u32 v{vT0}, v{vT0}, 7, v{vT1}
    s_lshl_b32 s{sXI}, s{sW}, 12
    s_add_u32 s{sXI}, s{sXI}, {L_XI}
    v_add_u32 v{vaXr}, s{sXI}, v{vT0}
    v_lshlrev_b32 v{vaO0}, 4, v{vLane}
    v_add_u32 v{vaO1}, 16384, v{vaO0}
    v_lshl_add_u32 v{vT0}, v{vQd}, 2, v{vR16}
    v_and_b32 v{vT0}, 15, v{vT0}
    v_lshlrev_b32 v{vT0}, 4, v{vT0}
    s_mul_i32 s{sB}, s{sW}, 3840
    s_sub_u32 s{sB}, {O_STATS}, s{sB}
    v_add_u32 v{vaS0}, s{sB}, v{vT0}
    v_add_u32 v{vaS1}, 1024, v{vaS0}
    v_lshlrev_b32 v{vT0}, 6, v{vQd}
    v_lshl_add_u32 v{vaQ2}, v{h3}, 4, v{vT0}
    v_lshlrev_b32 v{vT0}, 10, v{ql}
    v_lshrrev_b32 v{vT1}, 3, v{vR16}
    v_lshl_add_u32 v{vT0}, v{vT1}, 6, v{vT0}
    v_and_b32 v{vT1}, 7, v{vR16}
    v_lshl_add_u32 v{vaStQ}, v{vT1}, 1, v{vT0}
    v_lshlrev_b32 v{vT0}, 12, v{h3}
    v_lshl_add_u32 v{vT0}, v{vQd}, 10, v{vT0}
    v_bfe_u32 v{vT1}, v{vLane}, 2, 2
    v_lshl_add_u32 v{vaClrO}, v{vT1}, 8, v{vT0}
    v_and_b32 v{vT0}, 1, v{vR16}
    v_lshlrev_b32 v{vT0}, 5, v{vT0}
    v_lshl_add_u32 v{vT0}, v{qh}, 6, v{vT0}
    v_lshl_add_u32 v{vT0}, v{ql}, 4, v{vT0}
    s_lshl_b32 s{sB}, s{sW}, 7
    v_add_u32 v{vaH}, s{sB}, v{vT0}
    v_lshlrev_b32 v{vT0}, 6, v{vQd}
    v_lshl_add_u32 v{vT0}, v{h3}, 4, v{vT0}
    v_add_u32 v{vaPr}, {L_PBUF}, v{vT0}
    v_lshrrev_b32 v{vT1}, 2, v{vR16}
    v_lshl_add_u32 v{vT1}, v{vT1}, 9, v{vaPr}
    s_lshr_b32 s{sB}, s{sW}, 1
    s_lshl_b32 s{sB}, s{sB}, 8
    s_and_b32 s{sC}, s{sW}, 1
    s_lshl_b32 s{sC}, s{sC}, 3
    s_add_u32 s{sB}, s{sB}, s{sC}
    v_add_u32 v{vaPw}, s{sB}, v{vT1}
    v_lshlrev_b32 v{vT0}, 4, v{h3}
    v_add_u32 v{vaSm}, {L_SMAX}, v{vT0}
    s_lshl_b32 s{sB}, s{sW}, 2
    v_add_u32 v{vaSmW}, s{sB}, v{vaSm}
    v_lshlrev_b32 v{vT0}, 4, v{vLane}
    v_add_u32 v{vaRedW}, s{sB}, v{vT0}
    v_and_b32 v{vT1}, 1, v{vR16}
    v_lshl_add_u32 v{vT1}, v{qh}, 1, v{vT1}
    v_lshlrev_b32 v{vT1}, 4, v{vT1}
    v_add_u32 v{vaRedZ}, s{sB}, v{vT1}
    v_lshl_add_u32 v{vT0}, v{ql}, 5, v{vR16}
    v_lshlrev_b32 v{vaFinW}, 4, v{vT0}
    v_lshlrev_b32 v{vaFinZ}, 5, v{ql}
    v_lshlrev_b32 v{vT0}, 9, v{ql}
    v_add_u32 v{vaFinQZ}, 256, v{vT0}
    v_lshlrev_b32 v{vaFinO}, 4, v{vLane}
    v_lshlrev_b32 v{vT0}, 5, v{ql}
    v_lshl_add_u32 v{vaStH}, v{vR16}, 1, v{vT0}
    v_lshlrev_b32 v{vT0}, 6, v{ql}
    v_lshl_add_u32 v{vT0}, v{qh}, 5, v{vT0}
    v_lshl_add_u32 v{vaStX}, v{vR16}, 1, v{vT0}
    v_lshlrev_b32 v{vT0}, 12, v{vR16}
    v_lshl_add_u32 v{vT0}, v{vQd}, 8, v{vT0}
    s_lshl_b32 s{sB}, s{sW}, 10
    v_add_u32 v{vaStO}, s{sB}, v{vT0}
    s_lshr_b32 s{sB}, s{sM}, 4
    s_mul_i32 s{sB}, s{sB}, 15360
    s_sub_u32 s{sB}, {O_STATS}, s{sB}
    v_lshlrev_b32 v{vT0}, 8, v{vLane}
    v_add_u32 v{vaStS}, s{sB}, v{vT0}
    """)
    a(f"s_lshl_b32 s{sB}, s{sW}, 14\ns_add_u32 s{sB}, s{sB}, {L_K}")
    for c in range(4):
        a(f"""
        v_add_u32 v{vT0}, {4*c}, v{vQd}
        v_xor_b32 v{vT0}, v{vT0}, v{vR16}
        v_lshlrev_b32 v{vT0}, 4, v{vT0}
        v_lshl_add_u32 v{vT0}, v{vR16}, 8, v{vT0}
        v_add_u32 v{vKr+c}, s{sB}, v{vT0}
        """)
    for e in range(2):
        a(f"""
        v_add_u32 v{vT1}, {4*e}, v{vQd}
        v_lshrrev_b32 v{vT2}, 1, v{vR16}
        v_xor_b32 v{vT1}, v{vT1}, v{vT2}
        v_lshlrev_b32 v{vT1}, 1, v{vT1}
        v_and_b32 v{vT2}, 1, v{vR16}
        v_or_b32 v{vT1}, v{vT1}, v{vT2}
        v_lshlrev_b32 v{vT1}, 4, v{vT1}
        v_lshl_add_u32 v{vVs+e}, v{vQd}, 8, v{vT1}
        """)
    for nt in range(2):
        a(f"""
        v_lshrrev_b32 v{vT1}, 2, v{vR16}
        v_lshl_add_u32 v{vT0}, v{vQd}, 2, v{vT1}
        v_and_b32 v{vT2}, 7, v{vT0}
        s_lshl_b32 s{sB}, s{sW}, 1
        s_add_u32 s{sB}, s{sB}, {nt}
        v_xor_b32 v{vT2}, s{sB}, v{vT2}
        v_lshlrev_b32 v{vT2}, 5, v{vT2}
        v_lshl_add_u32 v{vT0}, v{vT0}, 8, v{vT2}
        v_lshl_add_u32 v{vT0}, v{h3}, 3, v{vT0}
        v_add_u32 v{vVr+nt}, {L_V}, v{vT0}
        """)
    for i in range(16): a(f"v_mov_b32 v{XA+i}, 0")
    if cfg.w_inter:
        a(f"""
        s_cmp_lt_u32 s{sM}, 16
        s_cbranch_scc0 L_wsB
        v_lshrrev_b32 v{vT0}, 2, v{vLane}
        v_lshlrev_b32 v{vT0}, 10, v{vT0}
        v_and_b32 v{vT1}, 3, v{vLane}
        v_lshl_add_u32 v{vWs}, v{vT1}, 4, v{vT0}
        s_lshl_b32 s{sWb}, s{sJ}, 19
        s_lshl_b32 s{sC}, s{sW}, 17
        s_add_u32 s{sWb}, s{sWb}, s{sC}
        s_lshl_b32 s{sC}, s{sIdx}, 6
        s_add_u32 s{sWb}, s{sWb}, s{sC}
        s_mov_b32 s{sWst}, 16384
        s_mov_b32 s{sUP}, s{sW2}
        s_mov_b32 s{sUP+1}, s{sW2+1}
        s_mov_b32 s{sUP+2}, s{sW2+2}
        s_branch L_wsD
        L_wsB:
        v_lshrrev_b32 v{vT0}, 1, v{vLane}
        v_mul_u32_u24 v{vT0}, 3584, v{vT0}
        v_and_b32 v{vT1}, 1, v{vLane}
        v_lshl_add_u32 v{vWs}, v{vT1}, 4, v{vT0}
        s_mul_i32 s{sWb}, s{sW}, {128*3584}
        s_mul_i32 s{sC}, s{sJ}, 448
        s_add_u32 s{sWb}, s{sWb}, s{sC}
        s_lshl_b32 s{sC}, s{sIdx}, 5
        s_add_u32 s{sWb}, s{sWb}, s{sC}
        s_mov_b32 s{sWst}, {32*3584}
        L_wsD:
        """)
    rt_probe("setup")
    ts("setup")
    a(f"s_waitcnt vmcnt({4*cfg.nKb1 + nPFe})")
    ts("wq_landed")
    for t in range(cfg.nKb1, nKpA): k_page(t)

    def tr_base(dst, rowbytes, rowmul, sadd, const):
        sh = rowbytes.bit_length() - 1; rm = rowmul.bit_length() - 1
        a(f"""
        v_lshrrev_b32 v{vT1}, 2, v{vR16}
        v_lshl_add_u32 v{vT1}, v{vQd}, {rm}, v{vT1}
        v_lshlrev_b32 v{vT1}, {sh}, v{vT1}
        v_and_b32 v{vT2}, 3, v{vR16}
        v_lshl_add_u32 v{vT1}, v{vT2}, 3, v{vT1}
        v_add_u32 v{vT1}, s{sadd}, v{vT1}
        v_add_u32 v{dst}, {const}, v{vT1}
        """)

    def ln_stats(s1, s2, mean, rstd):
        a(f"""
        v_mul_f32 v{mean}, {f2u(1.0/512):#x}, v{s1}
        v_mul_f32 v{s2}, {f2u(1.0/512):#x}, v{s2}
        v_fma_f32 v{s2}, -v{mean}, v{mean}, v{s2}
        v_max_f32 v{s2}, 0, v{s2}
        v_add_f32 v{s2}, {f2u(1e-5):#x}, v{s2}
        v_rsq_f32 v{rstd}, v{s2}
        """)
    def sum4r(b):
        a(f"v_add_f32 v{b}, v{b}, v{b+1}\nv_add_f32 v{b+2}, v{b+2}, v{b+3}\nv_add_f32 v{b}, v{b}, v{b+2}")

    def stats_valu(z):
        L = [f"v_add_f32 v{z}, v{vAcc+8}, v{vAcc+9}", f"v_add_f32 v{vT3}, v{vAcc+10}, v{vAcc+11}", f"v_add_f32 v{z}, v{z}, v{vT3}",
             f"v_cndmask_b32 v{z}, 0, v{z}, s[{sMDIAG}:{sMDIAG+1}]"]
        for n in (8, 4, 2, 1):
            L.append(f"v_add_f32_dpp v{z}, v{z}, v{z} row_ror:{n} row_mask:0xf bank_mask:0xf")
        L += [f"v_add_f32 v{z+1}, v{vAcc+12}, v{vAcc+13}", f"v_add_f32 v{vT3}, v{vAcc+14}, v{vAcc+15}", f"v_add_f32 v{z+1}, v{z+1}, v{vT3}",
              f"v_cndmask_b32 v{z}, v{z+1}, v{z}, s[{sMN1}:{sMN1+1}]"]
        return L
    def stats_mf(X):
        return [mf(vAcc + 8, X + 4*u, X + 4*u, "0" if u == 0 else None) for u in range(4)] + \
               [mf(vAcc + 12, X + 4*u, vOnes, "0" if u == 0 else None) for u in range(4)]

    def q_core(X):
        M = stats_mf(X) + [mf(vAcc, X + 4*u, ar(aWq + 4*u, 4), "0" if u == 0 else None) for u in range(4)]
        interleave(M, stats_valu(vU), 8, 2)
        sum4(vU + 2, vAcc, vT3)
        a(f"""
        v_permlane16_swap_b32 v{vU+2}, v{vU}
        v_add_f32 v{vU}, v{vU}, v{vU+2}
        ds_write_b32 v{vaRedW}, v{vU} offset:{R_Q}
        s_waitcnt lgkmcnt(0)
        s_barrier
        """)
    def q_final(first):
        lab = a.label("qf")
        a(f"s_cmp_eq_u32 s{sW}, 0\ns_cbranch_scc0 {lab}")
        setexec(0xFFFFFFFF)
        a(f"""
        ds_read_b128 {vr(vU,4)}, v{vaFinW} offset:{R_Q}
        ds_read_b128 {vr(vU+4,4)}, v{vaFinQZ} offset:{R_Q}
        ds_read_b128 {vr(vU+8,4)}, v{vaFinQZ} offset:{R_Q+16}
        """)
        if first:
            a(f"ds_read_b128 {vr(vU+12,4)}, v{vaFinW} offset:{R_COL}")
        a("s_waitcnt lgkmcnt(0)")
        if first:
            sum4r(vU + 12); a(f"v_mov_b32 v{vCs}, v{vU+12}")
        sum4r(vU + 4); sum4r(vU + 8); sum4r(vU)
        ln_stats(vU + 4, vU + 8, vU + 5, vU + 6)
        a(f"""
        v_fma_f32 v{vU}, -v{vU+5}, v{vCs}, v{vU}
        v_mul_f32 v{vU}, v{vU}, v{vU+6}
        """)
        dpp("v_mov_b32", vU + 1, vU, None, "quad_perm:[1,0,3,2]")
        a(f"v_cvt_pk_bf16_f32 v{vU+2}, v{vU}, v{vU+1}")
        if first:
            a(f"""
            v_mov_b32 v{vQ1d}, v{vU+2}
            v_mov_b32 v{vQ1d+1}, s{sTX}
            s_lshl_b32 s{sB}, s{sJ}, 12
            s_lshl_b32 s{sC}, s{sM}, 7
            s_add_u32 s{sB}, s{sB}, s{sC}
            s_add_u32 s{sB}, s{sB}, {WS_Q1}
            v_lshlrev_b32 v{vT0}, 1, v{vaStH}
            v_add_u32 v{vQ1a}, s{sB}, v{vT0}
            """)
            setexec(0x55555555)
            a(f"buffer_store_dwordx2 {vr(vQ1d,2)}, v{vQ1a}, {sr(sWS,4)}, 0 offen" + (" sc1" if cfg.force_global else ""))
        else:
            a(f"v_min_u32 v{vU+2}, 0xfffffffe, v{vU+2}")
            setexec(0x55555555)
            store_local(f"buffer_store_dword v{vU+2}, v{vaStQ}, {sr(sWS,4)}, s{sQ2w} offen")
        setexec(FULL)
        a(f"{lab}:")

    def s_qk_max():
        for c in range(4):
            for t in range(4):
                mfma(vS + 4*t, ar(aK + 16*t + 4*c, 4), vQ + 4*c, "0" if c == 0 else None)
        for t in range(1, 4):
            for r in range(4):
                dpp("v_mov_b32", vS + r, vS + 4*t + r, None, f"row_shr:{4*t}", bm=f"0x{1<<t:x}")
        a(f"v_max3_f32 v{vU}, v{vS}, v{vS+1}, v{vS+2}\nv_max_f32 v{vU}, v{vU}, v{vS+3}")
        row_reduce("v_max_f32", vU, (8, 4))
        xquad_reduce("v_max_f32", vU, vT0)
        setexec(0xF)
        a(f"ds_write_b32 v{vaSmW}, v{vU}")
        setexec(FULL)
        a("s_waitcnt lgkmcnt(0)\ns_barrier")
    def s_exp_p():
        a(f"""
        ds_read_b128 {vr(vU+4,4)}, v{vaSm}
        s_mov_b32 s{sB}, {f2u(C_SCALE):#x}
        s_waitcnt lgkmcnt(0)
        v_max3_f32 v{vU}, v{vU+4}, v{vU+5}, v{vU+6}
        v_max_f32 v{vU}, v{vU}, v{vU+7}
        v_mul_f32 v{vMc}, s{sB}, v{vU}
        """)
        for i in range(4): a(f"v_fma_f32 v{vS+i}, v{vS+i}, s{sB}, -v{vMc}")
        for i in range(4): a(f"v_exp_f32 v{vS+i}, v{vS+i}")
        a(f"""
        v_cvt_pk_bf16_f32 v{vU+2}, v{vS}, v{vS+1}
        v_cvt_pk_bf16_f32 v{vU+3}, v{vS+2}, v{vS+3}
        ds_write_b64 v{vaPw}, {vr(vU+2,2)}
        v_add_f32 v{vU}, v{vS}, v{vS+1}
        v_add_f32 v{vU+1}, v{vS+2}, v{vS+3}
        v_add_f32 v{vU}, v{vU}, v{vU+1}
        """)
        row_reduce("v_add_f32", vU, (8, 4))
        xquad_reduce("v_add_f32", vU, vT0)
        setexec(0xF)
        a(f"ds_write_b32 v{vaSmW}, v{vU} offset:{L_LSUM-L_SMAX}")
        setexec(FULL)
        a("s_waitcnt lgkmcnt(0)\ns_barrier")
        for blk in range(8):
            a(f"ds_read_b128 {vr(vP+4*blk,4)}, v{vaPr} offset:{blk*256}")
    def s_stats_prep():
        lab = a.label("st")
        a(f"s_cmp_eq_u32 s{sW}, 3\ns_cbranch_scc0 {lab}")
        a(f"""
        ds_read_b128 {vr(vU+4,4)}, v{vaSm} offset:{L_LSUM-L_SMAX}
        s_add_u32 s{sB}, s{sT}, s{sL}
        s_add_u32 s{sB}, s{sB}, 1
        v_mov_b32 v{vMc+2}, s{sB}
        s_waitcnt lgkmcnt(0)
        """)
        sum4r(vU + 4)
        a(f"v_mov_b32 v{vMc+1}, v{vU+4}")
        a(f"{lab}:")
    def s_stats_store(wait):
        lab = a.label("ss")
        a(f"s_cmp_eq_u32 s{sW}, 3\ns_cbranch_scc0 {lab}")
        if wait is not None: a(f"s_waitcnt vmcnt({wait})")
        setexec(0xF)
        store_local(f"buffer_store_dwordx4 {vr(vMc,4)}, v{vaStS}, {sr(sWS,4)}, s{sOown} offen")
        setexec(FULL)
        a(f"{lab}:")
    accO = vAcc
    def v_tr(blk):
        t, p = blk >> 1, blk & 1
        for nt in range(2):
            a(f"ds_read_b64_tr_b16 {ar(aV+8*blk+4*nt,2)}, v{vVr+nt} offset:{(4*t+2*p)*4096}")
            a(f"ds_read_b64_tr_b16 {ar(aV+8*blk+4*nt+2,2)}, v{vVr+nt} offset:{(4*t+2*p+1)*4096}")
    def pv(blks, first):
        for blk in blks:
            for nt in range(2):
                mfma(accO + 4*nt, ar(aV + 8*blk + 4*nt, 4), vP + 4*blk, "0" if (first and blk == blks[0]) else None)
    def s_out():
        for i in range(4):
            a(f"v_cvt_pk_bf16_f32 v{vU+i}, v{accO+2*i}, v{accO+2*i+1}")
        for i in range(4):
            a(f"v_min_u32 v{vU+i}, 0xfffffffe, v{vU+i}")
        setexec(EM4)
        store_local(f"buffer_store_dwordx4 {vr(vU,4)}, v{vaStO}, {sr(sWS,4)}, s{sOown} offen")
        setexec(FULL)

    a(f"s_lshl_b32 s{sB}, s{sW}, 12")
    tr_base(vT0, 32, 8, sB, L_WQ)
    for u in range(4):
        a(f"ds_read_b64_tr_b16 {ar(aWq+4*u,2)}, v{vT0} offset:{u*1024}")
        a(f"ds_read_b64_tr_b16 {ar(aWq+4*u+2,2)}, v{vT0} offset:{u*1024+128}")
    a(f"""
    v_lshrrev_b32 v{vT0}, 3, v{vR16}
    v_lshlrev_b32 v{vT0}, 10, v{vT0}
    v_lshl_add_u32 v{vT0}, v{vQd}, 4, v{vT0}
    s_lshl_b32 s{sB}, s{sW}, 8
    v_add_u32 v{vT0}, s{sB}, v{vT0}
    s_barrier
    """)
    setexec(0x0101010101010101)
    for u in range(4):
        a(f"ds_read_b128 {vr(XA+4*u,4)}, v{vT0} offset:{L_X0+u*64}")
    setexec(FULL)
    a(f"""
    s_waitcnt lgkmcnt(0)
    s_add_u32 s{sT}, s{sT}, 0x9e3779b0
    s_and_b32 s{sT}, s{sT}, 0xfffffff0
    s_or_b32 s{sTX}, s{sT}, s{sXcc}
    """)
    for u in range(4): mfma(vS, vOnes, ar(aWq + 4*u, 4), "0" if u == 0 else None)
    a(f"ds_write_b32 v{vaRedW}, v{vS} offset:{R_COL}")
    q_core(XA)
    q_final(True)
    a("s_barrier")
    rt_probe("q1_pub")
    ts("q1_pub")

    def v_group(t):
        page_off(t, sD)
        a(f"s_lshl_b32 s{sC}, s{sW}, 12\ns_add_u32 s{sC}, s{sC}, {L_V + t*16384}\ns_mov_b32 m0, s{sC}\ns_nop 0")
        for ii in range(4):
            a(f"buffer_load_dwordx4 v{vVs+(ii&1)}, {sr(sVS,4)}, s{sD} offen offset:{ii*1024}{cfg.kv_pol} lds")
    def pace(): a(f"s_waitcnt vmcnt({cfg.pace})")
    def w_part(part, lo, hi):
        if not cfg.w_inter: return
        lab = a.label("wp")
        lim = 30
        if (part == 0 and "g" not in cfg.w_interB) or (part == 1 and "u" not in cfg.w_interB): lim = 16
        a(f"s_cmp_ge_u32 s{sM}, {lim}\ns_cbranch_scc1 {lab}")
        for u in range(lo, hi):
            if part == 0:
                a(f"s_mul_i32 s{sB}, s{sWst}, {u}\ns_add_u32 s{sB}, s{sB}, s{sWb}")
                a(f"s_lshl_b32 s{sC}, s{sW}, 12\ns_add_u32 s{sC}, s{sC}, {L_WQ + u*1024}")
            else:
                a(f"s_cmp_lt_u32 s{sM}, 16\ns_cselect_b32 s{sB}, {4+u}, {u}\ns_mul_i32 s{sB}, s{sB}, s{sWst}\ns_add_u32 s{sB}, s{sB}, s{sWb}")
                a(f"s_lshl_b32 s{sC}, s{sW}, 14\ns_add_u32 s{sC}, s{sC}, {L_K + u*1024}")
            a(f"s_mov_b32 m0, s{sC}\ns_nop 0")
            a(f"buffer_load_dwordx4 v{vWs}, {sr(sW2 if part == 0 else sUP,4)}, s{sB} offen{SLN} lds")
        a(f"{lab}:")
    for t in range(nKpA, 4):
        pace()
        if t == 3: w_part(0, 0, 4)
        k_page(t)
    a(f"""
    v_lshrrev_b32 v{vT0}, 2, v{vLane}
    v_lshlrev_b32 v{vT0}, 7, v{vT0}
    v_and_b32 v{vT1}, 3, v{vLane}
    v_lshl_add_u32 v{vKs}, v{vT1}, 4, v{vT0}        ; (vKs is free once K is issued)
    s_lshl_b32 s{sA}, s{sJ}, 12
    s_lshr_b32 s{sB}, s{sM}, 4
    s_lshl_b32 s{sB}, s{sB}, 6
    s_add_u32 s{sA}, s{sA}, s{sB}
    s_add_u32 s{sA}, s{sA}, {WS_Q1}
    v_and_b32 v{vT0}, 3, v{vR16}
    v_lshlrev_b32 v{vT0}, 9, v{vT0}
    v_lshrrev_b32 v{vT1}, 1, v{vQd}
    v_lshl_add_u32 v{vT0}, v{vT1}, 6, v{vT0}
    v_and_b32 v{vT1}, 1, v{vQd}
    v_lshl_add_u32 v{vKs+1}, v{vT1}, 5, v{vT0}
    v_lshlrev_b32 v{vKs+2}, 5, v{vLane}
    """)
    def q1_dma(img):
        a(f"""
        s_mov_b32 m0, {L_QG + img*2048}
        s_add_u32 s{sB}, s{sA}, 2048
        buffer_load_dwordx4 v{vKs}, {sr(sWS,4)}, s{sA} offen sc1 lds
        s_mov_b32 m0, {L_QG + img*2048 + 1024}
        s_nop 0
        buffer_load_dwordx4 v{vKs}, {sr(sWS,4)}, s{sB} offen sc1 lds
        """)
    def w0(fn):
        lab = a.label("w0")
        a(f"s_cmp_eq_u32 s{sW}, 0\ns_cbranch_scc0 {lab}")
        fn()
        a(f"{lab}:")
    def q1_dup():
        setexec(0x55555555)
        a(f"buffer_store_dwordx2 {vr(vQ1d,2)}, v{vQ1a}, {sr(sWS,4)}, 0 offen sc1")
        setexec(FULL)
    g.q1_dup = lambda: w0(q1_dup)
    vG = vA
    def q1_tags(img):
        a(f"""
        ds_read_b128 {vr(vG,4)}, v{vKs+2} offset:{L_QG + img*2048}
        ds_read_b128 {vr(vG+4,4)}, v{vKs+2} offset:{L_QG + img*2048 + 16}
        s_waitcnt lgkmcnt(0)
        v_xor_b32 v{vT1}, s{sTX}, v{vG+1}
        v_xor_b32 v{vT2}, s{sTX}, v{vG+3}
        v_xor_b32 v{vT3}, s{sTX}, v{vG+5}
        v_xor_b32 v{vT0}, s{sTX}, v{vG+7}
        v_or3_b32 v{vT1}, v{vT1}, v{vT2}, v{vT3}
        v_or_b32 v{vT1}, v{vT1}, v{vT0}
        v_cmp_lt_u32 vcc, 15, v{vT1}
        """)
    def early_tail():
        lab = a.label("c0")
        a(f"""
        s_cmp_eq_u32 s{sW}, 3
        s_cbranch_scc0 {lab}
        v_mov_b32 v{vU+8}, -1
        v_mov_b32 v{vU+9}, -1
        v_mov_b32 v{vU+10}, -1
        v_mov_b32 v{vU+11}, -1
        """)
        store_local(f"buffer_store_dwordx4 {vr(vU+8,4)}, v{vaClrO}, {sr(sWS,4)}, s{sOown} offen")
        a(f"{lab}:")
        if cfg.warm:
            lab = a.label("ws")
            a(f"s_cmp_lt_u32 s{sM}, 16\ns_cbranch_scc0 {lab}")
            a(f"buffer_load_dword v{vJ}, v{vaS0}, {sr(sWS,4)}, s{sOcons} offen sc1")
            a(f"buffer_load_dword v{vJ}, v{vaS1}, {sr(sWS,4)}, s{sOcons} offen sc1")
            a(f"{lab}:")
        v_group(3)
    g.early_tail = early_tail
    def locality():
        a(f"""
        v_cmp_ne_u32 vcc, 0, v{vT1}
        s_cmp_eq_u64 vcc, 0
        s_cselect_b32 s{sLocal}, 1, 0
        """)
    if cfg.g_early:
        assert not cfg.w_inter and not cfg.v3_early and cfg.pf_pos in (None, 2)
        a(f"s_mov_b32 s{sEarly}, 0")
        w0(lambda: q1_dma(2))
    pace()
    if cfg.pf_stream and cfg.pf_pos == 0: emit_wpf(sKS2, sWQ, True)
    v_group(0)
    a("s_waitcnt vmcnt(4)")
    for t in range(4):
        for c in range(4):
            a(f"ds_read_b128 {ar(aK+16*t+4*c,4)}, v{vKr+c} offset:{t*4096}")
    ts("k_landed")
    if cfg.g_early:
        a("s_barrier")
        q1_tags(2)
        a("s_cbranch_vccnz L_noearly")
        locality()
        a(f"s_mov_b32 s{sEarly}, 1")
        v_group(1)
        if cfg.gE_mode >= 1:
            if cfg.pf_stream and cfg.pf_pos == 2: emit_wpf(sKS, sWQ, True)
            v_group(2)
        if cfg.gE_mode >= 2:
            g.early_tail()
        a(f"s_mov_b32 s{sC}, {L_QG + 2*2048}\ns_branch L_q1ok2\nL_noearly:")
        cnt("gEfail")
    w0(lambda: q1_dma(0))
    if cfg.pf_stream and cfg.pf_pos == 1: emit_wpf(sKS, sWQ, True)
    v_group(1)
    a("s_waitcnt vmcnt(4)")
    ts("v0_landed")
    if cfg.pf_stream and cfg.pf_pos == 2: emit_wpf(sKS, sWQ, True)
    if cfg.w_inter:
        a("s_waitcnt lgkmcnt(0)")
        w_part(1, 0, 2)
    def warm_stats0():
        if cfg.warm:
            lab = a.label("ws")
            a(f"s_cmp_lt_u32 s{sM}, 16\ns_cbranch_scc0 {lab}")
            a(f"buffer_load_dword v{vJ}, v{vaS0}, {sr(sWS,4)}, s{sOcons} offen sc1")
            a(f"buffer_load_dword v{vJ}, v{vaS1}, {sr(sWS,4)}, s{sOcons} offen sc1")
            a(f"{lab}:")
    if cfg.v3_early: warm_stats0()
    v_group(2)
    if cfg.v3_early:
        assert not cfg.w_inter
        v_group(3)
    def _o0():
        lab = a.label("c0")
        a(f"""
        s_cmp_eq_u32 s{sW}, 3
        s_cbranch_scc0 {lab}
        v_mov_b32 v{vU+8}, -1
        v_mov_b32 v{vU+9}, -1
        v_mov_b32 v{vU+10}, -1
        v_mov_b32 v{vU+11}, -1
        """)
        store_local(f"buffer_store_dwordx4 {vr(vU+8,4)}, v{vaClrO}, {sr(sWS,4)}, s{sOown} offen")
        a(f"{lab}:")
    g.o0_clear_hook = _o0
    a("s_barrier")
    q1_tags(0)
    a(f"s_mov_b32 s{sC}, {L_QG}\ns_cbranch_vccz L_q1ok")
    cnt("g0fail")
    w0(lambda: (q1_dma(1), a("s_waitcnt vmcnt(0)")))
    a("s_barrier")
    q1_tags(1)
    a(f"s_mov_b32 s{sC}, {L_QG + 2048}\ns_cbranch_vccz L_q1ok")
    a("L_q1retry:")
    cnt("g1fail")
    a(f"s_sub_u32 s{sBud}, s{sBud}, 1\ns_cbranch_scc1 L_abort\ns_barrier")
    w0(lambda: (q1_dup(), q1_dma(0), a("s_waitcnt vmcnt(0)")))
    a("s_barrier")
    q1_tags(0)
    a(f"s_mov_b32 s{sC}, {L_QG}\ns_cbranch_vccnz L_q1retry")
    a("L_q1ok:")
    locality()
    a("L_q1ok2:")
    a(f"v_add_u32 v{vT0}, s{sC}, v{vKs+1}")
    if cfg.v3_early: g.o0_clear_hook()
    setexec(EM4)
    for c in range(4):
        a(f"ds_read2_b32 {vr(vQ+4*c,2)}, v{vT0} offset0:{c*32} offset1:{c*32+2}")
        a(f"ds_read2_b32 {vr(vQ+4*c+2,2)}, v{vT0} offset0:{c*32+4} offset1:{c*32+6}")
    setexec(FULL)
    lab = a.label("nl")
    a(f"s_cmp_eq_u32 s{sLocal}, 0\ns_cbranch_scc0 {lab}")
    g.q1_dup()
    a(f"{lab}:")
    a("s_waitcnt lgkmcnt(0)")
    rt_probe("q1_got")
    ts("q1_got")
    s_qk_max()
    ts("s1_max")
    def o0_clear():
        lab = a.label("c0")
        a(f"""
        s_cmp_eq_u32 s{sW}, 3
        s_cbranch_scc0 {lab}
        v_mov_b32 v{vU+8}, -1
        v_mov_b32 v{vU+9}, -1
        v_mov_b32 v{vU+10}, -1
        v_mov_b32 v{vU+11}, -1
        """)
        store_local(f"buffer_store_dwordx4 {vr(vU+8,4)}, v{vaClrO}, {sr(sWS,4)}, s{sOown} offen")
        a(f"{lab}:")
    if cfg.g_early and cfg.gE_mode == 1:
        a("s_waitcnt vmcnt(4)")
        early_tail()
    elif cfg.g_early:
        lE = a.label("mE"); lD = a.label("mD")
        a(f"s_cmp_eq_u32 s{sEarly}, 1\ns_cbranch_scc1 {lE}")
        a("s_waitcnt vmcnt(4)")
        early_tail()
        a(f"s_branch {lD}\n{lE}:")
        if cfg.gE_mode == 0:
            a("s_waitcnt vmcnt(4)")
            o0_clear()
            warm_stats0()
            if cfg.pf_stream and cfg.pf_pos == 2: emit_wpf(sKS, sWQ, True)
            v_group(2)
            v_group(3)
        a("s_waitcnt vmcnt(8)")
        a(f"{lD}:")
    elif not cfg.v3_early:
        a("s_waitcnt vmcnt(4)")
        o0_clear()
        warm_stats0()
        w_part(1, 2, 4)
        v_group(3)
    else:
        a("s_waitcnt vmcnt(8)")
    nPF = emit_wpf(sKS, sWQ, True) if (cfg.pf_stream and not cfg.pf_early and cfg.pf_pos is None) else 0

    def s1_tail(nW=0, maybe_none=False):
        def wait_v(base):
            if nW and maybe_none:
                l1 = a.label("wv"); l2 = a.label("wv")
                a(f"s_cmp_ge_u32 s{sIdx}, 14\ns_cbranch_scc1 {l1}\ns_waitcnt vmcnt({base + nW})\ns_branch {l2}\n{l1}:\ns_waitcnt vmcnt({base})\n{l2}:")
            else:
                a(f"s_waitcnt vmcnt({base + nW})")
        s_exp_p()
        s_stats_prep()
        blks = [0, 1, 2, 3]
        for blk in blks: v_tr(blk)
        a("s_waitcnt lgkmcnt(0)")
        pv(blks, True)
        for t in (2, 3):
            if t == 3 and cfg.v3_early:
                l3 = a.label("v3"); l4 = a.label("v4")
                a(f"s_cmp_eq_u32 s{sW}, 3\ns_cbranch_scc1 {l3}\ns_waitcnt vmcnt({nW})\ns_branch {l4}\n{l3}:\ns_waitcnt vmcnt({nW + 1})\n{l4}:")
            else:
                wait_v(4*(3-t))
            a("s_barrier")
            if t == 3: ts("v_landed")
            blks = [2*t, 2*t + 1]
            for blk in blks: v_tr(blk)
            a("s_waitcnt lgkmcnt(0)")
            pv(blks, False)
        s_out()
        s_stats_store(1 if cfg.v3_early else None)
        lab = a.label("c1")
        a(f"""
        s_cmp_eq_u32 s{sW}, 0
        s_cbranch_scc0 {lab}
        v_mov_b32 v{vU+8}, -1
        v_mov_b32 v{vU+9}, -1
        v_mov_b32 v{vU+10}, -1
        v_mov_b32 v{vU+11}, -1
        s_add_u32 s{sB}, s{sOown}, {O_L}
        """)
        store_local(f"buffer_store_dwordx4 {vr(vU+8,4)}, v{vaClrO}, {sr(sWS,4)}, s{sB} offen")
        q1_dup()
        a(f"{lab}:")
        rt_probe("s1_pub")
        ts("s1_pub")

    def x_poll(sbase, dst, sleep):
        l = a.label("xp"); ok = a.label("xok")
        if cfg.sleep_x0: a(f"s_sleep {cfg.sleep_x0}")
        a(f"s_mov_b32 m0, s{sXI}")
        a(f"{l}:")
        cnt("n_x")
        for u in range(4):
            a(f"buffer_load_dwordx4 v{vaXg}, {sr(sWS,4)}, s{sbase} offen offset:{u*1024} sc1 lds")
        for u in range(4):
            a(f"s_waitcnt vmcnt({3-u})")
            a(f"ds_read_b128 {vr(dst+4*u,4)}, v{vaXr} offset:{u*1024}")
        a(f"s_waitcnt lgkmcnt(3)\nv_max3_u32 v{vT0}, v{dst}, v{dst+1}, v{dst+2}")
        a(f"s_waitcnt lgkmcnt(2)\nv_max3_u32 v{vT0}, v{vT0}, v{dst+3}, v{dst+4}\nv_max3_u32 v{vT0}, v{vT0}, v{dst+5}, v{dst+6}")
        a(f"s_waitcnt lgkmcnt(1)\nv_max3_u32 v{vT0}, v{vT0}, v{dst+7}, v{dst+8}\nv_max3_u32 v{vT0}, v{vT0}, v{dst+9}, v{dst+10}")
        a(f"s_waitcnt lgkmcnt(0)\nv_max3_u32 v{vT0}, v{vT0}, v{dst+11}, v{dst+12}\nv_max3_u32 v{vT0}, v{vT0}, v{dst+13}, v{dst+14}\nv_max_u32 v{vT0}, v{vT0}, v{dst+15}")
        a(f"v_cmp_eq_u32 vcc, -1, v{vT0}\ns_cbranch_vccz {ok}")
        spin_fail(l, sleep)
        a(f"{ok}:")

    def warm_q2():
        if not cfg.warm: return
        a(f"s_lshl_b32 s{sB}, s{sJ}, 11\ns_add_u32 s{sB}, s{sB}, {WS_Q2}\nv_lshlrev_b32 v{vT0}, 7, v{vLane}")
        setexec(0xFFFF)
        a(f"buffer_load_dword v{vJ}, v{vT0}, {sr(sWS,4)}, s{sB} offen sc1")
        setexec(FULL)
    def warm_o(dl, data=True):
        if not cfg.warm: return
        a(f"s_add_u32 s{sB}, s{sOcons}, {dl*O_L}")
        if data:
            a(f"""
            v_and_b32 v{vT0}, 31, v{vLane}
            v_lshlrev_b32 v{vT0}, 7, v{vT0}
            v_lshrrev_b32 v{vT1}, 5, v{vLane}
            v_lshl_add_u32 v{vT0}, v{vT1}, 14, v{vT0}
            buffer_load_dword v{vJ}, v{vT0}, {sr(sWS,4)}, s{sB} offen sc1
            """)
        a(f"buffer_load_dword v{vJ}, v{vaS0}, {sr(sWS,4)}, s{sB} offen sc1")
        a(f"buffer_load_dword v{vJ}, v{vaS1}, {sr(sWS,4)}, s{sB} offen sc1")

    def tag_issue():
        a(f"""
        s_lshl_b32 s{sA}, s{sW}, 13
        s_add_u32 s{sA}, s{sA}, {WS_Q1+4}
        v_lshlrev_b32 v{vTg}, 7, v{vLane}
        buffer_load_dword v{vTg+1}, v{vTg}, {sr(sWS,4)}, s{sA} offen sc1
        """)
    def tag_finish():
        l = a.label("tc"); ok = a.label("tcok")
        a(f"""
        s_lshl_b32 s{sA}, s{sW}, 13
        s_add_u32 s{sA}, s{sA}, {WS_Q1+4}
        {l}:
        s_waitcnt vmcnt(0)
        v_xor_b32 v{vTg+1}, s{sT}, v{vTg+1}
        v_cmp_lt_u32 vcc, 15, v{vTg+1}
        s_cbranch_vccz {ok}
        s_sleep 2
        buffer_load_dword v{vTg+1}, v{vTg}, {sr(sWS,4)}, s{sA} offen sc1
        """)
        spin_fail(l)
        a(f"{ok}:")
    def tag_check_all():
        tag_issue(); tag_finish()

    def line_final(red):
        if cfg.doorbell and cfg.db_early:
            a(f"v_mov_b32 v{vT0}, 0\nv_mov_b32 v{vT1}, s{sDBtag}\ns_mov_b64 exec, 1")
            store_local(f"buffer_store_dword v{vT1}, v{vT0}, {sr(sWS,4)}, s{sDBw} offen")
            a("s_mov_b64 exec, -1")
        a(f"""
        ds_read_b128 {vr(vU,4)}, v{vaFinO} offset:{red}
        v_mov_b32 v{vT0}, 0
        v_mov_b32 v{vT1}, s{sDBtag}
        s_waitcnt lgkmcnt(0)
        v_add_f32 v{vU}, v{vU}, v{vU+1}
        v_add_f32 v{vU+2}, v{vU+2}, v{vU+3}
        v_add_f32 v{vU}, v{vU}, v{vResF}
        v_add_f32 v{vResF}, v{vU}, v{vU+2}
        """)
        dpp("v_mov_b32", vU + 1, vResF, None, "quad_perm:[1,0,3,2]")
        a(f"v_cvt_pk_bf16_f32 v{vU}, v{vResF}, v{vU+1}\nv_min_u32 v{vU}, 0xfffffffe, v{vU}")
        if cfg.doorbell and not cfg.db_early:
            a("s_mov_b64 exec, 1")
            store_local(f"buffer_store_dword v{vT1}, v{vT0}, {sr(sWS,4)}, s{sDBw} offen")
        a(f"s_xor_b32 s{sB}, s{sXw}, 0x2000\ns_add_u32 s{sB}, s{sB}, 16384")
        setexec(EMEV)
        a(f"buffer_store_dword v{vU}, v{vaStX}, {sr(sWS,4)}, s{sXw} offen sc1")
        a(f"buffer_store_dword v{vU}, v{vaStX}, {sr(sWS,4)}, s{sB} offen sc1")
        setexec(FULL)
    def advance_hop():
        a(f"s_add_u32 s{sXw}, s{sXw}, {X_HOP}\ns_add_u32 s{sDBw}, s{sDBw}, 1024\ns_add_u32 s{sDBtag}, s{sDBtag}, 1")

    def db_setup(hop_w, hop_r):
        a(f"""
        s_lshl_b32 s{sDBr}, s{sJ}, 7
        s_add_u32 s{sDBr}, s{sDBr}, {WS_DB}
        s_lshl_b32 s{sDBw}, s{sIdx}, 2
        s_add_u32 s{sDBw}, s{sDBw}, s{sDBr}
        s_add_u32 s{sDBw}, s{sDBw}, {hop_w*1024}
        s_add_u32 s{sDBtag}, s{sT}, {8+hop_w}
        """)
    def db_wait(hop_off_s, tag_add_s=None, const_hop=None):
        if not cfg.doorbell: return
        l = a.label("db"); ok = a.label("dbok")
        if const_hop is not None:
            a(f"s_add_u32 s{sA}, s{sDBr}, {const_hop*1024}\ns_add_u32 s{sC}, s{sT}, {8+const_hop}")
        else:
            a(f"s_lshl_b32 s{sA}, s{sL}, 11\ns_add_u32 s{sA}, s{sA}, s{sDBr}\ns_add_u32 s{sA}, s{sA}, {hop_off_s*1024}")
            a(f"s_lshl_b32 s{sC}, s{sL}, 1\ns_add_u32 s{sC}, s{sC}, s{sT}\ns_add_u32 s{sC}, s{sC}, {8+hop_off_s}")
        a(f"v_lshlrev_b32 v{vT0}, 2, v{vLane}")
        setexec(0xFFFF)
        if cfg.db_pipe:
            a(f"""
            buffer_load_dword v{vT1}, v{vT0}, {sr(sWS,4)}, s{sA} offen sc1
            s_nop 15
            s_nop 11
            buffer_load_dword v{vT2}, v{vT0}, {sr(sWS,4)}, s{sA} offen sc1
            {l}:
            s_waitcnt vmcnt(1)
            v_cmp_ne_u32 vcc, s{sC}, v{vT1}
            s_cbranch_vccz {ok}
            buffer_load_dword v{vT1}, v{vT0}, {sr(sWS,4)}, s{sA} offen sc1
            s_waitcnt vmcnt(1)
            v_cmp_ne_u32 vcc, s{sC}, v{vT2}
            s_cbranch_vccz {ok}
            buffer_load_dword v{vT2}, v{vT0}, {sr(sWS,4)}, s{sA} offen sc1
            """)
        else:
            a(f"""
            {l}:
            buffer_load_dword v{vT1}, v{vT0}, {sr(sWS,4)}, s{sA} offen sc1
            s_waitcnt vmcnt(0)
            v_cmp_ne_u32 vcc, s{sC}, v{vT1}
            s_cbranch_vccz {ok}
            """)
        spin_fail(l)
        a(f"{ok}:")
        setexec(FULL)

    def o_stats_poll():
        l = a.label("os"); ok = a.label("osok")
        a(f"s_add_u32 s{sA}, s{sT}, s{sL}\ns_add_u32 s{sA}, s{sA}, 1")
        a(f"{l}:")
        cnt("n_ostat")
        a(f"buffer_load_dwordx3 {vr(vSt,3)}, v{vaS0}, {sr(sWS,4)}, s{sOcons} offen sc1")
        a(f"buffer_load_dwordx3 {vr(vSt+4,3)}, v{vaS1}, {sr(sWS,4)}, s{sOcons} offen sc1")
        a("s_waitcnt vmcnt(0)")
        a(f"""
        v_xor_b32 v{vT0}, s{sA}, v{vSt+2}
        v_xor_b32 v{vT1}, s{sA}, v{vSt+6}
        v_or_b32 v{vT0}, v{vT0}, v{vT1}
        v_cmp_ne_u32 vcc, 0, v{vT0}
        s_cbranch_vccz {ok}
        """)
        spin_fail(l, cfg.sleep_o)
        a(f"{ok}:")
        ts_dyn("o_st0", "o_st1")

    def o_phase():
        OA = vA
        o_stats_poll()
        l2 = a.label("op"); ok2 = a.label("ook")
        a(f"L_heavy:\n{l2}:")
        cnt("n_oheavy")
        for b in range(2):
            for c in range(4):
                a(f"buffer_load_dwordx4 {vr(OA+16*b+4*c,4)}, v{vaO0+b}, {sr(sWS,4)}, s{sOcons} offen offset:{c*1024} sc1")
        for b in range(2):
            a(f"v_mov_b32 v{vU+b}, v{vSt+4*b}")
        for n in (8, 4, 2, 1):
            for b in range(2): dpp("v_max_f32", vU + b, vU + b, vU + b, f"row_ror:{n}")
        for b in range(2): a(f"v_sub_f32 v{vU+b}, v{vSt+4*b}, v{vU+b}")
        for b in range(2): a(f"v_exp_f32 v{vU+b}, v{vU+b}")
        for b in range(2): a(f"v_mul_f32 v{vU+2+b}, v{vU+b}, v{vSt+4*b+1}")
        for n in (8, 4, 2, 1):
            for b in range(2): dpp("v_add_f32", vU + 2 + b, vU + 2 + b, vU + 2 + b, f"row_ror:{n}")
        for b in range(2): a(f"v_rcp_f32 v{vU+2+b}, v{vU+2+b}")
        for b in range(2): a(f"v_mul_f32 v{vW+b}, v{vU+b}, v{vU+2+b}")
        a(f"v_mov_b32 v{vT0}, 0")
        if cfg.diag and cfg.ts_only and "o_w0" in cfg.ts_only:
            ts_dyn("o_w0", "o_w1")
            a("s_waitcnt vmcnt(7)")
            ts_dyn("o_f0", "o_f1")
        for i in range(8):
            b, c = i >> 2, i & 3
            r = OA + 16*b + 4*c
            a(f"s_waitcnt vmcnt({7-i})")
            for nt in range(2):
                mfma(vAcc + 8*b + 4*nt, r, ar(aW2 + 8*c + 4*nt, 4), "0" if c == 0 else None)
            a(f"v_max3_u32 v{vT0}, v{vT0}, v{r}, v{r+1}\nv_max3_u32 v{vT0}, v{vT0}, v{r+2}, v{r+3}")
        a(f"v_cmp_eq_u32 vcc, -1, v{vT0}\ns_cbranch_vccz {ok2}")
        spin_fail(l2)
        a(f"{ok2}:")
        ts_dyn("o_got0", "o_got1")
        for b in range(2):
            for nt in range(2):
                t = vU + 2*b + nt; acc = vAcc + 8*b + 4*nt
                dpp("v_mul_f32", t, vW + b, acc, "row_newbcast:0")
                for r in range(1, 4):
                    dpp("v_fmac_f32", t, vW + b, acc + r, f"row_newbcast:{r}")
        a(f"""
        v_permlane32_swap_b32 v{vU}, v{vU+1}
        v_permlane32_swap_b32 v{vU+2}, v{vU+3}
        v_add_f32 v{vU}, v{vU}, v{vU+1}
        v_add_f32 v{vU+2}, v{vU+2}, v{vU+3}
        v_permlane16_swap_b32 v{vU}, v{vU+2}
        v_add_f32 v{vU}, v{vU}, v{vU+2}
        ds_write_b32 v{vaRedW}, v{vU} offset:{R_O}
        s_waitcnt lgkmcnt(0)
        s_barrier
        """)
        lab = a.label("of")
        a(f"s_cmp_eq_u32 s{sW}, 0\ns_cbranch_scc0 {lab}")
        line_final(R_O)
        a(f"{lab}:")
        advance_hop()
        ts_dyn("o_pub0", "o_pub1")

    def g_phase():
        X = vA
        if cfg.db_g: db_wait(0)
        if cfg.diag and cfg.ts_only and "g_db0" in cfg.ts_only: ts_dyn("g_db0", "g_db1")
        x_poll(sXr, X, cfg.sleep_x)
        ts_dyn("g_got0", "g_got1")
        M = stats_mf(X)
        for u in range(4):
            M.append(mf(vAcc, X + 4*u, ar(aW2 + 8*u, 4), "0" if u == 0 else None))
            M.append(mf(vAcc + 4, X + 4*u, ar(aW2 + 8*u + 4, 4), "0" if u == 0 else None))
        V = stats_valu(vU) + [f"v_mov_b32 v{vU+1}, v{vU}", f"v_permlane16_swap_b32 v{vU}, v{vU+1}", f"v_add_f32 v{vU}, v{vU}, v{vU+1}"]
        interleave(M, V, 8, 2)
        setexec("s[%d:%d]" % (sM2, sM2 + 1))
        a(f"ds_write_b32 v{vaRedZ}, v{vU} offset:{R_GZ}")
        setexec(FULL)
        sum4(vU + 2, vAcc, vT3)
        sum4(vU + 3, vAcc + 4, vT3)
        a(f"""
        v_permlane16_swap_b32 v{vU+2}, v{vU+3}
        v_add_f32 v{vU+2}, v{vU+2}, v{vU+3}
        ds_write_b32 v{vaRedW}, v{vU+2} offset:{R_G}
        s_waitcnt lgkmcnt(0)
        s_barrier
        """)
        lab = a.label("gf")
        a(f"s_cmp_eq_u32 s{sW}, 0\ns_cbranch_scc0 {lab}")
        setexec(0xFFFFFFFF)
        a(f"""
        ds_read_b128 {vr(vU+8,4)}, v{vaFinZ} offset:{R_GZ}
        ds_read_b128 {vr(vU+12,4)}, v{vaFinZ} offset:{R_GZ+16}
        ds_read_b128 {vr(vU,4)}, v{vaFinW} offset:{R_G}
        ds_read_b128 {vr(vU+4,4)}, v{vaFinW} offset:{R_G+256}
        s_lshl_b32 s{sB}, s{sIdx}, 6
        s_add_u32 s{sB}, s{sB}, s{sHb}
        s_waitcnt lgkmcnt(2)
        """)
        sum4r(vU + 8); sum4r(vU + 12)
        ln_stats(vU + 8, vU + 12, vU + 9, vU + 10)
        a("s_waitcnt lgkmcnt(0)")
        sum4r(vU); sum4r(vU + 4)
        a(f"""
        v_fma_f32 v{vU}, -v{vU+9}, v{vCg}, v{vU}
        v_fma_f32 v{vU+4}, -v{vU+9}, v{vCu}, v{vU+4}
        v_mul_f32 v{vU+1}, {f2u(-1.4426950408889634):#x}, v{vU+10}
        v_mul_f32 v{vU}, v{vU}, v{vU+1}
        v_exp_f32 v{vU}, v{vU}
        v_mul_f32 v{vU+4}, v{vU+4}, v{vU+10}
        v_add_f32 v{vU}, 1.0, v{vU}
        v_rcp_f32 v{vU}, v{vU}
        s_nop 0
        v_mul_f32 v{vU}, v{vU}, v{vU+4}
        """)
        dpp("v_mov_b32", vU + 1, vU, None, "quad_perm:[1,0,3,2]")
        a(f"v_cvt_pk_bf16_f32 v{vU}, v{vU}, v{vU+1}\nv_min_u32 v{vU}, 0xfffffffe, v{vU}")
        setexec(0x55555555)
        store_local(f"buffer_store_dword v{vU}, v{vaStH}, {sr(sWS,4)}, s{sB} offen")
        setexec(FULL)
        a(f"{lab}:")
        ts_dyn("g_pub0", "g_pub1")

    def d_phase():
        lab0 = a.label("dr0"); l2 = a.label("dr"); ok2 = a.label("drok")
        l = a.label("dp"); ok = a.label("dok"); one = a.label("done"); l3 = a.label("dp1");
        a(f"s_cmp_eq_u32 s{sW}, 3\ns_cbranch_scc1 {l3}")
        setexec(EM2)
        a(f"{l}:")
        a(f"buffer_load_dwordx4 {vr(vHop,4)}, v{vaH}, {sr(sWS,4)}, s{sHb} offen sc1")
        a(f"buffer_load_dwordx4 {vr(vHop+4,4)}, v{vaH}, {sr(sWS,4)}, s{sHb} offen offset:512 sc1")
        a("s_waitcnt vmcnt(0)")
        sent_check([vHop+i for i in range(8)], vT1, ok)
        spin_fail(l)
        a(f"{l3}:")
        setexec(EM2)
        a(f"{l3}b:")
        a(f"buffer_load_dwordx4 {vr(vHop,4)}, v{vaH}, {sr(sWS,4)}, s{sHb} offen sc1")
        a("s_waitcnt vmcnt(0)")
        sent_check([vHop+i for i in range(4)], vT1, ok)
        spin_fail(f"{l3}b")
        a(f"{ok}:")
        setexec(FULL)
        for nt in range(2):
            mfma(vAcc + 4*nt, vHop, ar(aWd + 4*nt, 4), "0")
        for nt in range(2):
            mfma(vAcc + 4*nt, vHop + 4, ar(aWd + 8 + 4*nt, 4))
        a(f"""
        v_permlane16_swap_b32 v{vAcc}, v{vAcc+1}
        v_permlane16_swap_b32 v{vAcc+4}, v{vAcc+5}
        v_permlane32_swap_b32 v{vAcc}, v{vAcc+4}
        ds_write_b32 v{vaRedW}, v{vAcc} offset:{R_D}
        s_waitcnt lgkmcnt(0)
        s_barrier
        """)
        lab = a.label("df")
        a(f"s_cmp_eq_u32 s{sW}, 0\ns_cbranch_scc0 {lab}")
        line_final(R_D)
        a(f"{lab}:")
        advance_hop()
        ts_dyn("d_pub0", "d_pub1")

    a(f"s_cmp_lt_u32 s{sM}, 16\ns_cbranch_scc0 L_roleB")
    def down_slices():
        a(f"""
        v_lshrrev_b32 v{vT0}, 2, v{vLane}
        v_lshlrev_b32 v{vT0}, 10, v{vT0}
        v_and_b32 v{vT1}, 3, v{vLane}
        v_lshl_add_u32 v{vT0}, v{vT1}, 4, v{vT0}
        s_mul_i32 s{sB}, s{sJ}, {224*1024}
        s_lshl_b32 s{sC}, s{sIdx}, 6
        s_add_u32 s{sB}, s{sB}, s{sC}
        s_lshl_b32 s{sC}, s{sW}, 15
        s_add_u32 s{sB}, s{sB}, s{sC}
        s_lshl_b32 s{sC}, s{sW}, 14
        s_add_u32 s{sC}, s{sC}, {L_K + W_DN}
        s_mov_b32 m0, s{sC}
        s_add_u32 s{sD}, s{sB}, 16384
        buffer_load_dwordx4 v{vT0}, {sr(sDN,4)}, s{sB} offen{SLN} lds
        s_add_u32 s{sC}, s{sC}, 1024
        s_mov_b32 m0, s{sC}
        s_nop 0
        buffer_load_dwordx4 v{vT0}, {sr(sDN,4)}, s{sD} offen{SLN} lds
        s_cmp_eq_u32 s{sW}, 3
        s_cbranch_scc1 L_nod2
        s_add_u32 s{sB}, s{sB}, {4*32768}
        s_add_u32 s{sC}, s{sC}, 1024
        s_mov_b32 m0, s{sC}
        s_add_u32 s{sD}, s{sB}, 16384
        buffer_load_dwordx4 v{vT0}, {sr(sDN,4)}, s{sB} offen{SLN} lds
        s_add_u32 s{sC}, s{sC}, 1024
        s_mov_b32 m0, s{sC}
        s_nop 0
        buffer_load_dwordx4 v{vT0}, {sr(sDN,4)}, s{sD} offen{SLN} lds
        L_nod2:
        """)
    def down_operands():
        a(f"s_lshl_b32 s{sB}, s{sW}, 14")
        tr_base(vT0, 64, 8, sB, L_K + W_DN)
        for nt in range(2):
            a(f"ds_read_b64_tr_b16 {ar(aWd+4*nt,2)}, v{vT0} offset:{nt*32}")
            a(f"ds_read_b64_tr_b16 {ar(aWd+4*nt+2,2)}, v{vT0} offset:{nt*32+256}")
        a(f"s_cmp_eq_u32 s{sW}, 3\ns_cbranch_scc1 L_dn3")
        for nt in range(2):
            a(f"ds_read_b64_tr_b16 {ar(aWd+8+4*nt,2)}, v{vT0} offset:{2048+nt*32}")
            a(f"ds_read_b64_tr_b16 {ar(aWd+8+4*nt+2,2)}, v{vT0} offset:{2048+nt*32+256}")
        a("s_branch L_dn4\nL_dn3:")
        for i in range(8): a(f"v_accvgpr_write_b32 a{aWd+8+i}, 0")
        a("L_dn4:")
    g.role = "A"; ts_split = g.ts
    def wo_slices():
        if cfg.line_pf and "o" in cfg.pf_which:
            a(f"""
            v_lshlrev_b32 v{vT0}, 7, v{vLane}
            s_lshl_b32 s{sB}, s{sJ}, 19
            s_lshl_b32 s{sC}, s{sIdx}, 15
            s_add_u32 s{sB}, s{sB}, s{sC}
            s_lshl_b32 s{sC}, s{sW}, 13
            s_add_u32 s{sB}, s{sB}, s{sC}
            buffer_load_dword v{vJ}, v{vT0}, {sr(sW2,4)}, s{sB} offen{cfg.pf_pol_o}
            """)
        a(f"""
        v_lshrrev_b32 v{vT0}, 2, v{vLane}
        v_lshlrev_b32 v{vT0}, 10, v{vT0}
        v_and_b32 v{vT1}, 3, v{vLane}
        v_lshl_add_u32 v{vT0}, v{vT1}, 4, v{vT0}
        s_lshl_b32 s{sB}, s{sJ}, 19
        s_lshl_b32 s{sC}, s{sW}, 17
        s_add_u32 s{sB}, s{sB}, s{sC}
        s_lshl_b32 s{sC}, s{sIdx}, 6
        s_add_u32 s{sB}, s{sB}, s{sC}
        s_lshl_b32 s{sC}, s{sW}, 14
        s_add_u32 s{sC}, s{sC}, {L_K}
        """)
        for u in range(8):
            a(f"""
            s_mov_b32 m0, s{sC}
            s_add_u32 s{sC}, s{sC}, 1024
            buffer_load_dwordx4 v{vT0}, {sr(sW2,4)}, s{sB} offen{SLN} lds
            s_add_u32 s{sB}, s{sB}, {16*1024}
            """)
    if cfg.w_inter:
        s1_tail(nPF)
        db_setup(0, 1)
        a(f"s_mov_b32 s{sXr}, {WS_X}")
    elif cfg.wsA:
        wo_slices()
        s1_tail(8 + nPF)
        db_setup(0, 1)
    else:
        s1_tail(nPF)
        db_setup(0, 1)
        wo_slices()
    a(f"v_mov_b32 v{vRes}, 0")
    lab = a.label("r0")
    a(f"""
    s_cmp_eq_u32 s{sJ}, 0
    s_cbranch_scc0 {lab}
    v_and_b32 v{vT0}, 1, v{vQd}
    v_lshlrev_b32 v{vT0}, 10, v{vT0}
    v_lshrrev_b32 v{vT1}, 1, v{vQd}
    v_lshl_add_u32 v{vT0}, v{vT1}, 5, v{vT0}
    v_lshl_add_u32 v{vT0}, v{vR16}, 1, v{vT0}
    s_lshl_b32 s{sB}, s{sIdx}, 6
    buffer_load_ushort v{vRes}, v{vT0}, {sr(sX0,4)}, s{sB} offen
    {lab}:
    """)
    nspec = 0
    if cfg.o_spec:
        a(f"buffer_load_dwordx3 {vr(vSt,3)}, v{vaS0}, {sr(sWS,4)}, s{sOcons} offen sc1")
        a(f"buffer_load_dwordx3 {vr(vSt+4,3)}, v{vaS1}, {sr(sWS,4)}, s{sOcons} offen sc1")
        nspec = 2
    if cfg.w_inter:
        a(f"s_waitcnt vmcnt({nspec})")
        for half, (sh, base) in enumerate(((12, L_WQ), (14, L_K))):
            a(f"s_lshl_b32 s{sB}, s{sW}, {sh}")
            tr_base(vT0, 64, 4, sB, base)
            for c2 in range(2):
                c = 2*half + c2
                for nt in range(2):
                    a(f"ds_read_b64_tr_b16 {ar(aW2+8*c+4*nt,2)}, v{vT0} offset:{c2*2048+nt*32}")
                    a(f"ds_read_b64_tr_b16 {ar(aW2+8*c+4*nt+2,2)}, v{vT0} offset:{c2*2048+nt*32+1024}")
    else:
        a(f"s_lshl_b32 s{sB}, s{sW}, 14")
        tr_base(vT0, 64, 4, sB, L_K)
        a(f"s_waitcnt vmcnt({nspec})")
        for c in range(4):
            for nt in range(2):
                a(f"ds_read_b64_tr_b16 {ar(aW2+8*c+4*nt,2)}, v{vT0} offset:{c*2048+nt*32}")
                a(f"ds_read_b64_tr_b16 {ar(aW2+8*c+4*nt+2,2)}, v{vT0} offset:{c*2048+nt*32+1024}")
    a(f"v_lshlrev_b32 v{vResF}, 16, v{vRes}")
    a("s_waitcnt lgkmcnt(0)")
    ts("wo_ready")
    if cfg.o_spec:
        a(f"""
        s_add_u32 s{sA}, s{sT}, 1
        s_waitcnt vmcnt(0)
        v_xor_b32 v{vT0}, s{sA}, v{vSt+2}
        v_xor_b32 v{vT1}, s{sA}, v{vSt+6}
        v_or_b32 v{vT0}, v{vT0}, v{vT1}
        v_cmp_ne_u32 vcc, 0, v{vT0}
        s_cbranch_vccz L_heavy
        """)
    a("L_loopA:")
    o_phase()
    lab = a.label("dn")
    a(f"s_cmp_eq_u32 s{sL}, 0\ns_cbranch_scc0 {lab}")
    down_slices()
    if cfg.tag_split:
        tag_issue()
        a("s_waitcnt vmcnt(1)")
        down_operands()
        tag_finish()
    else:
        tag_check_all()
    if not cfg.tag_split: down_operands()
    if cfg.warm_out:
        lw = a.label("wout")
        a(f"""
        s_cmp_ge_u32 s{sIdx}, 2
        s_cbranch_scc1 {lw}
        s_lshl_b32 s{sB}, s{sJ}, 1
        s_add_u32 s{sB}, s{sB}, s{sIdx}
        s_lshl_b32 s{sB}, s{sB}, 6
        v_lshlrev_b32 v{vT0}, 10, v{vLane}
        s_mov_b64 exec, 3
        buffer_load_dword v{vJ}, v{vT0}, {sr(sOUT,4)}, s{sB} offen
        s_mov_b64 exec, -1
        {lw}:
        """)
    a("s_waitcnt lgkmcnt(0)\ns_barrier")
    a(f"{lab}:")
    d_phase()
    a(f"s_cmp_eq_u32 s{sL}, 1\ns_cbranch_scc1 L_finalA")
    a("s_branch L_q2s2")

    a("L_roleB:")
    g.role = "B"; g.ts = ts_split
    def gu_slices():
        a(f"""
        s_cmp_ge_u32 s{sIdx}, 14
        s_cbranch_scc1 L_nogu
        v_lshrrev_b32 v{vT0}, 1, v{vLane}
        v_mul_u32_u24 v{vT0}, 3584, v{vT0}
        v_and_b32 v{vT1}, 1, v{vLane}
        v_lshl_add_u32 v{vT0}, v{vT1}, 4, v{vT0}
        s_mul_i32 s{sB}, s{sW}, {128*3584}
        s_mul_i32 s{sC}, s{sJ}, 448
        s_add_u32 s{sB}, s{sB}, s{sC}
        s_lshl_b32 s{sC}, s{sIdx}, 5
        s_add_u32 s{sB}, s{sB}, s{sC}
        s_lshl_b32 s{sC}, s{sW}, 14
        s_add_u32 s{sC}, s{sC}, {L_K + W_GATE}
        """)
        for u in range(4):
            a(f"""
            s_mov_b32 m0, s{sC}
            s_add_u32 s{sD}, s{sC}, {W_UP - W_GATE}
            buffer_load_dwordx4 v{vT0}, {sr(sW2,4)}, s{sB} offen{SLN} lds
            s_mov_b32 m0, s{sD}
            s_add_u32 s{sC}, s{sC}, 1024
            buffer_load_dwordx4 v{vT0}, {sr(sUP,4)}, s{sB} offen{SLN} lds
            s_add_u32 s{sB}, s{sB}, {32*3584}
            """)
        a("L_nogu:")
    if cfg.wsB:
        gu_slices()
        s1_tail(8, maybe_none=True)
    else:
        s1_tail(nPF)
    if cfg.w_inter: a(f"s_mov_b32 s{sWb2}, s{sWb}\ns_mov_b32 s{sWst2}, s{sWst}")
    db_setup(1, 0)
    if cfg.w_inter: a(f"s_mov_b32 s{sXr}, {WS_X}")
    if cfg.pf_down:
        a(f"""
        v_lshrrev_b32 v{vT0}, 3, v{vLane}
        v_lshlrev_b32 v{vT0}, 10, v{vT0}
        v_and_b32 v{vT1}, 7, v{vLane}
        v_lshl_add_u32 v{vT0}, v{vT1}, 7, v{vT0}
        s_mul_i32 s{sB}, s{sJ}, 224
        s_mul_i32 s{sC}, s{sIdx}, 14
        s_add_u32 s{sB}, s{sB}, s{sC}
        s_lshl_b32 s{sC}, s{sW}, 2
        s_add_u32 s{sB}, s{sB}, s{sC}
        s_lshl_b32 s{sB}, s{sB}, 10
        s_cmp_eq_u32 s{sW}, 3
        s_cselect_b32 exec_lo, 0xffff, -1
        s_mov_b32 exec_hi, 0
        buffer_load_dword v{vJ}, v{vT0}, {sr(sDN,4)}, s{sB} offen{cfg.pf_down_pol}
        s_mov_b64 exec, -1
        """)
    if cfg.line_pf and "f" in cfg.pf_which:
        a(f"""
        v_mul_u32_u24 v{vT0}, 52, v{vLane}
        v_lshrrev_b32 v{vT0}, 8, v{vT0}            ; l/5 for l < 64
        v_mul_u32_u24 v{vT1}, 5, v{vT0}
        v_sub_u32 v{vT1}, v{vLane}, v{vT1}         ; l%5
        v_mul_u32_u24 v{vT0}, 3584, v{vT0}
        v_lshl_add_u32 v{vT0}, v{vT1}, 7, v{vT0}
        s_lshl_b32 s{sB}, s{sIdx}, 5
        s_lshl_b32 s{sC}, s{sW}, 3
        s_add_u32 s{sB}, s{sB}, s{sC}
        s_mul_i32 s{sB}, s{sB}, 3584
        s_mul_i32 s{sC}, s{sJ}, 448
        s_and_b32 s{sC}, s{sC}, 0xffffff80
        s_add_u32 s{sB}, s{sB}, s{sC}
        """)
        setexec((1 << 40) - 1)
        for off in ((0, 64) if "f" in cfg.sub2 else (0,)):
            a(f"buffer_load_dword v{vJ}, v{vT0}, {sr(sW2,4)}, s{sB} offen offset:{off}{cfg.pf_pol_f}")
            a(f"buffer_load_dword v{vJ}, v{vT0}, {sr(sUP,4)}, s{sB} offen offset:{off}{cfg.pf_pol_f}")
        setexec(FULL)
    if not cfg.wsB and not cfg.w_inter: gu_slices()
    if cfg.w_inter and cfg.w_interB != "gu":
        lab = a.label("wl")
        a(f"s_cmp_ge_u32 s{sIdx}, 14\ns_cbranch_scc1 {lab}")
        for part, key, srdq, sh, base in ((0, "g", sW2, 12, L_WQ), (1, "u", sUP, 14, L_K)):
            if key in cfg.w_interB: continue
            for u in range(4):
                a(f"""
                s_mul_i32 s{sB}, s{sWst2}, {u}
                s_add_u32 s{sB}, s{sB}, s{sWb2}
                s_lshl_b32 s{sC}, s{sW}, {sh}
                s_add_u32 s{sC}, s{sC}, {base + u*1024}
                s_mov_b32 m0, s{sC}
                s_nop 0
                buffer_load_dwordx4 v{vWs}, {sr(srdq,4)}, s{sB} offen{SLN} lds
                """)
        a(f"{lab}:")
    if cfg.tag_split:
        tag_issue()
        a("s_waitcnt vmcnt(1)")
    else:
        tag_check_all()
    ts("ffn_landed")
    a(f"s_cmp_ge_u32 s{sIdx}, 14\ns_cbranch_scc1 L_nogu2")
    if cfg.w_inter:
        for mat, (sh, base) in enumerate(((12, L_WQ), (14, L_K))):
            a(f"s_lshl_b32 s{sB}, s{sW}, {sh}")
            tr_base(vT0, 32, 8, sB, base)
            for u in range(4):
                a(f"ds_read_b64_tr_b16 {ar(aW2+8*u+4*mat,2)}, v{vT0} offset:{u*1024}")
                a(f"ds_read_b64_tr_b16 {ar(aW2+8*u+4*mat+2,2)}, v{vT0} offset:{u*1024+128}")
    else:
        a(f"s_lshl_b32 s{sB}, s{sW}, 14")
        tr_base(vT0, 32, 8, sB, L_K + W_GATE)
        for u in range(4):
            for mat in range(2):
                a(f"ds_read_b64_tr_b16 {ar(aW2+8*u+4*mat,2)}, v{vT0} offset:{u*1024+mat*(W_UP-W_GATE)}")
                a(f"ds_read_b64_tr_b16 {ar(aW2+8*u+4*mat+2,2)}, v{vT0} offset:{u*1024+mat*(W_UP-W_GATE)+128}")
    a("s_waitcnt lgkmcnt(0)")
    for u in range(4):
        mfma(vAcc, vOnes, ar(aW2 + 8*u, 4), "0" if u == 0 else None)
        mfma(vAcc + 4, vOnes, ar(aW2 + 8*u + 4, 4), "0" if u == 0 else None)
    a(f"s_nop 7\nds_write_b32 v{vaRedW}, v{vAcc} offset:{R_COL}\nds_write_b32 v{vaRedW}, v{vAcc+4} offset:{R_COL2}")
    a("L_nogu2:")
    if cfg.tag_split: tag_finish()
    a("s_waitcnt lgkmcnt(0)\ns_barrier")
    if cfg.epoch_early:
        le = a.label("ep")
        a(f"""
        s_xor_b32 s{sB}, s{sM}, 30
        s_or_b32 s{sB}, s{sB}, s{sJ}
        s_or_b32 s{sB}, s{sB}, s{sW}
        s_cmp_eq_u32 s{sB}, 0
        s_cbranch_scc0 {le}
        """)
        a(f"v_mov_b32 v{vT0}, {WS_EPOCH}\nv_mov_b32 v{vT1}, s{sT}\ns_mov_b64 exec, 1")
        a(f"buffer_store_dword v{vT1}, v{vT0}, {sr(sWS,4)}, 0 offen sc1")
        a("s_mov_b64 exec, -1")
        a(f"{le}:")
    a(f"""
    ds_read_b128 {vr(vU,4)}, v{vaFinW} offset:{R_COL}
    ds_read_b128 {vr(vU+4,4)}, v{vaFinW} offset:{R_COL2}
    s_waitcnt lgkmcnt(0)
    """)
    sum4r(vU); sum4r(vU + 4)
    a(f"v_mov_b32 v{vCg}, v{vU}\nv_mov_b32 v{vCu}, v{vU+4}")
    ts("ffn_ready")
    a("L_loopB:")
    lg = a.label("nog")
    a(f"s_cmp_ge_u32 s{sIdx}, 14\ns_cbranch_scc1 {lg}")
    g_phase()
    a(f"{lg}:")
    if cfg.junk_dirty:
        lj = a.label("jk")
        a(f"s_cmp_eq_u32 s{sL}, 0\ns_cbranch_scc0 {lj}")
        a(f"s_lshl_b32 s{sB}, s2, 2\ns_add_u32 s{sB}, s{sB}, s{sW}\ns_mul_i32 s{sB}, s{sB}, {cfg.junk_dirty*1024}\ns_add_u32 s{sB}, s{sB}, 0x400000\nv_lshlrev_b32 v{vT0}, 4, v{vLane}")
        for i in range(cfg.junk_dirty):
            a(f"buffer_store_dwordx4 {vr(vP,4)}, v{vT0}, {sr(sWS,4)}, s{sB} offen\ns_add_u32 s{sB}, s{sB}, 1024")
        a(f"{lj}:")
    a(f"s_cmp_eq_u32 s{sL}, 1\ns_cbranch_scc1 L_fin")

    a("L_q2s2:")
    save_role, save_ts = g.role, g.ts
    g.role = "C"; g.ts = getattr(g, "maxts", g.ts)
    lab = a.label("wo")
    a(f"s_cmp_lt_u32 s{sM}, 16\ns_cbranch_scc{1 if cfg.warm_by_B else 0} {lab}")
    warm_q2()
    warm_o(1)
    a(f"{lab}:")
    if cfg.db_q: db_wait(None, const_hop=1)
    if cfg.diag and cfg.ts_only and "q2_db" in cfg.ts_only:
        ts("q2_db")
    a(f"s_mov_b32 s{sD}, {WS_X + X_HOP}")
    x_poll(sD, XA, cfg.sleep_x)
    ts("q2_got")
    q_core(XA)
    q_final(False)
    ts("q2_pub")
    l = a.label("qp"); ok = a.label("qok")
    setexec(EM4)
    a(f"{l}:")
    for c in range(4):
        a(f"buffer_load_dwordx4 {vr(vQ+4*c,4)}, v{vaQ2}, {sr(sWS,4)}, s{sQ2r} offen offset:{c*256} sc1")
    a("s_waitcnt vmcnt(0)")
    sent_check([vQ+i for i in range(16)], vT0, ok)
    spin_fail(l)
    a(f"{ok}:")
    setexec(FULL)
    ts("q2_gath")
    a(f"""
    s_add_u32 s{sOown}, s{sOown}, {O_L}
    s_add_u32 s{sOcons}, s{sOcons}, {O_L}
    s_add_u32 s{sXr}, s{sXr}, {2*X_HOP}
    s_add_u32 s{sHb}, s{sHb}, 8192
    s_mov_b32 s{sL}, 1
    """)
    s_qk_max()
    s_exp_p()
    if cfg.stats_mid:
        lw3 = a.label("s3"); lw4 = a.label("s4")
        a(f"s_cmp_eq_u32 s{sW}, 3\ns_cbranch_scc1 {lw3}")
        for blk in range(8):
            a(f"s_waitcnt lgkmcnt({7-blk})")
            pv([blk], blk == 0)
        a(f"s_branch {lw4}\n{lw3}:")
        a(f"""
        ds_read_b128 {vr(vU+4,4)}, v{vaSm} offset:{L_LSUM-L_SMAX}
        s_add_u32 s{sB}, s{sT}, s{sL}
        s_add_u32 s{sB}, s{sB}, 1
        v_mov_b32 v{vMc+2}, s{sB}
        """)
        for blk in range(4):
            a(f"s_waitcnt lgkmcnt({8-blk})")
            pv([blk], blk == 0)
        a("s_waitcnt lgkmcnt(0)")
        sum4r(vU + 4)
        a(f"v_mov_b32 v{vMc+1}, v{vU+4}")
        setexec(0xF)
        store_local(f"buffer_store_dwordx4 {vr(vMc,4)}, v{vaStS}, {sr(sWS,4)}, s{sOown} offen")
        setexec(FULL)
        for blk in range(4, 8):
            pv([blk], False)
        a(f"{lw4}:")
        s_out()
    else:
        s_stats_prep()
        a("s_waitcnt lgkmcnt(0)")
        pv(list(range(8)), True)
        s_out()
        s_stats_store(None)
    ts("s2_pub")
    if cfg.diag and cfg.ts_only and "s2_ack" in cfg.ts_only:
        a("s_waitcnt vmcnt(0)")
        ts("s2_ack")
    a(f"s_cmp_lt_u32 s{sM}, 16\ns_cbranch_scc1 L_loopA\ns_branch L_loopB")

    a("L_finalA:")
    g.role = "A"; g.ts = getattr(g, "maxts", g.ts)
    a(f"""
    s_cmp_ge_u32 s{sIdx}, 2
    s_cbranch_scc1 L_fin
    s_cmp_eq_u32 s{sW}, 0
    s_cbranch_scc0 L_fin
    s_lshl_b32 s{sB}, s{sJ}, 1
    s_add_u32 s{sB}, s{sB}, s{sIdx}        ; cb
    s_lshl_b32 s{sC}, s{sB}, 10
    s_xor_b32 s{sD}, s{sC}, 0x2000
    s_add_u32 s{sD}, s{sD}, 16384
    s_lshr_b32 s{sA}, s{sXcc}, 2
    s_lshr_b32 s{sTmp2}, s{sB}, 3
    s_cmp_eq_u32 s{sA}, s{sTmp2}
    s_cselect_b32 s{sC}, s{sC}, s{sD}
    s_add_u32 s{sC}, s{sC}, {WS_X + 3*X_HOP}
    """)
    for nt in range(2):
        for dd in range(4):
            a(f"""
            v_lshlrev_b32 v{vT0}, 3, v{vQd}
            v_add_u32 v{vT0}, {2*dd - 16*nt}, v{vT0}
            v_sub_u32 v{vT0}, v{vT0}, v{vR16}
            v_mov_b32 v{vP+4*nt+dd}, 0
            v_cmp_eq_u32 vcc, 0, v{vT0}
            v_mov_b32 v{vT1}, 0x3f80
            v_cndmask_b32 v{vP+4*nt+dd}, v{vP+4*nt+dd}, v{vT1}, vcc
            v_cmp_eq_u32 vcc, -1, v{vT0}
            v_mov_b32 v{vT1}, 0x3f800000
            v_cndmask_b32 v{vP+4*nt+dd}, v{vP+4*nt+dd}, v{vT1}, vcc
            """)
    a(f"""
    v_lshrrev_b32 v{vT2}, 1, v{vQd}
    v_lshlrev_b32 v{vT2}, 10, v{vT2}
    v_and_b32 v{vT1}, 1, v{vQd}
    v_lshl_add_u32 v{vT2}, v{vT1}, 5, v{vT2}
    v_lshl_add_u32 v{vT2}, v{vR16}, 1, v{vT2}
    s_lshl_b32 s{sB}, s{sB}, 6
    """)
    a(f"s_mov_b32 s{sEx2}, s{sC}\ns_mov_b32 s{sEx2+1}, s{sB}")
    if cfg.db_final: db_wait(None, const_hop=3)
    a(f"s_mov_b32 s{sC}, s{sEx2}\ns_mov_b32 s{sB}, s{sEx2+1}")
    l = a.label("fp"); ok = a.label("fok")
    a(f"{l}:")
    a(f"buffer_load_dwordx4 {vr(vA,4)}, v{vaX}, {sr(sWS,4)}, s{sC} offen sc1")
    a("s_waitcnt vmcnt(0)")
    sent_check([vA+i for i in range(4)], vT0, ok)
    spin_fail(l, cfg.sleep_x)
    a(f"{ok}:")
    ts("fin_got")
    mfma(vAcc, vA, vP, "0"); mfma(vAcc + 4, vA, vP + 4, "0")
    sum4(vU, vAcc, vT3); sum4(vU + 1, vAcc + 4, vT3)
    a(f"""
    v_permlane16_swap_b32 v{vU}, v{vU+1}
    v_add_f32 v{vU}, v{vU}, v{vU+1}
    v_cvt_pk_bf16_f32 v{vU}, v{vU}, v{vU}
    buffer_store_short v{vU}, v{vT2}, {sr(sOUT,4)}, s{sB} offen
    """)
    if not cfg.epoch_early:
        a(f"""
        s_cmp_eq_u32 s{sB}, 0
        s_cbranch_scc0 L_fin
        v_mov_b32 v{vT0}, {WS_EPOCH}
        v_mov_b32 v{vT1}, s{sT}
        """)
        setexec(1)
        a(f"buffer_store_dword v{vT1}, v{vT0}, {sr(sWS,4)}, 0 offen sc1")
        setexec(FULL)

    a("L_fin:")
    if cfg.diag:
        g.role = "E"
        g.tsn["E"].append((NTS - 1, "end"))
        a(f"s_memrealtime s[{sTmp2}:{sTmp2+1}]\ns_waitcnt lgkmcnt(0)\ns_mov_b32 s{sTS+NTS-2}, s{sTmp2}")
        a(f"s_memtime s[{sTmp2}:{sTmp2+1}]\ns_waitcnt lgkmcnt(0)\ns_mov_b32 s{sTS+NTS-1}, s{sTmp2}")
        a(f"s_lshl_b32 s{sB}, s2, 3\ns_add_u32 s{sB}, s{sB}, s{sW}\ns_lshl_b32 s{sB}, s{sB}, 7\ns_add_u32 s{sB}, s{sB}, {WS_DIAG}\nv_mov_b32 v{vT0}, 0")
        setexec(1)
        for i in range(NTS):
            a(f"v_mov_b32 v{vT1}, s{sTS+i}\nbuffer_store_dword v{vT1}, v{vT0}, {sr(sWS,4)}, s{sB} offen offset:{4*i}")
        setexec(FULL)
        if cfg.dbg_dump is not None:
            a(f"""
            s_cmp_eq_u32 s2, {cfg.dbg_dump}
            s_cbranch_scc0 L_nodump
            s_cmp_eq_u32 s{sW}, 0
            s_cbranch_scc0 L_nodump
            s_load_dwordx2 s[{sTmp2}:{sTmp2+1}], s[0:1], 80
            s_waitcnt lgkmcnt(0)
            s_mov_b32 s{sA}, s{sTmp2}
            s_and_b32 s{sB}, s{sTmp2+1}, 0xffff
            s_mov_b32 s{sC}, 256
            s_mov_b32 s{sD}, 0x20000
            v_mov_b32 v{vT0}, 0
            s_mov_b64 exec, 1
            """)
            for i in range(1, 16):
                a(f"s_sub_u32 s{sTmp2}, s{sTS+i}, s{sTS}\nv_mov_b32 v{vT1}, s{sTmp2}\nbuffer_store_dword v{vT1}, v{vT0}, s[{sA}:{sD}], 0 offen offset:{4*(i-1)}")
            a(f"s_sub_u32 s{sTmp2}, s{sTS+NTS-1}, s{sTS}\nv_mov_b32 v{vT1}, s{sTmp2}\nbuffer_store_dword v{vT1}, v{vT0}, s[{sA}:{sD}], 0 offen offset:60")
            a("s_mov_b64 exec, -1\nL_nodump:")
    if cfg.dbg_span:
        a(f"""
        s_waitcnt vmcnt(0)
        s_cmp_eq_u32 s{sW}, 0
        s_cbranch_scc0 L_nospan
        s_memrealtime s[{sTmp2}:{sTmp2+1}]
        s_load_dwordx2 s[92:93], s[0:1], 80
        s_waitcnt lgkmcnt(0)
        s_mov_b32 s{sA}, s92
        s_and_b32 s{sB}, s93, 0xffff
        s_mov_b32 s{sC}, 256
        s_mov_b32 s{sD}, 0x20000
        v_mov_b32 v{vT0}, 8
        v_mov_b32 v{vT1}, s{sTmp2}
        s_not_b32 s94, s94
        v_mov_b32 v{vT2}, s94
        s_mov_b64 exec, 1
        buffer_atomic_umax v{vT1}, v{vT0}, s[{sA}:{sD}], 0 offen sc1
        buffer_atomic_umax v{vT2}, v{vT0}, s[{sA}:{sD}], 0 offen offset:4 sc1
        s_waitcnt vmcnt(0)
        L_nospan:
        """)
    a("s_waitcnt vmcnt(0)\ns_endpgm")
    a(f"""
    L_abort:
    s_mov_b64 exec, -1
    v_mov_b32 v{vT0}, 0
    v_mov_b32 v{vT1}, 0xdead
    s_load_dwordx2 s[{sTmp2}:{sTmp2+1}], s[0:1], 80
    s_waitcnt lgkmcnt(0)
    s_mov_b32 s{sA}, s{sTmp2}
    s_and_b32 s{sB}, s{sTmp2+1}, 0xffff
    s_mov_b32 s{sC}, 256
    s_mov_b32 s{sD}, 0x20000
    s_mov_b64 exec, 1
    buffer_store_dword v{vT1}, v{vT0}, s[{sA}:{sD}], 0 offen offset:4
    s_waitcnt vmcnt(0)
    L_end:
    s_endpgm
    """)
    for o in g.ool: a(o)
    a("L_codeend:\ns_endpgm")
    lines = a.text().rstrip("\n").split("\n")
    g.ninstr = sum(1 for l in lines if l.startswith("    ") and not l.strip().startswith(";"))
    lines = hazard.pad(lines)
    return g, "\n".join(lines) + "\n"

HEADER = open("interleave_layers__sliding_block_cached__glu_gated_glu__decode.s.ref").read().split("; Override launch")[0]

def full(cfg):
    g, body = build(cfg)
    txt = HEADER
    txt += "; Persistent single-launch kernel: 256 workgroups (one per CU) x 256 threads.\n"
    txt += f"; @launch grid=(256,1,1) block=(256,1,1) lds={LDS_BYTES}\n"
    txt += '.amdgcn_target "amdgcn-amd-amdhsa--gfx950"\n.text\n'
    txt += f".globl {NAME}\n.p2align 8\n.type {NAME},@function\n{NAME}:\n"
    txt += body
    txt += '.section .rodata,"a"\n.p2align 6\n'
    txt += f".amdhsa_kernel {NAME}\n  .amdhsa_next_free_vgpr {256 + g.amax}\n  .amdhsa_next_free_sgpr 102\n  .amdhsa_accum_offset 256\n"
    txt += "  .amdhsa_group_segment_fixed_size 0\n  .amdhsa_kernarg_size 96\n  .amdhsa_user_sgpr_count 2\n  .amdhsa_user_sgpr_kernarg_segment_ptr 1\n  .amdhsa_system_sgpr_workgroup_id_x 1\n.end_amdhsa_kernel\n"
    return g, txt

if __name__ == "__main__":
    cfg = Cfg()
    for kv in sys.argv[2:]:
        k, v = kv.split("="); setattr(cfg, k, eval(v))
    g, txt = full(cfg)
    open(sys.argv[1], "w").write(txt)
    print("vgprs", g.vmax, "agprs", g.amax, "instrs", g.ninstr, "ts", g.tsn)
```

```python
import sys, struct
from asmlib import Asm
import hazard

NAME = "interleave_layers__sliding_block_cached__glu_gated_glu__decode_kernel"

WS_EPOCH = 0x0
WS_Q1 = 0x10000
WS_DB = 0x1c000
WS_Q2 = 0x20000
WS_H  = 0x28000
WS_X  = 0xE0000
X_HOP = 32768
WS_O  = 0x40000
O_STATS = 32768
O_J = O_STATS + 2048
O_L = 8 * O_J
WS_DIAG = 0x100000
WS_SIZE = 0x1000000

L_SMAX = 0
L_LSUM = 64
L_PBUF = 256
L_RED = 2560
R_Q, R_G, R_GZ, R_O, R_D, R_COL, R_COL2 = [L_RED + 1024 * i for i in range(7)]
L_QG = 10240
L_X0 = 14336
L_K = 16384
L_V = L_K + 65536
L_WQ = L_V + 65536
L_XI = L_V
LDS_BYTES = 163840
W_GATE, W_UP, W_DN = 0, 4096, 8192

C_SCALE = 0.08838834764831845 * 1.4426950408889634
def f2u(x): return struct.unpack("<I", struct.pack("<f", x))[0]

class Cfg:
    nKA = 8
    nKb1 = 1
    pace = 8
    gpts = (1, 2, 4)
    diag = False
    ts_only = None
    ts_issue = False
    force_global = False
    budget = 400000
    prefetch_code = True
    sleep_x = 0
    sleep_x0 = 0
    sleep_o = 0
    sl_nt = True
    pf_pol = ""
    pf_pol_f = ""
    pf_pol_o = " nt"
    pf_which = "qf"
    dbg_span = False
    counters = False
    db_early = False
    doorbell = True
    warm = True
    pf_stream = "o"
    pf_pos = 2
    pf_early = False
    pf_spol = ""
    wsA = False
    wsB = False
    junk_dirty = 0
    epoch_early = True
    w_interB = "gu"
    w_inter = False
    v3_early = False
    warm_by_B = True
    o_spec = True
    db_g = True
    db_q = True
    db_final = False
    stats_mid = True
    pf_down = False
    pf_down_pol = " nt"
    kv_pol = " nt"
    sub2 = ""
    dbg_dump = None
    db_pipe = False
    pace_lo = None
    tag_split = True
    code_pf_shift = 6
    gE_mode = 0
    g_early = True
    rt_probe = None
    rot_mode = "m8"
    warm_out = False
    line_pf = True
    const_tag = False
    no_clear0 = False
    clr0_late = False

def vr(b, n=1): return f"v[{b}:{b+n-1}]" if n > 1 else f"v{b}"
def ar(b, n=1): return f"a[{b}:{b+n-1}]" if n > 1 else f"a{b}"
def sr(b, n=1): return f"s[{b}:{b+n-1}]" if n > 1 else f"s{b}"

sJ, sM, sW, sIdx, sL = 3, 4, 5, 6, 7
sWS, sKS, sVS, sWQ, sW2, sUP, sDN, sX0, sOUT = 8, 12, 16, 20, 24, 28, 32, 36, 40
sT, sTX, sLocal, sBud = 44, 45, 46, 47
sMDIAG = 48
sM4 = 50
sM2 = 52
sMN1 = 54
sMEV = 56
sEx = 58
sA, sB, sC, sD = 60, 61, 62, 63
sKV, sRot = 64, 65
sOown, sOcons, sXw, sXr, sHb, sQ2w, sQ2r = 66, 67, 68, 69, 70 - 70 + 96, 97, 98
sXcc = 99
sEarly = 59
sWb2, sWst2 = 68, 60
sWb, sWst = 59, 69
sKS2 = sKS
sDBtag = 59
sEx2 = 50
sDBw, sDBr = 64, 65
sXI = 58
sTmp2 = 100
sTS = 70
NTS = 26

class G:
    pass

def build(cfg):
    g = G(); a = Asm(); g.a = a
    g.tsn = {"C": [], "A": [], "B": [], "E": []}; g.role = "C"; g.ts = 0; g.cnts = {}; g.cnt_names = []
    nv = [1]
    def valloc(n=1, align=1):
        nv[0] = (nv[0] + align - 1) // align * align
        r = nv[0]; nv[0] += n
        assert nv[0] <= 256
        return r
    vLane = valloc(); vR16 = valloc(); vQd = valloc()
    vT0 = valloc(); vT1 = valloc(); vT2 = valloc(); vT3 = valloc()
    vOnes = valloc(4, 4)
    vQ = valloc(16, 4)
    vA = valloc(40, 4)
    vAcc = valloc(16, 4)
    vS = valloc(16, 4)
    vP = valloc(32, 4)
    vJ = valloc()
    vHop = valloc(8, 4)
    vU = valloc(16, 4)
    vSt = valloc(8, 4)
    vW = valloc(2, 2)
    vCs = valloc(); vCg = valloc(); vCu = valloc()
    vRes = valloc(); vResF = valloc(); vTg = valloc(2)
    vQ1d = valloc(2, 2); vQ1a = valloc()
    vMc = valloc(4, 4)
    vaX = valloc(); vaXg = valloc(); vaXr = valloc(); vaStQ = valloc(); vaClrO = valloc(); vaO0 = valloc(); vaO1 = valloc(); vaS0 = valloc(); vaS1 = valloc(); vaQ2 = valloc(); vaH = valloc()
    vaPw = valloc(); vaPr = valloc(); vaSm = valloc(); vaSmW = valloc(); vaRedW = valloc(); vaRedZ = valloc()
    vaFinW = valloc(); vaFinZ = valloc(); vaFinQZ = valloc(); vaFinO = valloc()
    vaStH = valloc(); vaStX = valloc(); vaStO = valloc(); vaStS = valloc(); vaResU = valloc()
    vWs = valloc()
    vKs = valloc(4); vVs = valloc(2); vVr = valloc(2); vKr = valloc(4)
    g.vmax = nv[0]
    aK, aV, aWq, aW2, aWd = 0, 64, 128, 144, 176
    g.amax = 192

    FULL = (1 << 64) - 1
    def ts(name):
        if not cfg.diag: return
        if cfg.ts_only and name not in cfg.ts_only and name not in ("start", "setup", "issued"): return
        i = g.ts; g.ts += 1; g.maxts = max(getattr(g, "maxts", 0), g.ts)
        assert i < NTS - 3, name
        g.tsn[g.role].append((i, name))
        if name == "start":
            return
        if name == "issued":
            g.i_issued = i
            a(f"s_memtime s[{sTmp2}:{sTmp2+1}]\ns_waitcnt lgkmcnt(0)\ns_mov_b32 s92, s{sTmp2}")
            return
        if name == "setup":
            a(f"s_mov_b32 s{sTS}, s90\ns_mov_b32 s{sTS+NTS-3}, s91")
            if cfg.ts_issue: a(f"s_mov_b32 s{sTmp2}, s92")
            for z in list(range(1, NTS - 3)) + [NTS - 2, NTS - 1]: a(f"s_mov_b32 s{sTS+z}, 0")
            if cfg.ts_issue: a(f"s_mov_b32 s{sTS+g.i_issued}, s{sTmp2}")
        if cfg.ts_only and name not in cfg.ts_only:
            return
        a(f"s_memtime s[{sTmp2}:{sTmp2+1}]\ns_waitcnt lgkmcnt(0)\ns_mov_b32 s{sTS+i}, s{sTmp2}")
    def ts_dyn(name0, name1):
        if not cfg.diag: return
        if cfg.ts_only and name0 not in cfg.ts_only: return
        i = g.ts; g.ts += 2; g.maxts = max(getattr(g, "maxts", 0), g.ts)
        assert i + 1 < NTS - 3, name0
        g.tsn[g.role].append((i, name0)); g.tsn[g.role].append((i + 1, name1))
        if cfg.ts_only and name0 not in cfg.ts_only: return
        a(f"""s_memtime s[{sTmp2}:{sTmp2+1}]
        s_waitcnt lgkmcnt(0)
        s_cmp_eq_u32 s{sL}, 0
        s_cselect_b32 s{sTS+i}, s{sTmp2}, s{sTS+i}
        s_cselect_b32 s{sTS+i+1}, s{sTS+i+1}, s{sTmp2}""")

    def cnt(name):
        if not (cfg.diag and cfg.counters): return
        key = (g.role, name)
        if key not in g.cnts:
            i = g.ts; g.ts += 1; g.maxts = max(getattr(g, "maxts", 0), g.ts)
            assert i < NTS - 3, name
            g.cnts[key] = i; g.cnt_names.append((g.role, i, name))
        a(f"s_add_u32 s{sTS+g.cnts[key]}, s{sTS+g.cnts[key]}, 1")

    def rt_probe(name):
        if cfg.rt_probe != name: return
        lab = a.label("rp")
        if name == "start":
            cond = f"s_cmp_eq_u32 s2, 0\ns_cbranch_scc0 {lab}"
        else:
            cond = f"s_mul_hi_u32 s{sA}, s2, {(2**32 + 16) // 17}\ns_mul_i32 s{sB}, s{sA}, 17\ns_cmp_eq_u32 s{sB}, s2\ns_cbranch_scc0 {lab}"
        a(f"""
        s_cmp_eq_u32 s{sW}, 0
        s_cbranch_scc0 {lab}
        {cond}
        s_memrealtime s[{sTmp2}:{sTmp2+1}]
        s_load_dwordx2 s[92:93], s[0:1], 80
        s_waitcnt lgkmcnt(0)
        s_lshl_b32 s{sA}, s{sA}, 2
        v_mov_b32 v{vT0}, s{sA}
        v_mov_b32 v{vT1}, s{sTmp2}
        s_mov_b64 exec, 1
        global_store_dword v{vT0}, v{vT1}, s[92:93]
        s_mov_b64 exec, -1
        {lab}:
        """)

    def setexec(mask):
        if mask == FULL: a("s_mov_b64 exec, -1")
        elif isinstance(mask, str): a(f"s_mov_b64 exec, {mask}")
        elif mask < 65 or mask in (0xFFFF, 0xF, 0xFF):
            a(f"s_mov_b64 exec, 0x{mask:x}" if mask >= 65 else f"s_mov_b64 exec, {mask}")
        else:
            a(f"s_mov_b32 exec_lo, 0x{mask & 0xFFFFFFFF:x}\ns_mov_b32 exec_hi, 0x{mask >> 32:x}")
    EM4, EM2, EMEV = f"s[{sM4}:{sM4+1}]", f"s[{sM2}:{sM2+1}]", f"s[{sMEV}:{sMEV+1}]"

    def srd(dst, ptr_s, size):
        a(f"s_mov_b32 s{dst}, s{ptr_s}\ns_and_b32 s{dst+1}, s{ptr_s+1}, 0xffff\ns_mov_b32 s{dst+2}, 0x{size:x}\ns_mov_b32 s{dst+3}, 0x20000")

    def mfma(d, A, B, C=None):
        f = lambda x: x if isinstance(x, str) else vr(x, 4)
        c = f(d) if C is None else C
        a(f"v_mfma_f32_16x16x32_bf16 {f(d)}, {f(A)}, {f(B)}, {c}")

    def spin_fail(lbl_retry, sleep=0):
        if sleep: a(f"s_sleep {sleep}")
        a(f"s_sub_u32 s{sBud}, s{sBud}, 1\ns_cbranch_scc0 {lbl_retry}\ns_branch L_abort")
    def interleave(mf, va, start, per=2):
        va = list(va)
        for i, m in enumerate(mf):
            a(m)
            if i >= start:
                for _ in range(per):
                    if va: a(va.pop(0))
        for v in va: a(v)
    def mf(d, A, B, C=None):
        f = lambda x: x if isinstance(x, str) else vr(x, 4)
        return f"v_mfma_f32_16x16x32_bf16 {f(d)}, {f(A)}, {f(B)}, {f(d) if C is None else C}"

    def sent_max(regs, tmp):
        rs = list(regs)
        if len(rs) == 1: return rs[0]
        if len(rs) == 2:
            a(f"v_max_u32 v{tmp}, v{rs[0]}, v{rs[1]}"); rs = []
        else:
            a(f"v_max3_u32 v{tmp}, v{rs[0]}, v{rs[1]}, v{rs[2]}"); rs = rs[3:]
        while len(rs) >= 2:
            a(f"v_max3_u32 v{tmp}, v{tmp}, v{rs[0]}, v{rs[1]}"); rs = rs[2:]
        if rs: a(f"v_max_u32 v{tmp}, v{tmp}, v{rs[0]}")
        return tmp
    def sent_check(regs, tmp, lbl_ok):
        cur = sent_max(regs, tmp)
        a(f"v_cmp_eq_u32 vcc, -1, v{cur}\ns_cbranch_vccz {lbl_ok}")

    g.ool = []
    def store_local(instr):
        if cfg.force_global:
            a(instr + " sc1"); return
        l1 = a.label("stg"); l2 = a.label("std")
        a(f"s_cmp_eq_u32 s{sLocal}, 0\ns_cbranch_scc1 {l1}")
        a(instr)
        a(f"{l2}:")
        g.ool.append(f"{l1}:\n{instr} sc1\ns_branch {l2}")

    def dpp(op, d, s0, s1, ctrl, rm="0xf", bm="0xf"):
        if s1 is None: a(f"{op}_dpp v{d}, v{s0} {ctrl} row_mask:{rm} bank_mask:{bm}")
        else: a(f"{op}_dpp v{d}, v{s0}, v{s1} {ctrl} row_mask:{rm} bank_mask:{bm}")
    def row_reduce(op, v, steps=(8, 4, 2, 1)):
        for n in steps: dpp(op, v, v, v, f"row_ror:{n}")
    def xquad_reduce(op, v, tmp):
        a(f"v_mov_b32 v{tmp}, v{v}\nv_permlane32_swap_b32 v{v}, v{tmp}\n{op} v{v}, v{v}, v{tmp}")
        a(f"v_mov_b32 v{tmp}, v{v}\nv_permlane16_swap_b32 v{v}, v{tmp}\n{op} v{v}, v{v}, v{tmp}")
    def sum4(dst, b, tmp):
        a(f"v_add_f32 v{dst}, v{b}, v{b+1}\nv_add_f32 v{tmp}, v{b+2}, v{b+3}\nv_add_f32 v{dst}, v{dst}, v{tmp}")

    P = sTS
    EARLY = ""
    if cfg.dbg_span:
        EARLY = f"s_memrealtime s[94:95]"
    if cfg.diag:
        EARLY = f"s_memrealtime s[{sTmp2}:{sTmp2+1}]\ns_waitcnt lgkmcnt(0)\ns_mov_b32 s91, s{sTmp2}\ns_memtime s[{sTmp2}:{sTmp2+1}]\ns_waitcnt lgkmcnt(0)\ns_mov_b32 s90, s{sTmp2}"
    SLN = " nt" if cfg.sl_nt else ""
    a(f"""
    s_cmp_ge_u32 s2, 256
    s_cbranch_scc1 L_end
    {EARLY}
    s_load_dwordx4 s[{P+6}:{P+9}], s[0:1], 16          ; V, wq     (76..79)
    s_load_dwordx4 s[{P+2}:{P+5}], s[0:1], 0           ; x, K      (72..75)
    s_load_dwordx2 s[{P+18}:{P+19}], s[0:1], 88        ; ws        (88..89)
    s_load_dwordx2 s[{P}:{P+1}], s[0:1], 32            ; wo        (70..71)
    s_load_dwordx4 s[{P+10}:{P+13}], s[0:1], 48
    s_load_dwordx4 s[{P+14}:{P+17}], s[0:1], 64
    v_lshrrev_b32 v{vT0}, 6, v0
    v_and_b32 v{vLane}, 63, v0
    """)
    if cfg.prefetch_code:
        a(f"""
        s_getpc_b64 s[{sTmp2}:{sTmp2+1}]
        L_pfbase:
        v_readfirstlane_b32 s{sW}, v{vT0}
        v_lshlrev_b32 v{vT1}, {cfg.code_pf_shift}, v0
        s_mov_b32 s{sB}, (L_codeend - L_pfbase)
        v_cmp_gt_u32 vcc, s{sB}, v{vT1}
        s_and_b32 s{sJ}, s2, 7
        s_and_saveexec_b64 s[{sEx}:{sEx+1}], vcc
        s_cbranch_execz L_nopf
        global_load_dword v{vU+15}, v{vT1}, s[{sTmp2}:{sTmp2+1}]
        L_nopf:
        s_mov_b64 exec, s[{sEx}:{sEx+1}]
        """)
    else:
        a(f"s_and_b32 s{sJ}, s2, 7\nv_readfirstlane_b32 s{sW}, v{vT0}")
    a(f"""
    s_lshr_b32 s{sM}, s2, 3
    v_lshrrev_b32 v{vT2}, 1, v{vLane}
    v_lshlrev_b32 v{vT2}, 13, v{vT2}
    v_and_b32 v{vT3}, 1, v{vLane}
    v_lshl_add_u32 v{vT2}, v{vT3}, 4, v{vT2}
    v_lshrrev_b32 v{vT0}, {4 if "q" in cfg.sub2 else 3}, v{vLane}
    v_lshlrev_b32 v{vT0}, 13, v{vT0}
    v_and_b32 v{vT3}, {15 if "q" in cfg.sub2 else 7}, v{vLane}
    v_lshl_add_u32 v{vT0}, v{vT3}, {6 if "q" in cfg.sub2 else 7}, v{vT0}
    s_lshl_b32 s{sC}, s{sJ}, 10
    s_lshl_b32 s{sA}, s{sM}, 2
    s_add_u32 s{sA}, s{sA}, s{sW}
    s_lshl_b32 s{sA}, s{sA}, 15
    s_add_u32 s{sA}, s{sA}, s{sC}
    s_lshl_b32 s{sB}, s{sW}, 20
    s_add_u32 s{sB}, s{sB}, s{sC}
    s_lshl_b32 s{sC}, s{sM}, 5
    s_add_u32 s{sB}, s{sB}, s{sC}
    s_lshl_b32 s{sC}, s{sW}, 12
    s_add_u32 s{sC}, s{sC}, {L_WQ}
    s_mov_b32 s{sWQ+2}, 0x400000
    s_mov_b32 s{sWQ+3}, 0x20000
    s_waitcnt lgkmcnt(0)
    s_mov_b32 s{sWQ}, s{P+8}
    s_and_b32 s{sWQ+1}, s{P+9}, 0xffff
    """)
    if cfg.line_pf and "q" in cfg.pf_which:
        if "q" not in cfg.sub2: setexec(0xFFFFFFFF)
        a(f"buffer_load_dword v{vJ}, v{vT0}, {sr(sWQ,4)}, s{sA} offen{cfg.pf_pol}")
        if "q" not in cfg.sub2: setexec(FULL)
    for u in range(4):
        a(f"""
        s_mov_b32 m0, s{sC}
        s_add_u32 s{sC}, s{sC}, 1024
        buffer_load_dwordx4 v{vT2}, {sr(sWQ,4)}, s{sB} offen{SLN} lds
        s_add_u32 s{sB}, s{sB}, {32*8192}
        """)
    XA = vA + 8
    ROT = {"m8": f"s_and_b32 s{sRot}, s{sM}, 7\ns_lshl_b32 s{sRot}, s{sRot}, 1",
           "mj8": f"s_add_u32 s{sRot}, s{sM}, s{sJ}\ns_and_b32 s{sRot}, s{sRot}, 7\ns_lshl_b32 s{sRot}, s{sRot}, 1",
           "m16": f"s_and_b32 s{sRot}, s{sM}, 15",
           "mj16": f"s_lshl_b32 s{sRot}, s{sJ}, 1\ns_add_u32 s{sRot}, s{sRot}, s{sM}\ns_and_b32 s{sRot}, s{sRot}, 15",
           "none": f"s_mov_b32 s{sRot}, 0",
           "m4x4": f"s_and_b32 s{sRot}, s{sM}, 3\ns_lshl_b32 s{sRot}, s{sRot}, 2"}[cfg.rot_mode]
    a(f"""
    v_and_b32 v{vR16}, 15, v0
    v_lshrrev_b32 v{vQd}, 4, v{vLane}
    s_and_b32 s{sIdx}, s{sM}, 15
    {ROT}
    s_lshr_b32 s{sB}, s{sM}, 4
    s_lshl_b32 s{sB}, s{sB}, 3
    s_add_u32 s{sB}, s{sB}, s{sJ}
    s_lshl_b32 s{sB}, s{sB}, 23
    s_lshl_b32 s{sC}, s{sIdx}, 16
    s_add_u32 s{sKV}, s{sB}, s{sC}
    s_add_u32 s{sKV}, s{sKV}, 0x700000
    v_lshlrev_b32 v{vT1}, 4, v{vLane}          ; lane*16
    """)
    srd(sKS, P + 4, 0x8000000)
    for i in range(4):
        a(f"""
        v_add_u32 v{vT3}, {4*i}, v{vQd}
        v_xor_b32 v{vT3}, v{vT3}, v{vR16}
        v_lshlrev_b32 v{vT3}, 4, v{vT3}
        v_lshl_add_u32 v{vKs+i}, v{vQd}, 8, v{vT3}
        """)
    srd(sWS, P + 18, WS_SIZE)
    if cfg.const_tag: a(f"s_mov_b32 s{sT}, 0x12345670")
    else: a(f"s_load_dword s{sT}, s[{P+18}:{P+19}], {WS_EPOCH}")
    srd(sX0, P + 2, 2048)
    a(f"s_cmp_eq_u32 s{sW}, 0\ns_cbranch_scc0 L_nox0")
    a(f"""
    s_mov_b32 m0, {L_X0}
    s_nop 0
    buffer_load_dwordx4 v{vT1}, {sr(sX0,4)}, 0 offen lds
    buffer_load_dwordx4 v{vT1}, {sr(sX0,4)}, 0 offen offset:1024 lds
    L_nox0:
    """)
    a(f"""
    s_mul_i32 s{sOown}, s{sJ}, {O_J}
    s_lshr_b32 s{sB}, s{sM}, 4
    s_lshl_b32 s{sB}, s{sB}, 14
    s_add_u32 s{sOown}, s{sOown}, s{sB}
    s_lshl_b32 s{sB}, s{sIdx}, 4
    s_add_u32 s{sOown}, s{sOown}, s{sB}
    s_add_u32 s{sOown}, s{sOown}, {WS_O}
    s_lshl_b32 s{sC}, s{sIdx}, 10
    s_lshl_b32 s{sD}, s{sJ}, 7
    s_add_u32 s{sC}, s{sC}, s{sD}
    s_add_u32 s{sXw}, s{sC}, {WS_X}
    s_mov_b32 s{sXr}, {WS_X}
    s_lshl_b32 s{sHb}, s{sJ}, 10
    s_add_u32 s{sHb}, s{sHb}, {WS_H}
    s_lshl_b32 s{sQ2w}, s{sJ}, 11
    s_add_u32 s{sQ2r}, s{sQ2w}, {WS_Q2}
    ; producer m: h = m>>3, c = (m>>1)&3, e0 = 2*(m&1)  ->  c*256 + e0*64 + h*16
    s_lshr_b32 s{sB}, s{sM}, 1
    s_and_b32 s{sB}, s{sB}, 3
    s_lshl_b32 s{sB}, s{sB}, 8
    s_add_u32 s{sQ2w}, s{sQ2r}, s{sB}
    s_and_b32 s{sB}, s{sM}, 1
    s_lshl_b32 s{sB}, s{sB}, 7
    s_add_u32 s{sQ2w}, s{sQ2w}, s{sB}
    s_lshr_b32 s{sB}, s{sM}, 3
    s_lshl_b32 s{sB}, s{sB}, 4
    s_add_u32 s{sQ2w}, s{sQ2w}, s{sB}
    s_lshr_b32 s{sB}, s{sM}, 4
    s_lshl_b32 s{sB}, s{sB}, 10
    s_add_u32 s{sQ2r}, s{sQ2r}, s{sB}
    """)
    if cfg.no_clear0: a("s_branch L_clr_done")
    a(f"""
    v_mov_b32 v{vU}, -1
    v_mov_b32 v{vU+1}, -1
    v_mov_b32 v{vU+2}, -1
    v_mov_b32 v{vU+3}, -1
    v_bfe_u32 v{vT3}, v{vLane}, 1, 1
    v_lshlrev_b32 v{vT3}, 10, v{vT3}
    v_and_b32 v{vT0}, 1, v{vLane}
    v_lshl_add_u32 v{vT3}, v{vT0}, 6, v{vT3}
    v_add_u32 v{vT0}, s{sQ2w}, v{vT3}
    s_cmp_lt_u32 s{sM}, 16
    s_cbranch_scc0 L_clr_B
    s_cmp_eq_u32 s{sW}, 1
    s_cbranch_scc0 L_clr_A2
    """)
    setexec(0xF)
    a(f"""
    s_branch L_clr_st
    L_clr_A2:
    s_cmp_eq_u32 s{sW}, 2
    s_cbranch_scc0 L_clr_done
    s_xor_b32 s{sC}, s{sXw}, 0x2000
    s_add_u32 s{sC}, s{sC}, 16384
    v_mov_b32 v{vT0}, s{sXw}
    v_mov_b32 v{vT1}, s{sC}
    v_bfe_u32 v{vT3}, v{vLane}, 3, 1
    v_cmp_eq_u32 vcc, 1, v{vT3}
    v_cndmask_b32 v{vT0}, v{vT0}, v{vT1}, vcc
    v_lshrrev_b32 v{vT3}, 4, v{vLane}
    v_lshlrev_b32 v{vT3}, 15, v{vT3}
    v_and_b32 v{vT1}, 7, v{vLane}
    v_lshl_add_u32 v{vT3}, v{vT1}, 4, v{vT3}
    v_add_u32 v{vT0}, v{vT0}, v{vT3}
    s_branch L_clr_st
    L_clr_B:
    s_cmp_eq_u32 s{sW}, 2
    s_cbranch_scc0 L_clr_done
    """)
    setexec(0xF)
    a(f"""
    s_cmp_ge_u32 s{sIdx}, 14
    s_cbranch_scc1 L_clr_st
    s_lshl_b32 s{sD}, s{sIdx}, 6
    s_add_u32 s{sC}, s{sHb}, s{sD}
    """)
    setexec(0xFF0)
    a(f"""
    v_bfe_u32 v{vT3}, v{vLane}, 3, 1
    v_lshlrev_b32 v{vT3}, 13, v{vT3}
    v_and_b32 v{vT1}, 3, v{vLane}
    v_lshl_add_u32 v{vT3}, v{vT1}, 4, v{vT3}
    v_add_u32 v{vT0}, s{sC}, v{vT3}
    """)
    setexec(0xFFF)
    a("L_clr_st:")
    a(f"buffer_store_dwordx4 {vr(vU,4)}, v{vT0}, {sr(sWS,4)}, 0 offen sc1")
    setexec(FULL)
    a("L_clr_done:")
    def emit_wpf(qWO, qGT, reload_ptrs):
        n = 0
        a(f"s_lshl_b32 s{sD}, s{sM}, 2\ns_add_u32 s{sD}, s{sD}, s{sW}               ; q = 4m + w")
        if reload_ptrs:
            a(f"""
            s_load_dwordx2 s[{qWO}:{qWO+1}], s[0:1], 32
            s_load_dwordx2 s[{qGT}:{qGT+1}], s[0:1], 48
            s_waitcnt lgkmcnt(0)
            s_and_b32 s{qWO+1}, s{qWO+1}, 0xffff
            s_mov_b32 s{qWO+2}, 0x400000
            s_and_b32 s{qGT+1}, s{qGT+1}, 0xffff
            s_mov_b32 s{qGT+2}, {512*1792*2}
            """)
        if "o" in cfg.pf_stream:
            a(f"""
            v_lshlrev_b32 v{vT0}, {6 if "o" in cfg.sub2 else 7}, v{vLane}
            s_lshl_b32 s{sB}, s{sJ}, 19
            s_lshl_b32 s{sC}, s{sD}, 12
            s_add_u32 s{sB}, s{sB}, s{sC}
            """)
            if "o" not in cfg.sub2: setexec(0xFFFFFFFF)
            a(f"buffer_load_dword v{vJ}, v{vT0}, {sr(qWO,4)}, s{sB} offen{cfg.pf_spol}")
            setexec(FULL); n += 1
        if "g" in cfg.pf_stream or "u" in cfg.pf_stream:
            a(f"""
            v_mul_u32_u24 v{vT0}, 52, v{vLane}
            v_lshrrev_b32 v{vT0}, 8, v{vT0}
            v_mul_u32_u24 v{vT1}, 5, v{vT0}
            v_sub_u32 v{vT1}, v{vLane}, v{vT1}
            v_mul_u32_u24 v{vT0}, 3584, v{vT0}
            v_lshl_add_u32 v{vT0}, v{vT1}, 7, v{vT0}
            s_mul_i32 s{sB}, s{sD}, {4*3584}
            s_mul_i32 s{sC}, s{sJ}, 448
            s_and_b32 s{sC}, s{sC}, 0xffffff80
            s_add_u32 s{sB}, s{sB}, s{sC}
            """)
            setexec((1 << 20) - 1)
            if "g" in cfg.pf_stream:
                a(f"buffer_load_dword v{vJ}, v{vT0}, {sr(qGT,4)}, s{sB} offen{cfg.pf_spol}"); n += 1
            if "u" in cfg.pf_stream:
                a(f"buffer_load_dword v{vJ}, v{vT0}, {sr(sUP,4)}, s{sB} offen{cfg.pf_spol}"); n += 1
            setexec(FULL)
        if "d" in cfg.pf_stream:
            a(f"""
            v_lshlrev_b32 v{vT0}, 7, v{vLane}
            s_min_u32 s{sB}, s{sD}, 111
            s_lshl_b32 s{sB}, s{sB}, 11
            s_mul_i32 s{sC}, s{sJ}, {224*1024}
            s_add_u32 s{sB}, s{sB}, s{sC}
            """)
            setexec(0xFFFF)
            a(f"buffer_load_dword v{vJ}, v{vT0}, {sr(sDN,4)}, s{sB} offen{cfg.pf_spol}")
            setexec(FULL); n += 1
        return n

    def page_off(t, dst):
        a(f"""
        s_add_u32 s{dst}, s{sW}, s{sRot}
        s_add_u32 s{dst}, s{dst}, {4*t}
        s_and_b32 s{dst}, s{dst}, 15
        s_lshl_b32 s{dst}, s{dst}, 12
        s_add_u32 s{dst}, s{dst}, s{sKV}
        """)
    def k_page(t):
        page_off(t, sD)
        a(f"s_lshl_b32 s{sC}, s{sW}, 14\ns_add_u32 s{sC}, s{sC}, {L_K + t*4096}\ns_mov_b32 m0, s{sC}\ns_nop 0")
        for ii in range(4):
            a(f"buffer_load_dwordx4 v{vKs+ii}, {sr(sKS,4)}, s{sD} offen offset:{ii*1024}{cfg.kv_pol} lds")
    nKpA = cfg.nKA // 4
    for t in range(cfg.nKb1): k_page(t)
    nPFe = 0
    if cfg.pf_stream and cfg.pf_early:
        srd(sVS, P, 0x400000)
        srd(sOUT, P + 10, 512 * 1792 * 2)
        srd(sUP, P + 12, 512 * 1792 * 2)
        srd(sDN, P + 14, 1792 * 512 * 2)
        nPFe = emit_wpf(sVS, sOUT, False)
    ts("start")
    if cfg.ts_issue: ts("issued")

    srd(sVS, P + 6, 0x8000000)
    srd(sUP, P + 12, 512 * 1792 * 2)
    srd(sDN, P + 14, 1792 * 512 * 2)
    srd(sOUT, P + 16, 2048)
    a(f"""
    s_cmp_lt_u32 s{sM}, 16
    s_cselect_b32 s{sW2}, s{P}, s{P+10}
    s_cselect_b32 s{sW2+1}, s{P+1}, s{P+11}
    s_mov_b32 s{sW2+2}, {512*1792*2}
    s_cselect_b32 s{sW2+2}, 0x400000, s{sW2+2}
    s_and_b32 s{sW2+1}, s{sW2+1}, 0xffff
    s_mov_b32 s{sW2+3}, 0x20000
    s_mov_b32 s{sBud}, {cfg.budget}
    s_getreg_b32 s{sXcc}, hwreg(HW_REG_XCC_ID, 0, 4)
    s_mov_b32 s{sMDIAG}, 0x00ff00ff
    s_mov_b32 s{sMDIAG+1}, 0xff00ff00
    s_mov_b32 s{sM4}, 0x000f000f
    s_mov_b32 s{sM4+1}, 0x000f000f
    s_mov_b32 s{sM2}, 0x00030003
    s_mov_b32 s{sM2+1}, 0x00030003
    s_mov_b32 s{sMN1}, 0x00020002
    s_mov_b32 s{sMN1+1}, 0x00020002
    s_mov_b32 s{sMEV}, 0x55555555
    s_mov_b32 s{sMEV+1}, 0x55555555
    s_mov_b32 s{sL}, 0
    s_mul_i32 s{sOcons}, s{sJ}, {O_J}
    s_lshl_b32 s{sB}, s{sW}, 12
    s_add_u32 s{sOcons}, s{sOcons}, s{sB}
    s_add_u32 s{sOcons}, s{sOcons}, {WS_O}
    """)
    for i in range(4): a(f"v_mov_b32 v{vOnes+i}, 0x3f803f80")
    for i in range(16): a(f"v_mov_b32 v{vQ+i}, 0")
    for i in range(8): a(f"v_mov_b32 v{vHop+i}, 0")
    a(f"v_mov_b32 v{vQ1a}, 0\nv_mov_b32 v{vQ1d}, 0\nv_mov_b32 v{vQ1d+1}, 0")
    h3 = vU; qh = vU + 1; ql = vU + 2
    a(f"""
    v_and_b32 v{h3}, 3, v{vR16}
    v_lshrrev_b32 v{qh}, 1, v{vQd}
    v_and_b32 v{ql}, 1, v{vQd}
    v_and_b32 v{vT0}, 7, v{vR16}
    v_lshlrev_b32 v{vT0}, 7, v{vT0}
    v_lshrrev_b32 v{vT1}, 3, v{vR16}
    v_lshl_add_u32 v{vT0}, v{vT1}, 6, v{vT0}
    v_lshl_add_u32 v{vaX}, v{vQd}, 4, v{vT0}
    v_lshrrev_b32 v{vT0}, 3, v{vLane}
    v_and_b32 v{vT1}, 2, v{vT0}
    v_and_b32 v{vT2}, 7, v{vLane}
    v_xor_b32 v{vT1}, v{vT1}, v{vT2}
    v_lshlrev_b32 v{vT1}, 4, v{vT1}
    v_lshl_add_u32 v{vT0}, v{vT0}, 7, v{vT1}
    s_lshl_b32 s{sB}, s{sW}, 12
    s_xor_b32 s{sC}, s{sB}, 0x2000
    s_add_u32 s{sC}, s{sC}, 16384
    s_lshr_b32 s{sA}, s{sXcc}, 2
    s_lshr_b32 s{sD}, s{sW}, 1
    s_cmp_eq_u32 s{sA}, s{sD}
    s_cselect_b32 s{sB}, s{sB}, s{sC}
    v_add_u32 v{vaXg}, s{sB}, v{vT0}
    v_and_b32 v{vT0}, 7, v{vR16}
    v_lshrrev_b32 v{vT1}, 3, v{vR16}
    v_lshl_add_u32 v{vT1}, v{vT1}, 2, v{vQd}
    v_and_b32 v{vT2}, 2, v{vT0}
    v_xor_b32 v{vT1}, v{vT1}, v{vT2}
    v_lshlrev_b32 v{vT1}, 4, v{vT1}
    v_lshl_add_u32 v{vT0}, v{vT0}, 7, v{vT1}
    s_lshl_b32 s{sXI}, s{sW}, 12
    s_add_u32 s{sXI}, s{sXI}, {L_XI}
    v_add_u32 v{vaXr}, s{sXI}, v{vT0}
    v_lshlrev_b32 v{vaO0}, 4, v{vLane}
    v_add_u32 v{vaO1}, 16384, v{vaO0}
    v_lshl_add_u32 v{vT0}, v{vQd}, 2, v{vR16}
    v_and_b32 v{vT0}, 15, v{vT0}
    v_lshlrev_b32 v{vT0}, 4, v{vT0}
    s_mul_i32 s{sB}, s{sW}, 3840
    s_sub_u32 s{sB}, {O_STATS}, s{sB}
    v_add_u32 v{vaS0}, s{sB}, v{vT0}
    v_add_u32 v{vaS1}, 1024, v{vaS0}
    v_lshlrev_b32 v{vT0}, 6, v{vQd}
    v_lshl_add_u32 v{vaQ2}, v{h3}, 4, v{vT0}
    v_lshlrev_b32 v{vT0}, 10, v{ql}
    v_lshrrev_b32 v{vT1}, 3, v{vR16}
    v_lshl_add_u32 v{vT0}, v{vT1}, 6, v{vT0}
    v_and_b32 v{vT1}, 7, v{vR16}
    v_lshl_add_u32 v{vaStQ}, v{vT1}, 1, v{vT0}
    v_lshlrev_b32 v{vT0}, 12, v{h3}
    v_lshl_add_u32 v{vT0}, v{vQd}, 10, v{vT0}
    v_bfe_u32 v{vT1}, v{vLane}, 2, 2
    v_lshl_add_u32 v{vaClrO}, v{vT1}, 8, v{vT0}
    v_and_b32 v{vT0}, 1, v{vR16}
    v_lshlrev_b32 v{vT0}, 5, v{vT0}
    v_lshl_add_u32 v{vT0}, v{qh}, 6, v{vT0}
    v_lshl_add_u32 v{vT0}, v{ql}, 4, v{vT0}
    s_lshl_b32 s{sB}, s{sW}, 7
    v_add_u32 v{vaH}, s{sB}, v{vT0}
    v_lshlrev_b32 v{vT0}, 6, v{vQd}
    v_lshl_add_u32 v{vT0}, v{h3}, 4, v{vT0}
    v_add_u32 v{vaPr}, {L_PBUF}, v{vT0}
    v_lshrrev_b32 v{vT1}, 2, v{vR16}
    v_lshl_add_u32 v{vT1}, v{vT1}, 9, v{vaPr}
    s_lshr_b32 s{sB}, s{sW}, 1
    s_lshl_b32 s{sB}, s{sB}, 8
    s_and_b32 s{sC}, s{sW}, 1
    s_lshl_b32 s{sC}, s{sC}, 3
    s_add_u32 s{sB}, s{sB}, s{sC}
    v_add_u32 v{vaPw}, s{sB}, v{vT1}
    v_lshlrev_b32 v{vT0}, 4, v{h3}
    v_add_u32 v{vaSm}, {L_SMAX}, v{vT0}
    s_lshl_b32 s{sB}, s{sW}, 2
    v_add_u32 v{vaSmW}, s{sB}, v{vaSm}
    v_lshlrev_b32 v{vT0}, 4, v{vLane}
    v_add_u32 v{vaRedW}, s{sB}, v{vT0}
    v_and_b32 v{vT1}, 1, v{vR16}
    v_lshl_add_u32 v{vT1}, v{qh}, 1, v{vT1}
    v_lshlrev_b32 v{vT1}, 4, v{vT1}
    v_add_u32 v{vaRedZ}, s{sB}, v{vT1}
    v_lshl_add_u32 v{vT0}, v{ql}, 5, v{vR16}
    v_lshlrev_b32 v{vaFinW}, 4, v{vT0}
    v_lshlrev_b32 v{vaFinZ}, 5, v{ql}
    v_lshlrev_b32 v{vT0}, 9, v{ql}
    v_add_u32 v{vaFinQZ}, 256, v{vT0}
    v_lshlrev_b32 v{vaFinO}, 4, v{vLane}
    v_lshlrev_b32 v{vT0}, 5, v{ql}
    v_lshl_add_u32 v{vaStH}, v{vR16}, 1, v{vT0}
    v_lshlrev_b32 v{vT0}, 6, v{ql}
    v_lshl_add_u32 v{vT0}, v{qh}, 5, v{vT0}
    v_lshl_add_u32 v{vaStX}, v{vR16}, 1, v{vT0}
    v_lshlrev_b32 v{vT0}, 12, v{vR16}
    v_lshl_add_u32 v{vT0}, v{vQd}, 8, v{vT0}
    s_lshl_b32 s{sB}, s{sW}, 10
    v_add_u32 v{vaStO}, s{sB}, v{vT0}
    s_lshr_b32 s{sB}, s{sM}, 4
    s_mul_i32 s{sB}, s{sB}, 15360
    s_sub_u32 s{sB}, {O_STATS}, s{sB}
    v_lshlrev_b32 v{vT0}, 8, v{vLane}
    v_add_u32 v{vaStS}, s{sB}, v{vT0}
    """)
    a(f"s_lshl_b32 s{sB}, s{sW}, 14\ns_add_u32 s{sB}, s{sB}, {L_K}")
    for c in range(4):
        a(f"""
        v_add_u32 v{vT0}, {4*c}, v{vQd}
        v_xor_b32 v{vT0}, v{vT0}, v{vR16}
        v_lshlrev_b32 v{vT0}, 4, v{vT0}
        v_lshl_add_u32 v{vT0}, v{vR16}, 8, v{vT0}
        v_add_u32 v{vKr+c}, s{sB}, v{vT0}
        """)
    for e in range(2):
        a(f"""
        v_add_u32 v{vT1}, {4*e}, v{vQd}
        v_lshrrev_b32 v{vT2}, 1, v{vR16}
        v_xor_b32 v{vT1}, v{vT1}, v{vT2}
        v_lshlrev_b32 v{vT1}, 1, v{vT1}
        v_and_b32 v{vT2}, 1, v{vR16}
        v_or_b32 v{vT1}, v{vT1}, v{vT2}
        v_lshlrev_b32 v{vT1}, 4, v{vT1}
        v_lshl_add_u32 v{vVs+e}, v{vQd}, 8, v{vT1}
        """)
    for nt in range(2):
        a(f"""
        v_lshrrev_b32 v{vT1}, 2, v{vR16}
        v_lshl_add_u32 v{vT0}, v{vQd}, 2, v{vT1}
        v_and_b32 v{vT2}, 7, v{vT0}
        s_lshl_b32 s{sB}, s{sW}, 1
        s_add_u32 s{sB}, s{sB}, {nt}
        v_xor_b32 v{vT2}, s{sB}, v{vT2}
        v_lshlrev_b32 v{vT2}, 5, v{vT2}
        v_lshl_add_u32 v{vT0}, v{vT0}, 8, v{vT2}
        v_lshl_add_u32 v{vT0}, v{h3}, 3, v{vT0}
        v_add_u32 v{vVr+nt}, {L_V}, v{vT0}
        """)
    for i in range(16): a(f"v_mov_b32 v{XA+i}, 0")
    if cfg.w_inter:
        a(f"""
        s_cmp_lt_u32 s{sM}, 16
        s_cbranch_scc0 L_wsB
        v_lshrrev_b32 v{vT0}, 2, v{vLane}
        v_lshlrev_b32 v{vT0}, 10, v{vT0}
        v_and_b32 v{vT1}, 3, v{vLane}
        v_lshl_add_u32 v{vWs}, v{vT1}, 4, v{vT0}
        s_lshl_b32 s{sWb}, s{sJ}, 19
        s_lshl_b32 s{sC}, s{sW}, 17
        s_add_u32 s{sWb}, s{sWb}, s{sC}
        s_lshl_b32 s{sC}, s{sIdx}, 6
        s_add_u32 s{sWb}, s{sWb}, s{sC}
        s_mov_b32 s{sWst}, 16384
        s_mov_b32 s{sUP}, s{sW2}
        s_mov_b32 s{sUP+1}, s{sW2+1}
        s_mov_b32 s{sUP+2}, s{sW2+2}
        s_branch L_wsD
        L_wsB:
        v_lshrrev_b32 v{vT0}, 1, v{vLane}
        v_mul_u32_u24 v{vT0}, 3584, v{vT0}
        v_and_b32 v{vT1}, 1, v{vLane}
        v_lshl_add_u32 v{vWs}, v{vT1}, 4, v{vT0}
        s_mul_i32 s{sWb}, s{sW}, {128*3584}
        s_mul_i32 s{sC}, s{sJ}, 448
        s_add_u32 s{sWb}, s{sWb}, s{sC}
        s_lshl_b32 s{sC}, s{sIdx}, 5
        s_add_u32 s{sWb}, s{sWb}, s{sC}
        s_mov_b32 s{sWst}, {32*3584}
        L_wsD:
        """)
    rt_probe("setup")
    ts("setup")
    a(f"s_waitcnt vmcnt({4*cfg.nKb1 + nPFe})")
    ts("wq_landed")
    for t in range(cfg.nKb1, nKpA): k_page(t)

    def tr_base(dst, rowbytes, rowmul, sadd, const):
        sh = rowbytes.bit_length() - 1; rm = rowmul.bit_length() - 1
        a(f"""
        v_lshrrev_b32 v{vT1}, 2, v{vR16}
        v_lshl_add_u32 v{vT1}, v{vQd}, {rm}, v{vT1}
        v_lshlrev_b32 v{vT1}, {sh}, v{vT1}
        v_and_b32 v{vT2}, 3, v{vR16}
        v_lshl_add_u32 v{vT1}, v{vT2}, 3, v{vT1}
        v_add_u32 v{vT1}, s{sadd}, v{vT1}
        v_add_u32 v{dst}, {const}, v{vT1}
        """)

    def ln_stats(s1, s2, mean, rstd):
        a(f"""
        v_mul_f32 v{mean}, {f2u(1.0/512):#x}, v{s1}
        v_mul_f32 v{s2}, {f2u(1.0/512):#x}, v{s2}
        v_fma_f32 v{s2}, -v{mean}, v{mean}, v{s2}
        v_max_f32 v{s2}, 0, v{s2}
        v_add_f32 v{s2}, {f2u(1e-5):#x}, v{s2}
        v_rsq_f32 v{rstd}, v{s2}
        """)
    def sum4r(b):
        a(f"v_add_f32 v{b}, v{b}, v{b+1}\nv_add_f32 v{b+2}, v{b+2}, v{b+3}\nv_add_f32 v{b}, v{b}, v{b+2}")

    def stats_valu(z):
        L = [f"v_add_f32 v{z}, v{vAcc+8}, v{vAcc+9}", f"v_add_f32 v{vT3}, v{vAcc+10}, v{vAcc+11}", f"v_add_f32 v{z}, v{z}, v{vT3}",
             f"v_cndmask_b32 v{z}, 0, v{z}, s[{sMDIAG}:{sMDIAG+1}]"]
        for n in (8, 4, 2, 1):
            L.append(f"v_add_f32_dpp v{z}, v{z}, v{z} row_ror:{n} row_mask:0xf bank_mask:0xf")
        L += [f"v_add_f32 v{z+1}, v{vAcc+12}, v{vAcc+13}", f"v_add_f32 v{vT3}, v{vAcc+14}, v{vAcc+15}", f"v_add_f32 v{z+1}, v{z+1}, v{vT3}",
              f"v_cndmask_b32 v{z}, v{z+1}, v{z}, s[{sMN1}:{sMN1+1}]"]
        return L
    def stats_mf(X):
        return [mf(vAcc + 8, X + 4*u, X + 4*u, "0" if u == 0 else None) for u in range(4)] + \
               [mf(vAcc + 12, X + 4*u, vOnes, "0" if u == 0 else None) for u in range(4)]

    def q_core(X):
        M = stats_mf(X) + [mf(vAcc, X + 4*u, ar(aWq + 4*u, 4), "0" if u == 0 else None) for u in range(4)]
        interleave(M, stats_valu(vU), 8, 2)
        sum4(vU + 2, vAcc, vT3)
        a(f"""
        v_permlane16_swap_b32 v{vU+2}, v{vU}
        v_add_f32 v{vU}, v{vU}, v{vU+2}
        ds_write_b32 v{vaRedW}, v{vU} offset:{R_Q}
        s_waitcnt lgkmcnt(0)
        s_barrier
        """)
    def q_final(first):
        lab = a.label("qf")
        a(f"s_cmp_eq_u32 s{sW}, 0\ns_cbranch_scc0 {lab}")
        setexec(0xFFFFFFFF)
        a(f"""
        ds_read_b128 {vr(vU,4)}, v{vaFinW} offset:{R_Q}
        ds_read_b128 {vr(vU+4,4)}, v{vaFinQZ} offset:{R_Q}
        ds_read_b128 {vr(vU+8,4)}, v{vaFinQZ} offset:{R_Q+16}
        """)
        if first:
            a(f"ds_read_b128 {vr(vU+12,4)}, v{vaFinW} offset:{R_COL}")
        a("s_waitcnt lgkmcnt(0)")
        if first:
            sum4r(vU + 12); a(f"v_mov_b32 v{vCs}, v{vU+12}")
        sum4r(vU + 4); sum4r(vU + 8); sum4r(vU)
        ln_stats(vU + 4, vU + 8, vU + 5, vU + 6)
        a(f"""
        v_fma_f32 v{vU}, -v{vU+5}, v{vCs}, v{vU}
        v_mul_f32 v{vU}, v{vU}, v{vU+6}
        """)
        dpp("v_mov_b32", vU + 1, vU, None, "quad_perm:[1,0,3,2]")
        a(f"v_cvt_pk_bf16_f32 v{vU+2}, v{vU}, v{vU+1}")
        if first:
            a(f"""
            v_mov_b32 v{vQ1d}, v{vU+2}
            v_mov_b32 v{vQ1d+1}, s{sTX}
            s_lshl_b32 s{sB}, s{sJ}, 12
            s_lshl_b32 s{sC}, s{sM}, 7
            s_add_u32 s{sB}, s{sB}, s{sC}
            s_add_u32 s{sB}, s{sB}, {WS_Q1}
            v_lshlrev_b32 v{vT0}, 1, v{vaStH}
            v_add_u32 v{vQ1a}, s{sB}, v{vT0}
            """)
            setexec(0x55555555)
            a(f"buffer_store_dwordx2 {vr(vQ1d,2)}, v{vQ1a}, {sr(sWS,4)}, 0 offen" + (" sc1" if cfg.force_global else ""))
        else:
            a(f"v_min_u32 v{vU+2}, 0xfffffffe, v{vU+2}")
            setexec(0x55555555)
            store_local(f"buffer_store_dword v{vU+2}, v{vaStQ}, {sr(sWS,4)}, s{sQ2w} offen")
        setexec(FULL)
        a(f"{lab}:")

    def s_qk_max():
        for c in range(4):
            for t in range(4):
                mfma(vS + 4*t, ar(aK + 16*t + 4*c, 4), vQ + 4*c, "0" if c == 0 else None)
        for t in range(1, 4):
            for r in range(4):
                dpp("v_mov_b32", vS + r, vS + 4*t + r, None, f"row_shr:{4*t}", bm=f"0x{1<<t:x}")
        a(f"v_max3_f32 v{vU}, v{vS}, v{vS+1}, v{vS+2}\nv_max_f32 v{vU}, v{vU}, v{vS+3}")
        row_reduce("v_max_f32", vU, (8, 4))
        xquad_reduce("v_max_f32", vU, vT0)
        setexec(0xF)
        a(f"ds_write_b32 v{vaSmW}, v{vU}")
        setexec(FULL)
        a("s_waitcnt lgkmcnt(0)\ns_barrier")
    def s_exp_p():
        a(f"""
        ds_read_b128 {vr(vU+4,4)}, v{vaSm}
        s_mov_b32 s{sB}, {f2u(C_SCALE):#x}
        s_waitcnt lgkmcnt(0)
        v_max3_f32 v{vU}, v{vU+4}, v{vU+5}, v{vU+6}
        v_max_f32 v{vU}, v{vU}, v{vU+7}
        v_mul_f32 v{vMc}, s{sB}, v{vU}
        """)
        for i in range(4): a(f"v_fma_f32 v{vS+i}, v{vS+i}, s{sB}, -v{vMc}")
        for i in range(4): a(f"v_exp_f32 v{vS+i}, v{vS+i}")
        a(f"""
        v_cvt_pk_bf16_f32 v{vU+2}, v{vS}, v{vS+1}
        v_cvt_pk_bf16_f32 v{vU+3}, v{vS+2}, v{vS+3}
        ds_write_b64 v{vaPw}, {vr(vU+2,2)}
        v_add_f32 v{vU}, v{vS}, v{vS+1}
        v_add_f32 v{vU+1}, v{vS+2}, v{vS+3}
        v_add_f32 v{vU}, v{vU}, v{vU+1}
        """)
        row_reduce("v_add_f32", vU, (8, 4))
        xquad_reduce("v_add_f32", vU, vT0)
        setexec(0xF)
        a(f"ds_write_b32 v{vaSmW}, v{vU} offset:{L_LSUM-L_SMAX}")
        setexec(FULL)
        a("s_waitcnt lgkmcnt(0)\ns_barrier")
        for blk in range(8):
            a(f"ds_read_b128 {vr(vP+4*blk,4)}, v{vaPr} offset:{blk*256}")
    def s_stats_prep():
        lab = a.label("st")
        a(f"s_cmp_eq_u32 s{sW}, 3\ns_cbranch_scc0 {lab}")
        a(f"""
        ds_read_b128 {vr(vU+4,4)}, v{vaSm} offset:{L_LSUM-L_SMAX}
        s_add_u32 s{sB}, s{sT}, s{sL}
        s_add_u32 s{sB}, s{sB}, 1
        v_mov_b32 v{vMc+2}, s{sB}
        s_waitcnt lgkmcnt(0)
        """)
        sum4r(vU + 4)
        a(f"v_mov_b32 v{vMc+1}, v{vU+4}")
        a(f"{lab}:")
    def s_stats_store(wait):
        lab = a.label("ss")
        a(f"s_cmp_eq_u32 s{sW}, 3\ns_cbranch_scc0 {lab}")
        if wait is not None: a(f"s_waitcnt vmcnt({wait})")
        setexec(0xF)
        store_local(f"buffer_store_dwordx4 {vr(vMc,4)}, v{vaStS}, {sr(sWS,4)}, s{sOown} offen")
        setexec(FULL)
        a(f"{lab}:")
    accO = vAcc
    def v_tr(blk):
        t, p = blk >> 1, blk & 1
        for nt in range(2):
            a(f"ds_read_b64_tr_b16 {ar(aV+8*blk+4*nt,2)}, v{vVr+nt} offset:{(4*t+2*p)*4096}")
            a(f"ds_read_b64_tr_b16 {ar(aV+8*blk+4*nt+2,2)}, v{vVr+nt} offset:{(4*t+2*p+1)*4096}")
    def pv(blks, first):
        for blk in blks:
            for nt in range(2):
                mfma(accO + 4*nt, ar(aV + 8*blk + 4*nt, 4), vP + 4*blk, "0" if (first and blk == blks[0]) else None)
    def s_out():
        for i in range(4):
            a(f"v_cvt_pk_bf16_f32 v{vU+i}, v{accO+2*i}, v{accO+2*i+1}")
        for i in range(4):
            a(f"v_min_u32 v{vU+i}, 0xfffffffe, v{vU+i}")
        setexec(EM4)
        store_local(f"buffer_store_dwordx4 {vr(vU,4)}, v{vaStO}, {sr(sWS,4)}, s{sOown} offen")
        setexec(FULL)

    a(f"s_lshl_b32 s{sB}, s{sW}, 12")
    tr_base(vT0, 32, 8, sB, L_WQ)
    for u in range(4):
        a(f"ds_read_b64_tr_b16 {ar(aWq+4*u,2)}, v{vT0} offset:{u*1024}")
        a(f"ds_read_b64_tr_b16 {ar(aWq+4*u+2,2)}, v{vT0} offset:{u*1024+128}")
    a(f"""
    v_lshrrev_b32 v{vT0}, 3, v{vR16}
    v_lshlrev_b32 v{vT0}, 10, v{vT0}
    v_lshl_add_u32 v{vT0}, v{vQd}, 4, v{vT0}
    s_lshl_b32 s{sB}, s{sW}, 8
    v_add_u32 v{vT0}, s{sB}, v{vT0}
    s_barrier
    """)
    setexec(0x0101010101010101)
    for u in range(4):
        a(f"ds_read_b128 {vr(XA+4*u,4)}, v{vT0} offset:{L_X0+u*64}")
    setexec(FULL)
    a(f"""
    s_waitcnt lgkmcnt(0)
    s_add_u32 s{sT}, s{sT}, 0x9e3779b0
    s_and_b32 s{sT}, s{sT}, 0xfffffff0
    s_or_b32 s{sTX}, s{sT}, s{sXcc}
    """)
    for u in range(4): mfma(vS, vOnes, ar(aWq + 4*u, 4), "0" if u == 0 else None)
    a(f"ds_write_b32 v{vaRedW}, v{vS} offset:{R_COL}")
    q_core(XA)
    q_final(True)
    a("s_barrier")
    rt_probe("q1_pub")
    ts("q1_pub")

    def v_group(t):
        page_off(t, sD)
        a(f"s_lshl_b32 s{sC}, s{sW}, 12\ns_add_u32 s{sC}, s{sC}, {L_V + t*16384}\ns_mov_b32 m0, s{sC}\ns_nop 0")
        for ii in range(4):
            a(f"buffer_load_dwordx4 v{vVs+(ii&1)}, {sr(sVS,4)}, s{sD} offen offset:{ii*1024}{cfg.kv_pol} lds")
    def pace():
        if cfg.pace_lo is None:
            a(f"s_waitcnt vmcnt({cfg.pace})"); return
        l1 = a.label("pc"); l2 = a.label("pc")
        a(f"s_cmp_lt_u32 s{sXcc}, 4\ns_cbranch_scc1 {l1}\ns_waitcnt vmcnt({cfg.pace})\ns_branch {l2}\n{l1}:\ns_waitcnt vmcnt({cfg.pace_lo})\n{l2}:")
    def w_part(part, lo, hi):
        if not cfg.w_inter: return
        lab = a.label("wp")
        lim = 30
        if (part == 0 and "g" not in cfg.w_interB) or (part == 1 and "u" not in cfg.w_interB): lim = 16
        a(f"s_cmp_ge_u32 s{sM}, {lim}\ns_cbranch_scc1 {lab}")
        for u in range(lo, hi):
            if part == 0:
                a(f"s_mul_i32 s{sB}, s{sWst}, {u}\ns_add_u32 s{sB}, s{sB}, s{sWb}")
                a(f"s_lshl_b32 s{sC}, s{sW}, 12\ns_add_u32 s{sC}, s{sC}, {L_WQ + u*1024}")
            else:
                a(f"s_cmp_lt_u32 s{sM}, 16\ns_cselect_b32 s{sB}, {4+u}, {u}\ns_mul_i32 s{sB}, s{sB}, s{sWst}\ns_add_u32 s{sB}, s{sB}, s{sWb}")
                a(f"s_lshl_b32 s{sC}, s{sW}, 14\ns_add_u32 s{sC}, s{sC}, {L_K + u*1024}")
            a(f"s_mov_b32 m0, s{sC}\ns_nop 0")
            a(f"buffer_load_dwordx4 v{vWs}, {sr(sW2 if part == 0 else sUP,4)}, s{sB} offen{SLN} lds")
        a(f"{lab}:")
    for t in range(nKpA, 4):
        pace()
        if t == 3: w_part(0, 0, 4)
        k_page(t)
    a(f"""
    v_lshrrev_b32 v{vT0}, 2, v{vLane}
    v_lshlrev_b32 v{vT0}, 7, v{vT0}
    v_and_b32 v{vT1}, 3, v{vLane}
    v_lshl_add_u32 v{vKs}, v{vT1}, 4, v{vT0}        ; (vKs is free once K is issued)
    s_lshl_b32 s{sA}, s{sJ}, 12
    s_lshr_b32 s{sB}, s{sM}, 4
    s_lshl_b32 s{sB}, s{sB}, 6
    s_add_u32 s{sA}, s{sA}, s{sB}
    s_add_u32 s{sA}, s{sA}, {WS_Q1}
    v_and_b32 v{vT0}, 3, v{vR16}
    v_lshlrev_b32 v{vT0}, 9, v{vT0}
    v_lshrrev_b32 v{vT1}, 1, v{vQd}
    v_lshl_add_u32 v{vT0}, v{vT1}, 6, v{vT0}
    v_and_b32 v{vT1}, 1, v{vQd}
    v_lshl_add_u32 v{vKs+1}, v{vT1}, 5, v{vT0}
    v_lshlrev_b32 v{vKs+2}, 5, v{vLane}
    """)
    def q1_dma(img):
        a(f"""
        s_mov_b32 m0, {L_QG + img*2048}
        s_add_u32 s{sB}, s{sA}, 2048
        buffer_load_dwordx4 v{vKs}, {sr(sWS,4)}, s{sA} offen sc1 lds
        s_mov_b32 m0, {L_QG + img*2048 + 1024}
        s_nop 0
        buffer_load_dwordx4 v{vKs}, {sr(sWS,4)}, s{sB} offen sc1 lds
        """)
    def w0(fn):
        lab = a.label("w0")
        a(f"s_cmp_eq_u32 s{sW}, 0\ns_cbranch_scc0 {lab}")
        fn()
        a(f"{lab}:")
    def q1_dup():
        setexec(0x55555555)
        a(f"buffer_store_dwordx2 {vr(vQ1d,2)}, v{vQ1a}, {sr(sWS,4)}, 0 offen sc1")
        setexec(FULL)
    g.q1_dup = lambda: w0(q1_dup)
    vG = vA
    def q1_tags(img):
        a(f"""
        ds_read_b128 {vr(vG,4)}, v{vKs+2} offset:{L_QG + img*2048}
        ds_read_b128 {vr(vG+4,4)}, v{vKs+2} offset:{L_QG + img*2048 + 16}
        s_waitcnt lgkmcnt(0)
        v_xor_b32 v{vT1}, s{sTX}, v{vG+1}
        v_xor_b32 v{vT2}, s{sTX}, v{vG+3}
        v_xor_b32 v{vT3}, s{sTX}, v{vG+5}
        v_xor_b32 v{vT0}, s{sTX}, v{vG+7}
        v_or3_b32 v{vT1}, v{vT1}, v{vT2}, v{vT3}
        v_or_b32 v{vT1}, v{vT1}, v{vT0}
        v_cmp_lt_u32 vcc, 15, v{vT1}
        """)
    def early_tail():
        lab = a.label("c0")
        a(f"""
        s_cmp_eq_u32 s{sW}, 3
        s_cbranch_scc0 {lab}
        v_mov_b32 v{vU+8}, -1
        v_mov_b32 v{vU+9}, -1
        v_mov_b32 v{vU+10}, -1
        v_mov_b32 v{vU+11}, -1
        """)
        store_local(f"buffer_store_dwordx4 {vr(vU+8,4)}, v{vaClrO}, {sr(sWS,4)}, s{sOown} offen")
        a(f"{lab}:")
        if cfg.warm:
            lab = a.label("ws")
            a(f"s_cmp_lt_u32 s{sM}, 16\ns_cbranch_scc0 {lab}")
            a(f"buffer_load_dword v{vJ}, v{vaS0}, {sr(sWS,4)}, s{sOcons} offen sc1")
            a(f"buffer_load_dword v{vJ}, v{vaS1}, {sr(sWS,4)}, s{sOcons} offen sc1")
            a(f"{lab}:")
        v_group(3)
    g.early_tail = early_tail
    def locality():
        a(f"""
        v_cmp_ne_u32 vcc, 0, v{vT1}
        s_cmp_eq_u64 vcc, 0
        s_cselect_b32 s{sLocal}, 1, 0
        """)
    if cfg.g_early:
        assert not cfg.w_inter and not cfg.v3_early and cfg.pf_pos in (None, 2)
        a(f"s_mov_b32 s{sEarly}, 0")
        w0(lambda: q1_dma(2))
    pace()
    if cfg.pf_stream and cfg.pf_pos == 0: emit_wpf(sKS2, sWQ, True)
    v_group(0)
    a("s_waitcnt vmcnt(4)")
    for t in range(4):
        for c in range(4):
            a(f"ds_read_b128 {ar(aK+16*t+4*c,4)}, v{vKr+c} offset:{t*4096}")
    ts("k_landed")
    if cfg.g_early:
        a("s_barrier")
        q1_tags(2)
        a("s_cbranch_vccnz L_noearly")
        locality()
        a(f"s_mov_b32 s{sEarly}, 1")
        v_group(1)
        if cfg.gE_mode >= 1:
            if cfg.pf_stream and cfg.pf_pos == 2: emit_wpf(sKS, sWQ, True)
            v_group(2)
        if cfg.gE_mode >= 2:
            g.early_tail()
        a(f"s_mov_b32 s{sC}, {L_QG + 2*2048}\ns_branch L_q1ok2\nL_noearly:")
        cnt("gEfail")
    w0(lambda: q1_dma(0))
    if cfg.pf_stream and cfg.pf_pos == 1: emit_wpf(sKS, sWQ, True)
    v_group(1)
    a("s_waitcnt vmcnt(4)")
    ts("v0_landed")
    if cfg.pf_stream and cfg.pf_pos == 2: emit_wpf(sKS, sWQ, True)
    if cfg.w_inter:
        a("s_waitcnt lgkmcnt(0)")
        w_part(1, 0, 2)
    def warm_stats0():
        if cfg.warm:
            lab = a.label("ws")
            a(f"s_cmp_lt_u32 s{sM}, 16\ns_cbranch_scc0 {lab}")
            a(f"buffer_load_dword v{vJ}, v{vaS0}, {sr(sWS,4)}, s{sOcons} offen sc1")
            a(f"buffer_load_dword v{vJ}, v{vaS1}, {sr(sWS,4)}, s{sOcons} offen sc1")
            a(f"{lab}:")
    if cfg.v3_early: warm_stats0()
    v_group(2)
    if cfg.v3_early:
        assert not cfg.w_inter
        v_group(3)
    def _o0():
        lab = a.label("c0")
        a(f"""
        s_cmp_eq_u32 s{sW}, 3
        s_cbranch_scc0 {lab}
        v_mov_b32 v{vU+8}, -1
        v_mov_b32 v{vU+9}, -1
        v_mov_b32 v{vU+10}, -1
        v_mov_b32 v{vU+11}, -1
        """)
        store_local(f"buffer_store_dwordx4 {vr(vU+8,4)}, v{vaClrO}, {sr(sWS,4)}, s{sOown} offen")
        a(f"{lab}:")
    g.o0_clear_hook = _o0
    a("s_barrier")
    q1_tags(0)
    a(f"s_mov_b32 s{sC}, {L_QG}\ns_cbranch_vccz L_q1ok")
    cnt("g0fail")
    w0(lambda: (q1_dma(1), a("s_waitcnt vmcnt(0)")))
    a("s_barrier")
    q1_tags(1)
    a(f"s_mov_b32 s{sC}, {L_QG + 2048}\ns_cbranch_vccz L_q1ok")
    a("L_q1retry:")
    cnt("g1fail")
    a(f"s_sub_u32 s{sBud}, s{sBud}, 1\ns_cbranch_scc1 L_abort\ns_barrier")
    w0(lambda: (q1_dup(), q1_dma(0), a("s_waitcnt vmcnt(0)")))
    a("s_barrier")
    q1_tags(0)
    a(f"s_mov_b32 s{sC}, {L_QG}\ns_cbranch_vccnz L_q1retry")
    a("L_q1ok:")
    locality()
    a("L_q1ok2:")
    a(f"v_add_u32 v{vT0}, s{sC}, v{vKs+1}")
    if cfg.v3_early: g.o0_clear_hook()
    setexec(EM4)
    for c in range(4):
        a(f"ds_read2_b32 {vr(vQ+4*c,2)}, v{vT0} offset0:{c*32} offset1:{c*32+2}")
        a(f"ds_read2_b32 {vr(vQ+4*c+2,2)}, v{vT0} offset0:{c*32+4} offset1:{c*32+6}")
    setexec(FULL)
    lab = a.label("nl")
    a(f"s_cmp_eq_u32 s{sLocal}, 0\ns_cbranch_scc0 {lab}")
    g.q1_dup()
    a(f"{lab}:")
    a("s_waitcnt lgkmcnt(0)")
    rt_probe("q1_got")
    ts("q1_got")
    s_qk_max()
    ts("s1_max")
    def o0_clear():
        lab = a.label("c0")
        a(f"""
        s_cmp_eq_u32 s{sW}, 3
        s_cbranch_scc0 {lab}
        v_mov_b32 v{vU+8}, -1
        v_mov_b32 v{vU+9}, -1
        v_mov_b32 v{vU+10}, -1
        v_mov_b32 v{vU+11}, -1
        """)
        store_local(f"buffer_store_dwordx4 {vr(vU+8,4)}, v{vaClrO}, {sr(sWS,4)}, s{sOown} offen")
        a(f"{lab}:")
    if cfg.g_early and cfg.gE_mode == 1:
        a("s_waitcnt vmcnt(4)")
        early_tail()
    elif cfg.g_early:
        lE = a.label("mE"); lD = a.label("mD")
        a(f"s_cmp_eq_u32 s{sEarly}, 1\ns_cbranch_scc1 {lE}")
        a("s_waitcnt vmcnt(4)")
        early_tail()
        a(f"s_branch {lD}\n{lE}:")
        if cfg.gE_mode == 0:
            a("s_waitcnt vmcnt(4)")
            o0_clear()
            warm_stats0()
            if cfg.pf_stream and cfg.pf_pos == 2: emit_wpf(sKS, sWQ, True)
            v_group(2)
            v_group(3)
        a("s_waitcnt vmcnt(8)")
        a(f"{lD}:")
    elif not cfg.v3_early:
        a("s_waitcnt vmcnt(4)")
        o0_clear()
        warm_stats0()
        w_part(1, 2, 4)
        v_group(3)
    else:
        a("s_waitcnt vmcnt(8)")
    nPF = emit_wpf(sKS, sWQ, True) if (cfg.pf_stream and not cfg.pf_early and cfg.pf_pos is None) else 0

    def s1_tail(nW=0, maybe_none=False):
        def wait_v(base):
            if nW and maybe_none:
                l1 = a.label("wv"); l2 = a.label("wv")
                a(f"s_cmp_ge_u32 s{sIdx}, 14\ns_cbranch_scc1 {l1}\ns_waitcnt vmcnt({base + nW})\ns_branch {l2}\n{l1}:\ns_waitcnt vmcnt({base})\n{l2}:")
            else:
                a(f"s_waitcnt vmcnt({base + nW})")
        s_exp_p()
        s_stats_prep()
        blks = [0, 1, 2, 3]
        for blk in blks: v_tr(blk)
        a("s_waitcnt lgkmcnt(0)")
        pv(blks, True)
        for t in (2, 3):
            if t == 3 and cfg.v3_early:
                l3 = a.label("v3"); l4 = a.label("v4")
                a(f"s_cmp_eq_u32 s{sW}, 3\ns_cbranch_scc1 {l3}\ns_waitcnt vmcnt({nW})\ns_branch {l4}\n{l3}:\ns_waitcnt vmcnt({nW + 1})\n{l4}:")
            else:
                wait_v(4*(3-t))
            a("s_barrier")
            if t == 3: ts("v_landed")
            blks = [2*t, 2*t + 1]
            for blk in blks: v_tr(blk)
            a("s_waitcnt lgkmcnt(0)")
            pv(blks, False)
        s_out()
        s_stats_store(1 if cfg.v3_early else None)
        lab = a.label("c1")
        a(f"""
        s_cmp_eq_u32 s{sW}, 0
        s_cbranch_scc0 {lab}
        v_mov_b32 v{vU+8}, -1
        v_mov_b32 v{vU+9}, -1
        v_mov_b32 v{vU+10}, -1
        v_mov_b32 v{vU+11}, -1
        s_add_u32 s{sB}, s{sOown}, {O_L}
        """)
        store_local(f"buffer_store_dwordx4 {vr(vU+8,4)}, v{vaClrO}, {sr(sWS,4)}, s{sB} offen")
        q1_dup()
        a(f"{lab}:")
        rt_probe("s1_pub")
        ts("s1_pub")

    def x_poll(sbase, dst, sleep):
        l = a.label("xp"); ok = a.label("xok")
        if cfg.sleep_x0: a(f"s_sleep {cfg.sleep_x0}")
        a(f"s_mov_b32 m0, s{sXI}")
        a(f"{l}:")
        cnt("n_x")
        for u in range(4):
            a(f"buffer_load_dwordx4 v{vaXg}, {sr(sWS,4)}, s{sbase} offen offset:{u*1024} sc1 lds")
        for u in range(4):
            a(f"s_waitcnt vmcnt({3-u})")
            a(f"ds_read_b128 {vr(dst+4*u,4)}, v{vaXr} offset:{u*1024}")
        a(f"s_waitcnt lgkmcnt(3)\nv_max3_u32 v{vT0}, v{dst}, v{dst+1}, v{dst+2}")
        a(f"s_waitcnt lgkmcnt(2)\nv_max3_u32 v{vT0}, v{vT0}, v{dst+3}, v{dst+4}\nv_max3_u32 v{vT0}, v{vT0}, v{dst+5}, v{dst+6}")
        a(f"s_waitcnt lgkmcnt(1)\nv_max3_u32 v{vT0}, v{vT0}, v{dst+7}, v{dst+8}\nv_max3_u32 v{vT0}, v{vT0}, v{dst+9}, v{dst+10}")
        a(f"s_waitcnt lgkmcnt(0)\nv_max3_u32 v{vT0}, v{vT0}, v{dst+11}, v{dst+12}\nv_max3_u32 v{vT0}, v{vT0}, v{dst+13}, v{dst+14}\nv_max_u32 v{vT0}, v{vT0}, v{dst+15}")
        a(f"v_cmp_eq_u32 vcc, -1, v{vT0}\ns_cbranch_vccz {ok}")
        spin_fail(l, sleep)
        a(f"{ok}:")

    def warm_q2():
        if not cfg.warm: return
        a(f"s_lshl_b32 s{sB}, s{sJ}, 11\ns_add_u32 s{sB}, s{sB}, {WS_Q2}\nv_lshlrev_b32 v{vT0}, 7, v{vLane}")
        setexec(0xFFFF)
        a(f"buffer_load_dword v{vJ}, v{vT0}, {sr(sWS,4)}, s{sB} offen sc1")
        setexec(FULL)
    def warm_o(dl, data=True):
        if not cfg.warm: return
        a(f"s_add_u32 s{sB}, s{sOcons}, {dl*O_L}")
        if data:
            a(f"""
            v_and_b32 v{vT0}, 31, v{vLane}
            v_lshlrev_b32 v{vT0}, 7, v{vT0}
            v_lshrrev_b32 v{vT1}, 5, v{vLane}
            v_lshl_add_u32 v{vT0}, v{vT1}, 14, v{vT0}
            buffer_load_dword v{vJ}, v{vT0}, {sr(sWS,4)}, s{sB} offen sc1
            """)
        a(f"buffer_load_dword v{vJ}, v{vaS0}, {sr(sWS,4)}, s{sB} offen sc1")
        a(f"buffer_load_dword v{vJ}, v{vaS1}, {sr(sWS,4)}, s{sB} offen sc1")

    def tag_issue():
        a(f"""
        s_lshl_b32 s{sA}, s{sW}, 13
        s_add_u32 s{sA}, s{sA}, {WS_Q1+4}
        v_lshlrev_b32 v{vTg}, 7, v{vLane}
        buffer_load_dword v{vTg+1}, v{vTg}, {sr(sWS,4)}, s{sA} offen sc1
        """)
    def tag_finish():
        l = a.label("tc"); ok = a.label("tcok")
        a(f"""
        s_lshl_b32 s{sA}, s{sW}, 13
        s_add_u32 s{sA}, s{sA}, {WS_Q1+4}
        {l}:
        s_waitcnt vmcnt(0)
        v_xor_b32 v{vTg+1}, s{sT}, v{vTg+1}
        v_cmp_lt_u32 vcc, 15, v{vTg+1}
        s_cbranch_vccz {ok}
        s_sleep 2
        buffer_load_dword v{vTg+1}, v{vTg}, {sr(sWS,4)}, s{sA} offen sc1
        """)
        spin_fail(l)
        a(f"{ok}:")
    def tag_check_all():
        tag_issue(); tag_finish()

    def line_final(red):
        if cfg.doorbell and cfg.db_early:
            a(f"v_mov_b32 v{vT0}, 0\nv_mov_b32 v{vT1}, s{sDBtag}\ns_mov_b64 exec, 1")
            store_local(f"buffer_store_dword v{vT1}, v{vT0}, {sr(sWS,4)}, s{sDBw} offen")
            a("s_mov_b64 exec, -1")
        a(f"""
        ds_read_b128 {vr(vU,4)}, v{vaFinO} offset:{red}
        v_mov_b32 v{vT0}, 0
        v_mov_b32 v{vT1}, s{sDBtag}
        s_waitcnt lgkmcnt(0)
        v_add_f32 v{vU}, v{vU}, v{vU+1}
        v_add_f32 v{vU+2}, v{vU+2}, v{vU+3}
        v_add_f32 v{vU}, v{vU}, v{vResF}
        v_add_f32 v{vResF}, v{vU}, v{vU+2}
        """)
        dpp("v_mov_b32", vU + 1, vResF, None, "quad_perm:[1,0,3,2]")
        a(f"v_cvt_pk_bf16_f32 v{vU}, v{vResF}, v{vU+1}\nv_min_u32 v{vU}, 0xfffffffe, v{vU}")
        if cfg.doorbell and not cfg.db_early:
            a("s_mov_b64 exec, 1")
            store_local(f"buffer_store_dword v{vT1}, v{vT0}, {sr(sWS,4)}, s{sDBw} offen")
        a(f"s_xor_b32 s{sB}, s{sXw}, 0x2000\ns_add_u32 s{sB}, s{sB}, 16384")
        setexec(EMEV)
        a(f"buffer_store_dword v{vU}, v{vaStX}, {sr(sWS,4)}, s{sXw} offen sc1")
        a(f"buffer_store_dword v{vU}, v{vaStX}, {sr(sWS,4)}, s{sB} offen sc1")
        setexec(FULL)
    def advance_hop():
        a(f"s_add_u32 s{sXw}, s{sXw}, {X_HOP}\ns_add_u32 s{sDBw}, s{sDBw}, 1024\ns_add_u32 s{sDBtag}, s{sDBtag}, 1")

    def db_setup(hop_w, hop_r):
        a(f"""
        s_lshl_b32 s{sDBr}, s{sJ}, 7
        s_add_u32 s{sDBr}, s{sDBr}, {WS_DB}
        s_lshl_b32 s{sDBw}, s{sIdx}, 2
        s_add_u32 s{sDBw}, s{sDBw}, s{sDBr}
        s_add_u32 s{sDBw}, s{sDBw}, {hop_w*1024}
        s_add_u32 s{sDBtag}, s{sT}, {8+hop_w}
        """)
    def db_wait(hop_off_s, tag_add_s=None, const_hop=None):
        if not cfg.doorbell: return
        l = a.label("db"); ok = a.label("dbok")
        if const_hop is not None:
            a(f"s_add_u32 s{sA}, s{sDBr}, {const_hop*1024}\ns_add_u32 s{sC}, s{sT}, {8+const_hop}")
        else:
            a(f"s_lshl_b32 s{sA}, s{sL}, 11\ns_add_u32 s{sA}, s{sA}, s{sDBr}\ns_add_u32 s{sA}, s{sA}, {hop_off_s*1024}")
            a(f"s_lshl_b32 s{sC}, s{sL}, 1\ns_add_u32 s{sC}, s{sC}, s{sT}\ns_add_u32 s{sC}, s{sC}, {8+hop_off_s}")
        a(f"v_lshlrev_b32 v{vT0}, 2, v{vLane}")
        setexec(0xFFFF)
        if cfg.db_pipe:
            a(f"""
            buffer_load_dword v{vT1}, v{vT0}, {sr(sWS,4)}, s{sA} offen sc1
            s_nop 15
            s_nop 11
            buffer_load_dword v{vT2}, v{vT0}, {sr(sWS,4)}, s{sA} offen sc1
            {l}:
            s_waitcnt vmcnt(1)
            v_cmp_ne_u32 vcc, s{sC}, v{vT1}
            s_cbranch_vccz {ok}
            buffer_load_dword v{vT1}, v{vT0}, {sr(sWS,4)}, s{sA} offen sc1
            s_waitcnt vmcnt(1)
            v_cmp_ne_u32 vcc, s{sC}, v{vT2}
            s_cbranch_vccz {ok}
            buffer_load_dword v{vT2}, v{vT0}, {sr(sWS,4)}, s{sA} offen sc1
            """)
        else:
            a(f"""
            {l}:
            buffer_load_dword v{vT1}, v{vT0}, {sr(sWS,4)}, s{sA} offen sc1
            s_waitcnt vmcnt(0)
            v_cmp_ne_u32 vcc, s{sC}, v{vT1}
            s_cbranch_vccz {ok}
            """)
        spin_fail(l)
        a(f"{ok}:")
        setexec(FULL)

    def o_stats_poll():
        l = a.label("os"); ok = a.label("osok")
        a(f"s_add_u32 s{sA}, s{sT}, s{sL}\ns_add_u32 s{sA}, s{sA}, 1")
        a(f"{l}:")
        cnt("n_ostat")
        a(f"buffer_load_dwordx3 {vr(vSt,3)}, v{vaS0}, {sr(sWS,4)}, s{sOcons} offen sc1")
        a(f"buffer_load_dwordx3 {vr(vSt+4,3)}, v{vaS1}, {sr(sWS,4)}, s{sOcons} offen sc1")
        a("s_waitcnt vmcnt(0)")
        a(f"""
        v_xor_b32 v{vT0}, s{sA}, v{vSt+2}
        v_xor_b32 v{vT1}, s{sA}, v{vSt+6}
        v_or_b32 v{vT0}, v{vT0}, v{vT1}
        v_cmp_ne_u32 vcc, 0, v{vT0}
        s_cbranch_vccz {ok}
        """)
        spin_fail(l, cfg.sleep_o)
        a(f"{ok}:")
        ts_dyn("o_st0", "o_st1")

    def o_phase():
        OA = vA
        o_stats_poll()
        l2 = a.label("op"); ok2 = a.label("ook")
        a(f"L_heavy:\n{l2}:")
        cnt("n_oheavy")
        for b in range(2):
            for c in range(4):
                a(f"buffer_load_dwordx4 {vr(OA+16*b+4*c,4)}, v{vaO0+b}, {sr(sWS,4)}, s{sOcons} offen offset:{c*1024} sc1")
        for b in range(2):
            a(f"v_mov_b32 v{vU+b}, v{vSt+4*b}")
        for n in (8, 4, 2, 1):
            for b in range(2): dpp("v_max_f32", vU + b, vU + b, vU + b, f"row_ror:{n}")
        for b in range(2): a(f"v_sub_f32 v{vU+b}, v{vSt+4*b}, v{vU+b}")
        for b in range(2): a(f"v_exp_f32 v{vU+b}, v{vU+b}")
        for b in range(2): a(f"v_mul_f32 v{vU+2+b}, v{vU+b}, v{vSt+4*b+1}")
        for n in (8, 4, 2, 1):
            for b in range(2): dpp("v_add_f32", vU + 2 + b, vU + 2 + b, vU + 2 + b, f"row_ror:{n}")
        for b in range(2): a(f"v_rcp_f32 v{vU+2+b}, v{vU+2+b}")
        for b in range(2): a(f"v_mul_f32 v{vW+b}, v{vU+b}, v{vU+2+b}")
        a(f"v_mov_b32 v{vT0}, 0")
        if cfg.diag and cfg.ts_only and "o_w0" in cfg.ts_only:
            ts_dyn("o_w0", "o_w1")
            a("s_waitcnt vmcnt(7)")
            ts_dyn("o_f0", "o_f1")
        def wsum(b, nt, r):
            t = vU + 4 + 2*b + nt; acc = vAcc + 8*b + 4*nt
            op = "v_mul_f32" if r == 0 else "v_fmac_f32"
            return f"{op}_dpp v{t}, v{vW+b}, v{acc+r} row_newbcast:{r} row_mask:0xf bank_mask:0xf"
        b0 = [wsum(0, nt, r) for r in range(4) for nt in range(2)]
        for i in range(8):
            b, c = i >> 2, i & 3
            r = OA + 16*b + 4*c
            a(f"s_waitcnt vmcnt({7-i})")
            for nt in range(2):
                mfma(vAcc + 8*b + 4*nt, r, ar(aW2 + 8*c + 4*nt, 4), "0" if c == 0 else None)
            a(f"v_max3_u32 v{vT0}, v{vT0}, v{r}, v{r+1}")
            if i >= 5:
                for _ in range(2 if i < 7 else 4):
                    if b0 and (i > 5 or True): a(b0.pop(0))
            a(f"v_max3_u32 v{vT0}, v{vT0}, v{r+2}, v{r+3}")
        for x in b0: a(x)
        a(f"v_cmp_eq_u32 vcc, -1, v{vT0}\ns_cbranch_vccz {ok2}")
        spin_fail(l2)
        a(f"{ok2}:")
        ts_dyn("o_got0", "o_got1")
        for r in range(4):
            for nt in range(2): a(wsum(1, nt, r))
        a(f"""
        v_permlane32_swap_b32 v{vU+4}, v{vU+5}
        v_permlane32_swap_b32 v{vU+6}, v{vU+7}
        v_add_f32 v{vU+4}, v{vU+4}, v{vU+5}
        v_add_f32 v{vU+6}, v{vU+6}, v{vU+7}
        v_permlane16_swap_b32 v{vU+4}, v{vU+6}
        v_add_f32 v{vU}, v{vU+4}, v{vU+6}
        ds_write_b32 v{vaRedW}, v{vU} offset:{R_O}
        s_waitcnt lgkmcnt(0)
        s_barrier
        """)
        lab = a.label("of")
        a(f"s_cmp_eq_u32 s{sW}, 0\ns_cbranch_scc0 {lab}")
        line_final(R_O)
        a(f"{lab}:")
        advance_hop()
        ts_dyn("o_pub0", "o_pub1")

    def g_phase():
        X = vA
        if cfg.db_g: db_wait(0)
        if cfg.diag and cfg.ts_only and "g_db0" in cfg.ts_only: ts_dyn("g_db0", "g_db1")
        x_poll(sXr, X, cfg.sleep_x)
        ts_dyn("g_got0", "g_got1")
        M = stats_mf(X)
        for u in range(4):
            M.append(mf(vAcc, X + 4*u, ar(aW2 + 8*u, 4), "0" if u == 0 else None))
            M.append(mf(vAcc + 4, X + 4*u, ar(aW2 + 8*u + 4, 4), "0" if u == 0 else None))
        V = stats_valu(vU) + [f"v_mov_b32 v{vU+1}, v{vU}", f"v_permlane16_swap_b32 v{vU}, v{vU+1}", f"v_add_f32 v{vU}, v{vU}, v{vU+1}"]
        interleave(M, V, 8, 2)
        setexec("s[%d:%d]" % (sM2, sM2 + 1))
        a(f"ds_write_b32 v{vaRedZ}, v{vU} offset:{R_GZ}")
        setexec(FULL)
        sum4(vU + 2, vAcc, vT3)
        sum4(vU + 3, vAcc + 4, vT3)
        a(f"""
        v_permlane16_swap_b32 v{vU+2}, v{vU+3}
        v_add_f32 v{vU+2}, v{vU+2}, v{vU+3}
        ds_write_b32 v{vaRedW}, v{vU+2} offset:{R_G}
        s_waitcnt lgkmcnt(0)
        s_barrier
        """)
        lab = a.label("gf")
        a(f"s_cmp_eq_u32 s{sW}, 0\ns_cbranch_scc0 {lab}")
        setexec(0xFFFFFFFF)
        a(f"""
        ds_read_b128 {vr(vU+8,4)}, v{vaFinZ} offset:{R_GZ}
        ds_read_b128 {vr(vU+12,4)}, v{vaFinZ} offset:{R_GZ+16}
        ds_read_b128 {vr(vU,4)}, v{vaFinW} offset:{R_G}
        ds_read_b128 {vr(vU+4,4)}, v{vaFinW} offset:{R_G+256}
        s_lshl_b32 s{sB}, s{sIdx}, 6
        s_add_u32 s{sB}, s{sB}, s{sHb}
        s_waitcnt lgkmcnt(2)
        """)
        sum4r(vU + 8); sum4r(vU + 12)
        ln_stats(vU + 8, vU + 12, vU + 9, vU + 10)
        a("s_waitcnt lgkmcnt(0)")
        sum4r(vU); sum4r(vU + 4)
        a(f"""
        v_fma_f32 v{vU}, -v{vU+9}, v{vCg}, v{vU}
        v_fma_f32 v{vU+4}, -v{vU+9}, v{vCu}, v{vU+4}
        v_mul_f32 v{vU+1}, {f2u(-1.4426950408889634):#x}, v{vU+10}
        v_mul_f32 v{vU}, v{vU}, v{vU+1}
        v_exp_f32 v{vU}, v{vU}
        v_mul_f32 v{vU+4}, v{vU+4}, v{vU+10}
        v_add_f32 v{vU}, 1.0, v{vU}
        v_rcp_f32 v{vU}, v{vU}
        s_nop 0
        v_mul_f32 v{vU}, v{vU}, v{vU+4}
        """)
        dpp("v_mov_b32", vU + 1, vU, None, "quad_perm:[1,0,3,2]")
        a(f"v_cvt_pk_bf16_f32 v{vU}, v{vU}, v{vU+1}\nv_min_u32 v{vU}, 0xfffffffe, v{vU}")
        setexec(0x55555555)
        store_local(f"buffer_store_dword v{vU}, v{vaStH}, {sr(sWS,4)}, s{sB} offen")
        setexec(FULL)
        a(f"{lab}:")
        ts_dyn("g_pub0", "g_pub1")

    def d_phase():
        lab0 = a.label("dr0"); l2 = a.label("dr"); ok2 = a.label("drok")
        l = a.label("dp"); ok = a.label("dok"); one = a.label("done"); l3 = a.label("dp1");
        a(f"s_cmp_eq_u32 s{sW}, 3\ns_cbranch_scc1 {l3}")
        setexec(EM2)
        a(f"{l}:")
        a(f"buffer_load_dwordx4 {vr(vHop,4)}, v{vaH}, {sr(sWS,4)}, s{sHb} offen sc1")
        a(f"buffer_load_dwordx4 {vr(vHop+4,4)}, v{vaH}, {sr(sWS,4)}, s{sHb} offen offset:512 sc1")
        a("s_waitcnt vmcnt(0)")
        sent_check([vHop+i for i in range(8)], vT1, ok)
        spin_fail(l)
        a(f"{l3}:")
        setexec(EM2)
        a(f"{l3}b:")
        a(f"buffer_load_dwordx4 {vr(vHop,4)}, v{vaH}, {sr(sWS,4)}, s{sHb} offen sc1")
        a("s_waitcnt vmcnt(0)")
        sent_check([vHop+i for i in range(4)], vT1, ok)
        spin_fail(f"{l3}b")
        a(f"{ok}:")
        setexec(FULL)
        for nt in range(2):
            mfma(vAcc + 4*nt, vHop, ar(aWd + 4*nt, 4), "0")
        for nt in range(2):
            mfma(vAcc + 4*nt, vHop + 4, ar(aWd + 8 + 4*nt, 4))
        a(f"""
        v_permlane16_swap_b32 v{vAcc}, v{vAcc+1}
        v_permlane16_swap_b32 v{vAcc+4}, v{vAcc+5}
        v_permlane32_swap_b32 v{vAcc}, v{vAcc+4}
        ds_write_b32 v{vaRedW}, v{vAcc} offset:{R_D}
        s_waitcnt lgkmcnt(0)
        s_barrier
        """)
        lab = a.label("df")
        a(f"s_cmp_eq_u32 s{sW}, 0\ns_cbranch_scc0 {lab}")
        line_final(R_D)
        a(f"{lab}:")
        advance_hop()
        ts_dyn("d_pub0", "d_pub1")

    a(f"s_cmp_lt_u32 s{sM}, 16\ns_cbranch_scc0 L_roleB")
    def down_slices():
        a(f"""
        v_lshrrev_b32 v{vT0}, 2, v{vLane}
        v_lshlrev_b32 v{vT0}, 10, v{vT0}
        v_and_b32 v{vT1}, 3, v{vLane}
        v_lshl_add_u32 v{vT0}, v{vT1}, 4, v{vT0}
        s_mul_i32 s{sB}, s{sJ}, {224*1024}
        s_lshl_b32 s{sC}, s{sIdx}, 6
        s_add_u32 s{sB}, s{sB}, s{sC}
        s_lshl_b32 s{sC}, s{sW}, 15
        s_add_u32 s{sB}, s{sB}, s{sC}
        s_lshl_b32 s{sC}, s{sW}, 14
        s_add_u32 s{sC}, s{sC}, {L_K + W_DN}
        s_mov_b32 m0, s{sC}
        s_add_u32 s{sD}, s{sB}, 16384
        buffer_load_dwordx4 v{vT0}, {sr(sDN,4)}, s{sB} offen{SLN} lds
        s_add_u32 s{sC}, s{sC}, 1024
        s_mov_b32 m0, s{sC}
        s_nop 0
        buffer_load_dwordx4 v{vT0}, {sr(sDN,4)}, s{sD} offen{SLN} lds
        s_cmp_eq_u32 s{sW}, 3
        s_cbranch_scc1 L_nod2
        s_add_u32 s{sB}, s{sB}, {4*32768}
        s_add_u32 s{sC}, s{sC}, 1024
        s_mov_b32 m0, s{sC}
        s_add_u32 s{sD}, s{sB}, 16384
        buffer_load_dwordx4 v{vT0}, {sr(sDN,4)}, s{sB} offen{SLN} lds
        s_add_u32 s{sC}, s{sC}, 1024
        s_mov_b32 m0, s{sC}
        s_nop 0
        buffer_load_dwordx4 v{vT0}, {sr(sDN,4)}, s{sD} offen{SLN} lds
        L_nod2:
        """)
    def down_operands():
        a(f"s_lshl_b32 s{sB}, s{sW}, 14")
        tr_base(vT0, 64, 8, sB, L_K + W_DN)
        for nt in range(2):
            a(f"ds_read_b64_tr_b16 {ar(aWd+4*nt,2)}, v{vT0} offset:{nt*32}")
            a(f"ds_read_b64_tr_b16 {ar(aWd+4*nt+2,2)}, v{vT0} offset:{nt*32+256}")
        a(f"s_cmp_eq_u32 s{sW}, 3\ns_cbranch_scc1 L_dn3")
        for nt in range(2):
            a(f"ds_read_b64_tr_b16 {ar(aWd+8+4*nt,2)}, v{vT0} offset:{2048+nt*32}")
            a(f"ds_read_b64_tr_b16 {ar(aWd+8+4*nt+2,2)}, v{vT0} offset:{2048+nt*32+256}")
        a("s_branch L_dn4\nL_dn3:")
        for i in range(8): a(f"v_accvgpr_write_b32 a{aWd+8+i}, 0")
        a("L_dn4:")
    g.role = "A"; ts_split = g.ts
    def wo_slices():
        if cfg.line_pf and "o" in cfg.pf_which:
            a(f"""
            v_lshlrev_b32 v{vT0}, 7, v{vLane}
            s_lshl_b32 s{sB}, s{sJ}, 19
            s_lshl_b32 s{sC}, s{sIdx}, 15
            s_add_u32 s{sB}, s{sB}, s{sC}
            s_lshl_b32 s{sC}, s{sW}, 13
            s_add_u32 s{sB}, s{sB}, s{sC}
            buffer_load_dword v{vJ}, v{vT0}, {sr(sW2,4)}, s{sB} offen{cfg.pf_pol_o}
            """)
        a(f"""
        v_lshrrev_b32 v{vT0}, 2, v{vLane}
        v_lshlrev_b32 v{vT0}, 10, v{vT0}
        v_and_b32 v{vT1}, 3, v{vLane}
        v_lshl_add_u32 v{vT0}, v{vT1}, 4, v{vT0}
        s_lshl_b32 s{sB}, s{sJ}, 19
        s_lshl_b32 s{sC}, s{sW}, 17
        s_add_u32 s{sB}, s{sB}, s{sC}
        s_lshl_b32 s{sC}, s{sIdx}, 6
        s_add_u32 s{sB}, s{sB}, s{sC}
        s_lshl_b32 s{sC}, s{sW}, 14
        s_add_u32 s{sC}, s{sC}, {L_K}
        """)
        for u in range(8):
            a(f"""
            s_mov_b32 m0, s{sC}
            s_add_u32 s{sC}, s{sC}, 1024
            buffer_load_dwordx4 v{vT0}, {sr(sW2,4)}, s{sB} offen{SLN} lds
            s_add_u32 s{sB}, s{sB}, {16*1024}
            """)
    if cfg.w_inter:
        s1_tail(nPF)
        db_setup(0, 1)
        a(f"s_mov_b32 s{sXr}, {WS_X}")
    elif cfg.wsA:
        wo_slices()
        s1_tail(8 + nPF)
        db_setup(0, 1)
    else:
        s1_tail(nPF)
        db_setup(0, 1)
        wo_slices()
    a(f"v_mov_b32 v{vRes}, 0")
    lab = a.label("r0")
    a(f"""
    s_cmp_eq_u32 s{sJ}, 0
    s_cbranch_scc0 {lab}
    v_and_b32 v{vT0}, 1, v{vQd}
    v_lshlrev_b32 v{vT0}, 10, v{vT0}
    v_lshrrev_b32 v{vT1}, 1, v{vQd}
    v_lshl_add_u32 v{vT0}, v{vT1}, 5, v{vT0}
    v_lshl_add_u32 v{vT0}, v{vR16}, 1, v{vT0}
    s_lshl_b32 s{sB}, s{sIdx}, 6
    buffer_load_ushort v{vRes}, v{vT0}, {sr(sX0,4)}, s{sB} offen
    {lab}:
    """)
    nspec = 0
    if cfg.o_spec:
        a(f"buffer_load_dwordx3 {vr(vSt,3)}, v{vaS0}, {sr(sWS,4)}, s{sOcons} offen sc1")
        a(f"buffer_load_dwordx3 {vr(vSt+4,3)}, v{vaS1}, {sr(sWS,4)}, s{sOcons} offen sc1")
        nspec = 2
    if cfg.w_inter:
        a(f"s_waitcnt vmcnt({nspec})")
        for half, (sh, base) in enumerate(((12, L_WQ), (14, L_K))):
            a(f"s_lshl_b32 s{sB}, s{sW}, {sh}")
            tr_base(vT0, 64, 4, sB, base)
            for c2 in range(2):
                c = 2*half + c2
                for nt in range(2):
                    a(f"ds_read_b64_tr_b16 {ar(aW2+8*c+4*nt,2)}, v{vT0} offset:{c2*2048+nt*32}")
                    a(f"ds_read_b64_tr_b16 {ar(aW2+8*c+4*nt+2,2)}, v{vT0} offset:{c2*2048+nt*32+1024}")
    else:
        a(f"s_lshl_b32 s{sB}, s{sW}, 14")
        tr_base(vT0, 64, 4, sB, L_K)
        a(f"s_waitcnt vmcnt({nspec})")
        for c in range(4):
            for nt in range(2):
                a(f"ds_read_b64_tr_b16 {ar(aW2+8*c+4*nt,2)}, v{vT0} offset:{c*2048+nt*32}")
                a(f"ds_read_b64_tr_b16 {ar(aW2+8*c+4*nt+2,2)}, v{vT0} offset:{c*2048+nt*32+1024}")
    a(f"v_lshlrev_b32 v{vResF}, 16, v{vRes}")
    a("s_waitcnt lgkmcnt(0)")
    ts("wo_ready")
    if cfg.o_spec:
        a(f"""
        s_add_u32 s{sA}, s{sT}, 1
        s_waitcnt vmcnt(0)
        v_xor_b32 v{vT0}, s{sA}, v{vSt+2}
        v_xor_b32 v{vT1}, s{sA}, v{vSt+6}
        v_or_b32 v{vT0}, v{vT0}, v{vT1}
        v_cmp_ne_u32 vcc, 0, v{vT0}
        s_cbranch_vccz L_heavy
        """)
    a("L_loopA:")
    o_phase()
    lab = a.label("dn")
    a(f"s_cmp_eq_u32 s{sL}, 0\ns_cbranch_scc0 {lab}")
    down_slices()
    if cfg.tag_split:
        tag_issue()
        a("s_waitcnt vmcnt(1)")
        down_operands()
        tag_finish()
    else:
        tag_check_all()
    if not cfg.tag_split: down_operands()
    if cfg.warm_out:
        lw = a.label("wout")
        a(f"""
        s_cmp_ge_u32 s{sIdx}, 2
        s_cbranch_scc1 {lw}
        s_lshl_b32 s{sB}, s{sJ}, 1
        s_add_u32 s{sB}, s{sB}, s{sIdx}
        s_lshl_b32 s{sB}, s{sB}, 6
        v_lshlrev_b32 v{vT0}, 10, v{vLane}
        s_mov_b64 exec, 3
        buffer_load_dword v{vJ}, v{vT0}, {sr(sOUT,4)}, s{sB} offen
        s_mov_b64 exec, -1
        {lw}:
        """)
    a("s_waitcnt lgkmcnt(0)\ns_barrier")
    a(f"{lab}:")
    d_phase()
    a(f"s_cmp_eq_u32 s{sL}, 1\ns_cbranch_scc1 L_finalA")
    a("s_branch L_q2s2")

    a("L_roleB:")
    g.role = "B"; g.ts = ts_split
    def gu_slices():
        a(f"""
        s_cmp_ge_u32 s{sIdx}, 14
        s_cbranch_scc1 L_nogu
        v_lshrrev_b32 v{vT0}, 1, v{vLane}
        v_mul_u32_u24 v{vT0}, 3584, v{vT0}
        v_and_b32 v{vT1}, 1, v{vLane}
        v_lshl_add_u32 v{vT0}, v{vT1}, 4, v{vT0}
        s_mul_i32 s{sB}, s{sW}, {128*3584}
        s_mul_i32 s{sC}, s{sJ}, 448
        s_add_u32 s{sB}, s{sB}, s{sC}
        s_lshl_b32 s{sC}, s{sIdx}, 5
        s_add_u32 s{sB}, s{sB}, s{sC}
        s_lshl_b32 s{sC}, s{sW}, 14
        s_add_u32 s{sC}, s{sC}, {L_K + W_GATE}
        """)
        for u in range(4):
            a(f"""
            s_mov_b32 m0, s{sC}
            s_add_u32 s{sD}, s{sC}, {W_UP - W_GATE}
            buffer_load_dwordx4 v{vT0}, {sr(sW2,4)}, s{sB} offen{SLN} lds
            s_mov_b32 m0, s{sD}
            s_add_u32 s{sC}, s{sC}, 1024
            buffer_load_dwordx4 v{vT0}, {sr(sUP,4)}, s{sB} offen{SLN} lds
            s_add_u32 s{sB}, s{sB}, {32*3584}
            """)
        a("L_nogu:")
    if cfg.wsB:
        gu_slices()
        s1_tail(8, maybe_none=True)
    else:
        s1_tail(nPF)
    if cfg.w_inter: a(f"s_mov_b32 s{sWb2}, s{sWb}\ns_mov_b32 s{sWst2}, s{sWst}")
    db_setup(1, 0)
    if cfg.w_inter: a(f"s_mov_b32 s{sXr}, {WS_X}")
    if cfg.pf_down:
        a(f"""
        v_lshrrev_b32 v{vT0}, 3, v{vLane}
        v_lshlrev_b32 v{vT0}, 10, v{vT0}
        v_and_b32 v{vT1}, 7, v{vLane}
        v_lshl_add_u32 v{vT0}, v{vT1}, 7, v{vT0}
        s_mul_i32 s{sB}, s{sJ}, 224
        s_mul_i32 s{sC}, s{sIdx}, 14
        s_add_u32 s{sB}, s{sB}, s{sC}
        s_lshl_b32 s{sC}, s{sW}, 2
        s_add_u32 s{sB}, s{sB}, s{sC}
        s_lshl_b32 s{sB}, s{sB}, 10
        s_cmp_eq_u32 s{sW}, 3
        s_cselect_b32 exec_lo, 0xffff, -1
        s_mov_b32 exec_hi, 0
        buffer_load_dword v{vJ}, v{vT0}, {sr(sDN,4)}, s{sB} offen{cfg.pf_down_pol}
        s_mov_b64 exec, -1
        """)
    if cfg.line_pf and "f" in cfg.pf_which:
        a(f"""
        v_mul_u32_u24 v{vT0}, 52, v{vLane}
        v_lshrrev_b32 v{vT0}, 8, v{vT0}            ; l/5 for l < 64
        v_mul_u32_u24 v{vT1}, 5, v{vT0}
        v_sub_u32 v{vT1}, v{vLane}, v{vT1}         ; l%5
        v_mul_u32_u24 v{vT0}, 3584, v{vT0}
        v_lshl_add_u32 v{vT0}, v{vT1}, 7, v{vT0}
        s_lshl_b32 s{sB}, s{sIdx}, 5
        s_lshl_b32 s{sC}, s{sW}, 3
        s_add_u32 s{sB}, s{sB}, s{sC}
        s_mul_i32 s{sB}, s{sB}, 3584
        s_mul_i32 s{sC}, s{sJ}, 448
        s_and_b32 s{sC}, s{sC}, 0xffffff80
        s_add_u32 s{sB}, s{sB}, s{sC}
        """)
        setexec((1 << 40) - 1)
        for off in ((0, 64) if "f" in cfg.sub2 else (0,)):
            a(f"buffer_load_dword v{vJ}, v{vT0}, {sr(sW2,4)}, s{sB} offen offset:{off}{cfg.pf_pol_f}")
            a(f"buffer_load_dword v{vJ}, v{vT0}, {sr(sUP,4)}, s{sB} offen offset:{off}{cfg.pf_pol_f}")
        setexec(FULL)
    if not cfg.wsB and not cfg.w_inter: gu_slices()
    if cfg.w_inter and cfg.w_interB != "gu":
        lab = a.label("wl")
        a(f"s_cmp_ge_u32 s{sIdx}, 14\ns_cbranch_scc1 {lab}")
        for part, key, srdq, sh, base in ((0, "g", sW2, 12, L_WQ), (1, "u", sUP, 14, L_K)):
            if key in cfg.w_interB: continue
            for u in range(4):
                a(f"""
                s_mul_i32 s{sB}, s{sWst2}, {u}
                s_add_u32 s{sB}, s{sB}, s{sWb2}
                s_lshl_b32 s{sC}, s{sW}, {sh}
                s_add_u32 s{sC}, s{sC}, {base + u*1024}
                s_mov_b32 m0, s{sC}
                s_nop 0
                buffer_load_dwordx4 v{vWs}, {sr(srdq,4)}, s{sB} offen{SLN} lds
                """)
        a(f"{lab}:")
    if cfg.tag_split:
        tag_issue()
        a("s_waitcnt vmcnt(1)")
    else:
        tag_check_all()
    ts("ffn_landed")
    a(f"s_cmp_ge_u32 s{sIdx}, 14\ns_cbranch_scc1 L_nogu2")
    if cfg.w_inter:
        for mat, (sh, base) in enumerate(((12, L_WQ), (14, L_K))):
            a(f"s_lshl_b32 s{sB}, s{sW}, {sh}")
            tr_base(vT0, 32, 8, sB, base)
            for u in range(4):
                a(f"ds_read_b64_tr_b16 {ar(aW2+8*u+4*mat,2)}, v{vT0} offset:{u*1024}")
                a(f"ds_read_b64_tr_b16 {ar(aW2+8*u+4*mat+2,2)}, v{vT0} offset:{u*1024+128}")
    else:
        a(f"s_lshl_b32 s{sB}, s{sW}, 14")
        tr_base(vT0, 32, 8, sB, L_K + W_GATE)
        for u in range(4):
            for mat in range(2):
                a(f"ds_read_b64_tr_b16 {ar(aW2+8*u+4*mat,2)}, v{vT0} offset:{u*1024+mat*(W_UP-W_GATE)}")
                a(f"ds_read_b64_tr_b16 {ar(aW2+8*u+4*mat+2,2)}, v{vT0} offset:{u*1024+mat*(W_UP-W_GATE)+128}")
    a("s_waitcnt lgkmcnt(0)")
    for u in range(4):
        mfma(vAcc, vOnes, ar(aW2 + 8*u, 4), "0" if u == 0 else None)
        mfma(vAcc + 4, vOnes, ar(aW2 + 8*u + 4, 4), "0" if u == 0 else None)
    a(f"s_nop 7\nds_write_b32 v{vaRedW}, v{vAcc} offset:{R_COL}\nds_write_b32 v{vaRedW}, v{vAcc+4} offset:{R_COL2}")
    a("L_nogu2:")
    if cfg.tag_split: tag_finish()
    a("s_waitcnt lgkmcnt(0)\ns_barrier")
    if cfg.epoch_early:
        le = a.label("ep")
        a(f"""
        s_xor_b32 s{sB}, s{sM}, 30
        s_or_b32 s{sB}, s{sB}, s{sJ}
        s_or_b32 s{sB}, s{sB}, s{sW}
        s_cmp_eq_u32 s{sB}, 0
        s_cbranch_scc0 {le}
        """)
        a(f"v_mov_b32 v{vT0}, {WS_EPOCH}\nv_mov_b32 v{vT1}, s{sT}\ns_mov_b64 exec, 1")
        a(f"buffer_store_dword v{vT1}, v{vT0}, {sr(sWS,4)}, 0 offen sc1")
        a("s_mov_b64 exec, -1")
        a(f"{le}:")
    a(f"""
    ds_read_b128 {vr(vU,4)}, v{vaFinW} offset:{R_COL}
    ds_read_b128 {vr(vU+4,4)}, v{vaFinW} offset:{R_COL2}
    s_waitcnt lgkmcnt(0)
    """)
    sum4r(vU); sum4r(vU + 4)
    a(f"v_mov_b32 v{vCg}, v{vU}\nv_mov_b32 v{vCu}, v{vU+4}")
    ts("ffn_ready")
    a("L_loopB:")
    lg = a.label("nog")
    a(f"s_cmp_ge_u32 s{sIdx}, 14\ns_cbranch_scc1 {lg}")
    g_phase()
    a(f"{lg}:")
    if cfg.junk_dirty:
        lj = a.label("jk")
        a(f"s_cmp_eq_u32 s{sL}, 0\ns_cbranch_scc0 {lj}")
        a(f"s_lshl_b32 s{sB}, s2, 2\ns_add_u32 s{sB}, s{sB}, s{sW}\ns_mul_i32 s{sB}, s{sB}, {cfg.junk_dirty*1024}\ns_add_u32 s{sB}, s{sB}, 0x400000\nv_lshlrev_b32 v{vT0}, 4, v{vLane}")
        for i in range(cfg.junk_dirty):
            a(f"buffer_store_dwordx4 {vr(vP,4)}, v{vT0}, {sr(sWS,4)}, s{sB} offen\ns_add_u32 s{sB}, s{sB}, 1024")
        a(f"{lj}:")
    a(f"s_cmp_eq_u32 s{sL}, 1\ns_cbranch_scc1 L_fin")

    a("L_q2s2:")
    save_role, save_ts = g.role, g.ts
    g.role = "C"; g.ts = getattr(g, "maxts", g.ts)
    lab = a.label("wo")
    a(f"s_cmp_lt_u32 s{sM}, 16\ns_cbranch_scc{1 if cfg.warm_by_B else 0} {lab}")
    warm_q2()
    warm_o(1)
    a(f"{lab}:")
    if cfg.db_q: db_wait(None, const_hop=1)
    if cfg.diag and cfg.ts_only and "q2_db" in cfg.ts_only:
        ts("q2_db")
    a(f"s_mov_b32 s{sD}, {WS_X + X_HOP}")
    x_poll(sD, XA, cfg.sleep_x)
    ts("q2_got")
    q_core(XA)
    q_final(False)
    ts("q2_pub")
    l = a.label("qp"); ok = a.label("qok")
    setexec(EM4)
    a(f"{l}:")
    for c in range(4):
        a(f"buffer_load_dwordx4 {vr(vQ+4*c,4)}, v{vaQ2}, {sr(sWS,4)}, s{sQ2r} offen offset:{c*256} sc1")
    a("s_waitcnt vmcnt(0)")
    sent_check([vQ+i for i in range(16)], vT0, ok)
    spin_fail(l)
    a(f"{ok}:")
    setexec(FULL)
    ts("q2_gath")
    a(f"""
    s_add_u32 s{sOown}, s{sOown}, {O_L}
    s_add_u32 s{sOcons}, s{sOcons}, {O_L}
    s_add_u32 s{sXr}, s{sXr}, {2*X_HOP}
    s_add_u32 s{sHb}, s{sHb}, 8192
    s_mov_b32 s{sL}, 1
    """)
    s_qk_max()
    s_exp_p()
    if cfg.stats_mid:
        lw3 = a.label("s3"); lw4 = a.label("s4")
        a(f"s_cmp_eq_u32 s{sW}, 3\ns_cbranch_scc1 {lw3}")
        for blk in range(8):
            a(f"s_waitcnt lgkmcnt({7-blk})")
            pv([blk], blk == 0)
        a(f"s_branch {lw4}\n{lw3}:")
        a(f"""
        ds_read_b128 {vr(vU+4,4)}, v{vaSm} offset:{L_LSUM-L_SMAX}
        s_add_u32 s{sB}, s{sT}, s{sL}
        s_add_u32 s{sB}, s{sB}, 1
        v_mov_b32 v{vMc+2}, s{sB}
        """)
        for blk in range(4):
            a(f"s_waitcnt lgkmcnt({8-blk})")
            pv([blk], blk == 0)
        a("s_waitcnt lgkmcnt(0)")
        sum4r(vU + 4)
        a(f"v_mov_b32 v{vMc+1}, v{vU+4}")
        setexec(0xF)
        store_local(f"buffer_store_dwordx4 {vr(vMc,4)}, v{vaStS}, {sr(sWS,4)}, s{sOown} offen")
        setexec(FULL)
        for blk in range(4, 8):
            pv([blk], False)
        a(f"{lw4}:")
        s_out()
    else:
        s_stats_prep()
        a("s_waitcnt lgkmcnt(0)")
        pv(list(range(8)), True)
        s_out()
        s_stats_store(None)
    ts("s2_pub")
    if cfg.diag and cfg.ts_only and "s2_ack" in cfg.ts_only:
        a("s_waitcnt vmcnt(0)")
        ts("s2_ack")
    a(f"s_cmp_lt_u32 s{sM}, 16\ns_cbranch_scc1 L_loopA\ns_branch L_loopB")

    a("L_finalA:")
    g.role = "A"; g.ts = getattr(g, "maxts", g.ts)
    a(f"""
    s_cmp_ge_u32 s{sIdx}, 2
    s_cbranch_scc1 L_fin
    s_cmp_eq_u32 s{sW}, 0
    s_cbranch_scc0 L_fin
    s_lshl_b32 s{sB}, s{sJ}, 1
    s_add_u32 s{sB}, s{sB}, s{sIdx}        ; cb
    s_lshl_b32 s{sC}, s{sB}, 10
    s_xor_b32 s{sD}, s{sC}, 0x2000
    s_add_u32 s{sD}, s{sD}, 16384
    s_lshr_b32 s{sA}, s{sXcc}, 2
    s_lshr_b32 s{sTmp2}, s{sB}, 3
    s_cmp_eq_u32 s{sA}, s{sTmp2}
    s_cselect_b32 s{sC}, s{sC}, s{sD}
    s_add_u32 s{sC}, s{sC}, {WS_X + 3*X_HOP}
    """)
    for nt in range(2):
        for dd in range(4):
            a(f"""
            v_lshlrev_b32 v{vT0}, 3, v{vQd}
            v_add_u32 v{vT0}, {2*dd - 16*nt}, v{vT0}
            v_sub_u32 v{vT0}, v{vT0}, v{vR16}
            v_mov_b32 v{vP+4*nt+dd}, 0
            v_cmp_eq_u32 vcc, 0, v{vT0}
            v_mov_b32 v{vT1}, 0x3f80
            v_cndmask_b32 v{vP+4*nt+dd}, v{vP+4*nt+dd}, v{vT1}, vcc
            v_cmp_eq_u32 vcc, -1, v{vT0}
            v_mov_b32 v{vT1}, 0x3f800000
            v_cndmask_b32 v{vP+4*nt+dd}, v{vP+4*nt+dd}, v{vT1}, vcc
            """)
    a(f"""
    v_lshrrev_b32 v{vT2}, 1, v{vQd}
    v_lshlrev_b32 v{vT2}, 10, v{vT2}
    v_and_b32 v{vT1}, 1, v{vQd}
    v_lshl_add_u32 v{vT2}, v{vT1}, 5, v{vT2}
    v_lshl_add_u32 v{vT2}, v{vR16}, 1, v{vT2}
    s_lshl_b32 s{sB}, s{sB}, 6
    """)
    a(f"s_mov_b32 s{sEx2}, s{sC}\ns_mov_b32 s{sEx2+1}, s{sB}")
    if cfg.db_final: db_wait(None, const_hop=3)
    a(f"s_mov_b32 s{sC}, s{sEx2}\ns_mov_b32 s{sB}, s{sEx2+1}")
    l = a.label("fp"); ok = a.label("fok")
    a(f"{l}:")
    a(f"buffer_load_dwordx4 {vr(vA,4)}, v{vaX}, {sr(sWS,4)}, s{sC} offen sc1")
    a("s_waitcnt vmcnt(0)")
    sent_check([vA+i for i in range(4)], vT0, ok)
    spin_fail(l, cfg.sleep_x)
    a(f"{ok}:")
    ts("fin_got")
    mfma(vAcc, vA, vP, "0"); mfma(vAcc + 4, vA, vP + 4, "0")
    sum4(vU, vAcc, vT3); sum4(vU + 1, vAcc + 4, vT3)
    a(f"""
    v_permlane16_swap_b32 v{vU}, v{vU+1}
    v_add_f32 v{vU}, v{vU}, v{vU+1}
    v_cvt_pk_bf16_f32 v{vU}, v{vU}, v{vU}
    buffer_store_short v{vU}, v{vT2}, {sr(sOUT,4)}, s{sB} offen
    """)
    if not cfg.epoch_early:
        a(f"""
        s_cmp_eq_u32 s{sB}, 0
        s_cbranch_scc0 L_fin
        v_mov_b32 v{vT0}, {WS_EPOCH}
        v_mov_b32 v{vT1}, s{sT}
        """)
        setexec(1)
        a(f"buffer_store_dword v{vT1}, v{vT0}, {sr(sWS,4)}, 0 offen sc1")
        setexec(FULL)

    a("L_fin:")
    if cfg.diag:
        g.role = "E"
        g.tsn["E"].append((NTS - 1, "end"))
        a(f"s_memrealtime s[{sTmp2}:{sTmp2+1}]\ns_waitcnt lgkmcnt(0)\ns_mov_b32 s{sTS+NTS-2}, s{sTmp2}")
        a(f"s_memtime s[{sTmp2}:{sTmp2+1}]\ns_waitcnt lgkmcnt(0)\ns_mov_b32 s{sTS+NTS-1}, s{sTmp2}")
        a(f"s_lshl_b32 s{sB}, s2, 3\ns_add_u32 s{sB}, s{sB}, s{sW}\ns_lshl_b32 s{sB}, s{sB}, 7\ns_add_u32 s{sB}, s{sB}, {WS_DIAG}\nv_mov_b32 v{vT0}, 0")
        setexec(1)
        for i in range(NTS):
            a(f"v_mov_b32 v{vT1}, s{sTS+i}\nbuffer_store_dword v{vT1}, v{vT0}, {sr(sWS,4)}, s{sB} offen offset:{4*i}")
        setexec(FULL)
        if cfg.dbg_dump is not None:
            a(f"""
            s_cmp_eq_u32 s2, {cfg.dbg_dump}
            s_cbranch_scc0 L_nodump
            s_cmp_eq_u32 s{sW}, 0
            s_cbranch_scc0 L_nodump
            s_load_dwordx2 s[{sTmp2}:{sTmp2+1}], s[0:1], 80
            s_waitcnt lgkmcnt(0)
            s_mov_b32 s{sA}, s{sTmp2}
            s_and_b32 s{sB}, s{sTmp2+1}, 0xffff
            s_mov_b32 s{sC}, 256
            s_mov_b32 s{sD}, 0x20000
            v_mov_b32 v{vT0}, 0
            s_mov_b64 exec, 1
            """)
            for i in range(1, 16):
                a(f"s_sub_u32 s{sTmp2}, s{sTS+i}, s{sTS}\nv_mov_b32 v{vT1}, s{sTmp2}\nbuffer_store_dword v{vT1}, v{vT0}, s[{sA}:{sD}], 0 offen offset:{4*(i-1)}")
            a(f"s_sub_u32 s{sTmp2}, s{sTS+NTS-1}, s{sTS}\nv_mov_b32 v{vT1}, s{sTmp2}\nbuffer_store_dword v{vT1}, v{vT0}, s[{sA}:{sD}], 0 offen offset:60")
            a("s_mov_b64 exec, -1\nL_nodump:")
    if cfg.dbg_span:
        a(f"""
        s_waitcnt vmcnt(0)
        s_cmp_eq_u32 s{sW}, 0
        s_cbranch_scc0 L_nospan
        s_memrealtime s[{sTmp2}:{sTmp2+1}]
        s_load_dwordx2 s[92:93], s[0:1], 80
        s_waitcnt lgkmcnt(0)
        s_mov_b32 s{sA}, s92
        s_and_b32 s{sB}, s93, 0xffff
        s_mov_b32 s{sC}, 256
        s_mov_b32 s{sD}, 0x20000
        v_mov_b32 v{vT0}, 8
        v_mov_b32 v{vT1}, s{sTmp2}
        s_not_b32 s94, s94
        v_mov_b32 v{vT2}, s94
        s_mov_b64 exec, 1
        buffer_atomic_umax v{vT1}, v{vT0}, s[{sA}:{sD}], 0 offen sc1
        buffer_atomic_umax v{vT2}, v{vT0}, s[{sA}:{sD}], 0 offen offset:4 sc1
        s_waitcnt vmcnt(0)
        L_nospan:
        """)
    a("s_waitcnt vmcnt(0)\ns_endpgm")
    a(f"""
    L_abort:
    s_mov_b64 exec, -1
    v_mov_b32 v{vT0}, 0
    v_mov_b32 v{vT1}, 0xdead
    s_load_dwordx2 s[{sTmp2}:{sTmp2+1}], s[0:1], 80
    s_waitcnt lgkmcnt(0)
    s_mov_b32 s{sA}, s{sTmp2}
    s_and_b32 s{sB}, s{sTmp2+1}, 0xffff
    s_mov_b32 s{sC}, 256
    s_mov_b32 s{sD}, 0x20000
    s_mov_b64 exec, 1
    buffer_store_dword v{vT1}, v{vT0}, s[{sA}:{sD}], 0 offen offset:4
    s_waitcnt vmcnt(0)
    L_end:
    s_endpgm
    """)
    for o in g.ool: a(o)
    a("L_codeend:\ns_endpgm")
    lines = a.text().rstrip("\n").split("\n")
    g.ninstr = sum(1 for l in lines if l.startswith("    ") and not l.strip().startswith(";"))
    lines = hazard.pad(lines)
    return g, "\n".join(lines) + "\n"

HEADER = open("interleave_layers__sliding_block_cached__glu_gated_glu__decode.s.ref").read().split("; Override launch")[0]

def full(cfg):
    g, body = build(cfg)
    txt = HEADER
    txt += "; Persistent single-launch kernel: 256 workgroups (one per CU) x 256 threads.\n"
    txt += f"; @launch grid=(256,1,1) block=(256,1,1) lds={LDS_BYTES}\n"
    txt += '.amdgcn_target "amdgcn-amd-amdhsa--gfx950"\n.text\n'
    txt += f".globl {NAME}\n.p2align 8\n.type {NAME},@function\n{NAME}:\n"
    txt += body
    txt += '.section .rodata,"a"\n.p2align 6\n'
    txt += f".amdhsa_kernel {NAME}\n  .amdhsa_next_free_vgpr {256 + g.amax}\n  .amdhsa_next_free_sgpr 102\n  .amdhsa_accum_offset 256\n"
    txt += "  .amdhsa_group_segment_fixed_size 0\n  .amdhsa_kernarg_size 96\n  .amdhsa_user_sgpr_count 2\n  .amdhsa_user_sgpr_kernarg_segment_ptr 1\n  .amdhsa_system_sgpr_workgroup_id_x 1\n.end_amdhsa_kernel\n"
    return g, txt

if __name__ == "__main__":
    cfg = Cfg()
    for kv in sys.argv[2:]:
        k, v = kv.split("="); setattr(cfg, k, eval(v))
    g, txt = full(cfg)
    open(sys.argv[1], "w").write(txt)
    print("vgprs", g.vmax, "agprs", g.amax, "instrs", g.ninstr, "ts", g.tsn)
```

```python
import sys, struct
from asmlib import Asm
import hazard

NAME = "interleave_layers__sliding_block_cached__glu_gated_glu__decode_kernel"

WS_EPOCH = 0x0
WS_Q1 = 0x10000
WS_DB = 0x1c000
WS_Q2 = 0x20000
WS_H  = 0x28000
WS_X  = 0xE0000
X_HOP = 32768
WS_O  = 0x40000
O_STATS = 32768
O_J = O_STATS + 2048
O_L = 8 * O_J
WS_DIAG = 0x100000
WS_SIZE = 0x1000000

L_SMAX = 0
L_LSUM = 64
L_PBUF = 256
L_RED = 2560
R_Q, R_G, R_GZ, R_O, R_D, R_COL, R_COL2 = [L_RED + 1024 * i for i in range(7)]
L_QG = 10240
L_X0 = 14336
L_K = 16384
L_V = L_K + 65536
L_WQ = L_V + 65536
L_XI = L_V
LDS_BYTES = 163840
W_GATE, W_UP, W_DN = 0, 4096, 8192

C_SCALE = 0.08838834764831845 * 1.4426950408889634
def f2u(x): return struct.unpack("<I", struct.pack("<f", x))[0]

class Cfg:
    nKA = 8
    nKb1 = 1
    pace = 8
    gpts = (1, 2, 4)
    diag = False
    ts_only = None
    ts_issue = False
    force_global = False
    budget = 400000
    prefetch_code = True
    sleep_x = 0
    sleep_x0 = 0
    sleep_o = 0
    sl_nt = True
    pf_pol = ""
    pf_pol_f = ""
    pf_pol_o = " nt"
    pf_which = "qf"
    dbg_span = False
    counters = False
    db_early = False
    doorbell = True
    warm = True
    pf_stream = "o"
    pf_pos = 2
    pf_early = False
    pf_spol = ""
    wsA = False
    wsB = False
    junk_dirty = 0
    epoch_early = True
    w_interB = "gu"
    w_inter = False
    v3_early = False
    warm_by_B = True
    o_spec = True
    db_g = True
    db_q = True
    db_final = False
    stats_mid = True
    pf_down = False
    pf_down_pol = " nt"
    kv_pol = " nt"
    sub2 = ""
    dbg_dump = None
    db_pipe = False
    pace_lo = None
    tag_split = True
    code_pf_shift = 6
    gE_mode = 0
    g_early = True
    rt_probe = None
    rot_mode = "m8"
    warm_out = False
    line_pf = True
    const_tag = False
    no_clear0 = False
    clr0_late = False

def vr(b, n=1): return f"v[{b}:{b+n-1}]" if n > 1 else f"v{b}"
def ar(b, n=1): return f"a[{b}:{b+n-1}]" if n > 1 else f"a{b}"
def sr(b, n=1): return f"s[{b}:{b+n-1}]" if n > 1 else f"s{b}"

sJ, sM, sW, sIdx, sL = 3, 4, 5, 6, 7
sWS, sKS, sVS, sWQ, sW2, sUP, sDN, sX0, sOUT = 8, 12, 16, 20, 24, 28, 32, 36, 40
sT, sTX, sLocal, sBud = 44, 45, 46, 47
sMDIAG = 48
sM4 = 50
sM2 = 52
sMN1 = 54
sMEV = 56
sEx = 58
sA, sB, sC, sD = 60, 61, 62, 63
sKV, sRot = 64, 65
sOown, sOcons, sXw, sXr, sHb, sQ2w, sQ2r = 66, 67, 68, 69, 70 - 70 + 96, 97, 98
sXcc = 99
sEarly = 59
sWb2, sWst2 = 68, 60
sWb, sWst = 59, 69
sKS2 = sKS
sDBtag = 59
sEx2 = 50
sDBw, sDBr = 64, 65
sXI = 58
sTmp2 = 100
sTS = 70
NTS = 26

class G:
    pass

def build(cfg):
    g = G(); a = Asm(); g.a = a
    g.tsn = {"C": [], "A": [], "B": [], "E": []}; g.role = "C"; g.ts = 0; g.cnts = {}; g.cnt_names = []
    nv = [1]
    def valloc(n=1, align=1):
        nv[0] = (nv[0] + align - 1) // align * align
        r = nv[0]; nv[0] += n
        assert nv[0] <= 256
        return r
    vLane = valloc(); vR16 = valloc(); vQd = valloc()
    vT0 = valloc(); vT1 = valloc(); vT2 = valloc(); vT3 = valloc()
    vOnes = valloc(4, 4)
    vQ = valloc(16, 4)
    vA = valloc(40, 4)
    vAcc = valloc(16, 4)
    vS = valloc(16, 4)
    vP = valloc(32, 4)
    vJ = valloc()
    vHop = valloc(8, 4)
    vU = valloc(16, 4)
    vSt = valloc(8, 4)
    vW = valloc(2, 2)
    vCs = valloc(); vCg = valloc(); vCu = valloc()
    vRes = valloc(); vResF = valloc(); vTg = valloc(2)
    vQ1d = valloc(2, 2); vQ1a = valloc()
    vMc = valloc(4, 4)
    vaX = valloc(); vaXg = valloc(); vaXr = valloc(); vaStQ = valloc(); vaClrO = valloc(); vaO0 = valloc(); vaO1 = valloc(); vaS0 = valloc(); vaS1 = valloc(); vaQ2 = valloc(); vaH = valloc()
    vaPw = valloc(); vaPr = valloc(); vaSm = valloc(); vaSmW = valloc(); vaRedW = valloc(); vaRedZ = valloc()
    vaFinW = valloc(); vaFinZ = valloc(); vaFinQZ = valloc(); vaFinO = valloc()
    vaStH = valloc(); vaStX = valloc(); vaStO = valloc(); vaStS = valloc(); vaResU = valloc()
    vWs = valloc()
    vKs = valloc(4); vVs = valloc(2); vVr = valloc(2); vKr = valloc(4)
    g.vmax = nv[0]
    aK, aV, aWq, aW2, aWd = 0, 64, 128, 144, 176
    g.amax = 192

    FULL = (1 << 64) - 1
    def ts(name):
        if not cfg.diag: return
        if cfg.ts_only and name not in cfg.ts_only and name not in ("start", "setup", "issued"): return
        i = g.ts; g.ts += 1; g.maxts = max(getattr(g, "maxts", 0), g.ts)
        assert i < NTS - 3, name
        g.tsn[g.role].append((i, name))
        if name == "start":
            return
        if name == "issued":
            g.i_issued = i
            a(f"s_memtime s[{sTmp2}:{sTmp2+1}]\ns_waitcnt lgkmcnt(0)\ns_mov_b32 s92, s{sTmp2}")
            return
        if name == "setup":
            a(f"s_mov_b32 s{sTS}, s90\ns_mov_b32 s{sTS+NTS-3}, s91")
            if cfg.ts_issue: a(f"s_mov_b32 s{sTmp2}, s92")
            for z in list(range(1, NTS - 3)) + [NTS - 2, NTS - 1]: a(f"s_mov_b32 s{sTS+z}, 0")
            if cfg.ts_issue: a(f"s_mov_b32 s{sTS+g.i_issued}, s{sTmp2}")
        if cfg.ts_only and name not in cfg.ts_only:
            return
        a(f"s_memtime s[{sTmp2}:{sTmp2+1}]\ns_waitcnt lgkmcnt(0)\ns_mov_b32 s{sTS+i}, s{sTmp2}")
    def ts_dyn(name0, name1):
        if not cfg.diag: return
        if cfg.ts_only and name0 not in cfg.ts_only: return
        i = g.ts; g.ts += 2; g.maxts = max(getattr(g, "maxts", 0), g.ts)
        assert i + 1 < NTS - 3, name0
        g.tsn[g.role].append((i, name0)); g.tsn[g.role].append((i + 1, name1))
        if cfg.ts_only and name0 not in cfg.ts_only: return
        a(f"""s_memtime s[{sTmp2}:{sTmp2+1}]
        s_waitcnt lgkmcnt(0)
        s_cmp_eq_u32 s{sL}, 0
        s_cselect_b32 s{sTS+i}, s{sTmp2}, s{sTS+i}
        s_cselect_b32 s{sTS+i+1}, s{sTS+i+1}, s{sTmp2}""")

    def cnt(name):
        if not (cfg.diag and cfg.counters): return
        key = (g.role, name)
        if key not in g.cnts:
            i = g.ts; g.ts += 1; g.maxts = max(getattr(g, "maxts", 0), g.ts)
            assert i < NTS - 3, name
            g.cnts[key] = i; g.cnt_names.append((g.role, i, name))
        a(f"s_add_u32 s{sTS+g.cnts[key]}, s{sTS+g.cnts[key]}, 1")

    def rt_probe(name):
        if cfg.rt_probe != name: return
        lab = a.label("rp")
        if name == "start":
            cond = f"s_cmp_eq_u32 s2, 0\ns_cbranch_scc0 {lab}"
        else:
            cond = f"s_mul_hi_u32 s{sA}, s2, {(2**32 + 16) // 17}\ns_mul_i32 s{sB}, s{sA}, 17\ns_cmp_eq_u32 s{sB}, s2\ns_cbranch_scc0 {lab}"
        a(f"""
        s_cmp_eq_u32 s{sW}, 0
        s_cbranch_scc0 {lab}
        {cond}
        s_memrealtime s[{sTmp2}:{sTmp2+1}]
        s_load_dwordx2 s[92:93], s[0:1], 80
        s_waitcnt lgkmcnt(0)
        s_lshl_b32 s{sA}, s{sA}, 2
        v_mov_b32 v{vT0}, s{sA}
        v_mov_b32 v{vT1}, s{sTmp2}
        s_mov_b64 exec, 1
        global_store_dword v{vT0}, v{vT1}, s[92:93]
        s_mov_b64 exec, -1
        {lab}:
        """)

    def setexec(mask):
        if mask == FULL: a("s_mov_b64 exec, -1")
        elif isinstance(mask, str): a(f"s_mov_b64 exec, {mask}")
        elif mask < 65 or mask in (0xFFFF, 0xF, 0xFF):
            a(f"s_mov_b64 exec, 0x{mask:x}" if mask >= 65 else f"s_mov_b64 exec, {mask}")
        else:
            a(f"s_mov_b32 exec_lo, 0x{mask & 0xFFFFFFFF:x}\ns_mov_b32 exec_hi, 0x{mask >> 32:x}")
    EM4, EM2, EMEV = f"s[{sM4}:{sM4+1}]", f"s[{sM2}:{sM2+1}]", f"s[{sMEV}:{sMEV+1}]"

    def srd(dst, ptr_s, size):
        a(f"s_mov_b32 s{dst}, s{ptr_s}\ns_and_b32 s{dst+1}, s{ptr_s+1}, 0xffff\ns_mov_b32 s{dst+2}, 0x{size:x}\ns_mov_b32 s{dst+3}, 0x20000")

    def mfma(d, A, B, C=None):
        f = lambda x: x if isinstance(x, str) else vr(x, 4)
        c = f(d) if C is None else C
        a(f"v_mfma_f32_16x16x32_bf16 {f(d)}, {f(A)}, {f(B)}, {c}")

    def spin_fail(lbl_retry, sleep=0):
        if sleep: a(f"s_sleep {sleep}")
        a(f"s_sub_u32 s{sBud}, s{sBud}, 1\ns_cbranch_scc0 {lbl_retry}\ns_branch L_abort")
    def interleave(mf, va, start, per=2):
        va = list(va)
        for i, m in enumerate(mf):
            a(m)
            if i >= start:
                for _ in range(per):
                    if va: a(va.pop(0))
        for v in va: a(v)
    def mf(d, A, B, C=None):
        f = lambda x: x if isinstance(x, str) else vr(x, 4)
        return f"v_mfma_f32_16x16x32_bf16 {f(d)}, {f(A)}, {f(B)}, {f(d) if C is None else C}"

    def sent_max(regs, tmp):
        rs = list(regs)
        if len(rs) == 1: return rs[0]
        if len(rs) == 2:
            a(f"v_max_u32 v{tmp}, v{rs[0]}, v{rs[1]}"); rs = []
        else:
            a(f"v_max3_u32 v{tmp}, v{rs[0]}, v{rs[1]}, v{rs[2]}"); rs = rs[3:]
        while len(rs) >= 2:
            a(f"v_max3_u32 v{tmp}, v{tmp}, v{rs[0]}, v{rs[1]}"); rs = rs[2:]
        if rs: a(f"v_max_u32 v{tmp}, v{tmp}, v{rs[0]}")
        return tmp
    def sent_check(regs, tmp, lbl_ok):
        cur = sent_max(regs, tmp)
        a(f"v_cmp_eq_u32 vcc, -1, v{cur}\ns_cbranch_vccz {lbl_ok}")

    g.ool = []
    def store_local(instr):
        if cfg.force_global:
            a(instr + " sc1"); return
        l1 = a.label("stg"); l2 = a.label("std")
        a(f"s_cmp_eq_u32 s{sLocal}, 0\ns_cbranch_scc1 {l1}")
        a(instr)
        a(f"{l2}:")
        g.ool.append(f"{l1}:\n{instr} sc1\ns_branch {l2}")

    def dpp(op, d, s0, s1, ctrl, rm="0xf", bm="0xf"):
        if s1 is None: a(f"{op}_dpp v{d}, v{s0} {ctrl} row_mask:{rm} bank_mask:{bm}")
        else: a(f"{op}_dpp v{d}, v{s0}, v{s1} {ctrl} row_mask:{rm} bank_mask:{bm}")
    def row_reduce(op, v, steps=(8, 4, 2, 1)):
        for n in steps: dpp(op, v, v, v, f"row_ror:{n}")
    def xquad_reduce(op, v, tmp):
        a(f"v_mov_b32 v{tmp}, v{v}\nv_permlane32_swap_b32 v{v}, v{tmp}\n{op} v{v}, v{v}, v{tmp}")
        a(f"v_mov_b32 v{tmp}, v{v}\nv_permlane16_swap_b32 v{v}, v{tmp}\n{op} v{v}, v{v}, v{tmp}")
    def sum4(dst, b, tmp):
        a(f"v_add_f32 v{dst}, v{b}, v{b+1}\nv_add_f32 v{tmp}, v{b+2}, v{b+3}\nv_add_f32 v{dst}, v{dst}, v{tmp}")

    P = sTS
    EARLY = ""
    if cfg.dbg_span:
        EARLY = f"s_memrealtime s[94:95]"
    if cfg.diag:
        EARLY = f"s_memrealtime s[{sTmp2}:{sTmp2+1}]\ns_waitcnt lgkmcnt(0)\ns_mov_b32 s91, s{sTmp2}\ns_memtime s[{sTmp2}:{sTmp2+1}]\ns_waitcnt lgkmcnt(0)\ns_mov_b32 s90, s{sTmp2}"
    SLN = " nt" if cfg.sl_nt else ""
    a(f"""
    s_cmp_ge_u32 s2, 256
    s_cbranch_scc1 L_end
    {EARLY}
    s_load_dwordx4 s[{P+6}:{P+9}], s[0:1], 16          ; V, wq     (76..79)
    s_load_dwordx4 s[{P+2}:{P+5}], s[0:1], 0           ; x, K      (72..75)
    s_load_dwordx2 s[{P+18}:{P+19}], s[0:1], 88        ; ws        (88..89)
    s_load_dwordx2 s[{P}:{P+1}], s[0:1], 32            ; wo        (70..71)
    s_load_dwordx4 s[{P+10}:{P+13}], s[0:1], 48
    s_load_dwordx4 s[{P+14}:{P+17}], s[0:1], 64
    v_lshrrev_b32 v{vT0}, 6, v0
    v_and_b32 v{vLane}, 63, v0
    """)
    if cfg.prefetch_code:
        a(f"""
        s_getpc_b64 s[{sTmp2}:{sTmp2+1}]
        L_pfbase:
        v_readfirstlane_b32 s{sW}, v{vT0}
        v_lshlrev_b32 v{vT1}, {cfg.code_pf_shift}, v0
        s_mov_b32 s{sB}, (L_codeend - L_pfbase)
        v_cmp_gt_u32 vcc, s{sB}, v{vT1}
        s_and_b32 s{sJ}, s2, 7
        s_and_saveexec_b64 s[{sEx}:{sEx+1}], vcc
        s_cbranch_execz L_nopf
        global_load_dword v{vU+15}, v{vT1}, s[{sTmp2}:{sTmp2+1}]
        L_nopf:
        s_mov_b64 exec, s[{sEx}:{sEx+1}]
        """)
    else:
        a(f"s_and_b32 s{sJ}, s2, 7\nv_readfirstlane_b32 s{sW}, v{vT0}")
    a(f"""
    s_lshr_b32 s{sM}, s2, 3
    v_lshrrev_b32 v{vT2}, 1, v{vLane}
    v_lshlrev_b32 v{vT2}, 13, v{vT2}
    v_and_b32 v{vT3}, 1, v{vLane}
    v_lshl_add_u32 v{vT2}, v{vT3}, 4, v{vT2}
    v_lshrrev_b32 v{vT0}, {4 if "q" in cfg.sub2 else 3}, v{vLane}
    v_lshlrev_b32 v{vT0}, 13, v{vT0}
    v_and_b32 v{vT3}, {15 if "q" in cfg.sub2 else 7}, v{vLane}
    v_lshl_add_u32 v{vT0}, v{vT3}, {6 if "q" in cfg.sub2 else 7}, v{vT0}
    s_lshl_b32 s{sC}, s{sJ}, 10
    s_lshl_b32 s{sA}, s{sM}, 2
    s_add_u32 s{sA}, s{sA}, s{sW}
    s_lshl_b32 s{sA}, s{sA}, 15
    s_add_u32 s{sA}, s{sA}, s{sC}
    s_lshl_b32 s{sB}, s{sW}, 20
    s_add_u32 s{sB}, s{sB}, s{sC}
    s_lshl_b32 s{sC}, s{sM}, 5
    s_add_u32 s{sB}, s{sB}, s{sC}
    s_lshl_b32 s{sC}, s{sW}, 12
    s_add_u32 s{sC}, s{sC}, {L_WQ}
    s_mov_b32 s{sWQ+2}, 0x400000
    s_mov_b32 s{sWQ+3}, 0x20000
    s_waitcnt lgkmcnt(0)
    s_mov_b32 s{sWQ}, s{P+8}
    s_and_b32 s{sWQ+1}, s{P+9}, 0xffff
    """)
    if cfg.line_pf and "q" in cfg.pf_which:
        if "q" not in cfg.sub2: setexec(0xFFFFFFFF)
        a(f"buffer_load_dword v{vJ}, v{vT0}, {sr(sWQ,4)}, s{sA} offen{cfg.pf_pol}")
        if "q" not in cfg.sub2: setexec(FULL)
    for u in range(4):
        a(f"""
        s_mov_b32 m0, s{sC}
        s_add_u32 s{sC}, s{sC}, 1024
        buffer_load_dwordx4 v{vT2}, {sr(sWQ,4)}, s{sB} offen{SLN} lds
        s_add_u32 s{sB}, s{sB}, {32*8192}
        """)
    XA = vA + 8
    ROT = {"m8": f"s_and_b32 s{sRot}, s{sM}, 7\ns_lshl_b32 s{sRot}, s{sRot}, 1",
           "mj8": f"s_add_u32 s{sRot}, s{sM}, s{sJ}\ns_and_b32 s{sRot}, s{sRot}, 7\ns_lshl_b32 s{sRot}, s{sRot}, 1",
           "m16": f"s_and_b32 s{sRot}, s{sM}, 15",
           "mj16": f"s_lshl_b32 s{sRot}, s{sJ}, 1\ns_add_u32 s{sRot}, s{sRot}, s{sM}\ns_and_b32 s{sRot}, s{sRot}, 15",
           "none": f"s_mov_b32 s{sRot}, 0",
           "m4x4": f"s_and_b32 s{sRot}, s{sM}, 3\ns_lshl_b32 s{sRot}, s{sRot}, 2"}[cfg.rot_mode]
    a(f"""
    v_and_b32 v{vR16}, 15, v0
    v_lshrrev_b32 v{vQd}, 4, v{vLane}
    s_and_b32 s{sIdx}, s{sM}, 15
    {ROT}
    s_lshr_b32 s{sB}, s{sM}, 4
    s_lshl_b32 s{sB}, s{sB}, 3
    s_add_u32 s{sB}, s{sB}, s{sJ}
    s_lshl_b32 s{sB}, s{sB}, 23
    s_lshl_b32 s{sC}, s{sIdx}, 16
    s_add_u32 s{sKV}, s{sB}, s{sC}
    s_add_u32 s{sKV}, s{sKV}, 0x700000
    v_lshlrev_b32 v{vT1}, 4, v{vLane}          ; lane*16
    """)
    srd(sKS, P + 4, 0x8000000)
    for i in range(4):
        a(f"""
        v_add_u32 v{vT3}, {4*i}, v{vQd}
        v_xor_b32 v{vT3}, v{vT3}, v{vR16}
        v_lshlrev_b32 v{vT3}, 4, v{vT3}
        v_lshl_add_u32 v{vKs+i}, v{vQd}, 8, v{vT3}
        """)
    srd(sWS, P + 18, WS_SIZE)
    if cfg.const_tag: a(f"s_mov_b32 s{sT}, 0x12345670")
    else: a(f"s_load_dword s{sT}, s[{P+18}:{P+19}], {WS_EPOCH}")
    srd(sX0, P + 2, 2048)
    a(f"s_cmp_eq_u32 s{sW}, 0\ns_cbranch_scc0 L_nox0")
    a(f"""
    s_mov_b32 m0, {L_X0}
    s_nop 0
    buffer_load_dwordx4 v{vT1}, {sr(sX0,4)}, 0 offen lds
    buffer_load_dwordx4 v{vT1}, {sr(sX0,4)}, 0 offen offset:1024 lds
    L_nox0:
    """)
    a(f"""
    s_mul_i32 s{sOown}, s{sJ}, {O_J}
    s_lshr_b32 s{sB}, s{sM}, 4
    s_lshl_b32 s{sB}, s{sB}, 14
    s_add_u32 s{sOown}, s{sOown}, s{sB}
    s_lshl_b32 s{sB}, s{sIdx}, 4
    s_add_u32 s{sOown}, s{sOown}, s{sB}
    s_add_u32 s{sOown}, s{sOown}, {WS_O}
    s_lshl_b32 s{sC}, s{sIdx}, 10
    s_lshl_b32 s{sD}, s{sJ}, 7
    s_add_u32 s{sC}, s{sC}, s{sD}
    s_add_u32 s{sXw}, s{sC}, {WS_X}
    s_mov_b32 s{sXr}, {WS_X}
    s_lshl_b32 s{sHb}, s{sJ}, 10
    s_add_u32 s{sHb}, s{sHb}, {WS_H}
    s_lshl_b32 s{sQ2w}, s{sJ}, 11
    s_add_u32 s{sQ2r}, s{sQ2w}, {WS_Q2}
    ; producer m: h = m>>3, c = (m>>1)&3, e0 = 2*(m&1)  ->  c*256 + e0*64 + h*16
    s_lshr_b32 s{sB}, s{sM}, 1
    s_and_b32 s{sB}, s{sB}, 3
    s_lshl_b32 s{sB}, s{sB}, 8
    s_add_u32 s{sQ2w}, s{sQ2r}, s{sB}
    s_and_b32 s{sB}, s{sM}, 1
    s_lshl_b32 s{sB}, s{sB}, 7
    s_add_u32 s{sQ2w}, s{sQ2w}, s{sB}
    s_lshr_b32 s{sB}, s{sM}, 3
    s_lshl_b32 s{sB}, s{sB}, 4
    s_add_u32 s{sQ2w}, s{sQ2w}, s{sB}
    s_lshr_b32 s{sB}, s{sM}, 4
    s_lshl_b32 s{sB}, s{sB}, 10
    s_add_u32 s{sQ2r}, s{sQ2r}, s{sB}
    """)
    if cfg.no_clear0: a("s_branch L_clr_done")
    a(f"""
    v_mov_b32 v{vU}, -1
    v_mov_b32 v{vU+1}, -1
    v_mov_b32 v{vU+2}, -1
    v_mov_b32 v{vU+3}, -1
    v_bfe_u32 v{vT3}, v{vLane}, 1, 1
    v_lshlrev_b32 v{vT3}, 10, v{vT3}
    v_and_b32 v{vT0}, 1, v{vLane}
    v_lshl_add_u32 v{vT3}, v{vT0}, 6, v{vT3}
    v_add_u32 v{vT0}, s{sQ2w}, v{vT3}
    s_cmp_lt_u32 s{sM}, 16
    s_cbranch_scc0 L_clr_B
    s_cmp_eq_u32 s{sW}, 1
    s_cbranch_scc0 L_clr_A2
    """)
    setexec(0xF)
    a(f"""
    s_branch L_clr_st
    L_clr_A2:
    s_cmp_eq_u32 s{sW}, 2
    s_cbranch_scc0 L_clr_done
    s_xor_b32 s{sC}, s{sXw}, 0x2000
    s_add_u32 s{sC}, s{sC}, 16384
    v_mov_b32 v{vT0}, s{sXw}
    v_mov_b32 v{vT1}, s{sC}
    v_bfe_u32 v{vT3}, v{vLane}, 3, 1
    v_cmp_eq_u32 vcc, 1, v{vT3}
    v_cndmask_b32 v{vT0}, v{vT0}, v{vT1}, vcc
    v_lshrrev_b32 v{vT3}, 4, v{vLane}
    v_lshlrev_b32 v{vT3}, 15, v{vT3}
    v_and_b32 v{vT1}, 7, v{vLane}
    v_lshl_add_u32 v{vT3}, v{vT1}, 4, v{vT3}
    v_add_u32 v{vT0}, v{vT0}, v{vT3}
    s_branch L_clr_st
    L_clr_B:
    s_cmp_eq_u32 s{sW}, 2
    s_cbranch_scc0 L_clr_done
    """)
    setexec(0xF)
    a(f"""
    s_cmp_ge_u32 s{sIdx}, 14
    s_cbranch_scc1 L_clr_st
    s_lshl_b32 s{sD}, s{sIdx}, 6
    s_add_u32 s{sC}, s{sHb}, s{sD}
    """)
    setexec(0xFF0)
    a(f"""
    v_bfe_u32 v{vT3}, v{vLane}, 3, 1
    v_lshlrev_b32 v{vT3}, 13, v{vT3}
    v_and_b32 v{vT1}, 3, v{vLane}
    v_lshl_add_u32 v{vT3}, v{vT1}, 4, v{vT3}
    v_add_u32 v{vT0}, s{sC}, v{vT3}
    """)
    setexec(0xFFF)
    a("L_clr_st:")
    a(f"buffer_store_dwordx4 {vr(vU,4)}, v{vT0}, {sr(sWS,4)}, 0 offen sc1")
    setexec(FULL)
    a("L_clr_done:")
    def emit_wpf(qWO, qGT, reload_ptrs):
        n = 0
        a(f"s_lshl_b32 s{sD}, s{sM}, 2\ns_add_u32 s{sD}, s{sD}, s{sW}               ; q = 4m + w")
        if reload_ptrs:
            a(f"""
            s_load_dwordx2 s[{qWO}:{qWO+1}], s[0:1], 32
            s_load_dwordx2 s[{qGT}:{qGT+1}], s[0:1], 48
            s_waitcnt lgkmcnt(0)
            s_and_b32 s{qWO+1}, s{qWO+1}, 0xffff
            s_mov_b32 s{qWO+2}, 0x400000
            s_and_b32 s{qGT+1}, s{qGT+1}, 0xffff
            s_mov_b32 s{qGT+2}, {512*1792*2}
            """)
        if "o" in cfg.pf_stream:
            a(f"""
            v_lshlrev_b32 v{vT0}, {6 if "o" in cfg.sub2 else 7}, v{vLane}
            s_lshl_b32 s{sB}, s{sJ}, 19
            s_lshl_b32 s{sC}, s{sD}, 12
            s_add_u32 s{sB}, s{sB}, s{sC}
            """)
            if "o" not in cfg.sub2: setexec(0xFFFFFFFF)
            a(f"buffer_load_dword v{vJ}, v{vT0}, {sr(qWO,4)}, s{sB} offen{cfg.pf_spol}")
            setexec(FULL); n += 1
        if "g" in cfg.pf_stream or "u" in cfg.pf_stream:
            a(f"""
            v_mul_u32_u24 v{vT0}, 52, v{vLane}
            v_lshrrev_b32 v{vT0}, 8, v{vT0}
            v_mul_u32_u24 v{vT1}, 5, v{vT0}
            v_sub_u32 v{vT1}, v{vLane}, v{vT1}
            v_mul_u32_u24 v{vT0}, 3584, v{vT0}
            v_lshl_add_u32 v{vT0}, v{vT1}, 7, v{vT0}
            s_mul_i32 s{sB}, s{sD}, {4*3584}
            s_mul_i32 s{sC}, s{sJ}, 448
            s_and_b32 s{sC}, s{sC}, 0xffffff80
            s_add_u32 s{sB}, s{sB}, s{sC}
            """)
            setexec((1 << 20) - 1)
            if "g" in cfg.pf_stream:
                a(f"buffer_load_dword v{vJ}, v{vT0}, {sr(qGT,4)}, s{sB} offen{cfg.pf_spol}"); n += 1
            if "u" in cfg.pf_stream:
                a(f"buffer_load_dword v{vJ}, v{vT0}, {sr(sUP,4)}, s{sB} offen{cfg.pf_spol}"); n += 1
            setexec(FULL)
        if "d" in cfg.pf_stream:
            a(f"""
            v_lshlrev_b32 v{vT0}, 7, v{vLane}
            s_min_u32 s{sB}, s{sD}, 111
            s_lshl_b32 s{sB}, s{sB}, 11
            s_mul_i32 s{sC}, s{sJ}, {224*1024}
            s_add_u32 s{sB}, s{sB}, s{sC}
            """)
            setexec(0xFFFF)
            a(f"buffer_load_dword v{vJ}, v{vT0}, {sr(sDN,4)}, s{sB} offen{cfg.pf_spol}")
            setexec(FULL); n += 1
        return n

    def page_off(t, dst):
        a(f"""
        s_add_u32 s{dst}, s{sW}, s{sRot}
        s_add_u32 s{dst}, s{dst}, {4*t}
        s_and_b32 s{dst}, s{dst}, 15
        s_lshl_b32 s{dst}, s{dst}, 12
        s_add_u32 s{dst}, s{dst}, s{sKV}
        """)
    def k_page(t):
        page_off(t, sD)
        a(f"s_lshl_b32 s{sC}, s{sW}, 14\ns_add_u32 s{sC}, s{sC}, {L_K + t*4096}\ns_mov_b32 m0, s{sC}\ns_nop 0")
        for ii in range(4):
            a(f"buffer_load_dwordx4 v{vKs+ii}, {sr(sKS,4)}, s{sD} offen offset:{ii*1024}{cfg.kv_pol} lds")
    nKpA = cfg.nKA // 4
    for t in range(cfg.nKb1): k_page(t)
    nPFe = 0
    if cfg.pf_stream and cfg.pf_early:
        srd(sVS, P, 0x400000)
        srd(sOUT, P + 10, 512 * 1792 * 2)
        srd(sUP, P + 12, 512 * 1792 * 2)
        srd(sDN, P + 14, 1792 * 512 * 2)
        nPFe = emit_wpf(sVS, sOUT, False)
    ts("start")
    if cfg.ts_issue: ts("issued")

    srd(sVS, P + 6, 0x8000000)
    srd(sUP, P + 12, 512 * 1792 * 2)
    srd(sDN, P + 14, 1792 * 512 * 2)
    srd(sOUT, P + 16, 2048)
    a(f"""
    s_cmp_lt_u32 s{sM}, 16
    s_cselect_b32 s{sW2}, s{P}, s{P+10}
    s_cselect_b32 s{sW2+1}, s{P+1}, s{P+11}
    s_mov_b32 s{sW2+2}, {512*1792*2}
    s_cselect_b32 s{sW2+2}, 0x400000, s{sW2+2}
    s_and_b32 s{sW2+1}, s{sW2+1}, 0xffff
    s_mov_b32 s{sW2+3}, 0x20000
    s_mov_b32 s{sBud}, {cfg.budget}
    s_getreg_b32 s{sXcc}, hwreg(HW_REG_XCC_ID, 0, 4)
    s_mov_b32 s{sMDIAG}, 0x00ff00ff
    s_mov_b32 s{sMDIAG+1}, 0xff00ff00
    s_mov_b32 s{sM4}, 0x000f000f
    s_mov_b32 s{sM4+1}, 0x000f000f
    s_mov_b32 s{sM2}, 0x00030003
    s_mov_b32 s{sM2+1}, 0x00030003
    s_mov_b32 s{sMN1}, 0x00020002
    s_mov_b32 s{sMN1+1}, 0x00020002
    s_mov_b32 s{sMEV}, 0x55555555
    s_mov_b32 s{sMEV+1}, 0x55555555
    s_mov_b32 s{sL}, 0
    s_mul_i32 s{sOcons}, s{sJ}, {O_J}
    s_lshl_b32 s{sB}, s{sW}, 12
    s_add_u32 s{sOcons}, s{sOcons}, s{sB}
    s_add_u32 s{sOcons}, s{sOcons}, {WS_O}
    """)
    for i in range(4): a(f"v_mov_b32 v{vOnes+i}, 0x3f803f80")
    for i in range(16): a(f"v_mov_b32 v{vQ+i}, 0")
    for i in range(8): a(f"v_mov_b32 v{vHop+i}, 0")
    a(f"v_mov_b32 v{vQ1a}, 0\nv_mov_b32 v{vQ1d}, 0\nv_mov_b32 v{vQ1d+1}, 0")
    h3 = vU; qh = vU + 1; ql = vU + 2
    a(f"""
    v_and_b32 v{h3}, 3, v{vR16}
    v_lshrrev_b32 v{qh}, 1, v{vQd}
    v_and_b32 v{ql}, 1, v{vQd}
    v_and_b32 v{vT0}, 7, v{vR16}
    v_lshlrev_b32 v{vT0}, 7, v{vT0}
    v_lshrrev_b32 v{vT1}, 3, v{vR16}
    v_lshl_add_u32 v{vT0}, v{vT1}, 6, v{vT0}
    v_lshl_add_u32 v{vaX}, v{vQd}, 4, v{vT0}
    v_lshrrev_b32 v{vT0}, 3, v{vLane}
    v_and_b32 v{vT1}, 2, v{vT0}
    v_and_b32 v{vT2}, 7, v{vLane}
    v_xor_b32 v{vT1}, v{vT1}, v{vT2}
    v_lshlrev_b32 v{vT1}, 4, v{vT1}
    v_lshl_add_u32 v{vT0}, v{vT0}, 7, v{vT1}
    s_lshl_b32 s{sB}, s{sW}, 12
    s_xor_b32 s{sC}, s{sB}, 0x2000
    s_add_u32 s{sC}, s{sC}, 16384
    s_lshr_b32 s{sA}, s{sXcc}, 2
    s_lshr_b32 s{sD}, s{sW}, 1
    s_cmp_eq_u32 s{sA}, s{sD}
    s_cselect_b32 s{sB}, s{sB}, s{sC}
    v_add_u32 v{vaXg}, s{sB}, v{vT0}
    v_and_b32 v{vT0}, 7, v{vR16}
    v_lshrrev_b32 v{vT1}, 3, v{vR16}
    v_lshl_add_u32 v{vT1}, v{vT1}, 2, v{vQd}
    v_and_b32 v{vT2}, 2, v{vT0}
    v_xor_b32 v{vT1}, v{vT1}, v{vT2}
    v_lshlrev_b32 v{vT1}, 4, v{vT1}
    v_lshl_add_u32 v{vT0}, v{vT0}, 7, v{vT1}
    s_lshl_b32 s{sXI}, s{sW}, 12
    s_add_u32 s{sXI}, s{sXI}, {L_XI}
    v_add_u32 v{vaXr}, s{sXI}, v{vT0}
    v_lshlrev_b32 v{vaO0}, 4, v{vLane}
    v_add_u32 v{vaO1}, 16384, v{vaO0}
    v_lshl_add_u32 v{vT0}, v{vQd}, 2, v{vR16}
    v_and_b32 v{vT0}, 15, v{vT0}
    v_lshlrev_b32 v{vT0}, 4, v{vT0}
    s_mul_i32 s{sB}, s{sW}, 3840
    s_sub_u32 s{sB}, {O_STATS}, s{sB}
    v_add_u32 v{vaS0}, s{sB}, v{vT0}
    v_add_u32 v{vaS1}, 1024, v{vaS0}
    v_lshlrev_b32 v{vT0}, 6, v{vQd}
    v_lshl_add_u32 v{vaQ2}, v{h3}, 4, v{vT0}
    v_lshlrev_b32 v{vT0}, 10, v{ql}
    v_lshrrev_b32 v{vT1}, 3, v{vR16}
    v_lshl_add_u32 v{vT0}, v{vT1}, 6, v{vT0}
    v_and_b32 v{vT1}, 7, v{vR16}
    v_lshl_add_u32 v{vaStQ}, v{vT1}, 1, v{vT0}
    v_lshlrev_b32 v{vT0}, 12, v{h3}
    v_lshl_add_u32 v{vT0}, v{vQd}, 10, v{vT0}
    v_bfe_u32 v{vT1}, v{vLane}, 2, 2
    v_lshl_add_u32 v{vaClrO}, v{vT1}, 8, v{vT0}
    v_and_b32 v{vT0}, 1, v{vR16}
    v_lshlrev_b32 v{vT0}, 5, v{vT0}
    v_lshl_add_u32 v{vT0}, v{qh}, 6, v{vT0}
    v_lshl_add_u32 v{vT0}, v{ql}, 4, v{vT0}
    s_lshl_b32 s{sB}, s{sW}, 7
    v_add_u32 v{vaH}, s{sB}, v{vT0}
    v_lshlrev_b32 v{vT0}, 6, v{vQd}
    v_lshl_add_u32 v{vT0}, v{h3}, 4, v{vT0}
    v_add_u32 v{vaPr}, {L_PBUF}, v{vT0}
    v_lshrrev_b32 v{vT1}, 2, v{vR16}
    v_lshl_add_u32 v{vT1}, v{vT1}, 9, v{vaPr}
    s_lshr_b32 s{sB}, s{sW}, 1
    s_lshl_b32 s{sB}, s{sB}, 8
    s_and_b32 s{sC}, s{sW}, 1
    s_lshl_b32 s{sC}, s{sC}, 3
    s_add_u32 s{sB}, s{sB}, s{sC}
    v_add_u32 v{vaPw}, s{sB}, v{vT1}
    v_lshlrev_b32 v{vT0}, 4, v{h3}
    v_add_u32 v{vaSm}, {L_SMAX}, v{vT0}
    s_lshl_b32 s{sB}, s{sW}, 2
    v_add_u32 v{vaSmW}, s{sB}, v{vaSm}
    v_lshlrev_b32 v{vT0}, 4, v{vLane}
    v_add_u32 v{vaRedW}, s{sB}, v{vT0}
    v_and_b32 v{vT1}, 1, v{vR16}
    v_lshl_add_u32 v{vT1}, v{qh}, 1, v{vT1}
    v_lshlrev_b32 v{vT1}, 4, v{vT1}
    v_add_u32 v{vaRedZ}, s{sB}, v{vT1}
    v_lshl_add_u32 v{vT0}, v{ql}, 5, v{vR16}
    v_lshlrev_b32 v{vaFinW}, 4, v{vT0}
    v_lshlrev_b32 v{vaFinZ}, 5, v{ql}
    v_lshlrev_b32 v{vT0}, 9, v{ql}
    v_add_u32 v{vaFinQZ}, 256, v{vT0}
    v_lshlrev_b32 v{vaFinO}, 4, v{vLane}
    v_lshlrev_b32 v{vT0}, 5, v{ql}
    v_lshl_add_u32 v{vaStH}, v{vR16}, 1, v{vT0}
    v_lshlrev_b32 v{vT0}, 6, v{ql}
    v_lshl_add_u32 v{vT0}, v{qh}, 5, v{vT0}
    v_lshl_add_u32 v{vaStX}, v{vR16}, 1, v{vT0}
    v_lshlrev_b32 v{vT0}, 12, v{vR16}
    v_lshl_add_u32 v{vT0}, v{vQd}, 8, v{vT0}
    s_lshl_b32 s{sB}, s{sW}, 10
    v_add_u32 v{vaStO}, s{sB}, v{vT0}
    s_lshr_b32 s{sB}, s{sM}, 4
    s_mul_i32 s{sB}, s{sB}, 15360
    s_sub_u32 s{sB}, {O_STATS}, s{sB}
    v_lshlrev_b32 v{vT0}, 8, v{vLane}
    v_add_u32 v{vaStS}, s{sB}, v{vT0}
    """)
    a(f"s_lshl_b32 s{sB}, s{sW}, 14\ns_add_u32 s{sB}, s{sB}, {L_K}")
    for c in range(4):
        a(f"""
        v_add_u32 v{vT0}, {4*c}, v{vQd}
        v_xor_b32 v{vT0}, v{vT0}, v{vR16}
        v_lshlrev_b32 v{vT0}, 4, v{vT0}
        v_lshl_add_u32 v{vT0}, v{vR16}, 8, v{vT0}
        v_add_u32 v{vKr+c}, s{sB}, v{vT0}
        """)
    for e in range(2):
        a(f"""
        v_add_u32 v{vT1}, {4*e}, v{vQd}
        v_lshrrev_b32 v{vT2}, 1, v{vR16}
        v_xor_b32 v{vT1}, v{vT1}, v{vT2}
        v_lshlrev_b32 v{vT1}, 1, v{vT1}
        v_and_b32 v{vT2}, 1, v{vR16}
        v_or_b32 v{vT1}, v{vT1}, v{vT2}
        v_lshlrev_b32 v{vT1}, 4, v{vT1}
        v_lshl_add_u32 v{vVs+e}, v{vQd}, 8, v{vT1}
        """)
    for nt in range(2):
        a(f"""
        v_lshrrev_b32 v{vT1}, 2, v{vR16}
        v_lshl_add_u32 v{vT0}, v{vQd}, 2, v{vT1}
        v_and_b32 v{vT2}, 7, v{vT0}
        s_lshl_b32 s{sB}, s{sW}, 1
        s_add_u32 s{sB}, s{sB}, {nt}
        v_xor_b32 v{vT2}, s{sB}, v{vT2}
        v_lshlrev_b32 v{vT2}, 5, v{vT2}
        v_lshl_add_u32 v{vT0}, v{vT0}, 8, v{vT2}
        v_lshl_add_u32 v{vT0}, v{h3}, 3, v{vT0}
        v_add_u32 v{vVr+nt}, {L_V}, v{vT0}
        """)
    for i in range(16): a(f"v_mov_b32 v{XA+i}, 0")
    if cfg.w_inter:
        a(f"""
        s_cmp_lt_u32 s{sM}, 16
        s_cbranch_scc0 L_wsB
        v_lshrrev_b32 v{vT0}, 2, v{vLane}
        v_lshlrev_b32 v{vT0}, 10, v{vT0}
        v_and_b32 v{vT1}, 3, v{vLane}
        v_lshl_add_u32 v{vWs}, v{vT1}, 4, v{vT0}
        s_lshl_b32 s{sWb}, s{sJ}, 19
        s_lshl_b32 s{sC}, s{sW}, 17
        s_add_u32 s{sWb}, s{sWb}, s{sC}
        s_lshl_b32 s{sC}, s{sIdx}, 6
        s_add_u32 s{sWb}, s{sWb}, s{sC}
        s_mov_b32 s{sWst}, 16384
        s_mov_b32 s{sUP}, s{sW2}
        s_mov_b32 s{sUP+1}, s{sW2+1}
        s_mov_b32 s{sUP+2}, s{sW2+2}
        s_branch L_wsD
        L_wsB:
        v_lshrrev_b32 v{vT0}, 1, v{vLane}
        v_mul_u32_u24 v{vT0}, 3584, v{vT0}
        v_and_b32 v{vT1}, 1, v{vLane}
        v_lshl_add_u32 v{vWs}, v{vT1}, 4, v{vT0}
        s_mul_i32 s{sWb}, s{sW}, {128*3584}
        s_mul_i32 s{sC}, s{sJ}, 448
        s_add_u32 s{sWb}, s{sWb}, s{sC}
        s_lshl_b32 s{sC}, s{sIdx}, 5
        s_add_u32 s{sWb}, s{sWb}, s{sC}
        s_mov_b32 s{sWst}, {32*3584}
        L_wsD:
        """)
    rt_probe("setup")
    ts("setup")
    a(f"s_waitcnt vmcnt({4*cfg.nKb1 + nPFe})")
    ts("wq_landed")
    for t in range(cfg.nKb1, nKpA): k_page(t)

    def tr_base(dst, rowbytes, rowmul, sadd, const):
        sh = rowbytes.bit_length() - 1; rm = rowmul.bit_length() - 1
        a(f"""
        v_lshrrev_b32 v{vT1}, 2, v{vR16}
        v_lshl_add_u32 v{vT1}, v{vQd}, {rm}, v{vT1}
        v_lshlrev_b32 v{vT1}, {sh}, v{vT1}
        v_and_b32 v{vT2}, 3, v{vR16}
        v_lshl_add_u32 v{vT1}, v{vT2}, 3, v{vT1}
        v_add_u32 v{vT1}, s{sadd}, v{vT1}
        v_add_u32 v{dst}, {const}, v{vT1}
        """)

    def ln_stats(s1, s2, mean, rstd):
        a(f"""
        v_mul_f32 v{mean}, {f2u(1.0/512):#x}, v{s1}
        v_mul_f32 v{s2}, {f2u(1.0/512):#x}, v{s2}
        v_fma_f32 v{s2}, -v{mean}, v{mean}, v{s2}
        v_max_f32 v{s2}, 0, v{s2}
        v_add_f32 v{s2}, {f2u(1e-5):#x}, v{s2}
        v_rsq_f32 v{rstd}, v{s2}
        """)
    def sum4r(b):
        a(f"v_add_f32 v{b}, v{b}, v{b+1}\nv_add_f32 v{b+2}, v{b+2}, v{b+3}\nv_add_f32 v{b}, v{b}, v{b+2}")

    def stats_valu(z):
        L = [f"v_add_f32 v{z}, v{vAcc+8}, v{vAcc+9}", f"v_add_f32 v{vT3}, v{vAcc+10}, v{vAcc+11}", f"v_add_f32 v{z}, v{z}, v{vT3}",
             f"v_cndmask_b32 v{z}, 0, v{z}, s[{sMDIAG}:{sMDIAG+1}]"]
        for n in (8, 4, 2, 1):
            L.append(f"v_add_f32_dpp v{z}, v{z}, v{z} row_ror:{n} row_mask:0xf bank_mask:0xf")
        L += [f"v_add_f32 v{z+1}, v{vAcc+12}, v{vAcc+13}", f"v_add_f32 v{vT3}, v{vAcc+14}, v{vAcc+15}", f"v_add_f32 v{z+1}, v{z+1}, v{vT3}",
              f"v_cndmask_b32 v{z}, v{z+1}, v{z}, s[{sMN1}:{sMN1+1}]"]
        return L
    def stats_mf(X):
        return [mf(vAcc + 8, X + 4*u, X + 4*u, "0" if u == 0 else None) for u in range(4)] + \
               [mf(vAcc + 12, X + 4*u, vOnes, "0" if u == 0 else None) for u in range(4)]

    def q_core(X):
        M = stats_mf(X) + [mf(vAcc, X + 4*u, ar(aWq + 4*u, 4), "0" if u == 0 else None) for u in range(4)]
        interleave(M, stats_valu(vU), 8, 2)
        sum4(vU + 2, vAcc, vT3)
        a(f"""
        v_permlane16_swap_b32 v{vU+2}, v{vU}
        v_add_f32 v{vU}, v{vU}, v{vU+2}
        ds_write_b32 v{vaRedW}, v{vU} offset:{R_Q}
        s_waitcnt lgkmcnt(0)
        s_barrier
        """)
    def q_final(first):
        lab = a.label("qf")
        a(f"s_cmp_eq_u32 s{sW}, 0\ns_cbranch_scc0 {lab}")
        setexec(0xFFFFFFFF)
        a(f"""
        ds_read_b128 {vr(vU,4)}, v{vaFinW} offset:{R_Q}
        ds_read_b128 {vr(vU+4,4)}, v{vaFinQZ} offset:{R_Q}
        ds_read_b128 {vr(vU+8,4)}, v{vaFinQZ} offset:{R_Q+16}
        """)
        if first:
            a(f"ds_read_b128 {vr(vU+12,4)}, v{vaFinW} offset:{R_COL}")
        a("s_waitcnt lgkmcnt(0)")
        if first:
            sum4r(vU + 12); a(f"v_mov_b32 v{vCs}, v{vU+12}")
        sum4r(vU + 4); sum4r(vU + 8); sum4r(vU)
        ln_stats(vU + 4, vU + 8, vU + 5, vU + 6)
        a(f"""
        v_fma_f32 v{vU}, -v{vU+5}, v{vCs}, v{vU}
        v_mul_f32 v{vU}, v{vU}, v{vU+6}
        """)
        dpp("v_mov_b32", vU + 1, vU, None, "quad_perm:[1,0,3,2]")
        a(f"v_cvt_pk_bf16_f32 v{vU+2}, v{vU}, v{vU+1}")
        if first:
            a(f"""
            v_mov_b32 v{vQ1d}, v{vU+2}
            v_mov_b32 v{vQ1d+1}, s{sTX}
            s_lshl_b32 s{sB}, s{sJ}, 12
            s_lshl_b32 s{sC}, s{sM}, 7
            s_add_u32 s{sB}, s{sB}, s{sC}
            s_add_u32 s{sB}, s{sB}, {WS_Q1}
            v_lshlrev_b32 v{vT0}, 1, v{vaStH}
            v_add_u32 v{vQ1a}, s{sB}, v{vT0}
            """)
            setexec(0x55555555)
            a(f"buffer_store_dwordx2 {vr(vQ1d,2)}, v{vQ1a}, {sr(sWS,4)}, 0 offen" + (" sc1" if cfg.force_global else ""))
        else:
            a(f"v_min_u32 v{vU+2}, 0xfffffffe, v{vU+2}")
            setexec(0x55555555)
            store_local(f"buffer_store_dword v{vU+2}, v{vaStQ}, {sr(sWS,4)}, s{sQ2w} offen")
        setexec(FULL)
        a(f"{lab}:")

    def s_qk_max():
        for c in range(4):
            for t in range(4):
                mfma(vS + 4*t, ar(aK + 16*t + 4*c, 4), vQ + 4*c, "0" if c == 0 else None)
        for t in range(1, 4):
            for r in range(4):
                dpp("v_mov_b32", vS + r, vS + 4*t + r, None, f"row_shr:{4*t}", bm=f"0x{1<<t:x}")
        a(f"v_max3_f32 v{vU}, v{vS}, v{vS+1}, v{vS+2}\nv_max_f32 v{vU}, v{vU}, v{vS+3}")
        row_reduce("v_max_f32", vU, (8, 4))
        xquad_reduce("v_max_f32", vU, vT0)
        setexec(0xF)
        a(f"ds_write_b32 v{vaSmW}, v{vU}")
        setexec(FULL)
        a("s_waitcnt lgkmcnt(0)\ns_barrier")
    def s_exp_p():
        a(f"""
        ds_read_b128 {vr(vU+4,4)}, v{vaSm}
        s_mov_b32 s{sB}, {f2u(C_SCALE):#x}
        s_waitcnt lgkmcnt(0)
        v_max3_f32 v{vU}, v{vU+4}, v{vU+5}, v{vU+6}
        v_max_f32 v{vU}, v{vU}, v{vU+7}
        v_mul_f32 v{vMc}, s{sB}, v{vU}
        """)
        for i in range(4): a(f"v_fma_f32 v{vS+i}, v{vS+i}, s{sB}, -v{vMc}")
        for i in range(4): a(f"v_exp_f32 v{vS+i}, v{vS+i}")
        a(f"""
        v_cvt_pk_bf16_f32 v{vU+2}, v{vS}, v{vS+1}
        v_cvt_pk_bf16_f32 v{vU+3}, v{vS+2}, v{vS+3}
        ds_write_b64 v{vaPw}, {vr(vU+2,2)}
        v_add_f32 v{vU}, v{vS}, v{vS+1}
        v_add_f32 v{vU+1}, v{vS+2}, v{vS+3}
        v_add_f32 v{vU}, v{vU}, v{vU+1}
        """)
        row_reduce("v_add_f32", vU, (8, 4))
        xquad_reduce("v_add_f32", vU, vT0)
        setexec(0xF)
        a(f"ds_write_b32 v{vaSmW}, v{vU} offset:{L_LSUM-L_SMAX}")
        setexec(FULL)
        a("s_waitcnt lgkmcnt(0)\ns_barrier")
        for blk in range(8):
            a(f"ds_read_b128 {vr(vP+4*blk,4)}, v{vaPr} offset:{blk*256}")
    def s_stats_prep():
        lab = a.label("st")
        a(f"s_cmp_eq_u32 s{sW}, 3\ns_cbranch_scc0 {lab}")
        a(f"""
        ds_read_b128 {vr(vU+4,4)}, v{vaSm} offset:{L_LSUM-L_SMAX}
        s_add_u32 s{sB}, s{sT}, s{sL}
        s_add_u32 s{sB}, s{sB}, 1
        v_mov_b32 v{vMc+2}, s{sB}
        s_waitcnt lgkmcnt(0)
        """)
        sum4r(vU + 4)
        a(f"v_mov_b32 v{vMc+1}, v{vU+4}")
        a(f"{lab}:")
    def s_stats_store(wait):
        lab = a.label("ss")
        a(f"s_cmp_eq_u32 s{sW}, 3\ns_cbranch_scc0 {lab}")
        if wait is not None: a(f"s_waitcnt vmcnt({wait})")
        setexec(0xF)
        store_local(f"buffer_store_dwordx4 {vr(vMc,4)}, v{vaStS}, {sr(sWS,4)}, s{sOown} offen")
        setexec(FULL)
        a(f"{lab}:")
    accO = vAcc
    def v_tr(blk):
        t, p = blk >> 1, blk & 1
        for nt in range(2):
            a(f"ds_read_b64_tr_b16 {ar(aV+8*blk+4*nt,2)}, v{vVr+nt} offset:{(4*t+2*p)*4096}")
            a(f"ds_read_b64_tr_b16 {ar(aV+8*blk+4*nt+2,2)}, v{vVr+nt} offset:{(4*t+2*p+1)*4096}")
    def pv(blks, first):
        for blk in blks:
            for nt in range(2):
                mfma(accO + 4*nt, ar(aV + 8*blk + 4*nt, 4), vP + 4*blk, "0" if (first and blk == blks[0]) else None)
    def s_out():
        for i in range(4):
            a(f"v_cvt_pk_bf16_f32 v{vU+i}, v{accO+2*i}, v{accO+2*i+1}")
        for i in range(4):
            a(f"v_min_u32 v{vU+i}, 0xfffffffe, v{vU+i}")
        setexec(EM4)
        store_local(f"buffer_store_dwordx4 {vr(vU,4)}, v{vaStO}, {sr(sWS,4)}, s{sOown} offen")
        setexec(FULL)

    a(f"s_lshl_b32 s{sB}, s{sW}, 12")
    tr_base(vT0, 32, 8, sB, L_WQ)
    for u in range(4):
        a(f"ds_read_b64_tr_b16 {ar(aWq+4*u,2)}, v{vT0} offset:{u*1024}")
        a(f"ds_read_b64_tr_b16 {ar(aWq+4*u+2,2)}, v{vT0} offset:{u*1024+128}")
    a(f"""
    v_lshrrev_b32 v{vT0}, 3, v{vR16}
    v_lshlrev_b32 v{vT0}, 10, v{vT0}
    v_lshl_add_u32 v{vT0}, v{vQd}, 4, v{vT0}
    s_lshl_b32 s{sB}, s{sW}, 8
    v_add_u32 v{vT0}, s{sB}, v{vT0}
    s_barrier
    """)
    setexec(0x0101010101010101)
    for u in range(4):
        a(f"ds_read_b128 {vr(XA+4*u,4)}, v{vT0} offset:{L_X0+u*64}")
    setexec(FULL)
    a(f"""
    s_waitcnt lgkmcnt(0)
    s_add_u32 s{sT}, s{sT}, 0x9e3779b0
    s_and_b32 s{sT}, s{sT}, 0xfffffff0
    s_or_b32 s{sTX}, s{sT}, s{sXcc}
    """)
    for u in range(4): mfma(vS, vOnes, ar(aWq + 4*u, 4), "0" if u == 0 else None)
    a(f"ds_write_b32 v{vaRedW}, v{vS} offset:{R_COL}")
    q_core(XA)
    q_final(True)
    a("s_barrier")
    rt_probe("q1_pub")
    ts("q1_pub")

    def v_group(t):
        page_off(t, sD)
        a(f"s_lshl_b32 s{sC}, s{sW}, 12\ns_add_u32 s{sC}, s{sC}, {L_V + t*16384}\ns_mov_b32 m0, s{sC}\ns_nop 0")
        for ii in range(4):
            a(f"buffer_load_dwordx4 v{vVs+(ii&1)}, {sr(sVS,4)}, s{sD} offen offset:{ii*1024}{cfg.kv_pol} lds")
    def pace():
        if cfg.pace_lo is None:
            a(f"s_waitcnt vmcnt({cfg.pace})"); return
        l1 = a.label("pc"); l2 = a.label("pc")
        a(f"s_cmp_lt_u32 s{sXcc}, 4\ns_cbranch_scc1 {l1}\ns_waitcnt vmcnt({cfg.pace})\ns_branch {l2}\n{l1}:\ns_waitcnt vmcnt({cfg.pace_lo})\n{l2}:")
    def w_part(part, lo, hi):
        if not cfg.w_inter: return
        lab = a.label("wp")
        lim = 30
        if (part == 0 and "g" not in cfg.w_interB) or (part == 1 and "u" not in cfg.w_interB): lim = 16
        a(f"s_cmp_ge_u32 s{sM}, {lim}\ns_cbranch_scc1 {lab}")
        for u in range(lo, hi):
            if part == 0:
                a(f"s_mul_i32 s{sB}, s{sWst}, {u}\ns_add_u32 s{sB}, s{sB}, s{sWb}")
                a(f"s_lshl_b32 s{sC}, s{sW}, 12\ns_add_u32 s{sC}, s{sC}, {L_WQ + u*1024}")
            else:
                a(f"s_cmp_lt_u32 s{sM}, 16\ns_cselect_b32 s{sB}, {4+u}, {u}\ns_mul_i32 s{sB}, s{sB}, s{sWst}\ns_add_u32 s{sB}, s{sB}, s{sWb}")
                a(f"s_lshl_b32 s{sC}, s{sW}, 14\ns_add_u32 s{sC}, s{sC}, {L_K + u*1024}")
            a(f"s_mov_b32 m0, s{sC}\ns_nop 0")
            a(f"buffer_load_dwordx4 v{vWs}, {sr(sW2 if part == 0 else sUP,4)}, s{sB} offen{SLN} lds")
        a(f"{lab}:")
    for t in range(nKpA, 4):
        pace()
        if t == 3: w_part(0, 0, 4)
        k_page(t)
    a(f"""
    v_lshrrev_b32 v{vT0}, 2, v{vLane}
    v_lshlrev_b32 v{vT0}, 7, v{vT0}
    v_and_b32 v{vT1}, 3, v{vLane}
    v_lshl_add_u32 v{vKs}, v{vT1}, 4, v{vT0}        ; (vKs is free once K is issued)
    s_lshl_b32 s{sA}, s{sJ}, 12
    s_lshr_b32 s{sB}, s{sM}, 4
    s_lshl_b32 s{sB}, s{sB}, 6
    s_add_u32 s{sA}, s{sA}, s{sB}
    s_add_u32 s{sA}, s{sA}, {WS_Q1}
    v_and_b32 v{vT0}, 3, v{vR16}
    v_lshlrev_b32 v{vT0}, 9, v{vT0}
    v_lshrrev_b32 v{vT1}, 1, v{vQd}
    v_lshl_add_u32 v{vT0}, v{vT1}, 6, v{vT0}
    v_and_b32 v{vT1}, 1, v{vQd}
    v_lshl_add_u32 v{vKs+1}, v{vT1}, 5, v{vT0}
    v_lshlrev_b32 v{vKs+2}, 5, v{vLane}
    """)
    def q1_dma(img):
        a(f"""
        s_mov_b32 m0, {L_QG + img*2048}
        s_add_u32 s{sB}, s{sA}, 2048
        buffer_load_dwordx4 v{vKs}, {sr(sWS,4)}, s{sA} offen sc1 lds
        s_mov_b32 m0, {L_QG + img*2048 + 1024}
        s_nop 0
        buffer_load_dwordx4 v{vKs}, {sr(sWS,4)}, s{sB} offen sc1 lds
        """)
    def w0(fn):
        lab = a.label("w0")
        a(f"s_cmp_eq_u32 s{sW}, 0\ns_cbranch_scc0 {lab}")
        fn()
        a(f"{lab}:")
    def q1_dup():
        setexec(0x55555555)
        a(f"buffer_store_dwordx2 {vr(vQ1d,2)}, v{vQ1a}, {sr(sWS,4)}, 0 offen sc1")
        setexec(FULL)
    g.q1_dup = lambda: w0(q1_dup)
    vG = vA
    def q1_tags(img):
        a(f"""
        ds_read_b128 {vr(vG,4)}, v{vKs+2} offset:{L_QG + img*2048}
        ds_read_b128 {vr(vG+4,4)}, v{vKs+2} offset:{L_QG + img*2048 + 16}
        s_waitcnt lgkmcnt(0)
        v_xor_b32 v{vT1}, s{sTX}, v{vG+1}
        v_xor_b32 v{vT2}, s{sTX}, v{vG+3}
        v_xor_b32 v{vT3}, s{sTX}, v{vG+5}
        v_xor_b32 v{vT0}, s{sTX}, v{vG+7}
        v_or3_b32 v{vT1}, v{vT1}, v{vT2}, v{vT3}
        v_or_b32 v{vT1}, v{vT1}, v{vT0}
        v_cmp_lt_u32 vcc, 15, v{vT1}
        """)
    def early_tail():
        lab = a.label("c0")
        a(f"""
        s_cmp_eq_u32 s{sW}, 3
        s_cbranch_scc0 {lab}
        v_mov_b32 v{vU+8}, -1
        v_mov_b32 v{vU+9}, -1
        v_mov_b32 v{vU+10}, -1
        v_mov_b32 v{vU+11}, -1
        """)
        store_local(f"buffer_store_dwordx4 {vr(vU+8,4)}, v{vaClrO}, {sr(sWS,4)}, s{sOown} offen")
        a(f"{lab}:")
        if cfg.warm:
            lab = a.label("ws")
            a(f"s_cmp_lt_u32 s{sM}, 16\ns_cbranch_scc0 {lab}")
            a(f"buffer_load_dword v{vJ}, v{vaS0}, {sr(sWS,4)}, s{sOcons} offen sc1")
            a(f"buffer_load_dword v{vJ}, v{vaS1}, {sr(sWS,4)}, s{sOcons} offen sc1")
            a(f"{lab}:")
        v_group(3)
    g.early_tail = early_tail
    def locality():
        a(f"""
        v_cmp_ne_u32 vcc, 0, v{vT1}
        s_cmp_eq_u64 vcc, 0
        s_cselect_b32 s{sLocal}, 1, 0
        """)
    if cfg.g_early:
        assert not cfg.w_inter and not cfg.v3_early and cfg.pf_pos in (None, 2)
        a(f"s_mov_b32 s{sEarly}, 0")
        w0(lambda: q1_dma(2))
    pace()
    if cfg.pf_stream and cfg.pf_pos == 0: emit_wpf(sKS2, sWQ, True)
    v_group(0)
    a("s_waitcnt vmcnt(4)")
    for t in range(4):
        for c in range(4):
            a(f"ds_read_b128 {ar(aK+16*t+4*c,4)}, v{vKr+c} offset:{t*4096}")
    ts("k_landed")
    if cfg.g_early:
        a("s_barrier")
        q1_tags(2)
        a("s_cbranch_vccnz L_noearly")
        locality()
        a(f"s_mov_b32 s{sEarly}, 1")
        v_group(1)
        if cfg.gE_mode >= 1:
            if cfg.pf_stream and cfg.pf_pos == 2: emit_wpf(sKS, sWQ, True)
            v_group(2)
        if cfg.gE_mode >= 2:
            g.early_tail()
        a(f"s_mov_b32 s{sC}, {L_QG + 2*2048}\ns_branch L_q1ok2\nL_noearly:")
        cnt("gEfail")
    w0(lambda: q1_dma(0))
    if cfg.pf_stream and cfg.pf_pos == 1: emit_wpf(sKS, sWQ, True)
    v_group(1)
    a("s_waitcnt vmcnt(4)")
    ts("v0_landed")
    if cfg.pf_stream and cfg.pf_pos == 2: emit_wpf(sKS, sWQ, True)
    if cfg.w_inter:
        a("s_waitcnt lgkmcnt(0)")
        w_part(1, 0, 2)
    def warm_stats0():
        if cfg.warm:
            lab = a.label("ws")
            a(f"s_cmp_lt_u32 s{sM}, 16\ns_cbranch_scc0 {lab}")
            a(f"buffer_load_dword v{vJ}, v{vaS0}, {sr(sWS,4)}, s{sOcons} offen sc1")
            a(f"buffer_load_dword v{vJ}, v{vaS1}, {sr(sWS,4)}, s{sOcons} offen sc1")
            a(f"{lab}:")
    if cfg.v3_early: warm_stats0()
    v_group(2)
    if cfg.v3_early:
        assert not cfg.w_inter
        v_group(3)
    def _o0():
        lab = a.label("c0")
        a(f"""
        s_cmp_eq_u32 s{sW}, 3
        s_cbranch_scc0 {lab}
        v_mov_b32 v{vU+8}, -1
        v_mov_b32 v{vU+9}, -1
        v_mov_b32 v{vU+10}, -1
        v_mov_b32 v{vU+11}, -1
        """)
        store_local(f"buffer_store_dwordx4 {vr(vU+8,4)}, v{vaClrO}, {sr(sWS,4)}, s{sOown} offen")
        a(f"{lab}:")
    g.o0_clear_hook = _o0
    a("s_barrier")
    q1_tags(0)
    a(f"s_mov_b32 s{sC}, {L_QG}\ns_cbranch_vccz L_q1ok")
    cnt("g0fail")
    w0(lambda: (q1_dma(1), a("s_waitcnt vmcnt(0)")))
    a("s_barrier")
    q1_tags(1)
    a(f"s_mov_b32 s{sC}, {L_QG + 2048}\ns_cbranch_vccz L_q1ok")
    a("L_q1retry:")
    cnt("g1fail")
    a(f"s_sub_u32 s{sBud}, s{sBud}, 1\ns_cbranch_scc1 L_abort\ns_barrier")
    w0(lambda: (q1_dup(), q1_dma(0), a("s_waitcnt vmcnt(0)")))
    a("s_barrier")
    q1_tags(0)
    a(f"s_mov_b32 s{sC}, {L_QG}\ns_cbranch_vccnz L_q1retry")
    a("L_q1ok:")
    locality()
    a("L_q1ok2:")
    a(f"v_add_u32 v{vT0}, s{sC}, v{vKs+1}")
    if cfg.v3_early: g.o0_clear_hook()
    setexec(EM4)
    for c in range(4):
        a(f"ds_read2_b32 {vr(vQ+4*c,2)}, v{vT0} offset0:{c*32} offset1:{c*32+2}")
        a(f"ds_read2_b32 {vr(vQ+4*c+2,2)}, v{vT0} offset0:{c*32+4} offset1:{c*32+6}")
    setexec(FULL)
    lab = a.label("nl")
    a(f"s_cmp_eq_u32 s{sLocal}, 0\ns_cbranch_scc0 {lab}")
    g.q1_dup()
    a(f"{lab}:")
    a("s_waitcnt lgkmcnt(0)")
    rt_probe("q1_got")
    ts("q1_got")
    s_qk_max()
    ts("s1_max")
    def o0_clear():
        lab = a.label("c0")
        a(f"""
        s_cmp_eq_u32 s{sW}, 3
        s_cbranch_scc0 {lab}
        v_mov_b32 v{vU+8}, -1
        v_mov_b32 v{vU+9}, -1
        v_mov_b32 v{vU+10}, -1
        v_mov_b32 v{vU+11}, -1
        """)
        store_local(f"buffer_store_dwordx4 {vr(vU+8,4)}, v{vaClrO}, {sr(sWS,4)}, s{sOown} offen")
        a(f"{lab}:")
    if cfg.g_early and cfg.gE_mode == 1:
        a("s_waitcnt vmcnt(4)")
        early_tail()
    elif cfg.g_early:
        lE = a.label("mE"); lD = a.label("mD")
        a(f"s_cmp_eq_u32 s{sEarly}, 1\ns_cbranch_scc1 {lE}")
        a("s_waitcnt vmcnt(4)")
        early_tail()
        a(f"s_branch {lD}\n{lE}:")
        if cfg.gE_mode == 0:
            a("s_waitcnt vmcnt(4)")
            o0_clear()
            warm_stats0()
            if cfg.pf_stream and cfg.pf_pos == 2: emit_wpf(sKS, sWQ, True)
            v_group(2)
            v_group(3)
        a("s_waitcnt vmcnt(8)")
        a(f"{lD}:")
    elif not cfg.v3_early:
        a("s_waitcnt vmcnt(4)")
        o0_clear()
        warm_stats0()
        w_part(1, 2, 4)
        v_group(3)
    else:
        a("s_waitcnt vmcnt(8)")
    nPF = emit_wpf(sKS, sWQ, True) if (cfg.pf_stream and not cfg.pf_early and cfg.pf_pos is None) else 0

    def s1_tail(nW=0, maybe_none=False):
        def wait_v(base):
            if nW and maybe_none:
                l1 = a.label("wv"); l2 = a.label("wv")
                a(f"s_cmp_ge_u32 s{sIdx}, 14\ns_cbranch_scc1 {l1}\ns_waitcnt vmcnt({base + nW})\ns_branch {l2}\n{l1}:\ns_waitcnt vmcnt({base})\n{l2}:")
            else:
                a(f"s_waitcnt vmcnt({base + nW})")
        s_exp_p()
        s_stats_prep()
        blks = [0, 1, 2, 3]
        for blk in blks: v_tr(blk)
        a("s_waitcnt lgkmcnt(0)")
        pv(blks, True)
        for t in (2, 3):
            if t == 3 and cfg.v3_early:
                l3 = a.label("v3"); l4 = a.label("v4")
                a(f"s_cmp_eq_u32 s{sW}, 3\ns_cbranch_scc1 {l3}\ns_waitcnt vmcnt({nW})\ns_branch {l4}\n{l3}:\ns_waitcnt vmcnt({nW + 1})\n{l4}:")
            else:
                wait_v(4*(3-t))
            a("s_barrier")
            if t == 3: ts("v_landed")
            blks = [2*t, 2*t + 1]
            for blk in blks: v_tr(blk)
            a("s_waitcnt lgkmcnt(0)")
            pv(blks, False)
        s_out()
        s_stats_store(1 if cfg.v3_early else None)
        lab = a.label("c1")
        a(f"""
        s_cmp_eq_u32 s{sW}, 0
        s_cbranch_scc0 {lab}
        v_mov_b32 v{vU+8}, -1
        v_mov_b32 v{vU+9}, -1
        v_mov_b32 v{vU+10}, -1
        v_mov_b32 v{vU+11}, -1
        s_add_u32 s{sB}, s{sOown}, {O_L}
        """)
        store_local(f"buffer_store_dwordx4 {vr(vU+8,4)}, v{vaClrO}, {sr(sWS,4)}, s{sB} offen")
        q1_dup()
        a(f"{lab}:")
        rt_probe("s1_pub")
        ts("s1_pub")

    def x_poll(sbase, dst, sleep):
        l = a.label("xp"); ok = a.label("xok")
        if cfg.sleep_x0: a(f"s_sleep {cfg.sleep_x0}")
        a(f"s_mov_b32 m0, s{sXI}")
        a(f"{l}:")
        cnt("n_x")
        for u in range(4):
            a(f"buffer_load_dwordx4 v{vaXg}, {sr(sWS,4)}, s{sbase} offen offset:{u*1024} sc1 lds")
        for u in range(4):
            a(f"s_waitcnt vmcnt({3-u})")
            a(f"ds_read_b128 {vr(dst+4*u,4)}, v{vaXr} offset:{u*1024}")
        a(f"s_waitcnt lgkmcnt(3)\nv_max3_u32 v{vT0}, v{dst}, v{dst+1}, v{dst+2}")
        a(f"s_waitcnt lgkmcnt(2)\nv_max3_u32 v{vT0}, v{vT0}, v{dst+3}, v{dst+4}\nv_max3_u32 v{vT0}, v{vT0}, v{dst+5}, v{dst+6}")
        a(f"s_waitcnt lgkmcnt(1)\nv_max3_u32 v{vT0}, v{vT0}, v{dst+7}, v{dst+8}\nv_max3_u32 v{vT0}, v{vT0}, v{dst+9}, v{dst+10}")
        a(f"s_waitcnt lgkmcnt(0)\nv_max3_u32 v{vT0}, v{vT0}, v{dst+11}, v{dst+12}\nv_max3_u32 v{vT0}, v{vT0}, v{dst+13}, v{dst+14}\nv_max_u32 v{vT0}, v{vT0}, v{dst+15}")
        a(f"v_cmp_eq_u32 vcc, -1, v{vT0}\ns_cbranch_vccz {ok}")
        spin_fail(l, sleep)
        a(f"{ok}:")

    def warm_q2():
        if not cfg.warm: return
        a(f"s_lshl_b32 s{sB}, s{sJ}, 11\ns_add_u32 s{sB}, s{sB}, {WS_Q2}\nv_lshlrev_b32 v{vT0}, 7, v{vLane}")
        setexec(0xFFFF)
        a(f"buffer_load_dword v{vJ}, v{vT0}, {sr(sWS,4)}, s{sB} offen sc1")
        setexec(FULL)
    def warm_o(dl, data=True):
        if not cfg.warm: return
        a(f"s_add_u32 s{sB}, s{sOcons}, {dl*O_L}")
        if data:
            a(f"""
            v_and_b32 v{vT0}, 31, v{vLane}
            v_lshlrev_b32 v{vT0}, 7, v{vT0}
            v_lshrrev_b32 v{vT1}, 5, v{vLane}
            v_lshl_add_u32 v{vT0}, v{vT1}, 14, v{vT0}
            buffer_load_dword v{vJ}, v{vT0}, {sr(sWS,4)}, s{sB} offen sc1
            """)
        a(f"buffer_load_dword v{vJ}, v{vaS0}, {sr(sWS,4)}, s{sB} offen sc1")
        a(f"buffer_load_dword v{vJ}, v{vaS1}, {sr(sWS,4)}, s{sB} offen sc1")

    def tag_issue():
        a(f"""
        s_lshl_b32 s{sA}, s{sW}, 13
        s_add_u32 s{sA}, s{sA}, {WS_Q1+4}
        v_lshlrev_b32 v{vTg}, 7, v{vLane}
        buffer_load_dword v{vTg+1}, v{vTg}, {sr(sWS,4)}, s{sA} offen sc1
        """)
    def tag_finish():
        l = a.label("tc"); ok = a.label("tcok")
        a(f"""
        s_lshl_b32 s{sA}, s{sW}, 13
        s_add_u32 s{sA}, s{sA}, {WS_Q1+4}
        {l}:
        s_waitcnt vmcnt(0)
        v_xor_b32 v{vTg+1}, s{sT}, v{vTg+1}
        v_cmp_lt_u32 vcc, 15, v{vTg+1}
        s_cbranch_vccz {ok}
        s_sleep 2
        buffer_load_dword v{vTg+1}, v{vTg}, {sr(sWS,4)}, s{sA} offen sc1
        """)
        spin_fail(l)
        a(f"{ok}:")
    def tag_check_all():
        tag_issue(); tag_finish()

    def line_final(red):
        if cfg.doorbell and cfg.db_early:
            a(f"v_mov_b32 v{vT0}, 0\nv_mov_b32 v{vT1}, s{sDBtag}\ns_mov_b64 exec, 1")
            store_local(f"buffer_store_dword v{vT1}, v{vT0}, {sr(sWS,4)}, s{sDBw} offen")
            a("s_mov_b64 exec, -1")
        a(f"""
        ds_read_b128 {vr(vU,4)}, v{vaFinO} offset:{red}
        v_mov_b32 v{vT0}, 0
        v_mov_b32 v{vT1}, s{sDBtag}
        s_waitcnt lgkmcnt(0)
        v_add_f32 v{vU}, v{vU}, v{vU+1}
        v_add_f32 v{vU+2}, v{vU+2}, v{vU+3}
        v_add_f32 v{vU}, v{vU}, v{vResF}
        v_add_f32 v{vResF}, v{vU}, v{vU+2}
        """)
        dpp("v_mov_b32", vU + 1, vResF, None, "quad_perm:[1,0,3,2]")
        a(f"v_cvt_pk_bf16_f32 v{vU}, v{vResF}, v{vU+1}\nv_min_u32 v{vU}, 0xfffffffe, v{vU}")
        if cfg.doorbell and not cfg.db_early:
            a("s_mov_b64 exec, 1")
            store_local(f"buffer_store_dword v{vT1}, v{vT0}, {sr(sWS,4)}, s{sDBw} offen")
        a(f"s_xor_b32 s{sB}, s{sXw}, 0x2000\ns_add_u32 s{sB}, s{sB}, 16384")
        setexec(EMEV)
        a(f"buffer_store_dword v{vU}, v{vaStX}, {sr(sWS,4)}, s{sXw} offen sc1")
        a(f"buffer_store_dword v{vU}, v{vaStX}, {sr(sWS,4)}, s{sB} offen sc1")
        setexec(FULL)
    def advance_hop():
        a(f"s_add_u32 s{sXw}, s{sXw}, {X_HOP}\ns_add_u32 s{sDBw}, s{sDBw}, 1024\ns_add_u32 s{sDBtag}, s{sDBtag}, 1")

    def db_setup(hop_w, hop_r):
        a(f"""
        s_lshl_b32 s{sDBr}, s{sJ}, 7
        s_add_u32 s{sDBr}, s{sDBr}, {WS_DB}
        s_lshl_b32 s{sDBw}, s{sIdx}, 2
        s_add_u32 s{sDBw}, s{sDBw}, s{sDBr}
        s_add_u32 s{sDBw}, s{sDBw}, {hop_w*1024}
        s_add_u32 s{sDBtag}, s{sT}, {8+hop_w}
        """)
    def db_wait(hop_off_s, tag_add_s=None, const_hop=None):
        if not cfg.doorbell: return
        l = a.label("db"); ok = a.label("dbok")
        if const_hop is not None:
            a(f"s_add_u32 s{sA}, s{sDBr}, {const_hop*1024}\ns_add_u32 s{sC}, s{sT}, {8+const_hop}")
        else:
            a(f"s_lshl_b32 s{sA}, s{sL}, 11\ns_add_u32 s{sA}, s{sA}, s{sDBr}\ns_add_u32 s{sA}, s{sA}, {hop_off_s*1024}")
            a(f"s_lshl_b32 s{sC}, s{sL}, 1\ns_add_u32 s{sC}, s{sC}, s{sT}\ns_add_u32 s{sC}, s{sC}, {8+hop_off_s}")
        a(f"v_lshlrev_b32 v{vT0}, 2, v{vLane}")
        setexec(0xFFFF)
        if cfg.db_pipe:
            a(f"""
            buffer_load_dword v{vT1}, v{vT0}, {sr(sWS,4)}, s{sA} offen sc1
            s_nop 15
            s_nop 11
            buffer_load_dword v{vT2}, v{vT0}, {sr(sWS,4)}, s{sA} offen sc1
            {l}:
            s_waitcnt vmcnt(1)
            v_cmp_ne_u32 vcc, s{sC}, v{vT1}
            s_cbranch_vccz {ok}
            buffer_load_dword v{vT1}, v{vT0}, {sr(sWS,4)}, s{sA} offen sc1
            s_waitcnt vmcnt(1)
            v_cmp_ne_u32 vcc, s{sC}, v{vT2}
            s_cbranch_vccz {ok}
            buffer_load_dword v{vT2}, v{vT0}, {sr(sWS,4)}, s{sA} offen sc1
            """)
        else:
            a(f"""
            {l}:
            buffer_load_dword v{vT1}, v{vT0}, {sr(sWS,4)}, s{sA} offen sc1
            s_waitcnt vmcnt(0)
            v_cmp_ne_u32 vcc, s{sC}, v{vT1}
            s_cbranch_vccz {ok}
            """)
        spin_fail(l)
        a(f"{ok}:")
        setexec(FULL)

    def o_stats_poll():
        l = a.label("os"); ok = a.label("osok")
        a(f"s_add_u32 s{sA}, s{sT}, s{sL}\ns_add_u32 s{sA}, s{sA}, 1")
        a(f"{l}:")
        cnt("n_ostat")
        a(f"buffer_load_dwordx3 {vr(vSt,3)}, v{vaS0}, {sr(sWS,4)}, s{sOcons} offen sc1")
        a(f"buffer_load_dwordx3 {vr(vSt+4,3)}, v{vaS1}, {sr(sWS,4)}, s{sOcons} offen sc1")
        a("s_waitcnt vmcnt(0)")
        a(f"""
        v_xor_b32 v{vT0}, s{sA}, v{vSt+2}
        v_xor_b32 v{vT1}, s{sA}, v{vSt+6}
        v_or_b32 v{vT0}, v{vT0}, v{vT1}
        v_cmp_ne_u32 vcc, 0, v{vT0}
        s_cbranch_vccz {ok}
        """)
        spin_fail(l, cfg.sleep_o)
        a(f"{ok}:")
        ts_dyn("o_st0", "o_st1")

    def o_phase():
        OA = vA
        o_stats_poll()
        l2 = a.label("op"); ok2 = a.label("ook")
        a(f"L_heavy:\n{l2}:")
        cnt("n_oheavy")
        for b in range(2):
            for c in range(4):
                a(f"buffer_load_dwordx4 {vr(OA+16*b+4*c,4)}, v{vaO0+b}, {sr(sWS,4)}, s{sOcons} offen offset:{c*1024} sc1")
        for b in range(2):
            a(f"v_mov_b32 v{vU+b}, v{vSt+4*b}")
        for n in (8, 4, 2, 1):
            for b in range(2): dpp("v_max_f32", vU + b, vU + b, vU + b, f"row_ror:{n}")
        for b in range(2): a(f"v_sub_f32 v{vU+b}, v{vSt+4*b}, v{vU+b}")
        for b in range(2): a(f"v_exp_f32 v{vU+b}, v{vU+b}")
        for b in range(2): a(f"v_mul_f32 v{vU+2+b}, v{vU+b}, v{vSt+4*b+1}")
        for n in (8, 4, 2, 1):
            for b in range(2): dpp("v_add_f32", vU + 2 + b, vU + 2 + b, vU + 2 + b, f"row_ror:{n}")
        for b in range(2): a(f"v_rcp_f32 v{vU+2+b}, v{vU+2+b}")
        for b in range(2): a(f"v_mul_f32 v{vW+b}, v{vU+b}, v{vU+2+b}")
        a(f"v_mov_b32 v{vT0}, 0")
        if cfg.diag and cfg.ts_only and "o_w0" in cfg.ts_only:
            ts_dyn("o_w0", "o_w1")
            a("s_waitcnt vmcnt(7)")
            ts_dyn("o_f0", "o_f1")
        def wsum(b, nt, r):
            t = vU + 4 + 2*b + nt; acc = vAcc + 8*b + 4*nt
            op = "v_mul_f32" if r == 0 else "v_fmac_f32"
            return f"{op}_dpp v{t}, v{vW+b}, v{acc+r} row_newbcast:{r} row_mask:0xf bank_mask:0xf"
        b0 = [wsum(0, nt, r) for r in range(4) for nt in range(2)]
        for i in range(8):
            b, c = i >> 2, i & 3
            r = OA + 16*b + 4*c
            a(f"s_waitcnt vmcnt({7-i})")
            for nt in range(2):
                mfma(vAcc + 8*b + 4*nt, r, ar(aW2 + 8*c + 4*nt, 4), "0" if c == 0 else None)
            a(f"v_max3_u32 v{vT0}, v{vT0}, v{r}, v{r+1}")
            if i >= 5:
                for _ in range(2 if i < 7 else 4):
                    if b0 and (i > 5 or True): a(b0.pop(0))
            a(f"v_max3_u32 v{vT0}, v{vT0}, v{r+2}, v{r+3}")
        for x in b0: a(x)
        a(f"v_cmp_eq_u32 vcc, -1, v{vT0}\ns_cbranch_vccz {ok2}")
        spin_fail(l2)
        a(f"{ok2}:")
        ts_dyn("o_got0", "o_got1")
        for r in range(4):
            for nt in range(2): a(wsum(1, nt, r))
        a(f"""
        v_permlane32_swap_b32 v{vU+4}, v{vU+5}
        v_permlane32_swap_b32 v{vU+6}, v{vU+7}
        v_add_f32 v{vU+4}, v{vU+4}, v{vU+5}
        v_add_f32 v{vU+6}, v{vU+6}, v{vU+7}
        v_permlane16_swap_b32 v{vU+4}, v{vU+6}
        v_add_f32 v{vU}, v{vU+4}, v{vU+6}
        ds_write_b32 v{vaRedW}, v{vU} offset:{R_O}
        s_waitcnt lgkmcnt(0)
        s_barrier
        """)
        lab = a.label("of")
        a(f"s_cmp_eq_u32 s{sW}, 0\ns_cbranch_scc0 {lab}")
        line_final(R_O)
        a(f"{lab}:")
        advance_hop()
        ts_dyn("o_pub0", "o_pub1")

    def g_phase():
        X = vA
        if cfg.db_g: db_wait(0)
        if cfg.diag and cfg.ts_only and "g_db0" in cfg.ts_only: ts_dyn("g_db0", "g_db1")
        x_poll(sXr, X, cfg.sleep_x)
        ts_dyn("g_got0", "g_got1")
        M = stats_mf(X)
        for u in range(4):
            M.append(mf(vAcc, X + 4*u, ar(aW2 + 8*u, 4), "0" if u == 0 else None))
            M.append(mf(vAcc + 4, X + 4*u, ar(aW2 + 8*u + 4, 4), "0" if u == 0 else None))
        V = stats_valu(vU) + [f"v_mov_b32 v{vU+1}, v{vU}", f"v_permlane16_swap_b32 v{vU}, v{vU+1}", f"v_add_f32 v{vU}, v{vU}, v{vU+1}"]
        interleave(M, V, 8, 2)
        setexec("s[%d:%d]" % (sM2, sM2 + 1))
        a(f"ds_write_b32 v{vaRedZ}, v{vU} offset:{R_GZ}")
        setexec(FULL)
        sum4(vU + 2, vAcc, vT3)
        sum4(vU + 3, vAcc + 4, vT3)
        a(f"""
        v_permlane16_swap_b32 v{vU+2}, v{vU+3}
        v_add_f32 v{vU+2}, v{vU+2}, v{vU+3}
        ds_write_b32 v{vaRedW}, v{vU+2} offset:{R_G}
        s_waitcnt lgkmcnt(0)
        s_barrier
        """)
        lab = a.label("gf")
        a(f"s_cmp_eq_u32 s{sW}, 0\ns_cbranch_scc0 {lab}")
        setexec(0xFFFFFFFF)
        a(f"""
        ds_read_b128 {vr(vU+8,4)}, v{vaFinZ} offset:{R_GZ}
        ds_read_b128 {vr(vU+12,4)}, v{vaFinZ} offset:{R_GZ+16}
        ds_read_b128 {vr(vU,4)}, v{vaFinW} offset:{R_G}
        ds_read_b128 {vr(vU+4,4)}, v{vaFinW} offset:{R_G+256}
        s_lshl_b32 s{sB}, s{sIdx}, 6
        s_add_u32 s{sB}, s{sB}, s{sHb}
        s_waitcnt lgkmcnt(2)
        """)
        sum4r(vU + 8); sum4r(vU + 12)
        ln_stats(vU + 8, vU + 12, vU + 9, vU + 10)
        a("s_waitcnt lgkmcnt(0)")
        sum4r(vU); sum4r(vU + 4)
        a(f"""
        v_fma_f32 v{vU}, -v{vU+9}, v{vCg}, v{vU}
        v_fma_f32 v{vU+4}, -v{vU+9}, v{vCu}, v{vU+4}
        v_mul_f32 v{vU+1}, {f2u(-1.4426950408889634):#x}, v{vU+10}
        v_mul_f32 v{vU}, v{vU}, v{vU+1}
        v_exp_f32 v{vU}, v{vU}
        v_mul_f32 v{vU+4}, v{vU+4}, v{vU+10}
        v_add_f32 v{vU}, 1.0, v{vU}
        v_rcp_f32 v{vU}, v{vU}
        s_nop 0
        v_mul_f32 v{vU}, v{vU}, v{vU+4}
        """)
        dpp("v_mov_b32", vU + 1, vU, None, "quad_perm:[1,0,3,2]")
        a(f"v_cvt_pk_bf16_f32 v{vU}, v{vU}, v{vU+1}\nv_min_u32 v{vU}, 0xfffffffe, v{vU}")
        setexec(0x55555555)
        store_local(f"buffer_store_dword v{vU}, v{vaStH}, {sr(sWS,4)}, s{sB} offen")
        setexec(FULL)
        a(f"{lab}:")
        ts_dyn("g_pub0", "g_pub1")

    def d_phase():
        lab0 = a.label("dr0"); l2 = a.label("dr"); ok2 = a.label("drok")
        l = a.label("dp"); ok = a.label("dok"); one = a.label("done"); l3 = a.label("dp1");
        a(f"s_cmp_eq_u32 s{sW}, 3\ns_cbranch_scc1 {l3}")
        setexec(EM2)
        a(f"{l}:")
        a(f"buffer_load_dwordx4 {vr(vHop,4)}, v{vaH}, {sr(sWS,4)}, s{sHb} offen sc1")
        a(f"buffer_load_dwordx4 {vr(vHop+4,4)}, v{vaH}, {sr(sWS,4)}, s{sHb} offen offset:512 sc1")
        a("s_waitcnt vmcnt(0)")
        sent_check([vHop+i for i in range(8)], vT1, ok)
        spin_fail(l)
        a(f"{l3}:")
        setexec(EM2)
        a(f"{l3}b:")
        a(f"buffer_load_dwordx4 {vr(vHop,4)}, v{vaH}, {sr(sWS,4)}, s{sHb} offen sc1")
        a("s_waitcnt vmcnt(0)")
        sent_check([vHop+i for i in range(4)], vT1, ok)
        spin_fail(f"{l3}b")
        a(f"{ok}:")
        setexec(FULL)
        for nt in range(2):
            mfma(vAcc + 4*nt, vHop, ar(aWd + 4*nt, 4), "0")
        for nt in range(2):
            mfma(vAcc + 4*nt, vHop + 4, ar(aWd + 8 + 4*nt, 4))
        a(f"""
        v_permlane16_swap_b32 v{vAcc}, v{vAcc+1}
        v_permlane16_swap_b32 v{vAcc+4}, v{vAcc+5}
        v_permlane32_swap_b32 v{vAcc}, v{vAcc+4}
        ds_write_b32 v{vaRedW}, v{vAcc} offset:{R_D}
        s_waitcnt lgkmcnt(0)
        s_barrier
        """)
        lab = a.label("df")
        a(f"s_cmp_eq_u32 s{sW}, 0\ns_cbranch_scc0 {lab}")
        line_final(R_D)
        a(f"{lab}:")
        advance_hop()
        ts_dyn("d_pub0", "d_pub1")

    a(f"s_cmp_lt_u32 s{sM}, 16\ns_cbranch_scc0 L_roleB")
    def down_slices():
        a(f"""
        v_lshrrev_b32 v{vT0}, 2, v{vLane}
        v_lshlrev_b32 v{vT0}, 10, v{vT0}
        v_and_b32 v{vT1}, 3, v{vLane}
        v_lshl_add_u32 v{vT0}, v{vT1}, 4, v{vT0}
        s_mul_i32 s{sB}, s{sJ}, {224*1024}
        s_lshl_b32 s{sC}, s{sIdx}, 6
        s_add_u32 s{sB}, s{sB}, s{sC}
        s_lshl_b32 s{sC}, s{sW}, 15
        s_add_u32 s{sB}, s{sB}, s{sC}
        s_lshl_b32 s{sC}, s{sW}, 14
        s_add_u32 s{sC}, s{sC}, {L_K + W_DN}
        s_mov_b32 m0, s{sC}
        s_add_u32 s{sD}, s{sB}, 16384
        buffer_load_dwordx4 v{vT0}, {sr(sDN,4)}, s{sB} offen{SLN} lds
        s_add_u32 s{sC}, s{sC}, 1024
        s_mov_b32 m0, s{sC}
        s_nop 0
        buffer_load_dwordx4 v{vT0}, {sr(sDN,4)}, s{sD} offen{SLN} lds
        s_cmp_eq_u32 s{sW}, 3
        s_cbranch_scc1 L_nod2
        s_add_u32 s{sB}, s{sB}, {4*32768}
        s_add_u32 s{sC}, s{sC}, 1024
        s_mov_b32 m0, s{sC}
        s_add_u32 s{sD}, s{sB}, 16384
        buffer_load_dwordx4 v{vT0}, {sr(sDN,4)}, s{sB} offen{SLN} lds
        s_add_u32 s{sC}, s{sC}, 1024
        s_mov_b32 m0, s{sC}
        s_nop 0
        buffer_load_dwordx4 v{vT0}, {sr(sDN,4)}, s{sD} offen{SLN} lds
        L_nod2:
        """)
    def down_operands():
        a(f"s_lshl_b32 s{sB}, s{sW}, 14")
        tr_base(vT0, 64, 8, sB, L_K + W_DN)
        for nt in range(2):
            a(f"ds_read_b64_tr_b16 {ar(aWd+4*nt,2)}, v{vT0} offset:{nt*32}")
            a(f"ds_read_b64_tr_b16 {ar(aWd+4*nt+2,2)}, v{vT0} offset:{nt*32+256}")
        a(f"s_cmp_eq_u32 s{sW}, 3\ns_cbranch_scc1 L_dn3")
        for nt in range(2):
            a(f"ds_read_b64_tr_b16 {ar(aWd+8+4*nt,2)}, v{vT0} offset:{2048+nt*32}")
            a(f"ds_read_b64_tr_b16 {ar(aWd+8+4*nt+2,2)}, v{vT0} offset:{2048+nt*32+256}")
        a("s_branch L_dn4\nL_dn3:")
        for i in range(8): a(f"v_accvgpr_write_b32 a{aWd+8+i}, 0")
        a("L_dn4:")
    g.role = "A"; ts_split = g.ts
    def wo_slices():
        if cfg.line_pf and "o" in cfg.pf_which:
            a(f"""
            v_lshlrev_b32 v{vT0}, 7, v{vLane}
            s_lshl_b32 s{sB}, s{sJ}, 19
            s_lshl_b32 s{sC}, s{sIdx}, 15
            s_add_u32 s{sB}, s{sB}, s{sC}
            s_lshl_b32 s{sC}, s{sW}, 13
            s_add_u32 s{sB}, s{sB}, s{sC}
            buffer_load_dword v{vJ}, v{vT0}, {sr(sW2,4)}, s{sB} offen{cfg.pf_pol_o}
            """)
        a(f"""
        v_lshrrev_b32 v{vT0}, 2, v{vLane}
        v_lshlrev_b32 v{vT0}, 10, v{vT0}
        v_and_b32 v{vT1}, 3, v{vLane}
        v_lshl_add_u32 v{vT0}, v{vT1}, 4, v{vT0}
        s_lshl_b32 s{sB}, s{sJ}, 19
        s_lshl_b32 s{sC}, s{sW}, 17
        s_add_u32 s{sB}, s{sB}, s{sC}
        s_lshl_b32 s{sC}, s{sIdx}, 6
        s_add_u32 s{sB}, s{sB}, s{sC}
        s_lshl_b32 s{sC}, s{sW}, 14
        s_add_u32 s{sC}, s{sC}, {L_K}
        """)
        for u in range(8):
            a(f"""
            s_mov_b32 m0, s{sC}
            s_add_u32 s{sC}, s{sC}, 1024
            buffer_load_dwordx4 v{vT0}, {sr(sW2,4)}, s{sB} offen{SLN} lds
            s_add_u32 s{sB}, s{sB}, {16*1024}
            """)
    if cfg.w_inter:
        s1_tail(nPF)
        db_setup(0, 1)
        a(f"s_mov_b32 s{sXr}, {WS_X}")
    elif cfg.wsA:
        wo_slices()
        s1_tail(8 + nPF)
        db_setup(0, 1)
    else:
        s1_tail(nPF)
        db_setup(0, 1)
        wo_slices()
    a(f"v_mov_b32 v{vRes}, 0")
    lab = a.label("r0")
    a(f"""
    s_cmp_eq_u32 s{sJ}, 0
    s_cbranch_scc0 {lab}
    v_and_b32 v{vT0}, 1, v{vQd}
    v_lshlrev_b32 v{vT0}, 10, v{vT0}
    v_lshrrev_b32 v{vT1}, 1, v{vQd}
    v_lshl_add_u32 v{vT0}, v{vT1}, 5, v{vT0}
    v_lshl_add_u32 v{vT0}, v{vR16}, 1, v{vT0}
    s_lshl_b32 s{sB}, s{sIdx}, 6
    buffer_load_ushort v{vRes}, v{vT0}, {sr(sX0,4)}, s{sB} offen
    {lab}:
    """)
    nspec = 0
    if cfg.o_spec:
        a(f"buffer_load_dwordx3 {vr(vSt,3)}, v{vaS0}, {sr(sWS,4)}, s{sOcons} offen sc1")
        a(f"buffer_load_dwordx3 {vr(vSt+4,3)}, v{vaS1}, {sr(sWS,4)}, s{sOcons} offen sc1")
        nspec = 2
    if cfg.w_inter:
        a(f"s_waitcnt vmcnt({nspec})")
        for half, (sh, base) in enumerate(((12, L_WQ), (14, L_K))):
            a(f"s_lshl_b32 s{sB}, s{sW}, {sh}")
            tr_base(vT0, 64, 4, sB, base)
            for c2 in range(2):
                c = 2*half + c2
                for nt in range(2):
                    a(f"ds_read_b64_tr_b16 {ar(aW2+8*c+4*nt,2)}, v{vT0} offset:{c2*2048+nt*32}")
                    a(f"ds_read_b64_tr_b16 {ar(aW2+8*c+4*nt+2,2)}, v{vT0} offset:{c2*2048+nt*32+1024}")
    else:
        a(f"s_lshl_b32 s{sB}, s{sW}, 14")
        tr_base(vT0, 64, 4, sB, L_K)
        a(f"s_waitcnt vmcnt({nspec})")
        for c in range(4):
            for nt in range(2):
                a(f"ds_read_b64_tr_b16 {ar(aW2+8*c+4*nt,2)}, v{vT0} offset:{c*2048+nt*32}")
                a(f"ds_read_b64_tr_b16 {ar(aW2+8*c+4*nt+2,2)}, v{vT0} offset:{c*2048+nt*32+1024}")
    a(f"v_lshlrev_b32 v{vResF}, 16, v{vRes}")
    a("s_waitcnt lgkmcnt(0)")
    ts("wo_ready")
    if cfg.o_spec:
        a(f"""
        s_add_u32 s{sA}, s{sT}, 1
        s_waitcnt vmcnt(0)
        v_xor_b32 v{vT0}, s{sA}, v{vSt+2}
        v_xor_b32 v{vT1}, s{sA}, v{vSt+6}
        v_or_b32 v{vT0}, v{vT0}, v{vT1}
        v_cmp_ne_u32 vcc, 0, v{vT0}
        s_cbranch_vccz L_heavy
        """)
    a("L_loopA:")
    o_phase()
    lab = a.label("dn")
    a(f"s_cmp_eq_u32 s{sL}, 0\ns_cbranch_scc0 {lab}")
    down_slices()
    if cfg.tag_split:
        tag_issue()
        a("s_waitcnt vmcnt(1)")
        down_operands()
        tag_finish()
    else:
        tag_check_all()
    if not cfg.tag_split: down_operands()
    if cfg.warm_out:
        lw = a.label("wout")
        a(f"""
        s_cmp_ge_u32 s{sIdx}, 2
        s_cbranch_scc1 {lw}
        s_lshl_b32 s{sB}, s{sJ}, 1
        s_add_u32 s{sB}, s{sB}, s{sIdx}
        s_lshl_b32 s{sB}, s{sB}, 6
        v_lshlrev_b32 v{vT0}, 10, v{vLane}
        s_mov_b64 exec, 3
        buffer_load_dword v{vJ}, v{vT0}, {sr(sOUT,4)}, s{sB} offen
        s_mov_b64 exec, -1
        {lw}:
        """)
    a("s_waitcnt lgkmcnt(0)\ns_barrier")
    a(f"{lab}:")
    d_phase()
    a(f"s_cmp_eq_u32 s{sL}, 1\ns_cbranch_scc1 L_finalA")
    a("s_branch L_q2s2")

    a("L_roleB:")
    g.role = "B"; g.ts = ts_split
    def gu_slices():
        a(f"""
        s_cmp_ge_u32 s{sIdx}, 14
        s_cbranch_scc1 L_nogu
        v_lshrrev_b32 v{vT0}, 1, v{vLane}
        v_mul_u32_u24 v{vT0}, 3584, v{vT0}
        v_and_b32 v{vT1}, 1, v{vLane}
        v_lshl_add_u32 v{vT0}, v{vT1}, 4, v{vT0}
        s_mul_i32 s{sB}, s{sW}, {128*3584}
        s_mul_i32 s{sC}, s{sJ}, 448
        s_add_u32 s{sB}, s{sB}, s{sC}
        s_lshl_b32 s{sC}, s{sIdx}, 5
        s_add_u32 s{sB}, s{sB}, s{sC}
        s_lshl_b32 s{sC}, s{sW}, 14
        s_add_u32 s{sC}, s{sC}, {L_K + W_GATE}
        """)
        for u in range(4):
            a(f"""
            s_mov_b32 m0, s{sC}
            s_add_u32 s{sD}, s{sC}, {W_UP - W_GATE}
            buffer_load_dwordx4 v{vT0}, {sr(sW2,4)}, s{sB} offen{SLN} lds
            s_mov_b32 m0, s{sD}
            s_add_u32 s{sC}, s{sC}, 1024
            buffer_load_dwordx4 v{vT0}, {sr(sUP,4)}, s{sB} offen{SLN} lds
            s_add_u32 s{sB}, s{sB}, {32*3584}
            """)
        a("L_nogu:")
    if cfg.wsB:
        gu_slices()
        s1_tail(8, maybe_none=True)
    else:
        s1_tail(nPF)
    if cfg.w_inter: a(f"s_mov_b32 s{sWb2}, s{sWb}\ns_mov_b32 s{sWst2}, s{sWst}")
    db_setup(1, 0)
    if cfg.w_inter: a(f"s_mov_b32 s{sXr}, {WS_X}")
    if cfg.pf_down:
        a(f"""
        v_lshrrev_b32 v{vT0}, 3, v{vLane}
        v_lshlrev_b32 v{vT0}, 10, v{vT0}
        v_and_b32 v{vT1}, 7, v{vLane}
        v_lshl_add_u32 v{vT0}, v{vT1}, 7, v{vT0}
        s_mul_i32 s{sB}, s{sJ}, 224
        s_mul_i32 s{sC}, s{sIdx}, 14
        s_add_u32 s{sB}, s{sB}, s{sC}
        s_lshl_b32 s{sC}, s{sW}, 2
        s_add_u32 s{sB}, s{sB}, s{sC}
        s_lshl_b32 s{sB}, s{sB}, 10
        s_cmp_eq_u32 s{sW}, 3
        s_cselect_b32 exec_lo, 0xffff, -1
        s_mov_b32 exec_hi, 0
        buffer_load_dword v{vJ}, v{vT0}, {sr(sDN,4)}, s{sB} offen{cfg.pf_down_pol}
        s_mov_b64 exec, -1
        """)
    if cfg.line_pf and "f" in cfg.pf_which:
        a(f"""
        v_mul_u32_u24 v{vT0}, 52, v{vLane}
        v_lshrrev_b32 v{vT0}, 8, v{vT0}            ; l/5 for l < 64
        v_mul_u32_u24 v{vT1}, 5, v{vT0}
        v_sub_u32 v{vT1}, v{vLane}, v{vT1}         ; l%5
        v_mul_u32_u24 v{vT0}, 3584, v{vT0}
        v_lshl_add_u32 v{vT0}, v{vT1}, 7, v{vT0}
        s_lshl_b32 s{sB}, s{sIdx}, 5
        s_lshl_b32 s{sC}, s{sW}, 3
        s_add_u32 s{sB}, s{sB}, s{sC}
        s_mul_i32 s{sB}, s{sB}, 3584
        s_mul_i32 s{sC}, s{sJ}, 448
        s_and_b32 s{sC}, s{sC}, 0xffffff80
        s_add_u32 s{sB}, s{sB}, s{sC}
        """)
        setexec((1 << 40) - 1)
        for off in ((0, 64) if "f" in cfg.sub2 else (0,)):
            a(f"buffer_load_dword v{vJ}, v{vT0}, {sr(sW2,4)}, s{sB} offen offset:{off}{cfg.pf_pol_f}")
            a(f"buffer_load_dword v{vJ}, v{vT0}, {sr(sUP,4)}, s{sB} offen offset:{off}{cfg.pf_pol_f}")
        setexec(FULL)
    if not cfg.wsB and not cfg.w_inter: gu_slices()
    if cfg.w_inter and cfg.w_interB != "gu":
        lab = a.label("wl")
        a(f"s_cmp_ge_u32 s{sIdx}, 14\ns_cbranch_scc1 {lab}")
        for part, key, srdq, sh, base in ((0, "g", sW2, 12, L_WQ), (1, "u", sUP, 14, L_K)):
            if key in cfg.w_interB: continue
            for u in range(4):
                a(f"""
                s_mul_i32 s{sB}, s{sWst2}, {u}
                s_add_u32 s{sB}, s{sB}, s{sWb2}
                s_lshl_b32 s{sC}, s{sW}, {sh}
                s_add_u32 s{sC}, s{sC}, {base + u*1024}
                s_mov_b32 m0, s{sC}
                s_nop 0
                buffer_load_dwordx4 v{vWs}, {sr(srdq,4)}, s{sB} offen{SLN} lds
                """)
        a(f"{lab}:")
    if cfg.tag_split:
        tag_issue()
        a("s_waitcnt vmcnt(1)")
    else:
        tag_check_all()
    ts("ffn_landed")
    a(f"s_cmp_ge_u32 s{sIdx}, 14\ns_cbranch_scc1 L_nogu2")
    if cfg.w_inter:
        for mat, (sh, base) in enumerate(((12, L_WQ), (14, L_K))):
            a(f"s_lshl_b32 s{sB}, s{sW}, {sh}")
            tr_base(vT0, 32, 8, sB, base)
            for u in range(4):
                a(f"ds_read_b64_tr_b16 {ar(aW2+8*u+4*mat,2)}, v{vT0} offset:{u*1024}")
                a(f"ds_read_b64_tr_b16 {ar(aW2+8*u+4*mat+2,2)}, v{vT0} offset:{u*1024+128}")
    else:
        a(f"s_lshl_b32 s{sB}, s{sW}, 14")
        tr_base(vT0, 32, 8, sB, L_K + W_GATE)
        for u in range(4):
            for mat in range(2):
                a(f"ds_read_b64_tr_b16 {ar(aW2+8*u+4*mat,2)}, v{vT0} offset:{u*1024+mat*(W_UP-W_GATE)}")
                a(f"ds_read_b64_tr_b16 {ar(aW2+8*u+4*mat+2,2)}, v{vT0} offset:{u*1024+mat*(W_UP-W_GATE)+128}")
    a("s_waitcnt lgkmcnt(0)")
    for u in range(4):
        mfma(vAcc, vOnes, ar(aW2 + 8*u, 4), "0" if u == 0 else None)
        mfma(vAcc + 4, vOnes, ar(aW2 + 8*u + 4, 4), "0" if u == 0 else None)
    a(f"s_nop 7\nds_write_b32 v{vaRedW}, v{vAcc} offset:{R_COL}\nds_write_b32 v{vaRedW}, v{vAcc+4} offset:{R_COL2}")
    a("L_nogu2:")
    if cfg.tag_split: tag_finish()
    a("s_waitcnt lgkmcnt(0)\ns_barrier")
    if cfg.epoch_early:
        le = a.label("ep")
        a(f"""
        s_xor_b32 s{sB}, s{sM}, 30
        s_or_b32 s{sB}, s{sB}, s{sJ}
        s_or_b32 s{sB}, s{sB}, s{sW}
        s_cmp_eq_u32 s{sB}, 0
        s_cbranch_scc0 {le}
        """)
        a(f"v_mov_b32 v{vT0}, {WS_EPOCH}\nv_mov_b32 v{vT1}, s{sT}\ns_mov_b64 exec, 1")
        a(f"buffer_store_dword v{vT1}, v{vT0}, {sr(sWS,4)}, 0 offen sc1")
        a("s_mov_b64 exec, -1")
        a(f"{le}:")
    a(f"""
    ds_read_b128 {vr(vU,4)}, v{vaFinW} offset:{R_COL}
    ds_read_b128 {vr(vU+4,4)}, v{vaFinW} offset:{R_COL2}
    s_waitcnt lgkmcnt(0)
    """)
    sum4r(vU); sum4r(vU + 4)
    a(f"v_mov_b32 v{vCg}, v{vU}\nv_mov_b32 v{vCu}, v{vU+4}")
    ts("ffn_ready")
    a("L_loopB:")
    lg = a.label("nog")
    a(f"s_cmp_ge_u32 s{sIdx}, 14\ns_cbranch_scc1 {lg}")
    g_phase()
    a(f"{lg}:")
    if cfg.junk_dirty:
        lj = a.label("jk")
        a(f"s_cmp_eq_u32 s{sL}, 0\ns_cbranch_scc0 {lj}")
        a(f"s_lshl_b32 s{sB}, s2, 2\ns_add_u32 s{sB}, s{sB}, s{sW}\ns_mul_i32 s{sB}, s{sB}, {cfg.junk_dirty*1024}\ns_add_u32 s{sB}, s{sB}, 0x400000\nv_lshlrev_b32 v{vT0}, 4, v{vLane}")
        for i in range(cfg.junk_dirty):
            a(f"buffer_store_dwordx4 {vr(vP,4)}, v{vT0}, {sr(sWS,4)}, s{sB} offen\ns_add_u32 s{sB}, s{sB}, 1024")
        a(f"{lj}:")
    a(f"s_cmp_eq_u32 s{sL}, 1\ns_cbranch_scc1 L_fin")

    a("L_q2s2:")
    save_role, save_ts = g.role, g.ts
    g.role = "C"; g.ts = getattr(g, "maxts", g.ts)
    lab = a.label("wo")
    a(f"s_cmp_lt_u32 s{sM}, 16\ns_cbranch_scc{1 if cfg.warm_by_B else 0} {lab}")
    warm_q2()
    warm_o(1)
    a(f"{lab}:")
    if cfg.db_q: db_wait(None, const_hop=1)
    if cfg.diag and cfg.ts_only and "q2_db" in cfg.ts_only:
        ts("q2_db")
    a(f"s_mov_b32 s{sD}, {WS_X + X_HOP}")
    x_poll(sD, XA, cfg.sleep_x)
    ts("q2_got")
    q_core(XA)
    q_final(False)
    ts("q2_pub")
    l = a.label("qp"); ok = a.label("qok")
    setexec(EM4)
    a(f"{l}:")
    for c in range(4):
        a(f"buffer_load_dwordx4 {vr(vQ+4*c,4)}, v{vaQ2}, {sr(sWS,4)}, s{sQ2r} offen offset:{c*256} sc1")
    a("s_waitcnt vmcnt(0)")
    sent_check([vQ+i for i in range(16)], vT0, ok)
    spin_fail(l)
    a(f"{ok}:")
    setexec(FULL)
    ts("q2_gath")
    a(f"""
    s_add_u32 s{sOown}, s{sOown}, {O_L}
    s_add_u32 s{sOcons}, s{sOcons}, {O_L}
    s_add_u32 s{sXr}, s{sXr}, {2*X_HOP}
    s_add_u32 s{sHb}, s{sHb}, 8192
    s_mov_b32 s{sL}, 1
    """)
    s_qk_max()
    s_exp_p()
    if cfg.stats_mid:
        lw3 = a.label("s3"); lw4 = a.label("s4")
        a(f"s_cmp_eq_u32 s{sW}, 3\ns_cbranch_scc1 {lw3}")
        for blk in range(8):
            a(f"s_waitcnt lgkmcnt({7-blk})")
            pv([blk], blk == 0)
        a(f"s_branch {lw4}\n{lw3}:")
        a(f"""
        ds_read_b128 {vr(vU+4,4)}, v{vaSm} offset:{L_LSUM-L_SMAX}
        s_add_u32 s{sB}, s{sT}, s{sL}
        s_add_u32 s{sB}, s{sB}, 1
        v_mov_b32 v{vMc+2}, s{sB}
        """)
        for blk in range(4):
            a(f"s_waitcnt lgkmcnt({8-blk})")
            pv([blk], blk == 0)
        a("s_waitcnt lgkmcnt(0)")
        sum4r(vU + 4)
        a(f"v_mov_b32 v{vMc+1}, v{vU+4}")
        setexec(0xF)
        store_local(f"buffer_store_dwordx4 {vr(vMc,4)}, v{vaStS}, {sr(sWS,4)}, s{sOown} offen")
        setexec(FULL)
        for blk in range(4, 8):
            pv([blk], False)
        a(f"{lw4}:")
        s_out()
    else:
        s_stats_prep()
        a("s_waitcnt lgkmcnt(0)")
        pv(list(range(8)), True)
        s_out()
        s_stats_store(None)
    ts("s2_pub")
    if cfg.diag and cfg.ts_only and "s2_ack" in cfg.ts_only:
        a("s_waitcnt vmcnt(0)")
        ts("s2_ack")
    a(f"s_cmp_lt_u32 s{sM}, 16\ns_cbranch_scc1 L_loopA\ns_branch L_loopB")

    a("L_finalA:")
    g.role = "A"; g.ts = getattr(g, "maxts", g.ts)
    a(f"""
    s_cmp_ge_u32 s{sIdx}, 2
    s_cbranch_scc1 L_fin
    s_cmp_eq_u32 s{sW}, 0
    s_cbranch_scc0 L_fin
    s_lshl_b32 s{sB}, s{sJ}, 1
    s_add_u32 s{sB}, s{sB}, s{sIdx}        ; cb
    s_lshl_b32 s{sC}, s{sB}, 10
    s_xor_b32 s{sD}, s{sC}, 0x2000
    s_add_u32 s{sD}, s{sD}, 16384
    s_lshr_b32 s{sA}, s{sXcc}, 2
    s_lshr_b32 s{sTmp2}, s{sB}, 3
    s_cmp_eq_u32 s{sA}, s{sTmp2}
    s_cselect_b32 s{sC}, s{sC}, s{sD}
    s_add_u32 s{sC}, s{sC}, {WS_X + 3*X_HOP}
    """)
    for nt in range(2):
        for dd in range(4):
            a(f"""
            v_lshlrev_b32 v{vT0}, 3, v{vQd}
            v_add_u32 v{vT0}, {2*dd - 16*nt}, v{vT0}
            v_sub_u32 v{vT0}, v{vT0}, v{vR16}
            v_mov_b32 v{vP+4*nt+dd}, 0
            v_cmp_eq_u32 vcc, 0, v{vT0}
            v_mov_b32 v{vT1}, 0x3f80
            v_cndmask_b32 v{vP+4*nt+dd}, v{vP+4*nt+dd}, v{vT1}, vcc
            v_cmp_eq_u32 vcc, -1, v{vT0}
            v_mov_b32 v{vT1}, 0x3f800000
            v_cndmask_b32 v{vP+4*nt+dd}, v{vP+4*nt+dd}, v{vT1}, vcc
            """)
    a(f"""
    v_lshrrev_b32 v{vT2}, 1, v{vQd}
    v_lshlrev_b32 v{vT2}, 10, v{vT2}
    v_and_b32 v{vT1}, 1, v{vQd}
    v_lshl_add_u32 v{vT2}, v{vT1}, 5, v{vT2}
    v_lshl_add_u32 v{vT2}, v{vR16}, 1, v{vT2}
    s_lshl_b32 s{sB}, s{sB}, 6
    """)
    a(f"s_mov_b32 s{sEx2}, s{sC}\ns_mov_b32 s{sEx2+1}, s{sB}")
    if cfg.db_final: db_wait(None, const_hop=3)
    a(f"s_mov_b32 s{sC}, s{sEx2}\ns_mov_b32 s{sB}, s{sEx2+1}")
    l = a.label("fp"); ok = a.label("fok")
    a(f"{l}:")
    a(f"buffer_load_dwordx4 {vr(vA,4)}, v{vaX}, {sr(sWS,4)}, s{sC} offen sc1")
    a("s_waitcnt vmcnt(0)")
    sent_check([vA+i for i in range(4)], vT0, ok)
    spin_fail(l, cfg.sleep_x)
    a(f"{ok}:")
    ts("fin_got")
    mfma(vAcc, vA, vP, "0"); mfma(vAcc + 4, vA, vP + 4, "0")
    sum4(vU, vAcc, vT3); sum4(vU + 1, vAcc + 4, vT3)
    a(f"""
    v_permlane16_swap_b32 v{vU}, v{vU+1}
    v_add_f32 v{vU}, v{vU}, v{vU+1}
    v_cvt_pk_bf16_f32 v{vU}, v{vU}, v{vU}
    buffer_store_short v{vU}, v{vT2}, {sr(sOUT,4)}, s{sB} offen
    """)
    if not cfg.epoch_early:
        a(f"""
        s_cmp_eq_u32 s{sB}, 0
        s_cbranch_scc0 L_fin
        v_mov_b32 v{vT0}, {WS_EPOCH}
        v_mov_b32 v{vT1}, s{sT}
        """)
        setexec(1)
        a(f"buffer_store_dword v{vT1}, v{vT0}, {sr(sWS,4)}, 0 offen sc1")
        setexec(FULL)

    a("L_fin:")
    if cfg.diag:
        g.role = "E"
        g.tsn["E"].append((NTS - 1, "end"))
        a(f"s_memrealtime s[{sTmp2}:{sTmp2+1}]\ns_waitcnt lgkmcnt(0)\ns_mov_b32 s{sTS+NTS-2}, s{sTmp2}")
        a(f"s_memtime s[{sTmp2}:{sTmp2+1}]\ns_waitcnt lgkmcnt(0)\ns_mov_b32 s{sTS+NTS-1}, s{sTmp2}")
        a(f"s_lshl_b32 s{sB}, s2, 3\ns_add_u32 s{sB}, s{sB}, s{sW}\ns_lshl_b32 s{sB}, s{sB}, 7\ns_add_u32 s{sB}, s{sB}, {WS_DIAG}\nv_mov_b32 v{vT0}, 0")
        setexec(1)
        for i in range(NTS):
            a(f"v_mov_b32 v{vT1}, s{sTS+i}\nbuffer_store_dword v{vT1}, v{vT0}, {sr(sWS,4)}, s{sB} offen offset:{4*i}")
        setexec(FULL)
        if cfg.dbg_dump is not None:
            a(f"""
            s_cmp_eq_u32 s2, {cfg.dbg_dump}
            s_cbranch_scc0 L_nodump
            s_cmp_eq_u32 s{sW}, 0
            s_cbranch_scc0 L_nodump
            s_load_dwordx2 s[{sTmp2}:{sTmp2+1}], s[0:1], 80
            s_waitcnt lgkmcnt(0)
            s_mov_b32 s{sA}, s{sTmp2}
            s_and_b32 s{sB}, s{sTmp2+1}, 0xffff
            s_mov_b32 s{sC}, 256
            s_mov_b32 s{sD}, 0x20000
            v_mov_b32 v{vT0}, 0
            s_mov_b64 exec, 1
            """)
            for i in range(1, 16):
                a(f"s_sub_u32 s{sTmp2}, s{sTS+i}, s{sTS}\nv_mov_b32 v{vT1}, s{sTmp2}\nbuffer_store_dword v{vT1}, v{vT0}, s[{sA}:{sD}], 0 offen offset:{4*(i-1)}")
            a(f"s_sub_u32 s{sTmp2}, s{sTS+NTS-1}, s{sTS}\nv_mov_b32 v{vT1}, s{sTmp2}\nbuffer_store_dword v{vT1}, v{vT0}, s[{sA}:{sD}], 0 offen offset:60")
            a("s_mov_b64 exec, -1\nL_nodump:")
    if cfg.dbg_span:
        a(f"""
        s_waitcnt vmcnt(0)
        s_cmp_eq_u32 s{sW}, 0
        s_cbranch_scc0 L_nospan
        s_memrealtime s[{sTmp2}:{sTmp2+1}]
        s_load_dwordx2 s[92:93], s[0:1], 80
        s_waitcnt lgkmcnt(0)
        s_mov_b32 s{sA}, s92
        s_and_b32 s{sB}, s93, 0xffff
        s_mov_b32 s{sC}, 256
        s_mov_b32 s{sD}, 0x20000
        v_mov_b32 v{vT0}, 8
        v_mov_b32 v{vT1}, s{sTmp2}
        s_not_b32 s94, s94
        v_mov_b32 v{vT2}, s94
        s_mov_b64 exec, 1
        buffer_atomic_umax v{vT1}, v{vT0}, s[{sA}:{sD}], 0 offen sc1
        buffer_atomic_umax v{vT2}, v{vT0}, s[{sA}:{sD}], 0 offen offset:4 sc1
        s_waitcnt vmcnt(0)
        L_nospan:
        """)
    a("s_waitcnt vmcnt(0)\ns_endpgm")
    a(f"""
    L_abort:
    s_mov_b64 exec, -1
    v_mov_b32 v{vT0}, 0
    v_mov_b32 v{vT1}, 0xdead
    s_load_dwordx2 s[{sTmp2}:{sTmp2+1}], s[0:1], 80
    s_waitcnt lgkmcnt(0)
    s_mov_b32 s{sA}, s{sTmp2}
    s_and_b32 s{sB}, s{sTmp2+1}, 0xffff
    s_mov_b32 s{sC}, 256
    s_mov_b32 s{sD}, 0x20000
    s_mov_b64 exec, 1
    buffer_store_dword v{vT1}, v{vT0}, s[{sA}:{sD}], 0 offen offset:4
    s_waitcnt vmcnt(0)
    L_end:
    s_endpgm
    """)
    for o in g.ool: a(o)
    a("L_codeend:\ns_endpgm")
    lines = a.text().rstrip("\n").split("\n")
    g.ninstr = sum(1 for l in lines if l.startswith("    ") and not l.strip().startswith(";"))
    lines = hazard.pad(lines)
    return g, "\n".join(lines) + "\n"

HEADER = open("interleave_layers__sliding_block_cached__glu_gated_glu__decode.s.ref").read().split("; Override launch")[0]

DESCR = """;
"""

def full(cfg):
    g, body = build(cfg)
    txt = HEADER
    txt += DESCR
    txt += f"; @launch grid=(256,1,1) block=(256,1,1) lds={LDS_BYTES}\n"
    txt += '.amdgcn_target "amdgcn-amd-amdhsa--gfx950"\n.text\n'
    txt += f".globl {NAME}\n.p2align 8\n.type {NAME},@function\n{NAME}:\n"
    txt += body
    txt += '.section .rodata,"a"\n.p2align 6\n'
    txt += f".amdhsa_kernel {NAME}\n  .amdhsa_next_free_vgpr {256 + g.amax}\n  .amdhsa_next_free_sgpr 102\n  .amdhsa_accum_offset 256\n"
    txt += "  .amdhsa_group_segment_fixed_size 0\n  .amdhsa_kernarg_size 96\n  .amdhsa_user_sgpr_count 2\n  .amdhsa_user_sgpr_kernarg_segment_ptr 1\n  .amdhsa_system_sgpr_workgroup_id_x 1\n.end_amdhsa_kernel\n"
    return g, txt

if __name__ == "__main__":
    cfg = Cfg()
    for kv in sys.argv[2:]:
        k, v = kv.split("="); setattr(cfg, k, eval(v))
    g, txt = full(cfg)
    open(sys.argv[1], "w").write(txt)
    print("vgprs", g.vmax, "agprs", g.amax, "instrs", g.ninstr, "ts", g.tsn)
```
